```python
import torch

def _softmax(x, axis=-1):
    return torch.softmax(x, dim=axis)
def _gelu(x):
    return torch.nn.functional.gelu(x, approximate="tanh")
def _silu(x):
    return torch.nn.functional.silu(x)
def _sigmoid(x):
    return torch.sigmoid(x)
def _layernorm(x, axis=-1, eps=1e-5):
    m = x.mean(dim=axis, keepdim=True)
    v = x.var(dim=axis, keepdim=True, unbiased=False)
    return (x - m) / torch.sqrt(v + eps)
def _scatter_add(tgt, idx, src, axis=0):
    return tgt.clone().index_add_(axis, idx, src)
def _segment_sum(src, seg, n):
    out = torch.zeros((n,) + src.shape[1:], dtype=src.dtype)
    return out.index_add_(0, seg, src)
def _pad(x, pw):
    flat = tuple(v for pair in reversed(pw) for v in pair)
    return torch.nn.functional.pad(x, flat)

kernel_name = 'recurrent_scan__sliding_block_cached__dense_activation_relu__prompt'

def setup_inputs():

    _w = (lambda a: (lambda t: t.to(torch.bfloat16) if t.is_floating_point() else t)(torch.as_tensor(a)))
    def _A_setup():
        B, Sq, D = 1, 2048, 448
        Hq, Hkv, Sk, Dh = 16, 8, 2048, 256
        assert Hq % Hkv == 0, (Hq, Hkv)
        return {
            "x": _w((lambda *s: torch.randn(*s, dtype=torch.bfloat16) * 0.05)(B, Sq, D)),
            "k_cache": _w((lambda *s: torch.randn(*s, dtype=torch.bfloat16) * 0.8)(B, Hkv, Sk, Dh)),
            "v_cache": _w((lambda *s: torch.randn(*s, dtype=torch.bfloat16) * 0.2)(B, Hkv, Sk, Dh)),
            "wq": _w((lambda *s: torch.randn(*s, dtype=torch.bfloat16) * 0.8)(D, Hq * Dh) * (D ** -0.5)),
            "wo": _w((lambda *s: torch.randn(*s, dtype=torch.bfloat16) * 0.2)(Hq * Dh, D) * ((Hq * Dh) ** -0.5)),
        }
    _A_in = _A_setup()

    def _B_setup():
        B, S, D, Dff = 1, 2048, 448, 1792
        return {
            "x": _w((lambda *s: torch.randn(*s, dtype=torch.bfloat16) * 0.05)(B, S, D)),
            "w1": _w((lambda *s: torch.randn(*s, dtype=torch.bfloat16) * 0.1)(D, Dff)),
            "w2": _w((lambda *s: torch.randn(*s, dtype=torch.bfloat16) * 0.1)(Dff, D)),
        }
    _B_in = _B_setup()

    return {
        "A_x": _A_in["x"],
        "A_k_cache": _A_in["k_cache"],
        "A_v_cache": _A_in["v_cache"],
        "A_wq": _A_in["wq"],
        "A_wo": _A_in["wo"],
        "B_x": _B_in["x"],
        "B_w1": _B_in["w1"],
        "B_w2": _B_in["w2"],
    }

def reference(A_x, A_k_cache, A_v_cache, A_wq, A_wo, B_x, B_w1, B_w2):
    def _A_ref(x, k_cache, v_cache, wq, wo):
        B, Sq, D = x.shape
        Hq, Dh = 16, 256
        Hkv, Sk = k_cache.shape[1], k_cache.shape[2]
        W = min(4096, max(256, Sk // 4))
        rep = Hq // Hkv
        q = (lambda x, *d: x.permute(*d))((x @ wq).reshape(B, Sq, Hq, Dh), 0, 2, 1, 3)
        k = (lambda x, n, axis: torch.repeat_interleave(x, n, dim=axis))(k_cache[:, :, Sk - W:, :], rep, axis=1)
        v = (lambda x, n, axis: torch.repeat_interleave(x, n, dim=axis))(v_cache[:, :, Sk - W:, :], rep, axis=1)
        scores = torch.einsum("bhqd,bhkd->bhqk", q, k) * (Dh ** -0.5)
        p = _softmax(scores, axis=-1)
        o = torch.einsum("bhqk,bhkd->bhqd", p, v)
        return (lambda x, *d: x.permute(*d))(o, 0, 2, 1, 3).reshape(B, Sq, Hq * Dh) @ wo

    def _B_ref(x, w1, w2):
        h = torch.einsum("bsd,df->bsf", x, w1)
        zero = torch.zeros_like(h)
        h = torch.maximum(h, zero)
        return torch.einsum("bsf,fd->bsd", h, w2)

    x = A_x
    xn = _layernorm(x, axis=-1)
    s = _A_ref(xn, A_k_cache, A_v_cache, A_wq, A_wo)
    g = _silu(_B_ref(xn, B_w1, B_w2))
    return x + s * g
```

```python
import re

REG_RE = re.compile(r'\b([vas])\[(\d+):(\d+)\]|\b([vas])(\d+)\b|\b(vcc|exec|m0|scc)(?:_lo|_hi)?\b')

def regs_of(tok):
    out = []
    for m in REG_RE.finditer(tok):
        if m.group(1):
            out += [(m.group(1), i) for i in range(int(m.group(2)), int(m.group(3)) + 1)]
        elif m.group(4):
            out.append((m.group(4), int(m.group(5))))
        else:
            out.append((m.group(6), 0))
    return out

TRANS = ('v_exp_f32', 'v_log_f32', 'v_rcp_f32', 'v_rsq_f32', 'v_sqrt_f32', 'v_sin_f32', 'v_cos_f32')

class Ins:
    __slots__ = ('text', 'op', 'cls', 'dst', 'src', 'tag', 'srcC', 'srcAB', 'note', 'wide_store', 'sdata')
    def __init__(self, text, tag=None):
        self.text = text.strip()
        self.tag = tag
        t = self.text.split(';')[0].strip()
        self.srcC = []; self.srcAB = []; self.wide_store = False; self.sdata = []
        if t.endswith(':'):
            self.op = 'label'; self.cls = 'label'; self.dst = []; self.src = []; return
        if t.startswith('.') or t == '':
            self.op = 'dir'; self.cls = 'dir'; self.dst = []; self.src = []; return
        parts = t.split(None, 1)
        op = parts[0]; self.op = op
        ops = [o.strip() for o in re.sub(r'op_sel\w*:\[[^\]]*\]', '', parts[1]).split(',')] if len(parts) > 1 else []
        R = [regs_of(o) for o in ops]
        flat = lambda l: [x for y in l for x in y]
        dst = []; src = []
        if op.startswith('v_mfma'):
            self.cls = 'mfma'; dst = R[0]; src = flat(R[1:]); self.srcC = R[3]; self.srcAB = R[1] + R[2]
        elif op.startswith('v_cmp'):
            self.cls = 'valu'; dst = R[0]; src = flat(R[1:])
        elif op.startswith('v_permlane'):
            self.cls = 'perm'; dst = R[0] + R[1]; src = R[0] + R[1]
        elif op.startswith('v_readfirstlane') or op.startswith('v_readlane'):
            self.cls = 'rdlane'; dst = R[0]; src = flat(R[1:])
        elif op.startswith('v_'):
            self.cls = 'trans' if op.replace('_e32', '').replace('_e64', '') in TRANS else 'valu'
            if op.startswith('v_dot2'): self.cls = 'dot'
            dst = R[0]; src = flat(R[1:])
            if op.startswith('v_fmac') or op.startswith('v_dot2c'): src += R[0]
            if op.startswith('v_add_co') or op.startswith('v_addc_co') or op.startswith('v_sub_co'):
                dst = R[0] + R[1]; src = flat(R[2:])
        elif op.startswith('ds_read') or op.startswith('ds_bpermute') or op.startswith('ds_swizzle'):
            self.cls = 'ds'; dst = R[0]; src = flat(R[1:])
        elif op.startswith('ds_'):
            self.cls = 'ds'; src = flat(R)
        elif op.startswith('buffer_load') or op.startswith('global_load'):
            self.cls = 'vmem'
            if re.search(r'\blds\b', t) or 'load_lds' in op:
                src = flat(R) + [('m0', 0)]
            else:
                dst = R[0]; src = flat(R[1:])
        elif op.startswith('buffer_store'):
            self.cls = 'vmem'; src = flat(R); self.sdata = R[0]; self.wide_store = op.endswith('x4') or op.endswith('x3')
        elif op.startswith('global_store'):
            self.cls = 'vmem'; src = flat(R); self.sdata = R[1]; self.wide_store = op.endswith('x4') or op.endswith('x3')
        elif op.startswith('buffer_atomic') or op.startswith('global_atomic'):
            self.cls = 'vmem'; src = flat(R)
        elif op in ('buffer_inv', 'buffer_wbl2'):
            self.cls = 'vmem'
        elif op.startswith('s_load') or op.startswith('s_memtime') or op.startswith('s_memrealtime'):
            self.cls = 'smem'; dst = R[0]; src = flat(R[1:])
        elif op == 's_waitcnt':
            self.cls = 'wait'
        elif op == 's_nop':
            self.cls = 'nop'
        elif op in ('s_barrier', 's_endpgm', 's_sleep', 's_setprio'):
            self.cls = 'misc'
        elif op.startswith('s_cbranch') or op == 's_branch':
            self.cls = 'branch'
            if 'vcc' in op: src = [('vcc', 0)]
            if 'scc' in op: src = [('scc', 0)]
            if 'exec' in op: src = [('exec', 0)]
        elif op.startswith('s_cmp') or op.startswith('s_bitcmp'):
            self.cls = 'salu'; dst = [('scc', 0)]; src = flat(R)
        elif op.startswith('s_'):
            self.cls = 'salu'; dst = R[0] + [('scc', 0)]; src = flat(R[1:])
            if op.startswith('s_mov') or op.startswith('s_cselect') or op.startswith('s_mul_i32') or op.startswith('s_getpc') or op.startswith('s_mul_hi'): dst = R[0]
            if op.startswith('s_addc') or op.startswith('s_cselect') or op.startswith('s_subb'): src += [('scc', 0)]
            if op.startswith('s_bitset'): src += R[0]; dst = R[0]
            if op.startswith('s_ff1'): dst = R[0]
            if 'saveexec' in op: dst += [('exec', 0)]; src += [('exec', 0)]
        else:
            raise ValueError('unknown op ' + t)
        if tag == 'pf': dst = []
        self.dst = dst; self.src = src

VALU_LIKE = ('valu', 'trans', 'perm', 'rdlane', 'dot')

class Prog:
    def __init__(self):
        self.ins = []
    def emit(self, text, tag=None):
        for line in text.strip('\n').split('\n'):
            if line.strip() == '': continue
            self.ins.append(Ins(line, tag))
    def wait_vm_tag(self, tags):
        i = Ins('s_waitcnt vmcnt(0)'); i.tag = ('waitvm', set(tags) if isinstance(tags, (list, set, tuple)) else {tags}); self.ins.append(i); return i
    def wait_lgkm_tag(self, tags):
        i = Ins('s_waitcnt lgkmcnt(0)'); i.tag = ('waitlg', set(tags) if isinstance(tags, (list, set, tuple)) else {tags}); self.ins.append(i); return i

def mk_wait_vm(tags):
    i = Ins('s_waitcnt vmcnt(0)'); i.tag = ('waitvm', set(tags)); return i
def mk_wait_lg(tags):
    i = Ins('s_waitcnt lgkmcnt(0)'); i.tag = ('waitlg', set(tags)); return i

def resolve(ins, verbose=True):
    out = []
    vq = []
    lq = []
    smem_pending = []
    log = []
    ws = 0
    last_valu_w = {}
    last_trans_w = {}
    last_mfma_w = {}
    last_mfma_c = {}
    last_dot_w = {}
    last_salu_m0 = -100
    last_pk = -100
    last_store = {}
    stats = {'auto_lg': 0, 'auto_vm': 0, 'nops': 0}
    def push(i):
        nonlocal ws
        out.append(i)
        if i.cls in ('label', 'dir'): return
        if i.cls == 'nop':
            ws += int(i.text.split()[1]) + 1
        else:
            ws += 1
    def apply_wait(text):
        nonlocal vq, lq, smem_pending
        m = re.search(r'vmcnt\((\d+)\)', text)
        if m:
            n = int(m.group(1)); vq = vq[len(vq) - n:] if n < len(vq) else vq
            if n == 0: vq = []
        m = re.search(r'lgkmcnt\((\d+)\)', text)
        if m:
            n = int(m.group(1)); lq = lq[len(lq) - n:] if n < len(lq) else lq
            if n == 0: lq = []; smem_pending = []
    for i in ins:
        if i.cls == 'wait' and isinstance(i.tag, tuple) and i.tag[0] in ('waitvm', 'waitlg'):
            q = vq if i.tag[0] == 'waitvm' else lq
            idx = -1
            for k, o in enumerate(q):
                if o.tag in i.tag[1]: idx = k
            if idx < 0:
                continue
            n = len(q) - 1 - idx
            if i.tag[0] == 'waitvm':
                n = min(n, 63)
                j = Ins(f's_waitcnt vmcnt({n})')
            else:
                if smem_pending: n = 0
                n = min(n, 15)
                j = Ins(f's_waitcnt lgkmcnt({n})')
            apply_wait(j.text); push(j); continue
        if i.cls == 'wait':
            apply_wait(i.text); push(i); continue
        if i.cls in ('label', 'dir'):
            push(i); continue
        touched = set(i.src) | set(i.dst)
        idx = -1
        for k, o in enumerate(lq):
            if touched & set(o.dst): idx = k
        if idx >= 0 and not (i.cls == 'ds' and not (set(i.src) & set(x for o in lq for x in o.dst))):
            n = len(lq) - 1 - idx
            if smem_pending: n = 0
            n = min(n, 15)
            j = Ins(f's_waitcnt lgkmcnt({n})'); apply_wait(j.text); push(j); stats['auto_lg'] += 1
            log.append(f'auto lgkm({n}) before: {i.text}')
        if any(touched & set(o.dst) for o in smem_pending):
            j = Ins('s_waitcnt lgkmcnt(0)'); apply_wait(j.text); push(j); stats['auto_lg'] += 1
        idx = -1
        for k, o in enumerate(vq):
            if touched & set(o.dst): idx = k
        if idx >= 0:
            n = min(len(vq) - 1 - idx, 63)
            if True:
                j = Ins(f's_waitcnt vmcnt({n})'); apply_wait(j.text); push(j); stats['auto_vm'] += 1
                log.append(f'auto vm({n}) before: {i.text}')
        need = 0
        def req(prod_ws, d):
            nonlocal need
            need = max(need, d - (ws - prod_ws))
        if i.cls == 'mfma':
            req(last_pk, 3)
            for r in i.src:
                if r in last_valu_w: req(last_valu_w[r], 2)
                if r in last_dot_w: req(last_dot_w[r], 3)
            for r in i.srcAB:
                if r in last_mfma_w: req(last_mfma_w[r][0], 8)
            for r in i.srcC:
                if r in last_mfma_w and last_mfma_w[r][1] != tuple(i.srcC): req(last_mfma_w[r][0], 6)
            for r in i.dst:
                if r in last_mfma_w and last_mfma_w[r][1] != tuple(i.srcC): req(last_mfma_w[r][0], 6)
        else:
            if i.cls in VALU_LIKE or i.cls in ('ds', 'vmem'):
                for r in touched:
                    if r in last_mfma_w: req(last_mfma_w[r][0], 8)
                    if r in last_dot_w and not (i.cls == 'dot'): req(last_dot_w[r], 3)
            if i.cls == 'dot':
                for r in i.src[:2]:
                    if r in last_dot_w: req(last_dot_w[r], 3)
            if i.cls in VALU_LIKE:
                for r in i.dst:
                    if r in last_mfma_c: req(last_mfma_c[r], 3)
                    if r in last_store: req(last_store[r], 2)
                for r in i.src:
                    if r in last_trans_w and i.cls != 'trans': req(last_trans_w[r], 1)
                    if r[0] in ('s', 'vcc') and r in last_valu_w: req(last_valu_w[r], 2)
                if 'dpp' in i.text or 'row_' in i.text or 'quad_perm' in i.text:
                    for r in i.src:
                        if r in last_valu_w: req(last_valu_w[r], 2)
            if i.cls in ('ds', 'vmem'):
                for r in i.dst:
                    if r in last_store: req(last_store[r], 1)
                for r in i.src:
                    if r in last_trans_w: req(last_trans_w[r], 1)
            if i.cls == 'perm':
                for r in i.src:
                    if r in last_valu_w: req(last_valu_w[r], 2)
            if i.cls == 'rdlane':
                for r in i.src:
                    if r in last_valu_w: req(last_valu_w[r], 1 if r[0] == 'v' else 4)
            if i.cls == 'vmem':
                for r in i.src:
                    if r[0] == 's' and r in last_valu_w: req(last_valu_w[r], 5)
                if ('m0', 0) in i.src: req(last_salu_m0, 1)
            if i.cls in ('salu', 'branch'):
                for r in i.src:
                    if r[0] in ('s', 'vcc') and r in last_valu_w: req(last_valu_w[r], 1)
        while need > 0:
            k = min(need, 16)
            push(Ins(f's_nop {k-1}')); stats['nops'] += k; need -= k
            log.append(f'nop {k} before: {i.text}')
        push(i)
        if i.op.startswith('v_pk_') or i.op.startswith('v_dot'): last_pk = ws
        if i.cls == 'mfma':
            for r in i.dst:
                last_mfma_w[r] = (ws, tuple(i.dst)); last_valu_w.pop(r, None)
            for r in i.srcC: last_mfma_c[r] = ws
        elif i.cls in VALU_LIKE:
            for r in i.dst:
                last_valu_w[r] = ws; last_mfma_w.pop(r, None)
                if i.cls == 'trans': last_trans_w[r] = ws
                else: last_trans_w.pop(r, None)
                if i.cls == 'dot': last_dot_w[r] = ws
                else: last_dot_w.pop(r, None)
        elif i.cls == 'salu':
            for r in i.dst:
                last_valu_w.pop(r, None)
                if r == ('m0', 0): last_salu_m0 = ws
        if i.cls == 'ds': lq.append(i)
        if i.cls == 'vmem':
            vq.append(i)
            if i.wide_store:
                for r in i.sdata: last_store[r] = ws
        if i.cls == 'smem': smem_pending.append(i)
    return out, log, stats

def render(ins):
    s = []
    for i in ins:
        s.append(i.text if i.cls in ('label', 'dir') else '    ' + i.text)
    return '\n'.join(s) + '\n'
```

```python
import sys, os, math, struct
from asmlib import *

NAME = "recurrent_scan__sliding_block_cached__dense_activation_relu__prompt"
OPT = dict(D=8, NA=12, HX=4, BAR=2, STAMP=0, DUMP='', SIGG=40, POLLG=98, FORCEFB=0, LOG=0)
for a_ in sys.argv[2:]:
    k_, v_ = a_.split('=')
    OPT[k_] = v_ if k_ == 'DUMP' else int(v_)
D = OPT['D']; NA = OPT['NA']

RING_SLOTS = 10
SLOT = 16384
LDS_BYTES = 163840
W2SLOT = 32768
WS_S = 0
WS_H = 0x1C00000
WS_F = 0x2300000
WS_DBG = 0x2400000
WS_SIZE = 0x8000000
OOB = 0x7f000000
CSCALE = math.log2(math.e) / 16.0
def f2u(x): return struct.unpack('<I', struct.pack('<f', x))[0]
def hx(x): return f"0x{x & 0xffffffff:x}"

sX, sW1, sWQ, sKK, sVV, sWO, sW2, sWS, sOUT = 28, 32, 36, 40, 44, 48, 52, 56, 60
def srd(b): return f"s[{b}:{b+3}]"
sW, sHD, sT, sWB, sSO = 64, 65, 66, 67, 68
sT0, sT1, sT2, sT3 = 69, 70, 71, 3
sWQT = 72
sHST, sHST2, sHST3, sHLD, sSST, sSG, sW7, sTG1, sFLG, sFLP, sCNT, sSO2 = 86, 87, 88, 89, 90, 91, 92, 93, 94, 95, 96, 97
sWP = 15
sM1, sM2, sM3, sMD = 4, 6, 8, 10
sSV0, sSV1, sSV2 = 12, 13, 14
sSTMP = 16
DBGP = "s[22:23]"
vL16, vL8, vT0, vT1, vT2, vT3, vT4 = 1, 2, 3, 4, 5, 6, 7
vTR = 8
vRA = 20
vZ, vONE, vPOLL, vSTAMP = 28, 29, 30, 31
vWQ, vKD, vVD, vWOD, vW2D = 32, 36, 40, 32, 36
vXN = 44
vR = 156
vO = 128
vS = 44
vP = 76
vC = 92
vLS = 100
vM = 106
vA4 = 44
aF, aST, aQ, aH = 0, 48, 80, 144

def v(i, n=1): return f"v{i}" if n == 1 else f"v[{i}:{i+n-1}]"
def a(i, n=1): return f"a{i}" if n == 1 else f"a[{i}:{i+n-1}]"
def mfma(d, A, B, C): return f"v_mfma_f32_16x16x32_bf16 {d}, {A}, {B}, {C}"
def I(t, tag=None): return Ins(t, tag)
lg = lambda x: int(math.log2(x))

P = Prog()
E = P.emit

nstamp = [0]
def stamp_ins():
    if not OPT['STAMP']: return []
    n = nstamp[0]; nstamp[0] += 1
    return [I(f"s_memtime s[{sSTMP}:{sSTMP+1}]"), I("s_waitcnt lgkmcnt(0)"), I(f"v_writelane_b32 v{vSTAMP}, s{sSTMP}, {n}")]
def STAMP():
    P.ins += stamp_ins()

E(f"""
s_cmp_ge_u32 s2, 256
s_cbranch_scc1 L_end
s_load_dwordx16 s[4:19], s[0:1], 0
s_load_dwordx4 s[20:23], s[0:1], 64
s_load_dwordx2 s[24:25], s[0:1], 80
""")
if OPT['STAMP']: E("s_memtime s[98:99]\ns_memrealtime s[100:101]")
HX = OPT['HX']; NHG = 16 // HX
E(f"""
s_and_b32 s{sT0}, s2, 7
s_lshr_b32 s{sT1}, s2, 3
s_and_b32 s{sT2}, s{sT0}, {NHG-1}
s_lshl_b32 s{sT2}, s{sT2}, {lg(HX)}
s_and_b32 s{sHD}, s{sT1}, {HX-1}
s_add_u32 s{sHD}, s{sHD}, s{sT2}
s_lshr_b32 s{sT2}, s{sT0}, {lg(NHG)}
s_lshl_b32 s{sT2}, s{sT2}, {lg(32//HX)}
s_lshr_b32 s{sT}, s{sT1}, {lg(HX)}
s_add_u32 s{sT}, s{sT}, s{sT2}
v_lshrrev_b32 v{vT0}, 6, v0
v_and_b32 v0, 63, v0
v_readfirstlane_b32 s{sW}, v{vT0}
v_lshlrev_b32 v{vL16}, 4, v0
v_lshlrev_b32 v{vL8}, 3, v0
s_lshl_b32 s{sWB}, s{sW}, 12
s_mul_i32 s{sW7}, s{sW}, 7168
s_mov_b32 s{sTG1}, 14336
v_and_b32 v{vT1}, 15, v0
s_lshl_b32 s{sT0}, s{sW}, 5
v_add_u32 v{vT1}, s{sT0}, v{vT1}
v_mul_u32_u24 v{vT1}, 896, v{vT1}
v_and_b32 v{vT2}, 48, v0
v_add_u32 v{vT1}, v{vT1}, v{vT2}
s_mul_i32 s{sT0}, s{sT}, {128*896}
s_waitcnt lgkmcnt(0)
""")
def mk_srd(b, plo, off_sgpr, size):
    if off_sgpr is None:
        E(f"s_mov_b32 s{b}, s{plo}\ns_mov_b32 s{b+1}, s{plo+1}")
    else:
        E(f"s_add_u32 s{b}, s{plo}, s{off_sgpr}\ns_addc_u32 s{b+1}, s{plo+1}, 0")
    E(f"s_mov_b32 s{b+2}, {size}\ns_mov_b32 s{b+3}, 0x00020000")
mk_srd(sX, 4, sT0, 128*896)
def xn(ks, tg): return vXN + (ks*2 + tg)*4
for ks in range(14):
    for tg in range(2):
        so = "0" if tg == 0 else f"s{sTG1}"
        E(f"buffer_load_dwordx4 {v(xn(ks,tg),4)}, v{vT1}, {srd(sX)}, {so} offen offset:{ks*64}", tag=('x', ks))
mk_srd(sOUT, 20, sT0, 128*896)
E(f"""
s_getpc_b64 s[26:27]
L_pc:
v_lshlrev_b32 v{vT0}, 6, v0
v_add_u32 v{vT0}, s{sWB}, v{vT0}
""")
NPF = 4
for i in range(NPF):
    E(f"global_load_dword v{vR+90+i}, v{vT0}, s[26:27]", tag='pf')
    if i < NPF-1: E(f"v_add_u32 v{vT0}, 0x4000, v{vT0}")

def p224_voffsets(dst, pitch, natural, rot_sgpr):
    for i in range(7):
        E(f"""
v_add_u32 v{vT2}, {64*i}, v0
v_mul_u32_u24 v{vT3}, 4682, v{vT2}
v_lshrrev_b32 v{vT3}, 16, v{vT3}
v_mul_u32_u24 v{vT4}, 14, v{vT3}
v_sub_u32 v{vT2}, v{vT2}, v{vT4}
""")
        if rot_sgpr is not None:
            E(f"""
v_add_u32 v{vT2}, s{rot_sgpr}, v{vT2}
v_subrev_u32 v{vT4}, 14, v{vT2}
v_min_u32 v{vT2}, v{vT2}, v{vT4}
""")
        if not natural:
            E(f"""
v_and_b32 v{vT4}, 12, v{vT3}
v_lshlrev_b32 v{vT4}, 1, v{vT4}
v_and_b32 v{dst+i}, 3, v{vT3}
v_add_u32 v{vT4}, v{vT4}, v{dst+i}
v_lshrrev_b32 v{vT3}, 4, v{vT3}
v_lshl_add_u32 v{vT3}, v{vT3}, 2, v{vT4}
""")
        E(f"""
v_mul_u32_u24 v{vT3}, {pitch}, v{vT3}
v_lshl_add_u32 v{dst+i}, v{vT2}, 4, v{vT3}
""")
        if (i % 4): E(f"v_subrev_u32 v{dst+i}, {(i%4)*1024}, v{dst+i}")

vW1V = vR
E(f"s_and_b32 s{sT1}, s{sHD}, 1\ns_lshl_b32 s{sT1}, s{sT1}, 1")
p224_voffsets(vW1V, 3584, False, sT1)
E(f"s_mul_i32 s{sT0}, s{sHD}, 224\ns_sub_u32 s{sT2}, {448*3584}, s{sT0}")
mk_srd(sW1, 16, sT0, f"s{sT2}")
E(f"s_mul_i32 s{sSO}, s{sW}, {32*3584}")
for rep in range(4):
    for i in range(7):
        if i % 4 == 0:
            E(f"s_add_u32 m0, s{sW7}, {rep*4*7168 + (i//4)*4096}")
        E(f"buffer_load_dwordx4 v{vW1V+i}, {srd(sW1)}, s{sSO} offen offset:{(i%4)*1024} lds", tag='w1')
    if rep < 3: E(f"s_add_u32 s{sSO}, s{sSO}, {4*32*3584}")
    if rep == 2: E(f"s_min_u32 s{sSO}, s{sSO}, {13*32*3584}")

E(f"s_lshl_b32 s{sT0}, s{sHD}, 9\ns_sub_u32 s{sT2}, {448*8192}, s{sT0}")
mk_srd(sWQ, 10, sT0, f"s{sT2}")
E(f"s_lshr_b32 s{sT0}, s{sHD}, 1\ns_lshl_b32 s{sT0}, s{sT0}, 20\ns_add_u32 s{sT0}, s{sT0}, {1536*512}")
mk_srd(sKK, 6, sT0, 262144)
mk_srd(sVV, 8, sT0, 262144)
E(f"s_mul_i32 s{sT0}, s{sHD}, {256*896}")
mk_srd(sWO, 12, sT0, 256*896)
E(f"s_and_b32 s{sT0}, s{sHD}, 3\ns_mul_i32 s{sT0}, s{sT0}, 224\ns_sub_u32 s{sT2}, {1792*896}, s{sT0}")
mk_srd(sW2, 18, sT0, f"s{sT2}")
mk_srd(sWS, 24, None, WS_SIZE)

E(f"""
v_lshrrev_b32 v{vT3}, 3, v0
v_and_b32 v{vT2}, 6, v{vT3}
v_and_b32 v{vT4}, 7, v0
v_xor_b32 v{vT2}, v{vT2}, v{vT4}
v_lshlrev_b32 v{vT2}, 4, v{vT2}
""")
E(f"""
v_and_b32 v{vT0}, 4, v{vT3}
v_add_u32 v{vT0}, v{vT0}, v{vT3}
v_lshl_add_u32 v{vWQ}, v{vT0}, 13, v{vT2}
""")
for rb in range(1, 4):
    E(f"v_add_u32 v{vWQ+rb}, {(16*(rb&1) + 4*(rb>>1))*8192 - 1024*rb}, v{vWQ}")
for rho in range(14):
    E(f"""
s_add_u32 s{sT0}, s{sW}, {4*rho}
s_mul_i32 s{sT1}, s{sT0}, 4682
s_lshr_b32 s{sT1}, s{sT1}, 16
s_mul_i32 s{sT2}, s{sT1}, 14
s_sub_u32 s{sT0}, s{sT0}, s{sT2}
s_lshl_b32 s{sT0}, s{sT0}, 18
s_lshl_b32 s{sT1}, s{sT1}, 7
s_add_u32 s{sWQT+rho}, s{sT0}, s{sT1}
""")
PRO_DMA = len(P.ins)
E(f"""
s_lshl_b32 s{sT0}, s{sW}, 7
v_lshl_add_u32 v{vVD}, v{vT3}, 9, v{vT2}
v_add_u32 v{vVD}, s{sT0}, v{vVD}
""")
for rb in range(1, 4): E(f"v_add_u32 v{vVD+rb}, {3072*rb}, v{vVD}")
E(f"""
s_mul_i32 s{sT1}, s{sW}, {32*896}
v_mul_u32_u24 v{vT0}, 896, v{vT3}
v_add3_u32 v{vT0}, v{vT0}, v{vT2}, s{sT1}
""")
for rb in range(4):
    if rb: E(f"v_add_u32 v{vT0}, {7168-1024}, v{vT0}")
    E(f"v_accvgpr_write_b32 a{aST+6+rb}, v{vT0}")
for par in range(2):
    E(f"""
v_lshrrev_b32 v{vT0}, 1, v{vT3}
v_xor_b32 v{vT0}, v{vT0}, v{vT4}
v_xor_b32 v{vT0}, {4*par}, v{vT0}
v_lshlrev_b32 v{vT0}, 4, v{vT0}
v_lshl_add_u32 v{vT0}, v{vT3}, 9, v{vT0}
v_add_u32 v{vT0}, s{sT0}, v{vT0}
v_add_u32 v{vKD+par}, {3072*par}, v{vT0}
v_add_u32 v{vKD+par+2}, {3072*(par+2)}, v{vT0}
""")
E(f"""
v_lshrrev_b32 v{vT0}, 2, v0
v_lshlrev_b32 v{vT1}, 7, v{vT0}
v_and_b32 v{vT2}, 3, v0
v_lshl_add_u32 v{vT1}, v{vT2}, 3, v{vT1}
v_bfe_u32 v{vT3}, v0, 3, 2
""")
for u in range(4):
    E(f"""
v_xor_b32 v{vT4}, {u}, v{vT3}
v_lshl_add_u32 v{vTR+u}, v{vT4}, 5, v{vT1}
v_add_u32 v{vTR+4+u}, 0x10000, v{vTR+u}
v_add_u32 v{vTR+8+u}, 0x20000, v{vTR+u}
""")
E(f"""
v_mul_u32_u24 v{vRA}, 224, v{vT0}
v_lshl_add_u32 v{vRA}, v{vT2}, 3, v{vRA}
v_add_u32 v{vRA+1}, 0x10000, v{vRA}
s_lshr_b32 s{sWP}, s{sW}, 1
s_lshl_b32 s{sWP}, s{sWP}, 14
s_and_b32 s{sT1}, s{sW}, 1
s_mul_i32 s{sT1}, s{sT1}, 7168
s_add_u32 s{sWP}, s{sWP}, s{sT1}
v_add_u32 v{vT4}, s{sWP}, v{vRA}
v_accvgpr_write_b32 a{aST+17}, v{vT4}
v_add_u32 v{vT4}, 0x10000, v{vT4}
v_accvgpr_write_b32 a{aST+18}, v{vT4}
v_add_u32 v{vT4}, 0x10000, v{vT4}
v_accvgpr_write_b32 a{aST+19}, v{vT4}
""")
E(f"""
v_and_b32 v{vT0}, 15, v0
v_lshrrev_b32 v{vT1}, 1, v{vT0}
v_lshrrev_b32 v{vT2}, 4, v0
v_xor_b32 v{vT1}, v{vT1}, v{vT2}
v_lshlrev_b32 v{vT0}, 7, v{vT0}
""")
for par in range(2):
    E(f"v_xor_b32 v{vT2}, {4*par}, v{vT1}\nv_lshl_add_u32 v{vT2}, v{vT2}, 4, v{vT0}")
    for win in range(3):
        if win: E(f"v_add_u32 v{vT2}, 0x10000, v{vT2}")
        E(f"v_accvgpr_write_b32 a{aST+win*2+par}, v{vT2}")
p224_voffsets(vW1V+8, 896, True, None)
E(f"s_mul_i32 s{sT0}, s{sW}, {448*896}")
for i in range(7):
    E(f"v_add_u32 v{vT0}, s{sT0}, v{vW1V+8+i}\nv_accvgpr_write_b32 a{aST+10+i}, v{vT0}")
E(f"""
s_lshl_b32 s{sT0}, s{sT}, 2
s_add_u32 s{sT1}, s{sT0}, s{sW}
s_lshr_b32 s{sT2}, s{sHD}, 2
s_add_u32 s{sT0}, s{sT0}, s{sT2}
""")
E(f"""
s_mul_i32 s{sSST}, s{sT1}, {28*16384}
s_lshl_b32 s{sT2}, s{sHD}, 10
s_add_u32 s{sSST}, s{sSST}, s{sT2}
s_lshl_b32 s{sFLG}, s{sT1}, 8
s_lshl_b32 s{sT2}, s{sHD}, 2
s_add_u32 s{sFLG}, s{sFLG}, s{sT2}
s_add_u32 s{sFLG}, s{sFLG}, {hx(WS_F)}
s_lshl_b32 s{sFLP}, s{sT0}, 8
s_add_u32 s{sFLP}, s{sFLP}, {hx(WS_F)}
s_mul_i32 s{sHST}, s{sT1}, {56*2048}
s_lshr_b32 s{sT2}, s{sHD}, 1
s_mul_i32 s{sT2}, s{sT2}, {7*2048}
s_add_u32 s{sHST}, s{sHST}, s{sT2}
s_add_u32 s{sHST}, s{sHST}, {hx(WS_H)}
s_and_b32 s{sT2}, s{sHD}, 1
s_lshl_b32 s{sT3}, s{sT2}, 9
s_add_u32 s{sHST3}, s{sHST}, s{sT3}
s_add_u32 s{sHST3}, s{sHST3}, 6144
s_lshl_b32 s{sT3}, s{sT2}, 13
s_add_u32 s{sHST}, s{sHST}, s{sT3}
s_add_u32 s{sHST2}, s{sHST}, 4096
s_mul_i32 s{sHLD}, s{sT0}, {56*2048}
s_mul_i32 s{sT2}, s{sW}, {14*2048}
s_add_u32 s{sHLD}, s{sHLD}, s{sT2}
s_add_u32 s{sHLD}, s{sHLD}, {hx(WS_H)}
s_and_b32 s{sT2}, s{sHD}, 3
s_mul_i32 s{sT2}, s{sT2}, 7
s_lshl_b32 s{sT3}, s{sW}, 1
s_add_u32 s{sT2}, s{sT2}, s{sT3}
s_mul_i32 s{sSG}, s{sT0}, 28
s_add_u32 s{sSG}, s{sSG}, s{sT2}
s_lshl_b32 s{sSG}, s{sSG}, 14
""")
E(f"""
v_mov_b32 v{vZ}, 0
v_mov_b32 v{vONE}, 1
buffer_store_dword v{vZ}, v{vZ}, {srd(sWS)}, s{sFLG} offen sc1
""")
P.ins[-1].tag = 'hst'
E(f"""
s_lshr_b32 s{sT1}, s{sHD}, 2
s_lshl_b32 s{sT1}, s{sT1}, 5
v_and_b32 v{vT0}, 15, v0
v_add_u32 v{vT0}, s{sT1}, v{vT0}
v_mul_u32_u24 v{vT0}, 896, v{vT0}
v_lshrrev_b32 v{vT1}, 4, v0
v_lshl_add_u32 v{vT0}, v{vT1}, 3, v{vT0}
s_lshl_b32 s{sT2}, s{sT2}, 5
v_add_u32 v{vT0}, s{sT2}, v{vT0}
v_accvgpr_write_b32 a{aST+20}, v{vT0}
s_cmp_eq_u32 s{sW}, 3
s_cselect_b32 s{sT2}, {hx(OOB)}, 32
s_cselect_b32 s{sT3}, {hx(OOB)}, 0
v_add_u32 v{vT0}, s{sT2}, v{vT0}
v_accvgpr_write_b32 a{aST+21}, v{vT0}
v_add_u32 v{vT0}, 0x4000, v{vL16}
v_add_u32 v{vT0}, s{sT3}, v{vT0}
v_accvgpr_write_b32 a{aST+22}, v{vT0}
""")
for s_, val in ((sM1, 0x2222222222222222), (sM2, 0x4444444444444444), (sM3, 0x8888888888888888), (sMD, 0xF0000F0000F0000F)):
    E(f"s_mov_b32 s{s_}, {hx(val)}\ns_mov_b32 s{s_+1}, {hx(val >> 32)}")

vONES = vR + 16
vD1 = vR + 20
vD2 = vR + 28
vLA = vR + 36
for i in range(4): E(f"v_mov_b32 v{vONES+i}, 0x3f803f80")
STAMP()
for ks in range(14):
    P.wait_vm_tag([('x', ks)])
    for tg in range(2):
        X = v(xn(ks, tg), 4)
        E(mfma(v(vD1+4*tg, 4), v(vONES, 4), X, "0" if ks == 0 else v(vD1+4*tg, 4)))
        E(mfma(v(vD2+4*tg, 4), X, X, "0" if ks == 0 else v(vD2+4*tg, 4)))
STAMP()
def allred(r, t, op):
    return [f"v_mov_b32 v{t}, v{r}", f"v_permlane32_swap_b32 v{r}, v{t}", f"{op} v{r}, v{r}, v{t}",
            f"v_mov_b32 v{t}, v{r}", f"v_permlane16_swap_b32 v{r}, v{t}", f"{op} v{r}, v{r}, v{t}"]
def interleave(*seqs):
    out = []
    for k in range(max(len(s) for s in seqs)):
        for s in seqs:
            if k < len(s): out.append(s[k])
    return out
def rbf(r):
    return [f"v_cvt_pk_bf16_f32 v{r}, v{r}, v{r}", f"v_lshlrev_b32 v{r}, 16, v{r}"]
E(f"s_mov_b32 s{sT0}, {hx(f2u(1.0/448.0))}\ns_mov_b32 s{sT1}, {hx(f2u(1e-5))}\ns_mov_b32 s{sT2}, {hx(f2u(CSCALE))}")
seqs = []
for tg in range(2):
    d = vD2 + 4*tg; m = vD1 + 4*tg; t = m + 1; L = vLA + 4*tg
    s = [f"v_cndmask_b32 v{d}, v{d}, v{d+1}, s[{sM1}:{sM1+1}]",
         f"v_cndmask_b32 v{d}, v{d}, v{d+2}, s[{sM2}:{sM2+1}]",
         f"v_cndmask_b32 v{d}, v{d}, v{d+3}, s[{sM3}:{sM3+1}]",
         f"v_cndmask_b32 v{d}, 0, v{d}, s[{sMD}:{sMD+1}]"]
    s += allred(d, t, "v_add_f32")
    s += [f"v_mul_f32 v{m}, s{sT0}, v{m}",
          f"v_mul_f32 v{d}, s{sT0}, v{d}",
          f"v_fma_f32 v{d}, -v{m}, v{m}, v{d}",
          f"v_max_f32 v{d}, 0, v{d}"]
    s += rbf(m) + rbf(d)
    s += [f"v_add_f32 v{d}, s{sT1}, v{d}"] + rbf(d) + [f"v_sqrt_f32 v{d}, v{d}"] + rbf(d)
    s += [f"v_rcp_f32 v{d}, v{d}", f"v_mul_f32 v{d}, s{sT2}, v{d}",
          f"v_cvt_pk_bf16_f32 v{d}, v{d}, v{d}",
          f"v_and_b32 v{L}, 0xffff, v{d}", f"v_lshlrev_b32 v{L+1}, 16, v{d}",
          f"v_mul_f32 v{L+2}, v{m}, v{L+1}", f"v_sub_f32 v{L+2}, 0, v{L+2}"]
    seqs.append(s)
for t_ in interleave(*seqs): E(t_)
vNT = vR + 48
k = 0
pend = []
for ks in range(14):
    for tg in range(2):
        L = vLA + 4*tg
        for r in range(4):
            x_ = xn(ks, tg) + r
            t = vNT + 2*(k % 8); k += 1
            E(f"v_dot2_f32_bf16 v{t}, v{x_}, v{L}, v{L+2}\nv_dot2_f32_bf16 v{t+1}, v{x_}, v{L+1}, v{L+2}")
            pend.append(f"v_cvt_pk_bf16_f32 v{x_}, v{t}, v{t+1}")
            if len(pend) > 2: E(pend.pop(0))
for t_ in pend: E(t_)
STAMP()

def dump(regs_list, slot):
    r = []
    r.append(I("s_nop 15"))
    r.append(I(f"s_lshl_b32 s{sT0}, s{sT}, 4")); r.append(I(f"s_add_u32 s{sT0}, s{sT0}, s{sHD}"))
    r.append(I(f"s_lshl_b32 s{sT0}, s{sT0}, 2")); r.append(I(f"s_add_u32 s{sT0}, s{sT0}, s{sW}"))
    r.append(I(f"s_mul_i32 s{sT0}, s{sT0}, {32*1024}")); r.append(I(f"s_add_u32 s{sT0}, s{sT0}, {hx(WS_DBG)}"))
    for idx, reg in enumerate(regs_list):
        r.append(I(f"buffer_store_dwordx4 {reg}, v{vL16}, {srd(sWS)}, s{sT0} offen"))
        r.append(I(f"s_add_u32 s{sT0}, s{sT0}, 1024"))
    r.append(I("s_nop 3"))
    return r
if OPT['DUMP'] == 'xn':
    P.ins += dump([v(xn(ks, tg), 4) for ks in range(14) for tg in range(2)], 0)

frags = []
chunks = []
def add_chunk(name, lo, size, dma, private=False):
    chunks.append(dict(name=name, lo=lo, hi=lo+size, dma=dma, private=private, first=None, last=None)); return len(chunks)-1
def add_frag(kind, base_regs_stride, ub, addr, second, mf, ch):
    frags.append(dict(kind=kind, rb=ub, rs=base_regs_stride, addr=addr, second=second, mf=mf, chunk=ch))
    c = chunks[ch]
    if c['first'] is None: c['first'] = len(frags)-1
    c['last'] = len(frags)-1
def frag_reads(f):
    fr = frags[f]; A = aF + 4*(f % NA)
    def rd(op, dst, addr):
        win = addr >> 16
        return I(f"{op} {dst}, v{fr['rb'] + win*fr['rs']} offset:{addr & 0xffff}", tag=('f', f))
    if fr['kind'] == 'tr':
        return [rd("ds_read_b64_tr_b16", a(A, 2), fr['addr']), rd("ds_read_b64_tr_b16", a(A+2, 2), fr['addr'] + fr['second'])]
    return [rd("ds_read_b128", a(A, 4), fr['addr'])]

ring_pos = [7]
def ring_round(name, srd_b, vbase, so_text):
    slot = ring_pos[0] % RING_SLOTS; ring_pos[0] += 1
    lo = slot*SLOT
    tag = ('c', len(chunks))
    dma = [I(f"s_add_u32 m0, s{sWB}, {lo}")]
    if so_text.startswith('s'): so = so_text
    elif so_text == '0': so = '0'
    else:
        dma.append(I(f"s_mov_b32 s{sSO}, {so_text}")); so = f"s{sSO}"
    for rb in range(4):
        dma.append(I(f"buffer_load_dwordx4 v{vbase+rb}, {srd(srd_b)}, {so} offen offset:{rb*1024} lds", tag=tag))
    return add_chunk(name, lo, SLOT, dma)

phase = {}
phase['G5'] = len(frags)
def acc5(tg, s_): return vR + tg*28 + s_*4
for ks in range(14):
    ch = add_chunk(f"w1_{ks}", ks*7168, 7168 if ks < 13 else 7168*3, None)
    for s_ in range(7):
        mf = (lambda A, ks=ks, s_=s_: [mfma(v(acc5(tg, s_), 4), A, v(xn(ks, tg), 4), "0" if ks == 0 else v(acc5(tg, s_), 4)) for tg in range(2)])
        add_frag('tr', 1, vRA, ks*7168 + s_*32, 3584, mf, ch)
phase['G1'] = len(frags)
def acc1(p, kq, tg, par): return (vR + 64 if p % 2 == 0 else vR) + ((kq*2 + tg)*2 + par)*4
wq_ch = [None]*14
for p in range(4):
    for ks in range(14):
        qi = 14*p + ks
        if qi % 4 == 0: wq_ch[qi//4] = ring_round(f"wq_{qi//4}", sWQ, vWQ, f"s{sWQT + qi//4}")
        ch = wq_ch[qi//4]
        for u in range(4):
            mf = (lambda A, p=p, ks=ks, u=u: [mfma(v(acc1(p, u >> 1, tg, u & 1), 4), A, v(xn(ks, tg), 4), "0" if ks == 0 else v(acc1(p, u >> 1, tg, u & 1), 4)) for tg in range(2)])
            add_frag('tr', 4, vTR + u, chunks[ch]['lo'] + (qi % 4)*4096, 2048, mf, ch)
def qf(kq, tg): return aQ + (kq*2 + tg)*4
def Sreg(st, tg, kt): return vS + (st % 2)*16 + tg*8 + kt*4
def Preg(st, tg): return vP + (st % 2)*8 + tg*4
def Oreg(d, tg): return vO + (((d >> 1)*2 + tg)*2 + (d & 1))*4
def G2(st):
    phase[f'G2_{st}'] = len(frags)
    ch = ring_round(f"K_{st}", sKK, vKD, str(st*16384))
    order = [(kt, ks) for kt in range(2) for ks in range(8)]
    if st == 0:
        order = [(kt, ks) for kt in range(2) for ks in range(6)] + [(0, 6), (1, 6), (0, 7), (1, 7)]
    for kt, ks in order:
        def mf(A, kt=kt, ks=ks):
            r = []
            for tg in range(2):
                c = v(Sreg(st, tg, kt), 4)
                if ks == 0: c = "0" if st < 2 else v(vC + 4*tg, 4)
                r.append(mfma(v(Sreg(st, tg, kt), 4), A, a(qf(ks, tg), 4), c))
            return r
        add_frag('b128', 2, vRA + (ks & 1), chunks[ch]['lo'] + (ks >> 1)*4096 + kt*2048, 0, mf, ch)
def G3(st):
    phase[f'G3_{st}'] = len(frags)
    ch = ring_round(f"V_{st}", sVV, vVD, str(st*16384))
    for d in range(16):
        mf = (lambda A, d=d: [mfma(v(Oreg(d, tg), 4), A, v(Preg(st, tg), 4), "0" if st == 0 else v(Oreg(d, tg), 4)) for tg in range(2)])
        add_frag('tr', 4, vTR + (d & 3), chunks[ch]['lo'] + (d >> 2)*4096, 2048, mf, ch)
G2(0)
for st in range(15):
    G2(st + 1); G3(st)
G3(15)
phase['G4'] = len(frags)
def acc4(p, u, tg): return vA4 + (p % 2)*32 + u*8 + tg*4
def Opk(ks, tg): return vO + (ks*2 + tg)*8
for p in range(7):
    for ks in range(8):
        if ks % 4 == 0: ch = ring_round(f"wo_{p}_{ks//4}", sWO, vWOD, str((ks//4)*4*32*896 + p*128))
        for u in range(4):
            mf = (lambda A, p=p, ks=ks, u=u: [mfma(v(acc4(p, u, tg), 4), A, v(Opk(ks, tg), 4), "0" if ks == 0 else v(acc4(p, u, tg), 4)) for tg in range(2)])
            add_frag('tr', 4, vTR + u, chunks[ch]['lo'] + (ks % 4)*4096, 2048, mf, ch)
phase['G6'] = len(frags)
vF = 112
def facc(s_, tg): return aQ + (s_*2 + tg)*4
def hf(kk, tg): return aH + (kk*2 + tg)*4
last_slot = (ring_pos[0] - 1) % RING_SLOTS
w2_first = (last_slot // 2 + 1) % 5
for kk in range(14):
    sl = (w2_first + kk) % 5
    tag = ('c', len(chunks))
    dma = []
    for i in range(7):
        if i % 4 == 0: dma.append(I(f"s_add_u32 m0, s{sWP}, {sl*W2SLOT + (i//4)*4096}"))
        if i == 0: dma.append(I(f"s_mov_b32 s{sSO}, {kk*32*896}"))
        dma.append(I(f"buffer_load_dwordx4 v{vW2D+i}, {srd(sW2)}, s{sSO} offen offset:{(i%4)*1024} lds", tag=tag))
    ch = add_chunk(f"w2_{kk}", sl*W2SLOT, W2SLOT, dma, private=True)
    for s_ in range(7):
        mf = (lambda A, kk=kk, s_=s_: [mfma(a(facc(s_, tg), 4), A, a(hf(kk, tg), 4), "0" if kk == 0 else a(facc(s_, tg), 4)) for tg in range(2)])
        add_frag('tr', 1, vRA, sl*W2SLOT + s_*32, 3584, mf, ch)
NF = len(frags)
phase['END'] = NF

NG = 2*NF
pre = [[] for _ in range(NG)]
rds = [[] for _ in range(NG)]
ext = [[] for _ in range(NG)]
blk = {}
for g in range(NF):
    if g + D < NF:
        r = frag_reads(g + D)
        rds[2*g].append(r[0])
        if len(r) > 1: rds[2*g+1].append(r[1])
def cost(i):
    if i.cls in ('ds',): return 8
    if i.cls == 'vmem': return 24 if 'store' in i.op and 'x4' in i.op else 8
    if i.cls in ('trans', 'perm'): return 8
    if i.cls == 'label': return 0
    return 4
def gtime(items):
    t = 4
    for i in items:
        if i.cls in VALU_LIKE: t = max(t, 8)
        t += cost(i)
    return t
def fits(gp, i): return gtime(pre[gp] + rds[gp] + ext[gp] + [i]) <= 16
def place(seq, g0, g1=None, step=1, force=True):
    seq = [I(s) if isinstance(s, str) else s for s in seq]
    g1 = NG if g1 is None else min(g1, NG)
    gp = g0
    n = len(seq)
    for k, ins in enumerate(seq):
        rem = n - k
        best = None
        q = gp
        limit = g1 - 1
        bound = g0 + ((k + 1) * (g1 - g0)) // n - 1 if n else limit
        bound = max(min(bound, limit), gp)
        while q <= bound:
            if fits(q, ins): best = q; break
            q += 1
        if best is None:
            best = min(range(gp, bound + 1), key=lambda q: (gtime(pre[q] + rds[q] + ext[q] + [ins]), q))
        ext[best].append(ins)
        gp = best if step == 0 else min(best + step - 1 + (1 if step > 0 and cost(ins) > 0 and not fits(best, I("s_nop 0")) else 0), limit) if step == 1 else min(best + step, limit)
    return gp

shared = [c for c in range(len(chunks)) if not chunks[c]['private']]
bar_frags = []
f = 0
ring_chunks = [c for c in shared if chunks[c]['dma'] is not None]
bar_frags = [28, 56, 77]
for k_, c in enumerate(ring_chunks):
    if k_ % OPT['BAR'] == 0: bar_frags.append(chunks[c]['first'])
bar_frags.append(phase['G6'])
bar_frags.append(phase['G6'] + D + 1)
bar_frags = sorted(set(bar_frags))
bar_gap = [2*(f - D) for f in bar_frags]
for bi, f0 in enumerate(bar_frags):
    f1 = bar_frags[bi+1] if bi + 1 < len(bar_frags) else NF
    need = [('c', c) for c in ring_chunks if f0 <= chunks[c]['first'] < f1]
    gp = bar_gap[bi]
    if need: ext[gp-1].append(mk_wait_vm(need))
    pre[gp].append(I("s_barrier"))
for c in range(len(chunks)):
    if chunks[c]['private']:
        gp = 2*(chunks[c]['first'] - D)
        ext[gp-1].append(mk_wait_vm([('c', c)]))
for g in range(0, NF, 4):
    if g == 0: continue
    ext[2*g-1].append(mk_wait_lg([('f', f) for f in range(g, min(g+4, NF))]))
def earliest_gap(c):
    e = -1
    C = chunks[c]
    for c2 in range(c):
        B = chunks[c2]
        if B['hi'] <= C['lo'] or C['hi'] <= B['lo']: continue
        if B['private'] and C['private']:
            e = max(e, 2*(B['last'] + 1))
        else:
            gb = [gp for gp in bar_gap if gp >= 2*(B['last'] + 1)]
            e = max(e, gb[0] + 1)
    return e
dma_chunks = [c for c in range(len(chunks)) if chunks[c]['dma'] is not None]
pro_dma = []
cur = 0
dma_span = {}
for k_, c in enumerate(dma_chunks):
    e = earliest_gap(c)
    if e < 0:
        pro_dma += chunks[c]['dma']; continue
    g0 = max(e, cur)
    nfr = chunks[c]['last'] - chunks[c]['first'] + 1
    span = 2*nfr - 2 if not chunks[c]['private'] else (8 if g0 >= 2*(phase['G6'] - D) else 40)
    seq = list(chunks[c]['dma'])
    if chunks[c]['name'] == 'wo_0_0': seq = [I(f"v_accvgpr_read_b32 v{vWOD+i}, a{aST+6+i}") for i in range(4)] + seq
    if chunks[c]['name'] == 'w2_0': seq = [I(f"v_accvgpr_read_b32 v{vW2D+i}, a{aST+10+i}") for i in range(7)] + seq
    n = len(seq)
    for k2, ins in enumerate(seq):
        lo = g0 + (k2*span)//n; hi = g0 + ((k2+1)*span)//n
        lo = max(lo, cur); hi = max(hi, lo+1)
        cur = place([ins], lo, hi)
    dma_span[chunks[c]['name']] = (g0, cur, 2*(chunks[c]['first'] - D))
    assert cur < 2*(chunks[c]['first'] - D) - 1, (chunks[c]['name'], cur)
for i_ in reversed(pro_dma): P.ins.insert(PRO_DMA, i_)
if OPT['LOG']:
    for k_, v_ in dma_span.items(): print(k_, v_, 'lead gaps', v_[2] - v_[1], file=sys.stderr)

place([f"v_accvgpr_read_b32 v{vRA+i}, a{aST+i}" for i in range(6)], 2*(phase['G1'] + 8), 2*(phase['G2_0'] - D) - 2)
place([f"v_accvgpr_read_b32 v{vRA+i}, a{aST+17+i}" for i in range(3)], 2*(phase['G4'] + 8), 2*(phase['G6'] - D) - 2)

g1s = 2*phase['G1']
seq = []
for tg in range(2):
    for i in range(4):
        b = acc5(tg, 2*i); n = 8 if i < 3 else 4
        for r in range(n): seq.append(f"v_max_f32 v{b+r}, 0, v{b+r}")
        for r in range(n//2): seq.append(f"v_cvt_pk_bf16_f32 v{b+r}, v{b+2*r}, v{b+2*r+1}")
        if i < 3:
            so = sHST if i < 2 else sHST2
            seq.append(I(f"buffer_store_dwordx4 {v(b,4)}, v{vL16}, {srd(sWS)}, s{so} offen offset:{(i%2)*2048 + tg*1024} sc1", tag='hst'))
        else:
            seq.append(I(f"buffer_store_dwordx2 {v(b,2)}, v{vL8}, {srd(sWS)}, s{sHST3} offen offset:{tg*1024} sc1", tag='hst'))
gend = place(seq, g1s + 4, g1s + 2*56 - 4)
hb = [gp for gp in bar_gap if gp > gend + 90][0]
ext[hb-1].append(mk_wait_vm(['hst']))
sig = [I(f"s_cmp_lg_u32 s{sW}, 0"), I("s_cbranch_scc1 L_nosig"), I(f"s_lshl_b32 s{sT0}, s{sT}, 4"), I(f"v_mov_b32 v{vPOLL}, s{sT0}"),
       I("s_mov_b64 exec, 1"), I(f"global_atomic_add v{vPOLL}, v{vONE}, {DBGP} sc1"), I("s_mov_b64 exec, -1"), I("L_nosig:")]
sig[5].cls = 'misc'
ext[hb+1] += sig

def qconv(p):
    s = []
    for kq in range(2):
        for tg in range(2):
            b = acc1(p, kq, tg, 0)
            s += [f"v_cvt_pk_bf16_f32 v{b+r}, v{b+2*r}, v{b+2*r+1}" for r in range(4)]
            s += [f"v_permlane32_swap_b32 v{b}, v{b+2}", f"v_permlane32_swap_b32 v{b+1}, v{b+3}",
                  f"v_permlane16_swap_b32 v{b}, v{b+2}", f"v_permlane16_swap_b32 v{b+1}, v{b+3}"]
            s += [f"v_accvgpr_write_b32 a{qf(2*p+kq, tg)+r}, v{b+r}" for r in range(4)]
    return s
for p in range(3):
    g0 = 2*(phase['G1'] + 56*(p+1))
    place(qconv(p), g0 + 4, g0 + 2*56 - 4)
g0 = 2*phase['G2_0']
qs = qconv(3)
place(qs[:24], g0 + 2, g0 + 2*7)
place(qs[24:], g0 + 2*7, g0 + 2*12 - 1)

def svals(st): return [Sreg(st, tg, kt) + r for tg in range(2) for kt in range(2) for r in range(4)]
g0 = 2*phase['G2_1']
seqs = []
for tg in range(2):
    b = Sreg(0, tg, 0); m = vM + 2*tg; t = m + 1
    s = [f"v_max3_f32 v{m}, v{b}, v{b+1}, v{b+2}", f"v_max3_f32 v{m}, v{m}, v{b+3}, v{b+4}", f"v_max3_f32 v{m}, v{m}, v{b+5}, v{b+6}",
         f"v_max_f32 v{m}, v{m}, v{b+7}"] + allred(m, t, "v_max_f32")
    s += [f"v_sub_f32 v{vC+4*tg+r}, 0, v{m}" for r in range(4)]
    seqs.append(s)
seq = interleave(*seqs) + [f"v_mov_b32 v{vLS}, 0", f"v_mov_b32 v{vLS+1}, 0"]
gm = place(seq, g0 + 3, g0 + 14)
def sm_seq(st, sub):
    s = []
    vals = svals(st)
    for k_, r in enumerate(vals):
        tg = k_ // 8
        if sub: s.append(f"v_add_f32 v{r}, v{r}, v{vC+4*tg}")
        s.append(f"v_exp_f32 v{r}, v{r}")
        if k_ % 2 == 1 and k_ >= 3:
            kk = k_ - 3
            s.append(f"v_cvt_pk_bf16_f32 v{Preg(st, kk//8) + (kk % 8)//2}, v{vals[kk]}, v{vals[kk+1]}")
    s.append(f"v_cvt_pk_bf16_f32 v{Preg(st, 1) + 3}, v{vals[14]}, v{vals[15]}")
    return s
def add_seq(st):
    vals = svals(st)
    return interleave([f"v_add_f32 v{vLS}, v{vLS}, v{r}" for r in vals[:8]], [f"v_add_f32 v{vLS+1}, v{vLS+1}, v{r}" for r in vals[8:]])
for st in range(16):
    g3 = 2*phase[f'G3_{st}']
    if st == 0:
        ge = place(sm_seq(st, True), gm, g3 - 1)
    elif st < 15:
        gs = 2*(phase[f'G2_{st+1}'] - D)
        if st == 1: gs = 2*phase['G3_0'] + 4
        ge = place(sm_seq(st, st == 1), gs, g3 - 2)
    else:
        ge = place(sm_seq(st, False), 2*phase['G3_14'] + 4, g3 - 2)
    lim = 2*phase[f'G2_{st+2}'] - 2 if st + 2 < 16 else g3 + 14
    ga = place(add_seq(st), ge, lim)
seqs = []
for tg in range(2):
    l = vLS + tg; t = vM + tg
    seqs.append(allred(l, t, "v_add_f32") + [f"v_rcp_f32 v{vLS+2+2*tg}, v{l}", f"v_mov_b32 v{vLS+3+2*tg}, v{vLS+2+2*tg}"])
seq = interleave(*seqs) + [f"v_add_f32 v{vM}, v{vLS}, v{vLS+1}", f"s_mov_b32 s{sT0}, {hx(f2u(2.0**24 if not OPT['FORCEFB'] else 0.5))}", f"v_cmp_ngt_f32 vcc, s{sT0}, v{vM}"]
place(seq, ga, 2*phase['G4'] - 1)
b = [I("s_cbranch_vccnz L_exact"), I("L_exact_ret:")]
b += stamp_ins()
for ks in range(8):
    for tg in range(2):
        o = Opk(ks, tg); rc = vLS + 2 + 2*tg
        b += [I(f"v_pk_mul_f32 {v(o+2*r,2)}, {v(o+2*r,2)}, {v(rc,2)}") for r in range(4)]
        b += [I(f"v_cvt_pk_bf16_f32 v{o+r}, v{o+2*r}, v{o+2*r+1}") for r in range(4)]
if OPT['DUMP'] == 'o': b += dump([v(Opk(ks, tg), 4) for ks in range(8) for tg in range(2)], 0)
if OPT['DUMP'] == 'q': b += dump([a(qf(ks, tg), 4) for ks in range(8) for tg in range(2)], 0)
blk[phase['G4']] = b

def sconv(p):
    s = []
    for u in range(4):
        b = acc4(p, u, 0)
        s += [f"v_cvt_pk_bf16_f32 v{b+r}, v{b+2*r}, v{b+2*r+1}" for r in range(4)]
        s.append(f"s_add_u32 s{sSO2}, s{sSST}, {(4*p+u)*16384}")
        s.append(I(f"buffer_store_dwordx4 {v(b,4)}, v{vL16}, {srd(sWS)}, s{sSO2} offen sc1", tag='sst'))
    return s
g4 = 2*phase['G4']
place([f"s_lshl_b32 s{sT0}, s{sT}, 4", f"v_mov_b32 v{vPOLL}, s{sT0}", I(f"global_load_dword v{vPOLL}, v{vPOLL}, {DBGP} sc1", tag='pollh')], g4 + 2, g4 + 12)
ext[g4 + 60] += [mk_wait_vm(['pollh']), I(f"v_cmp_ne_u32 vcc, 16, v{vPOLL}"), I("s_cbranch_vccnz L_spinh"), I("L_spinh_ret:")]
for p in range(7):
    g0 = g4 + 2*32*(p+1)
    gl = place(sconv(p), g0 + 4, g0 + (56 if p < 6 else 30))
last_store_gap = gl
seq = []
for kk in range(14):
    if kk % 2 == 0: seq.append(f"s_add_u32 s{sT1}, s{sHLD}, {(kk//2)*4096}")
    for tg in range(2):
        off = (kk % 2)*2048 + tg*1024
        if kk % 7 == 3:
            seq.append(I(f"buffer_load_dwordx2 {a(hf(kk,tg),2)}, v{vL8}, {srd(sWS)}, s{sT1} offen offset:{off} sc1", tag=('h', kk)))
            seq.append(I(f"buffer_load_dwordx2 {a(hf(kk,tg)+2,2)}, v{vL8}, {srd(sWS)}, s{sT1} offen offset:{off+512} sc1", tag=('h', kk)))
        else:
            seq.append(I(f"buffer_load_dwordx4 {a(hf(kk,tg),4)}, v{vL16}, {srd(sWS)}, s{sT1} offen offset:{off} sc1", tag=('h', kk)))
n = len(seq); span = 2*32*4
for k2, ins in enumerate(seq):
    lo = g4 + 64 + (k2*span)//n; hi = g4 + 64 + ((k2+1)*span)//n
    place([ins], lo, hi)
g6 = 2*phase['G6']
sg = max(last_store_gap + 2, g6 + 2*OPT['SIGG'])
ext[sg] += [mk_wait_vm(['sst']), I(f"buffer_store_dword v{vONE}, v{vZ}, {srd(sWS)}, s{sFLG} offen sc1", tag='flag')]

if OPT['STAMP']:
    for nm in ('G1', 'G2_0', 'G2_8', 'G6'):
        blk.setdefault(phase[nm], [])
        blk[phase[nm]] = stamp_ins() + blk[phase[nm]]

P.wait_vm_tag(['w1'])
E("s_barrier")
for f in range(D): P.ins += frag_reads(f)
P.ins.append(mk_wait_lg([('f', f) for f in range(4)]))
est = 0
for g in range(NF):
    if g in blk: P.ins += blk[g]
    ms = frags[g]['mf'](a(aF + 4*(g % NA), 4))
    for h in range(2):
        gp = 2*g + h
        P.ins.append(I(ms[h]))
        P.ins += pre[gp] + rds[gp] + ext[gp]
        est += max(16, gtime(pre[gp] + rds[gp] + ext[gp]))
print("estimated main-stream cycles", est, "ideal", 32*NF, file=sys.stderr)

STAMP()
vG = 128
vFS = 44
vSEL = 108
vSA = 8
vXF = 114
vAD = 122
E(f"""
v_and_b32 v{vT0}, 15, v0
v_lshlrev_b32 v{vT0}, 2, v{vT0}
buffer_load_dword v{vPOLL}, v{vT0}, {srd(sWS)}, s{sFLP} offen sc1
v_accvgpr_read_b32 v{vAD}, a{aST+20}
v_accvgpr_read_b32 v{vAD+1}, a{aST+21}
v_accvgpr_read_b32 v{vAD+2}, a{aST+22}
v_add_u32 v{vT1}, s{sWP}, v{vL16}
""")
for e in range(2):
    for tg in range(2):
        so = "0" if tg == 0 else f"s{sTG1}"
        E(f"buffer_load_dwordx2 {v(vXF + (e*2+tg)*2, 2)}, v{vAD+e}, {srd(sX)}, {so} offen", tag='xf')
for idx in range(14):
    E(f"ds_write_b128 v{vT1}, {a(aQ + idx*4, 4)} offset:{(idx//7)*W2SLOT + (idx%7)*1024}")
E(f"v_cmp_ne_u32 vcc, 1, v{vPOLL}\ns_cbranch_vccnz L_spins\nL_spins_ret:")
STAMP()
for e in range(2):
    for hq in range(4):
        E(f"s_add_u32 s{sT1}, s{sSG}, {hq*4096}")
        for hh in range(4):
            h_ = hq*4 + hh
            E(f"buffer_load_dwordx4 {v(vG + (e*16+h_)*4, 4)}, v{vL16 if e == 0 else vAD+2}, {srd(sWS)}, s{sT1} offen offset:{hh*1024} sc1", tag=('g', e, h_))
for i in range(4):
    E(f"""
s_lshl_b32 s{sT0}, s{sW}, 2
s_add_u32 s{sT0}, s{sT0}, {i}
s_cmp_ge_u32 s{sT0}, 7
s_cselect_b32 s{sT2}, {W2SLOT - 7168}, 0
s_lshl_b32 s{sT0}, s{sT0}, 10
s_add_u32 s{sT0}, s{sT0}, s{sT2}
v_add_u32 v{vT1+i}, s{sT0}, v{vL16}
""")
E("s_waitcnt lgkmcnt(0)\ns_barrier")
for i in range(4):
    for w_ in range(4):
        E(f"ds_read_b128 {v(vFS + (i*4+w_)*4, 4)}, v{vT1+i} offset:{(w_>>1)*16384 + (w_&1)*7168}")
E(f"""
v_mov_b32 v{vSEL}, 0
v_mov_b32 v{vSEL+1}, 0
v_mov_b32 v{vSEL+4}, 0
v_mov_b32 v{vSEL+5}, 0
v_mov_b32 v{vT0}, 0x3f80
v_mov_b32 v{vSEL+2}, 0x3f800000
s_or_b64 s[{sSV0}:{sSV0+1}], s[{sM1}:{sM1+1}], s[{sM3}:{sM3+1}]
v_cndmask_b32 v{vT0}, v{vT0}, v{vSEL+2}, s[{sSV0}:{sSV0+1}]
v_cndmask_b32 v{vT0}, 0, v{vT0}, s[{sMD}:{sMD+1}]
s_or_b64 s[{sSV0}:{sSV0+1}], s[{sM2}:{sM2+1}], s[{sM3}:{sM3+1}]
v_cndmask_b32 v{vSEL+2}, v{vT0}, 0, s[{sSV0}:{sSV0+1}]
v_cndmask_b32 v{vSEL+3}, 0, v{vT0}, s[{sSV0}:{sSV0+1}]
s_mov_b32 s{sT0}, {hx(f2u(1.0/CSCALE))}
s_mov_b32 s{sT1}, {hx(f2u(-16.0))}
""")
for i in range(4):
    b = vFS + i*16
    for r in range(0, 4, 2):
        E(f"v_pk_add_f32 {v(b+r,2)}, {v(b+r,2)}, {v(b+4+r,2)}\nv_pk_add_f32 {v(b+8+r,2)}, {v(b+8+r,2)}, {v(b+12+r,2)}")
    for r in range(0, 4, 2):
        E(f"v_pk_add_f32 {v(b+r,2)}, {v(b+r,2)}, {v(b+8+r,2)}")
    for r in range(4): E(f"v_mul_f32 v{b+4+r}, s{sT1}, v{b+r}")
    for r in range(4): E(f"v_exp_f32 v{b+4+r}, v{b+4+r}")
    for r in range(4): E(f"v_mul_f32 v{b+r}, s{sT0}, v{b+r}")
    for r in range(4): E(f"v_add_f32 v{b+4+r}, 1.0, v{b+4+r}")
    for r in range(4): E(f"v_rcp_f32 v{b+4+r}, v{b+4+r}")
    xr = vXF + i*2
    E(f"""
v_lshlrev_b32 v{b+8}, 16, v{xr}
v_and_b32 v{b+9}, 0xffff0000, v{xr}
v_lshlrev_b32 v{b+10}, 16, v{xr+1}
v_and_b32 v{b+11}, 0xffff0000, v{xr+1}
""")
    for r in range(4): E(f"v_mul_f32 v{b+r}, v{b+r}, v{b+4+r}")
STAMP()
for e in range(2):
    for h_ in range(16):
        if h_ % 4 == 0: P.wait_vm_tag([('g', e, h_ + 3)])
        for tg in range(2):
            d = v(vSA + (e*2+tg)*4, 4)
            E(mfma(d, v(vSEL + (2 if tg == 0 else 0), 4), v(vG + (e*16+h_)*4, 4), "0" if h_ == 0 else d))
for i in range(4):
    e, tg = i // 2, i % 2
    b = vFS + i*16
    for r in range(4): E(f"v_fma_f32 v{b+r}, v{vSA+i*4+r}, v{b+r}, v{b+8+r}")
    E(f"v_cvt_pk_bf16_f32 v{b}, v{b}, v{b+1}\nv_cvt_pk_bf16_f32 v{b+1}, v{b+2}, v{b+3}")
    so = "0" if tg == 0 else f"s{sTG1}"
    E(f"buffer_store_dwordx2 {v(b,2)}, v{vAD+e}, {srd(sOUT)}, {so} offen")
if OPT['STAMP']:
    STAMP()
    E(f"""
s_memrealtime s[{sSTMP}:{sSTMP+1}]
s_waitcnt lgkmcnt(0)
v_writelane_b32 v{vSTAMP}, s98, 60
v_writelane_b32 v{vSTAMP}, s100, 61
v_writelane_b32 v{vSTAMP}, s{sSTMP}, 62
s_lshl_b32 s{sT0}, s2, 2
s_add_u32 s{sT0}, s{sT0}, s{sW}
s_lshl_b32 s{sT0}, s{sT0}, 8
s_add_u32 s{sT0}, s{sT0}, {hx(WS_DBG)}
v_lshlrev_b32 v{vT0}, 2, v0
buffer_store_dword v{vSTAMP}, v{vT0}, {srd(sWS)}, s{sT0} offen
""")
E("L_end:\ns_endpgm")
main_ins, log, stats = resolve(P.ins)
print("main", stats, file=sys.stderr)
if OPT['LOG']:
    for l in log: print("  ", l, file=sys.stderr)

Q = Prog(); E = Q.emit
SPIN_MAX = 1 << 17
def spin(label, load, want):
    E(f"""
{label}:
s_mov_b32 s{sCNT}, {SPIN_MAX}
{label}_loop:
s_sleep 1
{load}
s_waitcnt vmcnt(0)
v_cmp_ne_u32 vcc, {want}, v{vPOLL}
s_sub_u32 s{sCNT}, s{sCNT}, 1
s_cmp_eq_u32 s{sCNT}, 0
s_cbranch_scc1 {label}_ret
s_cbranch_vccnz {label}_loop
s_branch {label}_ret
""")
spin("L_spinh", f"s_lshl_b32 s{sT0}, s{sT}, 4\nv_mov_b32 v{vT0}, s{sT0}\nglobal_load_dword v{vPOLL}, v{vT0}, {DBGP} sc1", 16)
spin("L_spins", f"buffer_load_dword v{vPOLL}, v{vT0}, {srd(sWS)}, s{sFLP} offen sc1", 1)
MISC = [c['lo'] for c in chunks if c['name'] == 'V_15'][0]
fK = 44
fS = 76
fP = 108
fA = 116
fV = 117
fR = 121
fM = 125
E(f"""
L_exact:
s_waitcnt vmcnt(0) lgkmcnt(0)
s_nop 15
s_mov_b32 s{sSV0}, m0
v_and_b32 v{fA}, 15, v0
v_lshlrev_b32 v{fA}, 9, v{fA}
v_and_b32 v{fM}, 48, v0
v_add_u32 v{fA}, v{fA}, v{fM}
s_lshl_b32 s{sSV1}, s{sW}, 7
s_add_u32 s{sSV2}, s{sWB}, {MISC}
""")
for i in range(4):
    E(f"v_subrev_u32 v{fV+i}, s{sSV1}, v{vVD+i}\nv_add_u32 v{fR+i}, s{sSV2}, v{vTR+i}")
E(f"v_mov_b32 v{fM}, 0xff800000\nv_mov_b32 v{fM+1}, 0xff800000\ns_mov_b32 s{sSV1}, 0")
def ktile(kt, cinit):
    for ks in range(8):
        E(f"buffer_load_dwordx4 {v(fK+4*ks,4)}, v{fA}, {srd(sKK)}, s{sSV1} offen offset:{ks*64}")
    E(f"s_add_u32 s{sSV1}, s{sSV1}, 8192\ns_waitcnt vmcnt(0)")
    for ks in range(8):
        for tg in range(2):
            d = v(fS + tg*8 + kt*4, 4)
            E(mfma(d, v(fK+4*ks, 4), a(qf(ks, tg), 4), (cinit(tg) if ks == 0 else d)))
    E("s_nop 15")
E("L_exact_p1:")
ktile(0, lambda tg: "0")
for tg in range(2):
    b = fS + tg*8
    E(f"v_max3_f32 v{fM+tg}, v{fM+tg}, v{b}, v{b+1}\nv_max3_f32 v{fM+tg}, v{fM+tg}, v{b+2}, v{b+3}")
E(f"s_cmp_lt_u32 s{sSV1}, 262144\ns_cbranch_scc1 L_exact_p1")
for tg in range(2):
    for t_ in allred(fM+tg, fM+2, "v_max_f32"): E(t_)
    for r in range(4): E(f"v_sub_f32 v{vC+4*tg+r}, 0, v{fM+tg}")
for r in range(128): E(f"v_mov_b32 v{vO+r}, 0")
E(f"v_mov_b32 v{vLS}, 0\nv_mov_b32 v{vLS+1}, 0\ns_mov_b32 s{sSV1}, 0\ns_add_u32 m0, s{sWB}, {MISC}\ns_nop 3")
E("L_exact_p2:")
E(f"s_mov_b32 s{sSV2}, s{sSV1}")
ktile(0, lambda tg: v(vC+4*tg, 4))
ktile(1, lambda tg: v(vC+4*tg, 4))
for r in range(16): E(f"v_exp_f32 v{fS+r}, v{fS+r}")
for r in range(16): E(f"v_add_f32 v{vLS + r//8}, v{vLS + r//8}, v{fS+r}")
for r in range(8): E(f"v_cvt_pk_bf16_f32 v{fP+r}, v{fS+2*r}, v{fS+2*r+1}")
for cb in range(4):
    for rb in range(4):
        E(f"buffer_load_dwordx4 v{fV+rb}, {srd(sVV)}, s{sSV2} offen offset:{rb*1024} lds")
    E(f"s_add_u32 s{sSV2}, s{sSV2}, 128\ns_waitcnt vmcnt(0)")
    for u in range(4):
        E(f"ds_read_b64_tr_b16 {v(fK+4*u,2)}, v{fR+u}\nds_read_b64_tr_b16 {v(fK+4*u+2,2)}, v{fR+u} offset:2048")
    E("s_waitcnt lgkmcnt(0)")
    for u in range(4):
        for tg in range(2):
            d = v(Oreg(cb*4+u, tg), 4)
            E(mfma(d, v(fK+4*u, 4), v(fP+4*tg, 4), d))
    E("s_nop 7")
E(f"s_cmp_lt_u32 s{sSV1}, 262144\ns_cbranch_scc1 L_exact_p2")
for tg in range(2):
    for t_ in allred(vLS+tg, fM+2, "v_add_f32"): E(t_)
    E(f"v_rcp_f32 v{vLS+2+2*tg}, v{vLS+tg}\ns_nop 0\nv_mov_b32 v{vLS+3+2*tg}, v{vLS+2+2*tg}")
E(f"s_mov_b32 m0, s{sSV0}\ns_nop 15\ns_branch L_exact_ret")
sub_ins, log2, stats2 = resolve(Q.ins)

hdr = open(os.path.join(os.path.dirname(os.path.abspath(__file__)), 'header.txt')).read()
txt = hdr + f"""; @launch grid=(256,1,1) block=(256,1,1) lds={LDS_BYTES}
.amdgcn_target "amdgcn-amd-amdhsa--gfx950"
.text
.globl {NAME}_kernel
.p2align 8
.type {NAME}_kernel,@function
{NAME}_kernel:
""" + render(main_ins) + render(sub_ins) + f"""L_pad:
    s_endpgm
.if (L_pad - L_pc) < {NPF*16384}
.fill (({NPF*16384} - (L_pad - L_pc)) / 4) + 16, 4, 0xbf810000
.endif
.section .rodata,"a"
.p2align 6
.amdhsa_kernel {NAME}_kernel
  .amdhsa_next_free_vgpr 512
  .amdhsa_next_free_sgpr 102
  .amdhsa_accum_offset 256
  .amdhsa_group_segment_fixed_size 0
  .amdhsa_kernarg_size 88
  .amdhsa_user_sgpr_count 2
  .amdhsa_user_sgpr_kernarg_segment_ptr 1
  .amdhsa_system_sgpr_workgroup_id_x 1
.end_amdhsa_kernel
"""
open(sys.argv[1], 'w').write(txt)
```

```python
import sys, os, math, struct
from asmlib import *

NAME = "recurrent_scan__sliding_block_cached__dense_activation_relu__prompt"
OPT = dict(D=8, NA=12, HX=2, BAR=2, STAMP=0, PST=0, DUMP='', SIGG=60, FORCEFB=0, LOG=0,
           SST='sc1', HLD='sc1', HST='sc1', GLD='sc1', NOSST=0, NOHLD=0, NOHST=0,
           PX='', PW1='', PWQ='', PKV='', PWO='', PW2='', PF=1, PPF='', WSOFF=0, HSTEP=8, XREV=1, NPRO=4, S1G=370, P1G=410, S2G=95, P2G=170, G1N=10, XFIRST=8, FINE=0, RT=0, SIMPLE=0, SSP=0)
for a_ in sys.argv[2:]:
    k_, v_ = a_.split('=')
    OPT[k_] = v_.replace('+', ' ') if isinstance(OPT[k_], str) else int(v_)
D = OPT['D']; NA = OPT['NA']

RING_SLOTS = 10
SLOT = 16384
LDS_BYTES = 163840
WS_S = 0
WS_H = 0x1C00000
WS_F = 0x2300000
WS_DBG = 0x2400000
WS_SIZE = 0x8000000 if (OPT['DUMP'] or OPT['STAMP']) else 0x2400000
OOB = 0x7f000000
CSCALE = math.log2(math.e) / 16.0
def f2u(x): return struct.unpack('<I', struct.pack('<f', x))[0]
def hx(x): return f"0x{x & 0xffffffff:x}"

sX, sW1, sWQ, sKK, sVV, sWO, sW2, sWS, sOUT = 28, 32, 36, 40, 44, 48, 52, 56, 60
def srd(b): return f"s[{b}:{b+3}]"
sW, sHD, sT, sWB, sSO = 64, 65, 66, 67, 68
sT0, sT1, sT2, sT3 = 69, 70, 71, 3
sQT = 72
sHST, sHLD, sSST, sSG, sFLG, sFLP, sCNT, sSO2, sTL, sROT, sSTEP, sPC = 86, 87, 88, 89, 90, 91, 92, 93, 94, 95, 96, 97
sTC, sCOOB, sHPF, sW2I, sKVI = 19, 20, 21, 24, 25
sW1T = 12
sM1, sM2, sM3, sMD = 4, 6, 8, 10
sSV0, sSV1, sSV2 = 12, 13, 14
sSTMP = 26
DBGP = "s[22:23]"
vL16, vHS, vT0, vT1, vT2, vT3, vT4 = 1, 2, 3, 4, 5, 6, 7
vTR = 8
vRA = 20
vPF = 26
vZ, vONE, vPOLL, vSTAMP = 28, 29, 30, 31
vWQ, vKD, vVD, vWOD, vW2D = 32, 36, 40, 32, 36
vXN = 44
vR = 156
vW1D = vR + 64
vXD = vR + 68
vO = 128
vS = 44
vP = 76
vC = 92
vLS = 100
vM = 106
vA4 = 44
aF, aST, aQ, aH = 0, 48, 64, 128

def v(i, n=1): return f"v{i}" if n == 1 else f"v[{i}:{i+n-1}]"
def a(i, n=1): return f"a{i}" if n == 1 else f"a[{i}:{i+n-1}]"
def mfma(d, A, B, C): return f"v_mfma_f32_16x16x32_bf16 {d}, {A}, {B}, {C}"
def I(t, tag=None): return Ins(t, tag)
lg = lambda x: int(math.log2(x))

P = Prog()
E = P.emit

nstamp = [0]
stamp_names = []
def stamp_ins(name=''):
    if not OPT['STAMP']: return []
    n = nstamp[0]; nstamp[0] += 1; stamp_names.append(name)
    return [I(f"{'s_memrealtime' if OPT['RT'] else 's_memtime'} s[{sSTMP}:{sSTMP+1}]"), I("s_waitcnt lgkmcnt(0)"), I(f"v_writelane_b32 v{vSTAMP}, s{sSTMP}, {n}")]
def STAMP(name=''):
    P.ins += stamp_ins(name)
def PST(name):
    if OPT['PST']: STAMP(name)

frags = []
chunks = []
def add_chunk(name, lo, size, dma, private=False):
    chunks.append(dict(name=name, lo=lo, hi=lo+size, dma=dma, private=private, first=None, last=None)); return len(chunks)-1
def add_frag(kind, rs, rb, addr, mf, ch):
    frags.append(dict(kind=kind, rb=rb, rs=rs, addr=addr, mf=mf, chunk=ch))
    c = chunks[ch]
    if c['first'] is None: c['first'] = len(frags)-1
    c['last'] = len(frags)-1
def frag_reads(f):
    fr = frags[f]; A = aF + 4*(f % NA)
    def rd(op, dst, addr):
        win = addr >> 16
        return I(f"{op} {dst}, v{fr['rb'] + win*fr['rs']} offset:{addr & 0xffff}", tag=('f', f))
    if fr['kind'] == 'tr':
        return [rd("ds_read_b64_tr_b16", a(A, 2), fr['addr']), rd("ds_read_b64_tr_b16", a(A+2, 2), fr['addr'] + 2048)]
    return [rd("ds_read_b128", a(A, 4), fr['addr'])]
POL = {sW1: 'PW1', sWQ: 'PWQ', sKK: 'PKV', sVV: 'PKV', sWO: 'PWO', sW2: 'PW2'}
ring_pos = [7]
def ring_round(name, srd_b, vbase, so_text, private=False):
    slot = ring_pos[0] % RING_SLOTS; ring_pos[0] += 1
    lo = slot*SLOT
    tag = ('c', len(chunks))
    dma = [I(f"s_add_u32 m0, s{sWB}, {lo}")]
    if so_text.startswith('s') or so_text == '0': so = so_text
    elif so_text.startswith('+'):
        dma.append(I(f"s_add_u32 s{sSO}, {so_text[1:]}")); so = f"s{sSO}"
    else:
        dma.append(I(f"s_mov_b32 s{sSO}, {so_text}")); so = f"s{sSO}"
    for rb in range(4):
        dma.append(I(f"buffer_load_dwordx4 v{vbase+rb}, {srd(srd_b)}, {so} offen offset:{rb*1024} {OPT[POL[srd_b]]} lds", tag=tag))
    return add_chunk(name, lo, SLOT, dma, private)

phase = {}
def xn(ks, tg): return vXN + (ks*2 + tg)*4
def accp(pp, kq, tg, par): return vR + (pp % 2)*32 + ((kq*2 + tg)*2 + par)*4
for pp in range(6):
    phase[f'P{pp}'] = len(frags)
    for ks in range(14):
        qi = 14*pp + ks
        if qi % 4 == 0:
            r_ = qi // 4
            ch = ring_round(f"w1_{r_}", sW1, vW1D, f"s{sW1T + r_}") if r_ < 7 else ring_round(f"wq_{r_-7}", sWQ, vWQ, f"s{sQT + r_ - 7}")
        for u in range(4):
            mf = (lambda A, pp=pp, ks=ks, u=u: [mfma(v(accp(pp, u >> 1, tg, u & 1), 4), A, v(xn(ks, tg), 4), "0" if ks == 0 else v(accp(pp, u >> 1, tg, u & 1), 4)) for tg in range(2)])
            add_frag('tr', 4, vTR + u, chunks[ch]['lo'] + (qi % 4)*4096, mf, ch)
def qf(kq, tg): return aQ + (kq*2 + tg)*4
def Sreg(st, tg, kt): return vS + (st % 2)*16 + tg*8 + kt*4
def Preg(st, tg): return vP + (st % 2)*8 + tg*4
def Oreg(d, tg): return vO + (((d >> 1)*2 + tg)*2 + (d & 1))*4
def G2(st):
    phase[f'G2_{st}'] = len(frags)
    ch = ring_round(f"K_{st}", sKK, vKD, str(st*16384))
    order = [(kt, ks) for kt in range(2) for ks in range(8)]
    if st == 0:
        order = [(kt, ks) for kt in range(2) for ks in range(6)] + [(0, 6), (1, 6), (0, 7), (1, 7)]
    for kt, ks in order:
        def mf(A, kt=kt, ks=ks):
            r = []
            for tg in range(2):
                c = v(Sreg(st, tg, kt), 4)
                if ks == 0: c = "0" if st < 2 else v(vC + 4*tg, 4)
                r.append(mfma(v(Sreg(st, tg, kt), 4), A, a(qf(ks, tg), 4), c))
            return r
        add_frag('b128', 2, vRA + (ks & 1), chunks[ch]['lo'] + (ks >> 1)*4096 + kt*2048, mf, ch)
def G3(st):
    phase[f'G3_{st}'] = len(frags)
    ch = ring_round(f"V_{st}", sVV, vVD, str(st*16384))
    for d in range(16):
        mf = (lambda A, d=d: [mfma(v(Oreg(d, tg), 4), A, v(Preg(st, tg), 4), "0" if st == 0 else v(Oreg(d, tg), 4)) for tg in range(2)])
        add_frag('tr', 4, vTR + (d & 3), chunks[ch]['lo'] + (d >> 2)*4096, mf, ch)
G2(0)
for st in range(15):
    G2(st + 1); G3(st)
G3(15)
phase['G4'] = len(frags)
def acc4(p, u, tg): return vA4 + (p % 2)*32 + u*8 + tg*4
def Opk(ks, tg): return vO + (ks*2 + tg)*8
for p in range(7):
    for ks in range(8):
        if ks % 4 == 0: ch = ring_round(f"wo_{p}_{ks//4}", sWO, vWOD, f"s{sQT+p}" if ks == 0 else f"+s{sQT+p}, {4*32*896}")
        for u in range(4):
            mf = (lambda A, p=p, ks=ks, u=u: [mfma(v(acc4(p, u, tg), 4), A, v(Opk(ks, tg), 4), "0" if ks == 0 else v(acc4(p, u, tg), 4)) for tg in range(2)])
            add_frag('tr', 4, vTR + u, chunks[ch]['lo'] + (ks % 4)*4096, mf, ch)
phase['G6'] = len(frags)
def hole(i): return vO + 8*i + 4
def hreg(kk, t4):
    i = kk*4 + t4
    if i < 32: return a(aH + 4*i, 4)
    if i < 48: return a(aQ + 4*(i-32), 4)
    return v(hole(i-48), 4)
def facc(u, t4):
    i = u*4 + t4
    return vA4 + 32 + 4*i if i < 8 else hole(i)
vTP = 108
for kk in range(14):
    ch = ring_round(f"w2_{kk}", sW2, vW2D, str(kk*32*896), private=True)
    for u in range(4):
        mf = (lambda A, kk=kk, u=u: [mfma(v(facc(u, t4), 4), A, hreg(kk, t4), "0" if kk == 0 else v(facc(u, t4), 4)) for t4 in range(4)])
        add_frag('tr', 4, vTP + u, chunks[ch]['lo'], mf, ch)
NF = len(frags)
phase['END'] = NF

MF = [fr['mf'](a(aF + 4*(f % NA), 4)) for f, fr in enumerate(frags)]
G0 = [0]
for f in range(NF): G0.append(G0[-1] + len(MF[f]))
NG = G0[-1]
def gap(f): return G0[max(0, min(f, NF))]
pre = [[] for _ in range(NG)]
rds = [[] for _ in range(NG)]
ext = [[] for _ in range(NG)]
blk = {}
for g in range(NF):
    if g + D < NF:
        r = frag_reads(g + D)
        n = len(MF[g])
        rds[G0[g]].append(r[0])
        if len(r) > 1: rds[G0[g] + n//2].append(r[1])
def cost(i):
    if i.cls in ('ds',): return 8
    if i.cls == 'vmem': return 24 if 'store' in i.op and 'x4' in i.op else 8
    if i.cls in ('trans', 'perm'): return 8
    if i.cls == 'label': return 0
    return 4
def gtime(items):
    t = 4
    for i in items:
        if i.cls in VALU_LIKE: t = max(t, 8)
        t += cost(i)
    return t
def fits(gp, i): return gtime(pre[gp] + rds[gp] + ext[gp] + [i]) <= 16
def place(seq, g0, g1=None):
    seq = [I(s) if isinstance(s, str) else s for s in seq]
    g1 = NG if g1 is None else min(g1, NG)
    gp = g0; n = len(seq)
    for k, ins in enumerate(seq):
        bound = max(min(g0 + ((k + 1) * (g1 - g0)) // n - 1, g1 - 1), gp)
        best = None
        for q in range(gp, bound + 1):
            if fits(q, ins): best = q; break
        if best is None:
            best = min(range(gp, bound + 1), key=lambda q: (gtime(pre[q] + rds[q] + ext[q] + [ins]), q))
        ext[best].append(ins)
        gp = best
    return gp
def spread(seq, g0, g1):
    n = len(seq); cur = g0
    for k, ins in enumerate(seq):
        lo = max(g0 + (k*(g1-g0))//n, cur); hi = max(g0 + ((k+1)*(g1-g0))//n, lo+1)
        cur = place([ins], lo, hi)
    return cur

shared = [c for c in range(len(chunks)) if not chunks[c]['private']]
bar_frags = [chunks[c]['first'] for k_, c in enumerate(shared) if (k_ - 1) % OPT['BAR'] == 0 or k_ == 0]
bar_frags += [phase['G6'], phase['G6'] + D + 1]
bar_frags = sorted(set(bar_frags))
bar_gap = []
first_need = None
for bi, f0 in enumerate(bar_frags):
    f1 = bar_frags[bi+1] if bi + 1 < len(bar_frags) else NF
    need = [('c', c) for c in shared if f0 <= chunks[c]['first'] < f1]
    if f0 == 0: first_need = need; continue
    gp = gap(f0 - D); bar_gap.append(gp)
    if need: ext[gp-1].append(mk_wait_vm(need))
    pre[gp].append(I("s_barrier"))
for c in range(len(chunks)):
    if chunks[c]['private']:
        ext[gap(chunks[c]['first'] - D) - 1].append(mk_wait_vm([('c', c)]))
for g in range(4, NF, 4):
    ext[gap(g) - 1].append(mk_wait_lg([('f', f) for f in range(g, min(g+4, NF))]))
def earliest_gap(c):
    e = -1
    C = chunks[c]
    for c2 in range(c):
        B = chunks[c2]
        if B['hi'] <= C['lo'] or C['hi'] <= B['lo']: continue
        if B['private'] and C['private']: e = max(e, gap(B['last'] + 1))
        else: e = max(e, [gp for gp in bar_gap if gp >= gap(B['last'] + 1)][0] + 1)
    return e
pro_dma = []
cur = 0
for c in range(len(chunks)):
    e = earliest_gap(c)
    if e < 0 and c < OPT['NPRO']:
        pro_dma.append(chunks[c]['dma']); continue
    g0 = max(e, cur)
    span = 30 if g0 < gap(phase['G6'] - D) else 12
    if g0 > e + 8: span = 20
    seq = list(chunks[c]['dma'])
    if chunks[c]['name'] == 'wo_0_0': seq = [I(f"v_accvgpr_read_b32 v{vWOD+i}, a{aST+i}") for i in range(4)] + seq; wo_first_gap = g0
    if chunks[c]['name'] == 'w2_0': seq = [I(f"v_accvgpr_read_b32 v{vW2D+i}, a{aST+4+i}") for i in range(4)] + seq
    cur = spread(seq, g0, g0 + span)
    need_gap = gap(chunks[c]['first'] - D)
    if OPT['LOG']: print(chunks[c]['name'], g0, cur, need_gap, 'lead', need_gap - cur, file=sys.stderr)
    assert cur < need_gap - 1, (chunks[c]['name'], cur)

seq = []
for p in range(7):
    seq += [f"s_add_u32 s{sT2}, s{sROT}, {p}", f"s_sub_u32 s{sT3}, s{sT2}, 7", f"s_min_u32 s{sT2}, s{sT2}, s{sT3}",
            f"s_lshl_b32 s{sQT+p}, s{sT2}, 7", f"s_lshl_b32 s{sT2}, s{sT2}, 16", f"s_add_u32 s{sQT+7+p}, s{sSST}, s{sT2}",
            f"s_add_u32 s{sSST}, s{sSST}, s{sSTEP}"]
spread(seq, gap(phase['G3_4']), gap(phase['G3_8']))
assert gap(phase['G3_8']) < wo_first_gap
place([f"v_add_u32 v{vTP+i}, s{sWB}, v{vTR+i}" for i in range(12)], gap(phase['G4'] + 8), gap(phase['G4'] + 40))

def hconv(pp):
    s = []
    for kq in range(2):
        for tg in range(2):
            b = accp(pp, kq, tg, 0)
            for r in range(8): s.append(f"v_max_f32 v{b+r}, 0, v{b+r}")
            for r in range(4): s.append(f"v_cvt_pk_bf16_f32 v{b+r}, v{b+2*r}, v{b+2*r+1}")
            if not OPT['NOHST']:
                s.append(I(f"buffer_store_dwordx4 {v(b,4)}, v{vHS}, {srd(sWS)}, s{sHST} offen offset:{kq*2048 + tg*1024} {OPT['HST']}", tag='hst'))
    if pp == 0: s.append(f"s_add_u32 s{sHST}, s{sHST}, 4096")
    return s
for pp in range(2):
    gend = place(hconv(pp), gap(phase[f'P{pp+1}']) + 4, gap(phase[f'P{pp+2}']) - 4)
hb = [gp for gp in bar_gap if gp > gend + 150][0]
ext[hb-1].append(mk_wait_vm(['hst']))
sig = [I(f"s_cmp_lg_u32 s{sW}, 0"), I("s_cbranch_scc1 L_nosig"), I(f"s_lshl_b32 s{sT0}, s{sT}, 4"), I(f"v_mov_b32 v{vPOLL}, s{sT0}"),
       I("s_mov_b64 exec, 1"), I(f"global_atomic_add v{vPOLL}, v{vONE}, {DBGP} sc1"), I("s_mov_b64 exec, -1"), I("L_nosig:")]
sig[5].cls = 'misc'
ext[hb+1] += sig

def qconv(pp):
    s = []
    for kq in range(2):
        for tg in range(2):
            b = accp(pp, kq, tg, 0)
            s += [f"v_cvt_pk_bf16_f32 v{b+r}, v{b+2*r}, v{b+2*r+1}" for r in range(4)]
            s += [f"v_permlane32_swap_b32 v{b}, v{b+2}", f"v_permlane32_swap_b32 v{b+1}, v{b+3}",
                  f"v_permlane16_swap_b32 v{b}, v{b+2}", f"v_permlane16_swap_b32 v{b+1}, v{b+3}"]
            s += [f"v_accvgpr_write_b32 a{qf(2*(pp-2)+kq, tg)+r}, v{b+r}" for r in range(4)]
    return s
for pp in range(2, 5):
    g0 = gap(phase[f'P{pp+1}'])
    place(qconv(pp), g0 + 4, g0 + 2*56 - 4)
g0 = gap(phase['G2_0'])
qs = qconv(5)
place(qs[:24], g0 + 2, g0 + 2*7)
place(qs[24:], g0 + 2*7, g0 + 2*12 - 1)

def allred(r, t, op):
    return [f"v_mov_b32 v{t}, v{r}", f"v_permlane32_swap_b32 v{r}, v{t}", f"{op} v{r}, v{r}, v{t}",
            f"v_mov_b32 v{t}, v{r}", f"v_permlane16_swap_b32 v{r}, v{t}", f"{op} v{r}, v{r}, v{t}"]
def interleave(*seqs):
    out = []
    for k in range(max(len(s) for s in seqs)):
        for s in seqs:
            if k < len(s): out.append(s[k])
    return out
def svals(st): return [Sreg(st, tg, kt) + r for tg in range(2) for kt in range(2) for r in range(4)]
g0 = gap(phase['G2_1'])
seqs = []
for tg in range(2):
    b = Sreg(0, tg, 0); m = vM + 2*tg; t = m + 1
    s = [f"v_max3_f32 v{m}, v{b}, v{b+1}, v{b+2}", f"v_max3_f32 v{m}, v{m}, v{b+3}, v{b+4}", f"v_max3_f32 v{m}, v{m}, v{b+5}, v{b+6}",
         f"v_max_f32 v{m}, v{m}, v{b+7}"] + allred(m, t, "v_max_f32")
    s += [f"v_sub_f32 v{vC+4*tg+r}, 0, v{m}" for r in range(4)]
    seqs.append(s)
seq = interleave(*seqs) + [f"v_mov_b32 v{vLS}, 0", f"v_mov_b32 v{vLS+1}, 0"]
gm = place(seq, g0 + 3, g0 + 14)
def sm_seq(st, sub):
    s = []
    vals = svals(st)
    for k_, r in enumerate(vals):
        tg = k_ // 8
        if sub: s.append(f"v_add_f32 v{r}, v{r}, v{vC+4*tg}")
        s.append(f"v_exp_f32 v{r}, v{r}")
        if k_ % 2 == 1 and k_ >= 3:
            kk = k_ - 3
            s.append(f"v_cvt_pk_bf16_f32 v{Preg(st, kk//8) + (kk % 8)//2}, v{vals[kk]}, v{vals[kk+1]}")
    s.append(f"v_cvt_pk_bf16_f32 v{Preg(st, 1) + 3}, v{vals[14]}, v{vals[15]}")
    return s
def add_seq(st):
    vals = svals(st)
    return interleave([f"v_add_f32 v{vLS}, v{vLS}, v{r}" for r in vals[:8]], [f"v_add_f32 v{vLS+1}, v{vLS+1}, v{r}" for r in vals[8:]])
for st in range(16):
    g3 = gap(phase[f'G3_{st}'])
    if st == 0:
        ge = place(sm_seq(st, True), gm, g3 - 1)
    elif st < 15:
        gs = gap(phase[f'G2_{st+1}'] - D)
        if st == 1: gs = gap(phase['G3_0']) + 4
        ge = place(sm_seq(st, st == 1), gs, g3 - 2)
    else:
        ge = place(sm_seq(st, False), gap(phase['G3_14']) + 4, g3 - 2)
    lim = gap(phase[f'G2_{st+2}']) - 2 if st + 2 < 16 else g3 + 14
    ga = place(add_seq(st), ge, lim)
seqs = []
for tg in range(2):
    l = vLS + tg; t = vM + tg
    seqs.append(allred(l, t, "v_add_f32") + [f"v_rcp_f32 v{vLS+2+2*tg}, v{l}", f"v_mov_b32 v{vLS+3+2*tg}, v{vLS+2+2*tg}"])
seq = interleave(*seqs) + [f"v_add_f32 v{vM}, v{vLS}, v{vLS+1}", f"s_mov_b32 s{sT0}, {hx(f2u(2.0**24 if not OPT['FORCEFB'] else 0.5))}", f"v_cmp_ngt_f32 vcc, s{sT0}, v{vM}"]
place(seq, ga, gap(phase['G4']) - 1)

def dump(regs_list):
    r = [I("s_nop 15"), I(f"s_lshl_b32 s{sT0}, s{sT}, 4"), I(f"s_add_u32 s{sT0}, s{sT0}, s{sHD}"),
         I(f"s_lshl_b32 s{sT0}, s{sT0}, 2"), I(f"s_add_u32 s{sT0}, s{sT0}, s{sW}"),
         I(f"s_mul_i32 s{sT0}, s{sT0}, {32*1024}"), I(f"s_add_u32 s{sT0}, s{sT0}, {hx(WS_DBG)}")]
    for reg in regs_list:
        r.append(I(f"buffer_store_dwordx4 {reg}, v{vL16}, {srd(sWS)}, s{sT0} offen"))
        r.append(I(f"s_add_u32 s{sT0}, s{sT0}, 1024"))
    r.append(I("s_nop 3"))
    return r
b = [I("s_cbranch_vccnz L_exact"), I("L_exact_ret:")]
b += stamp_ins('attn_done')
for ks in range(8):
    for tg in range(2):
        o = Opk(ks, tg); rc = vLS + 2 + 2*tg
        b += [I(f"v_pk_mul_f32 {v(o+2*r,2)}, {v(o+2*r,2)}, {v(rc,2)}") for r in range(4)]
        b += [I(f"v_cvt_pk_bf16_f32 v{o+r}, v{o+2*r}, v{o+2*r+1}") for r in range(4)]
if OPT['DUMP'] == 'o': b += dump([v(Opk(ks, tg), 4) for ks in range(8) for tg in range(2)])
if OPT['DUMP'] == 'q': b += dump([a(qf(ks, tg), 4) for ks in range(8) for tg in range(2)])
b += stamp_ins('G4')
blk[phase['G4']] = b

def sconv(p):
    s = []
    for u in range(4):
        b = acc4(p, u, 0)
        s += [f"v_cvt_pk_bf16_f32 v{b+r}, v{b+2*r}, v{b+2*r+1}" for r in range(4)]
        if u: s.append(f"s_add_u32 s{sQT+7+p}, s{sQT+7+p}, 16384")
        if not OPT['NOSST']: s.append(I(f"buffer_store_dwordx4 {v(b,4)}, v{vL16}, {srd(sWS)}, s{sQT+7+p} offen {OPT['SST']}", tag=('sst', p)))
    return s
g4 = gap(phase['G4'])
for p in range(7):
    g0 = g4 + 2*32*(p+1)
    gl = (spread if OPT['SSP'] and p < 6 else place)(sconv(p), g0 + 4, g0 + (60 if p < 6 else 24))
last_store_gap = gl
hs = OPT['HSTEP']
gp0 = gap(phase[f'G3_{hs-2}'])
place([f"s_lshl_b32 s{sT0}, s{sTC}, 4", f"v_mov_b32 v{vPOLL}, s{sT0}", I(f"global_load_dword v{vPOLL}, v{vPOLL}, {DBGP} sc1", tag='pollh'),
       f"v_add_u32 v{vHS}, s{sCOOB}, v{vL16}", f"v_lshlrev_b32 v{vT1}, 7, v0", f"v_add_u32 v{vT1}, s{sCOOB}, v{vT1}"], gp0, gp0 + 24)
gp1 = gap(phase[f'G3_{hs}'])
ext[gp1] += [mk_wait_vm(['pollh']), I(f"v_cmp_gt_u32 vcc, 16, v{vPOLL}"), I("s_cbranch_vccnz L_spinh"), I("L_spinh_ret:")]
if OPT['PF']: place([I(f"buffer_load_dword a{aST+9}, v{vT1}, {srd(sWS)}, s{sHPF} offen sc1", tag='pf')], gp1 + 1, gp1 + 8)
def hloads(k0, k1):
    s = []
    for kk in range(k0, k1, 2):
        for rl in range(2):
            s.append(f"s_add_u32 s{sT1}, s{sHLD}, {rl*56*2048 + kk*2048}")
            for k2 in range(2):
                for tg in range(2):
                    s.append(I(f"buffer_load_dwordx4 {hreg(kk+k2, rl*2+tg)}, v{vHS}, {srd(sWS)}, s{sT1} offen offset:{k2*2048 + tg*1024} {OPT['HLD']}", tag='hld'))
    return s
if not OPT['NOHLD']:
    spread(hloads(0, 8), gap(phase[f'G3_{hs+3}']), gap(phase['G3_15']))
    spread(hloads(8, 14), g4 + 4, g4 + 2*32*3)
g6 = gap(phase['G6'])
vFV = 120
def greg(rl, sl):
    i = sl*2 + rl
    if i < 16: return v(Opk(0, 0) + 8*i, 4)
    return a(aH + (i - 16)*4, 4)
def gloads(s0, s1):
    s = []
    for sq in range(s0, s1, 4):
        for rl in range(2):
            s.append(I(f"s_add_u32 s{sT1}, s{sSG}, {rl*28*16384 + sq*1024}"))
            for sl in range(sq, sq+4):
                s.append(I(f"buffer_load_dwordx4 {greg(rl, sl)}, v{vHS}, {srd(sWS)}, s{sT1} offen offset:{(sl-sq)*1024} {OPT['GLD']}", tag=('g', rl, sl)))
    return s
place([f"v_mov_b32 v{vFV}, 4", f"v_mov_b32 v{vFV+1}, 7",
       f"v_and_b32 v{vFV+3}, 15, v0", f"v_lshlrev_b32 v{vFV+3}, 2, v{vFV+3}", f"v_and_b32 v{vFV+4}, 16, v0",
       f"v_lshl_add_u32 v{vFV+3}, v{vFV+4}, 4, v{vFV+3}"], g4 + 200, g4 + 240)
def signal(k, passes): return [mk_wait_vm([('sst', p) for p in passes]), I(f"buffer_store_dword v{vFV+k}, v{vZ}, {srd(sWS)}, s{sFLG} offen sc1", tag='flag')]
def poll(k): return [I(f"buffer_load_dword v{vPOLL}, v{vFV+3}, {srd(sWS)}, s{sFLP} offen sc1", tag=('poll', k))]
def chk(k, val): return [mk_wait_vm([('poll', k)]), I(f"v_cmp_gt_u32 vcc, {val}, v{vPOLL}"), I(f"s_cbranch_vccnz L_spin{k}"), I(f"L_spin{k}_ret:")]
if not OPT['SIMPLE']:
    ext[g4 + OPT['S1G']] += signal(0, range(4))
    ext[g4 + OPT['P1G']] += poll(0)
    c1 = last_store_gap + 1
    ext[c1] += chk(0, 4)
    gl1 = gloads(0, 8)
    n1 = OPT['G1N']
    spread(gl1[:n1], c1 + 1, g6 + OPT['S2G'])
    sg = g6 + OPT['S2G']
    ext[sg] += signal(1, range(7)) + [I(f"s_cmp_ge_u32 s{sPC}, 14"), I("s_cbranch_scc1 L_end")]
    assert sg > bar_gap[-1]
    spread(gl1[n1:15], sg + 1, g6 + OPT['P2G'])
    ext[g6 + OPT['P2G']] += poll(1)
    spread(gl1[15:], g6 + OPT['P2G'] + 1, NG - 4)
else:
    ext[last_store_gap] += stamp_ins('last_st')
    sg = g6 + OPT['S2G']
    s_ = signal(1, range(7))
    ext[sg] += stamp_ins('pre_sig') + [s_[0]] + stamp_ins('st_done') + [s_[1]] + [I(f"s_cmp_ge_u32 s{sPC}, 14"), I("s_cbranch_scc1 L_end")]
    ext[NG - 2] += poll(1) + [I("L_spin0_ret:")]

HX = OPT['HX']; NHG = 16 // HX; NT = 32 // HX
npf = [0]
def pf_addr(nlines, lines_per_row, pitch, k, dst, idx_sgpr, nshare):
    per = nlines // nshare
    s = [f"s_lshl_b32 s{sSO2}, s{sW}, 6", f"s_add_u32 s{sSO2}, s{sSO2}, {k*256}", f"v_add_u32 v{dst}, s{sSO2}, v0",
         f"v_min_u32 v{dst}, {per-1}, v{dst}", f"s_mul_i32 s{sSO2}, s{idx_sgpr}, {per}", f"v_add_u32 v{dst}, s{sSO2}, v{dst}"]
    if lines_per_row is None:
        s += [f"v_lshlrev_b32 v{dst}, 7, v{dst}"]
    else:
        sh = lg(lines_per_row)
        s += [f"v_and_b32 v{vPF}, {lines_per_row-1}, v{dst}", f"v_lshrrev_b32 v{dst}, {sh}, v{dst}",
              f"v_mul_u32_u24 v{dst}, {pitch}, v{dst}", f"v_lshl_add_u32 v{dst}, v{vPF}, 7, v{dst}"]
    return s
def pf_load(srd_b, dst):
    npf[0] += 1
    return I(f"buffer_load_dword a{aST + 10 + npf[0] % 6}, v{dst}, {srd(srd_b)}, 0 offen {OPT['PPF']}", tag='pf')
def pf_seq(srd_b, nlines, lines_per_row, pitch, idx, nshare):
    s = []
    for k in range((nlines // nshare + 255) // 256):
        s += pf_addr(nlines, lines_per_row, pitch, k, vPF+1, idx, nshare) + [pf_load(srd_b, vPF+1)]
    return s
pf_early = []
if OPT['PF']:
    pf_early = pf_seq(sWQ, 448*4, 4, 8192, sTL, NT)
    g0 = gap(phase['P0']) + 60
    g0 = place(pf_seq(sKK, 2048, None, 0, sKVI, 2*NT), g0, g0 + 60)
    g0 = place(pf_seq(sVV, 2048, None, 0, sKVI, 2*NT), g0, g0 + 60)
    g0 = gap(phase['G3_1'])
    g0 = place(pf_seq(sWO, 1792, None, 0, sTL, NT), g0, g0 + 60)
    g0 = spread(pf_seq(sW2, 1792, 1, 896, sW2I, 4), g0 + 40, g0 + 200)

if OPT['FINE'] == 1:
    for p in range(1, 7): phase[f'G4p{p}'] = phase['G4'] + 32*p; blk[phase[f'G4p{p}']] = stamp_ins(f'G4p{p}')
    for kk in range(2, 14, 2): phase[f'G6k{kk}'] = phase['G6'] + 4*kk; blk[phase[f'G6k{kk}']] = stamp_ins(f'G6k{kk}')
if OPT['FINE'] == 2:
    for f_ in range(16, 336, 16):
        if f_ not in (phase['P2'],): blk[f_] = stamp_ins(f'f{f_}')
if OPT['STAMP']:
    for nm in ('P0', 'P2', 'G2_0', 'G2_4', 'G2_8', 'G2_12', 'G6'):
        blk.setdefault(phase[nm], [])
        blk[phase[nm]] = stamp_ins(nm) + blk[phase[nm]]

E(f"""
s_cmp_ge_u32 s2, 256
s_cbranch_scc1 L_end
s_load_dwordx16 s[4:19], s[0:1], 0
s_load_dwordx4 s[20:23], s[0:1], 64
s_load_dwordx2 s[24:25], s[0:1], 80
""")
if OPT['STAMP']: E("s_memtime s[98:99]\ns_memrealtime s[100:101]")
E(f"""
v_lshrrev_b32 v{vT0}, 6, v0
v_and_b32 v0, 63, v0
s_and_b32 s{sT0}, s2, 7
v_readfirstlane_b32 s{sW}, v{vT0}
s_lshr_b32 s{sT1}, s2, 3
s_and_b32 s{sT2}, s{sT0}, {NHG-1}
s_lshl_b32 s{sT2}, s{sT2}, {lg(HX)}
s_and_b32 s{sHD}, s{sT1}, {HX-1}
s_add_u32 s{sHD}, s{sHD}, s{sT2}
s_lshr_b32 s{sT2}, s{sT0}, {lg(NHG)}
s_lshl_b32 s{sT2}, s{sT2}, {lg(NT)}
s_lshr_b32 s{sTL}, s{sT1}, {lg(HX)}
s_add_u32 s{sT}, s{sTL}, s{sT2}
s_lshl_b32 s{sWB}, s{sW}, 12
""")
E(f"""
v_lshrrev_b32 v{vT3}, 3, v0
v_and_b32 v{vT4}, 7, v0
v_lshrrev_b32 v{vT1}, 1, v{vT3}
v_xor_b32 v{vT1}, v{vT1}, v{vT4}
v_lshlrev_b32 v{vT1}, 4, v{vT1}
v_xor_b32 v{vT2}, 64, v{vT1}
s_lshl_b32 s{sT1}, s{sT}, 2
s_add_u32 s{sT1}, s{sT1}, s{sW}
s_mul_i32 s{sT1}, s{sT1}, {32*896}
v_mul_u32_u24 v{vT0}, 896, v{vT3}
v_add_u32 v{vT0}, s{sT1}, v{vT0}
v_add_u32 v{vXD}, v{vT0}, v{vT1}
v_add_u32 v{vXD+1}, v{vT0}, v{vT2}
v_add_u32 v{vXD+2}, {2*6144}, v{vXD}
v_add_u32 v{vXD+3}, {3*6144}, v{vXD+1}
v_add_u32 v{vXD+1}, 6144, v{vXD+1}
s_mov_b32 m0, s{sWB}
s_and_b32 s{sROT}, s{sHD}, {HX-1}
s_mul_i32 s{sROT}, s{sROT}, {7 if OPT['XREV'] else 0}
s_lshr_b32 s{sROT}, s{sROT}, {lg(HX)}
s_lshl_b32 s{sSTEP}, s{sROT}, 7
s_mov_b32 s{sX+2}, {2048*896}
s_mov_b32 s{sX+3}, 0x00020000
s_waitcnt lgkmcnt(0)
s_mov_b32 s{sX}, s4
s_mov_b32 s{sX+1}, s5
""")
PST('karg')
def mk_srd(b, plo, off_sgpr, size):
    if off_sgpr is None:
        E(f"s_mov_b32 s{b}, s{plo}\ns_mov_b32 s{b+1}, s{plo+1}")
    else:
        E(f"s_add_u32 s{b}, s{plo}, s{off_sgpr}\ns_addc_u32 s{b+1}, s{plo+1}, 0")
    E(f"s_mov_b32 s{b+2}, {size}\ns_mov_b32 s{b+3}, 0x00020000")
xdma = []
for tg in range(2):
    for q in range(7):
        if q or tg:
            xdma += [I(f"s_add_u32 m0, s{sWB}, {q*SLOT}"), I(f"s_add_u32 s{sSTEP}, s{sSTEP}, 128"), I(f"s_sub_u32 s{sSST}, s{sSTEP}, 896"), I(f"s_min_u32 s{sSTEP}, s{sSTEP}, s{sSST}")]
        for rb in (2*tg, 2*tg+1):
            xdma.append(I(f"buffer_load_dwordx4 v{vXD+rb}, {srd(sX)}, s{sSTEP} offen offset:{rb*1024} {OPT['PX']} lds", tag=('x', tg, q)))
def xissue(n):
    while n > 0 and xdma:
        i_ = xdma.pop(0); P.ins.append(i_)
        if i_.cls == 'vmem': n -= 1
xissue(OPT['XFIRST'])
CODE_LINES = 512
E(f"s_lshr_b32 s{sCNT}, s2, 3")
for t_ in pf_addr(CODE_LINES, None, 0, 0, vR+80, sCNT, 32): E(t_)
E(f"""
s_getpc_b64 s[26:27]
L_pc:
global_load_dword v{vR+90}, v{vR+80}, s[26:27]
""")
for t_ in pf_addr(448*2, 2, 3584, 0, vR+81, sTL, NT): E(t_)
assert 448*2 // NT <= 256
E(f"""
s_lshl_b32 s{sT1}, s{sHD}, 8
s_sub_u32 s{sT2}, {448*3584}, s{sT1}
s_cmp_lt_u32 s{sHD}, 14
s_cselect_b32 s{sT2}, s{sT2}, 0
s_cselect_b32 s{sT1}, s{sT1}, 0
""")
mk_srd(sW1, 16, sT1, f"s{sT2}")
if OPT['PF']: P.ins.append(pf_load(sW1, vR+81))
xissue(2)
PST('x_first')
mk_srd(sOUT, 20, None, 2048*896)
E(f"""
s_lshl_b32 s{sT0}, s{sW}, 7
v_lshlrev_b32 v{vKD}, 9, v{vT3}
v_add_u32 v{vVD}, s{sT0}, v{vKD}
v_add_u32 v{vKD}, v{vVD}, v{vT1}
v_add_u32 v{vKD+1}, v{vVD}, v{vT2}
v_add_u32 v{vKD+2}, {2*3072}, v{vKD}
v_add_u32 v{vKD+3}, {3*3072}, v{vKD+1}
v_add_u32 v{vKD+1}, 3072, v{vKD+1}
v_and_b32 v{vT0}, 6, v{vT3}
v_xor_b32 v{vT0}, v{vT0}, v{vT4}
v_lshlrev_b32 v{vT0}, 4, v{vT0}
v_add_u32 v{vVD}, v{vVD}, v{vT0}
""")
for rb in range(1, 4): E(f"v_add_u32 v{vVD+rb}, {3072*rb}, v{vVD}")
E(f"""
v_and_b32 v{vT1}, 4, v{vT3}
v_add_u32 v{vT1}, v{vT1}, v{vT3}
v_lshl_add_u32 v{vWQ}, v{vT1}, 13, v{vT0}
v_mul_u32_u24 v{vT1}, 3584, v{vT1}
v_add_u32 v{vW1D}, v{vT1}, v{vT0}
""")
for rb in range(1, 4):
    rr = 16*(rb & 1) + 4*(rb >> 1)
    E(f"v_add_u32 v{vW1D+rb}, {rr*3584 - 1024*rb}, v{vW1D}\nv_add_u32 v{vWQ+rb}, {rr*8192 - 1024*rb}, v{vWQ}")
E(f"s_lshl_b32 s{sT0}, s{sHD}, 9\ns_sub_u32 s{sT2}, {448*8192}, s{sT0}")
mk_srd(sWQ, 10, sT0, f"s{sT2}")
E(f"s_lshr_b32 s{sT0}, s{sHD}, 1\ns_lshl_b32 s{sT0}, s{sT0}, 20\ns_add_u32 s{sT0}, s{sT0}, {1536*512}")
mk_srd(sKK, 6, sT0, 262144)
mk_srd(sVV, 8, sT0, 262144)
E(f"s_mul_i32 s{sT0}, s{sHD}, {256*896}")
mk_srd(sWO, 12, sT0, 256*896)
E(f"""
s_lshl_b32 s{sCNT}, s{sROT}, 1
s_lshr_b32 s{sPC}, s2, 3
s_and_b32 s{sPC}, s{sPC}, 15
s_cmp_ge_u32 s{sPC}, 7
s_cselect_b32 s{sT3}, 1, 0
s_mul_i32 s{sT1}, s{sT3}, 7
s_sub_u32 s{sT1}, s{sPC}, s{sT1}
s_lshl_b32 s{sT0}, s{sT1}, 7
s_sub_u32 s{sT2}, {1792*896}, s{sT0}
s_cmp_lt_u32 s{sPC}, 14
s_cselect_b32 s{sT2}, s{sT2}, 0
s_cselect_b32 s{sT0}, s{sT0}, 0
""")
mk_srd(sW2, 18, sT0, f"s{sT2}")
if OPT['WSOFF']:
    E(f"s_mov_b32 s{sT0}, {hx(OPT['WSOFF'] << 20)}")
    mk_srd(sWS, 24, sT0, WS_SIZE)
else:
    mk_srd(sWS, 24, None, WS_SIZE)
def qtab(rho):
    E(f"""
s_add_u32 s{sT0}, s{sW}, {4*rho}
s_mul_i32 s{sT2}, s{sT0}, 4682
s_lshr_b32 s{sT2}, s{sT2}, 16
s_mul_i32 s{sSO}, s{sT2}, 14
s_sub_u32 s{sT0}, s{sT0}, s{sSO}
s_add_u32 s{sT0}, s{sT0}, s{sCNT}
s_sub_u32 s{sSO}, s{sT0}, 14
s_min_u32 s{sT0}, s{sT0}, s{sSO}
s_lshl_b32 s{sT2}, s{sT2}, 7
""")
    if rho < 7: E(f"s_mul_i32 s{sSO}, s{sT0}, {32*3584}\ns_add_u32 s{sW1T+rho}, s{sSO}, s{sT2}")
    E(f"s_lshl_b32 s{sT0}, s{sT0}, 18\ns_add_u32 s{sQT+rho}, s{sT0}, s{sT2}")
for rho in range(14): qtab(rho)
E(f"""
v_mul_u32_u24 v{vT1}, 896, v{vT3}
v_add_u32 v{vT1}, v{vT1}, v{vT0}
s_mul_i32 s{sT0}, s{sW}, {32*896}
s_mul_i32 s{sT2}, s{sW}, {448*896}
""")
for rb in range(4):
    if rb: E(f"v_add_u32 v{vT1}, 6144, v{vT1}")
    E(f"v_add_u32 v{vT2}, s{sT0}, v{vT1}\nv_accvgpr_write_b32 a{aST+rb}, v{vT2}\nv_add_u32 v{vT2}, s{sT2}, v{vT1}\nv_accvgpr_write_b32 a{aST+4+rb}, v{vT2}")
E(f"""
v_lshlrev_b32 v{vL16}, 4, v0
v_lshrrev_b32 v{vT0}, 2, v0
v_lshlrev_b32 v{vT1}, 7, v{vT0}
v_and_b32 v{vT2}, 3, v0
v_lshl_add_u32 v{vT1}, v{vT2}, 3, v{vT1}
v_bfe_u32 v{vT3}, v0, 3, 2
""")
for u in range(4):
    E(f"""
v_xor_b32 v{vT4}, {u}, v{vT3}
v_lshl_add_u32 v{vTR+u}, v{vT4}, 5, v{vT1}
v_add_u32 v{vTR+4+u}, 0x10000, v{vTR+u}
v_add_u32 v{vTR+8+u}, 0x20000, v{vTR+u}
""")
E(f"""
v_and_b32 v{vT0}, 15, v0
v_lshrrev_b32 v{vT1}, 1, v{vT0}
v_lshrrev_b32 v{vT2}, 4, v0
v_xor_b32 v{vT1}, v{vT1}, v{vT2}
v_lshlrev_b32 v{vT4}, 7, v{vT0}
v_lshl_add_u32 v{vRA}, v{vT1}, 4, v{vT4}
v_xor_b32 v{vRA+1}, 64, v{vRA}
v_add_u32 v{vRA+2}, 0x10000, v{vRA}
v_add_u32 v{vRA+3}, 0x10000, v{vRA+1}
v_add_u32 v{vRA+4}, 0x20000, v{vRA}
v_add_u32 v{vRA+5}, 0x20000, v{vRA+1}
""")
vXR = vR + 72
for i in range(4): E(f"v_add_u32 v{vXR+i}, s{sWB}, v{vRA+i}")
E(f"""
s_and_b32 s{sTC}, s2, 7
s_lshl_b32 s{sTC}, s{sTC}, 1
s_lshr_b32 s{sT0}, s2, 7
s_add_u32 s{sTC}, s{sTC}, s{sT0}
s_lshl_b32 s{sW2I}, s{sT0}, 1
s_add_u32 s{sW2I}, s{sW2I}, s{sT3}
s_lshl_b32 s{sT2}, s{sTC}, 1
s_add_u32 s{sT2}, s{sT2}, s{sT3}
s_lshl_b32 s{sT0}, s{sT2}, 6
v_add_u32 v{vT0}, s{sT0}, v{vT0}
v_mul_u32_u24 v{vT0}, 896, v{vT0}
v_lshl_add_u32 v{vT0}, v{vT2}, 3, v{vT0}
s_lshl_b32 s{sT0}, s{sT1}, 2
s_add_u32 s{sT0}, s{sT0}, s{sW}
s_lshl_b32 s{sSG}, s{sT0}, 5
v_add_u32 v{vT0}, s{sSG}, v{vT0}
v_accvgpr_write_b32 a{aST+8}, v{vT0}
s_lshl_b32 s{sT2}, s{sT2}, 1
s_mul_i32 s{sSG}, s{sT2}, 28
s_add_u32 s{sSG}, s{sSG}, s{sT0}
s_lshl_b32 s{sSG}, s{sSG}, 14
s_lshl_b32 s{sFLP}, s{sT2}, 8
s_add_u32 s{sFLP}, s{sFLP}, {hx(WS_F)}
s_mul_i32 s{sHLD}, s{sT2}, {56*2048}
s_add_u32 s{sHLD}, s{sHLD}, {hx(WS_H)}
s_lshl_b32 s{sT0}, s{sT0}, 13
s_add_u32 s{sHPF}, s{sHLD}, s{sT0}
s_mul_i32 s{sT0}, s{sW}, {14*2048}
s_add_u32 s{sHLD}, s{sHLD}, s{sT0}
s_cmp_lt_u32 s{sPC}, 14
s_cselect_b32 s{sCOOB}, 0, {hx(OOB)}
s_lshl_b32 s{sKVI}, s{sTL}, 1
s_and_b32 s{sT0}, s{sHD}, 1
s_add_u32 s{sKVI}, s{sKVI}, s{sT0}
s_lshl_b32 s{sT1}, s{sT}, 2
s_add_u32 s{sT1}, s{sT1}, s{sW}
s_lshl_b32 s{sFLG}, s{sT1}, 8
s_lshl_b32 s{sT2}, s{sHD}, 2
s_add_u32 s{sFLG}, s{sFLG}, s{sT2}
s_add_u32 s{sFLG}, s{sFLG}, {hx(WS_F)}
s_mul_i32 s{sHST}, s{sT1}, {56*2048}
s_min_u32 s{sT2}, s{sHD}, 13
s_lshl_b32 s{sT2}, s{sT2}, 13
s_add_u32 s{sHST}, s{sHST}, s{sT2}
s_add_u32 s{sHST}, s{sHST}, {hx(WS_H)}
s_cmp_lt_u32 s{sHD}, 14
s_cselect_b32 s{sT2}, 0, {hx(OOB)}
v_add_u32 v{vHS}, s{sT2}, v{vL16}
v_mov_b32 v{vZ}, 0
v_mov_b32 v{vONE}, 1
""")
PST('addr_done')
xissue(100)
PST('x_issued')
E(f"""
s_mul_i32 s{sSST}, s{sT1}, {28*16384}
s_cmp_ge_u32 s{sHD}, 7
s_cselect_b32 s{sT3}, 1, 0
s_sub_u32 s{sROT}, s{sHD}, 7
s_min_u32 s{sROT}, s{sROT}, s{sHD}
s_sub_u32 s{sT0}, s{sROT}, 7
s_min_u32 s{sROT}, s{sROT}, s{sT0}
s_cmp_lt_u32 s{sHD}, 14
s_cselect_b32 s{sT2}, s{sT3}, s{sHD}
s_cselect_b32 s{sSTEP}, 2048, 0
s_lshl_b32 s{sT2}, s{sT2}, 10
s_add_u32 s{sSST}, s{sSST}, s{sT2}
""")
for s_, val in ((sM1, 0x2222222222222222), (sM2, 0xCCCCCCCCCCCCCCCC), (sM3, 0x8888888888888888), (sMD, 0xF0000F0000F0000F)):
    E(f"s_mov_b32 s{s_}, {hx(val)}\ns_mov_b32 s{s_+1}, {hx(val >> 32)}")

vONES = vR + 16
vD1 = vR + 20
vD2 = vR + 28
vLA = vR + 36
for i in range(4): E(f"v_mov_b32 v{vONES+i}, 0x3f803f80")
def rbf(r):
    return [f"v_cvt_pk_bf16_f32 v{r}, v{r}, v{r}", f"v_lshlrev_b32 v{r}, 16, v{r}"]
E(f"s_mov_b32 s{sT0}, {hx(f2u(1.0/448.0))}\ns_mov_b32 s{sT1}, {hx(f2u(1e-5))}\ns_mov_b32 s{sT2}, {hx(f2u(CSCALE))}")
STAMP('pro_done')
vNT = vR + 44
NPRO = OPT['NPRO']
assert len(pro_dma) == NPRO
late = {0: [i_ for d_ in pro_dma[:3] for i_ in d_],
        1: [I(t_) if isinstance(t_, str) else t_ for t_ in pf_early] + [i_ for d_ in pro_dma[3:] for i_ in d_]
           + [I(f"buffer_store_dword v{vZ}, v{vZ}, {srd(sWS)}, s{sFLG} offen sc1", tag='hst')]}
for tg in range(2):
    def stats(q):
        for ks in (2*q, 2*q+1):
            X = v(xn(ks, tg), 4)
            E(mfma(v(vD1+4*tg, 4), v(vONES, 4), X, "0" if ks == 0 else v(vD1+4*tg, 4)))
            E(mfma(v(vD2+4*tg, 4), X, X, "0" if ks == 0 else v(vD2+4*tg, 4)))
    for q in range(7):
        P.wait_vm_tag([('x', tg, q)])
        for ks in (2*q, 2*q+1):
            ad = q*SLOT + tg*2048
            E(f"ds_read_b128 {v(xn(ks,tg),4)}, v{vXR + (ad >> 16)*2 + (ks & 1)} offset:{ad & 0xffff}", tag=('xr', q))
        if q > 1:
            P.wait_lgkm_tag([('xr', q-2)]); stats(q-2)
    for q in (5, 6):
        P.wait_lgkm_tag([('xr', q)]); stats(q)
    STAMP(f'x{tg}_arrived')
    d = vD2 + 4*tg; m = vD1 + 4*tg; t = m + 1; L = vLA + 4*tg
    s = [f"v_cndmask_b32 v{d}, v{d}, v{d+1}, s[{sM1}:{sM1+1}]",
         f"v_cndmask_b32 v{d+2}, v{d+2}, v{d+3}, s[{sM3}:{sM3+1}]",
         f"v_mul_f32 v{m}, s{sT0}, v{m}",
         f"v_cndmask_b32 v{d}, v{d}, v{d+2}, s[{sM2}:{sM2+1}]",
         f"v_cndmask_b32 v{d}, 0, v{d}, s[{sMD}:{sMD+1}]"]
    s += allred(d, t, "v_add_f32")
    s += [f"v_mul_f32 v{d}, s{sT0}, v{d}",
          f"v_fma_f32 v{d}, -v{m}, v{m}, v{d}",
          f"v_max_f32 v{d}, 0, v{d}"]
    s += interleave(rbf(m), rbf(d))
    s += [f"v_add_f32 v{d}, s{sT1}, v{d}"] + rbf(d) + [f"v_sqrt_f32 v{d}, v{d}"] + rbf(d)
    s += [f"v_rcp_f32 v{d}, v{d}", f"v_mul_f32 v{d}, s{sT2}, v{d}",
          f"v_cvt_pk_bf16_f32 v{d}, v{d}, v{d}",
          f"v_and_b32 v{L}, 0xffff, v{d}", f"v_lshlrev_b32 v{L+1}, 16, v{d}",
          f"v_mul_f32 v{L+2}, -v{m}, v{L+1}"]
    for t_ in s: E(t_)
    k = 0
    pend = []
    lt = late[tg]
    for ks in range(14):
        if tg == 1 and ks == 10:
            P.ins += lt; lt = []
            P.wait_vm_tag(first_need)
            E("s_barrier")
            for f in range(D): P.ins += frag_reads(f)
        for r in range(4):
            x_ = xn(ks, tg) + r
            t = vNT + 2*(k % 8); k += 1
            E(f"v_dot2_f32_bf16 v{t}, v{x_}, v{L}, v{L+2}\nv_dot2_f32_bf16 v{t+1}, v{x_}, v{L+1}, v{L+2}")
            pend.append(f"v_cvt_pk_bf16_f32 v{x_}, v{t}, v{t+1}")
            if len(pend) > 2: E(pend.pop(0))
            if lt and (k % 3 == 0 or lt[0].cls != 'vmem'): P.ins.append(lt.pop(0))
    for t_ in pend: E(t_)
    P.ins += lt
if OPT['DUMP'] == 'xn':
    P.ins += dump([v(xn(ks, tg), 4) for ks in range(14) for tg in range(2)])

P.ins.append(mk_wait_lg([('f', f) for f in range(4)]))
est = 0
for g in range(NF):
    if g in blk: P.ins += blk[g]
    for h, m_ in enumerate(MF[g]):
        gp = G0[g] + h
        P.ins.append(I(m_))
        P.ins += pre[gp] + rds[gp] + ext[gp]
        est += max(16, gtime(pre[gp] + rds[gp] + ext[gp]))
print("estimated main-stream cycles", est, "ideal", 16*NG, file=sys.stderr)

STAMP('g6_done')
def fs(t4, w_): return facc(t4, w_)
vSEL = 44
vSA = 52
vXF = 68
vAD = 8
E(f"""
v_accvgpr_read_b32 v{vAD}, a{aST+8}
v_add_u32 v{vT1}, s{sWB}, v{vL16}
s_lshl_b32 s{sT0}, s{sW}, 14
v_add_u32 v{vT2}, s{sT0}, v{vL16}
""")
P.ins += chk(1, 7)
STAMP('flags_ok')
for t4 in range(4):
    if t4: E(f"s_mov_b32 s{sSV0 + t4 - 1}, {t4*14336}")
    E(f"buffer_load_dwordx2 {v(vXF + t4*2, 2)}, v{vAD}, {srd(sX)}, {'0' if t4 == 0 else 's%d' % (sSV0+t4-1)} offen", tag='xf')
gl2 = gloads(8, 16)
if OPT['SIMPLE']: P.ins += gloads(0, 8)
P.ins += gl2[:10]
for u in range(4):
    for t4 in range(4):
        E(f"ds_write_b128 v{vT1}, {v(facc(u, t4), 4)} offset:{u*SLOT + t4*1024}")
E(f"""
v_mov_b32 v{vSEL}, 0
v_mov_b32 v{vSEL+1}, 0
v_mov_b32 v{vSEL+4}, 0
v_mov_b32 v{vSEL+5}, 0
v_mov_b32 v{vT0}, 0x3f80
v_mov_b32 v{vSEL+2}, 0x3f800000
s_or_b64 s[16:17], s[{sM1}:{sM1+1}], s[{sM3}:{sM3+1}]
v_cndmask_b32 v{vT0}, v{vT0}, v{vSEL+2}, s[16:17]
v_cndmask_b32 v{vT0}, 0, v{vT0}, s[{sMD}:{sMD+1}]
s_mov_b64 s[16:17], s[{sM2}:{sM2+1}]
v_cndmask_b32 v{vSEL+2}, v{vT0}, 0, s[16:17]
v_cndmask_b32 v{vSEL+3}, 0, v{vT0}, s[16:17]
s_mov_b32 s{sT0}, {hx(f2u(1.0/CSCALE))}
s_mov_b32 s{sT2}, {hx(f2u(-16.0))}
""")
E("s_waitcnt lgkmcnt(0)\ns_barrier")
for t4 in range(4):
    for w_ in range(4):
        E(f"ds_read_b128 {v(fs(t4, w_), 4)}, v{vT2} offset:{w_*4096 + t4*1024}")
def smf(rl, sl):
    r = []
    for tg in range(2):
        d = v(vSA + (rl*2+tg)*4, 4)
        r.append(mfma(d, v(vSEL + (2 if tg == 0 else 0), 4), greg(rl, sl), "0" if sl == 0 else d))
    return r
val = []
for t4 in range(4):
    b0, b1, b2, b3 = (fs(t4, w_) for w_ in range(4))
    for r in range(4): val += [f"v_add_f32 v{b0+r}, v{b0+r}, v{b1+r}", f"v_add_f32 v{b2+r}, v{b2+r}, v{b3+r}"]
    for r in range(4): val.append(f"v_add_f32 v{b0+r}, v{b0+r}, v{b2+r}")
    for r in range(4): val.append(f"v_mul_f32 v{b1+r}, s{sT2}, v{b0+r}")
    for r in range(4): val.append(f"v_exp_f32 v{b1+r}, v{b1+r}")
    for r in range(4): val.append(f"v_mul_f32 v{b0+r}, s{sT0}, v{b0+r}")
    for r in range(4): val.append(f"v_add_f32 v{b1+r}, 1.0, v{b1+r}")
    for r in range(4): val.append(f"v_rcp_f32 v{b1+r}, v{b1+r}")
    for r in range(4): val.append(f"v_mul_f32 v{b0+r}, v{b0+r}, v{b1+r}")
P.ins += gl2[10:]
ms = []
for sq in (0, 4):
    for rl in range(2):
        ms.append(('w', [('g', rl, sq+3)]))
        for sl in range(sq, sq+4): ms += smf(rl, sl)
per = (len(val) + 31) // 32
for m_ in ms:
    if isinstance(m_, tuple): P.wait_vm_tag(m_[1]); continue
    E(m_)
    for _ in range(per):
        if val: E(val.pop(0))
for t_ in val: E(t_)
for t4 in range(4):
    b2 = fs(t4, 2); xr = vXF + t4*2
    E(f"""
v_lshlrev_b32 v{b2}, 16, v{xr}
v_and_b32 v{b2+1}, 0xffff0000, v{xr}
v_lshlrev_b32 v{b2+2}, 16, v{xr+1}
v_and_b32 v{b2+3}, 0xffff0000, v{xr+1}
""")
STAMP('g_done')
for sq in (8, 12):
    for rl in range(2):
        for sl in range(sq, sq+4):
            for m_ in smf(rl, sl): E(m_)
for t4 in range(4):
    b0 = fs(t4, 0); b2 = fs(t4, 2)
    for r in range(4): E(f"v_fma_f32 v{b0+r}, v{vSA+t4*4+r}, v{b0+r}, v{b2+r}")
    E(f"v_cvt_pk_bf16_f32 v{b0}, v{b0}, v{b0+1}\nv_cvt_pk_bf16_f32 v{b0+1}, v{b0+2}, v{b0+3}")
    E(f"buffer_store_dwordx2 {v(b0,2)}, v{vAD}, {srd(sOUT)}, {'0' if t4 == 0 else 's%d' % (sSV0+t4-1)} offen")
if OPT['STAMP']:
    STAMP('end')
    E(f"""
s_memrealtime s[{sSTMP}:{sSTMP+1}]
s_waitcnt lgkmcnt(0)
v_writelane_b32 v{vSTAMP}, s98, 60
v_writelane_b32 v{vSTAMP}, s100, 61
v_writelane_b32 v{vSTAMP}, s{sSTMP}, 62
s_lshl_b32 s{sT0}, s2, 2
s_add_u32 s{sT0}, s{sT0}, s{sW}
s_lshl_b32 s{sT0}, s{sT0}, 8
s_add_u32 s{sT0}, s{sT0}, {hx(WS_DBG)}
v_lshlrev_b32 v{vT0}, 2, v0
buffer_store_dword v{vSTAMP}, v{vT0}, {srd(sWS)}, s{sT0} offen
""")
E("L_end:\ns_endpgm")
main_ins, log, stats_ = resolve(P.ins)
print("main", stats_, file=sys.stderr)
if OPT['LOG']:
    for l in log: print("  ", l, file=sys.stderr)

Q = Prog(); E = Q.emit
SPIN_MAX = 1 << 17
def spin(label, load, want, cmp):
    E(f"""
{label}:
s_mov_b32 s{sCNT}, {SPIN_MAX}
{label}_loop:
s_sleep 1
{load}
s_waitcnt vmcnt(0)
v_cmp_{cmp}_u32 vcc, {want}, v{vPOLL}
s_sub_u32 s{sCNT}, s{sCNT}, 1
s_cmp_eq_u32 s{sCNT}, 0
s_cbranch_scc1 {label}_ret
s_cbranch_vccnz {label}_loop
s_branch {label}_ret
""")
spin("L_spinh", f"s_lshl_b32 s{sT0}, s{sTC}, 4\nv_mov_b32 v{vT0}, s{sT0}\nglobal_load_dword v{vPOLL}, v{vT0}, {DBGP} sc1", 16, "gt")
for k_, val_ in enumerate((4, 7)):
    spin(f"L_spin{k_}", f"buffer_load_dword v{vPOLL}, v{vFV+3}, {srd(sWS)}, s{sFLP} offen sc1", val_, "gt")
MISC = [c['lo'] for c in chunks if c['name'] == 'V_15'][0]
fK, fS, fP, fA, fV, fR, fM = 44, 76, 108, 116, 117, 121, 125
E(f"""
L_exact:
s_waitcnt vmcnt(0) lgkmcnt(0)
s_nop 15
s_mov_b32 s{sSV0}, m0
v_and_b32 v{fA}, 15, v0
v_lshlrev_b32 v{fA}, 9, v{fA}
v_and_b32 v{fM}, 48, v0
v_add_u32 v{fA}, v{fA}, v{fM}
s_lshl_b32 s{sSV1}, s{sW}, 7
s_add_u32 s{sSV2}, s{sWB}, {MISC}
""")
for i in range(4):
    E(f"v_subrev_u32 v{fV+i}, s{sSV1}, v{vVD+i}\nv_add_u32 v{fR+i}, s{sSV2}, v{vTR+i}")
E(f"v_mov_b32 v{fM}, 0xff800000\nv_mov_b32 v{fM+1}, 0xff800000\ns_mov_b32 s{sSV1}, 0")
def ktile(kt, cinit):
    for ks in range(8):
        E(f"buffer_load_dwordx4 {v(fK+4*ks,4)}, v{fA}, {srd(sKK)}, s{sSV1} offen offset:{ks*64}")
    E(f"s_add_u32 s{sSV1}, s{sSV1}, 8192\ns_waitcnt vmcnt(0)")
    for ks in range(8):
        for tg in range(2):
            d = v(fS + tg*8 + kt*4, 4)
            E(mfma(d, v(fK+4*ks, 4), a(qf(ks, tg), 4), (cinit(tg) if ks == 0 else d)))
    E("s_nop 15")
E("L_exact_p1:")
ktile(0, lambda tg: "0")
for tg in range(2):
    b = fS + tg*8
    E(f"v_max3_f32 v{fM+tg}, v{fM+tg}, v{b}, v{b+1}\nv_max3_f32 v{fM+tg}, v{fM+tg}, v{b+2}, v{b+3}")
E(f"s_cmp_lt_u32 s{sSV1}, 262144\ns_cbranch_scc1 L_exact_p1")
for tg in range(2):
    for t_ in allred(fM+tg, fM+2, "v_max_f32"): E(t_)
    for r in range(4): E(f"v_sub_f32 v{vC+4*tg+r}, 0, v{fM+tg}")
for r in range(128): E(f"v_mov_b32 v{vO+r}, 0")
E(f"v_mov_b32 v{vLS}, 0\nv_mov_b32 v{vLS+1}, 0\ns_mov_b32 s{sSV1}, 0\ns_add_u32 m0, s{sWB}, {MISC}\ns_nop 3")
E("L_exact_p2:")
E(f"s_mov_b32 s{sSV2}, s{sSV1}")
ktile(0, lambda tg: v(vC+4*tg, 4))
ktile(1, lambda tg: v(vC+4*tg, 4))
for r in range(16): E(f"v_exp_f32 v{fS+r}, v{fS+r}")
for r in range(16): E(f"v_add_f32 v{vLS + r//8}, v{vLS + r//8}, v{fS+r}")
for r in range(8): E(f"v_cvt_pk_bf16_f32 v{fP+r}, v{fS+2*r}, v{fS+2*r+1}")
for cb in range(4):
    for rb in range(4):
        E(f"buffer_load_dwordx4 v{fV+rb}, {srd(sVV)}, s{sSV2} offen offset:{rb*1024} lds")
    E(f"s_add_u32 s{sSV2}, s{sSV2}, 128\ns_waitcnt vmcnt(0)")
    for u in range(4):
        E(f"ds_read_b64_tr_b16 {v(fK+4*u,2)}, v{fR+u}\nds_read_b64_tr_b16 {v(fK+4*u+2,2)}, v{fR+u} offset:2048")
    E("s_waitcnt lgkmcnt(0)")
    for u in range(4):
        for tg in range(2):
            d = v(Oreg(cb*4+u, tg), 4)
            E(mfma(d, v(fK+4*u, 4), v(fP+4*tg, 4), d))
    E("s_nop 7")
E(f"s_cmp_lt_u32 s{sSV1}, 262144\ns_cbranch_scc1 L_exact_p2")
for tg in range(2):
    for t_ in allred(vLS+tg, fM+2, "v_add_f32"): E(t_)
    E(f"v_rcp_f32 v{vLS+2+2*tg}, v{vLS+tg}\ns_nop 0\nv_mov_b32 v{vLS+3+2*tg}, v{vLS+2+2*tg}")
E(f"s_mov_b32 m0, s{sSV0}\ns_nop 15\ns_branch L_exact_ret")
sub_ins, log2, stats2 = resolve(Q.ins)

hdr = open(os.path.join(os.path.dirname(os.path.abspath(__file__)), 'header.txt')).read()
txt = hdr + f"""; @launch grid=(256,1,1) block=(256,1,1) lds={LDS_BYTES}
.amdgcn_target "amdgcn-amd-amdhsa--gfx950"
.text
.globl {NAME}_kernel
.p2align 8
.type {NAME}_kernel,@function
{NAME}_kernel:
""" + render(main_ins) + render(sub_ins) + f"""L_pad:
    s_endpgm
.if (L_pad - L_pc) < {CODE_LINES*128}
.fill (({CODE_LINES*128} - (L_pad - L_pc)) / 4) + 16, 4, 0xbf810000
.endif
.section .rodata,"a"
.p2align 6
.amdhsa_kernel {NAME}_kernel
  .amdhsa_next_free_vgpr 512
  .amdhsa_next_free_sgpr 102
  .amdhsa_accum_offset 256
  .amdhsa_group_segment_fixed_size 0
  .amdhsa_kernarg_size 88
  .amdhsa_user_sgpr_count 2
  .amdhsa_user_sgpr_kernarg_segment_ptr 1
  .amdhsa_system_sgpr_workgroup_id_x 1
.end_amdhsa_kernel
"""
if OPT['STAMP']: txt += '; STAMPS ' + ' '.join(stamp_names) + '\n'
open(sys.argv[1], 'w').write(txt)
```

```python
import sys, os, math, struct
from asmlib import *

NAME = "recurrent_scan__sliding_block_cached__dense_activation_relu__prompt"
OPT = dict(D=8, NA=12, HX=2, BAR=2, STAMP=0, PST=0, DUMP='', SIGG=60, FORCEFB=0, LOG=0,
           SST='sc1', HLD='sc1', HST='sc1', GLD='sc1', NOSST=0, NOHLD=0, NOHST=0,
           PX='', PW1='nt', PWQ='nt', PKV='nt', PWO='', PW2='', PF=1, PPF='nt', WSOFF=0, HSTEP=9, XREV=0, NPRO=4, NOG=0, NOFLAG=0, W2G=11, W2S=8, F0=3, F1=5, L0=0, W2PRE=6, H2A=1, H2B=100, SA=264, PA=410, CA=60, LA=150, SC=40, PB=170, N2=15, G1N=10, XFIRST=12, XSEC=0, WQE=0, OEARLY=2, H2SPAN=60, PFG=170, WQP=2, FINE=0, RT=0, SIMPLE=0, SSP=0)
for a_ in sys.argv[2:]:
    k_, v_ = a_.split('=')
    OPT[k_] = v_.replace('+', ' ') if isinstance(OPT[k_], str) else int(v_)
D = OPT['D']; NA = OPT['NA']

RING_SLOTS = 10
SLOT = 16384
LDS_BYTES = 163840
WS_S = 0
WS_H = 0x1C00000
WS_F = 0x2300000
WS_DBG = 0x2400000
WS_SIZE = 0x8000000 if (OPT['DUMP'] or OPT['STAMP']) else 0x2400000
OOB = 0x7f000000
CSCALE = math.log2(math.e) / 16.0
def f2u(x): return struct.unpack('<I', struct.pack('<f', x))[0]
def hx(x): return f"0x{x & 0xffffffff:x}"

sX, sW1, sWQ, sKK, sVV, sWO, sW2, sWS, sOUT = 28, 32, 36, 40, 44, 48, 52, 56, 60
def srd(b): return f"s[{b}:{b+3}]"
sW, sHD, sT, sWB, sSO = 64, 65, 66, 67, 68
sT0, sT1, sT2, sT3 = 69, 70, 71, 3
sQT = 72
sHST, sHLD, sSST, sSG, sFLG, sFLP, sCNT, sSO2, sTL, sROT, sSTEP, sPC = 86, 87, 88, 89, 90, 91, 92, 93, 94, 95, 96, 97
sTC, sCOOB, sHPF, sW2I, sKVI, sCC = 19, 20, 21, 24, 25, 2
sW1T = 12
sM1, sM2, sM3, sMD = 4, 6, 8, 10
sSV0, sSV1, sSV2 = 12, 13, 14
sSTMP = 26
DBGP = "s[22:23]"
vL16, vHS, vT0, vT1, vT2, vT3, vT4 = 1, 2, 3, 4, 5, 6, 7
vTR = 8
vRA = 20
vPF = 26
vZ, vONE, vPOLL, vSTAMP = 28, 29, 30, 31
vWQ, vKD, vVD, vWOD, vW2D = 32, 36, 40, 32, 36
vXN = 44
vR = 156
vW1D = vR + 64
vXD = vR + 68
vO = 128
vS = 44
vP = 76
vC = 92
vLS = 100
vM = 106
vA4 = 44
vRC = 126
aF, aST, aQ, aH = 0, 48, 64, 128

def v(i, n=1): return f"v{i}" if n == 1 else f"v[{i}:{i+n-1}]"
def a(i, n=1): return f"a{i}" if n == 1 else f"a[{i}:{i+n-1}]"
def mfma(d, A, B, C): return f"v_mfma_f32_16x16x32_bf16 {d}, {A}, {B}, {C}"
def I(t, tag=None): return Ins(t, tag)
lg = lambda x: int(math.log2(x))

P = Prog()
E = P.emit

nstamp = [0]
stamp_names = []
def stamp_ins(name=''):
    if not OPT['STAMP']: return []
    if OPT['STAMP'] == 3 and name not in ('end', 'G4', 'st_done', 'chk0', 'chk1', 'chk2', 'sigA', 'sigB', 'g6_done', 'g_done', 'pre_c2', 'pre_c1', 'pre_c0'): return []
    if OPT['STAMP'] == 2 and name not in ('end', 'G4', 'P0'): return []
    n = nstamp[0]; nstamp[0] += 1; stamp_names.append(name)
    return [I(f"{'s_memrealtime' if OPT['RT'] else 's_memtime'} s[{sSTMP}:{sSTMP+1}]"), I("s_waitcnt lgkmcnt(0)"), I(f"v_writelane_b32 v{vSTAMP}, s{sSTMP}, {n}")]
def STAMP(name=''):
    P.ins += stamp_ins(name)
def PST(name):
    if OPT['PST']: STAMP(name)

frags = []
chunks = []
def add_chunk(name, lo, size, dma, private=False):
    chunks.append(dict(name=name, lo=lo, hi=lo+size, dma=dma, private=private, first=None, last=None)); return len(chunks)-1
def add_frag(kind, rs, rb, addr, mf, ch):
    frags.append(dict(kind=kind, rb=rb, rs=rs, addr=addr, mf=mf, chunk=ch))
    c = chunks[ch]
    if c['first'] is None: c['first'] = len(frags)-1
    c['last'] = len(frags)-1
def frag_reads(f):
    fr = frags[f]; A = aF + 4*(f % NA)
    def rd(op, dst, addr):
        win = addr >> 16
        return I(f"{op} {dst}, v{fr['rb'] + win*fr['rs']} offset:{addr & 0xffff}", tag=('f', f))
    if fr['kind'] == 'tr':
        return [rd("ds_read_b64_tr_b16", a(A, 2), fr['addr']), rd("ds_read_b64_tr_b16", a(A+2, 2), fr['addr'] + 2048)]
    return [rd("ds_read_b128", a(A, 4), fr['addr'])]
POL = {sW1: 'PW1', sWQ: 'PWQ', sKK: 'PKV', sVV: 'PKV', sWO: 'PWO', sW2: 'PW2'}
ring_pos = [7]
def ring_round(name, srd_b, vbase, so_text, private=False):
    slot = ring_pos[0] % RING_SLOTS; ring_pos[0] += 1
    lo = slot*SLOT
    tag = ('c', len(chunks))
    dma = [I(f"s_add_u32 m0, s{sWB}, {lo}")]
    if so_text.startswith('s') or so_text == '0': so = so_text
    elif so_text.startswith('+'):
        dma.append(I(f"s_add_u32 s{sSO}, {so_text[1:]}")); so = f"s{sSO}"
    else:
        dma.append(I(f"s_mov_b32 s{sSO}, {so_text}")); so = f"s{sSO}"
    for rb in range(4):
        dma.append(I(f"buffer_load_dwordx4 v{vbase+rb}, {srd(srd_b)}, {so} offen offset:{rb*1024} {OPT[POL[srd_b]]} lds", tag=tag))
    return add_chunk(name, lo, SLOT, dma, private)

phase = {}
def xn(ks, tg): return vXN + (ks*2 + tg)*4
def accp(pp, kq, tg, par): return vR + (pp % 2)*32 + ((kq*2 + tg)*2 + par)*4
for pp in range(6):
    phase[f'P{pp}'] = len(frags)
    for ks in range(14):
        qi = 14*pp + ks
        if qi % 4 == 0:
            r_ = qi // 4
            ch = ring_round(f"wq_{r_}", sWQ, vWQ, f"s{sQT + r_}") if r_ < 14 else ring_round(f"w1_{r_-14}", sW1, vW1D, f"s{sW1T + r_ - 14}")
        for u in range(4):
            mf = (lambda A, pp=pp, ks=ks, u=u: [mfma(v(accp(pp, u >> 1, tg, u & 1), 4), A, v(xn(ks, tg), 4), "0" if ks == 0 else v(accp(pp, u >> 1, tg, u & 1), 4)) for tg in range(2)])
            add_frag('tr', 4, vTR + u, chunks[ch]['lo'] + (qi % 4)*4096, mf, ch)
def qf(kq, tg): return aQ + (kq*2 + tg)*4
def Sreg(st, tg, kt): return vS + (st % 2)*16 + tg*8 + kt*4
def Preg(st, tg): return vP + (st % 2)*8 + tg*4
def Oreg(d, tg): return vO + (((d >> 1)*2 + tg)*2 + (d & 1))*4
def G2(st):
    phase[f'G2_{st}'] = len(frags)
    ch = ring_round(f"K_{st}", sKK, vKD, str(st*16384))
    order = [(kt, ks) for kt in range(2) for ks in range(8)]
    for kt, ks in order:
        def mf(A, kt=kt, ks=ks):
            r = []
            for tg in range(2):
                c = v(Sreg(st, tg, kt), 4)
                if ks == 0: c = "0" if st < 1 else v(vC + 4*tg, 4)
                r.append(mfma(v(Sreg(st, tg, kt), 4), A, a(qf(ks, tg), 4), c))
            return r
        add_frag('b128', 2, vRA + (ks & 1), chunks[ch]['lo'] + (ks >> 1)*4096 + kt*2048, mf, ch)
def G3(st):
    phase[f'G3_{st}'] = len(frags)
    ch = ring_round(f"V_{st}", sVV, vVD, str(st*16384))
    for d in range(16):
        mf = (lambda A, d=d: [mfma(v(Oreg(d, tg), 4), A, v(Preg(st, tg), 4), "0" if st == 0 else v(Oreg(d, tg), 4)) for tg in range(2)])
        add_frag('tr', 4, vTR + (d & 3), chunks[ch]['lo'] + (d >> 2)*4096, mf, ch)
G2(0)
for st in range(15):
    G2(st + 1); G3(st)
G3(15)
phase['G4'] = len(frags)
def acc4(p, u, tg): return vA4 + u*8 + tg*4
def Opk(ks, tg): return vO + (ks*2 + tg)*8
for p in range(7):
    chs = [ring_round(f"wo_{p}_{h_}", sWO, vWOD, f"s{sQT+p}" if h_ == 0 else f"+s{sQT+p}, {4*32*896}") for h_ in range(2)]
    for u in range(4):
        for ks in range(8):
            ch = chs[ks // 4]
            mf = (lambda A, p=p, ks=ks, u=u: [mfma(v(acc4(p, u, tg), 4), A, v(Opk(ks, tg), 4), "0" if ks == 0 else v(acc4(p, u, tg), 4)) for tg in range(2)])
            add_frag('tr', 4, vTR + u, chunks[ch]['lo'] + (ks % 4)*4096, mf, ch)
phase['G6'] = len(frags)
def hole(i): return vO + 8*i + 4
def hreg(kk, t4):
    i = kk*4 + t4
    if i < 32: return a(aH + 4*i, 4)
    if i < 48: return a(aQ + 4*(i-32), 4)
    return v(hole(i-48), 4)
def facc(u, t4):
    i = u*4 + t4
    return vA4 + 32 + 4*i if i < 8 else hole(i)
vTP = 108
for kk in range(14):
    ch = ring_round(f"w2_{kk}", sW2, vW2D, str(kk*32*896), private=True)
    for u in range(4):
        mf = (lambda A, kk=kk, u=u: [mfma(v(facc(u, t4), 4), A, hreg(kk, t4), "0" if kk == 0 else v(facc(u, t4), 4)) for t4 in range(4)])
        add_frag('tr', 4, vTP + u, chunks[ch]['lo'], mf, ch)
NF = len(frags)
phase['END'] = NF

MF = [fr['mf'](a(aF + 4*(f % NA), 4)) for f, fr in enumerate(frags)]
G0 = [0]
for f in range(NF): G0.append(G0[-1] + len(MF[f]))
NG = G0[-1]
def gap(f): return G0[max(0, min(f, NF))]
pre = [[] for _ in range(NG)]
rds = [[] for _ in range(NG)]
ext = [[] for _ in range(NG)]
blk = {}
for g in range(NF):
    if g + D < NF:
        r = frag_reads(g + D)
        n = len(MF[g])
        rds[G0[g]].append(r[0])
        if len(r) > 1: rds[G0[g] + n//2].append(r[1])
def cost(i):
    if i.cls in ('ds',): return 8
    if i.cls == 'vmem': return 24 if 'store' in i.op and 'x4' in i.op else 8
    if i.cls in ('trans', 'perm'): return 8
    if i.cls == 'label': return 0
    return 4
def gtime(items):
    t = 4
    for i in items:
        if i.cls in VALU_LIKE: t = max(t, 8)
        t += cost(i)
    return t
def fits(gp, i): return gtime(pre[gp] + rds[gp] + ext[gp] + [i]) <= 16
def place(seq, g0, g1=None):
    seq = [I(s) if isinstance(s, str) else s for s in seq]
    g1 = NG if g1 is None else min(g1, NG)
    gp = g0; n = len(seq)
    for k, ins in enumerate(seq):
        bound = max(min(g0 + ((k + 1) * (g1 - g0)) // n - 1, g1 - 1), gp)
        best = None
        for q in range(gp, bound + 1):
            if fits(q, ins): best = q; break
        if best is None:
            best = min(range(gp, bound + 1), key=lambda q: (gtime(pre[q] + rds[q] + ext[q] + [ins]), q))
        ext[best].append(ins)
        gp = best
    return gp
def spread(seq, g0, g1):
    n = len(seq); cur = g0
    for k, ins in enumerate(seq):
        lo = max(g0 + (k*(g1-g0))//n, cur); hi = max(g0 + ((k+1)*(g1-g0))//n, lo+1)
        cur = place([ins], lo, hi)
    return cur

shared = [c for c in range(len(chunks)) if not chunks[c]['private']]
bar_frags = [chunks[c]['first'] for k_, c in enumerate(shared) if (k_ - 1) % OPT['BAR'] == 0 or k_ == 0]
bar_frags += [phase['G6'], phase['G6'] + D + 1]
bar_frags = sorted(set(bar_frags))
bar_gap = []
first_need = None
for bi, f0 in enumerate(bar_frags):
    f1 = bar_frags[bi+1] if bi + 1 < len(bar_frags) else NF
    need = [('c', c) for c in shared if f0 <= chunks[c]['first'] < f1]
    if f0 == 0: first_need = need; continue
    gp = gap(f0 - D); bar_gap.append(gp)
    if need: ext[gp-1].append(mk_wait_vm(need))
    pre[gp].append(I("s_barrier"))
for c in range(len(chunks)):
    if chunks[c]['private']:
        ext[gap(chunks[c]['first'] - D) - 1].append(mk_wait_vm([('c', c)]))
for g in range(4, NF, 4):
    ext[gap(g) - 1].append(mk_wait_lg([('f', f) for f in range(g, min(g+4, NF))]))
def earliest_gap(c):
    e = -1
    C = chunks[c]
    for c2 in range(c):
        B = chunks[c2]
        if B['hi'] <= C['lo'] or C['hi'] <= B['lo']: continue
        if B['private'] and C['private']: e = max(e, gap(B['last'] + 1))
        else: e = max(e, [gp for gp in bar_gap if gp >= gap(B['last'] + 1)][0] + 1)
    return e
pro_dma = []
cur = 0
for c in range(len(chunks)):
    e = earliest_gap(c)
    if e < 0 and c < OPT['NPRO']:
        pro_dma.append(chunks[c]['dma']); continue
    if chunks[c]['name'].startswith('w2_') and int(chunks[c]['name'][3:]) >= OPT['W2PRE']: e = max(e, gap(phase['G6']) + OPT['W2G'])
    g0 = max(e, cur)
    span = 30
    if g0 > e + 8: span = 20
    if g0 >= gap(phase['G6'] - D): span = OPT['W2S']
    seq = list(chunks[c]['dma'])
    if chunks[c]['name'] == 'wo_0_0': seq = [I(f"v_accvgpr_read_b32 v{vWOD+i}, a{aST+i}") for i in range(4)] + seq; wo_first_gap = g0
    if chunks[c]['name'] == 'w2_0': seq = [I(f"v_accvgpr_read_b32 v{vW2D+i}, a{aST+4+i}") for i in range(4)] + seq
    cur = spread(seq, g0, g0 + span)
    need_gap = gap(chunks[c]['first'] - D)
    if OPT['LOG']: print(chunks[c]['name'], g0, cur, need_gap, 'lead', need_gap - cur, file=sys.stderr)
    assert cur < need_gap - 1, (chunks[c]['name'], cur)

seq = []
for p in range(7):
    seq += [f"s_add_u32 s{sT2}, s{sROT}, {p}", f"s_sub_u32 s{sT3}, s{sT2}, 7", f"s_min_u32 s{sT2}, s{sT2}, s{sT3}",
            f"s_lshl_b32 s{sQT+p}, s{sT2}, 7", f"s_lshl_b32 s{sT2}, s{sT2}, 16", f"s_add_u32 s{sQT+7+p}, s{sSST}, s{sT2}",
            f"s_add_u32 s{sSST}, s{sSST}, s{sSTEP}"]
spread(seq, gap(phase['G3_4']), gap(phase['G3_8']))
assert gap(phase['G3_8']) < wo_first_gap
assert OPT['BAR'] == 2
place([f"v_add_u32 v{vTP+i}, s{sWB}, v{vTR+i}" for i in range(12)], gap(phase['G4'] + 8), gap(phase['G4'] + 40))

def hconv(pp):
    s = []
    for kq in range(2):
        for tg in range(2):
            b = accp(pp, kq, tg, 0)
            for r in range(8): s.append(f"v_max_f32 v{b+r}, 0, v{b+r}")
            for r in range(4): s.append(f"v_cvt_pk_bf16_f32 v{b+r}, v{b+2*r}, v{b+2*r+1}")
            if not OPT['NOHST']:
                s.append(I(f"buffer_store_dwordx4 {v(b,4)}, v{vHS}, {srd(sWS)}, s{sHST} offen offset:{kq*2048 + tg*1024} {OPT['HST']}", tag='hst'))
    if pp == 4: s.append(f"s_add_u32 s{sHST}, s{sHST}, 4096")
    return s
place(hconv(4), gap(phase['P5']) + 4, gap(phase['G2_0']) - 4)
def qconv(pp):
    s = []
    for kq in range(2):
        for tg in range(2):
            b = accp(pp, kq, tg, 0)
            s += [f"v_cvt_pk_bf16_f32 v{b+r}, v{b+2*r}, v{b+2*r+1}" for r in range(4)]
            s += [f"v_permlane32_swap_b32 v{b}, v{b+2}", f"v_permlane32_swap_b32 v{b+1}, v{b+3}",
                  f"v_permlane16_swap_b32 v{b}, v{b+2}", f"v_permlane16_swap_b32 v{b+1}, v{b+3}"]
            s += [f"v_accvgpr_write_b32 a{qf(2*pp+kq, tg)+r}, v{b+r}" for r in range(4)]
    return s
for pp in range(4):
    g0 = gap(phase[f'P{pp+1}'])
    place(qconv(pp), g0 + 4, g0 + 2*56 - 4)

def allred(r, t, op):
    return [f"v_mov_b32 v{t}, v{r}", f"v_permlane32_swap_b32 v{r}, v{t}", f"{op} v{r}, v{r}, v{t}",
            f"v_mov_b32 v{t}, v{r}", f"v_permlane16_swap_b32 v{r}, v{t}", f"{op} v{r}, v{r}, v{t}"]
def interleave(*seqs):
    out = []
    for k in range(max(len(s) for s in seqs)):
        for s in seqs:
            if k < len(s): out.append(s[k])
    return out
def svals(st): return [Sreg(st, tg, kt) + r for tg in range(2) for kt in range(2) for r in range(4)]
g0 = gap(phase['G2_0'])
seqs = []
for tg in range(2):
    b = Sreg(0, tg, 0); m = vM + 2*tg; t = m + 1
    s = [f"v_max3_f32 v{m}, v{b}, v{b+1}, v{b+2}", f"v_max_f32 v{m}, v{m}, v{b+3}"] + allred(m, t, "v_max_f32")
    s += [f"v_sub_f32 v{vC+4*tg+r}, 0, v{m}" for r in range(4)]
    seqs.append(s)
seq = interleave(*seqs) + [f"v_mov_b32 v{vLS}, 0", f"v_mov_b32 v{vLS+1}, 0"]
gm = place(seq, g0 + 19, g0 + 31)
def sm_seq(st, sub):
    s = []
    vals = svals(st)
    for k_, r in enumerate(vals):
        tg = k_ // 8
        if sub: s.append(f"v_add_f32 v{r}, v{r}, v{vC+4*tg}")
        s.append(f"v_exp_f32 v{r}, v{r}")
        if k_ % 2 == 1 and k_ >= 3:
            kk = k_ - 3
            s.append(f"v_cvt_pk_bf16_f32 v{Preg(st, kk//8) + (kk % 8)//2}, v{vals[kk]}, v{vals[kk+1]}")
    s.append(f"v_cvt_pk_bf16_f32 v{Preg(st, 1) + 3}, v{vals[14]}, v{vals[15]}")
    return s
def add_seq(st):
    vals = svals(st)
    return interleave([f"v_add_f32 v{vLS}, v{vLS}, v{r}" for r in vals[:8]], [f"v_add_f32 v{vLS+1}, v{vLS+1}, v{r}" for r in vals[8:]])
for st in range(16):
    g3 = gap(phase[f'G3_{st}'])
    if st == 0:
        ge = place(sm_seq(st, True), gap(phase['G2_1']) + 3, g3 - 1)
    elif st < 15:
        gs = gap(phase[f'G2_{st+1}'] - D)
        ge = place(sm_seq(st, False), gs, g3 - 2)
    else:
        ge = place(sm_seq(st, False), gap(phase['G3_14']) + 4, g3 - 2)
    lim = gap(phase[f'G2_{st+2}']) - 2 if st + 2 < 16 else g3 + 14
    ga = place(add_seq(st), ge, lim)
seqs = []
for tg in range(2):
    l = vLS + tg; t = vM + tg
    seqs.append(allred(l, t, "v_add_f32") + [f"v_rcp_f32 v{vRC+tg}, v{l}"])
seq = interleave(*seqs) + [f"v_add_f32 v{vM}, v{vLS}, v{vLS+1}", f"s_mov_b32 s{sT0}, {hx(f2u(2.0**24 if not OPT['FORCEFB'] else 0.5))}", f"v_cmp_ngt_f32 vcc, s{sT0}, v{vM}"]
place(seq, ga, gap(phase['G4']) - 1)

hc = hconv(5)
place(hc[:39], gap(phase['G2_0']) + 3, gap(phase['G2_0']) + 19)
gend = place(hc[39:], gap(phase['G3_0']), gap(phase['G3_0']) + 16)
assert accp(5, 1, 1, 0) >= Oreg(10, 0)
hb = [gp for gp in bar_gap if gp > gend + 150][0]
ext[hb-1].append(mk_wait_vm(['hst']))
sig = [I(f"s_cmp_lg_u32 s{sW}, 0"), I("s_cbranch_scc1 L_nosig"), I(f"s_lshl_b32 s{sT0}, s{sT}, 4"), I(f"v_mov_b32 v{vPOLL}, s{sT0}"),
       I("s_mov_b64 exec, 1"), I(f"global_atomic_add v{vPOLL}, v{vONE}, {DBGP} sc1"), I("s_mov_b64 exec, -1"), I("L_nosig:")]
sig[5].cls = 'misc'
ext[hb+1] += sig

def dump(regs_list):
    r = [I("s_nop 15"), I(f"s_lshl_b32 s{sT0}, s{sT}, 4"), I(f"s_add_u32 s{sT0}, s{sT0}, s{sHD}"),
         I(f"s_lshl_b32 s{sT0}, s{sT0}, 2"), I(f"s_add_u32 s{sT0}, s{sT0}, s{sW}"),
         I(f"s_mul_i32 s{sT0}, s{sT0}, {32*1024}"), I(f"s_add_u32 s{sT0}, s{sT0}, {hx(WS_DBG)}")]
    for reg in regs_list:
        r.append(I(f"buffer_store_dwordx4 {reg}, v{vL16}, {srd(sWS)}, s{sT0} offen"))
        r.append(I(f"s_add_u32 s{sT0}, s{sT0}, 1024"))
    r.append(I("s_nop 3"))
    return r
def ocvt(ks): return [f"v_cvt_pk_bf16_f32 v{Opk(ks, tg)+r}, v{Opk(ks, tg)+2*r}, v{Opk(ks, tg)+2*r+1}" for tg in range(2) for r in range(4)]
NEARLY = OPT['OEARLY']
g15 = gap(phase['G3_15'])
for ks in range(NEARLY): place(ocvt(ks), g15 + 4*ks + 8, gap(phase['G4']) - 1)
b = stamp_ins('attn_done') + [I("s_cbranch_vccnz L_exact")]
for ks in range(NEARLY, 8): b += [I(t_) for t_ in ocvt(ks)]
b.append(I("L_exact_ret:"))
if OPT['DUMP'] == 'o': b += dump([v(Opk(ks, tg), 4) for ks in range(8) for tg in range(2)])
if OPT['DUMP'] == 'q': b += dump([a(qf(ks, tg), 4) for ks in range(8) for tg in range(2)])
b += stamp_ins('G4')
blk[phase['G4']] = b

def sconv(p, u):
    b = acc4(p, u, 0)
    s = [f"v_mul_f32 v{b+r}, v{vRC + r//4}, v{b+r}" for r in range(8)]
    s += [f"v_cvt_pk_bf16_f32 v{b+r}, v{b+2*r}, v{b+2*r+1}" for r in range(4)]
    if u: s.append(f"s_add_u32 s{sQT+7+p}, s{sQT+7+p}, 16384")
    if not OPT['NOSST']: s.append(I(f"buffer_store_dwordx4 {v(b,4)}, v{vL16}, {srd(sWS)}, s{sQT+7+p} offen {OPT['SST']}", tag=('sst', p)))
    return s
g4 = gap(phase['G4'])
for p in range(7):
    for u in range(4):
        g0 = g4 + 64*p + 16*(u+1)
        gl = place(sconv(p, u), g0 + 3, g0 + (19 if (p, u) != (6, 3) else 10))
last_store_gap = gl
hs = OPT['HSTEP']
gp0 = gap(phase[f'G3_{hs-2}'])
place([f"s_lshl_b32 s{sT0}, s{sTC}, 4", f"v_mov_b32 v{vPOLL}, s{sT0}", I(f"global_load_dword v{vPOLL}, v{vPOLL}, {DBGP} sc1", tag='pollh'),
       f"v_add_u32 v{vHS}, s{sCOOB}, v{vL16}"], gp0, gp0 + 24)
gp1 = gap(phase[f'G3_{hs}'])
ext[gp1] += [mk_wait_vm(['pollh']), I(f"v_cmp_gt_u32 vcc, 16, v{vPOLL}"), I("s_cbranch_vccnz L_spinh"), I("L_spinh_ret:")]
def hloads(k0, k1):
    s = []
    for kk in range(k0, k1, 2):
        for rl in range(2):
            s.append(f"s_add_u32 s{sT0}, s{sHLD}, {rl*56*2048 + kk*2048}")
            for k2 in range(2):
                for tg in range(2):
                    s.append(I(f"buffer_load_dwordx4 {hreg(kk+k2, rl*2+tg)}, v{vHS}, {srd(sWS)}, s{sT0} offen offset:{k2*2048 + tg*1024} {OPT['HLD']}", tag='hld'))
    return s
if not OPT['NOHLD']:
    spread(hloads(0, 8), gap(phase[f'G3_{hs+3}']), gap(phase['G3_15']))
    spread(hloads(8, 14), g4 + OPT['H2A'], g4 + OPT['H2B'])
g6 = gap(phase['G6'])
vFV = 120
def greg(rl, sl):
    i = sl*2 + rl
    if i < 16: return v(Opk(0, 0) + 8*i, 4)
    return a(aH + (i - 16)*4, 4)
def gloads(s0, s1, va):
    s = []
    for sq in range(s0, s1, 2):
        for rl in range(2):
            s.append(I(f"s_add_u32 s{sT1}, s{sSG}, {rl*28*16384 + sq*1024}"))
            for sl in range(sq, sq+2):
                if not OPT['NOG']: s.append(I(f"buffer_load_dwordx4 {greg(rl, sl)}, v{va}, {srd(sWS)}, s{sT1} offen offset:{(sl-sq)*1024} {OPT['GLD']}", tag=('g', rl, sl)))
    return s
F0 = OPT['F0']
sPL = 32
sMISS = 15
place([f"v_mov_b32 v{vFV}, 1", f"v_mov_b32 v{vFV+1}, 3", f"v_and_b32 v{vFV+3}, 31, v0"], g4 + 100, g4 + 200)
def signal(k, n): return [mk_wait_vm([('sst', p) for p in range(n)]), I(f"buffer_store_byte v{vFV+k}, v{vZ}, {srd(sWS)}, s{sFLG} offen sc1", tag='flag')]
spoll = I(f"s_buffer_load_dwordx8 s[{sPL}:{sPL+7}], {srd(sWS)}, s{sFLP} glc"); spoll.cls = 'misc'
VPOLL = f"buffer_load_ubyte v{vPOLL}, v{vFV+3}, {srd(sWS)}, s{sFLP} offen sc1"
ext[g4 + OPT['SA']] += signal(0, F0) + stamp_ins('sigA')
ext[g4 + OPT['PA']] += [spoll]
sg = g6 + OPT['SC']
ext[sg] += signal(1, 7) + stamp_ins('st_done') + [I(f"s_cmp_ge_u32 s{sPC}, 14"), I("s_cbranch_scc1 " + ("L_fin" if OPT['STAMP'] == 3 else "L_end"))]
assert sg > bar_gap[-1] and sg > last_store_gap
ext[g6 + OPT['CA']] += stamp_ins('pre_c0') + [I(t_) for t_ in (
    "s_waitcnt lgkmcnt(0)", f"s_and_b64 s[{sPL}:{sPL+1}], s[{sPL}:{sPL+1}], s[{sPL+2}:{sPL+3}]", f"s_and_b64 s[{sPL+4}:{sPL+5}], s[{sPL+4}:{sPL+5}], s[{sPL+6}:{sPL+7}]",
    f"s_and_b64 s[{sPL}:{sPL+1}], s[{sPL}:{sPL+1}], s[{sPL+4}:{sPL+5}]", f"s_and_b32 s{sPL}, s{sPL}, s{sPL+1}",
    f"s_and_b32 s{sPL}, s{sPL}, 0x01010101", f"s_cmp_eq_u32 s{sPL}, 0x01010101", f"s_cselect_b32 s{sMISS}, 0, {hx(OOB)}",
    f"v_add_u32 v{vFV+2}, s{sMISS}, v{vHS}")] + stamp_ins('chk0')
spread(gloads(0, 2*F0, vFV+2), g6 + OPT['CA'] + 1, g6 + OPT['LA'])
ext[g6 + OPT['PB']] += [I(VPOLL, tag='poll')]

vXF = 68
vAD = 125
seq = [f"v_accvgpr_read_b32 v{vAD}, a{aST+8}"]
for t4 in range(4):
    if t4: seq.append(f"s_mov_b32 s{sSV0 + t4 - 1}, {t4*14336}")
    seq.append(I(f"buffer_load_dwordx2 {v(vXF + t4*2, 2)}, v{vAD}, {srd(sX)}, {'0' if t4 == 0 else 's%d' % (sSV0+t4-1)} offen", tag='xf'))
spread(seq, g6 + 14, g6 + 40)
HX = OPT['HX']; NHG = 16 // HX; NT = 32 // HX
npf = [0]
def pf_addr(nlines, lines_per_row, pitch, k, dst, idx_sgpr, nshare):
    per = nlines // nshare
    s = [f"s_lshl_b32 s{sSO2}, s{sW}, 6", f"s_add_u32 s{sSO2}, s{sSO2}, {k*256}", f"v_add_u32 v{dst}, s{sSO2}, v0",
         f"v_min_u32 v{dst}, {per-1}, v{dst}", f"s_mul_i32 s{sSO2}, s{idx_sgpr}, {per}", f"v_add_u32 v{dst}, s{sSO2}, v{dst}"]
    if lines_per_row is None:
        s += [f"v_lshlrev_b32 v{dst}, 7, v{dst}"]
    else:
        sh = lg(lines_per_row)
        s += [f"v_and_b32 v{vPF}, {lines_per_row-1}, v{dst}", f"v_lshrrev_b32 v{dst}, {sh}, v{dst}",
              f"v_mul_u32_u24 v{dst}, {pitch}, v{dst}", f"v_lshl_add_u32 v{dst}, v{vPF}, 7, v{dst}"]
    return s
def pf_load(srd_b, dst):
    npf[0] += 1
    return I(f"buffer_load_dword a{aST + 10 + npf[0] % 6}, v{dst}, {srd(srd_b)}, 0 offen {OPT['PPF']}", tag='pf')
def pf_seq(srd_b, nlines, lines_per_row, pitch, idx, nshare):
    s = []
    for k in range((nlines // nshare + 255) // 256):
        s += pf_addr(nlines, lines_per_row, pitch, k, vPF+1, idx, nshare) + [pf_load(srd_b, vPF+1)]
    return s
vLQ = 26
def pf_pieces(srd_b, per, unit, idx, extra_base=None, pol=''):
    setup = [f"s_mul_i32 s{sSO2}, s{idx}, {per}", f"v_add_u32 v{vPF+1}, s{sSO2}, v{vLQ}", f"v_mul_u32_u24 v{vPF+1}, {unit}, v{vPF+1}"]
    if extra_base is not None: setup.append(f"v_add_u32 v{vPF+1}, s{extra_base}, v{vPF+1}")
    pcs = []
    for k in range((per + 63)//64):
        npf[0] += 1
        pcs.append([f"s_mov_b32 s{sSO2}, {k*64*unit}", I(f"buffer_load_dword a{aST + 9 + npf[0] % 7}, v{vPF+1}, {srd(srd_b)}, s{sSO2} offen {pol}", tag='pf')])
    return setup, pcs
def pf_run(streams, g0, g1):
    items = []
    for st_ in streams:
        su, pcs = st_
        for k, p_ in enumerate(pcs): items.append((su if k == 0 else []) + p_)
    n = len(items)
    for k, it_ in enumerate(items):
        lo = g0 + (k*(g1-g0))//n
        place(it_, lo, lo + 24)
if OPT['PF']:
    place([f"v_lshrrev_b32 v{vLQ}, 2, v0", f"s_lshl_b32 s{sSO2}, s{sW}, 4", f"v_add_u32 v{vLQ}, s{sSO2}, v{vLQ}"], 100, 130)
    pf_run([pf_pieces(sKK, 2048//(2*NT), 128, sKVI, pol=OPT['PPF']), pf_pieces(sVV, 2048//(2*NT), 128, sKVI, pol=OPT['PPF'])], OPT['PFG'], gap(phase['P4']))
    pf_run([pf_pieces(sWO, 1792//NT, 128, sTL), pf_pieces(sW2, 448, 896, sW2I)], gap(phase['G3_2']), gp1)
    pf_run([pf_pieces(sWS, 256, 128, sCC, sHPF, 'sc1')], gp1 + 2, gap(phase[f'G3_{hs+3}']))

if OPT['FINE'] == 1:
    for p in range(1, 7): phase[f'G4p{p}'] = phase['G4'] + 32*p; blk[phase[f'G4p{p}']] = stamp_ins(f'G4p{p}')
    for kk in range(2, 14, 2): phase[f'G6k{kk}'] = phase['G6'] + 4*kk; blk[phase[f'G6k{kk}']] = stamp_ins(f'G6k{kk}')
if OPT['FINE'] == 2:
    for f_ in range(16, 336, 16):
        if f_ not in (phase['P2'],): blk[f_] = stamp_ins(f'f{f_}')
if OPT['STAMP']:
    for nm in ('P0', 'P2', 'P4', 'G2_0', 'G2_4', 'G2_8', 'G2_12', 'G6'):
        blk.setdefault(phase[nm], [])
        blk[phase[nm]] = stamp_ins(nm) + blk[phase[nm]]

E(f"""
s_cmp_ge_u32 s2, 256
s_cbranch_scc1 L_end
s_load_dwordx16 s[4:19], s[0:1], 0
s_load_dwordx4 s[20:23], s[0:1], 64
s_load_dwordx2 s[24:25], s[0:1], 80
""")
if OPT['STAMP']: E("s_memtime s[98:99]\ns_memrealtime s[100:101]")
E(f"""
v_lshrrev_b32 v{vT0}, 6, v0
v_and_b32 v0, 63, v0
s_and_b32 s{sT0}, s2, 7
v_readfirstlane_b32 s{sW}, v{vT0}
s_lshr_b32 s{sT1}, s2, 3
s_and_b32 s{sT2}, s{sT0}, {NHG-1}
s_lshl_b32 s{sT2}, s{sT2}, {lg(HX)}
s_and_b32 s{sHD}, s{sT1}, {HX-1}
s_add_u32 s{sHD}, s{sHD}, s{sT2}
s_lshr_b32 s{sT2}, s{sT0}, {lg(NHG)}
s_lshl_b32 s{sT2}, s{sT2}, {lg(NT)}
s_lshr_b32 s{sTL}, s{sT1}, {lg(HX)}
s_add_u32 s{sT}, s{sTL}, s{sT2}
s_lshl_b32 s{sWB}, s{sW}, 12
""")
CODE_LINES = 512
E(f"s_lshr_b32 s{sCNT}, s2, 3")
for t_ in pf_addr(CODE_LINES, None, 0, 0, vR+80, sCNT, 32): E(t_)
E(f"""
s_getpc_b64 s[26:27]
L_pc:
global_load_dword v{vR+90}, v{vR+80}, s[26:27]
""")
E(f"""
v_lshrrev_b32 v{vT3}, 3, v0
v_and_b32 v{vT4}, 7, v0
v_lshrrev_b32 v{vT1}, 1, v{vT3}
v_xor_b32 v{vT1}, v{vT1}, v{vT4}
v_lshlrev_b32 v{vT1}, 4, v{vT1}
v_xor_b32 v{vT2}, 64, v{vT1}
s_lshl_b32 s{sT1}, s{sT}, 2
s_add_u32 s{sT1}, s{sT1}, s{sW}
s_mul_i32 s{sT1}, s{sT1}, {32*896}
v_mul_u32_u24 v{vT0}, 896, v{vT3}
v_add_u32 v{vT0}, s{sT1}, v{vT0}
v_add_u32 v{vXD}, v{vT0}, v{vT1}
v_add_u32 v{vXD+1}, v{vT0}, v{vT2}
v_add_u32 v{vXD+2}, {2*6144}, v{vXD}
v_add_u32 v{vXD+3}, {3*6144}, v{vXD+1}
v_add_u32 v{vXD+1}, 6144, v{vXD+1}
s_mov_b32 m0, s{sWB}
s_and_b32 s{sROT}, s{sHD}, {HX-1}
s_mul_i32 s{sROT}, s{sROT}, {7 if OPT['XREV'] else 0}
s_lshr_b32 s{sROT}, s{sROT}, {lg(HX)}
s_lshl_b32 s{sSTEP}, s{sROT}, 7
s_mov_b32 s{sX+2}, {2048*896}
s_mov_b32 s{sX+3}, 0x00020000
s_waitcnt lgkmcnt(0)
s_mov_b32 s{sX}, s4
s_mov_b32 s{sX+1}, s5
""")
PST('karg')
def mk_srd(b, plo, off_sgpr, size):
    if off_sgpr is None:
        E(f"s_mov_b32 s{b}, s{plo}\ns_mov_b32 s{b+1}, s{plo+1}")
    else:
        E(f"s_add_u32 s{b}, s{plo}, s{off_sgpr}\ns_addc_u32 s{b+1}, s{plo+1}, 0")
    E(f"s_mov_b32 s{b+2}, {size}\ns_mov_b32 s{b+3}, 0x00020000")
xdma = []
for tg in range(2):
    for q in range(7):
        if q or tg:
            xdma += [I(f"s_add_u32 m0, s{sWB}, {q*SLOT}"), I(f"s_add_u32 s{sSTEP}, s{sSTEP}, 128"), I(f"s_sub_u32 s{sSST}, s{sSTEP}, 896"), I(f"s_min_u32 s{sSTEP}, s{sSTEP}, s{sSST}")]
        for rb in (2*tg, 2*tg+1):
            xdma.append(I(f"buffer_load_dwordx4 v{vXD+rb}, {srd(sX)}, s{sSTEP} offen offset:{rb*1024} {OPT['PX']} lds", tag=('x', tg, q)))
def xissue(n):
    while n > 0 and xdma:
        i_ = xdma.pop(0); P.ins.append(i_)
        if i_.cls == 'vmem': n -= 1
xissue(OPT['XFIRST'])
E(f"s_lshl_b32 s{sT0}, s{sHD}, 9\ns_sub_u32 s{sT2}, {448*8192}, s{sT0}")
mk_srd(sWQ, 10, sT0, f"s{sT2}")
wqpf = [I(t_) if isinstance(t_, str) else t_ for t_ in pf_seq(sWQ, 448*OPT['WQP'], OPT['WQP'], 8192, sTL, NT)] if OPT['PF'] else []
if OPT['WQE']: P.ins += wqpf; wqpf = []
else: P.ins += wqpf[:-1]; wqpf = wqpf[-1:]
xissue(OPT['XSEC'])
PST('x_first')
mk_srd(sOUT, 20, None, 2048*896)
E(f"""
s_lshl_b32 s{sT0}, s{sW}, 7
v_lshlrev_b32 v{vKD}, 9, v{vT3}
v_add_u32 v{vVD}, s{sT0}, v{vKD}
v_add_u32 v{vKD}, v{vVD}, v{vT1}
v_add_u32 v{vKD+1}, v{vVD}, v{vT2}
v_add_u32 v{vKD+2}, {2*3072}, v{vKD}
v_add_u32 v{vKD+3}, {3*3072}, v{vKD+1}
v_add_u32 v{vKD+1}, 3072, v{vKD+1}
v_and_b32 v{vT0}, 6, v{vT3}
v_xor_b32 v{vT0}, v{vT0}, v{vT4}
v_lshlrev_b32 v{vT0}, 4, v{vT0}
v_add_u32 v{vVD}, v{vVD}, v{vT0}
""")
for rb in range(1, 4): E(f"v_add_u32 v{vVD+rb}, {3072*rb}, v{vVD}")
E(f"""
v_and_b32 v{vT1}, 4, v{vT3}
v_add_u32 v{vT1}, v{vT1}, v{vT3}
v_lshl_add_u32 v{vWQ}, v{vT1}, 13, v{vT0}
v_mul_u32_u24 v{vT1}, 3584, v{vT1}
v_add_u32 v{vW1D}, v{vT1}, v{vT0}
""")
for rb in range(1, 4):
    rr = 16*(rb & 1) + 4*(rb >> 1)
    E(f"v_add_u32 v{vW1D+rb}, {rr*3584 - 1024*rb}, v{vW1D}\nv_add_u32 v{vWQ+rb}, {rr*8192 - 1024*rb}, v{vWQ}")
E(f"""
s_lshl_b32 s{sT1}, s{sHD}, 8
s_sub_u32 s{sT2}, {448*3584}, s{sT1}
s_cmp_lt_u32 s{sHD}, 14
s_cselect_b32 s{sT2}, s{sT2}, 0
s_cselect_b32 s{sT1}, s{sT1}, 0
""")
mk_srd(sW1, 16, sT1, f"s{sT2}")
E(f"s_lshr_b32 s{sT0}, s{sHD}, 1\ns_lshl_b32 s{sT0}, s{sT0}, 20\ns_add_u32 s{sT0}, s{sT0}, {1536*512}")
mk_srd(sKK, 6, sT0, 262144)
mk_srd(sVV, 8, sT0, 262144)
E(f"s_mul_i32 s{sT0}, s{sHD}, {256*896}")
mk_srd(sWO, 12, sT0, 256*896)
E(f"""
s_lshl_b32 s{sCNT}, s{sROT}, 1
s_lshr_b32 s{sPC}, s2, 3
s_and_b32 s{sPC}, s{sPC}, 15
s_cmp_ge_u32 s{sPC}, 7
s_cselect_b32 s{sT3}, 1, 0
s_mul_i32 s{sT1}, s{sT3}, 7
s_sub_u32 s{sT1}, s{sPC}, s{sT1}
s_lshl_b32 s{sT0}, s{sT1}, 7
s_sub_u32 s{sT2}, {1792*896}, s{sT0}
s_cmp_lt_u32 s{sPC}, 14
s_cselect_b32 s{sT2}, s{sT2}, 0
s_cselect_b32 s{sT0}, s{sT0}, 0
""")
mk_srd(sW2, 18, sT0, f"s{sT2}")
if OPT['WSOFF']:
    E(f"s_mov_b32 s{sT0}, {hx(OPT['WSOFF'] << 20)}")
    mk_srd(sWS, 24, sT0, WS_SIZE)
else:
    mk_srd(sWS, 24, None, WS_SIZE)
def qtab(rho):
    E(f"""
s_add_u32 s{sT0}, s{sW}, {4*rho}
s_mul_i32 s{sT2}, s{sT0}, 4682
s_lshr_b32 s{sT2}, s{sT2}, 16
s_mul_i32 s{sSO}, s{sT2}, 14
s_sub_u32 s{sT0}, s{sT0}, s{sSO}
s_add_u32 s{sT0}, s{sT0}, s{sCNT}
s_sub_u32 s{sSO}, s{sT0}, 14
s_min_u32 s{sT0}, s{sT0}, s{sSO}
s_lshl_b32 s{sT2}, s{sT2}, 7
""")
    if rho < 7: E(f"s_mul_i32 s{sSO}, s{sT0}, {32*3584}\ns_add_u32 s{sW1T+rho}, s{sSO}, s{sT2}")
    E(f"s_lshl_b32 s{sT0}, s{sT0}, 18\ns_add_u32 s{sQT+rho}, s{sT0}, s{sT2}")
for rho in range(14): qtab(rho)
E(f"""
v_mul_u32_u24 v{vT1}, 896, v{vT3}
v_add_u32 v{vT1}, v{vT1}, v{vT0}
s_mul_i32 s{sT0}, s{sW}, {32*896}
s_mul_i32 s{sT2}, s{sW}, {448*896}
""")
for rb in range(4):
    if rb: E(f"v_add_u32 v{vT1}, 6144, v{vT1}")
    E(f"v_add_u32 v{vT2}, s{sT0}, v{vT1}\nv_accvgpr_write_b32 a{aST+rb}, v{vT2}\nv_add_u32 v{vT2}, s{sT2}, v{vT1}\nv_accvgpr_write_b32 a{aST+4+rb}, v{vT2}")
E(f"""
v_lshlrev_b32 v{vL16}, 4, v0
v_lshrrev_b32 v{vT0}, 2, v0
v_lshlrev_b32 v{vT1}, 7, v{vT0}
v_and_b32 v{vT2}, 3, v0
v_lshl_add_u32 v{vT1}, v{vT2}, 3, v{vT1}
v_bfe_u32 v{vT3}, v0, 3, 2
""")
for u in range(4):
    E(f"""
v_xor_b32 v{vT4}, {u}, v{vT3}
v_lshl_add_u32 v{vTR+u}, v{vT4}, 5, v{vT1}
v_add_u32 v{vTR+4+u}, 0x10000, v{vTR+u}
v_add_u32 v{vTR+8+u}, 0x20000, v{vTR+u}
""")
E(f"""
v_and_b32 v{vT0}, 15, v0
v_lshrrev_b32 v{vT1}, 1, v{vT0}
v_lshrrev_b32 v{vT2}, 4, v0
v_xor_b32 v{vT1}, v{vT1}, v{vT2}
v_lshlrev_b32 v{vT4}, 7, v{vT0}
v_lshl_add_u32 v{vRA}, v{vT1}, 4, v{vT4}
v_xor_b32 v{vRA+1}, 64, v{vRA}
v_add_u32 v{vRA+2}, 0x10000, v{vRA}
v_add_u32 v{vRA+3}, 0x10000, v{vRA+1}
v_add_u32 v{vRA+4}, 0x20000, v{vRA}
v_add_u32 v{vRA+5}, 0x20000, v{vRA+1}
""")
vXR = vR + 72
for i in range(4): E(f"v_add_u32 v{vXR+i}, s{sWB}, v{vRA+i}")
E(f"""
s_and_b32 s{sTC}, s2, 7
s_lshl_b32 s{sTC}, s{sTC}, 1
s_lshr_b32 s{sT0}, s2, 7
s_add_u32 s{sTC}, s{sTC}, s{sT0}
s_lshl_b32 s{sW2I}, s{sT0}, 1
s_add_u32 s{sW2I}, s{sW2I}, s{sT3}
s_lshl_b32 s{sT2}, s{sTC}, 1
s_add_u32 s{sT2}, s{sT2}, s{sT3}
s_lshl_b32 s{sT0}, s{sT2}, 6
v_add_u32 v{vT0}, s{sT0}, v{vT0}
v_mul_u32_u24 v{vT0}, 896, v{vT0}
v_lshl_add_u32 v{vT0}, v{vT2}, 3, v{vT0}
s_lshl_b32 s{sT0}, s{sT1}, 2
s_add_u32 s{sT0}, s{sT0}, s{sW}
s_lshl_b32 s{sSG}, s{sT0}, 5
v_add_u32 v{vT0}, s{sSG}, v{vT0}
v_accvgpr_write_b32 a{aST+8}, v{vT0}
s_lshl_b32 s{sT2}, s{sT2}, 1
s_mul_i32 s{sSG}, s{sT2}, 28
s_add_u32 s{sSG}, s{sSG}, s{sT0}
s_lshl_b32 s{sSG}, s{sSG}, 14
s_lshl_b32 s{sFLP}, s{sT2}, 7
s_add_u32 s{sFLP}, s{sFLP}, {hx(WS_F)}
s_mul_i32 s{sHLD}, s{sT2}, {56*2048}
s_add_u32 s{sHLD}, s{sHLD}, {hx(WS_H)}
s_cmp_lt_u32 s{sPC}, 14
s_cselect_b32 s{sCOOB}, 0, {hx(OOB)}
s_add_u32 s{sHPF}, s{sHLD}, s{sCOOB}
s_mul_i32 s{sT0}, s{sW}, {14*2048}
s_add_u32 s{sHLD}, s{sHLD}, s{sT0}
s_mov_b32 s0, s2
s_mov_b32 s{sCC}, s{sT1}
s_lshl_b32 s{sKVI}, s{sTL}, 1
s_and_b32 s{sT0}, s{sHD}, 1
s_add_u32 s{sKVI}, s{sKVI}, s{sT0}
s_lshl_b32 s{sT1}, s{sT}, 2
s_add_u32 s{sT1}, s{sT1}, s{sW}
s_lshr_b32 s{sFLG}, s{sT1}, 1
s_lshl_b32 s{sFLG}, s{sFLG}, 8
s_and_b32 s{sT2}, s{sT1}, 1
s_lshl_b32 s{sT2}, s{sT2}, 4
s_add_u32 s{sFLG}, s{sFLG}, s{sT2}
s_add_u32 s{sFLG}, s{sFLG}, s{sHD}
s_add_u32 s{sFLG}, s{sFLG}, {hx(WS_F)}
s_mul_i32 s{sHST}, s{sT1}, {56*2048}
s_min_u32 s{sT2}, s{sHD}, 13
s_lshl_b32 s{sT2}, s{sT2}, 13
s_add_u32 s{sHST}, s{sHST}, s{sT2}
s_add_u32 s{sHST}, s{sHST}, {hx(WS_H)}
s_cmp_lt_u32 s{sHD}, 14
s_cselect_b32 s{sT2}, 0, {hx(OOB)}
v_add_u32 v{vHS}, s{sT2}, v{vL16}
v_mov_b32 v{vZ}, 0
v_mov_b32 v{vONE}, 1
""")
PST('addr_done')
xissue(14 - OPT['XFIRST'] - OPT['XSEC'])
P.ins += wqpf
PST('x_issued')
PRODUCER = len(P.ins)
E(f"""
s_lshl_b32 s{sSST}, s{sT}, 2
s_add_u32 s{sSST}, s{sSST}, s{sW}
s_mul_i32 s{sSST}, s{sSST}, {28*16384}
s_cmp_ge_u32 s{sHD}, 7
s_cselect_b32 s{sT3}, 1, 0
s_sub_u32 s{sROT}, s{sHD}, 7
s_min_u32 s{sROT}, s{sROT}, s{sHD}
s_sub_u32 s{sCNT}, s{sROT}, 7
s_min_u32 s{sROT}, s{sROT}, s{sCNT}
s_cmp_lt_u32 s{sHD}, 14
s_cselect_b32 s{sT3}, s{sT3}, s{sHD}
s_cselect_b32 s{sSTEP}, 2048, 0
s_lshl_b32 s{sT3}, s{sT3}, 10
s_add_u32 s{sSST}, s{sSST}, s{sT3}
""")
prod_ins = P.ins[PRODUCER:]; del P.ins[PRODUCER:]
for s_, val in ((sM1, 0x2222222222222222), (sM2, 0xCCCCCCCCCCCCCCCC), (sM3, 0x8888888888888888), (sMD, 0xF0000F0000F0000F)):
    E(f"s_mov_b32 s{s_}, {hx(val)}\ns_mov_b32 s{s_+1}, {hx(val >> 32)}")

vONES = vR + 16
vD1 = vR + 20
vD2 = vR + 28
vLA = vR + 36
for i in range(4): E(f"v_mov_b32 v{vONES+i}, 0x3f803f80")
def rbf(r):
    return [f"v_cvt_pk_bf16_f32 v{r}, v{r}, v{r}", f"v_lshlrev_b32 v{r}, 16, v{r}"]
E(f"s_mov_b32 s{sT0}, {hx(f2u(1.0/448.0))}\ns_mov_b32 s{sT1}, {hx(f2u(1e-5))}\ns_mov_b32 s{sT2}, {hx(f2u(CSCALE))}")
STAMP('pro_done')
vNT = vR + 44
NPRO = OPT['NPRO']
assert len(pro_dma) == NPRO
late = {0: [i_ for d_ in pro_dma[:3] for i_ in d_],
        1: [i_ for d_ in pro_dma[3:] for i_ in d_]
           + [I(f"buffer_store_byte v{vZ}, v{vZ}, {srd(sWS)}, s{sFLG} offen sc1", tag='hst')]}
for tg in range(2):
    def stats(q):
        for ks in (2*q, 2*q+1):
            X = v(xn(ks, tg), 4)
            E(mfma(v(vD1+4*tg, 4), v(vONES, 4), X, "0" if ks == 0 else v(vD1+4*tg, 4)))
            E(mfma(v(vD2+4*tg, 4), X, X, "0" if ks == 0 else v(vD2+4*tg, 4)))
    for q in range(7):
        P.wait_vm_tag([('x', tg, q)])
        for ks in (2*q, 2*q+1):
            ad = q*SLOT + tg*2048
            E(f"ds_read_b128 {v(xn(ks,tg),4)}, v{vXR + (ad >> 16)*2 + (ks & 1)} offset:{ad & 0xffff}", tag=('xr', q))
        if tg == 0: xissue(2)
        if q > 1:
            P.wait_lgkm_tag([('xr', q-2)]); stats(q-2)
    if tg == 0: P.ins += prod_ins
    for q in (5, 6):
        P.wait_lgkm_tag([('xr', q)]); stats(q)
    STAMP(f'x{tg}_arrived')
    d = vD2 + 4*tg; m = vD1 + 4*tg; t = m + 1; L = vLA + 4*tg
    s = [f"v_cndmask_b32 v{d}, v{d}, v{d+1}, s[{sM1}:{sM1+1}]",
         f"v_cndmask_b32 v{d+2}, v{d+2}, v{d+3}, s[{sM3}:{sM3+1}]",
         f"v_mul_f32 v{m}, s{sT0}, v{m}",
         f"v_cndmask_b32 v{d}, v{d}, v{d+2}, s[{sM2}:{sM2+1}]",
         f"v_cndmask_b32 v{d}, 0, v{d}, s[{sMD}:{sMD+1}]"]
    s += allred(d, t, "v_add_f32")
    s += [f"v_mul_f32 v{d}, s{sT0}, v{d}",
          f"v_fma_f32 v{d}, -v{m}, v{m}, v{d}",
          f"v_max_f32 v{d}, 0, v{d}"]
    s += interleave(rbf(m), rbf(d))
    s += [f"v_add_f32 v{d}, s{sT1}, v{d}"] + rbf(d) + [f"v_sqrt_f32 v{d}, v{d}"] + rbf(d)
    s += [f"v_rcp_f32 v{d}, v{d}", f"v_mul_f32 v{d}, s{sT2}, v{d}",
          f"v_cvt_pk_bf16_f32 v{d}, v{d}, v{d}",
          f"v_and_b32 v{L}, 0xffff, v{d}", f"v_lshlrev_b32 v{L+1}, 16, v{d}",
          f"v_mul_f32 v{L+2}, -v{m}, v{L+1}"]
    for t_ in s: E(t_)
    k = 0
    pend = []
    lt = late[tg]
    for ks in range(14):
        if tg == 1 and ks == 10:
            P.ins += lt; lt = []
            P.wait_vm_tag(first_need)
            E("s_barrier")
            for f in range(D): P.ins += frag_reads(f)
        for r in range(4):
            x_ = xn(ks, tg) + r
            t = vNT + 2*(k % 8); k += 1
            E(f"v_dot2_f32_bf16 v{t}, v{x_}, v{L}, v{L+2}\nv_dot2_f32_bf16 v{t+1}, v{x_}, v{L+1}, v{L+2}")
            pend.append(f"v_cvt_pk_bf16_f32 v{x_}, v{t}, v{t+1}")
            if len(pend) > 2: E(pend.pop(0))
            if lt and (k % 3 == 0 or lt[0].cls != 'vmem'): P.ins.append(lt.pop(0))
    for t_ in pend: E(t_)
    P.ins += lt
if OPT['DUMP'] == 'xn':
    P.ins += dump([v(xn(ks, tg), 4) for ks in range(14) for tg in range(2)])

P.ins.append(mk_wait_lg([('f', f) for f in range(4)]))
est = 0
for g in range(NF):
    if g in blk: P.ins += blk[g]
    for h, m_ in enumerate(MF[g]):
        gp = G0[g] + h
        P.ins.append(I(m_))
        P.ins += pre[gp] + rds[gp] + ext[gp]
        est += max(16, gtime(pre[gp] + rds[gp] + ext[gp]))
print("estimated main-stream cycles", est, "ideal", 16*NG, file=sys.stderr)

STAMP('g6_done')
def fs(t4, w_): return facc(t4, w_)
vSEL = 44
vSA = 52
STAMP('pre_c1')
P.wait_vm_tag(['poll'])
E(f"v_cmp_gt_u32 vcc, 3, v{vPOLL}\ns_cbranch_vccnz L_spin1\nL_spin1_ret:\ns_cmp_lg_u32 s{sMISS}, 0\ns_cbranch_scc1 L_redo\nL_redo_ret:")
STAMP('chk1')
gl2 = gloads(2*F0, 16, vHS)
n2 = OPT['N2']
P.ins += gl2[:n2]
E(f"""
v_add_u32 v{vT1}, s{sWB}, v{vL16}
s_lshl_b32 s{sT0}, s{sW}, 14
v_add_u32 v{vT2}, s{sT0}, v{vL16}
""")
for u in range(4):
    for t4 in range(4):
        E(f"ds_write_b128 v{vT1}, {v(facc(u, t4), 4)} offset:{u*SLOT + t4*1024}")
E(f"""
v_mov_b32 v{vSEL}, 0
v_mov_b32 v{vSEL+1}, 0
v_mov_b32 v{vSEL+4}, 0
v_mov_b32 v{vSEL+5}, 0
v_mov_b32 v{vT0}, 0x3f80
v_mov_b32 v{vSEL+2}, 0x3f800000
s_or_b64 s[16:17], s[{sM1}:{sM1+1}], s[{sM3}:{sM3+1}]
v_cndmask_b32 v{vT0}, v{vT0}, v{vSEL+2}, s[16:17]
v_cndmask_b32 v{vT0}, 0, v{vT0}, s[{sMD}:{sMD+1}]
s_mov_b64 s[16:17], s[{sM2}:{sM2+1}]
v_cndmask_b32 v{vSEL+2}, v{vT0}, 0, s[16:17]
v_cndmask_b32 v{vSEL+3}, 0, v{vT0}, s[16:17]
s_mov_b32 s{sT0}, {hx(f2u(1.0/CSCALE))}
s_mov_b32 s{sT2}, {hx(f2u(-16.0))}
""")
E("s_waitcnt lgkmcnt(0)\ns_barrier")
for t4 in range(4):
    for w_ in range(4):
        E(f"ds_read_b128 {v(fs(t4, w_), 4)}, v{vT2} offset:{w_*4096 + t4*1024}")
def smf(rl, sl):
    r = []
    for tg in range(2):
        d = v(vSA + (rl*2+tg)*4, 4)
        r.append(mfma(d, v(vSEL + (2 if tg == 0 else 0), 4), greg(rl, sl), "0" if sl == 0 else d))
    return r
val = []
for t4 in range(4):
    b0, b1, b2, b3 = (fs(t4, w_) for w_ in range(4))
    for r in range(4): val += [f"v_add_f32 v{b0+r}, v{b0+r}, v{b1+r}", f"v_add_f32 v{b2+r}, v{b2+r}, v{b3+r}"]
    for r in range(4): val.append(f"v_add_f32 v{b0+r}, v{b0+r}, v{b2+r}")
    for r in range(4): val.append(f"v_mul_f32 v{b1+r}, s{sT2}, v{b0+r}")
    for r in range(4): val.append(f"v_exp_f32 v{b1+r}, v{b1+r}")
    for r in range(4): val.append(f"v_mul_f32 v{b0+r}, s{sT0}, v{b0+r}")
    for r in range(4): val.append(f"v_add_f32 v{b1+r}, 1.0, v{b1+r}")
    for r in range(4): val.append(f"v_rcp_f32 v{b1+r}, v{b1+r}")
    for r in range(4): val.append(f"v_mul_f32 v{b0+r}, v{b0+r}, v{b1+r}")
P.ins += gl2[n2:]
ms = []
for sq in range(0, 2*F0, 2):
    for rl in range(2):
        ms.append(('w', [('g', rl, sq+1)]))
        for sl in range(sq, sq+2): ms += smf(rl, sl)
per = (len(val) + 8*F0 - 1) // (8*F0)
for m_ in ms:
    if isinstance(m_, tuple): P.wait_vm_tag(m_[1]); continue
    E(m_)
    for _ in range(per):
        if val: E(val.pop(0))
for t_ in val: E(t_)
for t4 in range(4):
    b2 = fs(t4, 2); xr = vXF + t4*2
    E(f"""
v_lshlrev_b32 v{b2}, 16, v{xr}
v_and_b32 v{b2+1}, 0xffff0000, v{xr}
v_lshlrev_b32 v{b2+2}, 16, v{xr+1}
v_and_b32 v{b2+3}, 0xffff0000, v{xr+1}
""")
STAMP('g_done')
for sq in range(2*F0, 16, 2):
    for rl in range(2):
        for sl in range(sq, sq+2):
            for m_ in smf(rl, sl): E(m_)
for t4 in range(4):
    b0 = fs(t4, 0); b2 = fs(t4, 2)
    for r in range(4): E(f"v_fma_f32 v{b0+r}, v{vSA+t4*4+r}, v{b0+r}, v{b2+r}")
    E(f"v_cvt_pk_bf16_f32 v{b0}, v{b0}, v{b0+1}\nv_cvt_pk_bf16_f32 v{b0+1}, v{b0+2}, v{b0+3}")
    E(f"buffer_store_dwordx2 {v(b0,2)}, v{vAD}, {srd(sOUT)}, {'0' if t4 == 0 else 's%d' % (sSV0+t4-1)} offen")
if OPT['STAMP']:
    STAMP('end')
    E(f"""
L_fin:
s_memrealtime s[{sSTMP}:{sSTMP+1}]
s_waitcnt lgkmcnt(0)
v_writelane_b32 v{vSTAMP}, s98, 60
v_writelane_b32 v{vSTAMP}, s100, 61
v_writelane_b32 v{vSTAMP}, s{sSTMP}, 62
s_lshl_b32 s{sT0}, s0, 2
s_add_u32 s{sT0}, s{sT0}, s{sW}
s_lshl_b32 s{sT0}, s{sT0}, 8
s_add_u32 s{sT0}, s{sT0}, {hx(WS_DBG)}
v_lshlrev_b32 v{vT0}, 2, v0
buffer_store_dword v{vSTAMP}, v{vT0}, {srd(sWS)}, s{sT0} offen
""")
E("L_end:\ns_endpgm")
main_ins, log, stats_ = resolve(P.ins)
print("main", stats_, file=sys.stderr)
if OPT['LOG']:
    for l in log: print("  ", l, file=sys.stderr)

Q = Prog(); E = Q.emit
SPIN_MAX = 1 << 17
def spin(label, load, want, cmp):
    E(f"""
{label}:
s_mov_b32 s{sCNT}, {SPIN_MAX}
{label}_loop:
s_sleep 1
{load}
s_waitcnt vmcnt(0)
v_cmp_{cmp}_u32 vcc, {want}, v{vPOLL}
s_sub_u32 s{sCNT}, s{sCNT}, 1
s_cmp_eq_u32 s{sCNT}, 0
s_cbranch_scc1 {label}_ret
s_cbranch_vccnz {label}_loop
s_branch {label}_ret
""")
spin("L_spinh", f"s_lshl_b32 s{sT0}, s{sTC}, 4\nv_mov_b32 v{vT0}, s{sT0}\nglobal_load_dword v{vPOLL}, v{vT0}, {DBGP} sc1", 16, "gt")
spin("L_spin1", VPOLL, 3, "gt")
E("L_redo:\ns_waitcnt vmcnt(0)")
Q.ins += gloads(0, 2*F0, vHS)
E("s_waitcnt vmcnt(0)\ns_branch L_redo_ret")
MISC = [c['lo'] for c in chunks if c['name'] == 'V_15'][0]
fK, fS, fP, fA, fV, fR, fM = 44, 76, 108, 116, 117, 121, 102
E(f"""
L_exact:
s_waitcnt vmcnt(0) lgkmcnt(0)
s_nop 15
s_mov_b32 s{sSV0}, m0
v_and_b32 v{fA}, 15, v0
v_lshlrev_b32 v{fA}, 9, v{fA}
v_and_b32 v{fM}, 48, v0
v_add_u32 v{fA}, v{fA}, v{fM}
s_lshl_b32 s{sSV1}, s{sW}, 7
s_add_u32 s{sSV2}, s{sWB}, {MISC}
""")
for i in range(4):
    E(f"v_subrev_u32 v{fV+i}, s{sSV1}, v{vVD+i}\nv_add_u32 v{fR+i}, s{sSV2}, v{vTR+i}")
E(f"v_mov_b32 v{fM}, 0xff800000\nv_mov_b32 v{fM+1}, 0xff800000\ns_mov_b32 s{sSV1}, 0")
def ktile(kt, cinit):
    for ks in range(8):
        E(f"buffer_load_dwordx4 {v(fK+4*ks,4)}, v{fA}, {srd(sKK)}, s{sSV1} offen offset:{ks*64}")
    E(f"s_add_u32 s{sSV1}, s{sSV1}, 8192\ns_waitcnt vmcnt(0)")
    for ks in range(8):
        for tg in range(2):
            d = v(fS + tg*8 + kt*4, 4)
            E(mfma(d, v(fK+4*ks, 4), a(qf(ks, tg), 4), (cinit(tg) if ks == 0 else d)))
    E("s_nop 15")
E("L_exact_p1:")
ktile(0, lambda tg: "0")
for tg in range(2):
    b = fS + tg*8
    E(f"v_max3_f32 v{fM+tg}, v{fM+tg}, v{b}, v{b+1}\nv_max3_f32 v{fM+tg}, v{fM+tg}, v{b+2}, v{b+3}")
E(f"s_cmp_lt_u32 s{sSV1}, 262144\ns_cbranch_scc1 L_exact_p1")
for tg in range(2):
    for t_ in allred(fM+tg, fM+2, "v_max_f32"): E(t_)
    for r in range(4): E(f"v_sub_f32 v{vC+4*tg+r}, 0, v{fM+tg}")
for r in range(128): E(f"v_mov_b32 v{vO+r}, 0")
E(f"v_mov_b32 v{vLS}, 0\nv_mov_b32 v{vLS+1}, 0\ns_mov_b32 s{sSV1}, 0\ns_add_u32 m0, s{sWB}, {MISC}\ns_nop 3")
E("L_exact_p2:")
E(f"s_mov_b32 s{sSV2}, s{sSV1}")
ktile(0, lambda tg: v(vC+4*tg, 4))
ktile(1, lambda tg: v(vC+4*tg, 4))
for r in range(16): E(f"v_exp_f32 v{fS+r}, v{fS+r}")
for r in range(16): E(f"v_add_f32 v{vLS + r//8}, v{vLS + r//8}, v{fS+r}")
for r in range(8): E(f"v_cvt_pk_bf16_f32 v{fP+r}, v{fS+2*r}, v{fS+2*r+1}")
for cb in range(4):
    for rb in range(4):
        E(f"buffer_load_dwordx4 v{fV+rb}, {srd(sVV)}, s{sSV2} offen offset:{rb*1024} lds")
    E(f"s_add_u32 s{sSV2}, s{sSV2}, 128\ns_waitcnt vmcnt(0)")
    for u in range(4):
        E(f"ds_read_b64_tr_b16 {v(fK+4*u,2)}, v{fR+u}\nds_read_b64_tr_b16 {v(fK+4*u+2,2)}, v{fR+u} offset:2048")
    E("s_waitcnt lgkmcnt(0)")
    for u in range(4):
        for tg in range(2):
            d = v(Oreg(cb*4+u, tg), 4)
            E(mfma(d, v(fK+4*u, 4), v(fP+4*tg, 4), d))
    E("s_nop 7")
E(f"s_cmp_lt_u32 s{sSV1}, 262144\ns_cbranch_scc1 L_exact_p2")
for tg in range(2):
    for t_ in allred(vLS+tg, fM+2, "v_add_f32"): E(t_)
    E(f"v_rcp_f32 v{vRC+tg}, v{vLS+tg}")
E("s_nop 15")
for ks in range(8):
    for t_ in ocvt(ks): E(t_)
E(f"s_mov_b32 m0, s{sSV0}\ns_nop 15\ns_branch L_exact_ret")
sub_ins, log2, stats2 = resolve(Q.ins)

hdr = open(os.path.join(os.path.dirname(os.path.abspath(__file__)), 'header.txt')).read()
txt = hdr + f"""; @launch grid=(256,1,1) block=(256,1,1) lds={LDS_BYTES}
.amdgcn_target "amdgcn-amd-amdhsa--gfx950"
.text
.globl {NAME}_kernel
.p2align 8
.type {NAME}_kernel,@function
{NAME}_kernel:
""" + render(main_ins) + render(sub_ins) + f"""L_pad:
    s_endpgm
.if (L_pad - L_pc) < {CODE_LINES*128}
.fill (({CODE_LINES*128} - (L_pad - L_pc)) / 4) + 16, 4, 0xbf810000
.endif
.section .rodata,"a"
.p2align 6
.amdhsa_kernel {NAME}_kernel
  .amdhsa_next_free_vgpr 512
  .amdhsa_next_free_sgpr 102
  .amdhsa_accum_offset 256
  .amdhsa_group_segment_fixed_size 0
  .amdhsa_kernarg_size 88
  .amdhsa_user_sgpr_count 2
  .amdhsa_user_sgpr_kernarg_segment_ptr 1
  .amdhsa_system_sgpr_workgroup_id_x 1
.end_amdhsa_kernel
"""
if OPT['STAMP']: txt += '; STAMPS ' + ' '.join(stamp_names) + '\n'
open(sys.argv[1], 'w').write(txt)
```

```python
import sys, os, math, struct
from asmlib import *

NAME = "recurrent_scan__sliding_block_cached__dense_activation_relu__prompt"
OPT = dict(D=8, NA=12, HX=2, BAR=2, STAMP=0, PST=0, DUMP='', SIGG=60, FORCEFB=0, LOG=0,
           SST='sc1', HLD='sc1', HST='sc1', GLD='sc1', NOSST=0, NOHLD=0, NOHST=0,
           PX='', PW1='nt', PWQ='nt', PKV='nt', PWO='', PW2='', PF=1, PPF='nt', WSOFF=0, HSTEP=9, XREV=0, NPRO=4, WAITAT='', WAITT=0, NOG=0, NOFLAG=0, W2G=-15, W2S=8, F0=3, F1=5, L0=0, W2PRE=6, H2A=1, H2B=100, SA=264, PA=410, CA=70, LA=140, SC=30, PB=150, N2=15, G1N=10, XFIRST=12, XSEC=0, WQE=0, OEARLY=2, H2SPAN=60, PFG=170, WQP=2, FINE=0, RT=0, SIMPLE=0, SSP=0)
for a_ in sys.argv[2:]:
    k_, v_ = a_.split('=')
    OPT[k_] = v_.replace('+', ' ') if isinstance(OPT[k_], str) else int(v_)
D = OPT['D']; NA = OPT['NA']

RING_SLOTS = 10
SLOT = 16384
LDS_BYTES = 163840
WS_S = 0
WS_H = 0x1C00000
WS_F = 0x2300000
WS_DBG = 0x2400000
WS_SIZE = 0x8000000 if (OPT['DUMP'] or OPT['STAMP']) else 0x2400000
OOB = 0x7f000000
CSCALE = math.log2(math.e) / 16.0
def f2u(x): return struct.unpack('<I', struct.pack('<f', x))[0]
def hx(x): return f"0x{x & 0xffffffff:x}"

sX, sW1, sWQ, sKK, sVV, sWO, sW2, sWS, sOUT = 28, 32, 36, 40, 44, 48, 52, 56, 60
def srd(b): return f"s[{b}:{b+3}]"
sW, sHD, sT, sWB, sSO = 64, 65, 66, 67, 68
sT0, sT1, sT2, sT3 = 69, 70, 71, 3
sQT = 72
sHST, sHLD, sSST, sSG, sFLG, sFLP, sCNT, sSO2, sTL, sROT, sSTEP, sPC = 86, 87, 88, 89, 90, 91, 92, 93, 94, 95, 96, 97
sTC, sCOOB, sHPF, sW2I, sKVI, sCC = 19, 20, 21, 24, 25, 2
sW1T = 12
sM1, sM2, sM3, sMD = 4, 6, 8, 10
sSV0, sSV1, sSV2 = 12, 13, 14
sSTMP = 26
DBGP = "s[22:23]"
vL16, vHS, vT0, vT1, vT2, vT3, vT4 = 1, 2, 3, 4, 5, 6, 7
vTR = 8
vRA = 20
vPF = 26
vZ, vONE, vPOLL, vSTAMP = 28, 29, 30, 31
vWQ, vKD, vVD, vWOD, vW2D = 32, 36, 40, 32, 36
vXN = 44
vR = 156
vW1D = vR + 64
vXD = vR + 68
vO = 128
vS = 44
vP = 76
vC = 92
vLS = 100
vM = 106
vA4 = 44
vRC = 126
aF, aST, aQ, aH = 0, 48, 64, 128

def v(i, n=1): return f"v{i}" if n == 1 else f"v[{i}:{i+n-1}]"
def a(i, n=1): return f"a{i}" if n == 1 else f"a[{i}:{i+n-1}]"
def mfma(d, A, B, C): return f"v_mfma_f32_16x16x32_bf16 {d}, {A}, {B}, {C}"
def I(t, tag=None): return Ins(t, tag)
lg = lambda x: int(math.log2(x))

P = Prog()
E = P.emit

nstamp = [0]
stamp_names = []
def stamp_ins(name=''):
    if OPT['WAITAT'] and name == OPT['WAITAT']:
        return [I(t_) for t_ in ("L_dw:", f"s_memrealtime s[{sSTMP}:{sSTMP+1}]", "s_waitcnt lgkmcnt(0)", f"s_sub_u32 s{sSTMP}, s{sSTMP}, s100",
                                 f"s_cmp_lt_u32 s{sSTMP}, {OPT['WAITT']}", "s_cbranch_scc1 L_dw")]
    if not OPT['STAMP']: return []
    if OPT['STAMP'] == 3 and name not in ('end', 'G4', 'st_done', 'chk0', 'chk1', 'chk2', 'sigA', 'sigB', 'g6_done', 'g_done', 'pre_c2', 'pre_c1', 'pre_c0'): return []
    if OPT['STAMP'] == 2 and name not in ('end', 'G4', 'P0'): return []
    n = nstamp[0]; nstamp[0] += 1; stamp_names.append(name)
    return [I(f"{'s_memrealtime' if OPT['RT'] else 's_memtime'} s[{sSTMP}:{sSTMP+1}]"), I("s_waitcnt lgkmcnt(0)"), I(f"v_writelane_b32 v{vSTAMP}, s{sSTMP}, {n}")]
def STAMP(name=''):
    P.ins += stamp_ins(name)
def PST(name):
    if OPT['PST']: STAMP(name)

frags = []
chunks = []
def add_chunk(name, lo, size, dma, private=False):
    chunks.append(dict(name=name, lo=lo, hi=lo+size, dma=dma, private=private, first=None, last=None)); return len(chunks)-1
def add_frag(kind, rs, rb, addr, mf, ch):
    frags.append(dict(kind=kind, rb=rb, rs=rs, addr=addr, mf=mf, chunk=ch))
    c = chunks[ch]
    if c['first'] is None: c['first'] = len(frags)-1
    c['last'] = len(frags)-1
def frag_reads(f):
    fr = frags[f]; A = aF + 4*(f % NA)
    def rd(op, dst, addr):
        win = addr >> 16
        return I(f"{op} {dst}, v{fr['rb'] + win*fr['rs']} offset:{addr & 0xffff}", tag=('f', f))
    if fr['kind'] == 'tr':
        return [rd("ds_read_b64_tr_b16", a(A, 2), fr['addr']), rd("ds_read_b64_tr_b16", a(A+2, 2), fr['addr'] + 2048)]
    return [rd("ds_read_b128", a(A, 4), fr['addr'])]
POL = {sW1: 'PW1', sWQ: 'PWQ', sKK: 'PKV', sVV: 'PKV', sWO: 'PWO', sW2: 'PW2'}
ring_pos = [7]
def ring_round(name, srd_b, vbase, so_text, private=False):
    slot = ring_pos[0] % RING_SLOTS; ring_pos[0] += 1
    lo = slot*SLOT
    tag = ('c', len(chunks))
    dma = [I(f"s_add_u32 m0, s{sWB}, {lo}")]
    if so_text.startswith('s') or so_text == '0': so = so_text
    elif so_text.startswith('+'):
        dma.append(I(f"s_add_u32 s{sSO}, {so_text[1:]}")); so = f"s{sSO}"
    else:
        dma.append(I(f"s_mov_b32 s{sSO}, {so_text}")); so = f"s{sSO}"
    for rb in range(4):
        dma.append(I(f"buffer_load_dwordx4 v{vbase+rb}, {srd(srd_b)}, {so} offen offset:{rb*1024} {OPT[POL[srd_b]]} lds", tag=tag))
    return add_chunk(name, lo, SLOT, dma, private)

phase = {}
def xn(ks, tg): return vXN + (ks*2 + tg)*4
def accp(pp, kq, tg, par): return vR + (pp % 2)*32 + ((kq*2 + tg)*2 + par)*4
for pp in range(6):
    phase[f'P{pp}'] = len(frags)
    for ks in range(14):
        qi = 14*pp + ks
        if qi % 4 == 0:
            r_ = qi // 4
            ch = ring_round(f"wq_{r_}", sWQ, vWQ, f"s{sQT + r_}") if r_ < 14 else ring_round(f"w1_{r_-14}", sW1, vW1D, f"s{sW1T + r_ - 14}")
        for u in range(4):
            mf = (lambda A, pp=pp, ks=ks, u=u: [mfma(v(accp(pp, u >> 1, tg, u & 1), 4), A, v(xn(ks, tg), 4), "0" if ks == 0 else v(accp(pp, u >> 1, tg, u & 1), 4)) for tg in range(2)])
            add_frag('tr', 4, vTR + u, chunks[ch]['lo'] + (qi % 4)*4096, mf, ch)
def qf(kq, tg): return aQ + (kq*2 + tg)*4
def Sreg(st, tg, kt): return vS + (st % 2)*16 + tg*8 + kt*4
def Preg(st, tg): return vP + (st % 2)*8 + tg*4
def Oreg(d, tg): return vO + (((d >> 1)*2 + tg)*2 + (d & 1))*4
def G2(st):
    phase[f'G2_{st}'] = len(frags)
    ch = ring_round(f"K_{st}", sKK, vKD, str(st*16384))
    order = [(kt, ks) for kt in range(2) for ks in range(8)]
    for kt, ks in order:
        def mf(A, kt=kt, ks=ks):
            r = []
            for tg in range(2):
                c = v(Sreg(st, tg, kt), 4)
                if ks == 0: c = "0" if st < 1 else v(vC + 4*tg, 4)
                r.append(mfma(v(Sreg(st, tg, kt), 4), A, a(qf(ks, tg), 4), c))
            return r
        add_frag('b128', 2, vRA + (ks & 1), chunks[ch]['lo'] + (ks >> 1)*4096 + kt*2048, mf, ch)
def G3(st):
    phase[f'G3_{st}'] = len(frags)
    ch = ring_round(f"V_{st}", sVV, vVD, str(st*16384))
    for d in range(16):
        mf = (lambda A, d=d: [mfma(v(Oreg(d, tg), 4), A, v(Preg(st, tg), 4), "0" if st == 0 else v(Oreg(d, tg), 4)) for tg in range(2)])
        add_frag('tr', 4, vTR + (d & 3), chunks[ch]['lo'] + (d >> 2)*4096, mf, ch)
G2(0)
for st in range(15):
    G2(st + 1); G3(st)
G3(15)
phase['G4'] = len(frags)
def acc4(p, u, tg): return vA4 + u*8 + tg*4
def Opk(ks, tg): return vO + (ks*2 + tg)*8
for p in range(7):
    chs = [ring_round(f"wo_{p}_{h_}", sWO, vWOD, f"s{sQT+p}" if h_ == 0 else f"+s{sQT+p}, {4*32*896}") for h_ in range(2)]
    for u in range(4):
        for ks in range(8):
            ch = chs[ks // 4]
            mf = (lambda A, p=p, ks=ks, u=u: [mfma(v(acc4(p, u, tg), 4), A, v(Opk(ks, tg), 4), "0" if ks == 0 else v(acc4(p, u, tg), 4)) for tg in range(2)])
            add_frag('tr', 4, vTR + u, chunks[ch]['lo'] + (ks % 4)*4096, mf, ch)
phase['G6'] = len(frags)
def hole(i): return vO + 8*i + 4
def hreg(kk, t4):
    i = kk*4 + t4
    if i < 32: return a(aH + 4*i, 4)
    if i < 48: return a(aQ + 4*(i-32), 4)
    return v(hole(i-48), 4)
def facc(u, t4):
    i = u*4 + t4
    return vA4 + 32 + 4*i if i < 8 else hole(i)
vTP = 108
for kk in range(14):
    ch = ring_round(f"w2_{kk}", sW2, vW2D, str(kk*32*896), private=True)
    for u in range(4):
        mf = (lambda A, kk=kk, u=u: [mfma(v(facc(u, t4), 4), A, hreg(kk, t4), "0" if kk == 0 else v(facc(u, t4), 4)) for t4 in range(4)])
        add_frag('tr', 4, vTP + u, chunks[ch]['lo'], mf, ch)
NF = len(frags)
phase['END'] = NF

MF = [fr['mf'](a(aF + 4*(f % NA), 4)) for f, fr in enumerate(frags)]
G0 = [0]
for f in range(NF): G0.append(G0[-1] + len(MF[f]))
NG = G0[-1]
def gap(f): return G0[max(0, min(f, NF))]
pre = [[] for _ in range(NG)]
rds = [[] for _ in range(NG)]
ext = [[] for _ in range(NG)]
blk = {}
for g in range(NF):
    if g + D < NF:
        r = frag_reads(g + D)
        n = len(MF[g])
        rds[G0[g]].append(r[0])
        if len(r) > 1: rds[G0[g] + n//2].append(r[1])
def cost(i):
    if i.cls in ('ds',): return 8
    if i.cls == 'vmem': return 24 if 'store' in i.op and 'x4' in i.op else 8
    if i.cls in ('trans', 'perm'): return 8
    if i.cls == 'label': return 0
    return 4
def gtime(items):
    t = 4
    for i in items:
        if i.cls in VALU_LIKE: t = max(t, 8)
        t += cost(i)
    return t
def fits(gp, i): return gtime(pre[gp] + rds[gp] + ext[gp] + [i]) <= 16
def place(seq, g0, g1=None):
    seq = [I(s) if isinstance(s, str) else s for s in seq]
    g1 = NG if g1 is None else min(g1, NG)
    gp = g0; n = len(seq)
    for k, ins in enumerate(seq):
        bound = max(min(g0 + ((k + 1) * (g1 - g0)) // n - 1, g1 - 1), gp)
        best = None
        for q in range(gp, bound + 1):
            if fits(q, ins): best = q; break
        if best is None:
            best = min(range(gp, bound + 1), key=lambda q: (gtime(pre[q] + rds[q] + ext[q] + [ins]), q))
        ext[best].append(ins)
        gp = best
    return gp
def spread(seq, g0, g1):
    n = len(seq); cur = g0
    for k, ins in enumerate(seq):
        lo = max(g0 + (k*(g1-g0))//n, cur); hi = max(g0 + ((k+1)*(g1-g0))//n, lo+1)
        cur = place([ins], lo, hi)
    return cur

shared = [c for c in range(len(chunks)) if not chunks[c]['private']]
bar_frags = [chunks[c]['first'] for k_, c in enumerate(shared) if (k_ - 1) % OPT['BAR'] == 0 or k_ == 0]
bar_frags += [phase['G6'], phase['G6'] + D + 1]
bar_frags = sorted(set(bar_frags))
bar_gap = []
first_need = None
for bi, f0 in enumerate(bar_frags):
    f1 = bar_frags[bi+1] if bi + 1 < len(bar_frags) else NF
    need = [('c', c) for c in shared if f0 <= chunks[c]['first'] < f1]
    if f0 == 0: first_need = need; continue
    gp = gap(f0 - D); bar_gap.append(gp)
    if need: ext[gp-1].append(mk_wait_vm(need))
    pre[gp].append(I("s_barrier"))
for c in range(len(chunks)):
    if chunks[c]['private']:
        ext[gap(chunks[c]['first'] - D) - 1].append(mk_wait_vm([('c', c)]))
for g in range(4, NF, 4):
    ext[gap(g) - 1].append(mk_wait_lg([('f', f) for f in range(g, min(g+4, NF))]))
def earliest_gap(c):
    e = -1
    C = chunks[c]
    for c2 in range(c):
        B = chunks[c2]
        if B['hi'] <= C['lo'] or C['hi'] <= B['lo']: continue
        if B['private'] and C['private']: e = max(e, gap(B['last'] + 1))
        else: e = max(e, [gp for gp in bar_gap if gp >= gap(B['last'] + 1)][0] + 1)
    return e
pro_dma = []
cur = 0
for c in range(len(chunks)):
    e = earliest_gap(c)
    if e < 0 and c < OPT['NPRO']:
        pro_dma.append(chunks[c]['dma']); continue
    if chunks[c]['name'].startswith('w2_') and int(chunks[c]['name'][3:]) >= OPT['W2PRE']: e = max(e, gap(phase['G6']) + OPT['W2G'])
    g0 = max(e, cur)
    span = 30
    if g0 > e + 8: span = 20
    if g0 >= gap(phase['G6'] - D): span = OPT['W2S']
    seq = list(chunks[c]['dma'])
    if chunks[c]['name'] == 'wo_0_0': seq = [I(f"v_accvgpr_read_b32 v{vWOD+i}, a{aST+i}") for i in range(4)] + seq; wo_first_gap = g0
    if chunks[c]['name'] == 'w2_0': seq = [I(f"v_accvgpr_read_b32 v{vW2D+i}, a{aST+4+i}") for i in range(4)] + seq
    cur = spread(seq, g0, g0 + span)
    need_gap = gap(chunks[c]['first'] - D)
    if OPT['LOG']: print(chunks[c]['name'], g0, cur, need_gap, 'lead', need_gap - cur, file=sys.stderr)
    assert cur < need_gap - 1, (chunks[c]['name'], cur)

seq = []
for p in range(7):
    seq += [f"s_add_u32 s{sT2}, s{sROT}, {p}", f"s_sub_u32 s{sT3}, s{sT2}, 7", f"s_min_u32 s{sT2}, s{sT2}, s{sT3}",
            f"s_lshl_b32 s{sQT+p}, s{sT2}, 7", f"s_lshl_b32 s{sT2}, s{sT2}, 16", f"s_add_u32 s{sQT+7+p}, s{sSST}, s{sT2}",
            f"s_add_u32 s{sSST}, s{sSST}, s{sSTEP}"]
spread(seq, gap(phase['G3_4']), gap(phase['G3_8']))
assert gap(phase['G3_8']) < wo_first_gap
assert OPT['BAR'] == 2
place([f"v_add_u32 v{vTP+i}, s{sWB}, v{vTR+i}" for i in range(12)], gap(phase['G4'] + 8), gap(phase['G4'] + 40))

def hconv(pp):
    s = []
    for kq in range(2):
        for tg in range(2):
            b = accp(pp, kq, tg, 0)
            for r in range(8): s.append(f"v_max_f32 v{b+r}, 0, v{b+r}")
            for r in range(4): s.append(f"v_cvt_pk_bf16_f32 v{b+r}, v{b+2*r}, v{b+2*r+1}")
            if not OPT['NOHST']:
                s.append(I(f"buffer_store_dwordx4 {v(b,4)}, v{vHS}, {srd(sWS)}, s{sHST} offen offset:{kq*2048 + tg*1024} {OPT['HST']}", tag='hst'))
    if pp == 4: s.append(f"s_add_u32 s{sHST}, s{sHST}, 4096")
    return s
place(hconv(4), gap(phase['P5']) + 4, gap(phase['G2_0']) - 4)
def qconv(pp):
    s = []
    for kq in range(2):
        for tg in range(2):
            b = accp(pp, kq, tg, 0)
            s += [f"v_cvt_pk_bf16_f32 v{b+r}, v{b+2*r}, v{b+2*r+1}" for r in range(4)]
            s += [f"v_permlane32_swap_b32 v{b}, v{b+2}", f"v_permlane32_swap_b32 v{b+1}, v{b+3}",
                  f"v_permlane16_swap_b32 v{b}, v{b+2}", f"v_permlane16_swap_b32 v{b+1}, v{b+3}"]
            s += [f"v_accvgpr_write_b32 a{qf(2*pp+kq, tg)+r}, v{b+r}" for r in range(4)]
    return s
for pp in range(4):
    g0 = gap(phase[f'P{pp+1}'])
    place(qconv(pp), g0 + 4, g0 + 2*56 - 4)

def allred(r, t, op):
    return [f"v_mov_b32 v{t}, v{r}", f"v_permlane32_swap_b32 v{r}, v{t}", f"{op} v{r}, v{r}, v{t}",
            f"v_mov_b32 v{t}, v{r}", f"v_permlane16_swap_b32 v{r}, v{t}", f"{op} v{r}, v{r}, v{t}"]
def interleave(*seqs):
    out = []
    for k in range(max(len(s) for s in seqs)):
        for s in seqs:
            if k < len(s): out.append(s[k])
    return out
def svals(st): return [Sreg(st, tg, kt) + r for tg in range(2) for kt in range(2) for r in range(4)]
g0 = gap(phase['G2_0'])
seqs = []
for tg in range(2):
    b = Sreg(0, tg, 0); m = vM + 2*tg; t = m + 1
    s = [f"v_max3_f32 v{m}, v{b}, v{b+1}, v{b+2}", f"v_max_f32 v{m}, v{m}, v{b+3}"] + allred(m, t, "v_max_f32")
    s += [f"v_sub_f32 v{vC+4*tg+r}, 0, v{m}" for r in range(4)]
    seqs.append(s)
seq = interleave(*seqs) + [f"v_mov_b32 v{vLS}, 0", f"v_mov_b32 v{vLS+1}, 0"]
gm = place(seq, g0 + 19, g0 + 31)
def sm_seq(st, sub):
    s = []
    vals = svals(st)
    for k_, r in enumerate(vals):
        tg = k_ // 8
        if sub: s.append(f"v_add_f32 v{r}, v{r}, v{vC+4*tg}")
        s.append(f"v_exp_f32 v{r}, v{r}")
        if k_ % 2 == 1 and k_ >= 3:
            kk = k_ - 3
            s.append(f"v_cvt_pk_bf16_f32 v{Preg(st, kk//8) + (kk % 8)//2}, v{vals[kk]}, v{vals[kk+1]}")
    s.append(f"v_cvt_pk_bf16_f32 v{Preg(st, 1) + 3}, v{vals[14]}, v{vals[15]}")
    return s
def add_seq(st):
    vals = svals(st)
    return interleave([f"v_add_f32 v{vLS}, v{vLS}, v{r}" for r in vals[:8]], [f"v_add_f32 v{vLS+1}, v{vLS+1}, v{r}" for r in vals[8:]])
for st in range(16):
    g3 = gap(phase[f'G3_{st}'])
    if st == 0:
        ge = place(sm_seq(st, True), gap(phase['G2_1']) + 3, g3 - 1)
    elif st < 15:
        gs = gap(phase[f'G2_{st+1}'] - D)
        ge = place(sm_seq(st, False), gs, g3 - 2)
    else:
        ge = place(sm_seq(st, False), gap(phase['G3_14']) + 4, g3 - 2)
    lim = gap(phase[f'G2_{st+2}']) - 2 if st + 2 < 16 else g3 + 14
    ga = place(add_seq(st), ge, lim)
seqs = []
for tg in range(2):
    l = vLS + tg; t = vM + tg
    seqs.append(allred(l, t, "v_add_f32") + [f"v_rcp_f32 v{vRC+tg}, v{l}"])
seq = interleave(*seqs) + [f"v_add_f32 v{vM}, v{vLS}, v{vLS+1}", f"s_mov_b32 s{sT0}, {hx(f2u(2.0**24 if not OPT['FORCEFB'] else 0.5))}", f"v_cmp_ngt_f32 vcc, s{sT0}, v{vM}"]
place(seq, ga, gap(phase['G4']) - 1)

hc = hconv(5)
place(hc[:39], gap(phase['G2_0']) + 3, gap(phase['G2_0']) + 19)
gend = place(hc[39:], gap(phase['G3_0']), gap(phase['G3_0']) + 16)
assert accp(5, 1, 1, 0) >= Oreg(10, 0)
hb = [gp for gp in bar_gap if gp > gend + 150][0]
ext[hb-1].append(mk_wait_vm(['hst']))
sig = [I(f"s_cmp_lg_u32 s{sW}, 0"), I("s_cbranch_scc1 L_nosig"), I(f"s_lshl_b32 s{sT0}, s{sT}, 4"), I(f"v_mov_b32 v{vPOLL}, s{sT0}"),
       I("s_mov_b64 exec, 1"), I(f"global_atomic_add v{vPOLL}, v{vONE}, {DBGP} sc1"), I("s_mov_b64 exec, -1"), I("L_nosig:")]
sig[5].cls = 'misc'
ext[hb+1] += sig

def dump(regs_list):
    r = [I("s_nop 15"), I(f"s_lshl_b32 s{sT0}, s{sT}, 4"), I(f"s_add_u32 s{sT0}, s{sT0}, s{sHD}"),
         I(f"s_lshl_b32 s{sT0}, s{sT0}, 2"), I(f"s_add_u32 s{sT0}, s{sT0}, s{sW}"),
         I(f"s_mul_i32 s{sT0}, s{sT0}, {32*1024}"), I(f"s_add_u32 s{sT0}, s{sT0}, {hx(WS_DBG)}")]
    for reg in regs_list:
        r.append(I(f"buffer_store_dwordx4 {reg}, v{vL16}, {srd(sWS)}, s{sT0} offen"))
        r.append(I(f"s_add_u32 s{sT0}, s{sT0}, 1024"))
    r.append(I("s_nop 3"))
    return r
def ocvt(ks): return [f"v_cvt_pk_bf16_f32 v{Opk(ks, tg)+r}, v{Opk(ks, tg)+2*r}, v{Opk(ks, tg)+2*r+1}" for tg in range(2) for r in range(4)]
NEARLY = OPT['OEARLY']
g15 = gap(phase['G3_15'])
for ks in range(NEARLY): place(ocvt(ks), g15 + 4*ks + 8, gap(phase['G4']) - 1)
b = stamp_ins('attn_done') + [I("s_cbranch_vccnz L_exact")]
for ks in range(NEARLY, 8): b += [I(t_) for t_ in ocvt(ks)]
b.append(I("L_exact_ret:"))
if OPT['DUMP'] == 'o': b += dump([v(Opk(ks, tg), 4) for ks in range(8) for tg in range(2)])
if OPT['DUMP'] == 'q': b += dump([a(qf(ks, tg), 4) for ks in range(8) for tg in range(2)])
b += stamp_ins('G4')
blk[phase['G4']] = b

def sconv(p, u):
    b = acc4(p, u, 0)
    s = [f"v_mul_f32 v{b+r}, v{vRC + r//4}, v{b+r}" for r in range(8)]
    s += [f"v_cvt_pk_bf16_f32 v{b+r}, v{b+2*r}, v{b+2*r+1}" for r in range(4)]
    if u: s.append(f"s_add_u32 s{sQT+7+p}, s{sQT+7+p}, 16384")
    if not OPT['NOSST']: s.append(I(f"buffer_store_dwordx4 {v(b,4)}, v{vL16}, {srd(sWS)}, s{sQT+7+p} offen {OPT['SST']}", tag=('sst', p)))
    return s
g4 = gap(phase['G4'])
for p in range(7):
    for u in range(4):
        g0 = g4 + 64*p + 16*(u+1)
        gl = place(sconv(p, u), g0 + 3, g0 + (19 if (p, u) != (6, 3) else 10))
last_store_gap = gl
hs = OPT['HSTEP']
gp0 = gap(phase[f'G3_{hs-2}'])
place([f"s_lshl_b32 s{sT0}, s{sTC}, 4", f"v_mov_b32 v{vPOLL}, s{sT0}", I(f"global_load_dword v{vPOLL}, v{vPOLL}, {DBGP} sc1", tag='pollh'),
       f"v_add_u32 v{vHS}, s{sCOOB}, v{vL16}"], gp0, gp0 + 24)
gp1 = gap(phase[f'G3_{hs}'])
ext[gp1] += [mk_wait_vm(['pollh']), I(f"v_cmp_gt_u32 vcc, 16, v{vPOLL}"), I("s_cbranch_vccnz L_spinh"), I("L_spinh_ret:")]
def hloads(k0, k1):
    s = []
    for kk in range(k0, k1, 2):
        for rl in range(2):
            s.append(f"s_add_u32 s{sT0}, s{sHLD}, {rl*56*2048 + kk*2048}")
            for k2 in range(2):
                for tg in range(2):
                    s.append(I(f"buffer_load_dwordx4 {hreg(kk+k2, rl*2+tg)}, v{vHS}, {srd(sWS)}, s{sT0} offen offset:{k2*2048 + tg*1024} {OPT['HLD']}", tag='hld'))
    return s
if not OPT['NOHLD']:
    spread(hloads(0, 8), gap(phase[f'G3_{hs+3}']), gap(phase['G3_15']))
    spread(hloads(8, 14), g4 + OPT['H2A'], g4 + OPT['H2B'])
g6 = gap(phase['G6'])
vFV = 120
def greg(rl, sl):
    i = sl*2 + rl
    if i < 16: return v(Opk(0, 0) + 8*i, 4)
    return a(aH + (i - 16)*4, 4)
def gloads(s0, s1, va):
    s = []
    for sq in range(s0, s1, 2):
        for rl in range(2):
            s.append(I(f"s_add_u32 s{sT1}, s{sSG}, {rl*28*16384 + sq*1024}"))
            for sl in range(sq, sq+2):
                if not OPT['NOG']: s.append(I(f"buffer_load_dwordx4 {greg(rl, sl)}, v{va}, {srd(sWS)}, s{sT1} offen offset:{(sl-sq)*1024} {OPT['GLD']}", tag=('g', rl, sl)))
    return s
F0 = OPT['F0']
sPL = 32
sMISS = 15
place([f"v_mov_b32 v{vFV}, 1", f"v_mov_b32 v{vFV+1}, 3", f"v_and_b32 v{vFV+3}, 31, v0"], g4 + 100, g4 + 200)
def signal(k, n): return [mk_wait_vm([('sst', p) for p in range(n)]), I(f"buffer_store_byte v{vFV+k}, v{vZ}, {srd(sWS)}, s{sFLG} offen sc1", tag='flag')]
spoll = I(f"s_buffer_load_dwordx8 s[{sPL}:{sPL+7}], {srd(sWS)}, s{sFLP} glc"); spoll.cls = 'misc'
VPOLL = f"buffer_load_ubyte v{vPOLL}, v{vFV+3}, {srd(sWS)}, s{sFLP} offen sc1"
ext[g4 + OPT['SA']] += signal(0, F0) + stamp_ins('sigA')
ext[g4 + OPT['PA']] += [spoll]
sg = g6 + OPT['SC']
ext[sg] += signal(1, 7) + stamp_ins('st_done') + [I(f"s_cmp_ge_u32 s{sPC}, 14"), I("s_cbranch_scc1 " + ("L_fin" if OPT['STAMP'] == 3 else "L_end"))]
assert sg > bar_gap[-1] and sg > last_store_gap
ext[g6 + OPT['CA']] += stamp_ins('pre_c0') + [I(t_) for t_ in (
    "s_waitcnt lgkmcnt(0)", f"s_and_b64 s[{sPL}:{sPL+1}], s[{sPL}:{sPL+1}], s[{sPL+2}:{sPL+3}]", f"s_and_b64 s[{sPL+4}:{sPL+5}], s[{sPL+4}:{sPL+5}], s[{sPL+6}:{sPL+7}]",
    f"s_and_b64 s[{sPL}:{sPL+1}], s[{sPL}:{sPL+1}], s[{sPL+4}:{sPL+5}]", f"s_and_b32 s{sPL}, s{sPL}, s{sPL+1}",
    f"s_and_b32 s{sPL}, s{sPL}, 0x01010101", f"s_cmp_eq_u32 s{sPL}, 0x01010101", f"s_cselect_b32 s{sMISS}, 0, {hx(OOB)}",
    f"v_add_u32 v{vFV+2}, s{sMISS}, v{vHS}")] + stamp_ins('chk0')
spread(gloads(0, 2*F0, vFV+2), g6 + OPT['CA'] + 1, g6 + OPT['LA'])
ext[g6 + OPT['PB']] += [I(VPOLL, tag='poll')]

vXF = 68
vAD = 125
seq = [f"v_accvgpr_read_b32 v{vAD}, a{aST+8}"]
for t4 in range(4):
    if t4: seq.append(f"s_mov_b32 s{sSV0 + t4 - 1}, {t4*14336}")
    seq.append(I(f"buffer_load_dwordx2 {v(vXF + t4*2, 2)}, v{vAD}, {srd(sX)}, {'0' if t4 == 0 else 's%d' % (sSV0+t4-1)} offen", tag='xf'))
spread(seq, g6 + 14, g6 + 40)
HX = OPT['HX']; NHG = 16 // HX; NT = 32 // HX
npf = [0]
def pf_addr(nlines, lines_per_row, pitch, k, dst, idx_sgpr, nshare):
    per = nlines // nshare
    s = [f"s_lshl_b32 s{sSO2}, s{sW}, 6", f"s_add_u32 s{sSO2}, s{sSO2}, {k*256}", f"v_add_u32 v{dst}, s{sSO2}, v0",
         f"v_min_u32 v{dst}, {per-1}, v{dst}", f"s_mul_i32 s{sSO2}, s{idx_sgpr}, {per}", f"v_add_u32 v{dst}, s{sSO2}, v{dst}"]
    if lines_per_row is None:
        s += [f"v_lshlrev_b32 v{dst}, 7, v{dst}"]
    else:
        sh = lg(lines_per_row)
        s += [f"v_and_b32 v{vPF}, {lines_per_row-1}, v{dst}", f"v_lshrrev_b32 v{dst}, {sh}, v{dst}",
              f"v_mul_u32_u24 v{dst}, {pitch}, v{dst}", f"v_lshl_add_u32 v{dst}, v{vPF}, 7, v{dst}"]
    return s
def pf_load(srd_b, dst):
    npf[0] += 1
    return I(f"buffer_load_dword a{aST + 10 + npf[0] % 6}, v{dst}, {srd(srd_b)}, 0 offen {OPT['PPF']}", tag='pf')
def pf_seq(srd_b, nlines, lines_per_row, pitch, idx, nshare):
    s = []
    for k in range((nlines // nshare + 255) // 256):
        s += pf_addr(nlines, lines_per_row, pitch, k, vPF+1, idx, nshare) + [pf_load(srd_b, vPF+1)]
    return s
vLQ = 26
def pf_pieces(srd_b, per, unit, idx, extra_base=None, pol=''):
    setup = [f"s_mul_i32 s{sSO2}, s{idx}, {per}", f"v_add_u32 v{vPF+1}, s{sSO2}, v{vLQ}", f"v_mul_u32_u24 v{vPF+1}, {unit}, v{vPF+1}"]
    if extra_base is not None: setup.append(f"v_add_u32 v{vPF+1}, s{extra_base}, v{vPF+1}")
    pcs = []
    for k in range((per + 63)//64):
        npf[0] += 1
        pcs.append([f"s_mov_b32 s{sSO2}, {k*64*unit}", I(f"buffer_load_dword a{aST + 9 + npf[0] % 7}, v{vPF+1}, {srd(srd_b)}, s{sSO2} offen {pol}", tag='pf')])
    return setup, pcs
def pf_run(streams, g0, g1):
    items = []
    for st_ in streams:
        su, pcs = st_
        for k, p_ in enumerate(pcs): items.append((su if k == 0 else []) + p_)
    n = len(items)
    for k, it_ in enumerate(items):
        lo = g0 + (k*(g1-g0))//n
        place(it_, lo, lo + 24)
if OPT['PF']:
    place([f"v_lshrrev_b32 v{vLQ}, 2, v0", f"s_lshl_b32 s{sSO2}, s{sW}, 4", f"v_add_u32 v{vLQ}, s{sSO2}, v{vLQ}"], 100, 130)
    pf_run([pf_pieces(sKK, 2048//(2*NT), 128, sKVI, pol=OPT['PPF']), pf_pieces(sVV, 2048//(2*NT), 128, sKVI, pol=OPT['PPF'])], OPT['PFG'], gap(phase['P4']))
    pf_run([pf_pieces(sWO, 1792//NT, 128, sTL), pf_pieces(sW2, 448, 896, sW2I)], gap(phase['G3_2']), gp1)
    pf_run([pf_pieces(sWS, 256, 128, sCC, sHPF, 'sc1')], gp1 + 2, gap(phase[f'G3_{hs+3}']))

if OPT['FINE'] == 1:
    for p in range(1, 7): phase[f'G4p{p}'] = phase['G4'] + 32*p; blk[phase[f'G4p{p}']] = stamp_ins(f'G4p{p}')
    for kk in range(2, 14, 2): phase[f'G6k{kk}'] = phase['G6'] + 4*kk; blk[phase[f'G6k{kk}']] = stamp_ins(f'G6k{kk}')
if OPT['FINE'] == 2:
    for f_ in range(16, 336, 16):
        if f_ not in (phase['P2'],): blk[f_] = stamp_ins(f'f{f_}')
if OPT['STAMP'] or OPT['WAITAT']:
    for nm in ('P0', 'P2', 'P4', 'G2_0', 'G2_4', 'G2_8', 'G2_12', 'G6'):
        blk.setdefault(phase[nm], [])
        blk[phase[nm]] = stamp_ins(nm) + blk[phase[nm]]

E(f"""
s_cmp_ge_u32 s2, 256
s_cbranch_scc1 L_end
s_load_dwordx16 s[4:19], s[0:1], 0
s_load_dwordx4 s[20:23], s[0:1], 64
s_load_dwordx2 s[24:25], s[0:1], 80
""")
if OPT['STAMP'] or OPT['WAITAT']: E("s_memtime s[98:99]\ns_memrealtime s[100:101]")
E(f"""
v_lshrrev_b32 v{vT0}, 6, v0
v_and_b32 v0, 63, v0
s_and_b32 s{sT0}, s2, 7
v_readfirstlane_b32 s{sW}, v{vT0}
s_lshr_b32 s{sT1}, s2, 3
s_and_b32 s{sT2}, s{sT0}, {NHG-1}
s_lshl_b32 s{sT2}, s{sT2}, {lg(HX)}
s_and_b32 s{sHD}, s{sT1}, {HX-1}
s_add_u32 s{sHD}, s{sHD}, s{sT2}
s_lshr_b32 s{sT2}, s{sT0}, {lg(NHG)}
s_lshl_b32 s{sT2}, s{sT2}, {lg(NT)}
s_lshr_b32 s{sTL}, s{sT1}, {lg(HX)}
s_add_u32 s{sT}, s{sTL}, s{sT2}
s_lshl_b32 s{sWB}, s{sW}, 12
""")
CODE_LINES = 512
E(f"s_lshr_b32 s{sCNT}, s2, 3")
for t_ in pf_addr(CODE_LINES, None, 0, 0, vR+80, sCNT, 32): E(t_)
E(f"""
s_getpc_b64 s[26:27]
L_pc:
global_load_dword v{vR+90}, v{vR+80}, s[26:27]
""")
E(f"""
v_lshrrev_b32 v{vT3}, 3, v0
v_and_b32 v{vT4}, 7, v0
v_lshrrev_b32 v{vT1}, 1, v{vT3}
v_xor_b32 v{vT1}, v{vT1}, v{vT4}
v_lshlrev_b32 v{vT1}, 4, v{vT1}
v_xor_b32 v{vT2}, 64, v{vT1}
s_lshl_b32 s{sT1}, s{sT}, 2
s_add_u32 s{sT1}, s{sT1}, s{sW}
s_mul_i32 s{sT1}, s{sT1}, {32*896}
v_mul_u32_u24 v{vT0}, 896, v{vT3}
v_add_u32 v{vT0}, s{sT1}, v{vT0}
v_add_u32 v{vXD}, v{vT0}, v{vT1}
v_add_u32 v{vXD+1}, v{vT0}, v{vT2}
v_add_u32 v{vXD+2}, {2*6144}, v{vXD}
v_add_u32 v{vXD+3}, {3*6144}, v{vXD+1}
v_add_u32 v{vXD+1}, 6144, v{vXD+1}
s_mov_b32 m0, s{sWB}
s_and_b32 s{sROT}, s{sHD}, {HX-1}
s_mul_i32 s{sROT}, s{sROT}, {7 if OPT['XREV'] else 0}
s_lshr_b32 s{sROT}, s{sROT}, {lg(HX)}
s_lshl_b32 s{sSTEP}, s{sROT}, 7
s_mov_b32 s{sX+2}, {2048*896}
s_mov_b32 s{sX+3}, 0x00020000
s_waitcnt lgkmcnt(0)
s_mov_b32 s{sX}, s4
s_mov_b32 s{sX+1}, s5
""")
PST('karg')
def mk_srd(b, plo, off_sgpr, size):
    if off_sgpr is None:
        E(f"s_mov_b32 s{b}, s{plo}\ns_mov_b32 s{b+1}, s{plo+1}")
    else:
        E(f"s_add_u32 s{b}, s{plo}, s{off_sgpr}\ns_addc_u32 s{b+1}, s{plo+1}, 0")
    E(f"s_mov_b32 s{b+2}, {size}\ns_mov_b32 s{b+3}, 0x00020000")
xdma = []
for tg in range(2):
    for q in range(7):
        if q or tg:
            xdma += [I(f"s_add_u32 m0, s{sWB}, {q*SLOT}"), I(f"s_add_u32 s{sSTEP}, s{sSTEP}, 128"), I(f"s_sub_u32 s{sSST}, s{sSTEP}, 896"), I(f"s_min_u32 s{sSTEP}, s{sSTEP}, s{sSST}")]
        for rb in (2*tg, 2*tg+1):
            xdma.append(I(f"buffer_load_dwordx4 v{vXD+rb}, {srd(sX)}, s{sSTEP} offen offset:{rb*1024} {OPT['PX']} lds", tag=('x', tg, q)))
def xissue(n):
    while n > 0 and xdma:
        i_ = xdma.pop(0); P.ins.append(i_)
        if i_.cls == 'vmem': n -= 1
xissue(OPT['XFIRST'])
E(f"s_lshl_b32 s{sT0}, s{sHD}, 9\ns_sub_u32 s{sT2}, {448*8192}, s{sT0}")
mk_srd(sWQ, 10, sT0, f"s{sT2}")
wqpf = [I(t_) if isinstance(t_, str) else t_ for t_ in pf_seq(sWQ, 448*OPT['WQP'], OPT['WQP'], 8192, sTL, NT)] if OPT['PF'] else []
if OPT['WQE']: P.ins += wqpf; wqpf = []
else: P.ins += wqpf[:-1]; wqpf = wqpf[-1:]
xissue(OPT['XSEC'])
PST('x_first')
mk_srd(sOUT, 20, None, 2048*896)
E(f"""
s_lshl_b32 s{sT0}, s{sW}, 7
v_lshlrev_b32 v{vKD}, 9, v{vT3}
v_add_u32 v{vVD}, s{sT0}, v{vKD}
v_add_u32 v{vKD}, v{vVD}, v{vT1}
v_add_u32 v{vKD+1}, v{vVD}, v{vT2}
v_add_u32 v{vKD+2}, {2*3072}, v{vKD}
v_add_u32 v{vKD+3}, {3*3072}, v{vKD+1}
v_add_u32 v{vKD+1}, 3072, v{vKD+1}
v_and_b32 v{vT0}, 6, v{vT3}
v_xor_b32 v{vT0}, v{vT0}, v{vT4}
v_lshlrev_b32 v{vT0}, 4, v{vT0}
v_add_u32 v{vVD}, v{vVD}, v{vT0}
""")
for rb in range(1, 4): E(f"v_add_u32 v{vVD+rb}, {3072*rb}, v{vVD}")
E(f"""
v_and_b32 v{vT1}, 4, v{vT3}
v_add_u32 v{vT1}, v{vT1}, v{vT3}
v_lshl_add_u32 v{vWQ}, v{vT1}, 13, v{vT0}
v_mul_u32_u24 v{vT1}, 3584, v{vT1}
v_add_u32 v{vW1D}, v{vT1}, v{vT0}
""")
for rb in range(1, 4):
    rr = 16*(rb & 1) + 4*(rb >> 1)
    E(f"v_add_u32 v{vW1D+rb}, {rr*3584 - 1024*rb}, v{vW1D}\nv_add_u32 v{vWQ+rb}, {rr*8192 - 1024*rb}, v{vWQ}")
E(f"""
s_lshl_b32 s{sT1}, s{sHD}, 8
s_sub_u32 s{sT2}, {448*3584}, s{sT1}
s_cmp_lt_u32 s{sHD}, 14
s_cselect_b32 s{sT2}, s{sT2}, 0
s_cselect_b32 s{sT1}, s{sT1}, 0
""")
mk_srd(sW1, 16, sT1, f"s{sT2}")
E(f"s_lshr_b32 s{sT0}, s{sHD}, 1\ns_lshl_b32 s{sT0}, s{sT0}, 20\ns_add_u32 s{sT0}, s{sT0}, {1536*512}")
mk_srd(sKK, 6, sT0, 262144)
mk_srd(sVV, 8, sT0, 262144)
E(f"s_mul_i32 s{sT0}, s{sHD}, {256*896}")
mk_srd(sWO, 12, sT0, 256*896)
E(f"""
s_lshl_b32 s{sCNT}, s{sROT}, 1
s_lshr_b32 s{sPC}, s2, 3
s_and_b32 s{sPC}, s{sPC}, 15
s_cmp_ge_u32 s{sPC}, 7
s_cselect_b32 s{sT3}, 1, 0
s_mul_i32 s{sT1}, s{sT3}, 7
s_sub_u32 s{sT1}, s{sPC}, s{sT1}
s_lshl_b32 s{sT0}, s{sT1}, 7
s_sub_u32 s{sT2}, {1792*896}, s{sT0}
s_cmp_lt_u32 s{sPC}, 14
s_cselect_b32 s{sT2}, s{sT2}, 0
s_cselect_b32 s{sT0}, s{sT0}, 0
""")
mk_srd(sW2, 18, sT0, f"s{sT2}")
if OPT['WSOFF']:
    E(f"s_mov_b32 s{sT0}, {hx(OPT['WSOFF'] << 20)}")
    mk_srd(sWS, 24, sT0, WS_SIZE)
else:
    mk_srd(sWS, 24, None, WS_SIZE)
def qtab(rho):
    E(f"""
s_add_u32 s{sT0}, s{sW}, {4*rho}
s_mul_i32 s{sT2}, s{sT0}, 4682
s_lshr_b32 s{sT2}, s{sT2}, 16
s_mul_i32 s{sSO}, s{sT2}, 14
s_sub_u32 s{sT0}, s{sT0}, s{sSO}
s_add_u32 s{sT0}, s{sT0}, s{sCNT}
s_sub_u32 s{sSO}, s{sT0}, 14
s_min_u32 s{sT0}, s{sT0}, s{sSO}
s_lshl_b32 s{sT2}, s{sT2}, 7
""")
    if rho < 7: E(f"s_mul_i32 s{sSO}, s{sT0}, {32*3584}\ns_add_u32 s{sW1T+rho}, s{sSO}, s{sT2}")
    E(f"s_lshl_b32 s{sT0}, s{sT0}, 18\ns_add_u32 s{sQT+rho}, s{sT0}, s{sT2}")
for rho in range(14): qtab(rho)
E(f"""
v_mul_u32_u24 v{vT1}, 896, v{vT3}
v_add_u32 v{vT1}, v{vT1}, v{vT0}
s_mul_i32 s{sT0}, s{sW}, {32*896}
s_mul_i32 s{sT2}, s{sW}, {448*896}
""")
for rb in range(4):
    if rb: E(f"v_add_u32 v{vT1}, 6144, v{vT1}")
    E(f"v_add_u32 v{vT2}, s{sT0}, v{vT1}\nv_accvgpr_write_b32 a{aST+rb}, v{vT2}\nv_add_u32 v{vT2}, s{sT2}, v{vT1}\nv_accvgpr_write_b32 a{aST+4+rb}, v{vT2}")
E(f"""
v_lshlrev_b32 v{vL16}, 4, v0
v_lshrrev_b32 v{vT0}, 2, v0
v_lshlrev_b32 v{vT1}, 7, v{vT0}
v_and_b32 v{vT2}, 3, v0
v_lshl_add_u32 v{vT1}, v{vT2}, 3, v{vT1}
v_bfe_u32 v{vT3}, v0, 3, 2
""")
for u in range(4):
    E(f"""
v_xor_b32 v{vT4}, {u}, v{vT3}
v_lshl_add_u32 v{vTR+u}, v{vT4}, 5, v{vT1}
v_add_u32 v{vTR+4+u}, 0x10000, v{vTR+u}
v_add_u32 v{vTR+8+u}, 0x20000, v{vTR+u}
""")
E(f"""
v_and_b32 v{vT0}, 15, v0
v_lshrrev_b32 v{vT1}, 1, v{vT0}
v_lshrrev_b32 v{vT2}, 4, v0
v_xor_b32 v{vT1}, v{vT1}, v{vT2}
v_lshlrev_b32 v{vT4}, 7, v{vT0}
v_lshl_add_u32 v{vRA}, v{vT1}, 4, v{vT4}
v_xor_b32 v{vRA+1}, 64, v{vRA}
v_add_u32 v{vRA+2}, 0x10000, v{vRA}
v_add_u32 v{vRA+3}, 0x10000, v{vRA+1}
v_add_u32 v{vRA+4}, 0x20000, v{vRA}
v_add_u32 v{vRA+5}, 0x20000, v{vRA+1}
""")
vXR = vR + 72
for i in range(4): E(f"v_add_u32 v{vXR+i}, s{sWB}, v{vRA+i}")
E(f"""
s_and_b32 s{sTC}, s2, 7
s_lshl_b32 s{sTC}, s{sTC}, 1
s_lshr_b32 s{sT0}, s2, 7
s_add_u32 s{sTC}, s{sTC}, s{sT0}
s_lshl_b32 s{sW2I}, s{sT0}, 1
s_add_u32 s{sW2I}, s{sW2I}, s{sT3}
s_lshl_b32 s{sT2}, s{sTC}, 1
s_add_u32 s{sT2}, s{sT2}, s{sT3}
s_lshl_b32 s{sT0}, s{sT2}, 6
v_add_u32 v{vT0}, s{sT0}, v{vT0}
v_mul_u32_u24 v{vT0}, 896, v{vT0}
v_lshl_add_u32 v{vT0}, v{vT2}, 3, v{vT0}
s_lshl_b32 s{sT0}, s{sT1}, 2
s_add_u32 s{sT0}, s{sT0}, s{sW}
s_lshl_b32 s{sSG}, s{sT0}, 5
v_add_u32 v{vT0}, s{sSG}, v{vT0}
v_accvgpr_write_b32 a{aST+8}, v{vT0}
s_lshl_b32 s{sT2}, s{sT2}, 1
s_mul_i32 s{sSG}, s{sT2}, 28
s_add_u32 s{sSG}, s{sSG}, s{sT0}
s_lshl_b32 s{sSG}, s{sSG}, 14
s_lshl_b32 s{sFLP}, s{sT2}, 7
s_add_u32 s{sFLP}, s{sFLP}, {hx(WS_F)}
s_mul_i32 s{sHLD}, s{sT2}, {56*2048}
s_add_u32 s{sHLD}, s{sHLD}, {hx(WS_H)}
s_cmp_lt_u32 s{sPC}, 14
s_cselect_b32 s{sCOOB}, 0, {hx(OOB)}
s_add_u32 s{sHPF}, s{sHLD}, s{sCOOB}
s_mul_i32 s{sT0}, s{sW}, {14*2048}
s_add_u32 s{sHLD}, s{sHLD}, s{sT0}
s_mov_b32 s0, s2
s_mov_b32 s{sCC}, s{sT1}
s_lshl_b32 s{sKVI}, s{sTL}, 1
s_and_b32 s{sT0}, s{sHD}, 1
s_add_u32 s{sKVI}, s{sKVI}, s{sT0}
s_lshl_b32 s{sT1}, s{sT}, 2
s_add_u32 s{sT1}, s{sT1}, s{sW}
s_lshr_b32 s{sFLG}, s{sT1}, 1
s_lshl_b32 s{sFLG}, s{sFLG}, 8
s_and_b32 s{sT2}, s{sT1}, 1
s_lshl_b32 s{sT2}, s{sT2}, 4
s_add_u32 s{sFLG}, s{sFLG}, s{sT2}
s_add_u32 s{sFLG}, s{sFLG}, s{sHD}
s_add_u32 s{sFLG}, s{sFLG}, {hx(WS_F)}
s_mul_i32 s{sHST}, s{sT1}, {56*2048}
s_min_u32 s{sT2}, s{sHD}, 13
s_lshl_b32 s{sT2}, s{sT2}, 13
s_add_u32 s{sHST}, s{sHST}, s{sT2}
s_add_u32 s{sHST}, s{sHST}, {hx(WS_H)}
s_cmp_lt_u32 s{sHD}, 14
s_cselect_b32 s{sT2}, 0, {hx(OOB)}
v_add_u32 v{vHS}, s{sT2}, v{vL16}
v_mov_b32 v{vZ}, 0
v_mov_b32 v{vONE}, 1
""")
PST('addr_done')
xissue(14 - OPT['XFIRST'] - OPT['XSEC'])
P.ins += wqpf
PST('x_issued')
PRODUCER = len(P.ins)
E(f"""
s_lshl_b32 s{sSST}, s{sT}, 2
s_add_u32 s{sSST}, s{sSST}, s{sW}
s_mul_i32 s{sSST}, s{sSST}, {28*16384}
s_cmp_ge_u32 s{sHD}, 7
s_cselect_b32 s{sT3}, 1, 0
s_sub_u32 s{sROT}, s{sHD}, 7
s_min_u32 s{sROT}, s{sROT}, s{sHD}
s_sub_u32 s{sCNT}, s{sROT}, 7
s_min_u32 s{sROT}, s{sROT}, s{sCNT}
s_cmp_lt_u32 s{sHD}, 14
s_cselect_b32 s{sT3}, s{sT3}, s{sHD}
s_cselect_b32 s{sSTEP}, 2048, 0
s_lshl_b32 s{sT3}, s{sT3}, 10
s_add_u32 s{sSST}, s{sSST}, s{sT3}
""")
prod_ins = P.ins[PRODUCER:]; del P.ins[PRODUCER:]
for s_, val in ((sM1, 0x2222222222222222), (sM2, 0xCCCCCCCCCCCCCCCC), (sM3, 0x8888888888888888), (sMD, 0xF0000F0000F0000F)):
    E(f"s_mov_b32 s{s_}, {hx(val)}\ns_mov_b32 s{s_+1}, {hx(val >> 32)}")

vONES = vR + 16
vD1 = vR + 20
vD2 = vR + 28
vLA = vR + 36
for i in range(4): E(f"v_mov_b32 v{vONES+i}, 0x3f803f80")
def rbf(r):
    return [f"v_cvt_pk_bf16_f32 v{r}, v{r}, v{r}", f"v_lshlrev_b32 v{r}, 16, v{r}"]
E(f"s_mov_b32 s{sT0}, {hx(f2u(1.0/448.0))}\ns_mov_b32 s{sT1}, {hx(f2u(1e-5))}\ns_mov_b32 s{sT2}, {hx(f2u(CSCALE))}")
STAMP('pro_done')
vNT = vR + 44
NPRO = OPT['NPRO']
assert len(pro_dma) == NPRO
late = {0: [i_ for d_ in pro_dma[:3] for i_ in d_],
        1: [i_ for d_ in pro_dma[3:] for i_ in d_]
           + [I(f"buffer_store_byte v{vZ}, v{vZ}, {srd(sWS)}, s{sFLG} offen sc1", tag='hst')]}
for tg in range(2):
    def stats(q):
        for ks in (2*q, 2*q+1):
            X = v(xn(ks, tg), 4)
            E(mfma(v(vD1+4*tg, 4), v(vONES, 4), X, "0" if ks == 0 else v(vD1+4*tg, 4)))
            E(mfma(v(vD2+4*tg, 4), X, X, "0" if ks == 0 else v(vD2+4*tg, 4)))
    for q in range(7):
        P.wait_vm_tag([('x', tg, q)])
        for ks in (2*q, 2*q+1):
            ad = q*SLOT + tg*2048
            E(f"ds_read_b128 {v(xn(ks,tg),4)}, v{vXR + (ad >> 16)*2 + (ks & 1)} offset:{ad & 0xffff}", tag=('xr', q))
        if tg == 0: xissue(2)
        if q > 1:
            P.wait_lgkm_tag([('xr', q-2)]); stats(q-2)
    if tg == 0: P.ins += prod_ins
    for q in (5, 6):
        P.wait_lgkm_tag([('xr', q)]); stats(q)
    STAMP(f'x{tg}_arrived')
    d = vD2 + 4*tg; m = vD1 + 4*tg; t = m + 1; L = vLA + 4*tg
    s = [f"v_cndmask_b32 v{d}, v{d}, v{d+1}, s[{sM1}:{sM1+1}]",
         f"v_cndmask_b32 v{d+2}, v{d+2}, v{d+3}, s[{sM3}:{sM3+1}]",
         f"v_mul_f32 v{m}, s{sT0}, v{m}",
         f"v_cndmask_b32 v{d}, v{d}, v{d+2}, s[{sM2}:{sM2+1}]",
         f"v_cndmask_b32 v{d}, 0, v{d}, s[{sMD}:{sMD+1}]"]
    s += allred(d, t, "v_add_f32")
    s += [f"v_mul_f32 v{d}, s{sT0}, v{d}",
          f"v_fma_f32 v{d}, -v{m}, v{m}, v{d}",
          f"v_max_f32 v{d}, 0, v{d}"]
    s += interleave(rbf(m), rbf(d))
    s += [f"v_add_f32 v{d}, s{sT1}, v{d}"] + rbf(d) + [f"v_sqrt_f32 v{d}, v{d}"] + rbf(d)
    s += [f"v_rcp_f32 v{d}, v{d}", f"v_mul_f32 v{d}, s{sT2}, v{d}",
          f"v_cvt_pk_bf16_f32 v{d}, v{d}, v{d}",
          f"v_and_b32 v{L}, 0xffff, v{d}", f"v_lshlrev_b32 v{L+1}, 16, v{d}",
          f"v_mul_f32 v{L+2}, -v{m}, v{L+1}"]
    for t_ in s: E(t_)
    k = 0
    pend = []
    lt = late[tg]
    for ks in range(14):
        if tg == 1 and ks == 10:
            P.ins += lt; lt = []
            P.wait_vm_tag(first_need)
            E("s_barrier")
            for f in range(D): P.ins += frag_reads(f)
        for r in range(4):
            x_ = xn(ks, tg) + r
            t = vNT + 2*(k % 8); k += 1
            E(f"v_dot2_f32_bf16 v{t}, v{x_}, v{L}, v{L+2}\nv_dot2_f32_bf16 v{t+1}, v{x_}, v{L+1}, v{L+2}")
            pend.append(f"v_cvt_pk_bf16_f32 v{x_}, v{t}, v{t+1}")
            if len(pend) > 2: E(pend.pop(0))
            if lt and (k % 3 == 0 or lt[0].cls != 'vmem'): P.ins.append(lt.pop(0))
    for t_ in pend: E(t_)
    P.ins += lt
if OPT['DUMP'] == 'xn':
    P.ins += dump([v(xn(ks, tg), 4) for ks in range(14) for tg in range(2)])

P.ins.append(mk_wait_lg([('f', f) for f in range(4)]))
est = 0
for g in range(NF):
    if g in blk: P.ins += blk[g]
    for h, m_ in enumerate(MF[g]):
        gp = G0[g] + h
        P.ins.append(I(m_))
        P.ins += pre[gp] + rds[gp] + ext[gp]
        est += max(16, gtime(pre[gp] + rds[gp] + ext[gp]))
print("estimated main-stream cycles", est, "ideal", 16*NG, file=sys.stderr)

STAMP('g6_done')
def fs(t4, w_): return facc(t4, w_)
vSEL = 44
vSA = 52
STAMP('pre_c1')
P.wait_vm_tag(['poll'])
E(f"v_cmp_gt_u32 vcc, 3, v{vPOLL}\ns_cbranch_vccnz L_spin1\nL_spin1_ret:\ns_cmp_lg_u32 s{sMISS}, 0\ns_cbranch_scc1 L_redo\nL_redo_ret:")
STAMP('chk1')
gl2 = gloads(2*F0, 16, vHS)
n2 = OPT['N2']
P.ins += gl2[:n2]
E(f"""
v_add_u32 v{vT1}, s{sWB}, v{vL16}
s_lshl_b32 s{sT0}, s{sW}, 14
v_add_u32 v{vT2}, s{sT0}, v{vL16}
""")
for u in range(4):
    for t4 in range(4):
        E(f"ds_write_b128 v{vT1}, {v(facc(u, t4), 4)} offset:{u*SLOT + t4*1024}")
E(f"""
v_mov_b32 v{vSEL}, 0
v_mov_b32 v{vSEL+1}, 0
v_mov_b32 v{vSEL+4}, 0
v_mov_b32 v{vSEL+5}, 0
v_mov_b32 v{vT0}, 0x3f80
v_mov_b32 v{vSEL+2}, 0x3f800000
s_or_b64 s[16:17], s[{sM1}:{sM1+1}], s[{sM3}:{sM3+1}]
v_cndmask_b32 v{vT0}, v{vT0}, v{vSEL+2}, s[16:17]
v_cndmask_b32 v{vT0}, 0, v{vT0}, s[{sMD}:{sMD+1}]
s_mov_b64 s[16:17], s[{sM2}:{sM2+1}]
v_cndmask_b32 v{vSEL+2}, v{vT0}, 0, s[16:17]
v_cndmask_b32 v{vSEL+3}, 0, v{vT0}, s[16:17]
s_mov_b32 s{sT0}, {hx(f2u(1.0/CSCALE))}
s_mov_b32 s{sT2}, {hx(f2u(-16.0))}
""")
E("s_waitcnt lgkmcnt(0)\ns_barrier")
for t4 in range(4):
    for w_ in range(4):
        E(f"ds_read_b128 {v(fs(t4, w_), 4)}, v{vT2} offset:{w_*4096 + t4*1024}")
def smf(rl, sl):
    r = []
    for tg in range(2):
        d = v(vSA + (rl*2+tg)*4, 4)
        r.append(mfma(d, v(vSEL + (2 if tg == 0 else 0), 4), greg(rl, sl), "0" if sl == 0 else d))
    return r
val = []
for t4 in range(4):
    b0, b1, b2, b3 = (fs(t4, w_) for w_ in range(4))
    for r in range(4): val += [f"v_add_f32 v{b0+r}, v{b0+r}, v{b1+r}", f"v_add_f32 v{b2+r}, v{b2+r}, v{b3+r}"]
    for r in range(4): val.append(f"v_add_f32 v{b0+r}, v{b0+r}, v{b2+r}")
    for r in range(4): val.append(f"v_mul_f32 v{b1+r}, s{sT2}, v{b0+r}")
    for r in range(4): val.append(f"v_exp_f32 v{b1+r}, v{b1+r}")
    for r in range(4): val.append(f"v_mul_f32 v{b0+r}, s{sT0}, v{b0+r}")
    for r in range(4): val.append(f"v_add_f32 v{b1+r}, 1.0, v{b1+r}")
    for r in range(4): val.append(f"v_rcp_f32 v{b1+r}, v{b1+r}")
    for r in range(4): val.append(f"v_mul_f32 v{b0+r}, v{b0+r}, v{b1+r}")
P.ins += gl2[n2:]
ms = []
for sq in range(0, 2*F0, 2):
    for rl in range(2):
        ms.append(('w', [('g', rl, sq+1)]))
        for sl in range(sq, sq+2): ms += smf(rl, sl)
per = (len(val) + 8*F0 - 1) // (8*F0)
for m_ in ms:
    if isinstance(m_, tuple): P.wait_vm_tag(m_[1]); continue
    E(m_)
    for _ in range(per):
        if val: E(val.pop(0))
for t_ in val: E(t_)
for t4 in range(4):
    b2 = fs(t4, 2); xr = vXF + t4*2
    E(f"""
v_lshlrev_b32 v{b2}, 16, v{xr}
v_and_b32 v{b2+1}, 0xffff0000, v{xr}
v_lshlrev_b32 v{b2+2}, 16, v{xr+1}
v_and_b32 v{b2+3}, 0xffff0000, v{xr+1}
""")
STAMP('g_done')
for sq in range(2*F0, 16, 2):
    for rl in range(2):
        for sl in range(sq, sq+2):
            for m_ in smf(rl, sl): E(m_)
for t4 in range(4):
    b0 = fs(t4, 0); b2 = fs(t4, 2)
    for r in range(4): E(f"v_fma_f32 v{b0+r}, v{vSA+t4*4+r}, v{b0+r}, v{b2+r}")
    E(f"v_cvt_pk_bf16_f32 v{b0}, v{b0}, v{b0+1}\nv_cvt_pk_bf16_f32 v{b0+1}, v{b0+2}, v{b0+3}")
    E(f"buffer_store_dwordx2 {v(b0,2)}, v{vAD}, {srd(sOUT)}, {'0' if t4 == 0 else 's%d' % (sSV0+t4-1)} offen")
if OPT['WAITAT']: STAMP('end')
if OPT['STAMP']:
    STAMP('end')
    E(f"""
L_fin:
s_memrealtime s[{sSTMP}:{sSTMP+1}]
s_waitcnt lgkmcnt(0)
v_writelane_b32 v{vSTAMP}, s98, 60
v_writelane_b32 v{vSTAMP}, s100, 61
v_writelane_b32 v{vSTAMP}, s{sSTMP}, 62
s_lshl_b32 s{sT0}, s0, 2
s_add_u32 s{sT0}, s{sT0}, s{sW}
s_lshl_b32 s{sT0}, s{sT0}, 8
s_add_u32 s{sT0}, s{sT0}, {hx(WS_DBG)}
v_lshlrev_b32 v{vT0}, 2, v0
buffer_store_dword v{vSTAMP}, v{vT0}, {srd(sWS)}, s{sT0} offen
""")
E("L_end:\ns_endpgm")
main_ins, log, stats_ = resolve(P.ins)
print("main", stats_, file=sys.stderr)
if OPT['LOG']:
    for l in log: print("  ", l, file=sys.stderr)

Q = Prog(); E = Q.emit
SPIN_MAX = 1 << 17
def spin(label, load, want, cmp):
    E(f"""
{label}:
s_mov_b32 s{sCNT}, {SPIN_MAX}
{label}_loop:
s_sleep 1
{load}
s_waitcnt vmcnt(0)
v_cmp_{cmp}_u32 vcc, {want}, v{vPOLL}
s_sub_u32 s{sCNT}, s{sCNT}, 1
s_cmp_eq_u32 s{sCNT}, 0
s_cbranch_scc1 {label}_ret
s_cbranch_vccnz {label}_loop
s_branch {label}_ret
""")
spin("L_spinh", f"s_lshl_b32 s{sT0}, s{sTC}, 4\nv_mov_b32 v{vT0}, s{sT0}\nglobal_load_dword v{vPOLL}, v{vT0}, {DBGP} sc1", 16, "gt")
spin("L_spin1", VPOLL, 3, "gt")
E("L_redo:\ns_waitcnt vmcnt(0)")
Q.ins += gloads(0, 2*F0, vHS)
E("s_waitcnt vmcnt(0)\ns_branch L_redo_ret")
MISC = [c['lo'] for c in chunks if c['name'] == 'V_15'][0]
fK, fS, fP, fA, fV, fR, fM = 44, 76, 108, 116, 117, 121, 102
E(f"""
L_exact:
s_waitcnt vmcnt(0) lgkmcnt(0)
s_nop 15
s_mov_b32 s{sSV0}, m0
v_and_b32 v{fA}, 15, v0
v_lshlrev_b32 v{fA}, 9, v{fA}
v_and_b32 v{fM}, 48, v0
v_add_u32 v{fA}, v{fA}, v{fM}
s_lshl_b32 s{sSV1}, s{sW}, 7
s_add_u32 s{sSV2}, s{sWB}, {MISC}
""")
for i in range(4):
    E(f"v_subrev_u32 v{fV+i}, s{sSV1}, v{vVD+i}\nv_add_u32 v{fR+i}, s{sSV2}, v{vTR+i}")
E(f"v_mov_b32 v{fM}, 0xff800000\nv_mov_b32 v{fM+1}, 0xff800000\ns_mov_b32 s{sSV1}, 0")
def ktile(kt, cinit):
    for ks in range(8):
        E(f"buffer_load_dwordx4 {v(fK+4*ks,4)}, v{fA}, {srd(sKK)}, s{sSV1} offen offset:{ks*64}")
    E(f"s_add_u32 s{sSV1}, s{sSV1}, 8192\ns_waitcnt vmcnt(0)")
    for ks in range(8):
        for tg in range(2):
            d = v(fS + tg*8 + kt*4, 4)
            E(mfma(d, v(fK+4*ks, 4), a(qf(ks, tg), 4), (cinit(tg) if ks == 0 else d)))
    E("s_nop 15")
E("L_exact_p1:")
ktile(0, lambda tg: "0")
for tg in range(2):
    b = fS + tg*8
    E(f"v_max3_f32 v{fM+tg}, v{fM+tg}, v{b}, v{b+1}\nv_max3_f32 v{fM+tg}, v{fM+tg}, v{b+2}, v{b+3}")
E(f"s_cmp_lt_u32 s{sSV1}, 262144\ns_cbranch_scc1 L_exact_p1")
for tg in range(2):
    for t_ in allred(fM+tg, fM+2, "v_max_f32"): E(t_)
    for r in range(4): E(f"v_sub_f32 v{vC+4*tg+r}, 0, v{fM+tg}")
for r in range(128): E(f"v_mov_b32 v{vO+r}, 0")
E(f"v_mov_b32 v{vLS}, 0\nv_mov_b32 v{vLS+1}, 0\ns_mov_b32 s{sSV1}, 0\ns_add_u32 m0, s{sWB}, {MISC}\ns_nop 3")
E("L_exact_p2:")
E(f"s_mov_b32 s{sSV2}, s{sSV1}")
ktile(0, lambda tg: v(vC+4*tg, 4))
ktile(1, lambda tg: v(vC+4*tg, 4))
for r in range(16): E(f"v_exp_f32 v{fS+r}, v{fS+r}")
for r in range(16): E(f"v_add_f32 v{vLS + r//8}, v{vLS + r//8}, v{fS+r}")
for r in range(8): E(f"v_cvt_pk_bf16_f32 v{fP+r}, v{fS+2*r}, v{fS+2*r+1}")
for cb in range(4):
    for rb in range(4):
        E(f"buffer_load_dwordx4 v{fV+rb}, {srd(sVV)}, s{sSV2} offen offset:{rb*1024} lds")
    E(f"s_add_u32 s{sSV2}, s{sSV2}, 128\ns_waitcnt vmcnt(0)")
    for u in range(4):
        E(f"ds_read_b64_tr_b16 {v(fK+4*u,2)}, v{fR+u}\nds_read_b64_tr_b16 {v(fK+4*u+2,2)}, v{fR+u} offset:2048")
    E("s_waitcnt lgkmcnt(0)")
    for u in range(4):
        for tg in range(2):
            d = v(Oreg(cb*4+u, tg), 4)
            E(mfma(d, v(fK+4*u, 4), v(fP+4*tg, 4), d))
    E("s_nop 7")
E(f"s_cmp_lt_u32 s{sSV1}, 262144\ns_cbranch_scc1 L_exact_p2")
for tg in range(2):
    for t_ in allred(vLS+tg, fM+2, "v_add_f32"): E(t_)
    E(f"v_rcp_f32 v{vRC+tg}, v{vLS+tg}")
E("s_nop 15")
for ks in range(8):
    for t_ in ocvt(ks): E(t_)
E(f"s_mov_b32 m0, s{sSV0}\ns_nop 15\ns_branch L_exact_ret")
sub_ins, log2, stats2 = resolve(Q.ins)

hdr = open(os.path.join(os.path.dirname(os.path.abspath(__file__)), 'header.txt')).read()
txt = hdr + f"""; @launch grid=(256,1,1) block=(256,1,1) lds={LDS_BYTES}
.amdgcn_target "amdgcn-amd-amdhsa--gfx950"
.text
.globl {NAME}_kernel
.p2align 8
.type {NAME}_kernel,@function
{NAME}_kernel:
""" + render(main_ins) + render(sub_ins) + f"""L_pad:
    s_endpgm
.if (L_pad - L_pc) < {CODE_LINES*128}
.fill (({CODE_LINES*128} - (L_pad - L_pc)) / 4) + 16, 4, 0xbf810000
.endif
.section .rodata,"a"
.p2align 6
.amdhsa_kernel {NAME}_kernel
  .amdhsa_next_free_vgpr 512
  .amdhsa_next_free_sgpr 102
  .amdhsa_accum_offset 256
  .amdhsa_group_segment_fixed_size 0
  .amdhsa_kernarg_size 88
  .amdhsa_user_sgpr_count 2
  .amdhsa_user_sgpr_kernarg_segment_ptr 1
  .amdhsa_system_sgpr_workgroup_id_x 1
.end_amdhsa_kernel
"""
if OPT['STAMP']: txt += '; STAMPS ' + ' '.join(stamp_names) + '\n'
open(sys.argv[1], 'w').write(txt)
```

```python
import sys, os, math, struct
from asmlib import *

NAME = "recurrent_scan__sliding_block_cached__dense_activation_relu__prompt"
OPT = dict(D=8, NA=12, HX=2, BAR=2, STAMP=0, PST=0, DUMP='', SIGG=60, FORCEFB=0, LOG=0,
           SST='sc1', HLD='sc1', HST='sc1', GLD='sc1', NOSST=0, NOHLD=0, NOHST=0,
           PX='', PW1='', PWQ='', PKV='', PWO='', PW2='', PF=1, PPF='', OST='', WSOFF=0, HSTEP=7, XREV=0, NPRO=4, WAITAT='', WAITT=0, WAITWG=-1, PADS=1, HSIG=150, HPF=0, PF0=0, PF1=14, CHAIN=1, WB=0, WBD=60, BIG=1, DSTART=0, W2ROT=1, NOPF2=2, HEND=40, XPF=1, L0N=1, X1=28, BARK=36, NOG=0, NOFLAG=0, W2G=-15, W2S=8, F0=3, F1=5, L0=0, W2PRE=6, H2A=1, H2B=100, SA=264, PA=410, CA=70, LA=140, SC=30, PB=150, N2=15, G1N=10, XFIRST=4, XSEC=0, WQE=2, OEARLY=2, H2SPAN=60, PFG=170, WQP=2, FINE=0, RT=0, SIMPLE=0, SSP=0)
for a_ in sys.argv[2:]:
    k_, v_ = a_.split('=')
    OPT[k_] = v_.replace('+', ' ') if isinstance(OPT[k_], str) else int(v_)
D = OPT['D']; NA = OPT['NA']

RING_SLOTS = 10
SLOT = 16384
LDS_BYTES = 163840
WS_S = 0
WS_H = 0x1C00000
WS_F = 0x2300000
WS_DBG = 0x2400000
WS_SIZE = 0x8000000 if (OPT['DUMP'] or OPT['STAMP']) else 0x2400000
OOB = 0x7f000000
CSCALE = math.log2(math.e) / 16.0
def f2u(x): return struct.unpack('<I', struct.pack('<f', x))[0]
def hx(x): return f"0x{x & 0xffffffff:x}"

sX, sW1, sWQ, sKK, sVV, sWO, sW2, sWS, sOUT = 28, 32, 36, 40, 44, 48, 52, 56, 60
def srd(b): return f"s[{b}:{b+3}]"
sW, sHD, sT, sWB, sSO = 64, 65, 66, 67, 68
sT0, sT1, sT2, sT3 = 69, 70, 71, 3
sQT = 72
sHST, sHLD, sSST, sSG, sFLG, sFLP, sCNT, sSO2, sTL, sROT, sSTEP, sPC = 86, 87, 88, 89, 90, 91, 92, 93, 94, 95, 96, 97
sTC, sCOOB, sHPF, sW2I, sKVI, sCC = 19, 20, 21, 24, 25, 2
sW1T = 12
sM1, sM2, sM3, sMD = 4, 6, 8, 10
sSV0, sSV1, sSV2 = 12, 13, 14
sSTMP = 26
DBGP = "s[22:23]"
vL16, vHS, vT0, vT1, vT2, vT3, vT4 = 1, 2, 3, 4, 5, 6, 7
vTR = 8
vRA = 20
vPF = 26
vZ, vONE, vPOLL, vSTAMP = 28, 29, 30, 31
vWQ, vKD, vVD, vWOD, vW2D = 32, 36, 40, 32, 36
vXN = 44
vR = 156
vW1D = vR + 64
vXD = vR + 68
vO = 128
vS = 44
vP = 76
vC = 92
vLS = 100
vM = 106
vA4 = 44
vRC = 126
aF, aST, aQ, aH = 0, 48, 64, 128

def v(i, n=1): return f"v{i}" if n == 1 else f"v[{i}:{i+n-1}]"
def a(i, n=1): return f"a{i}" if n == 1 else f"a[{i}:{i+n-1}]"
def mfma(d, A, B, C): return f"v_mfma_f32_16x16x32_bf16 {d}, {A}, {B}, {C}"
def I(t, tag=None): return Ins(t, tag)
lg = lambda x: int(math.log2(x))

P = Prog()
E = P.emit

nstamp = [0]
stamp_names = []
def stamp_ins(name=''):
    if OPT['WAITAT'] and name == OPT['WAITAT']:
        return [I(t_) for t_ in ((f"s_cmp_lg_u32 s0, {OPT['WAITWG']}", "s_cbranch_scc1 L_end") if OPT['WAITWG'] >= 0 else ()) + ("L_dw:", f"s_memrealtime s[{sSTMP}:{sSTMP+1}]", "s_waitcnt lgkmcnt(0)", f"s_sub_u32 s{sSTMP}, s{sSTMP}, s100",
                                 f"s_cmp_lt_u32 s{sSTMP}, {OPT['WAITT']}", "s_cbranch_scc1 L_dw")]
    if not OPT['STAMP']: return []
    if OPT['STAMP'] == 3 and name not in ('end', 'G4', 'wb0', 'wb1', 'G6', 'st_done', 'chk0', 'chk1', 'chk2', 'sigA', 'sigB', 'g6_done', 'g_done', 'pre_c2', 'pre_c1', 'pre_c0'): return []
    if OPT['STAMP'] == 2 and name not in ('end', 'G4', 'P0', 'G2_0', 'g6_done'): return []
    n = nstamp[0]; nstamp[0] += 1; stamp_names.append(name)
    return [I(f"{'s_memrealtime' if OPT['RT'] else 's_memtime'} s[{sSTMP}:{sSTMP+1}]"), I("s_waitcnt lgkmcnt(0)"), I(f"v_writelane_b32 v{vSTAMP}, s{sSTMP}, {n}")]
def STAMP(name=''):
    P.ins += stamp_ins(name)
def PST(name):
    if OPT['PST']: STAMP(name)

frags = []
chunks = []
def add_chunk(name, lo, size, dma, private=False):
    chunks.append(dict(name=name, lo=lo, hi=lo+size, dma=dma, private=private, first=None, last=None)); return len(chunks)-1
def add_frag(kind, rs, rb, addr, mf, ch):
    frags.append(dict(kind=kind, rb=rb, rs=rs, addr=addr, mf=mf, chunk=ch))
    c = chunks[ch]
    if c['first'] is None: c['first'] = len(frags)-1
    c['last'] = len(frags)-1
def frag_reads(f):
    fr = frags[f]; A = aF + 4*(f % NA)
    def rd(op, dst, addr):
        win = addr >> 16
        return I(f"{op} {dst}, v{fr['rb'] + win*fr['rs']} offset:{addr & 0xffff}", tag=('f', f))
    if fr['kind'] == 'tr':
        return [rd("ds_read_b64_tr_b16", a(A, 2), fr['addr']), rd("ds_read_b64_tr_b16", a(A+2, 2), fr['addr'] + 2048)]
    return [rd("ds_read_b128", a(A, 4), fr['addr'])]
POL = {sW1: 'PW1', sWQ: 'PWQ', sKK: 'PKV', sVV: 'PKV', sWO: 'PWO', sW2: 'PW2'}
ring_pos = [7]
def ring_round(name, srd_b, vbase, so_text, private=False):
    slot = ring_pos[0] % RING_SLOTS; ring_pos[0] += 1
    lo = slot*SLOT
    tag = ('c', len(chunks))
    dma = [I(f"s_add_u32 m0, s{sWB}, {lo}")]
    if so_text.startswith('s') or so_text == '0': so = so_text
    elif so_text.startswith('+'):
        dma.append(I(f"s_add_u32 s{sSO}, {so_text[1:]}")); so = f"s{sSO}"
    else:
        dma.append(I(f"s_mov_b32 s{sSO}, {so_text}")); so = f"s{sSO}"
    for rb in range(4):
        dma.append(I(f"buffer_load_dwordx4 v{vbase+rb}, {srd(srd_b)}, {so} offen offset:{rb*1024} {OPT[POL[srd_b]]} lds", tag=tag))
    return add_chunk(name, lo, SLOT, dma, private)

phase = {}
def xn(ks, tg): return vXN + (ks*2 + tg)*4
def accp(pp, kq, tg, par): return vR + (pp % 2)*32 + ((kq*2 + tg)*2 + par)*4
for pp in range(6):
    phase[f'P{pp}'] = len(frags)
    for ks in range(14):
        qi = 14*pp + ks
        if qi % 4 == 0:
            r_ = qi // 4
            blk_, rp = r_ // 7, r_ % 7
            R_ = 32*(8192 if blk_ < 2 else 3584); sb = sW1T + (0 if blk_ < 2 else 2); cb_ = 256 if blk_ == 1 else 0
            so_ = f"+s{sb+1}, {cb_}" if rp == 3 else f"+s{sb}, {(4*rp*R_ if rp < 3 else (4*rp-14)*R_ + 128) + cb_}"
            ch = ring_round(f"wq_{r_}", sWQ, vWQ, so_) if r_ < 14 else ring_round(f"w1_{r_-14}", sW1, vW1D, so_)
        for u in range(4):
            mf = (lambda A, pp=pp, ks=ks, u=u: [mfma(v(accp(pp, u >> 1, tg, u & 1), 4), A, v(xn(ks, tg), 4), "0" if ks == 0 else v(accp(pp, u >> 1, tg, u & 1), 4)) for tg in range(2)])
            add_frag('tr', 4, vTR + u, chunks[ch]['lo'] + (qi % 4)*4096, mf, ch)
def qf(kq, tg): return aQ + (kq*2 + tg)*4
def Sreg(st, tg, kt): return vS + (st % 2)*16 + tg*8 + kt*4
def Preg(st, tg): return vP + (st % 2)*8 + tg*4
def Oreg(d, tg): return vO + (((d >> 1)*2 + tg)*2 + (d & 1))*4
def G2(st):
    phase[f'G2_{st}'] = len(frags)
    ch = ring_round(f"K_{st}", sKK, vKD, str(st*16384))
    order = [(kt, ks) for kt in range(2) for ks in range(8)]
    for kt, ks in order:
        def mf(A, kt=kt, ks=ks):
            r = []
            for tg in range(2):
                c = v(Sreg(st, tg, kt), 4)
                if ks == 0: c = "0" if st < 1 else v(vC + 4*tg, 4)
                r.append(mfma(v(Sreg(st, tg, kt), 4), A, a(qf(ks, tg), 4), c))
            return r
        add_frag('b128', 2, vRA + (ks & 1), chunks[ch]['lo'] + (ks >> 1)*4096 + kt*2048, mf, ch)
def G3(st):
    phase[f'G3_{st}'] = len(frags)
    ch = ring_round(f"V_{st}", sVV, vVD, str(st*16384))
    for d in range(16):
        mf = (lambda A, d=d: [mfma(v(Oreg(d, tg), 4), A, v(Preg(st, tg), 4), "0" if st == 0 else v(Oreg(d, tg), 4)) for tg in range(2)])
        add_frag('tr', 4, vTR + (d & 3), chunks[ch]['lo'] + (d >> 2)*4096, mf, ch)
G2(0)
for st in range(15):
    G2(st + 1); G3(st)
G3(15)
phase['G4'] = len(frags)
def acc4(p, u, tg): return vA4 + u*8 + tg*4
def Opk(ks, tg): return vO + (ks*2 + tg)*8
for p in range(7):
    chs = [ring_round(f"wo_{p}_{h_}", sWO, vWOD, f"s{sQT+p}" if h_ == 0 else f"+s{sQT+p}, {4*32*896}") for h_ in range(2)]
    for u in range(4):
        for ks in range(8):
            ch = chs[ks // 4]
            mf = (lambda A, p=p, ks=ks, u=u: [mfma(v(acc4(p, u, tg), 4), A, v(Opk(ks, tg), 4), "0" if ks == 0 else v(acc4(p, u, tg), 4)) for tg in range(2)])
            add_frag('tr', 4, vTR + u, chunks[ch]['lo'] + (ks % 4)*4096, mf, ch)
phase['G6'] = len(frags)
def hole(i): return vO + 8*i + 4
def hreg(kk, t4):
    i = kk*4 + t4
    if i < 32: return a(aH + 4*i, 4)
    if i < 48: return a(aQ + 4*(i-32), 4)
    return v(hole(i-48), 4)
def facc(u, t4):
    i = u*4 + t4
    return vA4 + 32 + 4*i if i < 8 else hole(i)
vTP = 108
for kk in range(14):
    ch = ring_round(f"w2_{kk}", sW2, vW2D, str(kk*32*896), private=True)
    for u in range(4):
        mf = (lambda A, kk=kk, u=u: [mfma(v(facc(u, t4), 4), A, hreg(kk, t4), "0" if kk == 0 else v(facc(u, t4), 4)) for t4 in range(4)])
        add_frag('tr', 4, vTP + u, chunks[ch]['lo'], mf, ch)
NF = len(frags)
phase['END'] = NF

MF = [fr['mf'](a(aF + 4*(f % NA), 4)) for f, fr in enumerate(frags)]
if OPT['CHAIN']:
    for f0 in range(0, NF, 4):
        nm_ = chunks[frags[f0]['chunk']]['name']
        if nm_.startswith('K_') or nm_.startswith('wo_'):
            fl = [MF[f0+k_][tg] for tg in range(2) for k_ in range(4)]
            for k_ in range(4): MF[f0+k_] = fl[2*k_:2*k_+2]
G0 = [0]
for f in range(NF): G0.append(G0[-1] + len(MF[f]))
NG = G0[-1]
def gap(f): return G0[max(0, min(f, NF))]
pre = [[] for _ in range(NG)]
rds = [[] for _ in range(NG)]
ext = [[] for _ in range(NG)]
blk = {}
for g in range(NF):
    if g + D < NF:
        r = frag_reads(g + D)
        n = len(MF[g])
        rds[G0[g]].append(r[0])
        if len(r) > 1: rds[G0[g] + n//2].append(r[1])
def cost(i):
    if i.cls in ('ds',): return 8
    if i.cls == 'vmem': return 24 if 'store' in i.op and 'x4' in i.op else 8
    if i.cls in ('trans', 'perm'): return 8
    if i.cls == 'label': return 0
    return 4
def gtime(items):
    t = 4
    for i in items:
        if i.cls in VALU_LIKE: t = max(t, 8)
        t += cost(i)
    return t
def fits(gp, i): return gtime(pre[gp] + rds[gp] + ext[gp] + [i]) <= 16
def place(seq, g0, g1=None):
    seq = [I(s) if isinstance(s, str) else s for s in seq]
    g1 = NG if g1 is None else min(g1, NG)
    gp = g0; n = len(seq)
    for k, ins in enumerate(seq):
        bound = max(min(g0 + ((k + 1) * (g1 - g0)) // n - 1, g1 - 1), gp)
        best = None
        for q in range(gp, bound + 1):
            if fits(q, ins): best = q; break
        if best is None:
            best = min(range(gp, bound + 1), key=lambda q: (gtime(pre[q] + rds[q] + ext[q] + [ins]), q))
        ext[best].append(ins)
        gp = best
    return gp
def spread(seq, g0, g1):
    n = len(seq); cur = g0
    for k, ins in enumerate(seq):
        lo = max(g0 + (k*(g1-g0))//n, cur); hi = max(g0 + ((k+1)*(g1-g0))//n, lo+1)
        cur = place([ins], lo, hi)
    return cur

shared = [c for c in range(len(chunks)) if not chunks[c]['private']]
bar_frags = [chunks[c]['first'] for k_, c in enumerate(shared) if (k_ - 1) % OPT['BAR'] == 0 or k_ == 0]
bar_frags += [phase['G6'], phase['G6'] + D + 1]
bar_frags = sorted(set(bar_frags))
bar_gap = []
first_need = None
for bi, f0 in enumerate(bar_frags):
    f1 = bar_frags[bi+1] if bi + 1 < len(bar_frags) else NF
    need = [('c', c) for c in shared if f0 <= chunks[c]['first'] < f1]
    if f0 == 0: first_need = need; continue
    gp = gap(f0 - D); bar_gap.append(gp)
    if need: ext[gp-1].append(mk_wait_vm(need))
    pre[gp].append(I("s_barrier"))
for c in range(len(chunks)):
    if chunks[c]['private']:
        ext[gap(chunks[c]['first'] - D) - 1].append(mk_wait_vm([('c', c)]))
for g in range(4, NF, 4):
    ext[gap(g) - 1].append(mk_wait_lg([('f', f) for f in range(g, min(g+4, NF))]))
def earliest_gap(c):
    e = -1
    C = chunks[c]
    for c2 in range(c):
        B = chunks[c2]
        if B['hi'] <= C['lo'] or C['hi'] <= B['lo']: continue
        if B['private'] and C['private']: e = max(e, gap(B['last'] + 1))
        else: e = max(e, [gp for gp in bar_gap if gp >= gap(B['last'] + 1)][0] + 1)
    return e
pro_dma = []
cur = OPT['DSTART']
for c in range(len(chunks)):
    e = earliest_gap(c)
    if e < 0 and c < OPT['NPRO']:
        pro_dma.append(chunks[c]['dma']); continue
    if chunks[c]['name'].startswith('w2_') and int(chunks[c]['name'][3:]) >= OPT['W2PRE']: e = max(e, gap(phase['G6']) + OPT['W2G'])
    g0 = max(e, cur)
    span = 30
    if g0 > e + 8: span = 20
    if g0 >= gap(phase['G6'] - D): span = OPT['W2S']
    seq = list(chunks[c]['dma'])
    if chunks[c]['name'] == 'wo_0_0': seq = [I(f"v_accvgpr_read_b32 v{vWOD+i}, a{aST+i}") for i in range(4)] + seq; wo_first_gap = g0
    if chunks[c]['name'] == 'w2_0': seq = [I(f"v_accvgpr_read_b32 v{vW2D+i}, a{aST+4+i}") for i in range(4)] + seq
    cur = spread(seq, g0, g0 + span)
    need_gap = gap(chunks[c]['first'] - D)
    if OPT['LOG']: print(chunks[c]['name'], g0, cur, need_gap, 'lead', need_gap - cur, file=sys.stderr)
    assert cur < need_gap - 1, (chunks[c]['name'], cur)

seq = []
for p in range(7):
    seq += [f"s_add_u32 s{sT2}, s{sROT}, {p}", f"s_sub_u32 s{sT3}, s{sT2}, 7", f"s_min_u32 s{sT2}, s{sT2}, s{sT3}",
            f"s_lshl_b32 s{sQT+p}, s{sT2}, 7", f"s_lshl_b32 s{sT2}, s{sT2}, 16", f"s_add_u32 s{sQT+7+p}, s{sSST}, s{sT2}",
            f"s_add_u32 s{sSST}, s{sSST}, s{sSTEP}"]
spread(seq, 6, 100)
assert gap(phase['G3_8']) < wo_first_gap
assert OPT['BAR'] == 2
place([f"v_add_u32 v{vTP+i}, s{sWB}, v{vTR+i}" for i in range(12)], gap(phase['G4'] + 8), gap(phase['G4'] + 40))

def hconv(pp):
    s = []
    for kq in range(2):
        for tg in range(2):
            b = accp(pp, kq, tg, 0)
            for r in range(8): s.append(f"v_max_f32 v{b+r}, 0, v{b+r}")
            for r in range(4): s.append(f"v_cvt_pk_bf16_f32 v{b+r}, v{b+2*r}, v{b+2*r+1}")
            if not OPT['NOHST']:
                s.append(I(f"buffer_store_dwordx4 {v(b,4)}, v{vHS}, {srd(sWS)}, s{sHST} offen offset:{kq*2048 + tg*1024} {OPT['HST']}", tag='hst'))
    if pp == 4: s.append(f"s_add_u32 s{sHST}, s{sHST}, 4096")
    return s
place(hconv(4), gap(phase['P5']) + 4, gap(phase['G2_0']) - 4)
def qconv(pp):
    s = []
    for kq in range(2):
        for tg in range(2):
            b = accp(pp, kq, tg, 0)
            s += [f"v_cvt_pk_bf16_f32 v{b+r}, v{b+2*r}, v{b+2*r+1}" for r in range(4)]
            s += [f"v_permlane32_swap_b32 v{b}, v{b+2}", f"v_permlane32_swap_b32 v{b+1}, v{b+3}",
                  f"v_permlane16_swap_b32 v{b}, v{b+2}", f"v_permlane16_swap_b32 v{b+1}, v{b+3}"]
            s += [f"v_accvgpr_write_b32 a{qf(2*pp+kq, tg)+r}, v{b+r}" for r in range(4)]
    return s
for pp in range(4):
    g0 = gap(phase[f'P{pp+1}'])
    place(qconv(pp), g0 + 4, g0 + 2*56 - 4)

def allred(r, t, op):
    return [f"v_mov_b32 v{t}, v{r}", f"v_permlane32_swap_b32 v{r}, v{t}", f"{op} v{r}, v{r}, v{t}",
            f"v_mov_b32 v{t}, v{r}", f"v_permlane16_swap_b32 v{r}, v{t}", f"{op} v{r}, v{r}, v{t}"]
def interleave(*seqs):
    out = []
    for k in range(max(len(s) for s in seqs)):
        for s in seqs:
            if k < len(s): out.append(s[k])
    return out
def svals(st): return [Sreg(st, tg, kt) + r for tg in range(2) for kt in range(2) for r in range(4)]
g0 = gap(phase['G2_0'])
seqs = []
for tg in range(2):
    b = Sreg(0, tg, 0); m = vM + 2*tg; t = m + 1
    s = [f"v_max3_f32 v{m}, v{b}, v{b+1}, v{b+2}", f"v_max_f32 v{m}, v{m}, v{b+3}"] + allred(m, t, "v_max_f32")
    s += [f"v_sub_f32 v{vC+4*tg+r}, 0, v{m}" for r in range(4)]
    seqs.append(s)
seq = interleave(*seqs) + [f"v_mov_b32 v{vLS}, 0", f"v_mov_b32 v{vLS+1}, 0"]
gm = place(seq, g0 + 19, g0 + 31)
def sm_seq(st, sub):
    s = []
    vals = svals(st)
    for k_, r in enumerate(vals):
        tg = k_ // 8
        if sub: s.append(f"v_add_f32 v{r}, v{r}, v{vC+4*tg}")
        s.append(f"v_exp_f32 v{r}, v{r}")
        if k_ % 2 == 1 and k_ >= 3:
            kk = k_ - 3
            s.append(f"v_cvt_pk_bf16_f32 v{Preg(st, kk//8) + (kk % 8)//2}, v{vals[kk]}, v{vals[kk+1]}")
    s.append(f"v_cvt_pk_bf16_f32 v{Preg(st, 1) + 3}, v{vals[14]}, v{vals[15]}")
    return s
def add_seq(st):
    vals = svals(st)
    return interleave([f"v_add_f32 v{vLS}, v{vLS}, v{r}" for r in vals[:8]], [f"v_add_f32 v{vLS+1}, v{vLS+1}, v{r}" for r in vals[8:]])
for st in range(16):
    g3 = gap(phase[f'G3_{st}'])
    if st == 0:
        ge = place(sm_seq(st, True), gap(phase['G2_1']) + 3, g3 - 1)
    elif st < 15:
        gs = gap(phase[f'G2_{st+1}'] - D)
        ge = place(sm_seq(st, False), gs, g3 - 2)
    else:
        ge = place(sm_seq(st, False), gap(phase['G3_14']) + 4, g3 - 2)
    lim = gap(phase[f'G2_{st+2}']) - 2 if st + 2 < 16 else g3 + 14
    ga = place(add_seq(st), ge, lim)
seqs = []
for tg in range(2):
    l = vLS + tg; t = vM + tg
    seqs.append(allred(l, t, "v_add_f32") + [f"v_rcp_f32 v{vRC+tg}, v{l}"])
seq = interleave(*seqs) + [f"v_add_f32 v{vM}, v{vLS}, v{vLS+1}", f"s_mov_b32 s{sT0}, {hx(f2u(2.0**24 if not OPT['FORCEFB'] else 0.5))}", f"v_cmp_ngt_f32 vcc, s{sT0}, v{vM}"]
place(seq, ga, gap(phase['G4']) - 1)

hc = hconv(5)
place(hc[:39], gap(phase['G2_0']) + 3, gap(phase['G2_0']) + 19)
gend = place(hc[39:], gap(phase['G3_0']), gap(phase['G3_0']) + 16)
assert accp(5, 1, 1, 0) >= Oreg(10, 0)
hb = [gp for gp in bar_gap if gp > gend + OPT['HSIG']][0]
ext[hb-1].append(mk_wait_vm(['hst']))
sig = [I(f"s_cmp_lg_u32 s{sW}, 0"), I("s_cbranch_scc1 L_nosig"), I(f"s_lshl_b32 s{sT0}, s{sT}, 4"), I(f"v_mov_b32 v{vPOLL}, s{sT0}"),
       I("s_mov_b64 exec, 1"), I(f"global_atomic_add v{vPOLL}, v{vONE}, {DBGP} sc1"), I("s_mov_b64 exec, -1"), I("L_nosig:")]
sig[5].cls = 'misc'
ext[hb+1] += sig

def dump(regs_list):
    r = [I("s_nop 15"), I(f"s_lshl_b32 s{sT0}, s{sT}, 4"), I(f"s_add_u32 s{sT0}, s{sT0}, s{sHD}"),
         I(f"s_lshl_b32 s{sT0}, s{sT0}, 2"), I(f"s_add_u32 s{sT0}, s{sT0}, s{sW}"),
         I(f"s_mul_i32 s{sT0}, s{sT0}, {32*1024}"), I(f"s_add_u32 s{sT0}, s{sT0}, {hx(WS_DBG)}")]
    for reg in regs_list:
        r.append(I(f"buffer_store_dwordx4 {reg}, v{vL16}, {srd(sWS)}, s{sT0} offen"))
        r.append(I(f"s_add_u32 s{sT0}, s{sT0}, 1024"))
    r.append(I("s_nop 3"))
    return r
def ocvt(ks): return [f"v_cvt_pk_bf16_f32 v{Opk(ks, tg)+r}, v{Opk(ks, tg)+2*r}, v{Opk(ks, tg)+2*r+1}" for tg in range(2) for r in range(4)]
NEARLY = OPT['OEARLY']
g15 = gap(phase['G3_15'])
for ks in range(NEARLY): place(ocvt(ks), g15 + 4*ks + 8, gap(phase['G4']) - 1)
b = stamp_ins('attn_done') + [I("s_cbranch_vccnz L_exact")]
for ks in range(NEARLY, 8): b += [I(t_) for t_ in ocvt(ks)]
b.append(I("L_exact_ret:"))
if OPT['DUMP'] == 'o': b += dump([v(Opk(ks, tg), 4) for ks in range(8) for tg in range(2)])
if OPT['DUMP'] == 'q': b += dump([a(qf(ks, tg), 4) for ks in range(8) for tg in range(2)])
b += stamp_ins('G4')
blk[phase['G4']] = b

def sconv(p, u):
    b = acc4(p, u, 0)
    s = [f"v_mul_f32 v{b+r}, v{vRC + r//4}, v{b+r}" for r in range(8)]
    s += [f"v_cvt_pk_bf16_f32 v{b+r}, v{b+2*r}, v{b+2*r+1}" for r in range(4)]
    if u: s.append(f"s_add_u32 s{sQT+7+p}, s{sQT+7+p}, 16384")
    if not OPT['NOSST']: s.append(I(f"buffer_store_dwordx4 {v(b,4)}, v{vL16}, {srd(sWS)}, s{sQT+7+p} offen {OPT['SST']}", tag=('sst', p)))
    return s
g4 = gap(phase['G4'])
for p in range(7):
    for u in range(4):
        g0 = g4 + 64*p + 16*(u+1)
        gl = place(sconv(p, u), g0 + 3, g0 + (19 if (p, u) != (6, 3) else 10))
last_store_gap = gl
hs = OPT['HSTEP']
gp0 = gap(phase[f'G3_{hs-1}']) - 30
place([f"s_lshl_b32 s{sT0}, s{sTC}, 4", f"v_mov_b32 v{vPOLL}, s{sT0}", I(f"global_load_dword v{vPOLL}, v{vPOLL}, {DBGP} sc1", tag='pollh'),
       f"v_add_u32 v{vHS}, s{sCOOB}, v{vL16}"], gp0, gp0 + 24)
gp1 = gap(phase[f'G3_{hs}'])
ext[gp1] += [mk_wait_vm(['pollh']), I(f"v_cmp_gt_u32 vcc, 16, v{vPOLL}"), I("s_cbranch_vccnz L_spinh"), I("L_spinh_ret:")]
def hloads(k0, k1):
    s = []
    for kk in range(k0, k1, 2):
        for rl in range(2):
            s.append(f"s_add_u32 s{sT0}, s{sHLD}, {rl*56*2048 + kk*2048}")
            for k2 in range(2):
                for tg in range(2):
                    s.append(I(f"buffer_load_dwordx4 {hreg(kk+k2, rl*2+tg)}, v{vHS}, {srd(sWS)}, s{sT0} offen offset:{k2*2048 + tg*1024} {OPT['HLD']}", tag='hld'))
    return s
if not OPT['NOHLD']:
    spread(hloads(0, 8), gap(phase[f"G3_{hs+OPT['HPF']}"]) + 2, gap(phase['G3_15']) - OPT['HEND'])
    spread(hloads(8, 14), g4 + OPT['H2A'], g4 + OPT['H2B'])
g6 = gap(phase['G6'])
vFV = 120
def greg(rl, sl):
    i = sl*2 + rl
    if i < 16: return v(Opk(0, 0) + 8*i, 4)
    return a(aH + (i - 16)*4, 4)
def gloads(s0, s1, va):
    s = []
    for sq in range(s0, s1, 2):
        for rl in range(2):
            s.append(I(f"s_add_u32 s{sT1}, s{sSG}, {rl*28*16384 + sq*1024}"))
            for sl in range(sq, sq+2):
                if not OPT['NOG']: s.append(I(f"buffer_load_dwordx4 {greg(rl, sl)}, v{va}, {srd(sWS)}, s{sT1} offen offset:{(sl-sq)*1024} {OPT['GLD']}", tag=('g', rl, sl)))
    return s
F0 = OPT['F0']
sPL = 32
sMISS = 18
place([f"v_mov_b32 v{vFV}, 1", f"v_mov_b32 v{vFV+1}, 3", f"v_and_b32 v{vFV+3}, 31, v0"], g4 + 100, g4 + 200)
def signal(k, n): return [mk_wait_vm([('sst', p) for p in range(n)]), I(f"buffer_store_byte v{vFV+k}, v{vZ}, {srd(sWS)}, s{sFLG} offen sc1", tag='flag')]
spoll = I(f"s_buffer_load_dwordx8 s[{sPL}:{sPL+7}], {srd(sWS)}, s{sFLP} glc"); spoll.cls = 'misc'
VPOLL = f"buffer_load_ubyte v{vPOLL}, v{vFV+3}, {srd(sWS)}, s{sFLP} offen sc1"
if OPT['WB']:
    def signal(k, n, gp):
        ext[gp - OPT['WBD']] += [mk_wait_vm([('sst', p) for p in range(n)]), I("buffer_wbl2 sc1", tag=('wb', k))] + stamp_ins(f'wb{k}')
        return [mk_wait_vm([('wb', k)]), I(f"buffer_store_byte v{vFV+k}, v{vZ}, {srd(sWS)}, s{sFLG} offen sc1", tag='flag')]
else:
    signal_ = signal
    def signal(k, n, gp): return signal_(k, n)
ext[g4 + OPT['SA']] += signal(0, F0, g4 + OPT['SA']) + stamp_ins('sigA')
ext[g4 + OPT['PA']] += [spoll]
sg = g6 + OPT['SC']
ext[sg] += signal(1, 7, sg) + stamp_ins('st_done') + [I(f"s_cmp_ge_u32 s{sPC}, 14"), I("s_cbranch_scc1 " + ("L_fin" if OPT['STAMP'] == 3 else "L_end"))]
assert sg > bar_gap[-1] and sg > last_store_gap
ext[g6 + OPT['CA']] += stamp_ins('pre_c0') + [I(t_) for t_ in (
    "s_waitcnt lgkmcnt(0)", f"s_and_b64 s[{sPL}:{sPL+1}], s[{sPL}:{sPL+1}], s[{sPL+2}:{sPL+3}]", f"s_and_b64 s[{sPL+4}:{sPL+5}], s[{sPL+4}:{sPL+5}], s[{sPL+6}:{sPL+7}]",
    f"s_and_b64 s[{sPL}:{sPL+1}], s[{sPL}:{sPL+1}], s[{sPL+4}:{sPL+5}]", f"s_and_b32 s{sPL}, s{sPL}, s{sPL+1}",
    f"s_and_b32 s{sPL}, s{sPL}, 0x01010101", f"s_cmp_eq_u32 s{sPL}, 0x01010101", f"s_cselect_b32 s{sMISS}, 0, {hx(OOB)}",
    f"v_add_u32 v{vFV+2}, s{sMISS}, v{vHS}")] + stamp_ins('chk0')
spread(gloads(0, 2*F0, vFV+2), g6 + OPT['CA'] + 1, g6 + OPT['LA'])
ext[g6 + OPT['PB']] += [I(VPOLL, tag='poll')]

vXF = 68
vAD = 125
seq = [f"v_accvgpr_read_b32 v{vAD}, a{aST+8}"]
for t4 in range(4):
    if t4: seq.append(f"s_mov_b32 s{sSV0 + t4 - 1}, {t4*14336}")
    seq.append(I(f"buffer_load_dwordx2 {v(vXF + t4*2, 2)}, v{vAD}, {srd(sX)}, {'0' if t4 == 0 else 's%d' % (sSV0+t4-1)} offen", tag='xf'))
spread(seq, g6 + 14, g6 + 40)
HX = OPT['HX']; NHG = 16 // HX; NT = 32 // HX
npf = [0]
def pf_addr(nlines, lines_per_row, pitch, k, dst, idx_sgpr, nshare):
    per = nlines // nshare
    s = [f"s_lshl_b32 s{sSO2}, s{sW}, 6", f"s_add_u32 s{sSO2}, s{sSO2}, {k*256}", f"v_add_u32 v{dst}, s{sSO2}, v0",
         f"v_min_u32 v{dst}, {per-1}, v{dst}", f"s_mul_i32 s{sSO2}, s{idx_sgpr}, {per}", f"v_add_u32 v{dst}, s{sSO2}, v{dst}"]
    if lines_per_row is None:
        s += [f"v_lshlrev_b32 v{dst}, 7, v{dst}"]
    else:
        sh = lg(lines_per_row)
        s += [f"v_and_b32 v{vPF}, {lines_per_row-1}, v{dst}", f"v_lshrrev_b32 v{dst}, {sh}, v{dst}",
              f"v_mul_u32_u24 v{dst}, {pitch}, v{dst}", f"v_lshl_add_u32 v{dst}, v{vPF}, 7, v{dst}"]
    return s
def pf_load(srd_b, dst):
    npf[0] += 1
    return I(f"buffer_load_dword a{aST + 10 + npf[0] % 6}, v{dst}, {srd(srd_b)}, 0 offen {OPT['PPF']}", tag='pf')
def pf_seq(srd_b, nlines, lines_per_row, pitch, idx, nshare):
    s = []
    for k in range((nlines // nshare + 255) // 256):
        s += pf_addr(nlines, lines_per_row, pitch, k, vPF+1, idx, nshare) + [pf_load(srd_b, vPF+1)]
    return s
vLQ = 26
def pf_pieces(srd_b, per, unit, idx, extra_base=None, pol='', rot=False):
    setup = [f"s_mul_i32 s{sSO2}, s{idx}, {per}", f"v_add_u32 v{vPF+1}, s{sSO2}, v{vLQ}", f"v_mul_u32_u24 v{vPF+1}, {unit}, v{vPF+1}"]
    if extra_base is not None: setup.append(f"v_add_u32 v{vPF+1}, s{extra_base}, v{vPF+1}")
    pcs = []
    for k in range((per + 63)//64):
        npf[0] += 1
        n_ = (per + 63)//64
        if rot and k == 0: so_ = [f"s_lshr_b32 s{sSO2}, s{sTC}, 1", f"s_sub_u32 s{sCNT}, s{sSO2}, {n_}", f"s_min_u32 s{sSO2}, s{sSO2}, s{sCNT}", f"s_mul_i32 s{sSO2}, s{sSO2}, {64*unit}"]
        elif rot: so_ = [f"s_add_u32 s{sSO2}, s{sSO2}, {64*unit}", f"s_sub_u32 s{sCNT}, s{sSO2}, {n_*64*unit}", f"s_min_u32 s{sSO2}, s{sSO2}, s{sCNT}"]
        else: so_ = [f"s_mov_b32 s{sSO2}, {k*64*unit}"]
        pcs.append(so_ + [I(f"buffer_load_dword a{aST + 9 + npf[0] % 7}, v{vPF+1}, {srd(srd_b)}, s{sSO2} offen {pol}", tag='pf')])
    return setup, pcs
def pf_run(streams, g0, g1):
    items = []
    for st_ in streams:
        su, pcs = st_
        for k, p_ in enumerate(pcs): items.append((su if k == 0 else []) + p_)
    n = len(items)
    for k, it_ in enumerate(items):
        lo = g0 + (k*(g1-g0))//n
        place(it_, lo, lo + 24)
if OPT['PF']:
    place([f"v_lshrrev_b32 v{vLQ}, 2, v0", f"s_lshl_b32 s{sSO2}, s{sW}, 4", f"v_add_u32 v{vLQ}, s{sSO2}, v{vLQ}"], 100, 130)
    if not OPT['BIG'] & 2: pf_run([pf_pieces(sKK, 2048//(2*NT), 128, sKVI, pol=OPT['PPF']), pf_pieces(sVV, 2048//(2*NT), 128, sKVI, pol=OPT['PPF'])], OPT['PFG'], gap(phase['P4']))
    if not OPT['NOPF2'] & 1: pf_run([pf_pieces(sWO, 1792//NT, 128, sTL), pf_pieces(sW2, 448, 896, sW2I, rot=OPT['W2ROT'])], gap(phase[f"G3_{OPT['PF0']}"]), gp1 if OPT['PF1'] == 0 else gap(phase[f"G3_{OPT['PF1']}"]))
    vPF += -20
    sSO2 = sT3
    if not OPT['NOPF2'] & 2: pf_run([pf_pieces(sWS, 256, 128, sCC, sHPF, 'sc1')], gp1 + 2, gap(phase[f"G3_{hs+OPT['HPF']}"]) - 20)
    vPF += 20
    sSO2 = 93

if OPT['FINE'] == 1:
    for p in range(1, 7): phase[f'G4p{p}'] = phase['G4'] + 32*p; blk[phase[f'G4p{p}']] = stamp_ins(f'G4p{p}')
    for kk in range(2, 14, 2): phase[f'G6k{kk}'] = phase['G6'] + 4*kk; blk[phase[f'G6k{kk}']] = stamp_ins(f'G6k{kk}')
if OPT['FINE'] == 2:
    for nm in ['P1', 'P3', 'P5'] + [f'G2_{s_}' for s_ in range(1, 16) if s_ % 4] + ['G3_14', 'G3_15']:
        blk[phase[nm]] = stamp_ins(nm)
if OPT['STAMP'] or OPT['WAITAT']:
    for nm in ('P0', 'P2', 'P4', 'G2_0', 'G2_4', 'G2_8', 'G2_12', 'G6'):
        blk.setdefault(phase[nm], [])
        blk[phase[nm]] = stamp_ins(nm) + blk[phase[nm]]

E(f"""
s_cmp_ge_u32 s2, 256
s_cbranch_scc1 L_end
s_load_dwordx16 s[4:19], s[0:1], 0
s_load_dwordx4 s[20:23], s[0:1], 64
s_load_dwordx2 s[24:25], s[0:1], 80
""")
if OPT['STAMP'] or OPT['WAITAT']: E("s_memtime s[98:99]\ns_memrealtime s[100:101]")
E(f"""
v_lshrrev_b32 v{vT0}, 6, v0
v_and_b32 v0, 63, v0
s_and_b32 s{sT0}, s2, 7
v_readfirstlane_b32 s{sW}, v{vT0}
s_lshr_b32 s{sT1}, s2, 3
s_and_b32 s{sT2}, s{sT0}, {NHG-1}
s_lshl_b32 s{sT2}, s{sT2}, {lg(HX)}
s_and_b32 s{sHD}, s{sT1}, {HX-1}
s_add_u32 s{sHD}, s{sHD}, s{sT2}
s_lshr_b32 s{sT2}, s{sT0}, {lg(NHG)}
s_lshl_b32 s{sT2}, s{sT2}, {lg(NT)}
s_lshr_b32 s{sTL}, s{sT1}, {lg(HX)}
s_add_u32 s{sT}, s{sTL}, s{sT2}
s_lshl_b32 s{sWB}, s{sW}, 12
""")
CODE_LINES = 512
E(f"s_lshr_b32 s{sCNT}, s2, 3")
for t_ in pf_addr(CODE_LINES, None, 0, 0, vR+80, sCNT, 32): E(t_)
E(f"""
s_getpc_b64 s[26:27]
L_pc:
global_load_dword v{vR+90}, v{vR+80}, s[26:27]
""")
E(f"""
v_lshrrev_b32 v{vT3}, 3, v0
v_and_b32 v{vT4}, 7, v0
v_lshrrev_b32 v{vT1}, 1, v{vT3}
v_xor_b32 v{vT1}, v{vT1}, v{vT4}
v_lshlrev_b32 v{vT1}, 4, v{vT1}
v_xor_b32 v{vT2}, 64, v{vT1}
s_lshl_b32 s{sT1}, s{sT}, 2
s_add_u32 s{sT1}, s{sT1}, s{sW}
s_mul_i32 s{sT1}, s{sT1}, {32*896}
v_mul_u32_u24 v{vT0}, 896, v{vT3}
v_add_u32 v{vT0}, s{sT1}, v{vT0}
v_add_u32 v{vXD}, v{vT0}, v{vT1}
v_add_u32 v{vXD+1}, v{vT0}, v{vT2}
v_add_u32 v{vXD+2}, {2*6144}, v{vXD}
v_add_u32 v{vXD+3}, {3*6144}, v{vXD+1}
v_add_u32 v{vXD+1}, 6144, v{vXD+1}
s_mov_b32 m0, s{sWB}
s_mov_b32 s{sSO}, 0
v_min_u32 v{vR+82}, 13, v0
v_subrev_u32 v{vR+83}, 7, v{vR+82}
v_min_u32 v{vR+83}, v{vR+83}, v{vR+82}
v_sub_u32 v{vR+82}, v{vR+82}, v{vR+83}
v_lshlrev_b32 v{vR+82}, 11, v{vR+82}
v_lshl_add_u32 v{vR+82}, v{vR+83}, 7, v{vR+82}
s_mul_i32 s{sT2}, s{sHD}, 896
s_add_u32 s{sT2}, s{sT2}, s{sT1}
s_mov_b32 s{sX+2}, {2048*896}
s_mov_b32 s{sX+3}, 0x00020000
s_waitcnt lgkmcnt(0)
s_mov_b32 s{sX}, s4
s_mov_b32 s{sX+1}, s5
""")
PST('karg')
def mk_srd(b, plo, off_sgpr, size):
    if off_sgpr is None:
        E(f"s_mov_b32 s{b}, s{plo}\ns_mov_b32 s{b+1}, s{plo+1}")
    else:
        E(f"s_add_u32 s{b}, s{plo}, s{off_sgpr}\ns_addc_u32 s{b+1}, s{plo+1}, 0")
    E(f"s_mov_b32 s{b+2}, {size}\ns_mov_b32 s{b+3}, 0x00020000")
xdma = []
for tg in range(2):
    for q in range(7):
        if q or tg:
            xdma += [I(f"s_add_u32 m0, s{sWB}, {q*SLOT}"), I(f"s_movk_i32 s{sSO}, {q*128}")]
        for rb in (2*tg, 2*tg+1):
            xdma.append(I(f"buffer_load_dwordx4 v{vXD+rb}, {srd(sX)}, s{sSO} offen offset:{rb*1024} {OPT['PX']} lds", tag=('x', tg, q)))
def xissue(n):
    while n > 0 and xdma:
        i_ = xdma.pop(0); P.ins.append(i_)
        if i_.cls == 'vmem': n -= 1
if OPT['XPF']: E(f"buffer_load_dword a{aST+9}, v{vR+82}, {srd(sX)}, s{sT2} offen", tag='pf')
xissue(OPT['XFIRST'])
E(f"s_lshl_b32 s{sT0}, s{sHD}, 9\ns_sub_u32 s{sT2}, {448*8192}, s{sT0}")
mk_srd(sWQ, 10, sT0, f"s{sT2}")
wqpf = [I(t_) if isinstance(t_, str) else t_ for t_ in pf_seq(sWQ, 448*OPT['WQP'], OPT['WQP'], 8192, sTL, NT)] if OPT['PF'] and OPT['WQP'] else []
if OPT['WQE'] == 1: P.ins += wqpf; wqpf = []
else: P.ins += wqpf[:-1]; wqpf = wqpf[-1:]
xissue(OPT['XSEC'])
PST('x_first')
mk_srd(sOUT, 20, None, 2048*896)
E(f"""
s_lshl_b32 s{sT0}, s{sW}, 7
v_lshlrev_b32 v{vKD}, 9, v{vT3}
v_add_u32 v{vVD}, s{sT0}, v{vKD}
v_add_u32 v{vKD}, v{vVD}, v{vT1}
v_add_u32 v{vKD+1}, v{vVD}, v{vT2}
v_add_u32 v{vKD+2}, {2*3072}, v{vKD}
v_add_u32 v{vKD+3}, {3*3072}, v{vKD+1}
v_add_u32 v{vKD+1}, 3072, v{vKD+1}
v_and_b32 v{vT0}, 6, v{vT3}
v_xor_b32 v{vT0}, v{vT0}, v{vT4}
v_lshlrev_b32 v{vT0}, 4, v{vT0}
v_add_u32 v{vVD}, v{vVD}, v{vT0}
""")
for rb in range(1, 4): E(f"v_add_u32 v{vVD+rb}, {3072*rb}, v{vVD}")
E(f"""
v_and_b32 v{vT1}, 4, v{vT3}
v_add_u32 v{vT1}, v{vT1}, v{vT3}
v_lshl_add_u32 v{vWQ}, v{vT1}, 13, v{vT0}
v_mul_u32_u24 v{vT1}, 3584, v{vT1}
v_add_u32 v{vW1D}, v{vT1}, v{vT0}
""")
for rb in range(1, 4):
    rr = 16*(rb & 1) + 4*(rb >> 1)
    E(f"v_add_u32 v{vW1D+rb}, {rr*3584 - 1024*rb}, v{vW1D}\nv_add_u32 v{vWQ+rb}, {rr*8192 - 1024*rb}, v{vWQ}")
E(f"""
s_lshl_b32 s{sT1}, s{sHD}, 8
s_sub_u32 s{sT2}, {448*3584}, s{sT1}
s_cmp_lt_u32 s{sHD}, 14
s_cselect_b32 s{sT2}, s{sT2}, 0
s_cselect_b32 s{sT1}, s{sT1}, 0
""")
mk_srd(sW1, 16, sT1, f"s{sT2}")
E(f"s_lshr_b32 s{sT0}, s{sHD}, 1\ns_lshl_b32 s{sT0}, s{sT0}, 20\ns_add_u32 s{sT0}, s{sT0}, {1536*512}")
mk_srd(sKK, 6, sT0, 262144)
mk_srd(sVV, 8, sT0, 262144)
E(f"s_mul_i32 s{sT0}, s{sHD}, {256*896}")
mk_srd(sWO, 12, sT0, 256*896)
E(f"""
s_lshr_b32 s{sPC}, s2, 3
s_and_b32 s{sPC}, s{sPC}, 15
s_cmp_ge_u32 s{sPC}, 7
s_cselect_b32 s{sT3}, 1, 0
s_mul_i32 s{sT1}, s{sT3}, 7
s_sub_u32 s{sT1}, s{sPC}, s{sT1}
s_lshl_b32 s{sT0}, s{sT1}, 7
s_sub_u32 s{sT2}, {1792*896}, s{sT0}
s_cmp_lt_u32 s{sPC}, 14
s_cselect_b32 s{sT2}, s{sT2}, 0
s_cselect_b32 s{sT0}, s{sT0}, 0
""")
mk_srd(sW2, 18, sT0, f"s{sT2}")
if OPT['WSOFF']:
    E(f"s_mov_b32 s{sT0}, {hx(OPT['WSOFF'] << 20)}")
    mk_srd(sWS, 24, sT0, WS_SIZE)
else:
    mk_srd(sWS, 24, None, WS_SIZE)
for k_, R_ in ((0, 32*8192), (2, 32*3584)):
    E(f"""
s_mul_i32 s{sW1T+k_}, s{sW}, {R_}
s_cmp_lt_u32 s{sW}, 2
s_mov_b32 s{sT2}, {hx(128 - 2*R_)}
s_cselect_b32 s{sT0}, {12*R_}, s{sT2}
s_add_u32 s{sW1T+k_+1}, s{sW1T+k_}, s{sT0}
""")
E(f"""
v_mul_u32_u24 v{vT1}, 896, v{vT3}
v_add_u32 v{vT1}, v{vT1}, v{vT0}
s_mul_i32 s{sT0}, s{sW}, {32*896}
s_mul_i32 s{sT2}, s{sW}, {448*896}
""")
for rb in range(4):
    if rb: E(f"v_add_u32 v{vT1}, 6144, v{vT1}")
    E(f"v_add_u32 v{vT2}, s{sT0}, v{vT1}\nv_accvgpr_write_b32 a{aST+rb}, v{vT2}\nv_add_u32 v{vT2}, s{sT2}, v{vT1}\nv_accvgpr_write_b32 a{aST+4+rb}, v{vT2}")
E(f"""
v_lshlrev_b32 v{vL16}, 4, v0
v_lshrrev_b32 v{vT0}, 2, v0
v_lshlrev_b32 v{vT1}, 7, v{vT0}
v_and_b32 v{vT2}, 3, v0
v_lshl_add_u32 v{vT1}, v{vT2}, 3, v{vT1}
v_bfe_u32 v{vT3}, v0, 3, 2
""")
for u in range(4):
    E(f"""
v_xor_b32 v{vT4}, {u}, v{vT3}
v_lshl_add_u32 v{vTR+u}, v{vT4}, 5, v{vT1}
v_add_u32 v{vTR+4+u}, 0x10000, v{vTR+u}
v_add_u32 v{vTR+8+u}, 0x20000, v{vTR+u}
""")
E(f"""
v_and_b32 v{vT0}, 15, v0
v_lshrrev_b32 v{vT1}, 1, v{vT0}
v_lshrrev_b32 v{vT2}, 4, v0
v_xor_b32 v{vT1}, v{vT1}, v{vT2}
v_lshlrev_b32 v{vT4}, 7, v{vT0}
v_lshl_add_u32 v{vRA}, v{vT1}, 4, v{vT4}
v_xor_b32 v{vRA+1}, 64, v{vRA}
v_add_u32 v{vRA+2}, 0x10000, v{vRA}
v_add_u32 v{vRA+3}, 0x10000, v{vRA+1}
v_add_u32 v{vRA+4}, 0x20000, v{vRA}
v_add_u32 v{vRA+5}, 0x20000, v{vRA+1}
""")
vXR = vR + 72
for i in range(4): E(f"v_add_u32 v{vXR+i}, s{sWB}, v{vRA+i}")
E(f"""
s_and_b32 s{sTC}, s2, 7
s_lshl_b32 s{sTC}, s{sTC}, 1
s_lshr_b32 s{sT0}, s2, 7
s_add_u32 s{sTC}, s{sTC}, s{sT0}
s_lshl_b32 s{sW2I}, s{sT0}, 1
s_add_u32 s{sW2I}, s{sW2I}, s{sT3}
s_lshl_b32 s{sT2}, s{sTC}, 1
s_add_u32 s{sT2}, s{sT2}, s{sT3}
s_lshl_b32 s{sT0}, s{sT2}, 6
v_add_u32 v{vT0}, s{sT0}, v{vT0}
v_mul_u32_u24 v{vT0}, 896, v{vT0}
v_lshl_add_u32 v{vT0}, v{vT2}, 3, v{vT0}
s_lshl_b32 s{sT0}, s{sT1}, 2
s_add_u32 s{sT0}, s{sT0}, s{sW}
s_lshl_b32 s{sSG}, s{sT0}, 5
v_add_u32 v{vT0}, s{sSG}, v{vT0}
v_accvgpr_write_b32 a{aST+8}, v{vT0}
s_lshl_b32 s{sT2}, s{sT2}, 1
s_mul_i32 s{sSG}, s{sT2}, 28
s_add_u32 s{sSG}, s{sSG}, s{sT0}
s_lshl_b32 s{sSG}, s{sSG}, 14
s_lshl_b32 s{sFLP}, s{sT2}, 7
s_add_u32 s{sFLP}, s{sFLP}, {hx(WS_F)}
s_mul_i32 s{sHLD}, s{sT2}, {56*2048}
s_add_u32 s{sHLD}, s{sHLD}, {hx(WS_H)}
s_cmp_lt_u32 s{sPC}, 14
s_cselect_b32 s{sCOOB}, 0, {hx(OOB)}
s_add_u32 s{sHPF}, s{sHLD}, s{sCOOB}
s_mul_i32 s{sT0}, s{sW}, {14*2048}
s_add_u32 s{sHLD}, s{sHLD}, s{sT0}
s_mov_b32 s0, s2
s_mov_b32 s{sCC}, s{sT1}
s_lshl_b32 s{sKVI}, s{sTL}, 1
s_and_b32 s{sT0}, s{sHD}, 1
s_add_u32 s{sKVI}, s{sKVI}, s{sT0}
s_lshl_b32 s{sT1}, s{sT}, 2
s_add_u32 s{sT1}, s{sT1}, s{sW}
s_lshr_b32 s{sFLG}, s{sT1}, 1
s_lshl_b32 s{sFLG}, s{sFLG}, 8
s_and_b32 s{sT2}, s{sT1}, 1
s_lshl_b32 s{sT2}, s{sT2}, 4
s_add_u32 s{sFLG}, s{sFLG}, s{sT2}
s_add_u32 s{sFLG}, s{sFLG}, s{sHD}
s_add_u32 s{sFLG}, s{sFLG}, {hx(WS_F)}
s_mul_i32 s{sHST}, s{sT1}, {56*2048}
s_min_u32 s{sT2}, s{sHD}, 13
s_lshl_b32 s{sT2}, s{sT2}, 13
s_add_u32 s{sHST}, s{sHST}, s{sT2}
s_add_u32 s{sHST}, s{sHST}, {hx(WS_H)}
s_cmp_lt_u32 s{sHD}, 14
s_cselect_b32 s{sT2}, 0, {hx(OOB)}
v_add_u32 v{vHS}, s{sT2}, v{vL16}
v_mov_b32 v{vZ}, 0
v_mov_b32 v{vONE}, 1
""")
PST('addr_done')
xissue(14 - OPT['XFIRST'] - OPT['XSEC'])
if OPT['WQE'] == 0: P.ins += wqpf; wqpf = []
PST('x_issued')
PRODUCER = len(P.ins)
E(f"""
s_lshl_b32 s{sSST}, s{sT}, 2
s_add_u32 s{sSST}, s{sSST}, s{sW}
s_mul_i32 s{sSST}, s{sSST}, {28*16384}
s_cmp_ge_u32 s{sHD}, 7
s_cselect_b32 s{sT3}, 1, 0
s_sub_u32 s{sROT}, s{sHD}, 7
s_min_u32 s{sROT}, s{sROT}, s{sHD}
s_sub_u32 s{sCNT}, s{sROT}, 7
s_min_u32 s{sROT}, s{sROT}, s{sCNT}
s_cmp_lt_u32 s{sHD}, 14
s_cselect_b32 s{sT3}, s{sT3}, s{sHD}
s_cselect_b32 s{sSTEP}, 2048, 0
s_lshl_b32 s{sT3}, s{sT3}, 10
s_add_u32 s{sSST}, s{sSST}, s{sT3}
""")
prod_ins = []
for s_, val in ((sM1, 0x2222222222222222), (sM2, 0xCCCCCCCCCCCCCCCC), (sM3, 0x8888888888888888), (sMD, 0xF0000F0000F0000F)):
    E(f"s_mov_b32 s{s_}, {hx(val)}\ns_mov_b32 s{s_+1}, {hx(val >> 32)}")

vONES = vR + 16
vD1 = vR + 20
vD2 = vR + 28
vLA = vR + 36
for i in range(4): E(f"v_mov_b32 v{vONES+i}, 0x3f803f80")
def rbf(r):
    return [f"v_cvt_pk_bf16_f32 v{r}, v{r}, v{r}", f"v_lshlrev_b32 v{r}, 16, v{r}"]
E(f"s_mov_b32 s{sT0}, {hx(f2u(1.0/448.0))}\ns_mov_b32 s{sT1}, {hx(f2u(1e-5))}\ns_mov_b32 s{sT2}, {hx(f2u(CSCALE))}")
if OPT['PADS']:
    E(f"""
s_mov_b64 exec, 0
s_cmp_eq_u32 s{sW}, 0
s_cbranch_scc1 L_pg0
s_cmp_eq_u32 s{sW}, 1
s_cbranch_scc1 L_pg1
s_cmp_eq_u32 s{sW}, 2
s_cbranch_scc1 L_pg2
s_branch L_pg3
.p2align 12
L_main:
s_mov_b64 exec, -1
""")
STAMP('pro_done')
vNT = vR + 44
NPRO = OPT['NPRO']
big = []
if OPT['BIG'] & 1:
    t_ = pf_seq(sWQ, 448*2, 2, 8192, sTL, NT); t_[-1] = I(t_[-1].text.replace('offen', 'offen offset:256'), tag='pf'); big += t_
    big += pf_seq(sW1, 448*2, 2, 3584, sTL, NT)
if OPT['BIG'] & 2:
    t_ = pf_seq(sKK, 2048, None, 0, sKVI, 2*NT); big += t_ + [pf_load(sVV, vPF+1)]
big = [I(t_) if isinstance(t_, str) else t_ for t_ in big]
assert len(pro_dma) == NPRO
L0N = OPT['L0N']
late = {0: [i_ for d_ in pro_dma[:L0N] for i_ in d_],
        1: [i_ for d_ in pro_dma[3:] for i_ in d_]
           + big + [I(f"buffer_store_byte v{vZ}, v{vZ}, {srd(sWS)}, s{sFLG} offen sc1", tag='hst')]}
def xreads(tg, q):
    r = [mk_wait_vm([('x', tg, q)])]
    for ks in (2*q, 2*q+1):
        ad = q*SLOT + tg*2048
        r.append(I(f"ds_read_b128 {v(xn(ks,tg),4)}, v{vXR + (ad >> 16)*2 + (ks & 1)} offset:{ad & 0xffff}", tag=('xr', tg, q)))
    return r
def stats(tg, q, fill):
    P.wait_lgkm_tag([('xr', tg, q)])
    for ks in (2*q, 2*q+1):
        X = v(xn(ks, tg), 4)
        for m_ in (mfma(v(vD1+4*tg, 4), v(vONES, 4), X, "0" if ks == 0 else v(vD1+4*tg, 4)), mfma(v(vD2+4*tg, 4), X, X, "0" if ks == 0 else v(vD2+4*tg, 4))):
            E(m_)
            t_ = 0
            while fill and t_ + cost(fill[0]) <= 12:
                t_ += cost(fill[0]); P.ins.append(fill.pop(0))
def scalars(tg):
    d = vD2 + 4*tg; m = vD1 + 4*tg; t = m + 1; L = vLA + 4*tg
    s = [f"v_cndmask_b32 v{d}, v{d}, v{d+1}, s[{sM1}:{sM1+1}]",
         f"v_cndmask_b32 v{d+2}, v{d+2}, v{d+3}, s[{sM3}:{sM3+1}]",
         f"v_mul_f32 v{m}, s{sT0}, v{m}",
         f"v_cndmask_b32 v{d}, v{d}, v{d+2}, s[{sM2}:{sM2+1}]",
         f"v_cndmask_b32 v{d}, 0, v{d}, s[{sMD}:{sMD+1}]"]
    s += allred(d, t, "v_add_f32")
    s += [f"v_mul_f32 v{d}, s{sT0}, v{d}",
          f"v_fma_f32 v{d}, -v{m}, v{m}, v{d}",
          f"v_max_f32 v{d}, 0, v{d}"]
    s += interleave(rbf(m), rbf(d))
    s += [f"v_add_f32 v{d}, s{sT1}, v{d}"] + rbf(d) + [f"v_sqrt_f32 v{d}, v{d}"] + rbf(d)
    s += [f"v_rcp_f32 v{d}, v{d}", f"v_mul_f32 v{d}, s{sT2}, v{d}",
          f"v_cvt_pk_bf16_f32 v{d}, v{d}, v{d}",
          f"v_and_b32 v{L}, 0xffff, v{d}", f"v_lshlrev_b32 v{L+1}, 16, v{d}",
          f"v_mul_f32 v{L+2}, -v{m}, v{L+1}"]
    for t_ in s: E(t_)
def normalize(tg, side):
    L = vLA + 4*tg; k = 0; pend = []
    for ks in range(14):
        for r in range(4):
            x_ = xn(ks, tg) + r
            t = vNT + 2*(k % 8); k += 1
            E(f"v_dot2_f32_bf16 v{t}, v{x_}, v{L}, v{L+2}\nv_dot2_f32_bf16 v{t+1}, v{x_}, v{L+1}, v{L+2}")
            pend.append(f"v_cvt_pk_bf16_f32 v{x_}, v{t}, v{t+1}")
            if len(pend) > 2: E(pend.pop(0))
            P.ins += side.get(k, [])
    for t_ in pend: E(t_)
for q in range(7):
    P.ins += xreads(0, q)
    if q in (0, 3, 6): PST(f'w0{q}')
    xissue(2)
    if q > 1: stats(0, q-2, [])
fill = wqpf + late[0]
stats(0, 5, fill); stats(0, 6, fill)
P.ins += fill
STAMP('x0_arrived')
scalars(0)
X1 = OPT['X1']
normalize(0, {X1 + 4*q: xreads(1, q) for q in range(7)})
PST('ln0_done')
fill = [i_ for d_ in pro_dma[L0N:3] for i_ in d_]
for q in range(7):
    if q == 1: P.wait_lgkm_tag([('xr', 1, 6)]); fill += late[1]
    stats(1, q, fill)
P.ins += fill
STAMP('x1_arrived')
scalars(1)
fr_ = [i_ for f in range(D) for i_ in frag_reads(f)]
side = {OPT['BARK']: [mk_wait_vm(first_need), I("s_barrier")]}
for k_, i_ in enumerate(fr_): side.setdefault(min(OPT['BARK'] + 1 + k_, 56), []).append(i_)
normalize(1, side)
if OPT['DUMP'] == 'xn':
    P.ins += dump([v(xn(ks, tg), 4) for ks in range(14) for tg in range(2)])

P.ins.append(mk_wait_lg([('f', f) for f in range(4)]))
est = 0
for g in range(NF):
    if g in blk: P.ins += blk[g]
    for h, m_ in enumerate(MF[g]):
        gp = G0[g] + h
        P.ins.append(I(m_))
        P.ins += pre[gp] + rds[gp] + ext[gp]
        est += max(16, gtime(pre[gp] + rds[gp] + ext[gp]))
if OPT['LOG']:
    ph = sorted((f_, n_) for n_, f_ in phase.items())
    for (f0_, n_), (f1_, _) in zip(ph, ph[1:]):
        e_ = sum(max(16, gtime(pre[q_] + rds[q_] + ext[q_])) for q_ in range(gap(f0_), gap(f1_)))
        print(f"  phase {n_}: est {e_} ideal {16*(gap(f1_)-gap(f0_))}", file=sys.stderr)
print("estimated main-stream cycles", est, "ideal", 16*NG, file=sys.stderr)

STAMP('g6_done')
def fs(t4, w_): return facc(t4, w_)
vSEL = 44
vSA = 52
STAMP('pre_c1')
P.wait_vm_tag(['poll'])
E(f"v_cmp_gt_u32 vcc, 3, v{vPOLL}\ns_cbranch_vccnz L_spin1\nL_spin1_ret:\ns_cmp_lg_u32 s{sMISS}, 0\ns_cbranch_scc1 L_redo\nL_redo_ret:")
STAMP('chk1')
gl2 = gloads(2*F0, 16, vHS)
n2 = OPT['N2']
P.ins += gl2[:n2]
E(f"""
v_add_u32 v{vT1}, s{sWB}, v{vL16}
s_lshl_b32 s{sT0}, s{sW}, 14
v_add_u32 v{vT2}, s{sT0}, v{vL16}
""")
for u in range(4):
    for t4 in range(4):
        E(f"ds_write_b128 v{vT1}, {v(facc(u, t4), 4)} offset:{u*SLOT + t4*1024}")
E(f"""
v_mov_b32 v{vSEL}, 0
v_mov_b32 v{vSEL+1}, 0
v_mov_b32 v{vSEL+4}, 0
v_mov_b32 v{vSEL+5}, 0
v_mov_b32 v{vT0}, 0x3f80
v_mov_b32 v{vSEL+2}, 0x3f800000
s_or_b64 s[16:17], s[{sM1}:{sM1+1}], s[{sM3}:{sM3+1}]
v_cndmask_b32 v{vT0}, v{vT0}, v{vSEL+2}, s[16:17]
v_cndmask_b32 v{vT0}, 0, v{vT0}, s[{sMD}:{sMD+1}]
s_mov_b64 s[16:17], s[{sM2}:{sM2+1}]
v_cndmask_b32 v{vSEL+2}, v{vT0}, 0, s[16:17]
v_cndmask_b32 v{vSEL+3}, 0, v{vT0}, s[16:17]
s_mov_b32 s{sT0}, {hx(f2u(1.0/CSCALE))}
s_mov_b32 s{sT2}, {hx(f2u(-16.0))}
""")
E("s_waitcnt lgkmcnt(0)\ns_barrier")
for t4 in range(4):
    for w_ in range(4):
        E(f"ds_read_b128 {v(fs(t4, w_), 4)}, v{vT2} offset:{w_*4096 + t4*1024}")
def smf(rl, sl):
    r = []
    for tg in range(2):
        d = v(vSA + (rl*2+tg)*4, 4)
        r.append(mfma(d, v(vSEL + (2 if tg == 0 else 0), 4), greg(rl, sl), "0" if sl == 0 else d))
    return r
val = []
for t4 in range(4):
    b0, b1, b2, b3 = (fs(t4, w_) for w_ in range(4))
    for r in range(4): val += [f"v_add_f32 v{b0+r}, v{b0+r}, v{b1+r}", f"v_add_f32 v{b2+r}, v{b2+r}, v{b3+r}"]
    for r in range(4): val.append(f"v_add_f32 v{b0+r}, v{b0+r}, v{b2+r}")
    for r in range(4): val.append(f"v_mul_f32 v{b1+r}, s{sT2}, v{b0+r}")
    for r in range(4): val.append(f"v_exp_f32 v{b1+r}, v{b1+r}")
    for r in range(4): val.append(f"v_mul_f32 v{b0+r}, s{sT0}, v{b0+r}")
    for r in range(4): val.append(f"v_add_f32 v{b1+r}, 1.0, v{b1+r}")
    for r in range(4): val.append(f"v_rcp_f32 v{b1+r}, v{b1+r}")
    for r in range(4): val.append(f"v_mul_f32 v{b0+r}, v{b0+r}, v{b1+r}")
P.ins += gl2[n2:]
ms = []
for sq in range(0, 2*F0, 2):
    for rl in range(2):
        ms.append(('w', [('g', rl, sq+1)]))
        for sl in range(sq, sq+2): ms += smf(rl, sl)
per = (len(val) + 8*F0 - 1) // (8*F0)
for m_ in ms:
    if isinstance(m_, tuple): P.wait_vm_tag(m_[1]); continue
    E(m_)
    for _ in range(per):
        if val: E(val.pop(0))
for t_ in val: E(t_)
for t4 in range(4):
    b2 = fs(t4, 2); xr = vXF + t4*2
    E(f"""
v_lshlrev_b32 v{b2}, 16, v{xr}
v_and_b32 v{b2+1}, 0xffff0000, v{xr}
v_lshlrev_b32 v{b2+2}, 16, v{xr+1}
v_and_b32 v{b2+3}, 0xffff0000, v{xr+1}
""")
STAMP('g_done')
for sq in range(2*F0, 16, 2):
    for rl in range(2):
        for sl in range(sq, sq+2):
            for m_ in smf(rl, sl): E(m_)
for t4 in range(4):
    b0 = fs(t4, 0); b2 = fs(t4, 2)
    for r in range(4): E(f"v_fma_f32 v{b0+r}, v{vSA+t4*4+r}, v{b0+r}, v{b2+r}")
    E(f"v_cvt_pk_bf16_f32 v{b0}, v{b0}, v{b0+1}\nv_cvt_pk_bf16_f32 v{b0+1}, v{b0+2}, v{b0+3}")
    E(f"buffer_store_dwordx2 {v(b0,2)}, v{vAD}, {srd(sOUT)}, {'0' if t4 == 0 else 's%d' % (sSV0+t4-1)} offen {OPT['OST']}")
if OPT['WAITAT']: STAMP('end')
if OPT['STAMP']:
    STAMP('end')
    E(f"""
L_fin:
s_memrealtime s[{sSTMP}:{sSTMP+1}]
s_waitcnt lgkmcnt(0)
v_writelane_b32 v{vSTAMP}, s98, 60
v_writelane_b32 v{vSTAMP}, s100, 61
v_writelane_b32 v{vSTAMP}, s{sSTMP}, 62
s_lshl_b32 s{sT0}, s0, 2
s_add_u32 s{sT0}, s{sT0}, s{sW}
s_lshl_b32 s{sT0}, s{sT0}, 8
s_add_u32 s{sT0}, s{sT0}, {hx(WS_DBG)}
v_lshlrev_b32 v{vT0}, 2, v0
buffer_store_dword v{vSTAMP}, v{vT0}, {srd(sWS)}, s{sT0} offen
""")
E("L_end:\ns_endpgm")
main_ins, log, stats_ = resolve(P.ins)
print("main", stats_, file=sys.stderr)
if OPT['LOG']:
    for l in log: print("  ", l, file=sys.stderr)

Q = Prog(); E = Q.emit
SPIN_MAX = 1 << 17
def spin(label, load, want, cmp):
    E(f"""
{label}:
s_mov_b32 s{sCNT}, {SPIN_MAX}
{label}_loop:
s_sleep 1
{load}
s_waitcnt vmcnt(0)
v_cmp_{cmp}_u32 vcc, {want}, v{vPOLL}
s_sub_u32 s{sCNT}, s{sCNT}, 1
s_cmp_eq_u32 s{sCNT}, 0
s_cbranch_scc1 {label}_ret
s_cbranch_vccnz {label}_loop
s_branch {label}_ret
""")
spin("L_spinh", f"s_lshl_b32 s{sT0}, s{sTC}, 4\nv_mov_b32 v{vT0}, s{sT0}\nglobal_load_dword v{vPOLL}, v{vT0}, {DBGP} sc1", 16, "gt")
spin("L_spin1", VPOLL, 3, "gt")
E("L_redo:\ns_waitcnt vmcnt(0)")
Q.ins += gloads(0, 2*F0, vHS)
E("s_waitcnt vmcnt(0)\ns_branch L_redo_ret")
MISC = [c['lo'] for c in chunks if c['name'] == 'V_15'][0]
fK, fS, fP, fA, fV, fR, fM = 44, 76, 108, 116, 117, 121, 102
E(f"""
L_exact:
s_waitcnt vmcnt(0) lgkmcnt(0)
s_nop 15
s_mov_b32 s{sSV0}, m0
v_and_b32 v{fA}, 15, v0
v_lshlrev_b32 v{fA}, 9, v{fA}
v_and_b32 v{fM}, 48, v0
v_add_u32 v{fA}, v{fA}, v{fM}
s_lshl_b32 s{sSV1}, s{sW}, 7
s_add_u32 s{sSV2}, s{sWB}, {MISC}
""")
for i in range(4):
    E(f"v_subrev_u32 v{fV+i}, s{sSV1}, v{vVD+i}\nv_add_u32 v{fR+i}, s{sSV2}, v{vTR+i}")
E(f"v_mov_b32 v{fM}, 0xff800000\nv_mov_b32 v{fM+1}, 0xff800000\ns_mov_b32 s{sSV1}, 0")
def ktile(kt, cinit):
    for ks in range(8):
        E(f"buffer_load_dwordx4 {v(fK+4*ks,4)}, v{fA}, {srd(sKK)}, s{sSV1} offen offset:{ks*64}")
    E(f"s_add_u32 s{sSV1}, s{sSV1}, 8192\ns_waitcnt vmcnt(0)")
    for ks in range(8):
        for tg in range(2):
            d = v(fS + tg*8 + kt*4, 4)
            E(mfma(d, v(fK+4*ks, 4), a(qf(ks, tg), 4), (cinit(tg) if ks == 0 else d)))
    E("s_nop 15")
E("L_exact_p1:")
ktile(0, lambda tg: "0")
for tg in range(2):
    b = fS + tg*8
    E(f"v_max3_f32 v{fM+tg}, v{fM+tg}, v{b}, v{b+1}\nv_max3_f32 v{fM+tg}, v{fM+tg}, v{b+2}, v{b+3}")
E(f"s_cmp_lt_u32 s{sSV1}, 262144\ns_cbranch_scc1 L_exact_p1")
for tg in range(2):
    for t_ in allred(fM+tg, fM+2, "v_max_f32"): E(t_)
    for r in range(4): E(f"v_sub_f32 v{vC+4*tg+r}, 0, v{fM+tg}")
for r in range(128): E(f"v_mov_b32 v{vO+r}, 0")
E(f"v_mov_b32 v{vLS}, 0\nv_mov_b32 v{vLS+1}, 0\ns_mov_b32 s{sSV1}, 0\ns_add_u32 m0, s{sWB}, {MISC}\ns_nop 3")
E("L_exact_p2:")
E(f"s_mov_b32 s{sSV2}, s{sSV1}")
ktile(0, lambda tg: v(vC+4*tg, 4))
ktile(1, lambda tg: v(vC+4*tg, 4))
for r in range(16): E(f"v_exp_f32 v{fS+r}, v{fS+r}")
for r in range(16): E(f"v_add_f32 v{vLS + r//8}, v{vLS + r//8}, v{fS+r}")
for r in range(8): E(f"v_cvt_pk_bf16_f32 v{fP+r}, v{fS+2*r}, v{fS+2*r+1}")
for cb in range(4):
    for rb in range(4):
        E(f"buffer_load_dwordx4 v{fV+rb}, {srd(sVV)}, s{sSV2} offen offset:{rb*1024} lds")
    E(f"s_add_u32 s{sSV2}, s{sSV2}, 128\ns_waitcnt vmcnt(0)")
    for u in range(4):
        E(f"ds_read_b64_tr_b16 {v(fK+4*u,2)}, v{fR+u}\nds_read_b64_tr_b16 {v(fK+4*u+2,2)}, v{fR+u} offset:2048")
    E("s_waitcnt lgkmcnt(0)")
    for u in range(4):
        for tg in range(2):
            d = v(Oreg(cb*4+u, tg), 4)
            E(mfma(d, v(fK+4*u, 4), v(fP+4*tg, 4), d))
    E("s_nop 7")
E(f"s_cmp_lt_u32 s{sSV1}, 262144\ns_cbranch_scc1 L_exact_p2")
for tg in range(2):
    for t_ in allred(vLS+tg, fM+2, "v_add_f32"): E(t_)
    E(f"v_rcp_f32 v{vRC+tg}, v{vLS+tg}")
E("s_nop 15")
for ks in range(8):
    for t_ in ocvt(ks): E(t_)
E(f"s_mov_b32 m0, s{sSV0}\ns_nop 15\ns_branch L_exact_ret")
sub_ins, log2, stats2 = resolve(Q.ins)

def sizes_of(ins):
    import subprocess, tempfile, re as re_
    body = [i_ for i_ in ins if i_.cls not in ('label', 'dir')]
    txt_ = '.amdgcn_target "amdgcn-amd-amdhsa--gfx950"\n.text\nL_any:\n' + ''.join('    ' + (re_.sub(r'L_\w+', 'L_any', i_.text) if i_.cls == 'branch' else i_.text) + '\n' for i_ in body)
    d_ = tempfile.mkdtemp()
    open(d_ + '/a.s', 'w').write(txt_)
    subprocess.run(['clang', '-x', 'assembler', '-target', 'amdgcn-amd-amdhsa', '-mcpu=gfx950', '-c', d_ + '/a.s', '-o', d_ + '/a.o'], check=True)
    out_ = subprocess.run(['llvm-objdump', '-d', '--mcpu=gfx950', d_ + '/a.o'], capture_output=True, text=True).stdout
    sz = [4*len(m_.group(1).split()) for m_ in re_.finditer(r'// [0-9A-F]+: ((?:[0-9A-F]{8} ?)+)', out_)]
    assert len(sz) == len(body), (len(sz), len(body))
    return {id(i_): s_ for i_, s_ in zip(body, sz)}
if OPT['PADS']:
    sz = sizes_of(main_ins)
    k0 = [k_ for k_, i_ in enumerate(main_ins) if i_.text == 'L_main:'][0]
    out_ = main_ins[:k0+1]; off = 0; npg = 0
    for i_ in main_ins[k0+1:]:
        if i_.cls not in ('label', 'dir'):
            lo = (npg + 1)*4096
            if off >= lo and (i_.cls == 'mfma' or off + sz[id(i_)] > lo + 56):
                assert off < lo + 64
                out_.append(I(f"L_pg{npg}:")); out_.append(I(f"s_cbranch_execz L_pgn{npg}")); off += 4; npg += 1
            off += sz[id(i_)]
        out_.append(i_)
    for i_ in out_:
        if i_.text.startswith('s_cbranch_execz L_pgn'):
            k_ = int(i_.text.split('L_pgn')[1]) + 4
            i_.text = f"s_cbranch_execz L_pg{k_}" if k_ < npg else "s_cbranch_execz L_main"
    main_ins = out_
    print("code pages", npg, "bytes after L_main", off, file=sys.stderr)
hdr = open(os.path.join(os.path.dirname(os.path.abspath(__file__)), 'header.txt')).read()
txt = hdr + f"""; @launch grid=(256,1,1) block=(256,1,1) lds={LDS_BYTES}
.amdgcn_target "amdgcn-amd-amdhsa--gfx950"
.text
.globl {NAME}_kernel
.p2align 8
.type {NAME}_kernel,@function
{NAME}_kernel:
""" + render(main_ins) + render(sub_ins) + f"""L_pad:
    s_endpgm
.if (L_pad - {"L_main" if OPT["PADS"] else "L_pc"}) < {CODE_LINES*128}
.fill (({CODE_LINES*128} - (L_pad - {"L_main" if OPT["PADS"] else "L_pc"})) / 4) + 16, 4, 0xbf810000
.endif
.section .rodata,"a"
.p2align 6
.amdhsa_kernel {NAME}_kernel
  .amdhsa_next_free_vgpr 512
  .amdhsa_next_free_sgpr 102
  .amdhsa_accum_offset 256
  .amdhsa_group_segment_fixed_size 0
  .amdhsa_kernarg_size 88
  .amdhsa_user_sgpr_count 2
  .amdhsa_user_sgpr_kernarg_segment_ptr 1
  .amdhsa_system_sgpr_workgroup_id_x 1
.end_amdhsa_kernel
"""
if OPT['STAMP']: txt += '; STAMPS ' + ' '.join(stamp_names) + '\n'
open(sys.argv[1], 'w').write(txt)
```

```python
import sys, os, math, struct
from asmlib import *

NAME = "recurrent_scan__sliding_block_cached__dense_activation_relu__prompt"
OPT = dict(D=8, NA=12, HX=2, BAR=2, STAMP=0, PST=0, DUMP='', SIGG=60, FORCEFB=0, LOG=0,
           SST='sc1', HLD='sc1', HST='sc1', GLD='sc1', NOSST=0, NOHLD=0, NOHST=0,
           PX='', PW1='', PWQ='', PKV='', PWO='', PW2='', PF=1, PPF='', OST='', WSOFF=0, HSTEP=7, XREV=0, NPRO=4, WAITAT='', WAITT=0, WAITWG=-1, PADS=1, HSIG=150, HPF=0, PF0=0, PF1=14, CHAIN=1, WB=0, WBD=60, BIG=1, DSTART=0, W2ROT=1, NOPF2=2, HEND=40, XPF=1, L0N=1, X1=28, BARK=36, BARP=2, BARA=2, BAR4=2, SPAN=30, SPAN2=20, NOG=0, NOFLAG=0, W2G=-15, W2S=8, F0=3, F1=5, L0=0, W2PRE=6, H2A=1, H2B=100, SA=240, PA=410, CA=70, LA=140, SC=30, PB=175, N2=15, G1N=10, XFIRST=4, XSEC=0, WQE=2, OEARLY=2, H2SPAN=60, PFG=170, WQP=2, FINE=0, RT=0, SIMPLE=0, SSP=0)
for a_ in sys.argv[2:]:
    k_, v_ = a_.split('=')
    OPT[k_] = v_.replace('+', ' ') if isinstance(OPT[k_], str) else int(v_)
D = OPT['D']; NA = OPT['NA']

RING_SLOTS = 10
SLOT = 16384
LDS_BYTES = 163840
WS_S = 0
WS_H = 0x1C00000
WS_F = 0x2300000
WS_DBG = 0x2400000
WS_SIZE = 0x8000000 if (OPT['DUMP'] or OPT['STAMP']) else 0x2400000
OOB = 0x7f000000
CSCALE = math.log2(math.e) / 16.0
def f2u(x): return struct.unpack('<I', struct.pack('<f', x))[0]
def hx(x): return f"0x{x & 0xffffffff:x}"

sX, sW1, sWQ, sKK, sVV, sWO, sW2, sWS, sOUT = 28, 32, 36, 40, 44, 48, 52, 56, 60
def srd(b): return f"s[{b}:{b+3}]"
sW, sHD, sT, sWB, sSO = 64, 65, 66, 67, 68
sT0, sT1, sT2, sT3 = 69, 70, 71, 3
sQT = 72
sHST, sHLD, sSST, sSG, sFLG, sFLP, sCNT, sSO2, sTL, sROT, sSTEP, sPC = 86, 87, 88, 89, 90, 91, 92, 93, 94, 95, 96, 97
sTC, sCOOB, sHPF, sW2I, sKVI, sCC = 19, 20, 21, 24, 25, 2
sW1T = 12
sM1, sM2, sM3, sMD = 4, 6, 8, 10
sSV0, sSV1, sSV2 = 12, 13, 14
sSTMP = 26
DBGP = "s[22:23]"
vL16, vHS, vT0, vT1, vT2, vT3, vT4 = 1, 2, 3, 4, 5, 6, 7
vTR = 8
vRA = 20
vPF = 26
vZ, vONE, vPOLL, vSTAMP = 28, 29, 30, 31
vWQ, vKD, vVD, vWOD, vW2D = 32, 36, 40, 32, 36
vXN = 44
vR = 156
vW1D = vR + 64
vXD = vR + 68
vO = 128
vS = 44
vP = 76
vC = 92
vLS = 100
vM = 106
vA4 = 44
vRC = 126
aF, aST, aQ, aH = 0, 48, 64, 128

def v(i, n=1): return f"v{i}" if n == 1 else f"v[{i}:{i+n-1}]"
def a(i, n=1): return f"a{i}" if n == 1 else f"a[{i}:{i+n-1}]"
def mfma(d, A, B, C): return f"v_mfma_f32_16x16x32_bf16 {d}, {A}, {B}, {C}"
def I(t, tag=None): return Ins(t, tag)
lg = lambda x: int(math.log2(x))

P = Prog()
E = P.emit

nstamp = [0]
stamp_names = []
def stamp_ins(name=''):
    if OPT['WAITAT'] and name == OPT['WAITAT']:
        return [I(t_) for t_ in ((f"s_cmp_lg_u32 s0, {OPT['WAITWG']}", "s_cbranch_scc1 L_end") if OPT['WAITWG'] >= 0 else ()) + ("L_dw:", f"s_memrealtime s[{sSTMP}:{sSTMP+1}]", "s_waitcnt lgkmcnt(0)", f"s_sub_u32 s{sSTMP}, s{sSTMP}, s100",
                                 f"s_cmp_lt_u32 s{sSTMP}, {OPT['WAITT']}", "s_cbranch_scc1 L_dw")]
    if not OPT['STAMP']: return []
    if OPT['STAMP'] == 3 and name not in ('end', 'G4', 'wb0', 'wb1', 'G6', 'st_done', 'chk0', 'chk1', 'chk2', 'sigA', 'sigB', 'g6_done', 'g_done', 'pre_c2', 'pre_c1', 'pre_c0'): return []
    if OPT['STAMP'] == 2 and name not in ('end', 'G4', 'P0', 'G2_0', 'g6_done'): return []
    n = nstamp[0]; nstamp[0] += 1; stamp_names.append(name)
    return [I(f"{'s_memrealtime' if OPT['RT'] else 's_memtime'} s[{sSTMP}:{sSTMP+1}]"), I("s_waitcnt lgkmcnt(0)"), I(f"v_writelane_b32 v{vSTAMP}, s{sSTMP}, {n}")]
def STAMP(name=''):
    P.ins += stamp_ins(name)
def PST(name):
    if OPT['PST']: STAMP(name)

frags = []
chunks = []
def add_chunk(name, lo, size, dma, private=False):
    chunks.append(dict(name=name, lo=lo, hi=lo+size, dma=dma, private=private, first=None, last=None)); return len(chunks)-1
def add_frag(kind, rs, rb, addr, mf, ch):
    frags.append(dict(kind=kind, rb=rb, rs=rs, addr=addr, mf=mf, chunk=ch))
    c = chunks[ch]
    if c['first'] is None: c['first'] = len(frags)-1
    c['last'] = len(frags)-1
def frag_reads(f):
    fr = frags[f]; A = aF + 4*(f % NA)
    def rd(op, dst, addr):
        win = addr >> 16
        return I(f"{op} {dst}, v{fr['rb'] + win*fr['rs']} offset:{addr & 0xffff}", tag=('f', f))
    if fr['kind'] == 'tr':
        return [rd("ds_read_b64_tr_b16", a(A, 2), fr['addr']), rd("ds_read_b64_tr_b16", a(A+2, 2), fr['addr'] + 2048)]
    return [rd("ds_read_b128", a(A, 4), fr['addr'])]
POL = {sW1: 'PW1', sWQ: 'PWQ', sKK: 'PKV', sVV: 'PKV', sWO: 'PWO', sW2: 'PW2'}
ring_pos = [7]
def ring_round(name, srd_b, vbase, so_text, private=False):
    slot = ring_pos[0] % RING_SLOTS; ring_pos[0] += 1
    lo = slot*SLOT
    tag = ('c', len(chunks))
    dma = [I(f"s_add_u32 m0, s{sWB}, {lo}")]
    if so_text.startswith('s') or so_text == '0': so = so_text
    elif so_text.startswith('+'):
        dma.append(I(f"s_add_u32 s{sSO}, {so_text[1:]}")); so = f"s{sSO}"
    else:
        dma.append(I(f"s_mov_b32 s{sSO}, {so_text}")); so = f"s{sSO}"
    for rb in range(4):
        dma.append(I(f"buffer_load_dwordx4 v{vbase+rb}, {srd(srd_b)}, {so} offen offset:{rb*1024} {OPT[POL[srd_b]]} lds", tag=tag))
    return add_chunk(name, lo, SLOT, dma, private)

phase = {}
def xn(ks, tg): return vXN + (ks*2 + tg)*4
def accp(pp, kq, tg, par): return vR + (pp % 2)*32 + ((kq*2 + tg)*2 + par)*4
for pp in range(6):
    phase[f'P{pp}'] = len(frags)
    for ks in range(14):
        qi = 14*pp + ks
        if qi % 4 == 0:
            r_ = qi // 4
            blk_, rp = r_ // 7, r_ % 7
            R_ = 32*(8192 if blk_ < 2 else 3584); sb = sW1T + (0 if blk_ < 2 else 2); cb_ = 256 if blk_ == 1 else 0
            so_ = f"+s{sb+1}, {cb_}" if rp == 3 else f"+s{sb}, {(4*rp*R_ if rp < 3 else (4*rp-14)*R_ + 128) + cb_}"
            ch = ring_round(f"wq_{r_}", sWQ, vWQ, so_) if r_ < 14 else ring_round(f"w1_{r_-14}", sW1, vW1D, so_)
        for u in range(4):
            mf = (lambda A, pp=pp, ks=ks, u=u: [mfma(v(accp(pp, u >> 1, tg, u & 1), 4), A, v(xn(ks, tg), 4), "0" if ks == 0 else v(accp(pp, u >> 1, tg, u & 1), 4)) for tg in range(2)])
            add_frag('tr', 4, vTR + u, chunks[ch]['lo'] + (qi % 4)*4096, mf, ch)
def qf(kq, tg): return aQ + (kq*2 + tg)*4
def Sreg(st, tg, kt): return vS + (st % 2)*16 + tg*8 + kt*4
def Preg(st, tg): return vP + (st % 2)*8 + tg*4
def Oreg(d, tg): return vO + (((d >> 1)*2 + tg)*2 + (d & 1))*4
def G2(st):
    phase[f'G2_{st}'] = len(frags)
    ch = ring_round(f"K_{st}", sKK, vKD, str(st*16384))
    order = [(kt, ks) for kt in range(2) for ks in range(8)]
    for kt, ks in order:
        def mf(A, kt=kt, ks=ks):
            r = []
            for tg in range(2):
                c = v(Sreg(st, tg, kt), 4)
                if ks == 0: c = "0" if st < 1 else v(vC + 4*tg, 4)
                r.append(mfma(v(Sreg(st, tg, kt), 4), A, a(qf(ks, tg), 4), c))
            return r
        add_frag('b128', 2, vRA + (ks & 1), chunks[ch]['lo'] + (ks >> 1)*4096 + kt*2048, mf, ch)
def G3(st):
    phase[f'G3_{st}'] = len(frags)
    ch = ring_round(f"V_{st}", sVV, vVD, str(st*16384))
    for d in range(16):
        mf = (lambda A, d=d: [mfma(v(Oreg(d, tg), 4), A, v(Preg(st, tg), 4), "0" if st == 0 else v(Oreg(d, tg), 4)) for tg in range(2)])
        add_frag('tr', 4, vTR + (d & 3), chunks[ch]['lo'] + (d >> 2)*4096, mf, ch)
G2(0)
for st in range(15):
    G2(st + 1); G3(st)
G3(15)
phase['G4'] = len(frags)
def acc4(p, u, tg): return vA4 + u*8 + tg*4
def Opk(ks, tg): return vO + (ks*2 + tg)*8
for p in range(7):
    chs = [ring_round(f"wo_{p}_{h_}", sWO, vWOD, f"s{sQT+p}" if h_ == 0 else f"+s{sQT+p}, {4*32*896}") for h_ in range(2)]
    for u in range(4):
        for ks in range(8):
            ch = chs[ks // 4]
            mf = (lambda A, p=p, ks=ks, u=u: [mfma(v(acc4(p, u, tg), 4), A, v(Opk(ks, tg), 4), "0" if ks == 0 else v(acc4(p, u, tg), 4)) for tg in range(2)])
            add_frag('tr', 4, vTR + u, chunks[ch]['lo'] + (ks % 4)*4096, mf, ch)
phase['G6'] = len(frags)
def hole(i): return vO + 8*i + 4
def hreg(kk, t4):
    i = kk*4 + t4
    if i < 32: return a(aH + 4*i, 4)
    if i < 48: return a(aQ + 4*(i-32), 4)
    return v(hole(i-48), 4)
def facc(u, t4):
    i = u*4 + t4
    return vA4 + 32 + 4*i if i < 8 else hole(i)
vTP = 108
for kk in range(14):
    ch = ring_round(f"w2_{kk}", sW2, vW2D, str(kk*32*896), private=True)
    for u in range(4):
        mf = (lambda A, kk=kk, u=u: [mfma(v(facc(u, t4), 4), A, hreg(kk, t4), "0" if kk == 0 else v(facc(u, t4), 4)) for t4 in range(4)])
        add_frag('tr', 4, vTP + u, chunks[ch]['lo'], mf, ch)
NF = len(frags)
phase['END'] = NF

MF = [fr['mf'](a(aF + 4*(f % NA), 4)) for f, fr in enumerate(frags)]
if OPT['CHAIN']:
    for f0 in range(0, NF, 4):
        nm_ = chunks[frags[f0]['chunk']]['name']
        if nm_.startswith('K_') or nm_.startswith('wo_'):
            fl = [MF[f0+k_][tg] for tg in range(2) for k_ in range(4)]
            for k_ in range(4): MF[f0+k_] = fl[2*k_:2*k_+2]
G0 = [0]
for f in range(NF): G0.append(G0[-1] + len(MF[f]))
NG = G0[-1]
def gap(f): return G0[max(0, min(f, NF))]
pre = [[] for _ in range(NG)]
rds = [[] for _ in range(NG)]
ext = [[] for _ in range(NG)]
blk = {}
for g in range(NF):
    if g + D < NF:
        r = frag_reads(g + D)
        n = len(MF[g])
        rds[G0[g]].append(r[0])
        if len(r) > 1: rds[G0[g] + n//2].append(r[1])
def cost(i):
    if i.cls in ('ds',): return 8
    if i.cls == 'vmem': return 24 if 'store' in i.op and 'x4' in i.op else 8
    if i.cls in ('trans', 'perm'): return 8
    if i.cls == 'label': return 0
    return 4
def gtime(items):
    t = 4
    for i in items:
        if i.cls in VALU_LIKE: t = max(t, 8)
        t += cost(i)
    return t
def fits(gp, i): return gtime(pre[gp] + rds[gp] + ext[gp] + [i]) <= 16
def place(seq, g0, g1=None):
    seq = [I(s) if isinstance(s, str) else s for s in seq]
    g1 = NG if g1 is None else min(g1, NG)
    gp = g0; n = len(seq)
    for k, ins in enumerate(seq):
        bound = max(min(g0 + ((k + 1) * (g1 - g0)) // n - 1, g1 - 1), gp)
        best = None
        for q in range(gp, bound + 1):
            if fits(q, ins): best = q; break
        if best is None:
            best = min(range(gp, bound + 1), key=lambda q: (gtime(pre[q] + rds[q] + ext[q] + [ins]), q))
        ext[best].append(ins)
        gp = best
    return gp
def spread(seq, g0, g1):
    n = len(seq); cur = g0
    for k, ins in enumerate(seq):
        lo = max(g0 + (k*(g1-g0))//n, cur); hi = max(g0 + ((k+1)*(g1-g0))//n, lo+1)
        cur = place([ins], lo, hi)
    return cur

shared = [c for c in range(len(chunks)) if not chunks[c]['private']]
def is_bar(k_):
    if k_ == 0: return True
    if k_ < 21: return (k_ - 1) % OPT['BARP'] == 0
    if k_ < 53: return (k_ - 21) % OPT['BARA'] == 0
    return (k_ - 53) % OPT['BAR4'] == 0
bar_frags = [chunks[c]['first'] for k_, c in enumerate(shared) if is_bar(k_)]
bar_frags += [phase['G6'], phase['G6'] + D + 1]
bar_frags = sorted(set(bar_frags))
bar_gap = []
first_need = None
for bi, f0 in enumerate(bar_frags):
    f1 = bar_frags[bi+1] if bi + 1 < len(bar_frags) else NF
    need = [('c', c) for c in shared if f0 <= chunks[c]['first'] < f1]
    if f0 == 0: first_need = need; continue
    gp = gap(f0 - D); bar_gap.append(gp)
    if need: ext[gp-1].append(mk_wait_vm(need))
    pre[gp].append(I("s_barrier"))
for c in range(len(chunks)):
    if chunks[c]['private']:
        ext[gap(chunks[c]['first'] - D) - 1].append(mk_wait_vm([('c', c)]))
for g in range(4, NF, 4):
    ext[gap(g) - 1].append(mk_wait_lg([('f', f) for f in range(g, min(g+4, NF))]))
def earliest_gap(c):
    e = -1
    C = chunks[c]
    for c2 in range(c):
        B = chunks[c2]
        if B['hi'] <= C['lo'] or C['hi'] <= B['lo']: continue
        if B['private'] and C['private']: e = max(e, gap(B['last'] + 1))
        else: e = max(e, [gp for gp in bar_gap if gp >= gap(B['last'] + 1)][0] + 1)
    return e
pro_dma = []
cur = OPT['DSTART']
for c in range(len(chunks)):
    e = earliest_gap(c)
    if e < 0 and c < OPT['NPRO']:
        pro_dma.append(chunks[c]['dma']); continue
    if chunks[c]['name'].startswith('w2_') and int(chunks[c]['name'][3:]) >= OPT['W2PRE']: e = max(e, gap(phase['G6']) + OPT['W2G'])
    g0 = max(e, cur)
    span = OPT['SPAN']
    if g0 > e + 8: span = OPT['SPAN2']
    if g0 >= gap(phase['G6'] - D): span = OPT['W2S']
    seq = list(chunks[c]['dma'])
    if chunks[c]['name'] == 'wo_0_0': seq = [I(f"v_accvgpr_read_b32 v{vWOD+i}, a{aST+i}") for i in range(4)] + seq; wo_first_gap = g0
    if chunks[c]['name'] == 'w2_0': seq = [I(f"v_accvgpr_read_b32 v{vW2D+i}, a{aST+4+i}") for i in range(4)] + seq
    cur = spread(seq, g0, g0 + span)
    need_gap = gap(chunks[c]['first'] - D)
    if not chunks[c]['private']: need_gap = max(gp for gp in bar_gap if gp <= need_gap)
    if OPT['LOG']: print(chunks[c]['name'], g0, cur, need_gap, 'lead', need_gap - cur, file=sys.stderr)
    assert cur < need_gap - 1, (chunks[c]['name'], cur)

seq = []
for p in range(7):
    seq += [f"s_add_u32 s{sT2}, s{sROT}, {p}", f"s_sub_u32 s{sT3}, s{sT2}, 7", f"s_min_u32 s{sT2}, s{sT2}, s{sT3}",
            f"s_lshl_b32 s{sQT+p}, s{sT2}, 7", f"s_lshl_b32 s{sT2}, s{sT2}, 16", f"s_add_u32 s{sQT+7+p}, s{sSST}, s{sT2}",
            f"s_add_u32 s{sSST}, s{sSST}, s{sSTEP}"]
spread(seq, 6, 100)
assert gap(phase['G3_8']) < wo_first_gap
assert OPT['BAR'] == 2
place([f"v_add_u32 v{vTP+i}, s{sWB}, v{vTR+i}" for i in range(12)], gap(phase['G4'] + 8), gap(phase['G4'] + 40))

def hconv(pp):
    s = []
    for kq in range(2):
        for tg in range(2):
            b = accp(pp, kq, tg, 0)
            for r in range(8): s.append(f"v_max_f32 v{b+r}, 0, v{b+r}")
            for r in range(4): s.append(f"v_cvt_pk_bf16_f32 v{b+r}, v{b+2*r}, v{b+2*r+1}")
            if not OPT['NOHST']:
                s.append(I(f"buffer_store_dwordx4 {v(b,4)}, v{vHS}, {srd(sWS)}, s{sHST} offen offset:{kq*2048 + tg*1024} {OPT['HST']}", tag='hst'))
    if pp == 4: s.append(f"s_add_u32 s{sHST}, s{sHST}, 4096")
    return s
place(hconv(4), gap(phase['P5']) + 4, gap(phase['G2_0']) - 4)
def qconv(pp):
    s = []
    for kq in range(2):
        for tg in range(2):
            b = accp(pp, kq, tg, 0)
            s += [f"v_cvt_pk_bf16_f32 v{b+r}, v{b+2*r}, v{b+2*r+1}" for r in range(4)]
            s += [f"v_permlane32_swap_b32 v{b}, v{b+2}", f"v_permlane32_swap_b32 v{b+1}, v{b+3}",
                  f"v_permlane16_swap_b32 v{b}, v{b+2}", f"v_permlane16_swap_b32 v{b+1}, v{b+3}"]
            s += [f"v_accvgpr_write_b32 a{qf(2*pp+kq, tg)+r}, v{b+r}" for r in range(4)]
    return s
for pp in range(4):
    g0 = gap(phase[f'P{pp+1}'])
    place(qconv(pp), g0 + 4, g0 + 2*56 - 4)

def allred(r, t, op):
    return [f"v_mov_b32 v{t}, v{r}", f"v_permlane32_swap_b32 v{r}, v{t}", f"{op} v{r}, v{r}, v{t}",
            f"v_mov_b32 v{t}, v{r}", f"v_permlane16_swap_b32 v{r}, v{t}", f"{op} v{r}, v{r}, v{t}"]
def interleave(*seqs):
    out = []
    for k in range(max(len(s) for s in seqs)):
        for s in seqs:
            if k < len(s): out.append(s[k])
    return out
def svals(st): return [Sreg(st, tg, kt) + r for tg in range(2) for kt in range(2) for r in range(4)]
g0 = gap(phase['G2_0'])
seqs = []
for tg in range(2):
    b = Sreg(0, tg, 0); m = vM + 2*tg; t = m + 1
    s = [f"v_max3_f32 v{m}, v{b}, v{b+1}, v{b+2}", f"v_max_f32 v{m}, v{m}, v{b+3}"] + allred(m, t, "v_max_f32")
    s += [f"v_sub_f32 v{vC+4*tg+r}, 0, v{m}" for r in range(4)]
    seqs.append(s)
seq = interleave(*seqs) + [f"v_mov_b32 v{vLS}, 0", f"v_mov_b32 v{vLS+1}, 0"]
gm = place(seq, g0 + 19, g0 + 31)
def sm_seq(st, sub):
    s = []
    vals = svals(st)
    for k_, r in enumerate(vals):
        tg = k_ // 8
        if sub: s.append(f"v_add_f32 v{r}, v{r}, v{vC+4*tg}")
        s.append(f"v_exp_f32 v{r}, v{r}")
        if k_ % 2 == 1 and k_ >= 3:
            kk = k_ - 3
            s.append(f"v_cvt_pk_bf16_f32 v{Preg(st, kk//8) + (kk % 8)//2}, v{vals[kk]}, v{vals[kk+1]}")
    s.append(f"v_cvt_pk_bf16_f32 v{Preg(st, 1) + 3}, v{vals[14]}, v{vals[15]}")
    return s
def add_seq(st):
    vals = svals(st)
    return interleave([f"v_add_f32 v{vLS}, v{vLS}, v{r}" for r in vals[:8]], [f"v_add_f32 v{vLS+1}, v{vLS+1}, v{r}" for r in vals[8:]])
for st in range(16):
    g3 = gap(phase[f'G3_{st}'])
    if st == 0:
        ge = place(sm_seq(st, True), gap(phase['G2_1']) + 3, g3 - 1)
    elif st < 15:
        gs = gap(phase[f'G2_{st+1}'] - D)
        ge = place(sm_seq(st, False), gs, g3 - 2)
    else:
        ge = place(sm_seq(st, False), gap(phase['G3_14']) + 4, g3 - 2)
    lim = gap(phase[f'G2_{st+2}']) - 2 if st + 2 < 16 else g3 + 14
    ga = place(add_seq(st), ge, lim)
seqs = []
for tg in range(2):
    l = vLS + tg; t = vM + tg
    seqs.append(allred(l, t, "v_add_f32") + [f"v_rcp_f32 v{vRC+tg}, v{l}"])
seq = interleave(*seqs) + [f"v_add_f32 v{vM}, v{vLS}, v{vLS+1}", f"s_mov_b32 s{sT0}, {hx(f2u(2.0**24 if not OPT['FORCEFB'] else 0.5))}", f"v_cmp_ngt_f32 vcc, s{sT0}, v{vM}"]
place(seq, ga, gap(phase['G4']) - 1)

hc = hconv(5)
place(hc[:39], gap(phase['G2_0']) + 3, gap(phase['G2_0']) + 19)
gend = place(hc[39:], gap(phase['G3_0']), gap(phase['G3_0']) + 16)
assert accp(5, 1, 1, 0) >= Oreg(10, 0)
hb = [gp for gp in bar_gap if gp > gend + OPT['HSIG']][0]
ext[hb-1].append(mk_wait_vm(['hst']))
sig = [I(f"s_cmp_lg_u32 s{sW}, 0"), I("s_cbranch_scc1 L_nosig"), I(f"s_lshl_b32 s{sT0}, s{sT}, 4"), I(f"v_mov_b32 v{vPOLL}, s{sT0}"),
       I("s_mov_b64 exec, 1"), I(f"global_atomic_add v{vPOLL}, v{vONE}, {DBGP} sc1"), I("s_mov_b64 exec, -1"), I("L_nosig:")]
sig[5].cls = 'misc'
ext[hb+1] += sig

def dump(regs_list):
    r = [I("s_nop 15"), I(f"s_lshl_b32 s{sT0}, s{sT}, 4"), I(f"s_add_u32 s{sT0}, s{sT0}, s{sHD}"),
         I(f"s_lshl_b32 s{sT0}, s{sT0}, 2"), I(f"s_add_u32 s{sT0}, s{sT0}, s{sW}"),
         I(f"s_mul_i32 s{sT0}, s{sT0}, {32*1024}"), I(f"s_add_u32 s{sT0}, s{sT0}, {hx(WS_DBG)}")]
    for reg in regs_list:
        r.append(I(f"buffer_store_dwordx4 {reg}, v{vL16}, {srd(sWS)}, s{sT0} offen"))
        r.append(I(f"s_add_u32 s{sT0}, s{sT0}, 1024"))
    r.append(I("s_nop 3"))
    return r
def ocvt(ks): return [f"v_cvt_pk_bf16_f32 v{Opk(ks, tg)+r}, v{Opk(ks, tg)+2*r}, v{Opk(ks, tg)+2*r+1}" for tg in range(2) for r in range(4)]
NEARLY = OPT['OEARLY']
g15 = gap(phase['G3_15'])
for ks in range(NEARLY): place(ocvt(ks), g15 + 4*ks + 8, gap(phase['G4']) - 1)
b = stamp_ins('attn_done') + [I("s_cbranch_vccnz L_exact")]
for ks in range(NEARLY, 8): b += [I(t_) for t_ in ocvt(ks)]
b.append(I("L_exact_ret:"))
if OPT['DUMP'] == 'o': b += dump([v(Opk(ks, tg), 4) for ks in range(8) for tg in range(2)])
if OPT['DUMP'] == 'q': b += dump([a(qf(ks, tg), 4) for ks in range(8) for tg in range(2)])
b += stamp_ins('G4')
blk[phase['G4']] = b

def sconv(p, u):
    b = acc4(p, u, 0)
    s = [f"v_mul_f32 v{b+r}, v{vRC + r//4}, v{b+r}" for r in range(8)]
    s += [f"v_cvt_pk_bf16_f32 v{b+r}, v{b+2*r}, v{b+2*r+1}" for r in range(4)]
    if u: s.append(f"s_add_u32 s{sQT+7+p}, s{sQT+7+p}, 16384")
    if not OPT['NOSST']: s.append(I(f"buffer_store_dwordx4 {v(b,4)}, v{vL16}, {srd(sWS)}, s{sQT+7+p} offen {OPT['SST']}", tag=('sst', p)))
    return s
g4 = gap(phase['G4'])
for p in range(7):
    for u in range(4):
        g0 = g4 + 64*p + 16*(u+1)
        gl = place(sconv(p, u), g0 + 3, g0 + (19 if (p, u) != (6, 3) else 10))
last_store_gap = gl
hs = OPT['HSTEP']
gp0 = gap(phase[f'G3_{hs-1}']) - 30
place([f"s_lshl_b32 s{sT0}, s{sTC}, 4", f"v_mov_b32 v{vPOLL}, s{sT0}", I(f"global_load_dword v{vPOLL}, v{vPOLL}, {DBGP} sc1", tag='pollh'),
       f"v_add_u32 v{vHS}, s{sCOOB}, v{vL16}"], gp0, gp0 + 24)
gp1 = gap(phase[f'G3_{hs}'])
ext[gp1] += [mk_wait_vm(['pollh']), I(f"v_cmp_gt_u32 vcc, 16, v{vPOLL}"), I("s_cbranch_vccnz L_spinh"), I("L_spinh_ret:")]
def hloads(k0, k1):
    s = []
    for kk in range(k0, k1, 2):
        for rl in range(2):
            s.append(f"s_add_u32 s{sT0}, s{sHLD}, {rl*56*2048 + kk*2048}")
            for k2 in range(2):
                for tg in range(2):
                    s.append(I(f"buffer_load_dwordx4 {hreg(kk+k2, rl*2+tg)}, v{vHS}, {srd(sWS)}, s{sT0} offen offset:{k2*2048 + tg*1024} {OPT['HLD']}", tag='hld'))
    return s
if not OPT['NOHLD']:
    spread(hloads(0, 8), gap(phase[f"G3_{hs+OPT['HPF']}"]) + 2, gap(phase['G3_15']) - OPT['HEND'])
    spread(hloads(8, 14), g4 + OPT['H2A'], g4 + OPT['H2B'])
g6 = gap(phase['G6'])
vFV = 120
def greg(rl, sl):
    i = sl*2 + rl
    if i < 16: return v(Opk(0, 0) + 8*i, 4)
    return a(aH + (i - 16)*4, 4)
def gloads(s0, s1, va):
    s = []
    for sq in range(s0, s1, 2):
        for rl in range(2):
            s.append(I(f"s_add_u32 s{sT1}, s{sSG}, {rl*28*16384 + sq*1024}"))
            for sl in range(sq, sq+2):
                if not OPT['NOG']: s.append(I(f"buffer_load_dwordx4 {greg(rl, sl)}, v{va}, {srd(sWS)}, s{sT1} offen offset:{(sl-sq)*1024} {OPT['GLD']}", tag=('g', rl, sl)))
    return s
F0 = OPT['F0']
sPL = 32
sMISS = 18
place([f"v_mov_b32 v{vFV}, 1", f"v_mov_b32 v{vFV+1}, 3", f"v_and_b32 v{vFV+3}, 31, v0"], g4 + 100, g4 + 200)
def signal(k, n): return [mk_wait_vm([('sst', p) for p in range(n)]), I(f"buffer_store_byte v{vFV+k}, v{vZ}, {srd(sWS)}, s{sFLG} offen sc1", tag='flag')]
spoll = I(f"s_buffer_load_dwordx8 s[{sPL}:{sPL+7}], {srd(sWS)}, s{sFLP} glc"); spoll.cls = 'misc'
VPOLL = f"buffer_load_ubyte v{vPOLL}, v{vFV+3}, {srd(sWS)}, s{sFLP} offen sc1"
if OPT['WB']:
    def signal(k, n, gp):
        ext[gp - OPT['WBD']] += [mk_wait_vm([('sst', p) for p in range(n)]), I("buffer_wbl2 sc1", tag=('wb', k))] + stamp_ins(f'wb{k}')
        return [mk_wait_vm([('wb', k)]), I(f"buffer_store_byte v{vFV+k}, v{vZ}, {srd(sWS)}, s{sFLG} offen sc1", tag='flag')]
else:
    signal_ = signal
    def signal(k, n, gp): return signal_(k, n)
ext[g4 + OPT['SA']] += signal(0, F0, g4 + OPT['SA']) + stamp_ins('sigA')
ext[g4 + OPT['PA']] += [spoll]
sg = g6 + OPT['SC']
ext[sg] += signal(1, 7, sg) + stamp_ins('st_done') + [I(f"s_cmp_ge_u32 s{sPC}, 14"), I("s_cbranch_scc1 " + ("L_fin" if OPT['STAMP'] == 3 else "L_end"))]
assert sg > bar_gap[-1] and sg > last_store_gap
ext[g6 + OPT['CA']] += stamp_ins('pre_c0') + [I(t_) for t_ in (
    "s_waitcnt lgkmcnt(0)", f"s_and_b64 s[{sPL}:{sPL+1}], s[{sPL}:{sPL+1}], s[{sPL+2}:{sPL+3}]", f"s_and_b64 s[{sPL+4}:{sPL+5}], s[{sPL+4}:{sPL+5}], s[{sPL+6}:{sPL+7}]",
    f"s_and_b64 s[{sPL}:{sPL+1}], s[{sPL}:{sPL+1}], s[{sPL+4}:{sPL+5}]", f"s_and_b32 s{sPL}, s{sPL}, s{sPL+1}",
    f"s_and_b32 s{sPL}, s{sPL}, 0x01010101", f"s_cmp_eq_u32 s{sPL}, 0x01010101", f"s_cselect_b32 s{sMISS}, 0, {hx(OOB)}",
    f"v_add_u32 v{vFV+2}, s{sMISS}, v{vHS}")] + stamp_ins('chk0')
spread(gloads(0, 2*F0, vFV+2), g6 + OPT['CA'] + 1, g6 + OPT['LA'])
ext[g6 + OPT['PB']] += [I(VPOLL, tag='poll')]

vXF = 68
vAD = 125
seq = [f"v_accvgpr_read_b32 v{vAD}, a{aST+8}"]
for t4 in range(4):
    if t4: seq.append(f"s_mov_b32 s{sSV0 + t4 - 1}, {t4*14336}")
    seq.append(I(f"buffer_load_dwordx2 {v(vXF + t4*2, 2)}, v{vAD}, {srd(sX)}, {'0' if t4 == 0 else 's%d' % (sSV0+t4-1)} offen", tag='xf'))
spread(seq, g6 + 14, g6 + 40)
HX = OPT['HX']; NHG = 16 // HX; NT = 32 // HX
npf = [0]
def pf_addr(nlines, lines_per_row, pitch, k, dst, idx_sgpr, nshare):
    per = nlines // nshare
    s = [f"s_lshl_b32 s{sSO2}, s{sW}, 6", f"s_add_u32 s{sSO2}, s{sSO2}, {k*256}", f"v_add_u32 v{dst}, s{sSO2}, v0",
         f"v_min_u32 v{dst}, {per-1}, v{dst}", f"s_mul_i32 s{sSO2}, s{idx_sgpr}, {per}", f"v_add_u32 v{dst}, s{sSO2}, v{dst}"]
    if lines_per_row is None:
        s += [f"v_lshlrev_b32 v{dst}, 7, v{dst}"]
    else:
        sh = lg(lines_per_row)
        s += [f"v_and_b32 v{vPF}, {lines_per_row-1}, v{dst}", f"v_lshrrev_b32 v{dst}, {sh}, v{dst}",
              f"v_mul_u32_u24 v{dst}, {pitch}, v{dst}", f"v_lshl_add_u32 v{dst}, v{vPF}, 7, v{dst}"]
    return s
def pf_load(srd_b, dst):
    npf[0] += 1
    return I(f"buffer_load_dword a{aST + 10 + npf[0] % 6}, v{dst}, {srd(srd_b)}, 0 offen {OPT['PPF']}", tag='pf')
def pf_seq(srd_b, nlines, lines_per_row, pitch, idx, nshare):
    s = []
    for k in range((nlines // nshare + 255) // 256):
        s += pf_addr(nlines, lines_per_row, pitch, k, vPF+1, idx, nshare) + [pf_load(srd_b, vPF+1)]
    return s
vLQ = 26
def pf_pieces(srd_b, per, unit, idx, extra_base=None, pol='', rot=False):
    setup = [f"s_mul_i32 s{sSO2}, s{idx}, {per}", f"v_add_u32 v{vPF+1}, s{sSO2}, v{vLQ}", f"v_mul_u32_u24 v{vPF+1}, {unit}, v{vPF+1}"]
    if extra_base is not None: setup.append(f"v_add_u32 v{vPF+1}, s{extra_base}, v{vPF+1}")
    pcs = []
    for k in range((per + 63)//64):
        npf[0] += 1
        n_ = (per + 63)//64
        if rot and k == 0: so_ = [f"s_lshr_b32 s{sSO2}, s{sTC}, 1", f"s_sub_u32 s{sCNT}, s{sSO2}, {n_}", f"s_min_u32 s{sSO2}, s{sSO2}, s{sCNT}", f"s_mul_i32 s{sSO2}, s{sSO2}, {64*unit}"]
        elif rot: so_ = [f"s_add_u32 s{sSO2}, s{sSO2}, {64*unit}", f"s_sub_u32 s{sCNT}, s{sSO2}, {n_*64*unit}", f"s_min_u32 s{sSO2}, s{sSO2}, s{sCNT}"]
        else: so_ = [f"s_mov_b32 s{sSO2}, {k*64*unit}"]
        pcs.append(so_ + [I(f"buffer_load_dword a{aST + 9 + npf[0] % 7}, v{vPF+1}, {srd(srd_b)}, s{sSO2} offen {pol}", tag='pf')])
    return setup, pcs
def pf_run(streams, g0, g1):
    items = []
    for st_ in streams:
        su, pcs = st_
        for k, p_ in enumerate(pcs): items.append((su if k == 0 else []) + p_)
    n = len(items)
    for k, it_ in enumerate(items):
        lo = g0 + (k*(g1-g0))//n
        place(it_, lo, lo + 24)
if OPT['PF']:
    place([f"v_lshrrev_b32 v{vLQ}, 2, v0", f"s_lshl_b32 s{sSO2}, s{sW}, 4", f"v_add_u32 v{vLQ}, s{sSO2}, v{vLQ}"], 100, 130)
    if not OPT['BIG'] & 2: pf_run([pf_pieces(sKK, 2048//(2*NT), 128, sKVI, pol=OPT['PPF']), pf_pieces(sVV, 2048//(2*NT), 128, sKVI, pol=OPT['PPF'])], OPT['PFG'], gap(phase['P4']))
    if not OPT['NOPF2'] & 1: pf_run([pf_pieces(sWO, 1792//NT, 128, sTL), pf_pieces(sW2, 448, 896, sW2I, rot=OPT['W2ROT'])], gap(phase[f"G3_{OPT['PF0']}"]), gp1 if OPT['PF1'] == 0 else gap(phase[f"G3_{OPT['PF1']}"]))
    vPF += -20
    sSO2 = sT3
    if not OPT['NOPF2'] & 2: pf_run([pf_pieces(sWS, 256, 128, sCC, sHPF, 'sc1')], gp1 + 2, gap(phase[f"G3_{hs+OPT['HPF']}"]) - 20)
    vPF += 20
    sSO2 = 93

if OPT['FINE'] == 1:
    for p in range(1, 7): phase[f'G4p{p}'] = phase['G4'] + 32*p; blk[phase[f'G4p{p}']] = stamp_ins(f'G4p{p}')
    for kk in range(2, 14, 2): phase[f'G6k{kk}'] = phase['G6'] + 4*kk; blk[phase[f'G6k{kk}']] = stamp_ins(f'G6k{kk}')
if OPT['FINE'] == 2:
    for nm in ['P1', 'P3', 'P5'] + [f'G2_{s_}' for s_ in range(1, 16) if s_ % 4] + ['G3_14', 'G3_15']:
        blk[phase[nm]] = stamp_ins(nm)
if OPT['STAMP'] or OPT['WAITAT']:
    for nm in ('P0', 'P2', 'P4', 'G2_0', 'G2_4', 'G2_8', 'G2_12', 'G6'):
        blk.setdefault(phase[nm], [])
        blk[phase[nm]] = stamp_ins(nm) + blk[phase[nm]]

E(f"""
s_cmp_ge_u32 s2, 256
s_cbranch_scc1 L_end
s_load_dwordx16 s[4:19], s[0:1], 0
s_load_dwordx4 s[20:23], s[0:1], 64
s_load_dwordx2 s[24:25], s[0:1], 80
""")
if OPT['STAMP'] or OPT['WAITAT']: E("s_memtime s[98:99]\ns_memrealtime s[100:101]")
E(f"""
v_lshrrev_b32 v{vT0}, 6, v0
v_and_b32 v0, 63, v0
s_and_b32 s{sT0}, s2, 7
v_readfirstlane_b32 s{sW}, v{vT0}
s_lshr_b32 s{sT1}, s2, 3
s_and_b32 s{sT2}, s{sT0}, {NHG-1}
s_lshl_b32 s{sT2}, s{sT2}, {lg(HX)}
s_and_b32 s{sHD}, s{sT1}, {HX-1}
s_add_u32 s{sHD}, s{sHD}, s{sT2}
s_lshr_b32 s{sT2}, s{sT0}, {lg(NHG)}
s_lshl_b32 s{sT2}, s{sT2}, {lg(NT)}
s_lshr_b32 s{sTL}, s{sT1}, {lg(HX)}
s_add_u32 s{sT}, s{sTL}, s{sT2}
s_lshl_b32 s{sWB}, s{sW}, 12
""")
CODE_LINES = 512
E(f"s_lshr_b32 s{sCNT}, s2, 3")
for t_ in pf_addr(CODE_LINES, None, 0, 0, vR+80, sCNT, 32): E(t_)
E(f"""
s_getpc_b64 s[26:27]
L_pc:
global_load_dword v{vR+90}, v{vR+80}, s[26:27]
""")
E(f"""
v_lshrrev_b32 v{vT3}, 3, v0
v_and_b32 v{vT4}, 7, v0
v_lshrrev_b32 v{vT1}, 1, v{vT3}
v_xor_b32 v{vT1}, v{vT1}, v{vT4}
v_lshlrev_b32 v{vT1}, 4, v{vT1}
v_xor_b32 v{vT2}, 64, v{vT1}
s_lshl_b32 s{sT1}, s{sT}, 2
s_add_u32 s{sT1}, s{sT1}, s{sW}
s_mul_i32 s{sT1}, s{sT1}, {32*896}
v_mul_u32_u24 v{vT0}, 896, v{vT3}
v_add_u32 v{vT0}, s{sT1}, v{vT0}
v_add_u32 v{vXD}, v{vT0}, v{vT1}
v_add_u32 v{vXD+1}, v{vT0}, v{vT2}
v_add_u32 v{vXD+2}, {2*6144}, v{vXD}
v_add_u32 v{vXD+3}, {3*6144}, v{vXD+1}
v_add_u32 v{vXD+1}, 6144, v{vXD+1}
s_mov_b32 m0, s{sWB}
s_mov_b32 s{sSO}, 0
v_min_u32 v{vR+82}, 13, v0
v_subrev_u32 v{vR+83}, 7, v{vR+82}
v_min_u32 v{vR+83}, v{vR+83}, v{vR+82}
v_sub_u32 v{vR+82}, v{vR+82}, v{vR+83}
v_lshlrev_b32 v{vR+82}, 11, v{vR+82}
v_lshl_add_u32 v{vR+82}, v{vR+83}, 7, v{vR+82}
s_mul_i32 s{sT2}, s{sHD}, 896
s_add_u32 s{sT2}, s{sT2}, s{sT1}
s_mov_b32 s{sX+2}, {2048*896}
s_mov_b32 s{sX+3}, 0x00020000
s_waitcnt lgkmcnt(0)
s_mov_b32 s{sX}, s4
s_mov_b32 s{sX+1}, s5
""")
PST('karg')
def mk_srd(b, plo, off_sgpr, size):
    if off_sgpr is None:
        E(f"s_mov_b32 s{b}, s{plo}\ns_mov_b32 s{b+1}, s{plo+1}")
    else:
        E(f"s_add_u32 s{b}, s{plo}, s{off_sgpr}\ns_addc_u32 s{b+1}, s{plo+1}, 0")
    E(f"s_mov_b32 s{b+2}, {size}\ns_mov_b32 s{b+3}, 0x00020000")
xdma = []
for tg in range(2):
    for q in range(7):
        if q or tg:
            xdma += [I(f"s_add_u32 m0, s{sWB}, {q*SLOT}"), I(f"s_movk_i32 s{sSO}, {q*128}")]
        for rb in (2*tg, 2*tg+1):
            xdma.append(I(f"buffer_load_dwordx4 v{vXD+rb}, {srd(sX)}, s{sSO} offen offset:{rb*1024} {OPT['PX']} lds", tag=('x', tg, q)))
def xissue(n):
    while n > 0 and xdma:
        i_ = xdma.pop(0); P.ins.append(i_)
        if i_.cls == 'vmem': n -= 1
if OPT['XPF']: E(f"buffer_load_dword a{aST+9}, v{vR+82}, {srd(sX)}, s{sT2} offen", tag='pf')
xissue(OPT['XFIRST'])
E(f"s_lshl_b32 s{sT0}, s{sHD}, 9\ns_sub_u32 s{sT2}, {448*8192}, s{sT0}")
mk_srd(sWQ, 10, sT0, f"s{sT2}")
wqpf = [I(t_) if isinstance(t_, str) else t_ for t_ in pf_seq(sWQ, 448*OPT['WQP'], OPT['WQP'], 8192, sTL, NT)] if OPT['PF'] and OPT['WQP'] else []
if OPT['WQE'] == 1: P.ins += wqpf; wqpf = []
else: P.ins += wqpf[:-1]; wqpf = wqpf[-1:]
xissue(OPT['XSEC'])
PST('x_first')
mk_srd(sOUT, 20, None, 2048*896)
E(f"""
s_lshl_b32 s{sT0}, s{sW}, 7
v_lshlrev_b32 v{vKD}, 9, v{vT3}
v_add_u32 v{vVD}, s{sT0}, v{vKD}
v_add_u32 v{vKD}, v{vVD}, v{vT1}
v_add_u32 v{vKD+1}, v{vVD}, v{vT2}
v_add_u32 v{vKD+2}, {2*3072}, v{vKD}
v_add_u32 v{vKD+3}, {3*3072}, v{vKD+1}
v_add_u32 v{vKD+1}, 3072, v{vKD+1}
v_and_b32 v{vT0}, 6, v{vT3}
v_xor_b32 v{vT0}, v{vT0}, v{vT4}
v_lshlrev_b32 v{vT0}, 4, v{vT0}
v_add_u32 v{vVD}, v{vVD}, v{vT0}
""")
for rb in range(1, 4): E(f"v_add_u32 v{vVD+rb}, {3072*rb}, v{vVD}")
E(f"""
v_and_b32 v{vT1}, 4, v{vT3}
v_add_u32 v{vT1}, v{vT1}, v{vT3}
v_lshl_add_u32 v{vWQ}, v{vT1}, 13, v{vT0}
v_mul_u32_u24 v{vT1}, 3584, v{vT1}
v_add_u32 v{vW1D}, v{vT1}, v{vT0}
""")
for rb in range(1, 4):
    rr = 16*(rb & 1) + 4*(rb >> 1)
    E(f"v_add_u32 v{vW1D+rb}, {rr*3584 - 1024*rb}, v{vW1D}\nv_add_u32 v{vWQ+rb}, {rr*8192 - 1024*rb}, v{vWQ}")
E(f"""
s_lshl_b32 s{sT1}, s{sHD}, 8
s_sub_u32 s{sT2}, {448*3584}, s{sT1}
s_cmp_lt_u32 s{sHD}, 14
s_cselect_b32 s{sT2}, s{sT2}, 0
s_cselect_b32 s{sT1}, s{sT1}, 0
""")
mk_srd(sW1, 16, sT1, f"s{sT2}")
E(f"s_lshr_b32 s{sT0}, s{sHD}, 1\ns_lshl_b32 s{sT0}, s{sT0}, 20\ns_add_u32 s{sT0}, s{sT0}, {1536*512}")
mk_srd(sKK, 6, sT0, 262144)
mk_srd(sVV, 8, sT0, 262144)
E(f"s_mul_i32 s{sT0}, s{sHD}, {256*896}")
mk_srd(sWO, 12, sT0, 256*896)
E(f"""
s_lshr_b32 s{sPC}, s2, 3
s_and_b32 s{sPC}, s{sPC}, 15
s_cmp_ge_u32 s{sPC}, 7
s_cselect_b32 s{sT3}, 1, 0
s_mul_i32 s{sT1}, s{sT3}, 7
s_sub_u32 s{sT1}, s{sPC}, s{sT1}
s_lshl_b32 s{sT0}, s{sT1}, 7
s_sub_u32 s{sT2}, {1792*896}, s{sT0}
s_cmp_lt_u32 s{sPC}, 14
s_cselect_b32 s{sT2}, s{sT2}, 0
s_cselect_b32 s{sT0}, s{sT0}, 0
""")
mk_srd(sW2, 18, sT0, f"s{sT2}")
if OPT['WSOFF']:
    E(f"s_mov_b32 s{sT0}, {hx(OPT['WSOFF'] << 20)}")
    mk_srd(sWS, 24, sT0, WS_SIZE)
else:
    mk_srd(sWS, 24, None, WS_SIZE)
for k_, R_ in ((0, 32*8192), (2, 32*3584)):
    E(f"""
s_mul_i32 s{sW1T+k_}, s{sW}, {R_}
s_cmp_lt_u32 s{sW}, 2
s_mov_b32 s{sT2}, {hx(128 - 2*R_)}
s_cselect_b32 s{sT0}, {12*R_}, s{sT2}
s_add_u32 s{sW1T+k_+1}, s{sW1T+k_}, s{sT0}
""")
E(f"""
v_mul_u32_u24 v{vT1}, 896, v{vT3}
v_add_u32 v{vT1}, v{vT1}, v{vT0}
s_mul_i32 s{sT0}, s{sW}, {32*896}
s_mul_i32 s{sT2}, s{sW}, {448*896}
""")
for rb in range(4):
    if rb: E(f"v_add_u32 v{vT1}, 6144, v{vT1}")
    E(f"v_add_u32 v{vT2}, s{sT0}, v{vT1}\nv_accvgpr_write_b32 a{aST+rb}, v{vT2}\nv_add_u32 v{vT2}, s{sT2}, v{vT1}\nv_accvgpr_write_b32 a{aST+4+rb}, v{vT2}")
E(f"""
v_lshlrev_b32 v{vL16}, 4, v0
v_lshrrev_b32 v{vT0}, 2, v0
v_lshlrev_b32 v{vT1}, 7, v{vT0}
v_and_b32 v{vT2}, 3, v0
v_lshl_add_u32 v{vT1}, v{vT2}, 3, v{vT1}
v_bfe_u32 v{vT3}, v0, 3, 2
""")
for u in range(4):
    E(f"""
v_xor_b32 v{vT4}, {u}, v{vT3}
v_lshl_add_u32 v{vTR+u}, v{vT4}, 5, v{vT1}
v_add_u32 v{vTR+4+u}, 0x10000, v{vTR+u}
v_add_u32 v{vTR+8+u}, 0x20000, v{vTR+u}
""")
E(f"""
v_and_b32 v{vT0}, 15, v0
v_lshrrev_b32 v{vT1}, 1, v{vT0}
v_lshrrev_b32 v{vT2}, 4, v0
v_xor_b32 v{vT1}, v{vT1}, v{vT2}
v_lshlrev_b32 v{vT4}, 7, v{vT0}
v_lshl_add_u32 v{vRA}, v{vT1}, 4, v{vT4}
v_xor_b32 v{vRA+1}, 64, v{vRA}
v_add_u32 v{vRA+2}, 0x10000, v{vRA}
v_add_u32 v{vRA+3}, 0x10000, v{vRA+1}
v_add_u32 v{vRA+4}, 0x20000, v{vRA}
v_add_u32 v{vRA+5}, 0x20000, v{vRA+1}
""")
vXR = vR + 72
for i in range(4): E(f"v_add_u32 v{vXR+i}, s{sWB}, v{vRA+i}")
E(f"""
s_and_b32 s{sTC}, s2, 7
s_lshl_b32 s{sTC}, s{sTC}, 1
s_lshr_b32 s{sT0}, s2, 7
s_add_u32 s{sTC}, s{sTC}, s{sT0}
s_lshl_b32 s{sW2I}, s{sT0}, 1
s_add_u32 s{sW2I}, s{sW2I}, s{sT3}
s_lshl_b32 s{sT2}, s{sTC}, 1
s_add_u32 s{sT2}, s{sT2}, s{sT3}
s_lshl_b32 s{sT0}, s{sT2}, 6
v_add_u32 v{vT0}, s{sT0}, v{vT0}
v_mul_u32_u24 v{vT0}, 896, v{vT0}
v_lshl_add_u32 v{vT0}, v{vT2}, 3, v{vT0}
s_lshl_b32 s{sT0}, s{sT1}, 2
s_add_u32 s{sT0}, s{sT0}, s{sW}
s_lshl_b32 s{sSG}, s{sT0}, 5
v_add_u32 v{vT0}, s{sSG}, v{vT0}
v_accvgpr_write_b32 a{aST+8}, v{vT0}
s_lshl_b32 s{sT2}, s{sT2}, 1
s_mul_i32 s{sSG}, s{sT2}, 28
s_add_u32 s{sSG}, s{sSG}, s{sT0}
s_lshl_b32 s{sSG}, s{sSG}, 14
s_lshl_b32 s{sFLP}, s{sT2}, 7
s_add_u32 s{sFLP}, s{sFLP}, {hx(WS_F)}
s_mul_i32 s{sHLD}, s{sT2}, {56*2048}
s_add_u32 s{sHLD}, s{sHLD}, {hx(WS_H)}
s_cmp_lt_u32 s{sPC}, 14
s_cselect_b32 s{sCOOB}, 0, {hx(OOB)}
s_add_u32 s{sHPF}, s{sHLD}, s{sCOOB}
s_mul_i32 s{sT0}, s{sW}, {14*2048}
s_add_u32 s{sHLD}, s{sHLD}, s{sT0}
s_mov_b32 s0, s2
s_mov_b32 s{sCC}, s{sT1}
s_lshl_b32 s{sKVI}, s{sTL}, 1
s_and_b32 s{sT0}, s{sHD}, 1
s_add_u32 s{sKVI}, s{sKVI}, s{sT0}
s_lshl_b32 s{sT1}, s{sT}, 2
s_add_u32 s{sT1}, s{sT1}, s{sW}
s_lshr_b32 s{sFLG}, s{sT1}, 1
s_lshl_b32 s{sFLG}, s{sFLG}, 8
s_and_b32 s{sT2}, s{sT1}, 1
s_lshl_b32 s{sT2}, s{sT2}, 4
s_add_u32 s{sFLG}, s{sFLG}, s{sT2}
s_add_u32 s{sFLG}, s{sFLG}, s{sHD}
s_add_u32 s{sFLG}, s{sFLG}, {hx(WS_F)}
s_mul_i32 s{sHST}, s{sT1}, {56*2048}
s_min_u32 s{sT2}, s{sHD}, 13
s_lshl_b32 s{sT2}, s{sT2}, 13
s_add_u32 s{sHST}, s{sHST}, s{sT2}
s_add_u32 s{sHST}, s{sHST}, {hx(WS_H)}
s_cmp_lt_u32 s{sHD}, 14
s_cselect_b32 s{sT2}, 0, {hx(OOB)}
v_add_u32 v{vHS}, s{sT2}, v{vL16}
v_mov_b32 v{vZ}, 0
v_mov_b32 v{vONE}, 1
""")
PST('addr_done')
xissue(14 - OPT['XFIRST'] - OPT['XSEC'])
if OPT['WQE'] == 0: P.ins += wqpf; wqpf = []
PST('x_issued')
PRODUCER = len(P.ins)
E(f"""
s_lshl_b32 s{sSST}, s{sT}, 2
s_add_u32 s{sSST}, s{sSST}, s{sW}
s_mul_i32 s{sSST}, s{sSST}, {28*16384}
s_cmp_ge_u32 s{sHD}, 7
s_cselect_b32 s{sT3}, 1, 0
s_sub_u32 s{sROT}, s{sHD}, 7
s_min_u32 s{sROT}, s{sROT}, s{sHD}
s_sub_u32 s{sCNT}, s{sROT}, 7
s_min_u32 s{sROT}, s{sROT}, s{sCNT}
s_cmp_lt_u32 s{sHD}, 14
s_cselect_b32 s{sT3}, s{sT3}, s{sHD}
s_cselect_b32 s{sSTEP}, 2048, 0
s_lshl_b32 s{sT3}, s{sT3}, 10
s_add_u32 s{sSST}, s{sSST}, s{sT3}
""")
prod_ins = []
for s_, val in ((sM1, 0x2222222222222222), (sM2, 0xCCCCCCCCCCCCCCCC), (sM3, 0x8888888888888888), (sMD, 0xF0000F0000F0000F)):
    E(f"s_mov_b32 s{s_}, {hx(val)}\ns_mov_b32 s{s_+1}, {hx(val >> 32)}")

vONES = vR + 16
vD1 = vR + 20
vD2 = vR + 28
vLA = vR + 36
for i in range(4): E(f"v_mov_b32 v{vONES+i}, 0x3f803f80")
def rbf(r):
    return [f"v_cvt_pk_bf16_f32 v{r}, v{r}, v{r}", f"v_lshlrev_b32 v{r}, 16, v{r}"]
E(f"s_mov_b32 s{sT0}, {hx(f2u(1.0/448.0))}\ns_mov_b32 s{sT1}, {hx(f2u(1e-5))}\ns_mov_b32 s{sT2}, {hx(f2u(CSCALE))}")
if OPT['PADS']:
    E(f"""
s_mov_b64 exec, 0
s_cmp_eq_u32 s{sW}, 0
s_cbranch_scc1 L_pg0
s_cmp_eq_u32 s{sW}, 1
s_cbranch_scc1 L_pg1
s_cmp_eq_u32 s{sW}, 2
s_cbranch_scc1 L_pg2
s_branch L_pg3
.p2align 12
L_main:
s_mov_b64 exec, -1
""")
STAMP('pro_done')
vNT = vR + 44
NPRO = OPT['NPRO']
big = []
if OPT['BIG'] & 1:
    t_ = pf_seq(sWQ, 448*2, 2, 8192, sTL, NT); t_[-1] = I(t_[-1].text.replace('offen', 'offen offset:256'), tag='pf'); big += t_
    big += pf_seq(sW1, 448*2, 2, 3584, sTL, NT)
if OPT['BIG'] & 2:
    t_ = pf_seq(sKK, 2048, None, 0, sKVI, 2*NT); big += t_ + [pf_load(sVV, vPF+1)]
big = [I(t_) if isinstance(t_, str) else t_ for t_ in big]
assert len(pro_dma) == NPRO
L0N = OPT['L0N']
late = {0: [i_ for d_ in pro_dma[:L0N] for i_ in d_],
        1: [i_ for d_ in pro_dma[3:] for i_ in d_]
           + big + [I(f"buffer_store_byte v{vZ}, v{vZ}, {srd(sWS)}, s{sFLG} offen sc1", tag='hst')]}
def xreads(tg, q):
    r = [mk_wait_vm([('x', tg, q)])]
    for ks in (2*q, 2*q+1):
        ad = q*SLOT + tg*2048
        r.append(I(f"ds_read_b128 {v(xn(ks,tg),4)}, v{vXR + (ad >> 16)*2 + (ks & 1)} offset:{ad & 0xffff}", tag=('xr', tg, q)))
    return r
def stats(tg, q, fill):
    P.wait_lgkm_tag([('xr', tg, q)])
    for ks in (2*q, 2*q+1):
        X = v(xn(ks, tg), 4)
        for m_ in (mfma(v(vD1+4*tg, 4), v(vONES, 4), X, "0" if ks == 0 else v(vD1+4*tg, 4)), mfma(v(vD2+4*tg, 4), X, X, "0" if ks == 0 else v(vD2+4*tg, 4))):
            E(m_)
            t_ = 0
            while fill and t_ + cost(fill[0]) <= 12:
                t_ += cost(fill[0]); P.ins.append(fill.pop(0))
def scalars(tg):
    d = vD2 + 4*tg; m = vD1 + 4*tg; t = m + 1; L = vLA + 4*tg
    s = [f"v_cndmask_b32 v{d}, v{d}, v{d+1}, s[{sM1}:{sM1+1}]",
         f"v_cndmask_b32 v{d+2}, v{d+2}, v{d+3}, s[{sM3}:{sM3+1}]",
         f"v_mul_f32 v{m}, s{sT0}, v{m}",
         f"v_cndmask_b32 v{d}, v{d}, v{d+2}, s[{sM2}:{sM2+1}]",
         f"v_cndmask_b32 v{d}, 0, v{d}, s[{sMD}:{sMD+1}]"]
    s += allred(d, t, "v_add_f32")
    s += [f"v_mul_f32 v{d}, s{sT0}, v{d}",
          f"v_fma_f32 v{d}, -v{m}, v{m}, v{d}",
          f"v_max_f32 v{d}, 0, v{d}"]
    s += interleave(rbf(m), rbf(d))
    s += [f"v_add_f32 v{d}, s{sT1}, v{d}"] + rbf(d) + [f"v_sqrt_f32 v{d}, v{d}"] + rbf(d)
    s += [f"v_rcp_f32 v{d}, v{d}", f"v_mul_f32 v{d}, s{sT2}, v{d}",
          f"v_cvt_pk_bf16_f32 v{d}, v{d}, v{d}",
          f"v_and_b32 v{L}, 0xffff, v{d}", f"v_lshlrev_b32 v{L+1}, 16, v{d}",
          f"v_mul_f32 v{L+2}, -v{m}, v{L+1}"]
    for t_ in s: E(t_)
def normalize(tg, side):
    L = vLA + 4*tg; k = 0; pend = []
    for ks in range(14):
        for r in range(4):
            x_ = xn(ks, tg) + r
            t = vNT + 2*(k % 8); k += 1
            E(f"v_dot2_f32_bf16 v{t}, v{x_}, v{L}, v{L+2}\nv_dot2_f32_bf16 v{t+1}, v{x_}, v{L+1}, v{L+2}")
            pend.append(f"v_cvt_pk_bf16_f32 v{x_}, v{t}, v{t+1}")
            if len(pend) > 2: E(pend.pop(0))
            P.ins += side.get(k, [])
    for t_ in pend: E(t_)
for q in range(7):
    P.ins += xreads(0, q)
    if q in (0, 3, 6): PST(f'w0{q}')
    xissue(2)
    if q > 1: stats(0, q-2, [])
fill = wqpf + late[0]
stats(0, 5, fill); stats(0, 6, fill)
P.ins += fill
STAMP('x0_arrived')
scalars(0)
X1 = OPT['X1']
normalize(0, {X1 + 4*q: xreads(1, q) for q in range(7)})
PST('ln0_done')
fill = [i_ for d_ in pro_dma[L0N:3] for i_ in d_]
for q in range(7):
    if q == 1: P.wait_lgkm_tag([('xr', 1, 6)]); fill += late[1]
    stats(1, q, fill)
P.ins += fill
STAMP('x1_arrived')
scalars(1)
fr_ = [i_ for f in range(D) for i_ in frag_reads(f)]
side = {OPT['BARK']: [mk_wait_vm(first_need), I("s_barrier")]}
for k_, i_ in enumerate(fr_): side.setdefault(min(OPT['BARK'] + 1 + k_, 56), []).append(i_)
normalize(1, side)
if OPT['DUMP'] == 'xn':
    P.ins += dump([v(xn(ks, tg), 4) for ks in range(14) for tg in range(2)])

P.ins.append(mk_wait_lg([('f', f) for f in range(4)]))
est = 0
for g in range(NF):
    if g in blk: P.ins += blk[g]
    for h, m_ in enumerate(MF[g]):
        gp = G0[g] + h
        P.ins.append(I(m_))
        P.ins += pre[gp] + rds[gp] + ext[gp]
        est += max(16, gtime(pre[gp] + rds[gp] + ext[gp]))
if OPT['LOG']:
    ph = sorted((f_, n_) for n_, f_ in phase.items())
    for (f0_, n_), (f1_, _) in zip(ph, ph[1:]):
        e_ = sum(max(16, gtime(pre[q_] + rds[q_] + ext[q_])) for q_ in range(gap(f0_), gap(f1_)))
        print(f"  phase {n_}: est {e_} ideal {16*(gap(f1_)-gap(f0_))}", file=sys.stderr)
print("estimated main-stream cycles", est, "ideal", 16*NG, file=sys.stderr)

STAMP('g6_done')
def fs(t4, w_): return facc(t4, w_)
vSEL = 44
vSA = 52
STAMP('pre_c1')
P.wait_vm_tag(['poll'])
E(f"v_cmp_gt_u32 vcc, 3, v{vPOLL}\ns_cbranch_vccnz L_spin1\nL_spin1_ret:\ns_cmp_lg_u32 s{sMISS}, 0\ns_cbranch_scc1 L_redo\nL_redo_ret:")
STAMP('chk1')
gl2 = gloads(2*F0, 16, vHS)
n2 = OPT['N2']
P.ins += gl2[:n2]
E(f"""
v_add_u32 v{vT1}, s{sWB}, v{vL16}
s_lshl_b32 s{sT0}, s{sW}, 14
v_add_u32 v{vT2}, s{sT0}, v{vL16}
""")
for u in range(4):
    for t4 in range(4):
        E(f"ds_write_b128 v{vT1}, {v(facc(u, t4), 4)} offset:{u*SLOT + t4*1024}")
E(f"""
v_mov_b32 v{vSEL}, 0
v_mov_b32 v{vSEL+1}, 0
v_mov_b32 v{vSEL+4}, 0
v_mov_b32 v{vSEL+5}, 0
v_mov_b32 v{vT0}, 0x3f80
v_mov_b32 v{vSEL+2}, 0x3f800000
s_or_b64 s[16:17], s[{sM1}:{sM1+1}], s[{sM3}:{sM3+1}]
v_cndmask_b32 v{vT0}, v{vT0}, v{vSEL+2}, s[16:17]
v_cndmask_b32 v{vT0}, 0, v{vT0}, s[{sMD}:{sMD+1}]
s_mov_b64 s[16:17], s[{sM2}:{sM2+1}]
v_cndmask_b32 v{vSEL+2}, v{vT0}, 0, s[16:17]
v_cndmask_b32 v{vSEL+3}, 0, v{vT0}, s[16:17]
s_mov_b32 s{sT0}, {hx(f2u(1.0/CSCALE))}
s_mov_b32 s{sT2}, {hx(f2u(-16.0))}
""")
E("s_waitcnt lgkmcnt(0)\ns_barrier")
for t4 in range(4):
    for w_ in range(4):
        E(f"ds_read_b128 {v(fs(t4, w_), 4)}, v{vT2} offset:{w_*4096 + t4*1024}")
def smf(rl, sl):
    r = []
    for tg in range(2):
        d = v(vSA + (rl*2+tg)*4, 4)
        r.append(mfma(d, v(vSEL + (2 if tg == 0 else 0), 4), greg(rl, sl), "0" if sl == 0 else d))
    return r
val = []
for t4 in range(4):
    b0, b1, b2, b3 = (fs(t4, w_) for w_ in range(4))
    for r in range(4): val += [f"v_add_f32 v{b0+r}, v{b0+r}, v{b1+r}", f"v_add_f32 v{b2+r}, v{b2+r}, v{b3+r}"]
    for r in range(4): val.append(f"v_add_f32 v{b0+r}, v{b0+r}, v{b2+r}")
    for r in range(4): val.append(f"v_mul_f32 v{b1+r}, s{sT2}, v{b0+r}")
    for r in range(4): val.append(f"v_exp_f32 v{b1+r}, v{b1+r}")
    for r in range(4): val.append(f"v_mul_f32 v{b0+r}, s{sT0}, v{b0+r}")
    for r in range(4): val.append(f"v_add_f32 v{b1+r}, 1.0, v{b1+r}")
    for r in range(4): val.append(f"v_rcp_f32 v{b1+r}, v{b1+r}")
    for r in range(4): val.append(f"v_mul_f32 v{b0+r}, v{b0+r}, v{b1+r}")
P.ins += gl2[n2:]
ms = []
for sq in range(0, 2*F0, 2):
    for rl in range(2):
        ms.append(('w', [('g', rl, sq+1)]))
        for sl in range(sq, sq+2): ms += smf(rl, sl)
per = (len(val) + 8*F0 - 1) // (8*F0)
for m_ in ms:
    if isinstance(m_, tuple): P.wait_vm_tag(m_[1]); continue
    E(m_)
    for _ in range(per):
        if val: E(val.pop(0))
for t_ in val: E(t_)
for t4 in range(4):
    b2 = fs(t4, 2); xr = vXF + t4*2
    E(f"""
v_lshlrev_b32 v{b2}, 16, v{xr}
v_and_b32 v{b2+1}, 0xffff0000, v{xr}
v_lshlrev_b32 v{b2+2}, 16, v{xr+1}
v_and_b32 v{b2+3}, 0xffff0000, v{xr+1}
""")
STAMP('g_done')
for sq in range(2*F0, 16, 2):
    for rl in range(2):
        for sl in range(sq, sq+2):
            for m_ in smf(rl, sl): E(m_)
for t4 in range(4):
    b0 = fs(t4, 0); b2 = fs(t4, 2)
    for r in range(4): E(f"v_fma_f32 v{b0+r}, v{vSA+t4*4+r}, v{b0+r}, v{b2+r}")
    E(f"v_cvt_pk_bf16_f32 v{b0}, v{b0}, v{b0+1}\nv_cvt_pk_bf16_f32 v{b0+1}, v{b0+2}, v{b0+3}")
    E(f"buffer_store_dwordx2 {v(b0,2)}, v{vAD}, {srd(sOUT)}, {'0' if t4 == 0 else 's%d' % (sSV0+t4-1)} offen {OPT['OST']}")
if OPT['WAITAT']: STAMP('end')
if OPT['STAMP']:
    STAMP('end')
    E(f"""
L_fin:
s_memrealtime s[{sSTMP}:{sSTMP+1}]
s_waitcnt lgkmcnt(0)
v_writelane_b32 v{vSTAMP}, s98, 60
v_writelane_b32 v{vSTAMP}, s100, 61
v_writelane_b32 v{vSTAMP}, s{sSTMP}, 62
s_lshl_b32 s{sT0}, s0, 2
s_add_u32 s{sT0}, s{sT0}, s{sW}
s_lshl_b32 s{sT0}, s{sT0}, 8
s_add_u32 s{sT0}, s{sT0}, {hx(WS_DBG)}
v_lshlrev_b32 v{vT0}, 2, v0
buffer_store_dword v{vSTAMP}, v{vT0}, {srd(sWS)}, s{sT0} offen
""")
E("L_end:\ns_endpgm")
main_ins, log, stats_ = resolve(P.ins)
print("main", stats_, file=sys.stderr)
if OPT['LOG']:
    for l in log: print("  ", l, file=sys.stderr)

Q = Prog(); E = Q.emit
SPIN_MAX = 1 << 17
def spin(label, load, want, cmp):
    E(f"""
{label}:
s_mov_b32 s{sCNT}, {SPIN_MAX}
{label}_loop:
s_sleep 1
{load}
s_waitcnt vmcnt(0)
v_cmp_{cmp}_u32 vcc, {want}, v{vPOLL}
s_sub_u32 s{sCNT}, s{sCNT}, 1
s_cmp_eq_u32 s{sCNT}, 0
s_cbranch_scc1 {label}_ret
s_cbranch_vccnz {label}_loop
s_branch {label}_ret
""")
spin("L_spinh", f"s_lshl_b32 s{sT0}, s{sTC}, 4\nv_mov_b32 v{vT0}, s{sT0}\nglobal_load_dword v{vPOLL}, v{vT0}, {DBGP} sc1", 16, "gt")
spin("L_spin1", VPOLL, 3, "gt")
E("L_redo:\ns_waitcnt vmcnt(0)")
Q.ins += gloads(0, 2*F0, vHS)
E("s_waitcnt vmcnt(0)\ns_branch L_redo_ret")
MISC = [c['lo'] for c in chunks if c['name'] == 'V_15'][0]
fK, fS, fP, fA, fV, fR, fM = 44, 76, 108, 116, 117, 121, 102
E(f"""
L_exact:
s_waitcnt vmcnt(0) lgkmcnt(0)
s_nop 15
s_mov_b32 s{sSV0}, m0
v_and_b32 v{fA}, 15, v0
v_lshlrev_b32 v{fA}, 9, v{fA}
v_and_b32 v{fM}, 48, v0
v_add_u32 v{fA}, v{fA}, v{fM}
s_lshl_b32 s{sSV1}, s{sW}, 7
s_add_u32 s{sSV2}, s{sWB}, {MISC}
""")
for i in range(4):
    E(f"v_subrev_u32 v{fV+i}, s{sSV1}, v{vVD+i}\nv_add_u32 v{fR+i}, s{sSV2}, v{vTR+i}")
E(f"v_mov_b32 v{fM}, 0xff800000\nv_mov_b32 v{fM+1}, 0xff800000\ns_mov_b32 s{sSV1}, 0")
def ktile(kt, cinit):
    for ks in range(8):
        E(f"buffer_load_dwordx4 {v(fK+4*ks,4)}, v{fA}, {srd(sKK)}, s{sSV1} offen offset:{ks*64}")
    E(f"s_add_u32 s{sSV1}, s{sSV1}, 8192\ns_waitcnt vmcnt(0)")
    for ks in range(8):
        for tg in range(2):
            d = v(fS + tg*8 + kt*4, 4)
            E(mfma(d, v(fK+4*ks, 4), a(qf(ks, tg), 4), (cinit(tg) if ks == 0 else d)))
    E("s_nop 15")
E("L_exact_p1:")
ktile(0, lambda tg: "0")
for tg in range(2):
    b = fS + tg*8
    E(f"v_max3_f32 v{fM+tg}, v{fM+tg}, v{b}, v{b+1}\nv_max3_f32 v{fM+tg}, v{fM+tg}, v{b+2}, v{b+3}")
E(f"s_cmp_lt_u32 s{sSV1}, 262144\ns_cbranch_scc1 L_exact_p1")
for tg in range(2):
    for t_ in allred(fM+tg, fM+2, "v_max_f32"): E(t_)
    for r in range(4): E(f"v_sub_f32 v{vC+4*tg+r}, 0, v{fM+tg}")
for r in range(128): E(f"v_mov_b32 v{vO+r}, 0")
E(f"v_mov_b32 v{vLS}, 0\nv_mov_b32 v{vLS+1}, 0\ns_mov_b32 s{sSV1}, 0\ns_add_u32 m0, s{sWB}, {MISC}\ns_nop 3")
E("L_exact_p2:")
E(f"s_mov_b32 s{sSV2}, s{sSV1}")
ktile(0, lambda tg: v(vC+4*tg, 4))
ktile(1, lambda tg: v(vC+4*tg, 4))
for r in range(16): E(f"v_exp_f32 v{fS+r}, v{fS+r}")
for r in range(16): E(f"v_add_f32 v{vLS + r//8}, v{vLS + r//8}, v{fS+r}")
for r in range(8): E(f"v_cvt_pk_bf16_f32 v{fP+r}, v{fS+2*r}, v{fS+2*r+1}")
for cb in range(4):
    for rb in range(4):
        E(f"buffer_load_dwordx4 v{fV+rb}, {srd(sVV)}, s{sSV2} offen offset:{rb*1024} lds")
    E(f"s_add_u32 s{sSV2}, s{sSV2}, 128\ns_waitcnt vmcnt(0)")
    for u in range(4):
        E(f"ds_read_b64_tr_b16 {v(fK+4*u,2)}, v{fR+u}\nds_read_b64_tr_b16 {v(fK+4*u+2,2)}, v{fR+u} offset:2048")
    E("s_waitcnt lgkmcnt(0)")
    for u in range(4):
        for tg in range(2):
            d = v(Oreg(cb*4+u, tg), 4)
            E(mfma(d, v(fK+4*u, 4), v(fP+4*tg, 4), d))
    E("s_nop 7")
E(f"s_cmp_lt_u32 s{sSV1}, 262144\ns_cbranch_scc1 L_exact_p2")
for tg in range(2):
    for t_ in allred(vLS+tg, fM+2, "v_add_f32"): E(t_)
    E(f"v_rcp_f32 v{vRC+tg}, v{vLS+tg}")
E("s_nop 15")
for ks in range(8):
    for t_ in ocvt(ks): E(t_)
E(f"s_mov_b32 m0, s{sSV0}\ns_nop 15\ns_branch L_exact_ret")
sub_ins, log2, stats2 = resolve(Q.ins)

def sizes_of(ins):
    import subprocess, tempfile, re as re_
    body = [i_ for i_ in ins if i_.cls not in ('label', 'dir')]
    txt_ = '.amdgcn_target "amdgcn-amd-amdhsa--gfx950"\n.text\nL_any:\n' + ''.join('    ' + (re_.sub(r'L_\w+', 'L_any', i_.text) if i_.cls == 'branch' else i_.text) + '\n' for i_ in body)
    d_ = tempfile.mkdtemp()
    open(d_ + '/a.s', 'w').write(txt_)
    subprocess.run(['clang', '-x', 'assembler', '-target', 'amdgcn-amd-amdhsa', '-mcpu=gfx950', '-c', d_ + '/a.s', '-o', d_ + '/a.o'], check=True)
    out_ = subprocess.run(['llvm-objdump', '-d', '--mcpu=gfx950', d_ + '/a.o'], capture_output=True, text=True).stdout
    sz = [4*len(m_.group(1).split()) for m_ in re_.finditer(r'// [0-9A-F]+: ((?:[0-9A-F]{8} ?)+)', out_)]
    assert len(sz) == len(body), (len(sz), len(body))
    return {id(i_): s_ for i_, s_ in zip(body, sz)}
if OPT['PADS']:
    sz = sizes_of(main_ins)
    k0 = [k_ for k_, i_ in enumerate(main_ins) if i_.text == 'L_main:'][0]
    out_ = main_ins[:k0+1]; off = 0; npg = 0
    for i_ in main_ins[k0+1:]:
        if i_.cls not in ('label', 'dir'):
            lo = (npg + 1)*4096
            if off >= lo and (i_.cls == 'mfma' or off + sz[id(i_)] > lo + 56):
                assert off < lo + 64
                out_.append(I(f"L_pg{npg}:")); out_.append(I(f"s_cbranch_execz L_pgn{npg}")); off += 4; npg += 1
            off += sz[id(i_)]
        out_.append(i_)
    for i_ in out_:
        if i_.text.startswith('s_cbranch_execz L_pgn'):
            k_ = int(i_.text.split('L_pgn')[1]) + 4
            i_.text = f"s_cbranch_execz L_pg{k_}" if k_ < npg else "s_cbranch_execz L_main"
    main_ins = out_
    print("code pages", npg, "bytes after L_main", off, file=sys.stderr)
hdr = open(os.path.join(os.path.dirname(os.path.abspath(__file__)), 'header.txt')).read()
txt = hdr + f"""; @launch grid=(256,1,1) block=(256,1,1) lds={LDS_BYTES}
.amdgcn_target "amdgcn-amd-amdhsa--gfx950"
.text
.globl {NAME}_kernel
.p2align 8
.type {NAME}_kernel,@function
{NAME}_kernel:
""" + render(main_ins) + render(sub_ins) + f"""L_pad:
    s_endpgm
.if (L_pad - {"L_main" if OPT["PADS"] else "L_pc"}) < {CODE_LINES*128}
.fill (({CODE_LINES*128} - (L_pad - {"L_main" if OPT["PADS"] else "L_pc"})) / 4) + 16, 4, 0xbf810000
.endif
.section .rodata,"a"
.p2align 6
.amdhsa_kernel {NAME}_kernel
  .amdhsa_next_free_vgpr 512
  .amdhsa_next_free_sgpr 102
  .amdhsa_accum_offset 256
  .amdhsa_group_segment_fixed_size 0
  .amdhsa_kernarg_size 88
  .amdhsa_user_sgpr_count 2
  .amdhsa_user_sgpr_kernarg_segment_ptr 1
  .amdhsa_system_sgpr_workgroup_id_x 1
.end_amdhsa_kernel
"""
if OPT['STAMP']: txt += '; STAMPS ' + ' '.join(stamp_names) + '\n'
open(sys.argv[1], 'w').write(txt)
```

```python
import sys, os, math, struct
from asmlib import *

NAME = "recurrent_scan__sliding_block_cached__dense_activation_relu__prompt"
OPT = dict(D=8, NA=12, HX=2, BAR=2, STAMP=0, PST=0, DUMP='', SIGG=60, FORCEFB=0, LOG=0,
           SST='sc1', HLD='sc1', HST='sc1', GLD='sc1', NOSST=0, NOHLD=0, NOHST=0,
           PX='', PW1='', PWQ='', PKV='', PWO='', PW2='', PF=1, PPF='', OST='', WSOFF=0, HSTEP=7, XREV=0, NPRO=4, WAITAT='', WAITT=0, WAITWG=-1, PADS=1, HSIG=150, HPF=0, PF0=0, PF1=14, CHAIN=1, WB=0, WBD=60, BIG=1, DSTART=0, W2ROT=1, NOPF2=2, HEND=40, XPF=1, L0N=1, X1=28, BARK=36, BARP=2, BARA=2, BAR4=2, SPAN=30, SPAN2=20, NV1=100, PKR=0, PCH=0, NOG=0, NOFLAG=0, W2G=-15, W2S=8, F0=3, F1=5, L0=0, W2PRE=6, H2A=1, H2B=100, SA=240, PA=410, CA=70, LA=140, SC=30, PB=175, N2=15, G1N=10, XFIRST=4, XSEC=0, WQE=2, OEARLY=2, H2SPAN=60, PFG=170, WQP=2, FINE=0, RT=0, SIMPLE=0, SSP=0)
for a_ in sys.argv[2:]:
    k_, v_ = a_.split('=')
    OPT[k_] = v_.replace('+', ' ') if isinstance(OPT[k_], str) else int(v_)
D = OPT['D']; NA = OPT['NA']

RING_SLOTS = 10
SLOT = 16384
LDS_BYTES = 163840
WS_S = 0
WS_H = 0x1C00000
WS_F = 0x2300000
WS_DBG = 0x2400000
WS_SIZE = 0x8000000 if (OPT['DUMP'] or OPT['STAMP']) else 0x2400000
OOB = 0x7f000000
CSCALE = math.log2(math.e) / 16.0
def f2u(x): return struct.unpack('<I', struct.pack('<f', x))[0]
def hx(x): return f"0x{x & 0xffffffff:x}"

sX, sW1, sWQ, sKK, sVV, sWO, sW2, sWS, sOUT = 28, 32, 36, 40, 44, 48, 52, 56, 60
def srd(b): return f"s[{b}:{b+3}]"
sW, sHD, sT, sWB, sSO = 64, 65, 66, 67, 68
sT0, sT1, sT2, sT3 = 69, 70, 71, 3
sQT = 72
sHST, sHLD, sSST, sSG, sFLG, sFLP, sCNT, sSO2, sTL, sROT, sSTEP, sPC = 86, 87, 88, 89, 90, 91, 92, 93, 94, 95, 96, 97
sTC, sCOOB, sHPF, sW2I, sKVI, sCC = 19, 20, 21, 24, 25, 2
sW1T = 12
sM1, sM2, sM3, sMD = 4, 6, 8, 10
sSV0, sSV1, sSV2 = 12, 13, 14
sSTMP = 26
DBGP = "s[22:23]"
vL16, vHS, vT0, vT1, vT2, vT3, vT4 = 1, 2, 3, 4, 5, 6, 7
vTR = 8
vRA = 20
vPF = 26
vZ, vONE, vPOLL, vSTAMP = 28, 29, 30, 31
vWQ, vKD, vVD, vWOD, vW2D = 32, 36, 40, 32, 36
vXN = 44
vR = 156
vW1D = vR + 64
vXD = vR + 68
vO = 128
vS = 44
vP = 76
vC = 92
vLS = 100
vM = 106
vA4 = 44
vRC = 126
aF, aST, aQ, aH = 0, 48, 64, 128

def v(i, n=1): return f"v{i}" if n == 1 else f"v[{i}:{i+n-1}]"
def a(i, n=1): return f"a{i}" if n == 1 else f"a[{i}:{i+n-1}]"
def mfma(d, A, B, C): return f"v_mfma_f32_16x16x32_bf16 {d}, {A}, {B}, {C}"
def I(t, tag=None): return Ins(t, tag)
lg = lambda x: int(math.log2(x))

P = Prog()
E = P.emit

nstamp = [0]
stamp_names = []
def stamp_ins(name=''):
    if OPT['WAITAT'] and name == OPT['WAITAT']:
        return [I(t_) for t_ in ((f"s_cmp_lg_u32 s0, {OPT['WAITWG']}", "s_cbranch_scc1 L_end") if OPT['WAITWG'] >= 0 else ()) + ("L_dw:", f"s_memrealtime s[{sSTMP}:{sSTMP+1}]", "s_waitcnt lgkmcnt(0)", f"s_sub_u32 s{sSTMP}, s{sSTMP}, s100",
                                 f"s_cmp_lt_u32 s{sSTMP}, {OPT['WAITT']}", "s_cbranch_scc1 L_dw")]
    if not OPT['STAMP']: return []
    if OPT['STAMP'] == 3 and name not in ('end', 'G4', 'wb0', 'wb1', 'G6', 'st_done', 'chk0', 'chk1', 'chk2', 'sigA', 'sigB', 'g6_done', 'g_done', 'pre_c2', 'pre_c1', 'pre_c0'): return []
    if OPT['STAMP'] == 2 and name not in ('end', 'G4', 'P0', 'G2_0', 'g6_done'): return []
    n = nstamp[0]; nstamp[0] += 1; stamp_names.append(name)
    return [I(f"{'s_memrealtime' if OPT['RT'] else 's_memtime'} s[{sSTMP}:{sSTMP+1}]"), I("s_waitcnt lgkmcnt(0)"), I(f"v_writelane_b32 v{vSTAMP}, s{sSTMP}, {n}")]
def STAMP(name=''):
    P.ins += stamp_ins(name)
def PST(name):
    if OPT['PST']: STAMP(name)

frags = []
chunks = []
def add_chunk(name, lo, size, dma, private=False):
    chunks.append(dict(name=name, lo=lo, hi=lo+size, dma=dma, private=private, first=None, last=None)); return len(chunks)-1
def add_frag(kind, rs, rb, addr, mf, ch):
    frags.append(dict(kind=kind, rb=rb, rs=rs, addr=addr, mf=mf, chunk=ch))
    c = chunks[ch]
    if c['first'] is None: c['first'] = len(frags)-1
    c['last'] = len(frags)-1
def frag_reads(f):
    fr = frags[f]; A = aF + 4*(f % NA)
    def rd(op, dst, addr):
        win = addr >> 16
        return I(f"{op} {dst}, v{fr['rb'] + win*fr['rs']} offset:{addr & 0xffff}", tag=('f', f))
    if fr['kind'] == 'tr':
        return [rd("ds_read_b64_tr_b16", a(A, 2), fr['addr']), rd("ds_read_b64_tr_b16", a(A+2, 2), fr['addr'] + 2048)]
    return [rd("ds_read_b128", a(A, 4), fr['addr'])]
POL = {sW1: 'PW1', sWQ: 'PWQ', sKK: 'PKV', sVV: 'PKV', sWO: 'PWO', sW2: 'PW2'}
ring_pos = [7]
def ring_round(name, srd_b, vbase, so_text, private=False):
    slot = ring_pos[0] % RING_SLOTS; ring_pos[0] += 1
    lo = slot*SLOT
    tag = ('c', len(chunks))
    dma = [I(f"s_add_u32 m0, s{sWB}, {lo}")]
    if so_text.startswith('s') or so_text == '0': so = so_text
    elif so_text.startswith('+'):
        dma.append(I(f"s_add_u32 s{sSO}, {so_text[1:]}")); so = f"s{sSO}"
    else:
        dma.append(I(f"s_mov_b32 s{sSO}, {so_text}")); so = f"s{sSO}"
    for rb in range(4):
        dma.append(I(f"buffer_load_dwordx4 v{vbase+rb}, {srd(srd_b)}, {so} offen offset:{rb*1024} {OPT[POL[srd_b]]} lds", tag=tag))
    return add_chunk(name, lo, SLOT, dma, private)

phase = {}
def xn(ks, tg): return vXN + (ks*2 + tg)*4
def accp(pp, kq, tg, par): return vR + (pp % 2)*32 + ((kq*2 + tg)*2 + par)*4
pend_ = []
for pp in range(6):
    phase[f'P{pp}'] = len(frags)
    for ks in range(14):
        qi = 14*pp + ks
        if qi % 4 == 0:
            r_ = qi // 4
            blk_, rp = r_ // 7, r_ % 7
            R_ = 32*(8192 if blk_ < 2 else 3584); sb = sW1T + (0 if blk_ < 2 else 2); cb_ = 256 if blk_ == 1 else 0
            so_ = f"+s{sb+1}, {cb_}" if rp == 3 else f"+s{sb}, {(4*rp*R_ if rp < 3 else (4*rp-14)*R_ + 128) + cb_}"
            ch = ring_round(f"wq_{r_}", sWQ, vWQ, so_) if r_ < 14 else ring_round(f"w1_{r_-14}", sW1, vW1D, so_)
        pend_.append((ks, qi, ch))
        if OPT['PCH'] and ks % 2 == 0: continue
        for u2 in range(2):
            for u in (2*u2, 2*u2+1):
                for ks_, qi_, ch_ in pend_:
                    mf = (lambda A, pp=pp, ks=ks_, u=u: [mfma(v(accp(pp, u >> 1, tg, u & 1), 4), A, v(xn(ks, tg), 4), "0" if ks == 0 else v(accp(pp, u >> 1, tg, u & 1), 4)) for tg in range(2)])
                    add_frag('tr', 4, vTR + u, chunks[ch_]['lo'] + (qi_ % 4)*4096, mf, ch_)
        pend_ = []
def qf(kq, tg): return aQ + (kq*2 + tg)*4
def Sreg(st, tg, kt): return vS + (st % 2)*16 + tg*8 + kt*4
def Preg(st, tg): return vP + (st % 2)*8 + tg*4
def Oreg(d, tg): return vO + (((d >> 1)*2 + tg)*2 + (d & 1))*4
def G2(st):
    phase[f'G2_{st}'] = len(frags)
    ch = ring_round(f"K_{st}", sKK, vKD, str(st*16384))
    order = [(kt, ks) for kt in range(2) for ks in range(8)]
    for kt, ks in order:
        def mf(A, kt=kt, ks=ks):
            r = []
            for tg in range(2):
                c = v(Sreg(st, tg, kt), 4)
                if ks == 0: c = "0" if st < 1 else v(vC + 4*tg, 4)
                r.append(mfma(v(Sreg(st, tg, kt), 4), A, a(qf(ks, tg), 4), c))
            return r
        add_frag('b128', 2, vRA + (ks & 1), chunks[ch]['lo'] + (ks >> 1)*4096 + kt*2048, mf, ch)
def G3(st):
    phase[f'G3_{st}'] = len(frags)
    ch = ring_round(f"V_{st}", sVV, vVD, str(st*16384))
    for d in range(16):
        mf = (lambda A, d=d: [mfma(v(Oreg(d, tg), 4), A, v(Preg(st, tg), 4), "0" if st == 0 else v(Oreg(d, tg), 4)) for tg in range(2)])
        add_frag('tr', 4, vTR + (d & 3), chunks[ch]['lo'] + (d >> 2)*4096, mf, ch)
G2(0)
for st in range(15):
    G2(st + 1); G3(st)
G3(15)
phase['G4'] = len(frags)
def acc4(p, u, tg): return vA4 + u*8 + tg*4
def Opk(ks, tg): return vO + (ks*2 + tg)*8
for p in range(7):
    chs = [ring_round(f"wo_{p}_{h_}", sWO, vWOD, f"s{sQT+p}" if h_ == 0 else f"+s{sQT+p}, {4*32*896}") for h_ in range(2)]
    for u in range(4):
        for ks in range(8):
            ch = chs[ks // 4]
            mf = (lambda A, p=p, ks=ks, u=u: [mfma(v(acc4(p, u, tg), 4), A, v(Opk(ks, tg), 4), "0" if ks == 0 else v(acc4(p, u, tg), 4)) for tg in range(2)])
            add_frag('tr', 4, vTR + u, chunks[ch]['lo'] + (ks % 4)*4096, mf, ch)
phase['G6'] = len(frags)
def hole(i): return vO + 8*i + 4
def hreg(kk, t4):
    i = kk*4 + t4
    if i < 32: return a(aH + 4*i, 4)
    if i < 48: return a(aQ + 4*(i-32), 4)
    return v(hole(i-48), 4)
def facc(u, t4):
    i = u*4 + t4
    return vA4 + 32 + 4*i if i < 8 else hole(i)
vTP = 108
for kk in range(14):
    ch = ring_round(f"w2_{kk}", sW2, vW2D, str(kk*32*896), private=True)
    for u in range(4):
        mf = (lambda A, kk=kk, u=u: [mfma(v(facc(u, t4), 4), A, hreg(kk, t4), "0" if kk == 0 else v(facc(u, t4), 4)) for t4 in range(4)])
        add_frag('tr', 4, vTP + u, chunks[ch]['lo'], mf, ch)
NF = len(frags)
phase['END'] = NF

MF = [fr['mf'](a(aF + 4*(f % NA), 4)) for f, fr in enumerate(frags)]
if OPT['CHAIN']:
    for f0 in range(0, NF, 4):
        nm_ = chunks[frags[f0]['chunk']]['name']
        if nm_.startswith('K_') or nm_.startswith('wo_') or (OPT['PCH'] and nm_[:2] in ('wq', 'w1')):
            fl = [MF[f0+k_][tg] for tg in range(2) for k_ in range(4)]
            for k_ in range(4): MF[f0+k_] = fl[2*k_:2*k_+2]
G0 = [0]
for f in range(NF): G0.append(G0[-1] + len(MF[f]))
NG = G0[-1]
def gap(f): return G0[max(0, min(f, NF))]
pre = [[] for _ in range(NG)]
rds = [[] for _ in range(NG)]
ext = [[] for _ in range(NG)]
blk = {}
for g in range(NF):
    if g + D < NF:
        r = frag_reads(g + D)
        n = len(MF[g])
        rds[G0[g]].append(r[0])
        if len(r) > 1: rds[G0[g] + n//2].append(r[1])
def cost(i):
    if i.cls in ('ds',): return 8
    if i.cls == 'vmem': return 24 if 'store' in i.op and 'x4' in i.op else 8
    if i.cls in ('trans', 'perm'): return 8
    if i.cls == 'label': return 0
    return 4
def gtime(items):
    t = 4
    for i in items:
        if i.cls in VALU_LIKE: t = max(t, 8)
        t += cost(i)
    return t
def fits(gp, i): return gtime(pre[gp] + rds[gp] + ext[gp] + [i]) <= 16
def place(seq, g0, g1=None):
    seq = [I(s) if isinstance(s, str) else s for s in seq]
    g1 = NG if g1 is None else min(g1, NG)
    gp = g0; n = len(seq)
    for k, ins in enumerate(seq):
        bound = max(min(g0 + ((k + 1) * (g1 - g0)) // n - 1, g1 - 1), gp)
        best = None
        for q in range(gp, bound + 1):
            if fits(q, ins): best = q; break
        if best is None:
            best = min(range(gp, bound + 1), key=lambda q: (gtime(pre[q] + rds[q] + ext[q] + [ins]), q))
        ext[best].append(ins)
        gp = best
    return gp
def spread(seq, g0, g1):
    n = len(seq); cur = g0
    for k, ins in enumerate(seq):
        lo = max(g0 + (k*(g1-g0))//n, cur); hi = max(g0 + ((k+1)*(g1-g0))//n, lo+1)
        cur = place([ins], lo, hi)
    return cur

shared = [c for c in range(len(chunks)) if not chunks[c]['private']]
def is_bar(k_):
    if k_ == 0: return True
    if k_ < 21: return (k_ - 1) % OPT['BARP'] == 0
    if k_ < 53: return (k_ - 21) % OPT['BARA'] == 0
    return (k_ - 53) % OPT['BAR4'] == 0
bar_frags = [chunks[c]['first'] for k_, c in enumerate(shared) if is_bar(k_)]
bar_frags += [phase['G6'], phase['G6'] + D + 1]
bar_frags = sorted(set(bar_frags))
bar_gap = []
first_need = None
for bi, f0 in enumerate(bar_frags):
    f1 = bar_frags[bi+1] if bi + 1 < len(bar_frags) else NF
    need = [('c', c) for c in shared if f0 <= chunks[c]['first'] < f1]
    if f0 == 0: first_need = need; continue
    gp = gap(f0 - D); bar_gap.append(gp)
    if need: ext[gp-1].append(mk_wait_vm(need))
    pre[gp].append(I("s_barrier"))
for c in range(len(chunks)):
    if chunks[c]['private']:
        ext[gap(chunks[c]['first'] - D) - 1].append(mk_wait_vm([('c', c)]))
for g in range(4, NF, 4):
    ext[gap(g) - 1].append(mk_wait_lg([('f', f) for f in range(g, min(g+4, NF))]))
def earliest_gap(c):
    e = -1
    C = chunks[c]
    for c2 in range(c):
        B = chunks[c2]
        if B['hi'] <= C['lo'] or C['hi'] <= B['lo']: continue
        if B['private'] and C['private']: e = max(e, gap(B['last'] + 1))
        else: e = max(e, [gp for gp in bar_gap if gp >= gap(B['last'] + 1)][0] + 1)
    return e
pro_dma = []
cur = OPT['DSTART']
for c in range(len(chunks)):
    e = earliest_gap(c)
    if e < 0 and c < OPT['NPRO']:
        pro_dma.append(chunks[c]['dma']); continue
    if chunks[c]['name'].startswith('w2_') and int(chunks[c]['name'][3:]) >= OPT['W2PRE']: e = max(e, gap(phase['G6']) + OPT['W2G'])
    g0 = max(e, cur)
    span = OPT['SPAN']
    if g0 > e + 8: span = OPT['SPAN2']
    if g0 >= gap(phase['G6'] - D): span = OPT['W2S']
    seq = list(chunks[c]['dma'])
    if chunks[c]['name'] == 'wo_0_0': seq = [I(f"v_accvgpr_read_b32 v{vWOD+i}, a{aST+i}") for i in range(4)] + seq; wo_first_gap = g0
    if chunks[c]['name'] == 'w2_0': seq = [I(f"v_accvgpr_read_b32 v{vW2D+i}, a{aST+4+i}") for i in range(4)] + seq
    cur = spread(seq, g0, g0 + span)
    need_gap = gap(chunks[c]['first'] - D)
    if not chunks[c]['private']: need_gap = max(gp for gp in bar_gap if gp <= need_gap)
    if OPT['LOG']: print(chunks[c]['name'], g0, cur, need_gap, 'lead', need_gap - cur, file=sys.stderr)
    assert cur < need_gap - 1, (chunks[c]['name'], cur)

seq = []
for p in range(7):
    seq += [f"s_add_u32 s{sT2}, s{sROT}, {p}", f"s_sub_u32 s{sT3}, s{sT2}, 7", f"s_min_u32 s{sT2}, s{sT2}, s{sT3}",
            f"s_lshl_b32 s{sQT+p}, s{sT2}, 7", f"s_lshl_b32 s{sT2}, s{sT2}, 16", f"s_add_u32 s{sQT+7+p}, s{sSST}, s{sT2}",
            f"s_add_u32 s{sSST}, s{sSST}, s{sSTEP}"]
spread(seq, 6, 100)
assert gap(phase['G3_8']) < wo_first_gap
assert OPT['BAR'] == 2
place([f"v_add_u32 v{vTP+i}, s{sWB}, v{vTR+i}" for i in range(12)], gap(phase['G4'] + 8), gap(phase['G4'] + 40))

def hconv(pp):
    s = []
    for kq in range(2):
        for tg in range(2):
            b = accp(pp, kq, tg, 0)
            if not OPT['PKR']:
                for r in range(8): s.append(f"v_max_f32 v{b+r}, 0, v{b+r}")
            for r in range(4): s.append(f"v_cvt_pk_bf16_f32 v{b+r}, v{b+2*r}, v{b+2*r+1}")
            if OPT['PKR']:
                for r in range(4): s.append(f"v_pk_max_i16 v{b+r}, v{b+r}, 0")
            if not OPT['NOHST']:
                s.append(I(f"buffer_store_dwordx4 {v(b,4)}, v{vHS}, {srd(sWS)}, s{sHST} offen offset:{kq*2048 + tg*1024} {OPT['HST']}", tag='hst'))
    if pp == 4: s.append(f"s_add_u32 s{sHST}, s{sHST}, 4096")
    return s
place(hconv(4), gap(phase['P5']) + 4, gap(phase['G2_0']) - 4)
def qconv(pp):
    s = []
    for kq in range(2):
        for tg in range(2):
            b = accp(pp, kq, tg, 0)
            s += [f"v_cvt_pk_bf16_f32 v{b+r}, v{b+2*r}, v{b+2*r+1}" for r in range(4)]
            s += [f"v_permlane32_swap_b32 v{b}, v{b+2}", f"v_permlane32_swap_b32 v{b+1}, v{b+3}",
                  f"v_permlane16_swap_b32 v{b}, v{b+2}", f"v_permlane16_swap_b32 v{b+1}, v{b+3}"]
            s += [f"v_accvgpr_write_b32 a{qf(2*pp+kq, tg)+r}, v{b+r}" for r in range(4)]
    return s
for pp in range(4):
    g0 = gap(phase[f'P{pp+1}'])
    place(qconv(pp), g0 + 4, g0 + 2*56 - 4)

def allred(r, t, op):
    return [f"v_mov_b32 v{t}, v{r}", f"v_permlane32_swap_b32 v{r}, v{t}", f"{op} v{r}, v{r}, v{t}",
            f"v_mov_b32 v{t}, v{r}", f"v_permlane16_swap_b32 v{r}, v{t}", f"{op} v{r}, v{r}, v{t}"]
def interleave(*seqs):
    out = []
    for k in range(max(len(s) for s in seqs)):
        for s in seqs:
            if k < len(s): out.append(s[k])
    return out
def svals(st): return [Sreg(st, tg, kt) + r for tg in range(2) for kt in range(2) for r in range(4)]
g0 = gap(phase['G2_0'])
seqs = []
for tg in range(2):
    b = Sreg(0, tg, 0); m = vM + 2*tg; t = m + 1
    s = [f"v_max3_f32 v{m}, v{b}, v{b+1}, v{b+2}", f"v_max_f32 v{m}, v{m}, v{b+3}"] + allred(m, t, "v_max_f32")
    s += [f"v_sub_f32 v{vC+4*tg+r}, 0, v{m}" for r in range(4)]
    seqs.append(s)
seq = interleave(*seqs) + [f"v_mov_b32 v{vLS}, 0", f"v_mov_b32 v{vLS+1}, 0"]
gm = place(seq, g0 + 19, g0 + 31)
def sm_seq(st, sub):
    s = []
    vals = svals(st)
    for k_, r in enumerate(vals):
        tg = k_ // 8
        if sub: s.append(f"v_add_f32 v{r}, v{r}, v{vC+4*tg}")
        s.append(f"v_exp_f32 v{r}, v{r}")
        if k_ % 2 == 1 and k_ >= 3:
            kk = k_ - 3
            s.append(f"v_cvt_pk_bf16_f32 v{Preg(st, kk//8) + (kk % 8)//2}, v{vals[kk]}, v{vals[kk+1]}")
    s.append(f"v_cvt_pk_bf16_f32 v{Preg(st, 1) + 3}, v{vals[14]}, v{vals[15]}")
    return s
def add_seq(st):
    vals = svals(st)
    return interleave([f"v_add_f32 v{vLS}, v{vLS}, v{r}" for r in vals[:8]], [f"v_add_f32 v{vLS+1}, v{vLS+1}, v{r}" for r in vals[8:]])
for st in range(16):
    g3 = gap(phase[f'G3_{st}'])
    if st == 0:
        ge = place(sm_seq(st, True), gap(phase['G2_1']) + 3, g3 - 1)
    elif st < 15:
        gs = gap(phase[f'G2_{st+1}'] - D)
        ge = place(sm_seq(st, False), gs, g3 - 2)
    else:
        ge = place(sm_seq(st, False), gap(phase['G3_14']) + 4, g3 - 2)
    lim = gap(phase[f'G2_{st+2}']) - 2 if st + 2 < 16 else g3 + 14
    ga = place(add_seq(st), ge, lim)
seqs = []
for tg in range(2):
    l = vLS + tg; t = vM + tg
    seqs.append(allred(l, t, "v_add_f32") + [f"v_rcp_f32 v{vRC+tg}, v{l}"])
seq = interleave(*seqs) + [f"v_add_f32 v{vM}, v{vLS}, v{vLS+1}", f"s_mov_b32 s{sT0}, {hx(f2u(2.0**24 if not OPT['FORCEFB'] else 0.5))}", f"v_cmp_ngt_f32 vcc, s{sT0}, v{vM}"]
place(seq, ga, gap(phase['G4']) - 1)

hc = hconv(5)
n3 = 3*len(hc)//4
place(hc[:n3], gap(phase['G2_0']) + 3, gap(phase['G2_0']) + 19)
gend = place(hc[n3:], gap(phase['G3_0']), gap(phase['G3_0']) + 16)
assert accp(5, 1, 1, 0) >= Oreg(10, 0)
hb = [gp for gp in bar_gap if gp > gend + OPT['HSIG']][0]
ext[hb-1].append(mk_wait_vm(['hst']))
sig = [I(f"s_cmp_lg_u32 s{sW}, 0"), I("s_cbranch_scc1 L_nosig"), I(f"s_lshl_b32 s{sT0}, s{sT}, 4"), I(f"v_mov_b32 v{vPOLL}, s{sT0}"),
       I("s_mov_b64 exec, 1"), I(f"global_atomic_add v{vPOLL}, v{vONE}, {DBGP} sc1"), I("s_mov_b64 exec, -1"), I("L_nosig:")]
sig[5].cls = 'misc'
ext[hb+1] += sig

def dump(regs_list):
    r = [I("s_nop 15"), I(f"s_lshl_b32 s{sT0}, s{sT}, 4"), I(f"s_add_u32 s{sT0}, s{sT0}, s{sHD}"),
         I(f"s_lshl_b32 s{sT0}, s{sT0}, 2"), I(f"s_add_u32 s{sT0}, s{sT0}, s{sW}"),
         I(f"s_mul_i32 s{sT0}, s{sT0}, {32*1024}"), I(f"s_add_u32 s{sT0}, s{sT0}, {hx(WS_DBG)}")]
    for reg in regs_list:
        r.append(I(f"buffer_store_dwordx4 {reg}, v{vL16}, {srd(sWS)}, s{sT0} offen"))
        r.append(I(f"s_add_u32 s{sT0}, s{sT0}, 1024"))
    r.append(I("s_nop 3"))
    return r
def ocvt(ks): return [f"v_cvt_pk_bf16_f32 v{Opk(ks, tg)+r}, v{Opk(ks, tg)+2*r}, v{Opk(ks, tg)+2*r+1}" for tg in range(2) for r in range(4)]
NEARLY = OPT['OEARLY']
g15 = gap(phase['G3_15'])
for ks in range(NEARLY): place(ocvt(ks), g15 + 4*ks + 8, gap(phase['G4']) - 1)
b = stamp_ins('attn_done') + [I("s_cbranch_vccnz L_exact")]
for ks in range(NEARLY, 8): b += [I(t_) for t_ in ocvt(ks)]
b.append(I("L_exact_ret:"))
if OPT['DUMP'] == 'o': b += dump([v(Opk(ks, tg), 4) for ks in range(8) for tg in range(2)])
if OPT['DUMP'] == 'q': b += dump([a(qf(ks, tg), 4) for ks in range(8) for tg in range(2)])
b += stamp_ins('G4')
blk[phase['G4']] = b

def sconv(p, u):
    b = acc4(p, u, 0)
    s = [f"v_mul_f32 v{b+r}, v{vRC + r//4}, v{b+r}" for r in range(8)]
    s += [f"v_cvt_pk_bf16_f32 v{b+r}, v{b+2*r}, v{b+2*r+1}" for r in range(4)]
    if u: s.append(f"s_add_u32 s{sQT+7+p}, s{sQT+7+p}, 16384")
    if not OPT['NOSST']: s.append(I(f"buffer_store_dwordx4 {v(b,4)}, v{vL16}, {srd(sWS)}, s{sQT+7+p} offen {OPT['SST']}", tag=('sst', p)))
    return s
g4 = gap(phase['G4'])
for p in range(7):
    for u in range(4):
        g0 = g4 + 64*p + 16*(u+1)
        gl = place(sconv(p, u), g0 + 3, g0 + (19 if (p, u) != (6, 3) else 10))
last_store_gap = gl
hs = OPT['HSTEP']
gp0 = gap(phase[f'G3_{hs-1}']) - 30
place([f"s_lshl_b32 s{sT0}, s{sTC}, 4", f"v_mov_b32 v{vPOLL}, s{sT0}", I(f"global_load_dword v{vPOLL}, v{vPOLL}, {DBGP} sc1", tag='pollh'),
       f"v_add_u32 v{vHS}, s{sCOOB}, v{vL16}"], gp0, gp0 + 24)
gp1 = gap(phase[f'G3_{hs}'])
ext[gp1] += [mk_wait_vm(['pollh']), I(f"v_cmp_gt_u32 vcc, 16, v{vPOLL}"), I("s_cbranch_vccnz L_spinh"), I("L_spinh_ret:")]
def hloads(k0, k1):
    s = []
    for kk in range(k0, k1, 2):
        for rl in range(2):
            s.append(f"s_add_u32 s{sT0}, s{sHLD}, {rl*56*2048 + kk*2048}")
            for k2 in range(2):
                for tg in range(2):
                    s.append(I(f"buffer_load_dwordx4 {hreg(kk+k2, rl*2+tg)}, v{vHS}, {srd(sWS)}, s{sT0} offen offset:{k2*2048 + tg*1024} {OPT['HLD']}", tag='hld'))
    return s
if not OPT['NOHLD']:
    spread(hloads(0, 8), gap(phase[f"G3_{hs+OPT['HPF']}"]) + 2, gap(phase['G3_15']) - OPT['HEND'])
    spread(hloads(8, 14), g4 + OPT['H2A'], g4 + OPT['H2B'])
g6 = gap(phase['G6'])
vFV = 120
def greg(rl, sl):
    i = sl*2 + rl
    if i < 16: return v(Opk(0, 0) + 8*i, 4)
    return a(aH + (i - 16)*4, 4)
def gloads(s0, s1, va):
    s = []
    for sq in range(s0, s1, 2):
        for rl in range(2):
            s.append(I(f"s_add_u32 s{sT1}, s{sSG}, {rl*28*16384 + sq*1024}"))
            for sl in range(sq, sq+2):
                if not OPT['NOG']: s.append(I(f"buffer_load_dwordx4 {greg(rl, sl)}, v{va}, {srd(sWS)}, s{sT1} offen offset:{(sl-sq)*1024} {OPT['GLD']}", tag=('g', rl, sl)))
    return s
F0 = OPT['F0']
sPL = 32
sMISS = 18
place([f"v_mov_b32 v{vFV}, 1", f"v_mov_b32 v{vFV+1}, 3", f"v_and_b32 v{vFV+3}, 31, v0"], g4 + 100, g4 + 200)
def signal(k, n): return [mk_wait_vm([('sst', p) for p in range(n)]), I(f"buffer_store_byte v{vFV+k}, v{vZ}, {srd(sWS)}, s{sFLG} offen sc1", tag='flag')]
spoll = I(f"s_buffer_load_dwordx8 s[{sPL}:{sPL+7}], {srd(sWS)}, s{sFLP} glc"); spoll.cls = 'misc'
VPOLL = f"buffer_load_ubyte v{vPOLL}, v{vFV+3}, {srd(sWS)}, s{sFLP} offen sc1"
if OPT['WB']:
    def signal(k, n, gp):
        ext[gp - OPT['WBD']] += [mk_wait_vm([('sst', p) for p in range(n)]), I("buffer_wbl2 sc1", tag=('wb', k))] + stamp_ins(f'wb{k}')
        return [mk_wait_vm([('wb', k)]), I(f"buffer_store_byte v{vFV+k}, v{vZ}, {srd(sWS)}, s{sFLG} offen sc1", tag='flag')]
else:
    signal_ = signal
    def signal(k, n, gp): return signal_(k, n)
ext[g4 + OPT['SA']] += signal(0, F0, g4 + OPT['SA']) + stamp_ins('sigA')
ext[g4 + OPT['PA']] += [spoll]
sg = g6 + OPT['SC']
ext[sg] += signal(1, 7, sg) + stamp_ins('st_done') + [I(f"s_cmp_ge_u32 s{sPC}, 14"), I("s_cbranch_scc1 " + ("L_fin" if OPT['STAMP'] == 3 else "L_end"))]
assert sg > bar_gap[-1] and sg > last_store_gap
ext[g6 + OPT['CA']] += stamp_ins('pre_c0') + [I(t_) for t_ in (
    "s_waitcnt lgkmcnt(0)", f"s_and_b64 s[{sPL}:{sPL+1}], s[{sPL}:{sPL+1}], s[{sPL+2}:{sPL+3}]", f"s_and_b64 s[{sPL+4}:{sPL+5}], s[{sPL+4}:{sPL+5}], s[{sPL+6}:{sPL+7}]",
    f"s_and_b64 s[{sPL}:{sPL+1}], s[{sPL}:{sPL+1}], s[{sPL+4}:{sPL+5}]", f"s_and_b32 s{sPL}, s{sPL}, s{sPL+1}",
    f"s_and_b32 s{sPL}, s{sPL}, 0x01010101", f"s_cmp_eq_u32 s{sPL}, 0x01010101", f"s_cselect_b32 s{sMISS}, 0, {hx(OOB)}",
    f"v_add_u32 v{vFV+2}, s{sMISS}, v{vHS}")] + stamp_ins('chk0')
spread(gloads(0, 2*F0, vFV+2), g6 + OPT['CA'] + 1, g6 + OPT['LA'])
ext[g6 + OPT['PB']] += [I(VPOLL, tag='poll')]

vXF = 68
vAD = 125
seq = [f"v_accvgpr_read_b32 v{vAD}, a{aST+8}"]
for t4 in range(4):
    if t4: seq.append(f"s_mov_b32 s{sSV0 + t4 - 1}, {t4*14336}")
    seq.append(I(f"buffer_load_dwordx2 {v(vXF + t4*2, 2)}, v{vAD}, {srd(sX)}, {'0' if t4 == 0 else 's%d' % (sSV0+t4-1)} offen", tag='xf'))
spread(seq, g6 + 14, g6 + 40)
HX = OPT['HX']; NHG = 16 // HX; NT = 32 // HX
npf = [0]
def pf_addr(nlines, lines_per_row, pitch, k, dst, idx_sgpr, nshare):
    per = nlines // nshare
    s = [f"s_lshl_b32 s{sSO2}, s{sW}, 6", f"s_add_u32 s{sSO2}, s{sSO2}, {k*256}", f"v_add_u32 v{dst}, s{sSO2}, v0",
         f"v_min_u32 v{dst}, {per-1}, v{dst}", f"s_mul_i32 s{sSO2}, s{idx_sgpr}, {per}", f"v_add_u32 v{dst}, s{sSO2}, v{dst}"]
    if lines_per_row is None:
        s += [f"v_lshlrev_b32 v{dst}, 7, v{dst}"]
    else:
        sh = lg(lines_per_row)
        s += [f"v_and_b32 v{vPF}, {lines_per_row-1}, v{dst}", f"v_lshrrev_b32 v{dst}, {sh}, v{dst}",
              f"v_mul_u32_u24 v{dst}, {pitch}, v{dst}", f"v_lshl_add_u32 v{dst}, v{vPF}, 7, v{dst}"]
    return s
def pf_load(srd_b, dst):
    npf[0] += 1
    return I(f"buffer_load_dword a{aST + 10 + npf[0] % 6}, v{dst}, {srd(srd_b)}, 0 offen {OPT['PPF']}", tag='pf')
def pf_seq(srd_b, nlines, lines_per_row, pitch, idx, nshare):
    s = []
    for k in range((nlines // nshare + 255) // 256):
        s += pf_addr(nlines, lines_per_row, pitch, k, vPF+1, idx, nshare) + [pf_load(srd_b, vPF+1)]
    return s
vLQ = 26
def pf_pieces(srd_b, per, unit, idx, extra_base=None, pol='', rot=False):
    setup = [f"s_mul_i32 s{sSO2}, s{idx}, {per}", f"v_add_u32 v{vPF+1}, s{sSO2}, v{vLQ}", f"v_mul_u32_u24 v{vPF+1}, {unit}, v{vPF+1}"]
    if extra_base is not None: setup.append(f"v_add_u32 v{vPF+1}, s{extra_base}, v{vPF+1}")
    pcs = []
    for k in range((per + 63)//64):
        npf[0] += 1
        n_ = (per + 63)//64
        if rot and k == 0: so_ = [f"s_lshr_b32 s{sSO2}, s{sTC}, 1", f"s_sub_u32 s{sCNT}, s{sSO2}, {n_}", f"s_min_u32 s{sSO2}, s{sSO2}, s{sCNT}", f"s_mul_i32 s{sSO2}, s{sSO2}, {64*unit}"]
        elif rot: so_ = [f"s_add_u32 s{sSO2}, s{sSO2}, {64*unit}", f"s_sub_u32 s{sCNT}, s{sSO2}, {n_*64*unit}", f"s_min_u32 s{sSO2}, s{sSO2}, s{sCNT}"]
        else: so_ = [f"s_mov_b32 s{sSO2}, {k*64*unit}"]
        pcs.append(so_ + [I(f"buffer_load_dword a{aST + 9 + npf[0] % 7}, v{vPF+1}, {srd(srd_b)}, s{sSO2} offen {pol}", tag='pf')])
    return setup, pcs
def pf_run(streams, g0, g1):
    items = []
    for st_ in streams:
        su, pcs = st_
        for k, p_ in enumerate(pcs): items.append((su if k == 0 else []) + p_)
    n = len(items)
    for k, it_ in enumerate(items):
        lo = g0 + (k*(g1-g0))//n
        place(it_, lo, lo + 24)
if OPT['PF']:
    place([f"v_lshrrev_b32 v{vLQ}, 2, v0", f"s_lshl_b32 s{sSO2}, s{sW}, 4", f"v_add_u32 v{vLQ}, s{sSO2}, v{vLQ}"], 100, 130)
    if not OPT['BIG'] & 2: pf_run([pf_pieces(sKK, 2048//(2*NT), 128, sKVI, pol=OPT['PPF']), pf_pieces(sVV, 2048//(2*NT), 128, sKVI, pol=OPT['PPF'])], OPT['PFG'], gap(phase['P4']))
    if not OPT['NOPF2'] & 1: pf_run([pf_pieces(sWO, 1792//NT, 128, sTL), pf_pieces(sW2, 448, 896, sW2I, rot=OPT['W2ROT'])], gap(phase[f"G3_{OPT['PF0']}"]), gp1 if OPT['PF1'] == 0 else gap(phase[f"G3_{OPT['PF1']}"]))
    vPF += -20
    sSO2 = sT3
    if not OPT['NOPF2'] & 2: pf_run([pf_pieces(sWS, 256, 128, sCC, sHPF, 'sc1')], gp1 + 2, gap(phase[f"G3_{hs+OPT['HPF']}"]) - 20)
    vPF += 20
    sSO2 = 93

if OPT['FINE'] == 1:
    for p in range(1, 7): phase[f'G4p{p}'] = phase['G4'] + 32*p; blk[phase[f'G4p{p}']] = stamp_ins(f'G4p{p}')
    for kk in range(2, 14, 2): phase[f'G6k{kk}'] = phase['G6'] + 4*kk; blk[phase[f'G6k{kk}']] = stamp_ins(f'G6k{kk}')
if OPT['FINE'] == 2:
    for nm in ['P1', 'P3', 'P5'] + [f'G2_{s_}' for s_ in range(1, 16) if s_ % 4] + ['G3_14', 'G3_15']:
        blk[phase[nm]] = stamp_ins(nm)
if OPT['STAMP'] or OPT['WAITAT']:
    for nm in ('P0', 'P2', 'P4', 'G2_0', 'G2_4', 'G2_8', 'G2_12', 'G6'):
        blk.setdefault(phase[nm], [])
        blk[phase[nm]] = stamp_ins(nm) + blk[phase[nm]]

E(f"""
s_cmp_ge_u32 s2, 256
s_cbranch_scc1 L_end
s_load_dwordx16 s[4:19], s[0:1], 0
s_load_dwordx4 s[20:23], s[0:1], 64
s_load_dwordx2 s[24:25], s[0:1], 80
""")
if OPT['STAMP'] or OPT['WAITAT']: E("s_memtime s[98:99]\ns_memrealtime s[100:101]")
E(f"""
v_lshrrev_b32 v{vT0}, 6, v0
v_and_b32 v0, 63, v0
s_and_b32 s{sT0}, s2, 7
v_readfirstlane_b32 s{sW}, v{vT0}
s_lshr_b32 s{sT1}, s2, 3
s_and_b32 s{sT2}, s{sT0}, {NHG-1}
s_lshl_b32 s{sT2}, s{sT2}, {lg(HX)}
s_and_b32 s{sHD}, s{sT1}, {HX-1}
s_add_u32 s{sHD}, s{sHD}, s{sT2}
s_lshr_b32 s{sT2}, s{sT0}, {lg(NHG)}
s_lshl_b32 s{sT2}, s{sT2}, {lg(NT)}
s_lshr_b32 s{sTL}, s{sT1}, {lg(HX)}
s_add_u32 s{sT}, s{sTL}, s{sT2}
s_lshl_b32 s{sWB}, s{sW}, 12
""")
CODE_LINES = 512
E(f"s_lshr_b32 s{sCNT}, s2, 3")
for t_ in pf_addr(CODE_LINES, None, 0, 0, vR+80, sCNT, 32): E(t_)
E(f"""
s_getpc_b64 s[26:27]
L_pc:
global_load_dword v{vR+90}, v{vR+80}, s[26:27]
""")
E(f"""
v_lshrrev_b32 v{vT3}, 3, v0
v_and_b32 v{vT4}, 7, v0
v_lshrrev_b32 v{vT1}, 1, v{vT3}
v_xor_b32 v{vT1}, v{vT1}, v{vT4}
v_lshlrev_b32 v{vT1}, 4, v{vT1}
v_xor_b32 v{vT2}, 64, v{vT1}
s_lshl_b32 s{sT1}, s{sT}, 2
s_add_u32 s{sT1}, s{sT1}, s{sW}
s_mul_i32 s{sT1}, s{sT1}, {32*896}
v_mul_u32_u24 v{vT0}, 896, v{vT3}
v_add_u32 v{vT0}, s{sT1}, v{vT0}
v_add_u32 v{vXD}, v{vT0}, v{vT1}
v_add_u32 v{vXD+1}, v{vT0}, v{vT2}
v_add_u32 v{vXD+2}, {2*6144}, v{vXD}
v_add_u32 v{vXD+3}, {3*6144}, v{vXD+1}
v_add_u32 v{vXD+1}, 6144, v{vXD+1}
s_mov_b32 m0, s{sWB}
s_mov_b32 s{sSO}, 0
v_min_u32 v{vR+82}, 13, v0
v_subrev_u32 v{vR+83}, 7, v{vR+82}
v_min_u32 v{vR+83}, v{vR+83}, v{vR+82}
v_sub_u32 v{vR+82}, v{vR+82}, v{vR+83}
v_lshlrev_b32 v{vR+82}, 11, v{vR+82}
v_lshl_add_u32 v{vR+82}, v{vR+83}, 7, v{vR+82}
s_mul_i32 s{sT2}, s{sHD}, 896
s_add_u32 s{sT2}, s{sT2}, s{sT1}
s_mov_b32 s{sX+2}, {2048*896}
s_mov_b32 s{sX+3}, 0x00020000
s_waitcnt lgkmcnt(0)
s_mov_b32 s{sX}, s4
s_mov_b32 s{sX+1}, s5
""")
PST('karg')
def mk_srd(b, plo, off_sgpr, size):
    if off_sgpr is None:
        E(f"s_mov_b32 s{b}, s{plo}\ns_mov_b32 s{b+1}, s{plo+1}")
    else:
        E(f"s_add_u32 s{b}, s{plo}, s{off_sgpr}\ns_addc_u32 s{b+1}, s{plo+1}, 0")
    E(f"s_mov_b32 s{b+2}, {size}\ns_mov_b32 s{b+3}, 0x00020000")
xdma = []
for tg in range(2):
    for q in range(7):
        if q or tg:
            xdma += [I(f"s_add_u32 m0, s{sWB}, {q*SLOT}"), I(f"s_movk_i32 s{sSO}, {q*128}")]
        for rb in (2*tg, 2*tg+1):
            xdma.append(I(f"buffer_load_dwordx4 v{vXD+rb}, {srd(sX)}, s{sSO} offen offset:{rb*1024} {OPT['PX']} lds", tag=('x', tg, q)))
def xissue(n):
    while n > 0 and xdma:
        i_ = xdma.pop(0); P.ins.append(i_)
        if i_.cls == 'vmem': n -= 1
if OPT['XPF']: E(f"buffer_load_dword a{aST+9}, v{vR+82}, {srd(sX)}, s{sT2} offen", tag='pf')
xissue(OPT['XFIRST'])
E(f"s_lshl_b32 s{sT0}, s{sHD}, 9\ns_sub_u32 s{sT2}, {448*8192}, s{sT0}")
mk_srd(sWQ, 10, sT0, f"s{sT2}")
wqpf = [I(t_) if isinstance(t_, str) else t_ for t_ in pf_seq(sWQ, 448*OPT['WQP'], OPT['WQP'], 8192, sTL, NT)] if OPT['PF'] and OPT['WQP'] else []
if OPT['WQE'] == 1: P.ins += wqpf; wqpf = []
else: P.ins += wqpf[:-1]; wqpf = wqpf[-1:]
xissue(OPT['XSEC'])
PST('x_first')
mk_srd(sOUT, 20, None, 2048*896)
E(f"""
s_lshl_b32 s{sT0}, s{sW}, 7
v_lshlrev_b32 v{vKD}, 9, v{vT3}
v_add_u32 v{vVD}, s{sT0}, v{vKD}
v_add_u32 v{vKD}, v{vVD}, v{vT1}
v_add_u32 v{vKD+1}, v{vVD}, v{vT2}
v_add_u32 v{vKD+2}, {2*3072}, v{vKD}
v_add_u32 v{vKD+3}, {3*3072}, v{vKD+1}
v_add_u32 v{vKD+1}, 3072, v{vKD+1}
v_and_b32 v{vT0}, 6, v{vT3}
v_xor_b32 v{vT0}, v{vT0}, v{vT4}
v_lshlrev_b32 v{vT0}, 4, v{vT0}
v_add_u32 v{vVD}, v{vVD}, v{vT0}
""")
for rb in range(1, 4): E(f"v_add_u32 v{vVD+rb}, {3072*rb}, v{vVD}")
E(f"""
v_and_b32 v{vT1}, 4, v{vT3}
v_add_u32 v{vT1}, v{vT1}, v{vT3}
v_lshl_add_u32 v{vWQ}, v{vT1}, 13, v{vT0}
v_mul_u32_u24 v{vT1}, 3584, v{vT1}
v_add_u32 v{vW1D}, v{vT1}, v{vT0}
""")
for rb in range(1, 4):
    rr = 16*(rb & 1) + 4*(rb >> 1)
    E(f"v_add_u32 v{vW1D+rb}, {rr*3584 - 1024*rb}, v{vW1D}\nv_add_u32 v{vWQ+rb}, {rr*8192 - 1024*rb}, v{vWQ}")
E(f"""
s_lshl_b32 s{sT1}, s{sHD}, 8
s_sub_u32 s{sT2}, {448*3584}, s{sT1}
s_cmp_lt_u32 s{sHD}, 14
s_cselect_b32 s{sT2}, s{sT2}, 0
s_cselect_b32 s{sT1}, s{sT1}, 0
""")
mk_srd(sW1, 16, sT1, f"s{sT2}")
E(f"s_lshr_b32 s{sT0}, s{sHD}, 1\ns_lshl_b32 s{sT0}, s{sT0}, 20\ns_add_u32 s{sT0}, s{sT0}, {1536*512}")
mk_srd(sKK, 6, sT0, 262144)
mk_srd(sVV, 8, sT0, 262144)
E(f"s_mul_i32 s{sT0}, s{sHD}, {256*896}")
mk_srd(sWO, 12, sT0, 256*896)
E(f"""
s_lshr_b32 s{sPC}, s2, 3
s_and_b32 s{sPC}, s{sPC}, 15
s_cmp_ge_u32 s{sPC}, 7
s_cselect_b32 s{sT3}, 1, 0
s_mul_i32 s{sT1}, s{sT3}, 7
s_sub_u32 s{sT1}, s{sPC}, s{sT1}
s_lshl_b32 s{sT0}, s{sT1}, 7
s_sub_u32 s{sT2}, {1792*896}, s{sT0}
s_cmp_lt_u32 s{sPC}, 14
s_cselect_b32 s{sT2}, s{sT2}, 0
s_cselect_b32 s{sT0}, s{sT0}, 0
""")
mk_srd(sW2, 18, sT0, f"s{sT2}")
if OPT['WSOFF']:
    E(f"s_mov_b32 s{sT0}, {hx(OPT['WSOFF'] << 20)}")
    mk_srd(sWS, 24, sT0, WS_SIZE)
else:
    mk_srd(sWS, 24, None, WS_SIZE)
for k_, R_ in ((0, 32*8192), (2, 32*3584)):
    E(f"""
s_mul_i32 s{sW1T+k_}, s{sW}, {R_}
s_cmp_lt_u32 s{sW}, 2
s_mov_b32 s{sT2}, {hx(128 - 2*R_)}
s_cselect_b32 s{sT0}, {12*R_}, s{sT2}
s_add_u32 s{sW1T+k_+1}, s{sW1T+k_}, s{sT0}
""")
E(f"""
v_mul_u32_u24 v{vT1}, 896, v{vT3}
v_add_u32 v{vT1}, v{vT1}, v{vT0}
s_mul_i32 s{sT0}, s{sW}, {32*896}
s_mul_i32 s{sT2}, s{sW}, {448*896}
""")
for rb in range(4):
    if rb: E(f"v_add_u32 v{vT1}, 6144, v{vT1}")
    E(f"v_add_u32 v{vT2}, s{sT0}, v{vT1}\nv_accvgpr_write_b32 a{aST+rb}, v{vT2}\nv_add_u32 v{vT2}, s{sT2}, v{vT1}\nv_accvgpr_write_b32 a{aST+4+rb}, v{vT2}")
E(f"""
v_lshlrev_b32 v{vL16}, 4, v0
v_lshrrev_b32 v{vT0}, 2, v0
v_lshlrev_b32 v{vT1}, 7, v{vT0}
v_and_b32 v{vT2}, 3, v0
v_lshl_add_u32 v{vT1}, v{vT2}, 3, v{vT1}
v_bfe_u32 v{vT3}, v0, 3, 2
""")
for u in range(4):
    E(f"""
v_xor_b32 v{vT4}, {u}, v{vT3}
v_lshl_add_u32 v{vTR+u}, v{vT4}, 5, v{vT1}
v_add_u32 v{vTR+4+u}, 0x10000, v{vTR+u}
v_add_u32 v{vTR+8+u}, 0x20000, v{vTR+u}
""")
E(f"""
v_and_b32 v{vT0}, 15, v0
v_lshrrev_b32 v{vT1}, 1, v{vT0}
v_lshrrev_b32 v{vT2}, 4, v0
v_xor_b32 v{vT1}, v{vT1}, v{vT2}
v_lshlrev_b32 v{vT4}, 7, v{vT0}
v_lshl_add_u32 v{vRA}, v{vT1}, 4, v{vT4}
v_xor_b32 v{vRA+1}, 64, v{vRA}
v_add_u32 v{vRA+2}, 0x10000, v{vRA}
v_add_u32 v{vRA+3}, 0x10000, v{vRA+1}
v_add_u32 v{vRA+4}, 0x20000, v{vRA}
v_add_u32 v{vRA+5}, 0x20000, v{vRA+1}
""")
vXR = vR + 72
for i in range(4): E(f"v_add_u32 v{vXR+i}, s{sWB}, v{vRA+i}")
E(f"""
s_and_b32 s{sTC}, s2, 7
s_lshl_b32 s{sTC}, s{sTC}, 1
s_lshr_b32 s{sT0}, s2, 7
s_add_u32 s{sTC}, s{sTC}, s{sT0}
s_lshl_b32 s{sW2I}, s{sT0}, 1
s_add_u32 s{sW2I}, s{sW2I}, s{sT3}
s_lshl_b32 s{sT2}, s{sTC}, 1
s_add_u32 s{sT2}, s{sT2}, s{sT3}
s_lshl_b32 s{sT0}, s{sT2}, 6
v_add_u32 v{vT0}, s{sT0}, v{vT0}
v_mul_u32_u24 v{vT0}, 896, v{vT0}
v_lshl_add_u32 v{vT0}, v{vT2}, 3, v{vT0}
s_lshl_b32 s{sT0}, s{sT1}, 2
s_add_u32 s{sT0}, s{sT0}, s{sW}
s_lshl_b32 s{sSG}, s{sT0}, 5
v_add_u32 v{vT0}, s{sSG}, v{vT0}
v_accvgpr_write_b32 a{aST+8}, v{vT0}
s_lshl_b32 s{sT2}, s{sT2}, 1
s_mul_i32 s{sSG}, s{sT2}, 28
s_add_u32 s{sSG}, s{sSG}, s{sT0}
s_lshl_b32 s{sSG}, s{sSG}, 14
s_lshl_b32 s{sFLP}, s{sT2}, 7
s_add_u32 s{sFLP}, s{sFLP}, {hx(WS_F)}
s_mul_i32 s{sHLD}, s{sT2}, {56*2048}
s_add_u32 s{sHLD}, s{sHLD}, {hx(WS_H)}
s_cmp_lt_u32 s{sPC}, 14
s_cselect_b32 s{sCOOB}, 0, {hx(OOB)}
s_add_u32 s{sHPF}, s{sHLD}, s{sCOOB}
s_mul_i32 s{sT0}, s{sW}, {14*2048}
s_add_u32 s{sHLD}, s{sHLD}, s{sT0}
s_mov_b32 s0, s2
s_mov_b32 s{sCC}, s{sT1}
s_lshl_b32 s{sKVI}, s{sTL}, 1
s_and_b32 s{sT0}, s{sHD}, 1
s_add_u32 s{sKVI}, s{sKVI}, s{sT0}
s_lshl_b32 s{sT1}, s{sT}, 2
s_add_u32 s{sT1}, s{sT1}, s{sW}
s_lshr_b32 s{sFLG}, s{sT1}, 1
s_lshl_b32 s{sFLG}, s{sFLG}, 8
s_and_b32 s{sT2}, s{sT1}, 1
s_lshl_b32 s{sT2}, s{sT2}, 4
s_add_u32 s{sFLG}, s{sFLG}, s{sT2}
s_add_u32 s{sFLG}, s{sFLG}, s{sHD}
s_add_u32 s{sFLG}, s{sFLG}, {hx(WS_F)}
s_mul_i32 s{sHST}, s{sT1}, {56*2048}
s_min_u32 s{sT2}, s{sHD}, 13
s_lshl_b32 s{sT2}, s{sT2}, 13
s_add_u32 s{sHST}, s{sHST}, s{sT2}
s_add_u32 s{sHST}, s{sHST}, {hx(WS_H)}
s_cmp_lt_u32 s{sHD}, 14
s_cselect_b32 s{sT2}, 0, {hx(OOB)}
v_add_u32 v{vHS}, s{sT2}, v{vL16}
v_mov_b32 v{vZ}, 0
v_mov_b32 v{vONE}, 1
""")
PST('addr_done')
xissue(14 - OPT['XFIRST'] - OPT['XSEC'])
if OPT['WQE'] == 0: P.ins += wqpf; wqpf = []
PST('x_issued')
PRODUCER = len(P.ins)
E(f"""
s_lshl_b32 s{sSST}, s{sT}, 2
s_add_u32 s{sSST}, s{sSST}, s{sW}
s_mul_i32 s{sSST}, s{sSST}, {28*16384}
s_cmp_ge_u32 s{sHD}, 7
s_cselect_b32 s{sT3}, 1, 0
s_sub_u32 s{sROT}, s{sHD}, 7
s_min_u32 s{sROT}, s{sROT}, s{sHD}
s_sub_u32 s{sCNT}, s{sROT}, 7
s_min_u32 s{sROT}, s{sROT}, s{sCNT}
s_cmp_lt_u32 s{sHD}, 14
s_cselect_b32 s{sT3}, s{sT3}, s{sHD}
s_cselect_b32 s{sSTEP}, 2048, 0
s_lshl_b32 s{sT3}, s{sT3}, 10
s_add_u32 s{sSST}, s{sSST}, s{sT3}
""")
prod_ins = []
for s_, val in ((sM1, 0x2222222222222222), (sM2, 0xCCCCCCCCCCCCCCCC), (sM3, 0x8888888888888888), (sMD, 0xF0000F0000F0000F)):
    E(f"s_mov_b32 s{s_}, {hx(val)}\ns_mov_b32 s{s_+1}, {hx(val >> 32)}")

vONES = vR + 16
vD1 = vR + 20
vD2 = vR + 28
vLA = vR + 36
for i in range(4): E(f"v_mov_b32 v{vONES+i}, 0x3f803f80")
def rbf(r):
    return [f"v_cvt_pk_bf16_f32 v{r}, v{r}, v{r}", f"v_lshlrev_b32 v{r}, 16, v{r}"]
E(f"s_mov_b32 s{sT0}, {hx(f2u(1.0/448.0))}\ns_mov_b32 s{sT1}, {hx(f2u(1e-5))}\ns_mov_b32 s{sT2}, {hx(f2u(CSCALE))}")
if OPT['PADS']:
    E(f"""
s_mov_b64 exec, 0
s_cmp_eq_u32 s{sW}, 0
s_cbranch_scc1 L_pg0
s_cmp_eq_u32 s{sW}, 1
s_cbranch_scc1 L_pg1
s_cmp_eq_u32 s{sW}, 2
s_cbranch_scc1 L_pg2
s_branch L_pg3
.p2align 12
L_main:
s_mov_b64 exec, -1
""")
STAMP('pro_done')
vNT = vR + 44
NPRO = OPT['NPRO']
big = []
if OPT['BIG'] & 1:
    t_ = pf_seq(sWQ, 448*2, 2, 8192, sTL, NT); t_[-1] = I(t_[-1].text.replace('offen', 'offen offset:256'), tag='pf'); big += t_
    big += pf_seq(sW1, 448*2, 2, 3584, sTL, NT)
if OPT['BIG'] & 2:
    t_ = pf_seq(sKK, 2048, None, 0, sKVI, 2*NT); big += t_ + [pf_load(sVV, vPF+1)]
big = [I(t_) if isinstance(t_, str) else t_ for t_ in big]
assert len(pro_dma) == NPRO
L0N = OPT['L0N']
late = {0: [i_ for d_ in pro_dma[:L0N] for i_ in d_],
        1: [i_ for d_ in pro_dma[3:] for i_ in d_]
           + big + [I(f"buffer_store_byte v{vZ}, v{vZ}, {srd(sWS)}, s{sFLG} offen sc1", tag='hst')]}
def xreads(tg, q):
    r = [mk_wait_vm([('x', tg, q)])]
    for ks in (2*q, 2*q+1):
        ad = q*SLOT + tg*2048
        r.append(I(f"ds_read_b128 {v(xn(ks,tg),4)}, v{vXR + (ad >> 16)*2 + (ks & 1)} offset:{ad & 0xffff}", tag=('xr', tg, q)))
    return r
def stats(tg, q, fill):
    P.wait_lgkm_tag([('xr', tg, q)])
    for ks in (2*q, 2*q+1):
        X = v(xn(ks, tg), 4)
        for m_ in (mfma(v(vD1+4*tg, 4), v(vONES, 4), X, "0" if ks == 0 else v(vD1+4*tg, 4)), mfma(v(vD2+4*tg, 4), X, X, "0" if ks == 0 else v(vD2+4*tg, 4))):
            E(m_)
            t_ = 0
            while fill and t_ + cost(fill[0]) <= 12:
                t_ += cost(fill[0]); P.ins.append(fill.pop(0))
def scalars(tg):
    d = vD2 + 4*tg; m = vD1 + 4*tg; t = m + 1; L = vLA + 4*tg
    s = [f"v_cndmask_b32 v{d}, v{d}, v{d+1}, s[{sM1}:{sM1+1}]",
         f"v_cndmask_b32 v{d+2}, v{d+2}, v{d+3}, s[{sM3}:{sM3+1}]",
         f"v_mul_f32 v{m}, s{sT0}, v{m}",
         f"v_cndmask_b32 v{d}, v{d}, v{d+2}, s[{sM2}:{sM2+1}]",
         f"v_cndmask_b32 v{d}, 0, v{d}, s[{sMD}:{sMD+1}]"]
    s += allred(d, t, "v_add_f32")
    s += [f"v_mul_f32 v{d}, s{sT0}, v{d}",
          f"v_fma_f32 v{d}, -v{m}, v{m}, v{d}",
          f"v_max_f32 v{d}, 0, v{d}"]
    s += interleave(rbf(m), rbf(d))
    s += [f"v_add_f32 v{d}, s{sT1}, v{d}"] + rbf(d) + [f"v_sqrt_f32 v{d}, v{d}"] + rbf(d)
    s += [f"v_rcp_f32 v{d}, v{d}", f"v_mul_f32 v{d}, s{sT2}, v{d}",
          f"v_cvt_pk_bf16_f32 v{d}, v{d}, v{d}",
          f"v_and_b32 v{L}, 0xffff, v{d}", f"v_lshlrev_b32 v{L+1}, 16, v{d}",
          f"v_mul_f32 v{L+2}, -v{m}, v{L+1}"]
    for t_ in s: E(t_)
def normalize(tg, side):
    L = vLA + 4*tg; k = 0; pend = []
    for ks in range(14):
        for r in range(4):
            x_ = xn(ks, tg) + r
            t = vNT + 2*(k % 8); k += 1
            E(f"v_dot2_f32_bf16 v{t}, v{x_}, v{L}, v{L+2}\nv_dot2_f32_bf16 v{t+1}, v{x_}, v{L+1}, v{L+2}")
            pend.append(f"v_cvt_pk_bf16_f32 v{x_}, v{t}, v{t+1}")
            if len(pend) > 2: E(pend.pop(0))
            P.ins += side.get(k, [])
    for t_ in pend: E(t_)
for q in range(7):
    P.ins += xreads(0, q)
    if q in (0, 3, 6): PST(f'w0{q}')
    xissue(2)
    if q > 1: stats(0, q-2, [])
fill = wqpf + late[0]
stats(0, 5, fill); stats(0, 6, fill)
P.ins += fill
STAMP('x0_arrived')
scalars(0)
X1 = OPT['X1']
normalize(0, {X1 + 4*q: xreads(1, q) for q in range(7)})
PST('ln0_done')
fill = [i_ for d_ in pro_dma[L0N:3] for i_ in d_]
for q in range(7):
    if q == 1: P.wait_lgkm_tag([('xr', 1, 6)]); fill += late[1]
    stats(1, q, fill)
P.ins += fill
STAMP('x1_arrived')
scalars(1)
fr_ = [i_ for f in range(D) for i_ in frag_reads(f)]
side = {OPT['BARK']: [mk_wait_vm(first_need), I("s_barrier")]}
for k_, i_ in enumerate(fr_): side.setdefault(min(OPT['BARK'] + 1 + k_, 56), []).append(i_)
normalize(1, side)
if OPT['DUMP'] == 'xn':
    P.ins += dump([v(xn(ks, tg), 4) for ks in range(14) for tg in range(2)])

P.ins.append(mk_wait_lg([('f', f) for f in range(4)]))
est = 0
for g in range(NF):
    if g in blk: P.ins += blk[g]
    for h, m_ in enumerate(MF[g]):
        gp = G0[g] + h
        P.ins.append(I(m_))
        P.ins += pre[gp] + rds[gp] + ext[gp]
        est += max(16, gtime(pre[gp] + rds[gp] + ext[gp]))
if OPT['LOG']:
    ph = sorted((f_, n_) for n_, f_ in phase.items())
    for (f0_, n_), (f1_, _) in zip(ph, ph[1:]):
        e_ = sum(max(16, gtime(pre[q_] + rds[q_] + ext[q_])) for q_ in range(gap(f0_), gap(f1_)))
        print(f"  phase {n_}: est {e_} ideal {16*(gap(f1_)-gap(f0_))}", file=sys.stderr)
print("estimated main-stream cycles", est, "ideal", 16*NG, file=sys.stderr)

STAMP('g6_done')
def fs(t4, w_): return facc(t4, w_)
vSEL = 44
vSA = 52
STAMP('pre_c1')
P.wait_vm_tag(['poll'])
E(f"v_cmp_gt_u32 vcc, 3, v{vPOLL}\ns_cbranch_vccnz L_spin1\nL_spin1_ret:\ns_cmp_lg_u32 s{sMISS}, 0\ns_cbranch_scc1 L_redo\nL_redo_ret:")
STAMP('chk1')
gl2 = gloads(2*F0, 16, vHS)
n2 = OPT['N2']
P.ins += gl2[:n2]
E(f"""
v_add_u32 v{vT1}, s{sWB}, v{vL16}
s_lshl_b32 s{sT0}, s{sW}, 14
v_add_u32 v{vT2}, s{sT0}, v{vL16}
""")
for u in range(4):
    for t4 in range(4):
        E(f"ds_write_b128 v{vT1}, {v(facc(u, t4), 4)} offset:{u*SLOT + t4*1024}")
E(f"""
v_mov_b32 v{vSEL}, 0
v_mov_b32 v{vSEL+1}, 0
v_mov_b32 v{vSEL+4}, 0
v_mov_b32 v{vSEL+5}, 0
v_mov_b32 v{vT0}, 0x3f80
v_mov_b32 v{vSEL+2}, 0x3f800000
s_or_b64 s[16:17], s[{sM1}:{sM1+1}], s[{sM3}:{sM3+1}]
v_cndmask_b32 v{vT0}, v{vT0}, v{vSEL+2}, s[16:17]
v_cndmask_b32 v{vT0}, 0, v{vT0}, s[{sMD}:{sMD+1}]
s_mov_b64 s[16:17], s[{sM2}:{sM2+1}]
v_cndmask_b32 v{vSEL+2}, v{vT0}, 0, s[16:17]
v_cndmask_b32 v{vSEL+3}, 0, v{vT0}, s[16:17]
s_mov_b32 s{sT0}, {hx(f2u(1.0/CSCALE))}
s_mov_b32 s{sT2}, {hx(f2u(-16.0))}
""")
E("s_waitcnt lgkmcnt(0)\ns_barrier")
for t4 in range(4):
    for w_ in range(4):
        E(f"ds_read_b128 {v(fs(t4, w_), 4)}, v{vT2} offset:{w_*4096 + t4*1024}")
def smf(rl, sl):
    r = []
    for tg in range(2):
        d = v(vSA + (rl*2+tg)*4, 4)
        r.append(mfma(d, v(vSEL + (2 if tg == 0 else 0), 4), greg(rl, sl), "0" if sl == 0 else d))
    return r
val = []
for t4 in range(4):
    b0, b1, b2, b3 = (fs(t4, w_) for w_ in range(4))
    for r in range(4): val += [f"v_add_f32 v{b0+r}, v{b0+r}, v{b1+r}", f"v_add_f32 v{b2+r}, v{b2+r}, v{b3+r}"]
    for r in range(4): val.append(f"v_add_f32 v{b0+r}, v{b0+r}, v{b2+r}")
    for r in range(4): val.append(f"v_mul_f32 v{b1+r}, s{sT2}, v{b0+r}")
    for r in range(4): val.append(f"v_exp_f32 v{b1+r}, v{b1+r}")
    for r in range(4): val.append(f"v_mul_f32 v{b0+r}, s{sT0}, v{b0+r}")
    for r in range(4): val.append(f"v_add_f32 v{b1+r}, 1.0, v{b1+r}")
    for r in range(4): val.append(f"v_rcp_f32 v{b1+r}, v{b1+r}")
    for r in range(4): val.append(f"v_mul_f32 v{b0+r}, v{b0+r}, v{b1+r}")
for t4 in range(4):
    b2 = fs(t4, 2); xr = vXF + t4*2
    val += [f"v_lshlrev_b32 v{b2}, 16, v{xr}", f"v_and_b32 v{b2+1}, 0xffff0000, v{xr}", f"v_lshlrev_b32 v{b2+2}, 16, v{xr+1}", f"v_and_b32 v{b2+3}, 0xffff0000, v{xr+1}"]
rest = gl2[n2:]
nv1 = OPT['NV1']
step = max(1, nv1 // max(1, len(rest)))
for k_ in range(nv1):
    E(val.pop(0))
    if rest and k_ % step == step - 1: P.ins.append(rest.pop(0))
P.ins += rest
E(f"s_waitcnt vmcnt({32 - 4*F0})")
ms = []
for sq in range(0, 2*F0, 2):
    for rl in range(2):
        for sl in range(sq, sq+2): ms += smf(rl, sl)
per = (len(val) + 8*F0 - 1) // (8*F0)
for m_ in ms:
    E(m_)
    for _ in range(per):
        if val: E(val.pop(0))
for t_ in val: E(t_)
STAMP('g_done')
for sq in range(2*F0, 16, 2):
    for rl in range(2):
        for sl in range(sq, sq+2):
            for m_ in smf(rl, sl): E(m_)
for t4 in range(4):
    b0 = fs(t4, 0); b2 = fs(t4, 2)
    for r in range(4): E(f"v_fma_f32 v{b0+r}, v{vSA+t4*4+r}, v{b0+r}, v{b2+r}")
    E(f"v_cvt_pk_bf16_f32 v{b0}, v{b0}, v{b0+1}\nv_cvt_pk_bf16_f32 v{b0+1}, v{b0+2}, v{b0+3}")
    E(f"buffer_store_dwordx2 {v(b0,2)}, v{vAD}, {srd(sOUT)}, {'0' if t4 == 0 else 's%d' % (sSV0+t4-1)} offen {OPT['OST']}")
if OPT['WAITAT']: STAMP('end')
if OPT['STAMP']:
    STAMP('end')
    E(f"""
L_fin:
s_memrealtime s[{sSTMP}:{sSTMP+1}]
s_waitcnt lgkmcnt(0)
v_writelane_b32 v{vSTAMP}, s{sMISS}, 59
v_writelane_b32 v{vSTAMP}, s98, 60
v_writelane_b32 v{vSTAMP}, s100, 61
v_writelane_b32 v{vSTAMP}, s{sSTMP}, 62
s_lshl_b32 s{sT0}, s0, 2
s_add_u32 s{sT0}, s{sT0}, s{sW}
s_lshl_b32 s{sT0}, s{sT0}, 8
s_add_u32 s{sT0}, s{sT0}, {hx(WS_DBG)}
v_lshlrev_b32 v{vT0}, 2, v0
buffer_store_dword v{vSTAMP}, v{vT0}, {srd(sWS)}, s{sT0} offen
""")
E("L_end:\ns_endpgm")
main_ins, log, stats_ = resolve(P.ins)
print("main", stats_, file=sys.stderr)
if OPT['LOG']:
    for l in log: print("  ", l, file=sys.stderr)

Q = Prog(); E = Q.emit
SPIN_MAX = 1 << 17
def spin(label, load, want, cmp):
    E(f"""
{label}:
s_mov_b32 s{sCNT}, {SPIN_MAX}
{label}_loop:
s_sleep 1
{load}
s_waitcnt vmcnt(0)
v_cmp_{cmp}_u32 vcc, {want}, v{vPOLL}
s_sub_u32 s{sCNT}, s{sCNT}, 1
s_cmp_eq_u32 s{sCNT}, 0
s_cbranch_scc1 {label}_ret
s_cbranch_vccnz {label}_loop
s_branch {label}_ret
""")
spin("L_spinh", f"s_lshl_b32 s{sT0}, s{sTC}, 4\nv_mov_b32 v{vT0}, s{sT0}\nglobal_load_dword v{vPOLL}, v{vT0}, {DBGP} sc1", 16, "gt")
spin("L_spin1", VPOLL, 3, "gt")
E("L_redo:\ns_waitcnt vmcnt(0)")
Q.ins += gloads(0, 2*F0, vHS)
E("s_branch L_redo_ret")
MISC = [c['lo'] for c in chunks if c['name'] == 'V_15'][0]
fK, fS, fP, fA, fV, fR, fM = 44, 76, 108, 116, 117, 121, 102
E(f"""
L_exact:
s_waitcnt vmcnt(0) lgkmcnt(0)
s_nop 15
s_mov_b32 s{sSV0}, m0
v_and_b32 v{fA}, 15, v0
v_lshlrev_b32 v{fA}, 9, v{fA}
v_and_b32 v{fM}, 48, v0
v_add_u32 v{fA}, v{fA}, v{fM}
s_lshl_b32 s{sSV1}, s{sW}, 7
s_add_u32 s{sSV2}, s{sWB}, {MISC}
""")
for i in range(4):
    E(f"v_subrev_u32 v{fV+i}, s{sSV1}, v{vVD+i}\nv_add_u32 v{fR+i}, s{sSV2}, v{vTR+i}")
E(f"v_mov_b32 v{fM}, 0xff800000\nv_mov_b32 v{fM+1}, 0xff800000\ns_mov_b32 s{sSV1}, 0")
def ktile(kt, cinit):
    for ks in range(8):
        E(f"buffer_load_dwordx4 {v(fK+4*ks,4)}, v{fA}, {srd(sKK)}, s{sSV1} offen offset:{ks*64}")
    E(f"s_add_u32 s{sSV1}, s{sSV1}, 8192\ns_waitcnt vmcnt(0)")
    for ks in range(8):
        for tg in range(2):
            d = v(fS + tg*8 + kt*4, 4)
            E(mfma(d, v(fK+4*ks, 4), a(qf(ks, tg), 4), (cinit(tg) if ks == 0 else d)))
    E("s_nop 15")
E("L_exact_p1:")
ktile(0, lambda tg: "0")
for tg in range(2):
    b = fS + tg*8
    E(f"v_max3_f32 v{fM+tg}, v{fM+tg}, v{b}, v{b+1}\nv_max3_f32 v{fM+tg}, v{fM+tg}, v{b+2}, v{b+3}")
E(f"s_cmp_lt_u32 s{sSV1}, 262144\ns_cbranch_scc1 L_exact_p1")
for tg in range(2):
    for t_ in allred(fM+tg, fM+2, "v_max_f32"): E(t_)
    for r in range(4): E(f"v_sub_f32 v{vC+4*tg+r}, 0, v{fM+tg}")
for r in range(128): E(f"v_mov_b32 v{vO+r}, 0")
E(f"v_mov_b32 v{vLS}, 0\nv_mov_b32 v{vLS+1}, 0\ns_mov_b32 s{sSV1}, 0\ns_add_u32 m0, s{sWB}, {MISC}\ns_nop 3")
E("L_exact_p2:")
E(f"s_mov_b32 s{sSV2}, s{sSV1}")
ktile(0, lambda tg: v(vC+4*tg, 4))
ktile(1, lambda tg: v(vC+4*tg, 4))
for r in range(16): E(f"v_exp_f32 v{fS+r}, v{fS+r}")
for r in range(16): E(f"v_add_f32 v{vLS + r//8}, v{vLS + r//8}, v{fS+r}")
for r in range(8): E(f"v_cvt_pk_bf16_f32 v{fP+r}, v{fS+2*r}, v{fS+2*r+1}")
for cb in range(4):
    for rb in range(4):
        E(f"buffer_load_dwordx4 v{fV+rb}, {srd(sVV)}, s{sSV2} offen offset:{rb*1024} lds")
    E(f"s_add_u32 s{sSV2}, s{sSV2}, 128\ns_waitcnt vmcnt(0)")
    for u in range(4):
        E(f"ds_read_b64_tr_b16 {v(fK+4*u,2)}, v{fR+u}\nds_read_b64_tr_b16 {v(fK+4*u+2,2)}, v{fR+u} offset:2048")
    E("s_waitcnt lgkmcnt(0)")
    for u in range(4):
        for tg in range(2):
            d = v(Oreg(cb*4+u, tg), 4)
            E(mfma(d, v(fK+4*u, 4), v(fP+4*tg, 4), d))
    E("s_nop 7")
E(f"s_cmp_lt_u32 s{sSV1}, 262144\ns_cbranch_scc1 L_exact_p2")
for tg in range(2):
    for t_ in allred(vLS+tg, fM+2, "v_add_f32"): E(t_)
    E(f"v_rcp_f32 v{vRC+tg}, v{vLS+tg}")
E("s_nop 15")
for ks in range(8):
    for t_ in ocvt(ks): E(t_)
E(f"s_mov_b32 m0, s{sSV0}\ns_nop 15\ns_branch L_exact_ret")
sub_ins, log2, stats2 = resolve(Q.ins)

def sizes_of(ins):
    import subprocess, tempfile, re as re_
    body = [i_ for i_ in ins if i_.cls not in ('label', 'dir')]
    txt_ = '.amdgcn_target "amdgcn-amd-amdhsa--gfx950"\n.text\nL_any:\n' + ''.join('    ' + (re_.sub(r'L_\w+', 'L_any', i_.text) if i_.cls == 'branch' else i_.text) + '\n' for i_ in body)
    d_ = tempfile.mkdtemp()
    open(d_ + '/a.s', 'w').write(txt_)
    subprocess.run(['clang', '-x', 'assembler', '-target', 'amdgcn-amd-amdhsa', '-mcpu=gfx950', '-c', d_ + '/a.s', '-o', d_ + '/a.o'], check=True)
    out_ = subprocess.run(['llvm-objdump', '-d', '--mcpu=gfx950', d_ + '/a.o'], capture_output=True, text=True).stdout
    sz = [4*len(m_.group(1).split()) for m_ in re_.finditer(r'// [0-9A-F]+: ((?:[0-9A-F]{8} ?)+)', out_)]
    assert len(sz) == len(body), (len(sz), len(body))
    return {id(i_): s_ for i_, s_ in zip(body, sz)}
if OPT['PADS']:
    sz = sizes_of(main_ins)
    k0 = [k_ for k_, i_ in enumerate(main_ins) if i_.text == 'L_main:'][0]
    out_ = main_ins[:k0+1]; off = 0; npg = 0
    for i_ in main_ins[k0+1:]:
        if i_.cls not in ('label', 'dir'):
            lo = (npg + 1)*4096
            if off >= lo and (i_.cls == 'mfma' or off + sz[id(i_)] > lo + 56):
                assert off < lo + 64
                out_.append(I(f"L_pg{npg}:")); out_.append(I(f"s_cbranch_execz L_pgn{npg}")); off += 4; npg += 1
            off += sz[id(i_)]
        out_.append(i_)
    for i_ in out_:
        if i_.text.startswith('s_cbranch_execz L_pgn'):
            k_ = int(i_.text.split('L_pgn')[1]) + 4
            i_.text = f"s_cbranch_execz L_pg{k_}" if k_ < npg else "s_cbranch_execz L_main"
    main_ins = out_
    print("code pages", npg, "bytes after L_main", off, file=sys.stderr)
hdr = open(os.path.join(os.path.dirname(os.path.abspath(__file__)), 'header.txt')).read()
txt = hdr + f"""; @launch grid=(256,1,1) block=(256,1,1) lds={LDS_BYTES}
.amdgcn_target "amdgcn-amd-amdhsa--gfx950"
.text
.globl {NAME}_kernel
.p2align 8
.type {NAME}_kernel,@function
{NAME}_kernel:
""" + render(main_ins) + render(sub_ins) + f"""L_pad:
    s_endpgm
.if (L_pad - {"L_main" if OPT["PADS"] else "L_pc"}) < {CODE_LINES*128}
.fill (({CODE_LINES*128} - (L_pad - {"L_main" if OPT["PADS"] else "L_pc"})) / 4) + 16, 4, 0xbf810000
.endif
.section .rodata,"a"
.p2align 6
.amdhsa_kernel {NAME}_kernel
  .amdhsa_next_free_vgpr 512
  .amdhsa_next_free_sgpr 102
  .amdhsa_accum_offset 256
  .amdhsa_group_segment_fixed_size 0
  .amdhsa_kernarg_size 88
  .amdhsa_user_sgpr_count 2
  .amdhsa_user_sgpr_kernarg_segment_ptr 1
  .amdhsa_system_sgpr_workgroup_id_x 1
.end_amdhsa_kernel
"""
if OPT['STAMP']: txt += '; STAMPS ' + ' '.join(stamp_names) + '\n'
open(sys.argv[1], 'w').write(txt)
```

```python
import sys, os, math, struct
from asmlib import *

NAME = "recurrent_scan__sliding_block_cached__dense_activation_relu__prompt"
OPT = dict(D=8, NA=12, HX=2, BAR=2, STAMP=0, PST=0, DUMP='', SIGG=60, FORCEFB=0, LOG=0,
           SST='sc1', HLD='sc1', HST='sc1', GLD='sc1', NOSST=0, NOHLD=0, NOHST=0,
           PX='', PW1='', PWQ='', PKV='', PWO='', PW2='', PF=1, PPF='', OST='', WSOFF=0, HSTEP=7, XREV=0, NPRO=4, WAITAT='', WAITT=0, WAITWG=-1, PADS=1, HSIG=150, HPF=0, PF0=0, PF1=14, CHAIN=1, WB=0, WBD=60, BIG=1, DSTART=0, W2ROT=1, NOPF2=2, HEND=40, XPF=1, L0N=1, X1=28, BARK=36, BARP=2, BARA=2, BAR4=2, SPAN=30, SPAN2=20, NV1=100, PKR=0, PCH=0, TLB=1, TLBP='G2_13', NOG=0, NOFLAG=0, W2G=-15, W2S=8, F0=3, F1=5, L0=0, W2PRE=6, H2A=1, H2B=100, SA=240, PA=410, CA=70, LA=140, SC=30, PB=175, N2=15, G1N=10, XFIRST=4, XSEC=0, WQE=2, OEARLY=2, H2SPAN=60, PFG=170, WQP=2, FINE=0, RT=0, SIMPLE=0, SSP=0)
for a_ in sys.argv[2:]:
    k_, v_ = a_.split('=')
    OPT[k_] = v_.replace('+', ' ') if isinstance(OPT[k_], str) else int(v_)
D = OPT['D']; NA = OPT['NA']

RING_SLOTS = 10
SLOT = 16384
LDS_BYTES = 163840
WS_S = 0
WS_H = 0x1C00000
WS_F = 0x2300000
WS_DBG = 0x2400000
WS_SIZE = 0x8000000 if (OPT['DUMP'] or OPT['STAMP']) else 0x2400000
OOB = 0x7f000000
CSCALE = math.log2(math.e) / 16.0
def f2u(x): return struct.unpack('<I', struct.pack('<f', x))[0]
def hx(x): return f"0x{x & 0xffffffff:x}"

sX, sW1, sWQ, sKK, sVV, sWO, sW2, sWS, sOUT = 28, 32, 36, 40, 44, 48, 52, 56, 60
def srd(b): return f"s[{b}:{b+3}]"
sW, sHD, sT, sWB, sSO = 64, 65, 66, 67, 68
sT0, sT1, sT2, sT3 = 69, 70, 71, 3
sQT = 72
sHST, sHLD, sSST, sSG, sFLG, sFLP, sCNT, sSO2, sTL, sROT, sSTEP, sPC = 86, 87, 88, 89, 90, 91, 92, 93, 94, 95, 96, 97
sTC, sCOOB, sHPF, sW2I, sKVI, sCC = 19, 20, 21, 24, 25, 2
sW1T = 12
sM1, sM2, sM3, sMD = 4, 6, 8, 10
sSV0, sSV1, sSV2 = 12, 13, 14
sSTMP = 26
DBGP = "s[22:23]"
vL16, vHS, vT0, vT1, vT2, vT3, vT4 = 1, 2, 3, 4, 5, 6, 7
vTR = 8
vRA = 20
vPF = 26
vZ, vONE, vPOLL, vSTAMP = 28, 29, 30, 31
vWQ, vKD, vVD, vWOD, vW2D = 32, 36, 40, 32, 36
vXN = 44
vR = 156
vW1D = vR + 64
vXD = vR + 68
vO = 128
vS = 44
vP = 76
vC = 92
vLS = 100
vM = 106
vA4 = 44
vRC = 126
aF, aST, aQ, aH = 0, 48, 64, 128

def v(i, n=1): return f"v{i}" if n == 1 else f"v[{i}:{i+n-1}]"
def a(i, n=1): return f"a{i}" if n == 1 else f"a[{i}:{i+n-1}]"
def mfma(d, A, B, C): return f"v_mfma_f32_16x16x32_bf16 {d}, {A}, {B}, {C}"
def I(t, tag=None): return Ins(t, tag)
lg = lambda x: int(math.log2(x))

P = Prog()
E = P.emit

nstamp = [0]
stamp_names = []
def stamp_ins(name=''):
    if OPT['WAITAT'] and name == OPT['WAITAT']:
        return [I(t_) for t_ in ((f"s_cmp_lg_u32 s0, {OPT['WAITWG']}", "s_cbranch_scc1 L_end") if OPT['WAITWG'] >= 0 else ()) + ("L_dw:", f"s_memrealtime s[{sSTMP}:{sSTMP+1}]", "s_waitcnt lgkmcnt(0)", f"s_sub_u32 s{sSTMP}, s{sSTMP}, s100",
                                 f"s_cmp_lt_u32 s{sSTMP}, {OPT['WAITT']}", "s_cbranch_scc1 L_dw")]
    if not OPT['STAMP']: return []
    if OPT['STAMP'] == 3 and name not in ('end', 'G4', 'wb0', 'wb1', 'G6', 'st_done', 'chk0', 'chk1', 'chk2', 'sigA', 'sigB', 'g6_done', 'g_done', 'pre_c2', 'pre_c1', 'pre_c0'): return []
    if OPT['STAMP'] == 2 and name not in ('end', 'G4', 'P0', 'G2_0', 'g6_done'): return []
    n = nstamp[0]; nstamp[0] += 1; stamp_names.append(name)
    return [I(f"{'s_memrealtime' if OPT['RT'] else 's_memtime'} s[{sSTMP}:{sSTMP+1}]"), I("s_waitcnt lgkmcnt(0)"), I(f"v_writelane_b32 v{vSTAMP}, s{sSTMP}, {n}")]
def STAMP(name=''):
    P.ins += stamp_ins(name)
def PST(name):
    if OPT['PST']: STAMP(name)

frags = []
chunks = []
def add_chunk(name, lo, size, dma, private=False):
    chunks.append(dict(name=name, lo=lo, hi=lo+size, dma=dma, private=private, first=None, last=None)); return len(chunks)-1
def add_frag(kind, rs, rb, addr, mf, ch):
    frags.append(dict(kind=kind, rb=rb, rs=rs, addr=addr, mf=mf, chunk=ch))
    c = chunks[ch]
    if c['first'] is None: c['first'] = len(frags)-1
    c['last'] = len(frags)-1
def frag_reads(f):
    fr = frags[f]; A = aF + 4*(f % NA)
    def rd(op, dst, addr):
        win = addr >> 16
        return I(f"{op} {dst}, v{fr['rb'] + win*fr['rs']} offset:{addr & 0xffff}", tag=('f', f))
    if fr['kind'] == 'tr':
        return [rd("ds_read_b64_tr_b16", a(A, 2), fr['addr']), rd("ds_read_b64_tr_b16", a(A+2, 2), fr['addr'] + 2048)]
    return [rd("ds_read_b128", a(A, 4), fr['addr'])]
POL = {sW1: 'PW1', sWQ: 'PWQ', sKK: 'PKV', sVV: 'PKV', sWO: 'PWO', sW2: 'PW2'}
ring_pos = [7]
def ring_round(name, srd_b, vbase, so_text, private=False):
    slot = ring_pos[0] % RING_SLOTS; ring_pos[0] += 1
    lo = slot*SLOT
    tag = ('c', len(chunks))
    dma = [I(f"s_add_u32 m0, s{sWB}, {lo}")]
    if so_text.startswith('s') or so_text == '0': so = so_text
    elif so_text.startswith('+'):
        dma.append(I(f"s_add_u32 s{sSO}, {so_text[1:]}")); so = f"s{sSO}"
    else:
        dma.append(I(f"s_mov_b32 s{sSO}, {so_text}")); so = f"s{sSO}"
    for rb in range(4):
        dma.append(I(f"buffer_load_dwordx4 v{vbase+rb}, {srd(srd_b)}, {so} offen offset:{rb*1024} {OPT[POL[srd_b]]} lds", tag=tag))
    return add_chunk(name, lo, SLOT, dma, private)

phase = {}
def xn(ks, tg): return vXN + (ks*2 + tg)*4
def accp(pp, kq, tg, par): return vR + (pp % 2)*32 + ((kq*2 + tg)*2 + par)*4
pend_ = []
for pp in range(6):
    phase[f'P{pp}'] = len(frags)
    for ks in range(14):
        qi = 14*pp + ks
        if qi % 4 == 0:
            r_ = qi // 4
            blk_, rp = r_ // 7, r_ % 7
            R_ = 32*(8192 if blk_ < 2 else 3584); sb = sW1T + (0 if blk_ < 2 else 2); cb_ = 256 if blk_ == 1 else 0
            so_ = f"+s{sb+1}, {cb_}" if rp == 3 else f"+s{sb}, {(4*rp*R_ if rp < 3 else (4*rp-14)*R_ + 128) + cb_}"
            ch = ring_round(f"wq_{r_}", sWQ, vWQ, so_) if r_ < 14 else ring_round(f"w1_{r_-14}", sW1, vW1D, so_)
        pend_.append((ks, qi, ch))
        if OPT['PCH'] and ks % 2 == 0: continue
        for u2 in range(2):
            for u in (2*u2, 2*u2+1):
                for ks_, qi_, ch_ in pend_:
                    mf = (lambda A, pp=pp, ks=ks_, u=u: [mfma(v(accp(pp, u >> 1, tg, u & 1), 4), A, v(xn(ks, tg), 4), "0" if ks == 0 else v(accp(pp, u >> 1, tg, u & 1), 4)) for tg in range(2)])
                    add_frag('tr', 4, vTR + u, chunks[ch_]['lo'] + (qi_ % 4)*4096, mf, ch_)
        pend_ = []
def qf(kq, tg): return aQ + (kq*2 + tg)*4
def Sreg(st, tg, kt): return vS + (st % 2)*16 + tg*8 + kt*4
def Preg(st, tg): return vP + (st % 2)*8 + tg*4
def Oreg(d, tg): return vO + (((d >> 1)*2 + tg)*2 + (d & 1))*4
def G2(st):
    phase[f'G2_{st}'] = len(frags)
    ch = ring_round(f"K_{st}", sKK, vKD, str(st*16384))
    order = [(kt, ks) for kt in range(2) for ks in range(8)]
    for kt, ks in order:
        def mf(A, kt=kt, ks=ks):
            r = []
            for tg in range(2):
                c = v(Sreg(st, tg, kt), 4)
                if ks == 0: c = "0" if st < 1 else v(vC + 4*tg, 4)
                r.append(mfma(v(Sreg(st, tg, kt), 4), A, a(qf(ks, tg), 4), c))
            return r
        add_frag('b128', 2, vRA + (ks & 1), chunks[ch]['lo'] + (ks >> 1)*4096 + kt*2048, mf, ch)
def G3(st):
    phase[f'G3_{st}'] = len(frags)
    ch = ring_round(f"V_{st}", sVV, vVD, str(st*16384))
    for d in range(16):
        mf = (lambda A, d=d: [mfma(v(Oreg(d, tg), 4), A, v(Preg(st, tg), 4), "0" if st == 0 else v(Oreg(d, tg), 4)) for tg in range(2)])
        add_frag('tr', 4, vTR + (d & 3), chunks[ch]['lo'] + (d >> 2)*4096, mf, ch)
G2(0)
for st in range(15):
    G2(st + 1); G3(st)
G3(15)
phase['G4'] = len(frags)
def acc4(p, u, tg): return vA4 + u*8 + tg*4
def Opk(ks, tg): return vO + (ks*2 + tg)*8
for p in range(7):
    chs = [ring_round(f"wo_{p}_{h_}", sWO, vWOD, f"s{sQT+p}" if h_ == 0 else f"+s{sQT+p}, {4*32*896}") for h_ in range(2)]
    for u in range(4):
        for ks in range(8):
            ch = chs[ks // 4]
            mf = (lambda A, p=p, ks=ks, u=u: [mfma(v(acc4(p, u, tg), 4), A, v(Opk(ks, tg), 4), "0" if ks == 0 else v(acc4(p, u, tg), 4)) for tg in range(2)])
            add_frag('tr', 4, vTR + u, chunks[ch]['lo'] + (ks % 4)*4096, mf, ch)
phase['G6'] = len(frags)
def hole(i): return vO + 8*i + 4
def hreg(kk, t4):
    i = kk*4 + t4
    if i < 32: return a(aH + 4*i, 4)
    if i < 48: return a(aQ + 4*(i-32), 4)
    return v(hole(i-48), 4)
def facc(u, t4):
    i = u*4 + t4
    return vA4 + 32 + 4*i if i < 8 else hole(i)
vTP = 108
for kk in range(14):
    ch = ring_round(f"w2_{kk}", sW2, vW2D, str(kk*32*896), private=True)
    for u in range(4):
        mf = (lambda A, kk=kk, u=u: [mfma(v(facc(u, t4), 4), A, hreg(kk, t4), "0" if kk == 0 else v(facc(u, t4), 4)) for t4 in range(4)])
        add_frag('tr', 4, vTP + u, chunks[ch]['lo'], mf, ch)
NF = len(frags)
phase['END'] = NF

MF = [fr['mf'](a(aF + 4*(f % NA), 4)) for f, fr in enumerate(frags)]
if OPT['CHAIN']:
    for f0 in range(0, NF, 4):
        nm_ = chunks[frags[f0]['chunk']]['name']
        if nm_.startswith('K_') or nm_.startswith('wo_') or (OPT['PCH'] and nm_[:2] in ('wq', 'w1')):
            fl = [MF[f0+k_][tg] for tg in range(2) for k_ in range(4)]
            for k_ in range(4): MF[f0+k_] = fl[2*k_:2*k_+2]
G0 = [0]
for f in range(NF): G0.append(G0[-1] + len(MF[f]))
NG = G0[-1]
def gap(f): return G0[max(0, min(f, NF))]
pre = [[] for _ in range(NG)]
rds = [[] for _ in range(NG)]
ext = [[] for _ in range(NG)]
blk = {}
for g in range(NF):
    if g + D < NF:
        r = frag_reads(g + D)
        n = len(MF[g])
        rds[G0[g]].append(r[0])
        if len(r) > 1: rds[G0[g] + n//2].append(r[1])
def cost(i):
    if i.cls in ('ds',): return 8
    if i.cls == 'vmem': return 24 if 'store' in i.op and 'x4' in i.op else 8
    if i.cls in ('trans', 'perm'): return 8
    if i.cls == 'label': return 0
    return 4
def gtime(items):
    t = 4
    for i in items:
        if i.cls in VALU_LIKE: t = max(t, 8)
        t += cost(i)
    return t
def fits(gp, i): return gtime(pre[gp] + rds[gp] + ext[gp] + [i]) <= 16
def place(seq, g0, g1=None):
    seq = [I(s) if isinstance(s, str) else s for s in seq]
    g1 = NG if g1 is None else min(g1, NG)
    gp = g0; n = len(seq)
    for k, ins in enumerate(seq):
        bound = max(min(g0 + ((k + 1) * (g1 - g0)) // n - 1, g1 - 1), gp)
        best = None
        for q in range(gp, bound + 1):
            if fits(q, ins): best = q; break
        if best is None:
            best = min(range(gp, bound + 1), key=lambda q: (gtime(pre[q] + rds[q] + ext[q] + [ins]), q))
        ext[best].append(ins)
        gp = best
    return gp
def spread(seq, g0, g1):
    n = len(seq); cur = g0
    for k, ins in enumerate(seq):
        lo = max(g0 + (k*(g1-g0))//n, cur); hi = max(g0 + ((k+1)*(g1-g0))//n, lo+1)
        cur = place([ins], lo, hi)
    return cur

shared = [c for c in range(len(chunks)) if not chunks[c]['private']]
def is_bar(k_):
    if k_ == 0: return True
    if k_ < 21: return (k_ - 1) % OPT['BARP'] == 0
    if k_ < 53: return (k_ - 21) % OPT['BARA'] == 0
    return (k_ - 53) % OPT['BAR4'] == 0
bar_frags = [chunks[c]['first'] for k_, c in enumerate(shared) if is_bar(k_)]
bar_frags += [phase['G6'], phase['G6'] + D + 1]
bar_frags = sorted(set(bar_frags))
bar_gap = []
first_need = None
for bi, f0 in enumerate(bar_frags):
    f1 = bar_frags[bi+1] if bi + 1 < len(bar_frags) else NF
    need = [('c', c) for c in shared if f0 <= chunks[c]['first'] < f1]
    if f0 == 0: first_need = need; continue
    gp = gap(f0 - D); bar_gap.append(gp)
    if need: ext[gp-1].append(mk_wait_vm(need))
    pre[gp].append(I("s_barrier"))
for c in range(len(chunks)):
    if chunks[c]['private']:
        ext[gap(chunks[c]['first'] - D) - 1].append(mk_wait_vm([('c', c)]))
for g in range(4, NF, 4):
    ext[gap(g) - 1].append(mk_wait_lg([('f', f) for f in range(g, min(g+4, NF))]))
def earliest_gap(c):
    e = -1
    C = chunks[c]
    for c2 in range(c):
        B = chunks[c2]
        if B['hi'] <= C['lo'] or C['hi'] <= B['lo']: continue
        if B['private'] and C['private']: e = max(e, gap(B['last'] + 1))
        else: e = max(e, [gp for gp in bar_gap if gp >= gap(B['last'] + 1)][0] + 1)
    return e
pro_dma = []
cur = OPT['DSTART']
for c in range(len(chunks)):
    e = earliest_gap(c)
    if e < 0 and c < OPT['NPRO']:
        pro_dma.append(chunks[c]['dma']); continue
    if chunks[c]['name'].startswith('w2_') and int(chunks[c]['name'][3:]) >= OPT['W2PRE']: e = max(e, gap(phase['G6']) + OPT['W2G'])
    g0 = max(e, cur)
    span = OPT['SPAN']
    if g0 > e + 8: span = OPT['SPAN2']
    if g0 >= gap(phase['G6'] - D): span = OPT['W2S']
    seq = list(chunks[c]['dma'])
    if chunks[c]['name'] == 'wo_0_0': seq = [I(f"v_accvgpr_read_b32 v{vWOD+i}, a{aST+i}") for i in range(4)] + seq; wo_first_gap = g0
    if chunks[c]['name'] == 'w2_0': seq = [I(f"v_accvgpr_read_b32 v{vW2D+i}, a{aST+4+i}") for i in range(4)] + seq
    cur = spread(seq, g0, g0 + span)
    need_gap = gap(chunks[c]['first'] - D)
    if not chunks[c]['private']: need_gap = max(gp for gp in bar_gap if gp <= need_gap)
    if OPT['LOG']: print(chunks[c]['name'], g0, cur, need_gap, 'lead', need_gap - cur, file=sys.stderr)
    assert cur < need_gap - 1, (chunks[c]['name'], cur)

seq = []
for p in range(7):
    seq += [f"s_add_u32 s{sT2}, s{sROT}, {p}", f"s_sub_u32 s{sT3}, s{sT2}, 7", f"s_min_u32 s{sT2}, s{sT2}, s{sT3}",
            f"s_lshl_b32 s{sQT+p}, s{sT2}, 7", f"s_lshl_b32 s{sT2}, s{sT2}, 16", f"s_add_u32 s{sQT+7+p}, s{sSST}, s{sT2}",
            f"s_add_u32 s{sSST}, s{sSST}, s{sSTEP}"]
spread(seq, 6, 100)
assert gap(phase['G3_8']) < wo_first_gap
assert OPT['BAR'] == 2
place([f"v_add_u32 v{vTP+i}, s{sWB}, v{vTR+i}" for i in range(12)], gap(phase['G4'] + 8), gap(phase['G4'] + 40))

def hconv(pp):
    s = []
    for kq in range(2):
        for tg in range(2):
            b = accp(pp, kq, tg, 0)
            if not OPT['PKR']:
                for r in range(8): s.append(f"v_max_f32 v{b+r}, 0, v{b+r}")
            for r in range(4): s.append(f"v_cvt_pk_bf16_f32 v{b+r}, v{b+2*r}, v{b+2*r+1}")
            if OPT['PKR']:
                for r in range(4): s.append(f"v_pk_max_i16 v{b+r}, v{b+r}, 0")
            if not OPT['NOHST']:
                s.append(I(f"buffer_store_dwordx4 {v(b,4)}, v{vHS}, {srd(sWS)}, s{sHST} offen offset:{kq*2048 + tg*1024} {OPT['HST']}", tag='hst'))
    if pp == 4: s.append(f"s_add_u32 s{sHST}, s{sHST}, 4096")
    return s
place(hconv(4), gap(phase['P5']) + 4, gap(phase['G2_0']) - 4)
def qconv(pp):
    s = []
    for kq in range(2):
        for tg in range(2):
            b = accp(pp, kq, tg, 0)
            s += [f"v_cvt_pk_bf16_f32 v{b+r}, v{b+2*r}, v{b+2*r+1}" for r in range(4)]
            s += [f"v_permlane32_swap_b32 v{b}, v{b+2}", f"v_permlane32_swap_b32 v{b+1}, v{b+3}",
                  f"v_permlane16_swap_b32 v{b}, v{b+2}", f"v_permlane16_swap_b32 v{b+1}, v{b+3}"]
            s += [f"v_accvgpr_write_b32 a{qf(2*pp+kq, tg)+r}, v{b+r}" for r in range(4)]
    return s
for pp in range(4):
    g0 = gap(phase[f'P{pp+1}'])
    place(qconv(pp), g0 + 4, g0 + 2*56 - 4)

def allred(r, t, op):
    return [f"v_mov_b32 v{t}, v{r}", f"v_permlane32_swap_b32 v{r}, v{t}", f"{op} v{r}, v{r}, v{t}",
            f"v_mov_b32 v{t}, v{r}", f"v_permlane16_swap_b32 v{r}, v{t}", f"{op} v{r}, v{r}, v{t}"]
def interleave(*seqs):
    out = []
    for k in range(max(len(s) for s in seqs)):
        for s in seqs:
            if k < len(s): out.append(s[k])
    return out
def svals(st): return [Sreg(st, tg, kt) + r for tg in range(2) for kt in range(2) for r in range(4)]
g0 = gap(phase['G2_0'])
seqs = []
for tg in range(2):
    b = Sreg(0, tg, 0); m = vM + 2*tg; t = m + 1
    s = [f"v_max3_f32 v{m}, v{b}, v{b+1}, v{b+2}", f"v_max_f32 v{m}, v{m}, v{b+3}"] + allred(m, t, "v_max_f32")
    s += [f"v_sub_f32 v{vC+4*tg+r}, 0, v{m}" for r in range(4)]
    seqs.append(s)
seq = interleave(*seqs) + [f"v_mov_b32 v{vLS}, 0", f"v_mov_b32 v{vLS+1}, 0"]
gm = place(seq, g0 + 19, g0 + 31)
def sm_seq(st, sub):
    s = []
    vals = svals(st)
    for k_, r in enumerate(vals):
        tg = k_ // 8
        if sub: s.append(f"v_add_f32 v{r}, v{r}, v{vC+4*tg}")
        s.append(f"v_exp_f32 v{r}, v{r}")
        if k_ % 2 == 1 and k_ >= 3:
            kk = k_ - 3
            s.append(f"v_cvt_pk_bf16_f32 v{Preg(st, kk//8) + (kk % 8)//2}, v{vals[kk]}, v{vals[kk+1]}")
    s.append(f"v_cvt_pk_bf16_f32 v{Preg(st, 1) + 3}, v{vals[14]}, v{vals[15]}")
    return s
def add_seq(st):
    vals = svals(st)
    return interleave([f"v_add_f32 v{vLS}, v{vLS}, v{r}" for r in vals[:8]], [f"v_add_f32 v{vLS+1}, v{vLS+1}, v{r}" for r in vals[8:]])
for st in range(16):
    g3 = gap(phase[f'G3_{st}'])
    if st == 0:
        ge = place(sm_seq(st, True), gap(phase['G2_1']) + 3, g3 - 1)
    elif st < 15:
        gs = gap(phase[f'G2_{st+1}'] - D)
        ge = place(sm_seq(st, False), gs, g3 - 2)
    else:
        ge = place(sm_seq(st, False), gap(phase['G3_14']) + 4, g3 - 2)
    lim = gap(phase[f'G2_{st+2}']) - 2 if st + 2 < 16 else g3 + 14
    ga = place(add_seq(st), ge, lim)
seqs = []
for tg in range(2):
    l = vLS + tg; t = vM + tg
    seqs.append(allred(l, t, "v_add_f32") + [f"v_rcp_f32 v{vRC+tg}, v{l}"])
seq = interleave(*seqs) + [f"v_add_f32 v{vM}, v{vLS}, v{vLS+1}", f"s_mov_b32 s{sT0}, {hx(f2u(2.0**24 if not OPT['FORCEFB'] else 0.5))}", f"v_cmp_ngt_f32 vcc, s{sT0}, v{vM}"]
place(seq, ga, gap(phase['G4']) - 1)

hc = hconv(5)
n3 = 3*len(hc)//4
place(hc[:n3], gap(phase['G2_0']) + 3, gap(phase['G2_0']) + 19)
gend = place(hc[n3:], gap(phase['G3_0']), gap(phase['G3_0']) + 16)
assert accp(5, 1, 1, 0) >= Oreg(10, 0)
hb = [gp for gp in bar_gap if gp > gend + OPT['HSIG']][0]
ext[hb-1].append(mk_wait_vm(['hst']))
sig = [I(f"s_cmp_lg_u32 s{sW}, 0"), I("s_cbranch_scc1 L_nosig"), I(f"s_lshl_b32 s{sT0}, s{sT}, 4"), I(f"v_mov_b32 v{vPOLL}, s{sT0}"),
       I("s_mov_b64 exec, 1"), I(f"global_atomic_add v{vPOLL}, v{vONE}, {DBGP} sc1"), I("s_mov_b64 exec, -1"), I("L_nosig:")]
sig[5].cls = 'misc'
ext[hb+1] += sig

def dump(regs_list):
    r = [I("s_nop 15"), I(f"s_lshl_b32 s{sT0}, s{sT}, 4"), I(f"s_add_u32 s{sT0}, s{sT0}, s{sHD}"),
         I(f"s_lshl_b32 s{sT0}, s{sT0}, 2"), I(f"s_add_u32 s{sT0}, s{sT0}, s{sW}"),
         I(f"s_mul_i32 s{sT0}, s{sT0}, {32*1024}"), I(f"s_add_u32 s{sT0}, s{sT0}, {hx(WS_DBG)}")]
    for reg in regs_list:
        r.append(I(f"buffer_store_dwordx4 {reg}, v{vL16}, {srd(sWS)}, s{sT0} offen"))
        r.append(I(f"s_add_u32 s{sT0}, s{sT0}, 1024"))
    r.append(I("s_nop 3"))
    return r
def ocvt(ks): return [f"v_cvt_pk_bf16_f32 v{Opk(ks, tg)+r}, v{Opk(ks, tg)+2*r}, v{Opk(ks, tg)+2*r+1}" for tg in range(2) for r in range(4)]
NEARLY = OPT['OEARLY']
g15 = gap(phase['G3_15'])
for ks in range(NEARLY): place(ocvt(ks), g15 + 4*ks + 8, gap(phase['G4']) - 1)
b = stamp_ins('attn_done') + [I("s_cbranch_vccnz L_exact")]
for ks in range(NEARLY, 8): b += [I(t_) for t_ in ocvt(ks)]
b.append(I("L_exact_ret:"))
if OPT['DUMP'] == 'o': b += dump([v(Opk(ks, tg), 4) for ks in range(8) for tg in range(2)])
if OPT['DUMP'] == 'q': b += dump([a(qf(ks, tg), 4) for ks in range(8) for tg in range(2)])
b += stamp_ins('G4')
blk[phase['G4']] = b

def sconv(p, u):
    b = acc4(p, u, 0)
    s = [f"v_mul_f32 v{b+r}, v{vRC + r//4}, v{b+r}" for r in range(8)]
    s += [f"v_cvt_pk_bf16_f32 v{b+r}, v{b+2*r}, v{b+2*r+1}" for r in range(4)]
    if u: s.append(f"s_add_u32 s{sQT+7+p}, s{sQT+7+p}, 16384")
    if not OPT['NOSST']: s.append(I(f"buffer_store_dwordx4 {v(b,4)}, v{vL16}, {srd(sWS)}, s{sQT+7+p} offen {OPT['SST']}", tag=('sst', p)))
    return s
g4 = gap(phase['G4'])
for p in range(7):
    for u in range(4):
        g0 = g4 + 64*p + 16*(u+1)
        gl = place(sconv(p, u), g0 + 3, g0 + (19 if (p, u) != (6, 3) else 10))
last_store_gap = gl
hs = OPT['HSTEP']
gp0 = gap(phase[f'G3_{hs-1}']) - 30
place([f"s_lshl_b32 s{sT0}, s{sTC}, 4", f"v_mov_b32 v{vPOLL}, s{sT0}", I(f"global_load_dword v{vPOLL}, v{vPOLL}, {DBGP} sc1", tag='pollh'),
       f"v_add_u32 v{vHS}, s{sCOOB}, v{vL16}"], gp0, gp0 + 24)
gp1 = gap(phase[f'G3_{hs}'])
ext[gp1] += [mk_wait_vm(['pollh']), I(f"v_cmp_gt_u32 vcc, 16, v{vPOLL}"), I("s_cbranch_vccnz L_spinh"), I("L_spinh_ret:")]
def hloads(k0, k1):
    s = []
    for kk in range(k0, k1, 2):
        for rl in range(2):
            s.append(f"s_add_u32 s{sT0}, s{sHLD}, {rl*56*2048 + kk*2048}")
            for k2 in range(2):
                for tg in range(2):
                    s.append(I(f"buffer_load_dwordx4 {hreg(kk+k2, rl*2+tg)}, v{vHS}, {srd(sWS)}, s{sT0} offen offset:{k2*2048 + tg*1024} {OPT['HLD']}", tag='hld'))
    return s
if not OPT['NOHLD']:
    spread(hloads(0, 8), gap(phase[f"G3_{hs+OPT['HPF']}"]) + 2, gap(phase['G3_15']) - OPT['HEND'])
    spread(hloads(8, 14), g4 + OPT['H2A'], g4 + OPT['H2B'])
g6 = gap(phase['G6'])
vFV = 120
def greg(rl, sl):
    i = sl*2 + rl
    if i < 16: return v(Opk(0, 0) + 8*i, 4)
    return a(aH + (i - 16)*4, 4)
def gloads(s0, s1, va):
    s = []
    for sq in range(s0, s1, 2):
        for rl in range(2):
            s.append(I(f"s_add_u32 s{sT1}, s{sSG}, {rl*28*16384 + sq*1024}"))
            for sl in range(sq, sq+2):
                if not OPT['NOG']: s.append(I(f"buffer_load_dwordx4 {greg(rl, sl)}, v{va}, {srd(sWS)}, s{sT1} offen offset:{(sl-sq)*1024} {OPT['GLD']}", tag=('g', rl, sl)))
    return s
F0 = OPT['F0']
sPL = 32
sMISS = 18
place([f"v_mov_b32 v{vFV}, 1", f"v_mov_b32 v{vFV+1}, 3", f"v_and_b32 v{vFV+3}, 31, v0"], g4 + 100, g4 + 200)
def signal(k, n): return [mk_wait_vm([('sst', p) for p in range(n)]), I(f"buffer_store_byte v{vFV+k}, v{vZ}, {srd(sWS)}, s{sFLG} offen sc1", tag='flag')]
spoll = I(f"s_buffer_load_dwordx8 s[{sPL}:{sPL+7}], {srd(sWS)}, s{sFLP} glc"); spoll.cls = 'misc'
VPOLL = f"buffer_load_ubyte v{vPOLL}, v{vFV+3}, {srd(sWS)}, s{sFLP} offen sc1"
if OPT['WB']:
    def signal(k, n, gp):
        ext[gp - OPT['WBD']] += [mk_wait_vm([('sst', p) for p in range(n)]), I("buffer_wbl2 sc1", tag=('wb', k))] + stamp_ins(f'wb{k}')
        return [mk_wait_vm([('wb', k)]), I(f"buffer_store_byte v{vFV+k}, v{vZ}, {srd(sWS)}, s{sFLG} offen sc1", tag='flag')]
else:
    signal_ = signal
    def signal(k, n, gp): return signal_(k, n)
ext[g4 + OPT['SA']] += signal(0, F0, g4 + OPT['SA']) + stamp_ins('sigA')
ext[g4 + OPT['PA']] += [spoll]
sg = g6 + OPT['SC']
ext[sg] += signal(1, 7, sg) + stamp_ins('st_done') + [I(f"s_cmp_ge_u32 s{sPC}, 14"), I("s_cbranch_scc1 " + ("L_fin" if OPT['STAMP'] == 3 else "L_end"))]
assert sg > bar_gap[-1] and sg > last_store_gap
ext[g6 + OPT['CA']] += stamp_ins('pre_c0') + [I(t_) for t_ in (
    "s_waitcnt lgkmcnt(0)", f"s_and_b64 s[{sPL}:{sPL+1}], s[{sPL}:{sPL+1}], s[{sPL+2}:{sPL+3}]", f"s_and_b64 s[{sPL+4}:{sPL+5}], s[{sPL+4}:{sPL+5}], s[{sPL+6}:{sPL+7}]",
    f"s_and_b64 s[{sPL}:{sPL+1}], s[{sPL}:{sPL+1}], s[{sPL+4}:{sPL+5}]", f"s_and_b32 s{sPL}, s{sPL}, s{sPL+1}",
    f"s_and_b32 s{sPL}, s{sPL}, 0x01010101", f"s_cmp_eq_u32 s{sPL}, 0x01010101", f"s_cselect_b32 s{sMISS}, 0, {hx(OOB)}",
    f"v_add_u32 v{vFV+2}, s{sMISS}, v{vHS}")] + stamp_ins('chk0')
spread(gloads(0, 2*F0, vFV+2), g6 + OPT['CA'] + 1, g6 + OPT['LA'])
ext[g6 + OPT['PB']] += [I(VPOLL, tag='poll')]

vXF = 68
vAD = 125
seq = [f"v_accvgpr_read_b32 v{vAD}, a{aST+8}"]
for t4 in range(4):
    if t4: seq.append(f"s_mov_b32 s{sSV0 + t4 - 1}, {t4*14336}")
    seq.append(I(f"buffer_load_dwordx2 {v(vXF + t4*2, 2)}, v{vAD}, {srd(sX)}, {'0' if t4 == 0 else 's%d' % (sSV0+t4-1)} offen", tag='xf'))
spread(seq, g6 + 14, g6 + 40)
HX = OPT['HX']; NHG = 16 // HX; NT = 32 // HX
npf = [0]
def pf_addr(nlines, lines_per_row, pitch, k, dst, idx_sgpr, nshare):
    per = nlines // nshare
    s = [f"s_lshl_b32 s{sSO2}, s{sW}, 6", f"s_add_u32 s{sSO2}, s{sSO2}, {k*256}", f"v_add_u32 v{dst}, s{sSO2}, v0",
         f"v_min_u32 v{dst}, {per-1}, v{dst}", f"s_mul_i32 s{sSO2}, s{idx_sgpr}, {per}", f"v_add_u32 v{dst}, s{sSO2}, v{dst}"]
    if lines_per_row is None:
        s += [f"v_lshlrev_b32 v{dst}, 7, v{dst}"]
    else:
        sh = lg(lines_per_row)
        s += [f"v_and_b32 v{vPF}, {lines_per_row-1}, v{dst}", f"v_lshrrev_b32 v{dst}, {sh}, v{dst}",
              f"v_mul_u32_u24 v{dst}, {pitch}, v{dst}", f"v_lshl_add_u32 v{dst}, v{vPF}, 7, v{dst}"]
    return s
def pf_load(srd_b, dst):
    npf[0] += 1
    return I(f"buffer_load_dword a{aST + 10 + npf[0] % 6}, v{dst}, {srd(srd_b)}, 0 offen {OPT['PPF']}", tag='pf')
def pf_seq(srd_b, nlines, lines_per_row, pitch, idx, nshare):
    s = []
    for k in range((nlines // nshare + 255) // 256):
        s += pf_addr(nlines, lines_per_row, pitch, k, vPF+1, idx, nshare) + [pf_load(srd_b, vPF+1)]
    return s
vLQ = 26
def pf_pieces(srd_b, per, unit, idx, extra_base=None, pol='', rot=False):
    setup = [f"s_mul_i32 s{sSO2}, s{idx}, {per}", f"v_add_u32 v{vPF+1}, s{sSO2}, v{vLQ}", f"v_mul_u32_u24 v{vPF+1}, {unit}, v{vPF+1}"]
    if extra_base is not None: setup.append(f"v_add_u32 v{vPF+1}, s{extra_base}, v{vPF+1}")
    pcs = []
    for k in range((per + 63)//64):
        npf[0] += 1
        n_ = (per + 63)//64
        if rot and k == 0: so_ = [f"s_lshr_b32 s{sSO2}, s{sTC}, 1", f"s_sub_u32 s{sCNT}, s{sSO2}, {n_}", f"s_min_u32 s{sSO2}, s{sSO2}, s{sCNT}", f"s_mul_i32 s{sSO2}, s{sSO2}, {64*unit}"]
        elif rot: so_ = [f"s_add_u32 s{sSO2}, s{sSO2}, {64*unit}", f"s_sub_u32 s{sCNT}, s{sSO2}, {n_*64*unit}", f"s_min_u32 s{sSO2}, s{sSO2}, s{sCNT}"]
        else: so_ = [f"s_mov_b32 s{sSO2}, {k*64*unit}"]
        pcs.append(so_ + [I(f"buffer_load_dword a{aST + 9 + npf[0] % 7}, v{vPF+1}, {srd(srd_b)}, s{sSO2} offen {pol}", tag='pf')])
    return setup, pcs
def pf_run(streams, g0, g1):
    items = []
    for st_ in streams:
        su, pcs = st_
        for k, p_ in enumerate(pcs): items.append((su if k == 0 else []) + p_)
    n = len(items)
    for k, it_ in enumerate(items):
        lo = g0 + (k*(g1-g0))//n
        place(it_, lo, lo + 24)
if OPT['PF']:
    place([f"v_lshrrev_b32 v{vLQ}, 2, v0", f"s_lshl_b32 s{sSO2}, s{sW}, 4", f"v_add_u32 v{vLQ}, s{sSO2}, v{vLQ}"], 100, 130)
    if not OPT['BIG'] & 2: pf_run([pf_pieces(sKK, 2048//(2*NT), 128, sKVI, pol=OPT['PPF']), pf_pieces(sVV, 2048//(2*NT), 128, sKVI, pol=OPT['PPF'])], OPT['PFG'], gap(phase['P4']))
    if not OPT['NOPF2'] & 1: pf_run([pf_pieces(sWO, 1792//NT, 128, sTL), pf_pieces(sW2, 448, 896, sW2I, rot=OPT['W2ROT'])], gap(phase[f"G3_{OPT['PF0']}"]), gp1 if OPT['PF1'] == 0 else gap(phase[f"G3_{OPT['PF1']}"]))
    vPF += -20
    sSO2 = sT3
    if not OPT['NOPF2'] & 2: pf_run([pf_pieces(sWS, 256, 128, sCC, sHPF, 'sc1')], gp1 + 2, gap(phase[f"G3_{hs+OPT['HPF']}"]) - 20)
    vPF += 20
    sSO2 = 93

if OPT['TLB']:
    gt = gap(phase[OPT['TLBP']])
    seq = []
    if OPT['TLB'] & 1: seq += [f"v_accvgpr_read_b32 v{vT1}, a{aST+8}", f"v_readfirstlane_b32 s{sT2}, v{vT1}", "s_nop 0", "s_nop 0", I(f"buffer_load_dword a{aST+9}, v{vZ}, {srd(sOUT)}, s{sT2} offen", tag='pf')]
    if OPT['TLB'] & 2: seq += [I(f"buffer_load_dword a{aST+9}, v{vZ}, {srd(sWS)}, s{sQT+7} offen sc1", tag='pf')]
    if OPT['TLB'] & 4: seq += [I(f"buffer_load_dword a{aST+9}, v{vZ}, {srd(sWS)}, s{sSG} offen sc1", tag='pf'), f"s_add_u32 s{sT2}, s{sSG}, {28*16384}",
                               I(f"buffer_load_dword a{aST+9}, v{vZ}, {srd(sWS)}, s{sT2} offen sc1", tag='pf')]
    spread(seq, gt, gt + 40)
    if OPT['TLB'] & 8: place([I(f"buffer_load_dword a{aST+9}, v{vZ}, {srd(sWS)}, s{sHST} offen sc1", tag='pf')], gap(phase['P3']), gap(phase['P3']) + 20)
if OPT['FINE'] == 1:
    for p in range(1, 7): phase[f'G4p{p}'] = phase['G4'] + 32*p; blk[phase[f'G4p{p}']] = stamp_ins(f'G4p{p}')
    for kk in range(2, 14, 2): phase[f'G6k{kk}'] = phase['G6'] + 4*kk; blk[phase[f'G6k{kk}']] = stamp_ins(f'G6k{kk}')
if OPT['FINE'] == 2:
    for nm in ['P1', 'P3', 'P5'] + [f'G2_{s_}' for s_ in range(1, 16) if s_ % 4] + ['G3_14', 'G3_15']:
        blk[phase[nm]] = stamp_ins(nm)
if OPT['STAMP'] or OPT['WAITAT']:
    for nm in ('P0', 'P2', 'P4', 'G2_0', 'G2_4', 'G2_8', 'G2_12', 'G6'):
        blk.setdefault(phase[nm], [])
        blk[phase[nm]] = stamp_ins(nm) + blk[phase[nm]]

E(f"""
s_cmp_ge_u32 s2, 256
s_cbranch_scc1 L_end
s_load_dwordx16 s[4:19], s[0:1], 0
s_load_dwordx4 s[20:23], s[0:1], 64
s_load_dwordx2 s[24:25], s[0:1], 80
""")
if OPT['STAMP'] or OPT['WAITAT']: E("s_memtime s[98:99]\ns_memrealtime s[100:101]")
E(f"""
v_lshrrev_b32 v{vT0}, 6, v0
v_and_b32 v0, 63, v0
s_and_b32 s{sT0}, s2, 7
v_readfirstlane_b32 s{sW}, v{vT0}
s_lshr_b32 s{sT1}, s2, 3
s_and_b32 s{sT2}, s{sT0}, {NHG-1}
s_lshl_b32 s{sT2}, s{sT2}, {lg(HX)}
s_and_b32 s{sHD}, s{sT1}, {HX-1}
s_add_u32 s{sHD}, s{sHD}, s{sT2}
s_lshr_b32 s{sT2}, s{sT0}, {lg(NHG)}
s_lshl_b32 s{sT2}, s{sT2}, {lg(NT)}
s_lshr_b32 s{sTL}, s{sT1}, {lg(HX)}
s_add_u32 s{sT}, s{sTL}, s{sT2}
s_lshl_b32 s{sWB}, s{sW}, 12
""")
CODE_LINES = 512
E(f"s_lshr_b32 s{sCNT}, s2, 3")
for t_ in pf_addr(CODE_LINES, None, 0, 0, vR+80, sCNT, 32): E(t_)
E(f"""
s_getpc_b64 s[26:27]
L_pc:
global_load_dword v{vR+90}, v{vR+80}, s[26:27]
""")
E(f"""
v_lshrrev_b32 v{vT3}, 3, v0
v_and_b32 v{vT4}, 7, v0
v_lshrrev_b32 v{vT1}, 1, v{vT3}
v_xor_b32 v{vT1}, v{vT1}, v{vT4}
v_lshlrev_b32 v{vT1}, 4, v{vT1}
v_xor_b32 v{vT2}, 64, v{vT1}
s_lshl_b32 s{sT1}, s{sT}, 2
s_add_u32 s{sT1}, s{sT1}, s{sW}
s_mul_i32 s{sT1}, s{sT1}, {32*896}
v_mul_u32_u24 v{vT0}, 896, v{vT3}
v_add_u32 v{vT0}, s{sT1}, v{vT0}
v_add_u32 v{vXD}, v{vT0}, v{vT1}
v_add_u32 v{vXD+1}, v{vT0}, v{vT2}
v_add_u32 v{vXD+2}, {2*6144}, v{vXD}
v_add_u32 v{vXD+3}, {3*6144}, v{vXD+1}
v_add_u32 v{vXD+1}, 6144, v{vXD+1}
s_mov_b32 m0, s{sWB}
s_mov_b32 s{sSO}, 0
v_min_u32 v{vR+82}, 13, v0
v_subrev_u32 v{vR+83}, 7, v{vR+82}
v_min_u32 v{vR+83}, v{vR+83}, v{vR+82}
v_sub_u32 v{vR+82}, v{vR+82}, v{vR+83}
v_lshlrev_b32 v{vR+82}, 11, v{vR+82}
v_lshl_add_u32 v{vR+82}, v{vR+83}, 7, v{vR+82}
s_mul_i32 s{sT2}, s{sHD}, 896
s_add_u32 s{sT2}, s{sT2}, s{sT1}
s_mov_b32 s{sX+2}, {2048*896}
s_mov_b32 s{sX+3}, 0x00020000
s_waitcnt lgkmcnt(0)
s_mov_b32 s{sX}, s4
s_mov_b32 s{sX+1}, s5
""")
PST('karg')
def mk_srd(b, plo, off_sgpr, size):
    if off_sgpr is None:
        E(f"s_mov_b32 s{b}, s{plo}\ns_mov_b32 s{b+1}, s{plo+1}")
    else:
        E(f"s_add_u32 s{b}, s{plo}, s{off_sgpr}\ns_addc_u32 s{b+1}, s{plo+1}, 0")
    E(f"s_mov_b32 s{b+2}, {size}\ns_mov_b32 s{b+3}, 0x00020000")
xdma = []
for tg in range(2):
    for q in range(7):
        if q or tg:
            xdma += [I(f"s_add_u32 m0, s{sWB}, {q*SLOT}"), I(f"s_movk_i32 s{sSO}, {q*128}")]
        for rb in (2*tg, 2*tg+1):
            xdma.append(I(f"buffer_load_dwordx4 v{vXD+rb}, {srd(sX)}, s{sSO} offen offset:{rb*1024} {OPT['PX']} lds", tag=('x', tg, q)))
def xissue(n):
    while n > 0 and xdma:
        i_ = xdma.pop(0); P.ins.append(i_)
        if i_.cls == 'vmem': n -= 1
if OPT['XPF']: E(f"buffer_load_dword a{aST+9}, v{vR+82}, {srd(sX)}, s{sT2} offen", tag='pf')
xissue(OPT['XFIRST'])
E(f"s_lshl_b32 s{sT0}, s{sHD}, 9\ns_sub_u32 s{sT2}, {448*8192}, s{sT0}")
mk_srd(sWQ, 10, sT0, f"s{sT2}")
wqpf = [I(t_) if isinstance(t_, str) else t_ for t_ in pf_seq(sWQ, 448*OPT['WQP'], OPT['WQP'], 8192, sTL, NT)] if OPT['PF'] and OPT['WQP'] else []
if OPT['WQE'] == 1: P.ins += wqpf; wqpf = []
else: P.ins += wqpf[:-1]; wqpf = wqpf[-1:]
xissue(OPT['XSEC'])
PST('x_first')
mk_srd(sOUT, 20, None, 2048*896)
E(f"""
s_lshl_b32 s{sT0}, s{sW}, 7
v_lshlrev_b32 v{vKD}, 9, v{vT3}
v_add_u32 v{vVD}, s{sT0}, v{vKD}
v_add_u32 v{vKD}, v{vVD}, v{vT1}
v_add_u32 v{vKD+1}, v{vVD}, v{vT2}
v_add_u32 v{vKD+2}, {2*3072}, v{vKD}
v_add_u32 v{vKD+3}, {3*3072}, v{vKD+1}
v_add_u32 v{vKD+1}, 3072, v{vKD+1}
v_and_b32 v{vT0}, 6, v{vT3}
v_xor_b32 v{vT0}, v{vT0}, v{vT4}
v_lshlrev_b32 v{vT0}, 4, v{vT0}
v_add_u32 v{vVD}, v{vVD}, v{vT0}
""")
for rb in range(1, 4): E(f"v_add_u32 v{vVD+rb}, {3072*rb}, v{vVD}")
E(f"""
v_and_b32 v{vT1}, 4, v{vT3}
v_add_u32 v{vT1}, v{vT1}, v{vT3}
v_lshl_add_u32 v{vWQ}, v{vT1}, 13, v{vT0}
v_mul_u32_u24 v{vT1}, 3584, v{vT1}
v_add_u32 v{vW1D}, v{vT1}, v{vT0}
""")
for rb in range(1, 4):
    rr = 16*(rb & 1) + 4*(rb >> 1)
    E(f"v_add_u32 v{vW1D+rb}, {rr*3584 - 1024*rb}, v{vW1D}\nv_add_u32 v{vWQ+rb}, {rr*8192 - 1024*rb}, v{vWQ}")
E(f"""
s_lshl_b32 s{sT1}, s{sHD}, 8
s_sub_u32 s{sT2}, {448*3584}, s{sT1}
s_cmp_lt_u32 s{sHD}, 14
s_cselect_b32 s{sT2}, s{sT2}, 0
s_cselect_b32 s{sT1}, s{sT1}, 0
""")
mk_srd(sW1, 16, sT1, f"s{sT2}")
E(f"s_lshr_b32 s{sT0}, s{sHD}, 1\ns_lshl_b32 s{sT0}, s{sT0}, 20\ns_add_u32 s{sT0}, s{sT0}, {1536*512}")
mk_srd(sKK, 6, sT0, 262144)
mk_srd(sVV, 8, sT0, 262144)
E(f"s_mul_i32 s{sT0}, s{sHD}, {256*896}")
mk_srd(sWO, 12, sT0, 256*896)
E(f"""
s_lshr_b32 s{sPC}, s2, 3
s_and_b32 s{sPC}, s{sPC}, 15
s_cmp_ge_u32 s{sPC}, 7
s_cselect_b32 s{sT3}, 1, 0
s_mul_i32 s{sT1}, s{sT3}, 7
s_sub_u32 s{sT1}, s{sPC}, s{sT1}
s_lshl_b32 s{sT0}, s{sT1}, 7
s_sub_u32 s{sT2}, {1792*896}, s{sT0}
s_cmp_lt_u32 s{sPC}, 14
s_cselect_b32 s{sT2}, s{sT2}, 0
s_cselect_b32 s{sT0}, s{sT0}, 0
""")
mk_srd(sW2, 18, sT0, f"s{sT2}")
if OPT['WSOFF']:
    E(f"s_mov_b32 s{sT0}, {hx(OPT['WSOFF'] << 20)}")
    mk_srd(sWS, 24, sT0, WS_SIZE)
else:
    mk_srd(sWS, 24, None, WS_SIZE)
for k_, R_ in ((0, 32*8192), (2, 32*3584)):
    E(f"""
s_mul_i32 s{sW1T+k_}, s{sW}, {R_}
s_cmp_lt_u32 s{sW}, 2
s_mov_b32 s{sT2}, {hx(128 - 2*R_)}
s_cselect_b32 s{sT0}, {12*R_}, s{sT2}
s_add_u32 s{sW1T+k_+1}, s{sW1T+k_}, s{sT0}
""")
E(f"""
v_mul_u32_u24 v{vT1}, 896, v{vT3}
v_add_u32 v{vT1}, v{vT1}, v{vT0}
s_mul_i32 s{sT0}, s{sW}, {32*896}
s_mul_i32 s{sT2}, s{sW}, {448*896}
""")
for rb in range(4):
    if rb: E(f"v_add_u32 v{vT1}, 6144, v{vT1}")
    E(f"v_add_u32 v{vT2}, s{sT0}, v{vT1}\nv_accvgpr_write_b32 a{aST+rb}, v{vT2}\nv_add_u32 v{vT2}, s{sT2}, v{vT1}\nv_accvgpr_write_b32 a{aST+4+rb}, v{vT2}")
E(f"""
v_lshlrev_b32 v{vL16}, 4, v0
v_lshrrev_b32 v{vT0}, 2, v0
v_lshlrev_b32 v{vT1}, 7, v{vT0}
v_and_b32 v{vT2}, 3, v0
v_lshl_add_u32 v{vT1}, v{vT2}, 3, v{vT1}
v_bfe_u32 v{vT3}, v0, 3, 2
""")
for u in range(4):
    E(f"""
v_xor_b32 v{vT4}, {u}, v{vT3}
v_lshl_add_u32 v{vTR+u}, v{vT4}, 5, v{vT1}
v_add_u32 v{vTR+4+u}, 0x10000, v{vTR+u}
v_add_u32 v{vTR+8+u}, 0x20000, v{vTR+u}
""")
E(f"""
v_and_b32 v{vT0}, 15, v0
v_lshrrev_b32 v{vT1}, 1, v{vT0}
v_lshrrev_b32 v{vT2}, 4, v0
v_xor_b32 v{vT1}, v{vT1}, v{vT2}
v_lshlrev_b32 v{vT4}, 7, v{vT0}
v_lshl_add_u32 v{vRA}, v{vT1}, 4, v{vT4}
v_xor_b32 v{vRA+1}, 64, v{vRA}
v_add_u32 v{vRA+2}, 0x10000, v{vRA}
v_add_u32 v{vRA+3}, 0x10000, v{vRA+1}
v_add_u32 v{vRA+4}, 0x20000, v{vRA}
v_add_u32 v{vRA+5}, 0x20000, v{vRA+1}
""")
vXR = vR + 72
for i in range(4): E(f"v_add_u32 v{vXR+i}, s{sWB}, v{vRA+i}")
E(f"""
s_and_b32 s{sTC}, s2, 7
s_lshl_b32 s{sTC}, s{sTC}, 1
s_lshr_b32 s{sT0}, s2, 7
s_add_u32 s{sTC}, s{sTC}, s{sT0}
s_lshl_b32 s{sW2I}, s{sT0}, 1
s_add_u32 s{sW2I}, s{sW2I}, s{sT3}
s_lshl_b32 s{sT2}, s{sTC}, 1
s_add_u32 s{sT2}, s{sT2}, s{sT3}
s_lshl_b32 s{sT0}, s{sT2}, 6
v_add_u32 v{vT0}, s{sT0}, v{vT0}
v_mul_u32_u24 v{vT0}, 896, v{vT0}
v_lshl_add_u32 v{vT0}, v{vT2}, 3, v{vT0}
s_lshl_b32 s{sT0}, s{sT1}, 2
s_add_u32 s{sT0}, s{sT0}, s{sW}
s_lshl_b32 s{sSG}, s{sT0}, 5
v_add_u32 v{vT0}, s{sSG}, v{vT0}
v_accvgpr_write_b32 a{aST+8}, v{vT0}
s_lshl_b32 s{sT2}, s{sT2}, 1
s_mul_i32 s{sSG}, s{sT2}, 28
s_add_u32 s{sSG}, s{sSG}, s{sT0}
s_lshl_b32 s{sSG}, s{sSG}, 14
s_lshl_b32 s{sFLP}, s{sT2}, 7
s_add_u32 s{sFLP}, s{sFLP}, {hx(WS_F)}
s_mul_i32 s{sHLD}, s{sT2}, {56*2048}
s_add_u32 s{sHLD}, s{sHLD}, {hx(WS_H)}
s_cmp_lt_u32 s{sPC}, 14
s_cselect_b32 s{sCOOB}, 0, {hx(OOB)}
s_add_u32 s{sHPF}, s{sHLD}, s{sCOOB}
s_mul_i32 s{sT0}, s{sW}, {14*2048}
s_add_u32 s{sHLD}, s{sHLD}, s{sT0}
s_mov_b32 s0, s2
s_mov_b32 s{sCC}, s{sT1}
s_lshl_b32 s{sKVI}, s{sTL}, 1
s_and_b32 s{sT0}, s{sHD}, 1
s_add_u32 s{sKVI}, s{sKVI}, s{sT0}
s_lshl_b32 s{sT1}, s{sT}, 2
s_add_u32 s{sT1}, s{sT1}, s{sW}
s_lshr_b32 s{sFLG}, s{sT1}, 1
s_lshl_b32 s{sFLG}, s{sFLG}, 8
s_and_b32 s{sT2}, s{sT1}, 1
s_lshl_b32 s{sT2}, s{sT2}, 4
s_add_u32 s{sFLG}, s{sFLG}, s{sT2}
s_add_u32 s{sFLG}, s{sFLG}, s{sHD}
s_add_u32 s{sFLG}, s{sFLG}, {hx(WS_F)}
s_mul_i32 s{sHST}, s{sT1}, {56*2048}
s_min_u32 s{sT2}, s{sHD}, 13
s_lshl_b32 s{sT2}, s{sT2}, 13
s_add_u32 s{sHST}, s{sHST}, s{sT2}
s_add_u32 s{sHST}, s{sHST}, {hx(WS_H)}
s_cmp_lt_u32 s{sHD}, 14
s_cselect_b32 s{sT2}, 0, {hx(OOB)}
v_add_u32 v{vHS}, s{sT2}, v{vL16}
v_mov_b32 v{vZ}, 0
v_mov_b32 v{vONE}, 1
""")
PST('addr_done')
xissue(14 - OPT['XFIRST'] - OPT['XSEC'])
if OPT['WQE'] == 0: P.ins += wqpf; wqpf = []
PST('x_issued')
PRODUCER = len(P.ins)
E(f"""
s_lshl_b32 s{sSST}, s{sT}, 2
s_add_u32 s{sSST}, s{sSST}, s{sW}
s_mul_i32 s{sSST}, s{sSST}, {28*16384}
s_cmp_ge_u32 s{sHD}, 7
s_cselect_b32 s{sT3}, 1, 0
s_sub_u32 s{sROT}, s{sHD}, 7
s_min_u32 s{sROT}, s{sROT}, s{sHD}
s_sub_u32 s{sCNT}, s{sROT}, 7
s_min_u32 s{sROT}, s{sROT}, s{sCNT}
s_cmp_lt_u32 s{sHD}, 14
s_cselect_b32 s{sT3}, s{sT3}, s{sHD}
s_cselect_b32 s{sSTEP}, 2048, 0
s_lshl_b32 s{sT3}, s{sT3}, 10
s_add_u32 s{sSST}, s{sSST}, s{sT3}
""")
prod_ins = []
for s_, val in ((sM1, 0x2222222222222222), (sM2, 0xCCCCCCCCCCCCCCCC), (sM3, 0x8888888888888888), (sMD, 0xF0000F0000F0000F)):
    E(f"s_mov_b32 s{s_}, {hx(val)}\ns_mov_b32 s{s_+1}, {hx(val >> 32)}")

vONES = vR + 16
vD1 = vR + 20
vD2 = vR + 28
vLA = vR + 36
for i in range(4): E(f"v_mov_b32 v{vONES+i}, 0x3f803f80")
def rbf(r):
    return [f"v_cvt_pk_bf16_f32 v{r}, v{r}, v{r}", f"v_lshlrev_b32 v{r}, 16, v{r}"]
E(f"s_mov_b32 s{sT0}, {hx(f2u(1.0/448.0))}\ns_mov_b32 s{sT1}, {hx(f2u(1e-5))}\ns_mov_b32 s{sT2}, {hx(f2u(CSCALE))}")
if OPT['PADS']:
    E(f"""
s_mov_b64 exec, 0
s_cmp_eq_u32 s{sW}, 0
s_cbranch_scc1 L_pg0
s_cmp_eq_u32 s{sW}, 1
s_cbranch_scc1 L_pg1
s_cmp_eq_u32 s{sW}, 2
s_cbranch_scc1 L_pg2
s_branch L_pg3
.p2align 12
L_main:
s_mov_b64 exec, -1
""")
STAMP('pro_done')
vNT = vR + 44
NPRO = OPT['NPRO']
big = []
if OPT['BIG'] & 1:
    t_ = pf_seq(sWQ, 448*2, 2, 8192, sTL, NT); t_[-1] = I(t_[-1].text.replace('offen', 'offen offset:256'), tag='pf'); big += t_
    big += pf_seq(sW1, 448*2, 2, 3584, sTL, NT)
if OPT['BIG'] & 2:
    t_ = pf_seq(sKK, 2048, None, 0, sKVI, 2*NT); big += t_ + [pf_load(sVV, vPF+1)]
big = [I(t_) if isinstance(t_, str) else t_ for t_ in big]
assert len(pro_dma) == NPRO
L0N = OPT['L0N']
late = {0: [i_ for d_ in pro_dma[:L0N] for i_ in d_],
        1: [i_ for d_ in pro_dma[3:] for i_ in d_]
           + big + [I(f"buffer_store_byte v{vZ}, v{vZ}, {srd(sWS)}, s{sFLG} offen sc1", tag='hst')]}
def xreads(tg, q):
    r = [mk_wait_vm([('x', tg, q)])]
    for ks in (2*q, 2*q+1):
        ad = q*SLOT + tg*2048
        r.append(I(f"ds_read_b128 {v(xn(ks,tg),4)}, v{vXR + (ad >> 16)*2 + (ks & 1)} offset:{ad & 0xffff}", tag=('xr', tg, q)))
    return r
def stats(tg, q, fill):
    P.wait_lgkm_tag([('xr', tg, q)])
    for ks in (2*q, 2*q+1):
        X = v(xn(ks, tg), 4)
        for m_ in (mfma(v(vD1+4*tg, 4), v(vONES, 4), X, "0" if ks == 0 else v(vD1+4*tg, 4)), mfma(v(vD2+4*tg, 4), X, X, "0" if ks == 0 else v(vD2+4*tg, 4))):
            E(m_)
            t_ = 0
            while fill and t_ + cost(fill[0]) <= 12:
                t_ += cost(fill[0]); P.ins.append(fill.pop(0))
def scalars(tg):
    d = vD2 + 4*tg; m = vD1 + 4*tg; t = m + 1; L = vLA + 4*tg
    s = [f"v_cndmask_b32 v{d}, v{d}, v{d+1}, s[{sM1}:{sM1+1}]",
         f"v_cndmask_b32 v{d+2}, v{d+2}, v{d+3}, s[{sM3}:{sM3+1}]",
         f"v_mul_f32 v{m}, s{sT0}, v{m}",
         f"v_cndmask_b32 v{d}, v{d}, v{d+2}, s[{sM2}:{sM2+1}]",
         f"v_cndmask_b32 v{d}, 0, v{d}, s[{sMD}:{sMD+1}]"]
    s += allred(d, t, "v_add_f32")
    s += [f"v_mul_f32 v{d}, s{sT0}, v{d}",
          f"v_fma_f32 v{d}, -v{m}, v{m}, v{d}",
          f"v_max_f32 v{d}, 0, v{d}"]
    s += interleave(rbf(m), rbf(d))
    s += [f"v_add_f32 v{d}, s{sT1}, v{d}"] + rbf(d) + [f"v_sqrt_f32 v{d}, v{d}"] + rbf(d)
    s += [f"v_rcp_f32 v{d}, v{d}", f"v_mul_f32 v{d}, s{sT2}, v{d}",
          f"v_cvt_pk_bf16_f32 v{d}, v{d}, v{d}",
          f"v_and_b32 v{L}, 0xffff, v{d}", f"v_lshlrev_b32 v{L+1}, 16, v{d}",
          f"v_mul_f32 v{L+2}, -v{m}, v{L+1}"]
    for t_ in s: E(t_)
def normalize(tg, side):
    L = vLA + 4*tg; k = 0; pend = []
    for ks in range(14):
        for r in range(4):
            x_ = xn(ks, tg) + r
            t = vNT + 2*(k % 8); k += 1
            E(f"v_dot2_f32_bf16 v{t}, v{x_}, v{L}, v{L+2}\nv_dot2_f32_bf16 v{t+1}, v{x_}, v{L+1}, v{L+2}")
            pend.append(f"v_cvt_pk_bf16_f32 v{x_}, v{t}, v{t+1}")
            if len(pend) > 2: E(pend.pop(0))
            P.ins += side.get(k, [])
    for t_ in pend: E(t_)
for q in range(7):
    P.ins += xreads(0, q)
    if q in (0, 3, 6): PST(f'w0{q}')
    xissue(2)
    if q > 1: stats(0, q-2, [])
fill = wqpf + late[0]
stats(0, 5, fill); stats(0, 6, fill)
P.ins += fill
STAMP('x0_arrived')
scalars(0)
X1 = OPT['X1']
normalize(0, {X1 + 4*q: xreads(1, q) for q in range(7)})
PST('ln0_done')
fill = [i_ for d_ in pro_dma[L0N:3] for i_ in d_]
for q in range(7):
    if q == 1: P.wait_lgkm_tag([('xr', 1, 6)]); fill += late[1]
    stats(1, q, fill)
P.ins += fill
STAMP('x1_arrived')
scalars(1)
fr_ = [i_ for f in range(D) for i_ in frag_reads(f)]
side = {OPT['BARK']: [mk_wait_vm(first_need), I("s_barrier")]}
for k_, i_ in enumerate(fr_): side.setdefault(min(OPT['BARK'] + 1 + k_, 56), []).append(i_)
normalize(1, side)
if OPT['DUMP'] == 'xn':
    P.ins += dump([v(xn(ks, tg), 4) for ks in range(14) for tg in range(2)])

P.ins.append(mk_wait_lg([('f', f) for f in range(4)]))
est = 0
for g in range(NF):
    if g in blk: P.ins += blk[g]
    for h, m_ in enumerate(MF[g]):
        gp = G0[g] + h
        P.ins.append(I(m_))
        P.ins += pre[gp] + rds[gp] + ext[gp]
        est += max(16, gtime(pre[gp] + rds[gp] + ext[gp]))
if OPT['LOG']:
    ph = sorted((f_, n_) for n_, f_ in phase.items())
    for (f0_, n_), (f1_, _) in zip(ph, ph[1:]):
        e_ = sum(max(16, gtime(pre[q_] + rds[q_] + ext[q_])) for q_ in range(gap(f0_), gap(f1_)))
        print(f"  phase {n_}: est {e_} ideal {16*(gap(f1_)-gap(f0_))}", file=sys.stderr)
print("estimated main-stream cycles", est, "ideal", 16*NG, file=sys.stderr)

STAMP('g6_done')
def fs(t4, w_): return facc(t4, w_)
vSEL = 44
vSA = 52
STAMP('pre_c1')
P.wait_vm_tag(['poll'])
E(f"v_cmp_gt_u32 vcc, 3, v{vPOLL}\ns_cbranch_vccnz L_spin1\nL_spin1_ret:\ns_cmp_lg_u32 s{sMISS}, 0\ns_cbranch_scc1 L_redo\nL_redo_ret:")
STAMP('chk1')
gl2 = gloads(2*F0, 16, vHS)
n2 = OPT['N2']
P.ins += gl2[:n2]
E(f"""
v_add_u32 v{vT1}, s{sWB}, v{vL16}
s_lshl_b32 s{sT0}, s{sW}, 14
v_add_u32 v{vT2}, s{sT0}, v{vL16}
""")
for u in range(4):
    for t4 in range(4):
        E(f"ds_write_b128 v{vT1}, {v(facc(u, t4), 4)} offset:{u*SLOT + t4*1024}")
E(f"""
v_mov_b32 v{vSEL}, 0
v_mov_b32 v{vSEL+1}, 0
v_mov_b32 v{vSEL+4}, 0
v_mov_b32 v{vSEL+5}, 0
v_mov_b32 v{vT0}, 0x3f80
v_mov_b32 v{vSEL+2}, 0x3f800000
s_or_b64 s[16:17], s[{sM1}:{sM1+1}], s[{sM3}:{sM3+1}]
v_cndmask_b32 v{vT0}, v{vT0}, v{vSEL+2}, s[16:17]
v_cndmask_b32 v{vT0}, 0, v{vT0}, s[{sMD}:{sMD+1}]
s_mov_b64 s[16:17], s[{sM2}:{sM2+1}]
v_cndmask_b32 v{vSEL+2}, v{vT0}, 0, s[16:17]
v_cndmask_b32 v{vSEL+3}, 0, v{vT0}, s[16:17]
s_mov_b32 s{sT0}, {hx(f2u(1.0/CSCALE))}
s_mov_b32 s{sT2}, {hx(f2u(-16.0))}
""")
E("s_waitcnt lgkmcnt(0)\ns_barrier")
for t4 in range(4):
    for w_ in range(4):
        E(f"ds_read_b128 {v(fs(t4, w_), 4)}, v{vT2} offset:{w_*4096 + t4*1024}")
def smf(rl, sl):
    r = []
    for tg in range(2):
        d = v(vSA + (rl*2+tg)*4, 4)
        r.append(mfma(d, v(vSEL + (2 if tg == 0 else 0), 4), greg(rl, sl), "0" if sl == 0 else d))
    return r
val = []
for t4 in range(4):
    b0, b1, b2, b3 = (fs(t4, w_) for w_ in range(4))
    for r in range(4): val += [f"v_add_f32 v{b0+r}, v{b0+r}, v{b1+r}", f"v_add_f32 v{b2+r}, v{b2+r}, v{b3+r}"]
    for r in range(4): val.append(f"v_add_f32 v{b0+r}, v{b0+r}, v{b2+r}")
    for r in range(4): val.append(f"v_mul_f32 v{b1+r}, s{sT2}, v{b0+r}")
    for r in range(4): val.append(f"v_exp_f32 v{b1+r}, v{b1+r}")
    for r in range(4): val.append(f"v_mul_f32 v{b0+r}, s{sT0}, v{b0+r}")
    for r in range(4): val.append(f"v_add_f32 v{b1+r}, 1.0, v{b1+r}")
    for r in range(4): val.append(f"v_rcp_f32 v{b1+r}, v{b1+r}")
    for r in range(4): val.append(f"v_mul_f32 v{b0+r}, v{b0+r}, v{b1+r}")
for t4 in range(4):
    b2 = fs(t4, 2); xr = vXF + t4*2
    val += [f"v_lshlrev_b32 v{b2}, 16, v{xr}", f"v_and_b32 v{b2+1}, 0xffff0000, v{xr}", f"v_lshlrev_b32 v{b2+2}, 16, v{xr+1}", f"v_and_b32 v{b2+3}, 0xffff0000, v{xr+1}"]
rest = gl2[n2:]
nv1 = OPT['NV1']
step = max(1, nv1 // max(1, len(rest)))
for k_ in range(nv1):
    E(val.pop(0))
    if rest and k_ % step == step - 1: P.ins.append(rest.pop(0))
P.ins += rest
E(f"s_waitcnt vmcnt({32 - 4*F0})")
ms = []
for sq in range(0, 2*F0, 2):
    for rl in range(2):
        for sl in range(sq, sq+2): ms += smf(rl, sl)
per = (len(val) + 8*F0 - 1) // (8*F0)
for m_ in ms:
    E(m_)
    for _ in range(per):
        if val: E(val.pop(0))
for t_ in val: E(t_)
STAMP('g_done')
for sq in range(2*F0, 16, 2):
    for rl in range(2):
        for sl in range(sq, sq+2):
            for m_ in smf(rl, sl): E(m_)
for t4 in range(4):
    b0 = fs(t4, 0); b2 = fs(t4, 2)
    for r in range(4): E(f"v_fma_f32 v{b0+r}, v{vSA+t4*4+r}, v{b0+r}, v{b2+r}")
    E(f"v_cvt_pk_bf16_f32 v{b0}, v{b0}, v{b0+1}\nv_cvt_pk_bf16_f32 v{b0+1}, v{b0+2}, v{b0+3}")
    E(f"buffer_store_dwordx2 {v(b0,2)}, v{vAD}, {srd(sOUT)}, {'0' if t4 == 0 else 's%d' % (sSV0+t4-1)} offen {OPT['OST']}")
if OPT['WAITAT']: STAMP('end')
if OPT['STAMP']:
    STAMP('end')
    E(f"""
L_fin:
s_memrealtime s[{sSTMP}:{sSTMP+1}]
s_waitcnt lgkmcnt(0)
v_writelane_b32 v{vSTAMP}, s{sMISS}, 59
v_writelane_b32 v{vSTAMP}, s98, 60
v_writelane_b32 v{vSTAMP}, s100, 61
v_writelane_b32 v{vSTAMP}, s{sSTMP}, 62
s_lshl_b32 s{sT0}, s0, 2
s_add_u32 s{sT0}, s{sT0}, s{sW}
s_lshl_b32 s{sT0}, s{sT0}, 8
s_add_u32 s{sT0}, s{sT0}, {hx(WS_DBG)}
v_lshlrev_b32 v{vT0}, 2, v0
buffer_store_dword v{vSTAMP}, v{vT0}, {srd(sWS)}, s{sT0} offen
""")
E("L_end:\ns_endpgm")
main_ins, log, stats_ = resolve(P.ins)
print("main", stats_, file=sys.stderr)
if OPT['LOG']:
    for l in log: print("  ", l, file=sys.stderr)

Q = Prog(); E = Q.emit
SPIN_MAX = 1 << 17
def spin(label, load, want, cmp):
    E(f"""
{label}:
s_mov_b32 s{sCNT}, {SPIN_MAX}
{label}_loop:
s_sleep 1
{load}
s_waitcnt vmcnt(0)
v_cmp_{cmp}_u32 vcc, {want}, v{vPOLL}
s_sub_u32 s{sCNT}, s{sCNT}, 1
s_cmp_eq_u32 s{sCNT}, 0
s_cbranch_scc1 {label}_ret
s_cbranch_vccnz {label}_loop
s_branch {label}_ret
""")
spin("L_spinh", f"s_lshl_b32 s{sT0}, s{sTC}, 4\nv_mov_b32 v{vT0}, s{sT0}\nglobal_load_dword v{vPOLL}, v{vT0}, {DBGP} sc1", 16, "gt")
spin("L_spin1", VPOLL, 3, "gt")
E("L_redo:\ns_waitcnt vmcnt(0)")
Q.ins += gloads(0, 2*F0, vHS)
E("s_branch L_redo_ret")
MISC = [c['lo'] for c in chunks if c['name'] == 'V_15'][0]
fK, fS, fP, fA, fV, fR, fM = 44, 76, 108, 116, 117, 121, 102
E(f"""
L_exact:
s_waitcnt vmcnt(0) lgkmcnt(0)
s_nop 15
s_mov_b32 s{sSV0}, m0
v_and_b32 v{fA}, 15, v0
v_lshlrev_b32 v{fA}, 9, v{fA}
v_and_b32 v{fM}, 48, v0
v_add_u32 v{fA}, v{fA}, v{fM}
s_lshl_b32 s{sSV1}, s{sW}, 7
s_add_u32 s{sSV2}, s{sWB}, {MISC}
""")
for i in range(4):
    E(f"v_subrev_u32 v{fV+i}, s{sSV1}, v{vVD+i}\nv_add_u32 v{fR+i}, s{sSV2}, v{vTR+i}")
E(f"v_mov_b32 v{fM}, 0xff800000\nv_mov_b32 v{fM+1}, 0xff800000\ns_mov_b32 s{sSV1}, 0")
def ktile(kt, cinit):
    for ks in range(8):
        E(f"buffer_load_dwordx4 {v(fK+4*ks,4)}, v{fA}, {srd(sKK)}, s{sSV1} offen offset:{ks*64}")
    E(f"s_add_u32 s{sSV1}, s{sSV1}, 8192\ns_waitcnt vmcnt(0)")
    for ks in range(8):
        for tg in range(2):
            d = v(fS + tg*8 + kt*4, 4)
            E(mfma(d, v(fK+4*ks, 4), a(qf(ks, tg), 4), (cinit(tg) if ks == 0 else d)))
    E("s_nop 15")
E("L_exact_p1:")
ktile(0, lambda tg: "0")
for tg in range(2):
    b = fS + tg*8
    E(f"v_max3_f32 v{fM+tg}, v{fM+tg}, v{b}, v{b+1}\nv_max3_f32 v{fM+tg}, v{fM+tg}, v{b+2}, v{b+3}")
E(f"s_cmp_lt_u32 s{sSV1}, 262144\ns_cbranch_scc1 L_exact_p1")
for tg in range(2):
    for t_ in allred(fM+tg, fM+2, "v_max_f32"): E(t_)
    for r in range(4): E(f"v_sub_f32 v{vC+4*tg+r}, 0, v{fM+tg}")
for r in range(128): E(f"v_mov_b32 v{vO+r}, 0")
E(f"v_mov_b32 v{vLS}, 0\nv_mov_b32 v{vLS+1}, 0\ns_mov_b32 s{sSV1}, 0\ns_add_u32 m0, s{sWB}, {MISC}\ns_nop 3")
E("L_exact_p2:")
E(f"s_mov_b32 s{sSV2}, s{sSV1}")
ktile(0, lambda tg: v(vC+4*tg, 4))
ktile(1, lambda tg: v(vC+4*tg, 4))
for r in range(16): E(f"v_exp_f32 v{fS+r}, v{fS+r}")
for r in range(16): E(f"v_add_f32 v{vLS + r//8}, v{vLS + r//8}, v{fS+r}")
for r in range(8): E(f"v_cvt_pk_bf16_f32 v{fP+r}, v{fS+2*r}, v{fS+2*r+1}")
for cb in range(4):
    for rb in range(4):
        E(f"buffer_load_dwordx4 v{fV+rb}, {srd(sVV)}, s{sSV2} offen offset:{rb*1024} lds")
    E(f"s_add_u32 s{sSV2}, s{sSV2}, 128\ns_waitcnt vmcnt(0)")
    for u in range(4):
        E(f"ds_read_b64_tr_b16 {v(fK+4*u,2)}, v{fR+u}\nds_read_b64_tr_b16 {v(fK+4*u+2,2)}, v{fR+u} offset:2048")
    E("s_waitcnt lgkmcnt(0)")
    for u in range(4):
        for tg in range(2):
            d = v(Oreg(cb*4+u, tg), 4)
            E(mfma(d, v(fK+4*u, 4), v(fP+4*tg, 4), d))
    E("s_nop 7")
E(f"s_cmp_lt_u32 s{sSV1}, 262144\ns_cbranch_scc1 L_exact_p2")
for tg in range(2):
    for t_ in allred(vLS+tg, fM+2, "v_add_f32"): E(t_)
    E(f"v_rcp_f32 v{vRC+tg}, v{vLS+tg}")
E("s_nop 15")
for ks in range(8):
    for t_ in ocvt(ks): E(t_)
E(f"s_mov_b32 m0, s{sSV0}\ns_nop 15\ns_branch L_exact_ret")
sub_ins, log2, stats2 = resolve(Q.ins)

def sizes_of(ins):
    import subprocess, tempfile, re as re_
    body = [i_ for i_ in ins if i_.cls not in ('label', 'dir')]
    txt_ = '.amdgcn_target "amdgcn-amd-amdhsa--gfx950"\n.text\nL_any:\n' + ''.join('    ' + (re_.sub(r'L_\w+', 'L_any', i_.text) if i_.cls == 'branch' else i_.text) + '\n' for i_ in body)
    d_ = tempfile.mkdtemp()
    open(d_ + '/a.s', 'w').write(txt_)
    subprocess.run(['clang', '-x', 'assembler', '-target', 'amdgcn-amd-amdhsa', '-mcpu=gfx950', '-c', d_ + '/a.s', '-o', d_ + '/a.o'], check=True)
    out_ = subprocess.run(['llvm-objdump', '-d', '--mcpu=gfx950', d_ + '/a.o'], capture_output=True, text=True).stdout
    sz = [4*len(m_.group(1).split()) for m_ in re_.finditer(r'// [0-9A-F]+: ((?:[0-9A-F]{8} ?)+)', out_)]
    assert len(sz) == len(body), (len(sz), len(body))
    return {id(i_): s_ for i_, s_ in zip(body, sz)}
if OPT['PADS']:
    sz = sizes_of(main_ins)
    k0 = [k_ for k_, i_ in enumerate(main_ins) if i_.text == 'L_main:'][0]
    out_ = main_ins[:k0+1]; off = 0; npg = 0
    for i_ in main_ins[k0+1:]:
        if i_.cls not in ('label', 'dir'):
            lo = (npg + 1)*4096
            if off >= lo and (i_.cls == 'mfma' or off + sz[id(i_)] > lo + 56):
                assert off < lo + 64
                out_.append(I(f"L_pg{npg}:")); out_.append(I(f"s_cbranch_execz L_pgn{npg}")); off += 4; npg += 1
            off += sz[id(i_)]
        out_.append(i_)
    for i_ in out_:
        if i_.text.startswith('s_cbranch_execz L_pgn'):
            k_ = int(i_.text.split('L_pgn')[1]) + 4
            i_.text = f"s_cbranch_execz L_pg{k_}" if k_ < npg else "s_cbranch_execz L_main"
    main_ins = out_
    print("code pages", npg, "bytes after L_main", off, file=sys.stderr)
hdr = open(os.path.join(os.path.dirname(os.path.abspath(__file__)), 'header.txt')).read()
txt = hdr + f"""; @launch grid=(256,1,1) block=(256,1,1) lds={LDS_BYTES}
.amdgcn_target "amdgcn-amd-amdhsa--gfx950"
.text
.globl {NAME}_kernel
.p2align 8
.type {NAME}_kernel,@function
{NAME}_kernel:
""" + render(main_ins) + render(sub_ins) + f"""L_pad:
    s_endpgm
.if (L_pad - {"L_main" if OPT["PADS"] else "L_pc"}) < {CODE_LINES*128}
.fill (({CODE_LINES*128} - (L_pad - {"L_main" if OPT["PADS"] else "L_pc"})) / 4) + 16, 4, 0xbf810000
.endif
.section .rodata,"a"
.p2align 6
.amdhsa_kernel {NAME}_kernel
  .amdhsa_next_free_vgpr 512
  .amdhsa_next_free_sgpr 102
  .amdhsa_accum_offset 256
  .amdhsa_group_segment_fixed_size 0
  .amdhsa_kernarg_size 88
  .amdhsa_user_sgpr_count 2
  .amdhsa_user_sgpr_kernarg_segment_ptr 1
  .amdhsa_system_sgpr_workgroup_id_x 1
.end_amdhsa_kernel
"""
if OPT['STAMP']: txt += '; STAMPS ' + ' '.join(stamp_names) + '\n'
open(sys.argv[1], 'w').write(txt)
```

```python
import sys, os, math, struct
from asmlib import *

NAME = "recurrent_scan__sliding_block_cached__dense_activation_relu__prompt"
OPT = dict(D=8, NA=12, HX=2, BAR=2, STAMP=0, PST=0, DUMP='', SIGG=60, FORCEFB=0, LOG=0,
           SST='sc1', HLD='sc1', HST='sc1', GLD='sc1', NOSST=0, NOHLD=0, NOHST=0,
           PX='', PW1='', PWQ='', PKV='', PWO='', PW2='', PF=1, PPF='', OST='', WSOFF=0, HSTEP=7, XREV=0, NPRO=4, WAITAT='', WAITT=0, WAITWG=-1, PADS=1, HSIG=150, HPF=0, PF0=0, PF1=14, CHAIN=1, WB=0, WBD=60, BIG=1, DSTART=0, W2ROT=1, NOPF2=2, HEND=40, XPF=1, L0N=1, X1=28, BARK=36, BARP=2, BARA=2, BAR4=2, SPAN=30, SPAN2=20, NV1=100, PKR=0, PCH=0, TLB=1, TLBP='G2_13', XG=0, STLB=1, NOG=0, NOFLAG=0, W2G=-15, W2S=8, F0=3, F1=5, L0=0, W2PRE=6, H2A=1, H2B=100, SA=240, PA=410, CA=70, LA=140, SC=30, PB=175, N2=15, G1N=10, XFIRST=4, XSEC=0, WQE=2, OEARLY=2, H2SPAN=60, PFG=170, WQP=2, FINE=0, RT=0, SIMPLE=0, SSP=0)
for a_ in sys.argv[2:]:
    k_, v_ = a_.split('=')
    OPT[k_] = v_.replace('+', ' ') if isinstance(OPT[k_], str) else int(v_)
D = OPT['D']; NA = OPT['NA']

RING_SLOTS = 10
SLOT = 16384
LDS_BYTES = 163840
WS_S = 0
WS_H = 0x1C00000
WS_F = 0x2300000
WS_DBG = 0x2400000
WS_SIZE = 0x8000000 if (OPT['DUMP'] or OPT['STAMP']) else 0x2400000
OOB = 0x7f000000
CSCALE = math.log2(math.e) / 16.0
def f2u(x): return struct.unpack('<I', struct.pack('<f', x))[0]
def hx(x): return f"0x{x & 0xffffffff:x}"

sX, sW1, sWQ, sKK, sVV, sWO, sW2, sWS, sOUT = 28, 32, 36, 40, 44, 48, 52, 56, 60
def srd(b): return f"s[{b}:{b+3}]"
sW, sHD, sT, sWB, sSO = 64, 65, 66, 67, 68
sT0, sT1, sT2, sT3 = 69, 70, 71, 3
sQT = 72
sHST, sHLD, sSST, sSG, sFLG, sFLP, sCNT, sSO2, sTL, sROT, sSTEP, sPC = 86, 87, 88, 89, 90, 91, 92, 93, 94, 95, 96, 97
sTC, sCOOB, sHPF, sW2I, sKVI, sCC = 19, 20, 21, 24, 25, 2
sW1T = 12
sM1, sM2, sM3, sMD = 4, 6, 8, 10
sSV0, sSV1, sSV2 = 12, 13, 14
sSTMP = 26
DBGP = "s[22:23]"
vL16, vHS, vT0, vT1, vT2, vT3, vT4 = 1, 2, 3, 4, 5, 6, 7
vTR = 8
vRA = 20
vPF = 26
vZ, vONE, vPOLL, vSTAMP = 28, 29, 30, 31
vWQ, vKD, vVD, vWOD, vW2D = 32, 36, 40, 32, 36
vXN = 44
vR = 156
vW1D = vR + 64
vXD = vR + 68
vO = 128
vS = 44
vP = 76
vC = 92
vLS = 100
vM = 106
vA4 = 44
vRC = 126
aF, aST, aQ, aH = 0, 48, 64, 128

def v(i, n=1): return f"v{i}" if n == 1 else f"v[{i}:{i+n-1}]"
def a(i, n=1): return f"a{i}" if n == 1 else f"a[{i}:{i+n-1}]"
def mfma(d, A, B, C): return f"v_mfma_f32_16x16x32_bf16 {d}, {A}, {B}, {C}"
def I(t, tag=None): return Ins(t, tag)
lg = lambda x: int(math.log2(x))

P = Prog()
E = P.emit

nstamp = [0]
stamp_names = []
def stamp_ins(name=''):
    if OPT['WAITAT'] and name == OPT['WAITAT']:
        return [I(t_) for t_ in ((f"s_cmp_lg_u32 s0, {OPT['WAITWG']}", "s_cbranch_scc1 L_end") if OPT['WAITWG'] >= 0 else ()) + ("L_dw:", f"s_memrealtime s[{sSTMP}:{sSTMP+1}]", "s_waitcnt lgkmcnt(0)", f"s_sub_u32 s{sSTMP}, s{sSTMP}, s100",
                                 f"s_cmp_lt_u32 s{sSTMP}, {OPT['WAITT']}", "s_cbranch_scc1 L_dw")]
    if not OPT['STAMP']: return []
    if OPT['STAMP'] == 3 and name not in ('end', 'G4', 'wb0', 'wb1', 'G6', 'st_done', 'chk0', 'chk1', 'chk2', 'sigA', 'sigB', 'g6_done', 'g_done', 'pre_c2', 'pre_c1', 'pre_c0'): return []
    if OPT['STAMP'] == 2 and name not in ('end', 'G4', 'P0', 'G2_0', 'g6_done'): return []
    n = nstamp[0]; nstamp[0] += 1; stamp_names.append(name)
    return [I(f"{'s_memrealtime' if OPT['RT'] else 's_memtime'} s[{sSTMP}:{sSTMP+1}]"), I("s_waitcnt lgkmcnt(0)"), I(f"v_writelane_b32 v{vSTAMP}, s{sSTMP}, {n}")]
def STAMP(name=''):
    P.ins += stamp_ins(name)
def PST(name):
    if OPT['PST']: STAMP(name)

frags = []
chunks = []
def add_chunk(name, lo, size, dma, private=False):
    chunks.append(dict(name=name, lo=lo, hi=lo+size, dma=dma, private=private, first=None, last=None)); return len(chunks)-1
def add_frag(kind, rs, rb, addr, mf, ch):
    frags.append(dict(kind=kind, rb=rb, rs=rs, addr=addr, mf=mf, chunk=ch))
    c = chunks[ch]
    if c['first'] is None: c['first'] = len(frags)-1
    c['last'] = len(frags)-1
def frag_reads(f):
    fr = frags[f]; A = aF + 4*(f % NA)
    def rd(op, dst, addr):
        win = addr >> 16
        return I(f"{op} {dst}, v{fr['rb'] + win*fr['rs']} offset:{addr & 0xffff}", tag=('f', f))
    if fr['kind'] == 'tr':
        return [rd("ds_read_b64_tr_b16", a(A, 2), fr['addr']), rd("ds_read_b64_tr_b16", a(A+2, 2), fr['addr'] + 2048)]
    return [rd("ds_read_b128", a(A, 4), fr['addr'])]
POL = {sW1: 'PW1', sWQ: 'PWQ', sKK: 'PKV', sVV: 'PKV', sWO: 'PWO', sW2: 'PW2'}
ring_pos = [7]
def ring_round(name, srd_b, vbase, so_text, private=False):
    slot = ring_pos[0] % RING_SLOTS; ring_pos[0] += 1
    lo = slot*SLOT
    tag = ('c', len(chunks))
    dma = [I(f"s_add_u32 m0, s{sWB}, {lo}")]
    if so_text.startswith('s') or so_text == '0': so = so_text
    elif so_text.startswith('+'):
        dma.append(I(f"s_add_u32 s{sSO}, {so_text[1:]}")); so = f"s{sSO}"
    else:
        dma.append(I(f"s_mov_b32 s{sSO}, {so_text}")); so = f"s{sSO}"
    for rb in range(4):
        dma.append(I(f"buffer_load_dwordx4 v{vbase+rb}, {srd(srd_b)}, {so} offen offset:{rb*1024} {OPT[POL[srd_b]]} lds", tag=tag))
    return add_chunk(name, lo, SLOT, dma, private)

phase = {}
def xn(ks, tg): return vXN + (ks*2 + tg)*4
def accp(pp, kq, tg, par): return vR + (pp % 2)*32 + ((kq*2 + tg)*2 + par)*4
pend_ = []
for pp in range(6):
    phase[f'P{pp}'] = len(frags)
    for ks in range(14):
        qi = 14*pp + ks
        if qi % 4 == 0:
            r_ = qi // 4
            blk_, rp = r_ // 7, r_ % 7
            R_ = 32*(8192 if blk_ < 2 else 3584); sb = sW1T + (0 if blk_ < 2 else 2); cb_ = 256 if blk_ == 1 else 0
            so_ = f"+s{sb+1}, {cb_}" if rp == 3 else f"+s{sb}, {(4*rp*R_ if rp < 3 else (4*rp-14)*R_ + 128) + cb_}"
            ch = ring_round(f"wq_{r_}", sWQ, vWQ, so_) if r_ < 14 else ring_round(f"w1_{r_-14}", sW1, vW1D, so_)
        pend_.append((ks, qi, ch))
        if OPT['PCH'] and ks % 2 == 0: continue
        for u2 in range(2):
            for u in (2*u2, 2*u2+1):
                for ks_, qi_, ch_ in pend_:
                    mf = (lambda A, pp=pp, ks=ks_, u=u: [mfma(v(accp(pp, u >> 1, tg, u & 1), 4), A, v(xn(ks, tg), 4), "0" if ks == 0 else v(accp(pp, u >> 1, tg, u & 1), 4)) for tg in range(2)])
                    add_frag('tr', 4, vTR + u, chunks[ch_]['lo'] + (qi_ % 4)*4096, mf, ch_)
        pend_ = []
def qf(kq, tg): return aQ + (kq*2 + tg)*4
def Sreg(st, tg, kt): return vS + (st % 2)*16 + tg*8 + kt*4
def Preg(st, tg): return vP + (st % 2)*8 + tg*4
def Oreg(d, tg): return vO + (((d >> 1)*2 + tg)*2 + (d & 1))*4
def G2(st):
    phase[f'G2_{st}'] = len(frags)
    ch = ring_round(f"K_{st}", sKK, vKD, str(st*16384))
    order = [(kt, ks) for kt in range(2) for ks in range(8)]
    for kt, ks in order:
        def mf(A, kt=kt, ks=ks):
            r = []
            for tg in range(2):
                c = v(Sreg(st, tg, kt), 4)
                if ks == 0: c = "0" if st < 1 else v(vC + 4*tg, 4)
                r.append(mfma(v(Sreg(st, tg, kt), 4), A, a(qf(ks, tg), 4), c))
            return r
        add_frag('b128', 2, vRA + (ks & 1), chunks[ch]['lo'] + (ks >> 1)*4096 + kt*2048, mf, ch)
def G3(st):
    phase[f'G3_{st}'] = len(frags)
    ch = ring_round(f"V_{st}", sVV, vVD, str(st*16384))
    for d in range(16):
        mf = (lambda A, d=d: [mfma(v(Oreg(d, tg), 4), A, v(Preg(st, tg), 4), "0" if st == 0 else v(Oreg(d, tg), 4)) for tg in range(2)])
        add_frag('tr', 4, vTR + (d & 3), chunks[ch]['lo'] + (d >> 2)*4096, mf, ch)
G2(0)
for st in range(15):
    G2(st + 1); G3(st)
G3(15)
phase['G4'] = len(frags)
def acc4(p, u, tg): return vA4 + (((u >> 1)*2 + tg)*2 + (u & 1))*4
def Opk(ks, tg): return vO + (ks*2 + tg)*8
for p in range(7):
    chs = [ring_round(f"wo_{p}_{h_}", sWO, vWOD, f"s{sQT+p}" if h_ == 0 else f"+s{sQT+p}, {4*32*896}") for h_ in range(2)]
    for u in range(4):
        for ks in range(8):
            ch = chs[ks // 4]
            mf = (lambda A, p=p, ks=ks, u=u: [mfma(v(acc4(p, u, tg), 4), A, v(Opk(ks, tg), 4), "0" if ks == 0 else v(acc4(p, u, tg), 4)) for tg in range(2)])
            add_frag('tr', 4, vTR + u, chunks[ch]['lo'] + (ks % 4)*4096, mf, ch)
phase['G6'] = len(frags)
def hole(i): return vO + 8*i + 4
def hreg(kk, t4):
    i = kk*4 + t4
    if i < 32: return a(aH + 4*i, 4)
    if i < 48: return a(aQ + 4*(i-32), 4)
    return v(hole(i-48), 4)
def facc(u, t4):
    i = u*4 + t4
    return vA4 + 32 + 4*i if i < 8 else hole(i)
vTP = 108
for kk in range(14):
    ch = ring_round(f"w2_{kk}", sW2, vW2D, str(kk*32*896), private=True)
    for u in range(4):
        mf = (lambda A, kk=kk, u=u: [mfma(v(facc(u, t4), 4), A, hreg(kk, t4), "0" if kk == 0 else v(facc(u, t4), 4)) for t4 in range(4)])
        add_frag('tr', 4, vTP + u, chunks[ch]['lo'], mf, ch)
NF = len(frags)
phase['END'] = NF

MF = [fr['mf'](a(aF + 4*(f % NA), 4)) for f, fr in enumerate(frags)]
if OPT['CHAIN']:
    for f0 in range(0, NF, 4):
        nm_ = chunks[frags[f0]['chunk']]['name']
        if nm_.startswith('K_') or nm_.startswith('wo_') or (OPT['PCH'] and nm_[:2] in ('wq', 'w1')):
            fl = [MF[f0+k_][tg] for tg in range(2) for k_ in range(4)]
            for k_ in range(4): MF[f0+k_] = fl[2*k_:2*k_+2]
G0 = [0]
for f in range(NF): G0.append(G0[-1] + len(MF[f]))
NG = G0[-1]
def gap(f): return G0[max(0, min(f, NF))]
pre = [[] for _ in range(NG)]
rds = [[] for _ in range(NG)]
ext = [[] for _ in range(NG)]
blk = {}
for g in range(NF):
    if g + D < NF:
        r = frag_reads(g + D)
        n = len(MF[g])
        rds[G0[g]].append(r[0])
        if len(r) > 1: rds[G0[g] + n//2].append(r[1])
def cost(i):
    if i.cls in ('ds',): return 8
    if i.cls == 'vmem': return 24 if 'store' in i.op and 'x4' in i.op else 8
    if i.cls in ('trans', 'perm'): return 8
    if i.cls == 'label': return 0
    return 4
def gtime(items):
    t = 4
    for i in items:
        if i.cls in VALU_LIKE: t = max(t, 8)
        t += cost(i)
    return t
def fits(gp, i): return gtime(pre[gp] + rds[gp] + ext[gp] + [i]) <= 16
def place(seq, g0, g1=None):
    seq = [I(s) if isinstance(s, str) else s for s in seq]
    g1 = NG if g1 is None else min(g1, NG)
    gp = g0; n = len(seq)
    for k, ins in enumerate(seq):
        bound = max(min(g0 + ((k + 1) * (g1 - g0)) // n - 1, g1 - 1), gp)
        best = None
        for q in range(gp, bound + 1):
            if fits(q, ins): best = q; break
        if best is None:
            best = min(range(gp, bound + 1), key=lambda q: (gtime(pre[q] + rds[q] + ext[q] + [ins]), q))
        ext[best].append(ins)
        gp = best
    return gp
def spread(seq, g0, g1):
    n = len(seq); cur = g0
    for k, ins in enumerate(seq):
        lo = max(g0 + (k*(g1-g0))//n, cur); hi = max(g0 + ((k+1)*(g1-g0))//n, lo+1)
        cur = place([ins], lo, hi)
    return cur

shared = [c for c in range(len(chunks)) if not chunks[c]['private']]
def is_bar(k_):
    if k_ == 0: return True
    if k_ < 21: return (k_ - 1) % OPT['BARP'] == 0
    if k_ < 53: return (k_ - 21) % OPT['BARA'] == 0
    return (k_ - 53) % OPT['BAR4'] == 0
bar_frags = [chunks[c]['first'] for k_, c in enumerate(shared) if is_bar(k_)]
bar_frags += [phase['G6'], phase['G6'] + D + 1]
bar_frags = sorted(set(bar_frags))
bar_gap = []
first_need = None
for bi, f0 in enumerate(bar_frags):
    f1 = bar_frags[bi+1] if bi + 1 < len(bar_frags) else NF
    need = [('c', c) for c in shared if f0 <= chunks[c]['first'] < f1]
    if f0 == 0: first_need = need; continue
    gp = gap(f0 - D); bar_gap.append(gp)
    if need: ext[gp-1].append(mk_wait_vm(need))
    pre[gp].append(I("s_barrier"))
for c in range(len(chunks)):
    if chunks[c]['private']:
        ext[gap(chunks[c]['first'] - D) - 1].append(mk_wait_vm([('c', c)]))
for g in range(4, NF, 4):
    ext[gap(g) - 1].append(mk_wait_lg([('f', f) for f in range(g, min(g+4, NF))]))
def earliest_gap(c):
    e = -1
    C = chunks[c]
    for c2 in range(c):
        B = chunks[c2]
        if B['hi'] <= C['lo'] or C['hi'] <= B['lo']: continue
        if B['private'] and C['private']: e = max(e, gap(B['last'] + 1))
        else: e = max(e, [gp for gp in bar_gap if gp >= gap(B['last'] + 1)][0] + 1)
    return e
pro_dma = []
cur = OPT['DSTART']
for c in range(len(chunks)):
    e = earliest_gap(c)
    if e < 0 and c < OPT['NPRO']:
        pro_dma.append(chunks[c]['dma']); continue
    if chunks[c]['name'].startswith('w2_') and int(chunks[c]['name'][3:]) >= OPT['W2PRE']: e = max(e, gap(phase['G6']) + OPT['W2G'])
    g0 = max(e, cur)
    span = OPT['SPAN']
    if g0 > e + 8: span = OPT['SPAN2']
    if g0 >= gap(phase['G6'] - D): span = OPT['W2S']
    seq = list(chunks[c]['dma'])
    if chunks[c]['name'] == 'wo_0_0': seq = [I(f"v_accvgpr_read_b32 v{vWOD+i}, a{aST+i}") for i in range(4)] + seq; wo_first_gap = g0
    if chunks[c]['name'] == 'w2_0': seq = [I(f"v_accvgpr_read_b32 v{vW2D+i}, a{aST+4+i}") for i in range(4)] + seq
    cur = spread(seq, g0, g0 + span)
    need_gap = gap(chunks[c]['first'] - D)
    if not chunks[c]['private']: need_gap = max(gp for gp in bar_gap if gp <= need_gap)
    if OPT['LOG']: print(chunks[c]['name'], g0, cur, need_gap, 'lead', need_gap - cur, file=sys.stderr)
    assert cur < need_gap - 1, (chunks[c]['name'], cur)

seq = []
for p in range(7):
    seq += [f"s_add_u32 s{sT2}, s{sROT}, {p}", f"s_sub_u32 s{sT3}, s{sT2}, 7", f"s_min_u32 s{sT2}, s{sT2}, s{sT3}",
            f"s_lshl_b32 s{sQT+p}, s{sT2}, 7", f"s_lshl_b32 s{sT2}, s{sT2}, 16", f"s_add_u32 s{sQT+7+p}, s{sSST}, s{sT2}",
            f"s_add_u32 s{sSST}, s{sSST}, s{sSTEP}"]
spread(seq, 6, 100)
assert gap(phase['G3_8']) < wo_first_gap
assert OPT['BAR'] == 2
place([f"v_add_u32 v{vTP+i}, s{sWB}, v{vTR+i}" for i in range(12)], gap(phase['G4'] + 8), gap(phase['G4'] + 40))

def hconv(pp):
    s = []
    for kq in range(2):
        for tg in range(2):
            b = accp(pp, kq, tg, 0)
            if not OPT['PKR']:
                for r in range(8): s.append(f"v_max_f32 v{b+r}, 0, v{b+r}")
            for r in range(4): s.append(f"v_cvt_pk_bf16_f32 v{b+r}, v{b+2*r}, v{b+2*r+1}")
            if OPT['PKR']:
                for r in range(4): s.append(f"v_pk_max_i16 v{b+r}, v{b+r}, 0")
            if not OPT['NOHST']:
                s.append(I(f"buffer_store_dwordx4 {v(b,4)}, v{vHS}, {srd(sWS)}, s{sHST} offen offset:{kq*2048 + tg*1024} {OPT['HST']}", tag='hst'))
    if pp == 4: s.append(f"s_add_u32 s{sHST}, s{sHST}, 4096")
    return s
place(hconv(4), gap(phase['P5']) + 4, gap(phase['G2_0']) - 4)
def qconv(pp):
    s = []
    for kq in range(2):
        for tg in range(2):
            b = accp(pp, kq, tg, 0)
            s += [f"v_cvt_pk_bf16_f32 v{b+r}, v{b+2*r}, v{b+2*r+1}" for r in range(4)]
            s += [f"v_permlane32_swap_b32 v{b}, v{b+2}", f"v_permlane32_swap_b32 v{b+1}, v{b+3}",
                  f"v_permlane16_swap_b32 v{b}, v{b+2}", f"v_permlane16_swap_b32 v{b+1}, v{b+3}"]
            s += [f"v_accvgpr_write_b32 a{qf(2*pp+kq, tg)+r}, v{b+r}" for r in range(4)]
    return s
for pp in range(4):
    g0 = gap(phase[f'P{pp+1}'])
    place(qconv(pp), g0 + 4, g0 + 2*56 - 4)

def allred(r, t, op):
    return [f"v_mov_b32 v{t}, v{r}", f"v_permlane32_swap_b32 v{r}, v{t}", f"{op} v{r}, v{r}, v{t}",
            f"v_mov_b32 v{t}, v{r}", f"v_permlane16_swap_b32 v{r}, v{t}", f"{op} v{r}, v{r}, v{t}"]
def interleave(*seqs):
    out = []
    for k in range(max(len(s) for s in seqs)):
        for s in seqs:
            if k < len(s): out.append(s[k])
    return out
def svals(st): return [Sreg(st, tg, kt) + r for tg in range(2) for kt in range(2) for r in range(4)]
g0 = gap(phase['G2_0'])
seqs = []
for tg in range(2):
    b = Sreg(0, tg, 0); m = vM + 2*tg; t = m + 1
    s = [f"v_max3_f32 v{m}, v{b}, v{b+1}, v{b+2}", f"v_max_f32 v{m}, v{m}, v{b+3}"] + allred(m, t, "v_max_f32")
    s += [f"v_sub_f32 v{vC+4*tg+r}, 0, v{m}" for r in range(4)]
    seqs.append(s)
seq = interleave(*seqs) + [f"v_mov_b32 v{vLS}, 0", f"v_mov_b32 v{vLS+1}, 0"]
gm = place(seq, g0 + 19, g0 + 31)
def sm_seq(st, sub):
    s = []
    vals = svals(st)
    for k_, r in enumerate(vals):
        tg = k_ // 8
        if sub: s.append(f"v_add_f32 v{r}, v{r}, v{vC+4*tg}")
        s.append(f"v_exp_f32 v{r}, v{r}")
        if k_ % 2 == 1 and k_ >= 3:
            kk = k_ - 3
            s.append(f"v_cvt_pk_bf16_f32 v{Preg(st, kk//8) + (kk % 8)//2}, v{vals[kk]}, v{vals[kk+1]}")
    s.append(f"v_cvt_pk_bf16_f32 v{Preg(st, 1) + 3}, v{vals[14]}, v{vals[15]}")
    return s
def add_seq(st):
    vals = svals(st)
    return interleave([f"v_add_f32 v{vLS}, v{vLS}, v{r}" for r in vals[:8]], [f"v_add_f32 v{vLS+1}, v{vLS+1}, v{r}" for r in vals[8:]])
for st in range(16):
    g3 = gap(phase[f'G3_{st}'])
    if st == 0:
        ge = place(sm_seq(st, True), gap(phase['G2_1']) + 3, g3 - 1)
    elif st < 15:
        gs = gap(phase[f'G2_{st+1}'] - D)
        ge = place(sm_seq(st, False), gs, g3 - 2)
    else:
        ge = place(sm_seq(st, False), gap(phase['G3_14']) + 4, g3 - 2)
    lim = gap(phase[f'G2_{st+2}']) - 2 if st + 2 < 16 else g3 + 14
    ga = place(add_seq(st), ge, lim)
seqs = []
for tg in range(2):
    l = vLS + tg; t = vM + tg
    seqs.append(allred(l, t, "v_add_f32") + [f"v_rcp_f32 v{vRC+tg}, v{l}"])
seq = interleave(*seqs) + [f"v_add_f32 v{vM}, v{vLS}, v{vLS+1}", f"s_mov_b32 s{sT0}, {hx(f2u(2.0**24 if not OPT['FORCEFB'] else 0.5))}", f"v_cmp_ngt_f32 vcc, s{sT0}, v{vM}"]
place(seq, ga, gap(phase['G4']) - 1)

hc = hconv(5)
n3 = 3*len(hc)//4
place(hc[:n3], gap(phase['G2_0']) + 3, gap(phase['G2_0']) + 19)
gend = place(hc[n3:], gap(phase['G3_0']), gap(phase['G3_0']) + 16)
assert accp(5, 1, 1, 0) >= Oreg(10, 0)
hb = [gp for gp in bar_gap if gp > gend + OPT['HSIG']][0]
ext[hb-1].append(mk_wait_vm(['hst']))
sig = [I(f"s_cmp_lg_u32 s{sW}, 0"), I("s_cbranch_scc1 L_nosig"), I(f"s_lshl_b32 s{sT0}, s{sT}, 4"), I(f"v_mov_b32 v{vPOLL}, s{sT0}"),
       I("s_mov_b64 exec, 1"), I(f"global_atomic_add v{vPOLL}, v{vONE}, {DBGP} sc1"), I("s_mov_b64 exec, -1"), I("L_nosig:")]
sig[5].cls = 'misc'
ext[hb+1] += sig

def dump(regs_list):
    r = [I("s_nop 15"), I(f"s_lshl_b32 s{sT0}, s{sT}, 4"), I(f"s_add_u32 s{sT0}, s{sT0}, s{sHD}"),
         I(f"s_lshl_b32 s{sT0}, s{sT0}, 2"), I(f"s_add_u32 s{sT0}, s{sT0}, s{sW}"),
         I(f"s_mul_i32 s{sT0}, s{sT0}, {32*1024}"), I(f"s_add_u32 s{sT0}, s{sT0}, {hx(WS_DBG)}")]
    for reg in regs_list:
        r.append(I(f"buffer_store_dwordx4 {reg}, v{vL16}, {srd(sWS)}, s{sT0} offen"))
        r.append(I(f"s_add_u32 s{sT0}, s{sT0}, 1024"))
    r.append(I("s_nop 3"))
    return r
def ocvt(ks): return [f"v_cvt_pk_bf16_f32 v{Opk(ks, tg)+r}, v{Opk(ks, tg)+2*r}, v{Opk(ks, tg)+2*r+1}" for tg in range(2) for r in range(4)]
NEARLY = OPT['OEARLY']
g15 = gap(phase['G3_15'])
for ks in range(NEARLY): place(ocvt(ks), g15 + 4*ks + 8, gap(phase['G4']) - 1)
b = stamp_ins('attn_done') + [I("s_cbranch_vccnz L_exact")]
for ks in range(NEARLY, 8): b += [I(t_) for t_ in ocvt(ks)]
b.append(I("L_exact_ret:"))
if OPT['DUMP'] == 'o': b += dump([v(Opk(ks, tg), 4) for ks in range(8) for tg in range(2)])
if OPT['DUMP'] == 'q': b += dump([a(qf(ks, tg), 4) for ks in range(8) for tg in range(2)])
b += stamp_ins('G4')
blk[phase['G4']] = b

def sconv(p, u):
    s = []
    for tg in range(2):
        b = acc4(p, u, tg); d = acc4(p, u & ~1, tg) + 2*(u & 1)
        s += [f"v_mul_f32 v{b+r}, v{vRC + tg}, v{b+r}" for r in range(4)]
        s += [f"v_cvt_pk_bf16_f32 v{d}, v{b}, v{b+1}", f"v_cvt_pk_bf16_f32 v{d+1}, v{b+2}, v{b+3}"]
        if u & 1:
            if (u, tg) != (1, 0): s.append(f"s_add_u32 s{sQT+7+p}, s{sQT+7+p}, 16384")
            if not OPT['NOSST']: s.append(I(f"buffer_store_dwordx4 {v(acc4(p, u & ~1, tg),4)}, v{vL16}, {srd(sWS)}, s{sQT+7+p} offen {OPT['SST']}", tag=('sst', p)))
    return s
g4 = gap(phase['G4'])
for p in range(7):
    for u in range(4):
        g0 = g4 + 64*p + 16*(u+1)
        if u == 3 and p < 6: gl = place(sconv(p, u), g0 + 3, g0 + 28)
        else: gl = place(sconv(p, u), g0 + 3, g0 + (19 if (p, u) != (6, 3) else 10))
last_store_gap = gl
hs = OPT['HSTEP']
gp0 = gap(phase[f'G3_{hs-1}']) - 30
place([f"s_lshl_b32 s{sT0}, s{sTC}, 4", f"v_mov_b32 v{vPOLL}, s{sT0}", I(f"global_load_dword v{vPOLL}, v{vPOLL}, {DBGP} sc1", tag='pollh'),
       f"v_add_u32 v{vHS}, s{sCOOB}, v{vL16}"], gp0, gp0 + 24)
gp1 = gap(phase[f'G3_{hs}'])
ext[gp1] += [mk_wait_vm(['pollh']), I(f"v_cmp_gt_u32 vcc, 16, v{vPOLL}"), I("s_cbranch_vccnz L_spinh"), I("L_spinh_ret:")]
def hloads(k0, k1):
    s = []
    for kk in range(k0, k1, 2):
        for rl in range(2):
            s.append(f"s_add_u32 s{sT0}, s{sHLD}, {rl*56*2048 + kk*2048}")
            for k2 in range(2):
                for tg in range(2):
                    s.append(I(f"buffer_load_dwordx4 {hreg(kk+k2, rl*2+tg)}, v{vHS}, {srd(sWS)}, s{sT0} offen offset:{k2*2048 + tg*1024} {OPT['HLD']}", tag='hld'))
    return s
if not OPT['NOHLD']:
    spread(hloads(0, 8), gap(phase[f"G3_{hs+OPT['HPF']}"]) + 2, gap(phase['G3_15']) - OPT['HEND'])
    spread(hloads(8, 14), g4 + OPT['H2A'], g4 + OPT['H2B'])
g6 = gap(phase['G6'])
vFV = 120
def greg(rl, sl):
    i = sl*2 + rl
    if i < 16: return v(Opk(0, 0) + 8*i, 4)
    return a(aH + (i - 16)*4, 4)
def gloads(s0, s1, va):
    s = []
    for sq in range(s0, s1, 2):
        for rl in range(2):
            s.append(I(f"s_add_u32 s{sT1}, s{sSG}, {rl*2*16384 + sq*1024}"))
            for sl in range(sq, sq+2):
                if not OPT['NOG']: s.append(I(f"buffer_load_dwordx4 {greg(rl, sl)}, v{va}, {srd(sWS)}, s{sT1} offen offset:{(sl-sq)*1024} {OPT['GLD']}", tag=('g', rl, sl)))
    return s
F0 = OPT['F0']
sPL = 32
sMISS = 18
place([f"v_mov_b32 v{vFV}, 1", f"v_mov_b32 v{vFV+1}, 3", f"v_and_b32 v{vFV+3}, 15, v0"], g4 + 100, g4 + 200)
def signal(k, n): return [mk_wait_vm([('sst', p) for p in range(n)]), I(f"buffer_store_byte v{vFV+k}, v{vZ}, {srd(sWS)}, s{sFLG} offen sc1", tag='flag')]
spoll = I(f"s_buffer_load_dwordx4 s[{sPL}:{sPL+3}], {srd(sWS)}, s{sFLP} glc"); spoll.cls = 'misc'
VPOLL = f"buffer_load_ubyte v{vPOLL}, v{vFV+3}, {srd(sWS)}, s{sFLP} offen sc1"
if OPT['WB']:
    def signal(k, n, gp):
        ext[gp - OPT['WBD']] += [mk_wait_vm([('sst', p) for p in range(n)]), I("buffer_wbl2 sc1", tag=('wb', k))] + stamp_ins(f'wb{k}')
        return [mk_wait_vm([('wb', k)]), I(f"buffer_store_byte v{vFV+k}, v{vZ}, {srd(sWS)}, s{sFLG} offen sc1", tag='flag')]
else:
    signal_ = signal
    def signal(k, n, gp): return signal_(k, n)
ext[g4 + OPT['SA']] += signal(0, F0, g4 + OPT['SA']) + stamp_ins('sigA')
ext[g4 + OPT['PA']] += [spoll]
sg = g6 + OPT['SC']
ext[sg] += signal(1, 7, sg) + stamp_ins('st_done') + [I(f"s_cmp_ge_u32 s{sPC}, 14"), I("s_cbranch_scc1 " + ("L_fin" if OPT['STAMP'] == 3 else "L_end"))]
assert sg > bar_gap[-1] and sg > last_store_gap
ext[g6 + OPT['CA']] += stamp_ins('pre_c0') + [I(t_) for t_ in (
    "s_waitcnt lgkmcnt(0)", f"s_and_b64 s[{sPL}:{sPL+1}], s[{sPL}:{sPL+1}], s[{sPL+2}:{sPL+3}]", f"s_and_b32 s{sPL}, s{sPL}, s{sPL+1}",
    f"s_and_b32 s{sPL}, s{sPL}, 0x01010101", f"s_cmp_eq_u32 s{sPL}, 0x01010101", f"s_cselect_b32 s{sMISS}, 0, {hx(OOB)}",
    f"v_add_u32 v{vFV+2}, s{sMISS}, v{vHS}")] + stamp_ins('chk0')
spread(gloads(0, 2*F0, vFV+2), g6 + OPT['CA'] + 1, g6 + OPT['LA'])
ext[g6 + OPT['PB']] += [I(VPOLL, tag='poll')]

vXF = 68
vAD = 125
XK = [k_ for k_ in range(4, 10) if [c['lo'] for c in chunks if c['name'] == f'w2_{k_}'][0] >= 4*SLOT][0]
XS = [c['lo'] for c in chunks if c['name'] == f'w2_{XK}'][0]
gx_ = max(g6 + 16*(XK + 1), cur + 1, g6 + OPT['XG'])
gx2 = place([f"v_accvgpr_read_b32 v{vAD}, a{aST+8}", f"s_add_u32 m0, s{sWB}, {XS}", f"s_movk_i32 s{sSV0}, {8*896 - 1024}", f"s_movk_i32 s{sSV1}, {8*896}",
       I(f"buffer_load_dwordx4 v{vAD}, {srd(sX)}, 0 offen lds", tag='xf'), I(f"buffer_load_dwordx4 v{vAD}, {srd(sX)}, s{sSV0} offen offset:1024 lds", tag='xf'),
       f"v_and_b32 v{vT3}, 15, v0", f"v_lshlrev_b32 v{vT3}, 7, v{vT3}", f"v_lshrrev_b32 v{vT4}, 4, v0", f"v_lshl_add_u32 v{vT3}, v{vT4}, 3, v{vT3}",
       f"s_add_u32 s{sSV2}, s{sWB}, {XS}", f"v_add_u32 v{vT3}, s{sSV2}, v{vT3}", f"v_add_u32 v{vT4}, s{sSV2}, v{vL16}"], gx_, gx_ + 24)
HX = OPT['HX']; NHG = 16 // HX; NT = 32 // HX
npf = [0]
def pf_addr(nlines, lines_per_row, pitch, k, dst, idx_sgpr, nshare):
    per = nlines // nshare
    s = [f"s_lshl_b32 s{sSO2}, s{sW}, 6", f"s_add_u32 s{sSO2}, s{sSO2}, {k*256}", f"v_add_u32 v{dst}, s{sSO2}, v0",
         f"v_min_u32 v{dst}, {per-1}, v{dst}", f"s_mul_i32 s{sSO2}, s{idx_sgpr}, {per}", f"v_add_u32 v{dst}, s{sSO2}, v{dst}"]
    if lines_per_row is None:
        s += [f"v_lshlrev_b32 v{dst}, 7, v{dst}"]
    else:
        sh = lg(lines_per_row)
        s += [f"v_and_b32 v{vPF}, {lines_per_row-1}, v{dst}", f"v_lshrrev_b32 v{dst}, {sh}, v{dst}",
              f"v_mul_u32_u24 v{dst}, {pitch}, v{dst}", f"v_lshl_add_u32 v{dst}, v{vPF}, 7, v{dst}"]
    return s
def pf_load(srd_b, dst):
    npf[0] += 1
    return I(f"buffer_load_dword a{aST + 10 + npf[0] % 6}, v{dst}, {srd(srd_b)}, 0 offen {OPT['PPF']}", tag='pf')
def pf_seq(srd_b, nlines, lines_per_row, pitch, idx, nshare):
    s = []
    for k in range((nlines // nshare + 255) // 256):
        s += pf_addr(nlines, lines_per_row, pitch, k, vPF+1, idx, nshare) + [pf_load(srd_b, vPF+1)]
    return s
vLQ = 26
def pf_pieces(srd_b, per, unit, idx, extra_base=None, pol='', rot=False):
    setup = [f"s_mul_i32 s{sSO2}, s{idx}, {per}", f"v_add_u32 v{vPF+1}, s{sSO2}, v{vLQ}", f"v_mul_u32_u24 v{vPF+1}, {unit}, v{vPF+1}"]
    if extra_base is not None: setup.append(f"v_add_u32 v{vPF+1}, s{extra_base}, v{vPF+1}")
    pcs = []
    for k in range((per + 63)//64):
        npf[0] += 1
        n_ = (per + 63)//64
        if rot and k == 0: so_ = [f"s_lshr_b32 s{sSO2}, s{sTC}, 1", f"s_sub_u32 s{sCNT}, s{sSO2}, {n_}", f"s_min_u32 s{sSO2}, s{sSO2}, s{sCNT}", f"s_mul_i32 s{sSO2}, s{sSO2}, {64*unit}"]
        elif rot: so_ = [f"s_add_u32 s{sSO2}, s{sSO2}, {64*unit}", f"s_sub_u32 s{sCNT}, s{sSO2}, {n_*64*unit}", f"s_min_u32 s{sSO2}, s{sSO2}, s{sCNT}"]
        else: so_ = [f"s_mov_b32 s{sSO2}, {k*64*unit}"]
        pcs.append(so_ + [I(f"buffer_load_dword a{aST + 9 + npf[0] % 7}, v{vPF+1}, {srd(srd_b)}, s{sSO2} offen {pol}", tag='pf')])
    return setup, pcs
def pf_run(streams, g0, g1):
    items = []
    for st_ in streams:
        su, pcs = st_
        for k, p_ in enumerate(pcs): items.append((su if k == 0 else []) + p_)
    n = len(items)
    for k, it_ in enumerate(items):
        lo = g0 + (k*(g1-g0))//n
        place(it_, lo, lo + 24)
if OPT['PF']:
    place([f"v_lshrrev_b32 v{vLQ}, 2, v0", f"s_lshl_b32 s{sSO2}, s{sW}, 4", f"v_add_u32 v{vLQ}, s{sSO2}, v{vLQ}"], 100, 130)
    if not OPT['BIG'] & 2: pf_run([pf_pieces(sKK, 2048//(2*NT), 128, sKVI, pol=OPT['PPF']), pf_pieces(sVV, 2048//(2*NT), 128, sKVI, pol=OPT['PPF'])], OPT['PFG'], gap(phase['P4']))
    if not OPT['NOPF2'] & 1: pf_run([pf_pieces(sWO, 1792//NT, 128, sTL), pf_pieces(sW2, 448, 896, sW2I, rot=OPT['W2ROT'])], gap(phase[f"G3_{OPT['PF0']}"]), gp1 if OPT['PF1'] == 0 else gap(phase[f"G3_{OPT['PF1']}"]))
    vPF += -20
    sSO2 = sT3
    if not OPT['NOPF2'] & 2: pf_run([pf_pieces(sWS, 256, 128, sCC, sHPF, 'sc1')], gp1 + 2, gap(phase[f"G3_{hs+OPT['HPF']}"]) - 20)
    vPF += 20
    sSO2 = 93

if OPT['TLB']:
    gt = gap(phase[OPT['TLBP']])
    seq = []
    if OPT['TLB'] & 1: seq += [f"v_accvgpr_read_b32 v{vT1}, a{aST+8}", f"v_readfirstlane_b32 s{sT2}, v{vT1}", "s_nop 0", "s_nop 0", I(f"buffer_load_dword a{aST+9}, v{vZ}, {srd(sOUT)}, s{sT2} offen", tag='pf')]
    if OPT['TLB'] & 2: seq += [I(f"buffer_load_dword a{aST+9}, v{vZ}, {srd(sWS)}, s{sQT+7} offen sc1", tag='pf')]
    if OPT['TLB'] & 4: seq += [I(f"buffer_load_dword a{aST+9}, v{vZ}, {srd(sWS)}, s{sSG} offen sc1", tag='pf'), ]
    spread(seq, gt, gt + 40)
    if OPT['TLB'] & 8: place([I(f"buffer_load_dword a{aST+9}, v{vZ}, {srd(sWS)}, s{sHST} offen sc1", tag='pf')], gap(phase['P3']), gap(phase['P3']) + 20)
if OPT['FINE'] == 1:
    for p in range(1, 7): phase[f'G4p{p}'] = phase['G4'] + 32*p; blk[phase[f'G4p{p}']] = stamp_ins(f'G4p{p}')
    for kk in range(2, 14, 2): phase[f'G6k{kk}'] = phase['G6'] + 4*kk; blk[phase[f'G6k{kk}']] = stamp_ins(f'G6k{kk}')
if OPT['FINE'] == 2:
    for nm in ['P1', 'P3', 'P5'] + [f'G2_{s_}' for s_ in range(1, 16) if s_ % 4] + ['G3_14', 'G3_15']:
        blk[phase[nm]] = stamp_ins(nm)
if OPT['STAMP'] or OPT['WAITAT']:
    for nm in ('P0', 'P2', 'P4', 'G2_0', 'G2_4', 'G2_8', 'G2_12', 'G6'):
        blk.setdefault(phase[nm], [])
        blk[phase[nm]] = stamp_ins(nm) + blk[phase[nm]]

E(f"""
s_cmp_ge_u32 s2, 256
s_cbranch_scc1 L_end
s_load_dwordx16 s[4:19], s[0:1], 0
s_load_dwordx4 s[20:23], s[0:1], 64
s_load_dwordx2 s[24:25], s[0:1], 80
""")
if OPT['STAMP'] or OPT['WAITAT']: E("s_memtime s[98:99]\ns_memrealtime s[100:101]")
E(f"""
v_lshrrev_b32 v{vT0}, 6, v0
v_and_b32 v0, 63, v0
s_and_b32 s{sT0}, s2, 7
v_readfirstlane_b32 s{sW}, v{vT0}
s_lshr_b32 s{sT1}, s2, 3
s_and_b32 s{sT2}, s{sT0}, {NHG-1}
s_lshl_b32 s{sT2}, s{sT2}, {lg(HX)}
s_and_b32 s{sHD}, s{sT1}, {HX-1}
s_add_u32 s{sHD}, s{sHD}, s{sT2}
s_lshr_b32 s{sT2}, s{sT0}, {lg(NHG)}
s_lshl_b32 s{sT2}, s{sT2}, {lg(NT)}
s_lshr_b32 s{sTL}, s{sT1}, {lg(HX)}
s_add_u32 s{sT}, s{sTL}, s{sT2}
s_lshl_b32 s{sWB}, s{sW}, 12
""")
CODE_LINES = 512
E(f"s_lshr_b32 s{sCNT}, s2, 3")
for t_ in pf_addr(CODE_LINES, None, 0, 0, vR+80, sCNT, 32): E(t_)
E(f"""
s_getpc_b64 s[26:27]
L_pc:
global_load_dword v{vR+90}, v{vR+80}, s[26:27]
""")
E(f"""
v_lshrrev_b32 v{vT3}, 3, v0
v_and_b32 v{vT4}, 7, v0
v_lshrrev_b32 v{vT1}, 1, v{vT3}
v_xor_b32 v{vT1}, v{vT1}, v{vT4}
v_lshlrev_b32 v{vT1}, 4, v{vT1}
v_xor_b32 v{vT2}, 64, v{vT1}
s_lshl_b32 s{sT1}, s{sT}, 2
s_add_u32 s{sT1}, s{sT1}, s{sW}
s_mul_i32 s{sT1}, s{sT1}, {32*896}
v_mul_u32_u24 v{vT0}, 896, v{vT3}
v_add_u32 v{vT0}, s{sT1}, v{vT0}
v_add_u32 v{vXD}, v{vT0}, v{vT1}
v_add_u32 v{vXD+1}, v{vT0}, v{vT2}
v_add_u32 v{vXD+2}, {2*6144}, v{vXD}
v_add_u32 v{vXD+3}, {3*6144}, v{vXD+1}
v_add_u32 v{vXD+1}, 6144, v{vXD+1}
s_mov_b32 m0, s{sWB}
s_mov_b32 s{sSO}, 0
v_min_u32 v{vR+82}, 13, v0
v_subrev_u32 v{vR+83}, 7, v{vR+82}
v_min_u32 v{vR+83}, v{vR+83}, v{vR+82}
v_sub_u32 v{vR+82}, v{vR+82}, v{vR+83}
v_lshlrev_b32 v{vR+82}, 11, v{vR+82}
v_lshl_add_u32 v{vR+82}, v{vR+83}, 7, v{vR+82}
s_mul_i32 s{sT2}, s{sHD}, 896
s_add_u32 s{sT2}, s{sT2}, s{sT1}
s_mov_b32 s{sX+2}, {2048*896}
s_mov_b32 s{sX+3}, 0x00020000
s_waitcnt lgkmcnt(0)
s_mov_b32 s{sX}, s4
s_mov_b32 s{sX+1}, s5
""")
PST('karg')
def mk_srd(b, plo, off_sgpr, size):
    if off_sgpr is None:
        E(f"s_mov_b32 s{b}, s{plo}\ns_mov_b32 s{b+1}, s{plo+1}")
    else:
        E(f"s_add_u32 s{b}, s{plo}, s{off_sgpr}\ns_addc_u32 s{b+1}, s{plo+1}, 0")
    E(f"s_mov_b32 s{b+2}, {size}\ns_mov_b32 s{b+3}, 0x00020000")
xdma = []
for tg in range(2):
    for q in range(7):
        if q or tg:
            xdma += [I(f"s_add_u32 m0, s{sWB}, {q*SLOT}"), I(f"s_movk_i32 s{sSO}, {q*128}")]
        for rb in (2*tg, 2*tg+1):
            xdma.append(I(f"buffer_load_dwordx4 v{vXD+rb}, {srd(sX)}, s{sSO} offen offset:{rb*1024} {OPT['PX']} lds", tag=('x', tg, q)))
def xissue(n):
    while n > 0 and xdma:
        i_ = xdma.pop(0); P.ins.append(i_)
        if i_.cls == 'vmem': n -= 1
if OPT['XPF']: E(f"buffer_load_dword a{aST+9}, v{vR+82}, {srd(sX)}, s{sT2} offen", tag='pf')
xissue(OPT['XFIRST'])
E(f"s_lshl_b32 s{sT0}, s{sHD}, 9\ns_sub_u32 s{sT2}, {448*8192}, s{sT0}")
mk_srd(sWQ, 10, sT0, f"s{sT2}")
wqpf = [I(t_) if isinstance(t_, str) else t_ for t_ in pf_seq(sWQ, 448*OPT['WQP'], OPT['WQP'], 8192, sTL, NT)] if OPT['PF'] and OPT['WQP'] else []
if OPT['WQE'] == 1: P.ins += wqpf; wqpf = []
else: P.ins += wqpf[:-1]; wqpf = wqpf[-1:]
xissue(OPT['XSEC'])
PST('x_first')
mk_srd(sOUT, 20, None, 2048*896)
E(f"""
s_lshl_b32 s{sT0}, s{sW}, 7
v_lshlrev_b32 v{vKD}, 9, v{vT3}
v_add_u32 v{vVD}, s{sT0}, v{vKD}
v_add_u32 v{vKD}, v{vVD}, v{vT1}
v_add_u32 v{vKD+1}, v{vVD}, v{vT2}
v_add_u32 v{vKD+2}, {2*3072}, v{vKD}
v_add_u32 v{vKD+3}, {3*3072}, v{vKD+1}
v_add_u32 v{vKD+1}, 3072, v{vKD+1}
v_and_b32 v{vT0}, 6, v{vT3}
v_xor_b32 v{vT0}, v{vT0}, v{vT4}
v_lshlrev_b32 v{vT0}, 4, v{vT0}
v_add_u32 v{vVD}, v{vVD}, v{vT0}
""")
for rb in range(1, 4): E(f"v_add_u32 v{vVD+rb}, {3072*rb}, v{vVD}")
E(f"""
v_and_b32 v{vT1}, 4, v{vT3}
v_add_u32 v{vT1}, v{vT1}, v{vT3}
v_lshl_add_u32 v{vWQ}, v{vT1}, 13, v{vT0}
v_mul_u32_u24 v{vT1}, 3584, v{vT1}
v_add_u32 v{vW1D}, v{vT1}, v{vT0}
""")
for rb in range(1, 4):
    rr = 16*(rb & 1) + 4*(rb >> 1)
    E(f"v_add_u32 v{vW1D+rb}, {rr*3584 - 1024*rb}, v{vW1D}\nv_add_u32 v{vWQ+rb}, {rr*8192 - 1024*rb}, v{vWQ}")
E(f"""
s_lshl_b32 s{sT1}, s{sHD}, 8
s_sub_u32 s{sT2}, {448*3584}, s{sT1}
s_cmp_lt_u32 s{sHD}, 14
s_cselect_b32 s{sT2}, s{sT2}, 0
s_cselect_b32 s{sT1}, s{sT1}, 0
""")
mk_srd(sW1, 16, sT1, f"s{sT2}")
E(f"s_lshr_b32 s{sT0}, s{sHD}, 1\ns_lshl_b32 s{sT0}, s{sT0}, 20\ns_add_u32 s{sT0}, s{sT0}, {1536*512}")
mk_srd(sKK, 6, sT0, 262144)
mk_srd(sVV, 8, sT0, 262144)
E(f"s_mul_i32 s{sT0}, s{sHD}, {256*896}")
mk_srd(sWO, 12, sT0, 256*896)
E(f"""
s_lshr_b32 s{sPC}, s2, 3
s_and_b32 s{sPC}, s{sPC}, 15
s_cmp_ge_u32 s{sPC}, 7
s_cselect_b32 s{sT3}, 1, 0
s_mul_i32 s{sT1}, s{sT3}, 7
s_sub_u32 s{sT1}, s{sPC}, s{sT1}
s_lshl_b32 s{sT0}, s{sT1}, 7
s_sub_u32 s{sT2}, {1792*896}, s{sT0}
s_cmp_lt_u32 s{sPC}, 14
s_cselect_b32 s{sT2}, s{sT2}, 0
s_cselect_b32 s{sT0}, s{sT0}, 0
""")
mk_srd(sW2, 18, sT0, f"s{sT2}")
if OPT['WSOFF']:
    E(f"s_mov_b32 s{sT0}, {hx(OPT['WSOFF'] << 20)}")
    mk_srd(sWS, 24, sT0, WS_SIZE)
else:
    mk_srd(sWS, 24, None, WS_SIZE)
for k_, R_ in ((0, 32*8192), (2, 32*3584)):
    E(f"""
s_mul_i32 s{sW1T+k_}, s{sW}, {R_}
s_cmp_lt_u32 s{sW}, 2
s_mov_b32 s{sT2}, {hx(128 - 2*R_)}
s_cselect_b32 s{sT0}, {12*R_}, s{sT2}
s_add_u32 s{sW1T+k_+1}, s{sW1T+k_}, s{sT0}
""")
E(f"""
v_mul_u32_u24 v{vT1}, 896, v{vT3}
v_add_u32 v{vT1}, v{vT1}, v{vT0}
s_mul_i32 s{sT0}, s{sW}, {32*896}
s_mul_i32 s{sT2}, s{sW}, {448*896}
""")
for rb in range(4):
    if rb: E(f"v_add_u32 v{vT1}, 6144, v{vT1}")
    E(f"v_add_u32 v{vT2}, s{sT0}, v{vT1}\nv_accvgpr_write_b32 a{aST+rb}, v{vT2}\nv_add_u32 v{vT2}, s{sT2}, v{vT1}\nv_accvgpr_write_b32 a{aST+4+rb}, v{vT2}")
E(f"""
v_lshlrev_b32 v{vL16}, 4, v0
v_lshrrev_b32 v{vT0}, 2, v0
v_lshlrev_b32 v{vT1}, 7, v{vT0}
v_and_b32 v{vT2}, 3, v0
v_lshl_add_u32 v{vT1}, v{vT2}, 3, v{vT1}
v_bfe_u32 v{vT3}, v0, 3, 2
""")
for u in range(4):
    E(f"""
v_xor_b32 v{vT4}, {u}, v{vT3}
v_lshl_add_u32 v{vTR+u}, v{vT4}, 5, v{vT1}
v_add_u32 v{vTR+4+u}, 0x10000, v{vTR+u}
v_add_u32 v{vTR+8+u}, 0x20000, v{vTR+u}
""")
E(f"""
v_and_b32 v{vT0}, 15, v0
v_lshrrev_b32 v{vT1}, 1, v{vT0}
v_lshrrev_b32 v{vT2}, 4, v0
v_xor_b32 v{vT1}, v{vT1}, v{vT2}
v_lshlrev_b32 v{vT4}, 7, v{vT0}
v_lshl_add_u32 v{vRA}, v{vT1}, 4, v{vT4}
v_xor_b32 v{vRA+1}, 64, v{vRA}
v_add_u32 v{vRA+2}, 0x10000, v{vRA}
v_add_u32 v{vRA+3}, 0x10000, v{vRA+1}
v_add_u32 v{vRA+4}, 0x20000, v{vRA}
v_add_u32 v{vRA+5}, 0x20000, v{vRA+1}
""")
vXR = vR + 72
for i in range(4): E(f"v_add_u32 v{vXR+i}, s{sWB}, v{vRA+i}")
E(f"""
s_and_b32 s{sTC}, s2, 7
s_lshl_b32 s{sTC}, s{sTC}, 1
s_lshr_b32 s{sT0}, s2, 7
s_add_u32 s{sTC}, s{sTC}, s{sT0}
s_lshl_b32 s{sW2I}, s{sT0}, 1
s_add_u32 s{sW2I}, s{sW2I}, s{sT3}
s_lshl_b32 s{sT2}, s{sTC}, 1
s_add_u32 s{sT2}, s{sT2}, s{sT3}
s_lshl_b32 s{sT0}, s{sT2}, 2
s_add_u32 s{sT0}, s{sT0}, s{sW}
s_mul_i32 s{sT0}, s{sT0}, {16*896}
s_lshl_b32 s{sSG}, s{sT1}, 7
s_add_u32 s{sT0}, s{sT0}, s{sSG}
v_lshrrev_b32 v{vT0}, 3, v0
v_mul_u32_u24 v{vT0}, 896, v{vT0}
v_and_b32 v{vT2}, 7, v0
v_lshl_add_u32 v{vT0}, v{vT2}, 4, v{vT0}
v_add_u32 v{vT0}, s{sT0}, v{vT0}
v_accvgpr_write_b32 a{aST+8}, v{vT0}
s_lshl_b32 s{sT2}, s{sT2}, 1
s_lshr_b32 s{sT0}, s{sW}, 1
s_add_u32 s{sSG}, s{sT2}, s{sT0}
s_mul_i32 s{sSG}, s{sSG}, 7
s_add_u32 s{sSG}, s{sSG}, s{sT1}
s_lshl_b32 s{sSG}, s{sSG}, 2
s_lshl_b32 s{sT0}, s{sT0}, 4
s_lshl_b32 s{sFLP}, s{sT2}, 7
s_add_u32 s{sFLP}, s{sFLP}, s{sT0}
s_add_u32 s{sFLP}, s{sFLP}, {hx(WS_F)}
s_and_b32 s{sT0}, s{sW}, 1
s_add_u32 s{sSG}, s{sSG}, s{sT0}
s_lshl_b32 s{sSG}, s{sSG}, 14
s_mul_i32 s{sHLD}, s{sT2}, {56*2048}
s_add_u32 s{sHLD}, s{sHLD}, {hx(WS_H)}
s_cmp_lt_u32 s{sPC}, 14
s_cselect_b32 s{sCOOB}, 0, {hx(OOB)}
s_add_u32 s{sHPF}, s{sHLD}, s{sCOOB}
s_mul_i32 s{sT0}, s{sW}, {14*2048}
s_add_u32 s{sHLD}, s{sHLD}, s{sT0}
s_mov_b32 s0, s2
s_mov_b32 s{sCC}, s{sT1}
s_lshl_b32 s{sKVI}, s{sTL}, 1
s_and_b32 s{sT0}, s{sHD}, 1
s_add_u32 s{sKVI}, s{sKVI}, s{sT0}
s_lshl_b32 s{sT1}, s{sT}, 2
s_add_u32 s{sT1}, s{sT1}, s{sW}
s_lshr_b32 s{sFLG}, s{sT1}, 1
s_lshl_b32 s{sFLG}, s{sFLG}, 8
s_and_b32 s{sT2}, s{sT1}, 1
s_lshl_b32 s{sT2}, s{sT2}, 4
s_add_u32 s{sFLG}, s{sFLG}, s{sT2}
s_add_u32 s{sFLG}, s{sFLG}, s{sHD}
s_add_u32 s{sFLG}, s{sFLG}, {hx(WS_F)}
s_mul_i32 s{sHST}, s{sT1}, {56*2048}
s_min_u32 s{sT2}, s{sHD}, 13
s_lshl_b32 s{sT2}, s{sT2}, 13
s_add_u32 s{sHST}, s{sHST}, s{sT2}
s_add_u32 s{sHST}, s{sHST}, {hx(WS_H)}
s_cmp_lt_u32 s{sHD}, 14
s_cselect_b32 s{sT2}, 0, {hx(OOB)}
v_add_u32 v{vHS}, s{sT2}, v{vL16}
v_mov_b32 v{vZ}, 0
v_mov_b32 v{vONE}, 1
""")
PST('addr_done')
xissue(14 - OPT['XFIRST'] - OPT['XSEC'])
if OPT['WQE'] == 0: P.ins += wqpf; wqpf = []
PST('x_issued')
PRODUCER = len(P.ins)
E(f"""
s_lshl_b32 s{sSST}, s{sT}, 2
s_add_u32 s{sSST}, s{sSST}, s{sW}
s_mul_i32 s{sSST}, s{sSST}, {28*16384}
s_cmp_ge_u32 s{sHD}, 7
s_cselect_b32 s{sT3}, 1, 0
s_sub_u32 s{sROT}, s{sHD}, 7
s_min_u32 s{sROT}, s{sROT}, s{sHD}
s_sub_u32 s{sCNT}, s{sROT}, 7
s_min_u32 s{sROT}, s{sROT}, s{sCNT}
s_cmp_lt_u32 s{sHD}, 14
s_cselect_b32 s{sT3}, s{sT3}, s{sHD}
s_cselect_b32 s{sSTEP}, 2048, 0
s_lshl_b32 s{sT3}, s{sT3}, 10
s_add_u32 s{sSST}, s{sSST}, s{sT3}
""")
prod_ins = []
if OPT['STLB']:
    for b_, o_ in ((sKK, '0'), (sVV, '0'), (sWQ, '0'), (sWQ, f'{hx(400*8192)}')[:2], (sWO, '0'), (sW1, '0'), (sW2, '0'), (sOUT, '0'),
                   (sWS, f's{sSST}'), (sWS, f's{sHST}'), (sWS, hx(WS_F + 0x8000))):
        if o_.startswith('0x'): E(f"s_mov_b32 s{sCNT}, {o_}"); o_ = f's{sCNT}'
        i_ = I(f"s_buffer_load_dword s1, {srd(b_)}, {o_}"); i_.cls = 'smem'; i_.dst = []; P.ins.append(i_)
    i_ = I(f"s_load_dword s1, {DBGP}, 0 glc"); i_.dst = []; P.ins.append(i_)
for s_, val in ((sM1, 0x2222222222222222), (sM2, 0xCCCCCCCCCCCCCCCC), (sM3, 0x8888888888888888), (sMD, 0xF0000F0000F0000F)):
    E(f"s_mov_b32 s{s_}, {hx(val)}\ns_mov_b32 s{s_+1}, {hx(val >> 32)}")

vONES = vR + 16
vD1 = vR + 20
vD2 = vR + 28
vLA = vR + 36
for i in range(4): E(f"v_mov_b32 v{vONES+i}, 0x3f803f80")
def rbf(r):
    return [f"v_cvt_pk_bf16_f32 v{r}, v{r}, v{r}", f"v_lshlrev_b32 v{r}, 16, v{r}"]
E(f"s_mov_b32 s{sT0}, {hx(f2u(1.0/448.0))}\ns_mov_b32 s{sT1}, {hx(f2u(1e-5))}\ns_mov_b32 s{sT2}, {hx(f2u(CSCALE))}")
if OPT['PADS']:
    E(f"""
s_mov_b64 exec, 0
s_cmp_eq_u32 s{sW}, 0
s_cbranch_scc1 L_pg0
s_cmp_eq_u32 s{sW}, 1
s_cbranch_scc1 L_pg1
s_cmp_eq_u32 s{sW}, 2
s_cbranch_scc1 L_pg2
s_branch L_pg3
.p2align 12
L_main:
s_mov_b64 exec, -1
""")
STAMP('pro_done')
vNT = vR + 44
NPRO = OPT['NPRO']
big = []
if OPT['BIG'] & 1:
    t_ = pf_seq(sWQ, 448*2, 2, 8192, sTL, NT); t_[-1] = I(t_[-1].text.replace('offen', 'offen offset:256'), tag='pf'); big += t_
    big += pf_seq(sW1, 448*2, 2, 3584, sTL, NT)
if OPT['BIG'] & 2:
    t_ = pf_seq(sKK, 2048, None, 0, sKVI, 2*NT); big += t_ + [pf_load(sVV, vPF+1)]
big = [I(t_) if isinstance(t_, str) else t_ for t_ in big]
assert len(pro_dma) == NPRO
L0N = OPT['L0N']
late = {0: [i_ for d_ in pro_dma[:L0N] for i_ in d_],
        1: [i_ for d_ in pro_dma[3:] for i_ in d_]
           + big + [I(f"buffer_store_byte v{vZ}, v{vZ}, {srd(sWS)}, s{sFLG} offen sc1", tag='hst')]}
def xreads(tg, q):
    r = [mk_wait_vm([('x', tg, q)])]
    for ks in (2*q, 2*q+1):
        ad = q*SLOT + tg*2048
        r.append(I(f"ds_read_b128 {v(xn(ks,tg),4)}, v{vXR + (ad >> 16)*2 + (ks & 1)} offset:{ad & 0xffff}", tag=('xr', tg, q)))
    return r
def stats(tg, q, fill):
    P.wait_lgkm_tag([('xr', tg, q)])
    for ks in (2*q, 2*q+1):
        X = v(xn(ks, tg), 4)
        for m_ in (mfma(v(vD1+4*tg, 4), v(vONES, 4), X, "0" if ks == 0 else v(vD1+4*tg, 4)), mfma(v(vD2+4*tg, 4), X, X, "0" if ks == 0 else v(vD2+4*tg, 4))):
            E(m_)
            t_ = 0
            while fill and t_ + cost(fill[0]) <= 12:
                t_ += cost(fill[0]); P.ins.append(fill.pop(0))
def scalars(tg):
    d = vD2 + 4*tg; m = vD1 + 4*tg; t = m + 1; L = vLA + 4*tg
    s = [f"v_cndmask_b32 v{d}, v{d}, v{d+1}, s[{sM1}:{sM1+1}]",
         f"v_cndmask_b32 v{d+2}, v{d+2}, v{d+3}, s[{sM3}:{sM3+1}]",
         f"v_mul_f32 v{m}, s{sT0}, v{m}",
         f"v_cndmask_b32 v{d}, v{d}, v{d+2}, s[{sM2}:{sM2+1}]",
         f"v_cndmask_b32 v{d}, 0, v{d}, s[{sMD}:{sMD+1}]"]
    s += allred(d, t, "v_add_f32")
    s += [f"v_mul_f32 v{d}, s{sT0}, v{d}",
          f"v_fma_f32 v{d}, -v{m}, v{m}, v{d}",
          f"v_max_f32 v{d}, 0, v{d}"]
    s += interleave(rbf(m), rbf(d))
    s += [f"v_add_f32 v{d}, s{sT1}, v{d}"] + rbf(d) + [f"v_sqrt_f32 v{d}, v{d}"] + rbf(d)
    s += [f"v_rcp_f32 v{d}, v{d}", f"v_mul_f32 v{d}, s{sT2}, v{d}",
          f"v_cvt_pk_bf16_f32 v{d}, v{d}, v{d}",
          f"v_and_b32 v{L}, 0xffff, v{d}", f"v_lshlrev_b32 v{L+1}, 16, v{d}",
          f"v_mul_f32 v{L+2}, -v{m}, v{L+1}"]
    for t_ in s: E(t_)
def normalize(tg, side):
    L = vLA + 4*tg; k = 0; pend = []
    for ks in range(14):
        for r in range(4):
            x_ = xn(ks, tg) + r
            t = vNT + 2*(k % 8); k += 1
            E(f"v_dot2_f32_bf16 v{t}, v{x_}, v{L}, v{L+2}\nv_dot2_f32_bf16 v{t+1}, v{x_}, v{L+1}, v{L+2}")
            pend.append(f"v_cvt_pk_bf16_f32 v{x_}, v{t}, v{t+1}")
            if len(pend) > 2: E(pend.pop(0))
            P.ins += side.get(k, [])
    for t_ in pend: E(t_)
for q in range(7):
    P.ins += xreads(0, q)
    if q in (0, 3, 6): PST(f'w0{q}')
    xissue(2)
    if q > 1: stats(0, q-2, [])
fill = wqpf + late[0]
stats(0, 5, fill); stats(0, 6, fill)
P.ins += fill
STAMP('x0_arrived')
scalars(0)
X1 = OPT['X1']
normalize(0, {X1 + 4*q: xreads(1, q) for q in range(7)})
PST('ln0_done')
fill = [i_ for d_ in pro_dma[L0N:3] for i_ in d_]
for q in range(7):
    if q == 1: P.wait_lgkm_tag([('xr', 1, 6)]); fill += late[1]
    stats(1, q, fill)
P.ins += fill
STAMP('x1_arrived')
scalars(1)
fr_ = [i_ for f in range(D) for i_ in frag_reads(f)]
side = {OPT['BARK']: [mk_wait_vm(first_need), I("s_barrier")]}
for k_, i_ in enumerate(fr_): side.setdefault(min(OPT['BARK'] + 1 + k_, 56), []).append(i_)
normalize(1, side)
if OPT['DUMP'] == 'xn':
    P.ins += dump([v(xn(ks, tg), 4) for ks in range(14) for tg in range(2)])

P.ins.append(mk_wait_lg([('f', f) for f in range(4)]))
est = 0
for g in range(NF):
    if g in blk: P.ins += blk[g]
    for h, m_ in enumerate(MF[g]):
        gp = G0[g] + h
        P.ins.append(I(m_))
        P.ins += pre[gp] + rds[gp] + ext[gp]
        est += max(16, gtime(pre[gp] + rds[gp] + ext[gp]))
if OPT['LOG']:
    ph = sorted((f_, n_) for n_, f_ in phase.items())
    for (f0_, n_), (f1_, _) in zip(ph, ph[1:]):
        e_ = sum(max(16, gtime(pre[q_] + rds[q_] + ext[q_])) for q_ in range(gap(f0_), gap(f1_)))
        print(f"  phase {n_}: est {e_} ideal {16*(gap(f1_)-gap(f0_))}", file=sys.stderr)
print("estimated main-stream cycles", est, "ideal", 16*NG, file=sys.stderr)

STAMP('g6_done')
def fs(t4, w_): return facc(t4, w_)
vSEL = 44
vSA = 52
STAMP('pre_c1')
P.wait_vm_tag(['poll'])
E(f"v_cmp_gt_u32 vcc, 3, v{vPOLL}\ns_cbranch_vccnz L_spin1\nL_spin1_ret:\ns_cmp_lg_u32 s{sMISS}, 0\ns_cbranch_scc1 L_redo\nL_redo_ret:")
STAMP('chk1')
gl2 = gloads(2*F0, 16, vHS)
n2 = OPT['N2']
P.ins += gl2[:n2]
E(f"""
v_add_u32 v{vT1}, s{sWB}, v{vL16}
s_lshl_b32 s{sT0}, s{sW}, 14
v_add_u32 v{vT2}, s{sT0}, v{vL16}
""")
for u in range(4):
    for t4 in range(4):
        E(f"ds_write_b128 v{vT1}, {v(facc(u, t4), 4)} offset:{t4*SLOT + u*1024}")
P.wait_vm_tag(['xf'])
for u in range(4): E(f"ds_read_b64 {v(vXF + 2*u, 2)}, v{vT3} offset:{u*32}")
E(f"""
v_mov_b32 v{vSEL}, 0
v_mov_b32 v{vSEL+1}, 0
v_mov_b32 v{vSEL+4}, 0
v_mov_b32 v{vSEL+5}, 0
v_mov_b32 v{vT0}, 0x3f80
v_mov_b32 v{vSEL+2}, 0x3f800000
s_or_b64 s[16:17], s[{sM1}:{sM1+1}], s[{sM3}:{sM3+1}]
v_cndmask_b32 v{vT0}, v{vT0}, v{vSEL+2}, s[16:17]
v_cndmask_b32 v{vT0}, 0, v{vT0}, s[{sMD}:{sMD+1}]
s_mov_b64 s[16:17], s[{sM2}:{sM2+1}]
v_cndmask_b32 v{vSEL+2}, v{vT0}, 0, s[16:17]
v_cndmask_b32 v{vSEL+3}, 0, v{vT0}, s[16:17]
s_mov_b32 s{sT0}, {hx(f2u(1.0/CSCALE))}
s_mov_b32 s{sT2}, {hx(f2u(-16.0))}
""")
E("s_waitcnt lgkmcnt(0)\ns_barrier")
for t4 in range(4):
    for w_ in range(4):
        E(f"ds_read_b128 {v(fs(t4, w_), 4)}, v{vT2} offset:{w_*4096 + t4*1024}")
def smf(rl, sl):
    r = []
    for tg in range(2):
        d = v(vSA + (rl*2+tg)*4, 4)
        r.append(mfma(d, v(vSEL + (2 if tg == 0 else 0), 4), greg(rl, sl), "0" if sl == 0 else d))
    return r
val = []
for t4 in range(4):
    b0, b1, b2, b3 = (fs(t4, w_) for w_ in range(4))
    for r in range(4): val += [f"v_add_f32 v{b0+r}, v{b0+r}, v{b1+r}", f"v_add_f32 v{b2+r}, v{b2+r}, v{b3+r}"]
    for r in range(4): val.append(f"v_add_f32 v{b0+r}, v{b0+r}, v{b2+r}")
    for r in range(4): val.append(f"v_mul_f32 v{b1+r}, s{sT2}, v{b0+r}")
    for r in range(4): val.append(f"v_exp_f32 v{b1+r}, v{b1+r}")
    for r in range(4): val.append(f"v_mul_f32 v{b0+r}, s{sT0}, v{b0+r}")
    for r in range(4): val.append(f"v_add_f32 v{b1+r}, 1.0, v{b1+r}")
    for r in range(4): val.append(f"v_rcp_f32 v{b1+r}, v{b1+r}")
    for r in range(4): val.append(f"v_mul_f32 v{b0+r}, v{b0+r}, v{b1+r}")
for t4 in range(4):
    b2 = fs(t4, 2); xr = vXF + t4*2
    val += [f"v_lshlrev_b32 v{b2}, 16, v{xr}", f"v_and_b32 v{b2+1}, 0xffff0000, v{xr}", f"v_lshlrev_b32 v{b2+2}, 16, v{xr+1}", f"v_and_b32 v{b2+3}, 0xffff0000, v{xr+1}"]
rest = gl2[n2:]
nv1 = OPT['NV1']
step = max(1, nv1 // max(1, len(rest)))
for k_ in range(nv1):
    E(val.pop(0))
    if rest and k_ % step == step - 1: P.ins.append(rest.pop(0))
P.ins += rest
E(f"s_waitcnt vmcnt({32 - 4*F0})")
ms = []
for sq in range(0, 2*F0, 2):
    for rl in range(2):
        for sl in range(sq, sq+2): ms += smf(rl, sl)
per = (len(val) + 8*F0 - 1) // (8*F0)
for m_ in ms:
    E(m_)
    for _ in range(per):
        if val: E(val.pop(0))
for t_ in val: E(t_)
STAMP('g_done')
for sq in range(2*F0, 16, 2):
    for rl in range(2):
        for sl in range(sq, sq+2):
            for m_ in smf(rl, sl): E(m_)
for u in range(4):
    b0 = fs(u, 0); b2 = fs(u, 2)
    for r in range(4): E(f"v_fma_f32 v{b0+r}, v{vSA+u*4+r}, v{b0+r}, v{b2+r}")
    E(f"v_cvt_pk_bf16_f32 v{b0}, v{b0}, v{b0+1}\nv_cvt_pk_bf16_f32 v{b0+1}, v{b0+2}, v{b0+3}")
    E(f"ds_write_b64 v{vT3}, {v(b0,2)} offset:{2048 + u*32}")
E(f"""
ds_read_b128 {v(vXF,4)}, v{vT4} offset:2048
ds_read_b128 {v(vXF+4,4)}, v{vT4} offset:3072
buffer_store_dwordx4 {v(vXF,4)}, v{vAD}, {srd(sOUT)}, 0 offen {OPT['OST']}
buffer_store_dwordx4 {v(vXF+4,4)}, v{vAD}, {srd(sOUT)}, s{sSV1} offen {OPT['OST']}
""")
if OPT['WAITAT']: STAMP('end')
if OPT['STAMP']:
    STAMP('end')
    E(f"""
L_fin:
s_memrealtime s[{sSTMP}:{sSTMP+1}]
s_waitcnt lgkmcnt(0)
v_writelane_b32 v{vSTAMP}, s{sMISS}, 59
v_writelane_b32 v{vSTAMP}, s98, 60
v_writelane_b32 v{vSTAMP}, s100, 61
v_writelane_b32 v{vSTAMP}, s{sSTMP}, 62
s_lshl_b32 s{sT0}, s0, 2
s_add_u32 s{sT0}, s{sT0}, s{sW}
s_lshl_b32 s{sT0}, s{sT0}, 8
s_add_u32 s{sT0}, s{sT0}, {hx(WS_DBG)}
v_lshlrev_b32 v{vT0}, 2, v0
buffer_store_dword v{vSTAMP}, v{vT0}, {srd(sWS)}, s{sT0} offen
""")
E("L_end:\ns_endpgm")
main_ins, log, stats_ = resolve(P.ins)
print("main", stats_, file=sys.stderr)
if OPT['LOG']:
    for l in log: print("  ", l, file=sys.stderr)

Q = Prog(); E = Q.emit
SPIN_MAX = 1 << 17
def spin(label, load, want, cmp):
    E(f"""
{label}:
s_mov_b32 s{sCNT}, {SPIN_MAX}
{label}_loop:
s_sleep 1
{load}
s_waitcnt vmcnt(0)
v_cmp_{cmp}_u32 vcc, {want}, v{vPOLL}
s_sub_u32 s{sCNT}, s{sCNT}, 1
s_cmp_eq_u32 s{sCNT}, 0
s_cbranch_scc1 {label}_ret
s_cbranch_vccnz {label}_loop
s_branch {label}_ret
""")
spin("L_spinh", f"s_lshl_b32 s{sT0}, s{sTC}, 4\nv_mov_b32 v{vT0}, s{sT0}\nglobal_load_dword v{vPOLL}, v{vT0}, {DBGP} sc1", 16, "gt")
spin("L_spin1", VPOLL, 3, "gt")
E("L_redo:\ns_waitcnt vmcnt(0)")
Q.ins += gloads(0, 2*F0, vHS)
E("s_branch L_redo_ret")
MISC = [c['lo'] for c in chunks if c['name'] == 'V_15'][0]
fK, fS, fP, fA, fV, fR, fM = 44, 76, 108, 116, 117, 121, 102
E(f"""
L_exact:
s_waitcnt vmcnt(0) lgkmcnt(0)
s_nop 15
s_mov_b32 s{sSV0}, m0
v_and_b32 v{fA}, 15, v0
v_lshlrev_b32 v{fA}, 9, v{fA}
v_and_b32 v{fM}, 48, v0
v_add_u32 v{fA}, v{fA}, v{fM}
s_lshl_b32 s{sSV1}, s{sW}, 7
s_add_u32 s{sSV2}, s{sWB}, {MISC}
""")
for i in range(4):
    E(f"v_subrev_u32 v{fV+i}, s{sSV1}, v{vVD+i}\nv_add_u32 v{fR+i}, s{sSV2}, v{vTR+i}")
E(f"v_mov_b32 v{fM}, 0xff800000\nv_mov_b32 v{fM+1}, 0xff800000\ns_mov_b32 s{sSV1}, 0")
def ktile(kt, cinit):
    for ks in range(8):
        E(f"buffer_load_dwordx4 {v(fK+4*ks,4)}, v{fA}, {srd(sKK)}, s{sSV1} offen offset:{ks*64}")
    E(f"s_add_u32 s{sSV1}, s{sSV1}, 8192\ns_waitcnt vmcnt(0)")
    for ks in range(8):
        for tg in range(2):
            d = v(fS + tg*8 + kt*4, 4)
            E(mfma(d, v(fK+4*ks, 4), a(qf(ks, tg), 4), (cinit(tg) if ks == 0 else d)))
    E("s_nop 15")
E("L_exact_p1:")
ktile(0, lambda tg: "0")
for tg in range(2):
    b = fS + tg*8
    E(f"v_max3_f32 v{fM+tg}, v{fM+tg}, v{b}, v{b+1}\nv_max3_f32 v{fM+tg}, v{fM+tg}, v{b+2}, v{b+3}")
E(f"s_cmp_lt_u32 s{sSV1}, 262144\ns_cbranch_scc1 L_exact_p1")
for tg in range(2):
    for t_ in allred(fM+tg, fM+2, "v_max_f32"): E(t_)
    for r in range(4): E(f"v_sub_f32 v{vC+4*tg+r}, 0, v{fM+tg}")
for r in range(128): E(f"v_mov_b32 v{vO+r}, 0")
E(f"v_mov_b32 v{vLS}, 0\nv_mov_b32 v{vLS+1}, 0\ns_mov_b32 s{sSV1}, 0\ns_add_u32 m0, s{sWB}, {MISC}\ns_nop 3")
E("L_exact_p2:")
E(f"s_mov_b32 s{sSV2}, s{sSV1}")
ktile(0, lambda tg: v(vC+4*tg, 4))
ktile(1, lambda tg: v(vC+4*tg, 4))
for r in range(16): E(f"v_exp_f32 v{fS+r}, v{fS+r}")
for r in range(16): E(f"v_add_f32 v{vLS + r//8}, v{vLS + r//8}, v{fS+r}")
for r in range(8): E(f"v_cvt_pk_bf16_f32 v{fP+r}, v{fS+2*r}, v{fS+2*r+1}")
for cb in range(4):
    for rb in range(4):
        E(f"buffer_load_dwordx4 v{fV+rb}, {srd(sVV)}, s{sSV2} offen offset:{rb*1024} lds")
    E(f"s_add_u32 s{sSV2}, s{sSV2}, 128\ns_waitcnt vmcnt(0)")
    for u in range(4):
        E(f"ds_read_b64_tr_b16 {v(fK+4*u,2)}, v{fR+u}\nds_read_b64_tr_b16 {v(fK+4*u+2,2)}, v{fR+u} offset:2048")
    E("s_waitcnt lgkmcnt(0)")
    for u in range(4):
        for tg in range(2):
            d = v(Oreg(cb*4+u, tg), 4)
            E(mfma(d, v(fK+4*u, 4), v(fP+4*tg, 4), d))
    E("s_nop 7")
E(f"s_cmp_lt_u32 s{sSV1}, 262144\ns_cbranch_scc1 L_exact_p2")
for tg in range(2):
    for t_ in allred(vLS+tg, fM+2, "v_add_f32"): E(t_)
    E(f"v_rcp_f32 v{vRC+tg}, v{vLS+tg}")
E("s_nop 15")
for ks in range(8):
    for t_ in ocvt(ks): E(t_)
E(f"s_mov_b32 m0, s{sSV0}\ns_nop 15\ns_branch L_exact_ret")
sub_ins, log2, stats2 = resolve(Q.ins)

def sizes_of(ins):
    import subprocess, tempfile, re as re_
    body = [i_ for i_ in ins if i_.cls not in ('label', 'dir')]
    txt_ = '.amdgcn_target "amdgcn-amd-amdhsa--gfx950"\n.text\nL_any:\n' + ''.join('    ' + (re_.sub(r'L_\w+', 'L_any', i_.text) if i_.cls == 'branch' else i_.text) + '\n' for i_ in body)
    d_ = tempfile.mkdtemp()
    open(d_ + '/a.s', 'w').write(txt_)
    subprocess.run(['clang', '-x', 'assembler', '-target', 'amdgcn-amd-amdhsa', '-mcpu=gfx950', '-c', d_ + '/a.s', '-o', d_ + '/a.o'], check=True)
    out_ = subprocess.run(['llvm-objdump', '-d', '--mcpu=gfx950', d_ + '/a.o'], capture_output=True, text=True).stdout
    sz = [4*len(m_.group(1).split()) for m_ in re_.finditer(r'// [0-9A-F]+: ((?:[0-9A-F]{8} ?)+)', out_)]
    assert len(sz) == len(body), (len(sz), len(body))
    return {id(i_): s_ for i_, s_ in zip(body, sz)}
if OPT['PADS']:
    sz = sizes_of(main_ins)
    k0 = [k_ for k_, i_ in enumerate(main_ins) if i_.text == 'L_main:'][0]
    out_ = main_ins[:k0+1]; off = 0; npg = 0
    for i_ in main_ins[k0+1:]:
        if i_.cls not in ('label', 'dir'):
            lo = (npg + 1)*4096
            if off >= lo and (i_.cls == 'mfma' or off + sz[id(i_)] > lo + 56):
                assert off < lo + 64
                out_.append(I(f"L_pg{npg}:")); out_.append(I(f"s_cbranch_execz L_pgn{npg}")); off += 4; npg += 1
            off += sz[id(i_)]
        out_.append(i_)
    for i_ in out_:
        if i_.text.startswith('s_cbranch_execz L_pgn'):
            k_ = int(i_.text.split('L_pgn')[1]) + 4
            i_.text = f"s_cbranch_execz L_pg{k_}" if k_ < npg else "s_cbranch_execz L_main"
    main_ins = out_
    print("code pages", npg, "bytes after L_main", off, file=sys.stderr)
hdr = open(os.path.join(os.path.dirname(os.path.abspath(__file__)), 'header.txt')).read()
txt = hdr + f"""; @launch grid=(256,1,1) block=(256,1,1) lds={LDS_BYTES}
.amdgcn_target "amdgcn-amd-amdhsa--gfx950"
.text
.globl {NAME}_kernel
.p2align 8
.type {NAME}_kernel,@function
{NAME}_kernel:
""" + render(main_ins) + render(sub_ins) + f"""L_pad:
    s_endpgm
.if (L_pad - {"L_main" if OPT["PADS"] else "L_pc"}) < {CODE_LINES*128}
.fill (({CODE_LINES*128} - (L_pad - {"L_main" if OPT["PADS"] else "L_pc"})) / 4) + 16, 4, 0xbf810000
.endif
.section .rodata,"a"
.p2align 6
.amdhsa_kernel {NAME}_kernel
  .amdhsa_next_free_vgpr 512
  .amdhsa_next_free_sgpr 102
  .amdhsa_accum_offset 256
  .amdhsa_group_segment_fixed_size 0
  .amdhsa_kernarg_size 88
  .amdhsa_user_sgpr_count 2
  .amdhsa_user_sgpr_kernarg_segment_ptr 1
  .amdhsa_system_sgpr_workgroup_id_x 1
.end_amdhsa_kernel
"""
if OPT['STAMP']: txt += '; STAMPS ' + ' '.join(stamp_names) + '\n'
open(sys.argv[1], 'w').write(txt)
```

```python
import sys, os, math, struct
from asmlib import *

NAME = "recurrent_scan__sliding_block_cached__dense_activation_relu__prompt"
OPT = dict(D=8, NA=12, HX=2, BAR=2, STAMP=0, PST=0, DUMP='', SIGG=60, FORCEFB=0, LOG=0,
           SST='sc1', HLD='sc1', HST='sc1', GLD='sc1', NOSST=0, NOHLD=0, NOHST=0,
           PX='', PW1='', PWQ='', PKV='', PWO='', PW2='', PF=1, PPF='', OST='', WSOFF=0, HSTEP=7, XREV=0, NPRO=4, WAITAT='', WAITT=0, WAITWG=-1, PADS=1, HSIG=150, HPF=0, PF0=0, PF1=14, CHAIN=1, WB=0, WBD=60, BIG=1, DSTART=0, W2ROT=1, NOPF2=2, HEND=40, XPF=1, L0N=1, X1=28, BARK=36, BARP=2, BARA=2, BAR4=2, SPAN=30, SPAN2=20, NV1=100, PKR=0, PCH=0, TLB=1, TLBP='G2_13', XG=0, STLB=1, NOG=0, NOFLAG=0, W2G=-15, W2S=8, F0=3, F1=5, L0=0, W2PRE=6, H2A=1, H2B=100, SA=240, PA=410, CA=70, LA=140, SC=30, PB=175, N2=15, G1N=10, XFIRST=4, XSEC=0, WQE=2, OEARLY=2, H2SPAN=60, PFG=170, WQP=2, FINE=0, RT=0, SIMPLE=0, SSP=0)
for a_ in sys.argv[2:]:
    k_, v_ = a_.split('=')
    OPT[k_] = v_.replace('+', ' ') if isinstance(OPT[k_], str) else int(v_)
D = OPT['D']; NA = OPT['NA']

RING_SLOTS = 10
SLOT = 16384
LDS_BYTES = 163840
WS_S = 0
WS_H = 0x1C00000
WS_F = 0x2300000
WS_DBG = 0x2400000
WS_SIZE = 0x8000000 if (OPT['DUMP'] or OPT['STAMP']) else 0x2400000
OOB = 0x7f000000
CSCALE = math.log2(math.e) / 16.0
def f2u(x): return struct.unpack('<I', struct.pack('<f', x))[0]
def hx(x): return f"0x{x & 0xffffffff:x}"

sX, sW1, sWQ, sKK, sVV, sWO, sW2, sWS, sOUT = 28, 32, 36, 40, 44, 48, 52, 56, 60
def srd(b): return f"s[{b}:{b+3}]"
sW, sHD, sT, sWB, sSO = 64, 65, 66, 67, 68
sT0, sT1, sT2, sT3 = 69, 70, 71, 3
sQT = 72
sHST, sHLD, sSST, sSG, sFLG, sFLP, sCNT, sSO2, sTL, sROT, sSTEP, sPC = 86, 87, 88, 89, 90, 91, 92, 93, 94, 95, 96, 97
sTC, sCOOB, sHPF, sW2I, sKVI, sCC = 19, 20, 21, 24, 25, 2
sW1T = 12
sM1, sM2, sM3, sMD = 4, 6, 8, 10
sSV0, sSV1, sSV2 = 12, 13, 14
sSTMP = 26
DBGP = "s[22:23]"
vL16, vHS, vT0, vT1, vT2, vT3, vT4 = 1, 2, 3, 4, 5, 6, 7
vTR = 8
vRA = 20
vPF = 26
vZ, vONE, vPOLL, vSTAMP = 28, 29, 30, 31
vWQ, vKD, vVD, vWOD, vW2D = 32, 36, 40, 32, 36
vXN = 44
vR = 156
vW1D = vR + 64
vXD = vR + 68
vO = 128
vS = 44
vP = 76
vC = 92
vLS = 100
vM = 106
vA4 = 44
vRC = 126
aF, aST, aQ, aH = 0, 48, 64, 128

def v(i, n=1): return f"v{i}" if n == 1 else f"v[{i}:{i+n-1}]"
def a(i, n=1): return f"a{i}" if n == 1 else f"a[{i}:{i+n-1}]"
def mfma(d, A, B, C): return f"v_mfma_f32_16x16x32_bf16 {d}, {A}, {B}, {C}"
def I(t, tag=None): return Ins(t, tag)
lg = lambda x: int(math.log2(x))

P = Prog()
E = P.emit

nstamp = [0]
stamp_names = []
def stamp_ins(name=''):
    if OPT['WAITAT'] and name == OPT['WAITAT']:
        return [I(t_) for t_ in ((f"s_cmp_lg_u32 s0, {OPT['WAITWG']}", "s_cbranch_scc1 L_end") if OPT['WAITWG'] >= 0 else ()) + ("L_dw:", f"s_memrealtime s[{sSTMP}:{sSTMP+1}]", "s_waitcnt lgkmcnt(0)", f"s_sub_u32 s{sSTMP}, s{sSTMP}, s100",
                                 f"s_cmp_lt_u32 s{sSTMP}, {OPT['WAITT']}", "s_cbranch_scc1 L_dw")]
    if not OPT['STAMP']: return []
    if OPT['STAMP'] == 3 and name not in ('end', 'G4', 'wb0', 'wb1', 'G6', 'st_done', 'chk0', 'chk1', 'chk2', 'sigA', 'sigB', 'g6_done', 'g_done', 'pre_c2', 'pre_c1', 'pre_c0'): return []
    if OPT['STAMP'] == 2 and name not in ('end', 'G4', 'P0', 'G2_0', 'g6_done'): return []
    n = nstamp[0]; nstamp[0] += 1; stamp_names.append(name)
    return [I(f"{'s_memrealtime' if OPT['RT'] else 's_memtime'} s[{sSTMP}:{sSTMP+1}]"), I("s_waitcnt lgkmcnt(0)"), I(f"v_writelane_b32 v{vSTAMP}, s{sSTMP}, {n}")]
def STAMP(name=''):
    P.ins += stamp_ins(name)
def PST(name):
    if OPT['PST']: STAMP(name)

frags = []
chunks = []
def add_chunk(name, lo, size, dma, private=False):
    chunks.append(dict(name=name, lo=lo, hi=lo+size, dma=dma, private=private, first=None, last=None)); return len(chunks)-1
def add_frag(kind, rs, rb, addr, mf, ch):
    frags.append(dict(kind=kind, rb=rb, rs=rs, addr=addr, mf=mf, chunk=ch))
    c = chunks[ch]
    if c['first'] is None: c['first'] = len(frags)-1
    c['last'] = len(frags)-1
def frag_reads(f):
    fr = frags[f]; A = aF + 4*(f % NA)
    def rd(op, dst, addr):
        win = addr >> 16
        return I(f"{op} {dst}, v{fr['rb'] + win*fr['rs']} offset:{addr & 0xffff}", tag=('f', f))
    if fr['kind'] == 'tr':
        return [rd("ds_read_b64_tr_b16", a(A, 2), fr['addr']), rd("ds_read_b64_tr_b16", a(A+2, 2), fr['addr'] + 2048)]
    return [rd("ds_read_b128", a(A, 4), fr['addr'])]
POL = {sW1: 'PW1', sWQ: 'PWQ', sKK: 'PKV', sVV: 'PKV', sWO: 'PWO', sW2: 'PW2'}
ring_pos = [7]
def ring_round(name, srd_b, vbase, so_text, private=False):
    slot = ring_pos[0] % RING_SLOTS; ring_pos[0] += 1
    lo = slot*SLOT
    tag = ('c', len(chunks))
    dma = [I(f"s_add_u32 m0, s{sWB}, {lo}")]
    if so_text.startswith('s') or so_text == '0': so = so_text
    elif so_text.startswith('+'):
        dma.append(I(f"s_add_u32 s{sSO}, {so_text[1:]}")); so = f"s{sSO}"
    else:
        dma.append(I(f"s_mov_b32 s{sSO}, {so_text}")); so = f"s{sSO}"
    for rb in range(4):
        dma.append(I(f"buffer_load_dwordx4 v{vbase+rb}, {srd(srd_b)}, {so} offen offset:{rb*1024} {OPT[POL[srd_b]]} lds", tag=tag))
    return add_chunk(name, lo, SLOT, dma, private)

phase = {}
def xn(ks, tg): return vXN + (ks*2 + tg)*4
def accp(pp, kq, tg, par): return vR + (pp % 2)*32 + ((kq*2 + tg)*2 + par)*4
pend_ = []
for pp in range(6):
    phase[f'P{pp}'] = len(frags)
    for ks in range(14):
        qi = 14*pp + ks
        if qi % 4 == 0:
            r_ = qi // 4
            blk_, rp = r_ // 7, r_ % 7
            R_ = 32*(8192 if blk_ < 2 else 3584); sb = sW1T + (0 if blk_ < 2 else 2); cb_ = 256 if blk_ == 1 else 0
            so_ = f"+s{sb+1}, {cb_}" if rp == 3 else f"+s{sb}, {(4*rp*R_ if rp < 3 else (4*rp-14)*R_ + 128) + cb_}"
            ch = ring_round(f"wq_{r_}", sWQ, vWQ, so_) if r_ < 14 else ring_round(f"w1_{r_-14}", sW1, vW1D, so_)
        pend_.append((ks, qi, ch))
        if OPT['PCH'] and ks % 2 == 0: continue
        for u2 in range(2):
            for u in (2*u2, 2*u2+1):
                for ks_, qi_, ch_ in pend_:
                    mf = (lambda A, pp=pp, ks=ks_, u=u: [mfma(v(accp(pp, u >> 1, tg, u & 1), 4), A, v(xn(ks, tg), 4), "0" if ks == 0 else v(accp(pp, u >> 1, tg, u & 1), 4)) for tg in range(2)])
                    add_frag('tr', 4, vTR + u, chunks[ch_]['lo'] + (qi_ % 4)*4096, mf, ch_)
        pend_ = []
def qf(kq, tg): return aQ + (kq*2 + tg)*4
def Sreg(st, tg, kt): return vS + (st % 2)*16 + tg*8 + kt*4
def Preg(st, tg): return vP + (st % 2)*8 + tg*4
def Oreg(d, tg): return vO + (((d >> 1)*2 + tg)*2 + (d & 1))*4
def G2(st):
    phase[f'G2_{st}'] = len(frags)
    ch = ring_round(f"K_{st}", sKK, vKD, str(st*16384))
    order = [(kt, ks) for kt in range(2) for ks in range(8)]
    for kt, ks in order:
        def mf(A, kt=kt, ks=ks):
            r = []
            for tg in range(2):
                c = v(Sreg(st, tg, kt), 4)
                if ks == 0: c = "0" if st < 1 else v(vC + 4*tg, 4)
                r.append(mfma(v(Sreg(st, tg, kt), 4), A, a(qf(ks, tg), 4), c))
            return r
        add_frag('b128', 2, vRA + (ks & 1), chunks[ch]['lo'] + (ks >> 1)*4096 + kt*2048, mf, ch)
def G3(st):
    phase[f'G3_{st}'] = len(frags)
    ch = ring_round(f"V_{st}", sVV, vVD, str(st*16384))
    for d in range(16):
        mf = (lambda A, d=d: [mfma(v(Oreg(d, tg), 4), A, v(Preg(st, tg), 4), "0" if st == 0 else v(Oreg(d, tg), 4)) for tg in range(2)])
        add_frag('tr', 4, vTR + (d & 3), chunks[ch]['lo'] + (d >> 2)*4096, mf, ch)
G2(0)
for st in range(15):
    G2(st + 1); G3(st)
G3(15)
phase['G4'] = len(frags)
def acc4(p, u, tg): return vA4 + (((u >> 1)*2 + tg)*2 + (u & 1))*4
def Opk(ks, tg): return vO + (ks*2 + tg)*8
for p in range(7):
    chs = [ring_round(f"wo_{p}_{h_}", sWO, vWOD, f"s{sQT+p}" if h_ == 0 else f"+s{sQT+p}, {4*32*896}") for h_ in range(2)]
    for u in range(4):
        for ks in range(8):
            ch = chs[ks // 4]
            mf = (lambda A, p=p, ks=ks, u=u: [mfma(v(acc4(p, u, tg), 4), A, v(Opk(ks, tg), 4), "0" if ks == 0 else v(acc4(p, u, tg), 4)) for tg in range(2)])
            add_frag('tr', 4, vTR + u, chunks[ch]['lo'] + (ks % 4)*4096, mf, ch)
phase['G6'] = len(frags)
def hole(i): return vO + 8*i + 4
def hreg(kk, t4):
    i = kk*4 + t4
    if i < 32: return a(aH + 4*i, 4)
    if i < 48: return a(aQ + 4*(i-32), 4)
    return v(hole(i-48), 4)
def facc(u, t4):
    i = u*4 + t4
    return vA4 + 32 + 4*i if i < 8 else hole(i)
vTP = 108
for kk in range(14):
    ch = ring_round(f"w2_{kk}", sW2, vW2D, str(kk*32*896), private=True)
    for u in range(4):
        mf = (lambda A, kk=kk, u=u: [mfma(v(facc(u, t4), 4), A, hreg(kk, t4), "0" if kk == 0 else v(facc(u, t4), 4)) for t4 in range(4)])
        add_frag('tr', 4, vTP + u, chunks[ch]['lo'], mf, ch)
NF = len(frags)
phase['END'] = NF

MF = [fr['mf'](a(aF + 4*(f % NA), 4)) for f, fr in enumerate(frags)]
if OPT['CHAIN']:
    for f0 in range(0, NF, 4):
        nm_ = chunks[frags[f0]['chunk']]['name']
        if nm_.startswith('K_') or nm_.startswith('wo_') or (OPT['PCH'] and nm_[:2] in ('wq', 'w1')):
            fl = [MF[f0+k_][tg] for tg in range(2) for k_ in range(4)]
            for k_ in range(4): MF[f0+k_] = fl[2*k_:2*k_+2]
G0 = [0]
for f in range(NF): G0.append(G0[-1] + len(MF[f]))
NG = G0[-1]
def gap(f): return G0[max(0, min(f, NF))]
pre = [[] for _ in range(NG)]
rds = [[] for _ in range(NG)]
ext = [[] for _ in range(NG)]
blk = {}
for g in range(NF):
    if g + D < NF:
        r = frag_reads(g + D)
        n = len(MF[g])
        rds[G0[g]].append(r[0])
        if len(r) > 1: rds[G0[g] + n//2].append(r[1])
def cost(i):
    if i.cls in ('ds',): return 8
    if i.cls == 'vmem': return 24 if 'store' in i.op and 'x4' in i.op else 8
    if i.cls in ('trans', 'perm'): return 8
    if i.cls == 'label': return 0
    return 4
def gtime(items):
    t = 4
    for i in items:
        if i.cls in VALU_LIKE: t = max(t, 8)
        t += cost(i)
    return t
def fits(gp, i): return gtime(pre[gp] + rds[gp] + ext[gp] + [i]) <= 16
def place(seq, g0, g1=None):
    seq = [I(s) if isinstance(s, str) else s for s in seq]
    g1 = NG if g1 is None else min(g1, NG)
    gp = g0; n = len(seq)
    for k, ins in enumerate(seq):
        bound = max(min(g0 + ((k + 1) * (g1 - g0)) // n - 1, g1 - 1), gp)
        best = None
        for q in range(gp, bound + 1):
            if fits(q, ins): best = q; break
        if best is None:
            best = min(range(gp, bound + 1), key=lambda q: (gtime(pre[q] + rds[q] + ext[q] + [ins]), q))
        ext[best].append(ins)
        gp = best
    return gp
def spread(seq, g0, g1):
    n = len(seq); cur = g0
    for k, ins in enumerate(seq):
        lo = max(g0 + (k*(g1-g0))//n, cur); hi = max(g0 + ((k+1)*(g1-g0))//n, lo+1)
        cur = place([ins], lo, hi)
    return cur

shared = [c for c in range(len(chunks)) if not chunks[c]['private']]
def is_bar(k_):
    if k_ == 0: return True
    if k_ < 21: return (k_ - 1) % OPT['BARP'] == 0
    if k_ < 53: return (k_ - 21) % OPT['BARA'] == 0
    return (k_ - 53) % OPT['BAR4'] == 0
bar_frags = [chunks[c]['first'] for k_, c in enumerate(shared) if is_bar(k_)]
bar_frags += [phase['G6'], phase['G6'] + D + 1]
bar_frags = sorted(set(bar_frags))
bar_gap = []
first_need = None
for bi, f0 in enumerate(bar_frags):
    f1 = bar_frags[bi+1] if bi + 1 < len(bar_frags) else NF
    need = [('c', c) for c in shared if f0 <= chunks[c]['first'] < f1]
    if f0 == 0: first_need = need; continue
    gp = gap(f0 - D); bar_gap.append(gp)
    if need: ext[gp-1].append(mk_wait_vm(need))
    pre[gp].append(I("s_barrier"))
for c in range(len(chunks)):
    if chunks[c]['private']:
        ext[gap(chunks[c]['first'] - D) - 1].append(mk_wait_vm([('c', c)]))
for g in range(4, NF, 4):
    ext[gap(g) - 1].append(mk_wait_lg([('f', f) for f in range(g, min(g+4, NF))]))
def earliest_gap(c):
    e = -1
    C = chunks[c]
    for c2 in range(c):
        B = chunks[c2]
        if B['hi'] <= C['lo'] or C['hi'] <= B['lo']: continue
        if B['private'] and C['private']: e = max(e, gap(B['last'] + 1))
        else: e = max(e, [gp for gp in bar_gap if gp >= gap(B['last'] + 1)][0] + 1)
    return e
pro_dma = []
cur = OPT['DSTART']
for c in range(len(chunks)):
    e = earliest_gap(c)
    if e < 0 and c < OPT['NPRO']:
        pro_dma.append(chunks[c]['dma']); continue
    if chunks[c]['name'].startswith('w2_') and int(chunks[c]['name'][3:]) >= OPT['W2PRE']: e = max(e, gap(phase['G6']) + OPT['W2G'])
    g0 = max(e, cur)
    span = OPT['SPAN']
    if g0 > e + 8: span = OPT['SPAN2']
    if g0 >= gap(phase['G6'] - D): span = OPT['W2S']
    seq = list(chunks[c]['dma'])
    if chunks[c]['name'] == 'wo_0_0': seq = [I(f"v_accvgpr_read_b32 v{vWOD+i}, a{aST+i}") for i in range(4)] + seq; wo_first_gap = g0
    if chunks[c]['name'] == 'w2_0': seq = [I(f"v_accvgpr_read_b32 v{vW2D+i}, a{aST+4+i}") for i in range(4)] + seq
    cur = spread(seq, g0, g0 + span)
    need_gap = gap(chunks[c]['first'] - D)
    if not chunks[c]['private']: need_gap = max(gp for gp in bar_gap if gp <= need_gap)
    if OPT['LOG']: print(chunks[c]['name'], g0, cur, need_gap, 'lead', need_gap - cur, file=sys.stderr)
    assert cur < need_gap - 1, (chunks[c]['name'], cur)

seq = []
for p in range(7):
    seq += [f"s_add_u32 s{sT2}, s{sROT}, {p}", f"s_sub_u32 s{sT3}, s{sT2}, 7", f"s_min_u32 s{sT2}, s{sT2}, s{sT3}",
            f"s_lshl_b32 s{sQT+p}, s{sT2}, 7", f"s_lshl_b32 s{sT2}, s{sT2}, 16", f"s_add_u32 s{sQT+7+p}, s{sSST}, s{sT2}",
            f"s_add_u32 s{sSST}, s{sSST}, s{sSTEP}"]
spread(seq, 6, 100)
assert gap(phase['G3_8']) < wo_first_gap
assert OPT['BAR'] == 2
place([f"v_add_u32 v{vTP+i}, s{sWB}, v{vTR+i}" for i in range(12)], gap(phase['G4'] + 8), gap(phase['G4'] + 40))

def hconv(pp):
    s = []
    for kq in range(2):
        for tg in range(2):
            b = accp(pp, kq, tg, 0)
            if not OPT['PKR']:
                for r in range(8): s.append(f"v_max_f32 v{b+r}, 0, v{b+r}")
            for r in range(4): s.append(f"v_cvt_pk_bf16_f32 v{b+r}, v{b+2*r}, v{b+2*r+1}")
            if OPT['PKR']:
                for r in range(4): s.append(f"v_pk_max_i16 v{b+r}, v{b+r}, 0")
            if not OPT['NOHST']:
                s.append(I(f"buffer_store_dwordx4 {v(b,4)}, v{vHS}, {srd(sWS)}, s{sHST} offen offset:{kq*2048 + tg*1024} {OPT['HST']}", tag='hst'))
    if pp == 4: s.append(f"s_add_u32 s{sHST}, s{sHST}, 4096")
    return s
place(hconv(4), gap(phase['P5']) + 4, gap(phase['G2_0']) - 4)
def qconv(pp):
    s = []
    for kq in range(2):
        for tg in range(2):
            b = accp(pp, kq, tg, 0)
            s += [f"v_cvt_pk_bf16_f32 v{b+r}, v{b+2*r}, v{b+2*r+1}" for r in range(4)]
            s += [f"v_permlane32_swap_b32 v{b}, v{b+2}", f"v_permlane32_swap_b32 v{b+1}, v{b+3}",
                  f"v_permlane16_swap_b32 v{b}, v{b+2}", f"v_permlane16_swap_b32 v{b+1}, v{b+3}"]
            s += [f"v_accvgpr_write_b32 a{qf(2*pp+kq, tg)+r}, v{b+r}" for r in range(4)]
    return s
for pp in range(4):
    g0 = gap(phase[f'P{pp+1}'])
    place(qconv(pp), g0 + 4, g0 + 2*56 - 4)

def allred(r, t, op):
    return [f"v_mov_b32 v{t}, v{r}", f"v_permlane32_swap_b32 v{r}, v{t}", f"{op} v{r}, v{r}, v{t}",
            f"v_mov_b32 v{t}, v{r}", f"v_permlane16_swap_b32 v{r}, v{t}", f"{op} v{r}, v{r}, v{t}"]
def interleave(*seqs):
    out = []
    for k in range(max(len(s) for s in seqs)):
        for s in seqs:
            if k < len(s): out.append(s[k])
    return out
def svals(st): return [Sreg(st, tg, kt) + r for tg in range(2) for kt in range(2) for r in range(4)]
g0 = gap(phase['G2_0'])
seqs = []
for tg in range(2):
    b = Sreg(0, tg, 0); m = vM + 2*tg; t = m + 1
    s = [f"v_max3_f32 v{m}, v{b}, v{b+1}, v{b+2}", f"v_max_f32 v{m}, v{m}, v{b+3}"] + allred(m, t, "v_max_f32")
    s += [f"v_sub_f32 v{vC+4*tg+r}, 0, v{m}" for r in range(4)]
    seqs.append(s)
seq = interleave(*seqs) + [f"v_mov_b32 v{vLS}, 0", f"v_mov_b32 v{vLS+1}, 0"]
gm = place(seq, g0 + 19, g0 + 31)
def sm_seq(st, sub):
    s = []
    vals = svals(st)
    for k_, r in enumerate(vals):
        tg = k_ // 8
        if sub: s.append(f"v_add_f32 v{r}, v{r}, v{vC+4*tg}")
        s.append(f"v_exp_f32 v{r}, v{r}")
        if k_ % 2 == 1 and k_ >= 3:
            kk = k_ - 3
            s.append(f"v_cvt_pk_bf16_f32 v{Preg(st, kk//8) + (kk % 8)//2}, v{vals[kk]}, v{vals[kk+1]}")
    s.append(f"v_cvt_pk_bf16_f32 v{Preg(st, 1) + 3}, v{vals[14]}, v{vals[15]}")
    return s
def add_seq(st):
    vals = svals(st)
    return interleave([f"v_add_f32 v{vLS}, v{vLS}, v{r}" for r in vals[:8]], [f"v_add_f32 v{vLS+1}, v{vLS+1}, v{r}" for r in vals[8:]])
for st in range(16):
    g3 = gap(phase[f'G3_{st}'])
    if st == 0:
        ge = place(sm_seq(st, True), gap(phase['G2_1']) + 3, g3 - 1)
    elif st < 15:
        gs = gap(phase[f'G2_{st+1}'] - D)
        ge = place(sm_seq(st, False), gs, g3 - 2)
    else:
        ge = place(sm_seq(st, False), gap(phase['G3_14']) + 4, g3 - 2)
    lim = gap(phase[f'G2_{st+2}']) - 2 if st + 2 < 16 else g3 + 14
    ga = place(add_seq(st), ge, lim)
seqs = []
for tg in range(2):
    l = vLS + tg; t = vM + tg
    seqs.append(allred(l, t, "v_add_f32") + [f"v_rcp_f32 v{vRC+tg}, v{l}"])
seq = interleave(*seqs) + [f"v_add_f32 v{vM}, v{vLS}, v{vLS+1}", f"s_mov_b32 s{sT0}, {hx(f2u(2.0**24 if not OPT['FORCEFB'] else 0.5))}", f"v_cmp_ngt_f32 vcc, s{sT0}, v{vM}"]
place(seq, ga, gap(phase['G4']) - 1)

hc = hconv(5)
n3 = 3*len(hc)//4
place(hc[:n3], gap(phase['G2_0']) + 3, gap(phase['G2_0']) + 19)
gend = place(hc[n3:], gap(phase['G3_0']), gap(phase['G3_0']) + 16)
assert accp(5, 1, 1, 0) >= Oreg(10, 0)
hb = [gp for gp in bar_gap if gp > gend + OPT['HSIG']][0]
ext[hb-1].append(mk_wait_vm(['hst']))
sig = [I(f"s_cmp_lg_u32 s{sW}, 0"), I("s_cbranch_scc1 L_nosig"), I(f"s_lshl_b32 s{sT0}, s{sT}, 4"), I(f"v_mov_b32 v{vPOLL}, s{sT0}"),
       I("s_mov_b64 exec, 1"), I(f"global_atomic_add v{vPOLL}, v{vONE}, {DBGP} sc1"), I("s_mov_b64 exec, -1"), I("L_nosig:")]
sig[5].cls = 'misc'
ext[hb+1] += sig

def dump(regs_list):
    r = [I("s_nop 15"), I(f"s_lshl_b32 s{sT0}, s{sT}, 4"), I(f"s_add_u32 s{sT0}, s{sT0}, s{sHD}"),
         I(f"s_lshl_b32 s{sT0}, s{sT0}, 2"), I(f"s_add_u32 s{sT0}, s{sT0}, s{sW}"),
         I(f"s_mul_i32 s{sT0}, s{sT0}, {32*1024}"), I(f"s_add_u32 s{sT0}, s{sT0}, {hx(WS_DBG)}")]
    for reg in regs_list:
        r.append(I(f"buffer_store_dwordx4 {reg}, v{vL16}, {srd(sWS)}, s{sT0} offen"))
        r.append(I(f"s_add_u32 s{sT0}, s{sT0}, 1024"))
    r.append(I("s_nop 3"))
    return r
def ocvt(ks): return [f"v_cvt_pk_bf16_f32 v{Opk(ks, tg)+r}, v{Opk(ks, tg)+2*r}, v{Opk(ks, tg)+2*r+1}" for tg in range(2) for r in range(4)]
NEARLY = OPT['OEARLY']
g15 = gap(phase['G3_15'])
for ks in range(NEARLY): place(ocvt(ks), g15 + 4*ks + 8, gap(phase['G4']) - 1)
b = stamp_ins('attn_done') + [I("s_cbranch_vccnz L_exact")]
for ks in range(NEARLY, 8): b += [I(t_) for t_ in ocvt(ks)]
b.append(I("L_exact_ret:"))
if OPT['DUMP'] == 'o': b += dump([v(Opk(ks, tg), 4) for ks in range(8) for tg in range(2)])
if OPT['DUMP'] == 'q': b += dump([a(qf(ks, tg), 4) for ks in range(8) for tg in range(2)])
b += stamp_ins('G4')
blk[phase['G4']] = b

def sconv(p, u):
    s = []
    for tg in range(2):
        b = acc4(p, u, tg); d = acc4(p, u & ~1, tg) + 2*(u & 1)
        s += [f"v_mul_f32 v{b+r}, v{vRC + tg}, v{b+r}" for r in range(4)]
        s += [f"v_cvt_pk_bf16_f32 v{d}, v{b}, v{b+1}", f"v_cvt_pk_bf16_f32 v{d+1}, v{b+2}, v{b+3}"]
        if u & 1:
            if (u, tg) != (1, 0): s.append(f"s_add_u32 s{sQT+7+p}, s{sQT+7+p}, 16384")
            if not OPT['NOSST']: s.append(I(f"buffer_store_dwordx4 {v(acc4(p, u & ~1, tg),4)}, v{vL16}, {srd(sWS)}, s{sQT+7+p} offen {OPT['SST']}", tag=('sst', p)))
    return s
g4 = gap(phase['G4'])
for p in range(7):
    for u in range(4):
        g0 = g4 + 64*p + 16*(u+1)
        if u == 3 and p < 6: gl = place(sconv(p, u), g0 + 3, g0 + 28)
        else: gl = place(sconv(p, u), g0 + 3, g0 + (19 if (p, u) != (6, 3) else 10))
last_store_gap = gl
hs = OPT['HSTEP']
gp0 = gap(phase[f'G3_{hs-1}']) - 30
place([f"s_lshl_b32 s{sT0}, s{sTC}, 4", f"v_mov_b32 v{vPOLL}, s{sT0}", I(f"global_load_dword v{vPOLL}, v{vPOLL}, {DBGP} sc1", tag='pollh'),
       f"v_add_u32 v{vHS}, s{sCOOB}, v{vL16}"], gp0, gp0 + 24)
gp1 = gap(phase[f'G3_{hs}'])
ext[gp1] += [mk_wait_vm(['pollh']), I(f"v_cmp_gt_u32 vcc, 16, v{vPOLL}"), I("s_cbranch_vccnz L_spinh"), I("L_spinh_ret:")]
def hloads(k0, k1):
    s = []
    for kk in range(k0, k1, 2):
        for rl in range(2):
            s.append(f"s_add_u32 s{sT0}, s{sHLD}, {rl*56*2048 + kk*2048}")
            for k2 in range(2):
                for tg in range(2):
                    s.append(I(f"buffer_load_dwordx4 {hreg(kk+k2, rl*2+tg)}, v{vHS}, {srd(sWS)}, s{sT0} offen offset:{k2*2048 + tg*1024} {OPT['HLD']}", tag='hld'))
    return s
if not OPT['NOHLD']:
    spread(hloads(0, 8), gap(phase[f"G3_{hs+OPT['HPF']}"]) + 2, gap(phase['G3_15']) - OPT['HEND'])
    spread(hloads(8, 14), g4 + OPT['H2A'], g4 + OPT['H2B'])
g6 = gap(phase['G6'])
vFV = 120
def greg(rl, sl):
    i = sl*2 + rl
    if i < 16: return v(Opk(0, 0) + 8*i, 4)
    return a(aH + (i - 16)*4, 4)
def gloads(s0, s1, va):
    s = []
    for sq in range(s0, s1, 2):
        for rl in range(2):
            s.append(I(f"s_add_u32 s{sT1}, s{sSG}, {rl*2*16384 + sq*1024}"))
            for sl in range(sq, sq+2):
                if not OPT['NOG']: s.append(I(f"buffer_load_dwordx4 {greg(rl, sl)}, v{va}, {srd(sWS)}, s{sT1} offen offset:{(sl-sq)*1024} {OPT['GLD']}", tag=('g', rl, sl)))
    return s
F0 = OPT['F0']
sPL = 32
sMISS = 18
place([f"v_mov_b32 v{vFV}, 1", f"v_mov_b32 v{vFV+1}, 3", f"v_and_b32 v{vFV+3}, 15, v0"], g4 + 100, g4 + 200)
def signal(k, n): return [mk_wait_vm([('sst', p) for p in range(n)]), I(f"buffer_store_byte v{vFV+k}, v{vZ}, {srd(sWS)}, s{sFLG} offen sc1", tag='flag')]
spoll = I(f"s_buffer_load_dwordx4 s[{sPL}:{sPL+3}], {srd(sWS)}, s{sFLP} glc"); spoll.cls = 'misc'
VPOLL = f"buffer_load_ubyte v{vPOLL}, v{vFV+3}, {srd(sWS)}, s{sFLP} offen sc1"
if OPT['WB']:
    def signal(k, n, gp):
        ext[gp - OPT['WBD']] += [mk_wait_vm([('sst', p) for p in range(n)]), I("buffer_wbl2 sc1", tag=('wb', k))] + stamp_ins(f'wb{k}')
        return [mk_wait_vm([('wb', k)]), I(f"buffer_store_byte v{vFV+k}, v{vZ}, {srd(sWS)}, s{sFLG} offen sc1", tag='flag')]
else:
    signal_ = signal
    def signal(k, n, gp): return signal_(k, n)
ext[g4 + OPT['SA']] += signal(0, F0, g4 + OPT['SA']) + stamp_ins('sigA')
ext[g4 + OPT['PA']] += [spoll]
sg = g6 + OPT['SC']
ext[sg] += signal(1, 7, sg) + stamp_ins('st_done') + [I(f"s_cmp_ge_u32 s{sPC}, 14"), I("s_cbranch_scc1 " + ("L_fin" if OPT['STAMP'] == 3 else "L_end"))]
assert sg > bar_gap[-1] and sg > last_store_gap
ext[g6 + OPT['CA']] += stamp_ins('pre_c0') + [I(t_) for t_ in (
    "s_waitcnt lgkmcnt(0)", f"s_and_b64 s[{sPL}:{sPL+1}], s[{sPL}:{sPL+1}], s[{sPL+2}:{sPL+3}]", f"s_and_b32 s{sPL}, s{sPL}, s{sPL+1}",
    f"s_and_b32 s{sPL}, s{sPL}, 0x01010101", f"s_cmp_eq_u32 s{sPL}, 0x01010101", f"s_cselect_b32 s{sMISS}, 0, {hx(OOB)}",
    f"v_add_u32 v{vFV+2}, s{sMISS}, v{vHS}")] + stamp_ins('chk0')
spread(gloads(0, 2*F0, vFV+2), g6 + OPT['CA'] + 1, g6 + OPT['LA'])
ext[g6 + OPT['PB']] += [I(VPOLL, tag='poll')]

vXF = 68
vAD = 125
XK = [k_ for k_ in range(4, 10) if [c['lo'] for c in chunks if c['name'] == f'w2_{k_}'][0] >= 4*SLOT][0]
XS = [c['lo'] for c in chunks if c['name'] == f'w2_{XK}'][0]
gx_ = max(g6 + 16*(XK + 1), cur + 1, g6 + OPT['XG'])
gx2 = place([f"v_accvgpr_read_b32 v{vAD}, a{aST+8}", f"s_add_u32 m0, s{sWB}, {XS}", f"s_movk_i32 s{sSV0}, {8*896 - 1024}", f"s_movk_i32 s{sSV1}, {8*896}",
       I(f"buffer_load_dwordx4 v{vAD}, {srd(sX)}, 0 offen lds", tag='xf'), I(f"buffer_load_dwordx4 v{vAD}, {srd(sX)}, s{sSV0} offen offset:1024 lds", tag='xf'),
       f"v_and_b32 v{vT3}, 15, v0", f"v_lshlrev_b32 v{vT3}, 7, v{vT3}", f"v_lshrrev_b32 v{vT4}, 4, v0", f"v_lshl_add_u32 v{vT3}, v{vT4}, 3, v{vT3}",
       f"s_add_u32 s{sSV2}, s{sWB}, {XS}", f"v_add_u32 v{vT3}, s{sSV2}, v{vT3}", f"v_lshrrev_b32 v{vT4}, 3, v0", f"v_lshl_add_u32 v{vT4}, v{vT4}, 4, v{vL16}", f"v_add_u32 v{vT4}, s{sSV2}, v{vT4}",
       f"v_and_b32 v{vPF}, 15, v0", f"v_lshl_add_u32 v{vPF}, v{vPF}, 4, v{vT3}"], gx_, gx_ + 30)
HX = OPT['HX']; NHG = 16 // HX; NT = 32 // HX
npf = [0]
def pf_addr(nlines, lines_per_row, pitch, k, dst, idx_sgpr, nshare):
    per = nlines // nshare
    s = [f"s_lshl_b32 s{sSO2}, s{sW}, 6", f"s_add_u32 s{sSO2}, s{sSO2}, {k*256}", f"v_add_u32 v{dst}, s{sSO2}, v0",
         f"v_min_u32 v{dst}, {per-1}, v{dst}", f"s_mul_i32 s{sSO2}, s{idx_sgpr}, {per}", f"v_add_u32 v{dst}, s{sSO2}, v{dst}"]
    if lines_per_row is None:
        s += [f"v_lshlrev_b32 v{dst}, 7, v{dst}"]
    else:
        sh = lg(lines_per_row)
        s += [f"v_and_b32 v{vPF}, {lines_per_row-1}, v{dst}", f"v_lshrrev_b32 v{dst}, {sh}, v{dst}",
              f"v_mul_u32_u24 v{dst}, {pitch}, v{dst}", f"v_lshl_add_u32 v{dst}, v{vPF}, 7, v{dst}"]
    return s
def pf_load(srd_b, dst):
    npf[0] += 1
    return I(f"buffer_load_dword a{aST + 10 + npf[0] % 6}, v{dst}, {srd(srd_b)}, 0 offen {OPT['PPF']}", tag='pf')
def pf_seq(srd_b, nlines, lines_per_row, pitch, idx, nshare):
    s = []
    for k in range((nlines // nshare + 255) // 256):
        s += pf_addr(nlines, lines_per_row, pitch, k, vPF+1, idx, nshare) + [pf_load(srd_b, vPF+1)]
    return s
vLQ = 26
def pf_pieces(srd_b, per, unit, idx, extra_base=None, pol='', rot=False):
    setup = [f"s_mul_i32 s{sSO2}, s{idx}, {per}", f"v_add_u32 v{vPF+1}, s{sSO2}, v{vLQ}", f"v_mul_u32_u24 v{vPF+1}, {unit}, v{vPF+1}"]
    if extra_base is not None: setup.append(f"v_add_u32 v{vPF+1}, s{extra_base}, v{vPF+1}")
    pcs = []
    for k in range((per + 63)//64):
        npf[0] += 1
        n_ = (per + 63)//64
        if rot and k == 0: so_ = [f"s_lshr_b32 s{sSO2}, s{sTC}, 1", f"s_sub_u32 s{sCNT}, s{sSO2}, {n_}", f"s_min_u32 s{sSO2}, s{sSO2}, s{sCNT}", f"s_mul_i32 s{sSO2}, s{sSO2}, {64*unit}"]
        elif rot: so_ = [f"s_add_u32 s{sSO2}, s{sSO2}, {64*unit}", f"s_sub_u32 s{sCNT}, s{sSO2}, {n_*64*unit}", f"s_min_u32 s{sSO2}, s{sSO2}, s{sCNT}"]
        else: so_ = [f"s_mov_b32 s{sSO2}, {k*64*unit}"]
        pcs.append(so_ + [I(f"buffer_load_dword a{aST + 9 + npf[0] % 7}, v{vPF+1}, {srd(srd_b)}, s{sSO2} offen {pol}", tag='pf')])
    return setup, pcs
def pf_run(streams, g0, g1):
    items = []
    for st_ in streams:
        su, pcs = st_
        for k, p_ in enumerate(pcs): items.append((su if k == 0 else []) + p_)
    n = len(items)
    for k, it_ in enumerate(items):
        lo = g0 + (k*(g1-g0))//n
        place(it_, lo, lo + 24)
if OPT['PF']:
    place([f"v_lshrrev_b32 v{vLQ}, 2, v0", f"s_lshl_b32 s{sSO2}, s{sW}, 4", f"v_add_u32 v{vLQ}, s{sSO2}, v{vLQ}"], 100, 130)
    if not OPT['BIG'] & 2: pf_run([pf_pieces(sKK, 2048//(2*NT), 128, sKVI, pol=OPT['PPF']), pf_pieces(sVV, 2048//(2*NT), 128, sKVI, pol=OPT['PPF'])], OPT['PFG'], gap(phase['P4']))
    if not OPT['NOPF2'] & 1: pf_run([pf_pieces(sWO, 1792//NT, 128, sTL), pf_pieces(sW2, 448, 896, sW2I, rot=OPT['W2ROT'])], gap(phase[f"G3_{OPT['PF0']}"]), gp1 if OPT['PF1'] == 0 else gap(phase[f"G3_{OPT['PF1']}"]))
    vPF += -20
    sSO2 = sT3
    if not OPT['NOPF2'] & 2: pf_run([pf_pieces(sWS, 256, 128, sCC, sHPF, 'sc1')], gp1 + 2, gap(phase[f"G3_{hs+OPT['HPF']}"]) - 20)
    vPF += 20
    sSO2 = 93

if OPT['TLB']:
    gt = gap(phase[OPT['TLBP']])
    seq = []
    if OPT['TLB'] & 1: seq += [f"v_accvgpr_read_b32 v{vT1}, a{aST+8}", f"v_readfirstlane_b32 s{sT2}, v{vT1}", "s_nop 0", "s_nop 0", I(f"buffer_load_dword a{aST+9}, v{vZ}, {srd(sOUT)}, s{sT2} offen", tag='pf')]
    if OPT['TLB'] & 2: seq += [I(f"buffer_load_dword a{aST+9}, v{vZ}, {srd(sWS)}, s{sQT+7} offen sc1", tag='pf')]
    if OPT['TLB'] & 4: seq += [I(f"buffer_load_dword a{aST+9}, v{vZ}, {srd(sWS)}, s{sSG} offen sc1", tag='pf'), ]
    spread(seq, gt, gt + 40)
    if OPT['TLB'] & 8: place([I(f"buffer_load_dword a{aST+9}, v{vZ}, {srd(sWS)}, s{sHST} offen sc1", tag='pf')], gap(phase['P3']), gap(phase['P3']) + 20)
if OPT['FINE'] == 1:
    for p in range(1, 7): phase[f'G4p{p}'] = phase['G4'] + 32*p; blk[phase[f'G4p{p}']] = stamp_ins(f'G4p{p}')
    for kk in range(2, 14, 2): phase[f'G6k{kk}'] = phase['G6'] + 4*kk; blk[phase[f'G6k{kk}']] = stamp_ins(f'G6k{kk}')
if OPT['FINE'] == 2:
    for nm in ['P1', 'P3', 'P5'] + [f'G2_{s_}' for s_ in range(1, 16) if s_ % 4] + ['G3_14', 'G3_15']:
        blk[phase[nm]] = stamp_ins(nm)
if OPT['STAMP'] or OPT['WAITAT']:
    for nm in ('P0', 'P2', 'P4', 'G2_0', 'G2_4', 'G2_8', 'G2_12', 'G6'):
        blk.setdefault(phase[nm], [])
        blk[phase[nm]] = stamp_ins(nm) + blk[phase[nm]]

E(f"""
s_cmp_ge_u32 s2, 256
s_cbranch_scc1 L_end
s_load_dwordx16 s[4:19], s[0:1], 0
s_load_dwordx4 s[20:23], s[0:1], 64
s_load_dwordx2 s[24:25], s[0:1], 80
""")
if OPT['STAMP'] or OPT['WAITAT']: E("s_memtime s[98:99]\ns_memrealtime s[100:101]")
E(f"""
v_lshrrev_b32 v{vT0}, 6, v0
v_and_b32 v0, 63, v0
s_and_b32 s{sT0}, s2, 7
v_readfirstlane_b32 s{sW}, v{vT0}
s_lshr_b32 s{sT1}, s2, 3
s_and_b32 s{sT2}, s{sT0}, {NHG-1}
s_lshl_b32 s{sT2}, s{sT2}, {lg(HX)}
s_and_b32 s{sHD}, s{sT1}, {HX-1}
s_add_u32 s{sHD}, s{sHD}, s{sT2}
s_lshr_b32 s{sT2}, s{sT0}, {lg(NHG)}
s_lshl_b32 s{sT2}, s{sT2}, {lg(NT)}
s_lshr_b32 s{sTL}, s{sT1}, {lg(HX)}
s_add_u32 s{sT}, s{sTL}, s{sT2}
s_lshl_b32 s{sWB}, s{sW}, 12
""")
CODE_LINES = 512
E(f"s_lshr_b32 s{sCNT}, s2, 3")
for t_ in pf_addr(CODE_LINES, None, 0, 0, vR+80, sCNT, 32): E(t_)
E(f"""
s_getpc_b64 s[26:27]
L_pc:
global_load_dword v{vR+90}, v{vR+80}, s[26:27]
""")
E(f"""
v_lshrrev_b32 v{vT3}, 3, v0
v_and_b32 v{vT4}, 7, v0
v_lshrrev_b32 v{vT1}, 1, v{vT3}
v_xor_b32 v{vT1}, v{vT1}, v{vT4}
v_lshlrev_b32 v{vT1}, 4, v{vT1}
v_xor_b32 v{vT2}, 64, v{vT1}
s_lshl_b32 s{sT1}, s{sT}, 2
s_add_u32 s{sT1}, s{sT1}, s{sW}
s_mul_i32 s{sT1}, s{sT1}, {32*896}
v_mul_u32_u24 v{vT0}, 896, v{vT3}
v_add_u32 v{vT0}, s{sT1}, v{vT0}
v_add_u32 v{vXD}, v{vT0}, v{vT1}
v_add_u32 v{vXD+1}, v{vT0}, v{vT2}
v_add_u32 v{vXD+2}, {2*6144}, v{vXD}
v_add_u32 v{vXD+3}, {3*6144}, v{vXD+1}
v_add_u32 v{vXD+1}, 6144, v{vXD+1}
s_mov_b32 m0, s{sWB}
s_mov_b32 s{sSO}, 0
v_min_u32 v{vR+82}, 13, v0
v_subrev_u32 v{vR+83}, 7, v{vR+82}
v_min_u32 v{vR+83}, v{vR+83}, v{vR+82}
v_sub_u32 v{vR+82}, v{vR+82}, v{vR+83}
v_lshlrev_b32 v{vR+82}, 11, v{vR+82}
v_lshl_add_u32 v{vR+82}, v{vR+83}, 7, v{vR+82}
s_mul_i32 s{sT2}, s{sHD}, 896
s_add_u32 s{sT2}, s{sT2}, s{sT1}
s_mov_b32 s{sX+2}, {2048*896}
s_mov_b32 s{sX+3}, 0x00020000
s_waitcnt lgkmcnt(0)
s_mov_b32 s{sX}, s4
s_mov_b32 s{sX+1}, s5
""")
PST('karg')
def mk_srd(b, plo, off_sgpr, size):
    if off_sgpr is None:
        E(f"s_mov_b32 s{b}, s{plo}\ns_mov_b32 s{b+1}, s{plo+1}")
    else:
        E(f"s_add_u32 s{b}, s{plo}, s{off_sgpr}\ns_addc_u32 s{b+1}, s{plo+1}, 0")
    E(f"s_mov_b32 s{b+2}, {size}\ns_mov_b32 s{b+3}, 0x00020000")
xdma = []
for tg in range(2):
    for q in range(7):
        if q or tg:
            xdma += [I(f"s_add_u32 m0, s{sWB}, {q*SLOT}"), I(f"s_movk_i32 s{sSO}, {q*128}")]
        for rb in (2*tg, 2*tg+1):
            xdma.append(I(f"buffer_load_dwordx4 v{vXD+rb}, {srd(sX)}, s{sSO} offen offset:{rb*1024} {OPT['PX']} lds", tag=('x', tg, q)))
def xissue(n):
    while n > 0 and xdma:
        i_ = xdma.pop(0); P.ins.append(i_)
        if i_.cls == 'vmem': n -= 1
if OPT['XPF']: E(f"buffer_load_dword a{aST+9}, v{vR+82}, {srd(sX)}, s{sT2} offen", tag='pf')
xissue(OPT['XFIRST'])
E(f"s_lshl_b32 s{sT0}, s{sHD}, 9\ns_sub_u32 s{sT2}, {448*8192}, s{sT0}")
mk_srd(sWQ, 10, sT0, f"s{sT2}")
wqpf = [I(t_) if isinstance(t_, str) else t_ for t_ in pf_seq(sWQ, 448*OPT['WQP'], OPT['WQP'], 8192, sTL, NT)] if OPT['PF'] and OPT['WQP'] else []
if OPT['WQE'] == 1: P.ins += wqpf; wqpf = []
else: P.ins += wqpf[:-1]; wqpf = wqpf[-1:]
xissue(OPT['XSEC'])
PST('x_first')
mk_srd(sOUT, 20, None, 2048*896)
E(f"""
s_lshl_b32 s{sT0}, s{sW}, 7
v_lshlrev_b32 v{vKD}, 9, v{vT3}
v_add_u32 v{vVD}, s{sT0}, v{vKD}
v_add_u32 v{vKD}, v{vVD}, v{vT1}
v_add_u32 v{vKD+1}, v{vVD}, v{vT2}
v_add_u32 v{vKD+2}, {2*3072}, v{vKD}
v_add_u32 v{vKD+3}, {3*3072}, v{vKD+1}
v_add_u32 v{vKD+1}, 3072, v{vKD+1}
v_and_b32 v{vT0}, 6, v{vT3}
v_xor_b32 v{vT0}, v{vT0}, v{vT4}
v_lshlrev_b32 v{vT0}, 4, v{vT0}
v_add_u32 v{vVD}, v{vVD}, v{vT0}
""")
for rb in range(1, 4): E(f"v_add_u32 v{vVD+rb}, {3072*rb}, v{vVD}")
E(f"""
v_and_b32 v{vT1}, 4, v{vT3}
v_add_u32 v{vT1}, v{vT1}, v{vT3}
v_lshl_add_u32 v{vWQ}, v{vT1}, 13, v{vT0}
v_mul_u32_u24 v{vT1}, 3584, v{vT1}
v_add_u32 v{vW1D}, v{vT1}, v{vT0}
""")
for rb in range(1, 4):
    rr = 16*(rb & 1) + 4*(rb >> 1)
    E(f"v_add_u32 v{vW1D+rb}, {rr*3584 - 1024*rb}, v{vW1D}\nv_add_u32 v{vWQ+rb}, {rr*8192 - 1024*rb}, v{vWQ}")
E(f"""
s_lshl_b32 s{sT1}, s{sHD}, 8
s_sub_u32 s{sT2}, {448*3584}, s{sT1}
s_cmp_lt_u32 s{sHD}, 14
s_cselect_b32 s{sT2}, s{sT2}, 0
s_cselect_b32 s{sT1}, s{sT1}, 0
""")
mk_srd(sW1, 16, sT1, f"s{sT2}")
E(f"s_lshr_b32 s{sT0}, s{sHD}, 1\ns_lshl_b32 s{sT0}, s{sT0}, 20\ns_add_u32 s{sT0}, s{sT0}, {1536*512}")
mk_srd(sKK, 6, sT0, 262144)
mk_srd(sVV, 8, sT0, 262144)
E(f"s_mul_i32 s{sT0}, s{sHD}, {256*896}")
mk_srd(sWO, 12, sT0, 256*896)
E(f"""
s_lshr_b32 s{sPC}, s2, 3
s_and_b32 s{sPC}, s{sPC}, 15
s_cmp_ge_u32 s{sPC}, 7
s_cselect_b32 s{sT3}, 1, 0
s_mul_i32 s{sT1}, s{sT3}, 7
s_sub_u32 s{sT1}, s{sPC}, s{sT1}
s_lshl_b32 s{sT0}, s{sT1}, 7
s_sub_u32 s{sT2}, {1792*896}, s{sT0}
s_cmp_lt_u32 s{sPC}, 14
s_cselect_b32 s{sT2}, s{sT2}, 0
s_cselect_b32 s{sT0}, s{sT0}, 0
""")
mk_srd(sW2, 18, sT0, f"s{sT2}")
if OPT['WSOFF']:
    E(f"s_mov_b32 s{sT0}, {hx(OPT['WSOFF'] << 20)}")
    mk_srd(sWS, 24, sT0, WS_SIZE)
else:
    mk_srd(sWS, 24, None, WS_SIZE)
for k_, R_ in ((0, 32*8192), (2, 32*3584)):
    E(f"""
s_mul_i32 s{sW1T+k_}, s{sW}, {R_}
s_cmp_lt_u32 s{sW}, 2
s_mov_b32 s{sT2}, {hx(128 - 2*R_)}
s_cselect_b32 s{sT0}, {12*R_}, s{sT2}
s_add_u32 s{sW1T+k_+1}, s{sW1T+k_}, s{sT0}
""")
E(f"""
v_mul_u32_u24 v{vT1}, 896, v{vT3}
v_add_u32 v{vT1}, v{vT1}, v{vT0}
s_mul_i32 s{sT0}, s{sW}, {32*896}
s_mul_i32 s{sT2}, s{sW}, {448*896}
""")
for rb in range(4):
    if rb: E(f"v_add_u32 v{vT1}, 6144, v{vT1}")
    E(f"v_add_u32 v{vT2}, s{sT0}, v{vT1}\nv_accvgpr_write_b32 a{aST+rb}, v{vT2}\nv_add_u32 v{vT2}, s{sT2}, v{vT1}\nv_accvgpr_write_b32 a{aST+4+rb}, v{vT2}")
E(f"""
v_lshlrev_b32 v{vL16}, 4, v0
v_lshrrev_b32 v{vT0}, 2, v0
v_lshlrev_b32 v{vT1}, 7, v{vT0}
v_and_b32 v{vT2}, 3, v0
v_lshl_add_u32 v{vT1}, v{vT2}, 3, v{vT1}
v_bfe_u32 v{vT3}, v0, 3, 2
""")
for u in range(4):
    E(f"""
v_xor_b32 v{vT4}, {u}, v{vT3}
v_lshl_add_u32 v{vTR+u}, v{vT4}, 5, v{vT1}
v_add_u32 v{vTR+4+u}, 0x10000, v{vTR+u}
v_add_u32 v{vTR+8+u}, 0x20000, v{vTR+u}
""")
E(f"""
v_and_b32 v{vT0}, 15, v0
v_lshrrev_b32 v{vT1}, 1, v{vT0}
v_lshrrev_b32 v{vT2}, 4, v0
v_xor_b32 v{vT1}, v{vT1}, v{vT2}
v_lshlrev_b32 v{vT4}, 7, v{vT0}
v_lshl_add_u32 v{vRA}, v{vT1}, 4, v{vT4}
v_xor_b32 v{vRA+1}, 64, v{vRA}
v_add_u32 v{vRA+2}, 0x10000, v{vRA}
v_add_u32 v{vRA+3}, 0x10000, v{vRA+1}
v_add_u32 v{vRA+4}, 0x20000, v{vRA}
v_add_u32 v{vRA+5}, 0x20000, v{vRA+1}
""")
vXR = vR + 72
for i in range(4): E(f"v_add_u32 v{vXR+i}, s{sWB}, v{vRA+i}")
E(f"""
s_and_b32 s{sTC}, s2, 7
s_lshl_b32 s{sTC}, s{sTC}, 1
s_lshr_b32 s{sT0}, s2, 7
s_add_u32 s{sTC}, s{sTC}, s{sT0}
s_lshl_b32 s{sW2I}, s{sT0}, 1
s_add_u32 s{sW2I}, s{sW2I}, s{sT3}
s_lshl_b32 s{sT2}, s{sTC}, 1
s_add_u32 s{sT2}, s{sT2}, s{sT3}
s_lshl_b32 s{sT0}, s{sT2}, 2
s_add_u32 s{sT0}, s{sT0}, s{sW}
s_mul_i32 s{sT0}, s{sT0}, {16*896}
s_lshl_b32 s{sSG}, s{sT1}, 7
s_add_u32 s{sT0}, s{sT0}, s{sSG}
v_lshrrev_b32 v{vT0}, 3, v0
v_mul_u32_u24 v{vT0}, 896, v{vT0}
v_and_b32 v{vT2}, 7, v0
v_lshl_add_u32 v{vT0}, v{vT2}, 4, v{vT0}
v_add_u32 v{vT0}, s{sT0}, v{vT0}
v_accvgpr_write_b32 a{aST+8}, v{vT0}
s_lshl_b32 s{sT2}, s{sT2}, 1
s_lshr_b32 s{sT0}, s{sW}, 1
s_add_u32 s{sSG}, s{sT2}, s{sT0}
s_mul_i32 s{sSG}, s{sSG}, 7
s_add_u32 s{sSG}, s{sSG}, s{sT1}
s_lshl_b32 s{sSG}, s{sSG}, 2
s_lshl_b32 s{sT0}, s{sT0}, 4
s_lshl_b32 s{sFLP}, s{sT2}, 7
s_add_u32 s{sFLP}, s{sFLP}, s{sT0}
s_add_u32 s{sFLP}, s{sFLP}, {hx(WS_F)}
s_and_b32 s{sT0}, s{sW}, 1
s_add_u32 s{sSG}, s{sSG}, s{sT0}
s_lshl_b32 s{sSG}, s{sSG}, 14
s_mul_i32 s{sHLD}, s{sT2}, {56*2048}
s_add_u32 s{sHLD}, s{sHLD}, {hx(WS_H)}
s_cmp_lt_u32 s{sPC}, 14
s_cselect_b32 s{sCOOB}, 0, {hx(OOB)}
s_add_u32 s{sHPF}, s{sHLD}, s{sCOOB}
s_mul_i32 s{sT0}, s{sW}, {14*2048}
s_add_u32 s{sHLD}, s{sHLD}, s{sT0}
s_mov_b32 s0, s2
s_mov_b32 s{sCC}, s{sT1}
s_lshl_b32 s{sKVI}, s{sTL}, 1
s_and_b32 s{sT0}, s{sHD}, 1
s_add_u32 s{sKVI}, s{sKVI}, s{sT0}
s_lshl_b32 s{sT1}, s{sT}, 2
s_add_u32 s{sT1}, s{sT1}, s{sW}
s_lshr_b32 s{sFLG}, s{sT1}, 1
s_lshl_b32 s{sFLG}, s{sFLG}, 8
s_and_b32 s{sT2}, s{sT1}, 1
s_lshl_b32 s{sT2}, s{sT2}, 4
s_add_u32 s{sFLG}, s{sFLG}, s{sT2}
s_add_u32 s{sFLG}, s{sFLG}, s{sHD}
s_add_u32 s{sFLG}, s{sFLG}, {hx(WS_F)}
s_mul_i32 s{sHST}, s{sT1}, {56*2048}
s_min_u32 s{sT2}, s{sHD}, 13
s_lshl_b32 s{sT2}, s{sT2}, 13
s_add_u32 s{sHST}, s{sHST}, s{sT2}
s_add_u32 s{sHST}, s{sHST}, {hx(WS_H)}
s_cmp_lt_u32 s{sHD}, 14
s_cselect_b32 s{sT2}, 0, {hx(OOB)}
v_add_u32 v{vHS}, s{sT2}, v{vL16}
v_mov_b32 v{vZ}, 0
v_mov_b32 v{vONE}, 1
""")
PST('addr_done')
xissue(14 - OPT['XFIRST'] - OPT['XSEC'])
if OPT['WQE'] == 0: P.ins += wqpf; wqpf = []
PST('x_issued')
PRODUCER = len(P.ins)
E(f"""
s_lshl_b32 s{sSST}, s{sT}, 2
s_add_u32 s{sSST}, s{sSST}, s{sW}
s_mul_i32 s{sSST}, s{sSST}, {28*16384}
s_cmp_ge_u32 s{sHD}, 7
s_cselect_b32 s{sT3}, 1, 0
s_sub_u32 s{sROT}, s{sHD}, 7
s_min_u32 s{sROT}, s{sROT}, s{sHD}
s_sub_u32 s{sCNT}, s{sROT}, 7
s_min_u32 s{sROT}, s{sROT}, s{sCNT}
s_cmp_lt_u32 s{sHD}, 14
s_cselect_b32 s{sT3}, s{sT3}, s{sHD}
s_cselect_b32 s{sSTEP}, 2048, 0
s_lshl_b32 s{sT3}, s{sT3}, 10
s_add_u32 s{sSST}, s{sSST}, s{sT3}
""")
prod_ins = []
if OPT['STLB']:
    for b_, o_ in ((sKK, '0'), (sVV, '0'), (sWQ, '0'), (sWQ, f'{hx(400*8192)}')[:2], (sWO, '0'), (sW1, '0'), (sW2, '0'), (sOUT, '0'),
                   (sWS, f's{sSST}'), (sWS, f's{sHST}'), (sWS, hx(WS_F + 0x8000))):
        if o_.startswith('0x'): E(f"s_mov_b32 s{sCNT}, {o_}"); o_ = f's{sCNT}'
        i_ = I(f"s_buffer_load_dword s1, {srd(b_)}, {o_}"); i_.cls = 'smem'; i_.dst = []; P.ins.append(i_)
for s_, val in ((sM1, 0x2222222222222222), (sM2, 0xCCCCCCCCCCCCCCCC), (sM3, 0x8888888888888888), (sMD, 0xF0000F0000F0000F)):
    E(f"s_mov_b32 s{s_}, {hx(val)}\ns_mov_b32 s{s_+1}, {hx(val >> 32)}")

vONES = vR + 16
vD1 = vR + 20
vD2 = vR + 28
vLA = vR + 36
for i in range(4): E(f"v_mov_b32 v{vONES+i}, 0x3f803f80")
def rbf(r):
    return [f"v_cvt_pk_bf16_f32 v{r}, v{r}, v{r}", f"v_lshlrev_b32 v{r}, 16, v{r}"]
E(f"s_mov_b32 s{sT0}, {hx(f2u(1.0/448.0))}\ns_mov_b32 s{sT1}, {hx(f2u(1e-5))}\ns_mov_b32 s{sT2}, {hx(f2u(CSCALE))}")
if OPT['PADS']:
    E(f"""
s_mov_b64 exec, 0
s_cmp_eq_u32 s{sW}, 0
s_cbranch_scc1 L_pg0
s_cmp_eq_u32 s{sW}, 1
s_cbranch_scc1 L_pg1
s_cmp_eq_u32 s{sW}, 2
s_cbranch_scc1 L_pg2
s_branch L_pg3
.p2align 12
L_main:
s_mov_b64 exec, -1
""")
STAMP('pro_done')
vNT = vR + 44
NPRO = OPT['NPRO']
big = []
if OPT['BIG'] & 1:
    t_ = pf_seq(sWQ, 448*2, 2, 8192, sTL, NT); t_[-1] = I(t_[-1].text.replace('offen', 'offen offset:256'), tag='pf'); big += t_
    big += pf_seq(sW1, 448*2, 2, 3584, sTL, NT)
if OPT['BIG'] & 2:
    t_ = pf_seq(sKK, 2048, None, 0, sKVI, 2*NT); big += t_ + [pf_load(sVV, vPF+1)]
big = [I(t_) if isinstance(t_, str) else t_ for t_ in big]
assert len(pro_dma) == NPRO
L0N = OPT['L0N']
late = {0: [i_ for d_ in pro_dma[:L0N] for i_ in d_],
        1: [i_ for d_ in pro_dma[3:] for i_ in d_]
           + big + [I(f"buffer_store_byte v{vZ}, v{vZ}, {srd(sWS)}, s{sFLG} offen sc1", tag='hst')]}
def xreads(tg, q):
    r = [mk_wait_vm([('x', tg, q)])]
    for ks in (2*q, 2*q+1):
        ad = q*SLOT + tg*2048
        r.append(I(f"ds_read_b128 {v(xn(ks,tg),4)}, v{vXR + (ad >> 16)*2 + (ks & 1)} offset:{ad & 0xffff}", tag=('xr', tg, q)))
    return r
def stats(tg, q, fill):
    P.wait_lgkm_tag([('xr', tg, q)])
    for ks in (2*q, 2*q+1):
        X = v(xn(ks, tg), 4)
        for m_ in (mfma(v(vD1+4*tg, 4), v(vONES, 4), X, "0" if ks == 0 else v(vD1+4*tg, 4)), mfma(v(vD2+4*tg, 4), X, X, "0" if ks == 0 else v(vD2+4*tg, 4))):
            E(m_)
            t_ = 0
            while fill and t_ + cost(fill[0]) <= 12:
                t_ += cost(fill[0]); P.ins.append(fill.pop(0))
def scalars(tg):
    d = vD2 + 4*tg; m = vD1 + 4*tg; t = m + 1; L = vLA + 4*tg
    s = [f"v_cndmask_b32 v{d}, v{d}, v{d+1}, s[{sM1}:{sM1+1}]",
         f"v_cndmask_b32 v{d+2}, v{d+2}, v{d+3}, s[{sM3}:{sM3+1}]",
         f"v_mul_f32 v{m}, s{sT0}, v{m}",
         f"v_cndmask_b32 v{d}, v{d}, v{d+2}, s[{sM2}:{sM2+1}]",
         f"v_cndmask_b32 v{d}, 0, v{d}, s[{sMD}:{sMD+1}]"]
    s += allred(d, t, "v_add_f32")
    s += [f"v_mul_f32 v{d}, s{sT0}, v{d}",
          f"v_fma_f32 v{d}, -v{m}, v{m}, v{d}",
          f"v_max_f32 v{d}, 0, v{d}"]
    s += interleave(rbf(m), rbf(d))
    s += [f"v_add_f32 v{d}, s{sT1}, v{d}"] + rbf(d) + [f"v_sqrt_f32 v{d}, v{d}"] + rbf(d)
    s += [f"v_rcp_f32 v{d}, v{d}", f"v_mul_f32 v{d}, s{sT2}, v{d}",
          f"v_cvt_pk_bf16_f32 v{d}, v{d}, v{d}",
          f"v_and_b32 v{L}, 0xffff, v{d}", f"v_lshlrev_b32 v{L+1}, 16, v{d}",
          f"v_mul_f32 v{L+2}, -v{m}, v{L+1}"]
    for t_ in s: E(t_)
def normalize(tg, side):
    L = vLA + 4*tg; k = 0; pend = []
    for ks in range(14):
        for r in range(4):
            x_ = xn(ks, tg) + r
            t = vNT + 2*(k % 8); k += 1
            E(f"v_dot2_f32_bf16 v{t}, v{x_}, v{L}, v{L+2}\nv_dot2_f32_bf16 v{t+1}, v{x_}, v{L+1}, v{L+2}")
            pend.append(f"v_cvt_pk_bf16_f32 v{x_}, v{t}, v{t+1}")
            if len(pend) > 2: E(pend.pop(0))
            P.ins += side.get(k, [])
    for t_ in pend: E(t_)
for q in range(7):
    P.ins += xreads(0, q)
    if q in (0, 3, 6): PST(f'w0{q}')
    xissue(2)
    if q > 1: stats(0, q-2, [])
fill = wqpf + late[0]
stats(0, 5, fill); stats(0, 6, fill)
P.ins += fill
STAMP('x0_arrived')
scalars(0)
X1 = OPT['X1']
normalize(0, {X1 + 4*q: xreads(1, q) for q in range(7)})
PST('ln0_done')
fill = [i_ for d_ in pro_dma[L0N:3] for i_ in d_]
for q in range(7):
    if q == 1: P.wait_lgkm_tag([('xr', 1, 6)]); fill += late[1]
    stats(1, q, fill)
P.ins += fill
STAMP('x1_arrived')
scalars(1)
fr_ = [i_ for f in range(D) for i_ in frag_reads(f)]
side = {OPT['BARK']: [mk_wait_vm(first_need), I("s_barrier")]}
for k_, i_ in enumerate(fr_): side.setdefault(min(OPT['BARK'] + 1 + k_, 56), []).append(i_)
normalize(1, side)
if OPT['DUMP'] == 'xn':
    P.ins += dump([v(xn(ks, tg), 4) for ks in range(14) for tg in range(2)])

P.ins.append(mk_wait_lg([('f', f) for f in range(4)]))
est = 0
for g in range(NF):
    if g in blk: P.ins += blk[g]
    for h, m_ in enumerate(MF[g]):
        gp = G0[g] + h
        P.ins.append(I(m_))
        P.ins += pre[gp] + rds[gp] + ext[gp]
        est += max(16, gtime(pre[gp] + rds[gp] + ext[gp]))
if OPT['LOG']:
    ph = sorted((f_, n_) for n_, f_ in phase.items())
    for (f0_, n_), (f1_, _) in zip(ph, ph[1:]):
        e_ = sum(max(16, gtime(pre[q_] + rds[q_] + ext[q_])) for q_ in range(gap(f0_), gap(f1_)))
        print(f"  phase {n_}: est {e_} ideal {16*(gap(f1_)-gap(f0_))}", file=sys.stderr)
print("estimated main-stream cycles", est, "ideal", 16*NG, file=sys.stderr)

STAMP('g6_done')
def fs(t4, w_): return facc(t4, w_)
vSEL = 44
vSA = 52
STAMP('pre_c1')
P.wait_vm_tag(['poll'])
E(f"v_cmp_gt_u32 vcc, 3, v{vPOLL}\ns_cbranch_vccnz L_spin1\nL_spin1_ret:\ns_cmp_lg_u32 s{sMISS}, 0\ns_cbranch_scc1 L_redo\nL_redo_ret:")
STAMP('chk1')
gl2 = gloads(2*F0, 16, vHS)
n2 = OPT['N2']
P.ins += gl2[:n2]
E(f"""
v_add_u32 v{vT1}, s{sWB}, v{vL16}
s_lshl_b32 s{sT0}, s{sW}, 14
v_add_u32 v{vT2}, s{sT0}, v{vL16}
""")
for u in range(4):
    for t4 in range(4):
        E(f"ds_write_b128 v{vT1}, {v(facc(u, t4), 4)} offset:{t4*SLOT + u*1024}")
P.wait_vm_tag(['xf'])
for u in range(4): E(f"ds_read_b64 {v(vXF + 2*u, 2)}, v{vT3} offset:{u*32}")
E(f"""
v_mov_b32 v{vSEL}, 0
v_mov_b32 v{vSEL+1}, 0
v_mov_b32 v{vSEL+4}, 0
v_mov_b32 v{vSEL+5}, 0
v_mov_b32 v{vT0}, 0x3f80
v_mov_b32 v{vSEL+2}, 0x3f800000
s_or_b64 s[16:17], s[{sM1}:{sM1+1}], s[{sM3}:{sM3+1}]
v_cndmask_b32 v{vT0}, v{vT0}, v{vSEL+2}, s[16:17]
v_cndmask_b32 v{vT0}, 0, v{vT0}, s[{sMD}:{sMD+1}]
s_mov_b64 s[16:17], s[{sM2}:{sM2+1}]
v_cndmask_b32 v{vSEL+2}, v{vT0}, 0, s[16:17]
v_cndmask_b32 v{vSEL+3}, 0, v{vT0}, s[16:17]
s_mov_b32 s{sT0}, {hx(f2u(1.0/CSCALE))}
s_mov_b32 s{sT2}, {hx(f2u(-16.0))}
""")
E("s_waitcnt lgkmcnt(0)\ns_barrier")
for t4 in range(4):
    for w_ in range(4):
        E(f"ds_read_b128 {v(fs(t4, w_), 4)}, v{vT2} offset:{w_*4096 + t4*1024}")
def smf(rl, sl):
    r = []
    for tg in range(2):
        d = v(vSA + (rl*2+tg)*4, 4)
        r.append(mfma(d, v(vSEL + (2 if tg == 0 else 0), 4), greg(rl, sl), "0" if sl == 0 else d))
    return r
val = []
for t4 in range(4):
    b0, b1, b2, b3 = (fs(t4, w_) for w_ in range(4))
    for r in range(4): val += [f"v_add_f32 v{b0+r}, v{b0+r}, v{b1+r}", f"v_add_f32 v{b2+r}, v{b2+r}, v{b3+r}"]
    for r in range(4): val.append(f"v_add_f32 v{b0+r}, v{b0+r}, v{b2+r}")
    for r in range(4): val.append(f"v_mul_f32 v{b1+r}, s{sT2}, v{b0+r}")
    for r in range(4): val.append(f"v_exp_f32 v{b1+r}, v{b1+r}")
    for r in range(4): val.append(f"v_mul_f32 v{b0+r}, s{sT0}, v{b0+r}")
    for r in range(4): val.append(f"v_add_f32 v{b1+r}, 1.0, v{b1+r}")
    for r in range(4): val.append(f"v_rcp_f32 v{b1+r}, v{b1+r}")
    for r in range(4): val.append(f"v_mul_f32 v{b0+r}, v{b0+r}, v{b1+r}")
for t4 in range(4):
    b2 = fs(t4, 2); xr = vXF + t4*2
    val += [f"v_lshlrev_b32 v{b2}, 16, v{xr}", f"v_and_b32 v{b2+1}, 0xffff0000, v{xr}", f"v_lshlrev_b32 v{b2+2}, 16, v{xr+1}", f"v_and_b32 v{b2+3}, 0xffff0000, v{xr+1}"]
rest = gl2[n2:]
nv1 = OPT['NV1']
step = max(1, nv1 // max(1, len(rest)))
for k_ in range(nv1):
    E(val.pop(0))
    if rest and k_ % step == step - 1: P.ins.append(rest.pop(0))
P.ins += rest
E(f"s_waitcnt vmcnt({32 - 4*F0})")
ms = []
for sq in range(0, 2*F0, 2):
    for rl in range(2):
        for sl in range(sq, sq+2): ms += smf(rl, sl)
per = (len(val) + 8*F0 - 1) // (8*F0)
for m_ in ms:
    E(m_)
    for _ in range(per):
        if val: E(val.pop(0))
for t_ in val: E(t_)
STAMP('g_done')
for sq in range(2*F0, 16, 2):
    for rl in range(2):
        for sl in range(sq, sq+2):
            for m_ in smf(rl, sl): E(m_)
for u in range(4):
    b0 = fs(u, 0); b2 = fs(u, 2)
    for r in range(4): E(f"v_fma_f32 v{b0+r}, v{vSA+u*4+r}, v{b0+r}, v{b2+r}")
    E(f"v_cvt_pk_bf16_f32 v{b0}, v{b0}, v{b0+1}\nv_cvt_pk_bf16_f32 v{b0+1}, v{b0+2}, v{b0+3}")
    E(f"ds_write_b64 v{vPF}, {v(b0,2)} offset:{u*32}")
E(f"""
ds_read_b128 {v(vXF,4)}, v{vT4}
ds_read_b128 {v(vXF+4,4)}, v{vT4} offset:1152
buffer_store_dwordx4 {v(vXF,4)}, v{vAD}, {srd(sOUT)}, 0 offen {OPT['OST']}
buffer_store_dwordx4 {v(vXF+4,4)}, v{vAD}, {srd(sOUT)}, s{sSV1} offen {OPT['OST']}
""")
if OPT['WAITAT']: STAMP('end')
if OPT['STAMP']:
    STAMP('end')
    E(f"""
L_fin:
s_memrealtime s[{sSTMP}:{sSTMP+1}]
s_waitcnt lgkmcnt(0)
v_writelane_b32 v{vSTAMP}, s{sMISS}, 59
v_writelane_b32 v{vSTAMP}, s98, 60
v_writelane_b32 v{vSTAMP}, s100, 61
v_writelane_b32 v{vSTAMP}, s{sSTMP}, 62
s_lshl_b32 s{sT0}, s0, 2
s_add_u32 s{sT0}, s{sT0}, s{sW}
s_lshl_b32 s{sT0}, s{sT0}, 8
s_add_u32 s{sT0}, s{sT0}, {hx(WS_DBG)}
v_lshlrev_b32 v{vT0}, 2, v0
buffer_store_dword v{vSTAMP}, v{vT0}, {srd(sWS)}, s{sT0} offen
""")
E("L_end:\ns_endpgm")
main_ins, log, stats_ = resolve(P.ins)
print("main", stats_, file=sys.stderr)
if OPT['LOG']:
    for l in log: print("  ", l, file=sys.stderr)

Q = Prog(); E = Q.emit
SPIN_MAX = 1 << 17
def spin(label, load, want, cmp):
    E(f"""
{label}:
s_mov_b32 s{sCNT}, {SPIN_MAX}
{label}_loop:
s_sleep 1
{load}
s_waitcnt vmcnt(0)
v_cmp_{cmp}_u32 vcc, {want}, v{vPOLL}
s_sub_u32 s{sCNT}, s{sCNT}, 1
s_cmp_eq_u32 s{sCNT}, 0
s_cbranch_scc1 {label}_ret
s_cbranch_vccnz {label}_loop
s_branch {label}_ret
""")
spin("L_spinh", f"s_lshl_b32 s{sT0}, s{sTC}, 4\nv_mov_b32 v{vT0}, s{sT0}\nglobal_load_dword v{vPOLL}, v{vT0}, {DBGP} sc1", 16, "gt")
spin("L_spin1", VPOLL, 3, "gt")
E("L_redo:\ns_waitcnt vmcnt(0)")
Q.ins += gloads(0, 2*F0, vHS)
E("s_branch L_redo_ret")
MISC = [c['lo'] for c in chunks if c['name'] == 'V_15'][0]
fK, fS, fP, fA, fV, fR, fM = 44, 76, 108, 116, 117, 121, 102
E(f"""
L_exact:
s_waitcnt vmcnt(0) lgkmcnt(0)
s_nop 15
s_mov_b32 s{sSV0}, m0
v_and_b32 v{fA}, 15, v0
v_lshlrev_b32 v{fA}, 9, v{fA}
v_and_b32 v{fM}, 48, v0
v_add_u32 v{fA}, v{fA}, v{fM}
s_lshl_b32 s{sSV1}, s{sW}, 7
s_add_u32 s{sSV2}, s{sWB}, {MISC}
""")
for i in range(4):
    E(f"v_subrev_u32 v{fV+i}, s{sSV1}, v{vVD+i}\nv_add_u32 v{fR+i}, s{sSV2}, v{vTR+i}")
E(f"v_mov_b32 v{fM}, 0xff800000\nv_mov_b32 v{fM+1}, 0xff800000\ns_mov_b32 s{sSV1}, 0")
def ktile(kt, cinit):
    for ks in range(8):
        E(f"buffer_load_dwordx4 {v(fK+4*ks,4)}, v{fA}, {srd(sKK)}, s{sSV1} offen offset:{ks*64}")
    E(f"s_add_u32 s{sSV1}, s{sSV1}, 8192\ns_waitcnt vmcnt(0)")
    for ks in range(8):
        for tg in range(2):
            d = v(fS + tg*8 + kt*4, 4)
            E(mfma(d, v(fK+4*ks, 4), a(qf(ks, tg), 4), (cinit(tg) if ks == 0 else d)))
    E("s_nop 15")
E("L_exact_p1:")
ktile(0, lambda tg: "0")
for tg in range(2):
    b = fS + tg*8
    E(f"v_max3_f32 v{fM+tg}, v{fM+tg}, v{b}, v{b+1}\nv_max3_f32 v{fM+tg}, v{fM+tg}, v{b+2}, v{b+3}")
E(f"s_cmp_lt_u32 s{sSV1}, 262144\ns_cbranch_scc1 L_exact_p1")
for tg in range(2):
    for t_ in allred(fM+tg, fM+2, "v_max_f32"): E(t_)
    for r in range(4): E(f"v_sub_f32 v{vC+4*tg+r}, 0, v{fM+tg}")
for r in range(128): E(f"v_mov_b32 v{vO+r}, 0")
E(f"v_mov_b32 v{vLS}, 0\nv_mov_b32 v{vLS+1}, 0\ns_mov_b32 s{sSV1}, 0\ns_add_u32 m0, s{sWB}, {MISC}\ns_nop 3")
E("L_exact_p2:")
E(f"s_mov_b32 s{sSV2}, s{sSV1}")
ktile(0, lambda tg: v(vC+4*tg, 4))
ktile(1, lambda tg: v(vC+4*tg, 4))
for r in range(16): E(f"v_exp_f32 v{fS+r}, v{fS+r}")
for r in range(16): E(f"v_add_f32 v{vLS + r//8}, v{vLS + r//8}, v{fS+r}")
for r in range(8): E(f"v_cvt_pk_bf16_f32 v{fP+r}, v{fS+2*r}, v{fS+2*r+1}")
for cb in range(4):
    for rb in range(4):
        E(f"buffer_load_dwordx4 v{fV+rb}, {srd(sVV)}, s{sSV2} offen offset:{rb*1024} lds")
    E(f"s_add_u32 s{sSV2}, s{sSV2}, 128\ns_waitcnt vmcnt(0)")
    for u in range(4):
        E(f"ds_read_b64_tr_b16 {v(fK+4*u,2)}, v{fR+u}\nds_read_b64_tr_b16 {v(fK+4*u+2,2)}, v{fR+u} offset:2048")
    E("s_waitcnt lgkmcnt(0)")
    for u in range(4):
        for tg in range(2):
            d = v(Oreg(cb*4+u, tg), 4)
            E(mfma(d, v(fK+4*u, 4), v(fP+4*tg, 4), d))
    E("s_nop 7")
E(f"s_cmp_lt_u32 s{sSV1}, 262144\ns_cbranch_scc1 L_exact_p2")
for tg in range(2):
    for t_ in allred(vLS+tg, fM+2, "v_add_f32"): E(t_)
    E(f"v_rcp_f32 v{vRC+tg}, v{vLS+tg}")
E("s_nop 15")
for ks in range(8):
    for t_ in ocvt(ks): E(t_)
E(f"s_mov_b32 m0, s{sSV0}\ns_nop 15\ns_branch L_exact_ret")
sub_ins, log2, stats2 = resolve(Q.ins)

def sizes_of(ins):
    import subprocess, tempfile, re as re_
    body = [i_ for i_ in ins if i_.cls not in ('label', 'dir')]
    txt_ = '.amdgcn_target "amdgcn-amd-amdhsa--gfx950"\n.text\nL_any:\n' + ''.join('    ' + (re_.sub(r'L_\w+', 'L_any', i_.text) if i_.cls == 'branch' else i_.text) + '\n' for i_ in body)
    d_ = tempfile.mkdtemp()
    open(d_ + '/a.s', 'w').write(txt_)
    subprocess.run(['clang', '-x', 'assembler', '-target', 'amdgcn-amd-amdhsa', '-mcpu=gfx950', '-c', d_ + '/a.s', '-o', d_ + '/a.o'], check=True)
    out_ = subprocess.run(['llvm-objdump', '-d', '--mcpu=gfx950', d_ + '/a.o'], capture_output=True, text=True).stdout
    sz = [4*len(m_.group(1).split()) for m_ in re_.finditer(r'// [0-9A-F]+: ((?:[0-9A-F]{8} ?)+)', out_)]
    assert len(sz) == len(body), (len(sz), len(body))
    return {id(i_): s_ for i_, s_ in zip(body, sz)}
if OPT['PADS']:
    sz = sizes_of(main_ins)
    k0 = [k_ for k_, i_ in enumerate(main_ins) if i_.text == 'L_main:'][0]
    out_ = main_ins[:k0+1]; off = 0; npg = 0
    for i_ in main_ins[k0+1:]:
        if i_.cls not in ('label', 'dir'):
            lo = (npg + 1)*4096
            if off >= lo and (i_.cls == 'mfma' or off + sz[id(i_)] > lo + 56):
                assert off < lo + 64
                out_.append(I(f"L_pg{npg}:")); out_.append(I(f"s_cbranch_execz L_pgn{npg}")); off += 4; npg += 1
            off += sz[id(i_)]
        out_.append(i_)
    for i_ in out_:
        if i_.text.startswith('s_cbranch_execz L_pgn'):
            k_ = int(i_.text.split('L_pgn')[1]) + 4
            i_.text = f"s_cbranch_execz L_pg{k_}" if k_ < npg else "s_cbranch_execz L_main"
    main_ins = out_
    print("code pages", npg, "bytes after L_main", off, file=sys.stderr)
hdr = open(os.path.join(os.path.dirname(os.path.abspath(__file__)), 'header.txt')).read()
txt = hdr + f"""; @launch grid=(256,1,1) block=(256,1,1) lds={LDS_BYTES}
.amdgcn_target "amdgcn-amd-amdhsa--gfx950"
.text
.globl {NAME}_kernel
.p2align 8
.type {NAME}_kernel,@function
{NAME}_kernel:
""" + render(main_ins) + render(sub_ins) + f"""L_pad:
    s_endpgm
.if (L_pad - {"L_main" if OPT["PADS"] else "L_pc"}) < {CODE_LINES*128}
.fill (({CODE_LINES*128} - (L_pad - {"L_main" if OPT["PADS"] else "L_pc"})) / 4) + 16, 4, 0xbf810000
.endif
.section .rodata,"a"
.p2align 6
.amdhsa_kernel {NAME}_kernel
  .amdhsa_next_free_vgpr 512
  .amdhsa_next_free_sgpr 102
  .amdhsa_accum_offset 256
  .amdhsa_group_segment_fixed_size 0
  .amdhsa_kernarg_size 88
  .amdhsa_user_sgpr_count 2
  .amdhsa_user_sgpr_kernarg_segment_ptr 1
  .amdhsa_system_sgpr_workgroup_id_x 1
.end_amdhsa_kernel
"""
if OPT['STAMP']: txt += '; STAMPS ' + ' '.join(stamp_names) + '\n'
open(sys.argv[1], 'w').write(txt)
```

```python
import sys, os, math, struct
from asmlib import *

NAME = "recurrent_scan__sliding_block_cached__dense_activation_relu__prompt"
OPT = dict(D=8, NA=12, HX=2, BAR=2, STAMP=0, PST=0, DUMP='', SIGG=60, FORCEFB=0, LOG=0,
           SST='sc1', HLD='sc1', HST='sc1', GLD='sc1', NOSST=0, NOHLD=0, NOHST=0,
           PX='', PW1='', PWQ='', PKV='', PWO='', PW2='', PF=1, PPF='', OST='', WSOFF=0, HSTEP=7, XREV=0, NPRO=4, WAITAT='', WAITT=0, WAITWG=-1, PADS=1, HSIG=150, HPF=0, PF0=0, PF1=14, CHAIN=1, WB=0, WBD=60, BIG=1, DSTART=0, W2ROT=1, NOPF2=2, HEND=40, XPF=1, L0N=1, X1=28, BARK=36, BARP=2, BARA=2, BAR4=2, SPAN=30, SPAN2=20, NV1=100, PKR=0, PCH=0, TLB=1, TLBP='G2_13', XG=0, STLB=0, ST0=4, STS=40, NOG=0, NOFLAG=0, W2G=-15, W2S=8, F0=3, F1=5, L0=0, W2PRE=6, H2A=1, H2B=100, SA=240, PA=410, CA=70, LA=140, SC=30, PB=175, N2=15, G1N=10, XFIRST=4, XSEC=0, WQE=2, OEARLY=2, H2SPAN=60, PFG=170, WQP=2, FINE=0, RT=0, SIMPLE=0, SSP=0)
for a_ in sys.argv[2:]:
    k_, v_ = a_.split('=')
    OPT[k_] = v_.replace('+', ' ') if isinstance(OPT[k_], str) else int(v_)
D = OPT['D']; NA = OPT['NA']

RING_SLOTS = 10
SLOT = 16384
LDS_BYTES = 163840
WS_S = 0
WS_H = 0x1C00000
WS_F = 0x2300000
WS_DBG = 0x2400000
WS_SIZE = 0x8000000 if (OPT['DUMP'] or OPT['STAMP']) else 0x2400000
OOB = 0x7f000000
CSCALE = math.log2(math.e) / 16.0
def f2u(x): return struct.unpack('<I', struct.pack('<f', x))[0]
def hx(x): return f"0x{x & 0xffffffff:x}"

sX, sW1, sWQ, sKK, sVV, sWO, sW2, sWS, sOUT = 28, 32, 36, 40, 44, 48, 52, 56, 60
def srd(b): return f"s[{b}:{b+3}]"
sW, sHD, sT, sWB, sSO = 64, 65, 66, 67, 68
sT0, sT1, sT2, sT3 = 69, 70, 71, 3
sQT = 72
sHST, sHLD, sSST, sSG, sFLG, sFLP, sCNT, sSO2, sTL, sROT, sSTEP, sPC = 86, 87, 88, 89, 90, 91, 92, 93, 94, 95, 96, 97
sTC, sCOOB, sHPF, sW2I, sKVI, sCC = 19, 20, 21, 24, 25, 2
sW1T = 12
sM1, sM2, sM3, sMD = 4, 6, 8, 10
sSV0, sSV1, sSV2 = 12, 13, 14
sSTMP = 26
DBGP = "s[22:23]"
vL16, vHS, vT0, vT1, vT2, vT3, vT4 = 1, 2, 3, 4, 5, 6, 7
vTR = 8
vRA = 20
vPF = 26
vZ, vONE, vPOLL, vSTAMP = 28, 29, 30, 31
vWQ, vKD, vVD, vWOD, vW2D = 32, 36, 40, 32, 36
vXN = 44
vR = 156
vW1D = vR + 64
vXD = vR + 68
vO = 128
vS = 44
vP = 76
vC = 92
vLS = 100
vM = 106
vA4 = 44
vRC = 126
aF, aST, aQ, aH = 0, 48, 64, 128

def v(i, n=1): return f"v{i}" if n == 1 else f"v[{i}:{i+n-1}]"
def a(i, n=1): return f"a{i}" if n == 1 else f"a[{i}:{i+n-1}]"
def mfma(d, A, B, C): return f"v_mfma_f32_16x16x32_bf16 {d}, {A}, {B}, {C}"
def I(t, tag=None): return Ins(t, tag)
lg = lambda x: int(math.log2(x))

P = Prog()
E = P.emit

nstamp = [0]
stamp_names = []
def stamp_ins(name=''):
    if OPT['WAITAT'] and name == OPT['WAITAT']:
        return [I(t_) for t_ in ((f"s_cmp_lg_u32 s0, {OPT['WAITWG']}", "s_cbranch_scc1 L_end") if OPT['WAITWG'] >= 0 else ()) + ("L_dw:", f"s_memrealtime s[{sSTMP}:{sSTMP+1}]", "s_waitcnt lgkmcnt(0)", f"s_sub_u32 s{sSTMP}, s{sSTMP}, s100",
                                 f"s_cmp_lt_u32 s{sSTMP}, {OPT['WAITT']}", "s_cbranch_scc1 L_dw")]
    if not OPT['STAMP']: return []
    if OPT['STAMP'] == 3 and name not in ('end', 'G4', 'wb0', 'wb1', 'G6', 'st_done', 'chk0', 'chk1', 'chk2', 'sigA', 'sigB', 'g6_done', 'g_done', 'pre_c2', 'pre_c1', 'pre_c0'): return []
    if OPT['STAMP'] == 2 and name not in ('end', 'G4', 'P0', 'G2_0', 'g6_done'): return []
    n = nstamp[0]; nstamp[0] += 1; stamp_names.append(name)
    return [I(f"{'s_memrealtime' if OPT['RT'] else 's_memtime'} s[{sSTMP}:{sSTMP+1}]"), I("s_waitcnt lgkmcnt(0)"), I(f"v_writelane_b32 v{vSTAMP}, s{sSTMP}, {n}")]
def STAMP(name=''):
    P.ins += stamp_ins(name)
def PST(name):
    if OPT['PST']: STAMP(name)

frags = []
chunks = []
def add_chunk(name, lo, size, dma, private=False):
    chunks.append(dict(name=name, lo=lo, hi=lo+size, dma=dma, private=private, first=None, last=None)); return len(chunks)-1
def add_frag(kind, rs, rb, addr, mf, ch):
    frags.append(dict(kind=kind, rb=rb, rs=rs, addr=addr, mf=mf, chunk=ch))
    c = chunks[ch]
    if c['first'] is None: c['first'] = len(frags)-1
    c['last'] = len(frags)-1
def frag_reads(f):
    fr = frags[f]; A = aF + 4*(f % NA)
    def rd(op, dst, addr):
        win = addr >> 16
        return I(f"{op} {dst}, v{fr['rb'] + win*fr['rs']} offset:{addr & 0xffff}", tag=('f', f))
    if fr['kind'] == 'tr':
        return [rd("ds_read_b64_tr_b16", a(A, 2), fr['addr']), rd("ds_read_b64_tr_b16", a(A+2, 2), fr['addr'] + 2048)]
    return [rd("ds_read_b128", a(A, 4), fr['addr'])]
POL = {sW1: 'PW1', sWQ: 'PWQ', sKK: 'PKV', sVV: 'PKV', sWO: 'PWO', sW2: 'PW2'}
ring_pos = [7]
def ring_round(name, srd_b, vbase, so_text, private=False):
    slot = ring_pos[0] % RING_SLOTS; ring_pos[0] += 1
    lo = slot*SLOT
    tag = ('c', len(chunks))
    dma = [I(f"s_add_u32 m0, s{sWB}, {lo}")]
    if so_text.startswith('s') or so_text == '0': so = so_text
    elif so_text.startswith('+'):
        dma.append(I(f"s_add_u32 s{sSO}, {so_text[1:]}")); so = f"s{sSO}"
    else:
        dma.append(I(f"s_mov_b32 s{sSO}, {so_text}")); so = f"s{sSO}"
    for rb in range(4):
        dma.append(I(f"buffer_load_dwordx4 v{vbase+rb}, {srd(srd_b)}, {so} offen offset:{rb*1024} {OPT[POL[srd_b]]} lds", tag=tag))
    return add_chunk(name, lo, SLOT, dma, private)

phase = {}
def xn(ks, tg): return vXN + (ks*2 + tg)*4
def accp(pp, kq, tg, par): return vR + (pp % 2)*32 + ((kq*2 + tg)*2 + par)*4
pend_ = []
for pp in range(6):
    phase[f'P{pp}'] = len(frags)
    for ks in range(14):
        qi = 14*pp + ks
        if qi % 4 == 0:
            r_ = qi // 4
            blk_, rp = r_ // 7, r_ % 7
            R_ = 32*(8192 if blk_ < 2 else 3584); sb = sW1T + (0 if blk_ < 2 else 2); cb_ = 256 if blk_ == 1 else 0
            so_ = f"+s{sb+1}, {cb_}" if rp == 3 else f"+s{sb}, {(4*rp*R_ if rp < 3 else (4*rp-14)*R_ + 128) + cb_}"
            ch = ring_round(f"wq_{r_}", sWQ, vWQ, so_) if r_ < 14 else ring_round(f"w1_{r_-14}", sW1, vW1D, so_)
        pend_.append((ks, qi, ch))
        if OPT['PCH'] and ks % 2 == 0: continue
        for u2 in range(2):
            for u in (2*u2, 2*u2+1):
                for ks_, qi_, ch_ in pend_:
                    mf = (lambda A, pp=pp, ks=ks_, u=u: [mfma(v(accp(pp, u >> 1, tg, u & 1), 4), A, v(xn(ks, tg), 4), "0" if ks == 0 else v(accp(pp, u >> 1, tg, u & 1), 4)) for tg in range(2)])
                    add_frag('tr', 4, vTR + u, chunks[ch_]['lo'] + (qi_ % 4)*4096, mf, ch_)
        pend_ = []
def qf(kq, tg): return aQ + (kq*2 + tg)*4
def Sreg(st, tg, kt): return vS + (st % 2)*16 + tg*8 + kt*4
def Preg(st, tg): return vP + (st % 2)*8 + tg*4
def Oreg(d, tg): return vO + (((d >> 1)*2 + tg)*2 + (d & 1))*4
def G2(st):
    phase[f'G2_{st}'] = len(frags)
    ch = ring_round(f"K_{st}", sKK, vKD, str(st*16384))
    order = [(kt, ks) for kt in range(2) for ks in range(8)]
    for kt, ks in order:
        def mf(A, kt=kt, ks=ks):
            r = []
            for tg in range(2):
                c = v(Sreg(st, tg, kt), 4)
                if ks == 0: c = "0" if st < 1 else v(vC + 4*tg, 4)
                r.append(mfma(v(Sreg(st, tg, kt), 4), A, a(qf(ks, tg), 4), c))
            return r
        add_frag('b128', 2, vRA + (ks & 1), chunks[ch]['lo'] + (ks >> 1)*4096 + kt*2048, mf, ch)
def G3(st):
    phase[f'G3_{st}'] = len(frags)
    ch = ring_round(f"V_{st}", sVV, vVD, str(st*16384))
    for d in range(16):
        mf = (lambda A, d=d: [mfma(v(Oreg(d, tg), 4), A, v(Preg(st, tg), 4), "0" if st == 0 else v(Oreg(d, tg), 4)) for tg in range(2)])
        add_frag('tr', 4, vTR + (d & 3), chunks[ch]['lo'] + (d >> 2)*4096, mf, ch)
G2(0)
for st in range(15):
    G2(st + 1); G3(st)
G3(15)
phase['G4'] = len(frags)
def acc4(p, u, tg): return vA4 + (((u >> 1)*2 + tg)*2 + (u & 1))*4
def Opk(ks, tg): return vO + (ks*2 + tg)*8
for p in range(7):
    chs = [ring_round(f"wo_{p}_{h_}", sWO, vWOD, f"s{sQT+p}" if h_ == 0 else f"+s{sQT+p}, {4*32*896}") for h_ in range(2)]
    for u in range(4):
        for ks in range(8):
            ch = chs[ks // 4]
            mf = (lambda A, p=p, ks=ks, u=u: [mfma(v(acc4(p, u, tg), 4), A, v(Opk(ks, tg), 4), "0" if ks == 0 else v(acc4(p, u, tg), 4)) for tg in range(2)])
            add_frag('tr', 4, vTR + u, chunks[ch]['lo'] + (ks % 4)*4096, mf, ch)
phase['G6'] = len(frags)
def hole(i): return vO + 8*i + 4
def hreg(kk, t4):
    i = kk*4 + t4
    if i < 32: return a(aH + 4*i, 4)
    if i < 48: return a(aQ + 4*(i-32), 4)
    return v(hole(i-48), 4)
def facc(u, t4):
    i = u*4 + t4
    return vA4 + 32 + 4*i if i < 8 else hole(i)
vTP = 108
for kk in range(14):
    ch = ring_round(f"w2_{kk}", sW2, vW2D, str(kk*32*896), private=True)
    for u in range(4):
        mf = (lambda A, kk=kk, u=u: [mfma(v(facc(u, t4), 4), A, hreg(kk, t4), "0" if kk == 0 else v(facc(u, t4), 4)) for t4 in range(4)])
        add_frag('tr', 4, vTP + u, chunks[ch]['lo'], mf, ch)
NF = len(frags)
phase['END'] = NF

MF = [fr['mf'](a(aF + 4*(f % NA), 4)) for f, fr in enumerate(frags)]
if OPT['CHAIN']:
    for f0 in range(0, NF, 4):
        nm_ = chunks[frags[f0]['chunk']]['name']
        if nm_.startswith('K_') or nm_.startswith('wo_') or (OPT['PCH'] and nm_[:2] in ('wq', 'w1')):
            fl = [MF[f0+k_][tg] for tg in range(2) for k_ in range(4)]
            for k_ in range(4): MF[f0+k_] = fl[2*k_:2*k_+2]
G0 = [0]
for f in range(NF): G0.append(G0[-1] + len(MF[f]))
NG = G0[-1]
def gap(f): return G0[max(0, min(f, NF))]
pre = [[] for _ in range(NG)]
rds = [[] for _ in range(NG)]
ext = [[] for _ in range(NG)]
blk = {}
for g in range(NF):
    if g + D < NF:
        r = frag_reads(g + D)
        n = len(MF[g])
        rds[G0[g]].append(r[0])
        if len(r) > 1: rds[G0[g] + n//2].append(r[1])
def cost(i):
    if i.cls in ('ds',): return 8
    if i.cls == 'vmem': return 24 if 'store' in i.op and 'x4' in i.op else 8
    if i.cls in ('trans', 'perm'): return 8
    if i.cls == 'label': return 0
    return 4
def gtime(items):
    t = 4
    for i in items:
        if i.cls in VALU_LIKE: t = max(t, 8)
        t += cost(i)
    return t
def fits(gp, i): return gtime(pre[gp] + rds[gp] + ext[gp] + [i]) <= 16
def place(seq, g0, g1=None):
    seq = [I(s) if isinstance(s, str) else s for s in seq]
    g1 = NG if g1 is None else min(g1, NG)
    gp = g0; n = len(seq)
    for k, ins in enumerate(seq):
        bound = max(min(g0 + ((k + 1) * (g1 - g0)) // n - 1, g1 - 1), gp)
        best = None
        for q in range(gp, bound + 1):
            if fits(q, ins): best = q; break
        if best is None:
            best = min(range(gp, bound + 1), key=lambda q: (gtime(pre[q] + rds[q] + ext[q] + [ins]), q))
        ext[best].append(ins)
        gp = best
    return gp
def spread(seq, g0, g1):
    n = len(seq); cur = g0
    for k, ins in enumerate(seq):
        lo = max(g0 + (k*(g1-g0))//n, cur); hi = max(g0 + ((k+1)*(g1-g0))//n, lo+1)
        cur = place([ins], lo, hi)
    return cur

shared = [c for c in range(len(chunks)) if not chunks[c]['private']]
def is_bar(k_):
    if k_ == 0: return True
    if k_ < 21: return (k_ - 1) % OPT['BARP'] == 0
    if k_ < 53: return (k_ - 21) % OPT['BARA'] == 0
    return (k_ - 53) % OPT['BAR4'] == 0
bar_frags = [chunks[c]['first'] for k_, c in enumerate(shared) if is_bar(k_)]
bar_frags += [phase['G6'], phase['G6'] + D + 1]
bar_frags = sorted(set(bar_frags))
bar_gap = []
first_need = None
for bi, f0 in enumerate(bar_frags):
    f1 = bar_frags[bi+1] if bi + 1 < len(bar_frags) else NF
    need = [('c', c) for c in shared if f0 <= chunks[c]['first'] < f1]
    if f0 == 0: first_need = need; continue
    gp = gap(f0 - D); bar_gap.append(gp)
    if need: ext[gp-1].append(mk_wait_vm(need))
    pre[gp].append(I("s_barrier"))
for c in range(len(chunks)):
    if chunks[c]['private']:
        ext[gap(chunks[c]['first'] - D) - 1].append(mk_wait_vm([('c', c)]))
for g in range(4, NF, 4):
    ext[gap(g) - 1].append(mk_wait_lg([('f', f) for f in range(g, min(g+4, NF))]))
def earliest_gap(c):
    e = -1
    C = chunks[c]
    for c2 in range(c):
        B = chunks[c2]
        if B['hi'] <= C['lo'] or C['hi'] <= B['lo']: continue
        if B['private'] and C['private']: e = max(e, gap(B['last'] + 1))
        else: e = max(e, [gp for gp in bar_gap if gp >= gap(B['last'] + 1)][0] + 1)
    return e
pro_dma = []
cur = OPT['DSTART']
for c in range(len(chunks)):
    e = earliest_gap(c)
    if e < 0 and c < OPT['NPRO']:
        pro_dma.append(chunks[c]['dma']); continue
    if chunks[c]['name'].startswith('w2_') and int(chunks[c]['name'][3:]) >= OPT['W2PRE']: e = max(e, gap(phase['G6']) + OPT['W2G'])
    g0 = max(e, cur)
    span = OPT['SPAN']
    if g0 > e + 8: span = OPT['SPAN2']
    if g0 >= gap(phase['G6'] - D): span = OPT['W2S']
    seq = list(chunks[c]['dma'])
    if chunks[c]['name'] == 'wo_0_0': seq = [I(f"v_accvgpr_read_b32 v{vWOD+i}, a{aST+i}") for i in range(4)] + seq; wo_first_gap = g0
    if chunks[c]['name'] == 'w2_0': seq = [I(f"v_accvgpr_read_b32 v{vW2D+i}, a{aST+4+i}") for i in range(4)] + seq
    cur = spread(seq, g0, g0 + span)
    need_gap = gap(chunks[c]['first'] - D)
    if not chunks[c]['private']: need_gap = max(gp for gp in bar_gap if gp <= need_gap)
    if OPT['LOG']: print(chunks[c]['name'], g0, cur, need_gap, 'lead', need_gap - cur, file=sys.stderr)
    assert cur < need_gap - 1, (chunks[c]['name'], cur)

seq = []
for p in range(7):
    seq += [f"s_add_u32 s{sT2}, s{sROT}, {p}", f"s_sub_u32 s{sT3}, s{sT2}, 7", f"s_min_u32 s{sT2}, s{sT2}, s{sT3}",
            f"s_lshl_b32 s{sQT+p}, s{sT2}, 7", f"s_lshl_b32 s{sT2}, s{sT2}, 16", f"s_add_u32 s{sQT+7+p}, s{sSST}, s{sT2}",
            f"s_add_u32 s{sSST}, s{sSST}, s{sSTEP}"]
spread(seq, 6, 100)
assert gap(phase['G3_8']) < wo_first_gap
assert OPT['BAR'] == 2
place([f"v_add_u32 v{vTP+i}, s{sWB}, v{vTR+i}" for i in range(12)], gap(phase['G4'] + 8), gap(phase['G4'] + 40))

def hconv(pp):
    s = []
    for kq in range(2):
        for tg in range(2):
            b = accp(pp, kq, tg, 0)
            if not OPT['PKR']:
                for r in range(8): s.append(f"v_max_f32 v{b+r}, 0, v{b+r}")
            for r in range(4): s.append(f"v_cvt_pk_bf16_f32 v{b+r}, v{b+2*r}, v{b+2*r+1}")
            if OPT['PKR']:
                for r in range(4): s.append(f"v_pk_max_i16 v{b+r}, v{b+r}, 0")
            if not OPT['NOHST']:
                s.append(I(f"buffer_store_dwordx4 {v(b,4)}, v{vHS}, {srd(sWS)}, s{sHST} offen offset:{kq*2048 + tg*1024} {OPT['HST']}", tag='hst'))
    if pp == 4: s.append(f"s_add_u32 s{sHST}, s{sHST}, 4096")
    return s
place(hconv(4), gap(phase['P5']) + 4, gap(phase['G2_0']) - 4)
def qconv(pp):
    s = []
    for kq in range(2):
        for tg in range(2):
            b = accp(pp, kq, tg, 0)
            s += [f"v_cvt_pk_bf16_f32 v{b+r}, v{b+2*r}, v{b+2*r+1}" for r in range(4)]
            s += [f"v_permlane32_swap_b32 v{b}, v{b+2}", f"v_permlane32_swap_b32 v{b+1}, v{b+3}",
                  f"v_permlane16_swap_b32 v{b}, v{b+2}", f"v_permlane16_swap_b32 v{b+1}, v{b+3}"]
            s += [f"v_accvgpr_write_b32 a{qf(2*pp+kq, tg)+r}, v{b+r}" for r in range(4)]
    return s
for pp in range(4):
    g0 = gap(phase[f'P{pp+1}'])
    place(qconv(pp), g0 + 4, g0 + 2*56 - 4)

def allred(r, t, op):
    return [f"v_mov_b32 v{t}, v{r}", f"v_permlane32_swap_b32 v{r}, v{t}", f"{op} v{r}, v{r}, v{t}",
            f"v_mov_b32 v{t}, v{r}", f"v_permlane16_swap_b32 v{r}, v{t}", f"{op} v{r}, v{r}, v{t}"]
def interleave(*seqs):
    out = []
    for k in range(max(len(s) for s in seqs)):
        for s in seqs:
            if k < len(s): out.append(s[k])
    return out
def svals(st): return [Sreg(st, tg, kt) + r for tg in range(2) for kt in range(2) for r in range(4)]
g0 = gap(phase['G2_0'])
seqs = []
for tg in range(2):
    b = Sreg(0, tg, 0); m = vM + 2*tg; t = m + 1
    s = [f"v_max3_f32 v{m}, v{b}, v{b+1}, v{b+2}", f"v_max_f32 v{m}, v{m}, v{b+3}"] + allred(m, t, "v_max_f32")
    s += [f"v_sub_f32 v{vC+4*tg+r}, 0, v{m}" for r in range(4)]
    seqs.append(s)
seq = interleave(*seqs) + [f"v_mov_b32 v{vLS}, 0", f"v_mov_b32 v{vLS+1}, 0"]
gm = place(seq, g0 + 19, g0 + 31)
def sm_seq(st, sub):
    s = []
    vals = svals(st)
    for k_, r in enumerate(vals):
        tg = k_ // 8
        if sub: s.append(f"v_add_f32 v{r}, v{r}, v{vC+4*tg}")
        s.append(f"v_exp_f32 v{r}, v{r}")
        if k_ % 2 == 1 and k_ >= 3:
            kk = k_ - 3
            s.append(f"v_cvt_pk_bf16_f32 v{Preg(st, kk//8) + (kk % 8)//2}, v{vals[kk]}, v{vals[kk+1]}")
    s.append(f"v_cvt_pk_bf16_f32 v{Preg(st, 1) + 3}, v{vals[14]}, v{vals[15]}")
    return s
def add_seq(st):
    vals = svals(st)
    return interleave([f"v_add_f32 v{vLS}, v{vLS}, v{r}" for r in vals[:8]], [f"v_add_f32 v{vLS+1}, v{vLS+1}, v{r}" for r in vals[8:]])
for st in range(16):
    g3 = gap(phase[f'G3_{st}'])
    if st == 0:
        ge = place(sm_seq(st, True), gap(phase['G2_1']) + 3, g3 - 1)
    elif st < 15:
        gs = gap(phase[f'G2_{st+1}'] - D)
        ge = place(sm_seq(st, False), gs, g3 - 2)
    else:
        ge = place(sm_seq(st, False), gap(phase['G3_14']) + 4, g3 - 2)
    lim = gap(phase[f'G2_{st+2}']) - 2 if st + 2 < 16 else g3 + 14
    ga = place(add_seq(st), ge, lim)
seqs = []
for tg in range(2):
    l = vLS + tg; t = vM + tg
    seqs.append(allred(l, t, "v_add_f32") + [f"v_rcp_f32 v{vRC+tg}, v{l}"])
seq = interleave(*seqs) + [f"v_add_f32 v{vM}, v{vLS}, v{vLS+1}", f"s_mov_b32 s{sT0}, {hx(f2u(2.0**24 if not OPT['FORCEFB'] else 0.5))}", f"v_cmp_ngt_f32 vcc, s{sT0}, v{vM}"]
place(seq, ga, gap(phase['G4']) - 1)

hc = hconv(5)
n3 = 3*len(hc)//4
place(hc[:n3], gap(phase['G2_0']) + 3, gap(phase['G2_0']) + 19)
gend = place(hc[n3:], gap(phase['G3_0']), gap(phase['G3_0']) + 16)
assert accp(5, 1, 1, 0) >= Oreg(10, 0)
hb = [gp for gp in bar_gap if gp > gend + OPT['HSIG']][0]
ext[hb-1].append(mk_wait_vm(['hst']))
sig = [I(f"s_cmp_lg_u32 s{sW}, 0"), I("s_cbranch_scc1 L_nosig"), I(f"s_lshl_b32 s{sT0}, s{sT}, 4"), I(f"v_mov_b32 v{vPOLL}, s{sT0}"),
       I("s_mov_b64 exec, 1"), I(f"global_atomic_add v{vPOLL}, v{vONE}, {DBGP} sc1"), I("s_mov_b64 exec, -1"), I("L_nosig:")]
sig[5].cls = 'misc'
ext[hb+1] += sig

def dump(regs_list):
    r = [I("s_nop 15"), I(f"s_lshl_b32 s{sT0}, s{sT}, 4"), I(f"s_add_u32 s{sT0}, s{sT0}, s{sHD}"),
         I(f"s_lshl_b32 s{sT0}, s{sT0}, 2"), I(f"s_add_u32 s{sT0}, s{sT0}, s{sW}"),
         I(f"s_mul_i32 s{sT0}, s{sT0}, {32*1024}"), I(f"s_add_u32 s{sT0}, s{sT0}, {hx(WS_DBG)}")]
    for reg in regs_list:
        r.append(I(f"buffer_store_dwordx4 {reg}, v{vL16}, {srd(sWS)}, s{sT0} offen"))
        r.append(I(f"s_add_u32 s{sT0}, s{sT0}, 1024"))
    r.append(I("s_nop 3"))
    return r
def ocvt(ks): return [f"v_cvt_pk_bf16_f32 v{Opk(ks, tg)+r}, v{Opk(ks, tg)+2*r}, v{Opk(ks, tg)+2*r+1}" for tg in range(2) for r in range(4)]
NEARLY = OPT['OEARLY']
g15 = gap(phase['G3_15'])
for ks in range(NEARLY): place(ocvt(ks), g15 + 4*ks + 8, gap(phase['G4']) - 1)
b = stamp_ins('attn_done') + [I("s_cbranch_vccnz L_exact")]
for ks in range(NEARLY, 8): b += [I(t_) for t_ in ocvt(ks)]
b.append(I("L_exact_ret:"))
if OPT['DUMP'] == 'o': b += dump([v(Opk(ks, tg), 4) for ks in range(8) for tg in range(2)])
if OPT['DUMP'] == 'q': b += dump([a(qf(ks, tg), 4) for ks in range(8) for tg in range(2)])
b += stamp_ins('G4')
blk[phase['G4']] = b

def sconv(p, u):
    s = []
    for tg in range(2):
        b = acc4(p, u, tg); d = acc4(p, u & ~1, tg) + 2*(u & 1)
        s += [f"v_mul_f32 v{b+r}, v{vRC + tg}, v{b+r}" for r in range(4)]
        s += [f"v_cvt_pk_bf16_f32 v{d}, v{b}, v{b+1}", f"v_cvt_pk_bf16_f32 v{d+1}, v{b+2}, v{b+3}"]
        if u & 1:
            if (u, tg) != (1, 0): s.append(f"s_add_u32 s{sQT+7+p}, s{sQT+7+p}, 16384")
            if not OPT['NOSST']: s.append(I(f"buffer_store_dwordx4 {v(acc4(p, u & ~1, tg),4)}, v{vL16}, {srd(sWS)}, s{sQT+7+p} offen {OPT['SST']}", tag=('sst', p)))
    return s
g4 = gap(phase['G4'])
for p in range(7):
    for u in range(4):
        g0 = g4 + 64*p + 16*(u+1)
        if u == 3 and p < 6: gl = place(sconv(p, u), g0 + 3, g0 + 28)
        else: gl = place(sconv(p, u), g0 + 3, g0 + (19 if (p, u) != (6, 3) else 10))
last_store_gap = gl
hs = OPT['HSTEP']
gp0 = gap(phase[f'G3_{hs-1}']) - 30
place([f"s_lshl_b32 s{sT0}, s{sTC}, 4", f"v_mov_b32 v{vPOLL}, s{sT0}", I(f"global_load_dword v{vPOLL}, v{vPOLL}, {DBGP} sc1", tag='pollh'),
       f"v_add_u32 v{vHS}, s{sCOOB}, v{vL16}"], gp0, gp0 + 24)
gp1 = gap(phase[f'G3_{hs}'])
ext[gp1] += [mk_wait_vm(['pollh']), I(f"v_cmp_gt_u32 vcc, 16, v{vPOLL}"), I("s_cbranch_vccnz L_spinh"), I("L_spinh_ret:")]
def hloads(k0, k1):
    s = []
    for kk in range(k0, k1, 2):
        for rl in range(2):
            s.append(f"s_add_u32 s{sT0}, s{sHLD}, {rl*56*2048 + kk*2048}")
            for k2 in range(2):
                for tg in range(2):
                    s.append(I(f"buffer_load_dwordx4 {hreg(kk+k2, rl*2+tg)}, v{vHS}, {srd(sWS)}, s{sT0} offen offset:{k2*2048 + tg*1024} {OPT['HLD']}", tag='hld'))
    return s
if not OPT['NOHLD']:
    spread(hloads(0, 8), gap(phase[f"G3_{hs+OPT['HPF']}"]) + 2, gap(phase['G3_15']) - OPT['HEND'])
    spread(hloads(8, 14), g4 + OPT['H2A'], g4 + OPT['H2B'])
g6 = gap(phase['G6'])
vFV = 120
def greg(rl, sl):
    i = sl*2 + rl
    if i < 16: return v(Opk(0, 0) + 8*i, 4)
    return a(aH + (i - 16)*4, 4)
def gloads(s0, s1, va):
    s = []
    for sq in range(s0, s1, 2):
        for rl in range(2):
            s.append(I(f"s_add_u32 s{sT1}, s{sSG}, {rl*2*16384 + sq*1024}"))
            for sl in range(sq, sq+2):
                if not OPT['NOG']: s.append(I(f"buffer_load_dwordx4 {greg(rl, sl)}, v{va}, {srd(sWS)}, s{sT1} offen offset:{(sl-sq)*1024} {OPT['GLD']}", tag=('g', rl, sl)))
    return s
F0 = OPT['F0']
sPL = 32
sMISS = 18
place([f"v_mov_b32 v{vFV}, 1", f"v_mov_b32 v{vFV+1}, 3", f"v_and_b32 v{vFV+3}, 15, v0"], g4 + 100, g4 + 200)
def signal(k, n): return [mk_wait_vm([('sst', p) for p in range(n)]), I(f"buffer_store_byte v{vFV+k}, v{vZ}, {srd(sWS)}, s{sFLG} offen sc1", tag='flag')]
spoll = I(f"s_buffer_load_dwordx4 s[{sPL}:{sPL+3}], {srd(sWS)}, s{sFLP} glc"); spoll.cls = 'misc'
VPOLL = f"buffer_load_ubyte v{vPOLL}, v{vFV+3}, {srd(sWS)}, s{sFLP} offen sc1"
if OPT['WB']:
    def signal(k, n, gp):
        ext[gp - OPT['WBD']] += [mk_wait_vm([('sst', p) for p in range(n)]), I("buffer_wbl2 sc1", tag=('wb', k))] + stamp_ins(f'wb{k}')
        return [mk_wait_vm([('wb', k)]), I(f"buffer_store_byte v{vFV+k}, v{vZ}, {srd(sWS)}, s{sFLG} offen sc1", tag='flag')]
else:
    signal_ = signal
    def signal(k, n, gp): return signal_(k, n)
ext[g4 + OPT['SA']] += signal(0, F0, g4 + OPT['SA']) + stamp_ins('sigA')
ext[g4 + OPT['PA']] += [spoll]
sg = g6 + OPT['SC']
ext[sg] += signal(1, 7, sg) + stamp_ins('st_done') + [I(f"s_cmp_ge_u32 s{sPC}, 14"), I("s_cbranch_scc1 " + ("L_fin" if OPT['STAMP'] == 3 else "L_end"))]
assert sg > bar_gap[-1] and sg > last_store_gap
ext[g6 + OPT['CA']] += stamp_ins('pre_c0') + [I(t_) for t_ in (
    "s_waitcnt lgkmcnt(0)", f"s_and_b64 s[{sPL}:{sPL+1}], s[{sPL}:{sPL+1}], s[{sPL+2}:{sPL+3}]", f"s_and_b32 s{sPL}, s{sPL}, s{sPL+1}",
    f"s_and_b32 s{sPL}, s{sPL}, 0x01010101", f"s_cmp_eq_u32 s{sPL}, 0x01010101", f"s_cselect_b32 s{sMISS}, 0, {hx(OOB)}",
    f"v_add_u32 v{vFV+2}, s{sMISS}, v{vHS}")] + stamp_ins('chk0')
spread(gloads(0, 2*F0, vFV+2), g6 + OPT['CA'] + 1, g6 + OPT['LA'])
ext[g6 + OPT['PB']] += [I(VPOLL, tag='poll')]

vXF = 68
vAD = 125
XK = [k_ for k_ in range(4, 10) if [c['lo'] for c in chunks if c['name'] == f'w2_{k_}'][0] >= 4*SLOT][0]
XS = [c['lo'] for c in chunks if c['name'] == f'w2_{XK}'][0]
gx_ = max(g6 + 16*(XK + 1), cur + 1, g6 + OPT['XG'])
gx2 = place([f"v_accvgpr_read_b32 v{vAD}, a{aST+8}", f"s_add_u32 m0, s{sWB}, {XS}", f"s_movk_i32 s{sSV0}, {8*896 - 1024}", f"s_movk_i32 s{sSV1}, {8*896}",
       I(f"buffer_load_dwordx4 v{vAD}, {srd(sX)}, 0 offen lds", tag='xf'), I(f"buffer_load_dwordx4 v{vAD}, {srd(sX)}, s{sSV0} offen offset:1024 lds", tag='xf'),
       f"v_and_b32 v{vT3}, 15, v0", f"v_lshlrev_b32 v{vT3}, 7, v{vT3}", f"v_lshrrev_b32 v{vT4}, 4, v0", f"v_lshl_add_u32 v{vT3}, v{vT4}, 3, v{vT3}",
       f"s_add_u32 s{sSV2}, s{sWB}, {XS}", f"v_add_u32 v{vT3}, s{sSV2}, v{vT3}", f"v_lshrrev_b32 v{vT4}, 3, v0", f"v_lshl_add_u32 v{vT4}, v{vT4}, 4, v{vL16}", f"v_add_u32 v{vT4}, s{sSV2}, v{vT4}",
       f"v_and_b32 v{vPF}, 15, v0", f"v_lshl_add_u32 v{vPF}, v{vPF}, 4, v{vT3}"], gx_, gx_ + 30)
HX = OPT['HX']; NHG = 16 // HX; NT = 32 // HX
npf = [0]
def pf_addr(nlines, lines_per_row, pitch, k, dst, idx_sgpr, nshare):
    per = nlines // nshare
    s = [f"s_lshl_b32 s{sSO2}, s{sW}, 6", f"s_add_u32 s{sSO2}, s{sSO2}, {k*256}", f"v_add_u32 v{dst}, s{sSO2}, v0",
         f"v_min_u32 v{dst}, {per-1}, v{dst}", f"s_mul_i32 s{sSO2}, s{idx_sgpr}, {per}", f"v_add_u32 v{dst}, s{sSO2}, v{dst}"]
    if lines_per_row is None:
        s += [f"v_lshlrev_b32 v{dst}, 7, v{dst}"]
    else:
        sh = lg(lines_per_row)
        s += [f"v_and_b32 v{vPF}, {lines_per_row-1}, v{dst}", f"v_lshrrev_b32 v{dst}, {sh}, v{dst}",
              f"v_mul_u32_u24 v{dst}, {pitch}, v{dst}", f"v_lshl_add_u32 v{dst}, v{vPF}, 7, v{dst}"]
    return s
def pf_load(srd_b, dst):
    npf[0] += 1
    return I(f"buffer_load_dword a{aST + 10 + npf[0] % 6}, v{dst}, {srd(srd_b)}, 0 offen {OPT['PPF']}", tag='pf')
def pf_seq(srd_b, nlines, lines_per_row, pitch, idx, nshare):
    s = []
    for k in range((nlines // nshare + 255) // 256):
        s += pf_addr(nlines, lines_per_row, pitch, k, vPF+1, idx, nshare) + [pf_load(srd_b, vPF+1)]
    return s
vLQ = 26
def pf_pieces(srd_b, per, unit, idx, extra_base=None, pol='', rot=False):
    setup = [f"s_mul_i32 s{sSO2}, s{idx}, {per}", f"v_add_u32 v{vPF+1}, s{sSO2}, v{vLQ}", f"v_mul_u32_u24 v{vPF+1}, {unit}, v{vPF+1}"]
    if extra_base is not None: setup.append(f"v_add_u32 v{vPF+1}, s{extra_base}, v{vPF+1}")
    pcs = []
    for k in range((per + 63)//64):
        npf[0] += 1
        n_ = (per + 63)//64
        if rot and k == 0: so_ = [f"s_lshr_b32 s{sSO2}, s{sTC}, 1", f"s_sub_u32 s{sCNT}, s{sSO2}, {n_}", f"s_min_u32 s{sSO2}, s{sSO2}, s{sCNT}", f"s_mul_i32 s{sSO2}, s{sSO2}, {64*unit}"]
        elif rot: so_ = [f"s_add_u32 s{sSO2}, s{sSO2}, {64*unit}", f"s_sub_u32 s{sCNT}, s{sSO2}, {n_*64*unit}", f"s_min_u32 s{sSO2}, s{sSO2}, s{sCNT}"]
        else: so_ = [f"s_mov_b32 s{sSO2}, {k*64*unit}"]
        pcs.append(so_ + [I(f"buffer_load_dword a{aST + 9 + npf[0] % 7}, v{vPF+1}, {srd(srd_b)}, s{sSO2} offen {pol}", tag='pf')])
    return setup, pcs
def pf_run(streams, g0, g1):
    items = []
    for st_ in streams:
        su, pcs = st_
        for k, p_ in enumerate(pcs): items.append((su if k == 0 else []) + p_)
    n = len(items)
    for k, it_ in enumerate(items):
        lo = g0 + (k*(g1-g0))//n
        place(it_, lo, lo + 24)
if OPT['PF']:
    place([f"v_lshrrev_b32 v{vLQ}, 2, v0", f"s_lshl_b32 s{sSO2}, s{sW}, 4", f"v_add_u32 v{vLQ}, s{sSO2}, v{vLQ}"], 100, 130)
    if not OPT['BIG'] & 2: pf_run([pf_pieces(sKK, 2048//(2*NT), 128, sKVI, pol=OPT['PPF']), pf_pieces(sVV, 2048//(2*NT), 128, sKVI, pol=OPT['PPF'])], OPT['PFG'], gap(phase['P4']))
    if not OPT['NOPF2'] & 1: pf_run([pf_pieces(sWO, 1792//NT, 128, sTL), pf_pieces(sW2, 448, 896, sW2I, rot=OPT['W2ROT'])], gap(phase[f"G3_{OPT['PF0']}"]), gp1 if OPT['PF1'] == 0 else gap(phase[f"G3_{OPT['PF1']}"]))
    vPF += -20
    sSO2 = sT3
    if not OPT['NOPF2'] & 2: pf_run([pf_pieces(sWS, 256, 128, sCC, sHPF, 'sc1')], gp1 + 2, gap(phase[f"G3_{hs+OPT['HPF']}"]) - 20)
    vPF += 20
    sSO2 = 93

if OPT['STLB'] == 2:
    for k_, (b_, o_) in enumerate(((sKK, '0'), (sVV, '0'), (sW2, '0'), (sWO, '0'), (sWS, f's{sHST}'), (sWS, f's{sQT+7}'), (sOUT, '0'))):
        i_ = I(f"s_buffer_load_dword s1, {srd(b_)}, {o_}"); i_.cls = 'misc'; i_.dst = []
        place([i_], OPT['ST0'] + k_*OPT['STS'], OPT['ST0'] + k_*OPT['STS'] + 8)
if OPT['TLB']:
    gt = gap(phase[OPT['TLBP']])
    seq = []
    if OPT['TLB'] & 1: seq += [f"v_accvgpr_read_b32 v{vT1}, a{aST+8}", f"v_readfirstlane_b32 s{sT2}, v{vT1}", "s_nop 0", "s_nop 0", I(f"buffer_load_dword a{aST+9}, v{vZ}, {srd(sOUT)}, s{sT2} offen", tag='pf')]
    if OPT['TLB'] & 2: seq += [I(f"buffer_load_dword a{aST+9}, v{vZ}, {srd(sWS)}, s{sQT+7} offen sc1", tag='pf')]
    if OPT['TLB'] & 4: seq += [I(f"buffer_load_dword a{aST+9}, v{vZ}, {srd(sWS)}, s{sSG} offen sc1", tag='pf'), ]
    spread(seq, gt, gt + 40)
    if OPT['TLB'] & 8: place([I(f"buffer_load_dword a{aST+9}, v{vZ}, {srd(sWS)}, s{sHST} offen sc1", tag='pf')], gap(phase['P3']), gap(phase['P3']) + 20)
if OPT['FINE'] == 1:
    for p in range(1, 7): phase[f'G4p{p}'] = phase['G4'] + 32*p; blk[phase[f'G4p{p}']] = stamp_ins(f'G4p{p}')
    for kk in range(2, 14, 2): phase[f'G6k{kk}'] = phase['G6'] + 4*kk; blk[phase[f'G6k{kk}']] = stamp_ins(f'G6k{kk}')
if OPT['FINE'] == 2:
    for nm in ['P1', 'P3', 'P5'] + [f'G2_{s_}' for s_ in range(1, 16) if s_ % 4] + ['G3_14', 'G3_15']:
        blk[phase[nm]] = stamp_ins(nm)
if OPT['STAMP'] or OPT['WAITAT']:
    for nm in ('P0', 'P2', 'P4', 'G2_0', 'G2_4', 'G2_8', 'G2_12', 'G6'):
        blk.setdefault(phase[nm], [])
        blk[phase[nm]] = stamp_ins(nm) + blk[phase[nm]]

E(f"""
s_cmp_ge_u32 s2, 256
s_cbranch_scc1 L_end
s_load_dwordx16 s[4:19], s[0:1], 0
s_load_dwordx4 s[20:23], s[0:1], 64
s_load_dwordx2 s[24:25], s[0:1], 80
""")
if OPT['STAMP'] or OPT['WAITAT']: E("s_memtime s[98:99]\ns_memrealtime s[100:101]")
E(f"""
v_lshrrev_b32 v{vT0}, 6, v0
v_and_b32 v0, 63, v0
s_and_b32 s{sT0}, s2, 7
v_readfirstlane_b32 s{sW}, v{vT0}
s_lshr_b32 s{sT1}, s2, 3
s_and_b32 s{sT2}, s{sT0}, {NHG-1}
s_lshl_b32 s{sT2}, s{sT2}, {lg(HX)}
s_and_b32 s{sHD}, s{sT1}, {HX-1}
s_add_u32 s{sHD}, s{sHD}, s{sT2}
s_lshr_b32 s{sT2}, s{sT0}, {lg(NHG)}
s_lshl_b32 s{sT2}, s{sT2}, {lg(NT)}
s_lshr_b32 s{sTL}, s{sT1}, {lg(HX)}
s_add_u32 s{sT}, s{sTL}, s{sT2}
s_lshl_b32 s{sWB}, s{sW}, 12
""")
CODE_LINES = 512
E(f"s_lshr_b32 s{sCNT}, s2, 3")
for t_ in pf_addr(CODE_LINES, None, 0, 0, vR+80, sCNT, 32): E(t_)
E(f"""
s_getpc_b64 s[26:27]
L_pc:
global_load_dword v{vR+90}, v{vR+80}, s[26:27]
""")
E(f"""
v_lshrrev_b32 v{vT3}, 3, v0
v_and_b32 v{vT4}, 7, v0
v_lshrrev_b32 v{vT1}, 1, v{vT3}
v_xor_b32 v{vT1}, v{vT1}, v{vT4}
v_lshlrev_b32 v{vT1}, 4, v{vT1}
v_xor_b32 v{vT2}, 64, v{vT1}
s_lshl_b32 s{sT1}, s{sT}, 2
s_add_u32 s{sT1}, s{sT1}, s{sW}
s_mul_i32 s{sT1}, s{sT1}, {32*896}
v_mul_u32_u24 v{vT0}, 896, v{vT3}
v_add_u32 v{vT0}, s{sT1}, v{vT0}
v_add_u32 v{vXD}, v{vT0}, v{vT1}
v_add_u32 v{vXD+1}, v{vT0}, v{vT2}
v_add_u32 v{vXD+2}, {2*6144}, v{vXD}
v_add_u32 v{vXD+3}, {3*6144}, v{vXD+1}
v_add_u32 v{vXD+1}, 6144, v{vXD+1}
s_mov_b32 m0, s{sWB}
s_mov_b32 s{sSO}, 0
v_min_u32 v{vR+82}, 13, v0
v_subrev_u32 v{vR+83}, 7, v{vR+82}
v_min_u32 v{vR+83}, v{vR+83}, v{vR+82}
v_sub_u32 v{vR+82}, v{vR+82}, v{vR+83}
v_lshlrev_b32 v{vR+82}, 11, v{vR+82}
v_lshl_add_u32 v{vR+82}, v{vR+83}, 7, v{vR+82}
s_mul_i32 s{sT2}, s{sHD}, 896
s_add_u32 s{sT2}, s{sT2}, s{sT1}
s_mov_b32 s{sX+2}, {2048*896}
s_mov_b32 s{sX+3}, 0x00020000
s_waitcnt lgkmcnt(0)
s_mov_b32 s{sX}, s4
s_mov_b32 s{sX+1}, s5
""")
PST('karg')
def mk_srd(b, plo, off_sgpr, size):
    if off_sgpr is None:
        E(f"s_mov_b32 s{b}, s{plo}\ns_mov_b32 s{b+1}, s{plo+1}")
    else:
        E(f"s_add_u32 s{b}, s{plo}, s{off_sgpr}\ns_addc_u32 s{b+1}, s{plo+1}, 0")
    E(f"s_mov_b32 s{b+2}, {size}\ns_mov_b32 s{b+3}, 0x00020000")
xdma = []
for tg in range(2):
    for q in range(7):
        if q or tg:
            xdma += [I(f"s_add_u32 m0, s{sWB}, {q*SLOT}"), I(f"s_movk_i32 s{sSO}, {q*128}")]
        for rb in (2*tg, 2*tg+1):
            xdma.append(I(f"buffer_load_dwordx4 v{vXD+rb}, {srd(sX)}, s{sSO} offen offset:{rb*1024} {OPT['PX']} lds", tag=('x', tg, q)))
def xissue(n):
    while n > 0 and xdma:
        i_ = xdma.pop(0); P.ins.append(i_)
        if i_.cls == 'vmem': n -= 1
if OPT['XPF']: E(f"buffer_load_dword a{aST+9}, v{vR+82}, {srd(sX)}, s{sT2} offen", tag='pf')
xissue(OPT['XFIRST'])
E(f"s_lshl_b32 s{sT0}, s{sHD}, 9\ns_sub_u32 s{sT2}, {448*8192}, s{sT0}")
mk_srd(sWQ, 10, sT0, f"s{sT2}")
wqpf = [I(t_) if isinstance(t_, str) else t_ for t_ in pf_seq(sWQ, 448*OPT['WQP'], OPT['WQP'], 8192, sTL, NT)] if OPT['PF'] and OPT['WQP'] else []
if OPT['WQE'] == 1: P.ins += wqpf; wqpf = []
else: P.ins += wqpf[:-1]; wqpf = wqpf[-1:]
xissue(OPT['XSEC'])
PST('x_first')
mk_srd(sOUT, 20, None, 2048*896)
E(f"""
s_lshl_b32 s{sT0}, s{sW}, 7
v_lshlrev_b32 v{vKD}, 9, v{vT3}
v_add_u32 v{vVD}, s{sT0}, v{vKD}
v_add_u32 v{vKD}, v{vVD}, v{vT1}
v_add_u32 v{vKD+1}, v{vVD}, v{vT2}
v_add_u32 v{vKD+2}, {2*3072}, v{vKD}
v_add_u32 v{vKD+3}, {3*3072}, v{vKD+1}
v_add_u32 v{vKD+1}, 3072, v{vKD+1}
v_and_b32 v{vT0}, 6, v{vT3}
v_xor_b32 v{vT0}, v{vT0}, v{vT4}
v_lshlrev_b32 v{vT0}, 4, v{vT0}
v_add_u32 v{vVD}, v{vVD}, v{vT0}
""")
for rb in range(1, 4): E(f"v_add_u32 v{vVD+rb}, {3072*rb}, v{vVD}")
E(f"""
v_and_b32 v{vT1}, 4, v{vT3}
v_add_u32 v{vT1}, v{vT1}, v{vT3}
v_lshl_add_u32 v{vWQ}, v{vT1}, 13, v{vT0}
v_mul_u32_u24 v{vT1}, 3584, v{vT1}
v_add_u32 v{vW1D}, v{vT1}, v{vT0}
""")
for rb in range(1, 4):
    rr = 16*(rb & 1) + 4*(rb >> 1)
    E(f"v_add_u32 v{vW1D+rb}, {rr*3584 - 1024*rb}, v{vW1D}\nv_add_u32 v{vWQ+rb}, {rr*8192 - 1024*rb}, v{vWQ}")
E(f"""
s_lshl_b32 s{sT1}, s{sHD}, 8
s_sub_u32 s{sT2}, {448*3584}, s{sT1}
s_cmp_lt_u32 s{sHD}, 14
s_cselect_b32 s{sT2}, s{sT2}, 0
s_cselect_b32 s{sT1}, s{sT1}, 0
""")
mk_srd(sW1, 16, sT1, f"s{sT2}")
E(f"s_lshr_b32 s{sT0}, s{sHD}, 1\ns_lshl_b32 s{sT0}, s{sT0}, 20\ns_add_u32 s{sT0}, s{sT0}, {1536*512}")
mk_srd(sKK, 6, sT0, 262144)
mk_srd(sVV, 8, sT0, 262144)
E(f"s_mul_i32 s{sT0}, s{sHD}, {256*896}")
mk_srd(sWO, 12, sT0, 256*896)
E(f"""
s_lshr_b32 s{sPC}, s2, 3
s_and_b32 s{sPC}, s{sPC}, 15
s_cmp_ge_u32 s{sPC}, 7
s_cselect_b32 s{sT3}, 1, 0
s_mul_i32 s{sT1}, s{sT3}, 7
s_sub_u32 s{sT1}, s{sPC}, s{sT1}
s_lshl_b32 s{sT0}, s{sT1}, 7
s_sub_u32 s{sT2}, {1792*896}, s{sT0}
s_cmp_lt_u32 s{sPC}, 14
s_cselect_b32 s{sT2}, s{sT2}, 0
s_cselect_b32 s{sT0}, s{sT0}, 0
""")
mk_srd(sW2, 18, sT0, f"s{sT2}")
if OPT['WSOFF']:
    E(f"s_mov_b32 s{sT0}, {hx(OPT['WSOFF'] << 20)}")
    mk_srd(sWS, 24, sT0, WS_SIZE)
else:
    mk_srd(sWS, 24, None, WS_SIZE)
for k_, R_ in ((0, 32*8192), (2, 32*3584)):
    E(f"""
s_mul_i32 s{sW1T+k_}, s{sW}, {R_}
s_cmp_lt_u32 s{sW}, 2
s_mov_b32 s{sT2}, {hx(128 - 2*R_)}
s_cselect_b32 s{sT0}, {12*R_}, s{sT2}
s_add_u32 s{sW1T+k_+1}, s{sW1T+k_}, s{sT0}
""")
E(f"""
v_mul_u32_u24 v{vT1}, 896, v{vT3}
v_add_u32 v{vT1}, v{vT1}, v{vT0}
s_mul_i32 s{sT0}, s{sW}, {32*896}
s_mul_i32 s{sT2}, s{sW}, {448*896}
""")
for rb in range(4):
    if rb: E(f"v_add_u32 v{vT1}, 6144, v{vT1}")
    E(f"v_add_u32 v{vT2}, s{sT0}, v{vT1}\nv_accvgpr_write_b32 a{aST+rb}, v{vT2}\nv_add_u32 v{vT2}, s{sT2}, v{vT1}\nv_accvgpr_write_b32 a{aST+4+rb}, v{vT2}")
E(f"""
v_lshlrev_b32 v{vL16}, 4, v0
v_lshrrev_b32 v{vT0}, 2, v0
v_lshlrev_b32 v{vT1}, 7, v{vT0}
v_and_b32 v{vT2}, 3, v0
v_lshl_add_u32 v{vT1}, v{vT2}, 3, v{vT1}
v_bfe_u32 v{vT3}, v0, 3, 2
""")
for u in range(4):
    E(f"""
v_xor_b32 v{vT4}, {u}, v{vT3}
v_lshl_add_u32 v{vTR+u}, v{vT4}, 5, v{vT1}
v_add_u32 v{vTR+4+u}, 0x10000, v{vTR+u}
v_add_u32 v{vTR+8+u}, 0x20000, v{vTR+u}
""")
E(f"""
v_and_b32 v{vT0}, 15, v0
v_lshrrev_b32 v{vT1}, 1, v{vT0}
v_lshrrev_b32 v{vT2}, 4, v0
v_xor_b32 v{vT1}, v{vT1}, v{vT2}
v_lshlrev_b32 v{vT4}, 7, v{vT0}
v_lshl_add_u32 v{vRA}, v{vT1}, 4, v{vT4}
v_xor_b32 v{vRA+1}, 64, v{vRA}
v_add_u32 v{vRA+2}, 0x10000, v{vRA}
v_add_u32 v{vRA+3}, 0x10000, v{vRA+1}
v_add_u32 v{vRA+4}, 0x20000, v{vRA}
v_add_u32 v{vRA+5}, 0x20000, v{vRA+1}
""")
vXR = vR + 72
for i in range(4): E(f"v_add_u32 v{vXR+i}, s{sWB}, v{vRA+i}")
E(f"""
s_and_b32 s{sTC}, s2, 7
s_lshl_b32 s{sTC}, s{sTC}, 1
s_lshr_b32 s{sT0}, s2, 7
s_add_u32 s{sTC}, s{sTC}, s{sT0}
s_lshl_b32 s{sW2I}, s{sT0}, 1
s_add_u32 s{sW2I}, s{sW2I}, s{sT3}
s_lshl_b32 s{sT2}, s{sTC}, 1
s_add_u32 s{sT2}, s{sT2}, s{sT3}
s_lshl_b32 s{sT0}, s{sT2}, 2
s_add_u32 s{sT0}, s{sT0}, s{sW}
s_mul_i32 s{sT0}, s{sT0}, {16*896}
s_lshl_b32 s{sSG}, s{sT1}, 7
s_add_u32 s{sT0}, s{sT0}, s{sSG}
v_lshrrev_b32 v{vT0}, 3, v0
v_mul_u32_u24 v{vT0}, 896, v{vT0}
v_and_b32 v{vT2}, 7, v0
v_lshl_add_u32 v{vT0}, v{vT2}, 4, v{vT0}
v_add_u32 v{vT0}, s{sT0}, v{vT0}
v_accvgpr_write_b32 a{aST+8}, v{vT0}
s_lshl_b32 s{sT2}, s{sT2}, 1
s_lshr_b32 s{sT0}, s{sW}, 1
s_add_u32 s{sSG}, s{sT2}, s{sT0}
s_mul_i32 s{sSG}, s{sSG}, 7
s_add_u32 s{sSG}, s{sSG}, s{sT1}
s_lshl_b32 s{sSG}, s{sSG}, 2
s_lshl_b32 s{sT0}, s{sT0}, 4
s_lshl_b32 s{sFLP}, s{sT2}, 7
s_add_u32 s{sFLP}, s{sFLP}, s{sT0}
s_add_u32 s{sFLP}, s{sFLP}, {hx(WS_F)}
s_and_b32 s{sT0}, s{sW}, 1
s_add_u32 s{sSG}, s{sSG}, s{sT0}
s_lshl_b32 s{sSG}, s{sSG}, 14
s_mul_i32 s{sHLD}, s{sT2}, {56*2048}
s_add_u32 s{sHLD}, s{sHLD}, {hx(WS_H)}
s_cmp_lt_u32 s{sPC}, 14
s_cselect_b32 s{sCOOB}, 0, {hx(OOB)}
s_add_u32 s{sHPF}, s{sHLD}, s{sCOOB}
s_mul_i32 s{sT0}, s{sW}, {14*2048}
s_add_u32 s{sHLD}, s{sHLD}, s{sT0}
s_mov_b32 s0, s2
s_mov_b32 s{sCC}, s{sT1}
s_lshl_b32 s{sKVI}, s{sTL}, 1
s_and_b32 s{sT0}, s{sHD}, 1
s_add_u32 s{sKVI}, s{sKVI}, s{sT0}
s_lshl_b32 s{sT1}, s{sT}, 2
s_add_u32 s{sT1}, s{sT1}, s{sW}
s_lshr_b32 s{sFLG}, s{sT1}, 1
s_lshl_b32 s{sFLG}, s{sFLG}, 8
s_and_b32 s{sT2}, s{sT1}, 1
s_lshl_b32 s{sT2}, s{sT2}, 4
s_add_u32 s{sFLG}, s{sFLG}, s{sT2}
s_add_u32 s{sFLG}, s{sFLG}, s{sHD}
s_add_u32 s{sFLG}, s{sFLG}, {hx(WS_F)}
s_mul_i32 s{sHST}, s{sT1}, {56*2048}
s_min_u32 s{sT2}, s{sHD}, 13
s_lshl_b32 s{sT2}, s{sT2}, 13
s_add_u32 s{sHST}, s{sHST}, s{sT2}
s_add_u32 s{sHST}, s{sHST}, {hx(WS_H)}
s_cmp_lt_u32 s{sHD}, 14
s_cselect_b32 s{sT2}, 0, {hx(OOB)}
v_add_u32 v{vHS}, s{sT2}, v{vL16}
v_mov_b32 v{vZ}, 0
v_mov_b32 v{vONE}, 1
""")
PST('addr_done')
xissue(14 - OPT['XFIRST'] - OPT['XSEC'])
if OPT['WQE'] == 0: P.ins += wqpf; wqpf = []
PST('x_issued')
PRODUCER = len(P.ins)
E(f"""
s_lshl_b32 s{sSST}, s{sT}, 2
s_add_u32 s{sSST}, s{sSST}, s{sW}
s_mul_i32 s{sSST}, s{sSST}, {28*16384}
s_cmp_ge_u32 s{sHD}, 7
s_cselect_b32 s{sT3}, 1, 0
s_sub_u32 s{sROT}, s{sHD}, 7
s_min_u32 s{sROT}, s{sROT}, s{sHD}
s_sub_u32 s{sCNT}, s{sROT}, 7
s_min_u32 s{sROT}, s{sROT}, s{sCNT}
s_cmp_lt_u32 s{sHD}, 14
s_cselect_b32 s{sT3}, s{sT3}, s{sHD}
s_cselect_b32 s{sSTEP}, 2048, 0
s_lshl_b32 s{sT3}, s{sT3}, 10
s_add_u32 s{sSST}, s{sSST}, s{sT3}
""")
prod_ins = []
if OPT['STLB'] == 1:
    for b_, o_ in ((sKK, '0'), (sVV, '0'), (sWQ, '0'), (sWQ, f'{hx(400*8192)}')[:2], (sWO, '0'), (sW1, '0'), (sW2, '0'), (sOUT, '0'),
                   (sWS, f's{sSST}'), (sWS, f's{sHST}'), (sWS, hx(WS_F + 0x8000))):
        if o_.startswith('0x'): E(f"s_mov_b32 s{sCNT}, {o_}"); o_ = f's{sCNT}'
        i_ = I(f"s_buffer_load_dword s1, {srd(b_)}, {o_}"); i_.cls = 'smem'; i_.dst = []; P.ins.append(i_)
for s_, val in ((sM1, 0x2222222222222222), (sM2, 0xCCCCCCCCCCCCCCCC), (sM3, 0x8888888888888888), (sMD, 0xF0000F0000F0000F)):
    E(f"s_mov_b32 s{s_}, {hx(val)}\ns_mov_b32 s{s_+1}, {hx(val >> 32)}")

vONES = vR + 16
vD1 = vR + 20
vD2 = vR + 28
vLA = vR + 36
for i in range(4): E(f"v_mov_b32 v{vONES+i}, 0x3f803f80")
def rbf(r):
    return [f"v_cvt_pk_bf16_f32 v{r}, v{r}, v{r}", f"v_lshlrev_b32 v{r}, 16, v{r}"]
E(f"s_mov_b32 s{sT0}, {hx(f2u(1.0/448.0))}\ns_mov_b32 s{sT1}, {hx(f2u(1e-5))}\ns_mov_b32 s{sT2}, {hx(f2u(CSCALE))}")
if OPT['PADS']:
    E(f"""
s_mov_b64 exec, 0
s_cmp_eq_u32 s{sW}, 0
s_cbranch_scc1 L_pg0
s_cmp_eq_u32 s{sW}, 1
s_cbranch_scc1 L_pg1
s_cmp_eq_u32 s{sW}, 2
s_cbranch_scc1 L_pg2
s_branch L_pg3
.p2align 12
L_main:
s_mov_b64 exec, -1
""")
STAMP('pro_done')
vNT = vR + 44
NPRO = OPT['NPRO']
big = []
if OPT['BIG'] & 1:
    t_ = pf_seq(sWQ, 448*2, 2, 8192, sTL, NT); t_[-1] = I(t_[-1].text.replace('offen', 'offen offset:256'), tag='pf'); big += t_
    big += pf_seq(sW1, 448*2, 2, 3584, sTL, NT)
if OPT['BIG'] & 2:
    t_ = pf_seq(sKK, 2048, None, 0, sKVI, 2*NT); big += t_ + [pf_load(sVV, vPF+1)]
big = [I(t_) if isinstance(t_, str) else t_ for t_ in big]
assert len(pro_dma) == NPRO
L0N = OPT['L0N']
late = {0: [i_ for d_ in pro_dma[:L0N] for i_ in d_],
        1: [i_ for d_ in pro_dma[3:] for i_ in d_]
           + big + [I(f"buffer_store_byte v{vZ}, v{vZ}, {srd(sWS)}, s{sFLG} offen sc1", tag='hst')]}
def xreads(tg, q):
    r = [mk_wait_vm([('x', tg, q)])]
    for ks in (2*q, 2*q+1):
        ad = q*SLOT + tg*2048
        r.append(I(f"ds_read_b128 {v(xn(ks,tg),4)}, v{vXR + (ad >> 16)*2 + (ks & 1)} offset:{ad & 0xffff}", tag=('xr', tg, q)))
    return r
def stats(tg, q, fill):
    P.wait_lgkm_tag([('xr', tg, q)])
    for ks in (2*q, 2*q+1):
        X = v(xn(ks, tg), 4)
        for m_ in (mfma(v(vD1+4*tg, 4), v(vONES, 4), X, "0" if ks == 0 else v(vD1+4*tg, 4)), mfma(v(vD2+4*tg, 4), X, X, "0" if ks == 0 else v(vD2+4*tg, 4))):
            E(m_)
            t_ = 0
            while fill and t_ + cost(fill[0]) <= 12:
                t_ += cost(fill[0]); P.ins.append(fill.pop(0))
def scalars(tg):
    d = vD2 + 4*tg; m = vD1 + 4*tg; t = m + 1; L = vLA + 4*tg
    s = [f"v_cndmask_b32 v{d}, v{d}, v{d+1}, s[{sM1}:{sM1+1}]",
         f"v_cndmask_b32 v{d+2}, v{d+2}, v{d+3}, s[{sM3}:{sM3+1}]",
         f"v_mul_f32 v{m}, s{sT0}, v{m}",
         f"v_cndmask_b32 v{d}, v{d}, v{d+2}, s[{sM2}:{sM2+1}]",
         f"v_cndmask_b32 v{d}, 0, v{d}, s[{sMD}:{sMD+1}]"]
    s += allred(d, t, "v_add_f32")
    s += [f"v_mul_f32 v{d}, s{sT0}, v{d}",
          f"v_fma_f32 v{d}, -v{m}, v{m}, v{d}",
          f"v_max_f32 v{d}, 0, v{d}"]
    s += interleave(rbf(m), rbf(d))
    s += [f"v_add_f32 v{d}, s{sT1}, v{d}"] + rbf(d) + [f"v_sqrt_f32 v{d}, v{d}"] + rbf(d)
    s += [f"v_rcp_f32 v{d}, v{d}", f"v_mul_f32 v{d}, s{sT2}, v{d}",
          f"v_cvt_pk_bf16_f32 v{d}, v{d}, v{d}",
          f"v_and_b32 v{L}, 0xffff, v{d}", f"v_lshlrev_b32 v{L+1}, 16, v{d}",
          f"v_mul_f32 v{L+2}, -v{m}, v{L+1}"]
    for t_ in s: E(t_)
def normalize(tg, side):
    L = vLA + 4*tg; k = 0; pend = []
    for ks in range(14):
        for r in range(4):
            x_ = xn(ks, tg) + r
            t = vNT + 2*(k % 8); k += 1
            E(f"v_dot2_f32_bf16 v{t}, v{x_}, v{L}, v{L+2}\nv_dot2_f32_bf16 v{t+1}, v{x_}, v{L+1}, v{L+2}")
            pend.append(f"v_cvt_pk_bf16_f32 v{x_}, v{t}, v{t+1}")
            if len(pend) > 2: E(pend.pop(0))
            P.ins += side.get(k, [])
    for t_ in pend: E(t_)
for q in range(7):
    P.ins += xreads(0, q)
    if q in (0, 3, 6): PST(f'w0{q}')
    xissue(2)
    if q > 1: stats(0, q-2, [])
fill = wqpf + late[0]
stats(0, 5, fill); stats(0, 6, fill)
P.ins += fill
STAMP('x0_arrived')
scalars(0)
X1 = OPT['X1']
normalize(0, {X1 + 4*q: xreads(1, q) for q in range(7)})
PST('ln0_done')
fill = [i_ for d_ in pro_dma[L0N:3] for i_ in d_]
for q in range(7):
    if q == 1: P.wait_lgkm_tag([('xr', 1, 6)]); fill += late[1]
    stats(1, q, fill)
P.ins += fill
STAMP('x1_arrived')
scalars(1)
fr_ = [i_ for f in range(D) for i_ in frag_reads(f)]
side = {OPT['BARK']: [mk_wait_vm(first_need), I("s_barrier")]}
for k_, i_ in enumerate(fr_): side.setdefault(min(OPT['BARK'] + 1 + k_, 56), []).append(i_)
normalize(1, side)
if OPT['DUMP'] == 'xn':
    P.ins += dump([v(xn(ks, tg), 4) for ks in range(14) for tg in range(2)])

P.ins.append(mk_wait_lg([('f', f) for f in range(4)]))
est = 0
for g in range(NF):
    if g in blk: P.ins += blk[g]
    for h, m_ in enumerate(MF[g]):
        gp = G0[g] + h
        P.ins.append(I(m_))
        P.ins += pre[gp] + rds[gp] + ext[gp]
        est += max(16, gtime(pre[gp] + rds[gp] + ext[gp]))
if OPT['LOG']:
    ph = sorted((f_, n_) for n_, f_ in phase.items())
    for (f0_, n_), (f1_, _) in zip(ph, ph[1:]):
        e_ = sum(max(16, gtime(pre[q_] + rds[q_] + ext[q_])) for q_ in range(gap(f0_), gap(f1_)))
        print(f"  phase {n_}: est {e_} ideal {16*(gap(f1_)-gap(f0_))}", file=sys.stderr)
print("estimated main-stream cycles", est, "ideal", 16*NG, file=sys.stderr)

STAMP('g6_done')
def fs(t4, w_): return facc(t4, w_)
vSEL = 44
vSA = 52
STAMP('pre_c1')
P.wait_vm_tag(['poll'])
E(f"v_cmp_gt_u32 vcc, 3, v{vPOLL}\ns_cbranch_vccnz L_spin1\nL_spin1_ret:\ns_cmp_lg_u32 s{sMISS}, 0\ns_cbranch_scc1 L_redo\nL_redo_ret:")
STAMP('chk1')
gl2 = gloads(2*F0, 16, vHS)
n2 = OPT['N2']
P.ins += gl2[:n2]
E(f"""
v_add_u32 v{vT1}, s{sWB}, v{vL16}
s_lshl_b32 s{sT0}, s{sW}, 14
v_add_u32 v{vT2}, s{sT0}, v{vL16}
""")
for u in range(4):
    for t4 in range(4):
        E(f"ds_write_b128 v{vT1}, {v(facc(u, t4), 4)} offset:{t4*SLOT + u*1024}")
P.wait_vm_tag(['xf'])
for u in range(4): E(f"ds_read_b64 {v(vXF + 2*u, 2)}, v{vT3} offset:{u*32}")
E(f"""
v_mov_b32 v{vSEL}, 0
v_mov_b32 v{vSEL+1}, 0
v_mov_b32 v{vSEL+4}, 0
v_mov_b32 v{vSEL+5}, 0
v_mov_b32 v{vT0}, 0x3f80
v_mov_b32 v{vSEL+2}, 0x3f800000
s_or_b64 s[16:17], s[{sM1}:{sM1+1}], s[{sM3}:{sM3+1}]
v_cndmask_b32 v{vT0}, v{vT0}, v{vSEL+2}, s[16:17]
v_cndmask_b32 v{vT0}, 0, v{vT0}, s[{sMD}:{sMD+1}]
s_mov_b64 s[16:17], s[{sM2}:{sM2+1}]
v_cndmask_b32 v{vSEL+2}, v{vT0}, 0, s[16:17]
v_cndmask_b32 v{vSEL+3}, 0, v{vT0}, s[16:17]
s_mov_b32 s{sT0}, {hx(f2u(1.0/CSCALE))}
s_mov_b32 s{sT2}, {hx(f2u(-16.0))}
""")
E("s_waitcnt lgkmcnt(0)\ns_barrier")
for t4 in range(4):
    for w_ in range(4):
        E(f"ds_read_b128 {v(fs(t4, w_), 4)}, v{vT2} offset:{w_*4096 + t4*1024}")
def smf(rl, sl):
    r = []
    for tg in range(2):
        d = v(vSA + (rl*2+tg)*4, 4)
        r.append(mfma(d, v(vSEL + (2 if tg == 0 else 0), 4), greg(rl, sl), "0" if sl == 0 else d))
    return r
val = []
for t4 in range(4):
    b0, b1, b2, b3 = (fs(t4, w_) for w_ in range(4))
    for r in range(4): val += [f"v_add_f32 v{b0+r}, v{b0+r}, v{b1+r}", f"v_add_f32 v{b2+r}, v{b2+r}, v{b3+r}"]
    for r in range(4): val.append(f"v_add_f32 v{b0+r}, v{b0+r}, v{b2+r}")
    for r in range(4): val.append(f"v_mul_f32 v{b1+r}, s{sT2}, v{b0+r}")
    for r in range(4): val.append(f"v_exp_f32 v{b1+r}, v{b1+r}")
    for r in range(4): val.append(f"v_mul_f32 v{b0+r}, s{sT0}, v{b0+r}")
    for r in range(4): val.append(f"v_add_f32 v{b1+r}, 1.0, v{b1+r}")
    for r in range(4): val.append(f"v_rcp_f32 v{b1+r}, v{b1+r}")
    for r in range(4): val.append(f"v_mul_f32 v{b0+r}, v{b0+r}, v{b1+r}")
for t4 in range(4):
    b2 = fs(t4, 2); xr = vXF + t4*2
    val += [f"v_lshlrev_b32 v{b2}, 16, v{xr}", f"v_and_b32 v{b2+1}, 0xffff0000, v{xr}", f"v_lshlrev_b32 v{b2+2}, 16, v{xr+1}", f"v_and_b32 v{b2+3}, 0xffff0000, v{xr+1}"]
rest = gl2[n2:]
nv1 = OPT['NV1']
step = max(1, nv1 // max(1, len(rest)))
for k_ in range(nv1):
    E(val.pop(0))
    if rest and k_ % step == step - 1: P.ins.append(rest.pop(0))
P.ins += rest
E(f"s_waitcnt vmcnt({32 - 4*F0})")
ms = []
for sq in range(0, 2*F0, 2):
    for rl in range(2):
        for sl in range(sq, sq+2): ms += smf(rl, sl)
per = (len(val) + 8*F0 - 1) // (8*F0)
for m_ in ms:
    E(m_)
    for _ in range(per):
        if val: E(val.pop(0))
for t_ in val: E(t_)
STAMP('g_done')
for sq in range(2*F0, 16, 2):
    for rl in range(2):
        for sl in range(sq, sq+2):
            for m_ in smf(rl, sl): E(m_)
for u in range(4):
    b0 = fs(u, 0); b2 = fs(u, 2)
    for r in range(4): E(f"v_fma_f32 v{b0+r}, v{vSA+u*4+r}, v{b0+r}, v{b2+r}")
    E(f"v_cvt_pk_bf16_f32 v{b0}, v{b0}, v{b0+1}\nv_cvt_pk_bf16_f32 v{b0+1}, v{b0+2}, v{b0+3}")
    E(f"ds_write_b64 v{vPF}, {v(b0,2)} offset:{u*32}")
E(f"""
ds_read_b128 {v(vXF,4)}, v{vT4}
ds_read_b128 {v(vXF+4,4)}, v{vT4} offset:1152
buffer_store_dwordx4 {v(vXF,4)}, v{vAD}, {srd(sOUT)}, 0 offen {OPT['OST']}
buffer_store_dwordx4 {v(vXF+4,4)}, v{vAD}, {srd(sOUT)}, s{sSV1} offen {OPT['OST']}
""")
if OPT['WAITAT']: STAMP('end')
if OPT['STAMP']:
    STAMP('end')
    E(f"""
L_fin:
s_memrealtime s[{sSTMP}:{sSTMP+1}]
s_waitcnt lgkmcnt(0)
v_writelane_b32 v{vSTAMP}, s{sMISS}, 59
v_writelane_b32 v{vSTAMP}, s98, 60
v_writelane_b32 v{vSTAMP}, s100, 61
v_writelane_b32 v{vSTAMP}, s{sSTMP}, 62
s_lshl_b32 s{sT0}, s0, 2
s_add_u32 s{sT0}, s{sT0}, s{sW}
s_lshl_b32 s{sT0}, s{sT0}, 8
s_add_u32 s{sT0}, s{sT0}, {hx(WS_DBG)}
v_lshlrev_b32 v{vT0}, 2, v0
buffer_store_dword v{vSTAMP}, v{vT0}, {srd(sWS)}, s{sT0} offen
""")
E("L_end:\ns_endpgm")
main_ins, log, stats_ = resolve(P.ins)
print("main", stats_, file=sys.stderr)
if OPT['LOG']:
    for l in log: print("  ", l, file=sys.stderr)

Q = Prog(); E = Q.emit
SPIN_MAX = 1 << 17
def spin(label, load, want, cmp):
    E(f"""
{label}:
s_mov_b32 s{sCNT}, {SPIN_MAX}
{label}_loop:
s_sleep 1
{load}
s_waitcnt vmcnt(0)
v_cmp_{cmp}_u32 vcc, {want}, v{vPOLL}
s_sub_u32 s{sCNT}, s{sCNT}, 1
s_cmp_eq_u32 s{sCNT}, 0
s_cbranch_scc1 {label}_ret
s_cbranch_vccnz {label}_loop
s_branch {label}_ret
""")
spin("L_spinh", f"s_lshl_b32 s{sT0}, s{sTC}, 4\nv_mov_b32 v{vT0}, s{sT0}\nglobal_load_dword v{vPOLL}, v{vT0}, {DBGP} sc1", 16, "gt")
spin("L_spin1", VPOLL, 3, "gt")
E("L_redo:\ns_waitcnt vmcnt(0)")
Q.ins += gloads(0, 2*F0, vHS)
E("s_branch L_redo_ret")
MISC = [c['lo'] for c in chunks if c['name'] == 'V_15'][0]
fK, fS, fP, fA, fV, fR, fM = 44, 76, 108, 116, 117, 121, 102
E(f"""
L_exact:
s_waitcnt vmcnt(0) lgkmcnt(0)
s_nop 15
s_mov_b32 s{sSV0}, m0
v_and_b32 v{fA}, 15, v0
v_lshlrev_b32 v{fA}, 9, v{fA}
v_and_b32 v{fM}, 48, v0
v_add_u32 v{fA}, v{fA}, v{fM}
s_lshl_b32 s{sSV1}, s{sW}, 7
s_add_u32 s{sSV2}, s{sWB}, {MISC}
""")
for i in range(4):
    E(f"v_subrev_u32 v{fV+i}, s{sSV1}, v{vVD+i}\nv_add_u32 v{fR+i}, s{sSV2}, v{vTR+i}")
E(f"v_mov_b32 v{fM}, 0xff800000\nv_mov_b32 v{fM+1}, 0xff800000\ns_mov_b32 s{sSV1}, 0")
def ktile(kt, cinit):
    for ks in range(8):
        E(f"buffer_load_dwordx4 {v(fK+4*ks,4)}, v{fA}, {srd(sKK)}, s{sSV1} offen offset:{ks*64}")
    E(f"s_add_u32 s{sSV1}, s{sSV1}, 8192\ns_waitcnt vmcnt(0)")
    for ks in range(8):
        for tg in range(2):
            d = v(fS + tg*8 + kt*4, 4)
            E(mfma(d, v(fK+4*ks, 4), a(qf(ks, tg), 4), (cinit(tg) if ks == 0 else d)))
    E("s_nop 15")
E("L_exact_p1:")
ktile(0, lambda tg: "0")
for tg in range(2):
    b = fS + tg*8
    E(f"v_max3_f32 v{fM+tg}, v{fM+tg}, v{b}, v{b+1}\nv_max3_f32 v{fM+tg}, v{fM+tg}, v{b+2}, v{b+3}")
E(f"s_cmp_lt_u32 s{sSV1}, 262144\ns_cbranch_scc1 L_exact_p1")
for tg in range(2):
    for t_ in allred(fM+tg, fM+2, "v_max_f32"): E(t_)
    for r in range(4): E(f"v_sub_f32 v{vC+4*tg+r}, 0, v{fM+tg}")
for r in range(128): E(f"v_mov_b32 v{vO+r}, 0")
E(f"v_mov_b32 v{vLS}, 0\nv_mov_b32 v{vLS+1}, 0\ns_mov_b32 s{sSV1}, 0\ns_add_u32 m0, s{sWB}, {MISC}\ns_nop 3")
E("L_exact_p2:")
E(f"s_mov_b32 s{sSV2}, s{sSV1}")
ktile(0, lambda tg: v(vC+4*tg, 4))
ktile(1, lambda tg: v(vC+4*tg, 4))
for r in range(16): E(f"v_exp_f32 v{fS+r}, v{fS+r}")
for r in range(16): E(f"v_add_f32 v{vLS + r//8}, v{vLS + r//8}, v{fS+r}")
for r in range(8): E(f"v_cvt_pk_bf16_f32 v{fP+r}, v{fS+2*r}, v{fS+2*r+1}")
for cb in range(4):
    for rb in range(4):
        E(f"buffer_load_dwordx4 v{fV+rb}, {srd(sVV)}, s{sSV2} offen offset:{rb*1024} lds")
    E(f"s_add_u32 s{sSV2}, s{sSV2}, 128\ns_waitcnt vmcnt(0)")
    for u in range(4):
        E(f"ds_read_b64_tr_b16 {v(fK+4*u,2)}, v{fR+u}\nds_read_b64_tr_b16 {v(fK+4*u+2,2)}, v{fR+u} offset:2048")
    E("s_waitcnt lgkmcnt(0)")
    for u in range(4):
        for tg in range(2):
            d = v(Oreg(cb*4+u, tg), 4)
            E(mfma(d, v(fK+4*u, 4), v(fP+4*tg, 4), d))
    E("s_nop 7")
E(f"s_cmp_lt_u32 s{sSV1}, 262144\ns_cbranch_scc1 L_exact_p2")
for tg in range(2):
    for t_ in allred(vLS+tg, fM+2, "v_add_f32"): E(t_)
    E(f"v_rcp_f32 v{vRC+tg}, v{vLS+tg}")
E("s_nop 15")
for ks in range(8):
    for t_ in ocvt(ks): E(t_)
E(f"s_mov_b32 m0, s{sSV0}\ns_nop 15\ns_branch L_exact_ret")
sub_ins, log2, stats2 = resolve(Q.ins)

def sizes_of(ins):
    import subprocess, tempfile, re as re_
    body = [i_ for i_ in ins if i_.cls not in ('label', 'dir')]
    txt_ = '.amdgcn_target "amdgcn-amd-amdhsa--gfx950"\n.text\nL_any:\n' + ''.join('    ' + (re_.sub(r'L_\w+', 'L_any', i_.text) if i_.cls == 'branch' else i_.text) + '\n' for i_ in body)
    d_ = tempfile.mkdtemp()
    open(d_ + '/a.s', 'w').write(txt_)
    subprocess.run(['clang', '-x', 'assembler', '-target', 'amdgcn-amd-amdhsa', '-mcpu=gfx950', '-c', d_ + '/a.s', '-o', d_ + '/a.o'], check=True)
    out_ = subprocess.run(['llvm-objdump', '-d', '--mcpu=gfx950', d_ + '/a.o'], capture_output=True, text=True).stdout
    sz = [4*len(m_.group(1).split()) for m_ in re_.finditer(r'// [0-9A-F]+: ((?:[0-9A-F]{8} ?)+)', out_)]
    assert len(sz) == len(body), (len(sz), len(body))
    return {id(i_): s_ for i_, s_ in zip(body, sz)}
if OPT['PADS']:
    sz = sizes_of(main_ins)
    k0 = [k_ for k_, i_ in enumerate(main_ins) if i_.text == 'L_main:'][0]
    out_ = main_ins[:k0+1]; off = 0; npg = 0
    for i_ in main_ins[k0+1:]:
        if i_.cls not in ('label', 'dir'):
            lo = (npg + 1)*4096
            if off >= lo and (i_.cls == 'mfma' or off + sz[id(i_)] > lo + 56):
                assert off < lo + 64
                out_.append(I(f"L_pg{npg}:")); out_.append(I(f"s_cbranch_execz L_pgn{npg}")); off += 4; npg += 1
            off += sz[id(i_)]
        out_.append(i_)
    for i_ in out_:
        if i_.text.startswith('s_cbranch_execz L_pgn'):
            k_ = int(i_.text.split('L_pgn')[1]) + 4
            i_.text = f"s_cbranch_execz L_pg{k_}" if k_ < npg else "s_cbranch_execz L_main"
    main_ins = out_
    print("code pages", npg, "bytes after L_main", off, file=sys.stderr)
hdr = open(os.path.join(os.path.dirname(os.path.abspath(__file__)), 'header.txt')).read()
txt = hdr + f"""; @launch grid=(256,1,1) block=(256,1,1) lds={LDS_BYTES}
.amdgcn_target "amdgcn-amd-amdhsa--gfx950"
.text
.globl {NAME}_kernel
.p2align 8
.type {NAME}_kernel,@function
{NAME}_kernel:
""" + render(main_ins) + render(sub_ins) + f"""L_pad:
    s_endpgm
.if (L_pad - {"L_main" if OPT["PADS"] else "L_pc"}) < {CODE_LINES*128}
.fill (({CODE_LINES*128} - (L_pad - {"L_main" if OPT["PADS"] else "L_pc"})) / 4) + 16, 4, 0xbf810000
.endif
.section .rodata,"a"
.p2align 6
.amdhsa_kernel {NAME}_kernel
  .amdhsa_next_free_vgpr 512
  .amdhsa_next_free_sgpr 102
  .amdhsa_accum_offset 256
  .amdhsa_group_segment_fixed_size 0
  .amdhsa_kernarg_size 88
  .amdhsa_user_sgpr_count 2
  .amdhsa_user_sgpr_kernarg_segment_ptr 1
  .amdhsa_system_sgpr_workgroup_id_x 1
.end_amdhsa_kernel
"""
if OPT['STAMP']: txt += '; STAMPS ' + ' '.join(stamp_names) + '\n'
open(sys.argv[1], 'w').write(txt)
```

```python
import sys, os, math, struct
from asmlib import *

NAME = "recurrent_scan__sliding_block_cached__dense_activation_relu__prompt"
OPT = dict(D=8, NA=12, HX=2, BAR=2, STAMP=0, PST=0, DUMP='', SIGG=60, FORCEFB=0, LOG=0,
           SST='sc1', HLD='sc1', HST='sc1', GLD='sc1', NOSST=0, NOHLD=0, NOHST=0,
           PX='', PW1='', PWQ='', PKV='', PWO='', PW2='', PF=1, PPF='', OST='', WSOFF=0, HSTEP=7, XREV=0, NPRO=4, WAITAT='', WAITT=0, WAITWG=-1, PADS=1, HSIG=150, HPF=0, PF0=0, PF1=14, CHAIN=1, WB=0, WBD=60, BIG=1, DSTART=0, W2ROT=1, NOPF2=2, HEND=40, XPF=1, L0N=1, X1=28, BARK=36, BARP=2, BARA=2, BAR4=2, SPAN=30, SPAN2=20, NV1=100, PKR=0, PCH=0, TLB=1, TLBP='G2_13', XG=0, STLB=0, ST0=4, STS=40, G6P='66666666666666', NOG=0, NOFLAG=0, W2G=-15, W2S=8, F0=3, F1=5, L0=0, W2PRE=6, H2A=1, H2B=100, SA=48, PA=-38, CA=70, LA=140, SC=30, PB=175, N2=15, G1N=10, XFIRST=4, XSEC=0, WQE=2, OEARLY=2, H2SPAN=60, PFG=170, WQP=2, FINE=0, RT=0, SIMPLE=0, SSP=0)
for a_ in sys.argv[2:]:
    k_, v_ = a_.split('=')
    OPT[k_] = v_.replace('+', ' ') if isinstance(OPT[k_], str) else int(v_)
D = OPT['D']; NA = OPT['NA']

RING_SLOTS = 10
SLOT = 16384
LDS_BYTES = 163840
WS_S = 0
WS_H = 0x1C00000
WS_F = 0x2300000
WS_DBG = 0x2400000
WS_SIZE = 0x8000000 if (OPT['DUMP'] or OPT['STAMP']) else 0x2400000
OOB = 0x7f000000
CSCALE = math.log2(math.e) / 16.0
def f2u(x): return struct.unpack('<I', struct.pack('<f', x))[0]
def hx(x): return f"0x{x & 0xffffffff:x}"

sX, sW1, sWQ, sKK, sVV, sWO, sW2, sWS, sOUT = 28, 32, 36, 40, 44, 48, 52, 56, 60
def srd(b): return f"s[{b}:{b+3}]"
sW, sHD, sT, sWB, sSO = 64, 65, 66, 67, 68
sT0, sT1, sT2, sT3 = 69, 70, 71, 3
sQT = 72
sHST, sHLD, sSST, sSG, sFLG, sFLP, sCNT, sSO2, sTL, sROT, sSTEP, sPC = 86, 87, 88, 89, 90, 91, 92, 93, 94, 95, 96, 97
sTC, sCOOB, sHPF, sW2I, sKVI, sCC = 19, 20, 21, 24, 25, 2
sW1T = 12
sM1, sM2, sM3, sMD = 4, 6, 8, 10
sSV0, sSV1, sSV2 = 12, 13, 14
sSTMP = 26
DBGP = "s[22:23]"
vL16, vHS, vT0, vT1, vT2, vT3, vT4 = 1, 2, 3, 4, 5, 6, 7
vTR = 8
vRA = 20
vPF = 26
vZ, vONE, vPOLL, vSTAMP = 28, 29, 30, 31
vWQ, vKD, vVD, vWOD, vW2D = 32, 36, 40, 32, 36
vXN = 44
vR = 156
vW1D = vR + 64
vXD = vR + 68
vO = 128
vS = 44
vP = 76
vC = 92
vLS = 100
vM = 106
vA4 = 44
vRC = 126
aF, aST, aQ, aH = 0, 48, 64, 128

def v(i, n=1): return f"v{i}" if n == 1 else f"v[{i}:{i+n-1}]"
def a(i, n=1): return f"a{i}" if n == 1 else f"a[{i}:{i+n-1}]"
def mfma(d, A, B, C): return f"v_mfma_f32_16x16x32_bf16 {d}, {A}, {B}, {C}"
def I(t, tag=None): return Ins(t, tag)
lg = lambda x: int(math.log2(x))

P = Prog()
E = P.emit

nstamp = [0]
stamp_names = []
def stamp_ins(name=''):
    if OPT['WAITAT'] and name == OPT['WAITAT']:
        return [I(t_) for t_ in ((f"s_cmp_lg_u32 s0, {OPT['WAITWG']}", "s_cbranch_scc1 L_end") if OPT['WAITWG'] >= 0 else ()) + ("L_dw:", f"s_memrealtime s[{sSTMP}:{sSTMP+1}]", "s_waitcnt lgkmcnt(0)", f"s_sub_u32 s{sSTMP}, s{sSTMP}, s100",
                                 f"s_cmp_lt_u32 s{sSTMP}, {OPT['WAITT']}", "s_cbranch_scc1 L_dw")]
    if not OPT['STAMP']: return []
    if OPT['STAMP'] == 3 and name not in ('end', 'G4', 'wb0', 'wb1', 'G6', 'st_done', 'chk0', 'chk1', 'chk2', 'sigA', 'sigB', 'g6_done', 'g_done', 'pre_c2', 'pre_c1', 'pre_c0'): return []
    if OPT['STAMP'] == 2 and name not in ('end', 'G4', 'P0', 'G2_0', 'g6_done'): return []
    n = nstamp[0]; nstamp[0] += 1; stamp_names.append(name)
    return [I(f"{'s_memrealtime' if OPT['RT'] else 's_memtime'} s[{sSTMP}:{sSTMP+1}]"), I("s_waitcnt lgkmcnt(0)"), I(f"v_writelane_b32 v{vSTAMP}, s{sSTMP}, {n}")]
def STAMP(name=''):
    P.ins += stamp_ins(name)
def PST(name):
    if OPT['PST']: STAMP(name)

frags = []
chunks = []
def add_chunk(name, lo, size, dma, private=False):
    chunks.append(dict(name=name, lo=lo, hi=lo+size, dma=dma, private=private, first=None, last=None)); return len(chunks)-1
def add_frag(kind, rs, rb, addr, mf, ch):
    frags.append(dict(kind=kind, rb=rb, rs=rs, addr=addr, mf=mf, chunk=ch))
    c = chunks[ch]
    if c['first'] is None: c['first'] = len(frags)-1
    c['last'] = len(frags)-1
def frag_reads(f):
    fr = frags[f]; A = aF + 4*(f % NA)
    def rd(op, dst, addr):
        win = addr >> 16
        return I(f"{op} {dst}, v{fr['rb'] + win*fr['rs']} offset:{addr & 0xffff}", tag=('f', f))
    if fr['kind'] == 'tr':
        return [rd("ds_read_b64_tr_b16", a(A, 2), fr['addr']), rd("ds_read_b64_tr_b16", a(A+2, 2), fr['addr'] + 2048)]
    return [rd("ds_read_b128", a(A, 4), fr['addr'])]
POL = {sW1: 'PW1', sWQ: 'PWQ', sKK: 'PKV', sVV: 'PKV', sWO: 'PWO', sW2: 'PW2'}
ring_pos = [7]
def ring_round(name, srd_b, vbase, so_text, private=False):
    slot = ring_pos[0] % RING_SLOTS; ring_pos[0] += 1
    lo = slot*SLOT
    tag = ('c', len(chunks))
    dma = [I(f"s_add_u32 m0, s{sWB}, {lo}")]
    if so_text.startswith('s') or so_text == '0': so = so_text
    elif so_text.startswith('+'):
        dma.append(I(f"s_add_u32 s{sSO}, {so_text[1:]}")); so = f"s{sSO}"
    else:
        dma.append(I(f"s_mov_b32 s{sSO}, {so_text}")); so = f"s{sSO}"
    for rb in range(4):
        dma.append(I(f"buffer_load_dwordx4 v{vbase+rb}, {srd(srd_b)}, {so} offen offset:{rb*1024} {OPT[POL[srd_b]]} lds", tag=tag))
    return add_chunk(name, lo, SLOT, dma, private)

phase = {}
def xn(ks, tg): return vXN + (ks*2 + tg)*4
def accp(pp, kq, tg, par): return vR + (pp % 2)*32 + ((kq*2 + tg)*2 + par)*4
pend_ = []
for pp in range(6):
    phase[f'P{pp}'] = len(frags)
    for ks in range(14):
        qi = 14*pp + ks
        if qi % 4 == 0:
            r_ = qi // 4
            blk_, rp = r_ // 7, r_ % 7
            R_ = 32*(8192 if blk_ < 2 else 3584); sb = sW1T + (0 if blk_ < 2 else 2); cb_ = 256 if blk_ == 1 else 0
            so_ = f"+s{sb+1}, {cb_}" if rp == 3 else f"+s{sb}, {(4*rp*R_ if rp < 3 else (4*rp-14)*R_ + 128) + cb_}"
            ch = ring_round(f"wq_{r_}", sWQ, vWQ, so_) if r_ < 14 else ring_round(f"w1_{r_-14}", sW1, vW1D, so_)
        pend_.append((ks, qi, ch))
        if OPT['PCH'] and ks % 2 == 0: continue
        for u2 in range(2):
            for u in (2*u2, 2*u2+1):
                for ks_, qi_, ch_ in pend_:
                    mf = (lambda A, pp=pp, ks=ks_, u=u: [mfma(v(accp(pp, u >> 1, tg, u & 1), 4), A, v(xn(ks, tg), 4), "0" if ks == 0 else v(accp(pp, u >> 1, tg, u & 1), 4)) for tg in range(2)])
                    add_frag('tr', 4, vTR + u, chunks[ch_]['lo'] + (qi_ % 4)*4096, mf, ch_)
        pend_ = []
def qf(kq, tg): return aQ + (kq*2 + tg)*4
def Sreg(st, tg, kt): return vS + (st % 2)*16 + tg*8 + kt*4
def Preg(st, tg): return vP + (st % 2)*8 + tg*4
def Oreg(d, tg): return vO + (((d >> 1)*2 + tg)*2 + (d & 1))*4
def G2(st):
    phase[f'G2_{st}'] = len(frags)
    ch = ring_round(f"K_{st}", sKK, vKD, str(st*16384))
    order = [(kt, ks) for kt in range(2) for ks in range(8)]
    for kt, ks in order:
        def mf(A, kt=kt, ks=ks):
            r = []
            for tg in range(2):
                c = v(Sreg(st, tg, kt), 4)
                if ks == 0: c = "0" if st < 1 else v(vC + 4*tg, 4)
                r.append(mfma(v(Sreg(st, tg, kt), 4), A, a(qf(ks, tg), 4), c))
            return r
        add_frag('b128', 2, vRA + (ks & 1), chunks[ch]['lo'] + (ks >> 1)*4096 + kt*2048, mf, ch)
def G3(st):
    phase[f'G3_{st}'] = len(frags)
    ch = ring_round(f"V_{st}", sVV, vVD, str(st*16384))
    for d in range(16):
        mf = (lambda A, d=d: [mfma(v(Oreg(d, tg), 4), A, v(Preg(st, tg), 4), "0" if st == 0 else v(Oreg(d, tg), 4)) for tg in range(2)])
        add_frag('tr', 4, vTR + (d & 3), chunks[ch]['lo'] + (d >> 2)*4096, mf, ch)
G2(0)
for st in range(15):
    G2(st + 1); G3(st)
G3(15)
phase['G4'] = len(frags)
def acc4(p, u, tg): return vA4 + (((u >> 1)*2 + tg)*2 + (u & 1))*4
def Opk(ks, tg): return vO + (ks*2 + tg)*8
def hole(i): return vO + 8*i + 4
def hreg(kk, t4):
    i = kk*4 + t4
    if i < 32: return a(aH + 4*i, 4)
    if i < 48: return a(aQ + 4*(i-32), 4)
    return v(hole(i-48), 4)
def facc(u, t4):
    i = u*4 + t4
    return vA4 + 32 + 4*i if i < 8 else hole(i)
vTP = 108
G6P = OPT['G6P']
assert len(G6P) == 14
kk = 0
for p in range(7):
    phase[f'G4p{p}'] = len(frags)
    chs = [ring_round(f"wo_{p}_{h_}", sWO, vWOD, f"s{sQT+p}" if h_ == 0 else f"+s{sQT+p}, {4*32*896}") for h_ in range(2)]
    for u in range(4):
        for ks in range(8):
            ch = chs[ks // 4]
            mf = (lambda A, p=p, ks=ks, u=u: [mfma(v(acc4(p, u, tg), 4), A, v(Opk(ks, tg), 4), "0" if ks == 0 else v(acc4(p, u, tg), 4)) for tg in range(2)])
            add_frag('tr', 4, vTR + u, chunks[ch]['lo'] + (ks % 4)*4096, mf, ch)
    if p == 6: phase['G6'] = len(frags); NPOST = 14 - kk
    while kk < 14 and int(G6P[kk]) == p:
        phase[f'G6_{kk}'] = len(frags)
        ch = ring_round(f"w2_{kk}", sW2, vW2D, str(kk*32*896), private=True)
        for u in range(4):
            mf = (lambda A, kk=kk, u=u: [mfma(v(facc(u, t4), 4), A, hreg(kk, t4), "0" if kk == 0 else v(facc(u, t4), 4)) for t4 in range(4)])
            add_frag('tr', 4, vTP + u, chunks[ch]['lo'], mf, ch)
        kk += 1
assert kk == 14
NF = len(frags)
phase['END'] = NF

MF = [fr['mf'](a(aF + 4*(f % NA), 4)) for f, fr in enumerate(frags)]
if OPT['CHAIN']:
    for f0 in range(0, NF, 4):
        nm_ = chunks[frags[f0]['chunk']]['name']
        if nm_.startswith('K_') or nm_.startswith('wo_') or (OPT['PCH'] and nm_[:2] in ('wq', 'w1')):
            fl = [MF[f0+k_][tg] for tg in range(2) for k_ in range(4)]
            for k_ in range(4): MF[f0+k_] = fl[2*k_:2*k_+2]
G0 = [0]
for f in range(NF): G0.append(G0[-1] + len(MF[f]))
NG = G0[-1]
def gap(f): return G0[max(0, min(f, NF))]
pre = [[] for _ in range(NG)]
rds = [[] for _ in range(NG)]
ext = [[] for _ in range(NG)]
blk = {}
for g in range(NF):
    if g + D < NF:
        r = frag_reads(g + D)
        n = len(MF[g])
        rds[G0[g]].append(r[0])
        if len(r) > 1: rds[G0[g] + n//2].append(r[1])
def cost(i):
    if i.cls in ('ds',): return 8
    if i.cls == 'vmem': return 24 if 'store' in i.op and 'x4' in i.op else 8
    if i.cls in ('trans', 'perm'): return 8
    if i.cls == 'label': return 0
    return 4
def gtime(items):
    t = 4
    for i in items:
        if i.cls in VALU_LIKE: t = max(t, 8)
        t += cost(i)
    return t
def fits(gp, i): return gtime(pre[gp] + rds[gp] + ext[gp] + [i]) <= 16
def place(seq, g0, g1=None):
    seq = [I(s) if isinstance(s, str) else s for s in seq]
    g1 = NG if g1 is None else min(g1, NG)
    gp = g0; n = len(seq)
    for k, ins in enumerate(seq):
        bound = max(min(g0 + ((k + 1) * (g1 - g0)) // n - 1, g1 - 1), gp)
        best = None
        for q in range(gp, bound + 1):
            if fits(q, ins): best = q; break
        if best is None:
            best = min(range(gp, bound + 1), key=lambda q: (gtime(pre[q] + rds[q] + ext[q] + [ins]), q))
        ext[best].append(ins)
        gp = best
    return gp
def spread(seq, g0, g1):
    n = len(seq); cur = g0
    for k, ins in enumerate(seq):
        lo = max(g0 + (k*(g1-g0))//n, cur); hi = max(g0 + ((k+1)*(g1-g0))//n, lo+1)
        cur = place([ins], lo, hi)
    return cur

shared = [c for c in range(len(chunks)) if not chunks[c]['private']]
def is_bar(k_):
    if k_ == 0: return True
    if k_ < 21: return (k_ - 1) % OPT['BARP'] == 0
    if k_ < 53: return (k_ - 21) % OPT['BARA'] == 0
    return (k_ - 53) % OPT['BAR4'] == 0
bar_frags = [chunks[c]['first'] for k_, c in enumerate(shared) if is_bar(k_)]
bar_frags += [phase['G6'], phase['G6'] + D + 1]
bar_frags = sorted(set(bar_frags))
bar_gap = []
first_need = None
for bi, f0 in enumerate(bar_frags):
    f1 = bar_frags[bi+1] if bi + 1 < len(bar_frags) else NF
    need = [('c', c) for c in shared if f0 <= chunks[c]['first'] < f1]
    if f0 == 0: first_need = need; continue
    gp = gap(f0 - D); bar_gap.append(gp)
    if need: ext[gp-1].append(mk_wait_vm(need))
    pre[gp].append(I("s_barrier"))
for c in range(len(chunks)):
    if chunks[c]['private']:
        ext[gap(chunks[c]['first'] - D) - 1].append(mk_wait_vm([('c', c)]))
for g in range(4, NF, 4):
    ext[gap(g) - 1].append(mk_wait_lg([('f', f) for f in range(g, min(g+4, NF))]))
def earliest_gap(c):
    e = -1
    C = chunks[c]
    for c2 in range(c):
        B = chunks[c2]
        if B['hi'] <= C['lo'] or C['hi'] <= B['lo']: continue
        if B['private']: e = max(e, gap(B['last'] + 1))
        else: e = max(e, [gp for gp in bar_gap if gp >= gap(B['last'] + 1)][0] + 1)
    return e
pro_dma = []
cur = OPT['DSTART']
for c in range(len(chunks)):
    e = earliest_gap(c)
    if e < 0 and c < OPT['NPRO']:
        pro_dma.append(chunks[c]['dma']); continue
    g0 = max(e, cur)
    span = OPT['SPAN']
    if g0 > e + 8: span = OPT['SPAN2']
    if g0 >= gap(phase['G6'] - D): span = OPT['W2S']
    seq = list(chunks[c]['dma'])
    if chunks[c]['name'] == 'wo_0_0': seq = [I(f"v_accvgpr_read_b32 v{vWOD+i}, a{aST+i}") for i in range(4)] + seq; wo_first_gap = g0
    if chunks[c]['name'] == 'w2_0': seq = [I(f"v_accvgpr_read_b32 v{vW2D+i}, a{aST+4+i}") for i in range(4)] + seq
    cur = spread(seq, g0, g0 + span)
    need_gap = gap(chunks[c]['first'] - D)
    if not chunks[c]['private']: need_gap = max(gp for gp in bar_gap if gp <= need_gap)
    if OPT['LOG']: print(chunks[c]['name'], g0, cur, need_gap, 'lead', need_gap - cur, file=sys.stderr)
    assert cur < need_gap - 1, (chunks[c]['name'], cur)

seq = []
for p in range(7):
    seq += [f"s_add_u32 s{sT2}, s{sROT}, {p}", f"s_sub_u32 s{sT3}, s{sT2}, 7", f"s_min_u32 s{sT2}, s{sT2}, s{sT3}",
            f"s_lshl_b32 s{sQT+p}, s{sT2}, 7", f"s_lshl_b32 s{sT2}, s{sT2}, 16", f"s_add_u32 s{sQT+7+p}, s{sSST}, s{sT2}",
            f"s_add_u32 s{sSST}, s{sSST}, s{sSTEP}"]
spread(seq, 6, 100)
assert gap(phase['G3_8']) < wo_first_gap
assert OPT['BAR'] == 2
place([f"v_add_u32 v{vTP+i}, s{sWB}, v{vTR+i}" for i in range(12)], gap(phase['G4'] + 2), gap(phase['G4'] + 22))

def hconv(pp):
    s = []
    for kq in range(2):
        for tg in range(2):
            b = accp(pp, kq, tg, 0)
            if not OPT['PKR']:
                for r in range(8): s.append(f"v_max_f32 v{b+r}, 0, v{b+r}")
            for r in range(4): s.append(f"v_cvt_pk_bf16_f32 v{b+r}, v{b+2*r}, v{b+2*r+1}")
            if OPT['PKR']:
                for r in range(4): s.append(f"v_pk_max_i16 v{b+r}, v{b+r}, 0")
            if not OPT['NOHST']:
                s.append(I(f"buffer_store_dwordx4 {v(b,4)}, v{vHS}, {srd(sWS)}, s{sHST} offen offset:{kq*2048 + tg*1024} {OPT['HST']}", tag='hst'))
    if pp == 4: s.append(f"s_add_u32 s{sHST}, s{sHST}, 4096")
    return s
place(hconv(4), gap(phase['P5']) + 4, gap(phase['G2_0']) - 4)
def qconv(pp):
    s = []
    for kq in range(2):
        for tg in range(2):
            b = accp(pp, kq, tg, 0)
            s += [f"v_cvt_pk_bf16_f32 v{b+r}, v{b+2*r}, v{b+2*r+1}" for r in range(4)]
            s += [f"v_permlane32_swap_b32 v{b}, v{b+2}", f"v_permlane32_swap_b32 v{b+1}, v{b+3}",
                  f"v_permlane16_swap_b32 v{b}, v{b+2}", f"v_permlane16_swap_b32 v{b+1}, v{b+3}"]
            s += [f"v_accvgpr_write_b32 a{qf(2*pp+kq, tg)+r}, v{b+r}" for r in range(4)]
    return s
for pp in range(4):
    g0 = gap(phase[f'P{pp+1}'])
    place(qconv(pp), g0 + 4, g0 + 2*56 - 4)

def allred(r, t, op):
    return [f"v_mov_b32 v{t}, v{r}", f"v_permlane32_swap_b32 v{r}, v{t}", f"{op} v{r}, v{r}, v{t}",
            f"v_mov_b32 v{t}, v{r}", f"v_permlane16_swap_b32 v{r}, v{t}", f"{op} v{r}, v{r}, v{t}"]
def interleave(*seqs):
    out = []
    for k in range(max(len(s) for s in seqs)):
        for s in seqs:
            if k < len(s): out.append(s[k])
    return out
def svals(st): return [Sreg(st, tg, kt) + r for tg in range(2) for kt in range(2) for r in range(4)]
g0 = gap(phase['G2_0'])
seqs = []
for tg in range(2):
    b = Sreg(0, tg, 0); m = vM + 2*tg; t = m + 1
    s = [f"v_max3_f32 v{m}, v{b}, v{b+1}, v{b+2}", f"v_max_f32 v{m}, v{m}, v{b+3}"] + allred(m, t, "v_max_f32")
    s += [f"v_sub_f32 v{vC+4*tg+r}, 0, v{m}" for r in range(4)]
    seqs.append(s)
seq = interleave(*seqs) + [f"v_mov_b32 v{vLS}, 0", f"v_mov_b32 v{vLS+1}, 0"]
gm = place(seq, g0 + 19, g0 + 31)
def sm_seq(st, sub):
    s = []
    vals = svals(st)
    for k_, r in enumerate(vals):
        tg = k_ // 8
        if sub: s.append(f"v_add_f32 v{r}, v{r}, v{vC+4*tg}")
        s.append(f"v_exp_f32 v{r}, v{r}")
        if k_ % 2 == 1 and k_ >= 3:
            kk = k_ - 3
            s.append(f"v_cvt_pk_bf16_f32 v{Preg(st, kk//8) + (kk % 8)//2}, v{vals[kk]}, v{vals[kk+1]}")
    s.append(f"v_cvt_pk_bf16_f32 v{Preg(st, 1) + 3}, v{vals[14]}, v{vals[15]}")
    return s
def add_seq(st):
    vals = svals(st)
    return interleave([f"v_add_f32 v{vLS}, v{vLS}, v{r}" for r in vals[:8]], [f"v_add_f32 v{vLS+1}, v{vLS+1}, v{r}" for r in vals[8:]])
for st in range(16):
    g3 = gap(phase[f'G3_{st}'])
    if st == 0:
        ge = place(sm_seq(st, True), gap(phase['G2_1']) + 3, g3 - 1)
    elif st < 15:
        gs = gap(phase[f'G2_{st+1}'] - D)
        ge = place(sm_seq(st, False), gs, g3 - 2)
    else:
        ge = place(sm_seq(st, False), gap(phase['G3_14']) + 4, g3 - 2)
    lim = gap(phase[f'G2_{st+2}']) - 2 if st + 2 < 16 else g3 + 14
    ga = place(add_seq(st), ge, lim)
seqs = []
for tg in range(2):
    l = vLS + tg; t = vM + tg
    seqs.append(allred(l, t, "v_add_f32") + [f"v_rcp_f32 v{vRC+tg}, v{l}"])
seq = interleave(*seqs) + [f"v_add_f32 v{vM}, v{vLS}, v{vLS+1}", f"s_mov_b32 s{sT0}, {hx(f2u(2.0**24 if not OPT['FORCEFB'] else 0.5))}", f"v_cmp_ngt_f32 vcc, s{sT0}, v{vM}"]
place(seq, ga, gap(phase['G4']) - 1)

hc = hconv(5)
n3 = 3*len(hc)//4
place(hc[:n3], gap(phase['G2_0']) + 3, gap(phase['G2_0']) + 19)
gend = place(hc[n3:], gap(phase['G3_0']), gap(phase['G3_0']) + 16)
assert accp(5, 1, 1, 0) >= Oreg(10, 0)
hb = [gp for gp in bar_gap if gp > gend + OPT['HSIG']][0]
ext[hb-1].append(mk_wait_vm(['hst']))
sig = [I(f"s_cmp_lg_u32 s{sW}, 0"), I("s_cbranch_scc1 L_nosig"), I(f"s_lshl_b32 s{sT0}, s{sT}, 4"), I(f"v_mov_b32 v{vPOLL}, s{sT0}"),
       I("s_mov_b64 exec, 1"), I(f"global_atomic_add v{vPOLL}, v{vONE}, {DBGP} sc1"), I("s_mov_b64 exec, -1"), I("L_nosig:")]
sig[5].cls = 'misc'
ext[hb+1] += sig

def dump(regs_list):
    r = [I("s_nop 15"), I(f"s_lshl_b32 s{sT0}, s{sT}, 4"), I(f"s_add_u32 s{sT0}, s{sT0}, s{sHD}"),
         I(f"s_lshl_b32 s{sT0}, s{sT0}, 2"), I(f"s_add_u32 s{sT0}, s{sT0}, s{sW}"),
         I(f"s_mul_i32 s{sT0}, s{sT0}, {32*1024}"), I(f"s_add_u32 s{sT0}, s{sT0}, {hx(WS_DBG)}")]
    for reg in regs_list:
        r.append(I(f"buffer_store_dwordx4 {reg}, v{vL16}, {srd(sWS)}, s{sT0} offen"))
        r.append(I(f"s_add_u32 s{sT0}, s{sT0}, 1024"))
    r.append(I("s_nop 3"))
    return r
def ocvt(ks): return [f"v_cvt_pk_bf16_f32 v{Opk(ks, tg)+r}, v{Opk(ks, tg)+2*r}, v{Opk(ks, tg)+2*r+1}" for tg in range(2) for r in range(4)]
NEARLY = OPT['OEARLY']
g15 = gap(phase['G3_15'])
for ks in range(NEARLY): place(ocvt(ks), g15 + 4*ks + 8, gap(phase['G4']) - 1)
b = stamp_ins('attn_done') + [I("s_cbranch_vccnz L_exact")]
for ks in range(NEARLY, 8): b += [I(t_) for t_ in ocvt(ks)]
b.append(I("L_exact_ret:"))
if OPT['DUMP'] == 'o': b += dump([v(Opk(ks, tg), 4) for ks in range(8) for tg in range(2)])
if OPT['DUMP'] == 'q': b += dump([a(qf(ks, tg), 4) for ks in range(8) for tg in range(2)])
b += stamp_ins('G4')
blk[phase['G4']] = b

def sconv(p, u):
    s = []
    for tg in range(2):
        b = acc4(p, u, tg); d = acc4(p, u & ~1, tg) + 2*(u & 1)
        s += [f"v_mul_f32 v{b+r}, v{vRC + tg}, v{b+r}" for r in range(4)]
        s += [f"v_cvt_pk_bf16_f32 v{d}, v{b}, v{b+1}", f"v_cvt_pk_bf16_f32 v{d+1}, v{b+2}, v{b+3}"]
        if u & 1:
            if (u, tg) != (1, 0): s.append(f"s_add_u32 s{sQT+7+p}, s{sQT+7+p}, 16384")
            if not OPT['NOSST']: s.append(I(f"buffer_store_dwordx4 {v(acc4(p, u & ~1, tg),4)}, v{vL16}, {srd(sWS)}, s{sQT+7+p} offen {OPT['SST']}", tag=('sst', p)))
    return s
g4 = gap(phase['G4'])
for p in range(7):
    for u in range(4):
        g0 = gap(phase[f'G4p{p}']) + 16*(u+1)
        if u == 3 and p < 6: gl = place(sconv(p, u), g0 + 3, g0 + 28)
        else: gl = place(sconv(p, u), g0 + 3, g0 + (19 if (p, u) != (6, 3) else 10))
last_store_gap = gl
hs = OPT['HSTEP']
gp0 = gap(phase[f'G3_{hs-1}']) - 30
place([f"s_lshl_b32 s{sT0}, s{sTC}, 4", f"v_mov_b32 v{vPOLL}, s{sT0}", I(f"global_load_dword v{vPOLL}, v{vPOLL}, {DBGP} sc1", tag='pollh'),
       f"v_add_u32 v{vHS}, s{sCOOB}, v{vL16}"], gp0, gp0 + 24)
gp1 = gap(phase[f'G3_{hs}'])
ext[gp1] += [mk_wait_vm(['pollh']), I(f"v_cmp_gt_u32 vcc, 16, v{vPOLL}"), I("s_cbranch_vccnz L_spinh"), I("L_spinh_ret:")]
def hloads(k0, k1):
    s = []
    for kk in range(k0, k1, 2):
        for rl in range(2):
            s.append(f"s_add_u32 s{sT0}, s{sHLD}, {rl*56*2048 + kk*2048}")
            for k2 in range(2):
                for tg in range(2):
                    s.append(I(f"buffer_load_dwordx4 {hreg(kk+k2, rl*2+tg)}, v{vHS}, {srd(sWS)}, s{sT0} offen offset:{k2*2048 + tg*1024} {OPT['HLD']}", tag='hld'))
    return s
if not OPT['NOHLD']:
    spread(hloads(0, 8), gap(phase[f"G3_{hs+OPT['HPF']}"]) + 2, gap(phase['G3_15']) - OPT['HEND'])
    spread(hloads(8, 14), g4 + OPT['H2A'], g4 + OPT['H2B'])
g6 = gap(phase['G6'])
vFV = 120
def greg(rl, sl):
    i = sl*2 + rl
    if NPOST <= 10: i = (i + 16) % 32
    if i < 16: return v(Opk(0, 0) + 8*i, 4)
    return a(aH + (i - 16)*4, 4)
assert OPT['CA'] > 0 or (NPOST <= 10 and g6 + OPT['CA'] > gap(phase['G6_3'] + 4))
def gloads(s0, s1, va):
    s = []
    for sq in range(s0, s1, 2):
        for rl in range(2):
            s.append(I(f"s_add_u32 s{sT1}, s{sSG}, {rl*2*16384 + sq*1024}"))
            for sl in range(sq, sq+2):
                if not OPT['NOG']: s.append(I(f"buffer_load_dwordx4 {greg(rl, sl)}, v{va}, {srd(sWS)}, s{sT1} offen offset:{(sl-sq)*1024} {OPT['GLD']}", tag=('g', rl, sl)))
    return s
F0 = OPT['F0']
sPL = 32
sMISS = 18
place([f"v_mov_b32 v{vFV}, 1", f"v_mov_b32 v{vFV+1}, 3", f"v_and_b32 v{vFV+3}, 15, v0"], g4 + 100, g4 + 200)
def signal(k, n): return [mk_wait_vm([('sst', p) for p in range(n)]), I(f"buffer_store_byte v{vFV+k}, v{vZ}, {srd(sWS)}, s{sFLG} offen sc1", tag='flag')]
spoll = I(f"s_buffer_load_dwordx4 s[{sPL}:{sPL+3}], {srd(sWS)}, s{sFLP} glc"); spoll.cls = 'misc'
VPOLL = f"buffer_load_ubyte v{vPOLL}, v{vFV+3}, {srd(sWS)}, s{sFLP} offen sc1"
if OPT['WB']:
    def signal(k, n, gp):
        ext[gp - OPT['WBD']] += [mk_wait_vm([('sst', p) for p in range(n)]), I("buffer_wbl2 sc1", tag=('wb', k))] + stamp_ins(f'wb{k}')
        return [mk_wait_vm([('wb', k)]), I(f"buffer_store_byte v{vFV+k}, v{vZ}, {srd(sWS)}, s{sFLG} offen sc1", tag='flag')]
else:
    signal_ = signal
    def signal(k, n, gp): return signal_(k, n)
ga_ = gap(phase[f'G4p{F0-1}']) + 64 + OPT['SA']
ext[ga_] += signal(0, F0, ga_) + stamp_ins('sigA')
ext[g6 + OPT['PA']] += [spoll]
sg = g6 + OPT['SC']
ext[sg] += signal(1, 7, sg) + stamp_ins('st_done') + [I(f"s_cmp_ge_u32 s{sPC}, 14"), I("s_cbranch_scc1 " + ("L_fin" if OPT['STAMP'] == 3 else "L_end"))]
assert sg > bar_gap[-1] and sg > last_store_gap
ext[g6 + OPT['CA']] += stamp_ins('pre_c0') + [I(t_) for t_ in (
    "s_waitcnt lgkmcnt(0)", f"s_and_b64 s[{sPL}:{sPL+1}], s[{sPL}:{sPL+1}], s[{sPL+2}:{sPL+3}]", f"s_and_b32 s{sPL}, s{sPL}, s{sPL+1}",
    f"s_and_b32 s{sPL}, s{sPL}, 0x01010101", f"s_cmp_eq_u32 s{sPL}, 0x01010101", f"s_cselect_b32 s{sMISS}, 0, {hx(OOB)}",
    f"v_add_u32 v{vFV+2}, s{sMISS}, v{vHS}")] + stamp_ins('chk0')
spread(gloads(0, 2*F0, vFV+2), g6 + OPT['CA'] + 1, g6 + OPT['LA'])
ext[g6 + OPT['PB']] += [I(VPOLL, tag='poll')]

vXF = 68
vAD = 125
nch = len(chunks)
XK = [c_ for c_ in range(nch - 10, nch) if chunks[c_]['private'] and chunks[c_]['lo'] >= 4*SLOT][0]
XS = chunks[XK]['lo']
gx_ = max(gap(chunks[XK]['last'] + 1), cur + 1, g6 + OPT['XG'])
gx2 = place([f"v_accvgpr_read_b32 v{vAD}, a{aST+8}", f"s_add_u32 m0, s{sWB}, {XS}", f"s_movk_i32 s{sSV0}, {8*896 - 1024}", f"s_movk_i32 s{sSV1}, {8*896}",
       I(f"buffer_load_dwordx4 v{vAD}, {srd(sX)}, 0 offen lds", tag='xf'), I(f"buffer_load_dwordx4 v{vAD}, {srd(sX)}, s{sSV0} offen offset:1024 lds", tag='xf'),
       f"v_and_b32 v{vT3}, 15, v0", f"v_lshlrev_b32 v{vT3}, 7, v{vT3}", f"v_lshrrev_b32 v{vT4}, 4, v0", f"v_lshl_add_u32 v{vT3}, v{vT4}, 3, v{vT3}",
       f"s_add_u32 s{sSV2}, s{sWB}, {XS}", f"v_add_u32 v{vT3}, s{sSV2}, v{vT3}", f"v_lshrrev_b32 v{vT4}, 3, v0", f"v_lshl_add_u32 v{vT4}, v{vT4}, 4, v{vL16}", f"v_add_u32 v{vT4}, s{sSV2}, v{vT4}",
       f"v_and_b32 v{vPF}, 15, v0", f"v_lshl_add_u32 v{vPF}, v{vPF}, 4, v{vT3}"], gx_, gx_ + 30)
HX = OPT['HX']; NHG = 16 // HX; NT = 32 // HX
npf = [0]
def pf_addr(nlines, lines_per_row, pitch, k, dst, idx_sgpr, nshare):
    per = nlines // nshare
    s = [f"s_lshl_b32 s{sSO2}, s{sW}, 6", f"s_add_u32 s{sSO2}, s{sSO2}, {k*256}", f"v_add_u32 v{dst}, s{sSO2}, v0",
         f"v_min_u32 v{dst}, {per-1}, v{dst}", f"s_mul_i32 s{sSO2}, s{idx_sgpr}, {per}", f"v_add_u32 v{dst}, s{sSO2}, v{dst}"]
    if lines_per_row is None:
        s += [f"v_lshlrev_b32 v{dst}, 7, v{dst}"]
    else:
        sh = lg(lines_per_row)
        s += [f"v_and_b32 v{vPF}, {lines_per_row-1}, v{dst}", f"v_lshrrev_b32 v{dst}, {sh}, v{dst}",
              f"v_mul_u32_u24 v{dst}, {pitch}, v{dst}", f"v_lshl_add_u32 v{dst}, v{vPF}, 7, v{dst}"]
    return s
def pf_load(srd_b, dst):
    npf[0] += 1
    return I(f"buffer_load_dword a{aST + 10 + npf[0] % 6}, v{dst}, {srd(srd_b)}, 0 offen {OPT['PPF']}", tag='pf')
def pf_seq(srd_b, nlines, lines_per_row, pitch, idx, nshare):
    s = []
    for k in range((nlines // nshare + 255) // 256):
        s += pf_addr(nlines, lines_per_row, pitch, k, vPF+1, idx, nshare) + [pf_load(srd_b, vPF+1)]
    return s
vLQ = 26
def pf_pieces(srd_b, per, unit, idx, extra_base=None, pol='', rot=False):
    setup = [f"s_mul_i32 s{sSO2}, s{idx}, {per}", f"v_add_u32 v{vPF+1}, s{sSO2}, v{vLQ}", f"v_mul_u32_u24 v{vPF+1}, {unit}, v{vPF+1}"]
    if extra_base is not None: setup.append(f"v_add_u32 v{vPF+1}, s{extra_base}, v{vPF+1}")
    pcs = []
    for k in range((per + 63)//64):
        npf[0] += 1
        n_ = (per + 63)//64
        if rot and k == 0: so_ = [f"s_lshr_b32 s{sSO2}, s{sTC}, 1", f"s_sub_u32 s{sCNT}, s{sSO2}, {n_}", f"s_min_u32 s{sSO2}, s{sSO2}, s{sCNT}", f"s_mul_i32 s{sSO2}, s{sSO2}, {64*unit}"]
        elif rot: so_ = [f"s_add_u32 s{sSO2}, s{sSO2}, {64*unit}", f"s_sub_u32 s{sCNT}, s{sSO2}, {n_*64*unit}", f"s_min_u32 s{sSO2}, s{sSO2}, s{sCNT}"]
        else: so_ = [f"s_mov_b32 s{sSO2}, {k*64*unit}"]
        pcs.append(so_ + [I(f"buffer_load_dword a{aST + 9 + npf[0] % 7}, v{vPF+1}, {srd(srd_b)}, s{sSO2} offen {pol}", tag='pf')])
    return setup, pcs
def pf_run(streams, g0, g1):
    items = []
    for st_ in streams:
        su, pcs = st_
        for k, p_ in enumerate(pcs): items.append((su if k == 0 else []) + p_)
    n = len(items)
    for k, it_ in enumerate(items):
        lo = g0 + (k*(g1-g0))//n
        place(it_, lo, lo + 24)
if OPT['PF']:
    place([f"v_lshrrev_b32 v{vLQ}, 2, v0", f"s_lshl_b32 s{sSO2}, s{sW}, 4", f"v_add_u32 v{vLQ}, s{sSO2}, v{vLQ}"], 100, 130)
    if not OPT['BIG'] & 2: pf_run([pf_pieces(sKK, 2048//(2*NT), 128, sKVI, pol=OPT['PPF']), pf_pieces(sVV, 2048//(2*NT), 128, sKVI, pol=OPT['PPF'])], OPT['PFG'], gap(phase['P4']))
    if not OPT['NOPF2'] & 1: pf_run([pf_pieces(sWO, 1792//NT, 128, sTL), pf_pieces(sW2, 448, 896, sW2I, rot=OPT['W2ROT'])], gap(phase[f"G3_{OPT['PF0']}"]), gp1 if OPT['PF1'] == 0 else gap(phase[f"G3_{OPT['PF1']}"]))
    vPF += -20
    sSO2 = sT3
    if not OPT['NOPF2'] & 2: pf_run([pf_pieces(sWS, 256, 128, sCC, sHPF, 'sc1')], gp1 + 2, gap(phase[f"G3_{hs+OPT['HPF']}"]) - 20)
    vPF += 20
    sSO2 = 93

if OPT['STLB'] == 2:
    for k_, (b_, o_) in enumerate(((sKK, '0'), (sVV, '0'), (sW2, '0'), (sWO, '0'), (sWS, f's{sHST}'), (sWS, f's{sQT+7}'), (sOUT, '0'))):
        i_ = I(f"s_buffer_load_dword s1, {srd(b_)}, {o_}"); i_.cls = 'misc'; i_.dst = []
        place([i_], OPT['ST0'] + k_*OPT['STS'], OPT['ST0'] + k_*OPT['STS'] + 8)
if OPT['TLB']:
    gt = gap(phase[OPT['TLBP']])
    seq = []
    if OPT['TLB'] & 1: seq += [f"v_accvgpr_read_b32 v{vT1}, a{aST+8}", f"v_readfirstlane_b32 s{sT2}, v{vT1}", "s_nop 0", "s_nop 0", I(f"buffer_load_dword a{aST+9}, v{vZ}, {srd(sOUT)}, s{sT2} offen", tag='pf')]
    if OPT['TLB'] & 2: seq += [I(f"buffer_load_dword a{aST+9}, v{vZ}, {srd(sWS)}, s{sQT+7} offen sc1", tag='pf')]
    if OPT['TLB'] & 4: seq += [I(f"buffer_load_dword a{aST+9}, v{vZ}, {srd(sWS)}, s{sSG} offen sc1", tag='pf'), ]
    spread(seq, gt, gt + 40)
    if OPT['TLB'] & 8: place([I(f"buffer_load_dword a{aST+9}, v{vZ}, {srd(sWS)}, s{sHST} offen sc1", tag='pf')], gap(phase['P3']), gap(phase['P3']) + 20)
if OPT['FINE'] == 1:
    for p in range(1, 7): blk[phase[f'G4p{p}']] = stamp_ins(f'G4p{p}')
if OPT['FINE'] == 2:
    for nm in ['P1', 'P3', 'P5'] + [f'G2_{s_}' for s_ in range(1, 16) if s_ % 4] + ['G3_14', 'G3_15']:
        blk[phase[nm]] = stamp_ins(nm)
if OPT['STAMP'] or OPT['WAITAT']:
    for nm in ('P0', 'P2', 'P4', 'G2_0', 'G2_4', 'G2_8', 'G2_12', 'G6'):
        blk.setdefault(phase[nm], [])
        blk[phase[nm]] = stamp_ins(nm) + blk[phase[nm]]

E(f"""
s_cmp_ge_u32 s2, 256
s_cbranch_scc1 L_end
s_load_dwordx16 s[4:19], s[0:1], 0
s_load_dwordx4 s[20:23], s[0:1], 64
s_load_dwordx2 s[24:25], s[0:1], 80
""")
if OPT['STAMP'] or OPT['WAITAT']: E("s_memtime s[98:99]\ns_memrealtime s[100:101]")
E(f"""
v_lshrrev_b32 v{vT0}, 6, v0
v_and_b32 v0, 63, v0
s_and_b32 s{sT0}, s2, 7
v_readfirstlane_b32 s{sW}, v{vT0}
s_lshr_b32 s{sT1}, s2, 3
s_and_b32 s{sT2}, s{sT0}, {NHG-1}
s_lshl_b32 s{sT2}, s{sT2}, {lg(HX)}
s_and_b32 s{sHD}, s{sT1}, {HX-1}
s_add_u32 s{sHD}, s{sHD}, s{sT2}
s_lshr_b32 s{sT2}, s{sT0}, {lg(NHG)}
s_lshl_b32 s{sT2}, s{sT2}, {lg(NT)}
s_lshr_b32 s{sTL}, s{sT1}, {lg(HX)}
s_add_u32 s{sT}, s{sTL}, s{sT2}
s_lshl_b32 s{sWB}, s{sW}, 12
""")
CODE_LINES = 512
E(f"s_lshr_b32 s{sCNT}, s2, 3")
for t_ in pf_addr(CODE_LINES, None, 0, 0, vR+80, sCNT, 32): E(t_)
E(f"""
s_getpc_b64 s[26:27]
L_pc:
global_load_dword v{vR+90}, v{vR+80}, s[26:27]
""")
E(f"""
v_lshrrev_b32 v{vT3}, 3, v0
v_and_b32 v{vT4}, 7, v0
v_lshrrev_b32 v{vT1}, 1, v{vT3}
v_xor_b32 v{vT1}, v{vT1}, v{vT4}
v_lshlrev_b32 v{vT1}, 4, v{vT1}
v_xor_b32 v{vT2}, 64, v{vT1}
s_lshl_b32 s{sT1}, s{sT}, 2
s_add_u32 s{sT1}, s{sT1}, s{sW}
s_mul_i32 s{sT1}, s{sT1}, {32*896}
v_mul_u32_u24 v{vT0}, 896, v{vT3}
v_add_u32 v{vT0}, s{sT1}, v{vT0}
v_add_u32 v{vXD}, v{vT0}, v{vT1}
v_add_u32 v{vXD+1}, v{vT0}, v{vT2}
v_add_u32 v{vXD+2}, {2*6144}, v{vXD}
v_add_u32 v{vXD+3}, {3*6144}, v{vXD+1}
v_add_u32 v{vXD+1}, 6144, v{vXD+1}
s_mov_b32 m0, s{sWB}
s_mov_b32 s{sSO}, 0
v_min_u32 v{vR+82}, 13, v0
v_subrev_u32 v{vR+83}, 7, v{vR+82}
v_min_u32 v{vR+83}, v{vR+83}, v{vR+82}
v_sub_u32 v{vR+82}, v{vR+82}, v{vR+83}
v_lshlrev_b32 v{vR+82}, 11, v{vR+82}
v_lshl_add_u32 v{vR+82}, v{vR+83}, 7, v{vR+82}
s_mul_i32 s{sT2}, s{sHD}, 896
s_add_u32 s{sT2}, s{sT2}, s{sT1}
s_mov_b32 s{sX+2}, {2048*896}
s_mov_b32 s{sX+3}, 0x00020000
s_waitcnt lgkmcnt(0)
s_mov_b32 s{sX}, s4
s_mov_b32 s{sX+1}, s5
""")
PST('karg')
def mk_srd(b, plo, off_sgpr, size):
    if off_sgpr is None:
        E(f"s_mov_b32 s{b}, s{plo}\ns_mov_b32 s{b+1}, s{plo+1}")
    else:
        E(f"s_add_u32 s{b}, s{plo}, s{off_sgpr}\ns_addc_u32 s{b+1}, s{plo+1}, 0")
    E(f"s_mov_b32 s{b+2}, {size}\ns_mov_b32 s{b+3}, 0x00020000")
xdma = []
for tg in range(2):
    for q in range(7):
        if q or tg:
            xdma += [I(f"s_add_u32 m0, s{sWB}, {q*SLOT}"), I(f"s_movk_i32 s{sSO}, {q*128}")]
        for rb in (2*tg, 2*tg+1):
            xdma.append(I(f"buffer_load_dwordx4 v{vXD+rb}, {srd(sX)}, s{sSO} offen offset:{rb*1024} {OPT['PX']} lds", tag=('x', tg, q)))
def xissue(n):
    while n > 0 and xdma:
        i_ = xdma.pop(0); P.ins.append(i_)
        if i_.cls == 'vmem': n -= 1
if OPT['XPF']: E(f"buffer_load_dword a{aST+9}, v{vR+82}, {srd(sX)}, s{sT2} offen", tag='pf')
xissue(OPT['XFIRST'])
E(f"s_lshl_b32 s{sT0}, s{sHD}, 9\ns_sub_u32 s{sT2}, {448*8192}, s{sT0}")
mk_srd(sWQ, 10, sT0, f"s{sT2}")
wqpf = [I(t_) if isinstance(t_, str) else t_ for t_ in pf_seq(sWQ, 448*OPT['WQP'], OPT['WQP'], 8192, sTL, NT)] if OPT['PF'] and OPT['WQP'] else []
if OPT['WQE'] == 1: P.ins += wqpf; wqpf = []
else: P.ins += wqpf[:-1]; wqpf = wqpf[-1:]
xissue(OPT['XSEC'])
PST('x_first')
mk_srd(sOUT, 20, None, 2048*896)
E(f"""
s_lshl_b32 s{sT0}, s{sW}, 7
v_lshlrev_b32 v{vKD}, 9, v{vT3}
v_add_u32 v{vVD}, s{sT0}, v{vKD}
v_add_u32 v{vKD}, v{vVD}, v{vT1}
v_add_u32 v{vKD+1}, v{vVD}, v{vT2}
v_add_u32 v{vKD+2}, {2*3072}, v{vKD}
v_add_u32 v{vKD+3}, {3*3072}, v{vKD+1}
v_add_u32 v{vKD+1}, 3072, v{vKD+1}
v_and_b32 v{vT0}, 6, v{vT3}
v_xor_b32 v{vT0}, v{vT0}, v{vT4}
v_lshlrev_b32 v{vT0}, 4, v{vT0}
v_add_u32 v{vVD}, v{vVD}, v{vT0}
""")
for rb in range(1, 4): E(f"v_add_u32 v{vVD+rb}, {3072*rb}, v{vVD}")
E(f"""
v_and_b32 v{vT1}, 4, v{vT3}
v_add_u32 v{vT1}, v{vT1}, v{vT3}
v_lshl_add_u32 v{vWQ}, v{vT1}, 13, v{vT0}
v_mul_u32_u24 v{vT1}, 3584, v{vT1}
v_add_u32 v{vW1D}, v{vT1}, v{vT0}
""")
for rb in range(1, 4):
    rr = 16*(rb & 1) + 4*(rb >> 1)
    E(f"v_add_u32 v{vW1D+rb}, {rr*3584 - 1024*rb}, v{vW1D}\nv_add_u32 v{vWQ+rb}, {rr*8192 - 1024*rb}, v{vWQ}")
E(f"""
s_lshl_b32 s{sT1}, s{sHD}, 8
s_sub_u32 s{sT2}, {448*3584}, s{sT1}
s_cmp_lt_u32 s{sHD}, 14
s_cselect_b32 s{sT2}, s{sT2}, 0
s_cselect_b32 s{sT1}, s{sT1}, 0
""")
mk_srd(sW1, 16, sT1, f"s{sT2}")
E(f"s_lshr_b32 s{sT0}, s{sHD}, 1\ns_lshl_b32 s{sT0}, s{sT0}, 20\ns_add_u32 s{sT0}, s{sT0}, {1536*512}")
mk_srd(sKK, 6, sT0, 262144)
mk_srd(sVV, 8, sT0, 262144)
E(f"s_mul_i32 s{sT0}, s{sHD}, {256*896}")
mk_srd(sWO, 12, sT0, 256*896)
E(f"""
s_lshr_b32 s{sPC}, s2, 3
s_and_b32 s{sPC}, s{sPC}, 15
s_cmp_ge_u32 s{sPC}, 7
s_cselect_b32 s{sT3}, 1, 0
s_mul_i32 s{sT1}, s{sT3}, 7
s_sub_u32 s{sT1}, s{sPC}, s{sT1}
s_lshl_b32 s{sT0}, s{sT1}, 7
s_sub_u32 s{sT2}, {1792*896}, s{sT0}
s_cmp_lt_u32 s{sPC}, 14
s_cselect_b32 s{sT2}, s{sT2}, 0
s_cselect_b32 s{sT0}, s{sT0}, 0
""")
mk_srd(sW2, 18, sT0, f"s{sT2}")
if OPT['WSOFF']:
    E(f"s_mov_b32 s{sT0}, {hx(OPT['WSOFF'] << 20)}")
    mk_srd(sWS, 24, sT0, WS_SIZE)
else:
    mk_srd(sWS, 24, None, WS_SIZE)
for k_, R_ in ((0, 32*8192), (2, 32*3584)):
    E(f"""
s_mul_i32 s{sW1T+k_}, s{sW}, {R_}
s_cmp_lt_u32 s{sW}, 2
s_mov_b32 s{sT2}, {hx(128 - 2*R_)}
s_cselect_b32 s{sT0}, {12*R_}, s{sT2}
s_add_u32 s{sW1T+k_+1}, s{sW1T+k_}, s{sT0}
""")
E(f"""
v_mul_u32_u24 v{vT1}, 896, v{vT3}
v_add_u32 v{vT1}, v{vT1}, v{vT0}
s_mul_i32 s{sT0}, s{sW}, {32*896}
s_mul_i32 s{sT2}, s{sW}, {448*896}
""")
for rb in range(4):
    if rb: E(f"v_add_u32 v{vT1}, 6144, v{vT1}")
    E(f"v_add_u32 v{vT2}, s{sT0}, v{vT1}\nv_accvgpr_write_b32 a{aST+rb}, v{vT2}\nv_add_u32 v{vT2}, s{sT2}, v{vT1}\nv_accvgpr_write_b32 a{aST+4+rb}, v{vT2}")
E(f"""
v_lshlrev_b32 v{vL16}, 4, v0
v_lshrrev_b32 v{vT0}, 2, v0
v_lshlrev_b32 v{vT1}, 7, v{vT0}
v_and_b32 v{vT2}, 3, v0
v_lshl_add_u32 v{vT1}, v{vT2}, 3, v{vT1}
v_bfe_u32 v{vT3}, v0, 3, 2
""")
for u in range(4):
    E(f"""
v_xor_b32 v{vT4}, {u}, v{vT3}
v_lshl_add_u32 v{vTR+u}, v{vT4}, 5, v{vT1}
v_add_u32 v{vTR+4+u}, 0x10000, v{vTR+u}
v_add_u32 v{vTR+8+u}, 0x20000, v{vTR+u}
""")
E(f"""
v_and_b32 v{vT0}, 15, v0
v_lshrrev_b32 v{vT1}, 1, v{vT0}
v_lshrrev_b32 v{vT2}, 4, v0
v_xor_b32 v{vT1}, v{vT1}, v{vT2}
v_lshlrev_b32 v{vT4}, 7, v{vT0}
v_lshl_add_u32 v{vRA}, v{vT1}, 4, v{vT4}
v_xor_b32 v{vRA+1}, 64, v{vRA}
v_add_u32 v{vRA+2}, 0x10000, v{vRA}
v_add_u32 v{vRA+3}, 0x10000, v{vRA+1}
v_add_u32 v{vRA+4}, 0x20000, v{vRA}
v_add_u32 v{vRA+5}, 0x20000, v{vRA+1}
""")
vXR = vR + 72
for i in range(4): E(f"v_add_u32 v{vXR+i}, s{sWB}, v{vRA+i}")
E(f"""
s_and_b32 s{sTC}, s2, 7
s_lshl_b32 s{sTC}, s{sTC}, 1
s_lshr_b32 s{sT0}, s2, 7
s_add_u32 s{sTC}, s{sTC}, s{sT0}
s_lshl_b32 s{sW2I}, s{sT0}, 1
s_add_u32 s{sW2I}, s{sW2I}, s{sT3}
s_lshl_b32 s{sT2}, s{sTC}, 1
s_add_u32 s{sT2}, s{sT2}, s{sT3}
s_lshl_b32 s{sT0}, s{sT2}, 2
s_add_u32 s{sT0}, s{sT0}, s{sW}
s_mul_i32 s{sT0}, s{sT0}, {16*896}
s_lshl_b32 s{sSG}, s{sT1}, 7
s_add_u32 s{sT0}, s{sT0}, s{sSG}
v_lshrrev_b32 v{vT0}, 3, v0
v_mul_u32_u24 v{vT0}, 896, v{vT0}
v_and_b32 v{vT2}, 7, v0
v_lshl_add_u32 v{vT0}, v{vT2}, 4, v{vT0}
v_add_u32 v{vT0}, s{sT0}, v{vT0}
v_accvgpr_write_b32 a{aST+8}, v{vT0}
s_lshl_b32 s{sT2}, s{sT2}, 1
s_lshr_b32 s{sT0}, s{sW}, 1
s_add_u32 s{sSG}, s{sT2}, s{sT0}
s_mul_i32 s{sSG}, s{sSG}, 7
s_add_u32 s{sSG}, s{sSG}, s{sT1}
s_lshl_b32 s{sSG}, s{sSG}, 2
s_lshl_b32 s{sT0}, s{sT0}, 4
s_lshl_b32 s{sFLP}, s{sT2}, 7
s_add_u32 s{sFLP}, s{sFLP}, s{sT0}
s_add_u32 s{sFLP}, s{sFLP}, {hx(WS_F)}
s_and_b32 s{sT0}, s{sW}, 1
s_add_u32 s{sSG}, s{sSG}, s{sT0}
s_lshl_b32 s{sSG}, s{sSG}, 14
s_mul_i32 s{sHLD}, s{sT2}, {56*2048}
s_add_u32 s{sHLD}, s{sHLD}, {hx(WS_H)}
s_cmp_lt_u32 s{sPC}, 14
s_cselect_b32 s{sCOOB}, 0, {hx(OOB)}
s_add_u32 s{sHPF}, s{sHLD}, s{sCOOB}
s_mul_i32 s{sT0}, s{sW}, {14*2048}
s_add_u32 s{sHLD}, s{sHLD}, s{sT0}
s_mov_b32 s0, s2
s_mov_b32 s{sCC}, s{sT1}
s_lshl_b32 s{sKVI}, s{sTL}, 1
s_and_b32 s{sT0}, s{sHD}, 1
s_add_u32 s{sKVI}, s{sKVI}, s{sT0}
s_lshl_b32 s{sT1}, s{sT}, 2
s_add_u32 s{sT1}, s{sT1}, s{sW}
s_lshr_b32 s{sFLG}, s{sT1}, 1
s_lshl_b32 s{sFLG}, s{sFLG}, 8
s_and_b32 s{sT2}, s{sT1}, 1
s_lshl_b32 s{sT2}, s{sT2}, 4
s_add_u32 s{sFLG}, s{sFLG}, s{sT2}
s_add_u32 s{sFLG}, s{sFLG}, s{sHD}
s_add_u32 s{sFLG}, s{sFLG}, {hx(WS_F)}
s_mul_i32 s{sHST}, s{sT1}, {56*2048}
s_min_u32 s{sT2}, s{sHD}, 13
s_lshl_b32 s{sT2}, s{sT2}, 13
s_add_u32 s{sHST}, s{sHST}, s{sT2}
s_add_u32 s{sHST}, s{sHST}, {hx(WS_H)}
s_cmp_lt_u32 s{sHD}, 14
s_cselect_b32 s{sT2}, 0, {hx(OOB)}
v_add_u32 v{vHS}, s{sT2}, v{vL16}
v_mov_b32 v{vZ}, 0
v_mov_b32 v{vONE}, 1
""")
PST('addr_done')
xissue(14 - OPT['XFIRST'] - OPT['XSEC'])
if OPT['WQE'] == 0: P.ins += wqpf; wqpf = []
PST('x_issued')
PRODUCER = len(P.ins)
E(f"""
s_lshl_b32 s{sSST}, s{sT}, 2
s_add_u32 s{sSST}, s{sSST}, s{sW}
s_mul_i32 s{sSST}, s{sSST}, {28*16384}
s_cmp_ge_u32 s{sHD}, 7
s_cselect_b32 s{sT3}, 1, 0
s_sub_u32 s{sROT}, s{sHD}, 7
s_min_u32 s{sROT}, s{sROT}, s{sHD}
s_sub_u32 s{sCNT}, s{sROT}, 7
s_min_u32 s{sROT}, s{sROT}, s{sCNT}
s_cmp_lt_u32 s{sHD}, 14
s_cselect_b32 s{sT3}, s{sT3}, s{sHD}
s_cselect_b32 s{sSTEP}, 2048, 0
s_lshl_b32 s{sT3}, s{sT3}, 10
s_add_u32 s{sSST}, s{sSST}, s{sT3}
""")
prod_ins = []
if OPT['STLB'] == 1:
    for b_, o_ in ((sKK, '0'), (sVV, '0'), (sWQ, '0'), (sWQ, f'{hx(400*8192)}')[:2], (sWO, '0'), (sW1, '0'), (sW2, '0'), (sOUT, '0'),
                   (sWS, f's{sSST}'), (sWS, f's{sHST}'), (sWS, hx(WS_F + 0x8000))):
        if o_.startswith('0x'): E(f"s_mov_b32 s{sCNT}, {o_}"); o_ = f's{sCNT}'
        i_ = I(f"s_buffer_load_dword s1, {srd(b_)}, {o_}"); i_.cls = 'smem'; i_.dst = []; P.ins.append(i_)
for s_, val in ((sM1, 0x2222222222222222), (sM2, 0xCCCCCCCCCCCCCCCC), (sM3, 0x8888888888888888), (sMD, 0xF0000F0000F0000F)):
    E(f"s_mov_b32 s{s_}, {hx(val)}\ns_mov_b32 s{s_+1}, {hx(val >> 32)}")

vONES = vR + 16
vD1 = vR + 20
vD2 = vR + 28
vLA = vR + 36
for i in range(4): E(f"v_mov_b32 v{vONES+i}, 0x3f803f80")
def rbf(r):
    return [f"v_cvt_pk_bf16_f32 v{r}, v{r}, v{r}", f"v_lshlrev_b32 v{r}, 16, v{r}"]
E(f"s_mov_b32 s{sT0}, {hx(f2u(1.0/448.0))}\ns_mov_b32 s{sT1}, {hx(f2u(1e-5))}\ns_mov_b32 s{sT2}, {hx(f2u(CSCALE))}")
if OPT['PADS']:
    E(f"""
s_mov_b64 exec, 0
s_cmp_eq_u32 s{sW}, 0
s_cbranch_scc1 L_pg0
s_cmp_eq_u32 s{sW}, 1
s_cbranch_scc1 L_pg1
s_cmp_eq_u32 s{sW}, 2
s_cbranch_scc1 L_pg2
s_branch L_pg3
.p2align 12
L_main:
s_mov_b64 exec, -1
""")
STAMP('pro_done')
vNT = vR + 44
NPRO = OPT['NPRO']
big = []
if OPT['BIG'] & 1:
    t_ = pf_seq(sWQ, 448*2, 2, 8192, sTL, NT); t_[-1] = I(t_[-1].text.replace('offen', 'offen offset:256'), tag='pf'); big += t_
    big += pf_seq(sW1, 448*2, 2, 3584, sTL, NT)
if OPT['BIG'] & 2:
    t_ = pf_seq(sKK, 2048, None, 0, sKVI, 2*NT); big += t_ + [pf_load(sVV, vPF+1)]
big = [I(t_) if isinstance(t_, str) else t_ for t_ in big]
assert len(pro_dma) == NPRO
L0N = OPT['L0N']
late = {0: [i_ for d_ in pro_dma[:L0N] for i_ in d_],
        1: [i_ for d_ in pro_dma[3:] for i_ in d_]
           + big + [I(f"buffer_store_byte v{vZ}, v{vZ}, {srd(sWS)}, s{sFLG} offen sc1", tag='hst')]}
def xreads(tg, q):
    r = [mk_wait_vm([('x', tg, q)])]
    for ks in (2*q, 2*q+1):
        ad = q*SLOT + tg*2048
        r.append(I(f"ds_read_b128 {v(xn(ks,tg),4)}, v{vXR + (ad >> 16)*2 + (ks & 1)} offset:{ad & 0xffff}", tag=('xr', tg, q)))
    return r
def stats(tg, q, fill):
    P.wait_lgkm_tag([('xr', tg, q)])
    for ks in (2*q, 2*q+1):
        X = v(xn(ks, tg), 4)
        for m_ in (mfma(v(vD1+4*tg, 4), v(vONES, 4), X, "0" if ks == 0 else v(vD1+4*tg, 4)), mfma(v(vD2+4*tg, 4), X, X, "0" if ks == 0 else v(vD2+4*tg, 4))):
            E(m_)
            t_ = 0
            while fill and t_ + cost(fill[0]) <= 12:
                t_ += cost(fill[0]); P.ins.append(fill.pop(0))
def scalars(tg):
    d = vD2 + 4*tg; m = vD1 + 4*tg; t = m + 1; L = vLA + 4*tg
    s = [f"v_cndmask_b32 v{d}, v{d}, v{d+1}, s[{sM1}:{sM1+1}]",
         f"v_cndmask_b32 v{d+2}, v{d+2}, v{d+3}, s[{sM3}:{sM3+1}]",
         f"v_mul_f32 v{m}, s{sT0}, v{m}",
         f"v_cndmask_b32 v{d}, v{d}, v{d+2}, s[{sM2}:{sM2+1}]",
         f"v_cndmask_b32 v{d}, 0, v{d}, s[{sMD}:{sMD+1}]"]
    s += allred(d, t, "v_add_f32")
    s += [f"v_mul_f32 v{d}, s{sT0}, v{d}",
          f"v_fma_f32 v{d}, -v{m}, v{m}, v{d}",
          f"v_max_f32 v{d}, 0, v{d}"]
    s += interleave(rbf(m), rbf(d))
    s += [f"v_add_f32 v{d}, s{sT1}, v{d}"] + rbf(d) + [f"v_sqrt_f32 v{d}, v{d}"] + rbf(d)
    s += [f"v_rcp_f32 v{d}, v{d}", f"v_mul_f32 v{d}, s{sT2}, v{d}",
          f"v_cvt_pk_bf16_f32 v{d}, v{d}, v{d}",
          f"v_and_b32 v{L}, 0xffff, v{d}", f"v_lshlrev_b32 v{L+1}, 16, v{d}",
          f"v_mul_f32 v{L+2}, -v{m}, v{L+1}"]
    for t_ in s: E(t_)
def normalize(tg, side):
    L = vLA + 4*tg; k = 0; pend = []
    for ks in range(14):
        for r in range(4):
            x_ = xn(ks, tg) + r
            t = vNT + 2*(k % 8); k += 1
            E(f"v_dot2_f32_bf16 v{t}, v{x_}, v{L}, v{L+2}\nv_dot2_f32_bf16 v{t+1}, v{x_}, v{L+1}, v{L+2}")
            pend.append(f"v_cvt_pk_bf16_f32 v{x_}, v{t}, v{t+1}")
            if len(pend) > 2: E(pend.pop(0))
            P.ins += side.get(k, [])
    for t_ in pend: E(t_)
for q in range(7):
    P.ins += xreads(0, q)
    if q in (0, 3, 6): PST(f'w0{q}')
    xissue(2)
    if q > 1: stats(0, q-2, [])
fill = wqpf + late[0]
stats(0, 5, fill); stats(0, 6, fill)
P.ins += fill
STAMP('x0_arrived')
scalars(0)
X1 = OPT['X1']
normalize(0, {X1 + 4*q: xreads(1, q) for q in range(7)})
PST('ln0_done')
fill = [i_ for d_ in pro_dma[L0N:3] for i_ in d_]
for q in range(7):
    if q == 1: P.wait_lgkm_tag([('xr', 1, 6)]); fill += late[1]
    stats(1, q, fill)
P.ins += fill
STAMP('x1_arrived')
scalars(1)
fr_ = [i_ for f in range(D) for i_ in frag_reads(f)]
side = {OPT['BARK']: [mk_wait_vm(first_need), I("s_barrier")]}
for k_, i_ in enumerate(fr_): side.setdefault(min(OPT['BARK'] + 1 + k_, 56), []).append(i_)
normalize(1, side)
if OPT['DUMP'] == 'xn':
    P.ins += dump([v(xn(ks, tg), 4) for ks in range(14) for tg in range(2)])

P.ins.append(mk_wait_lg([('f', f) for f in range(4)]))
est = 0
for g in range(NF):
    if g in blk: P.ins += blk[g]
    for h, m_ in enumerate(MF[g]):
        gp = G0[g] + h
        P.ins.append(I(m_))
        P.ins += pre[gp] + rds[gp] + ext[gp]
        est += max(16, gtime(pre[gp] + rds[gp] + ext[gp]))
if OPT['LOG']:
    ph = sorted((f_, n_) for n_, f_ in phase.items())
    for (f0_, n_), (f1_, _) in zip(ph, ph[1:]):
        e_ = sum(max(16, gtime(pre[q_] + rds[q_] + ext[q_])) for q_ in range(gap(f0_), gap(f1_)))
        print(f"  phase {n_}: est {e_} ideal {16*(gap(f1_)-gap(f0_))}", file=sys.stderr)
print("estimated main-stream cycles", est, "ideal", 16*NG, file=sys.stderr)

STAMP('g6_done')
def fs(t4, w_): return facc(t4, w_)
vSEL = 44
vSA = 52
STAMP('pre_c1')
P.wait_vm_tag(['poll'])
E(f"v_cmp_gt_u32 vcc, 3, v{vPOLL}\ns_cbranch_vccnz L_spin1\nL_spin1_ret:\ns_cmp_lg_u32 s{sMISS}, 0\ns_cbranch_scc1 L_redo\nL_redo_ret:")
STAMP('chk1')
gl2 = gloads(2*F0, 16, vHS)
n2 = OPT['N2']
P.ins += gl2[:n2]
E(f"""
v_add_u32 v{vT1}, s{sWB}, v{vL16}
s_lshl_b32 s{sT0}, s{sW}, 14
v_add_u32 v{vT2}, s{sT0}, v{vL16}
""")
for u in range(4):
    for t4 in range(4):
        E(f"ds_write_b128 v{vT1}, {v(facc(u, t4), 4)} offset:{t4*SLOT + u*1024}")
P.wait_vm_tag(['xf'])
for u in range(4): E(f"ds_read_b64 {v(vXF + 2*u, 2)}, v{vT3} offset:{u*32}")
E(f"""
v_mov_b32 v{vSEL}, 0
v_mov_b32 v{vSEL+1}, 0
v_mov_b32 v{vSEL+4}, 0
v_mov_b32 v{vSEL+5}, 0
v_mov_b32 v{vT0}, 0x3f80
v_mov_b32 v{vSEL+2}, 0x3f800000
s_or_b64 s[16:17], s[{sM1}:{sM1+1}], s[{sM3}:{sM3+1}]
v_cndmask_b32 v{vT0}, v{vT0}, v{vSEL+2}, s[16:17]
v_cndmask_b32 v{vT0}, 0, v{vT0}, s[{sMD}:{sMD+1}]
s_mov_b64 s[16:17], s[{sM2}:{sM2+1}]
v_cndmask_b32 v{vSEL+2}, v{vT0}, 0, s[16:17]
v_cndmask_b32 v{vSEL+3}, 0, v{vT0}, s[16:17]
s_mov_b32 s{sT0}, {hx(f2u(1.0/CSCALE))}
s_mov_b32 s{sT2}, {hx(f2u(-16.0))}
""")
E("s_waitcnt lgkmcnt(0)\ns_barrier")
for t4 in range(4):
    for w_ in range(4):
        E(f"ds_read_b128 {v(fs(t4, w_), 4)}, v{vT2} offset:{w_*4096 + t4*1024}")
def smf(rl, sl):
    r = []
    for tg in range(2):
        d = v(vSA + (rl*2+tg)*4, 4)
        r.append(mfma(d, v(vSEL + (2 if tg == 0 else 0), 4), greg(rl, sl), "0" if sl == 0 else d))
    return r
val = []
for t4 in range(4):
    b0, b1, b2, b3 = (fs(t4, w_) for w_ in range(4))
    for r in range(4): val += [f"v_add_f32 v{b0+r}, v{b0+r}, v{b1+r}", f"v_add_f32 v{b2+r}, v{b2+r}, v{b3+r}"]
    for r in range(4): val.append(f"v_add_f32 v{b0+r}, v{b0+r}, v{b2+r}")
    for r in range(4): val.append(f"v_mul_f32 v{b1+r}, s{sT2}, v{b0+r}")
    for r in range(4): val.append(f"v_exp_f32 v{b1+r}, v{b1+r}")
    for r in range(4): val.append(f"v_mul_f32 v{b0+r}, s{sT0}, v{b0+r}")
    for r in range(4): val.append(f"v_add_f32 v{b1+r}, 1.0, v{b1+r}")
    for r in range(4): val.append(f"v_rcp_f32 v{b1+r}, v{b1+r}")
    for r in range(4): val.append(f"v_mul_f32 v{b0+r}, v{b0+r}, v{b1+r}")
for t4 in range(4):
    b2 = fs(t4, 2); xr = vXF + t4*2
    val += [f"v_lshlrev_b32 v{b2}, 16, v{xr}", f"v_and_b32 v{b2+1}, 0xffff0000, v{xr}", f"v_lshlrev_b32 v{b2+2}, 16, v{xr+1}", f"v_and_b32 v{b2+3}, 0xffff0000, v{xr+1}"]
rest = gl2[n2:]
nv1 = OPT['NV1']
step = max(1, nv1 // max(1, len(rest)))
for k_ in range(nv1):
    E(val.pop(0))
    if rest and k_ % step == step - 1: P.ins.append(rest.pop(0))
P.ins += rest
E(f"s_waitcnt vmcnt({32 - 4*F0})")
ms = []
for sq in range(0, 2*F0, 2):
    for rl in range(2):
        for sl in range(sq, sq+2): ms += smf(rl, sl)
per = (len(val) + 8*F0 - 1) // (8*F0)
for m_ in ms:
    E(m_)
    for _ in range(per):
        if val: E(val.pop(0))
for t_ in val: E(t_)
STAMP('g_done')
for sq in range(2*F0, 16, 2):
    for rl in range(2):
        for sl in range(sq, sq+2):
            for m_ in smf(rl, sl): E(m_)
for u in range(4):
    b0 = fs(u, 0); b2 = fs(u, 2)
    for r in range(4): E(f"v_fma_f32 v{b0+r}, v{vSA+u*4+r}, v{b0+r}, v{b2+r}")
    E(f"v_cvt_pk_bf16_f32 v{b0}, v{b0}, v{b0+1}\nv_cvt_pk_bf16_f32 v{b0+1}, v{b0+2}, v{b0+3}")
    E(f"ds_write_b64 v{vPF}, {v(b0,2)} offset:{u*32}")
E(f"""
ds_read_b128 {v(vXF,4)}, v{vT4}
ds_read_b128 {v(vXF+4,4)}, v{vT4} offset:1152
buffer_store_dwordx4 {v(vXF,4)}, v{vAD}, {srd(sOUT)}, 0 offen {OPT['OST']}
buffer_store_dwordx4 {v(vXF+4,4)}, v{vAD}, {srd(sOUT)}, s{sSV1} offen {OPT['OST']}
""")
if OPT['WAITAT']: STAMP('end')
if OPT['STAMP']:
    STAMP('end')
    E(f"""
L_fin:
s_memrealtime s[{sSTMP}:{sSTMP+1}]
s_waitcnt lgkmcnt(0)
v_writelane_b32 v{vSTAMP}, s{sMISS}, 59
v_writelane_b32 v{vSTAMP}, s98, 60
v_writelane_b32 v{vSTAMP}, s100, 61
v_writelane_b32 v{vSTAMP}, s{sSTMP}, 62
s_lshl_b32 s{sT0}, s0, 2
s_add_u32 s{sT0}, s{sT0}, s{sW}
s_lshl_b32 s{sT0}, s{sT0}, 8
s_add_u32 s{sT0}, s{sT0}, {hx(WS_DBG)}
v_lshlrev_b32 v{vT0}, 2, v0
buffer_store_dword v{vSTAMP}, v{vT0}, {srd(sWS)}, s{sT0} offen
""")
E("L_end:\ns_endpgm")
main_ins, log, stats_ = resolve(P.ins)
print("main", stats_, file=sys.stderr)
if OPT['LOG']:
    for l in log: print("  ", l, file=sys.stderr)

Q = Prog(); E = Q.emit
SPIN_MAX = 1 << 17
def spin(label, load, want, cmp):
    E(f"""
{label}:
s_mov_b32 s{sCNT}, {SPIN_MAX}
{label}_loop:
s_sleep 1
{load}
s_waitcnt vmcnt(0)
v_cmp_{cmp}_u32 vcc, {want}, v{vPOLL}
s_sub_u32 s{sCNT}, s{sCNT}, 1
s_cmp_eq_u32 s{sCNT}, 0
s_cbranch_scc1 {label}_ret
s_cbranch_vccnz {label}_loop
s_branch {label}_ret
""")
spin("L_spinh", f"s_lshl_b32 s{sT0}, s{sTC}, 4\nv_mov_b32 v{vT0}, s{sT0}\nglobal_load_dword v{vPOLL}, v{vT0}, {DBGP} sc1", 16, "gt")
spin("L_spin1", VPOLL, 3, "gt")
E("L_redo:\ns_waitcnt vmcnt(0)")
Q.ins += gloads(0, 2*F0, vHS)
E("s_branch L_redo_ret")
MISC = [c['lo'] for c in chunks if c['name'] == 'V_15'][0]
fK, fS, fP, fA, fV, fR, fM = 44, 76, 108, 116, 117, 121, 102
E(f"""
L_exact:
s_waitcnt vmcnt(0) lgkmcnt(0)
s_nop 15
s_mov_b32 s{sSV0}, m0
v_and_b32 v{fA}, 15, v0
v_lshlrev_b32 v{fA}, 9, v{fA}
v_and_b32 v{fM}, 48, v0
v_add_u32 v{fA}, v{fA}, v{fM}
s_lshl_b32 s{sSV1}, s{sW}, 7
s_add_u32 s{sSV2}, s{sWB}, {MISC}
""")
for i in range(4):
    E(f"v_subrev_u32 v{fV+i}, s{sSV1}, v{vVD+i}\nv_add_u32 v{fR+i}, s{sSV2}, v{vTR+i}")
E(f"v_mov_b32 v{fM}, 0xff800000\nv_mov_b32 v{fM+1}, 0xff800000\ns_mov_b32 s{sSV1}, 0")
def ktile(kt, cinit):
    for ks in range(8):
        E(f"buffer_load_dwordx4 {v(fK+4*ks,4)}, v{fA}, {srd(sKK)}, s{sSV1} offen offset:{ks*64}")
    E(f"s_add_u32 s{sSV1}, s{sSV1}, 8192\ns_waitcnt vmcnt(0)")
    for ks in range(8):
        for tg in range(2):
            d = v(fS + tg*8 + kt*4, 4)
            E(mfma(d, v(fK+4*ks, 4), a(qf(ks, tg), 4), (cinit(tg) if ks == 0 else d)))
    E("s_nop 15")
E("L_exact_p1:")
ktile(0, lambda tg: "0")
for tg in range(2):
    b = fS + tg*8
    E(f"v_max3_f32 v{fM+tg}, v{fM+tg}, v{b}, v{b+1}\nv_max3_f32 v{fM+tg}, v{fM+tg}, v{b+2}, v{b+3}")
E(f"s_cmp_lt_u32 s{sSV1}, 262144\ns_cbranch_scc1 L_exact_p1")
for tg in range(2):
    for t_ in allred(fM+tg, fM+2, "v_max_f32"): E(t_)
    for r in range(4): E(f"v_sub_f32 v{vC+4*tg+r}, 0, v{fM+tg}")
for r in range(128): E(f"v_mov_b32 v{vO+r}, 0")
E(f"v_mov_b32 v{vLS}, 0\nv_mov_b32 v{vLS+1}, 0\ns_mov_b32 s{sSV1}, 0\ns_add_u32 m0, s{sWB}, {MISC}\ns_nop 3")
E("L_exact_p2:")
E(f"s_mov_b32 s{sSV2}, s{sSV1}")
ktile(0, lambda tg: v(vC+4*tg, 4))
ktile(1, lambda tg: v(vC+4*tg, 4))
for r in range(16): E(f"v_exp_f32 v{fS+r}, v{fS+r}")
for r in range(16): E(f"v_add_f32 v{vLS + r//8}, v{vLS + r//8}, v{fS+r}")
for r in range(8): E(f"v_cvt_pk_bf16_f32 v{fP+r}, v{fS+2*r}, v{fS+2*r+1}")
for cb in range(4):
    for rb in range(4):
        E(f"buffer_load_dwordx4 v{fV+rb}, {srd(sVV)}, s{sSV2} offen offset:{rb*1024} lds")
    E(f"s_add_u32 s{sSV2}, s{sSV2}, 128\ns_waitcnt vmcnt(0)")
    for u in range(4):
        E(f"ds_read_b64_tr_b16 {v(fK+4*u,2)}, v{fR+u}\nds_read_b64_tr_b16 {v(fK+4*u+2,2)}, v{fR+u} offset:2048")
    E("s_waitcnt lgkmcnt(0)")
    for u in range(4):
        for tg in range(2):
            d = v(Oreg(cb*4+u, tg), 4)
            E(mfma(d, v(fK+4*u, 4), v(fP+4*tg, 4), d))
    E("s_nop 7")
E(f"s_cmp_lt_u32 s{sSV1}, 262144\ns_cbranch_scc1 L_exact_p2")
for tg in range(2):
    for t_ in allred(vLS+tg, fM+2, "v_add_f32"): E(t_)
    E(f"v_rcp_f32 v{vRC+tg}, v{vLS+tg}")
E("s_nop 15")
for ks in range(8):
    for t_ in ocvt(ks): E(t_)
E(f"s_mov_b32 m0, s{sSV0}\ns_nop 15\ns_branch L_exact_ret")
sub_ins, log2, stats2 = resolve(Q.ins)

def sizes_of(ins):
    import subprocess, tempfile, re as re_
    body = [i_ for i_ in ins if i_.cls not in ('label', 'dir')]
    txt_ = '.amdgcn_target "amdgcn-amd-amdhsa--gfx950"\n.text\nL_any:\n' + ''.join('    ' + (re_.sub(r'L_\w+', 'L_any', i_.text) if i_.cls == 'branch' else i_.text) + '\n' for i_ in body)
    d_ = tempfile.mkdtemp()
    open(d_ + '/a.s', 'w').write(txt_)
    subprocess.run(['clang', '-x', 'assembler', '-target', 'amdgcn-amd-amdhsa', '-mcpu=gfx950', '-c', d_ + '/a.s', '-o', d_ + '/a.o'], check=True)
    out_ = subprocess.run(['llvm-objdump', '-d', '--mcpu=gfx950', d_ + '/a.o'], capture_output=True, text=True).stdout
    sz = [4*len(m_.group(1).split()) for m_ in re_.finditer(r'// [0-9A-F]+: ((?:[0-9A-F]{8} ?)+)', out_)]
    assert len(sz) == len(body), (len(sz), len(body))
    return {id(i_): s_ for i_, s_ in zip(body, sz)}
if OPT['PADS']:
    sz = sizes_of(main_ins)
    k0 = [k_ for k_, i_ in enumerate(main_ins) if i_.text == 'L_main:'][0]
    out_ = main_ins[:k0+1]; off = 0; npg = 0
    for i_ in main_ins[k0+1:]:
        if i_.cls not in ('label', 'dir'):
            lo = (npg + 1)*4096
            if off >= lo and (i_.cls == 'mfma' or off + sz[id(i_)] > lo + 56):
                assert off < lo + 64
                out_.append(I(f"L_pg{npg}:")); out_.append(I(f"s_cbranch_execz L_pgn{npg}")); off += 4; npg += 1
            off += sz[id(i_)]
        out_.append(i_)
    for i_ in out_:
        if i_.text.startswith('s_cbranch_execz L_pgn'):
            k_ = int(i_.text.split('L_pgn')[1]) + 4
            i_.text = f"s_cbranch_execz L_pg{k_}" if k_ < npg else "s_cbranch_execz L_main"
    main_ins = out_
    print("code pages", npg, "bytes after L_main", off, file=sys.stderr)
hdr = open(os.path.join(os.path.dirname(os.path.abspath(__file__)), 'header.txt')).read()
txt = hdr + f"""; @launch grid=(256,1,1) block=(256,1,1) lds={LDS_BYTES}
.amdgcn_target "amdgcn-amd-amdhsa--gfx950"
.text
.globl {NAME}_kernel
.p2align 8
.type {NAME}_kernel,@function
{NAME}_kernel:
""" + render(main_ins) + render(sub_ins) + f"""L_pad:
    s_endpgm
.if (L_pad - {"L_main" if OPT["PADS"] else "L_pc"}) < {CODE_LINES*128}
.fill (({CODE_LINES*128} - (L_pad - {"L_main" if OPT["PADS"] else "L_pc"})) / 4) + 16, 4, 0xbf810000
.endif
.section .rodata,"a"
.p2align 6
.amdhsa_kernel {NAME}_kernel
  .amdhsa_next_free_vgpr 512
  .amdhsa_next_free_sgpr 102
  .amdhsa_accum_offset 256
  .amdhsa_group_segment_fixed_size 0
  .amdhsa_kernarg_size 88
  .amdhsa_user_sgpr_count 2
  .amdhsa_user_sgpr_kernarg_segment_ptr 1
  .amdhsa_system_sgpr_workgroup_id_x 1
.end_amdhsa_kernel
"""
if OPT['STAMP']: txt += '; STAMPS ' + ' '.join(stamp_names) + '\n'
open(sys.argv[1], 'w').write(txt)
```

```python
import sys, os, math, struct
from asmlib import *

NAME = "recurrent_scan__sliding_block_cached__dense_activation_relu__prompt"
OPT = dict(D=8, NA=12, HX=4, BAR=2, STAMP=0, PST=0, DUMP='', SIGG=60, FORCEFB=0, LOG=0,
           SST='sc1', HLD='sc1', HST='sc1', GLD='sc1', NOSST=0, NOHLD=0, NOHST=0,
           PX='', PW1='', PWQ='', PKV='', PWO='', PW2='', PF=1, PPF='', OST='', WSOFF=0, HSTEP=7, XREV=0, NPRO=4, WAITAT='', WAITT=0, WAITWG=-1, PADS=1, HSIG=150, HPF=0, PF0=0, PF1=14, CHAIN=1, WB=0, WBD=60, BIG=1, DSTART=0, W2ROT=1, NOPF2=2, HEND=40, XPF=1, L0N=1, X1=28, BARK=36, BARP=2, BARA=2, BAR4=2, SPAN=30, SPAN2=20, NV1=100, PKR=0, PCH=0, TLB=1, TLBP='G2_13', XG=0, STLB=0, ST0=4, STS=40, G6P='66666666666666', WOM=0, W2N=7, NPG=99, NOG=0, NOFLAG=0, W2G=-15, W2S=8, F0=3, F1=5, L0=0, W2PRE=6, H2A=1, H2B=100, SA=48, PA=-38, CA=70, LA=140, SC=30, PB=175, N2=15, G1N=10, XFIRST=4, XSEC=0, WQE=2, OEARLY=2, H2SPAN=60, PFG=170, WQP=2, FINE=0, RT=0, SIMPLE=0, SSP=0)
for a_ in sys.argv[2:]:
    k_, v_ = a_.split('=')
    OPT[k_] = v_.replace('+', ' ') if isinstance(OPT[k_], str) else int(v_)
D = OPT['D']; NA = OPT['NA']

RING_SLOTS = 10
SLOT = 16384
LDS_BYTES = 163840
WS_S = 0
WS_H = 0x1C00000
WS_F = 0x2300000
WS_DBG = 0x2400000
WS_SIZE = 0x8000000 if (OPT['DUMP'] or OPT['STAMP']) else 0x2400000
OOB = 0x7f000000
CSCALE = math.log2(math.e) / 16.0
def f2u(x): return struct.unpack('<I', struct.pack('<f', x))[0]
def hx(x): return f"0x{x & 0xffffffff:x}"

sX, sW1, sWQ, sKK, sVV, sWO, sW2, sWS, sOUT = 28, 32, 36, 40, 44, 48, 52, 56, 60
def srd(b): return f"s[{b}:{b+3}]"
sW, sHD, sT, sWB, sSO = 64, 65, 66, 67, 68
sT0, sT1, sT2, sT3 = 69, 70, 71, 3
sQT = 72
sHST, sHLD, sSST, sSG, sFLG, sFLP, sCNT, sSO2, sTL, sROT, sSTEP, sPC = 86, 87, 88, 89, 90, 91, 92, 93, 94, 95, 96, 97
sTC, sCOOB, sHPF, sW2I, sKVI, sCC = 19, 20, 21, 24, 25, 2
sW1T = 12
sM1, sM2, sM3, sMD = 4, 6, 8, 10
sSV0, sSV1, sSV2 = 12, 13, 14
sSTMP = 26
DBGP = "s[22:23]"
vL16, vHS, vT0, vT1, vT2, vT3, vT4 = 1, 2, 3, 4, 5, 6, 7
vTR = 8
vRA = 20
vPF = 26
vZ, vONE, vPOLL, vSTAMP = 28, 29, 30, 31
vWQ, vKD, vVD, vWOD, vW2D = 32, 36, 40, 32, 36
vXN = 44
vR = 156
vW1D = vR + 64
vXD = vR + 68
vO = 128
vS = 44
vP = 76
vC = 92
vLS = 100
vM = 106
vA4 = 44
vRC = 126
aF, aST, aQ, aH = 0, 48, 64, 128

def v(i, n=1): return f"v{i}" if n == 1 else f"v[{i}:{i+n-1}]"
def a(i, n=1): return f"a{i}" if n == 1 else f"a[{i}:{i+n-1}]"
def mfma(d, A, B, C): return f"v_mfma_f32_16x16x32_bf16 {d}, {A}, {B}, {C}"
def I(t, tag=None): return Ins(t, tag)
lg = lambda x: int(math.log2(x))

P = Prog()
E = P.emit

nstamp = [0]
stamp_names = []
def stamp_ins(name=''):
    if OPT['WAITAT'] and name == OPT['WAITAT']:
        return [I(t_) for t_ in ((f"s_cmp_lg_u32 s0, {OPT['WAITWG']}", "s_cbranch_scc1 L_end") if OPT['WAITWG'] >= 0 else ()) + ("L_dw:", f"s_memrealtime s[{sSTMP}:{sSTMP+1}]", "s_waitcnt lgkmcnt(0)", f"s_sub_u32 s{sSTMP}, s{sSTMP}, s100",
                                 f"s_cmp_lt_u32 s{sSTMP}, {OPT['WAITT']}", "s_cbranch_scc1 L_dw")]
    if not OPT['STAMP']: return []
    if OPT['STAMP'] == 3 and name not in ('end', 'G4', 'wb0', 'wb1', 'G6', 'st_done', 'chk0', 'chk1', 'chk2', 'sigA', 'sigB', 'g6_done', 'g_done', 'pre_c2', 'pre_c1', 'pre_c0'): return []
    if OPT['STAMP'] == 2 and name not in ('end', 'G4', 'P0', 'G2_0', 'g6_done'): return []
    n = nstamp[0]; nstamp[0] += 1; stamp_names.append(name)
    return [I(f"{'s_memrealtime' if OPT['RT'] else 's_memtime'} s[{sSTMP}:{sSTMP+1}]"), I("s_waitcnt lgkmcnt(0)"), I(f"v_writelane_b32 v{vSTAMP}, s{sSTMP}, {n}")]
def STAMP(name=''):
    P.ins += stamp_ins(name)
def PST(name):
    if OPT['PST']: STAMP(name)

frags = []
chunks = []
def add_chunk(name, lo, size, dma, private=False):
    chunks.append(dict(name=name, lo=lo, hi=lo+size, dma=dma, private=private, first=None, last=None)); return len(chunks)-1
def add_frag(kind, rs, rb, addr, mf, ch):
    frags.append(dict(kind=kind, rb=rb, rs=rs, addr=addr, mf=mf, chunk=ch))
    c = chunks[ch]
    if c['first'] is None: c['first'] = len(frags)-1
    c['last'] = len(frags)-1
def frag_reads(f):
    fr = frags[f]; A = aF + 4*(f % NA)
    def rd(op, dst, addr):
        win = addr >> 16
        return I(f"{op} {dst}, v{fr['rb'] + win*fr['rs']} offset:{addr & 0xffff}", tag=('f', f))
    if fr['kind'] == 'tr':
        return [rd("ds_read_b64_tr_b16", a(A, 2), fr['addr']), rd("ds_read_b64_tr_b16", a(A+2, 2), fr['addr'] + 2048)]
    return [rd("ds_read_b128", a(A, 4), fr['addr'])]
POL = {sW1: 'PW1', sWQ: 'PWQ', sKK: 'PKV', sVV: 'PKV', sWO: 'PWO', sW2: 'PW2'}
ring_pos = [7]
def ring_round(name, srd_b, vbase, so_text, private=False):
    slot = ring_pos[0] % RING_SLOTS; ring_pos[0] += 1
    lo = slot*SLOT
    tag = ('c', len(chunks))
    dma = [I(f"s_add_u32 m0, s{sWB}, {lo}")]
    if so_text.startswith('s') or so_text == '0': so = so_text
    elif so_text.startswith('+'):
        dma.append(I(f"s_add_u32 s{sSO}, {so_text[1:]}")); so = f"s{sSO}"
    else:
        dma.append(I(f"s_mov_b32 s{sSO}, {so_text}")); so = f"s{sSO}"
    for rb in range(4):
        dma.append(I(f"buffer_load_dwordx4 v{vbase+rb}, {srd(srd_b)}, {so} offen offset:{rb*1024} {OPT[POL[srd_b]]} lds", tag=tag))
    return add_chunk(name, lo, SLOT, dma, private)

phase = {}
def xn(ks, tg): return vXN + (ks*2 + tg)*4
def accp(pp, kq, tg, par): return vR + (pp % 2)*32 + ((kq*2 + tg)*2 + par)*4
pend_ = []
for pp in range(6):
    phase[f'P{pp}'] = len(frags)
    for ks in range(14):
        qi = 14*pp + ks
        if qi % 4 == 0:
            r_ = qi // 4
            blk_, rp = r_ // 7, r_ % 7
            R_ = 32*(8192 if blk_ < 2 else 3584); sb = sW1T + (0 if blk_ < 2 else 2); cb_ = 256 if blk_ == 1 else 0
            so_ = f"+s{sb+1}, {cb_}" if rp == 3 else f"+s{sb}, {(4*rp*R_ if rp < 3 else (4*rp-14)*R_ + 128) + cb_}"
            ch = ring_round(f"wq_{r_}", sWQ, vWQ, so_) if r_ < 14 else ring_round(f"w1_{r_-14}", sW1, vW1D, so_)
        pend_.append((ks, qi, ch))
        if OPT['PCH'] and ks % 2 == 0: continue
        for u2 in range(2):
            for u in (2*u2, 2*u2+1):
                for ks_, qi_, ch_ in pend_:
                    mf = (lambda A, pp=pp, ks=ks_, u=u: [mfma(v(accp(pp, u >> 1, tg, u & 1), 4), A, v(xn(ks, tg), 4), "0" if ks == 0 else v(accp(pp, u >> 1, tg, u & 1), 4)) for tg in range(2)])
                    add_frag('tr', 4, vTR + u, chunks[ch_]['lo'] + (qi_ % 4)*4096, mf, ch_)
        pend_ = []
def qf(kq, tg): return aQ + (kq*2 + tg)*4
def Sreg(st, tg, kt): return vS + (st % 2)*16 + tg*8 + kt*4
def Preg(st, tg): return vP + (st % 2)*8 + tg*4
def Oreg(d, tg): return vO + (((d >> 1)*2 + tg)*2 + (d & 1))*4
def G2(st):
    phase[f'G2_{st}'] = len(frags)
    ch = ring_round(f"K_{st}", sKK, vKD, str(st*16384))
    order = [(kt, ks) for kt in range(2) for ks in range(8)]
    for kt, ks in order:
        def mf(A, kt=kt, ks=ks):
            r = []
            for tg in range(2):
                c = v(Sreg(st, tg, kt), 4)
                if ks == 0: c = "0" if st < 1 else v(vC + 4*tg, 4)
                r.append(mfma(v(Sreg(st, tg, kt), 4), A, a(qf(ks, tg), 4), c))
            return r
        add_frag('b128', 2, vRA + (ks & 1), chunks[ch]['lo'] + (ks >> 1)*4096 + kt*2048, mf, ch)
def G3(st):
    phase[f'G3_{st}'] = len(frags)
    ch = ring_round(f"V_{st}", sVV, vVD, str(st*16384))
    for d in range(16):
        mf = (lambda A, d=d: [mfma(v(Oreg(d, tg), 4), A, v(Preg(st, tg), 4), "0" if st == 0 else v(Oreg(d, tg), 4)) for tg in range(2)])
        add_frag('tr', 4, vTR + (d & 3), chunks[ch]['lo'] + (d >> 2)*4096, mf, ch)
G2(0)
for st in range(15):
    G2(st + 1); G3(st)
G3(15)
phase['G4'] = len(frags)
def acc4(p, u, tg): return vA4 + (((u >> 1)*2 + tg)*2 + (u & 1))*4
def Opk(ks, tg): return vO + (ks*2 + tg)*8
def hole(i): return vO + 8*i + 4
def hreg(kk, t4):
    i = kk*4 + t4
    if i < 32: return a(aH + 4*i, 4)
    if i < 48: return a(aQ + 4*(i-32), 4)
    return v(hole(i-48), 4)
def facc(u, t4):
    i = u*4 + t4
    return vA4 + 32 + 4*i if i < 8 else hole(i)
vTP = 108
G6P = OPT['G6P']
assert len(G6P) == 14
kk = 0
for p in range(7):
    phase[f'G4p{p}'] = len(frags)
    chs = [ring_round(f"wo_{p}_{h_}", sWO, vWOD, f"s{sQT+p}" if h_ == 0 else f"+s{sQT+p}, {4*32*896}") for h_ in range(2)]
    for u in range(4):
        for ks in range(8):
            ch = chs[ks // 4]
            mf = (lambda A, p=p, ks=ks, u=u: [mfma(v(acc4(p, u, tg), 4), A, v(Opk(ks, tg), 4), "0" if ks == 0 else v(acc4(p, u, tg), 4)) for tg in range(2)])
            add_frag('tr', 4, vTR + u, chunks[ch]['lo'] + (ks % 4)*4096, mf, ch)
    if p == 6: phase['G6'] = len(frags); NPOST = 14 - kk
    while kk < 14 and int(G6P[kk]) == p:
        phase[f'G6_{kk}'] = len(frags)
        ch = ring_round(f"w2_{kk}", sW2, vW2D, str(kk*32*896), private=True)
        for u in range(4):
            mf = (lambda A, kk=kk, u=u: [mfma(v(facc(u, t4), 4), A, hreg(kk, t4), "0" if kk == 0 else v(facc(u, t4), 4)) for t4 in range(4)])
            add_frag('tr', 4, vTP + u, chunks[ch]['lo'], mf, ch)
        kk += 1
assert kk == 14
NF = len(frags)
phase['END'] = NF

MF = [fr['mf'](a(aF + 4*(f % NA), 4)) for f, fr in enumerate(frags)]
if OPT['CHAIN']:
    for f0 in range(0, NF, 4):
        nm_ = chunks[frags[f0]['chunk']]['name']
        if nm_.startswith('K_') or nm_.startswith('wo_') or (OPT['PCH'] and nm_[:2] in ('wq', 'w1')):
            fl = [MF[f0+k_][tg] for tg in range(2) for k_ in range(4)]
            for k_ in range(4): MF[f0+k_] = fl[2*k_:2*k_+2]
G0 = [0]
for f in range(NF): G0.append(G0[-1] + len(MF[f]))
NG = G0[-1]
def gap(f): return G0[max(0, min(f, NF))]
pre = [[] for _ in range(NG)]
rds = [[] for _ in range(NG)]
ext = [[] for _ in range(NG)]
blk = {}
for g in range(NF):
    if g + D < NF:
        r = frag_reads(g + D)
        n = len(MF[g])
        rds[G0[g]].append(r[0])
        if len(r) > 1: rds[G0[g] + n//2].append(r[1])
def cost(i):
    if i.cls in ('ds',): return 8
    if i.cls == 'vmem': return 24 if 'store' in i.op and 'x4' in i.op else 8
    if i.cls in ('trans', 'perm'): return 8
    if i.cls == 'label': return 0
    return 4
def gtime(items):
    t = 4
    for i in items:
        if i.cls in VALU_LIKE: t = max(t, 8)
        t += cost(i)
    return t
def fits(gp, i): return gtime(pre[gp] + rds[gp] + ext[gp] + [i]) <= 16
def place(seq, g0, g1=None):
    seq = [I(s) if isinstance(s, str) else s for s in seq]
    g1 = NG if g1 is None else min(g1, NG)
    gp = g0; n = len(seq)
    for k, ins in enumerate(seq):
        bound = max(min(g0 + ((k + 1) * (g1 - g0)) // n - 1, g1 - 1), gp)
        best = None
        for q in range(gp, bound + 1):
            if fits(q, ins): best = q; break
        if best is None:
            best = min(range(gp, bound + 1), key=lambda q: (gtime(pre[q] + rds[q] + ext[q] + [ins]), q))
        ext[best].append(ins)
        gp = best
    return gp
def spread(seq, g0, g1):
    n = len(seq); cur = g0
    for k, ins in enumerate(seq):
        lo = max(g0 + (k*(g1-g0))//n, cur); hi = max(g0 + ((k+1)*(g1-g0))//n, lo+1)
        cur = place([ins], lo, hi)
    return cur

shared = [c for c in range(len(chunks)) if not chunks[c]['private']]
def is_bar(k_):
    if k_ == 0: return True
    if k_ < 21: return (k_ - 1) % OPT['BARP'] == 0
    if k_ < 53: return (k_ - 21) % OPT['BARA'] == 0
    return (k_ - 53) % OPT['BAR4'] == 0
bar_frags = [chunks[c]['first'] for k_, c in enumerate(shared) if is_bar(k_)]
bar_frags += [phase['G6'], phase['G6'] + D + 1]
bar_frags = sorted(set(bar_frags))
bar_gap = []
first_need = None
for bi, f0 in enumerate(bar_frags):
    f1 = bar_frags[bi+1] if bi + 1 < len(bar_frags) else NF
    need = [('c', c) for c in shared if f0 <= chunks[c]['first'] < f1]
    if f0 == 0: first_need = need; continue
    gp = gap(f0 - D); bar_gap.append(gp)
    if need: ext[gp-1].append(mk_wait_vm(need))
    pre[gp].append(I("s_barrier"))
for c in range(len(chunks)):
    if chunks[c]['private']:
        ext[gap(chunks[c]['first'] - D) - 1].append(mk_wait_vm([('c', c)]))
for g in range(4, NF, 4):
    ext[gap(g) - 1].append(mk_wait_lg([('f', f) for f in range(g, min(g+4, NF))]))
def earliest_gap(c):
    e = -1
    C = chunks[c]
    for c2 in range(c):
        B = chunks[c2]
        if B['hi'] <= C['lo'] or C['hi'] <= B['lo']: continue
        if B['private']: e = max(e, gap(B['last'] + 1))
        else: e = max(e, [gp for gp in bar_gap if gp >= gap(B['last'] + 1)][0] + 1)
    return e
pro_dma = []
cur = OPT['DSTART']
for c in range(len(chunks)):
    e = earliest_gap(c)
    if e < 0 and c < OPT['NPRO']:
        pro_dma.append(chunks[c]['dma']); continue
    g0 = max(e, cur)
    span = OPT['SPAN']
    if g0 > e + 8: span = OPT['SPAN2']
    if g0 >= gap(phase['G6'] - D): span = OPT['W2S']
    seq = list(chunks[c]['dma'])
    if chunks[c]['name'] == 'wo_0_0': seq = [I(f"v_accvgpr_read_b32 v{vWOD+i}, a{aST+i}") for i in range(4)] + seq; wo_first_gap = g0
    if chunks[c]['name'] == 'w2_0': seq = [I(f"v_accvgpr_read_b32 v{vW2D+i}, a{aST+4+i}") for i in range(4)] + seq
    cur = spread(seq, g0, g0 + span)
    need_gap = gap(chunks[c]['first'] - D)
    if not chunks[c]['private']: need_gap = max(gp for gp in bar_gap if gp <= need_gap)
    if OPT['LOG']: print(chunks[c]['name'], g0, cur, need_gap, 'lead', need_gap - cur, file=sys.stderr)
    assert cur < need_gap - 1, (chunks[c]['name'], cur)

seq = []
for p in range(7):
    seq += [f"s_add_u32 s{sT2}, s{sROT}, {p}", f"s_sub_u32 s{sT3}, s{sT2}, 7", f"s_min_u32 s{sT2}, s{sT2}, s{sT3}",
            f"s_lshl_b32 s{sQT+p}, s{sT2}, 7", f"s_lshl_b32 s{sT2}, s{sT2}, 16", f"s_add_u32 s{sQT+7+p}, s{sSST}, s{sT2}",
            f"s_add_u32 s{sSST}, s{sSST}, s{sSTEP}"]
spread(seq, 6, 100)
assert gap(phase['G3_8']) < wo_first_gap
assert OPT['BAR'] == 2
place([f"v_add_u32 v{vTP+i}, s{sWB}, v{vTR+i}" for i in range(12)], gap(phase['G4'] + 2), gap(phase['G4'] + 22))

def hconv(pp):
    s = []
    for kq in range(2):
        for tg in range(2):
            b = accp(pp, kq, tg, 0)
            if not OPT['PKR']:
                for r in range(8): s.append(f"v_max_f32 v{b+r}, 0, v{b+r}")
            for r in range(4): s.append(f"v_cvt_pk_bf16_f32 v{b+r}, v{b+2*r}, v{b+2*r+1}")
            if OPT['PKR']:
                for r in range(4): s.append(f"v_pk_max_i16 v{b+r}, v{b+r}, 0")
            if not OPT['NOHST']:
                s.append(I(f"buffer_store_dwordx4 {v(b,4)}, v{vHS}, {srd(sWS)}, s{sHST} offen offset:{kq*2048 + tg*1024} {OPT['HST']}", tag='hst'))
    if pp == 4: s.append(f"s_add_u32 s{sHST}, s{sHST}, 4096")
    return s
place(hconv(4), gap(phase['P5']) + 4, gap(phase['G2_0']) - 4)
def qconv(pp):
    s = []
    for kq in range(2):
        for tg in range(2):
            b = accp(pp, kq, tg, 0)
            s += [f"v_cvt_pk_bf16_f32 v{b+r}, v{b+2*r}, v{b+2*r+1}" for r in range(4)]
            s += [f"v_permlane32_swap_b32 v{b}, v{b+2}", f"v_permlane32_swap_b32 v{b+1}, v{b+3}",
                  f"v_permlane16_swap_b32 v{b}, v{b+2}", f"v_permlane16_swap_b32 v{b+1}, v{b+3}"]
            s += [f"v_accvgpr_write_b32 a{qf(2*pp+kq, tg)+r}, v{b+r}" for r in range(4)]
    return s
for pp in range(4):
    g0 = gap(phase[f'P{pp+1}'])
    place(qconv(pp), g0 + 4, g0 + 2*56 - 4)

def allred(r, t, op):
    return [f"v_mov_b32 v{t}, v{r}", f"v_permlane32_swap_b32 v{r}, v{t}", f"{op} v{r}, v{r}, v{t}",
            f"v_mov_b32 v{t}, v{r}", f"v_permlane16_swap_b32 v{r}, v{t}", f"{op} v{r}, v{r}, v{t}"]
def interleave(*seqs):
    out = []
    for k in range(max(len(s) for s in seqs)):
        for s in seqs:
            if k < len(s): out.append(s[k])
    return out
def svals(st): return [Sreg(st, tg, kt) + r for tg in range(2) for kt in range(2) for r in range(4)]
g0 = gap(phase['G2_0'])
seqs = []
for tg in range(2):
    b = Sreg(0, tg, 0); m = vM + 2*tg; t = m + 1
    s = [f"v_max3_f32 v{m}, v{b}, v{b+1}, v{b+2}", f"v_max_f32 v{m}, v{m}, v{b+3}"] + allred(m, t, "v_max_f32")
    s += [f"v_sub_f32 v{vC+4*tg+r}, 0, v{m}" for r in range(4)]
    seqs.append(s)
seq = interleave(*seqs) + [f"v_mov_b32 v{vLS}, 0", f"v_mov_b32 v{vLS+1}, 0"]
gm = place(seq, g0 + 19, g0 + 31)
def sm_seq(st, sub):
    s = []
    vals = svals(st)
    for k_, r in enumerate(vals):
        tg = k_ // 8
        if sub: s.append(f"v_add_f32 v{r}, v{r}, v{vC+4*tg}")
        s.append(f"v_exp_f32 v{r}, v{r}")
        if k_ % 2 == 1 and k_ >= 3:
            kk = k_ - 3
            s.append(f"v_cvt_pk_bf16_f32 v{Preg(st, kk//8) + (kk % 8)//2}, v{vals[kk]}, v{vals[kk+1]}")
    s.append(f"v_cvt_pk_bf16_f32 v{Preg(st, 1) + 3}, v{vals[14]}, v{vals[15]}")
    return s
def add_seq(st):
    vals = svals(st)
    return interleave([f"v_add_f32 v{vLS}, v{vLS}, v{r}" for r in vals[:8]], [f"v_add_f32 v{vLS+1}, v{vLS+1}, v{r}" for r in vals[8:]])
for st in range(16):
    g3 = gap(phase[f'G3_{st}'])
    if st == 0:
        ge = place(sm_seq(st, True), gap(phase['G2_1']) + 3, g3 - 1)
    elif st < 15:
        gs = gap(phase[f'G2_{st+1}'] - D)
        ge = place(sm_seq(st, False), gs, g3 - 2)
    else:
        ge = place(sm_seq(st, False), gap(phase['G3_14']) + 4, g3 - 2)
    lim = gap(phase[f'G2_{st+2}']) - 2 if st + 2 < 16 else g3 + 14
    ga = place(add_seq(st), ge, lim)
seqs = []
for tg in range(2):
    l = vLS + tg; t = vM + tg
    seqs.append(allred(l, t, "v_add_f32") + [f"v_rcp_f32 v{vRC+tg}, v{l}"])
seq = interleave(*seqs) + [f"v_add_f32 v{vM}, v{vLS}, v{vLS+1}", f"s_mov_b32 s{sT0}, {hx(f2u(2.0**24 if not OPT['FORCEFB'] else 0.5))}", f"v_cmp_ngt_f32 vcc, s{sT0}, v{vM}"]
place(seq, ga, gap(phase['G4']) - 1)

hc = hconv(5)
n3 = 3*len(hc)//4
place(hc[:n3], gap(phase['G2_0']) + 3, gap(phase['G2_0']) + 19)
gend = place(hc[n3:], gap(phase['G3_0']), gap(phase['G3_0']) + 16)
assert accp(5, 1, 1, 0) >= Oreg(10, 0)
hb = [gp for gp in bar_gap if gp > gend + OPT['HSIG']][0]
ext[hb-1].append(mk_wait_vm(['hst']))
sig = [I(f"s_cmp_lg_u32 s{sW}, 0"), I("s_cbranch_scc1 L_nosig"), I(f"s_lshl_b32 s{sT0}, s{sT}, 4"), I(f"v_mov_b32 v{vPOLL}, s{sT0}"),
       I("s_mov_b64 exec, 1"), I(f"global_atomic_add v{vPOLL}, v{vONE}, {DBGP} sc1"), I("s_mov_b64 exec, -1"), I("L_nosig:")]
sig[5].cls = 'misc'
ext[hb+1] += sig

def dump(regs_list):
    r = [I("s_nop 15"), I(f"s_lshl_b32 s{sT0}, s{sT}, 4"), I(f"s_add_u32 s{sT0}, s{sT0}, s{sHD}"),
         I(f"s_lshl_b32 s{sT0}, s{sT0}, 2"), I(f"s_add_u32 s{sT0}, s{sT0}, s{sW}"),
         I(f"s_mul_i32 s{sT0}, s{sT0}, {32*1024}"), I(f"s_add_u32 s{sT0}, s{sT0}, {hx(WS_DBG)}")]
    for reg in regs_list:
        r.append(I(f"buffer_store_dwordx4 {reg}, v{vL16}, {srd(sWS)}, s{sT0} offen"))
        r.append(I(f"s_add_u32 s{sT0}, s{sT0}, 1024"))
    r.append(I("s_nop 3"))
    return r
def ocvt(ks): return [f"v_cvt_pk_bf16_f32 v{Opk(ks, tg)+r}, v{Opk(ks, tg)+2*r}, v{Opk(ks, tg)+2*r+1}" for tg in range(2) for r in range(4)]
NEARLY = OPT['OEARLY']
g15 = gap(phase['G3_15'])
for ks in range(NEARLY): place(ocvt(ks), g15 + 4*ks + 8, gap(phase['G4']) - 1)
b = stamp_ins('attn_done') + [I("s_cbranch_vccnz L_exact")]
for ks in range(NEARLY, 8): b += [I(t_) for t_ in ocvt(ks)]
b.append(I("L_exact_ret:"))
if OPT['DUMP'] == 'o': b += dump([v(Opk(ks, tg), 4) for ks in range(8) for tg in range(2)])
if OPT['DUMP'] == 'q': b += dump([a(qf(ks, tg), 4) for ks in range(8) for tg in range(2)])
b += stamp_ins('G4')
blk[phase['G4']] = b

def sconv(p, u):
    s = []
    for tg in range(2):
        b = acc4(p, u, tg); d = acc4(p, u & ~1, tg) + 2*(u & 1)
        s += [f"v_mul_f32 v{b+r}, v{vRC + tg}, v{b+r}" for r in range(4)]
        s += [f"v_cvt_pk_bf16_f32 v{d}, v{b}, v{b+1}", f"v_cvt_pk_bf16_f32 v{d+1}, v{b+2}, v{b+3}"]
        if u & 1:
            if (u, tg) != (1, 0): s.append(f"s_add_u32 s{sQT+7+p}, s{sQT+7+p}, 16384")
            if not OPT['NOSST']: s.append(I(f"buffer_store_dwordx4 {v(acc4(p, u & ~1, tg),4)}, v{vL16}, {srd(sWS)}, s{sQT+7+p} offen {OPT['SST']}", tag=('sst', p)))
    return s
g4 = gap(phase['G4'])
for p in range(7):
    for u in range(4):
        g0 = gap(phase[f'G4p{p}']) + 16*(u+1)
        if u == 3 and p < 6: gl = place(sconv(p, u), g0 + 3, g0 + 28)
        else: gl = place(sconv(p, u), g0 + 3, g0 + (19 if (p, u) != (6, 3) else 10))
last_store_gap = gl
hs = OPT['HSTEP']
gp0 = gap(phase[f'G3_{hs-1}']) - 30
place([f"s_lshl_b32 s{sT0}, s{sTC}, 4", f"v_mov_b32 v{vPOLL}, s{sT0}", I(f"global_load_dword v{vPOLL}, v{vPOLL}, {DBGP} sc1", tag='pollh'),
       f"v_add_u32 v{vHS}, s{sCOOB}, v{vL16}"], gp0, gp0 + 24)
gp1 = gap(phase[f'G3_{hs}'])
ext[gp1] += [mk_wait_vm(['pollh']), I(f"v_cmp_gt_u32 vcc, 16, v{vPOLL}"), I("s_cbranch_vccnz L_spinh"), I("L_spinh_ret:")]
def hloads(k0, k1):
    s = []
    for kk in range(k0, k1, 2):
        for rl in range(2):
            s.append(f"s_add_u32 s{sT0}, s{sHLD}, {rl*56*2048 + kk*2048}")
            for k2 in range(2):
                for tg in range(2):
                    s.append(I(f"buffer_load_dwordx4 {hreg(kk+k2, rl*2+tg)}, v{vHS}, {srd(sWS)}, s{sT0} offen offset:{k2*2048 + tg*1024} {OPT['HLD']}", tag='hld'))
    return s
if not OPT['NOHLD']:
    spread(hloads(0, 8), gap(phase[f"G3_{hs+OPT['HPF']}"]) + 2, gap(phase['G3_15']) - OPT['HEND'])
    spread(hloads(8, 14), g4 + OPT['H2A'], g4 + OPT['H2B'])
g6 = gap(phase['G6'])
vFV = 120
def greg(rl, sl):
    i = sl*2 + rl
    if NPOST <= 10: i = (i + 16) % 32
    if i < 16: return v(Opk(0, 0) + 8*i, 4)
    return a(aH + (i - 16)*4, 4)
assert OPT['CA'] > 0 or (NPOST <= 10 and g6 + OPT['CA'] > gap(phase['G6_3'] + 4))
def gloads(s0, s1, va):
    s = []
    for sq in range(s0, s1, 2):
        for rl in range(2):
            s.append(I(f"s_add_u32 s{sT1}, s{sSG}, {rl*2*16384 + sq*1024}"))
            for sl in range(sq, sq+2):
                if not OPT['NOG']: s.append(I(f"buffer_load_dwordx4 {greg(rl, sl)}, v{va}, {srd(sWS)}, s{sT1} offen offset:{(sl-sq)*1024} {OPT['GLD']}", tag=('g', rl, sl)))
    return s
F0 = OPT['F0']
sPL = 32
sMISS = 18
place([f"v_mov_b32 v{vFV}, 1", f"v_mov_b32 v{vFV+1}, 3", f"v_and_b32 v{vFV+3}, 15, v0"], g4 + 100, g4 + 200)
def signal(k, n): return [mk_wait_vm([('sst', p) for p in range(n)]), I(f"buffer_store_byte v{vFV+k}, v{vZ}, {srd(sWS)}, s{sFLG} offen sc1", tag='flag')]
spoll = I(f"s_buffer_load_dwordx4 s[{sPL}:{sPL+3}], {srd(sWS)}, s{sFLP} glc"); spoll.cls = 'misc'
VPOLL = f"buffer_load_ubyte v{vPOLL}, v{vFV+3}, {srd(sWS)}, s{sFLP} offen sc1"
if OPT['WB']:
    def signal(k, n, gp):
        ext[gp - OPT['WBD']] += [mk_wait_vm([('sst', p) for p in range(n)]), I("buffer_wbl2 sc1", tag=('wb', k))] + stamp_ins(f'wb{k}')
        return [mk_wait_vm([('wb', k)]), I(f"buffer_store_byte v{vFV+k}, v{vZ}, {srd(sWS)}, s{sFLG} offen sc1", tag='flag')]
else:
    signal_ = signal
    def signal(k, n, gp): return signal_(k, n)
ga_ = gap(phase[f'G4p{F0-1}']) + 64 + OPT['SA']
ext[ga_] += signal(0, F0, ga_) + stamp_ins('sigA')
ext[g6 + OPT['PA']] += [spoll]
sg = g6 + OPT['SC']
ext[sg] += signal(1, 7, sg) + stamp_ins('st_done') + [I(f"s_cmp_ge_u32 s{sPC}, 14"), I("s_cbranch_scc1 " + ("L_fin" if OPT['STAMP'] == 3 else "L_end"))]
assert sg > bar_gap[-1] and sg > last_store_gap
ext[g6 + OPT['CA']] += stamp_ins('pre_c0') + [I(t_) for t_ in (
    "s_waitcnt lgkmcnt(0)", f"s_and_b64 s[{sPL}:{sPL+1}], s[{sPL}:{sPL+1}], s[{sPL+2}:{sPL+3}]", f"s_and_b32 s{sPL}, s{sPL}, s{sPL+1}",
    f"s_and_b32 s{sPL}, s{sPL}, 0x01010101", f"s_cmp_eq_u32 s{sPL}, 0x01010101", f"s_cselect_b32 s{sMISS}, 0, {hx(OOB)}",
    f"v_add_u32 v{vFV+2}, s{sMISS}, v{vHS}")] + stamp_ins('chk0')
spread(gloads(0, 2*F0, vFV+2), g6 + OPT['CA'] + 1, g6 + OPT['LA'])
ext[g6 + OPT['PB']] += [I(VPOLL, tag='poll')]

vXF = 68
vAD = 125
nch = len(chunks)
XK = [c_ for c_ in range(nch - 10, nch) if chunks[c_]['private'] and chunks[c_]['lo'] >= 4*SLOT][0]
XS = chunks[XK]['lo']
gx_ = max(gap(chunks[XK]['last'] + 1), cur + 1, g6 + OPT['XG'])
gx2 = place([f"v_accvgpr_read_b32 v{vAD}, a{aST+8}", f"s_add_u32 m0, s{sWB}, {XS}", f"s_movk_i32 s{sSV0}, {8*896 - 1024}", f"s_movk_i32 s{sSV1}, {8*896}",
       I(f"buffer_load_dwordx4 v{vAD}, {srd(sX)}, 0 offen lds", tag='xf'), I(f"buffer_load_dwordx4 v{vAD}, {srd(sX)}, s{sSV0} offen offset:1024 lds", tag='xf'),
       f"v_and_b32 v{vT3}, 15, v0", f"v_lshlrev_b32 v{vT3}, 7, v{vT3}", f"v_lshrrev_b32 v{vT4}, 4, v0", f"v_lshl_add_u32 v{vT3}, v{vT4}, 3, v{vT3}",
       f"s_add_u32 s{sSV2}, s{sWB}, {XS}", f"v_add_u32 v{vT3}, s{sSV2}, v{vT3}", f"v_lshrrev_b32 v{vT4}, 3, v0", f"v_lshl_add_u32 v{vT4}, v{vT4}, 4, v{vL16}", f"v_add_u32 v{vT4}, s{sSV2}, v{vT4}",
       f"v_and_b32 v{vPF}, 15, v0", f"v_lshl_add_u32 v{vPF}, v{vPF}, 4, v{vT3}"], gx_, gx_ + 30)
HX = OPT['HX']; NHG = 16 // HX; NT = 32 // HX
npf = [0]
def pf_addr(nlines, lines_per_row, pitch, k, dst, idx_sgpr, nshare):
    per = nlines // nshare
    s = [f"s_lshl_b32 s{sSO2}, s{sW}, 6", f"s_add_u32 s{sSO2}, s{sSO2}, {k*256}", f"v_add_u32 v{dst}, s{sSO2}, v0",
         f"v_min_u32 v{dst}, {per-1}, v{dst}", f"s_mul_i32 s{sSO2}, s{idx_sgpr}, {per}", f"v_add_u32 v{dst}, s{sSO2}, v{dst}"]
    if lines_per_row is None:
        s += [f"v_lshlrev_b32 v{dst}, 7, v{dst}"]
    else:
        sh = lg(lines_per_row)
        s += [f"v_and_b32 v{vPF}, {lines_per_row-1}, v{dst}", f"v_lshrrev_b32 v{dst}, {sh}, v{dst}",
              f"v_mul_u32_u24 v{dst}, {pitch}, v{dst}", f"v_lshl_add_u32 v{dst}, v{vPF}, 7, v{dst}"]
    return s
def pf_load(srd_b, dst):
    npf[0] += 1
    return I(f"buffer_load_dword a{aST + 10 + npf[0] % 6}, v{dst}, {srd(srd_b)}, 0 offen {OPT['PPF']}", tag='pf')
def pf_seq(srd_b, nlines, lines_per_row, pitch, idx, nshare):
    s = []
    for k in range((nlines // nshare + 255) // 256):
        s += pf_addr(nlines, lines_per_row, pitch, k, vPF+1, idx, nshare) + [pf_load(srd_b, vPF+1)]
    return s
vLQ = 26
def pf_pieces(srd_b, per, unit, idx, extra_base=None, pol='', rot=False):
    setup = [f"s_mul_i32 s{sSO2}, s{idx}, {per}", f"v_add_u32 v{vPF+1}, s{sSO2}, v{vLQ}", f"v_mul_u32_u24 v{vPF+1}, {unit}, v{vPF+1}"]
    if extra_base is not None: setup.append(f"v_add_u32 v{vPF+1}, s{extra_base}, v{vPF+1}")
    pcs = []
    for k in range((per + 63)//64):
        npf[0] += 1
        n_ = (per + 63)//64
        if rot and k == 0: so_ = [f"s_lshr_b32 s{sSO2}, s{sTC}, 1", f"s_sub_u32 s{sCNT}, s{sSO2}, {n_}", f"s_min_u32 s{sSO2}, s{sSO2}, s{sCNT}", f"s_mul_i32 s{sSO2}, s{sSO2}, {64*unit}"]
        elif rot: so_ = [f"s_add_u32 s{sSO2}, s{sSO2}, {64*unit}", f"s_sub_u32 s{sCNT}, s{sSO2}, {n_*64*unit}", f"s_min_u32 s{sSO2}, s{sSO2}, s{sCNT}"]
        else: so_ = [f"s_mov_b32 s{sSO2}, {k*64*unit}"]
        pcs.append(so_ + [I(f"buffer_load_dword a{aST + 9 + npf[0] % 7}, v{vPF+1}, {srd(srd_b)}, s{sSO2} offen {pol}", tag='pf')])
    return setup, pcs
def pf_run(streams, g0, g1):
    items = []
    for st_ in streams:
        su, pcs = st_
        for k, p_ in enumerate(pcs): items.append((su if k == 0 else []) + p_)
    n = len(items)
    for k, it_ in enumerate(items):
        lo = g0 + (k*(g1-g0))//n
        place(it_, lo, lo + 24)
if OPT['PF']:
    place([f"v_lshrrev_b32 v{vLQ}, 2, v0", f"s_lshl_b32 s{sSO2}, s{sW}, 4", f"v_add_u32 v{vLQ}, s{sSO2}, v{vLQ}"], 100, 130)
    if not OPT['BIG'] & 2 and not OPT['NOPF2'] & 4: pf_run([pf_pieces(sKK, 2048//(2*NT), 128, sKVI, pol=OPT['PPF']), pf_pieces(sVV, 2048//(2*NT), 128, sKVI, pol=OPT['PPF'])], OPT['PFG'], gap(phase['P4']))
    if not OPT['NOPF2'] & 1: pf_run([pf_pieces(sWO, 1792//16, 128, sT) if OPT['WOM'] else pf_pieces(sWO, 1792//NT, 128, sTL), (lambda z: (z[0], z[1][:OPT['W2N']]))(pf_pieces(sW2, 448, 896, sW2I, rot=OPT['W2ROT']))], gap(phase[f"G3_{OPT['PF0']}"]), gp1 if OPT['PF1'] == 0 else gap(phase[f"G3_{OPT['PF1']}"]))
    vPF += -20
    sSO2 = sT3
    if not OPT['NOPF2'] & 2: pf_run([pf_pieces(sWS, 256, 128, sCC, sHPF, 'sc1')], gp1 + 2, gap(phase[f"G3_{hs+OPT['HPF']}"]) - 20)
    vPF += 20
    sSO2 = 93

if OPT['STLB'] == 2:
    for k_, (b_, o_) in enumerate(((sKK, '0'), (sVV, '0'), (sW2, '0'), (sWO, '0'), (sWS, f's{sHST}'), (sWS, f's{sQT+7}'), (sOUT, '0'))):
        i_ = I(f"s_buffer_load_dword s1, {srd(b_)}, {o_}"); i_.cls = 'misc'; i_.dst = []
        place([i_], OPT['ST0'] + k_*OPT['STS'], OPT['ST0'] + k_*OPT['STS'] + 8)
if OPT['TLB']:
    gt = gap(phase[OPT['TLBP']])
    seq = []
    if OPT['TLB'] & 1: seq += [f"v_accvgpr_read_b32 v{vT1}, a{aST+8}", f"v_readfirstlane_b32 s{sT2}, v{vT1}", "s_nop 0", "s_nop 0", I(f"buffer_load_dword a{aST+9}, v{vZ}, {srd(sOUT)}, s{sT2} offen", tag='pf')]
    if OPT['TLB'] & 2: seq += [I(f"buffer_load_dword a{aST+9}, v{vZ}, {srd(sWS)}, s{sQT+7} offen sc1", tag='pf')]
    if OPT['TLB'] & 4: seq += [I(f"buffer_load_dword a{aST+9}, v{vZ}, {srd(sWS)}, s{sSG} offen sc1", tag='pf'), ]
    spread(seq, gt, gt + 40)
    if OPT['TLB'] & 8: place([I(f"buffer_load_dword a{aST+9}, v{vZ}, {srd(sWS)}, s{sHST} offen sc1", tag='pf')], gap(phase['P3']), gap(phase['P3']) + 20)
if OPT['FINE'] == 1:
    for p in range(1, 7): blk[phase[f'G4p{p}']] = stamp_ins(f'G4p{p}')
if OPT['FINE'] == 2:
    for nm in ['P1', 'P3', 'P5'] + [f'G2_{s_}' for s_ in range(1, 16) if s_ % 4] + ['G3_14', 'G3_15']:
        blk[phase[nm]] = stamp_ins(nm)
if OPT['STAMP'] or OPT['WAITAT']:
    for nm in ('P0', 'P2', 'P4', 'G2_0', 'G2_4', 'G2_8', 'G2_12', 'G6'):
        blk.setdefault(phase[nm], [])
        blk[phase[nm]] = stamp_ins(nm) + blk[phase[nm]]

E(f"""
s_cmp_ge_u32 s2, 256
s_cbranch_scc1 L_end
s_load_dwordx16 s[4:19], s[0:1], 0
s_load_dwordx4 s[20:23], s[0:1], 64
s_load_dwordx2 s[24:25], s[0:1], 80
""")
if OPT['STAMP'] or OPT['WAITAT']: E("s_memtime s[98:99]\ns_memrealtime s[100:101]")
E(f"""
v_lshrrev_b32 v{vT0}, 6, v0
v_and_b32 v0, 63, v0
s_and_b32 s{sT0}, s2, 7
v_readfirstlane_b32 s{sW}, v{vT0}
s_lshr_b32 s{sT1}, s2, 3
s_and_b32 s{sT2}, s{sT0}, {NHG-1}
s_lshl_b32 s{sT2}, s{sT2}, {lg(HX)}
s_and_b32 s{sHD}, s{sT1}, {HX-1}
s_add_u32 s{sHD}, s{sHD}, s{sT2}
s_lshr_b32 s{sT2}, s{sT0}, {lg(NHG)}
s_lshl_b32 s{sT2}, s{sT2}, {lg(NT)}
s_lshr_b32 s{sTL}, s{sT1}, {lg(HX)}
s_add_u32 s{sT}, s{sTL}, s{sT2}
s_lshl_b32 s{sWB}, s{sW}, 12
""")
CODE_LINES = 512
E(f"s_lshr_b32 s{sCNT}, s2, 3")
for t_ in pf_addr(CODE_LINES, None, 0, 0, vR+80, sCNT, 32): E(t_)
E(f"""
s_getpc_b64 s[26:27]
L_pc:
global_load_dword v{vR+90}, v{vR+80}, s[26:27]
""")
E(f"""
v_lshrrev_b32 v{vT3}, 3, v0
v_and_b32 v{vT4}, 7, v0
v_lshrrev_b32 v{vT1}, 1, v{vT3}
v_xor_b32 v{vT1}, v{vT1}, v{vT4}
v_lshlrev_b32 v{vT1}, 4, v{vT1}
v_xor_b32 v{vT2}, 64, v{vT1}
s_lshl_b32 s{sT1}, s{sT}, 2
s_add_u32 s{sT1}, s{sT1}, s{sW}
s_mul_i32 s{sT1}, s{sT1}, {32*896}
v_mul_u32_u24 v{vT0}, 896, v{vT3}
v_add_u32 v{vT0}, s{sT1}, v{vT0}
v_add_u32 v{vXD}, v{vT0}, v{vT1}
v_add_u32 v{vXD+1}, v{vT0}, v{vT2}
v_add_u32 v{vXD+2}, {2*6144}, v{vXD}
v_add_u32 v{vXD+3}, {3*6144}, v{vXD+1}
v_add_u32 v{vXD+1}, 6144, v{vXD+1}
s_mov_b32 m0, s{sWB}
s_mov_b32 s{sSO}, 0
v_min_u32 v{vR+82}, 13, v0
v_subrev_u32 v{vR+83}, 7, v{vR+82}
v_min_u32 v{vR+83}, v{vR+83}, v{vR+82}
v_sub_u32 v{vR+82}, v{vR+82}, v{vR+83}
v_lshlrev_b32 v{vR+82}, 11, v{vR+82}
v_lshl_add_u32 v{vR+82}, v{vR+83}, 7, v{vR+82}
s_mul_i32 s{sT2}, s{sHD}, 896
s_add_u32 s{sT2}, s{sT2}, s{sT1}
s_mov_b32 s{sX+2}, {2048*896}
s_mov_b32 s{sX+3}, 0x00020000
s_waitcnt lgkmcnt(0)
s_mov_b32 s{sX}, s4
s_mov_b32 s{sX+1}, s5
""")
PST('karg')
def mk_srd(b, plo, off_sgpr, size):
    if off_sgpr is None:
        E(f"s_mov_b32 s{b}, s{plo}\ns_mov_b32 s{b+1}, s{plo+1}")
    else:
        E(f"s_add_u32 s{b}, s{plo}, s{off_sgpr}\ns_addc_u32 s{b+1}, s{plo+1}, 0")
    E(f"s_mov_b32 s{b+2}, {size}\ns_mov_b32 s{b+3}, 0x00020000")
xdma = []
for tg in range(2):
    for q in range(7):
        if q or tg:
            xdma += [I(f"s_add_u32 m0, s{sWB}, {q*SLOT}"), I(f"s_movk_i32 s{sSO}, {q*128}")]
        for rb in (2*tg, 2*tg+1):
            xdma.append(I(f"buffer_load_dwordx4 v{vXD+rb}, {srd(sX)}, s{sSO} offen offset:{rb*1024} {OPT['PX']} lds", tag=('x', tg, q)))
def xissue(n):
    while n > 0 and xdma:
        i_ = xdma.pop(0); P.ins.append(i_)
        if i_.cls == 'vmem': n -= 1
if OPT['XPF']: E(f"buffer_load_dword a{aST+9}, v{vR+82}, {srd(sX)}, s{sT2} offen", tag='pf')
xissue(OPT['XFIRST'])
if OPT['STLB'] >= 3:
    lst = [("s[10:11]", 0), ("s[10:11]", 400*8192), ("s[16:17]", 0), ("s[24:25]", WS_F + 0x8000)]
    if OPT['STLB'] >= 4: lst += [("s[6:7]", 'kv'), ("s[8:9]", 'kv'), ("s[18:19]", 0), ("s[20:21]", 0), ("s[12:13]", 0), ("s[12:13]", 4000*896)]
    for p_, o_ in lst:
        if o_ == 'kv': E(f"s_lshl_b32 s{sCNT}, s{sHD}, 19")
        else: E(f"s_mov_b32 s{sCNT}, {hx(o_)}")
        i_ = I(f"s_load_dword s1, {p_}, s{sCNT}"); i_.dst = []; P.ins.append(i_)
E(f"s_lshl_b32 s{sT0}, s{sHD}, 9\ns_sub_u32 s{sT2}, {448*8192}, s{sT0}")
mk_srd(sWQ, 10, sT0, f"s{sT2}")
wqpf = [I(t_) if isinstance(t_, str) else t_ for t_ in pf_seq(sWQ, 448*OPT['WQP'], OPT['WQP'], 8192, sTL, NT)] if OPT['PF'] and OPT['WQP'] else []
if OPT['WQE'] == 1: P.ins += wqpf; wqpf = []
else: P.ins += wqpf[:-1]; wqpf = wqpf[-1:]
xissue(OPT['XSEC'])
PST('x_first')
mk_srd(sOUT, 20, None, 2048*896)
E(f"""
s_lshl_b32 s{sT0}, s{sW}, 7
v_lshlrev_b32 v{vKD}, 9, v{vT3}
v_add_u32 v{vVD}, s{sT0}, v{vKD}
v_add_u32 v{vKD}, v{vVD}, v{vT1}
v_add_u32 v{vKD+1}, v{vVD}, v{vT2}
v_add_u32 v{vKD+2}, {2*3072}, v{vKD}
v_add_u32 v{vKD+3}, {3*3072}, v{vKD+1}
v_add_u32 v{vKD+1}, 3072, v{vKD+1}
v_and_b32 v{vT0}, 6, v{vT3}
v_xor_b32 v{vT0}, v{vT0}, v{vT4}
v_lshlrev_b32 v{vT0}, 4, v{vT0}
v_add_u32 v{vVD}, v{vVD}, v{vT0}
""")
for rb in range(1, 4): E(f"v_add_u32 v{vVD+rb}, {3072*rb}, v{vVD}")
E(f"""
v_and_b32 v{vT1}, 4, v{vT3}
v_add_u32 v{vT1}, v{vT1}, v{vT3}
v_lshl_add_u32 v{vWQ}, v{vT1}, 13, v{vT0}
v_mul_u32_u24 v{vT1}, 3584, v{vT1}
v_add_u32 v{vW1D}, v{vT1}, v{vT0}
""")
for rb in range(1, 4):
    rr = 16*(rb & 1) + 4*(rb >> 1)
    E(f"v_add_u32 v{vW1D+rb}, {rr*3584 - 1024*rb}, v{vW1D}\nv_add_u32 v{vWQ+rb}, {rr*8192 - 1024*rb}, v{vWQ}")
E(f"""
s_lshl_b32 s{sT1}, s{sHD}, 8
s_sub_u32 s{sT2}, {448*3584}, s{sT1}
s_cmp_lt_u32 s{sHD}, 14
s_cselect_b32 s{sT2}, s{sT2}, 0
s_cselect_b32 s{sT1}, s{sT1}, 0
""")
mk_srd(sW1, 16, sT1, f"s{sT2}")
E(f"s_lshr_b32 s{sT0}, s{sHD}, 1\ns_lshl_b32 s{sT0}, s{sT0}, 20\ns_add_u32 s{sT0}, s{sT0}, {1536*512}")
mk_srd(sKK, 6, sT0, 262144)
mk_srd(sVV, 8, sT0, 262144)
E(f"s_mul_i32 s{sT0}, s{sHD}, {256*896}")
mk_srd(sWO, 12, sT0, 256*896)
E(f"""
s_lshr_b32 s{sPC}, s2, 3
s_and_b32 s{sPC}, s{sPC}, 15
s_cmp_ge_u32 s{sPC}, 7
s_cselect_b32 s{sT3}, 1, 0
s_mul_i32 s{sT1}, s{sT3}, 7
s_sub_u32 s{sT1}, s{sPC}, s{sT1}
s_lshl_b32 s{sT0}, s{sT1}, 7
s_sub_u32 s{sT2}, {1792*896}, s{sT0}
s_cmp_lt_u32 s{sPC}, 14
s_cselect_b32 s{sT2}, s{sT2}, 0
s_cselect_b32 s{sT0}, s{sT0}, 0
""")
mk_srd(sW2, 18, sT0, f"s{sT2}")
if OPT['WSOFF']:
    E(f"s_mov_b32 s{sT0}, {hx(OPT['WSOFF'] << 20)}")
    mk_srd(sWS, 24, sT0, WS_SIZE)
else:
    mk_srd(sWS, 24, None, WS_SIZE)
for k_, R_ in ((0, 32*8192), (2, 32*3584)):
    E(f"""
s_mul_i32 s{sW1T+k_}, s{sW}, {R_}
s_cmp_lt_u32 s{sW}, 2
s_mov_b32 s{sT2}, {hx(128 - 2*R_)}
s_cselect_b32 s{sT0}, {12*R_}, s{sT2}
s_add_u32 s{sW1T+k_+1}, s{sW1T+k_}, s{sT0}
""")
E(f"""
v_mul_u32_u24 v{vT1}, 896, v{vT3}
v_add_u32 v{vT1}, v{vT1}, v{vT0}
s_mul_i32 s{sT0}, s{sW}, {32*896}
s_mul_i32 s{sT2}, s{sW}, {448*896}
""")
for rb in range(4):
    if rb: E(f"v_add_u32 v{vT1}, 6144, v{vT1}")
    E(f"v_add_u32 v{vT2}, s{sT0}, v{vT1}\nv_accvgpr_write_b32 a{aST+rb}, v{vT2}\nv_add_u32 v{vT2}, s{sT2}, v{vT1}\nv_accvgpr_write_b32 a{aST+4+rb}, v{vT2}")
E(f"""
v_lshlrev_b32 v{vL16}, 4, v0
v_lshrrev_b32 v{vT0}, 2, v0
v_lshlrev_b32 v{vT1}, 7, v{vT0}
v_and_b32 v{vT2}, 3, v0
v_lshl_add_u32 v{vT1}, v{vT2}, 3, v{vT1}
v_bfe_u32 v{vT3}, v0, 3, 2
""")
for u in range(4):
    E(f"""
v_xor_b32 v{vT4}, {u}, v{vT3}
v_lshl_add_u32 v{vTR+u}, v{vT4}, 5, v{vT1}
v_add_u32 v{vTR+4+u}, 0x10000, v{vTR+u}
v_add_u32 v{vTR+8+u}, 0x20000, v{vTR+u}
""")
E(f"""
v_and_b32 v{vT0}, 15, v0
v_lshrrev_b32 v{vT1}, 1, v{vT0}
v_lshrrev_b32 v{vT2}, 4, v0
v_xor_b32 v{vT1}, v{vT1}, v{vT2}
v_lshlrev_b32 v{vT4}, 7, v{vT0}
v_lshl_add_u32 v{vRA}, v{vT1}, 4, v{vT4}
v_xor_b32 v{vRA+1}, 64, v{vRA}
v_add_u32 v{vRA+2}, 0x10000, v{vRA}
v_add_u32 v{vRA+3}, 0x10000, v{vRA+1}
v_add_u32 v{vRA+4}, 0x20000, v{vRA}
v_add_u32 v{vRA+5}, 0x20000, v{vRA+1}
""")
vXR = vR + 72
for i in range(4): E(f"v_add_u32 v{vXR+i}, s{sWB}, v{vRA+i}")
E(f"""
s_and_b32 s{sTC}, s2, 7
s_lshl_b32 s{sTC}, s{sTC}, 1
s_lshr_b32 s{sT0}, s2, 7
s_add_u32 s{sTC}, s{sTC}, s{sT0}
s_lshl_b32 s{sW2I}, s{sT0}, 1
s_add_u32 s{sW2I}, s{sW2I}, s{sT3}
s_lshl_b32 s{sT2}, s{sTC}, 1
s_add_u32 s{sT2}, s{sT2}, s{sT3}
s_lshl_b32 s{sT0}, s{sT2}, 2
s_add_u32 s{sT0}, s{sT0}, s{sW}
s_mul_i32 s{sT0}, s{sT0}, {16*896}
s_lshl_b32 s{sSG}, s{sT1}, 7
s_add_u32 s{sT0}, s{sT0}, s{sSG}
v_lshrrev_b32 v{vT0}, 3, v0
v_mul_u32_u24 v{vT0}, 896, v{vT0}
v_and_b32 v{vT2}, 7, v0
v_lshl_add_u32 v{vT0}, v{vT2}, 4, v{vT0}
v_add_u32 v{vT0}, s{sT0}, v{vT0}
v_accvgpr_write_b32 a{aST+8}, v{vT0}
s_lshl_b32 s{sT2}, s{sT2}, 1
s_lshr_b32 s{sT0}, s{sW}, 1
s_add_u32 s{sSG}, s{sT2}, s{sT0}
s_mul_i32 s{sSG}, s{sSG}, 7
s_add_u32 s{sSG}, s{sSG}, s{sT1}
s_lshl_b32 s{sSG}, s{sSG}, 2
s_lshl_b32 s{sT0}, s{sT0}, 4
s_lshl_b32 s{sFLP}, s{sT2}, 7
s_add_u32 s{sFLP}, s{sFLP}, s{sT0}
s_add_u32 s{sFLP}, s{sFLP}, {hx(WS_F)}
s_and_b32 s{sT0}, s{sW}, 1
s_add_u32 s{sSG}, s{sSG}, s{sT0}
s_lshl_b32 s{sSG}, s{sSG}, 14
s_mul_i32 s{sHLD}, s{sT2}, {56*2048}
s_add_u32 s{sHLD}, s{sHLD}, {hx(WS_H)}
s_cmp_lt_u32 s{sPC}, 14
s_cselect_b32 s{sCOOB}, 0, {hx(OOB)}
s_add_u32 s{sHPF}, s{sHLD}, s{sCOOB}
s_mul_i32 s{sT0}, s{sW}, {14*2048}
s_add_u32 s{sHLD}, s{sHLD}, s{sT0}
s_mov_b32 s0, s2
s_mov_b32 s{sCC}, s{sT1}
s_lshl_b32 s{sKVI}, s{sTL}, 1
s_and_b32 s{sT0}, s{sHD}, 1
s_add_u32 s{sKVI}, s{sKVI}, s{sT0}
s_lshl_b32 s{sT1}, s{sT}, 2
s_add_u32 s{sT1}, s{sT1}, s{sW}
s_lshr_b32 s{sFLG}, s{sT1}, 1
s_lshl_b32 s{sFLG}, s{sFLG}, 8
s_and_b32 s{sT2}, s{sT1}, 1
s_lshl_b32 s{sT2}, s{sT2}, 4
s_add_u32 s{sFLG}, s{sFLG}, s{sT2}
s_add_u32 s{sFLG}, s{sFLG}, s{sHD}
s_add_u32 s{sFLG}, s{sFLG}, {hx(WS_F)}
s_mul_i32 s{sHST}, s{sT1}, {56*2048}
s_min_u32 s{sT2}, s{sHD}, 13
s_lshl_b32 s{sT2}, s{sT2}, 13
s_add_u32 s{sHST}, s{sHST}, s{sT2}
s_add_u32 s{sHST}, s{sHST}, {hx(WS_H)}
s_cmp_lt_u32 s{sHD}, 14
s_cselect_b32 s{sT2}, 0, {hx(OOB)}
v_add_u32 v{vHS}, s{sT2}, v{vL16}
v_mov_b32 v{vZ}, 0
v_mov_b32 v{vONE}, 1
""")
PST('addr_done')
xissue(14 - OPT['XFIRST'] - OPT['XSEC'])
if OPT['WQE'] == 0: P.ins += wqpf; wqpf = []
PST('x_issued')
PRODUCER = len(P.ins)
E(f"""
s_lshl_b32 s{sSST}, s{sT}, 2
s_add_u32 s{sSST}, s{sSST}, s{sW}
s_mul_i32 s{sSST}, s{sSST}, {28*16384}
s_cmp_ge_u32 s{sHD}, 7
s_cselect_b32 s{sT3}, 1, 0
s_sub_u32 s{sROT}, s{sHD}, 7
s_min_u32 s{sROT}, s{sROT}, s{sHD}
s_sub_u32 s{sCNT}, s{sROT}, 7
s_min_u32 s{sROT}, s{sROT}, s{sCNT}
s_cmp_lt_u32 s{sHD}, 14
s_cselect_b32 s{sT3}, s{sT3}, s{sHD}
s_cselect_b32 s{sSTEP}, 2048, 0
s_lshl_b32 s{sT3}, s{sT3}, 10
s_add_u32 s{sSST}, s{sSST}, s{sT3}
""")
prod_ins = []
if OPT['STLB'] == 1:
    for b_, o_ in ((sKK, '0'), (sVV, '0'), (sWQ, '0'), (sWQ, f'{hx(400*8192)}')[:2], (sWO, '0'), (sW1, '0'), (sW2, '0'), (sOUT, '0'),
                   (sWS, f's{sSST}'), (sWS, f's{sHST}'), (sWS, hx(WS_F + 0x8000))):
        if o_.startswith('0x'): E(f"s_mov_b32 s{sCNT}, {o_}"); o_ = f's{sCNT}'
        i_ = I(f"s_buffer_load_dword s1, {srd(b_)}, {o_}"); i_.cls = 'smem'; i_.dst = []; P.ins.append(i_)
for s_, val in ((sM1, 0x2222222222222222), (sM2, 0xCCCCCCCCCCCCCCCC), (sM3, 0x8888888888888888), (sMD, 0xF0000F0000F0000F)):
    E(f"s_mov_b32 s{s_}, {hx(val)}\ns_mov_b32 s{s_+1}, {hx(val >> 32)}")

vONES = vR + 16
vD1 = vR + 20
vD2 = vR + 28
vLA = vR + 36
for i in range(4): E(f"v_mov_b32 v{vONES+i}, 0x3f803f80")
def rbf(r):
    return [f"v_cvt_pk_bf16_f32 v{r}, v{r}, v{r}", f"v_lshlrev_b32 v{r}, 16, v{r}"]
E(f"s_mov_b32 s{sT0}, {hx(f2u(1.0/448.0))}\ns_mov_b32 s{sT1}, {hx(f2u(1e-5))}\ns_mov_b32 s{sT2}, {hx(f2u(CSCALE))}")
if OPT['PADS']:
    E(f"""
s_mov_b64 exec, 0
s_cmp_eq_u32 s{sW}, 0
s_cbranch_scc1 L_pg0
s_cmp_eq_u32 s{sW}, 1
s_cbranch_scc1 L_pg1
s_cmp_eq_u32 s{sW}, 2
s_cbranch_scc1 L_pg2
s_branch L_pg3
.p2align 12
L_main:
s_mov_b64 exec, -1
""")
STAMP('pro_done')
vNT = vR + 44
NPRO = OPT['NPRO']
big = []
if OPT['BIG'] & 1:
    t_ = pf_seq(sWQ, 448*2, 2, 8192, sTL, NT); t_[-1] = I(t_[-1].text.replace('offen', 'offen offset:256'), tag='pf'); big += t_
    big += pf_seq(sW1, 448*2, 2, 3584, sTL, NT)
if OPT['BIG'] & 2:
    t_ = pf_seq(sKK, 2048, None, 0, sKVI, 2*NT); big += t_ + [pf_load(sVV, vPF+1)]
big = [I(t_) if isinstance(t_, str) else t_ for t_ in big]
assert len(pro_dma) == NPRO
L0N = OPT['L0N']
late = {0: [i_ for d_ in pro_dma[:L0N] for i_ in d_],
        1: [i_ for d_ in pro_dma[3:] for i_ in d_]
           + big + [I(f"buffer_store_byte v{vZ}, v{vZ}, {srd(sWS)}, s{sFLG} offen sc1", tag='hst')]}
def xreads(tg, q):
    r = [mk_wait_vm([('x', tg, q)])]
    for ks in (2*q, 2*q+1):
        ad = q*SLOT + tg*2048
        r.append(I(f"ds_read_b128 {v(xn(ks,tg),4)}, v{vXR + (ad >> 16)*2 + (ks & 1)} offset:{ad & 0xffff}", tag=('xr', tg, q)))
    return r
def stats(tg, q, fill):
    P.wait_lgkm_tag([('xr', tg, q)])
    for ks in (2*q, 2*q+1):
        X = v(xn(ks, tg), 4)
        for m_ in (mfma(v(vD1+4*tg, 4), v(vONES, 4), X, "0" if ks == 0 else v(vD1+4*tg, 4)), mfma(v(vD2+4*tg, 4), X, X, "0" if ks == 0 else v(vD2+4*tg, 4))):
            E(m_)
            t_ = 0
            while fill and t_ + cost(fill[0]) <= 12:
                t_ += cost(fill[0]); P.ins.append(fill.pop(0))
def scalars(tg):
    d = vD2 + 4*tg; m = vD1 + 4*tg; t = m + 1; L = vLA + 4*tg
    s = [f"v_cndmask_b32 v{d}, v{d}, v{d+1}, s[{sM1}:{sM1+1}]",
         f"v_cndmask_b32 v{d+2}, v{d+2}, v{d+3}, s[{sM3}:{sM3+1}]",
         f"v_mul_f32 v{m}, s{sT0}, v{m}",
         f"v_cndmask_b32 v{d}, v{d}, v{d+2}, s[{sM2}:{sM2+1}]",
         f"v_cndmask_b32 v{d}, 0, v{d}, s[{sMD}:{sMD+1}]"]
    s += allred(d, t, "v_add_f32")
    s += [f"v_mul_f32 v{d}, s{sT0}, v{d}",
          f"v_fma_f32 v{d}, -v{m}, v{m}, v{d}",
          f"v_max_f32 v{d}, 0, v{d}"]
    s += interleave(rbf(m), rbf(d))
    s += [f"v_add_f32 v{d}, s{sT1}, v{d}"] + rbf(d) + [f"v_sqrt_f32 v{d}, v{d}"] + rbf(d)
    s += [f"v_rcp_f32 v{d}, v{d}", f"v_mul_f32 v{d}, s{sT2}, v{d}",
          f"v_cvt_pk_bf16_f32 v{d}, v{d}, v{d}",
          f"v_and_b32 v{L}, 0xffff, v{d}", f"v_lshlrev_b32 v{L+1}, 16, v{d}",
          f"v_mul_f32 v{L+2}, -v{m}, v{L+1}"]
    for t_ in s: E(t_)
def normalize(tg, side):
    L = vLA + 4*tg; k = 0; pend = []
    for ks in range(14):
        for r in range(4):
            x_ = xn(ks, tg) + r
            t = vNT + 2*(k % 8); k += 1
            E(f"v_dot2_f32_bf16 v{t}, v{x_}, v{L}, v{L+2}\nv_dot2_f32_bf16 v{t+1}, v{x_}, v{L+1}, v{L+2}")
            pend.append(f"v_cvt_pk_bf16_f32 v{x_}, v{t}, v{t+1}")
            if len(pend) > 2: E(pend.pop(0))
            P.ins += side.get(k, [])
    for t_ in pend: E(t_)
for q in range(7):
    P.ins += xreads(0, q)
    if q in (0, 3, 6): PST(f'w0{q}')
    xissue(2)
    if q > 1: stats(0, q-2, [])
fill = wqpf + late[0]
stats(0, 5, fill); stats(0, 6, fill)
P.ins += fill
STAMP('x0_arrived')
scalars(0)
X1 = OPT['X1']
normalize(0, {X1 + 4*q: xreads(1, q) for q in range(7)})
PST('ln0_done')
fill = [i_ for d_ in pro_dma[L0N:3] for i_ in d_]
for q in range(7):
    if q == 1: P.wait_lgkm_tag([('xr', 1, 6)]); fill += late[1]
    stats(1, q, fill)
P.ins += fill
STAMP('x1_arrived')
scalars(1)
fr_ = [i_ for f in range(D) for i_ in frag_reads(f)]
side = {OPT['BARK']: [mk_wait_vm(first_need), I("s_barrier")]}
for k_, i_ in enumerate(fr_): side.setdefault(min(OPT['BARK'] + 1 + k_, 56), []).append(i_)
normalize(1, side)
if OPT['DUMP'] == 'xn':
    P.ins += dump([v(xn(ks, tg), 4) for ks in range(14) for tg in range(2)])

P.ins.append(mk_wait_lg([('f', f) for f in range(4)]))
est = 0
for g in range(NF):
    if g in blk: P.ins += blk[g]
    for h, m_ in enumerate(MF[g]):
        gp = G0[g] + h
        P.ins.append(I(m_))
        P.ins += pre[gp] + rds[gp] + ext[gp]
        est += max(16, gtime(pre[gp] + rds[gp] + ext[gp]))
if OPT['LOG']:
    ph = sorted((f_, n_) for n_, f_ in phase.items())
    for (f0_, n_), (f1_, _) in zip(ph, ph[1:]):
        e_ = sum(max(16, gtime(pre[q_] + rds[q_] + ext[q_])) for q_ in range(gap(f0_), gap(f1_)))
        print(f"  phase {n_}: est {e_} ideal {16*(gap(f1_)-gap(f0_))}", file=sys.stderr)
print("estimated main-stream cycles", est, "ideal", 16*NG, file=sys.stderr)

STAMP('g6_done')
def fs(t4, w_): return facc(t4, w_)
vSEL = 44
vSA = 52
STAMP('pre_c1')
P.wait_vm_tag(['poll'])
E(f"v_cmp_gt_u32 vcc, 3, v{vPOLL}\ns_cbranch_vccnz L_spin1\nL_spin1_ret:\ns_cmp_lg_u32 s{sMISS}, 0\ns_cbranch_scc1 L_redo\nL_redo_ret:")
STAMP('chk1')
gl2 = gloads(2*F0, 16, vHS)
n2 = OPT['N2']
P.ins += gl2[:n2]
E(f"""
v_add_u32 v{vT1}, s{sWB}, v{vL16}
s_lshl_b32 s{sT0}, s{sW}, 14
v_add_u32 v{vT2}, s{sT0}, v{vL16}
""")
for u in range(4):
    for t4 in range(4):
        E(f"ds_write_b128 v{vT1}, {v(facc(u, t4), 4)} offset:{t4*SLOT + u*1024}")
P.wait_vm_tag(['xf'])
for u in range(4): E(f"ds_read_b64 {v(vXF + 2*u, 2)}, v{vT3} offset:{u*32}")
E(f"""
v_mov_b32 v{vSEL}, 0
v_mov_b32 v{vSEL+1}, 0
v_mov_b32 v{vSEL+4}, 0
v_mov_b32 v{vSEL+5}, 0
v_mov_b32 v{vT0}, 0x3f80
v_mov_b32 v{vSEL+2}, 0x3f800000
s_or_b64 s[16:17], s[{sM1}:{sM1+1}], s[{sM3}:{sM3+1}]
v_cndmask_b32 v{vT0}, v{vT0}, v{vSEL+2}, s[16:17]
v_cndmask_b32 v{vT0}, 0, v{vT0}, s[{sMD}:{sMD+1}]
s_mov_b64 s[16:17], s[{sM2}:{sM2+1}]
v_cndmask_b32 v{vSEL+2}, v{vT0}, 0, s[16:17]
v_cndmask_b32 v{vSEL+3}, 0, v{vT0}, s[16:17]
s_mov_b32 s{sT0}, {hx(f2u(1.0/CSCALE))}
s_mov_b32 s{sT2}, {hx(f2u(-16.0))}
""")
E("s_waitcnt lgkmcnt(0)\ns_barrier")
for t4 in range(4):
    for w_ in range(4):
        E(f"ds_read_b128 {v(fs(t4, w_), 4)}, v{vT2} offset:{w_*4096 + t4*1024}")
def smf(rl, sl):
    r = []
    for tg in range(2):
        d = v(vSA + (rl*2+tg)*4, 4)
        r.append(mfma(d, v(vSEL + (2 if tg == 0 else 0), 4), greg(rl, sl), "0" if sl == 0 else d))
    return r
val = []
for t4 in range(4):
    b0, b1, b2, b3 = (fs(t4, w_) for w_ in range(4))
    for r in range(4): val += [f"v_add_f32 v{b0+r}, v{b0+r}, v{b1+r}", f"v_add_f32 v{b2+r}, v{b2+r}, v{b3+r}"]
    for r in range(4): val.append(f"v_add_f32 v{b0+r}, v{b0+r}, v{b2+r}")
    for r in range(4): val.append(f"v_mul_f32 v{b1+r}, s{sT2}, v{b0+r}")
    for r in range(4): val.append(f"v_exp_f32 v{b1+r}, v{b1+r}")
    for r in range(4): val.append(f"v_mul_f32 v{b0+r}, s{sT0}, v{b0+r}")
    for r in range(4): val.append(f"v_add_f32 v{b1+r}, 1.0, v{b1+r}")
    for r in range(4): val.append(f"v_rcp_f32 v{b1+r}, v{b1+r}")
    for r in range(4): val.append(f"v_mul_f32 v{b0+r}, v{b0+r}, v{b1+r}")
for t4 in range(4):
    b2 = fs(t4, 2); xr = vXF + t4*2
    val += [f"v_lshlrev_b32 v{b2}, 16, v{xr}", f"v_and_b32 v{b2+1}, 0xffff0000, v{xr}", f"v_lshlrev_b32 v{b2+2}, 16, v{xr+1}", f"v_and_b32 v{b2+3}, 0xffff0000, v{xr+1}"]
rest = gl2[n2:]
nv1 = OPT['NV1']
step = max(1, nv1 // max(1, len(rest)))
for k_ in range(nv1):
    E(val.pop(0))
    if rest and k_ % step == step - 1: P.ins.append(rest.pop(0))
P.ins += rest
E(f"s_waitcnt vmcnt({32 - 4*F0})")
ms = []
for sq in range(0, 2*F0, 2):
    for rl in range(2):
        for sl in range(sq, sq+2): ms += smf(rl, sl)
per = (len(val) + 8*F0 - 1) // (8*F0)
for m_ in ms:
    E(m_)
    for _ in range(per):
        if val: E(val.pop(0))
for t_ in val: E(t_)
STAMP('g_done')
for sq in range(2*F0, 16, 2):
    for rl in range(2):
        for sl in range(sq, sq+2):
            for m_ in smf(rl, sl): E(m_)
for u in range(4):
    b0 = fs(u, 0); b2 = fs(u, 2)
    for r in range(4): E(f"v_fma_f32 v{b0+r}, v{vSA+u*4+r}, v{b0+r}, v{b2+r}")
    E(f"v_cvt_pk_bf16_f32 v{b0}, v{b0}, v{b0+1}\nv_cvt_pk_bf16_f32 v{b0+1}, v{b0+2}, v{b0+3}")
    E(f"ds_write_b64 v{vPF}, {v(b0,2)} offset:{u*32}")
E(f"""
ds_read_b128 {v(vXF,4)}, v{vT4}
ds_read_b128 {v(vXF+4,4)}, v{vT4} offset:1152
buffer_store_dwordx4 {v(vXF,4)}, v{vAD}, {srd(sOUT)}, 0 offen {OPT['OST']}
buffer_store_dwordx4 {v(vXF+4,4)}, v{vAD}, {srd(sOUT)}, s{sSV1} offen {OPT['OST']}
""")
if OPT['WAITAT']: STAMP('end')
if OPT['STAMP']:
    STAMP('end')
    E(f"""
L_fin:
s_memrealtime s[{sSTMP}:{sSTMP+1}]
s_waitcnt lgkmcnt(0)
v_writelane_b32 v{vSTAMP}, s{sMISS}, 59
v_writelane_b32 v{vSTAMP}, s98, 60
v_writelane_b32 v{vSTAMP}, s100, 61
v_writelane_b32 v{vSTAMP}, s{sSTMP}, 62
s_lshl_b32 s{sT0}, s0, 2
s_add_u32 s{sT0}, s{sT0}, s{sW}
s_lshl_b32 s{sT0}, s{sT0}, 8
s_add_u32 s{sT0}, s{sT0}, {hx(WS_DBG)}
v_lshlrev_b32 v{vT0}, 2, v0
buffer_store_dword v{vSTAMP}, v{vT0}, {srd(sWS)}, s{sT0} offen
""")
E("L_end:\ns_endpgm")
main_ins, log, stats_ = resolve(P.ins)
print("main", stats_, file=sys.stderr)
if OPT['LOG']:
    for l in log: print("  ", l, file=sys.stderr)

Q = Prog(); E = Q.emit
SPIN_MAX = 1 << 17
def spin(label, load, want, cmp):
    E(f"""
{label}:
s_mov_b32 s{sCNT}, {SPIN_MAX}
{label}_loop:
s_sleep 1
{load}
s_waitcnt vmcnt(0)
v_cmp_{cmp}_u32 vcc, {want}, v{vPOLL}
s_sub_u32 s{sCNT}, s{sCNT}, 1
s_cmp_eq_u32 s{sCNT}, 0
s_cbranch_scc1 {label}_ret
s_cbranch_vccnz {label}_loop
s_branch {label}_ret
""")
spin("L_spinh", f"s_lshl_b32 s{sT0}, s{sTC}, 4\nv_mov_b32 v{vT0}, s{sT0}\nglobal_load_dword v{vPOLL}, v{vT0}, {DBGP} sc1", 16, "gt")
spin("L_spin1", VPOLL, 3, "gt")
E("L_redo:\ns_waitcnt vmcnt(0)")
Q.ins += gloads(0, 2*F0, vHS)
E("s_branch L_redo_ret")
MISC = [c['lo'] for c in chunks if c['name'] == 'V_15'][0]
fK, fS, fP, fA, fV, fR, fM = 44, 76, 108, 116, 117, 121, 102
E(f"""
L_exact:
s_waitcnt vmcnt(0) lgkmcnt(0)
s_nop 15
s_mov_b32 s{sSV0}, m0
v_and_b32 v{fA}, 15, v0
v_lshlrev_b32 v{fA}, 9, v{fA}
v_and_b32 v{fM}, 48, v0
v_add_u32 v{fA}, v{fA}, v{fM}
s_lshl_b32 s{sSV1}, s{sW}, 7
s_add_u32 s{sSV2}, s{sWB}, {MISC}
""")
for i in range(4):
    E(f"v_subrev_u32 v{fV+i}, s{sSV1}, v{vVD+i}\nv_add_u32 v{fR+i}, s{sSV2}, v{vTR+i}")
E(f"v_mov_b32 v{fM}, 0xff800000\nv_mov_b32 v{fM+1}, 0xff800000\ns_mov_b32 s{sSV1}, 0")
def ktile(kt, cinit):
    for ks in range(8):
        E(f"buffer_load_dwordx4 {v(fK+4*ks,4)}, v{fA}, {srd(sKK)}, s{sSV1} offen offset:{ks*64}")
    E(f"s_add_u32 s{sSV1}, s{sSV1}, 8192\ns_waitcnt vmcnt(0)")
    for ks in range(8):
        for tg in range(2):
            d = v(fS + tg*8 + kt*4, 4)
            E(mfma(d, v(fK+4*ks, 4), a(qf(ks, tg), 4), (cinit(tg) if ks == 0 else d)))
    E("s_nop 15")
E("L_exact_p1:")
ktile(0, lambda tg: "0")
for tg in range(2):
    b = fS + tg*8
    E(f"v_max3_f32 v{fM+tg}, v{fM+tg}, v{b}, v{b+1}\nv_max3_f32 v{fM+tg}, v{fM+tg}, v{b+2}, v{b+3}")
E(f"s_cmp_lt_u32 s{sSV1}, 262144\ns_cbranch_scc1 L_exact_p1")
for tg in range(2):
    for t_ in allred(fM+tg, fM+2, "v_max_f32"): E(t_)
    for r in range(4): E(f"v_sub_f32 v{vC+4*tg+r}, 0, v{fM+tg}")
for r in range(128): E(f"v_mov_b32 v{vO+r}, 0")
E(f"v_mov_b32 v{vLS}, 0\nv_mov_b32 v{vLS+1}, 0\ns_mov_b32 s{sSV1}, 0\ns_add_u32 m0, s{sWB}, {MISC}\ns_nop 3")
E("L_exact_p2:")
E(f"s_mov_b32 s{sSV2}, s{sSV1}")
ktile(0, lambda tg: v(vC+4*tg, 4))
ktile(1, lambda tg: v(vC+4*tg, 4))
for r in range(16): E(f"v_exp_f32 v{fS+r}, v{fS+r}")
for r in range(16): E(f"v_add_f32 v{vLS + r//8}, v{vLS + r//8}, v{fS+r}")
for r in range(8): E(f"v_cvt_pk_bf16_f32 v{fP+r}, v{fS+2*r}, v{fS+2*r+1}")
for cb in range(4):
    for rb in range(4):
        E(f"buffer_load_dwordx4 v{fV+rb}, {srd(sVV)}, s{sSV2} offen offset:{rb*1024} lds")
    E(f"s_add_u32 s{sSV2}, s{sSV2}, 128\ns_waitcnt vmcnt(0)")
    for u in range(4):
        E(f"ds_read_b64_tr_b16 {v(fK+4*u,2)}, v{fR+u}\nds_read_b64_tr_b16 {v(fK+4*u+2,2)}, v{fR+u} offset:2048")
    E("s_waitcnt lgkmcnt(0)")
    for u in range(4):
        for tg in range(2):
            d = v(Oreg(cb*4+u, tg), 4)
            E(mfma(d, v(fK+4*u, 4), v(fP+4*tg, 4), d))
    E("s_nop 7")
E(f"s_cmp_lt_u32 s{sSV1}, 262144\ns_cbranch_scc1 L_exact_p2")
for tg in range(2):
    for t_ in allred(vLS+tg, fM+2, "v_add_f32"): E(t_)
    E(f"v_rcp_f32 v{vRC+tg}, v{vLS+tg}")
E("s_nop 15")
for ks in range(8):
    for t_ in ocvt(ks): E(t_)
E(f"s_mov_b32 m0, s{sSV0}\ns_nop 15\ns_branch L_exact_ret")
sub_ins, log2, stats2 = resolve(Q.ins)

def sizes_of(ins):
    import subprocess, tempfile, re as re_
    body = [i_ for i_ in ins if i_.cls not in ('label', 'dir')]
    txt_ = '.amdgcn_target "amdgcn-amd-amdhsa--gfx950"\n.text\nL_any:\n' + ''.join('    ' + (re_.sub(r'L_\w+', 'L_any', i_.text) if i_.cls == 'branch' else i_.text) + '\n' for i_ in body)
    d_ = tempfile.mkdtemp()
    open(d_ + '/a.s', 'w').write(txt_)
    subprocess.run(['clang', '-x', 'assembler', '-target', 'amdgcn-amd-amdhsa', '-mcpu=gfx950', '-c', d_ + '/a.s', '-o', d_ + '/a.o'], check=True)
    out_ = subprocess.run(['llvm-objdump', '-d', '--mcpu=gfx950', d_ + '/a.o'], capture_output=True, text=True).stdout
    sz = [4*len(m_.group(1).split()) for m_ in re_.finditer(r'// [0-9A-F]+: ((?:[0-9A-F]{8} ?)+)', out_)]
    assert len(sz) == len(body), (len(sz), len(body))
    return {id(i_): s_ for i_, s_ in zip(body, sz)}
if OPT['PADS']:
    sz = sizes_of(main_ins)
    k0 = [k_ for k_, i_ in enumerate(main_ins) if i_.text == 'L_main:'][0]
    out_ = main_ins[:k0+1]; off = 0; npg = 0
    for i_ in main_ins[k0+1:]:
        if i_.cls not in ('label', 'dir'):
            lo = (npg + 1)*4096
            if npg < OPT['NPG'] and off >= lo and (i_.cls == 'mfma' or off + sz[id(i_)] > lo + 56):
                assert off < lo + 64
                out_.append(I(f"L_pg{npg}:")); out_.append(I(f"s_cbranch_execz L_pgn{npg}")); off += 4; npg += 1
            off += sz[id(i_)]
        out_.append(i_)
    for i_ in out_:
        if i_.text.startswith('s_cbranch_execz L_pgn'):
            k_ = int(i_.text.split('L_pgn')[1]) + 4
            i_.text = f"s_cbranch_execz L_pg{k_}" if k_ < npg else "s_cbranch_execz L_main"
    main_ins = out_
    print("code pages", npg, "bytes after L_main", off, file=sys.stderr)
hdr = open(os.path.join(os.path.dirname(os.path.abspath(__file__)), 'header.txt')).read()
txt = hdr + f"""; @launch grid=(256,1,1) block=(256,1,1) lds={LDS_BYTES}
.amdgcn_target "amdgcn-amd-amdhsa--gfx950"
.text
.globl {NAME}_kernel
.p2align 8
.type {NAME}_kernel,@function
{NAME}_kernel:
""" + render(main_ins) + render(sub_ins) + f"""L_pad:
    s_endpgm
.if (L_pad - {"L_main" if OPT["PADS"] else "L_pc"}) < {CODE_LINES*128}
.fill (({CODE_LINES*128} - (L_pad - {"L_main" if OPT["PADS"] else "L_pc"})) / 4) + 16, 4, 0xbf810000
.endif
.section .rodata,"a"
.p2align 6
.amdhsa_kernel {NAME}_kernel
  .amdhsa_next_free_vgpr 512
  .amdhsa_next_free_sgpr 102
  .amdhsa_accum_offset 256
  .amdhsa_group_segment_fixed_size 0
  .amdhsa_kernarg_size 88
  .amdhsa_user_sgpr_count 2
  .amdhsa_user_sgpr_kernarg_segment_ptr 1
  .amdhsa_system_sgpr_workgroup_id_x 1
.end_amdhsa_kernel
"""
if OPT['STAMP']: txt += '; STAMPS ' + ' '.join(stamp_names) + '\n'
open(sys.argv[1], 'w').write(txt)
```

```python
import sys, os, math, struct
from asmlib import *

NAME = "recurrent_scan__sliding_block_cached__dense_activation_relu__prompt"
OPT = dict(D=8, NA=12, HX=4, BAR=2, STAMP=0, PST=0, DUMP='', SIGG=60, FORCEFB=0, LOG=0,
           SST='sc1', HLD='sc1', HST='sc1', GLD='sc1', NOSST=0, NOHLD=0, NOHST=0,
           PX='', PW1='', PWQ='', PKV='', PWO='', PW2='', PF=1, PPF='', OST='', WSOFF=0, HSTEP=7, XREV=0, NPRO=4, WAITAT='', WAITT=0, WAITWG=-1, PADS=1, HSIG=150, HPF=0, PF0=0, PF1=14, CHAIN=1, WB=0, WBD=60, BIG=1, DSTART=0, W2ROT=1, NOPF2=2, HEND=40, XPF=1, L0N=1, X1=28, BARK=36, BARP=2, BARA=2, BAR4=2, SPAN=30, SPAN2=20, NV1=100, PKR=0, PCH=0, TLB=1, TLBP='G2_13', XG=0, STLB=0, ST0=4, STS=40, G6P='66666666666666', WOM=0, W2N=7, NPG=10, CPF='', NOG=0, NOFLAG=0, W2G=-15, W2S=8, F0=3, F1=5, L0=0, W2PRE=6, H2A=1, H2B=100, SA=48, PA=-38, CA=70, LA=140, SC=30, PB=175, N2=15, G1N=10, XFIRST=4, XSEC=0, WQE=2, OEARLY=2, H2SPAN=60, PFG=170, WQP=2, FINE=0, RT=0, SIMPLE=0, SSP=0)
for a_ in sys.argv[2:]:
    k_, v_ = a_.split('=')
    OPT[k_] = v_.replace('+', ' ') if isinstance(OPT[k_], str) else int(v_)
D = OPT['D']; NA = OPT['NA']

RING_SLOTS = 10
SLOT = 16384
LDS_BYTES = 163840
WS_S = 0
WS_H = 0x1C00000
WS_F = 0x2300000
WS_DBG = 0x2400000
WS_SIZE = 0x8000000 if (OPT['DUMP'] or OPT['STAMP']) else 0x2400000
OOB = 0x7f000000
CSCALE = math.log2(math.e) / 16.0
def f2u(x): return struct.unpack('<I', struct.pack('<f', x))[0]
def hx(x): return f"0x{x & 0xffffffff:x}"

sX, sW1, sWQ, sKK, sVV, sWO, sW2, sWS, sOUT = 28, 32, 36, 40, 44, 48, 52, 56, 60
def srd(b): return f"s[{b}:{b+3}]"
sW, sHD, sT, sWB, sSO = 64, 65, 66, 67, 68
sT0, sT1, sT2, sT3 = 69, 70, 71, 3
sQT = 72
sHST, sHLD, sSST, sSG, sFLG, sFLP, sCNT, sSO2, sTL, sROT, sSTEP, sPC = 86, 87, 88, 89, 90, 91, 92, 93, 94, 95, 96, 97
sTC, sCOOB, sHPF, sW2I, sKVI, sCC = 19, 20, 21, 24, 25, 2
sW1T = 12
sM1, sM2, sM3, sMD = 4, 6, 8, 10
sSV0, sSV1, sSV2 = 12, 13, 14
sSTMP = 26
DBGP = "s[22:23]"
vL16, vHS, vT0, vT1, vT2, vT3, vT4 = 1, 2, 3, 4, 5, 6, 7
vTR = 8
vRA = 20
vPF = 26
vZ, vONE, vPOLL, vSTAMP = 28, 29, 30, 31
vWQ, vKD, vVD, vWOD, vW2D = 32, 36, 40, 32, 36
vXN = 44
vR = 156
vW1D = vR + 64
vXD = vR + 68
vO = 128
vS = 44
vP = 76
vC = 92
vLS = 100
vM = 106
vA4 = 44
vRC = 126
aF, aST, aQ, aH = 0, 48, 64, 128

def v(i, n=1): return f"v{i}" if n == 1 else f"v[{i}:{i+n-1}]"
def a(i, n=1): return f"a{i}" if n == 1 else f"a[{i}:{i+n-1}]"
def mfma(d, A, B, C): return f"v_mfma_f32_16x16x32_bf16 {d}, {A}, {B}, {C}"
def I(t, tag=None): return Ins(t, tag)
lg = lambda x: int(math.log2(x))

P = Prog()
E = P.emit

nstamp = [0]
stamp_names = []
def stamp_ins(name=''):
    if OPT['WAITAT'] and name == OPT['WAITAT']:
        return [I(t_) for t_ in ((f"s_cmp_lg_u32 s0, {OPT['WAITWG']}", "s_cbranch_scc1 L_end") if OPT['WAITWG'] >= 0 else ()) + ("L_dw:", f"s_memrealtime s[{sSTMP}:{sSTMP+1}]", "s_waitcnt lgkmcnt(0)", f"s_sub_u32 s{sSTMP}, s{sSTMP}, s100",
                                 f"s_cmp_lt_u32 s{sSTMP}, {OPT['WAITT']}", "s_cbranch_scc1 L_dw")]
    if not OPT['STAMP']: return []
    if OPT['STAMP'] == 3 and name not in ('end', 'G4', 'wb0', 'wb1', 'G6', 'st_done', 'chk0', 'chk1', 'chk2', 'sigA', 'sigB', 'g6_done', 'g_done', 'pre_c2', 'pre_c1', 'pre_c0'): return []
    if OPT['STAMP'] == 2 and name not in ('end', 'G4', 'P0', 'G2_0', 'g6_done'): return []
    n = nstamp[0]; nstamp[0] += 1; stamp_names.append(name)
    return [I(f"{'s_memrealtime' if OPT['RT'] else 's_memtime'} s[{sSTMP}:{sSTMP+1}]"), I("s_waitcnt lgkmcnt(0)"), I(f"v_writelane_b32 v{vSTAMP}, s{sSTMP}, {n}")]
def STAMP(name=''):
    P.ins += stamp_ins(name)
def PST(name):
    if OPT['PST']: STAMP(name)

frags = []
chunks = []
def add_chunk(name, lo, size, dma, private=False):
    chunks.append(dict(name=name, lo=lo, hi=lo+size, dma=dma, private=private, first=None, last=None)); return len(chunks)-1
def add_frag(kind, rs, rb, addr, mf, ch):
    frags.append(dict(kind=kind, rb=rb, rs=rs, addr=addr, mf=mf, chunk=ch))
    c = chunks[ch]
    if c['first'] is None: c['first'] = len(frags)-1
    c['last'] = len(frags)-1
def frag_reads(f):
    fr = frags[f]; A = aF + 4*(f % NA)
    def rd(op, dst, addr):
        win = addr >> 16
        return I(f"{op} {dst}, v{fr['rb'] + win*fr['rs']} offset:{addr & 0xffff}", tag=('f', f))
    if fr['kind'] == 'tr':
        return [rd("ds_read_b64_tr_b16", a(A, 2), fr['addr']), rd("ds_read_b64_tr_b16", a(A+2, 2), fr['addr'] + 2048)]
    return [rd("ds_read_b128", a(A, 4), fr['addr'])]
POL = {sW1: 'PW1', sWQ: 'PWQ', sKK: 'PKV', sVV: 'PKV', sWO: 'PWO', sW2: 'PW2'}
ring_pos = [7]
def ring_round(name, srd_b, vbase, so_text, private=False):
    slot = ring_pos[0] % RING_SLOTS; ring_pos[0] += 1
    lo = slot*SLOT
    tag = ('c', len(chunks))
    dma = [I(f"s_add_u32 m0, s{sWB}, {lo}")]
    if so_text.startswith('s') or so_text == '0': so = so_text
    elif so_text.startswith('+'):
        dma.append(I(f"s_add_u32 s{sSO}, {so_text[1:]}")); so = f"s{sSO}"
    else:
        dma.append(I(f"s_mov_b32 s{sSO}, {so_text}")); so = f"s{sSO}"
    for rb in range(4):
        dma.append(I(f"buffer_load_dwordx4 v{vbase+rb}, {srd(srd_b)}, {so} offen offset:{rb*1024} {OPT[POL[srd_b]]} lds", tag=tag))
    return add_chunk(name, lo, SLOT, dma, private)

phase = {}
def xn(ks, tg): return vXN + (ks*2 + tg)*4
def accp(pp, kq, tg, par): return vR + (pp % 2)*32 + ((kq*2 + tg)*2 + par)*4
pend_ = []
for pp in range(6):
    phase[f'P{pp}'] = len(frags)
    for ks in range(14):
        qi = 14*pp + ks
        if qi % 4 == 0:
            r_ = qi // 4
            blk_, rp = r_ // 7, r_ % 7
            R_ = 32*(8192 if blk_ < 2 else 3584); sb = sW1T + (0 if blk_ < 2 else 2); cb_ = 256 if blk_ == 1 else 0
            so_ = f"+s{sb+1}, {cb_}" if rp == 3 else f"+s{sb}, {(4*rp*R_ if rp < 3 else (4*rp-14)*R_ + 128) + cb_}"
            ch = ring_round(f"wq_{r_}", sWQ, vWQ, so_) if r_ < 14 else ring_round(f"w1_{r_-14}", sW1, vW1D, so_)
        pend_.append((ks, qi, ch))
        if OPT['PCH'] and ks % 2 == 0: continue
        for u2 in range(2):
            for u in (2*u2, 2*u2+1):
                for ks_, qi_, ch_ in pend_:
                    mf = (lambda A, pp=pp, ks=ks_, u=u: [mfma(v(accp(pp, u >> 1, tg, u & 1), 4), A, v(xn(ks, tg), 4), "0" if ks == 0 else v(accp(pp, u >> 1, tg, u & 1), 4)) for tg in range(2)])
                    add_frag('tr', 4, vTR + u, chunks[ch_]['lo'] + (qi_ % 4)*4096, mf, ch_)
        pend_ = []
def qf(kq, tg): return aQ + (kq*2 + tg)*4
def Sreg(st, tg, kt): return vS + (st % 2)*16 + tg*8 + kt*4
def Preg(st, tg): return vP + (st % 2)*8 + tg*4
def Oreg(d, tg): return vO + (((d >> 1)*2 + tg)*2 + (d & 1))*4
def G2(st):
    phase[f'G2_{st}'] = len(frags)
    ch = ring_round(f"K_{st}", sKK, vKD, str(st*16384))
    order = [(kt, ks) for kt in range(2) for ks in range(8)]
    for kt, ks in order:
        def mf(A, kt=kt, ks=ks):
            r = []
            for tg in range(2):
                c = v(Sreg(st, tg, kt), 4)
                if ks == 0: c = "0" if st < 1 else v(vC + 4*tg, 4)
                r.append(mfma(v(Sreg(st, tg, kt), 4), A, a(qf(ks, tg), 4), c))
            return r
        add_frag('b128', 2, vRA + (ks & 1), chunks[ch]['lo'] + (ks >> 1)*4096 + kt*2048, mf, ch)
def G3(st):
    phase[f'G3_{st}'] = len(frags)
    ch = ring_round(f"V_{st}", sVV, vVD, str(st*16384))
    for d in range(16):
        mf = (lambda A, d=d: [mfma(v(Oreg(d, tg), 4), A, v(Preg(st, tg), 4), "0" if st == 0 else v(Oreg(d, tg), 4)) for tg in range(2)])
        add_frag('tr', 4, vTR + (d & 3), chunks[ch]['lo'] + (d >> 2)*4096, mf, ch)
G2(0)
for st in range(15):
    G2(st + 1); G3(st)
G3(15)
phase['G4'] = len(frags)
def acc4(p, u, tg): return vA4 + (((u >> 1)*2 + tg)*2 + (u & 1))*4
def Opk(ks, tg): return vO + (ks*2 + tg)*8
def hole(i): return vO + 8*i + 4
def hreg(kk, t4):
    i = kk*4 + t4
    if i < 32: return a(aH + 4*i, 4)
    if i < 48: return a(aQ + 4*(i-32), 4)
    return v(hole(i-48), 4)
def facc(u, t4):
    i = u*4 + t4
    return vA4 + 32 + 4*i if i < 8 else hole(i)
vTP = 108
G6P = OPT['G6P']
assert len(G6P) == 14
kk = 0
for p in range(7):
    phase[f'G4p{p}'] = len(frags)
    chs = [ring_round(f"wo_{p}_{h_}", sWO, vWOD, f"s{sQT+p}" if h_ == 0 else f"+s{sQT+p}, {4*32*896}") for h_ in range(2)]
    for u in range(4):
        for ks in range(8):
            ch = chs[ks // 4]
            mf = (lambda A, p=p, ks=ks, u=u: [mfma(v(acc4(p, u, tg), 4), A, v(Opk(ks, tg), 4), "0" if ks == 0 else v(acc4(p, u, tg), 4)) for tg in range(2)])
            add_frag('tr', 4, vTR + u, chunks[ch]['lo'] + (ks % 4)*4096, mf, ch)
    if p == 6: phase['G6'] = len(frags); NPOST = 14 - kk
    while kk < 14 and int(G6P[kk]) == p:
        phase[f'G6_{kk}'] = len(frags)
        ch = ring_round(f"w2_{kk}", sW2, vW2D, str(kk*32*896), private=True)
        for u in range(4):
            mf = (lambda A, kk=kk, u=u: [mfma(v(facc(u, t4), 4), A, hreg(kk, t4), "0" if kk == 0 else v(facc(u, t4), 4)) for t4 in range(4)])
            add_frag('tr', 4, vTP + u, chunks[ch]['lo'], mf, ch)
        kk += 1
assert kk == 14
NF = len(frags)
phase['END'] = NF

MF = [fr['mf'](a(aF + 4*(f % NA), 4)) for f, fr in enumerate(frags)]
if OPT['CHAIN']:
    for f0 in range(0, NF, 4):
        nm_ = chunks[frags[f0]['chunk']]['name']
        if nm_.startswith('K_') or nm_.startswith('wo_') or (OPT['PCH'] and nm_[:2] in ('wq', 'w1')):
            fl = [MF[f0+k_][tg] for tg in range(2) for k_ in range(4)]
            for k_ in range(4): MF[f0+k_] = fl[2*k_:2*k_+2]
G0 = [0]
for f in range(NF): G0.append(G0[-1] + len(MF[f]))
NG = G0[-1]
def gap(f): return G0[max(0, min(f, NF))]
pre = [[] for _ in range(NG)]
rds = [[] for _ in range(NG)]
ext = [[] for _ in range(NG)]
blk = {}
for g in range(NF):
    if g + D < NF:
        r = frag_reads(g + D)
        n = len(MF[g])
        rds[G0[g]].append(r[0])
        if len(r) > 1: rds[G0[g] + n//2].append(r[1])
def cost(i):
    if i.cls in ('ds',): return 8
    if i.cls == 'vmem': return 24 if 'store' in i.op and 'x4' in i.op else 8
    if i.cls in ('trans', 'perm'): return 8
    if i.cls == 'label': return 0
    return 4
def gtime(items):
    t = 4
    for i in items:
        if i.cls in VALU_LIKE: t = max(t, 8)
        t += cost(i)
    return t
def fits(gp, i): return gtime(pre[gp] + rds[gp] + ext[gp] + [i]) <= 16
def place(seq, g0, g1=None):
    seq = [I(s) if isinstance(s, str) else s for s in seq]
    g1 = NG if g1 is None else min(g1, NG)
    gp = g0; n = len(seq)
    for k, ins in enumerate(seq):
        bound = max(min(g0 + ((k + 1) * (g1 - g0)) // n - 1, g1 - 1), gp)
        best = None
        for q in range(gp, bound + 1):
            if fits(q, ins): best = q; break
        if best is None:
            best = min(range(gp, bound + 1), key=lambda q: (gtime(pre[q] + rds[q] + ext[q] + [ins]), q))
        ext[best].append(ins)
        gp = best
    return gp
def spread(seq, g0, g1):
    n = len(seq); cur = g0
    for k, ins in enumerate(seq):
        lo = max(g0 + (k*(g1-g0))//n, cur); hi = max(g0 + ((k+1)*(g1-g0))//n, lo+1)
        cur = place([ins], lo, hi)
    return cur

shared = [c for c in range(len(chunks)) if not chunks[c]['private']]
def is_bar(k_):
    if k_ == 0: return True
    if k_ < 21: return (k_ - 1) % OPT['BARP'] == 0
    if k_ < 53: return (k_ - 21) % OPT['BARA'] == 0
    return (k_ - 53) % OPT['BAR4'] == 0
bar_frags = [chunks[c]['first'] for k_, c in enumerate(shared) if is_bar(k_)]
bar_frags += [phase['G6'], phase['G6'] + D + 1]
bar_frags = sorted(set(bar_frags))
bar_gap = []
first_need = None
for bi, f0 in enumerate(bar_frags):
    f1 = bar_frags[bi+1] if bi + 1 < len(bar_frags) else NF
    need = [('c', c) for c in shared if f0 <= chunks[c]['first'] < f1]
    if f0 == 0: first_need = need; continue
    gp = gap(f0 - D); bar_gap.append(gp)
    if need: ext[gp-1].append(mk_wait_vm(need))
    pre[gp].append(I("s_barrier"))
for c in range(len(chunks)):
    if chunks[c]['private']:
        ext[gap(chunks[c]['first'] - D) - 1].append(mk_wait_vm([('c', c)]))
for g in range(4, NF, 4):
    ext[gap(g) - 1].append(mk_wait_lg([('f', f) for f in range(g, min(g+4, NF))]))
def earliest_gap(c):
    e = -1
    C = chunks[c]
    for c2 in range(c):
        B = chunks[c2]
        if B['hi'] <= C['lo'] or C['hi'] <= B['lo']: continue
        if B['private']: e = max(e, gap(B['last'] + 1))
        else: e = max(e, [gp for gp in bar_gap if gp >= gap(B['last'] + 1)][0] + 1)
    return e
pro_dma = []
cur = OPT['DSTART']
for c in range(len(chunks)):
    e = earliest_gap(c)
    if e < 0 and c < OPT['NPRO']:
        pro_dma.append(chunks[c]['dma']); continue
    g0 = max(e, cur)
    span = OPT['SPAN']
    if g0 > e + 8: span = OPT['SPAN2']
    if g0 >= gap(phase['G6'] - D): span = OPT['W2S']
    seq = list(chunks[c]['dma'])
    if chunks[c]['name'] == 'wo_0_0': seq = [I(f"v_accvgpr_read_b32 v{vWOD+i}, a{aST+i}") for i in range(4)] + seq; wo_first_gap = g0
    if chunks[c]['name'] == 'w2_0': seq = [I(f"v_accvgpr_read_b32 v{vW2D+i}, a{aST+4+i}") for i in range(4)] + seq
    cur = spread(seq, g0, g0 + span)
    need_gap = gap(chunks[c]['first'] - D)
    if not chunks[c]['private']: need_gap = max(gp for gp in bar_gap if gp <= need_gap)
    if OPT['LOG']: print(chunks[c]['name'], g0, cur, need_gap, 'lead', need_gap - cur, file=sys.stderr)
    assert cur < need_gap - 1, (chunks[c]['name'], cur)

seq = []
for p in range(7):
    seq += [f"s_add_u32 s{sT2}, s{sROT}, {p}", f"s_sub_u32 s{sT3}, s{sT2}, 7", f"s_min_u32 s{sT2}, s{sT2}, s{sT3}",
            f"s_lshl_b32 s{sQT+p}, s{sT2}, 7", f"s_lshl_b32 s{sT2}, s{sT2}, 16", f"s_add_u32 s{sQT+7+p}, s{sSST}, s{sT2}",
            f"s_add_u32 s{sSST}, s{sSST}, s{sSTEP}"]
spread(seq, 6, 100)
assert gap(phase['G3_8']) < wo_first_gap
assert OPT['BAR'] == 2
place([f"v_add_u32 v{vTP+i}, s{sWB}, v{vTR+i}" for i in range(12)], gap(phase['G4'] + 2), gap(phase['G4'] + 22))

def hconv(pp):
    s = []
    for kq in range(2):
        for tg in range(2):
            b = accp(pp, kq, tg, 0)
            if not OPT['PKR']:
                for r in range(8): s.append(f"v_max_f32 v{b+r}, 0, v{b+r}")
            for r in range(4): s.append(f"v_cvt_pk_bf16_f32 v{b+r}, v{b+2*r}, v{b+2*r+1}")
            if OPT['PKR']:
                for r in range(4): s.append(f"v_pk_max_i16 v{b+r}, v{b+r}, 0")
            if not OPT['NOHST']:
                s.append(I(f"buffer_store_dwordx4 {v(b,4)}, v{vHS}, {srd(sWS)}, s{sHST} offen offset:{kq*2048 + tg*1024} {OPT['HST']}", tag='hst'))
    if pp == 4: s.append(f"s_add_u32 s{sHST}, s{sHST}, 4096")
    return s
place(hconv(4), gap(phase['P5']) + 4, gap(phase['G2_0']) - 4)
def qconv(pp):
    s = []
    for kq in range(2):
        for tg in range(2):
            b = accp(pp, kq, tg, 0)
            s += [f"v_cvt_pk_bf16_f32 v{b+r}, v{b+2*r}, v{b+2*r+1}" for r in range(4)]
            s += [f"v_permlane32_swap_b32 v{b}, v{b+2}", f"v_permlane32_swap_b32 v{b+1}, v{b+3}",
                  f"v_permlane16_swap_b32 v{b}, v{b+2}", f"v_permlane16_swap_b32 v{b+1}, v{b+3}"]
            s += [f"v_accvgpr_write_b32 a{qf(2*pp+kq, tg)+r}, v{b+r}" for r in range(4)]
    return s
for pp in range(4):
    g0 = gap(phase[f'P{pp+1}'])
    place(qconv(pp), g0 + 4, g0 + 2*56 - 4)

def allred(r, t, op):
    return [f"v_mov_b32 v{t}, v{r}", f"v_permlane32_swap_b32 v{r}, v{t}", f"{op} v{r}, v{r}, v{t}",
            f"v_mov_b32 v{t}, v{r}", f"v_permlane16_swap_b32 v{r}, v{t}", f"{op} v{r}, v{r}, v{t}"]
def interleave(*seqs):
    out = []
    for k in range(max(len(s) for s in seqs)):
        for s in seqs:
            if k < len(s): out.append(s[k])
    return out
def svals(st): return [Sreg(st, tg, kt) + r for tg in range(2) for kt in range(2) for r in range(4)]
g0 = gap(phase['G2_0'])
seqs = []
for tg in range(2):
    b = Sreg(0, tg, 0); m = vM + 2*tg; t = m + 1
    s = [f"v_max3_f32 v{m}, v{b}, v{b+1}, v{b+2}", f"v_max_f32 v{m}, v{m}, v{b+3}"] + allred(m, t, "v_max_f32")
    s += [f"v_sub_f32 v{vC+4*tg+r}, 0, v{m}" for r in range(4)]
    seqs.append(s)
seq = interleave(*seqs) + [f"v_mov_b32 v{vLS}, 0", f"v_mov_b32 v{vLS+1}, 0"]
gm = place(seq, g0 + 19, g0 + 31)
def sm_seq(st, sub):
    s = []
    vals = svals(st)
    for k_, r in enumerate(vals):
        tg = k_ // 8
        if sub: s.append(f"v_add_f32 v{r}, v{r}, v{vC+4*tg}")
        s.append(f"v_exp_f32 v{r}, v{r}")
        if k_ % 2 == 1 and k_ >= 3:
            kk = k_ - 3
            s.append(f"v_cvt_pk_bf16_f32 v{Preg(st, kk//8) + (kk % 8)//2}, v{vals[kk]}, v{vals[kk+1]}")
    s.append(f"v_cvt_pk_bf16_f32 v{Preg(st, 1) + 3}, v{vals[14]}, v{vals[15]}")
    return s
def add_seq(st):
    vals = svals(st)
    return interleave([f"v_add_f32 v{vLS}, v{vLS}, v{r}" for r in vals[:8]], [f"v_add_f32 v{vLS+1}, v{vLS+1}, v{r}" for r in vals[8:]])
for st in range(16):
    g3 = gap(phase[f'G3_{st}'])
    if st == 0:
        ge = place(sm_seq(st, True), gap(phase['G2_1']) + 3, g3 - 1)
    elif st < 15:
        gs = gap(phase[f'G2_{st+1}'] - D)
        ge = place(sm_seq(st, False), gs, g3 - 2)
    else:
        ge = place(sm_seq(st, False), gap(phase['G3_14']) + 4, g3 - 2)
    lim = gap(phase[f'G2_{st+2}']) - 2 if st + 2 < 16 else g3 + 14
    ga = place(add_seq(st), ge, lim)
seqs = []
for tg in range(2):
    l = vLS + tg; t = vM + tg
    seqs.append(allred(l, t, "v_add_f32") + [f"v_rcp_f32 v{vRC+tg}, v{l}"])
seq = interleave(*seqs) + [f"v_add_f32 v{vM}, v{vLS}, v{vLS+1}", f"s_mov_b32 s{sT0}, {hx(f2u(2.0**24 if not OPT['FORCEFB'] else 0.5))}", f"v_cmp_ngt_f32 vcc, s{sT0}, v{vM}"]
place(seq, ga, gap(phase['G4']) - 1)

hc = hconv(5)
n3 = 3*len(hc)//4
place(hc[:n3], gap(phase['G2_0']) + 3, gap(phase['G2_0']) + 19)
gend = place(hc[n3:], gap(phase['G3_0']), gap(phase['G3_0']) + 16)
assert accp(5, 1, 1, 0) >= Oreg(10, 0)
hb = [gp for gp in bar_gap if gp > gend + OPT['HSIG']][0]
ext[hb-1].append(mk_wait_vm(['hst']))
sig = [I(f"s_cmp_lg_u32 s{sW}, 0"), I("s_cbranch_scc1 L_nosig"), I(f"s_lshl_b32 s{sT0}, s{sT}, 4"), I(f"v_mov_b32 v{vPOLL}, s{sT0}"),
       I("s_mov_b64 exec, 1"), I(f"global_atomic_add v{vPOLL}, v{vONE}, {DBGP} sc1"), I("s_mov_b64 exec, -1"), I("L_nosig:")]
sig[5].cls = 'misc'
ext[hb+1] += sig

def dump(regs_list):
    r = [I("s_nop 15"), I(f"s_lshl_b32 s{sT0}, s{sT}, 4"), I(f"s_add_u32 s{sT0}, s{sT0}, s{sHD}"),
         I(f"s_lshl_b32 s{sT0}, s{sT0}, 2"), I(f"s_add_u32 s{sT0}, s{sT0}, s{sW}"),
         I(f"s_mul_i32 s{sT0}, s{sT0}, {32*1024}"), I(f"s_add_u32 s{sT0}, s{sT0}, {hx(WS_DBG)}")]
    for reg in regs_list:
        r.append(I(f"buffer_store_dwordx4 {reg}, v{vL16}, {srd(sWS)}, s{sT0} offen"))
        r.append(I(f"s_add_u32 s{sT0}, s{sT0}, 1024"))
    r.append(I("s_nop 3"))
    return r
def ocvt(ks): return [f"v_cvt_pk_bf16_f32 v{Opk(ks, tg)+r}, v{Opk(ks, tg)+2*r}, v{Opk(ks, tg)+2*r+1}" for tg in range(2) for r in range(4)]
NEARLY = OPT['OEARLY']
g15 = gap(phase['G3_15'])
for ks in range(NEARLY): place(ocvt(ks), g15 + 4*ks + 8, gap(phase['G4']) - 1)
b = stamp_ins('attn_done') + [I("s_cbranch_vccnz L_exact")]
for ks in range(NEARLY, 8): b += [I(t_) for t_ in ocvt(ks)]
b.append(I("L_exact_ret:"))
if OPT['DUMP'] == 'o': b += dump([v(Opk(ks, tg), 4) for ks in range(8) for tg in range(2)])
if OPT['DUMP'] == 'q': b += dump([a(qf(ks, tg), 4) for ks in range(8) for tg in range(2)])
b += stamp_ins('G4')
blk[phase['G4']] = b

def sconv(p, u):
    s = []
    for tg in range(2):
        b = acc4(p, u, tg); d = acc4(p, u & ~1, tg) + 2*(u & 1)
        s += [f"v_mul_f32 v{b+r}, v{vRC + tg}, v{b+r}" for r in range(4)]
        s += [f"v_cvt_pk_bf16_f32 v{d}, v{b}, v{b+1}", f"v_cvt_pk_bf16_f32 v{d+1}, v{b+2}, v{b+3}"]
        if u & 1:
            if (u, tg) != (1, 0): s.append(f"s_add_u32 s{sQT+7+p}, s{sQT+7+p}, 16384")
            if not OPT['NOSST']: s.append(I(f"buffer_store_dwordx4 {v(acc4(p, u & ~1, tg),4)}, v{vL16}, {srd(sWS)}, s{sQT+7+p} offen {OPT['SST']}", tag=('sst', p)))
    return s
g4 = gap(phase['G4'])
for p in range(7):
    for u in range(4):
        g0 = gap(phase[f'G4p{p}']) + 16*(u+1)
        if u == 3 and p < 6: gl = place(sconv(p, u), g0 + 3, g0 + 28)
        else: gl = place(sconv(p, u), g0 + 3, g0 + (19 if (p, u) != (6, 3) else 10))
last_store_gap = gl
hs = OPT['HSTEP']
gp0 = gap(phase[f'G3_{hs-1}']) - 30
place([f"s_lshl_b32 s{sT0}, s{sTC}, 4", f"v_mov_b32 v{vPOLL}, s{sT0}", I(f"global_load_dword v{vPOLL}, v{vPOLL}, {DBGP} sc1", tag='pollh'),
       f"v_add_u32 v{vHS}, s{sCOOB}, v{vL16}"], gp0, gp0 + 24)
gp1 = gap(phase[f'G3_{hs}'])
ext[gp1] += [mk_wait_vm(['pollh']), I(f"v_cmp_gt_u32 vcc, 16, v{vPOLL}"), I("s_cbranch_vccnz L_spinh"), I("L_spinh_ret:")]
def hloads(k0, k1):
    s = []
    for kk in range(k0, k1, 2):
        for rl in range(2):
            s.append(f"s_add_u32 s{sT0}, s{sHLD}, {rl*56*2048 + kk*2048}")
            for k2 in range(2):
                for tg in range(2):
                    s.append(I(f"buffer_load_dwordx4 {hreg(kk+k2, rl*2+tg)}, v{vHS}, {srd(sWS)}, s{sT0} offen offset:{k2*2048 + tg*1024} {OPT['HLD']}", tag='hld'))
    return s
if not OPT['NOHLD']:
    spread(hloads(0, 8), gap(phase[f"G3_{hs+OPT['HPF']}"]) + 2, gap(phase['G3_15']) - OPT['HEND'])
    spread(hloads(8, 14), g4 + OPT['H2A'], g4 + OPT['H2B'])
g6 = gap(phase['G6'])
vFV = 120
def greg(rl, sl):
    i = sl*2 + rl
    if NPOST <= 10: i = (i + 16) % 32
    if i < 16: return v(Opk(0, 0) + 8*i, 4)
    return a(aH + (i - 16)*4, 4)
assert OPT['CA'] > 0 or (NPOST <= 10 and g6 + OPT['CA'] > gap(phase['G6_3'] + 4))
def gloads(s0, s1, va):
    s = []
    for sq in range(s0, s1, 2):
        for rl in range(2):
            s.append(I(f"s_add_u32 s{sT1}, s{sSG}, {rl*2*16384 + sq*1024}"))
            for sl in range(sq, sq+2):
                if not OPT['NOG']: s.append(I(f"buffer_load_dwordx4 {greg(rl, sl)}, v{va}, {srd(sWS)}, s{sT1} offen offset:{(sl-sq)*1024} {OPT['GLD']}", tag=('g', rl, sl)))
    return s
F0 = OPT['F0']
sPL = 32
sMISS = 18
place([f"v_mov_b32 v{vFV}, 1", f"v_mov_b32 v{vFV+1}, 3", f"v_and_b32 v{vFV+3}, 15, v0"], g4 + 100, g4 + 200)
def signal(k, n): return [mk_wait_vm([('sst', p) for p in range(n)]), I(f"buffer_store_byte v{vFV+k}, v{vZ}, {srd(sWS)}, s{sFLG} offen sc1", tag='flag')]
spoll = I(f"s_buffer_load_dwordx4 s[{sPL}:{sPL+3}], {srd(sWS)}, s{sFLP} glc"); spoll.cls = 'misc'
VPOLL = f"buffer_load_ubyte v{vPOLL}, v{vFV+3}, {srd(sWS)}, s{sFLP} offen sc1"
if OPT['WB']:
    def signal(k, n, gp):
        ext[gp - OPT['WBD']] += [mk_wait_vm([('sst', p) for p in range(n)]), I("buffer_wbl2 sc1", tag=('wb', k))] + stamp_ins(f'wb{k}')
        return [mk_wait_vm([('wb', k)]), I(f"buffer_store_byte v{vFV+k}, v{vZ}, {srd(sWS)}, s{sFLG} offen sc1", tag='flag')]
else:
    signal_ = signal
    def signal(k, n, gp): return signal_(k, n)
ga_ = gap(phase[f'G4p{F0-1}']) + 64 + OPT['SA']
ext[ga_] += signal(0, F0, ga_) + stamp_ins('sigA')
ext[g6 + OPT['PA']] += [spoll]
sg = g6 + OPT['SC']
ext[sg] += signal(1, 7, sg) + stamp_ins('st_done') + [I(f"s_cmp_ge_u32 s{sPC}, 14"), I("s_cbranch_scc1 " + ("L_fin" if OPT['STAMP'] == 3 else "L_end"))]
assert sg > bar_gap[-1] and sg > last_store_gap
ext[g6 + OPT['CA']] += stamp_ins('pre_c0') + [I(t_) for t_ in (
    "s_waitcnt lgkmcnt(0)", f"s_and_b64 s[{sPL}:{sPL+1}], s[{sPL}:{sPL+1}], s[{sPL+2}:{sPL+3}]", f"s_and_b32 s{sPL}, s{sPL}, s{sPL+1}",
    f"s_and_b32 s{sPL}, s{sPL}, 0x01010101", f"s_cmp_eq_u32 s{sPL}, 0x01010101", f"s_cselect_b32 s{sMISS}, 0, {hx(OOB)}",
    f"v_add_u32 v{vFV+2}, s{sMISS}, v{vHS}")] + stamp_ins('chk0')
spread(gloads(0, 2*F0, vFV+2), g6 + OPT['CA'] + 1, g6 + OPT['LA'])
ext[g6 + OPT['PB']] += [I(VPOLL, tag='poll')]

vXF = 68
vAD = 125
nch = len(chunks)
XK = [c_ for c_ in range(nch - 10, nch) if chunks[c_]['private'] and chunks[c_]['lo'] >= 4*SLOT][0]
XS = chunks[XK]['lo']
gx_ = max(gap(chunks[XK]['last'] + 1), cur + 1, g6 + OPT['XG'])
gx2 = place([f"v_accvgpr_read_b32 v{vAD}, a{aST+8}", f"s_add_u32 m0, s{sWB}, {XS}", f"s_movk_i32 s{sSV0}, {8*896 - 1024}", f"s_movk_i32 s{sSV1}, {8*896}",
       I(f"buffer_load_dwordx4 v{vAD}, {srd(sX)}, 0 offen lds", tag='xf'), I(f"buffer_load_dwordx4 v{vAD}, {srd(sX)}, s{sSV0} offen offset:1024 lds", tag='xf'),
       f"v_and_b32 v{vT3}, 15, v0", f"v_lshlrev_b32 v{vT3}, 7, v{vT3}", f"v_lshrrev_b32 v{vT4}, 4, v0", f"v_lshl_add_u32 v{vT3}, v{vT4}, 3, v{vT3}",
       f"s_add_u32 s{sSV2}, s{sWB}, {XS}", f"v_add_u32 v{vT3}, s{sSV2}, v{vT3}", f"v_lshrrev_b32 v{vT4}, 3, v0", f"v_lshl_add_u32 v{vT4}, v{vT4}, 4, v{vL16}", f"v_add_u32 v{vT4}, s{sSV2}, v{vT4}",
       f"v_and_b32 v{vPF}, 15, v0", f"v_lshl_add_u32 v{vPF}, v{vPF}, 4, v{vT3}"], gx_, gx_ + 30)
HX = OPT['HX']; NHG = 16 // HX; NT = 32 // HX
npf = [0]
def pf_addr(nlines, lines_per_row, pitch, k, dst, idx_sgpr, nshare):
    per = nlines // nshare
    s = [f"s_lshl_b32 s{sSO2}, s{sW}, 6", f"s_add_u32 s{sSO2}, s{sSO2}, {k*256}", f"v_add_u32 v{dst}, s{sSO2}, v0",
         f"v_min_u32 v{dst}, {per-1}, v{dst}", f"s_mul_i32 s{sSO2}, s{idx_sgpr}, {per}", f"v_add_u32 v{dst}, s{sSO2}, v{dst}"]
    if lines_per_row is None:
        s += [f"v_lshlrev_b32 v{dst}, 7, v{dst}"]
    else:
        sh = lg(lines_per_row)
        s += [f"v_and_b32 v{vPF}, {lines_per_row-1}, v{dst}", f"v_lshrrev_b32 v{dst}, {sh}, v{dst}",
              f"v_mul_u32_u24 v{dst}, {pitch}, v{dst}", f"v_lshl_add_u32 v{dst}, v{vPF}, 7, v{dst}"]
    return s
def pf_load(srd_b, dst):
    npf[0] += 1
    return I(f"buffer_load_dword a{aST + 10 + npf[0] % 6}, v{dst}, {srd(srd_b)}, 0 offen {OPT['PPF']}", tag='pf')
def pf_seq(srd_b, nlines, lines_per_row, pitch, idx, nshare):
    s = []
    for k in range((nlines // nshare + 255) // 256):
        s += pf_addr(nlines, lines_per_row, pitch, k, vPF+1, idx, nshare) + [pf_load(srd_b, vPF+1)]
    return s
vLQ = 26
def pf_pieces(srd_b, per, unit, idx, extra_base=None, pol='', rot=False):
    setup = [f"s_mul_i32 s{sSO2}, s{idx}, {per}", f"v_add_u32 v{vPF+1}, s{sSO2}, v{vLQ}", f"v_mul_u32_u24 v{vPF+1}, {unit}, v{vPF+1}"]
    if extra_base is not None: setup.append(f"v_add_u32 v{vPF+1}, s{extra_base}, v{vPF+1}")
    pcs = []
    for k in range((per + 63)//64):
        npf[0] += 1
        n_ = (per + 63)//64
        if rot and k == 0: so_ = [f"s_lshr_b32 s{sSO2}, s{sTC}, 1", f"s_sub_u32 s{sCNT}, s{sSO2}, {n_}", f"s_min_u32 s{sSO2}, s{sSO2}, s{sCNT}", f"s_mul_i32 s{sSO2}, s{sSO2}, {64*unit}"]
        elif rot: so_ = [f"s_add_u32 s{sSO2}, s{sSO2}, {64*unit}", f"s_sub_u32 s{sCNT}, s{sSO2}, {n_*64*unit}", f"s_min_u32 s{sSO2}, s{sSO2}, s{sCNT}"]
        else: so_ = [f"s_mov_b32 s{sSO2}, {k*64*unit}"]
        pcs.append(so_ + [I(f"buffer_load_dword a{aST + 9 + npf[0] % 7}, v{vPF+1}, {srd(srd_b)}, s{sSO2} offen {pol}", tag='pf')])
    return setup, pcs
def pf_run(streams, g0, g1):
    items = []
    for st_ in streams:
        su, pcs = st_
        for k, p_ in enumerate(pcs): items.append((su if k == 0 else []) + p_)
    n = len(items)
    for k, it_ in enumerate(items):
        lo = g0 + (k*(g1-g0))//n
        place(it_, lo, lo + 24)
if OPT['PF']:
    place([f"v_lshrrev_b32 v{vLQ}, 2, v0", f"s_lshl_b32 s{sSO2}, s{sW}, 4", f"v_add_u32 v{vLQ}, s{sSO2}, v{vLQ}"], 100, 130)
    if not OPT['BIG'] & 2 and not OPT['NOPF2'] & 4: pf_run([pf_pieces(sKK, 2048//(2*NT), 128, sKVI, pol=OPT['PPF']), pf_pieces(sVV, 2048//(2*NT), 128, sKVI, pol=OPT['PPF'])], OPT['PFG'], gap(phase['P4']))
    if not OPT['NOPF2'] & 1: pf_run([pf_pieces(sWO, 1792//16, 128, sT) if OPT['WOM'] else pf_pieces(sWO, 1792//NT, 128, sTL), (lambda z: (z[0], z[1][:OPT['W2N']]))(pf_pieces(sW2, 448, 896, sW2I, rot=OPT['W2ROT']))], gap(phase[f"G3_{OPT['PF0']}"]), gp1 if OPT['PF1'] == 0 else gap(phase[f"G3_{OPT['PF1']}"]))
    vPF += -20
    sSO2 = sT3
    if not OPT['NOPF2'] & 2: pf_run([pf_pieces(sWS, 256, 128, sCC, sHPF, 'sc1')], gp1 + 2, gap(phase[f"G3_{hs+OPT['HPF']}"]) - 20)
    vPF += 20
    sSO2 = 93

if OPT['STLB'] == 2:
    for k_, (b_, o_) in enumerate(((sKK, '0'), (sVV, '0'), (sW2, '0'), (sWO, '0'), (sWS, f's{sHST}'), (sWS, f's{sQT+7}'), (sOUT, '0'))):
        i_ = I(f"s_buffer_load_dword s1, {srd(b_)}, {o_}"); i_.cls = 'misc'; i_.dst = []
        place([i_], OPT['ST0'] + k_*OPT['STS'], OPT['ST0'] + k_*OPT['STS'] + 8)
if OPT['CPF'] and not OPT['STAMP']:
    gc = gap(phase[OPT['CPF']])
    place([f"s_lshr_b32 s{sT2}, s0, 3", f"s_lshl_b32 s{sT2}, s{sT2}, 10", f"s_add_u32 s{sT2}, s{sT2}, 0x8000", f"v_and_b32 v{vT2}, 7, v0", f"v_lshlrev_b32 v{vT2}, 7, v{vT2}",
           f"v_add_u32 v{vT2}, s{sT2}, v{vT2}", I(f"global_load_dword a{aST+9}, v{vT2}, s[26:27]", tag='pf')], gc, gc + 30)
if OPT['TLB']:
    gt = gap(phase[OPT['TLBP']])
    seq = []
    if OPT['TLB'] & 1: seq += [f"v_accvgpr_read_b32 v{vT1}, a{aST+8}", f"v_readfirstlane_b32 s{sT2}, v{vT1}", "s_nop 0", "s_nop 0", I(f"buffer_load_dword a{aST+9}, v{vZ}, {srd(sOUT)}, s{sT2} offen", tag='pf')]
    if OPT['TLB'] & 2: seq += [I(f"buffer_load_dword a{aST+9}, v{vZ}, {srd(sWS)}, s{sQT+7} offen sc1", tag='pf')]
    if OPT['TLB'] & 4: seq += [I(f"buffer_load_dword a{aST+9}, v{vZ}, {srd(sWS)}, s{sSG} offen sc1", tag='pf'), ]
    spread(seq, gt, gt + 40)
    if OPT['TLB'] & 8: place([I(f"buffer_load_dword a{aST+9}, v{vZ}, {srd(sWS)}, s{sHST} offen sc1", tag='pf')], gap(phase['P3']), gap(phase['P3']) + 20)
if OPT['FINE'] == 1:
    for p in range(1, 7): blk[phase[f'G4p{p}']] = stamp_ins(f'G4p{p}')
if OPT['FINE'] == 2:
    for nm in ['P1', 'P3', 'P5'] + [f'G2_{s_}' for s_ in range(1, 16) if s_ % 4] + ['G3_14', 'G3_15']:
        blk[phase[nm]] = stamp_ins(nm)
if OPT['STAMP'] or OPT['WAITAT']:
    for nm in ('P0', 'P2', 'P4', 'G2_0', 'G2_4', 'G2_8', 'G2_12', 'G6'):
        blk.setdefault(phase[nm], [])
        blk[phase[nm]] = stamp_ins(nm) + blk[phase[nm]]

E(f"""
s_cmp_ge_u32 s2, 256
s_cbranch_scc1 L_end
s_load_dwordx16 s[4:19], s[0:1], 0
s_load_dwordx4 s[20:23], s[0:1], 64
s_load_dwordx2 s[24:25], s[0:1], 80
""")
if OPT['STAMP'] or OPT['WAITAT']: E("s_memtime s[98:99]\ns_memrealtime s[100:101]")
E(f"""
v_lshrrev_b32 v{vT0}, 6, v0
v_and_b32 v0, 63, v0
s_and_b32 s{sT0}, s2, 7
v_readfirstlane_b32 s{sW}, v{vT0}
s_lshr_b32 s{sT1}, s2, 3
s_and_b32 s{sT2}, s{sT0}, {NHG-1}
s_lshl_b32 s{sT2}, s{sT2}, {lg(HX)}
s_and_b32 s{sHD}, s{sT1}, {HX-1}
s_add_u32 s{sHD}, s{sHD}, s{sT2}
s_lshr_b32 s{sT2}, s{sT0}, {lg(NHG)}
s_lshl_b32 s{sT2}, s{sT2}, {lg(NT)}
s_lshr_b32 s{sTL}, s{sT1}, {lg(HX)}
s_add_u32 s{sT}, s{sTL}, s{sT2}
s_lshl_b32 s{sWB}, s{sW}, 12
""")
CODE_LINES = 512
E(f"s_lshr_b32 s{sCNT}, s2, 3")
for t_ in pf_addr(CODE_LINES, None, 0, 0, vR+80, sCNT, 32): E(t_)
E(f"""
s_getpc_b64 s[26:27]
L_pc:
global_load_dword v{vR+90}, v{vR+80}, s[26:27]
""")
E(f"""
v_lshrrev_b32 v{vT3}, 3, v0
v_and_b32 v{vT4}, 7, v0
v_lshrrev_b32 v{vT1}, 1, v{vT3}
v_xor_b32 v{vT1}, v{vT1}, v{vT4}
v_lshlrev_b32 v{vT1}, 4, v{vT1}
v_xor_b32 v{vT2}, 64, v{vT1}
s_lshl_b32 s{sT1}, s{sT}, 2
s_add_u32 s{sT1}, s{sT1}, s{sW}
s_mul_i32 s{sT1}, s{sT1}, {32*896}
v_mul_u32_u24 v{vT0}, 896, v{vT3}
v_add_u32 v{vT0}, s{sT1}, v{vT0}
v_add_u32 v{vXD}, v{vT0}, v{vT1}
v_add_u32 v{vXD+1}, v{vT0}, v{vT2}
v_add_u32 v{vXD+2}, {2*6144}, v{vXD}
v_add_u32 v{vXD+3}, {3*6144}, v{vXD+1}
v_add_u32 v{vXD+1}, 6144, v{vXD+1}
s_mov_b32 m0, s{sWB}
s_mov_b32 s{sSO}, 0
v_min_u32 v{vR+82}, 13, v0
v_subrev_u32 v{vR+83}, 7, v{vR+82}
v_min_u32 v{vR+83}, v{vR+83}, v{vR+82}
v_sub_u32 v{vR+82}, v{vR+82}, v{vR+83}
v_lshlrev_b32 v{vR+82}, 11, v{vR+82}
v_lshl_add_u32 v{vR+82}, v{vR+83}, 7, v{vR+82}
s_mul_i32 s{sT2}, s{sHD}, 896
s_add_u32 s{sT2}, s{sT2}, s{sT1}
s_mov_b32 s{sX+2}, {2048*896}
s_mov_b32 s{sX+3}, 0x00020000
s_waitcnt lgkmcnt(0)
s_mov_b32 s{sX}, s4
s_mov_b32 s{sX+1}, s5
""")
PST('karg')
def mk_srd(b, plo, off_sgpr, size):
    if off_sgpr is None:
        E(f"s_mov_b32 s{b}, s{plo}\ns_mov_b32 s{b+1}, s{plo+1}")
    else:
        E(f"s_add_u32 s{b}, s{plo}, s{off_sgpr}\ns_addc_u32 s{b+1}, s{plo+1}, 0")
    E(f"s_mov_b32 s{b+2}, {size}\ns_mov_b32 s{b+3}, 0x00020000")
xdma = []
for tg in range(2):
    for q in range(7):
        if q or tg:
            xdma += [I(f"s_add_u32 m0, s{sWB}, {q*SLOT}"), I(f"s_movk_i32 s{sSO}, {q*128}")]
        for rb in (2*tg, 2*tg+1):
            xdma.append(I(f"buffer_load_dwordx4 v{vXD+rb}, {srd(sX)}, s{sSO} offen offset:{rb*1024} {OPT['PX']} lds", tag=('x', tg, q)))
def xissue(n):
    while n > 0 and xdma:
        i_ = xdma.pop(0); P.ins.append(i_)
        if i_.cls == 'vmem': n -= 1
if OPT['XPF']: E(f"buffer_load_dword a{aST+9}, v{vR+82}, {srd(sX)}, s{sT2} offen", tag='pf')
xissue(OPT['XFIRST'])
if OPT['STLB'] >= 3:
    lst = [("s[10:11]", 0), ("s[10:11]", 400*8192), ("s[16:17]", 0), ("s[24:25]", WS_F + 0x8000)]
    if OPT['STLB'] >= 4: lst += [("s[6:7]", 'kv'), ("s[8:9]", 'kv'), ("s[18:19]", 0), ("s[20:21]", 0), ("s[12:13]", 0), ("s[12:13]", 4000*896)]
    for p_, o_ in lst:
        if o_ == 'kv': E(f"s_lshl_b32 s{sCNT}, s{sHD}, 19")
        else: E(f"s_mov_b32 s{sCNT}, {hx(o_)}")
        i_ = I(f"s_load_dword s1, {p_}, s{sCNT}"); i_.dst = []; P.ins.append(i_)
E(f"s_lshl_b32 s{sT0}, s{sHD}, 9\ns_sub_u32 s{sT2}, {448*8192}, s{sT0}")
mk_srd(sWQ, 10, sT0, f"s{sT2}")
wqpf = [I(t_) if isinstance(t_, str) else t_ for t_ in pf_seq(sWQ, 448*OPT['WQP'], OPT['WQP'], 8192, sTL, NT)] if OPT['PF'] and OPT['WQP'] else []
if OPT['WQE'] == 1: P.ins += wqpf; wqpf = []
else: P.ins += wqpf[:-1]; wqpf = wqpf[-1:]
xissue(OPT['XSEC'])
PST('x_first')
mk_srd(sOUT, 20, None, 2048*896)
E(f"""
s_lshl_b32 s{sT0}, s{sW}, 7
v_lshlrev_b32 v{vKD}, 9, v{vT3}
v_add_u32 v{vVD}, s{sT0}, v{vKD}
v_add_u32 v{vKD}, v{vVD}, v{vT1}
v_add_u32 v{vKD+1}, v{vVD}, v{vT2}
v_add_u32 v{vKD+2}, {2*3072}, v{vKD}
v_add_u32 v{vKD+3}, {3*3072}, v{vKD+1}
v_add_u32 v{vKD+1}, 3072, v{vKD+1}
v_and_b32 v{vT0}, 6, v{vT3}
v_xor_b32 v{vT0}, v{vT0}, v{vT4}
v_lshlrev_b32 v{vT0}, 4, v{vT0}
v_add_u32 v{vVD}, v{vVD}, v{vT0}
""")
for rb in range(1, 4): E(f"v_add_u32 v{vVD+rb}, {3072*rb}, v{vVD}")
E(f"""
v_and_b32 v{vT1}, 4, v{vT3}
v_add_u32 v{vT1}, v{vT1}, v{vT3}
v_lshl_add_u32 v{vWQ}, v{vT1}, 13, v{vT0}
v_mul_u32_u24 v{vT1}, 3584, v{vT1}
v_add_u32 v{vW1D}, v{vT1}, v{vT0}
""")
for rb in range(1, 4):
    rr = 16*(rb & 1) + 4*(rb >> 1)
    E(f"v_add_u32 v{vW1D+rb}, {rr*3584 - 1024*rb}, v{vW1D}\nv_add_u32 v{vWQ+rb}, {rr*8192 - 1024*rb}, v{vWQ}")
E(f"""
s_lshl_b32 s{sT1}, s{sHD}, 8
s_sub_u32 s{sT2}, {448*3584}, s{sT1}
s_cmp_lt_u32 s{sHD}, 14
s_cselect_b32 s{sT2}, s{sT2}, 0
s_cselect_b32 s{sT1}, s{sT1}, 0
""")
mk_srd(sW1, 16, sT1, f"s{sT2}")
E(f"s_lshr_b32 s{sT0}, s{sHD}, 1\ns_lshl_b32 s{sT0}, s{sT0}, 20\ns_add_u32 s{sT0}, s{sT0}, {1536*512}")
mk_srd(sKK, 6, sT0, 262144)
mk_srd(sVV, 8, sT0, 262144)
E(f"s_mul_i32 s{sT0}, s{sHD}, {256*896}")
mk_srd(sWO, 12, sT0, 256*896)
E(f"""
s_lshr_b32 s{sPC}, s2, 3
s_and_b32 s{sPC}, s{sPC}, 15
s_cmp_ge_u32 s{sPC}, 7
s_cselect_b32 s{sT3}, 1, 0
s_mul_i32 s{sT1}, s{sT3}, 7
s_sub_u32 s{sT1}, s{sPC}, s{sT1}
s_lshl_b32 s{sT0}, s{sT1}, 7
s_sub_u32 s{sT2}, {1792*896}, s{sT0}
s_cmp_lt_u32 s{sPC}, 14
s_cselect_b32 s{sT2}, s{sT2}, 0
s_cselect_b32 s{sT0}, s{sT0}, 0
""")
mk_srd(sW2, 18, sT0, f"s{sT2}")
if OPT['WSOFF']:
    E(f"s_mov_b32 s{sT0}, {hx(OPT['WSOFF'] << 20)}")
    mk_srd(sWS, 24, sT0, WS_SIZE)
else:
    mk_srd(sWS, 24, None, WS_SIZE)
for k_, R_ in ((0, 32*8192), (2, 32*3584)):
    E(f"""
s_mul_i32 s{sW1T+k_}, s{sW}, {R_}
s_cmp_lt_u32 s{sW}, 2
s_mov_b32 s{sT2}, {hx(128 - 2*R_)}
s_cselect_b32 s{sT0}, {12*R_}, s{sT2}
s_add_u32 s{sW1T+k_+1}, s{sW1T+k_}, s{sT0}
""")
E(f"""
v_mul_u32_u24 v{vT1}, 896, v{vT3}
v_add_u32 v{vT1}, v{vT1}, v{vT0}
s_mul_i32 s{sT0}, s{sW}, {32*896}
s_mul_i32 s{sT2}, s{sW}, {448*896}
""")
for rb in range(4):
    if rb: E(f"v_add_u32 v{vT1}, 6144, v{vT1}")
    E(f"v_add_u32 v{vT2}, s{sT0}, v{vT1}\nv_accvgpr_write_b32 a{aST+rb}, v{vT2}\nv_add_u32 v{vT2}, s{sT2}, v{vT1}\nv_accvgpr_write_b32 a{aST+4+rb}, v{vT2}")
E(f"""
v_lshlrev_b32 v{vL16}, 4, v0
v_lshrrev_b32 v{vT0}, 2, v0
v_lshlrev_b32 v{vT1}, 7, v{vT0}
v_and_b32 v{vT2}, 3, v0
v_lshl_add_u32 v{vT1}, v{vT2}, 3, v{vT1}
v_bfe_u32 v{vT3}, v0, 3, 2
""")
for u in range(4):
    E(f"""
v_xor_b32 v{vT4}, {u}, v{vT3}
v_lshl_add_u32 v{vTR+u}, v{vT4}, 5, v{vT1}
v_add_u32 v{vTR+4+u}, 0x10000, v{vTR+u}
v_add_u32 v{vTR+8+u}, 0x20000, v{vTR+u}
""")
E(f"""
v_and_b32 v{vT0}, 15, v0
v_lshrrev_b32 v{vT1}, 1, v{vT0}
v_lshrrev_b32 v{vT2}, 4, v0
v_xor_b32 v{vT1}, v{vT1}, v{vT2}
v_lshlrev_b32 v{vT4}, 7, v{vT0}
v_lshl_add_u32 v{vRA}, v{vT1}, 4, v{vT4}
v_xor_b32 v{vRA+1}, 64, v{vRA}
v_add_u32 v{vRA+2}, 0x10000, v{vRA}
v_add_u32 v{vRA+3}, 0x10000, v{vRA+1}
v_add_u32 v{vRA+4}, 0x20000, v{vRA}
v_add_u32 v{vRA+5}, 0x20000, v{vRA+1}
""")
vXR = vR + 72
for i in range(4): E(f"v_add_u32 v{vXR+i}, s{sWB}, v{vRA+i}")
E(f"""
s_and_b32 s{sTC}, s2, 7
s_lshl_b32 s{sTC}, s{sTC}, 1
s_lshr_b32 s{sT0}, s2, 7
s_add_u32 s{sTC}, s{sTC}, s{sT0}
s_lshl_b32 s{sW2I}, s{sT0}, 1
s_add_u32 s{sW2I}, s{sW2I}, s{sT3}
s_lshl_b32 s{sT2}, s{sTC}, 1
s_add_u32 s{sT2}, s{sT2}, s{sT3}
s_lshl_b32 s{sT0}, s{sT2}, 2
s_add_u32 s{sT0}, s{sT0}, s{sW}
s_mul_i32 s{sT0}, s{sT0}, {16*896}
s_lshl_b32 s{sSG}, s{sT1}, 7
s_add_u32 s{sT0}, s{sT0}, s{sSG}
v_lshrrev_b32 v{vT0}, 3, v0
v_mul_u32_u24 v{vT0}, 896, v{vT0}
v_and_b32 v{vT2}, 7, v0
v_lshl_add_u32 v{vT0}, v{vT2}, 4, v{vT0}
v_add_u32 v{vT0}, s{sT0}, v{vT0}
v_accvgpr_write_b32 a{aST+8}, v{vT0}
s_lshl_b32 s{sT2}, s{sT2}, 1
s_lshr_b32 s{sT0}, s{sW}, 1
s_add_u32 s{sSG}, s{sT2}, s{sT0}
s_mul_i32 s{sSG}, s{sSG}, 7
s_add_u32 s{sSG}, s{sSG}, s{sT1}
s_lshl_b32 s{sSG}, s{sSG}, 2
s_lshl_b32 s{sT0}, s{sT0}, 4
s_lshl_b32 s{sFLP}, s{sT2}, 7
s_add_u32 s{sFLP}, s{sFLP}, s{sT0}
s_add_u32 s{sFLP}, s{sFLP}, {hx(WS_F)}
s_and_b32 s{sT0}, s{sW}, 1
s_add_u32 s{sSG}, s{sSG}, s{sT0}
s_lshl_b32 s{sSG}, s{sSG}, 14
s_mul_i32 s{sHLD}, s{sT2}, {56*2048}
s_add_u32 s{sHLD}, s{sHLD}, {hx(WS_H)}
s_cmp_lt_u32 s{sPC}, 14
s_cselect_b32 s{sCOOB}, 0, {hx(OOB)}
s_add_u32 s{sHPF}, s{sHLD}, s{sCOOB}
s_mul_i32 s{sT0}, s{sW}, {14*2048}
s_add_u32 s{sHLD}, s{sHLD}, s{sT0}
s_mov_b32 s0, s2
s_mov_b32 s{sCC}, s{sT1}
s_lshl_b32 s{sKVI}, s{sTL}, 1
s_and_b32 s{sT0}, s{sHD}, 1
s_add_u32 s{sKVI}, s{sKVI}, s{sT0}
s_lshl_b32 s{sT1}, s{sT}, 2
s_add_u32 s{sT1}, s{sT1}, s{sW}
s_lshr_b32 s{sFLG}, s{sT1}, 1
s_lshl_b32 s{sFLG}, s{sFLG}, 8
s_and_b32 s{sT2}, s{sT1}, 1
s_lshl_b32 s{sT2}, s{sT2}, 4
s_add_u32 s{sFLG}, s{sFLG}, s{sT2}
s_add_u32 s{sFLG}, s{sFLG}, s{sHD}
s_add_u32 s{sFLG}, s{sFLG}, {hx(WS_F)}
s_mul_i32 s{sHST}, s{sT1}, {56*2048}
s_min_u32 s{sT2}, s{sHD}, 13
s_lshl_b32 s{sT2}, s{sT2}, 13
s_add_u32 s{sHST}, s{sHST}, s{sT2}
s_add_u32 s{sHST}, s{sHST}, {hx(WS_H)}
s_cmp_lt_u32 s{sHD}, 14
s_cselect_b32 s{sT2}, 0, {hx(OOB)}
v_add_u32 v{vHS}, s{sT2}, v{vL16}
v_mov_b32 v{vZ}, 0
v_mov_b32 v{vONE}, 1
""")
PST('addr_done')
xissue(14 - OPT['XFIRST'] - OPT['XSEC'])
if OPT['WQE'] == 0: P.ins += wqpf; wqpf = []
PST('x_issued')
PRODUCER = len(P.ins)
E(f"""
s_lshl_b32 s{sSST}, s{sT}, 2
s_add_u32 s{sSST}, s{sSST}, s{sW}
s_mul_i32 s{sSST}, s{sSST}, {28*16384}
s_cmp_ge_u32 s{sHD}, 7
s_cselect_b32 s{sT3}, 1, 0
s_sub_u32 s{sROT}, s{sHD}, 7
s_min_u32 s{sROT}, s{sROT}, s{sHD}
s_sub_u32 s{sCNT}, s{sROT}, 7
s_min_u32 s{sROT}, s{sROT}, s{sCNT}
s_cmp_lt_u32 s{sHD}, 14
s_cselect_b32 s{sT3}, s{sT3}, s{sHD}
s_cselect_b32 s{sSTEP}, 2048, 0
s_lshl_b32 s{sT3}, s{sT3}, 10
s_add_u32 s{sSST}, s{sSST}, s{sT3}
""")
prod_ins = []
if OPT['STLB'] == 1:
    for b_, o_ in ((sKK, '0'), (sVV, '0'), (sWQ, '0'), (sWQ, f'{hx(400*8192)}')[:2], (sWO, '0'), (sW1, '0'), (sW2, '0'), (sOUT, '0'),
                   (sWS, f's{sSST}'), (sWS, f's{sHST}'), (sWS, hx(WS_F + 0x8000))):
        if o_.startswith('0x'): E(f"s_mov_b32 s{sCNT}, {o_}"); o_ = f's{sCNT}'
        i_ = I(f"s_buffer_load_dword s1, {srd(b_)}, {o_}"); i_.cls = 'smem'; i_.dst = []; P.ins.append(i_)
for s_, val in ((sM1, 0x2222222222222222), (sM2, 0xCCCCCCCCCCCCCCCC), (sM3, 0x8888888888888888), (sMD, 0xF0000F0000F0000F)):
    E(f"s_mov_b32 s{s_}, {hx(val)}\ns_mov_b32 s{s_+1}, {hx(val >> 32)}")

vONES = vR + 16
vD1 = vR + 20
vD2 = vR + 28
vLA = vR + 36
for i in range(4): E(f"v_mov_b32 v{vONES+i}, 0x3f803f80")
def rbf(r):
    return [f"v_cvt_pk_bf16_f32 v{r}, v{r}, v{r}", f"v_lshlrev_b32 v{r}, 16, v{r}"]
E(f"s_mov_b32 s{sT0}, {hx(f2u(1.0/448.0))}\ns_mov_b32 s{sT1}, {hx(f2u(1e-5))}\ns_mov_b32 s{sT2}, {hx(f2u(CSCALE))}")
if OPT['PADS']:
    E(f"""
s_mov_b64 exec, 0
s_cmp_eq_u32 s{sW}, 0
s_cbranch_scc1 L_pg0
s_cmp_eq_u32 s{sW}, 1
s_cbranch_scc1 L_pg1
s_cmp_eq_u32 s{sW}, 2
s_cbranch_scc1 L_pg2
s_branch L_pg3
.p2align 12
L_main:
s_mov_b64 exec, -1
""")
STAMP('pro_done')
vNT = vR + 44
NPRO = OPT['NPRO']
big = []
if OPT['BIG'] & 1:
    t_ = pf_seq(sWQ, 448*2, 2, 8192, sTL, NT); t_[-1] = I(t_[-1].text.replace('offen', 'offen offset:256'), tag='pf'); big += t_
    big += pf_seq(sW1, 448*2, 2, 3584, sTL, NT)
if OPT['BIG'] & 2:
    t_ = pf_seq(sKK, 2048, None, 0, sKVI, 2*NT); big += t_ + [pf_load(sVV, vPF+1)]
big = [I(t_) if isinstance(t_, str) else t_ for t_ in big]
assert len(pro_dma) == NPRO
L0N = OPT['L0N']
late = {0: [i_ for d_ in pro_dma[:L0N] for i_ in d_],
        1: [i_ for d_ in pro_dma[3:] for i_ in d_]
           + big + [I(f"buffer_store_byte v{vZ}, v{vZ}, {srd(sWS)}, s{sFLG} offen sc1", tag='hst')]}
def xreads(tg, q):
    r = [mk_wait_vm([('x', tg, q)])]
    for ks in (2*q, 2*q+1):
        ad = q*SLOT + tg*2048
        r.append(I(f"ds_read_b128 {v(xn(ks,tg),4)}, v{vXR + (ad >> 16)*2 + (ks & 1)} offset:{ad & 0xffff}", tag=('xr', tg, q)))
    return r
def stats(tg, q, fill):
    P.wait_lgkm_tag([('xr', tg, q)])
    for ks in (2*q, 2*q+1):
        X = v(xn(ks, tg), 4)
        for m_ in (mfma(v(vD1+4*tg, 4), v(vONES, 4), X, "0" if ks == 0 else v(vD1+4*tg, 4)), mfma(v(vD2+4*tg, 4), X, X, "0" if ks == 0 else v(vD2+4*tg, 4))):
            E(m_)
            t_ = 0
            while fill and t_ + cost(fill[0]) <= 12:
                t_ += cost(fill[0]); P.ins.append(fill.pop(0))
def scalars(tg):
    d = vD2 + 4*tg; m = vD1 + 4*tg; t = m + 1; L = vLA + 4*tg
    s = [f"v_cndmask_b32 v{d}, v{d}, v{d+1}, s[{sM1}:{sM1+1}]",
         f"v_cndmask_b32 v{d+2}, v{d+2}, v{d+3}, s[{sM3}:{sM3+1}]",
         f"v_mul_f32 v{m}, s{sT0}, v{m}",
         f"v_cndmask_b32 v{d}, v{d}, v{d+2}, s[{sM2}:{sM2+1}]",
         f"v_cndmask_b32 v{d}, 0, v{d}, s[{sMD}:{sMD+1}]"]
    s += allred(d, t, "v_add_f32")
    s += [f"v_mul_f32 v{d}, s{sT0}, v{d}",
          f"v_fma_f32 v{d}, -v{m}, v{m}, v{d}",
          f"v_max_f32 v{d}, 0, v{d}"]
    s += interleave(rbf(m), rbf(d))
    s += [f"v_add_f32 v{d}, s{sT1}, v{d}"] + rbf(d) + [f"v_sqrt_f32 v{d}, v{d}"] + rbf(d)
    s += [f"v_rcp_f32 v{d}, v{d}", f"v_mul_f32 v{d}, s{sT2}, v{d}",
          f"v_cvt_pk_bf16_f32 v{d}, v{d}, v{d}",
          f"v_and_b32 v{L}, 0xffff, v{d}", f"v_lshlrev_b32 v{L+1}, 16, v{d}",
          f"v_mul_f32 v{L+2}, -v{m}, v{L+1}"]
    for t_ in s: E(t_)
def normalize(tg, side):
    L = vLA + 4*tg; k = 0; pend = []
    for ks in range(14):
        for r in range(4):
            x_ = xn(ks, tg) + r
            t = vNT + 2*(k % 8); k += 1
            E(f"v_dot2_f32_bf16 v{t}, v{x_}, v{L}, v{L+2}\nv_dot2_f32_bf16 v{t+1}, v{x_}, v{L+1}, v{L+2}")
            pend.append(f"v_cvt_pk_bf16_f32 v{x_}, v{t}, v{t+1}")
            if len(pend) > 2: E(pend.pop(0))
            P.ins += side.get(k, [])
    for t_ in pend: E(t_)
for q in range(7):
    P.ins += xreads(0, q)
    if q in (0, 3, 6): PST(f'w0{q}')
    xissue(2)
    if q > 1: stats(0, q-2, [])
fill = wqpf + late[0]
stats(0, 5, fill); stats(0, 6, fill)
P.ins += fill
STAMP('x0_arrived')
scalars(0)
X1 = OPT['X1']
normalize(0, {X1 + 4*q: xreads(1, q) for q in range(7)})
PST('ln0_done')
fill = [i_ for d_ in pro_dma[L0N:3] for i_ in d_]
for q in range(7):
    if q == 1: P.wait_lgkm_tag([('xr', 1, 6)]); fill += late[1]
    stats(1, q, fill)
P.ins += fill
STAMP('x1_arrived')
scalars(1)
fr_ = [i_ for f in range(D) for i_ in frag_reads(f)]
side = {OPT['BARK']: [mk_wait_vm(first_need), I("s_barrier")]}
for k_, i_ in enumerate(fr_): side.setdefault(min(OPT['BARK'] + 1 + k_, 56), []).append(i_)
normalize(1, side)
if OPT['DUMP'] == 'xn':
    P.ins += dump([v(xn(ks, tg), 4) for ks in range(14) for tg in range(2)])

P.ins.append(mk_wait_lg([('f', f) for f in range(4)]))
est = 0
for g in range(NF):
    if g in blk: P.ins += blk[g]
    for h, m_ in enumerate(MF[g]):
        gp = G0[g] + h
        P.ins.append(I(m_))
        P.ins += pre[gp] + rds[gp] + ext[gp]
        est += max(16, gtime(pre[gp] + rds[gp] + ext[gp]))
if OPT['LOG']:
    ph = sorted((f_, n_) for n_, f_ in phase.items())
    for (f0_, n_), (f1_, _) in zip(ph, ph[1:]):
        e_ = sum(max(16, gtime(pre[q_] + rds[q_] + ext[q_])) for q_ in range(gap(f0_), gap(f1_)))
        print(f"  phase {n_}: est {e_} ideal {16*(gap(f1_)-gap(f0_))}", file=sys.stderr)
print("estimated main-stream cycles", est, "ideal", 16*NG, file=sys.stderr)

STAMP('g6_done')
def fs(t4, w_): return facc(t4, w_)
vSEL = 44
vSA = 52
STAMP('pre_c1')
P.wait_vm_tag(['poll'])
E(f"v_cmp_gt_u32 vcc, 3, v{vPOLL}\ns_cbranch_vccnz L_spin1\nL_spin1_ret:\ns_cmp_lg_u32 s{sMISS}, 0\ns_cbranch_scc1 L_redo\nL_redo_ret:")
STAMP('chk1')
gl2 = gloads(2*F0, 16, vHS)
n2 = OPT['N2']
P.ins += gl2[:n2]
E(f"""
v_add_u32 v{vT1}, s{sWB}, v{vL16}
s_lshl_b32 s{sT0}, s{sW}, 14
v_add_u32 v{vT2}, s{sT0}, v{vL16}
""")
for u in range(4):
    for t4 in range(4):
        E(f"ds_write_b128 v{vT1}, {v(facc(u, t4), 4)} offset:{t4*SLOT + u*1024}")
P.wait_vm_tag(['xf'])
for u in range(4): E(f"ds_read_b64 {v(vXF + 2*u, 2)}, v{vT3} offset:{u*32}")
E(f"""
v_mov_b32 v{vSEL}, 0
v_mov_b32 v{vSEL+1}, 0
v_mov_b32 v{vSEL+4}, 0
v_mov_b32 v{vSEL+5}, 0
v_mov_b32 v{vT0}, 0x3f80
v_mov_b32 v{vSEL+2}, 0x3f800000
s_or_b64 s[16:17], s[{sM1}:{sM1+1}], s[{sM3}:{sM3+1}]
v_cndmask_b32 v{vT0}, v{vT0}, v{vSEL+2}, s[16:17]
v_cndmask_b32 v{vT0}, 0, v{vT0}, s[{sMD}:{sMD+1}]
s_mov_b64 s[16:17], s[{sM2}:{sM2+1}]
v_cndmask_b32 v{vSEL+2}, v{vT0}, 0, s[16:17]
v_cndmask_b32 v{vSEL+3}, 0, v{vT0}, s[16:17]
s_mov_b32 s{sT0}, {hx(f2u(1.0/CSCALE))}
s_mov_b32 s{sT2}, {hx(f2u(-16.0))}
""")
E("s_waitcnt lgkmcnt(0)\ns_barrier")
for t4 in range(4):
    for w_ in range(4):
        E(f"ds_read_b128 {v(fs(t4, w_), 4)}, v{vT2} offset:{w_*4096 + t4*1024}")
def smf(rl, sl):
    r = []
    for tg in range(2):
        d = v(vSA + (rl*2+tg)*4, 4)
        r.append(mfma(d, v(vSEL + (2 if tg == 0 else 0), 4), greg(rl, sl), "0" if sl == 0 else d))
    return r
val = []
for t4 in range(4):
    b0, b1, b2, b3 = (fs(t4, w_) for w_ in range(4))
    for r in range(4): val += [f"v_add_f32 v{b0+r}, v{b0+r}, v{b1+r}", f"v_add_f32 v{b2+r}, v{b2+r}, v{b3+r}"]
    for r in range(4): val.append(f"v_add_f32 v{b0+r}, v{b0+r}, v{b2+r}")
    for r in range(4): val.append(f"v_mul_f32 v{b1+r}, s{sT2}, v{b0+r}")
    for r in range(4): val.append(f"v_exp_f32 v{b1+r}, v{b1+r}")
    for r in range(4): val.append(f"v_mul_f32 v{b0+r}, s{sT0}, v{b0+r}")
    for r in range(4): val.append(f"v_add_f32 v{b1+r}, 1.0, v{b1+r}")
    for r in range(4): val.append(f"v_rcp_f32 v{b1+r}, v{b1+r}")
    for r in range(4): val.append(f"v_mul_f32 v{b0+r}, v{b0+r}, v{b1+r}")
for t4 in range(4):
    b2 = fs(t4, 2); xr = vXF + t4*2
    val += [f"v_lshlrev_b32 v{b2}, 16, v{xr}", f"v_and_b32 v{b2+1}, 0xffff0000, v{xr}", f"v_lshlrev_b32 v{b2+2}, 16, v{xr+1}", f"v_and_b32 v{b2+3}, 0xffff0000, v{xr+1}"]
rest = gl2[n2:]
nv1 = OPT['NV1']
step = max(1, nv1 // max(1, len(rest)))
for k_ in range(nv1):
    E(val.pop(0))
    if rest and k_ % step == step - 1: P.ins.append(rest.pop(0))
P.ins += rest
E(f"s_waitcnt vmcnt({32 - 4*F0})")
ms = []
for sq in range(0, 2*F0, 2):
    for rl in range(2):
        for sl in range(sq, sq+2): ms += smf(rl, sl)
per = (len(val) + 8*F0 - 1) // (8*F0)
for m_ in ms:
    E(m_)
    for _ in range(per):
        if val: E(val.pop(0))
for t_ in val: E(t_)
STAMP('g_done')
for sq in range(2*F0, 16, 2):
    for rl in range(2):
        for sl in range(sq, sq+2):
            for m_ in smf(rl, sl): E(m_)
for u in range(4):
    b0 = fs(u, 0); b2 = fs(u, 2)
    for r in range(4): E(f"v_fma_f32 v{b0+r}, v{vSA+u*4+r}, v{b0+r}, v{b2+r}")
    E(f"v_cvt_pk_bf16_f32 v{b0}, v{b0}, v{b0+1}\nv_cvt_pk_bf16_f32 v{b0+1}, v{b0+2}, v{b0+3}")
    E(f"ds_write_b64 v{vPF}, {v(b0,2)} offset:{u*32}")
E(f"""
ds_read_b128 {v(vXF,4)}, v{vT4}
ds_read_b128 {v(vXF+4,4)}, v{vT4} offset:1152
buffer_store_dwordx4 {v(vXF,4)}, v{vAD}, {srd(sOUT)}, 0 offen {OPT['OST']}
buffer_store_dwordx4 {v(vXF+4,4)}, v{vAD}, {srd(sOUT)}, s{sSV1} offen {OPT['OST']}
""")
if OPT['WAITAT']: STAMP('end')
if OPT['STAMP']:
    STAMP('end')
    E(f"""
L_fin:
s_memrealtime s[{sSTMP}:{sSTMP+1}]
s_waitcnt lgkmcnt(0)
v_writelane_b32 v{vSTAMP}, s{sMISS}, 59
v_writelane_b32 v{vSTAMP}, s98, 60
v_writelane_b32 v{vSTAMP}, s100, 61
v_writelane_b32 v{vSTAMP}, s{sSTMP}, 62
s_lshl_b32 s{sT0}, s0, 2
s_add_u32 s{sT0}, s{sT0}, s{sW}
s_lshl_b32 s{sT0}, s{sT0}, 8
s_add_u32 s{sT0}, s{sT0}, {hx(WS_DBG)}
v_lshlrev_b32 v{vT0}, 2, v0
buffer_store_dword v{vSTAMP}, v{vT0}, {srd(sWS)}, s{sT0} offen
""")
E("L_end:\ns_endpgm")
main_ins, log, stats_ = resolve(P.ins)
print("main", stats_, file=sys.stderr)
if OPT['LOG']:
    for l in log: print("  ", l, file=sys.stderr)

Q = Prog(); E = Q.emit
SPIN_MAX = 1 << 17
def spin(label, load, want, cmp):
    E(f"""
{label}:
s_mov_b32 s{sCNT}, {SPIN_MAX}
{label}_loop:
s_sleep 1
{load}
s_waitcnt vmcnt(0)
v_cmp_{cmp}_u32 vcc, {want}, v{vPOLL}
s_sub_u32 s{sCNT}, s{sCNT}, 1
s_cmp_eq_u32 s{sCNT}, 0
s_cbranch_scc1 {label}_ret
s_cbranch_vccnz {label}_loop
s_branch {label}_ret
""")
spin("L_spinh", f"s_lshl_b32 s{sT0}, s{sTC}, 4\nv_mov_b32 v{vT0}, s{sT0}\nglobal_load_dword v{vPOLL}, v{vT0}, {DBGP} sc1", 16, "gt")
spin("L_spin1", VPOLL, 3, "gt")
E("L_redo:\ns_waitcnt vmcnt(0)")
Q.ins += gloads(0, 2*F0, vHS)
E("s_branch L_redo_ret")
MISC = [c['lo'] for c in chunks if c['name'] == 'V_15'][0]
fK, fS, fP, fA, fV, fR, fM = 44, 76, 108, 116, 117, 121, 102
E(f"""
L_exact:
s_waitcnt vmcnt(0) lgkmcnt(0)
s_nop 15
s_mov_b32 s{sSV0}, m0
v_and_b32 v{fA}, 15, v0
v_lshlrev_b32 v{fA}, 9, v{fA}
v_and_b32 v{fM}, 48, v0
v_add_u32 v{fA}, v{fA}, v{fM}
s_lshl_b32 s{sSV1}, s{sW}, 7
s_add_u32 s{sSV2}, s{sWB}, {MISC}
""")
for i in range(4):
    E(f"v_subrev_u32 v{fV+i}, s{sSV1}, v{vVD+i}\nv_add_u32 v{fR+i}, s{sSV2}, v{vTR+i}")
E(f"v_mov_b32 v{fM}, 0xff800000\nv_mov_b32 v{fM+1}, 0xff800000\ns_mov_b32 s{sSV1}, 0")
def ktile(kt, cinit):
    for ks in range(8):
        E(f"buffer_load_dwordx4 {v(fK+4*ks,4)}, v{fA}, {srd(sKK)}, s{sSV1} offen offset:{ks*64}")
    E(f"s_add_u32 s{sSV1}, s{sSV1}, 8192\ns_waitcnt vmcnt(0)")
    for ks in range(8):
        for tg in range(2):
            d = v(fS + tg*8 + kt*4, 4)
            E(mfma(d, v(fK+4*ks, 4), a(qf(ks, tg), 4), (cinit(tg) if ks == 0 else d)))
    E("s_nop 15")
E("L_exact_p1:")
ktile(0, lambda tg: "0")
for tg in range(2):
    b = fS + tg*8
    E(f"v_max3_f32 v{fM+tg}, v{fM+tg}, v{b}, v{b+1}\nv_max3_f32 v{fM+tg}, v{fM+tg}, v{b+2}, v{b+3}")
E(f"s_cmp_lt_u32 s{sSV1}, 262144\ns_cbranch_scc1 L_exact_p1")
for tg in range(2):
    for t_ in allred(fM+tg, fM+2, "v_max_f32"): E(t_)
    for r in range(4): E(f"v_sub_f32 v{vC+4*tg+r}, 0, v{fM+tg}")
for r in range(128): E(f"v_mov_b32 v{vO+r}, 0")
E(f"v_mov_b32 v{vLS}, 0\nv_mov_b32 v{vLS+1}, 0\ns_mov_b32 s{sSV1}, 0\ns_add_u32 m0, s{sWB}, {MISC}\ns_nop 3")
E("L_exact_p2:")
E(f"s_mov_b32 s{sSV2}, s{sSV1}")
ktile(0, lambda tg: v(vC+4*tg, 4))
ktile(1, lambda tg: v(vC+4*tg, 4))
for r in range(16): E(f"v_exp_f32 v{fS+r}, v{fS+r}")
for r in range(16): E(f"v_add_f32 v{vLS + r//8}, v{vLS + r//8}, v{fS+r}")
for r in range(8): E(f"v_cvt_pk_bf16_f32 v{fP+r}, v{fS+2*r}, v{fS+2*r+1}")
for cb in range(4):
    for rb in range(4):
        E(f"buffer_load_dwordx4 v{fV+rb}, {srd(sVV)}, s{sSV2} offen offset:{rb*1024} lds")
    E(f"s_add_u32 s{sSV2}, s{sSV2}, 128\ns_waitcnt vmcnt(0)")
    for u in range(4):
        E(f"ds_read_b64_tr_b16 {v(fK+4*u,2)}, v{fR+u}\nds_read_b64_tr_b16 {v(fK+4*u+2,2)}, v{fR+u} offset:2048")
    E("s_waitcnt lgkmcnt(0)")
    for u in range(4):
        for tg in range(2):
            d = v(Oreg(cb*4+u, tg), 4)
            E(mfma(d, v(fK+4*u, 4), v(fP+4*tg, 4), d))
    E("s_nop 7")
E(f"s_cmp_lt_u32 s{sSV1}, 262144\ns_cbranch_scc1 L_exact_p2")
for tg in range(2):
    for t_ in allred(vLS+tg, fM+2, "v_add_f32"): E(t_)
    E(f"v_rcp_f32 v{vRC+tg}, v{vLS+tg}")
E("s_nop 15")
for ks in range(8):
    for t_ in ocvt(ks): E(t_)
E(f"s_mov_b32 m0, s{sSV0}\ns_nop 15\ns_branch L_exact_ret")
sub_ins, log2, stats2 = resolve(Q.ins)

def sizes_of(ins):
    import subprocess, tempfile, re as re_
    body = [i_ for i_ in ins if i_.cls not in ('label', 'dir')]
    txt_ = '.amdgcn_target "amdgcn-amd-amdhsa--gfx950"\n.text\nL_any:\n' + ''.join('    ' + (re_.sub(r'L_\w+', 'L_any', i_.text) if i_.cls == 'branch' else i_.text) + '\n' for i_ in body)
    d_ = tempfile.mkdtemp()
    open(d_ + '/a.s', 'w').write(txt_)
    subprocess.run(['clang', '-x', 'assembler', '-target', 'amdgcn-amd-amdhsa', '-mcpu=gfx950', '-c', d_ + '/a.s', '-o', d_ + '/a.o'], check=True)
    out_ = subprocess.run(['llvm-objdump', '-d', '--mcpu=gfx950', d_ + '/a.o'], capture_output=True, text=True).stdout
    sz = [4*len(m_.group(1).split()) for m_ in re_.finditer(r'// [0-9A-F]+: ((?:[0-9A-F]{8} ?)+)', out_)]
    assert len(sz) == len(body), (len(sz), len(body))
    return {id(i_): s_ for i_, s_ in zip(body, sz)}
if OPT['PADS']:
    sz = sizes_of(main_ins)
    k0 = [k_ for k_, i_ in enumerate(main_ins) if i_.text == 'L_main:'][0]
    out_ = main_ins[:k0+1]; off = 0; npg = 0
    for i_ in main_ins[k0+1:]:
        if i_.cls not in ('label', 'dir'):
            lo = (npg + 1)*4096
            if npg < OPT['NPG'] and off >= lo and (i_.cls == 'mfma' or off + sz[id(i_)] > lo + 56):
                assert off < lo + 64
                out_.append(I(f"L_pg{npg}:")); out_.append(I(f"s_cbranch_execz L_pgn{npg}")); off += 4; npg += 1
            off += sz[id(i_)]
        out_.append(i_)
    for i_ in out_:
        if i_.text.startswith('s_cbranch_execz L_pgn'):
            k_ = int(i_.text.split('L_pgn')[1]) + 4
            i_.text = f"s_cbranch_execz L_pg{k_}" if k_ < npg else "s_cbranch_execz L_main"
    main_ins = out_
    print("code pages", npg, "bytes after L_main", off, file=sys.stderr)
hdr = open(os.path.join(os.path.dirname(os.path.abspath(__file__)), 'header.txt')).read()
txt = hdr + f"""; @launch grid=(256,1,1) block=(256,1,1) lds={LDS_BYTES}
.amdgcn_target "amdgcn-amd-amdhsa--gfx950"
.text
.globl {NAME}_kernel
.p2align 8
.type {NAME}_kernel,@function
{NAME}_kernel:
""" + render(main_ins) + render(sub_ins) + f"""L_pad:
    s_endpgm
.if (L_pad - {"L_main" if OPT["PADS"] else "L_pc"}) < {CODE_LINES*128}
.fill (({CODE_LINES*128} - (L_pad - {"L_main" if OPT["PADS"] else "L_pc"})) / 4) + 16, 4, 0xbf810000
.endif
.section .rodata,"a"
.p2align 6
.amdhsa_kernel {NAME}_kernel
  .amdhsa_next_free_vgpr 512
  .amdhsa_next_free_sgpr 102
  .amdhsa_accum_offset 256
  .amdhsa_group_segment_fixed_size 0
  .amdhsa_kernarg_size 88
  .amdhsa_user_sgpr_count 2
  .amdhsa_user_sgpr_kernarg_segment_ptr 1
  .amdhsa_system_sgpr_workgroup_id_x 1
.end_amdhsa_kernel
"""
if OPT['STAMP']: txt += '; STAMPS ' + ' '.join(stamp_names) + '\n'
open(sys.argv[1], 'w').write(txt)
```

```python
import sys, os, math, struct
from asmlib import *

NAME = "recurrent_scan__sliding_block_cached__dense_activation_relu__prompt"
OPT = dict(D=8, NA=12, HX=2, BAR=2, STAMP=0, PST=0, DUMP='', SIGG=60, FORCEFB=0, LOG=0,
           SST='sc1', HLD='sc1', HST='sc1', GLD='sc1', NOSST=0, NOHLD=0, NOHST=0,
           PX='', PW1='', PWQ='', PKV='', PWO='', PW2='', PF=1, PPF='', OST='', WSOFF=0, HSTEP=7, XREV=0, NPRO=4, WAITAT='', WAITT=0, WAITWG=-1, PADS=1, HSIG=150, HPF=0, PF0=0, PF1=14, CHAIN=1, WB=0, WBD=60, BIG=1, DSTART=0, W2ROT=1, NOPF2=2, HEND=40, XPF=1, L0N=1, X1=28, BARK=36, BARP=2, BARA=2, BAR4=2, SPAN=30, SPAN2=20, NV1=100, PKR=0, PCH=0, TLB=1, TLBP='G2_13', XG=0, STLB=0, ST0=4, STS=40, G6P='66666666666666', WOM=0, W2N=7, NPG=10, CPF='', SB2=0, PB2=60, CB2=110, LB2=215, NB2=10, ONORM=1, CE=150, LB=220, H2X=4, H2S=6, SB=40, LB2X=0, NSB=12, PCB=2, NO=0, NX=4, NOG=0, NOFLAG=0, W2G=-15, W2S=8, F0=3, F1=7, L0=0, W2PRE=14, H2A=460, H2B=540, SA=48, PA=-38, CA=70, LA=140, SC=30, PB=115, N2=12, G1N=10, XFIRST=4, XSEC=0, WQE=2, OEARLY=2, H2SPAN=60, PFG=170, WQP=2, FINE=0, RT=0, SIMPLE=0, SSP=0)
for a_ in sys.argv[2:]:
    k_, v_ = a_.split('=')
    OPT[k_] = v_.replace('+', ' ') if isinstance(OPT[k_], str) else int(v_)
D = OPT['D']; NA = OPT['NA']

RING_SLOTS = 10
SLOT = 16384
LDS_BYTES = 163840
WS_S = 0
WS_H = 0x1C00000
WS_F = 0x2300000
WS_DBG = 0x2400000
WS_SIZE = 0x8000000 if (OPT['DUMP'] or OPT['STAMP']) else 0x2400000
OOB = 0x7f000000
CSCALE = math.log2(math.e) / 16.0
def f2u(x): return struct.unpack('<I', struct.pack('<f', x))[0]
def hx(x): return f"0x{x & 0xffffffff:x}"

sX, sW1, sWQ, sKK, sVV, sWO, sW2, sWS, sOUT = 28, 32, 36, 40, 44, 48, 52, 56, 60
def srd(b): return f"s[{b}:{b+3}]"
sW, sHD, sT, sWB, sSO = 64, 65, 66, 67, 68
sT0, sT1, sT2, sT3 = 69, 70, 71, 3
sQT = 72
sHST, sHLD, sSST, sSG, sFLG, sFLP, sCNT, sSO2, sTL, sROT, sSTEP, sPC = 86, 87, 88, 89, 90, 91, 92, 93, 94, 95, 96, 97
sTC, sCOOB, sHPF, sW2I, sKVI, sCC = 19, 20, 21, 24, 25, 2
sW1T = 12
sM1, sM2, sM3, sMD = 4, 6, 8, 10
sSV0, sSV1, sSV2 = 12, 13, 14
sSTMP = 26
DBGP = "s[22:23]"
vL16, vHS, vT0, vT1, vT2, vT3, vT4 = 1, 2, 3, 4, 5, 6, 7
vTR = 8
vRA = 20
vPF = 26
vZ, vONE, vPOLL, vSTAMP = 28, 29, 30, 31
vWQ, vKD, vVD, vWOD, vW2D = 32, 36, 40, 32, 36
vXN = 44
vR = 156
vW1D = vR + 64
vXD = vR + 68
vO = 128
vS = 44
vP = 76
vC = 92
vLS = 100
vM = 106
vA4 = 44
vRC = 126
aF, aST, aQ, aH = 0, 48, 64, 128

def v(i, n=1): return f"v{i}" if n == 1 else f"v[{i}:{i+n-1}]"
def a(i, n=1): return f"a{i}" if n == 1 else f"a[{i}:{i+n-1}]"
def mfma(d, A, B, C): return f"v_mfma_f32_16x16x32_bf16 {d}, {A}, {B}, {C}"
def I(t, tag=None): return Ins(t, tag)
lg = lambda x: int(math.log2(x))

P = Prog()
E = P.emit

nstamp = [0]
stamp_names = []
def stamp_ins(name=''):
    if OPT['WAITAT'] and name == OPT['WAITAT']:
        return [I(t_) for t_ in ((f"s_cmp_lg_u32 s0, {OPT['WAITWG']}", "s_cbranch_scc1 L_end") if OPT['WAITWG'] >= 0 else ()) + ("L_dw:", f"s_memrealtime s[{sSTMP}:{sSTMP+1}]", "s_waitcnt lgkmcnt(0)", f"s_sub_u32 s{sSTMP}, s{sSTMP}, s100",
                                 f"s_cmp_lt_u32 s{sSTMP}, {OPT['WAITT']}", "s_cbranch_scc1 L_dw")]
    if not OPT['STAMP']: return []
    if OPT['STAMP'] == 3 and name not in ('end', 'attn_done', 'G4', 'wb0', 'wb1', 'G6', 'st_done', 'chk0', 'chk1', 'chk2', 'sigA', 'sigB', 'g6_done', 'g_done', 'pre_c2', 'pre_c1', 'pre_c0'): return []
    if OPT['STAMP'] == 2 and name not in ('end', 'G4', 'P0', 'G2_0', 'g6_done'): return []
    n = nstamp[0]; nstamp[0] += 1; stamp_names.append(name)
    return [I(f"{'s_memrealtime' if OPT['RT'] else 's_memtime'} s[{sSTMP}:{sSTMP+1}]"), I("s_waitcnt lgkmcnt(0)"), I(f"v_writelane_b32 v{vSTAMP}, s{sSTMP}, {n}")]
def STAMP(name=''):
    P.ins += stamp_ins(name)
def PST(name):
    if OPT['PST']: STAMP(name)

frags = []
chunks = []
def add_chunk(name, lo, size, dma, private=False):
    chunks.append(dict(name=name, lo=lo, hi=lo+size, dma=dma, private=private, first=None, last=None)); return len(chunks)-1
def add_frag(kind, rs, rb, addr, mf, ch):
    frags.append(dict(kind=kind, rb=rb, rs=rs, addr=addr, mf=mf, chunk=ch))
    c = chunks[ch]
    if c['first'] is None: c['first'] = len(frags)-1
    c['last'] = len(frags)-1
def frag_reads(f):
    fr = frags[f]; A = aF + 4*(f % NA)
    def rd(op, dst, addr):
        win = addr >> 16
        return I(f"{op} {dst}, v{fr['rb'] + win*fr['rs']} offset:{addr & 0xffff}", tag=('f', f))
    if fr['kind'] == 'tr':
        return [rd("ds_read_b64_tr_b16", a(A, 2), fr['addr']), rd("ds_read_b64_tr_b16", a(A+2, 2), fr['addr'] + 2048)]
    return [rd("ds_read_b128", a(A, 4), fr['addr'])]
POL = {sW1: 'PW1', sWQ: 'PWQ', sKK: 'PKV', sVV: 'PKV', sWO: 'PWO', sW2: 'PW2'}
ring_pos = [7]
def ring_round(name, srd_b, vbase, so_text, private=False):
    slot = ring_pos[0] % RING_SLOTS; ring_pos[0] += 1
    lo = slot*SLOT
    tag = ('c', len(chunks))
    dma = [I(f"s_add_u32 m0, s{sWB}, {lo}")]
    if so_text.startswith('s') or so_text == '0': so = so_text
    elif so_text.startswith('+'):
        dma.append(I(f"s_add_u32 s{sSO}, {so_text[1:]}")); so = f"s{sSO}"
    else:
        dma.append(I(f"s_mov_b32 s{sSO}, {so_text}")); so = f"s{sSO}"
    for rb in range(4):
        dma.append(I(f"buffer_load_dwordx4 v{vbase+rb}, {srd(srd_b)}, {so} offen offset:{rb*1024} {OPT[POL[srd_b]]} lds", tag=tag))
    return add_chunk(name, lo, SLOT, dma, private)

phase = {}
def xn(ks, tg): return vXN + (ks*2 + tg)*4
def accp(pp, kq, tg, par): return vR + (pp % 2)*32 + ((kq*2 + tg)*2 + par)*4
pend_ = []
for pp in range(6):
    phase[f'P{pp}'] = len(frags)
    for ks in range(14):
        qi = 14*pp + ks
        if qi % 4 == 0:
            r_ = qi // 4
            blk_, rp = r_ // 7, r_ % 7
            R_ = 32*(8192 if blk_ < 2 else 3584); sb = sW1T + (0 if blk_ < 2 else 2); cb_ = 256 if blk_ == 1 else 0
            so_ = f"+s{sb+1}, {cb_}" if rp == 3 else f"+s{sb}, {(4*rp*R_ if rp < 3 else (4*rp-14)*R_ + 128) + cb_}"
            ch = ring_round(f"wq_{r_}", sWQ, vWQ, so_) if r_ < 14 else ring_round(f"w1_{r_-14}", sW1, vW1D, so_)
        pend_.append((ks, qi, ch))
        if OPT['PCH'] and ks % 2 == 0: continue
        for u2 in range(2):
            for u in (2*u2, 2*u2+1):
                for ks_, qi_, ch_ in pend_:
                    mf = (lambda A, pp=pp, ks=ks_, u=u: [mfma(v(accp(pp, u >> 1, tg, u & 1), 4), A, v(xn(ks, tg), 4), "0" if ks == 0 else v(accp(pp, u >> 1, tg, u & 1), 4)) for tg in range(2)])
                    add_frag('tr', 4, vTR + u, chunks[ch_]['lo'] + (qi_ % 4)*4096, mf, ch_)
        pend_ = []
def qf(kq, tg): return aQ + (kq*2 + tg)*4
def Sreg(st, tg, kt): return vS + (st % 2)*16 + tg*8 + kt*4
def Preg(st, tg): return vP + (st % 2)*8 + tg*4
def Oreg(d, tg): return vO + (((d >> 1)*2 + tg)*2 + (d & 1))*4
def G2(st):
    phase[f'G2_{st}'] = len(frags)
    ch = ring_round(f"K_{st}", sKK, vKD, str(st*16384))
    order = [(kt, ks) for kt in range(2) for ks in range(8)]
    for kt, ks in order:
        def mf(A, kt=kt, ks=ks):
            r = []
            for tg in range(2):
                c = v(Sreg(st, tg, kt), 4)
                if ks == 0: c = "0" if st < 1 else v(vC + 4*tg, 4)
                r.append(mfma(v(Sreg(st, tg, kt), 4), A, a(qf(ks, tg), 4), c))
            return r
        add_frag('b128', 2, vRA + (ks & 1), chunks[ch]['lo'] + (ks >> 1)*4096 + kt*2048, mf, ch)
def G3(st):
    phase[f'G3_{st}'] = len(frags)
    ch = ring_round(f"V_{st}", sVV, vVD, str(st*16384))
    for d in range(16):
        mf = (lambda A, d=d: [mfma(v(Oreg(d, tg), 4), A, v(Preg(st, tg), 4), "0" if st == 0 else v(Oreg(d, tg), 4)) for tg in range(2)])
        add_frag('tr', 4, vTR + (d & 3), chunks[ch]['lo'] + (d >> 2)*4096, mf, ch)
G2(0)
for st in range(15):
    G2(st + 1); G3(st)
G3(15)
phase['AEND'] = len(frags)
def acc4(p, u, tg): return hole(8 + ((u >> 1)*2 + tg)*2 + (u & 1))
def Opk(ks, tg): return vO + (ks*2 + tg)*8
def hole(i): return vO + 8*i + 4
def hreg(kk, t4):
    i = kk*4 + t4
    if i < 32: return a(aH + 4*i, 4)
    if i < 48: return a(aQ + 4*(i-32), 4)
    return v(hole(i-48), 4)
def facc(u, t4):
    return vA4 + 4*(u*4 + t4)
vTP = 108
G6P = OPT['G6P']
assert len(G6P) == 14
kk = 0
def g6step(kk):
    phase[f'G6_{kk}'] = len(frags)
    ch = ring_round(f"w2_{kk}", sW2, vW2D, str(kk*32*896), private=True)
    for u in range(4):
        mf = (lambda A, kk=kk, u=u: [mfma(v(facc(u, t4), 4), A, hreg(kk, t4), "0" if kk == 0 else v(facc(u, t4), 4)) for t4 in range(4)])
        add_frag('tr', 4, vTP + u, chunks[ch]['lo'], mf, ch)
while kk < OPT['NO']: g6step(kk); kk += 1
phase['G4'] = len(frags)
for p in range(7):
    phase[f'G4p{p}'] = len(frags)
    chs = [ring_round(f"wo_{p}_{h_}", sWO, vWOD, f"s{sQT+p}" if h_ == 0 else f"+s{sQT+p}, {4*32*896}") for h_ in range(2)]
    for u in range(4):
        for ks in range(8):
            ch = chs[ks // 4]
            mf = (lambda A, p=p, ks=ks, u=u: [mfma(v(acc4(p, u, tg), 4), A, v(Opk(ks, tg), 4), "0" if ks == 0 else v(acc4(p, u, tg), 4)) for tg in range(2)])
            add_frag('tr', 4, vTR + u, chunks[ch]['lo'] + (ks % 4)*4096, mf, ch)
    if p == 6: phase['G6'] = len(frags); NPOST = 14 - kk
    while kk < 14 and int(G6P[kk]) == p:
        g6step(kk)
        kk += 1
assert kk == 14
NF = len(frags)
phase['END'] = NF

MF = [fr['mf'](a(aF + 4*(f % NA), 4)) for f, fr in enumerate(frags)]
if OPT['CHAIN']:
    for f0 in range(0, NF, 4):
        nm_ = chunks[frags[f0]['chunk']]['name']
        if nm_.startswith('K_') or nm_.startswith('wo_') or (OPT['PCH'] and nm_[:2] in ('wq', 'w1')):
            fl = [MF[f0+k_][tg] for tg in range(2) for k_ in range(4)]
            for k_ in range(4): MF[f0+k_] = fl[2*k_:2*k_+2]
G0 = [0]
for f in range(NF): G0.append(G0[-1] + len(MF[f]))
NG = G0[-1]
def gap(f): return G0[max(0, min(f, NF))]
pre = [[] for _ in range(NG)]
rds = [[] for _ in range(NG)]
ext = [[] for _ in range(NG)]
blk = {}
for g in range(NF):
    if g + D < NF:
        r = frag_reads(g + D)
        n = len(MF[g])
        rds[G0[g]].append(r[0])
        if len(r) > 1: rds[G0[g] + n//2].append(r[1])
def cost(i):
    if i.cls in ('ds',): return 8
    if i.cls == 'vmem': return 24 if 'store' in i.op and 'x4' in i.op else 8
    if i.cls in ('trans', 'perm'): return 8
    if i.cls == 'label': return 0
    return 4
def gtime(items):
    t = 4
    for i in items:
        if i.cls in VALU_LIKE: t = max(t, 8)
        t += cost(i)
    return t
def fits(gp, i): return gtime(pre[gp] + rds[gp] + ext[gp] + [i]) <= 16
def place(seq, g0, g1=None):
    seq = [I(s) if isinstance(s, str) else s for s in seq]
    g1 = NG if g1 is None else min(g1, NG)
    gp = g0; n = len(seq)
    for k, ins in enumerate(seq):
        bound = max(min(g0 + ((k + 1) * (g1 - g0)) // n - 1, g1 - 1), gp)
        best = None
        for q in range(gp, bound + 1):
            if fits(q, ins): best = q; break
        if best is None:
            best = min(range(gp, bound + 1), key=lambda q: (gtime(pre[q] + rds[q] + ext[q] + [ins]), q))
        ext[best].append(ins)
        gp = best
    return gp
def spread(seq, g0, g1):
    n = len(seq); cur = g0
    for k, ins in enumerate(seq):
        lo = max(g0 + (k*(g1-g0))//n, cur); hi = max(g0 + ((k+1)*(g1-g0))//n, lo+1)
        cur = place([ins], lo, hi)
    return cur

shared = [c for c in range(len(chunks)) if not chunks[c]['private']]
def is_bar(k_):
    if k_ == 0: return True
    if k_ < 21: return (k_ - 1) % OPT['BARP'] == 0
    if k_ < 53: return (k_ - 21) % OPT['BARA'] == 0
    return (k_ - 53) % OPT['BAR4'] == 0
bar_frags = [chunks[c]['first'] for k_, c in enumerate(shared) if is_bar(k_)]
bar_frags += [phase['G6'], phase['G6'] + D + 1]
bar_frags = sorted(set(bar_frags))
bar_gap = []
first_need = None
for bi, f0 in enumerate(bar_frags):
    f1 = bar_frags[bi+1] if bi + 1 < len(bar_frags) else NF
    need = [('c', c) for c in shared if f0 <= chunks[c]['first'] < f1]
    if f0 == 0: first_need = need; continue
    gp = gap(f0 - D); bar_gap.append(gp)
    if need: ext[gp-1].append(mk_wait_vm(need))
    pre[gp].append(I("s_barrier"))
for c in range(len(chunks)):
    if chunks[c]['private']:
        ext[gap(chunks[c]['first'] - D) - 1].append(mk_wait_vm([('c', c)]))
for g in range(4, NF, 4):
    ext[gap(g) - 1].append(mk_wait_lg([('f', f) for f in range(g, min(g+4, NF))]))
def earliest_gap(c):
    e = -1
    C = chunks[c]
    for c2 in range(c):
        B = chunks[c2]
        if B['hi'] <= C['lo'] or C['hi'] <= B['lo']: continue
        if B['private']: e = max(e, gap(B['last'] + 1))
        else: e = max(e, [gp for gp in bar_gap if gp >= gap(B['last'] + 1)][0] + 1)
    return e
pro_dma = []
cur = OPT['DSTART']
for c in range(len(chunks)):
    e = earliest_gap(c)
    if e < 0 and c < OPT['NPRO']:
        pro_dma.append(chunks[c]['dma']); continue
    if chunks[c]['name'].startswith('w2_') and int(chunks[c]['name'][3:]) >= OPT['W2PRE']: e = max(e, gap(phase['G6']) + OPT['W2G'])
    g0 = max(e, cur)
    span = OPT['SPAN']
    if g0 > e + 8: span = OPT['SPAN2']
    if g0 >= gap(phase['G6'] - D): span = OPT['W2S']
    seq = list(chunks[c]['dma'])
    if chunks[c]['name'] == 'wo_0_0': seq = [I(f"v_accvgpr_read_b32 v{vWOD+i}, a{aST+i}") for i in range(4)] + seq; wo_first_gap = g0
    if chunks[c]['name'] == 'w2_0': seq = [I(f"v_accvgpr_read_b32 v{vW2D+i}, a{aST+4+i}") for i in range(4)] + seq
    cur = spread(seq, g0, g0 + span)
    need_gap = gap(chunks[c]['first'] - D)
    if not chunks[c]['private']: need_gap = max(gp for gp in bar_gap if gp <= need_gap)
    if OPT['LOG']: print(chunks[c]['name'], g0, cur, need_gap, 'lead', need_gap - cur, file=sys.stderr)
    assert cur < need_gap - 1, (chunks[c]['name'], cur)

seq = []
for p in range(7):
    seq += [f"s_add_u32 s{sT2}, s{sROT}, {p}", f"s_sub_u32 s{sT3}, s{sT2}, 7", f"s_min_u32 s{sT2}, s{sT2}, s{sT3}",
            f"s_lshl_b32 s{sQT+p}, s{sT2}, 7", f"s_lshl_b32 s{sT2}, s{sT2}, 16", f"s_add_u32 s{sQT+7+p}, s{sSST}, s{sT2}",
            f"s_add_u32 s{sSST}, s{sSST}, s{sSTEP}"]
spread(seq, 6, 100)
assert gap(phase['G3_8']) < wo_first_gap
assert OPT['BAR'] == 2
place([f"v_add_u32 v{vTP+i}, s{sWB}, v{vTR+i}" for i in range(12)], gap(phase['G3_12']), gap(phase['G3_14']))

def hconv(pp):
    s = []
    for kq in range(2):
        for tg in range(2):
            b = accp(pp, kq, tg, 0)
            if not OPT['PKR']:
                for r in range(8): s.append(f"v_max_f32 v{b+r}, 0, v{b+r}")
            for r in range(4): s.append(f"v_cvt_pk_bf16_f32 v{b+r}, v{b+2*r}, v{b+2*r+1}")
            if OPT['PKR']:
                for r in range(4): s.append(f"v_pk_max_i16 v{b+r}, v{b+r}, 0")
            if not OPT['NOHST']:
                s.append(I(f"buffer_store_dwordx4 {v(b,4)}, v{vHS}, {srd(sWS)}, s{sHST} offen offset:{kq*2048 + tg*1024} {OPT['HST']}", tag='hst'))
    if pp == 4: s.append(f"s_add_u32 s{sHST}, s{sHST}, 4096")
    return s
place(hconv(4), gap(phase['P5']) + 4, gap(phase['G2_0']) - 4)
def qconv(pp):
    s = []
    for kq in range(2):
        for tg in range(2):
            b = accp(pp, kq, tg, 0)
            s += [f"v_cvt_pk_bf16_f32 v{b+r}, v{b+2*r}, v{b+2*r+1}" for r in range(4)]
            s += [f"v_permlane32_swap_b32 v{b}, v{b+2}", f"v_permlane32_swap_b32 v{b+1}, v{b+3}",
                  f"v_permlane16_swap_b32 v{b}, v{b+2}", f"v_permlane16_swap_b32 v{b+1}, v{b+3}"]
            s += [f"v_accvgpr_write_b32 a{qf(2*pp+kq, tg)+r}, v{b+r}" for r in range(4)]
    return s
for pp in range(4):
    g0 = gap(phase[f'P{pp+1}'])
    place(qconv(pp), g0 + 4, g0 + 2*56 - 4)

def allred(r, t, op):
    return [f"v_mov_b32 v{t}, v{r}", f"v_permlane32_swap_b32 v{r}, v{t}", f"{op} v{r}, v{r}, v{t}",
            f"v_mov_b32 v{t}, v{r}", f"v_permlane16_swap_b32 v{r}, v{t}", f"{op} v{r}, v{r}, v{t}"]
def interleave(*seqs):
    out = []
    for k in range(max(len(s) for s in seqs)):
        for s in seqs:
            if k < len(s): out.append(s[k])
    return out
def svals(st): return [Sreg(st, tg, kt) + r for tg in range(2) for kt in range(2) for r in range(4)]
g0 = gap(phase['G2_0'])
seqs = []
for tg in range(2):
    b = Sreg(0, tg, 0); m = vM + 2*tg; t = m + 1
    s = [f"v_max3_f32 v{m}, v{b}, v{b+1}, v{b+2}", f"v_max_f32 v{m}, v{m}, v{b+3}"] + allred(m, t, "v_max_f32")
    s += [f"v_sub_f32 v{vC+4*tg+r}, 0, v{m}" for r in range(4)]
    seqs.append(s)
seq = interleave(*seqs) + [f"v_mov_b32 v{vLS}, 0", f"v_mov_b32 v{vLS+1}, 0"]
gm = place(seq, g0 + 19, g0 + 31)
def sm_seq(st, sub):
    s = []
    vals = svals(st)
    for k_, r in enumerate(vals):
        tg = k_ // 8
        if sub: s.append(f"v_add_f32 v{r}, v{r}, v{vC+4*tg}")
        s.append(f"v_exp_f32 v{r}, v{r}")
        if k_ % 2 == 1 and k_ >= 3:
            kk = k_ - 3
            s.append(f"v_cvt_pk_bf16_f32 v{Preg(st, kk//8) + (kk % 8)//2}, v{vals[kk]}, v{vals[kk+1]}")
    s.append(f"v_cvt_pk_bf16_f32 v{Preg(st, 1) + 3}, v{vals[14]}, v{vals[15]}")
    return s
def add_seq(st):
    vals = svals(st)
    return interleave([f"v_add_f32 v{vLS}, v{vLS}, v{r}" for r in vals[:8]], [f"v_add_f32 v{vLS+1}, v{vLS+1}, v{r}" for r in vals[8:]])
for st in range(16):
    g3 = gap(phase[f'G3_{st}'])
    if st == 0:
        ge = place(sm_seq(st, True), gap(phase['G2_1']) + 3, g3 - 1)
    elif st < 15:
        gs = gap(phase[f'G2_{st+1}'] - D)
        ge = place(sm_seq(st, False), gs, g3 - 2)
    else:
        ge = place(sm_seq(st, False), gap(phase['G3_14']) + 4, g3 - 2)
    lim = gap(phase[f'G2_{st+2}']) - 2 if st + 2 < 16 else g3 + 14
    ga = place(add_seq(st), ge, lim)
seqs = []
for tg in range(2):
    l = vLS + tg; t = vM + tg
    seqs.append(allred(l, t, "v_add_f32") + [f"v_rcp_f32 v{vRC+tg}, v{l}"])
seq = interleave(*seqs) + [f"v_add_f32 v{vM}, v{vLS}, v{vLS+1}", f"s_mov_b32 s{sT0}, {hx(f2u(2.0**24 if not OPT['FORCEFB'] else 0.5))}", f"v_cmp_ngt_f32 vcc, s{sT0}, v{vM}"]
place(seq, ga, gap(phase['AEND']) - 1)

hc = hconv(5)
n3 = 3*len(hc)//4
place(hc[:n3], gap(phase['G2_0']) + 3, gap(phase['G2_0']) + 19)
gend = place(hc[n3:], gap(phase['G3_0']), gap(phase['G3_0']) + 16)
assert accp(5, 1, 1, 0) >= Oreg(10, 0)
hb = [gp for gp in bar_gap if gp > gend + OPT['HSIG']][0]
ext[hb-1].append(mk_wait_vm(['hst']))
sig = [I(f"s_cmp_lg_u32 s{sW}, 0"), I("s_cbranch_scc1 L_nosig"), I(f"s_lshl_b32 s{sT0}, s{sT}, 4"), I(f"v_mov_b32 v{vPOLL}, s{sT0}"),
       I("s_mov_b64 exec, 1"), I(f"global_atomic_add v{vPOLL}, v{vONE}, {DBGP} sc1"), I("s_mov_b64 exec, -1"), I("L_nosig:")]
sig[5].cls = 'misc'
ext[hb+1] += sig

def dump(regs_list):
    r = [I("s_nop 15"), I(f"s_lshl_b32 s{sT0}, s{sT}, 4"), I(f"s_add_u32 s{sT0}, s{sT0}, s{sHD}"),
         I(f"s_lshl_b32 s{sT0}, s{sT0}, 2"), I(f"s_add_u32 s{sT0}, s{sT0}, s{sW}"),
         I(f"s_mul_i32 s{sT0}, s{sT0}, {32*1024}"), I(f"s_add_u32 s{sT0}, s{sT0}, {hx(WS_DBG)}")]
    for reg in regs_list:
        r.append(I(f"buffer_store_dwordx4 {reg}, v{vL16}, {srd(sWS)}, s{sT0} offen"))
        r.append(I(f"s_add_u32 s{sT0}, s{sT0}, 1024"))
    r.append(I("s_nop 3"))
    return r
def ocvt(ks): return [f"v_cvt_pk_bf16_f32 v{Opk(ks, tg)+r}, v{Opk(ks, tg)+2*r}, v{Opk(ks, tg)+2*r+1}" for tg in range(2) for r in range(4)]
if OPT['ONORM']:
    def ocvt(ks):
        s = []
        for tg in range(2):
            o = Opk(ks, tg)
            s += [f"v_pk_mul_f32 {v(o+2*r,2)}, {v(o+2*r,2)}, {v(vRC,2)} op_sel:[0,{tg}] op_sel_hi:[1,{tg}]" for r in range(4)]
        for tg in range(2):
            o = Opk(ks, tg)
            s += [f"v_cvt_pk_bf16_f32 v{o+r}, v{o+2*r}, v{o+2*r+1}" for r in range(4)]
        return s
NEARLY = 0 if OPT['ONORM'] else OPT['OEARLY']
g15 = gap(phase['G3_15'])
for ks in range(NEARLY): place(ocvt(ks), g15 + 4*ks + 8, gap(phase['G4']) - 1)
assert NEARLY == 0
b = stamp_ins('attn_done') + [I("s_cbranch_vccnz L_exact"), I("L_exact_ret:")]
NX = OPT['NX'] if OPT['NO'] else 8
for ks in range(NX): b += [I(t_) for t_ in ocvt(ks)]
blk[phase['AEND']] = b
if OPT['NO']:
    seq = []
    for ks in range(NX, 8):
        for tg in range(2):
            o = Opk(ks, tg)
            seq += [f"v_mul_f32 v{o+r}, v{vRC+tg}, v{o+r}" for r in range(8)] + [f"v_cvt_pk_bf16_f32 v{o+r}, v{o+2*r}, v{o+2*r+1}" for r in range(4)]
    ONSEQ = seq
    b = []
if OPT['DUMP'] == 'o': b += dump([v(Opk(ks, tg), 4) for ks in range(8) for tg in range(2)])
if OPT['DUMP'] == 'q': b += dump([a(qf(ks, tg), 4) for ks in range(8) for tg in range(2)])
b += stamp_ins('G4')
blk[phase['G4']] = b

def sconv(p, u):
    s = []
    for tg in range(2):
        b = acc4(p, u, tg); d = acc4(p, u & ~1, tg) + 2*(u & 1)
        if not OPT['ONORM']: s += [f"v_mul_f32 v{b+r}, v{vRC + tg}, v{b+r}" for r in range(4)]
        s += [f"v_cvt_pk_bf16_f32 v{d}, v{b}, v{b+1}", f"v_cvt_pk_bf16_f32 v{d+1}, v{b+2}, v{b+3}"]
        if u & 1:
            if (u, tg) != (1, 0): s.append(f"s_add_u32 s{sQT+7+p}, s{sQT+7+p}, 16384")
            if not OPT['NOSST']: s.append(I(f"buffer_store_dwordx4 {v(acc4(p, u & ~1, tg),4)}, v{vL16}, {srd(sWS)}, s{sQT+7+p} offen {OPT['SST']}", tag=('sst', p)))
    return s
g4 = gap(phase['G4'])
for p in range(7):
    for u in range(4):
        g0 = gap(phase[f'G4p{p}']) + 16*(u+1)
        if u == 3 and p < 6: gl = place(sconv(p, u), g0 + 3, g0 + 28)
        else: gl = place(sconv(p, u), g0 + 3, g0 + (19 if (p, u) != (6, 3) else 10))
last_store_gap = gl
hs = OPT['HSTEP']
gp0 = gap(phase[f'G3_{hs-1}']) - 30
place([f"s_lshl_b32 s{sT0}, s{sTC}, 4", f"v_mov_b32 v{vPOLL}, s{sT0}", I(f"global_load_dword v{vPOLL}, v{vPOLL}, {DBGP} sc1", tag='pollh'),
       f"v_add_u32 v{vHS}, s{sCOOB}, v{vL16}"], gp0, gp0 + 24)
gp1 = gap(phase[f'G3_{hs}'])
ext[gp1] += [mk_wait_vm(['pollh']), I(f"v_cmp_gt_u32 vcc, 16, v{vPOLL}"), I("s_cbranch_vccnz L_spinh"), I("L_spinh_ret:")]
def hloads(k0, k1):
    s = []
    for kk in range(k0, k1, 2):
        for rl in range(2):
            s.append(f"s_add_u32 s{sT0}, s{sHLD}, {rl*56*2048 + kk*2048}")
            for k2 in range(2):
                for tg in range(2):
                    s.append(I(f"buffer_load_dwordx4 {hreg(kk+k2, rl*2+tg)}, v{vHS}, {srd(sWS)}, s{sT0} offen offset:{k2*2048 + tg*1024} {OPT['HLD']}", tag='hld'))
    return s
if not OPT['NOHLD']:
    spread(hloads(0, 8), gap(phase[f"G3_{hs+OPT['HPF']}"]) + 2, gap(phase['G3_15']) - OPT['HEND'])
    if OPT['H2X']:
        hl = [I(s_) if isinstance(s_, str) else s_ for s_ in hloads(8, 8 + OPT['H2X'])]
        b_ = blk[phase['AEND']]
        k0 = [k_ for k_, i_ in enumerate(b_) if i_.text == 'L_exact_ret:'][0]
        for k_, i_ in enumerate(hl): b_.insert(k0 + 1 + k_*OPT['H2S'], i_)
    spread(hloads(8 + OPT['H2X'], 14), g4 + OPT['H2A'], g4 + OPT['H2B'])
if OPT['NO']: place(ONSEQ, gap(phase['AEND']) + 1, gap(phase['G4']) - 1)
g6 = gap(phase['G6'])
vFV = 120
def greg(rl, sl):
    i = sl*2 + rl
    if NPOST <= 10: i = (i + 16) % 32
    if i < 16: return v(Opk(0, 0) + 8*i, 4)
    return a(aH + (i - 16)*4, 4)
assert OPT['CA'] > 0 or (NPOST <= 10 and g6 + OPT['CA'] > gap(phase['G6_3'] + 4))
def gloads(s0, s1, va):
    s = []
    for sq in range(s0, s1, 2):
        for rl in range(2):
            s.append(I(f"s_add_u32 s{sT1}, s{sSG}, {rl*2*16384 + sq*1024}"))
            for sl in range(sq, sq+2):
                if not OPT['NOG']: s.append(I(f"buffer_load_dwordx4 {greg(rl, sl)}, v{va}, {srd(sWS)}, s{sT1} offen offset:{(sl-sq)*1024} {OPT['GLD']}", tag=('g', rl, sl)))
    return s
F0 = OPT['F0']
sPL = 32
sMISS = 18
F1 = OPT['F1']
place([f"v_mov_b32 v{vFV}, 1", f"v_mov_b32 v{vFV+1}, 3", f"v_mov_b32 v{vFV+4}, 7", f"v_and_b32 v{vFV+3}, 15, v0"], g4 + 100, g4 + 200)
def signal(k, n): return [mk_wait_vm([('sst', p) for p in range(n)]), I(f"buffer_store_byte v{vFV+k}, v{vZ}, {srd(sWS)}, s{sFLG} offen sc1", tag='flag')]
spoll = I(f"s_buffer_load_dwordx4 s[{sPL}:{sPL+3}], {srd(sWS)}, s{sFLP} glc"); spoll.cls = 'misc'
VPOLL = f"buffer_load_ubyte v{vPOLL}, v{vFV+3}, {srd(sWS)}, s{sFLP} offen sc1"
ext[gap(phase[f'G4p{F0-1}']) + 64 + OPT['SA']] += signal(0, F0) + stamp_ins('sigA')
if F1 < 7: ext[gap(phase[f'G4p{F1-1}']) + 64 + OPT['SB']] += signal(1, F1) + stamp_ins('sigB')
ext[g6 + OPT['PA']] += [spoll]
sg = g6 + OPT['SC']
ext[sg] += signal(4, 7) + stamp_ins('st_done') + [I(f"s_cmp_ge_u32 s{sPC}, 14"), I("s_cbranch_scc1 " + ("L_fin" if OPT['STAMP'] == 3 else "L_end"))]
assert sg > bar_gap[-1] and sg > last_store_gap
ext[g6 + OPT['CA']] += stamp_ins('pre_c0') + [I(t_) for t_ in (
    "s_waitcnt lgkmcnt(0)", f"s_and_b64 s[{sPL}:{sPL+1}], s[{sPL}:{sPL+1}], s[{sPL+2}:{sPL+3}]", f"s_and_b32 s{sPL}, s{sPL}, s{sPL+1}",
    f"s_and_b32 s{sPL}, s{sPL}, 0x01010101", f"s_cmp_eq_u32 s{sPL}, 0x01010101", f"s_cselect_b32 s{sMISS}, 0, {hx(OOB)}",
    f"v_add_u32 v{vFV+2}, s{sMISS}, v{vHS}")] + stamp_ins('chk0')
spread(gloads(0, 2*F0, vFV+2), g6 + OPT['CA'] + 1, g6 + OPT['LA'])
ext[g6 + OPT['PB']] += [I(VPOLL, tag='poll')]
NSB = 2*F1 if F1 < 7 else OPT['NSB']
assert OPT['CE'] > max(OPT['PB'], OPT['LA'])
ext[g6 + OPT['CE']] += stamp_ins('pre_c1') + [mk_wait_vm(['poll'])] + [I(t_) for t_ in (f"v_cmp_gt_u32 vcc, 3, v{vPOLL}", "s_cbranch_vccnz L_spin1", "L_spin1_ret:",
    f"s_cmp_lg_u32 s{sMISS}, 0", "s_cbranch_scc1 L_redo", "L_redo_ret:")] + stamp_ins('chk1')
glB = gloads(2*F0, NSB, vHS)
kp = len(glB) - 3*OPT['PCB']
if F1 < 7: glB[kp:kp] = [I(VPOLL, tag='poll2')]
spread(glB, g6 + OPT['CE'] + 1, NG - 4)
NYB = 2*(NSB - 2*F0) + (1 if F1 < 7 else 0)

vXF = 32
vAD = 125
nch = len(chunks)
XK = [c_ for c_ in range(nch - 10, nch) if chunks[c_]['private'] and chunks[c_]['lo'] >= 4*SLOT][0]
XS = chunks[XK]['lo']
gx_ = max(gap(chunks[XK]['last'] + 1), cur + 1, g6 + OPT['XG'])
gx2 = place([f"v_accvgpr_read_b32 v{vAD}, a{aST+8}", f"s_add_u32 m0, s{sWB}, {XS}", f"s_movk_i32 s{sSV0}, {8*896 - 1024}", f"s_movk_i32 s{sSV1}, {8*896}",
       I(f"buffer_load_dwordx4 v{vAD}, {srd(sX)}, 0 offen lds", tag='xf'), I(f"buffer_load_dwordx4 v{vAD}, {srd(sX)}, s{sSV0} offen offset:1024 lds", tag='xf'),
       f"v_and_b32 v{vT3}, 15, v0", f"v_lshlrev_b32 v{vT3}, 7, v{vT3}", f"v_lshrrev_b32 v{vT4}, 4, v0", f"v_lshl_add_u32 v{vT3}, v{vT4}, 3, v{vT3}",
       f"s_add_u32 s{sSV2}, s{sWB}, {XS}", f"v_add_u32 v{vT3}, s{sSV2}, v{vT3}", f"v_lshrrev_b32 v{vT4}, 3, v0", f"v_lshl_add_u32 v{vT4}, v{vT4}, 4, v{vL16}", f"v_add_u32 v{vT4}, s{sSV2}, v{vT4}",
       f"v_and_b32 v{vPF}, 15, v0", f"v_lshl_add_u32 v{vPF}, v{vPF}, 4, v{vT3}"], gx_, gx_ + 30)
vSEL = 108
def vsa(u): return hole(8 + u)
vXU = 8
seq = [f"v_mov_b32 v{vSEL}, 0", f"v_mov_b32 v{vSEL+1}, 0", f"v_mov_b32 v{vSEL+4}, 0", f"v_mov_b32 v{vSEL+5}, 0", f"v_mov_b32 v{vT0}, 0x3f80", f"v_mov_b32 v{vSEL+2}, 0x3f800000",
       f"s_or_b64 s[16:17], s[{sM1}:{sM1+1}], s[{sM3}:{sM3+1}]", f"v_cndmask_b32 v{vT0}, v{vT0}, v{vSEL+2}, s[16:17]", f"v_cndmask_b32 v{vT0}, 0, v{vT0}, s[{sMD}:{sMD+1}]",
       f"v_cndmask_b32 v{vSEL+2}, v{vT0}, 0, s[{sM2}:{sM2+1}]", f"v_cndmask_b32 v{vSEL+3}, 0, v{vT0}, s[{sM2}:{sM2+1}]",
       f"v_add_u32 v{vT1}, s{sWB}, v{vL16}", f"s_lshl_b32 s{sT2}, s{sW}, 14", f"v_add_u32 v{vT2}, s{sT2}, v{vL16}",
       f"v_mov_b32 v24, {hx(f2u(-16.0))}", f"v_mov_b32 v25, {hx(f2u(1.0/CSCALE))}"]
place(seq, NG - 31, NG - 12)
seq = [mk_wait_vm(['xf'])] + [I(f"ds_read_b64 {v(vXF + 2*u, 2)}, v{vT3} offset:{u*32}", tag='xr2') for u in range(4)]
place(seq, NG - 44, NG - 34)
seq = [mk_wait_lg(['xr2'])]
for u in range(4):
    xr = vXF + u*2; b2 = vXU + 4*u
    seq += [f"v_lshlrev_b32 v{b2}, 16, v{xr}", f"v_and_b32 v{b2+1}, 0xffff0000, v{xr}", f"v_lshlrev_b32 v{b2+2}, 16, v{xr+1}", f"v_and_b32 v{b2+3}, 0xffff0000, v{xr+1}"]
place(seq, NG - 26, NG)
assert gx2 < g6 + OPT['CE']
HX = OPT['HX']; NHG = 16 // HX; NT = 32 // HX
npf = [0]
def pf_addr(nlines, lines_per_row, pitch, k, dst, idx_sgpr, nshare):
    per = nlines // nshare
    s = [f"s_lshl_b32 s{sSO2}, s{sW}, 6", f"s_add_u32 s{sSO2}, s{sSO2}, {k*256}", f"v_add_u32 v{dst}, s{sSO2}, v0",
         f"v_min_u32 v{dst}, {per-1}, v{dst}", f"s_mul_i32 s{sSO2}, s{idx_sgpr}, {per}", f"v_add_u32 v{dst}, s{sSO2}, v{dst}"]
    if lines_per_row is None:
        s += [f"v_lshlrev_b32 v{dst}, 7, v{dst}"]
    else:
        sh = lg(lines_per_row)
        s += [f"v_and_b32 v{vPF}, {lines_per_row-1}, v{dst}", f"v_lshrrev_b32 v{dst}, {sh}, v{dst}",
              f"v_mul_u32_u24 v{dst}, {pitch}, v{dst}", f"v_lshl_add_u32 v{dst}, v{vPF}, 7, v{dst}"]
    return s
def pf_load(srd_b, dst):
    npf[0] += 1
    return I(f"buffer_load_dword a{aST + 10 + npf[0] % 6}, v{dst}, {srd(srd_b)}, 0 offen {OPT['PPF']}", tag='pf')
def pf_seq(srd_b, nlines, lines_per_row, pitch, idx, nshare):
    s = []
    for k in range((nlines // nshare + 255) // 256):
        s += pf_addr(nlines, lines_per_row, pitch, k, vPF+1, idx, nshare) + [pf_load(srd_b, vPF+1)]
    return s
vLQ = 26
def pf_pieces(srd_b, per, unit, idx, extra_base=None, pol='', rot=False):
    setup = [f"s_mul_i32 s{sSO2}, s{idx}, {per}", f"v_add_u32 v{vPF+1}, s{sSO2}, v{vLQ}", f"v_mul_u32_u24 v{vPF+1}, {unit}, v{vPF+1}"]
    if extra_base is not None: setup.append(f"v_add_u32 v{vPF+1}, s{extra_base}, v{vPF+1}")
    pcs = []
    for k in range((per + 63)//64):
        npf[0] += 1
        n_ = (per + 63)//64
        if rot and k == 0: so_ = [f"s_lshr_b32 s{sSO2}, s{sTC}, 1", f"s_sub_u32 s{sCNT}, s{sSO2}, {n_}", f"s_min_u32 s{sSO2}, s{sSO2}, s{sCNT}", f"s_mul_i32 s{sSO2}, s{sSO2}, {64*unit}"]
        elif rot: so_ = [f"s_add_u32 s{sSO2}, s{sSO2}, {64*unit}", f"s_sub_u32 s{sCNT}, s{sSO2}, {n_*64*unit}", f"s_min_u32 s{sSO2}, s{sSO2}, s{sCNT}"]
        else: so_ = [f"s_mov_b32 s{sSO2}, {k*64*unit}"]
        pcs.append(so_ + [I(f"buffer_load_dword a{aST + 9 + npf[0] % 7}, v{vPF+1}, {srd(srd_b)}, s{sSO2} offen {pol}", tag='pf')])
    return setup, pcs
def pf_run(streams, g0, g1):
    items = []
    for st_ in streams:
        su, pcs = st_
        for k, p_ in enumerate(pcs): items.append((su if k == 0 else []) + p_)
    n = len(items)
    for k, it_ in enumerate(items):
        lo = g0 + (k*(g1-g0))//n
        place(it_, lo, lo + 24)
if OPT['PF']:
    place([f"v_lshrrev_b32 v{vLQ}, 2, v0", f"s_lshl_b32 s{sSO2}, s{sW}, 4", f"v_add_u32 v{vLQ}, s{sSO2}, v{vLQ}"], 100, 130)
    if not OPT['BIG'] & 2 and not OPT['NOPF2'] & 4: pf_run([pf_pieces(sKK, 2048//(2*NT), 128, sKVI, pol=OPT['PPF']), pf_pieces(sVV, 2048//(2*NT), 128, sKVI, pol=OPT['PPF'])], OPT['PFG'], gap(phase['P4']))
    if not OPT['NOPF2'] & 1: pf_run([pf_pieces(sWO, 1792//16, 128, sT) if OPT['WOM'] else pf_pieces(sWO, 1792//NT, 128, sTL), (lambda z: (z[0], z[1][:OPT['W2N']]))(pf_pieces(sW2, 448, 896, sW2I, rot=OPT['W2ROT']))], gap(phase[f"G3_{OPT['PF0']}"]), gp1 if OPT['PF1'] == 0 else gap(phase[f"G3_{OPT['PF1']}"]))
    vPF += -20
    sSO2 = sT3
    if not OPT['NOPF2'] & 2: pf_run([pf_pieces(sWS, 256, 128, sCC, sHPF, 'sc1')], gp1 + 2, gap(phase[f"G3_{hs+OPT['HPF']}"]) - 20)
    vPF += 20
    sSO2 = 93

if OPT['STLB'] == 2:
    for k_, (b_, o_) in enumerate(((sKK, '0'), (sVV, '0'), (sW2, '0'), (sWO, '0'), (sWS, f's{sHST}'), (sWS, f's{sQT+7}'), (sOUT, '0'))):
        i_ = I(f"s_buffer_load_dword s1, {srd(b_)}, {o_}"); i_.cls = 'misc'; i_.dst = []
        place([i_], OPT['ST0'] + k_*OPT['STS'], OPT['ST0'] + k_*OPT['STS'] + 8)
if OPT['CPF'] and not OPT['STAMP']:
    gc = gap(phase[OPT['CPF']])
    place([f"s_lshr_b32 s{sT2}, s0, 3", f"s_lshl_b32 s{sT2}, s{sT2}, 10", f"s_add_u32 s{sT2}, s{sT2}, 0x8000", f"v_and_b32 v{vT2}, 7, v0", f"v_lshlrev_b32 v{vT2}, 7, v{vT2}",
           f"v_add_u32 v{vT2}, s{sT2}, v{vT2}", I(f"global_load_dword a{aST+9}, v{vT2}, s[26:27]", tag='pf')], gc, gc + 30)
if OPT['TLB']:
    gt = gap(phase[OPT['TLBP']])
    seq = []
    if OPT['TLB'] & 1: seq += [f"v_accvgpr_read_b32 v{vT1}, a{aST+8}", f"v_readfirstlane_b32 s{sT2}, v{vT1}", "s_nop 0", "s_nop 0", I(f"buffer_load_dword a{aST+9}, v{vZ}, {srd(sOUT)}, s{sT2} offen", tag='pf')]
    if OPT['TLB'] & 2: seq += [I(f"buffer_load_dword a{aST+9}, v{vZ}, {srd(sWS)}, s{sQT+7} offen sc1", tag='pf')]
    if OPT['TLB'] & 4: seq += [I(f"buffer_load_dword a{aST+9}, v{vZ}, {srd(sWS)}, s{sSG} offen sc1", tag='pf'), ]
    spread(seq, gt, gt + 40)
    if OPT['TLB'] & 8: place([I(f"buffer_load_dword a{aST+9}, v{vZ}, {srd(sWS)}, s{sHST} offen sc1", tag='pf')], gap(phase['P3']), gap(phase['P3']) + 20)
if OPT['FINE'] == 1:
    for p in range(1, 7): blk[phase[f'G4p{p}']] = stamp_ins(f'G4p{p}')
if OPT['FINE'] == 2:
    for nm in ['P1', 'P3', 'P5'] + [f'G2_{s_}' for s_ in range(1, 16) if s_ % 4] + ['G3_14', 'G3_15']:
        blk[phase[nm]] = stamp_ins(nm)
if OPT['STAMP'] or OPT['WAITAT']:
    for nm in ('P0', 'P2', 'P4', 'G2_0', 'G2_4', 'G2_8', 'G2_12', 'G6'):
        blk.setdefault(phase[nm], [])
        blk[phase[nm]] = stamp_ins(nm) + blk[phase[nm]]

E(f"""
s_cmp_ge_u32 s2, 256
s_cbranch_scc1 L_end
s_load_dwordx16 s[4:19], s[0:1], 0
s_load_dwordx4 s[20:23], s[0:1], 64
s_load_dwordx2 s[24:25], s[0:1], 80
""")
if OPT['STAMP'] or OPT['WAITAT']: E("s_memtime s[98:99]\ns_memrealtime s[100:101]")
E(f"""
v_lshrrev_b32 v{vT0}, 6, v0
v_and_b32 v0, 63, v0
s_and_b32 s{sT0}, s2, 7
v_readfirstlane_b32 s{sW}, v{vT0}
s_lshr_b32 s{sT1}, s2, 3
s_and_b32 s{sT2}, s{sT0}, {NHG-1}
s_lshl_b32 s{sT2}, s{sT2}, {lg(HX)}
s_and_b32 s{sHD}, s{sT1}, {HX-1}
s_add_u32 s{sHD}, s{sHD}, s{sT2}
s_lshr_b32 s{sT2}, s{sT0}, {lg(NHG)}
s_lshl_b32 s{sT2}, s{sT2}, {lg(NT)}
s_lshr_b32 s{sTL}, s{sT1}, {lg(HX)}
s_add_u32 s{sT}, s{sTL}, s{sT2}
s_lshl_b32 s{sWB}, s{sW}, 12
""")
CODE_LINES = 512
E(f"s_lshr_b32 s{sCNT}, s2, 3")
for t_ in pf_addr(CODE_LINES, None, 0, 0, vR+80, sCNT, 32): E(t_)
E(f"""
s_getpc_b64 s[26:27]
L_pc:
global_load_dword v{vR+90}, v{vR+80}, s[26:27]
""")
E(f"""
v_lshrrev_b32 v{vT3}, 3, v0
v_and_b32 v{vT4}, 7, v0
v_lshrrev_b32 v{vT1}, 1, v{vT3}
v_xor_b32 v{vT1}, v{vT1}, v{vT4}
v_lshlrev_b32 v{vT1}, 4, v{vT1}
v_xor_b32 v{vT2}, 64, v{vT1}
s_lshl_b32 s{sT1}, s{sT}, 2
s_add_u32 s{sT1}, s{sT1}, s{sW}
s_mul_i32 s{sT1}, s{sT1}, {32*896}
v_mul_u32_u24 v{vT0}, 896, v{vT3}
v_add_u32 v{vT0}, s{sT1}, v{vT0}
v_add_u32 v{vXD}, v{vT0}, v{vT1}
v_add_u32 v{vXD+1}, v{vT0}, v{vT2}
v_add_u32 v{vXD+2}, {2*6144}, v{vXD}
v_add_u32 v{vXD+3}, {3*6144}, v{vXD+1}
v_add_u32 v{vXD+1}, 6144, v{vXD+1}
s_mov_b32 m0, s{sWB}
s_mov_b32 s{sSO}, 0
v_min_u32 v{vR+82}, 13, v0
v_subrev_u32 v{vR+83}, 7, v{vR+82}
v_min_u32 v{vR+83}, v{vR+83}, v{vR+82}
v_sub_u32 v{vR+82}, v{vR+82}, v{vR+83}
v_lshlrev_b32 v{vR+82}, 11, v{vR+82}
v_lshl_add_u32 v{vR+82}, v{vR+83}, 7, v{vR+82}
s_mul_i32 s{sT2}, s{sHD}, 896
s_add_u32 s{sT2}, s{sT2}, s{sT1}
s_mov_b32 s{sX+2}, {2048*896}
s_mov_b32 s{sX+3}, 0x00020000
s_waitcnt lgkmcnt(0)
s_mov_b32 s{sX}, s4
s_mov_b32 s{sX+1}, s5
""")
PST('karg')
def mk_srd(b, plo, off_sgpr, size):
    if off_sgpr is None:
        E(f"s_mov_b32 s{b}, s{plo}\ns_mov_b32 s{b+1}, s{plo+1}")
    else:
        E(f"s_add_u32 s{b}, s{plo}, s{off_sgpr}\ns_addc_u32 s{b+1}, s{plo+1}, 0")
    E(f"s_mov_b32 s{b+2}, {size}\ns_mov_b32 s{b+3}, 0x00020000")
xdma = []
for tg in range(2):
    for q in range(7):
        if q or tg:
            xdma += [I(f"s_add_u32 m0, s{sWB}, {q*SLOT}"), I(f"s_movk_i32 s{sSO}, {q*128}")]
        for rb in (2*tg, 2*tg+1):
            xdma.append(I(f"buffer_load_dwordx4 v{vXD+rb}, {srd(sX)}, s{sSO} offen offset:{rb*1024} {OPT['PX']} lds", tag=('x', tg, q)))
def xissue(n):
    while n > 0 and xdma:
        i_ = xdma.pop(0); P.ins.append(i_)
        if i_.cls == 'vmem': n -= 1
if OPT['XPF']: E(f"buffer_load_dword a{aST+9}, v{vR+82}, {srd(sX)}, s{sT2} offen", tag='pf')
xissue(OPT['XFIRST'])
if OPT['STLB'] >= 3:
    lst = [("s[10:11]", 0), ("s[10:11]", 400*8192), ("s[16:17]", 0), ("s[24:25]", WS_F + 0x8000)]
    if OPT['STLB'] >= 4: lst += [("s[6:7]", 'kv'), ("s[8:9]", 'kv'), ("s[18:19]", 0), ("s[20:21]", 0), ("s[12:13]", 0), ("s[12:13]", 4000*896)]
    for p_, o_ in lst:
        if o_ == 'kv': E(f"s_lshl_b32 s{sCNT}, s{sHD}, 19")
        else: E(f"s_mov_b32 s{sCNT}, {hx(o_)}")
        i_ = I(f"s_load_dword s1, {p_}, s{sCNT}"); i_.dst = []; P.ins.append(i_)
E(f"s_lshl_b32 s{sT0}, s{sHD}, 9\ns_sub_u32 s{sT2}, {448*8192}, s{sT0}")
mk_srd(sWQ, 10, sT0, f"s{sT2}")
wqpf = [I(t_) if isinstance(t_, str) else t_ for t_ in pf_seq(sWQ, 448*OPT['WQP'], OPT['WQP'], 8192, sTL, NT)] if OPT['PF'] and OPT['WQP'] else []
if OPT['WQE'] == 1: P.ins += wqpf; wqpf = []
else: P.ins += wqpf[:-1]; wqpf = wqpf[-1:]
xissue(OPT['XSEC'])
PST('x_first')
mk_srd(sOUT, 20, None, 2048*896)
E(f"""
s_lshl_b32 s{sT0}, s{sW}, 7
v_lshlrev_b32 v{vKD}, 9, v{vT3}
v_add_u32 v{vVD}, s{sT0}, v{vKD}
v_add_u32 v{vKD}, v{vVD}, v{vT1}
v_add_u32 v{vKD+1}, v{vVD}, v{vT2}
v_add_u32 v{vKD+2}, {2*3072}, v{vKD}
v_add_u32 v{vKD+3}, {3*3072}, v{vKD+1}
v_add_u32 v{vKD+1}, 3072, v{vKD+1}
v_and_b32 v{vT0}, 6, v{vT3}
v_xor_b32 v{vT0}, v{vT0}, v{vT4}
v_lshlrev_b32 v{vT0}, 4, v{vT0}
v_add_u32 v{vVD}, v{vVD}, v{vT0}
""")
for rb in range(1, 4): E(f"v_add_u32 v{vVD+rb}, {3072*rb}, v{vVD}")
E(f"""
v_and_b32 v{vT1}, 4, v{vT3}
v_add_u32 v{vT1}, v{vT1}, v{vT3}
v_lshl_add_u32 v{vWQ}, v{vT1}, 13, v{vT0}
v_mul_u32_u24 v{vT1}, 3584, v{vT1}
v_add_u32 v{vW1D}, v{vT1}, v{vT0}
""")
for rb in range(1, 4):
    rr = 16*(rb & 1) + 4*(rb >> 1)
    E(f"v_add_u32 v{vW1D+rb}, {rr*3584 - 1024*rb}, v{vW1D}\nv_add_u32 v{vWQ+rb}, {rr*8192 - 1024*rb}, v{vWQ}")
E(f"""
s_lshl_b32 s{sT1}, s{sHD}, 8
s_sub_u32 s{sT2}, {448*3584}, s{sT1}
s_cmp_lt_u32 s{sHD}, 14
s_cselect_b32 s{sT2}, s{sT2}, 0
s_cselect_b32 s{sT1}, s{sT1}, 0
""")
mk_srd(sW1, 16, sT1, f"s{sT2}")
E(f"s_lshr_b32 s{sT0}, s{sHD}, 1\ns_lshl_b32 s{sT0}, s{sT0}, 20\ns_add_u32 s{sT0}, s{sT0}, {1536*512}")
mk_srd(sKK, 6, sT0, 262144)
mk_srd(sVV, 8, sT0, 262144)
E(f"s_mul_i32 s{sT0}, s{sHD}, {256*896}")
mk_srd(sWO, 12, sT0, 256*896)
E(f"""
s_lshr_b32 s{sPC}, s2, 3
s_and_b32 s{sPC}, s{sPC}, 15
s_cmp_ge_u32 s{sPC}, 7
s_cselect_b32 s{sT3}, 1, 0
s_mul_i32 s{sT1}, s{sT3}, 7
s_sub_u32 s{sT1}, s{sPC}, s{sT1}
s_lshl_b32 s{sT0}, s{sT1}, 7
s_sub_u32 s{sT2}, {1792*896}, s{sT0}
s_cmp_lt_u32 s{sPC}, 14
s_cselect_b32 s{sT2}, s{sT2}, 0
s_cselect_b32 s{sT0}, s{sT0}, 0
""")
mk_srd(sW2, 18, sT0, f"s{sT2}")
if OPT['WSOFF']:
    E(f"s_mov_b32 s{sT0}, {hx(OPT['WSOFF'] << 20)}")
    mk_srd(sWS, 24, sT0, WS_SIZE)
else:
    mk_srd(sWS, 24, None, WS_SIZE)
for k_, R_ in ((0, 32*8192), (2, 32*3584)):
    E(f"""
s_mul_i32 s{sW1T+k_}, s{sW}, {R_}
s_cmp_lt_u32 s{sW}, 2
s_mov_b32 s{sT2}, {hx(128 - 2*R_)}
s_cselect_b32 s{sT0}, {12*R_}, s{sT2}
s_add_u32 s{sW1T+k_+1}, s{sW1T+k_}, s{sT0}
""")
E(f"""
v_mul_u32_u24 v{vT1}, 896, v{vT3}
v_add_u32 v{vT1}, v{vT1}, v{vT0}
s_mul_i32 s{sT0}, s{sW}, {32*896}
s_mul_i32 s{sT2}, s{sW}, {448*896}
""")
for rb in range(4):
    if rb: E(f"v_add_u32 v{vT1}, 6144, v{vT1}")
    E(f"v_add_u32 v{vT2}, s{sT0}, v{vT1}\nv_accvgpr_write_b32 a{aST+rb}, v{vT2}\nv_add_u32 v{vT2}, s{sT2}, v{vT1}\nv_accvgpr_write_b32 a{aST+4+rb}, v{vT2}")
E(f"""
v_lshlrev_b32 v{vL16}, 4, v0
v_lshrrev_b32 v{vT0}, 2, v0
v_lshlrev_b32 v{vT1}, 7, v{vT0}
v_and_b32 v{vT2}, 3, v0
v_lshl_add_u32 v{vT1}, v{vT2}, 3, v{vT1}
v_bfe_u32 v{vT3}, v0, 3, 2
""")
for u in range(4):
    E(f"""
v_xor_b32 v{vT4}, {u}, v{vT3}
v_lshl_add_u32 v{vTR+u}, v{vT4}, 5, v{vT1}
v_add_u32 v{vTR+4+u}, 0x10000, v{vTR+u}
v_add_u32 v{vTR+8+u}, 0x20000, v{vTR+u}
""")
E(f"""
v_and_b32 v{vT0}, 15, v0
v_lshrrev_b32 v{vT1}, 1, v{vT0}
v_lshrrev_b32 v{vT2}, 4, v0
v_xor_b32 v{vT1}, v{vT1}, v{vT2}
v_lshlrev_b32 v{vT4}, 7, v{vT0}
v_lshl_add_u32 v{vRA}, v{vT1}, 4, v{vT4}
v_xor_b32 v{vRA+1}, 64, v{vRA}
v_add_u32 v{vRA+2}, 0x10000, v{vRA}
v_add_u32 v{vRA+3}, 0x10000, v{vRA+1}
v_add_u32 v{vRA+4}, 0x20000, v{vRA}
v_add_u32 v{vRA+5}, 0x20000, v{vRA+1}
""")
vXR = vR + 72
for i in range(4): E(f"v_add_u32 v{vXR+i}, s{sWB}, v{vRA+i}")
E(f"""
s_and_b32 s{sTC}, s2, 7
s_lshl_b32 s{sTC}, s{sTC}, 1
s_lshr_b32 s{sT0}, s2, 7
s_add_u32 s{sTC}, s{sTC}, s{sT0}
s_lshl_b32 s{sW2I}, s{sT0}, 1
s_add_u32 s{sW2I}, s{sW2I}, s{sT3}
s_lshl_b32 s{sT2}, s{sTC}, 1
s_add_u32 s{sT2}, s{sT2}, s{sT3}
s_lshl_b32 s{sT0}, s{sT2}, 2
s_add_u32 s{sT0}, s{sT0}, s{sW}
s_mul_i32 s{sT0}, s{sT0}, {16*896}
s_lshl_b32 s{sSG}, s{sT1}, 7
s_add_u32 s{sT0}, s{sT0}, s{sSG}
v_lshrrev_b32 v{vT0}, 3, v0
v_mul_u32_u24 v{vT0}, 896, v{vT0}
v_and_b32 v{vT2}, 7, v0
v_lshl_add_u32 v{vT0}, v{vT2}, 4, v{vT0}
v_add_u32 v{vT0}, s{sT0}, v{vT0}
v_accvgpr_write_b32 a{aST+8}, v{vT0}
s_lshl_b32 s{sT2}, s{sT2}, 1
s_lshr_b32 s{sT0}, s{sW}, 1
s_add_u32 s{sSG}, s{sT2}, s{sT0}
s_mul_i32 s{sSG}, s{sSG}, 7
s_add_u32 s{sSG}, s{sSG}, s{sT1}
s_lshl_b32 s{sSG}, s{sSG}, 2
s_lshl_b32 s{sT0}, s{sT0}, 4
s_lshl_b32 s{sFLP}, s{sT2}, 7
s_add_u32 s{sFLP}, s{sFLP}, s{sT0}
s_add_u32 s{sFLP}, s{sFLP}, {hx(WS_F)}
s_and_b32 s{sT0}, s{sW}, 1
s_add_u32 s{sSG}, s{sSG}, s{sT0}
s_lshl_b32 s{sSG}, s{sSG}, 14
s_mul_i32 s{sHLD}, s{sT2}, {56*2048}
s_add_u32 s{sHLD}, s{sHLD}, {hx(WS_H)}
s_cmp_lt_u32 s{sPC}, 14
s_cselect_b32 s{sCOOB}, 0, {hx(OOB)}
s_add_u32 s{sHPF}, s{sHLD}, s{sCOOB}
s_mul_i32 s{sT0}, s{sW}, {14*2048}
s_add_u32 s{sHLD}, s{sHLD}, s{sT0}
s_mov_b32 s0, s2
s_mov_b32 s{sCC}, s{sT1}
s_lshl_b32 s{sKVI}, s{sTL}, 1
s_and_b32 s{sT0}, s{sHD}, 1
s_add_u32 s{sKVI}, s{sKVI}, s{sT0}
s_lshl_b32 s{sT1}, s{sT}, 2
s_add_u32 s{sT1}, s{sT1}, s{sW}
s_lshr_b32 s{sFLG}, s{sT1}, 1
s_lshl_b32 s{sFLG}, s{sFLG}, 8
s_and_b32 s{sT2}, s{sT1}, 1
s_lshl_b32 s{sT2}, s{sT2}, 4
s_add_u32 s{sFLG}, s{sFLG}, s{sT2}
s_add_u32 s{sFLG}, s{sFLG}, s{sHD}
s_add_u32 s{sFLG}, s{sFLG}, {hx(WS_F)}
s_mul_i32 s{sHST}, s{sT1}, {56*2048}
s_min_u32 s{sT2}, s{sHD}, 13
s_lshl_b32 s{sT2}, s{sT2}, 13
s_add_u32 s{sHST}, s{sHST}, s{sT2}
s_add_u32 s{sHST}, s{sHST}, {hx(WS_H)}
s_cmp_lt_u32 s{sHD}, 14
s_cselect_b32 s{sT2}, 0, {hx(OOB)}
v_add_u32 v{vHS}, s{sT2}, v{vL16}
v_mov_b32 v{vZ}, 0
v_mov_b32 v{vONE}, 1
""")
PST('addr_done')
xissue(14 - OPT['XFIRST'] - OPT['XSEC'])
if OPT['WQE'] == 0: P.ins += wqpf; wqpf = []
PST('x_issued')
PRODUCER = len(P.ins)
E(f"""
s_lshl_b32 s{sSST}, s{sT}, 2
s_add_u32 s{sSST}, s{sSST}, s{sW}
s_mul_i32 s{sSST}, s{sSST}, {28*16384}
s_cmp_ge_u32 s{sHD}, 7
s_cselect_b32 s{sT3}, 1, 0
s_sub_u32 s{sROT}, s{sHD}, 7
s_min_u32 s{sROT}, s{sROT}, s{sHD}
s_sub_u32 s{sCNT}, s{sROT}, 7
s_min_u32 s{sROT}, s{sROT}, s{sCNT}
s_cmp_lt_u32 s{sHD}, 14
s_cselect_b32 s{sT3}, s{sT3}, s{sHD}
s_cselect_b32 s{sSTEP}, 2048, 0
s_lshl_b32 s{sT3}, s{sT3}, 10
s_add_u32 s{sSST}, s{sSST}, s{sT3}
""")
prod_ins = []
if OPT['STLB'] == 1:
    for b_, o_ in ((sKK, '0'), (sVV, '0'), (sWQ, '0'), (sWQ, f'{hx(400*8192)}')[:2], (sWO, '0'), (sW1, '0'), (sW2, '0'), (sOUT, '0'),
                   (sWS, f's{sSST}'), (sWS, f's{sHST}'), (sWS, hx(WS_F + 0x8000))):
        if o_.startswith('0x'): E(f"s_mov_b32 s{sCNT}, {o_}"); o_ = f's{sCNT}'
        i_ = I(f"s_buffer_load_dword s1, {srd(b_)}, {o_}"); i_.cls = 'smem'; i_.dst = []; P.ins.append(i_)
for s_, val in ((sM1, 0x2222222222222222), (sM2, 0xCCCCCCCCCCCCCCCC), (sM3, 0x8888888888888888), (sMD, 0xF0000F0000F0000F)):
    E(f"s_mov_b32 s{s_}, {hx(val)}\ns_mov_b32 s{s_+1}, {hx(val >> 32)}")

vONES = vR + 16
vD1 = vR + 20
vD2 = vR + 28
vLA = vR + 36
for i in range(4): E(f"v_mov_b32 v{vONES+i}, 0x3f803f80")
def rbf(r):
    return [f"v_cvt_pk_bf16_f32 v{r}, v{r}, v{r}", f"v_lshlrev_b32 v{r}, 16, v{r}"]
E(f"s_mov_b32 s{sT0}, {hx(f2u(1.0/448.0))}\ns_mov_b32 s{sT1}, {hx(f2u(1e-5))}\ns_mov_b32 s{sT2}, {hx(f2u(CSCALE))}")
if OPT['PADS']:
    E(f"""
s_mov_b64 exec, 0
s_cmp_eq_u32 s{sW}, 0
s_cbranch_scc1 L_pg0
s_cmp_eq_u32 s{sW}, 1
s_cbranch_scc1 L_pg1
s_cmp_eq_u32 s{sW}, 2
s_cbranch_scc1 L_pg2
s_branch L_pg3
.p2align 12
L_main:
s_mov_b64 exec, -1
""")
STAMP('pro_done')
vNT = vR + 44
NPRO = OPT['NPRO']
big = []
if OPT['BIG'] & 1:
    t_ = pf_seq(sWQ, 448*2, 2, 8192, sTL, NT); t_[-1] = I(t_[-1].text.replace('offen', 'offen offset:256'), tag='pf'); big += t_
    big += pf_seq(sW1, 448*2, 2, 3584, sTL, NT)
if OPT['BIG'] & 2:
    t_ = pf_seq(sKK, 2048, None, 0, sKVI, 2*NT); big += t_ + [pf_load(sVV, vPF+1)]
big = [I(t_) if isinstance(t_, str) else t_ for t_ in big]
assert len(pro_dma) == NPRO
L0N = OPT['L0N']
late = {0: [i_ for d_ in pro_dma[:L0N] for i_ in d_],
        1: [i_ for d_ in pro_dma[3:] for i_ in d_]
           + big + [I(f"buffer_store_byte v{vZ}, v{vZ}, {srd(sWS)}, s{sFLG} offen sc1", tag='hst')]}
def xreads(tg, q):
    r = [mk_wait_vm([('x', tg, q)])]
    for ks in (2*q, 2*q+1):
        ad = q*SLOT + tg*2048
        r.append(I(f"ds_read_b128 {v(xn(ks,tg),4)}, v{vXR + (ad >> 16)*2 + (ks & 1)} offset:{ad & 0xffff}", tag=('xr', tg, q)))
    return r
def stats(tg, q, fill):
    P.wait_lgkm_tag([('xr', tg, q)])
    for ks in (2*q, 2*q+1):
        X = v(xn(ks, tg), 4)
        for m_ in (mfma(v(vD1+4*tg, 4), v(vONES, 4), X, "0" if ks == 0 else v(vD1+4*tg, 4)), mfma(v(vD2+4*tg, 4), X, X, "0" if ks == 0 else v(vD2+4*tg, 4))):
            E(m_)
            t_ = 0
            while fill and t_ + cost(fill[0]) <= 12:
                t_ += cost(fill[0]); P.ins.append(fill.pop(0))
def scalars(tg):
    d = vD2 + 4*tg; m = vD1 + 4*tg; t = m + 1; L = vLA + 4*tg
    s = [f"v_cndmask_b32 v{d}, v{d}, v{d+1}, s[{sM1}:{sM1+1}]",
         f"v_cndmask_b32 v{d+2}, v{d+2}, v{d+3}, s[{sM3}:{sM3+1}]",
         f"v_mul_f32 v{m}, s{sT0}, v{m}",
         f"v_cndmask_b32 v{d}, v{d}, v{d+2}, s[{sM2}:{sM2+1}]",
         f"v_cndmask_b32 v{d}, 0, v{d}, s[{sMD}:{sMD+1}]"]
    s += allred(d, t, "v_add_f32")
    s += [f"v_mul_f32 v{d}, s{sT0}, v{d}",
          f"v_fma_f32 v{d}, -v{m}, v{m}, v{d}",
          f"v_max_f32 v{d}, 0, v{d}"]
    s += interleave(rbf(m), rbf(d))
    s += [f"v_add_f32 v{d}, s{sT1}, v{d}"] + rbf(d) + [f"v_sqrt_f32 v{d}, v{d}"] + rbf(d)
    s += [f"v_rcp_f32 v{d}, v{d}", f"v_mul_f32 v{d}, s{sT2}, v{d}",
          f"v_cvt_pk_bf16_f32 v{d}, v{d}, v{d}",
          f"v_and_b32 v{L}, 0xffff, v{d}", f"v_lshlrev_b32 v{L+1}, 16, v{d}",
          f"v_mul_f32 v{L+2}, -v{m}, v{L+1}"]
    for t_ in s: E(t_)
def normalize(tg, side):
    L = vLA + 4*tg; k = 0; pend = []
    for ks in range(14):
        for r in range(4):
            x_ = xn(ks, tg) + r
            t = vNT + 2*(k % 8); k += 1
            E(f"v_dot2_f32_bf16 v{t}, v{x_}, v{L}, v{L+2}\nv_dot2_f32_bf16 v{t+1}, v{x_}, v{L+1}, v{L+2}")
            pend.append(f"v_cvt_pk_bf16_f32 v{x_}, v{t}, v{t+1}")
            if len(pend) > 2: E(pend.pop(0))
            P.ins += side.get(k, [])
    for t_ in pend: E(t_)
for q in range(7):
    P.ins += xreads(0, q)
    if q in (0, 3, 6): PST(f'w0{q}')
    xissue(2)
    if q > 1: stats(0, q-2, [])
fill = wqpf + late[0]
stats(0, 5, fill); stats(0, 6, fill)
P.ins += fill
STAMP('x0_arrived')
scalars(0)
X1 = OPT['X1']
normalize(0, {X1 + 4*q: xreads(1, q) for q in range(7)})
PST('ln0_done')
fill = [i_ for d_ in pro_dma[L0N:3] for i_ in d_]
for q in range(7):
    if q == 1: P.wait_lgkm_tag([('xr', 1, 6)]); fill += late[1]
    stats(1, q, fill)
P.ins += fill
STAMP('x1_arrived')
scalars(1)
fr_ = [i_ for f in range(D) for i_ in frag_reads(f)]
side = {OPT['BARK']: [mk_wait_vm(first_need), I("s_barrier")]}
for k_, i_ in enumerate(fr_): side.setdefault(min(OPT['BARK'] + 1 + k_, 56), []).append(i_)
normalize(1, side)
if OPT['DUMP'] == 'xn':
    P.ins += dump([v(xn(ks, tg), 4) for ks in range(14) for tg in range(2)])

P.ins.append(mk_wait_lg([('f', f) for f in range(4)]))
est = 0
for g in range(NF):
    if g in blk: P.ins += blk[g]
    for h, m_ in enumerate(MF[g]):
        gp = G0[g] + h
        P.ins.append(I(m_))
        P.ins += pre[gp] + rds[gp] + ext[gp]
        est += max(16, gtime(pre[gp] + rds[gp] + ext[gp]))
if OPT['LOG']:
    ph = sorted((f_, n_) for n_, f_ in phase.items())
    for (f0_, n_), (f1_, _) in zip(ph, ph[1:]):
        e_ = sum(max(16, gtime(pre[q_] + rds[q_] + ext[q_])) for q_ in range(gap(f0_), gap(f1_)))
        print(f"  phase {n_}: est {e_} ideal {16*(gap(f1_)-gap(f0_))}", file=sys.stderr)
print("estimated main-stream cycles", est, "ideal", 16*NG, file=sys.stderr)

STAMP('g6_done')
def fs(u, w_): return facc(u, w_)
def smf(rl, sl):
    r = []
    for tg in range(2):
        d = v(vsa(rl*2+tg), 4)
        r.append(mfma(d, v(vSEL + (2 if tg == 0 else 0), 4), greg(rl, sl), "0" if sl == 0 else d))
    return r
msA = [m_ for sq in range(0, 2*F0, 2) for rl in range(2) for sl in (sq, sq+1) for m_ in smf(rl, sl)]
E(f"s_waitcnt vmcnt({NYB})")
for u in range(4):
    for t4 in range(4):
        if msA: E(msA.pop(0))
        E(f"ds_write_b128 v{vT1}, {v(facc(u, t4), 4)} offset:{t4*SLOT + u*1024}")
STAMP('pre_c2')
if F1 < 7:
    P.wait_vm_tag(['poll2'])
    E(f"v_cmp_gt_u32 vcc, 7, v{vPOLL}\ns_cbranch_vccnz L_spin2\nL_spin2_ret:")
STAMP('chk2')
glC = gloads(NSB, 16, vHS)
n2 = OPT['N2']
P.ins += glC[:n2]; rest = glC[n2:]
E("s_waitcnt lgkmcnt(0)\ns_barrier")
doneB = [(rl, sl) for sq in range(2*F0, NSB, 2) for rl in range(2) for sl in (sq, sq+1)]
lateB = doneB[len(doneB) - 2*OPT['PCB']:]; doneB = doneB[:len(doneB) - 2*OPT['PCB']]
msA += [m_ for rl, sl in doneB for m_ in smf(rl, sl)]
for u in range(4):
    for w_ in range(4):
        E(f"ds_read_b128 {v(fs(u, w_), 4)}, v{vT2} offset:{w_*4096 + u*1024}")
        if msA: E(msA.pop(0))
for m_ in msA: E(m_)
val = []
for u in range(4):
    b0, b1, b2, b3 = (fs(u, w_) for w_ in range(4))
    for r in (0, 2): val += [f"v_pk_add_f32 {v(b0+r,2)}, {v(b0+r,2)}, {v(b1+r,2)}", f"v_pk_add_f32 {v(b2+r,2)}, {v(b2+r,2)}, {v(b3+r,2)}"]
    for r in (0, 2): val.append(f"v_pk_add_f32 {v(b0+r,2)}, {v(b0+r,2)}, {v(b2+r,2)}")
    for r in (0, 2): val.append(f"v_pk_mul_f32 {v(b1+r,2)}, {v(b0+r,2)}, v[24:25] op_sel:[0,0] op_sel_hi:[1,0]")
    for r in range(4): val.append(f"v_exp_f32 v{b1+r}, v{b1+r}")
    for r in (0, 2): val.append(f"v_pk_mul_f32 {v(b0+r,2)}, {v(b0+r,2)}, v[24:25] op_sel:[0,1] op_sel_hi:[1,1]")
    for r in (0, 2): val.append(f"v_pk_add_f32 {v(b1+r,2)}, {v(b1+r,2)}, 1.0 op_sel_hi:[1,0]")
    for r in range(4): val.append(f"v_rcp_f32 v{b1+r}, v{b1+r}")
for u in range(4):
    b0, b1 = fs(u, 0), fs(u, 1)
    for r in (0, 2): val.append(f"v_pk_mul_f32 {v(b0+r,2)}, {v(b0+r,2)}, {v(b1+r,2)}")
step = max(1, 60 // max(1, len(rest)))
for k_, t_ in enumerate(val):
    E(t_)
    if rest and k_ % step == step - 1: P.ins.append(rest.pop(0))
P.ins += rest
STAMP('g_done')
for rl, sl in lateB + [(rl, sl) for sq in range(NSB, 16, 2) for rl in range(2) for sl in (sq, sq+1)]:
    for m_ in smf(rl, sl): E(m_)
for u in range(4):
    b0 = fs(u, 0)
    for r in (0, 2): E(f"v_pk_fma_f32 {v(b0+r,2)}, {v(vsa(u)+r,2)}, {v(b0+r,2)}, {v(vXU+u*4+r,2)}")
    E(f"v_cvt_pk_bf16_f32 v{b0}, v{b0}, v{b0+1}\nv_cvt_pk_bf16_f32 v{b0+1}, v{b0+2}, v{b0+3}")
    E(f"ds_write_b64 v{vPF}, {v(b0,2)} offset:{u*32}")
E(f"""
ds_read_b128 {v(vXF,4)}, v{vT4}
ds_read_b128 {v(vXF+4,4)}, v{vT4} offset:1152
buffer_store_dwordx4 {v(vXF,4)}, v{vAD}, {srd(sOUT)}, 0 offen {OPT['OST']}
buffer_store_dwordx4 {v(vXF+4,4)}, v{vAD}, {srd(sOUT)}, s{sSV1} offen {OPT['OST']}
""")
if OPT['WAITAT']: STAMP('end')
if OPT['STAMP']:
    STAMP('end')
    E(f"""
L_fin:
s_memrealtime s[{sSTMP}:{sSTMP+1}]
s_waitcnt lgkmcnt(0)
v_writelane_b32 v{vSTAMP}, s{sMISS}, 59
v_writelane_b32 v{vSTAMP}, s98, 60
v_writelane_b32 v{vSTAMP}, s100, 61
v_writelane_b32 v{vSTAMP}, s{sSTMP}, 62
s_lshl_b32 s{sT0}, s0, 2
s_add_u32 s{sT0}, s{sT0}, s{sW}
s_lshl_b32 s{sT0}, s{sT0}, 8
s_add_u32 s{sT0}, s{sT0}, {hx(WS_DBG)}
v_lshlrev_b32 v{vT0}, 2, v0
buffer_store_dword v{vSTAMP}, v{vT0}, {srd(sWS)}, s{sT0} offen
""")
E("L_end:\ns_endpgm")
main_ins, log, stats_ = resolve(P.ins)
print("main", stats_, file=sys.stderr)
if OPT['LOG']:
    for l in log: print("  ", l, file=sys.stderr)

Q = Prog(); E = Q.emit
SPIN_MAX = 1 << 17
def spin(label, load, want, cmp):
    E(f"""
{label}:
s_mov_b32 s{sCNT}, {SPIN_MAX}
{label}_loop:
s_sleep 1
{load}
s_waitcnt vmcnt(0)
v_cmp_{cmp}_u32 vcc, {want}, v{vPOLL}
s_sub_u32 s{sCNT}, s{sCNT}, 1
s_cmp_eq_u32 s{sCNT}, 0
s_cbranch_scc1 {label}_ret
s_cbranch_vccnz {label}_loop
s_branch {label}_ret
""")
spin("L_spinh", f"s_lshl_b32 s{sT0}, s{sTC}, 4\nv_mov_b32 v{vT0}, s{sT0}\nglobal_load_dword v{vPOLL}, v{vT0}, {DBGP} sc1", 16, "gt")
spin("L_spin1", VPOLL, 3, "gt")
if F1 < 7: spin("L_spin2", VPOLL, 7, "gt")
E("L_redo:\ns_waitcnt vmcnt(0)")
Q.ins += gloads(0, 2*F0, vHS)
E("s_branch L_redo_ret")
MISC = [c['lo'] for c in chunks if c['name'] == 'V_15'][0]
fK, fS, fP, fA, fV, fR, fM = 44, 76, 108, 116, 117, 121, 102
E(f"""
L_exact:
s_waitcnt vmcnt(0) lgkmcnt(0)
s_nop 15
s_mov_b32 s{sSV0}, m0
v_and_b32 v{fA}, 15, v0
v_lshlrev_b32 v{fA}, 9, v{fA}
v_and_b32 v{fM}, 48, v0
v_add_u32 v{fA}, v{fA}, v{fM}
s_lshl_b32 s{sSV1}, s{sW}, 7
s_add_u32 s{sSV2}, s{sWB}, {MISC}
""")
for i in range(4):
    E(f"v_subrev_u32 v{fV+i}, s{sSV1}, v{vVD+i}\nv_add_u32 v{fR+i}, s{sSV2}, v{vTR+i}")
E(f"v_mov_b32 v{fM}, 0xff800000\nv_mov_b32 v{fM+1}, 0xff800000\ns_mov_b32 s{sSV1}, 0")
def ktile(kt, cinit):
    for ks in range(8):
        E(f"buffer_load_dwordx4 {v(fK+4*ks,4)}, v{fA}, {srd(sKK)}, s{sSV1} offen offset:{ks*64}")
    E(f"s_add_u32 s{sSV1}, s{sSV1}, 8192\ns_waitcnt vmcnt(0)")
    for ks in range(8):
        for tg in range(2):
            d = v(fS + tg*8 + kt*4, 4)
            E(mfma(d, v(fK+4*ks, 4), a(qf(ks, tg), 4), (cinit(tg) if ks == 0 else d)))
    E("s_nop 15")
E("L_exact_p1:")
ktile(0, lambda tg: "0")
for tg in range(2):
    b = fS + tg*8
    E(f"v_max3_f32 v{fM+tg}, v{fM+tg}, v{b}, v{b+1}\nv_max3_f32 v{fM+tg}, v{fM+tg}, v{b+2}, v{b+3}")
E(f"s_cmp_lt_u32 s{sSV1}, 262144\ns_cbranch_scc1 L_exact_p1")
for tg in range(2):
    for t_ in allred(fM+tg, fM+2, "v_max_f32"): E(t_)
    for r in range(4): E(f"v_sub_f32 v{vC+4*tg+r}, 0, v{fM+tg}")
for r in range(128): E(f"v_mov_b32 v{vO+r}, 0")
E(f"v_mov_b32 v{vLS}, 0\nv_mov_b32 v{vLS+1}, 0\ns_mov_b32 s{sSV1}, 0\ns_add_u32 m0, s{sWB}, {MISC}\ns_nop 3")
E("L_exact_p2:")
E(f"s_mov_b32 s{sSV2}, s{sSV1}")
ktile(0, lambda tg: v(vC+4*tg, 4))
ktile(1, lambda tg: v(vC+4*tg, 4))
for r in range(16): E(f"v_exp_f32 v{fS+r}, v{fS+r}")
for r in range(16): E(f"v_add_f32 v{vLS + r//8}, v{vLS + r//8}, v{fS+r}")
for r in range(8): E(f"v_cvt_pk_bf16_f32 v{fP+r}, v{fS+2*r}, v{fS+2*r+1}")
for cb in range(4):
    for rb in range(4):
        E(f"buffer_load_dwordx4 v{fV+rb}, {srd(sVV)}, s{sSV2} offen offset:{rb*1024} lds")
    E(f"s_add_u32 s{sSV2}, s{sSV2}, 128\ns_waitcnt vmcnt(0)")
    for u in range(4):
        E(f"ds_read_b64_tr_b16 {v(fK+4*u,2)}, v{fR+u}\nds_read_b64_tr_b16 {v(fK+4*u+2,2)}, v{fR+u} offset:2048")
    E("s_waitcnt lgkmcnt(0)")
    for u in range(4):
        for tg in range(2):
            d = v(Oreg(cb*4+u, tg), 4)
            E(mfma(d, v(fK+4*u, 4), v(fP+4*tg, 4), d))
    E("s_nop 7")
E(f"s_cmp_lt_u32 s{sSV1}, 262144\ns_cbranch_scc1 L_exact_p2")
for tg in range(2):
    for t_ in allred(vLS+tg, fM+2, "v_add_f32"): E(t_)
    E(f"v_rcp_f32 v{vRC+tg}, v{vLS+tg}")
E("s_nop 15")
for i in range(12): E(f"v_add_u32 v{vTP+i}, s{sWB}, v{vTR+i}")
E(f"s_mov_b32 m0, s{sSV0}\ns_nop 15\ns_branch L_exact_ret")
sub_ins, log2, stats2 = resolve(Q.ins)

def sizes_of(ins):
    import subprocess, tempfile, re as re_
    body = [i_ for i_ in ins if i_.cls not in ('label', 'dir')]
    txt_ = '.amdgcn_target "amdgcn-amd-amdhsa--gfx950"\n.text\nL_any:\n' + ''.join('    ' + (re_.sub(r'L_\w+', 'L_any', i_.text) if i_.cls == 'branch' else i_.text) + '\n' for i_ in body)
    d_ = tempfile.mkdtemp()
    open(d_ + '/a.s', 'w').write(txt_)
    subprocess.run(['clang', '-x', 'assembler', '-target', 'amdgcn-amd-amdhsa', '-mcpu=gfx950', '-c', d_ + '/a.s', '-o', d_ + '/a.o'], check=True)
    out_ = subprocess.run(['llvm-objdump', '-d', '--mcpu=gfx950', d_ + '/a.o'], capture_output=True, text=True).stdout
    sz = [4*len(m_.group(1).split()) for m_ in re_.finditer(r'// [0-9A-F]+: ((?:[0-9A-F]{8} ?)+)', out_)]
    assert len(sz) == len(body), (len(sz), len(body))
    return {id(i_): s_ for i_, s_ in zip(body, sz)}
if OPT['PADS']:
    sz = sizes_of(main_ins)
    k0 = [k_ for k_, i_ in enumerate(main_ins) if i_.text == 'L_main:'][0]
    out_ = main_ins[:k0+1]; off = 0; npg = 0
    for i_ in main_ins[k0+1:]:
        if i_.cls not in ('label', 'dir'):
            lo = (npg + 1)*4096
            if npg < OPT['NPG'] and off >= lo and (i_.cls == 'mfma' or off + sz[id(i_)] > lo + 56):
                assert off < lo + 64
                out_.append(I(f"L_pg{npg}:")); out_.append(I(f"s_cbranch_execz L_pgn{npg}")); off += 4; npg += 1
            off += sz[id(i_)]
        out_.append(i_)
    for i_ in out_:
        if i_.text.startswith('s_cbranch_execz L_pgn'):
            k_ = int(i_.text.split('L_pgn')[1]) + 4
            i_.text = f"s_cbranch_execz L_pg{k_}" if k_ < npg else "s_cbranch_execz L_main"
    main_ins = out_
    print("code pages", npg, "bytes after L_main", off, file=sys.stderr)
hdr = open(os.path.join(os.path.dirname(os.path.abspath(__file__)), 'header.txt')).read()
txt = hdr + f"""; @launch grid=(256,1,1) block=(256,1,1) lds={LDS_BYTES}
.amdgcn_target "amdgcn-amd-amdhsa--gfx950"
.text
.globl {NAME}_kernel
.p2align 8
.type {NAME}_kernel,@function
{NAME}_kernel:
""" + render(main_ins) + render(sub_ins) + f"""L_pad:
    s_endpgm
.if (L_pad - {"L_main" if OPT["PADS"] else "L_pc"}) < {CODE_LINES*128}
.fill (({CODE_LINES*128} - (L_pad - {"L_main" if OPT["PADS"] else "L_pc"})) / 4) + 16, 4, 0xbf810000
.endif
.section .rodata,"a"
.p2align 6
.amdhsa_kernel {NAME}_kernel
  .amdhsa_next_free_vgpr 512
  .amdhsa_next_free_sgpr 102
  .amdhsa_accum_offset 256
  .amdhsa_group_segment_fixed_size 0
  .amdhsa_kernarg_size 88
  .amdhsa_user_sgpr_count 2
  .amdhsa_user_sgpr_kernarg_segment_ptr 1
  .amdhsa_system_sgpr_workgroup_id_x 1
.end_amdhsa_kernel
"""
if OPT['STAMP']: txt += '; STAMPS ' + ' '.join(stamp_names) + '\n'
open(sys.argv[1], 'w').write(txt)
```

```python
import sys, os, math, struct
from asmlib import *

NAME = "recurrent_scan__sliding_block_cached__dense_activation_relu__prompt"
OPT = dict(D=8, NA=12, HX=2, BAR=2, STAMP=0, PST=0, DUMP='', SIGG=60, FORCEFB=0, LOG=0,
           SST='sc1', HLD='sc1', HST='sc1', GLD='sc1', NOSST=0, NOHLD=0, NOHST=0,
           PX='', PW1='', PWQ='', PKV='', PWO='', PW2='', PF=1, PPF='', OST='', WSOFF=0, HSTEP=7, XREV=0, NPRO=4, WAITAT='', WAITT=0, WAITWG=-1, PADS=1, HSIG=150, HPF=0, PF0=0, PF1=14, CHAIN=1, WB=0, WBD=60, BIG=1, DSTART=0, W2ROT=1, NOPF2=2, HEND=40, XPF=1, L0N=1, X1=28, BARK=36, BARP=2, BARA=2, BAR4=2, SPAN=30, SPAN2=20, NV1=100, PKR=0, PCH=0, TLB=1, TLBP='G2_13', XG=0, STLB=0, ST0=4, STS=40, G6P='66666666666666', WOM=0, W2N=7, NPG=10, CPF='', SB2=0, PB2=60, CB2=110, LB2=215, NB2=10, ONORM=1, CE=105, LB=148, H2X=4, H2S=6, SB=52, LB2X=0, NSB=12, PCB=0, NO=0, NX=4, P2G=190, C2G=0, CW=0, NU=3, NC1=6, PKNOP=0, NOG=0, NOFLAG=0, W2G=-15, W2S=8, F0=3, F1=5, L0=0, W2PRE=14, H2A=460, H2B=540, SA=48, PA=-75, CA=26, LA=88, SC=26, PB=68, N2=18, G1N=10, XFIRST=4, XSEC=0, WQE=2, OEARLY=2, H2SPAN=60, PFG=170, WQP=2, FINE=0, RT=0, SIMPLE=0, SSP=0)
for a_ in sys.argv[2:]:
    k_, v_ = a_.split('=')
    OPT[k_] = v_.replace('+', ' ') if isinstance(OPT[k_], str) else int(v_)
D = OPT['D']; NA = OPT['NA']

RING_SLOTS = 10
SLOT = 16384
LDS_BYTES = 163840
WS_S = 0
WS_H = 0x1C00000
WS_F = 0x2300000
WS_DBG = 0x2400000
WS_SIZE = 0x8000000 if (OPT['DUMP'] or OPT['STAMP']) else 0x2400000
OOB = 0x7f000000
CSCALE = math.log2(math.e) / 16.0
def f2u(x): return struct.unpack('<I', struct.pack('<f', x))[0]
def hx(x): return f"0x{x & 0xffffffff:x}"

sX, sW1, sWQ, sKK, sVV, sWO, sW2, sWS, sOUT = 28, 32, 36, 40, 44, 48, 52, 56, 60
def srd(b): return f"s[{b}:{b+3}]"
sW, sHD, sT, sWB, sSO = 64, 65, 66, 67, 68
sT0, sT1, sT2, sT3 = 69, 70, 71, 3
sQT = 72
sHST, sHLD, sSST, sSG, sFLG, sFLP, sCNT, sSO2, sTL, sROT, sSTEP, sPC = 86, 87, 88, 89, 90, 91, 92, 93, 94, 95, 96, 97
sTC, sCOOB, sHPF, sW2I, sKVI, sCC = 19, 20, 21, 24, 25, 2
sW1T = 12
sM1, sM2, sM3, sMD = 4, 6, 8, 10
sSV0, sSV1, sSV2 = 12, 13, 14
sSTMP = 26
DBGP = "s[22:23]"
vL16, vHS, vT0, vT1, vT2, vT3, vT4 = 1, 2, 3, 4, 5, 6, 7
vTR = 8
vRA = 20
vPF = 26
vZ, vONE, vPOLL, vSTAMP = 28, 29, 30, 31
vWQ, vKD, vVD, vWOD, vW2D = 32, 36, 40, 32, 36
vXN = 44
vR = 156
vW1D = vR + 64
vXD = vR + 68
vO = 128
vS = 44
vP = 76
vC = 92
vLS = 100
vM = 106
vA4 = 44
vRC = 126
aF, aST, aQ, aH = 0, 48, 64, 128

def v(i, n=1): return f"v{i}" if n == 1 else f"v[{i}:{i+n-1}]"
def a(i, n=1): return f"a{i}" if n == 1 else f"a[{i}:{i+n-1}]"
def mfma(d, A, B, C): return f"v_mfma_f32_16x16x32_bf16 {d}, {A}, {B}, {C}"
def I(t, tag=None): return Ins(t, tag)
lg = lambda x: int(math.log2(x))

P = Prog()
E = P.emit

nstamp = [0]
stamp_names = []
def stamp_ins(name=''):
    if OPT['WAITAT'] and name == OPT['WAITAT']:
        return [I(t_) for t_ in ((f"s_cmp_lg_u32 s0, {OPT['WAITWG']}", "s_cbranch_scc1 L_end") if OPT['WAITWG'] >= 0 else ()) + ("L_dw:", f"s_memrealtime s[{sSTMP}:{sSTMP+1}]", "s_waitcnt lgkmcnt(0)", f"s_sub_u32 s{sSTMP}, s{sSTMP}, s1",
                                 f"s_cmp_lt_u32 s{sSTMP}, {OPT['WAITT']}", "s_cbranch_scc1 L_dw")]
    if not OPT['STAMP']: return []
    if OPT['STAMP'] == 3 and name not in ('end', 'attn_done', 'G4', 'wb0', 'wb1', 'G6', 'st_done', 'chk0', 'chk1', 'chk2', 'sigA', 'sigB', 'g6_done', 'g_done', 'pre_c2', 'pre_c1', 'pre_c0'): return []
    if OPT['STAMP'] == 2 and name not in ('end', 'G4', 'P0', 'G2_0', 'g6_done'): return []
    n = nstamp[0]; nstamp[0] += 1; stamp_names.append(name)
    return [I(f"{'s_memrealtime' if OPT['RT'] else 's_memtime'} s[{sSTMP}:{sSTMP+1}]"), I("s_waitcnt lgkmcnt(0)"), I(f"v_writelane_b32 v{vSTAMP}, s{sSTMP}, {n}")]
def STAMP(name=''):
    P.ins += stamp_ins(name)
def PST(name):
    if OPT['PST']: STAMP(name)

frags = []
chunks = []
def add_chunk(name, lo, size, dma, private=False):
    chunks.append(dict(name=name, lo=lo, hi=lo+size, dma=dma, private=private, first=None, last=None)); return len(chunks)-1
def add_frag(kind, rs, rb, addr, mf, ch):
    frags.append(dict(kind=kind, rb=rb, rs=rs, addr=addr, mf=mf, chunk=ch))
    c = chunks[ch]
    if c['first'] is None: c['first'] = len(frags)-1
    c['last'] = len(frags)-1
def frag_reads(f):
    fr = frags[f]; A = aF + 4*(f % NA)
    def rd(op, dst, addr):
        win = addr >> 16
        return I(f"{op} {dst}, v{fr['rb'] + win*fr['rs']} offset:{addr & 0xffff}", tag=('f', f))
    if fr['kind'] == 'tr':
        return [rd("ds_read_b64_tr_b16", a(A, 2), fr['addr']), rd("ds_read_b64_tr_b16", a(A+2, 2), fr['addr'] + 2048)]
    return [rd("ds_read_b128", a(A, 4), fr['addr'])]
POL = {sW1: 'PW1', sWQ: 'PWQ', sKK: 'PKV', sVV: 'PKV', sWO: 'PWO', sW2: 'PW2'}
ring_pos = [7]
def ring_round(name, srd_b, vbase, so_text, private=False):
    slot = ring_pos[0] % RING_SLOTS; ring_pos[0] += 1
    lo = slot*SLOT
    tag = ('c', len(chunks))
    dma = [I(f"s_add_u32 m0, s{sWB}, {lo}")]
    if so_text.startswith('s') or so_text == '0': so = so_text
    elif so_text.startswith('+'):
        dma.append(I(f"s_add_u32 s{sSO}, {so_text[1:]}")); so = f"s{sSO}"
    else:
        dma.append(I(f"s_mov_b32 s{sSO}, {so_text}")); so = f"s{sSO}"
    for rb in range(4):
        dma.append(I(f"buffer_load_dwordx4 v{vbase+rb}, {srd(srd_b)}, {so} offen offset:{rb*1024} {OPT[POL[srd_b]]} lds", tag=tag))
    return add_chunk(name, lo, SLOT, dma, private)

phase = {}
def xn(ks, tg): return vXN + (ks*2 + tg)*4
def accp(pp, kq, tg, par): return vR + (pp % 2)*32 + ((kq*2 + tg)*2 + par)*4
pend_ = []
for pp in range(6):
    phase[f'P{pp}'] = len(frags)
    for ks in range(14):
        qi = 14*pp + ks
        if qi % 4 == 0:
            r_ = qi // 4
            blk_, rp = r_ // 7, r_ % 7
            R_ = 32*(8192 if blk_ < 2 else 3584); sb = sW1T + (0 if blk_ < 2 else 2); cb_ = 256 if blk_ == 1 else 0
            so_ = f"+s{sb+1}, {cb_}" if rp == 3 else f"+s{sb}, {(4*rp*R_ if rp < 3 else (4*rp-14)*R_ + 128) + cb_}"
            ch = ring_round(f"wq_{r_}", sWQ, vWQ, so_) if r_ < 14 else ring_round(f"w1_{r_-14}", sW1, vW1D, so_)
        pend_.append((ks, qi, ch))
        if OPT['PCH'] and ks % 2 == 0: continue
        for u2 in range(2):
            for u in (2*u2, 2*u2+1):
                for ks_, qi_, ch_ in pend_:
                    mf = (lambda A, pp=pp, ks=ks_, u=u: [mfma(v(accp(pp, u >> 1, tg, u & 1), 4), A, v(xn(ks, tg), 4), "0" if ks == 0 else v(accp(pp, u >> 1, tg, u & 1), 4)) for tg in range(2)])
                    add_frag('tr', 4, vTR + u, chunks[ch_]['lo'] + (qi_ % 4)*4096, mf, ch_)
        pend_ = []
def qf(kq, tg): return aQ + (kq*2 + tg)*4
def Sreg(st, tg, kt): return vS + (st % 2)*16 + tg*8 + kt*4
def Preg(st, tg): return vP + (st % 2)*8 + tg*4
def Oreg(d, tg): return vO + (((d >> 1)*2 + tg)*2 + (d & 1))*4
def G2(st):
    phase[f'G2_{st}'] = len(frags)
    ch = ring_round(f"K_{st}", sKK, vKD, str(st*16384))
    order = [(kt, ks) for kt in range(2) for ks in range(8)]
    for kt, ks in order:
        def mf(A, kt=kt, ks=ks):
            r = []
            for tg in range(2):
                c = v(Sreg(st, tg, kt), 4)
                if ks == 0: c = "0" if st < 1 else v(vC + 4*tg, 4)
                r.append(mfma(v(Sreg(st, tg, kt), 4), A, a(qf(ks, tg), 4), c))
            return r
        add_frag('b128', 2, vRA + (ks & 1), chunks[ch]['lo'] + (ks >> 1)*4096 + kt*2048, mf, ch)
def G3(st):
    phase[f'G3_{st}'] = len(frags)
    ch = ring_round(f"V_{st}", sVV, vVD, str(st*16384))
    for d in range(16):
        mf = (lambda A, d=d: [mfma(v(Oreg(d, tg), 4), A, v(Preg(st, tg), 4), "0" if st == 0 else v(Oreg(d, tg), 4)) for tg in range(2)])
        add_frag('tr', 4, vTR + (d & 3), chunks[ch]['lo'] + (d >> 2)*4096, mf, ch)
G2(0)
for st in range(15):
    G2(st + 1); G3(st)
G3(15)
phase['AEND'] = len(frags)
def acc4(p, u, tg): return hole(8 + ((u >> 1)*2 + tg)*2 + (u & 1))
def Opk(ks, tg): return vO + (ks*2 + tg)*8
def hole(i): return vO + 8*i + 4
def hreg(kk, t4):
    i = kk*4 + t4
    if i < 32: return a(aH + 4*i, 4)
    if i < 48: return a(aQ + 4*(i-32), 4)
    return v(hole(i-48), 4)
def facc(u, t4):
    return vA4 + 4*(u*4 + t4)
vTP = 108
G6P = OPT['G6P']
assert len(G6P) == 14
kk = 0
NU = OPT['NU']
def g6step(kk):
    ks_ = [kk] if kk < 14 - NU else list(range(14 - NU, 14))
    if kk > ks_[0]: return
    for k2 in ks_: phase[f'G6_{k2}'] = len(frags)
    chs_ = {k2: ring_round(f"w2_{k2}", sW2, vW2D, str(k2*32*896), private=True) for k2 in ks_}
    for u in range(4):
        for k2 in ks_:
            mf = (lambda A, kk=k2, u=u: [mfma(v(facc(u, t4), 4), A, hreg(kk, t4), "0" if kk == 0 else v(facc(u, t4), 4)) for t4 in range(4)])
            add_frag('tr', 4, vTP + u, chunks[chs_[k2]]['lo'], mf, chs_[k2])
while kk < OPT['NO']: g6step(kk); kk += 1
phase['G4'] = len(frags)
for p in range(7):
    phase[f'G4p{p}'] = len(frags)
    chs = [ring_round(f"wo_{p}_{h_}", sWO, vWOD, f"s{sQT+p}" if h_ == 0 else f"+s{sQT+p}, {4*32*896}") for h_ in range(2)]
    for u in range(4):
        for ks in range(8):
            ch = chs[ks // 4]
            mf = (lambda A, p=p, ks=ks, u=u: [mfma(v(acc4(p, u, tg), 4), A, v(Opk(ks, tg), 4), "0" if ks == 0 else v(acc4(p, u, tg), 4)) for tg in range(2)])
            add_frag('tr', 4, vTR + u, chunks[ch]['lo'] + (ks % 4)*4096, mf, ch)
    if p == 6: phase['G6'] = len(frags); NPOST = 14 - kk
    while kk < 14 and int(G6P[kk]) == p:
        g6step(kk)
        kk += 1
assert kk == 14
NF = len(frags)
phase['END'] = NF

MF = [fr['mf'](a(aF + 4*(f % NA), 4)) for f, fr in enumerate(frags)]
if OPT['CHAIN']:
    for f0 in range(0, NF, 4):
        nm_ = chunks[frags[f0]['chunk']]['name']
        if nm_.startswith('K_') or nm_.startswith('wo_') or (OPT['PCH'] and nm_[:2] in ('wq', 'w1')):
            fl = [MF[f0+k_][tg] for tg in range(2) for k_ in range(4)]
            for k_ in range(4): MF[f0+k_] = fl[2*k_:2*k_+2]
G0 = [0]
for f in range(NF): G0.append(G0[-1] + len(MF[f]))
NG = G0[-1]
def gap(f): return G0[max(0, min(f, NF))]
pre = [[] for _ in range(NG)]
rds = [[] for _ in range(NG)]
ext = [[] for _ in range(NG)]
blk = {}
for g in range(NF):
    if g + D < NF:
        r = frag_reads(g + D)
        n = len(MF[g])
        rds[G0[g]].append(r[0])
        if len(r) > 1: rds[G0[g] + n//2].append(r[1])
def cost(i):
    if i.cls in ('ds',): return 8
    if i.cls == 'vmem': return 24 if 'store' in i.op and 'x4' in i.op else 8
    if i.cls in ('trans', 'perm'): return 8
    if i.cls == 'label': return 0
    return 4
def gtime(items):
    t = 4
    for i in items:
        if i.cls in VALU_LIKE: t = max(t, 8)
        t += cost(i)
    return t
def fits(gp, i): return gtime(pre[gp] + rds[gp] + ext[gp] + [i]) <= 16
def place(seq, g0, g1=None):
    seq = [I(s) if isinstance(s, str) else s for s in seq]
    g1 = NG if g1 is None else min(g1, NG)
    gp = g0; n = len(seq)
    for k, ins in enumerate(seq):
        bound = max(min(g0 + ((k + 1) * (g1 - g0)) // n - 1, g1 - 1), gp)
        best = None
        for q in range(gp, bound + 1):
            if fits(q, ins): best = q; break
        if best is None:
            best = min(range(gp, bound + 1), key=lambda q: (gtime(pre[q] + rds[q] + ext[q] + [ins]), q))
        ext[best].append(ins)
        gp = best
    return gp
def spread(seq, g0, g1):
    n = len(seq); cur = g0
    for k, ins in enumerate(seq):
        lo = max(g0 + (k*(g1-g0))//n, cur); hi = max(g0 + ((k+1)*(g1-g0))//n, lo+1)
        cur = place([ins], lo, hi)
    return cur

shared = [c for c in range(len(chunks)) if not chunks[c]['private']]
def is_bar(k_):
    if k_ == 0: return True
    if k_ < 21: return (k_ - 1) % OPT['BARP'] == 0
    if k_ < 53: return (k_ - 21) % OPT['BARA'] == 0
    return (k_ - 53) % OPT['BAR4'] == 0
bar_frags = [chunks[c]['first'] for k_, c in enumerate(shared) if is_bar(k_)]
bar_frags += [phase['G6'], phase['G6'] + D + 1]
bar_frags = sorted(set(bar_frags))
bar_gap = []
first_need = None
for bi, f0 in enumerate(bar_frags):
    f1 = bar_frags[bi+1] if bi + 1 < len(bar_frags) else NF
    need = [('c', c) for c in shared if f0 <= chunks[c]['first'] < f1]
    if f0 == 0: first_need = need; continue
    gp = gap(f0 - D); bar_gap.append(gp)
    if need: ext[gp-1].append(mk_wait_vm(need))
    pre[gp].append(I("s_barrier"))
for c in range(len(chunks)):
    if chunks[c]['private']:
        ext[gap(chunks[c]['first'] - D) - 1].append(mk_wait_vm([('c', c)]))
for g in range(4, NF, 4):
    ext[gap(g) - 1].append(mk_wait_lg([('f', f) for f in range(g, min(g+4, NF))]))
def earliest_gap(c):
    e = -1
    C = chunks[c]
    for c2 in range(c):
        B = chunks[c2]
        if B['hi'] <= C['lo'] or C['hi'] <= B['lo']: continue
        if B['private']: e = max(e, gap(B['last'] + 1))
        else: e = max(e, [gp for gp in bar_gap if gp >= gap(B['last'] + 1)][0] + 1)
    return e
pro_dma = []
cur = OPT['DSTART']
for c in range(len(chunks)):
    e = earliest_gap(c)
    if e < 0 and c < OPT['NPRO']:
        pro_dma.append(chunks[c]['dma']); continue
    if chunks[c]['name'].startswith('w2_') and int(chunks[c]['name'][3:]) >= OPT['W2PRE']: e = max(e, gap(phase['G6']) + OPT['W2G'])
    g0 = max(e, cur)
    span = OPT['SPAN']
    if g0 > e + 8: span = OPT['SPAN2']
    if g0 >= gap(phase['G6'] - D): span = OPT['W2S']
    seq = list(chunks[c]['dma'])
    if chunks[c]['name'] == 'wo_0_0': seq = [I(f"v_accvgpr_read_b32 v{vWOD+i}, a{aST+i}") for i in range(4)] + seq; wo_first_gap = g0
    if chunks[c]['name'] == 'w2_0': seq = [I(f"v_accvgpr_read_b32 v{vW2D+i}, a{aST+4+i}") for i in range(4)] + seq
    cur = spread(seq, g0, g0 + span)
    need_gap = gap(chunks[c]['first'] - D)
    if not chunks[c]['private']: need_gap = max(gp for gp in bar_gap if gp <= need_gap)
    if OPT['LOG']: print(chunks[c]['name'], g0, cur, need_gap, 'lead', need_gap - cur, file=sys.stderr)
    assert cur < need_gap - 1, (chunks[c]['name'], cur)

seq = []
for p in range(7):
    seq += [f"s_add_u32 s{sT2}, s{sROT}, {p}", f"s_sub_u32 s{sT3}, s{sT2}, 7", f"s_min_u32 s{sT2}, s{sT2}, s{sT3}",
            f"s_lshl_b32 s{sQT+p}, s{sT2}, 7", f"s_lshl_b32 s{sT2}, s{sT2}, 16", f"s_add_u32 s{sQT+7+p}, s{sSST}, s{sT2}",
            f"s_add_u32 s{sSST}, s{sSST}, s{sSTEP}"]
spread(seq, 6, 100)
assert gap(phase['G3_8']) < wo_first_gap
assert OPT['BAR'] == 2
place([f"v_add_u32 v{vTP+i}, s{sWB}, v{vTR+i}" for i in range(12)], gap(phase['G3_12']), gap(phase['G3_14']))

def hconv(pp):
    s = []
    for kq in range(2):
        for tg in range(2):
            b = accp(pp, kq, tg, 0)
            if not OPT['PKR']:
                for r in range(8): s.append(f"v_max_f32 v{b+r}, 0, v{b+r}")
            for r in range(4): s.append(f"v_cvt_pk_bf16_f32 v{b+r}, v{b+2*r}, v{b+2*r+1}")
            if OPT['PKR']:
                for r in range(4): s.append(f"v_pk_max_i16 v{b+r}, v{b+r}, 0")
            if not OPT['NOHST']:
                s.append(I(f"buffer_store_dwordx4 {v(b,4)}, v{vHS}, {srd(sWS)}, s{sHST} offen offset:{kq*2048 + tg*1024} {OPT['HST']}", tag='hst'))
    if pp == 4: s.append(f"s_add_u32 s{sHST}, s{sHST}, 4096")
    return s
place(hconv(4), gap(phase['P5']) + 4, gap(phase['G2_0']) - 4)
def qconv(pp):
    s = []
    for kq in range(2):
        for tg in range(2):
            b = accp(pp, kq, tg, 0)
            s += [f"v_cvt_pk_bf16_f32 v{b+r}, v{b+2*r}, v{b+2*r+1}" for r in range(4)]
            s += [f"v_permlane32_swap_b32 v{b}, v{b+2}", f"v_permlane32_swap_b32 v{b+1}, v{b+3}",
                  f"v_permlane16_swap_b32 v{b}, v{b+2}", f"v_permlane16_swap_b32 v{b+1}, v{b+3}"]
            s += [f"v_accvgpr_write_b32 a{qf(2*pp+kq, tg)+r}, v{b+r}" for r in range(4)]
    return s
for pp in range(4):
    g0 = gap(phase[f'P{pp+1}'])
    place(qconv(pp), g0 + 4, g0 + 2*56 - 4)

def allred(r, t, op):
    return [f"v_mov_b32 v{t}, v{r}", f"v_permlane32_swap_b32 v{r}, v{t}", f"{op} v{r}, v{r}, v{t}",
            f"v_mov_b32 v{t}, v{r}", f"v_permlane16_swap_b32 v{r}, v{t}", f"{op} v{r}, v{r}, v{t}"]
def interleave(*seqs):
    out = []
    for k in range(max(len(s) for s in seqs)):
        for s in seqs:
            if k < len(s): out.append(s[k])
    return out
def svals(st): return [Sreg(st, tg, kt) + r for tg in range(2) for kt in range(2) for r in range(4)]
g0 = gap(phase['G2_0'])
seqs = []
for tg in range(2):
    b = Sreg(0, tg, 0); m = vM + 2*tg; t = m + 1
    s = [f"v_max3_f32 v{m}, v{b}, v{b+1}, v{b+2}", f"v_max_f32 v{m}, v{m}, v{b+3}"] + allred(m, t, "v_max_f32")
    s += [f"v_sub_f32 v{vC+4*tg+r}, 0, v{m}" for r in range(4)]
    seqs.append(s)
seq = interleave(*seqs) + [f"v_mov_b32 v{vLS}, 0", f"v_mov_b32 v{vLS+1}, 0"]
gm = place(seq, g0 + 19, g0 + 31)
def sm_seq(st, sub):
    s = []
    vals = svals(st)
    for k_, r in enumerate(vals):
        tg = k_ // 8
        if sub: s.append(f"v_add_f32 v{r}, v{r}, v{vC+4*tg}")
        s.append(f"v_exp_f32 v{r}, v{r}")
        if k_ % 2 == 1 and k_ >= 3:
            kk = k_ - 3
            s.append(f"v_cvt_pk_bf16_f32 v{Preg(st, kk//8) + (kk % 8)//2}, v{vals[kk]}, v{vals[kk+1]}")
    s.append(f"v_cvt_pk_bf16_f32 v{Preg(st, 1) + 3}, v{vals[14]}, v{vals[15]}")
    return s
def add_seq(st):
    vals = svals(st)
    return interleave([f"v_add_f32 v{vLS}, v{vLS}, v{r}" for r in vals[:8]], [f"v_add_f32 v{vLS+1}, v{vLS+1}, v{r}" for r in vals[8:]])
for st in range(16):
    g3 = gap(phase[f'G3_{st}'])
    if st == 0:
        ge = place(sm_seq(st, True), gap(phase['G2_1']) + 3, g3 - 1)
    elif st < 15:
        gs = gap(phase[f'G2_{st+1}'] - D)
        ge = place(sm_seq(st, False), gs, g3 - 2)
    else:
        ge = place(sm_seq(st, False), gap(phase['G3_14']) + 4, g3 - 2)
    lim = gap(phase[f'G2_{st+2}']) - 2 if st + 2 < 16 else g3 + 14
    ga = place(add_seq(st), ge, lim)
seqs = []
for tg in range(2):
    l = vLS + tg; t = vM + tg
    seqs.append(allred(l, t, "v_add_f32") + [f"v_rcp_f32 v{vRC+tg}, v{l}"])
seq = interleave(*seqs) + [f"v_add_f32 v{vM}, v{vLS}, v{vLS+1}", f"s_mov_b32 s{sT0}, {hx(f2u(2.0**24 if not OPT['FORCEFB'] else 0.5))}", f"v_cmp_ngt_f32 vcc, s{sT0}, v{vM}"]
place(seq, ga, gap(phase['AEND']) - 1)

hc = hconv(5)
n3 = 3*len(hc)//4
place(hc[:n3], gap(phase['G2_0']) + 3, gap(phase['G2_0']) + 19)
gend = place(hc[n3:], gap(phase['G3_0']), gap(phase['G3_0']) + 16)
assert accp(5, 1, 1, 0) >= Oreg(10, 0)
hb = [gp for gp in bar_gap if gp > gend + OPT['HSIG']][0]
ext[hb-1].append(mk_wait_vm(['hst']))
sig = [I(f"s_cmp_lg_u32 s{sW}, 0"), I("s_cbranch_scc1 L_nosig"), I(f"s_lshl_b32 s{sT0}, s{sT}, 4"), I(f"v_mov_b32 v{vPOLL}, s{sT0}"),
       I("s_mov_b64 exec, 1"), I(f"global_atomic_add v{vPOLL}, v{vONE}, {DBGP} sc1"), I("s_mov_b64 exec, -1"), I("L_nosig:")]
sig[5].cls = 'misc'
ext[hb+1] += sig

def dump(regs_list):
    r = [I("s_nop 15"), I(f"s_lshl_b32 s{sT0}, s{sT}, 4"), I(f"s_add_u32 s{sT0}, s{sT0}, s{sHD}"),
         I(f"s_lshl_b32 s{sT0}, s{sT0}, 2"), I(f"s_add_u32 s{sT0}, s{sT0}, s{sW}"),
         I(f"s_mul_i32 s{sT0}, s{sT0}, {32*1024}"), I(f"s_add_u32 s{sT0}, s{sT0}, {hx(WS_DBG)}")]
    for reg in regs_list:
        r.append(I(f"buffer_store_dwordx4 {reg}, v{vL16}, {srd(sWS)}, s{sT0} offen"))
        r.append(I(f"s_add_u32 s{sT0}, s{sT0}, 1024"))
    r.append(I("s_nop 3"))
    return r
def ocvt(ks): return [f"v_cvt_pk_bf16_f32 v{Opk(ks, tg)+r}, v{Opk(ks, tg)+2*r}, v{Opk(ks, tg)+2*r+1}" for tg in range(2) for r in range(4)]
if OPT['ONORM']:
    def ocvt(ks):
        s = []
        for tg in range(2):
            o = Opk(ks, tg)
            s += [f"v_pk_mul_f32 {v(o+2*r,2)}, {v(o+2*r,2)}, {v(vRC,2)} op_sel:[0,{tg}] op_sel_hi:[1,{tg}]" for r in range(4)]
        for tg in range(2):
            o = Opk(ks, tg)
            s += [f"v_cvt_pk_bf16_f32 v{o+r}, v{o+2*r}, v{o+2*r+1}" for r in range(4)]
        return s
NEARLY = 0 if OPT['ONORM'] else OPT['OEARLY']
g15 = gap(phase['G3_15'])
for ks in range(NEARLY): place(ocvt(ks), g15 + 4*ks + 8, gap(phase['G4']) - 1)
assert NEARLY == 0
b = stamp_ins('attn_done') + [I("s_cbranch_vccnz L_exact"), I("L_exact_ret:")]
NX = OPT['NX'] if OPT['NO'] else 8
for ks in range(NX): b += [I(t_) for t_ in ocvt(ks)]
blk[phase['AEND']] = b
if OPT['NO']:
    seq = []
    for ks in range(NX, 8):
        for tg in range(2):
            o = Opk(ks, tg)
            seq += [f"v_mul_f32 v{o+r}, v{vRC+tg}, v{o+r}" for r in range(8)] + [f"v_cvt_pk_bf16_f32 v{o+r}, v{o+2*r}, v{o+2*r+1}" for r in range(4)]
    ONSEQ = seq
    b = []
if OPT['DUMP'] == 'o': b += dump([v(Opk(ks, tg), 4) for ks in range(8) for tg in range(2)])
if OPT['DUMP'] == 'q': b += dump([a(qf(ks, tg), 4) for ks in range(8) for tg in range(2)])
b += stamp_ins('G4')
blk[phase['G4']] = b

def sconv(p, u):
    s = []
    for tg in range(2):
        b = acc4(p, u, tg); d = acc4(p, u & ~1, tg) + 2*(u & 1)
        if not OPT['ONORM']: s += [f"v_mul_f32 v{b+r}, v{vRC + tg}, v{b+r}" for r in range(4)]
        s += [f"v_cvt_pk_bf16_f32 v{d}, v{b}, v{b+1}", f"v_cvt_pk_bf16_f32 v{d+1}, v{b+2}, v{b+3}"]
        if u & 1:
            if (u, tg) != (1, 0): s.append(f"s_add_u32 s{sQT+7+p}, s{sQT+7+p}, 16384")
            if not OPT['NOSST']: s.append(I(f"buffer_store_dwordx4 {v(acc4(p, u & ~1, tg),4)}, v{vL16}, {srd(sWS)}, s{sQT+7+p} offen {OPT['SST']}", tag=('sst', p)))
    return s
g4 = gap(phase['G4'])
for p in range(7):
    for u in range(4):
        g0 = gap(phase[f'G4p{p}']) + 16*(u+1)
        if u == 3 and p < 6: gl = place(sconv(p, u), g0 + 3, g0 + 28)
        else: gl = place(sconv(p, u), g0 + 3, g0 + (19 if (p, u) != (6, 3) else 10))
last_store_gap = gl
hs = OPT['HSTEP']
gp0 = gap(phase[f'G3_{hs-1}']) - 30
place([f"s_lshl_b32 s{sT0}, s{sTC}, 4", f"v_mov_b32 v{vPOLL}, s{sT0}", I(f"global_load_dword v{vPOLL}, v{vPOLL}, {DBGP} sc1", tag='pollh'),
       f"v_add_u32 v{vHS}, s{sCOOB}, v{vL16}"], gp0, gp0 + 24)
gp1 = gap(phase[f'G3_{hs}'])
ext[gp1] += [mk_wait_vm(['pollh']), I(f"v_cmp_gt_u32 vcc, 16, v{vPOLL}"), I("s_cbranch_vccnz L_spinh"), I("L_spinh_ret:")]
sHB = 98
def hloads(k0, k1):
    s = []
    for kk in range(k0, k1, 2):
        for j in range(4):
            s.append(f"s_add_u32 s{sT0}, s{sHB+j}, {kk*2048}")
            for k2 in range(2):
                s.append(I(f"buffer_load_dwordx4 {hreg(kk+k2, j)}, v{vHS}, {srd(sWS)}, s{sT0} offen offset:{k2*2048} {OPT['HLD']}", tag='hld'))
    return s
seq = []
for j in range(4):
    seq += [f"s_add_u32 s{sT2}, s{sW}, {j}", f"s_bfe_u32 s{sT3}, s{sT2}, 0x10001", f"s_mul_i32 s{sT3}, s{sT3}, {56*2048}", f"s_and_b32 s{sT2}, s{sT2}, 1",
            f"s_lshl_b32 s{sT2}, s{sT2}, 10", f"s_add_u32 s{sT2}, s{sT2}, s{sT3}", f"s_add_u32 s{sHB+j}, s{sHLD}, s{sT2}"]
spread(seq, gap(phase['P2']), gap(phase['P3']))
if not OPT['NOHLD']:
    spread(hloads(0, 8), gap(phase[f"G3_{hs+OPT['HPF']}"]) + 2, gap(phase['G3_15']) - OPT['HEND'])
    if OPT['H2X']:
        hl = [I(s_) if isinstance(s_, str) else s_ for s_ in hloads(8, 8 + OPT['H2X'])]
        b_ = blk[phase['AEND']]
        k0 = [k_ for k_, i_ in enumerate(b_) if i_.text == 'L_exact_ret:'][0]
        for k_, i_ in enumerate(hl): b_.insert(k0 + 1 + k_*OPT['H2S'], i_)
    spread(hloads(8 + OPT['H2X'], 14), g4 + OPT['H2A'], g4 + OPT['H2B'])
if OPT['NO']: place(ONSEQ, gap(phase['AEND']) + 1, gap(phase['G4']) - 1)
g6 = gap(phase['G6'])
vFV = 120
def greg(rl, sl):
    i = sl*2 + rl
    if NPOST <= 10: i = (i + 16) % 32
    if i < 16: return v(Opk(0, 0) + 8*i, 4)
    return a(aH + (i - 16)*4, 4)
assert OPT['CA'] > 0 or (NPOST <= 10 and g6 + OPT['CA'] > gap(phase['G6_3'] + 4))
def gloads(s0, s1, va):
    s = []
    for sq in range(s0, s1, 2):
        for rl in range(2):
            s.append(I(f"s_add_u32 s{sT1}, s{sSG}, {rl*2*16384 + sq*1024}"))
            for sl in range(sq, sq+2):
                if not OPT['NOG']: s.append(I(f"buffer_load_dwordx4 {greg(rl, sl)}, v{va}, {srd(sWS)}, s{sT1} offen offset:{(sl-sq)*1024} {OPT['GLD']}", tag=('g', rl, sl)))
    return s
F0 = OPT['F0']
sPL = 32
sMISS = 18
F1 = OPT['F1']
place([f"v_and_b32 v{vFV+3}, 15, v0"], g4 + 100, g4 + 200)
def signal(k, n): return [mk_wait_vm([('sst', p) for p in range(n)]), I(f"buffer_store_byte v{vONE}, v{vZ}, {srd(sWS)}, s{sFLG} offen offset:{128*k} sc1", tag='flag')]
spoll = I(f"s_buffer_load_dwordx4 s[{sPL}:{sPL+3}], {srd(sWS)}, s{sFLP} glc"); spoll.cls = 'misc'
VPOLL2 = f"buffer_load_ubyte v{vPOLL}, v{vFV+3}, {srd(sWS)}, s{sFLP} offen offset:256 sc1"
VPOLL = VPOLL2 if F1 == 7 else VPOLL2.replace('offset:256', 'offset:128')
ext[gap(phase[f'G4p{F0-1}']) + 64 + OPT['SA']] += signal(0, F0) + stamp_ins('sigA')
if F1 < 7: ext[gap(phase[f'G4p{F1-1}']) + 64 + OPT['SB']] += signal(1, F1) + stamp_ins('sigB')
ext[g6 + OPT['PA']] += [spoll]
sg = g6 + OPT['SC']
ext[sg] += signal(2, 7) + stamp_ins('st_done') + [I(f"s_cmp_ge_u32 s{sPC}, 14"), I("s_cbranch_scc1 " + ("L_fin" if OPT['STAMP'] == 3 else "L_end"))]
assert sg > bar_gap[-1] and sg > last_store_gap
ext[g6 + OPT['CA']] += stamp_ins('pre_c0') + [I(t_) for t_ in (
    "s_waitcnt lgkmcnt(0)", f"s_and_b64 s[{sPL}:{sPL+1}], s[{sPL}:{sPL+1}], s[{sPL+2}:{sPL+3}]", f"s_and_b32 s{sPL}, s{sPL}, s{sPL+1}",
    f"s_and_b32 s{sPL}, s{sPL}, 0x01010101", f"s_cmp_eq_u32 s{sPL}, 0x01010101", f"s_cselect_b32 s{sMISS}, 0, {hx(OOB)}",
    f"v_add_u32 v{vFV+2}, s{sMISS}, v{vHS}")] + stamp_ins('chk0')
spread(gloads(0, 2*F0, vFV+2), g6 + OPT['CA'] + 1, g6 + OPT['LA'])
ext[g6 + OPT['PB']] += [I(VPOLL, tag='poll')]
NSB = 2*F1 if F1 < 7 else OPT['NSB']
assert OPT['CE'] > max(OPT['PB'], OPT['LA'])
ext[g6 + OPT['CE']] += stamp_ins('pre_c1') + [mk_wait_vm(['poll'])] + [I(t_) for t_ in (f"v_cmp_ne_u32 vcc, 1, v{vPOLL}", "s_cbranch_vccnz L_spin1", "L_spin1_ret:",
    f"s_cmp_lg_u32 s{sMISS}, 0", "s_cbranch_scc1 L_redo", "L_redo_ret:")] + stamp_ins('chk1')
glB = gloads(2*F0, NSB, vHS)
kp = len(glB) - 3*OPT['PCB']
if F1 < 7 and not OPT['P2G']: glB[kp:kp] = [I(VPOLL2, tag='poll2')]
spread(glB, g6 + OPT['CE'] + 1, min(g6 + OPT['LB'], NG - 4))
glC = gloads(NSB, 16, vHS)
if OPT['P2G']:
    assert OPT['P2G'] >= OPT['LB'] and OPT['PCB'] == 0
    ext[g6 + OPT['P2G']] += [I(VPOLL2, tag='poll2')]
if OPT['C2G']:
    ext[g6 + OPT['C2G']] += stamp_ins('pre_c2') + [mk_wait_vm(['poll2'])] + [I(t_) for t_ in (f"v_cmp_ne_u32 vcc, 1, v{vPOLL}", "s_cbranch_vccnz L_spin2", "L_spin2_ret:")] + stamp_ins('chk2')
    spread(glC, g6 + OPT['C2G'] + 1, NG - 2); glC = []
NYB = 2*(NSB - 2*F0) + (1 if F1 < 7 else 0)

vXF = 32
vAD = 125
nch = len(chunks)
free_ = [c_ for c_ in range(nch - 10, nch - NU) if chunks[c_]['private']]
XK = free_[0]; FS = [chunks[c_]['lo'] for c_ in free_[1:4]]
assert gap(chunks[free_[3]]['last'] + 1) < NG - 16*NU
XS = chunks[XK]['lo']
gx_ = max(gap(chunks[XK]['last'] + 1), cur + 1, g6 + OPT['XG'])
gx2 = place([f"v_accvgpr_read_b32 v{vAD}, a{aST+8}", f"s_add_u32 m0, s{sWB}, {XS}", f"s_movk_i32 s{sSV0}, {8*896 - 1024}", f"s_movk_i32 s{sSV1}, {8*896}",
       I(f"buffer_load_dwordx4 v{vAD}, {srd(sX)}, 0 offen lds", tag='xf'), I(f"buffer_load_dwordx4 v{vAD}, {srd(sX)}, s{sSV0} offen offset:1024 lds", tag='xf'),
       f"v_and_b32 v{vT3}, 15, v0", f"v_lshlrev_b32 v{vT3}, 7, v{vT3}", f"v_lshrrev_b32 v{vT4}, 4, v0", f"v_lshl_add_u32 v{vT3}, v{vT4}, 3, v{vT3}",
       f"s_add_u32 s{sSV2}, s{sWB}, {XS}", f"v_add_u32 v{vT3}, s{sSV2}, v{vT3}", f"v_lshrrev_b32 v{vT4}, 3, v0", f"v_lshl_add_u32 v{vT4}, v{vT4}, 4, v{vL16}", f"v_add_u32 v{vT4}, s{sSV2}, v{vT4}",
       f"v_and_b32 v{vPF}, 15, v0", f"v_lshl_add_u32 v{vPF}, v{vPF}, 4, v{vT3}"], gx_, gx_ + 30)
vSEL = 108
def vsa(u): return hole(8 + u)
vXU = 8
seq = [f"v_mov_b32 v{vSEL}, 0", f"v_mov_b32 v{vSEL+1}, 0", f"v_mov_b32 v{vSEL+4}, 0", f"v_mov_b32 v{vSEL+5}, 0", f"v_mov_b32 v{vT0}, 0x3f80", f"v_mov_b32 v{vSEL+2}, 0x3f800000",
       f"s_or_b64 s[16:17], s[{sM1}:{sM1+1}], s[{sM3}:{sM3+1}]", f"v_cndmask_b32 v{vT0}, v{vT0}, v{vSEL+2}, s[16:17]", f"v_cndmask_b32 v{vT0}, 0, v{vT0}, s[{sMD}:{sMD+1}]",
       f"v_cndmask_b32 v{vSEL+2}, v{vT0}, 0, s[{sM2}:{sM2+1}]", f"v_cndmask_b32 v{vSEL+3}, 0, v{vT0}, s[{sM2}:{sM2+1}]",
              f"v_mov_b32 v24, {hx(f2u(-16.0))}", f"v_mov_b32 v25, {hx(f2u(1.0/CSCALE))}"]
place(seq, NG - 31, NG - 12)
vFW, vFR = 40, 121
FRR = [120, 121, 124]
seq = []
for j in range(1, 4):
    seq += [f"s_add_u32 s{sT2}, s{sWB}, {FS[j-1]}", f"v_add_u32 v{vFW+j-1}, s{sT2}, v{vL16}",
            f"s_sub_u32 s{sT2}, s{sWB}, {j*4096}", f"s_and_b32 s{sT2}, s{sT2}, 0x3000", f"s_add_u32 s{sT2}, s{sT2}, {FS[j-1]}", f"v_add_u32 v{FRR[j-1]}, s{sT2}, v{vL16}"]
place(seq, NG - 16*NU - 30, NG - 16*NU)
def fwrites(u): return [I(f"ds_write_b128 v{vFW+j-1}, {v(facc(u, j), 4)} offset:{u*1024}") for j in range(1, 4)]
for u in range(3):
    ge_ = NG - 4*NU*(3 - u)
    spread(fwrites(u), ge_ + 4, min(ge_ + 4*NU + 3, NG))
seq = [mk_wait_vm(['xf'])] + [I(f"ds_read_b64 {v(vXF + 2*u, 2)}, v{vT3} offset:{u*32}", tag='xr2') for u in range(4)]
place(seq, NG - 44, NG - 34)
seq = [mk_wait_lg(['xr2'])]
for u in range(4):
    xr = vXF + u*2; b2 = vXU + 4*u
    seq += [f"v_lshlrev_b32 v{b2}, 16, v{xr}", f"v_and_b32 v{b2+1}, 0xffff0000, v{xr}", f"v_lshlrev_b32 v{b2+2}, 16, v{xr+1}", f"v_and_b32 v{b2+3}, 0xffff0000, v{xr+1}"]
place(seq, NG - 26, NG)
pass
HX = OPT['HX']; NHG = 16 // HX; NT = 32 // HX
npf = [0]
def pf_addr(nlines, lines_per_row, pitch, k, dst, idx_sgpr, nshare):
    per = nlines // nshare
    s = [f"s_lshl_b32 s{sSO2}, s{sW}, 6", f"s_add_u32 s{sSO2}, s{sSO2}, {k*256}", f"v_add_u32 v{dst}, s{sSO2}, v0",
         f"v_min_u32 v{dst}, {per-1}, v{dst}", f"s_mul_i32 s{sSO2}, s{idx_sgpr}, {per}", f"v_add_u32 v{dst}, s{sSO2}, v{dst}"]
    if lines_per_row is None:
        s += [f"v_lshlrev_b32 v{dst}, 7, v{dst}"]
    else:
        sh = lg(lines_per_row)
        s += [f"v_and_b32 v{vPF}, {lines_per_row-1}, v{dst}", f"v_lshrrev_b32 v{dst}, {sh}, v{dst}",
              f"v_mul_u32_u24 v{dst}, {pitch}, v{dst}", f"v_lshl_add_u32 v{dst}, v{vPF}, 7, v{dst}"]
    return s
def pf_load(srd_b, dst):
    npf[0] += 1
    return I(f"buffer_load_dword a{aST + 10 + npf[0] % 6}, v{dst}, {srd(srd_b)}, 0 offen {OPT['PPF']}", tag='pf')
def pf_seq(srd_b, nlines, lines_per_row, pitch, idx, nshare):
    s = []
    for k in range((nlines // nshare + 255) // 256):
        s += pf_addr(nlines, lines_per_row, pitch, k, vPF+1, idx, nshare) + [pf_load(srd_b, vPF+1)]
    return s
vLQ = 26
def pf_pieces(srd_b, per, unit, idx, extra_base=None, pol='', rot=False):
    setup = [f"s_mul_i32 s{sSO2}, s{idx}, {per}", f"v_add_u32 v{vPF+1}, s{sSO2}, v{vLQ}", f"v_mul_u32_u24 v{vPF+1}, {unit}, v{vPF+1}"]
    if extra_base is not None: setup.append(f"v_add_u32 v{vPF+1}, s{extra_base}, v{vPF+1}")
    pcs = []
    for k in range((per + 63)//64):
        npf[0] += 1
        n_ = (per + 63)//64
        if rot and k == 0: so_ = [f"s_lshr_b32 s{sSO2}, s{sTC}, 1", f"s_sub_u32 s{sCNT}, s{sSO2}, {n_}", f"s_min_u32 s{sSO2}, s{sSO2}, s{sCNT}", f"s_mul_i32 s{sSO2}, s{sSO2}, {64*unit}"]
        elif rot: so_ = [f"s_add_u32 s{sSO2}, s{sSO2}, {64*unit}", f"s_sub_u32 s{sCNT}, s{sSO2}, {n_*64*unit}", f"s_min_u32 s{sSO2}, s{sSO2}, s{sCNT}"]
        else: so_ = [f"s_mov_b32 s{sSO2}, {k*64*unit}"]
        pcs.append(so_ + [I(f"buffer_load_dword a{aST + 9 + npf[0] % 7}, v{vPF+1}, {srd(srd_b)}, s{sSO2} offen {pol}", tag='pf')])
    return setup, pcs
def pf_run(streams, g0, g1):
    items = []
    for st_ in streams:
        su, pcs = st_
        for k, p_ in enumerate(pcs): items.append((su if k == 0 else []) + p_)
    n = len(items)
    for k, it_ in enumerate(items):
        lo = g0 + (k*(g1-g0))//n
        place(it_, lo, lo + 24)
if OPT['PF']:
    place([f"v_lshrrev_b32 v{vLQ}, 2, v0", f"s_lshl_b32 s{sSO2}, s{sW}, 4", f"v_add_u32 v{vLQ}, s{sSO2}, v{vLQ}"], 100, 130)
    if not OPT['BIG'] & 2 and not OPT['NOPF2'] & 4: pf_run([pf_pieces(sKK, 2048//(2*NT), 128, sKVI, pol=OPT['PPF']), pf_pieces(sVV, 2048//(2*NT), 128, sKVI, pol=OPT['PPF'])], OPT['PFG'], gap(phase['P4']))
    if not OPT['NOPF2'] & 1: pf_run([pf_pieces(sWO, 1792//16, 128, sT) if OPT['WOM'] else pf_pieces(sWO, 1792//NT, 128, sTL), (lambda z: (z[0], z[1][:OPT['W2N']]))(pf_pieces(sW2, 448, 896, sW2I, rot=OPT['W2ROT']))], gap(phase[f"G3_{OPT['PF0']}"]), gp1 if OPT['PF1'] == 0 else gap(phase[f"G3_{OPT['PF1']}"]))
    vPF += -20
    sSO2 = sT3
    if not OPT['NOPF2'] & 2: pf_run([pf_pieces(sWS, 256, 128, sCC, sHPF, 'sc1')], gp1 + 2, gap(phase[f"G3_{hs+OPT['HPF']}"]) - 20)
    vPF += 20
    sSO2 = 93

if OPT['STLB'] == 2:
    for k_, (b_, o_) in enumerate(((sKK, '0'), (sVV, '0'), (sW2, '0'), (sWO, '0'), (sWS, f's{sHST}'), (sWS, f's{sQT+7}'), (sOUT, '0'))):
        i_ = I(f"s_buffer_load_dword s1, {srd(b_)}, {o_}"); i_.cls = 'misc'; i_.dst = []
        place([i_], OPT['ST0'] + k_*OPT['STS'], OPT['ST0'] + k_*OPT['STS'] + 8)
if OPT['CPF'] and not OPT['STAMP']:
    gc = gap(phase[OPT['CPF']])
    place([f"s_lshr_b32 s{sT2}, s0, 3", f"s_lshl_b32 s{sT2}, s{sT2}, 10", f"s_add_u32 s{sT2}, s{sT2}, 0x8000", f"v_and_b32 v{vT2}, 7, v0", f"v_lshlrev_b32 v{vT2}, 7, v{vT2}",
           f"v_add_u32 v{vT2}, s{sT2}, v{vT2}", I(f"global_load_dword a{aST+9}, v{vT2}, s[26:27]", tag='pf')], gc, gc + 30)
if OPT['TLB']:
    gt = gap(phase[OPT['TLBP']])
    seq = []
    if OPT['TLB'] & 1: seq += [f"v_accvgpr_read_b32 v{vT1}, a{aST+8}", f"v_readfirstlane_b32 s{sT2}, v{vT1}", "s_nop 0", "s_nop 0", I(f"buffer_load_dword a{aST+9}, v{vZ}, {srd(sOUT)}, s{sT2} offen", tag='pf')]
    if OPT['TLB'] & 2: seq += [I(f"buffer_load_dword a{aST+9}, v{vZ}, {srd(sWS)}, s{sQT+7} offen sc1", tag='pf')]
    if OPT['TLB'] & 4: seq += [I(f"buffer_load_dword a{aST+9}, v{vZ}, {srd(sWS)}, s{sSG} offen sc1", tag='pf'), ]
    spread(seq, gt, gt + 40)
    if OPT['TLB'] & 8: place([I(f"buffer_load_dword a{aST+9}, v{vZ}, {srd(sWS)}, s{sHST} offen sc1", tag='pf')], gap(phase['P3']), gap(phase['P3']) + 20)
if OPT['FINE'] == 1:
    for p in range(1, 7): blk[phase[f'G4p{p}']] = stamp_ins(f'G4p{p}')
if OPT['FINE'] == 2:
    for nm in ['P1', 'P3', 'P5'] + [f'G2_{s_}' for s_ in range(1, 16) if s_ % 4] + ['G3_14', 'G3_15']:
        blk[phase[nm]] = stamp_ins(nm)
if OPT['STAMP'] or OPT['WAITAT']:
    for nm in ('P0', 'P2', 'P4', 'G2_0', 'G2_4', 'G2_8', 'G2_12', 'G6'):
        blk.setdefault(phase[nm], [])
        blk[phase[nm]] = stamp_ins(nm) + blk[phase[nm]]

E(f"""
s_cmp_ge_u32 s2, 256
s_cbranch_scc1 L_end
s_load_dwordx16 s[4:19], s[0:1], 0
s_load_dwordx4 s[20:23], s[0:1], 64
s_load_dwordx2 s[24:25], s[0:1], 80
""")
if OPT['STAMP'] or OPT['WAITAT']: E("s_memtime s[98:99]\ns_memrealtime s[100:101]")
E(f"""
v_lshrrev_b32 v{vT0}, 6, v0
v_and_b32 v0, 63, v0
s_and_b32 s{sT0}, s2, 7
v_readfirstlane_b32 s{sW}, v{vT0}
s_lshr_b32 s{sT1}, s2, 3
s_and_b32 s{sT2}, s{sT0}, {NHG-1}
s_lshl_b32 s{sT2}, s{sT2}, {lg(HX)}
s_and_b32 s{sHD}, s{sT1}, {HX-1}
s_add_u32 s{sHD}, s{sHD}, s{sT2}
s_lshr_b32 s{sT2}, s{sT0}, {lg(NHG)}
s_lshl_b32 s{sT2}, s{sT2}, {lg(NT)}
s_lshr_b32 s{sTL}, s{sT1}, {lg(HX)}
s_add_u32 s{sT}, s{sTL}, s{sT2}
s_lshl_b32 s{sWB}, s{sW}, 12
""")
CODE_LINES = 512
E(f"s_lshr_b32 s{sCNT}, s2, 3")
for t_ in pf_addr(CODE_LINES, None, 0, 0, vR+80, sCNT, 32): E(t_)
E(f"""
s_getpc_b64 s[26:27]
L_pc:
global_load_dword v{vR+90}, v{vR+80}, s[26:27]
""")
E(f"""
v_lshrrev_b32 v{vT3}, 3, v0
v_and_b32 v{vT4}, 7, v0
v_lshrrev_b32 v{vT1}, 1, v{vT3}
v_xor_b32 v{vT1}, v{vT1}, v{vT4}
v_lshlrev_b32 v{vT1}, 4, v{vT1}
v_xor_b32 v{vT2}, 64, v{vT1}
s_lshl_b32 s{sT1}, s{sT}, 2
s_add_u32 s{sT1}, s{sT1}, s{sW}
s_mul_i32 s{sT1}, s{sT1}, {32*896}
v_mul_u32_u24 v{vT0}, 896, v{vT3}
v_add_u32 v{vT0}, s{sT1}, v{vT0}
v_add_u32 v{vXD}, v{vT0}, v{vT1}
v_add_u32 v{vXD+1}, v{vT0}, v{vT2}
v_add_u32 v{vXD+2}, {2*6144}, v{vXD}
v_add_u32 v{vXD+3}, {3*6144}, v{vXD+1}
v_add_u32 v{vXD+1}, 6144, v{vXD+1}
s_mov_b32 m0, s{sWB}
s_mov_b32 s{sSO}, 0
v_min_u32 v{vR+82}, 13, v0
v_subrev_u32 v{vR+83}, 7, v{vR+82}
v_min_u32 v{vR+83}, v{vR+83}, v{vR+82}
v_sub_u32 v{vR+82}, v{vR+82}, v{vR+83}
v_lshlrev_b32 v{vR+82}, 11, v{vR+82}
v_lshl_add_u32 v{vR+82}, v{vR+83}, 7, v{vR+82}
s_mul_i32 s{sT2}, s{sHD}, 896
s_add_u32 s{sT2}, s{sT2}, s{sT1}
s_mov_b32 s{sX+2}, {2048*896}
s_mov_b32 s{sX+3}, 0x00020000
s_waitcnt lgkmcnt(0)
s_mov_b32 s{sX}, s4
s_mov_b32 s{sX+1}, s5
""")
if OPT['STAMP']: E(f"v_writelane_b32 v{vSTAMP}, s98, 60\nv_writelane_b32 v{vSTAMP}, s100, 61")
if OPT['WAITAT']: E('s_mov_b32 s1, s100')
PST('karg')
def mk_srd(b, plo, off_sgpr, size):
    if off_sgpr is None:
        E(f"s_mov_b32 s{b}, s{plo}\ns_mov_b32 s{b+1}, s{plo+1}")
    else:
        E(f"s_add_u32 s{b}, s{plo}, s{off_sgpr}\ns_addc_u32 s{b+1}, s{plo+1}, 0")
    E(f"s_mov_b32 s{b+2}, {size}\ns_mov_b32 s{b+3}, 0x00020000")
xdma = []
for tg in range(2):
    for q in range(7):
        if q or tg:
            xdma += [I(f"s_add_u32 m0, s{sWB}, {q*SLOT}"), I(f"s_movk_i32 s{sSO}, {q*128}")]
        for rb in (2*tg, 2*tg+1):
            xdma.append(I(f"buffer_load_dwordx4 v{vXD+rb}, {srd(sX)}, s{sSO} offen offset:{rb*1024} {OPT['PX']} lds", tag=('x', tg, q)))
def xissue(n):
    while n > 0 and xdma:
        i_ = xdma.pop(0); P.ins.append(i_)
        if i_.cls == 'vmem': n -= 1
if OPT['XPF']: E(f"buffer_load_dword a{aST+9}, v{vR+82}, {srd(sX)}, s{sT2} offen", tag='pf')
xissue(OPT['XFIRST'])
if OPT['STLB'] >= 3:
    lst = [("s[10:11]", 0), ("s[10:11]", 400*8192), ("s[16:17]", 0), ("s[24:25]", WS_F + 0x10000)]
    if OPT['STLB'] >= 4: lst += [("s[6:7]", 'kv'), ("s[8:9]", 'kv'), ("s[18:19]", 0), ("s[20:21]", 0), ("s[12:13]", 0), ("s[12:13]", 4000*896)]
    for p_, o_ in lst:
        if o_ == 'kv': E(f"s_lshl_b32 s{sCNT}, s{sHD}, 19")
        else: E(f"s_mov_b32 s{sCNT}, {hx(o_)}")
        i_ = I(f"s_load_dword s1, {p_}, s{sCNT}"); i_.dst = []; P.ins.append(i_)
E(f"s_lshl_b32 s{sT0}, s{sHD}, 9\ns_sub_u32 s{sT2}, {448*8192}, s{sT0}")
mk_srd(sWQ, 10, sT0, f"s{sT2}")
wqpf = [I(t_) if isinstance(t_, str) else t_ for t_ in pf_seq(sWQ, 448*OPT['WQP'], OPT['WQP'], 8192, sTL, NT)] if OPT['PF'] and OPT['WQP'] else []
if OPT['WQE'] == 1: P.ins += wqpf; wqpf = []
else: P.ins += wqpf[:-1]; wqpf = wqpf[-1:]
xissue(OPT['XSEC'])
PST('x_first')
mk_srd(sOUT, 20, None, 2048*896)
E(f"""
s_lshl_b32 s{sT0}, s{sW}, 7
v_lshlrev_b32 v{vKD}, 9, v{vT3}
v_add_u32 v{vVD}, s{sT0}, v{vKD}
v_add_u32 v{vKD}, v{vVD}, v{vT1}
v_add_u32 v{vKD+1}, v{vVD}, v{vT2}
v_add_u32 v{vKD+2}, {2*3072}, v{vKD}
v_add_u32 v{vKD+3}, {3*3072}, v{vKD+1}
v_add_u32 v{vKD+1}, 3072, v{vKD+1}
v_and_b32 v{vT0}, 6, v{vT3}
v_xor_b32 v{vT0}, v{vT0}, v{vT4}
v_lshlrev_b32 v{vT0}, 4, v{vT0}
v_add_u32 v{vVD}, v{vVD}, v{vT0}
""")
for rb in range(1, 4): E(f"v_add_u32 v{vVD+rb}, {3072*rb}, v{vVD}")
E(f"""
v_and_b32 v{vT1}, 4, v{vT3}
v_add_u32 v{vT1}, v{vT1}, v{vT3}
v_lshl_add_u32 v{vWQ}, v{vT1}, 13, v{vT0}
v_mul_u32_u24 v{vT1}, 3584, v{vT1}
v_add_u32 v{vW1D}, v{vT1}, v{vT0}
""")
for rb in range(1, 4):
    rr = 16*(rb & 1) + 4*(rb >> 1)
    E(f"v_add_u32 v{vW1D+rb}, {rr*3584 - 1024*rb}, v{vW1D}\nv_add_u32 v{vWQ+rb}, {rr*8192 - 1024*rb}, v{vWQ}")
E(f"""
s_lshl_b32 s{sT1}, s{sHD}, 8
s_sub_u32 s{sT2}, {448*3584}, s{sT1}
s_cmp_lt_u32 s{sHD}, 14
s_cselect_b32 s{sT2}, s{sT2}, 0
s_cselect_b32 s{sT1}, s{sT1}, 0
""")
mk_srd(sW1, 16, sT1, f"s{sT2}")
E(f"s_lshr_b32 s{sT0}, s{sHD}, 1\ns_lshl_b32 s{sT0}, s{sT0}, 20\ns_add_u32 s{sT0}, s{sT0}, {1536*512}")
mk_srd(sKK, 6, sT0, 262144)
mk_srd(sVV, 8, sT0, 262144)
E(f"s_mul_i32 s{sT0}, s{sHD}, {256*896}")
mk_srd(sWO, 12, sT0, 256*896)
E(f"""
s_lshr_b32 s{sPC}, s2, 3
s_and_b32 s{sPC}, s{sPC}, 15
s_cmp_ge_u32 s{sPC}, 7
s_cselect_b32 s{sT3}, 1, 0
s_mul_i32 s{sT1}, s{sT3}, 7
s_sub_u32 s{sT1}, s{sPC}, s{sT1}
s_lshl_b32 s{sT0}, s{sT1}, 7
s_sub_u32 s{sT2}, {1792*896}, s{sT0}
s_cmp_lt_u32 s{sPC}, 14
s_cselect_b32 s{sT2}, s{sT2}, 0
s_cselect_b32 s{sT0}, s{sT0}, 0
""")
mk_srd(sW2, 18, sT0, f"s{sT2}")
if OPT['WSOFF']:
    E(f"s_mov_b32 s{sT0}, {hx(OPT['WSOFF'] << 20)}")
    mk_srd(sWS, 24, sT0, WS_SIZE)
else:
    mk_srd(sWS, 24, None, WS_SIZE)
for k_, R_ in ((0, 32*8192), (2, 32*3584)):
    E(f"""
s_mul_i32 s{sW1T+k_}, s{sW}, {R_}
s_cmp_lt_u32 s{sW}, 2
s_mov_b32 s{sT2}, {hx(128 - 2*R_)}
s_cselect_b32 s{sT0}, {12*R_}, s{sT2}
s_add_u32 s{sW1T+k_+1}, s{sW1T+k_}, s{sT0}
""")
E(f"""
v_mul_u32_u24 v{vT1}, 896, v{vT3}
v_add_u32 v{vT1}, v{vT1}, v{vT0}
s_mul_i32 s{sT0}, s{sW}, {32*896}
s_mul_i32 s{sT2}, s{sW}, {448*896}
""")
for rb in range(4):
    if rb: E(f"v_add_u32 v{vT1}, 6144, v{vT1}")
    E(f"v_add_u32 v{vT2}, s{sT0}, v{vT1}\nv_accvgpr_write_b32 a{aST+rb}, v{vT2}\nv_add_u32 v{vT2}, s{sT2}, v{vT1}\nv_accvgpr_write_b32 a{aST+4+rb}, v{vT2}")
E(f"""
v_lshlrev_b32 v{vL16}, 4, v0
v_lshrrev_b32 v{vT0}, 2, v0
v_lshlrev_b32 v{vT1}, 7, v{vT0}
v_and_b32 v{vT2}, 3, v0
v_lshl_add_u32 v{vT1}, v{vT2}, 3, v{vT1}
v_bfe_u32 v{vT3}, v0, 3, 2
""")
for u in range(4):
    E(f"""
v_xor_b32 v{vT4}, {u}, v{vT3}
v_lshl_add_u32 v{vTR+u}, v{vT4}, 5, v{vT1}
v_add_u32 v{vTR+4+u}, 0x10000, v{vTR+u}
v_add_u32 v{vTR+8+u}, 0x20000, v{vTR+u}
""")
E(f"""
v_and_b32 v{vT0}, 15, v0
v_lshrrev_b32 v{vT1}, 1, v{vT0}
v_lshrrev_b32 v{vT2}, 4, v0
v_xor_b32 v{vT1}, v{vT1}, v{vT2}
v_lshlrev_b32 v{vT4}, 7, v{vT0}
v_lshl_add_u32 v{vRA}, v{vT1}, 4, v{vT4}
v_xor_b32 v{vRA+1}, 64, v{vRA}
v_add_u32 v{vRA+2}, 0x10000, v{vRA}
v_add_u32 v{vRA+3}, 0x10000, v{vRA+1}
v_add_u32 v{vRA+4}, 0x20000, v{vRA}
v_add_u32 v{vRA+5}, 0x20000, v{vRA+1}
""")
vXR = vR + 72
for i in range(4): E(f"v_add_u32 v{vXR+i}, s{sWB}, v{vRA+i}")
E(f"""
s_and_b32 s{sTC}, s2, 7
s_lshl_b32 s{sTC}, s{sTC}, 1
s_lshr_b32 s{sT0}, s2, 7
s_add_u32 s{sTC}, s{sTC}, s{sT0}
s_lshl_b32 s{sW2I}, s{sT0}, 1
s_add_u32 s{sW2I}, s{sW2I}, s{sT3}
s_lshl_b32 s{sT2}, s{sTC}, 1
s_add_u32 s{sT2}, s{sT2}, s{sT3}
s_lshl_b32 s{sT0}, s{sT2}, 2
s_add_u32 s{sT0}, s{sT0}, s{sW}
s_mul_i32 s{sT0}, s{sT0}, {16*896}
s_lshl_b32 s{sSG}, s{sT1}, 7
s_add_u32 s{sT0}, s{sT0}, s{sSG}
v_lshrrev_b32 v{vT0}, 3, v0
v_mul_u32_u24 v{vT0}, 896, v{vT0}
v_and_b32 v{vT2}, 7, v0
v_lshl_add_u32 v{vT0}, v{vT2}, 4, v{vT0}
v_add_u32 v{vT0}, s{sT0}, v{vT0}
v_accvgpr_write_b32 a{aST+8}, v{vT0}
s_lshl_b32 s{sT2}, s{sT2}, 1
s_lshr_b32 s{sT0}, s{sW}, 1
s_add_u32 s{sSG}, s{sT2}, s{sT0}
s_lshl_b32 s{sFLP}, s{sSG}, 9
s_mul_i32 s{sSG}, s{sSG}, 7
s_add_u32 s{sSG}, s{sSG}, s{sT1}
s_lshl_b32 s{sSG}, s{sSG}, 2
s_add_u32 s{sFLP}, s{sFLP}, {hx(WS_F)}
s_and_b32 s{sT0}, s{sW}, 1
s_add_u32 s{sSG}, s{sSG}, s{sT0}
s_lshl_b32 s{sSG}, s{sSG}, 14
s_mul_i32 s{sHLD}, s{sT2}, {56*2048}
s_add_u32 s{sHLD}, s{sHLD}, {hx(WS_H)}
s_cmp_lt_u32 s{sPC}, 14
s_cselect_b32 s{sCOOB}, 0, {hx(OOB)}
s_add_u32 s{sHPF}, s{sHLD}, s{sCOOB}
s_mul_i32 s{sT0}, s{sW}, {14*2048}
s_add_u32 s{sHLD}, s{sHLD}, s{sT0}
s_mov_b32 s0, s2
s_mov_b32 s{sCC}, s{sT1}
s_lshl_b32 s{sKVI}, s{sTL}, 1
s_and_b32 s{sT0}, s{sHD}, 1
s_add_u32 s{sKVI}, s{sKVI}, s{sT0}
s_lshl_b32 s{sT1}, s{sT}, 2
s_add_u32 s{sT1}, s{sT1}, s{sW}
s_lshl_b32 s{sFLG}, s{sT1}, 9
s_add_u32 s{sFLG}, s{sFLG}, s{sHD}
v_min_u32 v{vPOLL}, 2, v0
v_lshlrev_b32 v{vPOLL}, 7, v{vPOLL}
s_add_u32 s{sFLG}, s{sFLG}, {hx(WS_F)}
s_mul_i32 s{sHST}, s{sT1}, {56*2048}
s_min_u32 s{sT2}, s{sHD}, 13
s_lshl_b32 s{sT2}, s{sT2}, 13
s_add_u32 s{sHST}, s{sHST}, s{sT2}
s_add_u32 s{sHST}, s{sHST}, {hx(WS_H)}
s_cmp_lt_u32 s{sHD}, 14
s_cselect_b32 s{sT2}, 0, {hx(OOB)}
v_add_u32 v{vHS}, s{sT2}, v{vL16}
v_mov_b32 v{vZ}, 0
v_mov_b32 v{vONE}, 1
""")
PST('addr_done')
xissue(14 - OPT['XFIRST'] - OPT['XSEC'])
if OPT['WQE'] == 0: P.ins += wqpf; wqpf = []
PST('x_issued')
PRODUCER = len(P.ins)
E(f"""
s_lshl_b32 s{sSST}, s{sT}, 2
s_add_u32 s{sSST}, s{sSST}, s{sW}
s_mul_i32 s{sSST}, s{sSST}, {28*16384}
s_cmp_ge_u32 s{sHD}, 7
s_cselect_b32 s{sT3}, 1, 0
s_sub_u32 s{sROT}, s{sHD}, 7
s_min_u32 s{sROT}, s{sROT}, s{sHD}
s_sub_u32 s{sCNT}, s{sROT}, 7
s_min_u32 s{sROT}, s{sROT}, s{sCNT}
s_cmp_lt_u32 s{sHD}, 14
s_cselect_b32 s{sT3}, s{sT3}, s{sHD}
s_cselect_b32 s{sSTEP}, 2048, 0
s_lshl_b32 s{sT3}, s{sT3}, 10
s_add_u32 s{sSST}, s{sSST}, s{sT3}
""")
prod_ins = []
if OPT['STLB'] == 1:
    for b_, o_ in ((sKK, '0'), (sVV, '0'), (sWQ, '0'), (sWQ, f'{hx(400*8192)}')[:2], (sWO, '0'), (sW1, '0'), (sW2, '0'), (sOUT, '0'),
                   (sWS, f's{sSST}'), (sWS, f's{sHST}'), (sWS, hx(WS_F + 0x10000))):
        if o_.startswith('0x'): E(f"s_mov_b32 s{sCNT}, {o_}"); o_ = f's{sCNT}'
        i_ = I(f"s_buffer_load_dword s1, {srd(b_)}, {o_}"); i_.cls = 'smem'; i_.dst = []; P.ins.append(i_)
for s_, val in ((sM1, 0x2222222222222222), (sM2, 0xCCCCCCCCCCCCCCCC), (sM3, 0x8888888888888888), (sMD, 0xF0000F0000F0000F)):
    E(f"s_mov_b32 s{s_}, {hx(val)}\ns_mov_b32 s{s_+1}, {hx(val >> 32)}")

vONES = vR + 16
vD1 = vR + 20
vD2 = vR + 28
vLA = vR + 36
for i in range(4): E(f"v_mov_b32 v{vONES+i}, 0x3f803f80")
def rbf(r):
    return [f"v_cvt_pk_bf16_f32 v{r}, v{r}, v{r}", f"v_lshlrev_b32 v{r}, 16, v{r}"]
E(f"s_mov_b32 s{sT0}, {hx(f2u(1.0/448.0))}\ns_mov_b32 s{sT1}, {hx(f2u(1e-5))}\ns_mov_b32 s{sT2}, {hx(f2u(CSCALE))}")
if OPT['PADS']:
    E(f"""
s_mov_b64 exec, 0
s_cmp_eq_u32 s{sW}, 0
s_cbranch_scc1 L_pg0
s_cmp_eq_u32 s{sW}, 1
s_cbranch_scc1 L_pg1
s_cmp_eq_u32 s{sW}, 2
s_cbranch_scc1 L_pg2
s_branch L_pg3
.p2align 12
L_main:
s_mov_b64 exec, -1
""")
STAMP('pro_done')
vNT = vR + 44
NPRO = OPT['NPRO']
big = []
if OPT['BIG'] & 1:
    t_ = pf_seq(sWQ, 448*2, 2, 8192, sTL, NT); t_[-1] = I(t_[-1].text.replace('offen', 'offen offset:256'), tag='pf'); big += t_
    big += pf_seq(sW1, 448*2, 2, 3584, sTL, NT)
if OPT['BIG'] & 2:
    t_ = pf_seq(sKK, 2048, None, 0, sKVI, 2*NT); big += t_ + [pf_load(sVV, vPF+1)]
big = [I(t_) if isinstance(t_, str) else t_ for t_ in big]
assert len(pro_dma) == NPRO
L0N = OPT['L0N']
late = {0: [i_ for d_ in pro_dma[:L0N] for i_ in d_],
        1: [i_ for d_ in pro_dma[3:] for i_ in d_]
           + big + [I(f"buffer_store_byte v{vZ}, v{vPOLL}, {srd(sWS)}, s{sFLG} offen sc1", tag='hst')]}
def xreads(tg, q):
    r = [mk_wait_vm([('x', tg, q)])]
    for ks in (2*q, 2*q+1):
        ad = q*SLOT + tg*2048
        r.append(I(f"ds_read_b128 {v(xn(ks,tg),4)}, v{vXR + (ad >> 16)*2 + (ks & 1)} offset:{ad & 0xffff}", tag=('xr', tg, q)))
    return r
def stats(tg, q, fill):
    P.wait_lgkm_tag([('xr', tg, q)])
    for ks in (2*q, 2*q+1):
        X = v(xn(ks, tg), 4)
        for m_ in (mfma(v(vD1+4*tg, 4), v(vONES, 4), X, "0" if ks == 0 else v(vD1+4*tg, 4)), mfma(v(vD2+4*tg, 4), X, X, "0" if ks == 0 else v(vD2+4*tg, 4))):
            E(m_)
            t_ = 0
            while fill and t_ + cost(fill[0]) <= 12:
                t_ += cost(fill[0]); P.ins.append(fill.pop(0))
def scalars(tg):
    d = vD2 + 4*tg; m = vD1 + 4*tg; t = m + 1; L = vLA + 4*tg
    s = [f"v_cndmask_b32 v{d}, v{d}, v{d+1}, s[{sM1}:{sM1+1}]",
         f"v_cndmask_b32 v{d+2}, v{d+2}, v{d+3}, s[{sM3}:{sM3+1}]",
         f"v_mul_f32 v{m}, s{sT0}, v{m}",
         f"v_cndmask_b32 v{d}, v{d}, v{d+2}, s[{sM2}:{sM2+1}]",
         f"v_cndmask_b32 v{d}, 0, v{d}, s[{sMD}:{sMD+1}]"]
    s += allred(d, t, "v_add_f32")
    s += [f"v_mul_f32 v{d}, s{sT0}, v{d}",
          f"v_fma_f32 v{d}, -v{m}, v{m}, v{d}",
          f"v_max_f32 v{d}, 0, v{d}"]
    s += interleave(rbf(m), rbf(d))
    s += [f"v_add_f32 v{d}, s{sT1}, v{d}"] + rbf(d) + [f"v_sqrt_f32 v{d}, v{d}"] + rbf(d)
    s += [f"v_rcp_f32 v{d}, v{d}", f"v_mul_f32 v{d}, s{sT2}, v{d}",
          f"v_cvt_pk_bf16_f32 v{d}, v{d}, v{d}",
          f"v_and_b32 v{L}, 0xffff, v{d}", f"v_lshlrev_b32 v{L+1}, 16, v{d}",
          f"v_mul_f32 v{L+2}, -v{m}, v{L+1}"]
    for t_ in s: E(t_)
def normalize(tg, side):
    L = vLA + 4*tg; k = 0; pend = []
    for ks in range(14):
        for r in range(4):
            x_ = xn(ks, tg) + r
            t = vNT + 2*(k % 8); k += 1
            E(f"v_dot2_f32_bf16 v{t}, v{x_}, v{L}, v{L+2}\nv_dot2_f32_bf16 v{t+1}, v{x_}, v{L+1}, v{L+2}")
            pend.append(f"v_cvt_pk_bf16_f32 v{x_}, v{t}, v{t+1}")
            if len(pend) > 2: E(pend.pop(0))
            P.ins += side.get(k, [])
    for t_ in pend: E(t_)
for q in range(7):
    P.ins += xreads(0, q)
    if q in (0, 3, 6): PST(f'w0{q}')
    xissue(2)
    if q > 1: stats(0, q-2, [])
fill = wqpf + late[0]
stats(0, 5, fill); stats(0, 6, fill)
P.ins += fill
STAMP('x0_arrived')
scalars(0)
X1 = OPT['X1']
normalize(0, {X1 + 4*q: xreads(1, q) for q in range(7)})
PST('ln0_done')
fill = [i_ for d_ in pro_dma[L0N:3] for i_ in d_]
for q in range(7):
    if q == 1: P.wait_lgkm_tag([('xr', 1, 6)]); fill += late[1]
    stats(1, q, fill)
P.ins += fill
STAMP('x1_arrived')
scalars(1)
fr_ = [i_ for f in range(D) for i_ in frag_reads(f)]
side = {OPT['BARK']: [mk_wait_vm(first_need), I("s_barrier")]}
for k_, i_ in enumerate(fr_): side.setdefault(min(OPT['BARK'] + 1 + k_, 56), []).append(i_)
normalize(1, side)
if OPT['DUMP'] == 'xn':
    P.ins += dump([v(xn(ks, tg), 4) for ks in range(14) for tg in range(2)])

P.ins.append(mk_wait_lg([('f', f) for f in range(4)]))
est = 0
for g in range(NF):
    if g in blk: P.ins += blk[g]
    for h, m_ in enumerate(MF[g]):
        gp = G0[g] + h
        P.ins.append(I(m_))
        P.ins += pre[gp] + rds[gp] + ext[gp]
        est += max(16, gtime(pre[gp] + rds[gp] + ext[gp]))
if OPT['LOG']:
    ph = sorted((f_, n_) for n_, f_ in phase.items())
    for (f0_, n_), (f1_, _) in zip(ph, ph[1:]):
        e_ = sum(max(16, gtime(pre[q_] + rds[q_] + ext[q_])) for q_ in range(gap(f0_), gap(f1_)))
        print(f"  phase {n_}: est {e_} ideal {16*(gap(f1_)-gap(f0_))}", file=sys.stderr)
print("estimated main-stream cycles", est, "ideal", 16*NG, file=sys.stderr)

STAMP('g6_done')
def fs(u, w_): return facc(u, w_)
def smf(rl, sl):
    r = []
    for tg in range(2):
        d = v(vsa(rl*2+tg), 4)
        r.append(mfma(d, v(vSEL + (2 if tg == 0 else 0), 4), greg(rl, sl), "0" if sl == 0 else d))
    return r
msA = [m_ for sq in range(0, 2*F0, 2) for rl in range(2) for sl in (sq, sq+1) for m_ in smf(rl, sl)]
if not OPT['C2G']: E(f"s_waitcnt vmcnt({NYB})")
n2 = OPT['N2']
rest = list(glC)
def last_test():
    if F1 < 7 and not OPT['C2G']:
        STAMP('pre_c2')
        P.wait_vm_tag(['poll2'])
        E(f"v_cmp_ne_u32 vcc, 1, v{vPOLL}\ns_cbranch_vccnz L_spin2\nL_spin2_ret:")
        STAMP('chk2')
last_test()
for _ in range(6):
    if rest: P.ins.append(rest.pop(0))
for i_ in fwrites(3):
    P.ins.append(i_)
    if msA: E(msA.pop(0))
while rest and len(glC) - len(rest) < n2:
    P.ins.append(rest.pop(0))
    if P.ins[-1].cls == 'vmem' and msA: E(msA.pop(0))
E("s_waitcnt lgkmcnt(0)\ns_barrier")
doneB = [(rl, sl) for sq in range(2*F0, NSB, 2) for rl in range(2) for sl in (sq, sq+1)]
lateB = doneB[len(doneB) - 2*OPT['PCB']:]; doneB = doneB[:len(doneB) - 2*OPT['PCB']]
msA += [m_ for rl, sl in doneB for m_ in smf(rl, sl)]
for u in range(4):
    for j in range(1, 4):
        E(f"ds_read_b128 {v(fs(u, j), 4)}, v{FRR[j-1]} offset:{u*1024}")
        if msA: E(msA.pop(0))
P.ins += rest
def with_m(l):
    if OPT['PKNOP']: E(f"s_nop {OPT['PKNOP']-1}")
    for t_ in l:
        if msA: E(msA.pop(0))
        E(t_)
R4 = [tuple(fs(u, w_) for w_ in range(4)) for u in range(4)]
for b0, b1, b2, b3 in R4:
    for r in (0, 2): E(f"v_pk_add_f32 {v(b0+r,2)}, {v(b0+r,2)}, {v(b1+r,2)}\nv_pk_add_f32 {v(b2+r,2)}, {v(b2+r,2)}, {v(b3+r,2)}")
    for r in (0, 2): E(f"v_pk_add_f32 {v(b0+r,2)}, {v(b0+r,2)}, {v(b2+r,2)}")
    for r in (0, 2): E(f"v_pk_mul_f32 {v(b1+r,2)}, {v(b0+r,2)}, v[24:25] op_sel:[0,0] op_sel_hi:[1,0]")
    for r in (0, 2): E(f"v_pk_mul_f32 {v(b0+r,2)}, {v(b0+r,2)}, v[24:25] op_sel:[0,1] op_sel_hi:[1,1]")
with_m([f"v_exp_f32 v{b[1]+r}, v{b[1]+r}" for b in R4 for r in range(4)])
for b in R4:
    for r in (0, 2): E(f"v_pk_add_f32 {v(b[1]+r,2)}, {v(b[1]+r,2)}, 1.0 op_sel_hi:[1,0]")
lastC = lateB + [(rl, sl) for sq in range(NSB, 16, 2) for rl in range(2) for sl in (sq, sq+1)]
NC1 = OPT['NC1']
msA += [m_ for rl, sl in lastC[:NC1] for m_ in smf(rl, sl)]; lastC = lastC[NC1:]
with_m([f"v_rcp_f32 v{b[1]+r}, v{b[1]+r}" for b in R4 for r in range(4)])
for m_ in msA: E(m_)
STAMP('g_done')
gm_ = [f"v_mul_f32 v{b[0]+r}, v{b[0]+r}, v{b[1]+r}" for b in R4 for r in range(4)]
for rl, sl in lastC:
    for m_ in smf(rl, sl):
        E(m_)
        for _ in range(2):
            if gm_: E(gm_.pop(0))
for t_ in gm_: E(t_)
for u in range(4):
    b0 = fs(u, 0)
    for r in (0, 2): E(f"v_pk_fma_f32 {v(b0+r,2)}, {v(vsa(u)+r,2)}, {v(b0+r,2)}, {v(vXU+u*4+r,2)}")
    E(f"v_cvt_pk_bf16_f32 v{b0}, v{b0}, v{b0+1}\nv_cvt_pk_bf16_f32 v{b0+1}, v{b0+2}, v{b0+3}")
    E(f"ds_write_b64 v{vPF}, {v(b0,2)} offset:{u*32}")
E(f"""
ds_read_b128 {v(vXF,4)}, v{vT4}
ds_read_b128 {v(vXF+4,4)}, v{vT4} offset:1152
buffer_store_dwordx4 {v(vXF,4)}, v{vAD}, {srd(sOUT)}, 0 offen {OPT['OST']}
buffer_store_dwordx4 {v(vXF+4,4)}, v{vAD}, {srd(sOUT)}, s{sSV1} offen {OPT['OST']}
""")
if OPT['WAITAT']: STAMP('end')
if OPT['STAMP']:
    STAMP('end')
    E(f"""
L_fin:
s_memrealtime s[{sSTMP}:{sSTMP+1}]
s_waitcnt lgkmcnt(0)
v_writelane_b32 v{vSTAMP}, s{sMISS}, 59
v_writelane_b32 v{vSTAMP}, s{sSTMP}, 62
s_lshl_b32 s{sT0}, s0, 2
s_add_u32 s{sT0}, s{sT0}, s{sW}
s_lshl_b32 s{sT0}, s{sT0}, 8
s_add_u32 s{sT0}, s{sT0}, {hx(WS_DBG)}
v_lshlrev_b32 v{vT0}, 2, v0
buffer_store_dword v{vSTAMP}, v{vT0}, {srd(sWS)}, s{sT0} offen
""")
E("L_end:\ns_endpgm")
main_ins, log, stats_ = resolve(P.ins)
print("main", stats_, file=sys.stderr)
if OPT['LOG']:
    for l in log: print("  ", l, file=sys.stderr)

Q = Prog(); E = Q.emit
SPIN_MAX = 1 << 17
def spin(label, load, want, cmp):
    E(f"""
{label}:
s_mov_b32 s{sCNT}, {SPIN_MAX}
{label}_loop:
s_sleep 1
{load}
s_waitcnt vmcnt(0)
v_cmp_{cmp}_u32 vcc, {want}, v{vPOLL}
s_sub_u32 s{sCNT}, s{sCNT}, 1
s_cmp_eq_u32 s{sCNT}, 0
s_cbranch_scc1 {label}_ret
s_cbranch_vccnz {label}_loop
s_branch {label}_ret
""")
spin("L_spinh", f"s_lshl_b32 s{sT0}, s{sTC}, 4\nv_mov_b32 v{vT0}, s{sT0}\nglobal_load_dword v{vPOLL}, v{vT0}, {DBGP} sc1", 16, "gt")
spin("L_spin1", VPOLL, 1, "ne")
if F1 < 7: spin("L_spin2", VPOLL2, 1, "ne")
E("L_redo:\ns_waitcnt vmcnt(0)")
Q.ins += gloads(0, 2*F0, vHS)
E("s_branch L_redo_ret")
MISC = [c['lo'] for c in chunks if c['name'] == 'V_15'][0]
fK, fS, fP, fA, fV, fR, fM = 44, 76, 108, 116, 117, 121, 102
E(f"""
L_exact:
s_waitcnt vmcnt(0) lgkmcnt(0)
s_nop 15
s_mov_b32 s{sSV0}, m0
v_and_b32 v{fA}, 15, v0
v_lshlrev_b32 v{fA}, 9, v{fA}
v_and_b32 v{fM}, 48, v0
v_add_u32 v{fA}, v{fA}, v{fM}
s_lshl_b32 s{sSV1}, s{sW}, 7
s_add_u32 s{sSV2}, s{sWB}, {MISC}
""")
for i in range(4):
    E(f"v_subrev_u32 v{fV+i}, s{sSV1}, v{vVD+i}\nv_add_u32 v{fR+i}, s{sSV2}, v{vTR+i}")
E(f"v_mov_b32 v{fM}, 0xff800000\nv_mov_b32 v{fM+1}, 0xff800000\ns_mov_b32 s{sSV1}, 0")
def ktile(kt, cinit):
    for ks in range(8):
        E(f"buffer_load_dwordx4 {v(fK+4*ks,4)}, v{fA}, {srd(sKK)}, s{sSV1} offen offset:{ks*64}")
    E(f"s_add_u32 s{sSV1}, s{sSV1}, 8192\ns_waitcnt vmcnt(0)")
    for ks in range(8):
        for tg in range(2):
            d = v(fS + tg*8 + kt*4, 4)
            E(mfma(d, v(fK+4*ks, 4), a(qf(ks, tg), 4), (cinit(tg) if ks == 0 else d)))
    E("s_nop 15")
E("L_exact_p1:")
ktile(0, lambda tg: "0")
for tg in range(2):
    b = fS + tg*8
    E(f"v_max3_f32 v{fM+tg}, v{fM+tg}, v{b}, v{b+1}\nv_max3_f32 v{fM+tg}, v{fM+tg}, v{b+2}, v{b+3}")
E(f"s_cmp_lt_u32 s{sSV1}, 262144\ns_cbranch_scc1 L_exact_p1")
for tg in range(2):
    for t_ in allred(fM+tg, fM+2, "v_max_f32"): E(t_)
    for r in range(4): E(f"v_sub_f32 v{vC+4*tg+r}, 0, v{fM+tg}")
for r in range(128): E(f"v_mov_b32 v{vO+r}, 0")
E(f"v_mov_b32 v{vLS}, 0\nv_mov_b32 v{vLS+1}, 0\ns_mov_b32 s{sSV1}, 0\ns_add_u32 m0, s{sWB}, {MISC}\ns_nop 3")
E("L_exact_p2:")
E(f"s_mov_b32 s{sSV2}, s{sSV1}")
ktile(0, lambda tg: v(vC+4*tg, 4))
ktile(1, lambda tg: v(vC+4*tg, 4))
for r in range(16): E(f"v_exp_f32 v{fS+r}, v{fS+r}")
for r in range(16): E(f"v_add_f32 v{vLS + r//8}, v{vLS + r//8}, v{fS+r}")
for r in range(8): E(f"v_cvt_pk_bf16_f32 v{fP+r}, v{fS+2*r}, v{fS+2*r+1}")
for cb in range(4):
    for rb in range(4):
        E(f"buffer_load_dwordx4 v{fV+rb}, {srd(sVV)}, s{sSV2} offen offset:{rb*1024} lds")
    E(f"s_add_u32 s{sSV2}, s{sSV2}, 128\ns_waitcnt vmcnt(0)")
    for u in range(4):
        E(f"ds_read_b64_tr_b16 {v(fK+4*u,2)}, v{fR+u}\nds_read_b64_tr_b16 {v(fK+4*u+2,2)}, v{fR+u} offset:2048")
    E("s_waitcnt lgkmcnt(0)")
    for u in range(4):
        for tg in range(2):
            d = v(Oreg(cb*4+u, tg), 4)
            E(mfma(d, v(fK+4*u, 4), v(fP+4*tg, 4), d))
    E("s_nop 7")
E(f"s_cmp_lt_u32 s{sSV1}, 262144\ns_cbranch_scc1 L_exact_p2")
for tg in range(2):
    for t_ in allred(vLS+tg, fM+2, "v_add_f32"): E(t_)
    E(f"v_rcp_f32 v{vRC+tg}, v{vLS+tg}")
E("s_nop 15")
for i in range(12): E(f"v_add_u32 v{vTP+i}, s{sWB}, v{vTR+i}")
E(f"s_mov_b32 m0, s{sSV0}\ns_nop 15\ns_branch L_exact_ret")
sub_ins, log2, stats2 = resolve(Q.ins)

def sizes_of(ins):
    import subprocess, tempfile, re as re_
    body = [i_ for i_ in ins if i_.cls not in ('label', 'dir')]
    txt_ = '.amdgcn_target "amdgcn-amd-amdhsa--gfx950"\n.text\nL_any:\n' + ''.join('    ' + (re_.sub(r'L_\w+', 'L_any', i_.text) if i_.cls == 'branch' else i_.text) + '\n' for i_ in body)
    d_ = tempfile.mkdtemp()
    open(d_ + '/a.s', 'w').write(txt_)
    subprocess.run(['clang', '-x', 'assembler', '-target', 'amdgcn-amd-amdhsa', '-mcpu=gfx950', '-c', d_ + '/a.s', '-o', d_ + '/a.o'], check=True)
    out_ = subprocess.run(['llvm-objdump', '-d', '--mcpu=gfx950', d_ + '/a.o'], capture_output=True, text=True).stdout
    sz = [4*len(m_.group(1).split()) for m_ in re_.finditer(r'// [0-9A-F]+: ((?:[0-9A-F]{8} ?)+)', out_)]
    assert len(sz) == len(body), (len(sz), len(body))
    return {id(i_): s_ for i_, s_ in zip(body, sz)}
if OPT['PADS']:
    sz = sizes_of(main_ins)
    k0 = [k_ for k_, i_ in enumerate(main_ins) if i_.text == 'L_main:'][0]
    out_ = main_ins[:k0+1]; off = 0; npg = 0
    for i_ in main_ins[k0+1:]:
        if i_.cls not in ('label', 'dir'):
            lo = (npg + 1)*4096
            if npg < OPT['NPG'] and off >= lo and (i_.cls == 'mfma' or off + sz[id(i_)] > lo + 56):
                assert off < lo + 64
                out_.append(I(f"L_pg{npg}:")); out_.append(I(f"s_cbranch_execz L_pgn{npg}")); off += 4; npg += 1
            off += sz[id(i_)]
        out_.append(i_)
    for i_ in out_:
        if i_.text.startswith('s_cbranch_execz L_pgn'):
            k_ = int(i_.text.split('L_pgn')[1]) + 4
            i_.text = f"s_cbranch_execz L_pg{k_}" if k_ < npg else "s_cbranch_execz L_main"
    main_ins = out_
    print("code pages", npg, "bytes after L_main", off, file=sys.stderr)
hdr = open(os.path.join(os.path.dirname(os.path.abspath(__file__)), 'header.txt')).read()
txt = hdr + f"""; @launch grid=(256,1,1) block=(256,1,1) lds={LDS_BYTES}
.amdgcn_target "amdgcn-amd-amdhsa--gfx950"
.text
.globl {NAME}_kernel
.p2align 8
.type {NAME}_kernel,@function
{NAME}_kernel:
""" + render(main_ins) + render(sub_ins) + f"""L_pad:
    s_endpgm
.if (L_pad - {"L_main" if OPT["PADS"] else "L_pc"}) < {CODE_LINES*128}
.fill (({CODE_LINES*128} - (L_pad - {"L_main" if OPT["PADS"] else "L_pc"})) / 4) + 16, 4, 0xbf810000
.endif
.section .rodata,"a"
.p2align 6
.amdhsa_kernel {NAME}_kernel
  .amdhsa_next_free_vgpr 512
  .amdhsa_next_free_sgpr 102
  .amdhsa_accum_offset 256
  .amdhsa_group_segment_fixed_size 0
  .amdhsa_kernarg_size 88
  .amdhsa_user_sgpr_count 2
  .amdhsa_user_sgpr_kernarg_segment_ptr 1
  .amdhsa_system_sgpr_workgroup_id_x 1
.end_amdhsa_kernel
"""
if OPT['STAMP']: txt += '; STAMPS ' + ' '.join(stamp_names) + '\n'
open(sys.argv[1], 'w').write(txt)
```

```python
import sys, os, math, struct
from asmlib import *

NAME = "recurrent_scan__sliding_block_cached__dense_activation_relu__prompt"
OPT = dict(D=8, NA=12, HX=4, BAR=2, STAMP=0, PST=0, DUMP='', SIGG=60, FORCEFB=0, LOG=0,
           SST='sc1', HLD='sc1', HST='sc1', GLD='sc1', NOSST=0, NOHLD=0, NOHST=0,
           PX='', PW1='', PWQ='', PKV='', PWO='', PW2='', PF=1, PPF='', OST='', WSOFF=0, HSTEP=7, XREV=0, NPRO=3, WAITAT='', WAITT=0, WAITWG=-1, PADS=1, HSIG=150, HPF=0, PF0=0, PF1=14, CHAIN=1, WB=0, WBD=60, BIG=1, DSTART=0, W2ROT=1, NOPF2=2, HEND=40, XPF=1, L0N=1, X1=28, BARK=36, BARP=2, BARA=2, BAR4=2, SPAN=30, SPAN2=20, NV1=100, PKR=0, PCH=0, TLB=1, TLBP='G2_13', XG=0, STLB=0, ST0=4, STS=40, G6P='66666666666666', WOM=0, W2N=7, NPG=9, CPF='', SB2=0, PB2=60, CB2=110, LB2=215, NB2=10, ONORM=1, CE=105, LB=148, H2X=4, H2S=6, SB=52, LB2X=0, NSB=12, PCB=0, NO=0, NX=4, P2G=190, C2G=0, CW=0, NU=3, NC1=6, PKNOP=0, LNM=1, NA0=12, R0F=1, EPF=448, NOBARR=0, NOG=0, NOFLAG=0, W2G=-15, W2S=8, F0=3, F1=5, L0=0, W2PRE=14, H2A=2, H2B=30, SA=48, PA=-75, CA=26, LA=88, SC=26, PB=68, N2=18, G1N=10, XFIRST=4, XSEC=0, WQE=2, OEARLY=2, H2SPAN=60, PFG=170, WQP=2, FINE=0, RT=0, SIMPLE=0, SSP=0)
for a_ in sys.argv[2:]:
    k_, v_ = a_.split('=')
    OPT[k_] = v_.replace('+', ' ') if isinstance(OPT[k_], str) else int(v_)
D = OPT['D']; NA = OPT['NA']

RING_SLOTS = 10
SLOT = 16384
LDS_BYTES = 163840
WS_S = 0
WS_H = 0x1C00000
WS_F = 0x2300000
WS_DBG = 0x2400000
WS_SIZE = 0x8000000 if (OPT['DUMP'] or OPT['STAMP']) else 0x2400000
OOB = 0x7f000000
CSCALE = math.log2(math.e) / 16.0
def f2u(x): return struct.unpack('<I', struct.pack('<f', x))[0]
def hx(x): return f"0x{x & 0xffffffff:x}"

sX, sW1, sWQ, sKK, sVV, sWO, sW2, sWS, sOUT = 28, 32, 36, 40, 44, 48, 52, 56, 60
def srd(b): return f"s[{b}:{b+3}]"
sW, sHD, sT, sWB, sSO = 64, 65, 66, 67, 68
sT0, sT1, sT2, sT3 = 69, 70, 71, 3
sQT = 72
sHST, sHLD, sSST, sSG, sFLG, sFLP, sCNT, sSO2, sTL, sROT, sSTEP, sPC = 86, 87, 88, 89, 90, 91, 92, 93, 94, 95, 96, 97
sTC, sCOOB, sHPF, sW2I, sKVI, sCC = 19, 20, 21, 24, 25, 2
sW1T = 12
sM1, sM2, sM3, sMD = 4, 6, 8, 10
sSV0, sSV1, sSV2 = 12, 13, 14
sSTMP = 26
DBGP = "s[22:23]"
vL16, vHS, vT0, vT1, vT2, vT3, vT4 = 1, 2, 3, 4, 5, 6, 7
vTR = 8
vRA = 20
vPF = 26
vZ, vONE, vPOLL, vSTAMP = 28, 29, 30, 31
vWQ, vKD, vVD, vWOD, vW2D = 32, 36, 40, 32, 36
vXN = 44
vR = 156
vW1D = vR + 64
vXD = vR + 68
vO = 128
vS = 44
vP = 76
vC = 92
vLS = 100
vM = 106
vA4 = 44
vRC = 126
aF, aST, aQ, aH = 0, 48, 64, 128

def v(i, n=1): return f"v{i}" if n == 1 else f"v[{i}:{i+n-1}]"
def a(i, n=1): return f"a{i}" if n == 1 else f"a[{i}:{i+n-1}]"
def mfma(d, A, B, C): return f"v_mfma_f32_16x16x32_bf16 {d}, {A}, {B}, {C}"
def I(t, tag=None): return Ins(t, tag)
lg = lambda x: int(math.log2(x))

P = Prog()
E = P.emit

nstamp = [0]
stamp_names = []
def stamp_ins(name=''):
    if OPT['WAITAT'] and name == OPT['WAITAT']:
        return [I(t_) for t_ in ((f"s_cmp_lg_u32 s0, {OPT['WAITWG']}", "s_cbranch_scc1 L_end") if OPT['WAITWG'] >= 0 else ()) + ("L_dw:", f"s_memrealtime s[{sSTMP}:{sSTMP+1}]", "s_waitcnt lgkmcnt(0)", f"s_sub_u32 s{sSTMP}, s{sSTMP}, s1",
                                 f"s_cmp_lt_u32 s{sSTMP}, {OPT['WAITT']}", "s_cbranch_scc1 L_dw")]
    if not OPT['STAMP']: return []
    if OPT['STAMP'] == 3 and name not in ('end', 'attn_done', 'G4', 'wb0', 'wb1', 'G6', 'st_done', 'chk0', 'chk1', 'chk2', 'sigA', 'sigB', 'g6_done', 'g_done', 'pre_c2', 'pre_c1', 'pre_c0'): return []
    if OPT['STAMP'] == 2 and name not in ('end', 'G4', 'P0', 'G2_0', 'g6_done'): return []
    n = nstamp[0]; nstamp[0] += 1; stamp_names.append(name)
    return [I(f"{'s_memrealtime' if OPT['RT'] else 's_memtime'} s[{sSTMP}:{sSTMP+1}]"), I("s_waitcnt lgkmcnt(0)"), I(f"v_writelane_b32 v{vSTAMP}, s{sSTMP}, {n}")]
def STAMP(name=''):
    P.ins += stamp_ins(name)
def PST(name):
    if OPT['PST']: STAMP(name)

frags = []
chunks = []
def add_chunk(name, lo, size, dma, private=False):
    chunks.append(dict(name=name, lo=lo, hi=lo+size, dma=dma, private=private, first=None, last=None)); return len(chunks)-1
def add_frag(kind, rs, rb, addr, mf, ch):
    frags.append(dict(kind=kind, rb=rb, rs=rs, addr=addr, mf=mf, chunk=ch))
    c = chunks[ch]
    if c['first'] is None: c['first'] = len(frags)-1
    c['last'] = len(frags)-1
def frag_reads(f):
    fr = frags[f]; A = aF + 4*(f % NA)
    def rd(op, dst, addr):
        win = addr >> 16
        return I(f"{op} {dst}, v{fr['rb'] + win*fr['rs']} offset:{addr & 0xffff}", tag=('f', f))
    if fr['kind'] == 'tr':
        return [rd("ds_read_b64_tr_b16", a(A, 2), fr['addr']), rd("ds_read_b64_tr_b16", a(A+2, 2), fr['addr'] + 2048)]
    return [rd("ds_read_b128", a(A, 4), fr['addr'])]
POL = {sW1: 'PW1', sWQ: 'PWQ', sKK: 'PKV', sVV: 'PKV', sWO: 'PWO', sW2: 'PW2'}
ring_pos = [7]
def ring_round(name, srd_b, vbase, so_text, private=False):
    slot = ring_pos[0] % RING_SLOTS; ring_pos[0] += 1
    lo = slot*SLOT
    tag = ('c', len(chunks))
    dma = [I(f"s_add_u32 m0, s{sWB}, {lo}")]
    if so_text.startswith('s') or so_text == '0': so = so_text
    elif so_text.startswith('+'):
        dma.append(I(f"s_add_u32 s{sSO}, {so_text[1:]}")); so = f"s{sSO}"
    else:
        dma.append(I(f"s_mov_b32 s{sSO}, {so_text}")); so = f"s{sSO}"
    for rb in range(4):
        dma.append(I(f"buffer_load_dwordx4 v{vbase+rb}, {srd(srd_b)}, {so} offen offset:{rb*1024} {OPT[POL[srd_b]]} lds", tag=tag))
    return add_chunk(name, lo, SLOT, dma, private)

phase = {}
def xn(ks, tg): return vXN + (ks*2 + tg)*4
def accp(pp, kq, tg, par): return vR + (pp % 2)*32 + ((kq*2 + tg)*2 + par)*4
pend_ = []
for pp in range(6):
    phase[f'P{pp}'] = len(frags)
    for ks in range(14):
        qi = 14*pp + ks
        if qi % 4 == 0:
            r_ = qi // 4
            blk_, rp = r_ // 7, r_ % 7
            R_ = 32*(8192 if blk_ < 2 else 3584); sb = sW1T + (0 if blk_ < 2 else 2); cb_ = 256 if blk_ == 1 else 0
            so_ = f"+s{sb+1}, {cb_}" if rp == 3 else f"+s{sb}, {(4*rp*R_ if rp < 3 else (4*rp-14)*R_ + 128) + cb_}"
            ch = ring_round(f"wq_{r_}", sWQ, vWQ, so_) if r_ < 14 else ring_round(f"w1_{r_-14}", sW1, vW1D, so_)
        pend_.append((ks, qi, ch))
        if OPT['PCH'] and ks % 2 == 0: continue
        for u2 in range(2):
            for u in (2*u2, 2*u2+1):
                for ks_, qi_, ch_ in pend_:
                    mf = (lambda A, pp=pp, ks=ks_, u=u: [mfma(v(accp(pp, u >> 1, tg, u & 1), 4), A, v(xn(ks, tg), 4), "0" if ks == 0 else v(accp(pp, u >> 1, tg, u & 1), 4)) for tg in range(2)])
                    add_frag('tr', 4, vTR + u, chunks[ch_]['lo'] + (qi_ % 4)*4096, mf, ch_)
        pend_ = []
def qf(kq, tg): return aQ + (kq*2 + tg)*4
def Sreg(st, tg, kt): return vS + (st % 2)*16 + tg*8 + kt*4
def Preg(st, tg): return vP + (st % 2)*8 + tg*4
def Oreg(d, tg): return vO + (((d >> 1)*2 + tg)*2 + (d & 1))*4
def G2(st):
    phase[f'G2_{st}'] = len(frags)
    ch = ring_round(f"K_{st}", sKK, vKD, str(st*16384))
    order = [(kt, ks) for kt in range(2) for ks in range(8)]
    for kt, ks in order:
        def mf(A, kt=kt, ks=ks):
            r = []
            for tg in range(2):
                c = v(Sreg(st, tg, kt), 4)
                if ks == 0: c = "0" if st < 1 else v(vC + 4*tg, 4)
                r.append(mfma(v(Sreg(st, tg, kt), 4), A, a(qf(ks, tg), 4), c))
            return r
        add_frag('b128', 2, vRA + (ks & 1), chunks[ch]['lo'] + (ks >> 1)*4096 + kt*2048, mf, ch)
def G3(st):
    phase[f'G3_{st}'] = len(frags)
    ch = ring_round(f"V_{st}", sVV, vVD, str(st*16384))
    for d in range(16):
        mf = (lambda A, d=d: [mfma(v(Oreg(d, tg), 4), A, v(Preg(st, tg), 4), "0" if st == 0 else v(Oreg(d, tg), 4)) for tg in range(2)])
        add_frag('tr', 4, vTR + (d & 3), chunks[ch]['lo'] + (d >> 2)*4096, mf, ch)
G2(0)
for st in range(15):
    G2(st + 1); G3(st)
G3(15)
phase['AEND'] = len(frags)
def acc4(p, u, tg): return hole(8 + ((u >> 1)*2 + tg)*2 + (u & 1))
def Opk(ks, tg): return vO + (ks*2 + tg)*8
def hole(i): return vO + 8*i + 4
def hreg(kk, t4):
    i = kk*4 + t4
    if i < 32: return a(aH + 4*i, 4)
    if i < 48: return a(aQ + 4*(i-32), 4)
    return v(hole(i-48), 4)
def facc(u, t4):
    return vA4 + 4*(u*4 + t4)
vTP = 108
G6P = OPT['G6P']
assert len(G6P) == 14
kk = 0
NU = OPT['NU']
def g6step(kk):
    ks_ = [kk] if kk < 14 - NU else list(range(14 - NU, 14))
    if kk > ks_[0]: return
    for k2 in ks_: phase[f'G6_{k2}'] = len(frags)
    chs_ = {k2: ring_round(f"w2_{k2}", sW2, vW2D, str(k2*32*896), private=True) for k2 in ks_}
    for u in range(4):
        for k2 in ks_:
            mf = (lambda A, kk=k2, u=u: [mfma(v(facc(u, t4), 4), A, hreg(kk, t4), "0" if kk == 0 else v(facc(u, t4), 4)) for t4 in range(4)])
            add_frag('tr', 4, vTP + u, chunks[chs_[k2]]['lo'], mf, chs_[k2])
while kk < OPT['NO']: g6step(kk); kk += 1
phase['G4'] = len(frags)
for p in range(7):
    phase[f'G4p{p}'] = len(frags)
    chs = [ring_round(f"wo_{p}_{h_}", sWO, vWOD, f"s{sQT+p}" if h_ == 0 else f"+s{sQT+p}, {4*32*896}") for h_ in range(2)]
    for u in range(4):
        for ks in range(8):
            ch = chs[ks // 4]
            mf = (lambda A, p=p, ks=ks, u=u: [mfma(v(acc4(p, u, tg), 4), A, v(Opk(ks, tg), 4), "0" if ks == 0 else v(acc4(p, u, tg), 4)) for tg in range(2)])
            add_frag('tr', 4, vTR + u, chunks[ch]['lo'] + (ks % 4)*4096, mf, ch)
    if p == 6: phase['G6'] = len(frags); NPOST = 14 - kk
    while kk < 14 and int(G6P[kk]) == p:
        g6step(kk)
        kk += 1
assert kk == 14
NF = len(frags)
phase['END'] = NF

MF = [fr['mf'](a(aF + 4*(f % NA), 4)) for f, fr in enumerate(frags)]
if OPT['CHAIN']:
    for f0 in range(0, NF, 4):
        nm_ = chunks[frags[f0]['chunk']]['name']
        if nm_.startswith('K_') or nm_.startswith('wo_') or (OPT['PCH'] and nm_[:2] in ('wq', 'w1')):
            fl = [MF[f0+k_][tg] for tg in range(2) for k_ in range(4)]
            for k_ in range(4): MF[f0+k_] = fl[2*k_:2*k_+2]
G0 = [0]
for f in range(NF): G0.append(G0[-1] + len(MF[f]))
NG = G0[-1]
def gap(f): return G0[max(0, min(f, NF))]
pre = [[] for _ in range(NG)]
rds = [[] for _ in range(NG)]
ext = [[] for _ in range(NG)]
blk = {}
for g in range(NF):
    if g + D < NF:
        r = frag_reads(g + D)
        n = len(MF[g])
        rds[G0[g]].append(r[0])
        if len(r) > 1: rds[G0[g] + n//2].append(r[1])
def cost(i):
    if i.cls in ('ds',): return 8
    if i.cls == 'vmem': return 24 if 'store' in i.op and 'x4' in i.op else 8
    if i.cls in ('trans', 'perm'): return 8
    if i.cls == 'label': return 0
    return 4
def gtime(items):
    t = 4
    for i in items:
        if i.cls in VALU_LIKE: t = max(t, 8)
        t += cost(i)
    return t
def fits(gp, i): return gtime(pre[gp] + rds[gp] + ext[gp] + [i]) <= 16
def place(seq, g0, g1=None):
    seq = [I(s) if isinstance(s, str) else s for s in seq]
    g1 = NG if g1 is None else min(g1, NG)
    gp = g0; n = len(seq)
    for k, ins in enumerate(seq):
        bound = max(min(g0 + ((k + 1) * (g1 - g0)) // n - 1, g1 - 1), gp)
        best = None
        for q in range(gp, bound + 1):
            if fits(q, ins): best = q; break
        if best is None:
            best = min(range(gp, bound + 1), key=lambda q: (gtime(pre[q] + rds[q] + ext[q] + [ins]), q))
        ext[best].append(ins)
        gp = best
    return gp
def spread(seq, g0, g1):
    n = len(seq); cur = g0
    for k, ins in enumerate(seq):
        lo = max(g0 + (k*(g1-g0))//n, cur); hi = max(g0 + ((k+1)*(g1-g0))//n, lo+1)
        cur = place([ins], lo, hi)
    return cur

shared = [c for c in range(len(chunks)) if not chunks[c]['private']]
def is_bar(k_):
    if k_ == 0: return True
    if k_ < 21: return (k_ - 1) % OPT['BARP'] == 0
    if k_ < 53: return (k_ - 21) % OPT['BARA'] == 0
    return (k_ - 53) % OPT['BAR4'] == 0
bar_frags = [chunks[c]['first'] for k_, c in enumerate(shared) if is_bar(k_)]
bar_frags += [phase['G6'], phase['G6'] + D + 1]
bar_frags = sorted(set(bar_frags))
bar_gap = []
first_need = None
for bi, f0 in enumerate(bar_frags):
    f1 = bar_frags[bi+1] if bi + 1 < len(bar_frags) else NF
    need = [('c', c) for c in shared if f0 <= chunks[c]['first'] < f1]
    if f0 == 0: first_need = need; continue
    gp = gap(f0 - D); bar_gap.append(gp)
    if need: ext[gp-1].append(mk_wait_vm(need))
    pre[gp].append(I("s_barrier" if not (OPT['NOBARR'] and gp < gap(phase['AEND']) - 40) else "s_nop 0"))
for c in range(len(chunks)):
    if chunks[c]['private']:
        ext[gap(chunks[c]['first'] - D) - 1].append(mk_wait_vm([('c', c)]))
for g in range(4, NF, 4):
    ext[gap(g) - 1].append(mk_wait_lg([('f', f) for f in range(g, min(g+4, NF))]))
def earliest_gap(c):
    e = -1
    C = chunks[c]
    for c2 in range(c):
        B = chunks[c2]
        if B['hi'] <= C['lo'] or C['hi'] <= B['lo']: continue
        if B['private']: e = max(e, gap(B['last'] + 1))
        else: e = max(e, [gp for gp in bar_gap if gp >= gap(B['last'] + 1)][0] + 1)
    return e
pro_dma = []
cur = OPT['DSTART']
for c in range(len(chunks)):
    e = earliest_gap(c)
    if e < 0 and c < OPT['NPRO']:
        pro_dma.append(chunks[c]['dma']); continue
    if chunks[c]['name'].startswith('w2_') and int(chunks[c]['name'][3:]) >= OPT['W2PRE']: e = max(e, gap(phase['G6']) + OPT['W2G'])
    g0 = max(e, cur)
    span = OPT['SPAN']
    if g0 > e + 8: span = OPT['SPAN2']
    if g0 >= gap(phase['G6'] - D): span = OPT['W2S']
    seq = list(chunks[c]['dma'])
    if chunks[c]['name'] == 'wo_0_0': seq = [I(f"v_accvgpr_read_b32 v{vWOD+i}, a{aST+i}") for i in range(4)] + seq; wo_first_gap = g0
    if chunks[c]['name'] == 'w2_0': seq = [I(f"v_accvgpr_read_b32 v{vW2D+i}, a{aST+4+i}") for i in range(4)] + seq
    cur = spread(seq, g0, g0 + span)
    need_gap = gap(chunks[c]['first'] - D)
    if not chunks[c]['private']: need_gap = max(gp for gp in bar_gap if gp <= need_gap)
    if OPT['LOG']: print(chunks[c]['name'], g0, cur, need_gap, 'lead', need_gap - cur, file=sys.stderr)
    assert cur < need_gap - 1, (chunks[c]['name'], cur)

seq = []
for p in range(7):
    seq += [f"s_add_u32 s{sT2}, s{sROT}, {p}", f"s_sub_u32 s{sT3}, s{sT2}, 7", f"s_min_u32 s{sT2}, s{sT2}, s{sT3}",
            f"s_lshl_b32 s{sQT+p}, s{sT2}, 7", f"s_lshl_b32 s{sT2}, s{sT2}, 16", f"s_add_u32 s{sQT+7+p}, s{sSST}, s{sT2}",
            f"s_add_u32 s{sSST}, s{sSST}, s{sSTEP}"]
spread(seq, 6, 100)
assert gap(phase['G3_8']) < wo_first_gap
assert OPT['BAR'] == 2
place([f"v_add_u32 v{vTP+i}, s{sWB}, v{vTR+i}" for i in range(12)], gap(phase['G3_12']), gap(phase['G3_14']))

def hconv(pp):
    s = []
    for kq in range(2):
        for tg in range(2):
            b = accp(pp, kq, tg, 0)
            if not OPT['PKR']:
                for r in range(8): s.append(f"v_max_f32 v{b+r}, 0, v{b+r}")
            for r in range(4): s.append(f"v_cvt_pk_bf16_f32 v{b+r}, v{b+2*r}, v{b+2*r+1}")
            if OPT['PKR']:
                for r in range(4): s.append(f"v_pk_max_i16 v{b+r}, v{b+r}, 0")
            if not OPT['NOHST']:
                s.append(I(f"buffer_store_dwordx4 {v(b,4)}, v{vHS}, {srd(sWS)}, s{sHST} offen offset:{kq*2048 + tg*1024} {OPT['HST']}", tag='hst'))
    if pp == 4: s.append(f"s_add_u32 s{sHST}, s{sHST}, 4096")
    return s
place(hconv(4), gap(phase['P5']) + 4, gap(phase['G2_0']) - 4)
def qconv(pp):
    s = []
    for kq in range(2):
        for tg in range(2):
            b = accp(pp, kq, tg, 0)
            s += [f"v_cvt_pk_bf16_f32 v{b+r}, v{b+2*r}, v{b+2*r+1}" for r in range(4)]
            s += [f"v_permlane32_swap_b32 v{b}, v{b+2}", f"v_permlane32_swap_b32 v{b+1}, v{b+3}",
                  f"v_permlane16_swap_b32 v{b}, v{b+2}", f"v_permlane16_swap_b32 v{b+1}, v{b+3}"]
            s += [f"v_accvgpr_write_b32 a{qf(2*pp+kq, tg)+r}, v{b+r}" for r in range(4)]
    return s
for pp in range(4):
    g0 = gap(phase[f'P{pp+1}'])
    place(qconv(pp), g0 + 4, g0 + 2*56 - 4)

def allred(r, t, op):
    return [f"v_mov_b32 v{t}, v{r}", f"v_permlane32_swap_b32 v{r}, v{t}", f"{op} v{r}, v{r}, v{t}",
            f"v_mov_b32 v{t}, v{r}", f"v_permlane16_swap_b32 v{r}, v{t}", f"{op} v{r}, v{r}, v{t}"]
def interleave(*seqs):
    out = []
    for k in range(max(len(s) for s in seqs)):
        for s in seqs:
            if k < len(s): out.append(s[k])
    return out
def svals(st): return [Sreg(st, tg, kt) + r for tg in range(2) for kt in range(2) for r in range(4)]
g0 = gap(phase['G2_0'])
seqs = []
for tg in range(2):
    b = Sreg(0, tg, 0); m = vM + 2*tg; t = m + 1
    s = [f"v_max3_f32 v{m}, v{b}, v{b+1}, v{b+2}", f"v_max_f32 v{m}, v{m}, v{b+3}"] + allred(m, t, "v_max_f32")
    s += [f"v_sub_f32 v{vC+4*tg+r}, 0, v{m}" for r in range(4)]
    seqs.append(s)
seq = interleave(*seqs) + [f"v_mov_b32 v{vLS}, 0", f"v_mov_b32 v{vLS+1}, 0"]
gm = place(seq, g0 + 19, g0 + 31)
def sm_seq(st, sub):
    s = []
    vals = svals(st)
    for k_, r in enumerate(vals):
        tg = k_ // 8
        if sub: s.append(f"v_add_f32 v{r}, v{r}, v{vC+4*tg}")
        s.append(f"v_exp_f32 v{r}, v{r}")
        if k_ % 2 == 1 and k_ >= 3:
            kk = k_ - 3
            s.append(f"v_cvt_pk_bf16_f32 v{Preg(st, kk//8) + (kk % 8)//2}, v{vals[kk]}, v{vals[kk+1]}")
    s.append(f"v_cvt_pk_bf16_f32 v{Preg(st, 1) + 3}, v{vals[14]}, v{vals[15]}")
    return s
def add_seq(st):
    vals = svals(st)
    return interleave([f"v_add_f32 v{vLS}, v{vLS}, v{r}" for r in vals[:8]], [f"v_add_f32 v{vLS+1}, v{vLS+1}, v{r}" for r in vals[8:]])
for st in range(16):
    g3 = gap(phase[f'G3_{st}'])
    if st == 0:
        ge = place(sm_seq(st, True), gap(phase['G2_1']) + 3, g3 - 1)
    elif st < 15:
        gs = gap(phase[f'G2_{st+1}'] - D)
        ge = place(sm_seq(st, False), gs, g3 - 2)
    else:
        ge = place(sm_seq(st, False), gap(phase['G3_14']) + 4, g3 - 2)
    lim = gap(phase[f'G2_{st+2}']) - 2 if st + 2 < 16 else g3 + 14
    ga = place(add_seq(st), ge, lim)
seqs = []
for tg in range(2):
    l = vLS + tg; t = vM + tg
    seqs.append(allred(l, t, "v_add_f32") + [f"v_rcp_f32 v{vRC+tg}, v{l}"])
seq = interleave(*seqs) + [f"v_add_f32 v{vM}, v{vLS}, v{vLS+1}", f"s_mov_b32 s{sT0}, {hx(f2u(2.0**24 if not OPT['FORCEFB'] else 0.5))}", f"v_cmp_ngt_f32 vcc, s{sT0}, v{vM}"]
place(seq, ga, gap(phase['AEND']) - 1)

hc = hconv(5)
n3 = 3*len(hc)//4
place(hc[:n3], gap(phase['G2_0']) + 3, gap(phase['G2_0']) + 19)
gend = place(hc[n3:], gap(phase['G3_0']), gap(phase['G3_0']) + 16)
assert accp(5, 1, 1, 0) >= Oreg(10, 0)
hb = [gp for gp in bar_gap if gp > gend + OPT['HSIG']][0]
ext[hb-1].append(mk_wait_vm(['hst']))
sig = [I(f"s_cmp_lg_u32 s{sW}, 0"), I("s_cbranch_scc1 L_nosig"), I(f"s_lshl_b32 s{sT0}, s{sT}, 4"), I(f"v_mov_b32 v{vPOLL}, s{sT0}"),
       I("s_mov_b64 exec, 1"), I(f"global_atomic_add v{vPOLL}, v{vONE}, {DBGP} sc1"), I("s_mov_b64 exec, -1"), I("L_nosig:")]
sig[5].cls = 'misc'
ext[hb+1] += sig

def dump(regs_list):
    r = [I("s_nop 15"), I(f"s_lshl_b32 s{sT0}, s{sT}, 4"), I(f"s_add_u32 s{sT0}, s{sT0}, s{sHD}"),
         I(f"s_lshl_b32 s{sT0}, s{sT0}, 2"), I(f"s_add_u32 s{sT0}, s{sT0}, s{sW}"),
         I(f"s_mul_i32 s{sT0}, s{sT0}, {32*1024}"), I(f"s_add_u32 s{sT0}, s{sT0}, {hx(WS_DBG)}")]
    for reg in regs_list:
        r.append(I(f"buffer_store_dwordx4 {reg}, v{vL16}, {srd(sWS)}, s{sT0} offen"))
        r.append(I(f"s_add_u32 s{sT0}, s{sT0}, 1024"))
    r.append(I("s_nop 3"))
    return r
def ocvt(ks): return [f"v_cvt_pk_bf16_f32 v{Opk(ks, tg)+r}, v{Opk(ks, tg)+2*r}, v{Opk(ks, tg)+2*r+1}" for tg in range(2) for r in range(4)]
if OPT['ONORM']:
    def ocvt(ks):
        s = []
        for tg in range(2):
            o = Opk(ks, tg)
            s += [f"v_pk_mul_f32 {v(o+2*r,2)}, {v(o+2*r,2)}, {v(vRC,2)} op_sel:[0,{tg}] op_sel_hi:[1,{tg}]" for r in range(4)]
        for tg in range(2):
            o = Opk(ks, tg)
            s += [f"v_cvt_pk_bf16_f32 v{o+r}, v{o+2*r}, v{o+2*r+1}" for r in range(4)]
        return s
NEARLY = 0 if OPT['ONORM'] else OPT['OEARLY']
g15 = gap(phase['G3_15'])
for ks in range(NEARLY): place(ocvt(ks), g15 + 4*ks + 8, gap(phase['G4']) - 1)
assert NEARLY == 0
b = stamp_ins('attn_done') + [I("s_cbranch_vccnz L_exact"), I("L_exact_ret:")]
NX = OPT['NX'] if OPT['NO'] else 8
for ks in range(NX): b += [I(t_) for t_ in ocvt(ks)]
blk[phase['AEND']] = b
if OPT['NO']:
    seq = []
    for ks in range(NX, 8):
        for tg in range(2):
            o = Opk(ks, tg)
            seq += [f"v_mul_f32 v{o+r}, v{vRC+tg}, v{o+r}" for r in range(8)] + [f"v_cvt_pk_bf16_f32 v{o+r}, v{o+2*r}, v{o+2*r+1}" for r in range(4)]
    ONSEQ = seq
    b = []
if OPT['DUMP'] == 'o': b += dump([v(Opk(ks, tg), 4) for ks in range(8) for tg in range(2)])
if OPT['DUMP'] == 'q': b += dump([a(qf(ks, tg), 4) for ks in range(8) for tg in range(2)])
b += stamp_ins('G4')
blk[phase['G4']] = b

def sconv(p, u):
    s = []
    for tg in range(2):
        b = acc4(p, u, tg); d = acc4(p, u & ~1, tg) + 2*(u & 1)
        if not OPT['ONORM']: s += [f"v_mul_f32 v{b+r}, v{vRC + tg}, v{b+r}" for r in range(4)]
        s += [f"v_cvt_pk_bf16_f32 v{d}, v{b}, v{b+1}", f"v_cvt_pk_bf16_f32 v{d+1}, v{b+2}, v{b+3}"]
        if u & 1:
            if (u, tg) != (1, 0): s.append(f"s_add_u32 s{sQT+7+p}, s{sQT+7+p}, 16384")
            if not OPT['NOSST']: s.append(I(f"buffer_store_dwordx4 {v(acc4(p, u & ~1, tg),4)}, v{vL16}, {srd(sWS)}, s{sQT+7+p} offen {OPT['SST']}", tag=('sst', p)))
    return s
g4 = gap(phase['G4'])
for p in range(7):
    for u in range(4):
        g0 = gap(phase[f'G4p{p}']) + 16*(u+1)
        if u == 3 and p < 6: gl = place(sconv(p, u), g0 + 3, g0 + 28)
        else: gl = place(sconv(p, u), g0 + 3, g0 + (19 if (p, u) != (6, 3) else 10))
last_store_gap = gl
hs = OPT['HSTEP']
gp0 = gap(phase[f'G3_{hs-1}']) - 30
place([f"s_lshl_b32 s{sT0}, s{sTC}, 4", f"v_mov_b32 v{vPOLL}, s{sT0}", I(f"global_load_dword v{vPOLL}, v{vPOLL}, {DBGP} sc1", tag='pollh'),
       f"v_add_u32 v{vHS}, s{sCOOB}, v{vL16}"], gp0, gp0 + 24)
gp1 = gap(phase[f'G3_{hs}'])
ext[gp1] += [mk_wait_vm(['pollh']), I(f"v_cmp_gt_u32 vcc, 16, v{vPOLL}"), I("s_cbranch_vccnz L_spinh"), I("L_spinh_ret:")]
sHB = 98
def hloads(k0, k1):
    s = []
    for kk in range(k0, k1, 2):
        for j in range(4):
            s.append(f"s_add_u32 s{sT0}, s{sHB+j}, {kk*2048}")
            for k2 in range(2):
                s.append(I(f"buffer_load_dwordx4 {hreg(kk+k2, j)}, v{vHS}, {srd(sWS)}, s{sT0} offen offset:{k2*2048} {OPT['HLD']}", tag='hld'))
    return s
seq = []
for j in range(4):
    seq += [f"s_add_u32 s{sT2}, s{sW}, {j}", f"s_bfe_u32 s{sT3}, s{sT2}, 0x10001", f"s_mul_i32 s{sT3}, s{sT3}, {56*2048}", f"s_and_b32 s{sT2}, s{sT2}, 1",
            f"s_lshl_b32 s{sT2}, s{sT2}, 10", f"s_add_u32 s{sT2}, s{sT2}, s{sT3}", f"s_add_u32 s{sHB+j}, s{sHLD}, s{sT2}"]
spread(seq, gap(phase['P2']), gap(phase['P3']))
if not OPT['NOHLD']:
    spread(hloads(0, 8), gap(phase[f"G3_{hs+OPT['HPF']}"]) + 2, gap(phase['G3_15']) - OPT['HEND'])
    if OPT['H2X']:
        hl = [I(s_) if isinstance(s_, str) else s_ for s_ in hloads(8, 8 + OPT['H2X'])]
        b_ = blk[phase['AEND']]
        k0 = [k_ for k_, i_ in enumerate(b_) if i_.text == 'L_exact_ret:'][0]
        for k_, i_ in enumerate(hl): b_.insert(k0 + 1 + k_*OPT['H2S'], i_)
    spread(hloads(8 + OPT['H2X'], 14), g4 + OPT['H2A'], g4 + OPT['H2B'])
if OPT['NO']: place(ONSEQ, gap(phase['AEND']) + 1, gap(phase['G4']) - 1)
g6 = gap(phase['G6'])
vFV = 120
def greg(rl, sl):
    i = sl*2 + rl
    if NPOST <= 10: i = (i + 16) % 32
    if i < 16: return v(Opk(0, 0) + 8*i, 4)
    return a(aH + (i - 16)*4, 4)
assert OPT['CA'] > 0 or (NPOST <= 10 and g6 + OPT['CA'] > gap(phase['G6_3'] + 4))
def gloads(s0, s1, va):
    s = []
    for sq in range(s0, s1, 2):
        for rl in range(2):
            s.append(I(f"s_add_u32 s{sT1}, s{sSG}, {rl*2*16384 + sq*1024}"))
            for sl in range(sq, sq+2):
                if not OPT['NOG']: s.append(I(f"buffer_load_dwordx4 {greg(rl, sl)}, v{va}, {srd(sWS)}, s{sT1} offen offset:{(sl-sq)*1024} {OPT['GLD']}", tag=('g', rl, sl)))
    return s
F0 = OPT['F0']
sPL = 32
sMISS = 18
F1 = OPT['F1']
place([f"v_and_b32 v{vFV+3}, 15, v0"], g4 + 100, g4 + 200)
def signal(k, n): return [mk_wait_vm([('sst', p) for p in range(n)]), I(f"buffer_store_byte v{vONE}, v{vZ}, {srd(sWS)}, s{sFLG} offen offset:{128*k} sc1", tag='flag')]
spoll = I(f"s_buffer_load_dwordx4 s[{sPL}:{sPL+3}], {srd(sWS)}, s{sFLP} glc"); spoll.cls = 'misc'
VPOLL2 = f"buffer_load_ubyte v{vPOLL}, v{vFV+3}, {srd(sWS)}, s{sFLP} offen offset:256 sc1"
VPOLL = VPOLL2 if F1 == 7 else VPOLL2.replace('offset:256', 'offset:128')
ext[gap(phase[f'G4p{F0-1}']) + 64 + OPT['SA']] += signal(0, F0) + stamp_ins('sigA')
if F1 < 7: ext[gap(phase[f'G4p{F1-1}']) + 64 + OPT['SB']] += signal(1, F1) + stamp_ins('sigB')
ext[g6 + OPT['PA']] += [spoll]
sg = g6 + OPT['SC']
ext[sg] += signal(2, 7) + stamp_ins('st_done') + [I(f"s_cmp_ge_u32 s{sPC}, 14"), I("s_cbranch_scc1 " + ("L_fin" if OPT['STAMP'] == 3 else "L_end"))]
assert sg > bar_gap[-1] and sg > last_store_gap
ext[g6 + OPT['CA']] += stamp_ins('pre_c0') + [I(t_) for t_ in (
    "s_waitcnt lgkmcnt(0)", f"s_and_b64 s[{sPL}:{sPL+1}], s[{sPL}:{sPL+1}], s[{sPL+2}:{sPL+3}]", f"s_and_b32 s{sPL}, s{sPL}, s{sPL+1}",
    f"s_and_b32 s{sPL}, s{sPL}, 0x01010101", f"s_cmp_eq_u32 s{sPL}, 0x01010101", f"s_cselect_b32 s{sMISS}, 0, {hx(OOB)}",
    f"v_add_u32 v{vFV+2}, s{sMISS}, v{vHS}")] + stamp_ins('chk0')
spread(gloads(0, 2*F0, vFV+2), g6 + OPT['CA'] + 1, g6 + OPT['LA'])
ext[g6 + OPT['PB']] += [I(VPOLL, tag='poll')]
NSB = 2*F1 if F1 < 7 else OPT['NSB']
assert OPT['CE'] > max(OPT['PB'], OPT['LA'])
ext[g6 + OPT['CE']] += stamp_ins('pre_c1') + [mk_wait_vm(['poll'])] + [I(t_) for t_ in (f"v_cmp_ne_u32 vcc, 1, v{vPOLL}", "s_cbranch_vccnz L_spin1", "L_spin1_ret:",
    f"s_cmp_lg_u32 s{sMISS}, 0", "s_cbranch_scc1 L_redo", "L_redo_ret:")] + stamp_ins('chk1')
glB = gloads(2*F0, NSB, vHS)
kp = len(glB) - 3*OPT['PCB']
if F1 < 7 and not OPT['P2G']: glB[kp:kp] = [I(VPOLL2, tag='poll2')]
spread(glB, g6 + OPT['CE'] + 1, min(g6 + OPT['LB'], NG - 4))
glC = gloads(NSB, 16, vHS)
if OPT['P2G']:
    assert OPT['P2G'] >= OPT['LB'] and OPT['PCB'] == 0
    ext[g6 + OPT['P2G']] += [I(VPOLL2, tag='poll2')]
if OPT['C2G']:
    ext[g6 + OPT['C2G']] += stamp_ins('pre_c2') + [mk_wait_vm(['poll2'])] + [I(t_) for t_ in (f"v_cmp_ne_u32 vcc, 1, v{vPOLL}", "s_cbranch_vccnz L_spin2", "L_spin2_ret:")] + stamp_ins('chk2')
    spread(glC, g6 + OPT['C2G'] + 1, NG - 2); glC = []
NYB = 2*(NSB - 2*F0) + (1 if F1 < 7 else 0)

vXF = 32
vAD = 125
nch = len(chunks)
free_ = [c_ for c_ in range(nch - 10, nch - NU) if chunks[c_]['private']]
XK = free_[0]; FS = [chunks[c_]['lo'] for c_ in free_[1:4]]
assert gap(chunks[free_[3]]['last'] + 1) < NG - 16*NU
XS = chunks[XK]['lo']
gx_ = max(gap(chunks[XK]['last'] + 1), cur + 1, g6 + OPT['XG'])
gx2 = place([f"v_accvgpr_read_b32 v{vAD}, a{aST+8}", f"s_add_u32 m0, s{sWB}, {XS}", f"s_movk_i32 s{sSV0}, {8*896 - 1024}", f"s_movk_i32 s{sSV1}, {8*896}",
       I(f"buffer_load_dwordx4 v{vAD}, {srd(sX)}, 0 offen lds", tag='xf'), I(f"buffer_load_dwordx4 v{vAD}, {srd(sX)}, s{sSV0} offen offset:1024 lds", tag='xf'),
       f"v_and_b32 v{vT3}, 15, v0", f"v_lshlrev_b32 v{vT3}, 7, v{vT3}", f"v_lshrrev_b32 v{vT4}, 4, v0", f"v_lshl_add_u32 v{vT3}, v{vT4}, 3, v{vT3}",
       f"s_add_u32 s{sSV2}, s{sWB}, {XS}", f"v_add_u32 v{vT3}, s{sSV2}, v{vT3}", f"v_lshrrev_b32 v{vT4}, 3, v0", f"v_lshl_add_u32 v{vT4}, v{vT4}, 4, v{vL16}", f"v_add_u32 v{vT4}, s{sSV2}, v{vT4}",
       f"v_and_b32 v{vPF}, 15, v0", f"v_lshl_add_u32 v{vPF}, v{vPF}, 4, v{vT3}"], gx_, gx_ + 30)
vSEL = 108
def vsa(u): return hole(8 + u)
vXU = 8
seq = [f"v_mov_b32 v{vSEL}, 0", f"v_mov_b32 v{vSEL+1}, 0", f"v_mov_b32 v{vSEL+4}, 0", f"v_mov_b32 v{vSEL+5}, 0", f"v_mov_b32 v{vT0}, 0x3f80", f"v_mov_b32 v{vSEL+2}, 0x3f800000",
       f"s_or_b64 s[16:17], s[{sM1}:{sM1+1}], s[{sM3}:{sM3+1}]", f"v_cndmask_b32 v{vT0}, v{vT0}, v{vSEL+2}, s[16:17]", f"v_cndmask_b32 v{vT0}, 0, v{vT0}, s[{sMD}:{sMD+1}]",
       f"v_cndmask_b32 v{vSEL+2}, v{vT0}, 0, s[{sM2}:{sM2+1}]", f"v_cndmask_b32 v{vSEL+3}, 0, v{vT0}, s[{sM2}:{sM2+1}]",
              f"v_mov_b32 v24, {hx(f2u(-16.0))}", f"v_mov_b32 v25, {hx(f2u(1.0/CSCALE))}"]
place(seq, NG - 31, NG - 12)
vFW, vFR = 40, 121
FRR = [120, 121, 124]
seq = []
for j in range(1, 4):
    seq += [f"s_add_u32 s{sT2}, s{sWB}, {FS[j-1]}", f"v_add_u32 v{vFW+j-1}, s{sT2}, v{vL16}",
            f"s_sub_u32 s{sT2}, s{sWB}, {j*4096}", f"s_and_b32 s{sT2}, s{sT2}, 0x3000", f"s_add_u32 s{sT2}, s{sT2}, {FS[j-1]}", f"v_add_u32 v{FRR[j-1]}, s{sT2}, v{vL16}"]
place(seq, NG - 16*NU - 30, NG - 16*NU)
def fwrites(u): return [I(f"ds_write_b128 v{vFW+j-1}, {v(facc(u, j), 4)} offset:{u*1024}") for j in range(1, 4)]
for u in range(3):
    ge_ = NG - 4*NU*(3 - u)
    spread(fwrites(u), ge_ + 4, min(ge_ + 4*NU + 3, NG))
seq = [mk_wait_vm(['xf'])] + [I(f"ds_read_b64 {v(vXF + 2*u, 2)}, v{vT3} offset:{u*32}", tag='xr2') for u in range(4)]
place(seq, NG - 44, NG - 34)
seq = [mk_wait_lg(['xr2'])]
for u in range(4):
    xr = vXF + u*2; b2 = vXU + 4*u
    seq += [f"v_lshlrev_b32 v{b2}, 16, v{xr}", f"v_and_b32 v{b2+1}, 0xffff0000, v{xr}", f"v_lshlrev_b32 v{b2+2}, 16, v{xr+1}", f"v_and_b32 v{b2+3}, 0xffff0000, v{xr+1}"]
place(seq, NG - 26, NG)
pass
HX = OPT['HX']; NHG = 16 // HX; NT = 32 // HX
npf = [0]
def pf_addr(nlines, lines_per_row, pitch, k, dst, idx_sgpr, nshare):
    per = nlines // nshare
    s = [f"s_lshl_b32 s{sSO2}, s{sW}, 6", f"s_add_u32 s{sSO2}, s{sSO2}, {k*256}", f"v_add_u32 v{dst}, s{sSO2}, v0",
         f"v_min_u32 v{dst}, {per-1}, v{dst}", f"s_mul_i32 s{sSO2}, s{idx_sgpr}, {per}", f"v_add_u32 v{dst}, s{sSO2}, v{dst}"]
    if lines_per_row is None:
        s += [f"v_lshlrev_b32 v{dst}, 7, v{dst}"]
    else:
        sh = lg(lines_per_row)
        s += [f"v_and_b32 v{vPF}, {lines_per_row-1}, v{dst}", f"v_lshrrev_b32 v{dst}, {sh}, v{dst}",
              f"v_mul_u32_u24 v{dst}, {pitch}, v{dst}", f"v_lshl_add_u32 v{dst}, v{vPF}, 7, v{dst}"]
    return s
def pf_load(srd_b, dst):
    npf[0] += 1
    return I(f"buffer_load_dword a{aST + 10 + npf[0] % 6}, v{dst}, {srd(srd_b)}, 0 offen {OPT['PPF']}", tag='pf')
def pf_seq(srd_b, nlines, lines_per_row, pitch, idx, nshare):
    s = []
    for k in range((nlines // nshare + 255) // 256):
        s += pf_addr(nlines, lines_per_row, pitch, k, vPF+1, idx, nshare) + [pf_load(srd_b, vPF+1)]
    return s
vLQ = 26
def pf_pieces(srd_b, per, unit, idx, extra_base=None, pol='', rot=False):
    setup = [f"s_mul_i32 s{sSO2}, s{idx}, {per}", f"v_add_u32 v{vPF+1}, s{sSO2}, v{vLQ}", f"v_mul_u32_u24 v{vPF+1}, {unit}, v{vPF+1}"]
    if extra_base is not None: setup.append(f"v_add_u32 v{vPF+1}, s{extra_base}, v{vPF+1}")
    pcs = []
    for k in range((per + 63)//64):
        npf[0] += 1
        n_ = (per + 63)//64
        if rot and k == 0: so_ = [f"s_lshr_b32 s{sSO2}, s{sTC}, 1", f"s_sub_u32 s{sCNT}, s{sSO2}, {n_}", f"s_min_u32 s{sSO2}, s{sSO2}, s{sCNT}", f"s_mul_i32 s{sSO2}, s{sSO2}, {64*unit}"]
        elif rot: so_ = [f"s_add_u32 s{sSO2}, s{sSO2}, {64*unit}", f"s_sub_u32 s{sCNT}, s{sSO2}, {n_*64*unit}", f"s_min_u32 s{sSO2}, s{sSO2}, s{sCNT}"]
        else: so_ = [f"s_mov_b32 s{sSO2}, {k*64*unit}"]
        pcs.append(so_ + [I(f"buffer_load_dword a{aST + 9 + npf[0] % 7}, v{vPF+1}, {srd(srd_b)}, s{sSO2} offen {pol}", tag='pf')])
    return setup, pcs
def pf_run(streams, g0, g1):
    items = []
    for st_ in streams:
        su, pcs = st_
        for k, p_ in enumerate(pcs): items.append((su if k == 0 else []) + p_)
    n = len(items)
    for k, it_ in enumerate(items):
        lo = g0 + (k*(g1-g0))//n
        place(it_, lo, lo + 24)
if OPT['PF']:
    place([f"v_lshrrev_b32 v{vLQ}, 2, v0", f"s_lshl_b32 s{sSO2}, s{sW}, 4", f"v_add_u32 v{vLQ}, s{sSO2}, v{vLQ}"], 100, 130)
    if not OPT['BIG'] & 2 and not OPT['NOPF2'] & 4: pf_run([pf_pieces(sKK, 2048//(2*NT), 128, sKVI, pol=OPT['PPF']), pf_pieces(sVV, 2048//(2*NT), 128, sKVI, pol=OPT['PPF'])], OPT['PFG'], gap(phase['P4']))
    if not OPT['NOPF2'] & 1: pf_run([pf_pieces(sWO, 1792//16, 128, sT) if OPT['WOM'] else pf_pieces(sWO, 1792//NT, 128, sTL), (lambda z: (z[0], z[1][:OPT['W2N']]))(pf_pieces(sW2, 448, 896, sW2I, rot=OPT['W2ROT']))], gap(phase[f"G3_{OPT['PF0']}"]), gp1 if OPT['PF1'] == 0 else gap(phase[f"G3_{OPT['PF1']}"]))
    vPF += -20
    sSO2 = sT3
    if not OPT['NOPF2'] & 2: pf_run([pf_pieces(sWS, 256, 128, sCC, sHPF, 'sc1')], gp1 + 2, gap(phase[f"G3_{hs+OPT['HPF']}"]) - 20)
    vPF += 20
    sSO2 = 93

if OPT['STLB'] == 2:
    for k_, (b_, o_) in enumerate(((sKK, '0'), (sVV, '0'), (sW2, '0'), (sWO, '0'), (sWS, f's{sHST}'), (sWS, f's{sQT+7}'), (sOUT, '0'))):
        i_ = I(f"s_buffer_load_dword s1, {srd(b_)}, {o_}"); i_.cls = 'misc'; i_.dst = []
        place([i_], OPT['ST0'] + k_*OPT['STS'], OPT['ST0'] + k_*OPT['STS'] + 8)
if OPT['CPF'] and not OPT['STAMP']:
    gc = gap(phase[OPT['CPF']])
    place([f"s_lshr_b32 s{sT2}, s0, 3", f"s_lshl_b32 s{sT2}, s{sT2}, 10", f"s_add_u32 s{sT2}, s{sT2}, 0x8000", f"v_and_b32 v{vT2}, 7, v0", f"v_lshlrev_b32 v{vT2}, 7, v{vT2}",
           f"v_add_u32 v{vT2}, s{sT2}, v{vT2}", I(f"global_load_dword a{aST+9}, v{vT2}, s[26:27]", tag='pf')], gc, gc + 30)
if OPT['TLB']:
    gt = gap(phase[OPT['TLBP']])
    seq = []
    if OPT['TLB'] & 1: seq += [f"v_accvgpr_read_b32 v{vT1}, a{aST+8}", f"v_readfirstlane_b32 s{sT2}, v{vT1}", "s_nop 0", "s_nop 0", I(f"buffer_load_dword a{aST+9}, v{vZ}, {srd(sOUT)}, s{sT2} offen", tag='pf')]
    if OPT['TLB'] & 2: seq += [I(f"buffer_load_dword a{aST+9}, v{vZ}, {srd(sWS)}, s{sQT+7} offen sc1", tag='pf')]
    if OPT['TLB'] & 4: seq += [I(f"buffer_load_dword a{aST+9}, v{vZ}, {srd(sWS)}, s{sSG} offen sc1", tag='pf'), ]
    spread(seq, gt, gt + 40)
    if OPT['TLB'] & 8: place([I(f"buffer_load_dword a{aST+9}, v{vZ}, {srd(sWS)}, s{sHST} offen sc1", tag='pf')], gap(phase['P3']), gap(phase['P3']) + 20)
if OPT['FINE'] == 1:
    for p in range(1, 7): blk[phase[f'G4p{p}']] = stamp_ins(f'G4p{p}')
if OPT['FINE'] == 2:
    for nm in ['P1', 'P3', 'P5'] + [f'G2_{s_}' for s_ in range(1, 16) if s_ % 4] + ['G3_14', 'G3_15']:
        blk[phase[nm]] = stamp_ins(nm)
if OPT['STAMP'] or OPT['WAITAT']:
    for nm in ('P0', 'P2', 'P4', 'G2_0', 'G2_4', 'G2_8', 'G2_12', 'G6'):
        blk.setdefault(phase[nm], [])
        blk[phase[nm]] = stamp_ins(nm) + blk[phase[nm]]

E(f"""
s_cmp_ge_u32 s2, 256
s_cbranch_scc1 L_end
s_load_dwordx16 s[4:19], s[0:1], 0
s_load_dwordx4 s[20:23], s[0:1], 64
s_load_dwordx2 s[24:25], s[0:1], 80
""")
if OPT['STAMP'] or OPT['WAITAT']: E("s_memtime s[98:99]\ns_memrealtime s[100:101]")
E(f"""
v_lshrrev_b32 v{vT0}, 6, v0
v_and_b32 v0, 63, v0
s_and_b32 s{sT0}, s2, 7
v_readfirstlane_b32 s{sW}, v{vT0}
s_lshr_b32 s{sT1}, s2, 3
s_and_b32 s{sT2}, s{sT0}, {NHG-1}
s_lshl_b32 s{sT2}, s{sT2}, {lg(HX)}
s_and_b32 s{sHD}, s{sT1}, {HX-1}
s_add_u32 s{sHD}, s{sHD}, s{sT2}
s_lshr_b32 s{sT2}, s{sT0}, {lg(NHG)}
s_lshl_b32 s{sT2}, s{sT2}, {lg(NT)}
s_lshr_b32 s{sTL}, s{sT1}, {lg(HX)}
s_add_u32 s{sT}, s{sTL}, s{sT2}
s_lshl_b32 s{sWB}, s{sW}, 12
""")
CODE_LINES = 512
E(f"s_lshr_b32 s{sCNT}, s2, 3")
for t_ in pf_addr(CODE_LINES, None, 0, 0, vR+80, sCNT, 32): E(t_)
E(f"""
s_getpc_b64 s[26:27]
L_pc:
global_load_dword v{vR+96}, v{vR+80}, s[26:27]
""")
E(f"""
v_lshrrev_b32 v{vT3}, 3, v0
v_and_b32 v{vT4}, 7, v0
v_lshrrev_b32 v{vT1}, 1, v{vT3}
v_xor_b32 v{vT1}, v{vT1}, v{vT4}
v_lshlrev_b32 v{vT1}, 4, v{vT1}
v_xor_b32 v{vT2}, 64, v{vT1}
s_lshl_b32 s{sT1}, s{sT}, 2
s_add_u32 s{sT1}, s{sT1}, s{sW}
s_mul_i32 s{sT1}, s{sT1}, {32*896}
v_mul_u32_u24 v{vT0}, 896, v{vT3}
v_add_u32 v{vT0}, s{sT1}, v{vT0}
v_add_u32 v{vXD}, v{vT0}, v{vT1}
v_add_u32 v{vXD+1}, v{vT0}, v{vT2}
v_add_u32 v{vXD+2}, {2*6144}, v{vXD}
v_add_u32 v{vXD+3}, {3*6144}, v{vXD+1}
v_add_u32 v{vXD+1}, 6144, v{vXD+1}
s_mov_b32 m0, s{sWB}
s_mov_b32 s{sSO}, 0
v_min_u32 v{vR+82}, 13, v0
v_subrev_u32 v{vR+83}, 7, v{vR+82}
v_min_u32 v{vR+83}, v{vR+83}, v{vR+82}
v_sub_u32 v{vR+82}, v{vR+82}, v{vR+83}
v_lshlrev_b32 v{vR+82}, 11, v{vR+82}
v_lshl_add_u32 v{vR+82}, v{vR+83}, 7, v{vR+82}
s_mul_i32 s{sT2}, s{sHD}, 896
s_add_u32 s{sT2}, s{sT2}, s{sT1}
s_mov_b32 s{sX+2}, {2048*896}
s_mov_b32 s{sX+3}, 0x00020000
s_waitcnt lgkmcnt(0)
s_mov_b32 s{sX}, s4
s_mov_b32 s{sX+1}, s5
""")
if OPT['STAMP']: E(f"v_writelane_b32 v{vSTAMP}, s98, 60\nv_writelane_b32 v{vSTAMP}, s100, 61")
if OPT['WAITAT']: E('s_mov_b32 s1, s100')
PST('karg')
def mk_srd(b, plo, off_sgpr, size):
    if off_sgpr is None:
        E(f"s_mov_b32 s{b}, s{plo}\ns_mov_b32 s{b+1}, s{plo+1}")
    else:
        E(f"s_add_u32 s{b}, s{plo}, s{off_sgpr}\ns_addc_u32 s{b+1}, s{plo+1}, 0")
    E(f"s_mov_b32 s{b+2}, {size}\ns_mov_b32 s{b+3}, 0x00020000")
xdma = []
for tg in range(2):
    for q in range(7):
        if q or tg:
            xdma += [I(f"s_add_u32 m0, s{sWB}, {q*SLOT}"), I(f"s_movk_i32 s{sSO}, {q*128}")]
        for rb in (2*tg, 2*tg+1):
            xdma.append(I(f"buffer_load_dwordx4 v{vXD+rb}, {srd(sX)}, s{sSO} offen offset:{rb*1024} {OPT['PX']} lds", tag=('x', tg, q)))
def xissue(n):
    while n > 0 and xdma:
        i_ = xdma.pop(0); P.ins.append(i_)
        if i_.cls == 'vmem': n -= 1
if OPT['XPF']: E(f"buffer_load_dword a{aST+9}, v{vR+82}, {srd(sX)}, s{sT2} offen", tag='pf')
xissue(OPT['XFIRST'])
if OPT['STLB'] >= 3:
    lst = [("s[10:11]", 0), ("s[10:11]", 400*8192), ("s[16:17]", 0), ("s[24:25]", WS_F + 0x10000)]
    if OPT['STLB'] >= 4: lst += [("s[6:7]", 'kv'), ("s[8:9]", 'kv'), ("s[18:19]", 0), ("s[20:21]", 0), ("s[12:13]", 0), ("s[12:13]", 4000*896)]
    for p_, o_ in lst:
        if o_ == 'kv': E(f"s_lshl_b32 s{sCNT}, s{sHD}, 19")
        else: E(f"s_mov_b32 s{sCNT}, {hx(o_)}")
        i_ = I(f"s_load_dword s1, {p_}, s{sCNT}"); i_.dst = []; P.ins.append(i_)
E(f"s_lshl_b32 s{sT0}, s{sHD}, 9\ns_sub_u32 s{sT2}, {448*8192}, s{sT0}")
mk_srd(sWQ, 10, sT0, f"s{sT2}")
if OPT['EPF']:
    for t_ in pf_seq(sWQ, OPT['EPF'], 1, 8192, sT, 16):
        if isinstance(t_, str): E(t_)
        else: P.ins.append(t_)
wqpf = [I(t_) if isinstance(t_, str) else t_ for t_ in pf_seq(sWQ, 448*OPT['WQP'], OPT['WQP'], 8192, sTL, NT)] if OPT['PF'] and OPT['WQP'] else []
if OPT['WQE'] == 1: P.ins += wqpf; wqpf = []
else: P.ins += wqpf[:-1]; wqpf = wqpf[-1:]
xissue(OPT['XSEC'])
PST('x_first')
mk_srd(sOUT, 20, None, 2048*896)
E(f"""
s_lshl_b32 s{sT0}, s{sW}, 7
v_lshlrev_b32 v{vKD}, 9, v{vT3}
v_add_u32 v{vVD}, s{sT0}, v{vKD}
v_add_u32 v{vKD}, v{vVD}, v{vT1}
v_add_u32 v{vKD+1}, v{vVD}, v{vT2}
v_add_u32 v{vKD+2}, {2*3072}, v{vKD}
v_add_u32 v{vKD+3}, {3*3072}, v{vKD+1}
v_add_u32 v{vKD+1}, 3072, v{vKD+1}
v_and_b32 v{vT0}, 6, v{vT3}
v_xor_b32 v{vT0}, v{vT0}, v{vT4}
v_lshlrev_b32 v{vT0}, 4, v{vT0}
v_add_u32 v{vVD}, v{vVD}, v{vT0}
""")
for rb in range(1, 4): E(f"v_add_u32 v{vVD+rb}, {3072*rb}, v{vVD}")
E(f"""
v_and_b32 v{vT1}, {0 if OPT['LNM'] else 4}, v{vT3}
v_add_u32 v{vT1}, v{vT1}, v{vT3}
v_lshl_add_u32 v{vWQ}, v{vT1}, 13, v{vT0}
v_mul_u32_u24 v{vT1}, 3584, v{vT1}
v_add_u32 v{vW1D}, v{vT1}, v{vT0}
""")
for rb in range(1, 4):
    rr = 8*rb if OPT['LNM'] else 16*(rb & 1) + 4*(rb >> 1)
    E(f"v_add_u32 v{vW1D+rb}, {rr*3584 - 1024*rb}, v{vW1D}\nv_add_u32 v{vWQ+rb}, {rr*8192 - 1024*rb}, v{vWQ}")
E(f"""
s_lshl_b32 s{sT1}, s{sHD}, 8
s_sub_u32 s{sT2}, {448*3584}, s{sT1}
s_cmp_lt_u32 s{sHD}, 14
s_cselect_b32 s{sT2}, s{sT2}, 0
s_cselect_b32 s{sT1}, s{sT1}, 0
""")
mk_srd(sW1, 16, sT1, f"s{sT2}")
E(f"s_lshr_b32 s{sT0}, s{sHD}, 1\ns_lshl_b32 s{sT0}, s{sT0}, 20\ns_add_u32 s{sT0}, s{sT0}, {1536*512}")
mk_srd(sKK, 6, sT0, 262144)
mk_srd(sVV, 8, sT0, 262144)
E(f"s_mul_i32 s{sT0}, s{sHD}, {256*896}")
mk_srd(sWO, 12, sT0, 256*896)
E(f"""
s_lshr_b32 s{sPC}, s2, 3
s_and_b32 s{sPC}, s{sPC}, 15
s_cmp_ge_u32 s{sPC}, 7
s_cselect_b32 s{sT3}, 1, 0
s_mul_i32 s{sT1}, s{sT3}, 7
s_sub_u32 s{sT1}, s{sPC}, s{sT1}
s_lshl_b32 s{sT0}, s{sT1}, 7
s_sub_u32 s{sT2}, {1792*896}, s{sT0}
s_cmp_lt_u32 s{sPC}, 14
s_cselect_b32 s{sT2}, s{sT2}, 0
s_cselect_b32 s{sT0}, s{sT0}, 0
""")
mk_srd(sW2, 18, sT0, f"s{sT2}")
if OPT['WSOFF']:
    E(f"s_mov_b32 s{sT0}, {hx(OPT['WSOFF'] << 20)}")
    mk_srd(sWS, 24, sT0, WS_SIZE)
else:
    mk_srd(sWS, 24, None, WS_SIZE)
for k_, R_ in ((0, 32*8192), (2, 32*3584)):
    E(f"""
s_mul_i32 s{sW1T+k_}, s{sW}, {R_}
s_cmp_lt_u32 s{sW}, 2
s_mov_b32 s{sT2}, {hx(128 - 2*R_)}
s_cselect_b32 s{sT0}, {12*R_}, s{sT2}
s_add_u32 s{sW1T+k_+1}, s{sW1T+k_}, s{sT0}
""")
E(f"""
v_mul_u32_u24 v{vT1}, 896, v{vT3}
v_add_u32 v{vT1}, v{vT1}, v{vT0}
s_mul_i32 s{sT0}, s{sW}, {32*896}
s_mul_i32 s{sT2}, s{sW}, {448*896}
""")
for rb in range(4):
    if rb: E(f"v_add_u32 v{vT1}, 6144, v{vT1}")
    E(f"v_add_u32 v{vT2}, s{sT0}, v{vT1}\nv_accvgpr_write_b32 a{aST+rb}, v{vT2}\nv_add_u32 v{vT2}, s{sT2}, v{vT1}\nv_accvgpr_write_b32 a{aST+4+rb}, v{vT2}")
E(f"""
v_lshlrev_b32 v{vL16}, 4, v0
v_lshrrev_b32 v{vT0}, 2, v0
v_lshlrev_b32 v{vT1}, 7, v{vT0}
v_and_b32 v{vT2}, 3, v0
v_lshl_add_u32 v{vT1}, v{vT2}, 3, v{vT1}
v_bfe_u32 v{vT3}, v0, 3, 2
""")
for u in range(4):
    E(f"""
v_xor_b32 v{vT4}, {u}, v{vT3}
v_lshl_add_u32 v{vTR+u}, v{vT4}, 5, v{vT1}
v_add_u32 v{vTR+4+u}, 0x10000, v{vTR+u}
v_add_u32 v{vTR+8+u}, 0x20000, v{vTR+u}
""")
E(f"""
v_and_b32 v{vT0}, 15, v0
v_lshrrev_b32 v{vT1}, 1, v{vT0}
v_lshrrev_b32 v{vT2}, 4, v0
v_xor_b32 v{vT1}, v{vT1}, v{vT2}
v_lshlrev_b32 v{vT4}, 7, v{vT0}
v_lshl_add_u32 v{vRA}, v{vT1}, 4, v{vT4}
v_xor_b32 v{vRA+1}, 64, v{vRA}
v_add_u32 v{vRA+2}, 0x10000, v{vRA}
v_add_u32 v{vRA+3}, 0x10000, v{vRA+1}
v_add_u32 v{vRA+4}, 0x20000, v{vRA}
v_add_u32 v{vRA+5}, 0x20000, v{vRA+1}
""")
vXR = vR + 72
for i in range(4): E(f"v_add_u32 v{vXR+i}, s{sWB}, v{vRA+i}")
vXT = vR + 84
if OPT['LNM']:
    E(f"""
v_lshrrev_b32 v{vXT+1}, 3, v0
v_bfe_u32 v{vXT+2}, v0, 1, 1
v_xor_b32 v{vXT+1}, v{vXT+1}, v{vXT+2}
v_lshlrev_b32 v{vXT+1}, 4, v{vXT+1}
v_lshrrev_b32 v{vXT+2}, 2, v0
v_lshl_add_u32 v{vXT+1}, v{vXT+2}, 7, v{vXT+1}
v_and_b32 v{vXT+2}, 1, v0
v_lshl_add_u32 v{vXT+1}, v{vXT+2}, 3, v{vXT+1}
v_add_u32 v{vXT}, s{sWB}, v{vXT+1}
""")
    for u in range(1, 4): E(f"v_xor_b32 v{vXT+u}, {32*u}, v{vXT}")
    for u in range(4): E(f"v_add_u32 v{vXT+4+u}, 0x10000, v{vXT+u}")
E(f"""
s_and_b32 s{sTC}, s2, 7
s_lshl_b32 s{sTC}, s{sTC}, 1
s_lshr_b32 s{sT0}, s2, 7
s_add_u32 s{sTC}, s{sTC}, s{sT0}
s_lshl_b32 s{sW2I}, s{sT0}, 1
s_add_u32 s{sW2I}, s{sW2I}, s{sT3}
s_lshl_b32 s{sT2}, s{sTC}, 1
s_add_u32 s{sT2}, s{sT2}, s{sT3}
s_lshl_b32 s{sT0}, s{sT2}, 2
s_add_u32 s{sT0}, s{sT0}, s{sW}
s_mul_i32 s{sT0}, s{sT0}, {16*896}
s_lshl_b32 s{sSG}, s{sT1}, 7
s_add_u32 s{sT0}, s{sT0}, s{sSG}
v_lshrrev_b32 v{vT0}, 3, v0
v_mul_u32_u24 v{vT0}, 896, v{vT0}
v_and_b32 v{vT2}, 7, v0
v_lshl_add_u32 v{vT0}, v{vT2}, 4, v{vT0}
v_add_u32 v{vT0}, s{sT0}, v{vT0}
v_accvgpr_write_b32 a{aST+8}, v{vT0}
s_lshl_b32 s{sT2}, s{sT2}, 1
s_lshr_b32 s{sT0}, s{sW}, 1
s_add_u32 s{sSG}, s{sT2}, s{sT0}
s_lshl_b32 s{sFLP}, s{sSG}, 9
s_mul_i32 s{sSG}, s{sSG}, 7
s_add_u32 s{sSG}, s{sSG}, s{sT1}
s_lshl_b32 s{sSG}, s{sSG}, 2
s_add_u32 s{sFLP}, s{sFLP}, {hx(WS_F)}
s_and_b32 s{sT0}, s{sW}, 1
s_add_u32 s{sSG}, s{sSG}, s{sT0}
s_lshl_b32 s{sSG}, s{sSG}, 14
s_mul_i32 s{sHLD}, s{sT2}, {56*2048}
s_add_u32 s{sHLD}, s{sHLD}, {hx(WS_H)}
s_cmp_lt_u32 s{sPC}, 14
s_cselect_b32 s{sCOOB}, 0, {hx(OOB)}
s_add_u32 s{sHPF}, s{sHLD}, s{sCOOB}
s_mul_i32 s{sT0}, s{sW}, {14*2048}
s_add_u32 s{sHLD}, s{sHLD}, s{sT0}
s_mov_b32 s0, s2
s_mov_b32 s{sCC}, s{sT1}
s_lshl_b32 s{sKVI}, s{sTL}, 1
s_and_b32 s{sT0}, s{sHD}, 1
s_add_u32 s{sKVI}, s{sKVI}, s{sT0}
s_lshl_b32 s{sT1}, s{sT}, 2
s_add_u32 s{sT1}, s{sT1}, s{sW}
s_lshl_b32 s{sFLG}, s{sT1}, 9
s_add_u32 s{sFLG}, s{sFLG}, s{sHD}
v_min_u32 v{vPOLL}, 2, v0
v_lshlrev_b32 v{vPOLL}, 7, v{vPOLL}
s_add_u32 s{sFLG}, s{sFLG}, {hx(WS_F)}
s_mul_i32 s{sHST}, s{sT1}, {56*2048}
s_min_u32 s{sT2}, s{sHD}, 13
s_lshl_b32 s{sT2}, s{sT2}, 13
s_add_u32 s{sHST}, s{sHST}, s{sT2}
s_add_u32 s{sHST}, s{sHST}, {hx(WS_H)}
s_cmp_lt_u32 s{sHD}, 14
s_cselect_b32 s{sT2}, 0, {hx(OOB)}
v_add_u32 v{vHS}, s{sT2}, v{vL16}
v_mov_b32 v{vZ}, 0
v_mov_b32 v{vONE}, 1
""")
PST('addr_done')
xissue(14 - OPT['XFIRST'] - OPT['XSEC'])
if OPT['WQE'] == 0: P.ins += wqpf; wqpf = []
PST('x_issued')
PRODUCER = len(P.ins)
E(f"""
s_lshl_b32 s{sSST}, s{sT}, 2
s_add_u32 s{sSST}, s{sSST}, s{sW}
s_mul_i32 s{sSST}, s{sSST}, {28*16384}
s_cmp_ge_u32 s{sHD}, 7
s_cselect_b32 s{sT3}, 1, 0
s_sub_u32 s{sROT}, s{sHD}, 7
s_min_u32 s{sROT}, s{sROT}, s{sHD}
s_sub_u32 s{sCNT}, s{sROT}, 7
s_min_u32 s{sROT}, s{sROT}, s{sCNT}
s_cmp_lt_u32 s{sHD}, 14
s_cselect_b32 s{sT3}, s{sT3}, s{sHD}
s_cselect_b32 s{sSTEP}, 2048, 0
s_lshl_b32 s{sT3}, s{sT3}, 10
s_add_u32 s{sSST}, s{sSST}, s{sT3}
""")
prod_ins = []
if OPT['STLB'] == 1:
    for b_, o_ in ((sKK, '0'), (sVV, '0'), (sWQ, '0'), (sWQ, f'{hx(400*8192)}')[:2], (sWO, '0'), (sW1, '0'), (sW2, '0'), (sOUT, '0'),
                   (sWS, f's{sSST}'), (sWS, f's{sHST}'), (sWS, hx(WS_F + 0x10000))):
        if o_.startswith('0x'): E(f"s_mov_b32 s{sCNT}, {o_}"); o_ = f's{sCNT}'
        i_ = I(f"s_buffer_load_dword s1, {srd(b_)}, {o_}"); i_.cls = 'smem'; i_.dst = []; P.ins.append(i_)
for s_, val in ((sM1, 0x2222222222222222), (sM2, 0xCCCCCCCCCCCCCCCC), (sM3, 0x8888888888888888), (sMD, 0xF0000F0000F0000F)):
    E(f"s_mov_b32 s{s_}, {hx(val)}\ns_mov_b32 s{s_+1}, {hx(val >> 32)}")

vONES = vR + 16
vD1 = vR + 20
vD2 = vR + 28
vLA = vR + 36
for i in range(4): E(f"v_mov_b32 v{vONES+i}, 0x3f803f80")
def rbf(r):
    return [f"v_cvt_pk_bf16_f32 v{r}, v{r}, v{r}", f"v_lshlrev_b32 v{r}, 16, v{r}"]
E(f"s_mov_b32 s{sT0}, {hx(f2u(1.0/448.0))}\ns_mov_b32 s{sT1}, {hx(f2u(1e-5))}\ns_mov_b32 s{sT2}, {hx(f2u(CSCALE))}")
if OPT['PADS']:
    E(f"""
s_mov_b64 exec, 0
s_cmp_eq_u32 s{sW}, 0
s_cbranch_scc1 L_pg0
s_cmp_eq_u32 s{sW}, 1
s_cbranch_scc1 L_pg1
s_cmp_eq_u32 s{sW}, 2
s_cbranch_scc1 L_pg2
s_branch L_pg3
.p2align 12
L_main:
s_mov_b64 exec, -1
""")
STAMP('pro_done')
vNT = vR + 44
NPRO = OPT['NPRO']
big = []
if OPT['BIG'] & 1:
    t_ = pf_seq(sWQ, 448*2, 2, 8192, sTL, NT); t_[-1] = I(t_[-1].text.replace('offen', 'offen offset:256'), tag='pf'); big += t_
    big += pf_seq(sW1, 448*2, 2, 3584, sTL, NT)
if OPT['BIG'] & 2:
    t_ = pf_seq(sKK, 2048, None, 0, sKVI, 2*NT); big += t_ + [pf_load(sVV, vPF+1)]
big = [I(t_) if isinstance(t_, str) else t_ for t_ in big]
assert len(pro_dma) == NPRO
L0N = OPT['L0N']
late = {0: [i_ for d_ in pro_dma[:L0N] for i_ in d_],
        1: [i_ for d_ in pro_dma[3:] for i_ in d_]
           + big + [I(f"buffer_store_byte v{vZ}, v{vPOLL}, {srd(sWS)}, s{sFLG} offen sc1", tag='hst')]}
def xreads(tg, q):
    r = [mk_wait_vm([('x', tg, q)])]
    for ks in (2*q, 2*q+1):
        ad = q*SLOT + tg*2048
        r.append(I(f"ds_read_b128 {v(xn(ks,tg),4)}, v{vXR + (ad >> 16)*2 + (ks & 1)} offset:{ad & 0xffff}", tag=('xr', tg, q)))
    return r
def stats(tg, q, fill):
    P.wait_lgkm_tag([('xr', tg, q)])
    for ks in (2*q, 2*q+1):
        X = v(xn(ks, tg), 4)
        for m_ in (mfma(v(vD1+4*tg, 4), v(vONES, 4), X, "0" if ks == 0 else v(vD1+4*tg, 4)), mfma(v(vD2+4*tg, 4), X, X, "0" if ks == 0 else v(vD2+4*tg, 4))):
            E(m_)
            t_ = 0
            while fill and t_ + cost(fill[0]) <= 12:
                t_ += cost(fill[0]); P.ins.append(fill.pop(0))
def scalars(tg):
    d = vD2 + 4*tg; m = vD1 + 4*tg; t = m + 1; L = vLA + 4*tg
    s = [f"v_cndmask_b32 v{d}, v{d}, v{d+1}, s[{sM1}:{sM1+1}]",
         f"v_cndmask_b32 v{d+2}, v{d+2}, v{d+3}, s[{sM3}:{sM3+1}]",
         f"v_mul_f32 v{m}, s{sT0}, v{m}",
         f"v_cndmask_b32 v{d}, v{d}, v{d+2}, s[{sM2}:{sM2+1}]",
         f"v_cndmask_b32 v{d}, 0, v{d}, s[{sMD}:{sMD+1}]"]
    s += allred(d, t, "v_add_f32")
    s += [f"v_mul_f32 v{d}, s{sT0}, v{d}",
          f"v_fma_f32 v{d}, -v{m}, v{m}, v{d}",
          f"v_max_f32 v{d}, 0, v{d}"]
    s += interleave(rbf(m), rbf(d))
    s += [f"v_add_f32 v{d}, s{sT1}, v{d}"] + rbf(d) + [f"v_sqrt_f32 v{d}, v{d}"] + rbf(d)
    s += [f"v_rcp_f32 v{d}, v{d}", f"v_mul_f32 v{d}, s{sT2}, v{d}",
          f"v_cvt_pk_bf16_f32 v{d}, v{d}, v{d}",
          f"v_and_b32 v{L}, 0xffff, v{d}", f"v_lshlrev_b32 v{L+1}, 16, v{d}",
          f"v_mul_f32 v{L+2}, -v{m}, v{L+1}"]
    if OPT['LNM']:
        s += [f"v_cndmask_b32 v{L}, v{L}, v{L+1}, s[16:17]", f"v_mov_b32 v{m}, v{L+2}", f"v_cndmask_b32 v{L}, 0, v{L}, s[{sMD}:{sMD+1}]", f"v_mov_b32 v{m+1}, v{L+2}",
              f"v_cndmask_b32 v{L+1}, 0, v{L}, s[{sM2}:{sM2+1}]", f"v_mov_b32 v{m+2}, v{L+2}", f"v_cndmask_b32 v{L}, v{L}, 0, s[{sM2}:{sM2+1}]", f"v_mov_b32 v{m+3}, v{L+2}"]
    return s
aXT = 128
def xtr(tg, T):
    ad = (T >> 2)*SLOT + tg*2048
    return I(f"ds_read_b64_tr_b16 {a(aXT + 2*(tg*28 + T), 2)}, v{vXT + (ad >> 16)*4 + (T & 3)} offset:{ad & 0xffff}", tag=('xt', tg, T))
def normm(tg, T0, T1, fill, pend):
    L = vLA + 4*tg; m = vD1 + 4*tg
    for T in range(T0, T1):
        if T % 4 == 0: P.wait_lgkm_tag([('xt', tg, min(T + 3, 27))])
        t = vNT + 4*(T % 4)
        E(f"v_mfma_f32_16x16x16_bf16 {v(t,4)}, {a(aXT + 2*(tg*28 + T), 2)}, {v(L,2)}, {v(m,4)}")
        x_ = xn(T >> 1, tg) + 2*(T & 1)
        k_ = 0
        while fill and k_ < 1:
            P.ins.append(fill.pop(0)); k_ += 1
        pend.append([f"v_cvt_pk_bf16_f32 v{x_}, v{t}, v{t+1}", f"v_cvt_pk_bf16_f32 v{x_+1}, v{t+2}, v{t+3}"])
        if len(pend) > 2:
            for t_ in pend.pop(0): E(t_)
def normalize(tg, side):
    L = vLA + 4*tg; k = 0; pend = []
    for ks in range(14):
        for r in range(4):
            x_ = xn(ks, tg) + r
            t = vNT + 2*(k % 8); k += 1
            E(f"v_dot2_f32_bf16 v{t}, v{x_}, v{L}, v{L+2}\nv_dot2_f32_bf16 v{t+1}, v{x_}, v{L+1}, v{L+2}")
            pend.append(f"v_cvt_pk_bf16_f32 v{x_}, v{t}, v{t+1}")
            if len(pend) > 2: E(pend.pop(0))
            P.ins += side.get(k, [])
    for t_ in pend: E(t_)
for q in range(7):
    P.ins += xreads(0, q)
    if q in (0, 3, 6): PST(f'w0{q}')
    xissue(2)
    if q > 1: stats(0, q-2, [])
fill = (late[0] + wqpf) if OPT['R0F'] else (wqpf + late[0])
stats(0, 5, fill); stats(0, 6, fill)
P.ins += fill
STAMP('x0_arrived')
if not OPT['LNM']:
    for t_ in scalars(0): E(t_)
    X1 = OPT['X1']
    normalize(0, {X1 + 4*q: xreads(1, q) for q in range(7)})
    PST('ln0_done')
    fill = [i_ for d_ in pro_dma[L0N:3] for i_ in d_]
    for q in range(7):
        if q == 1: P.wait_lgkm_tag([('xr', 1, 6)]); fill += late[1]
        stats(1, q, fill)
    P.ins += fill
    STAMP('x1_arrived')
    for t_ in scalars(1): E(t_)
    fr_ = [i_ for f in range(D) for i_ in frag_reads(f)]
    side = {OPT['BARK']: [mk_wait_vm(first_need), I("s_barrier")]}
    for k_, i_ in enumerate(fr_): side.setdefault(min(OPT['BARK'] + 1 + k_, 56), []).append(i_)
    normalize(1, side)
else:
    NA0 = OPT['NA0']
    E(f"s_or_b64 s[16:17], s[{sM1}:{sM1+1}], s[{sM3}:{sM3+1}]")
    rd0 = [xtr(0, T) for T in range(28)]
    for k_, t_ in enumerate(scalars(0)):
        if rd0 and k_ < 14: P.ins.append(rd0.pop(0))
        E(t_)
    pend = []
    normm(0, 0, 14, rd0, pend)
    assert not rd0
    x1 = [i_ for q in range(7) for i_ in xreads(1, q)]
    for i_ in x1[:6]: P.ins.append(i_)
    for p_ in pend:
        for t_ in p_: E(t_)
    pend = []
    PST('ln0_half')
    n3 = sum(len(d_) for d_ in pro_dma[3:])
    fill = x1[6:] + [i_ for d_ in pro_dma[L0N:3] for i_ in d_] + late[1][n3:]
    for q in range(7): stats(1, q, fill)
    P.ins += fill
    STAMP('x1_arrived')
    rd1 = [xtr(1, T) for T in range(28)]
    sc1 = [I(t_) for t_ in scalars(1)]
    for T in range(14, 28):
        normm(0, T, T+1, rd1, pend)
        if T >= 15:
            for _ in range(2):
                if sc1: P.ins.append(sc1.pop(0))
    for p_ in pend:
        for t_ in p_: E(t_)
    pend = []
    for k_, i_ in enumerate(sc1):
        if rd1 and k_ % 2 == 0: P.ins.append(rd1.pop(0))
        P.ins.append(i_)
    PST('ln0_done')
    fr_ = [i_ for f in range(D) for i_ in frag_reads(f)]
    fill = rd1 + [mk_wait_vm(first_need), I("s_barrier")] + fr_
    normm(1, 0, 28, fill, pend)
    P.ins += fill
    P.wait_lgkm_tag([('xt', 1, 27)])
    lt = late[1][:n3]
    for p_ in pend:
        for t_ in p_: E(t_)
    P.ins += lt
if OPT['DUMP'] == 'xn':
    P.ins += dump([v(xn(ks, tg), 4) for ks in range(14) for tg in range(2)])

P.ins.append(mk_wait_lg([('f', f) for f in range(4)]))
est = 0
for g in range(NF):
    if g in blk: P.ins += blk[g]
    for h, m_ in enumerate(MF[g]):
        gp = G0[g] + h
        P.ins.append(I(m_))
        P.ins += pre[gp] + rds[gp] + ext[gp]
        est += max(16, gtime(pre[gp] + rds[gp] + ext[gp]))
if OPT['LOG']:
    ph = sorted((f_, n_) for n_, f_ in phase.items())
    for (f0_, n_), (f1_, _) in zip(ph, ph[1:]):
        e_ = sum(max(16, gtime(pre[q_] + rds[q_] + ext[q_])) for q_ in range(gap(f0_), gap(f1_)))
        print(f"  phase {n_}: est {e_} ideal {16*(gap(f1_)-gap(f0_))}", file=sys.stderr)
print("estimated main-stream cycles", est, "ideal", 16*NG, file=sys.stderr)

STAMP('g6_done')
def fs(u, w_): return facc(u, w_)
def smf(rl, sl):
    r = []
    for tg in range(2):
        d = v(vsa(rl*2+tg), 4)
        r.append(mfma(d, v(vSEL + (2 if tg == 0 else 0), 4), greg(rl, sl), "0" if sl == 0 else d))
    return r
msA = [m_ for sq in range(0, 2*F0, 2) for rl in range(2) for sl in (sq, sq+1) for m_ in smf(rl, sl)]
if not OPT['C2G']: E(f"s_waitcnt vmcnt({NYB})")
n2 = OPT['N2']
rest = list(glC)
def last_test():
    if F1 < 7 and not OPT['C2G']:
        STAMP('pre_c2')
        P.wait_vm_tag(['poll2'])
        E(f"v_cmp_ne_u32 vcc, 1, v{vPOLL}\ns_cbranch_vccnz L_spin2\nL_spin2_ret:")
        STAMP('chk2')
last_test()
for _ in range(6):
    if rest: P.ins.append(rest.pop(0))
for i_ in fwrites(3):
    P.ins.append(i_)
    if msA: E(msA.pop(0))
while rest and len(glC) - len(rest) < n2:
    P.ins.append(rest.pop(0))
    if P.ins[-1].cls == 'vmem' and msA: E(msA.pop(0))
E("s_waitcnt lgkmcnt(0)\ns_barrier")
doneB = [(rl, sl) for sq in range(2*F0, NSB, 2) for rl in range(2) for sl in (sq, sq+1)]
lateB = doneB[len(doneB) - 2*OPT['PCB']:]; doneB = doneB[:len(doneB) - 2*OPT['PCB']]
msA += [m_ for rl, sl in doneB for m_ in smf(rl, sl)]
for u in range(4):
    for j in range(1, 4):
        E(f"ds_read_b128 {v(fs(u, j), 4)}, v{FRR[j-1]} offset:{u*1024}")
        if msA: E(msA.pop(0))
P.ins += rest
def with_m(l):
    if OPT['PKNOP']: E(f"s_nop {OPT['PKNOP']-1}")
    for t_ in l:
        if msA: E(msA.pop(0))
        E(t_)
R4 = [tuple(fs(u, w_) for w_ in range(4)) for u in range(4)]
for b0, b1, b2, b3 in R4:
    for r in (0, 2): E(f"v_pk_add_f32 {v(b0+r,2)}, {v(b0+r,2)}, {v(b1+r,2)}\nv_pk_add_f32 {v(b2+r,2)}, {v(b2+r,2)}, {v(b3+r,2)}")
    for r in (0, 2): E(f"v_pk_add_f32 {v(b0+r,2)}, {v(b0+r,2)}, {v(b2+r,2)}")
    for r in (0, 2): E(f"v_pk_mul_f32 {v(b1+r,2)}, {v(b0+r,2)}, v[24:25] op_sel:[0,0] op_sel_hi:[1,0]")
    for r in (0, 2): E(f"v_pk_mul_f32 {v(b0+r,2)}, {v(b0+r,2)}, v[24:25] op_sel:[0,1] op_sel_hi:[1,1]")
with_m([f"v_exp_f32 v{b[1]+r}, v{b[1]+r}" for b in R4 for r in range(4)])
for b in R4:
    for r in (0, 2): E(f"v_pk_add_f32 {v(b[1]+r,2)}, {v(b[1]+r,2)}, 1.0 op_sel_hi:[1,0]")
lastC = lateB + [(rl, sl) for sq in range(NSB, 16, 2) for rl in range(2) for sl in (sq, sq+1)]
NC1 = OPT['NC1']
msA += [m_ for rl, sl in lastC[:NC1] for m_ in smf(rl, sl)]; lastC = lastC[NC1:]
with_m([f"v_rcp_f32 v{b[1]+r}, v{b[1]+r}" for b in R4 for r in range(4)])
for m_ in msA: E(m_)
STAMP('g_done')
gm_ = [f"v_mul_f32 v{b[0]+r}, v{b[0]+r}, v{b[1]+r}" for b in R4 for r in range(4)]
for rl, sl in lastC:
    for m_ in smf(rl, sl):
        E(m_)
        for _ in range(2):
            if gm_: E(gm_.pop(0))
for t_ in gm_: E(t_)
for u in range(4):
    b0 = fs(u, 0)
    for r in (0, 2): E(f"v_pk_fma_f32 {v(b0+r,2)}, {v(vsa(u)+r,2)}, {v(b0+r,2)}, {v(vXU+u*4+r,2)}")
    E(f"v_cvt_pk_bf16_f32 v{b0}, v{b0}, v{b0+1}\nv_cvt_pk_bf16_f32 v{b0+1}, v{b0+2}, v{b0+3}")
    E(f"ds_write_b64 v{vPF}, {v(b0,2)} offset:{u*32}")
E(f"""
ds_read_b128 {v(vXF,4)}, v{vT4}
ds_read_b128 {v(vXF+4,4)}, v{vT4} offset:1152
buffer_store_dwordx4 {v(vXF,4)}, v{vAD}, {srd(sOUT)}, 0 offen {OPT['OST']}
buffer_store_dwordx4 {v(vXF+4,4)}, v{vAD}, {srd(sOUT)}, s{sSV1} offen {OPT['OST']}
""")
if OPT['WAITAT']: STAMP('end')
if OPT['STAMP']:
    STAMP('end')
    E(f"""
L_fin:
s_memrealtime s[{sSTMP}:{sSTMP+1}]
s_waitcnt lgkmcnt(0)
v_writelane_b32 v{vSTAMP}, s{sMISS}, 59
v_writelane_b32 v{vSTAMP}, s{sSTMP}, 62
s_lshl_b32 s{sT0}, s0, 2
s_add_u32 s{sT0}, s{sT0}, s{sW}
s_lshl_b32 s{sT0}, s{sT0}, 8
s_add_u32 s{sT0}, s{sT0}, {hx(WS_DBG)}
v_lshlrev_b32 v{vT0}, 2, v0
buffer_store_dword v{vSTAMP}, v{vT0}, {srd(sWS)}, s{sT0} offen
""")
E("L_end:\ns_endpgm")
main_ins, log, stats_ = resolve(P.ins)
print("main", stats_, file=sys.stderr)
if OPT['LOG']:
    for l in log: print("  ", l, file=sys.stderr)

Q = Prog(); E = Q.emit
SPIN_MAX = 1 << 17
def spin(label, load, want, cmp):
    E(f"""
{label}:
s_mov_b32 s{sCNT}, {SPIN_MAX}
{label}_loop:
s_sleep 1
{load}
s_waitcnt vmcnt(0)
v_cmp_{cmp}_u32 vcc, {want}, v{vPOLL}
s_sub_u32 s{sCNT}, s{sCNT}, 1
s_cmp_eq_u32 s{sCNT}, 0
s_cbranch_scc1 {label}_ret
s_cbranch_vccnz {label}_loop
s_branch {label}_ret
""")
spin("L_spinh", f"s_lshl_b32 s{sT0}, s{sTC}, 4\nv_mov_b32 v{vT0}, s{sT0}\nglobal_load_dword v{vPOLL}, v{vT0}, {DBGP} sc1", 16, "gt")
spin("L_spin1", VPOLL, 1, "ne")
if F1 < 7: spin("L_spin2", VPOLL2, 1, "ne")
E("L_redo:\ns_waitcnt vmcnt(0)")
Q.ins += gloads(0, 2*F0, vHS)
E("s_branch L_redo_ret")
MISC = [c['lo'] for c in chunks if c['name'] == 'V_15'][0]
fK, fS, fP, fA, fV, fR, fM = 44, 76, 108, 116, 117, 121, 102
E(f"""
L_exact:
s_waitcnt vmcnt(0) lgkmcnt(0)
s_nop 15
s_mov_b32 s{sSV0}, m0
v_and_b32 v{fA}, 15, v0
v_lshlrev_b32 v{fA}, 9, v{fA}
v_and_b32 v{fM}, 48, v0
v_add_u32 v{fA}, v{fA}, v{fM}
s_lshl_b32 s{sSV1}, s{sW}, 7
s_add_u32 s{sSV2}, s{sWB}, {MISC}
""")
for i in range(4):
    E(f"v_subrev_u32 v{fV+i}, s{sSV1}, v{vVD+i}\nv_add_u32 v{fR+i}, s{sSV2}, v{vTR+i}")
E(f"v_mov_b32 v{fM}, 0xff800000\nv_mov_b32 v{fM+1}, 0xff800000\ns_mov_b32 s{sSV1}, 0")
def ktile(kt, cinit):
    for ks in range(8):
        E(f"buffer_load_dwordx4 {v(fK+4*ks,4)}, v{fA}, {srd(sKK)}, s{sSV1} offen offset:{ks*64}")
    E(f"s_add_u32 s{sSV1}, s{sSV1}, 8192\ns_waitcnt vmcnt(0)")
    for ks in range(8):
        for tg in range(2):
            d = v(fS + tg*8 + kt*4, 4)
            E(mfma(d, v(fK+4*ks, 4), a(qf(ks, tg), 4), (cinit(tg) if ks == 0 else d)))
    E("s_nop 15")
E("L_exact_p1:")
ktile(0, lambda tg: "0")
for tg in range(2):
    b = fS + tg*8
    E(f"v_max3_f32 v{fM+tg}, v{fM+tg}, v{b}, v{b+1}\nv_max3_f32 v{fM+tg}, v{fM+tg}, v{b+2}, v{b+3}")
E(f"s_cmp_lt_u32 s{sSV1}, 262144\ns_cbranch_scc1 L_exact_p1")
for tg in range(2):
    for t_ in allred(fM+tg, fM+2, "v_max_f32"): E(t_)
    for r in range(4): E(f"v_sub_f32 v{vC+4*tg+r}, 0, v{fM+tg}")
for r in range(128): E(f"v_mov_b32 v{vO+r}, 0")
E(f"v_mov_b32 v{vLS}, 0\nv_mov_b32 v{vLS+1}, 0\ns_mov_b32 s{sSV1}, 0\ns_add_u32 m0, s{sWB}, {MISC}\ns_nop 3")
E("L_exact_p2:")
E(f"s_mov_b32 s{sSV2}, s{sSV1}")
ktile(0, lambda tg: v(vC+4*tg, 4))
ktile(1, lambda tg: v(vC+4*tg, 4))
for r in range(16): E(f"v_exp_f32 v{fS+r}, v{fS+r}")
for r in range(16): E(f"v_add_f32 v{vLS + r//8}, v{vLS + r//8}, v{fS+r}")
for r in range(8): E(f"v_cvt_pk_bf16_f32 v{fP+r}, v{fS+2*r}, v{fS+2*r+1}")
for cb in range(4):
    for rb in range(4):
        E(f"buffer_load_dwordx4 v{fV+rb}, {srd(sVV)}, s{sSV2} offen offset:{rb*1024} lds")
    E(f"s_add_u32 s{sSV2}, s{sSV2}, 128\ns_waitcnt vmcnt(0)")
    for u in range(4):
        E(f"ds_read_b64_tr_b16 {v(fK+4*u,2)}, v{fR+u}\nds_read_b64_tr_b16 {v(fK+4*u+2,2)}, v{fR+u} offset:2048")
    E("s_waitcnt lgkmcnt(0)")
    for u in range(4):
        for tg in range(2):
            d = v(Oreg(cb*4+u, tg), 4)
            E(mfma(d, v(fK+4*u, 4), v(fP+4*tg, 4), d))
    E("s_nop 7")
E(f"s_cmp_lt_u32 s{sSV1}, 262144\ns_cbranch_scc1 L_exact_p2")
for tg in range(2):
    for t_ in allred(vLS+tg, fM+2, "v_add_f32"): E(t_)
    E(f"v_rcp_f32 v{vRC+tg}, v{vLS+tg}")
E("s_nop 15")
for i in range(12): E(f"v_add_u32 v{vTP+i}, s{sWB}, v{vTR+i}")
E(f"s_mov_b32 m0, s{sSV0}\ns_nop 15\ns_branch L_exact_ret")
sub_ins, log2, stats2 = resolve(Q.ins)

def sizes_of(ins):
    import subprocess, tempfile, re as re_
    body = [i_ for i_ in ins if i_.cls not in ('label', 'dir')]
    txt_ = '.amdgcn_target "amdgcn-amd-amdhsa--gfx950"\n.text\nL_any:\n' + ''.join('    ' + (re_.sub(r'L_\w+', 'L_any', i_.text) if i_.cls == 'branch' else i_.text) + '\n' for i_ in body)
    d_ = tempfile.mkdtemp()
    open(d_ + '/a.s', 'w').write(txt_)
    subprocess.run(['clang', '-x', 'assembler', '-target', 'amdgcn-amd-amdhsa', '-mcpu=gfx950', '-c', d_ + '/a.s', '-o', d_ + '/a.o'], check=True)
    out_ = subprocess.run(['llvm-objdump', '-d', '--mcpu=gfx950', d_ + '/a.o'], capture_output=True, text=True).stdout
    sz = [4*len(m_.group(1).split()) for m_ in re_.finditer(r'// [0-9A-F]+: ((?:[0-9A-F]{8} ?)+)', out_)]
    assert len(sz) == len(body), (len(sz), len(body))
    return {id(i_): s_ for i_, s_ in zip(body, sz)}
if OPT['PADS']:
    sz = sizes_of(main_ins)
    k0 = [k_ for k_, i_ in enumerate(main_ins) if i_.text == 'L_main:'][0]
    out_ = main_ins[:k0+1]; off = 0; npg = 0
    for i_ in main_ins[k0+1:]:
        if i_.cls not in ('label', 'dir'):
            lo = (npg + 1)*4096
            if npg < OPT['NPG'] and off >= lo and (i_.cls == 'mfma' or off + sz[id(i_)] > lo + 56):
                assert off < lo + 64
                out_.append(I(f"L_pg{npg}:")); out_.append(I(f"s_cbranch_execz L_pgn{npg}")); off += 4; npg += 1
            off += sz[id(i_)]
        out_.append(i_)
    for i_ in out_:
        if i_.text.startswith('s_cbranch_execz L_pgn'):
            k_ = int(i_.text.split('L_pgn')[1]) + 4
            i_.text = f"s_cbranch_execz L_pg{k_}" if k_ < npg else "s_cbranch_execz L_main"
    main_ins = out_
    print("code pages", npg, "bytes after L_main", off, file=sys.stderr)
hdr = open(os.path.join(os.path.dirname(os.path.abspath(__file__)), 'header.txt')).read()
txt = hdr + f"""; @launch grid=(256,1,1) block=(256,1,1) lds={LDS_BYTES}
; ---------------------------------------------------------------------------------------------
; One workgroup per CU (256 workgroups x 4 waves, 512 registers per lane, 160 KiB LDS ring).
; Producer role (128-token tile t, head hd), every wave keeps 32 tokens as MFMA B operands:
;   LayerNorm (statistics and scaling by MFMA) -> q = xn*Wq -> h slice = relu(xn*W1) (published)
;   -> S = K q, p = exp2(S - m0), O = V p (m0 = row maximum over the first 16 keys; when a row sum
;   leaves the safe range the wave redoes the head with the true row maximum, label L_exact)
;   -> partial s = O*Wo (bf16, published through d_ws, column blocks in a rotated order).
; Consumer role (64 tokens x 64 columns): f = h*W2 (K split over the waves), sum of the 16 partial s,
;   out = x + s*silu(f).
; Weights stream L2 -> LDS by LDS-DMA (16 KiB rounds, source-side swizzle), A fragments are read with
; ds_read_b64_tr_b16 / ds_read_b128.  Hand-offs: write-through stores, vmcnt, then a flag (d_debug
; counter for h, flag bytes in d_ws for s; the bytes are cleared first and the counter vouches for it).
; Generated by gen/gen.py (hand-written scheduler, wait-count and hazard pass).
; ---------------------------------------------------------------------------------------------
.amdgcn_target "amdgcn-amd-amdhsa--gfx950"
.text
.globl {NAME}_kernel
.p2align 8
.type {NAME}_kernel,@function
{NAME}_kernel:
""" + render(main_ins) + render(sub_ins) + f"""L_pad:
    s_endpgm
.if (L_pad - {"L_main" if OPT["PADS"] else "L_pc"}) < {CODE_LINES*128}
.fill (({CODE_LINES*128} - (L_pad - {"L_main" if OPT["PADS"] else "L_pc"})) / 4) + 16, 4, 0xbf810000
.endif
.section .rodata,"a"
.p2align 6
.amdhsa_kernel {NAME}_kernel
  .amdhsa_next_free_vgpr 512
  .amdhsa_next_free_sgpr 102
  .amdhsa_accum_offset 256
  .amdhsa_group_segment_fixed_size 0
  .amdhsa_kernarg_size 88
  .amdhsa_user_sgpr_count 2
  .amdhsa_user_sgpr_kernarg_segment_ptr 1
  .amdhsa_system_sgpr_workgroup_id_x 1
.end_amdhsa_kernel
"""
if OPT['STAMP']: txt += '; STAMPS ' + ' '.join(stamp_names) + '\n'
open(sys.argv[1], 'w').write(txt)
```

```python
import sys, os, math, struct
from asmlib import *

NAME = "recurrent_scan__sliding_block_cached__dense_activation_relu__prompt"
OPT = dict(D=8, NA=12, HX=4, BAR=2, STAMP=0, PST=0, DUMP='', SIGG=60, FORCEFB=0, LOG=0,
           SST='sc1', HLD='sc1', HST='sc1', GLD='sc1', NOSST=0, NOHLD=0, NOHST=0,
           PX='', PW1='', PWQ='', PKV='', PWO='', PW2='', PF=1, PPF='', OST='', WSOFF=0, HSTEP=7, XREV=0, NPRO=3, WAITAT='', WAITT=0, WAITWG=-1, PADS=1, HSIG=150, HPF=0, PF0=0, PF1=14, CHAIN=1, WB=0, WBD=60, BIG=1, DSTART=0, W2ROT=1, NOPF2=2, HEND=40, XPF=1, L0N=1, X1=28, BARK=36, BARP=2, BARA=2, BAR4=2, SPAN=30, SPAN2=20, NV1=100, PKR=0, PCH=0, TLB=1, TLBP='G2_13', XG=0, STLB=0, ST0=4, STS=40, G6P='66666666666666', WOM=0, W2N=7, NPG=9, CPF='', SB2=0, PB2=60, CB2=110, LB2=215, NB2=10, ONORM=1, CE=105, LB=148, H2X=4, H2S=6, SB=52, LB2X=0, NSB=12, PCB=0, NO=0, NX=4, P2G=190, C2G=0, CW=0, NU=3, NC1=6, PKNOP=0, LNM=1, NA0=12, R0F=1, EPF=448, NOBARR=0, LEAK='', NOG=0, NOFLAG=0, W2G=-15, W2S=8, F0=3, F1=5, L0=0, W2PRE=14, H2A=2, H2B=30, SA=48, PA=-75, CA=26, LA=88, SC=26, PB=68, N2=18, G1N=10, XFIRST=4, XSEC=0, WQE=2, OEARLY=2, H2SPAN=60, PFG=170, WQP=2, FINE=0, RT=0, SIMPLE=0, SSP=0)
for a_ in sys.argv[2:]:
    k_, v_ = a_.split('=')
    OPT[k_] = v_.replace('+', ' ') if isinstance(OPT[k_], str) else int(v_)
if OPT['LEAK']: OPT['WAITAT'] = '-'
D = OPT['D']; NA = OPT['NA']

RING_SLOTS = 10
SLOT = 16384
LDS_BYTES = 163840
WS_S = 0
WS_H = 0x1C00000
WS_F = 0x2300000
WS_DBG = 0x2400000
WS_SIZE = 0x8000000 if (OPT['DUMP'] or OPT['STAMP']) else 0x2400000
OOB = 0x7f000000
CSCALE = math.log2(math.e) / 16.0
def f2u(x): return struct.unpack('<I', struct.pack('<f', x))[0]
def hx(x): return f"0x{x & 0xffffffff:x}"

sX, sW1, sWQ, sKK, sVV, sWO, sW2, sWS, sOUT = 28, 32, 36, 40, 44, 48, 52, 56, 60
def srd(b): return f"s[{b}:{b+3}]"
sW, sHD, sT, sWB, sSO = 64, 65, 66, 67, 68
sT0, sT1, sT2, sT3 = 69, 70, 71, 3
sQT = 72
sHST, sHLD, sSST, sSG, sFLG, sFLP, sCNT, sSO2, sTL, sROT, sSTEP, sPC = 86, 87, 88, 89, 90, 91, 92, 93, 94, 95, 96, 97
sTC, sCOOB, sHPF, sW2I, sKVI, sCC = 19, 20, 21, 24, 25, 2
sW1T = 12
sM1, sM2, sM3, sMD = 4, 6, 8, 10
sSV0, sSV1, sSV2 = 12, 13, 14
sSTMP = 26
DBGP = "s[22:23]"
vL16, vHS, vT0, vT1, vT2, vT3, vT4 = 1, 2, 3, 4, 5, 6, 7
vTR = 8
vRA = 20
vPF = 26
vZ, vONE, vPOLL, vSTAMP = 28, 29, 30, 31
vWQ, vKD, vVD, vWOD, vW2D = 32, 36, 40, 32, 36
vXN = 44
vR = 156
vW1D = vR + 64
vXD = vR + 68
vO = 128
vS = 44
vP = 76
vC = 92
vLS = 100
vM = 106
vA4 = 44
vRC = 126
aF, aST, aQ, aH = 0, 48, 64, 128

def v(i, n=1): return f"v{i}" if n == 1 else f"v[{i}:{i+n-1}]"
def a(i, n=1): return f"a{i}" if n == 1 else f"a[{i}:{i+n-1}]"
def mfma(d, A, B, C): return f"v_mfma_f32_16x16x32_bf16 {d}, {A}, {B}, {C}"
def I(t, tag=None): return Ins(t, tag)
lg = lambda x: int(math.log2(x))

P = Prog()
E = P.emit

nstamp = [0]
stamp_names = []
def stamp_ins(name=''):
    if OPT['LEAK'] and name == OPT['LEAK'] and name != 'end':
        return [I(f"s_memrealtime s[{sSTMP}:{sSTMP+1}]"), I("s_waitcnt lgkmcnt(0)"), I(f"v_writelane_b32 v{vSTAMP}, s{sSTMP}, 0")]
    if OPT['LEAK'] and name == 'end':
        pre_ = [f"s_waitcnt vmcnt(0)", f"s_memrealtime s[{sSTMP}:{sSTMP+1}]", "s_waitcnt lgkmcnt(0)", f"s_mov_b32 s4, s{sSTMP}"] if OPT['LEAK'] == 'end' else [f"v_readlane_b32 s4, v{vSTAMP}, 0", "s_nop 3"]
        return [I(t_) for t_ in (([f"s_cmp_lg_u32 s0, {OPT['WAITWG']}", "s_cbranch_scc1 L_end"] if OPT['WAITWG'] >= 0 else []) + pre_ +
                ["s_sub_u32 s4, s4, s1", "s_mul_i32 s4, s4, 8", "s_add_u32 s4, s4, 6000", "L_dw:", f"s_memrealtime s[{sSTMP}:{sSTMP+1}]", "s_waitcnt lgkmcnt(0)",
                 f"s_sub_u32 s{sSTMP}, s{sSTMP}, s1", f"s_cmp_lt_u32 s{sSTMP}, s4", "s_cbranch_scc1 L_dw"])]
    if OPT['WAITAT'] and name == OPT['WAITAT']:
        return [I(t_) for t_ in ((f"s_cmp_lg_u32 s0, {OPT['WAITWG']}", "s_cbranch_scc1 L_end") if OPT['WAITWG'] >= 0 else ()) + ("L_dw:", f"s_memrealtime s[{sSTMP}:{sSTMP+1}]", "s_waitcnt lgkmcnt(0)", f"s_sub_u32 s{sSTMP}, s{sSTMP}, s1",
                                 f"s_cmp_lt_u32 s{sSTMP}, {OPT['WAITT']}", "s_cbranch_scc1 L_dw")]
    if not OPT['STAMP']: return []
    if OPT['STAMP'] == 3 and name not in ('end', 'attn_done', 'G4', 'wb0', 'wb1', 'G6', 'st_done', 'chk0', 'chk1', 'chk2', 'sigA', 'sigB', 'g6_done', 'g_done', 'pre_c2', 'pre_c1', 'pre_c0'): return []
    if OPT['STAMP'] == 2 and name not in ('end', 'G4', 'P0', 'G2_0', 'g6_done'): return []
    n = nstamp[0]; nstamp[0] += 1; stamp_names.append(name)
    return [I(f"{'s_memrealtime' if OPT['RT'] else 's_memtime'} s[{sSTMP}:{sSTMP+1}]"), I("s_waitcnt lgkmcnt(0)"), I(f"v_writelane_b32 v{vSTAMP}, s{sSTMP}, {n}")]
def STAMP(name=''):
    P.ins += stamp_ins(name)
def PST(name):
    if OPT['PST']: STAMP(name)

frags = []
chunks = []
def add_chunk(name, lo, size, dma, private=False):
    chunks.append(dict(name=name, lo=lo, hi=lo+size, dma=dma, private=private, first=None, last=None)); return len(chunks)-1
def add_frag(kind, rs, rb, addr, mf, ch):
    frags.append(dict(kind=kind, rb=rb, rs=rs, addr=addr, mf=mf, chunk=ch))
    c = chunks[ch]
    if c['first'] is None: c['first'] = len(frags)-1
    c['last'] = len(frags)-1
def frag_reads(f):
    fr = frags[f]; A = aF + 4*(f % NA)
    def rd(op, dst, addr):
        win = addr >> 16
        return I(f"{op} {dst}, v{fr['rb'] + win*fr['rs']} offset:{addr & 0xffff}", tag=('f', f))
    if fr['kind'] == 'tr':
        return [rd("ds_read_b64_tr_b16", a(A, 2), fr['addr']), rd("ds_read_b64_tr_b16", a(A+2, 2), fr['addr'] + 2048)]
    return [rd("ds_read_b128", a(A, 4), fr['addr'])]
POL = {sW1: 'PW1', sWQ: 'PWQ', sKK: 'PKV', sVV: 'PKV', sWO: 'PWO', sW2: 'PW2'}
ring_pos = [7]
def ring_round(name, srd_b, vbase, so_text, private=False):
    slot = ring_pos[0] % RING_SLOTS; ring_pos[0] += 1
    lo = slot*SLOT
    tag = ('c', len(chunks))
    dma = [I(f"s_add_u32 m0, s{sWB}, {lo}")]
    if so_text.startswith('s') or so_text == '0': so = so_text
    elif so_text.startswith('+'):
        dma.append(I(f"s_add_u32 s{sSO}, {so_text[1:]}")); so = f"s{sSO}"
    else:
        dma.append(I(f"s_mov_b32 s{sSO}, {so_text}")); so = f"s{sSO}"
    for rb in range(4):
        dma.append(I(f"buffer_load_dwordx4 v{vbase+rb}, {srd(srd_b)}, {so} offen offset:{rb*1024} {OPT[POL[srd_b]]} lds", tag=tag))
    return add_chunk(name, lo, SLOT, dma, private)

phase = {}
def xn(ks, tg): return vXN + (ks*2 + tg)*4
def accp(pp, kq, tg, par): return vR + (pp % 2)*32 + ((kq*2 + tg)*2 + par)*4
pend_ = []
for pp in range(6):
    phase[f'P{pp}'] = len(frags)
    for ks in range(14):
        qi = 14*pp + ks
        if qi % 4 == 0:
            r_ = qi // 4
            blk_, rp = r_ // 7, r_ % 7
            R_ = 32*(8192 if blk_ < 2 else 3584); sb = sW1T + (0 if blk_ < 2 else 2); cb_ = 256 if blk_ == 1 else 0
            so_ = f"+s{sb+1}, {cb_}" if rp == 3 else f"+s{sb}, {(4*rp*R_ if rp < 3 else (4*rp-14)*R_ + 128) + cb_}"
            ch = ring_round(f"wq_{r_}", sWQ, vWQ, so_) if r_ < 14 else ring_round(f"w1_{r_-14}", sW1, vW1D, so_)
        pend_.append((ks, qi, ch))
        if OPT['PCH'] and ks % 2 == 0: continue
        for u2 in range(2):
            for u in (2*u2, 2*u2+1):
                for ks_, qi_, ch_ in pend_:
                    mf = (lambda A, pp=pp, ks=ks_, u=u: [mfma(v(accp(pp, u >> 1, tg, u & 1), 4), A, v(xn(ks, tg), 4), "0" if ks == 0 else v(accp(pp, u >> 1, tg, u & 1), 4)) for tg in range(2)])
                    add_frag('tr', 4, vTR + u, chunks[ch_]['lo'] + (qi_ % 4)*4096, mf, ch_)
        pend_ = []
def qf(kq, tg): return aQ + (kq*2 + tg)*4
def Sreg(st, tg, kt): return vS + (st % 2)*16 + tg*8 + kt*4
def Preg(st, tg): return vP + (st % 2)*8 + tg*4
def Oreg(d, tg): return vO + (((d >> 1)*2 + tg)*2 + (d & 1))*4
def G2(st):
    phase[f'G2_{st}'] = len(frags)
    ch = ring_round(f"K_{st}", sKK, vKD, str(st*16384))
    order = [(kt, ks) for kt in range(2) for ks in range(8)]
    for kt, ks in order:
        def mf(A, kt=kt, ks=ks):
            r = []
            for tg in range(2):
                c = v(Sreg(st, tg, kt), 4)
                if ks == 0: c = "0" if st < 1 else v(vC + 4*tg, 4)
                r.append(mfma(v(Sreg(st, tg, kt), 4), A, a(qf(ks, tg), 4), c))
            return r
        add_frag('b128', 2, vRA + (ks & 1), chunks[ch]['lo'] + (ks >> 1)*4096 + kt*2048, mf, ch)
def G3(st):
    phase[f'G3_{st}'] = len(frags)
    ch = ring_round(f"V_{st}", sVV, vVD, str(st*16384))
    for d in range(16):
        mf = (lambda A, d=d: [mfma(v(Oreg(d, tg), 4), A, v(Preg(st, tg), 4), "0" if st == 0 else v(Oreg(d, tg), 4)) for tg in range(2)])
        add_frag('tr', 4, vTR + (d & 3), chunks[ch]['lo'] + (d >> 2)*4096, mf, ch)
G2(0)
for st in range(15):
    G2(st + 1); G3(st)
G3(15)
phase['AEND'] = len(frags)
def acc4(p, u, tg): return hole(8 + ((u >> 1)*2 + tg)*2 + (u & 1))
def Opk(ks, tg): return vO + (ks*2 + tg)*8
def hole(i): return vO + 8*i + 4
def hreg(kk, t4):
    i = kk*4 + t4
    if i < 32: return a(aH + 4*i, 4)
    if i < 48: return a(aQ + 4*(i-32), 4)
    return v(hole(i-48), 4)
def facc(u, t4):
    return vA4 + 4*(u*4 + t4)
vTP = 108
G6P = OPT['G6P']
assert len(G6P) == 14
kk = 0
NU = OPT['NU']
def g6step(kk):
    ks_ = [kk] if kk < 14 - NU else list(range(14 - NU, 14))
    if kk > ks_[0]: return
    for k2 in ks_: phase[f'G6_{k2}'] = len(frags)
    chs_ = {k2: ring_round(f"w2_{k2}", sW2, vW2D, str(k2*32*896), private=True) for k2 in ks_}
    for u in range(4):
        for k2 in ks_:
            mf = (lambda A, kk=k2, u=u: [mfma(v(facc(u, t4), 4), A, hreg(kk, t4), "0" if kk == 0 else v(facc(u, t4), 4)) for t4 in range(4)])
            add_frag('tr', 4, vTP + u, chunks[chs_[k2]]['lo'], mf, chs_[k2])
while kk < OPT['NO']: g6step(kk); kk += 1
phase['G4'] = len(frags)
for p in range(7):
    phase[f'G4p{p}'] = len(frags)
    chs = [ring_round(f"wo_{p}_{h_}", sWO, vWOD, f"s{sQT+p}" if h_ == 0 else f"+s{sQT+p}, {4*32*896}") for h_ in range(2)]
    for u in range(4):
        for ks in range(8):
            ch = chs[ks // 4]
            mf = (lambda A, p=p, ks=ks, u=u: [mfma(v(acc4(p, u, tg), 4), A, v(Opk(ks, tg), 4), "0" if ks == 0 else v(acc4(p, u, tg), 4)) for tg in range(2)])
            add_frag('tr', 4, vTR + u, chunks[ch]['lo'] + (ks % 4)*4096, mf, ch)
    if p == 6: phase['G6'] = len(frags); NPOST = 14 - kk
    while kk < 14 and int(G6P[kk]) == p:
        g6step(kk)
        kk += 1
assert kk == 14
NF = len(frags)
phase['END'] = NF

MF = [fr['mf'](a(aF + 4*(f % NA), 4)) for f, fr in enumerate(frags)]
if OPT['CHAIN']:
    for f0 in range(0, NF, 4):
        nm_ = chunks[frags[f0]['chunk']]['name']
        if nm_.startswith('K_') or nm_.startswith('wo_') or (OPT['PCH'] and nm_[:2] in ('wq', 'w1')):
            fl = [MF[f0+k_][tg] for tg in range(2) for k_ in range(4)]
            for k_ in range(4): MF[f0+k_] = fl[2*k_:2*k_+2]
G0 = [0]
for f in range(NF): G0.append(G0[-1] + len(MF[f]))
NG = G0[-1]
def gap(f): return G0[max(0, min(f, NF))]
pre = [[] for _ in range(NG)]
rds = [[] for _ in range(NG)]
ext = [[] for _ in range(NG)]
blk = {}
for g in range(NF):
    if g + D < NF:
        r = frag_reads(g + D)
        n = len(MF[g])
        rds[G0[g]].append(r[0])
        if len(r) > 1: rds[G0[g] + n//2].append(r[1])
def cost(i):
    if i.cls in ('ds',): return 8
    if i.cls == 'vmem': return 24 if 'store' in i.op and 'x4' in i.op else 8
    if i.cls in ('trans', 'perm'): return 8
    if i.cls == 'label': return 0
    return 4
def gtime(items):
    t = 4
    for i in items:
        if i.cls in VALU_LIKE: t = max(t, 8)
        t += cost(i)
    return t
def fits(gp, i): return gtime(pre[gp] + rds[gp] + ext[gp] + [i]) <= 16
def place(seq, g0, g1=None):
    seq = [I(s) if isinstance(s, str) else s for s in seq]
    g1 = NG if g1 is None else min(g1, NG)
    gp = g0; n = len(seq)
    for k, ins in enumerate(seq):
        bound = max(min(g0 + ((k + 1) * (g1 - g0)) // n - 1, g1 - 1), gp)
        best = None
        for q in range(gp, bound + 1):
            if fits(q, ins): best = q; break
        if best is None:
            best = min(range(gp, bound + 1), key=lambda q: (gtime(pre[q] + rds[q] + ext[q] + [ins]), q))
        ext[best].append(ins)
        gp = best
    return gp
def spread(seq, g0, g1):
    n = len(seq); cur = g0
    for k, ins in enumerate(seq):
        lo = max(g0 + (k*(g1-g0))//n, cur); hi = max(g0 + ((k+1)*(g1-g0))//n, lo+1)
        cur = place([ins], lo, hi)
    return cur

shared = [c for c in range(len(chunks)) if not chunks[c]['private']]
def is_bar(k_):
    if k_ == 0: return True
    if k_ < 21: return (k_ - 1) % OPT['BARP'] == 0
    if k_ < 53: return (k_ - 21) % OPT['BARA'] == 0
    return (k_ - 53) % OPT['BAR4'] == 0
bar_frags = [chunks[c]['first'] for k_, c in enumerate(shared) if is_bar(k_)]
bar_frags += [phase['G6'], phase['G6'] + D + 1]
bar_frags = sorted(set(bar_frags))
bar_gap = []
first_need = None
for bi, f0 in enumerate(bar_frags):
    f1 = bar_frags[bi+1] if bi + 1 < len(bar_frags) else NF
    need = [('c', c) for c in shared if f0 <= chunks[c]['first'] < f1]
    if f0 == 0: first_need = need; continue
    gp = gap(f0 - D); bar_gap.append(gp)
    if need: ext[gp-1].append(mk_wait_vm(need))
    pre[gp].append(I("s_barrier" if not (OPT['NOBARR'] and gp < gap(phase['AEND']) - 40) else "s_nop 0"))
for c in range(len(chunks)):
    if chunks[c]['private']:
        ext[gap(chunks[c]['first'] - D) - 1].append(mk_wait_vm([('c', c)]))
for g in range(4, NF, 4):
    ext[gap(g) - 1].append(mk_wait_lg([('f', f) for f in range(g, min(g+4, NF))]))
def earliest_gap(c):
    e = -1
    C = chunks[c]
    for c2 in range(c):
        B = chunks[c2]
        if B['hi'] <= C['lo'] or C['hi'] <= B['lo']: continue
        if B['private']: e = max(e, gap(B['last'] + 1))
        else: e = max(e, [gp for gp in bar_gap if gp >= gap(B['last'] + 1)][0] + 1)
    return e
pro_dma = []
cur = OPT['DSTART']
for c in range(len(chunks)):
    e = earliest_gap(c)
    if e < 0 and c < OPT['NPRO']:
        pro_dma.append(chunks[c]['dma']); continue
    if chunks[c]['name'].startswith('w2_') and int(chunks[c]['name'][3:]) >= OPT['W2PRE']: e = max(e, gap(phase['G6']) + OPT['W2G'])
    g0 = max(e, cur)
    span = OPT['SPAN']
    if g0 > e + 8: span = OPT['SPAN2']
    if g0 >= gap(phase['G6'] - D): span = OPT['W2S']
    seq = list(chunks[c]['dma'])
    if chunks[c]['name'] == 'wo_0_0': seq = [I(f"v_accvgpr_read_b32 v{vWOD+i}, a{aST+i}") for i in range(4)] + seq; wo_first_gap = g0
    if chunks[c]['name'] == 'w2_0': seq = [I(f"v_accvgpr_read_b32 v{vW2D+i}, a{aST+4+i}") for i in range(4)] + seq
    cur = spread(seq, g0, g0 + span)
    need_gap = gap(chunks[c]['first'] - D)
    if not chunks[c]['private']: need_gap = max(gp for gp in bar_gap if gp <= need_gap)
    if OPT['LOG']: print(chunks[c]['name'], g0, cur, need_gap, 'lead', need_gap - cur, file=sys.stderr)
    assert cur < need_gap - 1, (chunks[c]['name'], cur)

seq = []
for p in range(7):
    seq += [f"s_add_u32 s{sT2}, s{sROT}, {p}", f"s_sub_u32 s{sT3}, s{sT2}, 7", f"s_min_u32 s{sT2}, s{sT2}, s{sT3}",
            f"s_lshl_b32 s{sQT+p}, s{sT2}, 7", f"s_lshl_b32 s{sT2}, s{sT2}, 16", f"s_add_u32 s{sQT+7+p}, s{sSST}, s{sT2}",
            f"s_add_u32 s{sSST}, s{sSST}, s{sSTEP}"]
spread(seq, 6, 100)
assert gap(phase['G3_8']) < wo_first_gap
assert OPT['BAR'] == 2
place([f"v_add_u32 v{vTP+i}, s{sWB}, v{vTR+i}" for i in range(12)], gap(phase['G3_12']), gap(phase['G3_14']))

def hconv(pp):
    s = []
    for kq in range(2):
        for tg in range(2):
            b = accp(pp, kq, tg, 0)
            if not OPT['PKR']:
                for r in range(8): s.append(f"v_max_f32 v{b+r}, 0, v{b+r}")
            for r in range(4): s.append(f"v_cvt_pk_bf16_f32 v{b+r}, v{b+2*r}, v{b+2*r+1}")
            if OPT['PKR']:
                for r in range(4): s.append(f"v_pk_max_i16 v{b+r}, v{b+r}, 0")
            if not OPT['NOHST']:
                s.append(I(f"buffer_store_dwordx4 {v(b,4)}, v{vHS}, {srd(sWS)}, s{sHST} offen offset:{kq*2048 + tg*1024} {OPT['HST']}", tag='hst'))
    if pp == 4: s.append(f"s_add_u32 s{sHST}, s{sHST}, 4096")
    return s
place(hconv(4), gap(phase['P5']) + 4, gap(phase['G2_0']) - 4)
def qconv(pp):
    s = []
    for kq in range(2):
        for tg in range(2):
            b = accp(pp, kq, tg, 0)
            s += [f"v_cvt_pk_bf16_f32 v{b+r}, v{b+2*r}, v{b+2*r+1}" for r in range(4)]
            s += [f"v_permlane32_swap_b32 v{b}, v{b+2}", f"v_permlane32_swap_b32 v{b+1}, v{b+3}",
                  f"v_permlane16_swap_b32 v{b}, v{b+2}", f"v_permlane16_swap_b32 v{b+1}, v{b+3}"]
            s += [f"v_accvgpr_write_b32 a{qf(2*pp+kq, tg)+r}, v{b+r}" for r in range(4)]
    return s
for pp in range(4):
    g0 = gap(phase[f'P{pp+1}'])
    place(qconv(pp), g0 + 4, g0 + 2*56 - 4)

def allred(r, t, op):
    return [f"v_mov_b32 v{t}, v{r}", f"v_permlane32_swap_b32 v{r}, v{t}", f"{op} v{r}, v{r}, v{t}",
            f"v_mov_b32 v{t}, v{r}", f"v_permlane16_swap_b32 v{r}, v{t}", f"{op} v{r}, v{r}, v{t}"]
def interleave(*seqs):
    out = []
    for k in range(max(len(s) for s in seqs)):
        for s in seqs:
            if k < len(s): out.append(s[k])
    return out
def svals(st): return [Sreg(st, tg, kt) + r for tg in range(2) for kt in range(2) for r in range(4)]
g0 = gap(phase['G2_0'])
seqs = []
for tg in range(2):
    b = Sreg(0, tg, 0); m = vM + 2*tg; t = m + 1
    s = [f"v_max3_f32 v{m}, v{b}, v{b+1}, v{b+2}", f"v_max_f32 v{m}, v{m}, v{b+3}"] + allred(m, t, "v_max_f32")
    s += [f"v_sub_f32 v{vC+4*tg+r}, 0, v{m}" for r in range(4)]
    seqs.append(s)
seq = interleave(*seqs) + [f"v_mov_b32 v{vLS}, 0", f"v_mov_b32 v{vLS+1}, 0"]
gm = place(seq, g0 + 19, g0 + 31)
def sm_seq(st, sub):
    s = []
    vals = svals(st)
    for k_, r in enumerate(vals):
        tg = k_ // 8
        if sub: s.append(f"v_add_f32 v{r}, v{r}, v{vC+4*tg}")
        s.append(f"v_exp_f32 v{r}, v{r}")
        if k_ % 2 == 1 and k_ >= 3:
            kk = k_ - 3
            s.append(f"v_cvt_pk_bf16_f32 v{Preg(st, kk//8) + (kk % 8)//2}, v{vals[kk]}, v{vals[kk+1]}")
    s.append(f"v_cvt_pk_bf16_f32 v{Preg(st, 1) + 3}, v{vals[14]}, v{vals[15]}")
    return s
def add_seq(st):
    vals = svals(st)
    return interleave([f"v_add_f32 v{vLS}, v{vLS}, v{r}" for r in vals[:8]], [f"v_add_f32 v{vLS+1}, v{vLS+1}, v{r}" for r in vals[8:]])
for st in range(16):
    g3 = gap(phase[f'G3_{st}'])
    if st == 0:
        ge = place(sm_seq(st, True), gap(phase['G2_1']) + 3, g3 - 1)
    elif st < 15:
        gs = gap(phase[f'G2_{st+1}'] - D)
        ge = place(sm_seq(st, False), gs, g3 - 2)
    else:
        ge = place(sm_seq(st, False), gap(phase['G3_14']) + 4, g3 - 2)
    lim = gap(phase[f'G2_{st+2}']) - 2 if st + 2 < 16 else g3 + 14
    ga = place(add_seq(st), ge, lim)
seqs = []
for tg in range(2):
    l = vLS + tg; t = vM + tg
    seqs.append(allred(l, t, "v_add_f32") + [f"v_rcp_f32 v{vRC+tg}, v{l}"])
seq = interleave(*seqs) + [f"v_add_f32 v{vM}, v{vLS}, v{vLS+1}", f"s_mov_b32 s{sT0}, {hx(f2u(2.0**24 if not OPT['FORCEFB'] else 0.5))}", f"v_cmp_ngt_f32 vcc, s{sT0}, v{vM}"]
place(seq, ga, gap(phase['AEND']) - 1)

hc = hconv(5)
n3 = 3*len(hc)//4
place(hc[:n3], gap(phase['G2_0']) + 3, gap(phase['G2_0']) + 19)
gend = place(hc[n3:], gap(phase['G3_0']), gap(phase['G3_0']) + 16)
assert accp(5, 1, 1, 0) >= Oreg(10, 0)
hb = [gp for gp in bar_gap if gp > gend + OPT['HSIG']][0]
ext[hb-1].append(mk_wait_vm(['hst']))
sig = [I(f"s_cmp_lg_u32 s{sW}, 0"), I("s_cbranch_scc1 L_nosig"), I(f"s_lshl_b32 s{sT0}, s{sT}, 4"), I(f"v_mov_b32 v{vPOLL}, s{sT0}"),
       I("s_mov_b64 exec, 1"), I(f"global_atomic_add v{vPOLL}, v{vONE}, {DBGP} sc1"), I("s_mov_b64 exec, -1"), I("L_nosig:")]
sig[5].cls = 'misc'
ext[hb+1] += sig

def dump(regs_list):
    r = [I("s_nop 15"), I(f"s_lshl_b32 s{sT0}, s{sT}, 4"), I(f"s_add_u32 s{sT0}, s{sT0}, s{sHD}"),
         I(f"s_lshl_b32 s{sT0}, s{sT0}, 2"), I(f"s_add_u32 s{sT0}, s{sT0}, s{sW}"),
         I(f"s_mul_i32 s{sT0}, s{sT0}, {32*1024}"), I(f"s_add_u32 s{sT0}, s{sT0}, {hx(WS_DBG)}")]
    for reg in regs_list:
        r.append(I(f"buffer_store_dwordx4 {reg}, v{vL16}, {srd(sWS)}, s{sT0} offen"))
        r.append(I(f"s_add_u32 s{sT0}, s{sT0}, 1024"))
    r.append(I("s_nop 3"))
    return r
def ocvt(ks): return [f"v_cvt_pk_bf16_f32 v{Opk(ks, tg)+r}, v{Opk(ks, tg)+2*r}, v{Opk(ks, tg)+2*r+1}" for tg in range(2) for r in range(4)]
if OPT['ONORM']:
    def ocvt(ks):
        s = []
        for tg in range(2):
            o = Opk(ks, tg)
            s += [f"v_pk_mul_f32 {v(o+2*r,2)}, {v(o+2*r,2)}, {v(vRC,2)} op_sel:[0,{tg}] op_sel_hi:[1,{tg}]" for r in range(4)]
        for tg in range(2):
            o = Opk(ks, tg)
            s += [f"v_cvt_pk_bf16_f32 v{o+r}, v{o+2*r}, v{o+2*r+1}" for r in range(4)]
        return s
NEARLY = 0 if OPT['ONORM'] else OPT['OEARLY']
g15 = gap(phase['G3_15'])
for ks in range(NEARLY): place(ocvt(ks), g15 + 4*ks + 8, gap(phase['G4']) - 1)
assert NEARLY == 0
b = stamp_ins('attn_done') + [I("s_cbranch_vccnz L_exact"), I("L_exact_ret:")]
NX = OPT['NX'] if OPT['NO'] else 8
for ks in range(NX): b += [I(t_) for t_ in ocvt(ks)]
blk[phase['AEND']] = b
if OPT['NO']:
    seq = []
    for ks in range(NX, 8):
        for tg in range(2):
            o = Opk(ks, tg)
            seq += [f"v_mul_f32 v{o+r}, v{vRC+tg}, v{o+r}" for r in range(8)] + [f"v_cvt_pk_bf16_f32 v{o+r}, v{o+2*r}, v{o+2*r+1}" for r in range(4)]
    ONSEQ = seq
    b = []
if OPT['DUMP'] == 'o': b += dump([v(Opk(ks, tg), 4) for ks in range(8) for tg in range(2)])
if OPT['DUMP'] == 'q': b += dump([a(qf(ks, tg), 4) for ks in range(8) for tg in range(2)])
b += stamp_ins('G4')
blk[phase['G4']] = b

def sconv(p, u):
    s = []
    for tg in range(2):
        b = acc4(p, u, tg); d = acc4(p, u & ~1, tg) + 2*(u & 1)
        if not OPT['ONORM']: s += [f"v_mul_f32 v{b+r}, v{vRC + tg}, v{b+r}" for r in range(4)]
        s += [f"v_cvt_pk_bf16_f32 v{d}, v{b}, v{b+1}", f"v_cvt_pk_bf16_f32 v{d+1}, v{b+2}, v{b+3}"]
        if u & 1:
            if (u, tg) != (1, 0): s.append(f"s_add_u32 s{sQT+7+p}, s{sQT+7+p}, 16384")
            if not OPT['NOSST']: s.append(I(f"buffer_store_dwordx4 {v(acc4(p, u & ~1, tg),4)}, v{vL16}, {srd(sWS)}, s{sQT+7+p} offen {OPT['SST']}", tag=('sst', p)))
    return s
g4 = gap(phase['G4'])
for p in range(7):
    for u in range(4):
        g0 = gap(phase[f'G4p{p}']) + 16*(u+1)
        if u == 3 and p < 6: gl = place(sconv(p, u), g0 + 3, g0 + 28)
        else: gl = place(sconv(p, u), g0 + 3, g0 + (19 if (p, u) != (6, 3) else 10))
last_store_gap = gl
hs = OPT['HSTEP']
gp0 = gap(phase[f'G3_{hs-1}']) - 30
place([f"s_lshl_b32 s{sT0}, s{sTC}, 4", f"v_mov_b32 v{vPOLL}, s{sT0}", I(f"global_load_dword v{vPOLL}, v{vPOLL}, {DBGP} sc1", tag='pollh'),
       f"v_add_u32 v{vHS}, s{sCOOB}, v{vL16}"], gp0, gp0 + 24)
gp1 = gap(phase[f'G3_{hs}'])
ext[gp1] += [mk_wait_vm(['pollh']), I(f"v_cmp_gt_u32 vcc, 16, v{vPOLL}"), I("s_cbranch_vccnz L_spinh"), I("L_spinh_ret:")]
sHB = 98
def hloads(k0, k1):
    s = []
    for kk in range(k0, k1, 2):
        for j in range(4):
            s.append(f"s_add_u32 s{sT0}, s{sHB+j}, {kk*2048}")
            for k2 in range(2):
                s.append(I(f"buffer_load_dwordx4 {hreg(kk+k2, j)}, v{vHS}, {srd(sWS)}, s{sT0} offen offset:{k2*2048} {OPT['HLD']}", tag='hld'))
    return s
seq = []
for j in range(4):
    seq += [f"s_add_u32 s{sT2}, s{sW}, {j}", f"s_bfe_u32 s{sT3}, s{sT2}, 0x10001", f"s_mul_i32 s{sT3}, s{sT3}, {56*2048}", f"s_and_b32 s{sT2}, s{sT2}, 1",
            f"s_lshl_b32 s{sT2}, s{sT2}, 10", f"s_add_u32 s{sT2}, s{sT2}, s{sT3}", f"s_add_u32 s{sHB+j}, s{sHLD}, s{sT2}"]
spread(seq, gap(phase['P2']), gap(phase['P3']))
if not OPT['NOHLD']:
    spread(hloads(0, 8), gap(phase[f"G3_{hs+OPT['HPF']}"]) + 2, gap(phase['G3_15']) - OPT['HEND'])
    if OPT['H2X']:
        hl = [I(s_) if isinstance(s_, str) else s_ for s_ in hloads(8, 8 + OPT['H2X'])]
        b_ = blk[phase['AEND']]
        k0 = [k_ for k_, i_ in enumerate(b_) if i_.text == 'L_exact_ret:'][0]
        for k_, i_ in enumerate(hl): b_.insert(k0 + 1 + k_*OPT['H2S'], i_)
    spread(hloads(8 + OPT['H2X'], 14), g4 + OPT['H2A'], g4 + OPT['H2B'])
if OPT['NO']: place(ONSEQ, gap(phase['AEND']) + 1, gap(phase['G4']) - 1)
g6 = gap(phase['G6'])
vFV = 120
def greg(rl, sl):
    i = sl*2 + rl
    if NPOST <= 10: i = (i + 16) % 32
    if i < 16: return v(Opk(0, 0) + 8*i, 4)
    return a(aH + (i - 16)*4, 4)
assert OPT['CA'] > 0 or (NPOST <= 10 and g6 + OPT['CA'] > gap(phase['G6_3'] + 4))
def gloads(s0, s1, va):
    s = []
    for sq in range(s0, s1, 2):
        for rl in range(2):
            s.append(I(f"s_add_u32 s{sT1}, s{sSG}, {rl*2*16384 + sq*1024}"))
            for sl in range(sq, sq+2):
                if not OPT['NOG']: s.append(I(f"buffer_load_dwordx4 {greg(rl, sl)}, v{va}, {srd(sWS)}, s{sT1} offen offset:{(sl-sq)*1024} {OPT['GLD']}", tag=('g', rl, sl)))
    return s
F0 = OPT['F0']
sPL = 32
sMISS = 18
F1 = OPT['F1']
place([f"v_and_b32 v{vFV+3}, 15, v0"], g4 + 100, g4 + 200)
def signal(k, n): return [mk_wait_vm([('sst', p) for p in range(n)]), I(f"buffer_store_byte v{vONE}, v{vZ}, {srd(sWS)}, s{sFLG} offen offset:{128*k} sc1", tag='flag')]
spoll = I(f"s_buffer_load_dwordx4 s[{sPL}:{sPL+3}], {srd(sWS)}, s{sFLP} glc"); spoll.cls = 'misc'
VPOLL2 = f"buffer_load_ubyte v{vPOLL}, v{vFV+3}, {srd(sWS)}, s{sFLP} offen offset:256 sc1"
VPOLL = VPOLL2 if F1 == 7 else VPOLL2.replace('offset:256', 'offset:128')
ext[gap(phase[f'G4p{F0-1}']) + 64 + OPT['SA']] += signal(0, F0) + stamp_ins('sigA')
if F1 < 7: ext[gap(phase[f'G4p{F1-1}']) + 64 + OPT['SB']] += signal(1, F1) + stamp_ins('sigB')
ext[g6 + OPT['PA']] += [spoll]
sg = g6 + OPT['SC']
ext[sg] += signal(2, 7) + stamp_ins('st_done') + [I(f"s_cmp_ge_u32 s{sPC}, 14"), I("s_cbranch_scc1 " + ("L_fin" if OPT['STAMP'] == 3 else "L_end"))]
assert sg > bar_gap[-1] and sg > last_store_gap
ext[g6 + OPT['CA']] += stamp_ins('pre_c0') + [I(t_) for t_ in (
    "s_waitcnt lgkmcnt(0)", f"s_and_b64 s[{sPL}:{sPL+1}], s[{sPL}:{sPL+1}], s[{sPL+2}:{sPL+3}]", f"s_and_b32 s{sPL}, s{sPL}, s{sPL+1}",
    f"s_and_b32 s{sPL}, s{sPL}, 0x01010101", f"s_cmp_eq_u32 s{sPL}, 0x01010101", f"s_cselect_b32 s{sMISS}, 0, {hx(OOB)}",
    f"v_add_u32 v{vFV+2}, s{sMISS}, v{vHS}")] + stamp_ins('chk0')
spread(gloads(0, 2*F0, vFV+2), g6 + OPT['CA'] + 1, g6 + OPT['LA'])
ext[g6 + OPT['PB']] += [I(VPOLL, tag='poll')]
NSB = 2*F1 if F1 < 7 else OPT['NSB']
assert OPT['CE'] > max(OPT['PB'], OPT['LA'])
ext[g6 + OPT['CE']] += stamp_ins('pre_c1') + [mk_wait_vm(['poll'])] + [I(t_) for t_ in (f"v_cmp_ne_u32 vcc, 1, v{vPOLL}", "s_cbranch_vccnz L_spin1", "L_spin1_ret:",
    f"s_cmp_lg_u32 s{sMISS}, 0", "s_cbranch_scc1 L_redo", "L_redo_ret:")] + stamp_ins('chk1')
glB = gloads(2*F0, NSB, vHS)
kp = len(glB) - 3*OPT['PCB']
if F1 < 7 and not OPT['P2G']: glB[kp:kp] = [I(VPOLL2, tag='poll2')]
spread(glB, g6 + OPT['CE'] + 1, min(g6 + OPT['LB'], NG - 4))
glC = gloads(NSB, 16, vHS)
if OPT['P2G']:
    assert OPT['P2G'] >= OPT['LB'] and OPT['PCB'] == 0
    ext[g6 + OPT['P2G']] += [I(VPOLL2, tag='poll2')]
if OPT['C2G']:
    ext[g6 + OPT['C2G']] += stamp_ins('pre_c2') + [mk_wait_vm(['poll2'])] + [I(t_) for t_ in (f"v_cmp_ne_u32 vcc, 1, v{vPOLL}", "s_cbranch_vccnz L_spin2", "L_spin2_ret:")] + stamp_ins('chk2')
    spread(glC, g6 + OPT['C2G'] + 1, NG - 2); glC = []
NYB = 2*(NSB - 2*F0) + (1 if F1 < 7 else 0)

vXF = 32
vAD = 125
nch = len(chunks)
free_ = [c_ for c_ in range(nch - 10, nch - NU) if chunks[c_]['private']]
XK = free_[0]; FS = [chunks[c_]['lo'] for c_ in free_[1:4]]
assert gap(chunks[free_[3]]['last'] + 1) < NG - 16*NU
XS = chunks[XK]['lo']
gx_ = max(gap(chunks[XK]['last'] + 1), cur + 1, g6 + OPT['XG'])
gx2 = place([f"v_accvgpr_read_b32 v{vAD}, a{aST+8}", f"s_add_u32 m0, s{sWB}, {XS}", f"s_movk_i32 s{sSV0}, {8*896 - 1024}", f"s_movk_i32 s{sSV1}, {8*896}",
       I(f"buffer_load_dwordx4 v{vAD}, {srd(sX)}, 0 offen lds", tag='xf'), I(f"buffer_load_dwordx4 v{vAD}, {srd(sX)}, s{sSV0} offen offset:1024 lds", tag='xf'),
       f"v_and_b32 v{vT3}, 15, v0", f"v_lshlrev_b32 v{vT3}, 7, v{vT3}", f"v_lshrrev_b32 v{vT4}, 4, v0", f"v_lshl_add_u32 v{vT3}, v{vT4}, 3, v{vT3}",
       f"s_add_u32 s{sSV2}, s{sWB}, {XS}", f"v_add_u32 v{vT3}, s{sSV2}, v{vT3}", f"v_lshrrev_b32 v{vT4}, 3, v0", f"v_lshl_add_u32 v{vT4}, v{vT4}, 4, v{vL16}", f"v_add_u32 v{vT4}, s{sSV2}, v{vT4}",
       f"v_and_b32 v{vPF}, 15, v0", f"v_lshl_add_u32 v{vPF}, v{vPF}, 4, v{vT3}"], gx_, gx_ + 30)
vSEL = 108
def vsa(u): return hole(8 + u)
vXU = 8
seq = [f"v_mov_b32 v{vSEL}, 0", f"v_mov_b32 v{vSEL+1}, 0", f"v_mov_b32 v{vSEL+4}, 0", f"v_mov_b32 v{vSEL+5}, 0", f"v_mov_b32 v{vT0}, 0x3f80", f"v_mov_b32 v{vSEL+2}, 0x3f800000",
       f"s_or_b64 s[16:17], s[{sM1}:{sM1+1}], s[{sM3}:{sM3+1}]", f"v_cndmask_b32 v{vT0}, v{vT0}, v{vSEL+2}, s[16:17]", f"v_cndmask_b32 v{vT0}, 0, v{vT0}, s[{sMD}:{sMD+1}]",
       f"v_cndmask_b32 v{vSEL+2}, v{vT0}, 0, s[{sM2}:{sM2+1}]", f"v_cndmask_b32 v{vSEL+3}, 0, v{vT0}, s[{sM2}:{sM2+1}]",
              f"v_mov_b32 v24, {hx(f2u(-16.0))}", f"v_mov_b32 v25, {hx(f2u(1.0/CSCALE))}"]
place(seq, NG - 31, NG - 12)
vFW, vFR = 40, 121
FRR = [120, 121, 124]
seq = []
for j in range(1, 4):
    seq += [f"s_add_u32 s{sT2}, s{sWB}, {FS[j-1]}", f"v_add_u32 v{vFW+j-1}, s{sT2}, v{vL16}",
            f"s_sub_u32 s{sT2}, s{sWB}, {j*4096}", f"s_and_b32 s{sT2}, s{sT2}, 0x3000", f"s_add_u32 s{sT2}, s{sT2}, {FS[j-1]}", f"v_add_u32 v{FRR[j-1]}, s{sT2}, v{vL16}"]
place(seq, NG - 16*NU - 30, NG - 16*NU)
def fwrites(u): return [I(f"ds_write_b128 v{vFW+j-1}, {v(facc(u, j), 4)} offset:{u*1024}") for j in range(1, 4)]
for u in range(3):
    ge_ = NG - 4*NU*(3 - u)
    spread(fwrites(u), ge_ + 4, min(ge_ + 4*NU + 3, NG))
seq = [mk_wait_vm(['xf'])] + [I(f"ds_read_b64 {v(vXF + 2*u, 2)}, v{vT3} offset:{u*32}", tag='xr2') for u in range(4)]
place(seq, NG - 44, NG - 34)
seq = [mk_wait_lg(['xr2'])]
for u in range(4):
    xr = vXF + u*2; b2 = vXU + 4*u
    seq += [f"v_lshlrev_b32 v{b2}, 16, v{xr}", f"v_and_b32 v{b2+1}, 0xffff0000, v{xr}", f"v_lshlrev_b32 v{b2+2}, 16, v{xr+1}", f"v_and_b32 v{b2+3}, 0xffff0000, v{xr+1}"]
place(seq, NG - 26, NG)
pass
HX = OPT['HX']; NHG = 16 // HX; NT = 32 // HX
npf = [0]
def pf_addr(nlines, lines_per_row, pitch, k, dst, idx_sgpr, nshare):
    per = nlines // nshare
    s = [f"s_lshl_b32 s{sSO2}, s{sW}, 6", f"s_add_u32 s{sSO2}, s{sSO2}, {k*256}", f"v_add_u32 v{dst}, s{sSO2}, v0",
         f"v_min_u32 v{dst}, {per-1}, v{dst}", f"s_mul_i32 s{sSO2}, s{idx_sgpr}, {per}", f"v_add_u32 v{dst}, s{sSO2}, v{dst}"]
    if lines_per_row is None:
        s += [f"v_lshlrev_b32 v{dst}, 7, v{dst}"]
    else:
        sh = lg(lines_per_row)
        s += [f"v_and_b32 v{vPF}, {lines_per_row-1}, v{dst}", f"v_lshrrev_b32 v{dst}, {sh}, v{dst}",
              f"v_mul_u32_u24 v{dst}, {pitch}, v{dst}", f"v_lshl_add_u32 v{dst}, v{vPF}, 7, v{dst}"]
    return s
def pf_load(srd_b, dst):
    npf[0] += 1
    return I(f"buffer_load_dword a{aST + 10 + npf[0] % 6}, v{dst}, {srd(srd_b)}, 0 offen {OPT['PPF']}", tag='pf')
def pf_seq(srd_b, nlines, lines_per_row, pitch, idx, nshare):
    s = []
    for k in range((nlines // nshare + 255) // 256):
        s += pf_addr(nlines, lines_per_row, pitch, k, vPF+1, idx, nshare) + [pf_load(srd_b, vPF+1)]
    return s
vLQ = 26
def pf_pieces(srd_b, per, unit, idx, extra_base=None, pol='', rot=False):
    setup = [f"s_mul_i32 s{sSO2}, s{idx}, {per}", f"v_add_u32 v{vPF+1}, s{sSO2}, v{vLQ}", f"v_mul_u32_u24 v{vPF+1}, {unit}, v{vPF+1}"]
    if extra_base is not None: setup.append(f"v_add_u32 v{vPF+1}, s{extra_base}, v{vPF+1}")
    pcs = []
    for k in range((per + 63)//64):
        npf[0] += 1
        n_ = (per + 63)//64
        if rot and k == 0: so_ = [f"s_lshr_b32 s{sSO2}, s{sTC}, 1", f"s_sub_u32 s{sCNT}, s{sSO2}, {n_}", f"s_min_u32 s{sSO2}, s{sSO2}, s{sCNT}", f"s_mul_i32 s{sSO2}, s{sSO2}, {64*unit}"]
        elif rot: so_ = [f"s_add_u32 s{sSO2}, s{sSO2}, {64*unit}", f"s_sub_u32 s{sCNT}, s{sSO2}, {n_*64*unit}", f"s_min_u32 s{sSO2}, s{sSO2}, s{sCNT}"]
        else: so_ = [f"s_mov_b32 s{sSO2}, {k*64*unit}"]
        pcs.append(so_ + [I(f"buffer_load_dword a{aST + 9 + npf[0] % 7}, v{vPF+1}, {srd(srd_b)}, s{sSO2} offen {pol}", tag='pf')])
    return setup, pcs
def pf_run(streams, g0, g1):
    items = []
    for st_ in streams:
        su, pcs = st_
        for k, p_ in enumerate(pcs): items.append((su if k == 0 else []) + p_)
    n = len(items)
    for k, it_ in enumerate(items):
        lo = g0 + (k*(g1-g0))//n
        place(it_, lo, lo + 24)
if OPT['PF']:
    place([f"v_lshrrev_b32 v{vLQ}, 2, v0", f"s_lshl_b32 s{sSO2}, s{sW}, 4", f"v_add_u32 v{vLQ}, s{sSO2}, v{vLQ}"], 100, 130)
    if not OPT['BIG'] & 2 and not OPT['NOPF2'] & 4: pf_run([pf_pieces(sKK, 2048//(2*NT), 128, sKVI, pol=OPT['PPF']), pf_pieces(sVV, 2048//(2*NT), 128, sKVI, pol=OPT['PPF'])], OPT['PFG'], gap(phase['P4']))
    if not OPT['NOPF2'] & 1: pf_run([pf_pieces(sWO, 1792//16, 128, sT) if OPT['WOM'] else pf_pieces(sWO, 1792//NT, 128, sTL), (lambda z: (z[0], z[1][:OPT['W2N']]))(pf_pieces(sW2, 448, 896, sW2I, rot=OPT['W2ROT']))], gap(phase[f"G3_{OPT['PF0']}"]), gp1 if OPT['PF1'] == 0 else gap(phase[f"G3_{OPT['PF1']}"]))
    vPF += -20
    sSO2 = sT3
    if not OPT['NOPF2'] & 2: pf_run([pf_pieces(sWS, 256, 128, sCC, sHPF, 'sc1')], gp1 + 2, gap(phase[f"G3_{hs+OPT['HPF']}"]) - 20)
    vPF += 20
    sSO2 = 93

if OPT['STLB'] == 2:
    for k_, (b_, o_) in enumerate(((sKK, '0'), (sVV, '0'), (sW2, '0'), (sWO, '0'), (sWS, f's{sHST}'), (sWS, f's{sQT+7}'), (sOUT, '0'))):
        i_ = I(f"s_buffer_load_dword s{sCNT}, {srd(b_)}, {o_}"); i_.cls = 'misc'; i_.dst = []
        place([i_], OPT['ST0'] + k_*OPT['STS'], OPT['ST0'] + k_*OPT['STS'] + 8)
if OPT['CPF'] and not OPT['STAMP']:
    gc = gap(phase[OPT['CPF']])
    place([f"s_lshr_b32 s{sT2}, s0, 3", f"s_lshl_b32 s{sT2}, s{sT2}, 10", f"s_add_u32 s{sT2}, s{sT2}, 0x8000", f"v_and_b32 v{vT2}, 7, v0", f"v_lshlrev_b32 v{vT2}, 7, v{vT2}",
           f"v_add_u32 v{vT2}, s{sT2}, v{vT2}", I(f"global_load_dword a{aST+9}, v{vT2}, s[26:27]", tag='pf')], gc, gc + 30)
if OPT['TLB']:
    gt = gap(phase[OPT['TLBP']])
    seq = []
    if OPT['TLB'] & 1: seq += [f"v_accvgpr_read_b32 v{vT1}, a{aST+8}", f"v_readfirstlane_b32 s{sT2}, v{vT1}", "s_nop 0", "s_nop 0", I(f"buffer_load_dword a{aST+9}, v{vZ}, {srd(sOUT)}, s{sT2} offen", tag='pf')]
    if OPT['TLB'] & 2: seq += [I(f"buffer_load_dword a{aST+9}, v{vZ}, {srd(sWS)}, s{sQT+7} offen sc1", tag='pf')]
    if OPT['TLB'] & 4: seq += [I(f"buffer_load_dword a{aST+9}, v{vZ}, {srd(sWS)}, s{sSG} offen sc1", tag='pf'), ]
    spread(seq, gt, gt + 40)
    if OPT['TLB'] & 8: place([I(f"buffer_load_dword a{aST+9}, v{vZ}, {srd(sWS)}, s{sHST} offen sc1", tag='pf')], gap(phase['P3']), gap(phase['P3']) + 20)
if OPT['FINE'] == 1:
    for p in range(1, 7): blk[phase[f'G4p{p}']] = stamp_ins(f'G4p{p}')
if OPT['FINE'] == 2:
    for nm in ['P1', 'P3', 'P5'] + [f'G2_{s_}' for s_ in range(1, 16) if s_ % 4] + ['G3_14', 'G3_15']:
        blk[phase[nm]] = stamp_ins(nm)
if OPT['STAMP'] or OPT['WAITAT']:
    for nm in ('P0', 'P2', 'P4', 'G2_0', 'G2_4', 'G2_8', 'G2_12', 'G6'):
        blk.setdefault(phase[nm], [])
        blk[phase[nm]] = stamp_ins(nm) + blk[phase[nm]]

E(f"""
s_cmp_ge_u32 s2, 256
s_cbranch_scc1 L_end
s_load_dwordx16 s[4:19], s[0:1], 0
s_load_dwordx4 s[20:23], s[0:1], 64
s_load_dwordx2 s[24:25], s[0:1], 80
""")
if OPT['STAMP'] or OPT['WAITAT']: E("s_memtime s[98:99]\ns_memrealtime s[100:101]")
E(f"""
v_lshrrev_b32 v{vT0}, 6, v0
v_and_b32 v0, 63, v0
s_and_b32 s{sT0}, s2, 7
v_readfirstlane_b32 s{sW}, v{vT0}
s_lshr_b32 s{sT1}, s2, 3
s_and_b32 s{sT2}, s{sT0}, {NHG-1}
s_lshl_b32 s{sT2}, s{sT2}, {lg(HX)}
s_and_b32 s{sHD}, s{sT1}, {HX-1}
s_add_u32 s{sHD}, s{sHD}, s{sT2}
s_lshr_b32 s{sT2}, s{sT0}, {lg(NHG)}
s_lshl_b32 s{sT2}, s{sT2}, {lg(NT)}
s_lshr_b32 s{sTL}, s{sT1}, {lg(HX)}
s_add_u32 s{sT}, s{sTL}, s{sT2}
s_lshl_b32 s{sWB}, s{sW}, 12
""")
CODE_LINES = 512
E(f"s_lshr_b32 s{sCNT}, s2, 3")
for t_ in pf_addr(CODE_LINES, None, 0, 0, vR+80, sCNT, 32): E(t_)
E(f"""
s_getpc_b64 s[26:27]
L_pc:
global_load_dword v{vR+96}, v{vR+80}, s[26:27]
""")
E(f"""
v_lshrrev_b32 v{vT3}, 3, v0
v_and_b32 v{vT4}, 7, v0
v_lshrrev_b32 v{vT1}, 1, v{vT3}
v_xor_b32 v{vT1}, v{vT1}, v{vT4}
v_lshlrev_b32 v{vT1}, 4, v{vT1}
v_xor_b32 v{vT2}, 64, v{vT1}
s_lshl_b32 s{sT1}, s{sT}, 2
s_add_u32 s{sT1}, s{sT1}, s{sW}
s_mul_i32 s{sT1}, s{sT1}, {32*896}
v_mul_u32_u24 v{vT0}, 896, v{vT3}
v_add_u32 v{vT0}, s{sT1}, v{vT0}
v_add_u32 v{vXD}, v{vT0}, v{vT1}
v_add_u32 v{vXD+1}, v{vT0}, v{vT2}
v_add_u32 v{vXD+2}, {2*6144}, v{vXD}
v_add_u32 v{vXD+3}, {3*6144}, v{vXD+1}
v_add_u32 v{vXD+1}, 6144, v{vXD+1}
s_mov_b32 m0, s{sWB}
s_mov_b32 s{sSO}, 0
v_min_u32 v{vR+82}, 13, v0
v_subrev_u32 v{vR+83}, 7, v{vR+82}
v_min_u32 v{vR+83}, v{vR+83}, v{vR+82}
v_sub_u32 v{vR+82}, v{vR+82}, v{vR+83}
v_lshlrev_b32 v{vR+82}, 11, v{vR+82}
v_lshl_add_u32 v{vR+82}, v{vR+83}, 7, v{vR+82}
s_mul_i32 s{sT2}, s{sHD}, 896
s_add_u32 s{sT2}, s{sT2}, s{sT1}
s_mov_b32 s{sX+2}, {2048*896}
s_mov_b32 s{sX+3}, 0x00020000
s_waitcnt lgkmcnt(0)
s_mov_b32 s{sX}, s4
s_mov_b32 s{sX+1}, s5
""")
if OPT['STAMP']: E(f"v_writelane_b32 v{vSTAMP}, s98, 60\nv_writelane_b32 v{vSTAMP}, s100, 61")
if OPT['WAITAT']: E('s_mov_b32 s1, s100')
PST('karg')
def mk_srd(b, plo, off_sgpr, size):
    if off_sgpr is None:
        E(f"s_mov_b32 s{b}, s{plo}\ns_mov_b32 s{b+1}, s{plo+1}")
    else:
        E(f"s_add_u32 s{b}, s{plo}, s{off_sgpr}\ns_addc_u32 s{b+1}, s{plo+1}, 0")
    E(f"s_mov_b32 s{b+2}, {size}\ns_mov_b32 s{b+3}, 0x00020000")
xdma = []
for tg in range(2):
    for q in range(7):
        if q or tg:
            xdma += [I(f"s_add_u32 m0, s{sWB}, {q*SLOT}"), I(f"s_movk_i32 s{sSO}, {q*128}")]
        for rb in (2*tg, 2*tg+1):
            xdma.append(I(f"buffer_load_dwordx4 v{vXD+rb}, {srd(sX)}, s{sSO} offen offset:{rb*1024} {OPT['PX']} lds", tag=('x', tg, q)))
def xissue(n):
    while n > 0 and xdma:
        i_ = xdma.pop(0); P.ins.append(i_)
        if i_.cls == 'vmem': n -= 1
if OPT['XPF']: E(f"buffer_load_dword a{aST+9}, v{vR+82}, {srd(sX)}, s{sT2} offen", tag='pf')
xissue(OPT['XFIRST'])
if OPT['STLB'] >= 3:
    lst = [("s[10:11]", 0), ("s[10:11]", 400*8192), ("s[16:17]", 0), ("s[24:25]", WS_F + 0x10000)]
    if OPT['STLB'] >= 4: lst += [("s[6:7]", 'kv'), ("s[8:9]", 'kv'), ("s[18:19]", 0), ("s[20:21]", 0), ("s[12:13]", 0), ("s[12:13]", 4000*896)]
    for p_, o_ in lst:
        if o_ == 'kv': E(f"s_lshl_b32 s{sCNT}, s{sHD}, 19")
        else: E(f"s_mov_b32 s{sCNT}, {hx(o_)}")
        i_ = I(f"s_load_dword s{sSTEP}, {p_}, s{sCNT}"); i_.dst = []; P.ins.append(i_)
E(f"s_lshl_b32 s{sT0}, s{sHD}, 9\ns_sub_u32 s{sT2}, {448*8192}, s{sT0}")
mk_srd(sWQ, 10, sT0, f"s{sT2}")
if OPT['EPF']:
    for t_ in pf_seq(sWQ, OPT['EPF'], 1, 8192, sT, 16):
        if isinstance(t_, str): E(t_)
        else: P.ins.append(t_)
wqpf = [I(t_) if isinstance(t_, str) else t_ for t_ in pf_seq(sWQ, 448*OPT['WQP'], OPT['WQP'], 8192, sTL, NT)] if OPT['PF'] and OPT['WQP'] else []
if OPT['WQE'] == 1: P.ins += wqpf; wqpf = []
else: P.ins += wqpf[:-1]; wqpf = wqpf[-1:]
xissue(OPT['XSEC'])
PST('x_first')
mk_srd(sOUT, 20, None, 2048*896)
E(f"""
s_lshl_b32 s{sT0}, s{sW}, 7
v_lshlrev_b32 v{vKD}, 9, v{vT3}
v_add_u32 v{vVD}, s{sT0}, v{vKD}
v_add_u32 v{vKD}, v{vVD}, v{vT1}
v_add_u32 v{vKD+1}, v{vVD}, v{vT2}
v_add_u32 v{vKD+2}, {2*3072}, v{vKD}
v_add_u32 v{vKD+3}, {3*3072}, v{vKD+1}
v_add_u32 v{vKD+1}, 3072, v{vKD+1}
v_and_b32 v{vT0}, 6, v{vT3}
v_xor_b32 v{vT0}, v{vT0}, v{vT4}
v_lshlrev_b32 v{vT0}, 4, v{vT0}
v_add_u32 v{vVD}, v{vVD}, v{vT0}
""")
for rb in range(1, 4): E(f"v_add_u32 v{vVD+rb}, {3072*rb}, v{vVD}")
E(f"""
v_and_b32 v{vT1}, {0 if OPT['LNM'] else 4}, v{vT3}
v_add_u32 v{vT1}, v{vT1}, v{vT3}
v_lshl_add_u32 v{vWQ}, v{vT1}, 13, v{vT0}
v_mul_u32_u24 v{vT1}, 3584, v{vT1}
v_add_u32 v{vW1D}, v{vT1}, v{vT0}
""")
for rb in range(1, 4):
    rr = 8*rb if OPT['LNM'] else 16*(rb & 1) + 4*(rb >> 1)
    E(f"v_add_u32 v{vW1D+rb}, {rr*3584 - 1024*rb}, v{vW1D}\nv_add_u32 v{vWQ+rb}, {rr*8192 - 1024*rb}, v{vWQ}")
E(f"""
s_lshl_b32 s{sT1}, s{sHD}, 8
s_sub_u32 s{sT2}, {448*3584}, s{sT1}
s_cmp_lt_u32 s{sHD}, 14
s_cselect_b32 s{sT2}, s{sT2}, 0
s_cselect_b32 s{sT1}, s{sT1}, 0
""")
mk_srd(sW1, 16, sT1, f"s{sT2}")
E(f"s_lshr_b32 s{sT0}, s{sHD}, 1\ns_lshl_b32 s{sT0}, s{sT0}, 20\ns_add_u32 s{sT0}, s{sT0}, {1536*512}")
mk_srd(sKK, 6, sT0, 262144)
mk_srd(sVV, 8, sT0, 262144)
E(f"s_mul_i32 s{sT0}, s{sHD}, {256*896}")
mk_srd(sWO, 12, sT0, 256*896)
E(f"""
s_lshr_b32 s{sPC}, s2, 3
s_and_b32 s{sPC}, s{sPC}, 15
s_cmp_ge_u32 s{sPC}, 7
s_cselect_b32 s{sT3}, 1, 0
s_mul_i32 s{sT1}, s{sT3}, 7
s_sub_u32 s{sT1}, s{sPC}, s{sT1}
s_lshl_b32 s{sT0}, s{sT1}, 7
s_sub_u32 s{sT2}, {1792*896}, s{sT0}
s_cmp_lt_u32 s{sPC}, 14
s_cselect_b32 s{sT2}, s{sT2}, 0
s_cselect_b32 s{sT0}, s{sT0}, 0
""")
mk_srd(sW2, 18, sT0, f"s{sT2}")
if OPT['WSOFF']:
    E(f"s_mov_b32 s{sT0}, {hx(OPT['WSOFF'] << 20)}")
    mk_srd(sWS, 24, sT0, WS_SIZE)
else:
    mk_srd(sWS, 24, None, WS_SIZE)
for k_, R_ in ((0, 32*8192), (2, 32*3584)):
    E(f"""
s_mul_i32 s{sW1T+k_}, s{sW}, {R_}
s_cmp_lt_u32 s{sW}, 2
s_mov_b32 s{sT2}, {hx(128 - 2*R_)}
s_cselect_b32 s{sT0}, {12*R_}, s{sT2}
s_add_u32 s{sW1T+k_+1}, s{sW1T+k_}, s{sT0}
""")
E(f"""
v_mul_u32_u24 v{vT1}, 896, v{vT3}
v_add_u32 v{vT1}, v{vT1}, v{vT0}
s_mul_i32 s{sT0}, s{sW}, {32*896}
s_mul_i32 s{sT2}, s{sW}, {448*896}
""")
for rb in range(4):
    if rb: E(f"v_add_u32 v{vT1}, 6144, v{vT1}")
    E(f"v_add_u32 v{vT2}, s{sT0}, v{vT1}\nv_accvgpr_write_b32 a{aST+rb}, v{vT2}\nv_add_u32 v{vT2}, s{sT2}, v{vT1}\nv_accvgpr_write_b32 a{aST+4+rb}, v{vT2}")
E(f"""
v_lshlrev_b32 v{vL16}, 4, v0
v_lshrrev_b32 v{vT0}, 2, v0
v_lshlrev_b32 v{vT1}, 7, v{vT0}
v_and_b32 v{vT2}, 3, v0
v_lshl_add_u32 v{vT1}, v{vT2}, 3, v{vT1}
v_bfe_u32 v{vT3}, v0, 3, 2
""")
for u in range(4):
    E(f"""
v_xor_b32 v{vT4}, {u}, v{vT3}
v_lshl_add_u32 v{vTR+u}, v{vT4}, 5, v{vT1}
v_add_u32 v{vTR+4+u}, 0x10000, v{vTR+u}
v_add_u32 v{vTR+8+u}, 0x20000, v{vTR+u}
""")
E(f"""
v_and_b32 v{vT0}, 15, v0
v_lshrrev_b32 v{vT1}, 1, v{vT0}
v_lshrrev_b32 v{vT2}, 4, v0
v_xor_b32 v{vT1}, v{vT1}, v{vT2}
v_lshlrev_b32 v{vT4}, 7, v{vT0}
v_lshl_add_u32 v{vRA}, v{vT1}, 4, v{vT4}
v_xor_b32 v{vRA+1}, 64, v{vRA}
v_add_u32 v{vRA+2}, 0x10000, v{vRA}
v_add_u32 v{vRA+3}, 0x10000, v{vRA+1}
v_add_u32 v{vRA+4}, 0x20000, v{vRA}
v_add_u32 v{vRA+5}, 0x20000, v{vRA+1}
""")
vXR = vR + 72
for i in range(4): E(f"v_add_u32 v{vXR+i}, s{sWB}, v{vRA+i}")
vXT = vR + 84
if OPT['LNM']:
    E(f"""
v_lshrrev_b32 v{vXT+1}, 3, v0
v_bfe_u32 v{vXT+2}, v0, 1, 1
v_xor_b32 v{vXT+1}, v{vXT+1}, v{vXT+2}
v_lshlrev_b32 v{vXT+1}, 4, v{vXT+1}
v_lshrrev_b32 v{vXT+2}, 2, v0
v_lshl_add_u32 v{vXT+1}, v{vXT+2}, 7, v{vXT+1}
v_and_b32 v{vXT+2}, 1, v0
v_lshl_add_u32 v{vXT+1}, v{vXT+2}, 3, v{vXT+1}
v_add_u32 v{vXT}, s{sWB}, v{vXT+1}
""")
    for u in range(1, 4): E(f"v_xor_b32 v{vXT+u}, {32*u}, v{vXT}")
    for u in range(4): E(f"v_add_u32 v{vXT+4+u}, 0x10000, v{vXT+u}")
E(f"""
s_and_b32 s{sTC}, s2, 7
s_lshl_b32 s{sTC}, s{sTC}, 1
s_lshr_b32 s{sT0}, s2, 7
s_add_u32 s{sTC}, s{sTC}, s{sT0}
s_lshl_b32 s{sW2I}, s{sT0}, 1
s_add_u32 s{sW2I}, s{sW2I}, s{sT3}
s_lshl_b32 s{sT2}, s{sTC}, 1
s_add_u32 s{sT2}, s{sT2}, s{sT3}
s_lshl_b32 s{sT0}, s{sT2}, 2
s_add_u32 s{sT0}, s{sT0}, s{sW}
s_mul_i32 s{sT0}, s{sT0}, {16*896}
s_lshl_b32 s{sSG}, s{sT1}, 7
s_add_u32 s{sT0}, s{sT0}, s{sSG}
v_lshrrev_b32 v{vT0}, 3, v0
v_mul_u32_u24 v{vT0}, 896, v{vT0}
v_and_b32 v{vT2}, 7, v0
v_lshl_add_u32 v{vT0}, v{vT2}, 4, v{vT0}
v_add_u32 v{vT0}, s{sT0}, v{vT0}
v_accvgpr_write_b32 a{aST+8}, v{vT0}
s_lshl_b32 s{sT2}, s{sT2}, 1
s_lshr_b32 s{sT0}, s{sW}, 1
s_add_u32 s{sSG}, s{sT2}, s{sT0}
s_lshl_b32 s{sFLP}, s{sSG}, 9
s_mul_i32 s{sSG}, s{sSG}, 7
s_add_u32 s{sSG}, s{sSG}, s{sT1}
s_lshl_b32 s{sSG}, s{sSG}, 2
s_add_u32 s{sFLP}, s{sFLP}, {hx(WS_F)}
s_and_b32 s{sT0}, s{sW}, 1
s_add_u32 s{sSG}, s{sSG}, s{sT0}
s_lshl_b32 s{sSG}, s{sSG}, 14
s_mul_i32 s{sHLD}, s{sT2}, {56*2048}
s_add_u32 s{sHLD}, s{sHLD}, {hx(WS_H)}
s_cmp_lt_u32 s{sPC}, 14
s_cselect_b32 s{sCOOB}, 0, {hx(OOB)}
s_add_u32 s{sHPF}, s{sHLD}, s{sCOOB}
s_mul_i32 s{sT0}, s{sW}, {14*2048}
s_add_u32 s{sHLD}, s{sHLD}, s{sT0}
s_mov_b32 s0, s2
s_mov_b32 s{sCC}, s{sT1}
s_lshl_b32 s{sKVI}, s{sTL}, 1
s_and_b32 s{sT0}, s{sHD}, 1
s_add_u32 s{sKVI}, s{sKVI}, s{sT0}
s_lshl_b32 s{sT1}, s{sT}, 2
s_add_u32 s{sT1}, s{sT1}, s{sW}
s_lshl_b32 s{sFLG}, s{sT1}, 9
s_add_u32 s{sFLG}, s{sFLG}, s{sHD}
v_min_u32 v{vPOLL}, 2, v0
v_lshlrev_b32 v{vPOLL}, 7, v{vPOLL}
s_add_u32 s{sFLG}, s{sFLG}, {hx(WS_F)}
s_mul_i32 s{sHST}, s{sT1}, {56*2048}
s_min_u32 s{sT2}, s{sHD}, 13
s_lshl_b32 s{sT2}, s{sT2}, 13
s_add_u32 s{sHST}, s{sHST}, s{sT2}
s_add_u32 s{sHST}, s{sHST}, {hx(WS_H)}
s_cmp_lt_u32 s{sHD}, 14
s_cselect_b32 s{sT2}, 0, {hx(OOB)}
v_add_u32 v{vHS}, s{sT2}, v{vL16}
v_mov_b32 v{vZ}, 0
v_mov_b32 v{vONE}, 1
""")
PST('addr_done')
xissue(14 - OPT['XFIRST'] - OPT['XSEC'])
if OPT['WQE'] == 0: P.ins += wqpf; wqpf = []
PST('x_issued')
PRODUCER = len(P.ins)
E(f"""
s_lshl_b32 s{sSST}, s{sT}, 2
s_add_u32 s{sSST}, s{sSST}, s{sW}
s_mul_i32 s{sSST}, s{sSST}, {28*16384}
s_cmp_ge_u32 s{sHD}, 7
s_cselect_b32 s{sT3}, 1, 0
s_sub_u32 s{sROT}, s{sHD}, 7
s_min_u32 s{sROT}, s{sROT}, s{sHD}
s_sub_u32 s{sCNT}, s{sROT}, 7
s_min_u32 s{sROT}, s{sROT}, s{sCNT}
s_cmp_lt_u32 s{sHD}, 14
s_cselect_b32 s{sT3}, s{sT3}, s{sHD}
s_cselect_b32 s{sSTEP}, 2048, 0
s_lshl_b32 s{sT3}, s{sT3}, 10
s_add_u32 s{sSST}, s{sSST}, s{sT3}
""")
prod_ins = []
if OPT['STLB'] == 1:
    for b_, o_ in ((sKK, '0'), (sVV, '0'), (sWQ, '0'), (sWQ, f'{hx(400*8192)}')[:2], (sWO, '0'), (sW1, '0'), (sW2, '0'), (sOUT, '0'),
                   (sWS, f's{sSST}'), (sWS, f's{sHST}'), (sWS, hx(WS_F + 0x10000))):
        if o_.startswith('0x'): E(f"s_mov_b32 s{sCNT}, {o_}"); o_ = f's{sCNT}'
        i_ = I(f"s_buffer_load_dword s{sCNT}, {srd(b_)}, {o_}"); i_.cls = 'smem'; i_.dst = []; P.ins.append(i_)
for s_, val in ((sM1, 0x2222222222222222), (sM2, 0xCCCCCCCCCCCCCCCC), (sM3, 0x8888888888888888), (sMD, 0xF0000F0000F0000F)):
    E(f"s_mov_b32 s{s_}, {hx(val)}\ns_mov_b32 s{s_+1}, {hx(val >> 32)}")

vONES = vR + 16
vD1 = vR + 20
vD2 = vR + 28
vLA = vR + 36
for i in range(4): E(f"v_mov_b32 v{vONES+i}, 0x3f803f80")
def rbf(r):
    return [f"v_cvt_pk_bf16_f32 v{r}, v{r}, v{r}", f"v_lshlrev_b32 v{r}, 16, v{r}"]
E(f"s_mov_b32 s{sT0}, {hx(f2u(1.0/448.0))}\ns_mov_b32 s{sT1}, {hx(f2u(1e-5))}\ns_mov_b32 s{sT2}, {hx(f2u(CSCALE))}")
if OPT['PADS']:
    E(f"""
s_mov_b64 exec, 0
s_cmp_eq_u32 s{sW}, 0
s_cbranch_scc1 L_pg0
s_cmp_eq_u32 s{sW}, 1
s_cbranch_scc1 L_pg1
s_cmp_eq_u32 s{sW}, 2
s_cbranch_scc1 L_pg2
s_branch L_pg3
.p2align 12
L_main:
s_mov_b64 exec, -1
""")
STAMP('pro_done')
vNT = vR + 44
NPRO = OPT['NPRO']
big = []
if OPT['BIG'] & 1:
    t_ = pf_seq(sWQ, 448*2, 2, 8192, sTL, NT); t_[-1] = I(t_[-1].text.replace('offen', 'offen offset:256'), tag='pf'); big += t_
    big += pf_seq(sW1, 448*2, 2, 3584, sTL, NT)
if OPT['BIG'] & 2:
    t_ = pf_seq(sKK, 2048, None, 0, sKVI, 2*NT); big += t_ + [pf_load(sVV, vPF+1)]
big = [I(t_) if isinstance(t_, str) else t_ for t_ in big]
assert len(pro_dma) == NPRO
L0N = OPT['L0N']
late = {0: [i_ for d_ in pro_dma[:L0N] for i_ in d_],
        1: [i_ for d_ in pro_dma[3:] for i_ in d_]
           + big + [I(f"buffer_store_byte v{vZ}, v{vPOLL}, {srd(sWS)}, s{sFLG} offen sc1", tag='hst')]}
def xreads(tg, q):
    r = [mk_wait_vm([('x', tg, q)])]
    for ks in (2*q, 2*q+1):
        ad = q*SLOT + tg*2048
        r.append(I(f"ds_read_b128 {v(xn(ks,tg),4)}, v{vXR + (ad >> 16)*2 + (ks & 1)} offset:{ad & 0xffff}", tag=('xr', tg, q)))
    return r
def stats(tg, q, fill):
    P.wait_lgkm_tag([('xr', tg, q)])
    for ks in (2*q, 2*q+1):
        X = v(xn(ks, tg), 4)
        for m_ in (mfma(v(vD1+4*tg, 4), v(vONES, 4), X, "0" if ks == 0 else v(vD1+4*tg, 4)), mfma(v(vD2+4*tg, 4), X, X, "0" if ks == 0 else v(vD2+4*tg, 4))):
            E(m_)
            t_ = 0
            while fill and t_ + cost(fill[0]) <= 12:
                t_ += cost(fill[0]); P.ins.append(fill.pop(0))
def scalars(tg):
    d = vD2 + 4*tg; m = vD1 + 4*tg; t = m + 1; L = vLA + 4*tg
    s = [f"v_cndmask_b32 v{d}, v{d}, v{d+1}, s[{sM1}:{sM1+1}]",
         f"v_cndmask_b32 v{d+2}, v{d+2}, v{d+3}, s[{sM3}:{sM3+1}]",
         f"v_mul_f32 v{m}, s{sT0}, v{m}",
         f"v_cndmask_b32 v{d}, v{d}, v{d+2}, s[{sM2}:{sM2+1}]",
         f"v_cndmask_b32 v{d}, 0, v{d}, s[{sMD}:{sMD+1}]"]
    s += allred(d, t, "v_add_f32")
    s += [f"v_mul_f32 v{d}, s{sT0}, v{d}",
          f"v_fma_f32 v{d}, -v{m}, v{m}, v{d}",
          f"v_max_f32 v{d}, 0, v{d}"]
    s += interleave(rbf(m), rbf(d))
    s += [f"v_add_f32 v{d}, s{sT1}, v{d}"] + rbf(d) + [f"v_sqrt_f32 v{d}, v{d}"] + rbf(d)
    s += [f"v_rcp_f32 v{d}, v{d}", f"v_mul_f32 v{d}, s{sT2}, v{d}",
          f"v_cvt_pk_bf16_f32 v{d}, v{d}, v{d}",
          f"v_and_b32 v{L}, 0xffff, v{d}", f"v_lshlrev_b32 v{L+1}, 16, v{d}",
          f"v_mul_f32 v{L+2}, -v{m}, v{L+1}"]
    if OPT['LNM']:
        s += [f"v_cndmask_b32 v{L}, v{L}, v{L+1}, s[16:17]", f"v_mov_b32 v{m}, v{L+2}", f"v_cndmask_b32 v{L}, 0, v{L}, s[{sMD}:{sMD+1}]", f"v_mov_b32 v{m+1}, v{L+2}",
              f"v_cndmask_b32 v{L+1}, 0, v{L}, s[{sM2}:{sM2+1}]", f"v_mov_b32 v{m+2}, v{L+2}", f"v_cndmask_b32 v{L}, v{L}, 0, s[{sM2}:{sM2+1}]", f"v_mov_b32 v{m+3}, v{L+2}"]
    return s
aXT = 128
def xtr(tg, T):
    ad = (T >> 2)*SLOT + tg*2048
    return I(f"ds_read_b64_tr_b16 {a(aXT + 2*(tg*28 + T), 2)}, v{vXT + (ad >> 16)*4 + (T & 3)} offset:{ad & 0xffff}", tag=('xt', tg, T))
def normm(tg, T0, T1, fill, pend):
    L = vLA + 4*tg; m = vD1 + 4*tg
    for T in range(T0, T1):
        if T % 4 == 0: P.wait_lgkm_tag([('xt', tg, min(T + 3, 27))])
        t = vNT + 4*(T % 4)
        E(f"v_mfma_f32_16x16x16_bf16 {v(t,4)}, {a(aXT + 2*(tg*28 + T), 2)}, {v(L,2)}, {v(m,4)}")
        x_ = xn(T >> 1, tg) + 2*(T & 1)
        k_ = 0
        while fill and k_ < 1:
            P.ins.append(fill.pop(0)); k_ += 1
        pend.append([f"v_cvt_pk_bf16_f32 v{x_}, v{t}, v{t+1}", f"v_cvt_pk_bf16_f32 v{x_+1}, v{t+2}, v{t+3}"])
        if len(pend) > 2:
            for t_ in pend.pop(0): E(t_)
def normalize(tg, side):
    L = vLA + 4*tg; k = 0; pend = []
    for ks in range(14):
        for r in range(4):
            x_ = xn(ks, tg) + r
            t = vNT + 2*(k % 8); k += 1
            E(f"v_dot2_f32_bf16 v{t}, v{x_}, v{L}, v{L+2}\nv_dot2_f32_bf16 v{t+1}, v{x_}, v{L+1}, v{L+2}")
            pend.append(f"v_cvt_pk_bf16_f32 v{x_}, v{t}, v{t+1}")
            if len(pend) > 2: E(pend.pop(0))
            P.ins += side.get(k, [])
    for t_ in pend: E(t_)
for q in range(7):
    P.ins += xreads(0, q)
    if q in (0, 3, 6): PST(f'w0{q}')
    xissue(2)
    if q > 1: stats(0, q-2, [])
fill = (late[0] + wqpf) if OPT['R0F'] else (wqpf + late[0])
stats(0, 5, fill); stats(0, 6, fill)
P.ins += fill
STAMP('x0_arrived')
if not OPT['LNM']:
    for t_ in scalars(0): E(t_)
    X1 = OPT['X1']
    normalize(0, {X1 + 4*q: xreads(1, q) for q in range(7)})
    PST('ln0_done')
    fill = [i_ for d_ in pro_dma[L0N:3] for i_ in d_]
    for q in range(7):
        if q == 1: P.wait_lgkm_tag([('xr', 1, 6)]); fill += late[1]
        stats(1, q, fill)
    P.ins += fill
    STAMP('x1_arrived')
    for t_ in scalars(1): E(t_)
    fr_ = [i_ for f in range(D) for i_ in frag_reads(f)]
    side = {OPT['BARK']: [mk_wait_vm(first_need), I("s_barrier")]}
    for k_, i_ in enumerate(fr_): side.setdefault(min(OPT['BARK'] + 1 + k_, 56), []).append(i_)
    normalize(1, side)
else:
    NA0 = OPT['NA0']
    E(f"s_or_b64 s[16:17], s[{sM1}:{sM1+1}], s[{sM3}:{sM3+1}]")
    rd0 = [xtr(0, T) for T in range(28)]
    for k_, t_ in enumerate(scalars(0)):
        if rd0 and k_ < 14: P.ins.append(rd0.pop(0))
        E(t_)
    pend = []
    normm(0, 0, 14, rd0, pend)
    assert not rd0
    x1 = [i_ for q in range(7) for i_ in xreads(1, q)]
    for i_ in x1[:6]: P.ins.append(i_)
    for p_ in pend:
        for t_ in p_: E(t_)
    pend = []
    PST('ln0_half')
    n3 = sum(len(d_) for d_ in pro_dma[3:])
    fill = x1[6:] + [i_ for d_ in pro_dma[L0N:3] for i_ in d_] + late[1][n3:]
    for q in range(7): stats(1, q, fill)
    P.ins += fill
    STAMP('x1_arrived')
    rd1 = [xtr(1, T) for T in range(28)]
    sc1 = [I(t_) for t_ in scalars(1)]
    for T in range(14, 28):
        normm(0, T, T+1, rd1, pend)
        if T >= 15:
            for _ in range(2):
                if sc1: P.ins.append(sc1.pop(0))
    for p_ in pend:
        for t_ in p_: E(t_)
    pend = []
    for k_, i_ in enumerate(sc1):
        if rd1 and k_ % 2 == 0: P.ins.append(rd1.pop(0))
        P.ins.append(i_)
    PST('ln0_done')
    fr_ = [i_ for f in range(D) for i_ in frag_reads(f)]
    fill = rd1 + [mk_wait_vm(first_need), I("s_barrier")] + fr_
    normm(1, 0, 28, fill, pend)
    P.ins += fill
    P.wait_lgkm_tag([('xt', 1, 27)])
    lt = late[1][:n3]
    for p_ in pend:
        for t_ in p_: E(t_)
    P.ins += lt
if OPT['DUMP'] == 'xn':
    P.ins += dump([v(xn(ks, tg), 4) for ks in range(14) for tg in range(2)])

P.ins.append(mk_wait_lg([('f', f) for f in range(4)]))
est = 0
for g in range(NF):
    if g in blk: P.ins += blk[g]
    for h, m_ in enumerate(MF[g]):
        gp = G0[g] + h
        P.ins.append(I(m_))
        P.ins += pre[gp] + rds[gp] + ext[gp]
        est += max(16, gtime(pre[gp] + rds[gp] + ext[gp]))
if OPT['LOG']:
    ph = sorted((f_, n_) for n_, f_ in phase.items())
    for (f0_, n_), (f1_, _) in zip(ph, ph[1:]):
        e_ = sum(max(16, gtime(pre[q_] + rds[q_] + ext[q_])) for q_ in range(gap(f0_), gap(f1_)))
        print(f"  phase {n_}: est {e_} ideal {16*(gap(f1_)-gap(f0_))}", file=sys.stderr)
print("estimated main-stream cycles", est, "ideal", 16*NG, file=sys.stderr)

STAMP('g6_done')
def fs(u, w_): return facc(u, w_)
def smf(rl, sl):
    r = []
    for tg in range(2):
        d = v(vsa(rl*2+tg), 4)
        r.append(mfma(d, v(vSEL + (2 if tg == 0 else 0), 4), greg(rl, sl), "0" if sl == 0 else d))
    return r
msA = [m_ for sq in range(0, 2*F0, 2) for rl in range(2) for sl in (sq, sq+1) for m_ in smf(rl, sl)]
if not OPT['C2G']: E(f"s_waitcnt vmcnt({NYB})")
n2 = OPT['N2']
rest = list(glC)
def last_test():
    if F1 < 7 and not OPT['C2G']:
        STAMP('pre_c2')
        P.wait_vm_tag(['poll2'])
        E(f"v_cmp_ne_u32 vcc, 1, v{vPOLL}\ns_cbranch_vccnz L_spin2\nL_spin2_ret:")
        STAMP('chk2')
last_test()
for _ in range(6):
    if rest: P.ins.append(rest.pop(0))
for i_ in fwrites(3):
    P.ins.append(i_)
    if msA: E(msA.pop(0))
while rest and len(glC) - len(rest) < n2:
    P.ins.append(rest.pop(0))
    if P.ins[-1].cls == 'vmem' and msA: E(msA.pop(0))
E("s_waitcnt lgkmcnt(0)\ns_barrier")
doneB = [(rl, sl) for sq in range(2*F0, NSB, 2) for rl in range(2) for sl in (sq, sq+1)]
lateB = doneB[len(doneB) - 2*OPT['PCB']:]; doneB = doneB[:len(doneB) - 2*OPT['PCB']]
msA += [m_ for rl, sl in doneB for m_ in smf(rl, sl)]
for u in range(4):
    for j in range(1, 4):
        E(f"ds_read_b128 {v(fs(u, j), 4)}, v{FRR[j-1]} offset:{u*1024}")
        if msA: E(msA.pop(0))
P.ins += rest
def with_m(l):
    if OPT['PKNOP']: E(f"s_nop {OPT['PKNOP']-1}")
    for t_ in l:
        if msA: E(msA.pop(0))
        E(t_)
R4 = [tuple(fs(u, w_) for w_ in range(4)) for u in range(4)]
for b0, b1, b2, b3 in R4:
    for r in (0, 2): E(f"v_pk_add_f32 {v(b0+r,2)}, {v(b0+r,2)}, {v(b1+r,2)}\nv_pk_add_f32 {v(b2+r,2)}, {v(b2+r,2)}, {v(b3+r,2)}")
    for r in (0, 2): E(f"v_pk_add_f32 {v(b0+r,2)}, {v(b0+r,2)}, {v(b2+r,2)}")
    for r in (0, 2): E(f"v_pk_mul_f32 {v(b1+r,2)}, {v(b0+r,2)}, v[24:25] op_sel:[0,0] op_sel_hi:[1,0]")
    for r in (0, 2): E(f"v_pk_mul_f32 {v(b0+r,2)}, {v(b0+r,2)}, v[24:25] op_sel:[0,1] op_sel_hi:[1,1]")
with_m([f"v_exp_f32 v{b[1]+r}, v{b[1]+r}" for b in R4 for r in range(4)])
for b in R4:
    for r in (0, 2): E(f"v_pk_add_f32 {v(b[1]+r,2)}, {v(b[1]+r,2)}, 1.0 op_sel_hi:[1,0]")
lastC = lateB + [(rl, sl) for sq in range(NSB, 16, 2) for rl in range(2) for sl in (sq, sq+1)]
NC1 = OPT['NC1']
msA += [m_ for rl, sl in lastC[:NC1] for m_ in smf(rl, sl)]; lastC = lastC[NC1:]
with_m([f"v_rcp_f32 v{b[1]+r}, v{b[1]+r}" for b in R4 for r in range(4)])
for m_ in msA: E(m_)
STAMP('g_done')
gm_ = [f"v_mul_f32 v{b[0]+r}, v{b[0]+r}, v{b[1]+r}" for b in R4 for r in range(4)]
for rl, sl in lastC:
    for m_ in smf(rl, sl):
        E(m_)
        for _ in range(2):
            if gm_: E(gm_.pop(0))
for t_ in gm_: E(t_)
for u in range(4):
    b0 = fs(u, 0)
    for r in (0, 2): E(f"v_pk_fma_f32 {v(b0+r,2)}, {v(vsa(u)+r,2)}, {v(b0+r,2)}, {v(vXU+u*4+r,2)}")
    E(f"v_cvt_pk_bf16_f32 v{b0}, v{b0}, v{b0+1}\nv_cvt_pk_bf16_f32 v{b0+1}, v{b0+2}, v{b0+3}")
    E(f"ds_write_b64 v{vPF}, {v(b0,2)} offset:{u*32}")
E(f"""
ds_read_b128 {v(vXF,4)}, v{vT4}
ds_read_b128 {v(vXF+4,4)}, v{vT4} offset:1152
buffer_store_dwordx4 {v(vXF,4)}, v{vAD}, {srd(sOUT)}, 0 offen {OPT['OST']}
buffer_store_dwordx4 {v(vXF+4,4)}, v{vAD}, {srd(sOUT)}, s{sSV1} offen {OPT['OST']}
""")
if OPT['WAITAT']: STAMP('end')
if OPT['STAMP']:
    STAMP('end')
    E(f"""
L_fin:
s_memrealtime s[{sSTMP}:{sSTMP+1}]
s_waitcnt lgkmcnt(0)
v_writelane_b32 v{vSTAMP}, s{sMISS}, 59
v_writelane_b32 v{vSTAMP}, s{sSTMP}, 62
s_lshl_b32 s{sT0}, s0, 2
s_add_u32 s{sT0}, s{sT0}, s{sW}
s_lshl_b32 s{sT0}, s{sT0}, 8
s_add_u32 s{sT0}, s{sT0}, {hx(WS_DBG)}
v_lshlrev_b32 v{vT0}, 2, v0
buffer_store_dword v{vSTAMP}, v{vT0}, {srd(sWS)}, s{sT0} offen
""")
E("L_end:\ns_endpgm")
main_ins, log, stats_ = resolve(P.ins)
print("main", stats_, file=sys.stderr)
if OPT['LOG']:
    for l in log: print("  ", l, file=sys.stderr)

Q = Prog(); E = Q.emit
SPIN_MAX = 1 << 17
def spin(label, load, want, cmp):
    E(f"""
{label}:
s_mov_b32 s{sCNT}, {SPIN_MAX}
{label}_loop:
s_sleep 1
{load}
s_waitcnt vmcnt(0)
v_cmp_{cmp}_u32 vcc, {want}, v{vPOLL}
s_sub_u32 s{sCNT}, s{sCNT}, 1
s_cmp_eq_u32 s{sCNT}, 0
s_cbranch_scc1 {label}_ret
s_cbranch_vccnz {label}_loop
s_branch {label}_ret
""")
spin("L_spinh", f"s_lshl_b32 s{sT0}, s{sTC}, 4\nv_mov_b32 v{vT0}, s{sT0}\nglobal_load_dword v{vPOLL}, v{vT0}, {DBGP} sc1", 16, "gt")
spin("L_spin1", VPOLL, 1, "ne")
if F1 < 7: spin("L_spin2", VPOLL2, 1, "ne")
E("L_redo:\ns_waitcnt vmcnt(0)")
Q.ins += gloads(0, 2*F0, vHS)
E("s_branch L_redo_ret")
MISC = [c['lo'] for c in chunks if c['name'] == 'V_15'][0]
fK, fS, fP, fA, fV, fR, fM = 44, 76, 108, 116, 117, 121, 102
E(f"""
L_exact:
s_waitcnt vmcnt(0) lgkmcnt(0)
s_nop 15
s_mov_b32 s{sSV0}, m0
v_and_b32 v{fA}, 15, v0
v_lshlrev_b32 v{fA}, 9, v{fA}
v_and_b32 v{fM}, 48, v0
v_add_u32 v{fA}, v{fA}, v{fM}
s_lshl_b32 s{sSV1}, s{sW}, 7
s_add_u32 s{sSV2}, s{sWB}, {MISC}
""")
for i in range(4):
    E(f"v_subrev_u32 v{fV+i}, s{sSV1}, v{vVD+i}\nv_add_u32 v{fR+i}, s{sSV2}, v{vTR+i}")
E(f"v_mov_b32 v{fM}, 0xff800000\nv_mov_b32 v{fM+1}, 0xff800000\ns_mov_b32 s{sSV1}, 0")
def ktile(kt, cinit):
    for ks in range(8):
        E(f"buffer_load_dwordx4 {v(fK+4*ks,4)}, v{fA}, {srd(sKK)}, s{sSV1} offen offset:{ks*64}")
    E(f"s_add_u32 s{sSV1}, s{sSV1}, 8192\ns_waitcnt vmcnt(0)")
    for ks in range(8):
        for tg in range(2):
            d = v(fS + tg*8 + kt*4, 4)
            E(mfma(d, v(fK+4*ks, 4), a(qf(ks, tg), 4), (cinit(tg) if ks == 0 else d)))
    E("s_nop 15")
E("L_exact_p1:")
ktile(0, lambda tg: "0")
for tg in range(2):
    b = fS + tg*8
    E(f"v_max3_f32 v{fM+tg}, v{fM+tg}, v{b}, v{b+1}\nv_max3_f32 v{fM+tg}, v{fM+tg}, v{b+2}, v{b+3}")
E(f"s_cmp_lt_u32 s{sSV1}, 262144\ns_cbranch_scc1 L_exact_p1")
for tg in range(2):
    for t_ in allred(fM+tg, fM+2, "v_max_f32"): E(t_)
    for r in range(4): E(f"v_sub_f32 v{vC+4*tg+r}, 0, v{fM+tg}")
for r in range(128): E(f"v_mov_b32 v{vO+r}, 0")
E(f"v_mov_b32 v{vLS}, 0\nv_mov_b32 v{vLS+1}, 0\ns_mov_b32 s{sSV1}, 0\ns_add_u32 m0, s{sWB}, {MISC}\ns_nop 3")
E("L_exact_p2:")
E(f"s_mov_b32 s{sSV2}, s{sSV1}")
ktile(0, lambda tg: v(vC+4*tg, 4))
ktile(1, lambda tg: v(vC+4*tg, 4))
for r in range(16): E(f"v_exp_f32 v{fS+r}, v{fS+r}")
for r in range(16): E(f"v_add_f32 v{vLS + r//8}, v{vLS + r//8}, v{fS+r}")
for r in range(8): E(f"v_cvt_pk_bf16_f32 v{fP+r}, v{fS+2*r}, v{fS+2*r+1}")
for cb in range(4):
    for rb in range(4):
        E(f"buffer_load_dwordx4 v{fV+rb}, {srd(sVV)}, s{sSV2} offen offset:{rb*1024} lds")
    E(f"s_add_u32 s{sSV2}, s{sSV2}, 128\ns_waitcnt vmcnt(0)")
    for u in range(4):
        E(f"ds_read_b64_tr_b16 {v(fK+4*u,2)}, v{fR+u}\nds_read_b64_tr_b16 {v(fK+4*u+2,2)}, v{fR+u} offset:2048")
    E("s_waitcnt lgkmcnt(0)")
    for u in range(4):
        for tg in range(2):
            d = v(Oreg(cb*4+u, tg), 4)
            E(mfma(d, v(fK+4*u, 4), v(fP+4*tg, 4), d))
    E("s_nop 7")
E(f"s_cmp_lt_u32 s{sSV1}, 262144\ns_cbranch_scc1 L_exact_p2")
for tg in range(2):
    for t_ in allred(vLS+tg, fM+2, "v_add_f32"): E(t_)
    E(f"v_rcp_f32 v{vRC+tg}, v{vLS+tg}")
E("s_nop 15")
for i in range(12): E(f"v_add_u32 v{vTP+i}, s{sWB}, v{vTR+i}")
E(f"s_mov_b32 m0, s{sSV0}\ns_nop 15\ns_branch L_exact_ret")
sub_ins, log2, stats2 = resolve(Q.ins)

def sizes_of(ins):
    import subprocess, tempfile, re as re_
    body = [i_ for i_ in ins if i_.cls not in ('label', 'dir')]
    txt_ = '.amdgcn_target "amdgcn-amd-amdhsa--gfx950"\n.text\nL_any:\n' + ''.join('    ' + (re_.sub(r'L_\w+', 'L_any', i_.text) if i_.cls == 'branch' else i_.text) + '\n' for i_ in body)
    d_ = tempfile.mkdtemp()
    open(d_ + '/a.s', 'w').write(txt_)
    subprocess.run(['clang', '-x', 'assembler', '-target', 'amdgcn-amd-amdhsa', '-mcpu=gfx950', '-c', d_ + '/a.s', '-o', d_ + '/a.o'], check=True)
    out_ = subprocess.run(['llvm-objdump', '-d', '--mcpu=gfx950', d_ + '/a.o'], capture_output=True, text=True).stdout
    sz = [4*len(m_.group(1).split()) for m_ in re_.finditer(r'// [0-9A-F]+: ((?:[0-9A-F]{8} ?)+)', out_)]
    assert len(sz) == len(body), (len(sz), len(body))
    return {id(i_): s_ for i_, s_ in zip(body, sz)}
if OPT['PADS']:
    sz = sizes_of(main_ins)
    k0 = [k_ for k_, i_ in enumerate(main_ins) if i_.text == 'L_main:'][0]
    out_ = main_ins[:k0+1]; off = 0; npg = 0
    for i_ in main_ins[k0+1:]:
        if i_.cls not in ('label', 'dir'):
            lo = (npg + 1)*4096
            if npg < OPT['NPG'] and off >= lo and (i_.cls == 'mfma' or off + sz[id(i_)] > lo + 56):
                assert off < lo + 64
                out_.append(I(f"L_pg{npg}:")); out_.append(I(f"s_cbranch_execz L_pgn{npg}")); off += 4; npg += 1
            off += sz[id(i_)]
        out_.append(i_)
    for i_ in out_:
        if i_.text.startswith('s_cbranch_execz L_pgn'):
            k_ = int(i_.text.split('L_pgn')[1]) + 4
            i_.text = f"s_cbranch_execz L_pg{k_}" if k_ < npg else "s_cbranch_execz L_main"
    main_ins = out_
    print("code pages", npg, "bytes after L_main", off, file=sys.stderr)
hdr = open(os.path.join(os.path.dirname(os.path.abspath(__file__)), 'header.txt')).read()
txt = hdr + f"""; @launch grid=(256,1,1) block=(256,1,1) lds={LDS_BYTES}
; ---------------------------------------------------------------------------------------------
; One workgroup per CU (256 workgroups x 4 waves, 512 registers per lane, 160 KiB LDS ring).
; Producer role (128-token tile t, head hd), every wave keeps 32 tokens as MFMA B operands:
;   LayerNorm (statistics and scaling by MFMA) -> q = xn*Wq -> h slice = relu(xn*W1) (published)
;   -> S = K q, p = exp2(S - m0), O = V p (m0 = row maximum over the first 16 keys; when a row sum
;   leaves the safe range the wave redoes the head with the true row maximum, label L_exact)
;   -> partial s = O*Wo (bf16, published through d_ws, column blocks in a rotated order).
; Consumer role (64 tokens x 64 columns): f = h*W2 (K split over the waves), sum of the 16 partial s,
;   out = x + s*silu(f).
; Weights stream L2 -> LDS by LDS-DMA (16 KiB rounds, source-side swizzle), A fragments are read with
; ds_read_b64_tr_b16 / ds_read_b128.  Hand-offs: write-through stores, vmcnt, then a flag (d_debug
; counter for h, flag bytes in d_ws for s; the bytes are cleared first and the counter vouches for it).
; Generated by gen/gen.py (hand-written scheduler, wait-count and hazard pass).
; ---------------------------------------------------------------------------------------------
.amdgcn_target "amdgcn-amd-amdhsa--gfx950"
.text
.globl {NAME}_kernel
.p2align 8
.type {NAME}_kernel,@function
{NAME}_kernel:
""" + render(main_ins) + render(sub_ins) + f"""L_pad:
    s_endpgm
.if (L_pad - {"L_main" if OPT["PADS"] else "L_pc"}) < {CODE_LINES*128}
.fill (({CODE_LINES*128} - (L_pad - {"L_main" if OPT["PADS"] else "L_pc"})) / 4) + 16, 4, 0xbf810000
.endif
.section .rodata,"a"
.p2align 6
.amdhsa_kernel {NAME}_kernel
  .amdhsa_next_free_vgpr 512
  .amdhsa_next_free_sgpr 102
  .amdhsa_accum_offset 256
  .amdhsa_group_segment_fixed_size 0
  .amdhsa_kernarg_size 88
  .amdhsa_user_sgpr_count 2
  .amdhsa_user_sgpr_kernarg_segment_ptr 1
  .amdhsa_system_sgpr_workgroup_id_x 1
.end_amdhsa_kernel
"""
if OPT['STAMP']: txt += '; STAMPS ' + ' '.join(stamp_names) + '\n'
open(sys.argv[1], 'w').write(txt)
```

```python
import sys, os, math, struct
from asmlib import *

NAME = "recurrent_scan__sliding_block_cached__dense_activation_relu__prompt"
OPT = dict(D=8, NA=12, HX=4, BAR=2, STAMP=0, PST=0, DUMP='', SIGG=60, FORCEFB=0, LOG=0,
           SST='sc1', HLD='sc1', HST='sc1', GLD='sc1', NOSST=0, NOHLD=0, NOHST=0,
           PX='', PW1='', PWQ='', PKV='', PWO='', PW2='', PF=1, PPF='', OST='', WSOFF=0, HSTEP=7, XREV=0, NPRO=3, WAITAT='', WAITT=0, WAITWG=-1, PADS=1, HSIG=150, HPF=0, PF0=0, PF1=14, CHAIN=1, WB=0, WBD=60, BIG=1, DSTART=0, W2ROT=1, NOPF2=2, HEND=40, XPF=1, L0N=1, X1=28, BARK=36, BARP=2, BARA=2, BAR4=2, SPAN=30, SPAN2=20, NV1=100, PKR=0, PCH=0, TLB=1, TLBP='G2_13', XG=0, STLB=0, ST0=4, STS=40, G6P='66666666666666', WOM=0, W2N=7, NPG=9, CPF='', SB2=0, PB2=60, CB2=110, LB2=215, NB2=10, ONORM=1, CE=105, LB=148, H2X=4, H2S=6, SB=52, LB2X=0, NSB=12, PCB=0, NO=0, NX=4, P2G=190, C2G=0, CW=0, NU=3, NC1=6, PKNOP=0, LNM=1, NA0=12, R0F=1, EPF=448, NOBARR=0, LEAK='', LEAK0='', LEAKC=0, NOG=0, NOFLAG=0, W2G=-15, W2S=8, F0=3, F1=5, L0=0, W2PRE=14, H2A=2, H2B=30, SA=48, PA=-75, CA=26, LA=88, SC=26, PB=68, N2=18, G1N=10, XFIRST=4, XSEC=0, WQE=2, OEARLY=2, H2SPAN=60, PFG=170, WQP=2, FINE=0, RT=0, SIMPLE=0, SSP=0)
for a_ in sys.argv[2:]:
    k_, v_ = a_.split('=')
    OPT[k_] = v_.replace('+', ' ') if isinstance(OPT[k_], str) else int(v_)
if OPT['LEAK']: OPT['WAITAT'] = '-'
D = OPT['D']; NA = OPT['NA']

RING_SLOTS = 10
SLOT = 16384
LDS_BYTES = 163840
WS_S = 0
WS_H = 0x1C00000
WS_F = 0x2300000
WS_DBG = 0x2400000
WS_SIZE = 0x8000000 if (OPT['DUMP'] or OPT['STAMP']) else 0x2400000
OOB = 0x7f000000
CSCALE = math.log2(math.e) / 16.0
def f2u(x): return struct.unpack('<I', struct.pack('<f', x))[0]
def hx(x): return f"0x{x & 0xffffffff:x}"

sX, sW1, sWQ, sKK, sVV, sWO, sW2, sWS, sOUT = 28, 32, 36, 40, 44, 48, 52, 56, 60
def srd(b): return f"s[{b}:{b+3}]"
sW, sHD, sT, sWB, sSO = 64, 65, 66, 67, 68
sT0, sT1, sT2, sT3 = 69, 70, 71, 3
sQT = 72
sHST, sHLD, sSST, sSG, sFLG, sFLP, sCNT, sSO2, sTL, sROT, sSTEP, sPC = 86, 87, 88, 89, 90, 91, 92, 93, 94, 95, 96, 97
sTC, sCOOB, sHPF, sW2I, sKVI, sCC = 19, 20, 21, 24, 25, 2
sW1T = 12
sM1, sM2, sM3, sMD = 4, 6, 8, 10
sSV0, sSV1, sSV2 = 12, 13, 14
sSTMP = 26
DBGP = "s[22:23]"
vL16, vHS, vT0, vT1, vT2, vT3, vT4 = 1, 2, 3, 4, 5, 6, 7
vTR = 8
vRA = 20
vPF = 26
vZ, vONE, vPOLL, vSTAMP = 28, 29, 30, 31
vWQ, vKD, vVD, vWOD, vW2D = 32, 36, 40, 32, 36
vXN = 44
vR = 156
vW1D = vR + 64
vXD = vR + 68
vO = 128
vS = 44
vP = 76
vC = 92
vLS = 100
vM = 106
vA4 = 44
vRC = 126
aF, aST, aQ, aH = 0, 48, 64, 128

def v(i, n=1): return f"v{i}" if n == 1 else f"v[{i}:{i+n-1}]"
def a(i, n=1): return f"a{i}" if n == 1 else f"a[{i}:{i+n-1}]"
def mfma(d, A, B, C): return f"v_mfma_f32_16x16x32_bf16 {d}, {A}, {B}, {C}"
def I(t, tag=None): return Ins(t, tag)
lg = lambda x: int(math.log2(x))

P = Prog()
E = P.emit

nstamp = [0]
stamp_names = []
def stamp_ins(name=''):
    clk_ = 's_memtime' if OPT['LEAKC'] else 's_memrealtime'
    if OPT['LEAK'] and name in (OPT['LEAK'], OPT['LEAK0']) and name != 'end':
        return [I(f"{clk_} s[{sSTMP}:{sSTMP+1}]"), I("s_waitcnt lgkmcnt(0)"), I(f"v_writelane_b32 v{vSTAMP}, s{sSTMP}, {0 if name == OPT['LEAK'] else 1}")]
    if OPT['LEAK'] and name == 'end':
        pre_ = [f"s_waitcnt vmcnt(0)", f"{clk_} s[{sSTMP}:{sSTMP+1}]", "s_waitcnt lgkmcnt(0)", f"s_mov_b32 s4, s{sSTMP}"] if OPT['LEAK'] == 'end' else [f"v_readlane_b32 s4, v{vSTAMP}, 0", "s_nop 3"]
        pre_ += [f"v_readlane_b32 s5, v{vSTAMP}, 1", "s_nop 3"] if OPT['LEAK0'] else ["s_mov_b32 s5, s1"]
        return [I(t_) for t_ in (([f"s_cmp_lg_u32 s0, {OPT['WAITWG']}", "s_cbranch_scc1 L_end"] if OPT['WAITWG'] >= 0 else []) + pre_ +
                ["s_sub_u32 s4, s4, s5", "s_lshr_b32 s4, s4, 1" if OPT['LEAKC'] else "s_mul_i32 s4, s4, 8", "s_add_u32 s4, s4, 6000", "L_dw:", f"s_memrealtime s[{sSTMP}:{sSTMP+1}]", "s_waitcnt lgkmcnt(0)",
                 f"s_sub_u32 s{sSTMP}, s{sSTMP}, s1", f"s_cmp_lt_u32 s{sSTMP}, s4", "s_cbranch_scc1 L_dw"])]
    if OPT['WAITAT'] and name == OPT['WAITAT']:
        return [I(t_) for t_ in ((f"s_cmp_lg_u32 s0, {OPT['WAITWG']}", "s_cbranch_scc1 L_end") if OPT['WAITWG'] >= 0 else ()) + ("L_dw:", f"s_memrealtime s[{sSTMP}:{sSTMP+1}]", "s_waitcnt lgkmcnt(0)", f"s_sub_u32 s{sSTMP}, s{sSTMP}, s1",
                                 f"s_cmp_lt_u32 s{sSTMP}, {OPT['WAITT']}", "s_cbranch_scc1 L_dw")]
    if not OPT['STAMP']: return []
    if OPT['STAMP'] == 3 and name not in ('end', 'attn_done', 'G4', 'wb0', 'wb1', 'G6', 'st_done', 'chk0', 'chk1', 'chk2', 'sigA', 'sigB', 'g6_done', 'g_done', 'pre_c2', 'pre_c1', 'pre_c0'): return []
    if OPT['STAMP'] == 2 and name not in ('end', 'G4', 'P0', 'G2_0', 'g6_done'): return []
    n = nstamp[0]; nstamp[0] += 1; stamp_names.append(name)
    return [I(f"{'s_memrealtime' if OPT['RT'] else 's_memtime'} s[{sSTMP}:{sSTMP+1}]"), I("s_waitcnt lgkmcnt(0)"), I(f"v_writelane_b32 v{vSTAMP}, s{sSTMP}, {n}")]
def STAMP(name=''):
    P.ins += stamp_ins(name)
def PST(name):
    if OPT['PST']: STAMP(name)

frags = []
chunks = []
def add_chunk(name, lo, size, dma, private=False):
    chunks.append(dict(name=name, lo=lo, hi=lo+size, dma=dma, private=private, first=None, last=None)); return len(chunks)-1
def add_frag(kind, rs, rb, addr, mf, ch):
    frags.append(dict(kind=kind, rb=rb, rs=rs, addr=addr, mf=mf, chunk=ch))
    c = chunks[ch]
    if c['first'] is None: c['first'] = len(frags)-1
    c['last'] = len(frags)-1
def frag_reads(f):
    fr = frags[f]; A = aF + 4*(f % NA)
    def rd(op, dst, addr):
        win = addr >> 16
        return I(f"{op} {dst}, v{fr['rb'] + win*fr['rs']} offset:{addr & 0xffff}", tag=('f', f))
    if fr['kind'] == 'tr':
        return [rd("ds_read_b64_tr_b16", a(A, 2), fr['addr']), rd("ds_read_b64_tr_b16", a(A+2, 2), fr['addr'] + 2048)]
    return [rd("ds_read_b128", a(A, 4), fr['addr'])]
POL = {sW1: 'PW1', sWQ: 'PWQ', sKK: 'PKV', sVV: 'PKV', sWO: 'PWO', sW2: 'PW2'}
ring_pos = [7]
def ring_round(name, srd_b, vbase, so_text, private=False):
    slot = ring_pos[0] % RING_SLOTS; ring_pos[0] += 1
    lo = slot*SLOT
    tag = ('c', len(chunks))
    dma = [I(f"s_add_u32 m0, s{sWB}, {lo}")]
    if so_text.startswith('s') or so_text == '0': so = so_text
    elif so_text.startswith('+'):
        dma.append(I(f"s_add_u32 s{sSO}, {so_text[1:]}")); so = f"s{sSO}"
    else:
        dma.append(I(f"s_mov_b32 s{sSO}, {so_text}")); so = f"s{sSO}"
    for rb in range(4):
        dma.append(I(f"buffer_load_dwordx4 v{vbase+rb}, {srd(srd_b)}, {so} offen offset:{rb*1024} {OPT[POL[srd_b]]} lds", tag=tag))
    return add_chunk(name, lo, SLOT, dma, private)

phase = {}
def xn(ks, tg): return vXN + (ks*2 + tg)*4
def accp(pp, kq, tg, par): return vR + (pp % 2)*32 + ((kq*2 + tg)*2 + par)*4
pend_ = []
for pp in range(6):
    phase[f'P{pp}'] = len(frags)
    for ks in range(14):
        qi = 14*pp + ks
        if qi % 4 == 0:
            r_ = qi // 4
            blk_, rp = r_ // 7, r_ % 7
            R_ = 32*(8192 if blk_ < 2 else 3584); sb = sW1T + (0 if blk_ < 2 else 2); cb_ = 256 if blk_ == 1 else 0
            so_ = f"+s{sb+1}, {cb_}" if rp == 3 else f"+s{sb}, {(4*rp*R_ if rp < 3 else (4*rp-14)*R_ + 128) + cb_}"
            ch = ring_round(f"wq_{r_}", sWQ, vWQ, so_) if r_ < 14 else ring_round(f"w1_{r_-14}", sW1, vW1D, so_)
        pend_.append((ks, qi, ch))
        if OPT['PCH'] and ks % 2 == 0: continue
        for u2 in range(2):
            for u in (2*u2, 2*u2+1):
                for ks_, qi_, ch_ in pend_:
                    mf = (lambda A, pp=pp, ks=ks_, u=u: [mfma(v(accp(pp, u >> 1, tg, u & 1), 4), A, v(xn(ks, tg), 4), "0" if ks == 0 else v(accp(pp, u >> 1, tg, u & 1), 4)) for tg in range(2)])
                    add_frag('tr', 4, vTR + u, chunks[ch_]['lo'] + (qi_ % 4)*4096, mf, ch_)
        pend_ = []
def qf(kq, tg): return aQ + (kq*2 + tg)*4
def Sreg(st, tg, kt): return vS + (st % 2)*16 + tg*8 + kt*4
def Preg(st, tg): return vP + (st % 2)*8 + tg*4
def Oreg(d, tg): return vO + (((d >> 1)*2 + tg)*2 + (d & 1))*4
def G2(st):
    phase[f'G2_{st}'] = len(frags)
    ch = ring_round(f"K_{st}", sKK, vKD, str(st*16384))
    order = [(kt, ks) for kt in range(2) for ks in range(8)]
    for kt, ks in order:
        def mf(A, kt=kt, ks=ks):
            r = []
            for tg in range(2):
                c = v(Sreg(st, tg, kt), 4)
                if ks == 0: c = "0" if st < 1 else v(vC + 4*tg, 4)
                r.append(mfma(v(Sreg(st, tg, kt), 4), A, a(qf(ks, tg), 4), c))
            return r
        add_frag('b128', 2, vRA + (ks & 1), chunks[ch]['lo'] + (ks >> 1)*4096 + kt*2048, mf, ch)
def G3(st):
    phase[f'G3_{st}'] = len(frags)
    ch = ring_round(f"V_{st}", sVV, vVD, str(st*16384))
    for d in range(16):
        mf = (lambda A, d=d: [mfma(v(Oreg(d, tg), 4), A, v(Preg(st, tg), 4), "0" if st == 0 else v(Oreg(d, tg), 4)) for tg in range(2)])
        add_frag('tr', 4, vTR + (d & 3), chunks[ch]['lo'] + (d >> 2)*4096, mf, ch)
G2(0)
for st in range(15):
    G2(st + 1); G3(st)
G3(15)
phase['AEND'] = len(frags)
def acc4(p, u, tg): return hole(8 + ((u >> 1)*2 + tg)*2 + (u & 1))
def Opk(ks, tg): return vO + (ks*2 + tg)*8
def hole(i): return vO + 8*i + 4
def hreg(kk, t4):
    i = kk*4 + t4
    if i < 32: return a(aH + 4*i, 4)
    if i < 48: return a(aQ + 4*(i-32), 4)
    return v(hole(i-48), 4)
def facc(u, t4):
    return vA4 + 4*(u*4 + t4)
vTP = 108
G6P = OPT['G6P']
assert len(G6P) == 14
kk = 0
NU = OPT['NU']
def g6step(kk):
    ks_ = [kk] if kk < 14 - NU else list(range(14 - NU, 14))
    if kk > ks_[0]: return
    for k2 in ks_: phase[f'G6_{k2}'] = len(frags)
    chs_ = {k2: ring_round(f"w2_{k2}", sW2, vW2D, str(k2*32*896), private=True) for k2 in ks_}
    for u in range(4):
        for k2 in ks_:
            mf = (lambda A, kk=k2, u=u: [mfma(v(facc(u, t4), 4), A, hreg(kk, t4), "0" if kk == 0 else v(facc(u, t4), 4)) for t4 in range(4)])
            add_frag('tr', 4, vTP + u, chunks[chs_[k2]]['lo'], mf, chs_[k2])
while kk < OPT['NO']: g6step(kk); kk += 1
phase['G4'] = len(frags)
for p in range(7):
    phase[f'G4p{p}'] = len(frags)
    chs = [ring_round(f"wo_{p}_{h_}", sWO, vWOD, f"s{sQT+p}" if h_ == 0 else f"+s{sQT+p}, {4*32*896}") for h_ in range(2)]
    for u in range(4):
        for ks in range(8):
            ch = chs[ks // 4]
            mf = (lambda A, p=p, ks=ks, u=u: [mfma(v(acc4(p, u, tg), 4), A, v(Opk(ks, tg), 4), "0" if ks == 0 else v(acc4(p, u, tg), 4)) for tg in range(2)])
            add_frag('tr', 4, vTR + u, chunks[ch]['lo'] + (ks % 4)*4096, mf, ch)
    if p == 6: phase['G6'] = len(frags); NPOST = 14 - kk
    while kk < 14 and int(G6P[kk]) == p:
        g6step(kk)
        kk += 1
assert kk == 14
NF = len(frags)
phase['END'] = NF

MF = [fr['mf'](a(aF + 4*(f % NA), 4)) for f, fr in enumerate(frags)]
if OPT['CHAIN']:
    for f0 in range(0, NF, 4):
        nm_ = chunks[frags[f0]['chunk']]['name']
        if nm_.startswith('K_') or nm_.startswith('wo_') or (OPT['PCH'] and nm_[:2] in ('wq', 'w1')):
            fl = [MF[f0+k_][tg] for tg in range(2) for k_ in range(4)]
            for k_ in range(4): MF[f0+k_] = fl[2*k_:2*k_+2]
G0 = [0]
for f in range(NF): G0.append(G0[-1] + len(MF[f]))
NG = G0[-1]
def gap(f): return G0[max(0, min(f, NF))]
pre = [[] for _ in range(NG)]
rds = [[] for _ in range(NG)]
ext = [[] for _ in range(NG)]
blk = {}
for g in range(NF):
    if g + D < NF:
        r = frag_reads(g + D)
        n = len(MF[g])
        rds[G0[g]].append(r[0])
        if len(r) > 1: rds[G0[g] + n//2].append(r[1])
def cost(i):
    if i.cls in ('ds',): return 8
    if i.cls == 'vmem': return 24 if 'store' in i.op and 'x4' in i.op else 8
    if i.cls in ('trans', 'perm'): return 8
    if i.cls == 'label': return 0
    return 4
def gtime(items):
    t = 4
    for i in items:
        if i.cls in VALU_LIKE: t = max(t, 8)
        t += cost(i)
    return t
def fits(gp, i): return gtime(pre[gp] + rds[gp] + ext[gp] + [i]) <= 16
def place(seq, g0, g1=None):
    seq = [I(s) if isinstance(s, str) else s for s in seq]
    g1 = NG if g1 is None else min(g1, NG)
    gp = g0; n = len(seq)
    for k, ins in enumerate(seq):
        bound = max(min(g0 + ((k + 1) * (g1 - g0)) // n - 1, g1 - 1), gp)
        best = None
        for q in range(gp, bound + 1):
            if fits(q, ins): best = q; break
        if best is None:
            best = min(range(gp, bound + 1), key=lambda q: (gtime(pre[q] + rds[q] + ext[q] + [ins]), q))
        ext[best].append(ins)
        gp = best
    return gp
def spread(seq, g0, g1):
    n = len(seq); cur = g0
    for k, ins in enumerate(seq):
        lo = max(g0 + (k*(g1-g0))//n, cur); hi = max(g0 + ((k+1)*(g1-g0))//n, lo+1)
        cur = place([ins], lo, hi)
    return cur

shared = [c for c in range(len(chunks)) if not chunks[c]['private']]
def is_bar(k_):
    if k_ == 0: return True
    if k_ < 21: return (k_ - 1) % OPT['BARP'] == 0
    if k_ < 53: return (k_ - 21) % OPT['BARA'] == 0
    return (k_ - 53) % OPT['BAR4'] == 0
bar_frags = [chunks[c]['first'] for k_, c in enumerate(shared) if is_bar(k_)]
bar_frags += [phase['G6'], phase['G6'] + D + 1]
bar_frags = sorted(set(bar_frags))
bar_gap = []
first_need = None
for bi, f0 in enumerate(bar_frags):
    f1 = bar_frags[bi+1] if bi + 1 < len(bar_frags) else NF
    need = [('c', c) for c in shared if f0 <= chunks[c]['first'] < f1]
    if f0 == 0: first_need = need; continue
    gp = gap(f0 - D); bar_gap.append(gp)
    if need: ext[gp-1].append(mk_wait_vm(need))
    pre[gp].append(I("s_barrier" if not (OPT['NOBARR'] and gp < gap(phase['AEND']) - 40) else "s_nop 0"))
for c in range(len(chunks)):
    if chunks[c]['private']:
        ext[gap(chunks[c]['first'] - D) - 1].append(mk_wait_vm([('c', c)]))
for g in range(4, NF, 4):
    ext[gap(g) - 1].append(mk_wait_lg([('f', f) for f in range(g, min(g+4, NF))]))
def earliest_gap(c):
    e = -1
    C = chunks[c]
    for c2 in range(c):
        B = chunks[c2]
        if B['hi'] <= C['lo'] or C['hi'] <= B['lo']: continue
        if B['private']: e = max(e, gap(B['last'] + 1))
        else: e = max(e, [gp for gp in bar_gap if gp >= gap(B['last'] + 1)][0] + 1)
    return e
pro_dma = []
cur = OPT['DSTART']
for c in range(len(chunks)):
    e = earliest_gap(c)
    if e < 0 and c < OPT['NPRO']:
        pro_dma.append(chunks[c]['dma']); continue
    if chunks[c]['name'].startswith('w2_') and int(chunks[c]['name'][3:]) >= OPT['W2PRE']: e = max(e, gap(phase['G6']) + OPT['W2G'])
    g0 = max(e, cur)
    span = OPT['SPAN']
    if g0 > e + 8: span = OPT['SPAN2']
    if g0 >= gap(phase['G6'] - D): span = OPT['W2S']
    seq = list(chunks[c]['dma'])
    if chunks[c]['name'] == 'wo_0_0': seq = [I(f"v_accvgpr_read_b32 v{vWOD+i}, a{aST+i}") for i in range(4)] + seq; wo_first_gap = g0
    if chunks[c]['name'] == 'w2_0': seq = [I(f"v_accvgpr_read_b32 v{vW2D+i}, a{aST+4+i}") for i in range(4)] + seq
    cur = spread(seq, g0, g0 + span)
    need_gap = gap(chunks[c]['first'] - D)
    if not chunks[c]['private']: need_gap = max(gp for gp in bar_gap if gp <= need_gap)
    if OPT['LOG']: print(chunks[c]['name'], g0, cur, need_gap, 'lead', need_gap - cur, file=sys.stderr)
    assert cur < need_gap - 1, (chunks[c]['name'], cur)

seq = []
for p in range(7):
    seq += [f"s_add_u32 s{sT2}, s{sROT}, {p}", f"s_sub_u32 s{sT3}, s{sT2}, 7", f"s_min_u32 s{sT2}, s{sT2}, s{sT3}",
            f"s_lshl_b32 s{sQT+p}, s{sT2}, 7", f"s_lshl_b32 s{sT2}, s{sT2}, 16", f"s_add_u32 s{sQT+7+p}, s{sSST}, s{sT2}",
            f"s_add_u32 s{sSST}, s{sSST}, s{sSTEP}"]
spread(seq, 6, 100)
assert gap(phase['G3_8']) < wo_first_gap
assert OPT['BAR'] == 2
place([f"v_add_u32 v{vTP+i}, s{sWB}, v{vTR+i}" for i in range(12)], gap(phase['G3_12']), gap(phase['G3_14']))

def hconv(pp):
    s = []
    for kq in range(2):
        for tg in range(2):
            b = accp(pp, kq, tg, 0)
            if not OPT['PKR']:
                for r in range(8): s.append(f"v_max_f32 v{b+r}, 0, v{b+r}")
            for r in range(4): s.append(f"v_cvt_pk_bf16_f32 v{b+r}, v{b+2*r}, v{b+2*r+1}")
            if OPT['PKR']:
                for r in range(4): s.append(f"v_pk_max_i16 v{b+r}, v{b+r}, 0")
            if not OPT['NOHST']:
                s.append(I(f"buffer_store_dwordx4 {v(b,4)}, v{vHS}, {srd(sWS)}, s{sHST} offen offset:{kq*2048 + tg*1024} {OPT['HST']}", tag='hst'))
    if pp == 4: s.append(f"s_add_u32 s{sHST}, s{sHST}, 4096")
    return s
place(hconv(4), gap(phase['P5']) + 4, gap(phase['G2_0']) - 4)
def qconv(pp):
    s = []
    for kq in range(2):
        for tg in range(2):
            b = accp(pp, kq, tg, 0)
            s += [f"v_cvt_pk_bf16_f32 v{b+r}, v{b+2*r}, v{b+2*r+1}" for r in range(4)]
            s += [f"v_permlane32_swap_b32 v{b}, v{b+2}", f"v_permlane32_swap_b32 v{b+1}, v{b+3}",
                  f"v_permlane16_swap_b32 v{b}, v{b+2}", f"v_permlane16_swap_b32 v{b+1}, v{b+3}"]
            s += [f"v_accvgpr_write_b32 a{qf(2*pp+kq, tg)+r}, v{b+r}" for r in range(4)]
    return s
for pp in range(4):
    g0 = gap(phase[f'P{pp+1}'])
    place(qconv(pp), g0 + 4, g0 + 2*56 - 4)

def allred(r, t, op):
    return [f"v_mov_b32 v{t}, v{r}", f"v_permlane32_swap_b32 v{r}, v{t}", f"{op} v{r}, v{r}, v{t}",
            f"v_mov_b32 v{t}, v{r}", f"v_permlane16_swap_b32 v{r}, v{t}", f"{op} v{r}, v{r}, v{t}"]
def interleave(*seqs):
    out = []
    for k in range(max(len(s) for s in seqs)):
        for s in seqs:
            if k < len(s): out.append(s[k])
    return out
def svals(st): return [Sreg(st, tg, kt) + r for tg in range(2) for kt in range(2) for r in range(4)]
g0 = gap(phase['G2_0'])
seqs = []
for tg in range(2):
    b = Sreg(0, tg, 0); m = vM + 2*tg; t = m + 1
    s = [f"v_max3_f32 v{m}, v{b}, v{b+1}, v{b+2}", f"v_max_f32 v{m}, v{m}, v{b+3}"] + allred(m, t, "v_max_f32")
    s += [f"v_sub_f32 v{vC+4*tg+r}, 0, v{m}" for r in range(4)]
    seqs.append(s)
seq = interleave(*seqs) + [f"v_mov_b32 v{vLS}, 0", f"v_mov_b32 v{vLS+1}, 0"]
gm = place(seq, g0 + 19, g0 + 31)
def sm_seq(st, sub):
    s = []
    vals = svals(st)
    for k_, r in enumerate(vals):
        tg = k_ // 8
        if sub: s.append(f"v_add_f32 v{r}, v{r}, v{vC+4*tg}")
        s.append(f"v_exp_f32 v{r}, v{r}")
        if k_ % 2 == 1 and k_ >= 3:
            kk = k_ - 3
            s.append(f"v_cvt_pk_bf16_f32 v{Preg(st, kk//8) + (kk % 8)//2}, v{vals[kk]}, v{vals[kk+1]}")
    s.append(f"v_cvt_pk_bf16_f32 v{Preg(st, 1) + 3}, v{vals[14]}, v{vals[15]}")
    return s
def add_seq(st):
    vals = svals(st)
    return interleave([f"v_add_f32 v{vLS}, v{vLS}, v{r}" for r in vals[:8]], [f"v_add_f32 v{vLS+1}, v{vLS+1}, v{r}" for r in vals[8:]])
for st in range(16):
    g3 = gap(phase[f'G3_{st}'])
    if st == 0:
        ge = place(sm_seq(st, True), gap(phase['G2_1']) + 3, g3 - 1)
    elif st < 15:
        gs = gap(phase[f'G2_{st+1}'] - D)
        ge = place(sm_seq(st, False), gs, g3 - 2)
    else:
        ge = place(sm_seq(st, False), gap(phase['G3_14']) + 4, g3 - 2)
    lim = gap(phase[f'G2_{st+2}']) - 2 if st + 2 < 16 else g3 + 14
    ga = place(add_seq(st), ge, lim)
seqs = []
for tg in range(2):
    l = vLS + tg; t = vM + tg
    seqs.append(allred(l, t, "v_add_f32") + [f"v_rcp_f32 v{vRC+tg}, v{l}"])
seq = interleave(*seqs) + [f"v_add_f32 v{vM}, v{vLS}, v{vLS+1}", f"s_mov_b32 s{sT0}, {hx(f2u(2.0**24 if not OPT['FORCEFB'] else 0.5))}", f"v_cmp_ngt_f32 vcc, s{sT0}, v{vM}"]
place(seq, ga, gap(phase['AEND']) - 1)

hc = hconv(5)
n3 = 3*len(hc)//4
place(hc[:n3], gap(phase['G2_0']) + 3, gap(phase['G2_0']) + 19)
gend = place(hc[n3:], gap(phase['G3_0']), gap(phase['G3_0']) + 16)
assert accp(5, 1, 1, 0) >= Oreg(10, 0)
hb = [gp for gp in bar_gap if gp > gend + OPT['HSIG']][0]
ext[hb-1].append(mk_wait_vm(['hst']))
sig = [I(f"s_cmp_lg_u32 s{sW}, 0"), I("s_cbranch_scc1 L_nosig"), I(f"s_lshl_b32 s{sT0}, s{sT}, 4"), I(f"v_mov_b32 v{vPOLL}, s{sT0}"),
       I("s_mov_b64 exec, 1"), I(f"global_atomic_add v{vPOLL}, v{vONE}, {DBGP} sc1"), I("s_mov_b64 exec, -1"), I("L_nosig:")]
sig[5].cls = 'misc'
ext[hb+1] += sig

def dump(regs_list):
    r = [I("s_nop 15"), I(f"s_lshl_b32 s{sT0}, s{sT}, 4"), I(f"s_add_u32 s{sT0}, s{sT0}, s{sHD}"),
         I(f"s_lshl_b32 s{sT0}, s{sT0}, 2"), I(f"s_add_u32 s{sT0}, s{sT0}, s{sW}"),
         I(f"s_mul_i32 s{sT0}, s{sT0}, {32*1024}"), I(f"s_add_u32 s{sT0}, s{sT0}, {hx(WS_DBG)}")]
    for reg in regs_list:
        r.append(I(f"buffer_store_dwordx4 {reg}, v{vL16}, {srd(sWS)}, s{sT0} offen"))
        r.append(I(f"s_add_u32 s{sT0}, s{sT0}, 1024"))
    r.append(I("s_nop 3"))
    return r
def ocvt(ks): return [f"v_cvt_pk_bf16_f32 v{Opk(ks, tg)+r}, v{Opk(ks, tg)+2*r}, v{Opk(ks, tg)+2*r+1}" for tg in range(2) for r in range(4)]
if OPT['ONORM']:
    def ocvt(ks):
        s = []
        for tg in range(2):
            o = Opk(ks, tg)
            s += [f"v_pk_mul_f32 {v(o+2*r,2)}, {v(o+2*r,2)}, {v(vRC,2)} op_sel:[0,{tg}] op_sel_hi:[1,{tg}]" for r in range(4)]
        for tg in range(2):
            o = Opk(ks, tg)
            s += [f"v_cvt_pk_bf16_f32 v{o+r}, v{o+2*r}, v{o+2*r+1}" for r in range(4)]
        return s
NEARLY = 0 if OPT['ONORM'] else OPT['OEARLY']
g15 = gap(phase['G3_15'])
for ks in range(NEARLY): place(ocvt(ks), g15 + 4*ks + 8, gap(phase['G4']) - 1)
assert NEARLY == 0
b = stamp_ins('attn_done') + [I("s_cbranch_vccnz L_exact"), I("L_exact_ret:")]
NX = OPT['NX'] if OPT['NO'] else 8
for ks in range(NX): b += [I(t_) for t_ in ocvt(ks)]
blk[phase['AEND']] = b
if OPT['NO']:
    seq = []
    for ks in range(NX, 8):
        for tg in range(2):
            o = Opk(ks, tg)
            seq += [f"v_mul_f32 v{o+r}, v{vRC+tg}, v{o+r}" for r in range(8)] + [f"v_cvt_pk_bf16_f32 v{o+r}, v{o+2*r}, v{o+2*r+1}" for r in range(4)]
    ONSEQ = seq
    b = []
if OPT['DUMP'] == 'o': b += dump([v(Opk(ks, tg), 4) for ks in range(8) for tg in range(2)])
if OPT['DUMP'] == 'q': b += dump([a(qf(ks, tg), 4) for ks in range(8) for tg in range(2)])
b += stamp_ins('G4')
blk[phase['G4']] = b

def sconv(p, u):
    s = []
    for tg in range(2):
        b = acc4(p, u, tg); d = acc4(p, u & ~1, tg) + 2*(u & 1)
        if not OPT['ONORM']: s += [f"v_mul_f32 v{b+r}, v{vRC + tg}, v{b+r}" for r in range(4)]
        s += [f"v_cvt_pk_bf16_f32 v{d}, v{b}, v{b+1}", f"v_cvt_pk_bf16_f32 v{d+1}, v{b+2}, v{b+3}"]
        if u & 1:
            if (u, tg) != (1, 0): s.append(f"s_add_u32 s{sQT+7+p}, s{sQT+7+p}, 16384")
            if not OPT['NOSST']: s.append(I(f"buffer_store_dwordx4 {v(acc4(p, u & ~1, tg),4)}, v{vL16}, {srd(sWS)}, s{sQT+7+p} offen {OPT['SST']}", tag=('sst', p)))
    return s
g4 = gap(phase['G4'])
for p in range(7):
    for u in range(4):
        g0 = gap(phase[f'G4p{p}']) + 16*(u+1)
        if u == 3 and p < 6: gl = place(sconv(p, u), g0 + 3, g0 + 28)
        else: gl = place(sconv(p, u), g0 + 3, g0 + (19 if (p, u) != (6, 3) else 10))
last_store_gap = gl
hs = OPT['HSTEP']
gp0 = gap(phase[f'G3_{hs-1}']) - 30
place([f"s_lshl_b32 s{sT0}, s{sTC}, 4", f"v_mov_b32 v{vPOLL}, s{sT0}", I(f"global_load_dword v{vPOLL}, v{vPOLL}, {DBGP} sc1", tag='pollh'),
       f"v_add_u32 v{vHS}, s{sCOOB}, v{vL16}"], gp0, gp0 + 24)
gp1 = gap(phase[f'G3_{hs}'])
ext[gp1] += [mk_wait_vm(['pollh']), I(f"v_cmp_gt_u32 vcc, 16, v{vPOLL}"), I("s_cbranch_vccnz L_spinh"), I("L_spinh_ret:")]
sHB = 98
def hloads(k0, k1):
    s = []
    for kk in range(k0, k1, 2):
        for j in range(4):
            s.append(f"s_add_u32 s{sT0}, s{sHB+j}, {kk*2048}")
            for k2 in range(2):
                s.append(I(f"buffer_load_dwordx4 {hreg(kk+k2, j)}, v{vHS}, {srd(sWS)}, s{sT0} offen offset:{k2*2048} {OPT['HLD']}", tag='hld'))
    return s
seq = []
for j in range(4):
    seq += [f"s_add_u32 s{sT2}, s{sW}, {j}", f"s_bfe_u32 s{sT3}, s{sT2}, 0x10001", f"s_mul_i32 s{sT3}, s{sT3}, {56*2048}", f"s_and_b32 s{sT2}, s{sT2}, 1",
            f"s_lshl_b32 s{sT2}, s{sT2}, 10", f"s_add_u32 s{sT2}, s{sT2}, s{sT3}", f"s_add_u32 s{sHB+j}, s{sHLD}, s{sT2}"]
spread(seq, gap(phase['P2']), gap(phase['P3']))
if not OPT['NOHLD']:
    spread(hloads(0, 8), gap(phase[f"G3_{hs+OPT['HPF']}"]) + 2, gap(phase['G3_15']) - OPT['HEND'])
    if OPT['H2X']:
        hl = [I(s_) if isinstance(s_, str) else s_ for s_ in hloads(8, 8 + OPT['H2X'])]
        b_ = blk[phase['AEND']]
        k0 = [k_ for k_, i_ in enumerate(b_) if i_.text == 'L_exact_ret:'][0]
        for k_, i_ in enumerate(hl): b_.insert(k0 + 1 + k_*OPT['H2S'], i_)
    spread(hloads(8 + OPT['H2X'], 14), g4 + OPT['H2A'], g4 + OPT['H2B'])
if OPT['NO']: place(ONSEQ, gap(phase['AEND']) + 1, gap(phase['G4']) - 1)
g6 = gap(phase['G6'])
vFV = 120
def greg(rl, sl):
    i = sl*2 + rl
    if NPOST <= 10: i = (i + 16) % 32
    if i < 16: return v(Opk(0, 0) + 8*i, 4)
    return a(aH + (i - 16)*4, 4)
assert OPT['CA'] > 0 or (NPOST <= 10 and g6 + OPT['CA'] > gap(phase['G6_3'] + 4))
def gloads(s0, s1, va):
    s = []
    for sq in range(s0, s1, 2):
        for rl in range(2):
            s.append(I(f"s_add_u32 s{sT1}, s{sSG}, {rl*2*16384 + sq*1024}"))
            for sl in range(sq, sq+2):
                if not OPT['NOG']: s.append(I(f"buffer_load_dwordx4 {greg(rl, sl)}, v{va}, {srd(sWS)}, s{sT1} offen offset:{(sl-sq)*1024} {OPT['GLD']}", tag=('g', rl, sl)))
    return s
F0 = OPT['F0']
sPL = 32
sMISS = 18
F1 = OPT['F1']
place([f"v_and_b32 v{vFV+3}, 15, v0"], g4 + 100, g4 + 200)
def signal(k, n): return [mk_wait_vm([('sst', p) for p in range(n)]), I(f"buffer_store_byte v{vONE}, v{vZ}, {srd(sWS)}, s{sFLG} offen offset:{128*k} sc1", tag='flag')]
spoll = I(f"s_buffer_load_dwordx4 s[{sPL}:{sPL+3}], {srd(sWS)}, s{sFLP} glc"); spoll.cls = 'misc'
VPOLL2 = f"buffer_load_ubyte v{vPOLL}, v{vFV+3}, {srd(sWS)}, s{sFLP} offen offset:256 sc1"
VPOLL = VPOLL2 if F1 == 7 else VPOLL2.replace('offset:256', 'offset:128')
ext[gap(phase[f'G4p{F0-1}']) + 64 + OPT['SA']] += signal(0, F0) + stamp_ins('sigA')
if F1 < 7: ext[gap(phase[f'G4p{F1-1}']) + 64 + OPT['SB']] += signal(1, F1) + stamp_ins('sigB')
ext[g6 + OPT['PA']] += [spoll]
sg = g6 + OPT['SC']
ext[sg] += signal(2, 7) + stamp_ins('st_done') + [I(f"s_cmp_ge_u32 s{sPC}, 14"), I("s_cbranch_scc1 " + ("L_fin" if OPT['STAMP'] == 3 else "L_end"))]
assert sg > bar_gap[-1] and sg > last_store_gap
ext[g6 + OPT['CA']] += stamp_ins('pre_c0') + [I(t_) for t_ in (
    "s_waitcnt lgkmcnt(0)", f"s_and_b64 s[{sPL}:{sPL+1}], s[{sPL}:{sPL+1}], s[{sPL+2}:{sPL+3}]", f"s_and_b32 s{sPL}, s{sPL}, s{sPL+1}",
    f"s_and_b32 s{sPL}, s{sPL}, 0x01010101", f"s_cmp_eq_u32 s{sPL}, 0x01010101", f"s_cselect_b32 s{sMISS}, 0, {hx(OOB)}",
    f"v_add_u32 v{vFV+2}, s{sMISS}, v{vHS}")] + stamp_ins('chk0')
spread(gloads(0, 2*F0, vFV+2), g6 + OPT['CA'] + 1, g6 + OPT['LA'])
ext[g6 + OPT['PB']] += [I(VPOLL, tag='poll')]
NSB = 2*F1 if F1 < 7 else OPT['NSB']
assert OPT['CE'] > max(OPT['PB'], OPT['LA'])
ext[g6 + OPT['CE']] += stamp_ins('pre_c1') + [mk_wait_vm(['poll'])] + [I(t_) for t_ in (f"v_cmp_ne_u32 vcc, 1, v{vPOLL}", "s_cbranch_vccnz L_spin1", "L_spin1_ret:",
    f"s_cmp_lg_u32 s{sMISS}, 0", "s_cbranch_scc1 L_redo", "L_redo_ret:")] + stamp_ins('chk1')
glB = gloads(2*F0, NSB, vHS)
kp = len(glB) - 3*OPT['PCB']
if F1 < 7 and not OPT['P2G']: glB[kp:kp] = [I(VPOLL2, tag='poll2')]
spread(glB, g6 + OPT['CE'] + 1, min(g6 + OPT['LB'], NG - 4))
glC = gloads(NSB, 16, vHS)
if OPT['P2G']:
    assert OPT['P2G'] >= OPT['LB'] and OPT['PCB'] == 0
    ext[g6 + OPT['P2G']] += [I(VPOLL2, tag='poll2')]
if OPT['C2G']:
    ext[g6 + OPT['C2G']] += stamp_ins('pre_c2') + [mk_wait_vm(['poll2'])] + [I(t_) for t_ in (f"v_cmp_ne_u32 vcc, 1, v{vPOLL}", "s_cbranch_vccnz L_spin2", "L_spin2_ret:")] + stamp_ins('chk2')
    spread(glC, g6 + OPT['C2G'] + 1, NG - 2); glC = []
NYB = 2*(NSB - 2*F0) + (1 if F1 < 7 else 0)

vXF = 32
vAD = 125
nch = len(chunks)
free_ = [c_ for c_ in range(nch - 10, nch - NU) if chunks[c_]['private']]
XK = free_[0]; FS = [chunks[c_]['lo'] for c_ in free_[1:4]]
assert gap(chunks[free_[3]]['last'] + 1) < NG - 16*NU
XS = chunks[XK]['lo']
gx_ = max(gap(chunks[XK]['last'] + 1), cur + 1, g6 + OPT['XG'])
gx2 = place([f"v_accvgpr_read_b32 v{vAD}, a{aST+8}", f"s_add_u32 m0, s{sWB}, {XS}", f"s_movk_i32 s{sSV0}, {8*896 - 1024}", f"s_movk_i32 s{sSV1}, {8*896}",
       I(f"buffer_load_dwordx4 v{vAD}, {srd(sX)}, 0 offen lds", tag='xf'), I(f"buffer_load_dwordx4 v{vAD}, {srd(sX)}, s{sSV0} offen offset:1024 lds", tag='xf'),
       f"v_and_b32 v{vT3}, 15, v0", f"v_lshlrev_b32 v{vT3}, 7, v{vT3}", f"v_lshrrev_b32 v{vT4}, 4, v0", f"v_lshl_add_u32 v{vT3}, v{vT4}, 3, v{vT3}",
       f"s_add_u32 s{sSV2}, s{sWB}, {XS}", f"v_add_u32 v{vT3}, s{sSV2}, v{vT3}", f"v_lshrrev_b32 v{vT4}, 3, v0", f"v_lshl_add_u32 v{vT4}, v{vT4}, 4, v{vL16}", f"v_add_u32 v{vT4}, s{sSV2}, v{vT4}",
       f"v_and_b32 v{vPF}, 15, v0", f"v_lshl_add_u32 v{vPF}, v{vPF}, 4, v{vT3}"], gx_, gx_ + 30)
vSEL = 108
def vsa(u): return hole(8 + u)
vXU = 8
seq = [f"v_mov_b32 v{vSEL}, 0", f"v_mov_b32 v{vSEL+1}, 0", f"v_mov_b32 v{vSEL+4}, 0", f"v_mov_b32 v{vSEL+5}, 0", f"v_mov_b32 v{vT0}, 0x3f80", f"v_mov_b32 v{vSEL+2}, 0x3f800000",
       f"s_or_b64 s[16:17], s[{sM1}:{sM1+1}], s[{sM3}:{sM3+1}]", f"v_cndmask_b32 v{vT0}, v{vT0}, v{vSEL+2}, s[16:17]", f"v_cndmask_b32 v{vT0}, 0, v{vT0}, s[{sMD}:{sMD+1}]",
       f"v_cndmask_b32 v{vSEL+2}, v{vT0}, 0, s[{sM2}:{sM2+1}]", f"v_cndmask_b32 v{vSEL+3}, 0, v{vT0}, s[{sM2}:{sM2+1}]",
              f"v_mov_b32 v24, {hx(f2u(-16.0))}", f"v_mov_b32 v25, {hx(f2u(1.0/CSCALE))}"]
place(seq, NG - 31, NG - 12)
vFW, vFR = 40, 121
FRR = [120, 121, 124]
seq = []
for j in range(1, 4):
    seq += [f"s_add_u32 s{sT2}, s{sWB}, {FS[j-1]}", f"v_add_u32 v{vFW+j-1}, s{sT2}, v{vL16}",
            f"s_sub_u32 s{sT2}, s{sWB}, {j*4096}", f"s_and_b32 s{sT2}, s{sT2}, 0x3000", f"s_add_u32 s{sT2}, s{sT2}, {FS[j-1]}", f"v_add_u32 v{FRR[j-1]}, s{sT2}, v{vL16}"]
place(seq, NG - 16*NU - 30, NG - 16*NU)
def fwrites(u): return [I(f"ds_write_b128 v{vFW+j-1}, {v(facc(u, j), 4)} offset:{u*1024}") for j in range(1, 4)]
for u in range(3):
    ge_ = NG - 4*NU*(3 - u)
    spread(fwrites(u), ge_ + 4, min(ge_ + 4*NU + 3, NG))
seq = [mk_wait_vm(['xf'])] + [I(f"ds_read_b64 {v(vXF + 2*u, 2)}, v{vT3} offset:{u*32}", tag='xr2') for u in range(4)]
place(seq, NG - 44, NG - 34)
seq = [mk_wait_lg(['xr2'])]
for u in range(4):
    xr = vXF + u*2; b2 = vXU + 4*u
    seq += [f"v_lshlrev_b32 v{b2}, 16, v{xr}", f"v_and_b32 v{b2+1}, 0xffff0000, v{xr}", f"v_lshlrev_b32 v{b2+2}, 16, v{xr+1}", f"v_and_b32 v{b2+3}, 0xffff0000, v{xr+1}"]
place(seq, NG - 26, NG)
pass
HX = OPT['HX']; NHG = 16 // HX; NT = 32 // HX
npf = [0]
def pf_addr(nlines, lines_per_row, pitch, k, dst, idx_sgpr, nshare):
    per = nlines // nshare
    s = [f"s_lshl_b32 s{sSO2}, s{sW}, 6", f"s_add_u32 s{sSO2}, s{sSO2}, {k*256}", f"v_add_u32 v{dst}, s{sSO2}, v0",
         f"v_min_u32 v{dst}, {per-1}, v{dst}", f"s_mul_i32 s{sSO2}, s{idx_sgpr}, {per}", f"v_add_u32 v{dst}, s{sSO2}, v{dst}"]
    if lines_per_row is None:
        s += [f"v_lshlrev_b32 v{dst}, 7, v{dst}"]
    else:
        sh = lg(lines_per_row)
        s += [f"v_and_b32 v{vPF}, {lines_per_row-1}, v{dst}", f"v_lshrrev_b32 v{dst}, {sh}, v{dst}",
              f"v_mul_u32_u24 v{dst}, {pitch}, v{dst}", f"v_lshl_add_u32 v{dst}, v{vPF}, 7, v{dst}"]
    return s
def pf_load(srd_b, dst):
    npf[0] += 1
    return I(f"buffer_load_dword a{aST + 10 + npf[0] % 6}, v{dst}, {srd(srd_b)}, 0 offen {OPT['PPF']}", tag='pf')
def pf_seq(srd_b, nlines, lines_per_row, pitch, idx, nshare):
    s = []
    for k in range((nlines // nshare + 255) // 256):
        s += pf_addr(nlines, lines_per_row, pitch, k, vPF+1, idx, nshare) + [pf_load(srd_b, vPF+1)]
    return s
vLQ = 26
def pf_pieces(srd_b, per, unit, idx, extra_base=None, pol='', rot=False):
    setup = [f"s_mul_i32 s{sSO2}, s{idx}, {per}", f"v_add_u32 v{vPF+1}, s{sSO2}, v{vLQ}", f"v_mul_u32_u24 v{vPF+1}, {unit}, v{vPF+1}"]
    if extra_base is not None: setup.append(f"v_add_u32 v{vPF+1}, s{extra_base}, v{vPF+1}")
    pcs = []
    for k in range((per + 63)//64):
        npf[0] += 1
        n_ = (per + 63)//64
        if rot and k == 0: so_ = [f"s_lshr_b32 s{sSO2}, s{sTC}, 1", f"s_sub_u32 s{sCNT}, s{sSO2}, {n_}", f"s_min_u32 s{sSO2}, s{sSO2}, s{sCNT}", f"s_mul_i32 s{sSO2}, s{sSO2}, {64*unit}"]
        elif rot: so_ = [f"s_add_u32 s{sSO2}, s{sSO2}, {64*unit}", f"s_sub_u32 s{sCNT}, s{sSO2}, {n_*64*unit}", f"s_min_u32 s{sSO2}, s{sSO2}, s{sCNT}"]
        else: so_ = [f"s_mov_b32 s{sSO2}, {k*64*unit}"]
        pcs.append(so_ + [I(f"buffer_load_dword a{aST + 9 + npf[0] % 7}, v{vPF+1}, {srd(srd_b)}, s{sSO2} offen {pol}", tag='pf')])
    return setup, pcs
def pf_run(streams, g0, g1):
    items = []
    for st_ in streams:
        su, pcs = st_
        for k, p_ in enumerate(pcs): items.append((su if k == 0 else []) + p_)
    n = len(items)
    for k, it_ in enumerate(items):
        lo = g0 + (k*(g1-g0))//n
        place(it_, lo, lo + 24)
if OPT['PF']:
    place([f"v_lshrrev_b32 v{vLQ}, 2, v0", f"s_lshl_b32 s{sSO2}, s{sW}, 4", f"v_add_u32 v{vLQ}, s{sSO2}, v{vLQ}"], 100, 130)
    if not OPT['BIG'] & 2 and not OPT['NOPF2'] & 4: pf_run([pf_pieces(sKK, 2048//(2*NT), 128, sKVI, pol=OPT['PPF']), pf_pieces(sVV, 2048//(2*NT), 128, sKVI, pol=OPT['PPF'])], OPT['PFG'], gap(phase['P4']))
    if not OPT['NOPF2'] & 1: pf_run([pf_pieces(sWO, 1792//16, 128, sT) if OPT['WOM'] else pf_pieces(sWO, 1792//NT, 128, sTL), (lambda z: (z[0], z[1][:OPT['W2N']]))(pf_pieces(sW2, 448, 896, sW2I, rot=OPT['W2ROT']))], gap(phase[f"G3_{OPT['PF0']}"]), gp1 if OPT['PF1'] == 0 else gap(phase[f"G3_{OPT['PF1']}"]))
    vPF += -20
    sSO2 = sT3
    if not OPT['NOPF2'] & 2: pf_run([pf_pieces(sWS, 256, 128, sCC, sHPF, 'sc1')], gp1 + 2, gap(phase[f"G3_{hs+OPT['HPF']}"]) - 20)
    vPF += 20
    sSO2 = 93

if OPT['STLB'] == 2:
    for k_, (b_, o_) in enumerate(((sKK, '0'), (sVV, '0'), (sW2, '0'), (sWO, '0'), (sWS, f's{sHST}'), (sWS, f's{sQT+7}'), (sOUT, '0'))):
        i_ = I(f"s_buffer_load_dword s{sCNT}, {srd(b_)}, {o_}"); i_.cls = 'misc'; i_.dst = []
        place([i_], OPT['ST0'] + k_*OPT['STS'], OPT['ST0'] + k_*OPT['STS'] + 8)
if OPT['CPF'] and not OPT['STAMP']:
    gc = gap(phase[OPT['CPF']])
    place([f"s_lshr_b32 s{sT2}, s0, 3", f"s_lshl_b32 s{sT2}, s{sT2}, 10", f"s_add_u32 s{sT2}, s{sT2}, 0x8000", f"v_and_b32 v{vT2}, 7, v0", f"v_lshlrev_b32 v{vT2}, 7, v{vT2}",
           f"v_add_u32 v{vT2}, s{sT2}, v{vT2}", I(f"global_load_dword a{aST+9}, v{vT2}, s[26:27]", tag='pf')], gc, gc + 30)
if OPT['TLB']:
    gt = gap(phase[OPT['TLBP']])
    seq = []
    if OPT['TLB'] & 1: seq += [f"v_accvgpr_read_b32 v{vT1}, a{aST+8}", f"v_readfirstlane_b32 s{sT2}, v{vT1}", "s_nop 0", "s_nop 0", I(f"buffer_load_dword a{aST+9}, v{vZ}, {srd(sOUT)}, s{sT2} offen", tag='pf')]
    if OPT['TLB'] & 2: seq += [I(f"buffer_load_dword a{aST+9}, v{vZ}, {srd(sWS)}, s{sQT+7} offen sc1", tag='pf')]
    if OPT['TLB'] & 4: seq += [I(f"buffer_load_dword a{aST+9}, v{vZ}, {srd(sWS)}, s{sSG} offen sc1", tag='pf'), ]
    spread(seq, gt, gt + 40)
    if OPT['TLB'] & 8: place([I(f"buffer_load_dword a{aST+9}, v{vZ}, {srd(sWS)}, s{sHST} offen sc1", tag='pf')], gap(phase['P3']), gap(phase['P3']) + 20)
if OPT['FINE'] == 1:
    for p in range(1, 7): blk[phase[f'G4p{p}']] = stamp_ins(f'G4p{p}')
if OPT['FINE'] == 2:
    for nm in ['P1', 'P3', 'P5'] + [f'G2_{s_}' for s_ in range(1, 16) if s_ % 4] + ['G3_14', 'G3_15']:
        blk[phase[nm]] = stamp_ins(nm)
if OPT['STAMP'] or OPT['WAITAT']:
    for nm in ('P0', 'P2', 'P4', 'G2_0', 'G2_4', 'G2_8', 'G2_12', 'G6'):
        blk.setdefault(phase[nm], [])
        blk[phase[nm]] = stamp_ins(nm) + blk[phase[nm]]

E(f"""
s_cmp_ge_u32 s2, 256
s_cbranch_scc1 L_end
s_load_dwordx16 s[4:19], s[0:1], 0
s_load_dwordx4 s[20:23], s[0:1], 64
s_load_dwordx2 s[24:25], s[0:1], 80
""")
if OPT['STAMP'] or OPT['WAITAT']: E("s_memtime s[98:99]\ns_memrealtime s[100:101]")
E(f"""
v_lshrrev_b32 v{vT0}, 6, v0
v_and_b32 v0, 63, v0
s_and_b32 s{sT0}, s2, 7
v_readfirstlane_b32 s{sW}, v{vT0}
s_lshr_b32 s{sT1}, s2, 3
s_and_b32 s{sT2}, s{sT0}, {NHG-1}
s_lshl_b32 s{sT2}, s{sT2}, {lg(HX)}
s_and_b32 s{sHD}, s{sT1}, {HX-1}
s_add_u32 s{sHD}, s{sHD}, s{sT2}
s_lshr_b32 s{sT2}, s{sT0}, {lg(NHG)}
s_lshl_b32 s{sT2}, s{sT2}, {lg(NT)}
s_lshr_b32 s{sTL}, s{sT1}, {lg(HX)}
s_add_u32 s{sT}, s{sTL}, s{sT2}
s_lshl_b32 s{sWB}, s{sW}, 12
""")
CODE_LINES = 512
E(f"s_lshr_b32 s{sCNT}, s2, 3")
for t_ in pf_addr(CODE_LINES, None, 0, 0, vR+80, sCNT, 32): E(t_)
E(f"""
s_getpc_b64 s[26:27]
L_pc:
global_load_dword v{vR+96}, v{vR+80}, s[26:27]
""")
E(f"""
v_lshrrev_b32 v{vT3}, 3, v0
v_and_b32 v{vT4}, 7, v0
v_lshrrev_b32 v{vT1}, 1, v{vT3}
v_xor_b32 v{vT1}, v{vT1}, v{vT4}
v_lshlrev_b32 v{vT1}, 4, v{vT1}
v_xor_b32 v{vT2}, 64, v{vT1}
s_lshl_b32 s{sT1}, s{sT}, 2
s_add_u32 s{sT1}, s{sT1}, s{sW}
s_mul_i32 s{sT1}, s{sT1}, {32*896}
v_mul_u32_u24 v{vT0}, 896, v{vT3}
v_add_u32 v{vT0}, s{sT1}, v{vT0}
v_add_u32 v{vXD}, v{vT0}, v{vT1}
v_add_u32 v{vXD+1}, v{vT0}, v{vT2}
v_add_u32 v{vXD+2}, {2*6144}, v{vXD}
v_add_u32 v{vXD+3}, {3*6144}, v{vXD+1}
v_add_u32 v{vXD+1}, 6144, v{vXD+1}
s_mov_b32 m0, s{sWB}
s_mov_b32 s{sSO}, 0
v_min_u32 v{vR+82}, 13, v0
v_subrev_u32 v{vR+83}, 7, v{vR+82}
v_min_u32 v{vR+83}, v{vR+83}, v{vR+82}
v_sub_u32 v{vR+82}, v{vR+82}, v{vR+83}
v_lshlrev_b32 v{vR+82}, 11, v{vR+82}
v_lshl_add_u32 v{vR+82}, v{vR+83}, 7, v{vR+82}
s_mul_i32 s{sT2}, s{sHD}, 896
s_add_u32 s{sT2}, s{sT2}, s{sT1}
s_mov_b32 s{sX+2}, {2048*896}
s_mov_b32 s{sX+3}, 0x00020000
s_waitcnt lgkmcnt(0)
s_mov_b32 s{sX}, s4
s_mov_b32 s{sX+1}, s5
""")
if OPT['STAMP']: E(f"v_writelane_b32 v{vSTAMP}, s98, 60\nv_writelane_b32 v{vSTAMP}, s100, 61")
if OPT['WAITAT']: E('s_mov_b32 s1, s100')
PST('karg')
def mk_srd(b, plo, off_sgpr, size):
    if off_sgpr is None:
        E(f"s_mov_b32 s{b}, s{plo}\ns_mov_b32 s{b+1}, s{plo+1}")
    else:
        E(f"s_add_u32 s{b}, s{plo}, s{off_sgpr}\ns_addc_u32 s{b+1}, s{plo+1}, 0")
    E(f"s_mov_b32 s{b+2}, {size}\ns_mov_b32 s{b+3}, 0x00020000")
xdma = []
for tg in range(2):
    for q in range(7):
        if q or tg:
            xdma += [I(f"s_add_u32 m0, s{sWB}, {q*SLOT}"), I(f"s_movk_i32 s{sSO}, {q*128}")]
        for rb in (2*tg, 2*tg+1):
            xdma.append(I(f"buffer_load_dwordx4 v{vXD+rb}, {srd(sX)}, s{sSO} offen offset:{rb*1024} {OPT['PX']} lds", tag=('x', tg, q)))
def xissue(n):
    while n > 0 and xdma:
        i_ = xdma.pop(0); P.ins.append(i_)
        if i_.cls == 'vmem': n -= 1
if OPT['XPF']: E(f"buffer_load_dword a{aST+9}, v{vR+82}, {srd(sX)}, s{sT2} offen", tag='pf')
xissue(OPT['XFIRST'])
if OPT['STLB'] >= 3:
    lst = [("s[10:11]", 0), ("s[10:11]", 400*8192), ("s[16:17]", 0), ("s[24:25]", WS_F + 0x10000)]
    if OPT['STLB'] >= 4: lst += [("s[6:7]", 'kv'), ("s[8:9]", 'kv'), ("s[18:19]", 0), ("s[20:21]", 0), ("s[12:13]", 0), ("s[12:13]", 4000*896)]
    for p_, o_ in lst:
        if o_ == 'kv': E(f"s_lshl_b32 s{sCNT}, s{sHD}, 19")
        else: E(f"s_mov_b32 s{sCNT}, {hx(o_)}")
        i_ = I(f"s_load_dword s{sSTEP}, {p_}, s{sCNT}"); i_.dst = []; P.ins.append(i_)
E(f"s_lshl_b32 s{sT0}, s{sHD}, 9\ns_sub_u32 s{sT2}, {448*8192}, s{sT0}")
mk_srd(sWQ, 10, sT0, f"s{sT2}")
if OPT['EPF']:
    for t_ in pf_seq(sWQ, OPT['EPF'], 1, 8192, sT, 16):
        if isinstance(t_, str): E(t_)
        else: P.ins.append(t_)
wqpf = [I(t_) if isinstance(t_, str) else t_ for t_ in pf_seq(sWQ, 448*OPT['WQP'], OPT['WQP'], 8192, sTL, NT)] if OPT['PF'] and OPT['WQP'] else []
if OPT['WQE'] == 1: P.ins += wqpf; wqpf = []
else: P.ins += wqpf[:-1]; wqpf = wqpf[-1:]
xissue(OPT['XSEC'])
PST('x_first')
mk_srd(sOUT, 20, None, 2048*896)
E(f"""
s_lshl_b32 s{sT0}, s{sW}, 7
v_lshlrev_b32 v{vKD}, 9, v{vT3}
v_add_u32 v{vVD}, s{sT0}, v{vKD}
v_add_u32 v{vKD}, v{vVD}, v{vT1}
v_add_u32 v{vKD+1}, v{vVD}, v{vT2}
v_add_u32 v{vKD+2}, {2*3072}, v{vKD}
v_add_u32 v{vKD+3}, {3*3072}, v{vKD+1}
v_add_u32 v{vKD+1}, 3072, v{vKD+1}
v_and_b32 v{vT0}, 6, v{vT3}
v_xor_b32 v{vT0}, v{vT0}, v{vT4}
v_lshlrev_b32 v{vT0}, 4, v{vT0}
v_add_u32 v{vVD}, v{vVD}, v{vT0}
""")
for rb in range(1, 4): E(f"v_add_u32 v{vVD+rb}, {3072*rb}, v{vVD}")
E(f"""
v_and_b32 v{vT1}, {0 if OPT['LNM'] else 4}, v{vT3}
v_add_u32 v{vT1}, v{vT1}, v{vT3}
v_lshl_add_u32 v{vWQ}, v{vT1}, 13, v{vT0}
v_mul_u32_u24 v{vT1}, 3584, v{vT1}
v_add_u32 v{vW1D}, v{vT1}, v{vT0}
""")
for rb in range(1, 4):
    rr = 8*rb if OPT['LNM'] else 16*(rb & 1) + 4*(rb >> 1)
    E(f"v_add_u32 v{vW1D+rb}, {rr*3584 - 1024*rb}, v{vW1D}\nv_add_u32 v{vWQ+rb}, {rr*8192 - 1024*rb}, v{vWQ}")
E(f"""
s_lshl_b32 s{sT1}, s{sHD}, 8
s_sub_u32 s{sT2}, {448*3584}, s{sT1}
s_cmp_lt_u32 s{sHD}, 14
s_cselect_b32 s{sT2}, s{sT2}, 0
s_cselect_b32 s{sT1}, s{sT1}, 0
""")
mk_srd(sW1, 16, sT1, f"s{sT2}")
E(f"s_lshr_b32 s{sT0}, s{sHD}, 1\ns_lshl_b32 s{sT0}, s{sT0}, 20\ns_add_u32 s{sT0}, s{sT0}, {1536*512}")
mk_srd(sKK, 6, sT0, 262144)
mk_srd(sVV, 8, sT0, 262144)
E(f"s_mul_i32 s{sT0}, s{sHD}, {256*896}")
mk_srd(sWO, 12, sT0, 256*896)
E(f"""
s_lshr_b32 s{sPC}, s2, 3
s_and_b32 s{sPC}, s{sPC}, 15
s_cmp_ge_u32 s{sPC}, 7
s_cselect_b32 s{sT3}, 1, 0
s_mul_i32 s{sT1}, s{sT3}, 7
s_sub_u32 s{sT1}, s{sPC}, s{sT1}
s_lshl_b32 s{sT0}, s{sT1}, 7
s_sub_u32 s{sT2}, {1792*896}, s{sT0}
s_cmp_lt_u32 s{sPC}, 14
s_cselect_b32 s{sT2}, s{sT2}, 0
s_cselect_b32 s{sT0}, s{sT0}, 0
""")
mk_srd(sW2, 18, sT0, f"s{sT2}")
if OPT['WSOFF']:
    E(f"s_mov_b32 s{sT0}, {hx(OPT['WSOFF'] << 20)}")
    mk_srd(sWS, 24, sT0, WS_SIZE)
else:
    mk_srd(sWS, 24, None, WS_SIZE)
for k_, R_ in ((0, 32*8192), (2, 32*3584)):
    E(f"""
s_mul_i32 s{sW1T+k_}, s{sW}, {R_}
s_cmp_lt_u32 s{sW}, 2
s_mov_b32 s{sT2}, {hx(128 - 2*R_)}
s_cselect_b32 s{sT0}, {12*R_}, s{sT2}
s_add_u32 s{sW1T+k_+1}, s{sW1T+k_}, s{sT0}
""")
E(f"""
v_mul_u32_u24 v{vT1}, 896, v{vT3}
v_add_u32 v{vT1}, v{vT1}, v{vT0}
s_mul_i32 s{sT0}, s{sW}, {32*896}
s_mul_i32 s{sT2}, s{sW}, {448*896}
""")
for rb in range(4):
    if rb: E(f"v_add_u32 v{vT1}, 6144, v{vT1}")
    E(f"v_add_u32 v{vT2}, s{sT0}, v{vT1}\nv_accvgpr_write_b32 a{aST+rb}, v{vT2}\nv_add_u32 v{vT2}, s{sT2}, v{vT1}\nv_accvgpr_write_b32 a{aST+4+rb}, v{vT2}")
E(f"""
v_lshlrev_b32 v{vL16}, 4, v0
v_lshrrev_b32 v{vT0}, 2, v0
v_lshlrev_b32 v{vT1}, 7, v{vT0}
v_and_b32 v{vT2}, 3, v0
v_lshl_add_u32 v{vT1}, v{vT2}, 3, v{vT1}
v_bfe_u32 v{vT3}, v0, 3, 2
""")
for u in range(4):
    E(f"""
v_xor_b32 v{vT4}, {u}, v{vT3}
v_lshl_add_u32 v{vTR+u}, v{vT4}, 5, v{vT1}
v_add_u32 v{vTR+4+u}, 0x10000, v{vTR+u}
v_add_u32 v{vTR+8+u}, 0x20000, v{vTR+u}
""")
E(f"""
v_and_b32 v{vT0}, 15, v0
v_lshrrev_b32 v{vT1}, 1, v{vT0}
v_lshrrev_b32 v{vT2}, 4, v0
v_xor_b32 v{vT1}, v{vT1}, v{vT2}
v_lshlrev_b32 v{vT4}, 7, v{vT0}
v_lshl_add_u32 v{vRA}, v{vT1}, 4, v{vT4}
v_xor_b32 v{vRA+1}, 64, v{vRA}
v_add_u32 v{vRA+2}, 0x10000, v{vRA}
v_add_u32 v{vRA+3}, 0x10000, v{vRA+1}
v_add_u32 v{vRA+4}, 0x20000, v{vRA}
v_add_u32 v{vRA+5}, 0x20000, v{vRA+1}
""")
vXR = vR + 72
for i in range(4): E(f"v_add_u32 v{vXR+i}, s{sWB}, v{vRA+i}")
vXT = vR + 84
if OPT['LNM']:
    E(f"""
v_lshrrev_b32 v{vXT+1}, 3, v0
v_bfe_u32 v{vXT+2}, v0, 1, 1
v_xor_b32 v{vXT+1}, v{vXT+1}, v{vXT+2}
v_lshlrev_b32 v{vXT+1}, 4, v{vXT+1}
v_lshrrev_b32 v{vXT+2}, 2, v0
v_lshl_add_u32 v{vXT+1}, v{vXT+2}, 7, v{vXT+1}
v_and_b32 v{vXT+2}, 1, v0
v_lshl_add_u32 v{vXT+1}, v{vXT+2}, 3, v{vXT+1}
v_add_u32 v{vXT}, s{sWB}, v{vXT+1}
""")
    for u in range(1, 4): E(f"v_xor_b32 v{vXT+u}, {32*u}, v{vXT}")
    for u in range(4): E(f"v_add_u32 v{vXT+4+u}, 0x10000, v{vXT+u}")
E(f"""
s_and_b32 s{sTC}, s2, 7
s_lshl_b32 s{sTC}, s{sTC}, 1
s_lshr_b32 s{sT0}, s2, 7
s_add_u32 s{sTC}, s{sTC}, s{sT0}
s_lshl_b32 s{sW2I}, s{sT0}, 1
s_add_u32 s{sW2I}, s{sW2I}, s{sT3}
s_lshl_b32 s{sT2}, s{sTC}, 1
s_add_u32 s{sT2}, s{sT2}, s{sT3}
s_lshl_b32 s{sT0}, s{sT2}, 2
s_add_u32 s{sT0}, s{sT0}, s{sW}
s_mul_i32 s{sT0}, s{sT0}, {16*896}
s_lshl_b32 s{sSG}, s{sT1}, 7
s_add_u32 s{sT0}, s{sT0}, s{sSG}
v_lshrrev_b32 v{vT0}, 3, v0
v_mul_u32_u24 v{vT0}, 896, v{vT0}
v_and_b32 v{vT2}, 7, v0
v_lshl_add_u32 v{vT0}, v{vT2}, 4, v{vT0}
v_add_u32 v{vT0}, s{sT0}, v{vT0}
v_accvgpr_write_b32 a{aST+8}, v{vT0}
s_lshl_b32 s{sT2}, s{sT2}, 1
s_lshr_b32 s{sT0}, s{sW}, 1
s_add_u32 s{sSG}, s{sT2}, s{sT0}
s_lshl_b32 s{sFLP}, s{sSG}, 9
s_mul_i32 s{sSG}, s{sSG}, 7
s_add_u32 s{sSG}, s{sSG}, s{sT1}
s_lshl_b32 s{sSG}, s{sSG}, 2
s_add_u32 s{sFLP}, s{sFLP}, {hx(WS_F)}
s_and_b32 s{sT0}, s{sW}, 1
s_add_u32 s{sSG}, s{sSG}, s{sT0}
s_lshl_b32 s{sSG}, s{sSG}, 14
s_mul_i32 s{sHLD}, s{sT2}, {56*2048}
s_add_u32 s{sHLD}, s{sHLD}, {hx(WS_H)}
s_cmp_lt_u32 s{sPC}, 14
s_cselect_b32 s{sCOOB}, 0, {hx(OOB)}
s_add_u32 s{sHPF}, s{sHLD}, s{sCOOB}
s_mul_i32 s{sT0}, s{sW}, {14*2048}
s_add_u32 s{sHLD}, s{sHLD}, s{sT0}
s_mov_b32 s0, s2
s_mov_b32 s{sCC}, s{sT1}
s_lshl_b32 s{sKVI}, s{sTL}, 1
s_and_b32 s{sT0}, s{sHD}, 1
s_add_u32 s{sKVI}, s{sKVI}, s{sT0}
s_lshl_b32 s{sT1}, s{sT}, 2
s_add_u32 s{sT1}, s{sT1}, s{sW}
s_lshl_b32 s{sFLG}, s{sT1}, 9
s_add_u32 s{sFLG}, s{sFLG}, s{sHD}
v_min_u32 v{vPOLL}, 2, v0
v_lshlrev_b32 v{vPOLL}, 7, v{vPOLL}
s_add_u32 s{sFLG}, s{sFLG}, {hx(WS_F)}
s_mul_i32 s{sHST}, s{sT1}, {56*2048}
s_min_u32 s{sT2}, s{sHD}, 13
s_lshl_b32 s{sT2}, s{sT2}, 13
s_add_u32 s{sHST}, s{sHST}, s{sT2}
s_add_u32 s{sHST}, s{sHST}, {hx(WS_H)}
s_cmp_lt_u32 s{sHD}, 14
s_cselect_b32 s{sT2}, 0, {hx(OOB)}
v_add_u32 v{vHS}, s{sT2}, v{vL16}
v_mov_b32 v{vZ}, 0
v_mov_b32 v{vONE}, 1
""")
PST('addr_done')
xissue(14 - OPT['XFIRST'] - OPT['XSEC'])
if OPT['WQE'] == 0: P.ins += wqpf; wqpf = []
PST('x_issued')
PRODUCER = len(P.ins)
E(f"""
s_lshl_b32 s{sSST}, s{sT}, 2
s_add_u32 s{sSST}, s{sSST}, s{sW}
s_mul_i32 s{sSST}, s{sSST}, {28*16384}
s_cmp_ge_u32 s{sHD}, 7
s_cselect_b32 s{sT3}, 1, 0
s_sub_u32 s{sROT}, s{sHD}, 7
s_min_u32 s{sROT}, s{sROT}, s{sHD}
s_sub_u32 s{sCNT}, s{sROT}, 7
s_min_u32 s{sROT}, s{sROT}, s{sCNT}
s_cmp_lt_u32 s{sHD}, 14
s_cselect_b32 s{sT3}, s{sT3}, s{sHD}
s_cselect_b32 s{sSTEP}, 2048, 0
s_lshl_b32 s{sT3}, s{sT3}, 10
s_add_u32 s{sSST}, s{sSST}, s{sT3}
""")
prod_ins = []
if OPT['STLB'] == 1:
    for b_, o_ in ((sKK, '0'), (sVV, '0'), (sWQ, '0'), (sWQ, f'{hx(400*8192)}')[:2], (sWO, '0'), (sW1, '0'), (sW2, '0'), (sOUT, '0'),
                   (sWS, f's{sSST}'), (sWS, f's{sHST}'), (sWS, hx(WS_F + 0x10000))):
        if o_.startswith('0x'): E(f"s_mov_b32 s{sCNT}, {o_}"); o_ = f's{sCNT}'
        i_ = I(f"s_buffer_load_dword s{sCNT}, {srd(b_)}, {o_}"); i_.cls = 'smem'; i_.dst = []; P.ins.append(i_)
for s_, val in ((sM1, 0x2222222222222222), (sM2, 0xCCCCCCCCCCCCCCCC), (sM3, 0x8888888888888888), (sMD, 0xF0000F0000F0000F)):
    E(f"s_mov_b32 s{s_}, {hx(val)}\ns_mov_b32 s{s_+1}, {hx(val >> 32)}")

vONES = vR + 16
vD1 = vR + 20
vD2 = vR + 28
vLA = vR + 36
for i in range(4): E(f"v_mov_b32 v{vONES+i}, 0x3f803f80")
def rbf(r):
    return [f"v_cvt_pk_bf16_f32 v{r}, v{r}, v{r}", f"v_lshlrev_b32 v{r}, 16, v{r}"]
E(f"s_mov_b32 s{sT0}, {hx(f2u(1.0/448.0))}\ns_mov_b32 s{sT1}, {hx(f2u(1e-5))}\ns_mov_b32 s{sT2}, {hx(f2u(CSCALE))}")
if OPT['PADS']:
    E(f"""
s_mov_b64 exec, 0
s_cmp_eq_u32 s{sW}, 0
s_cbranch_scc1 L_pg0
s_cmp_eq_u32 s{sW}, 1
s_cbranch_scc1 L_pg1
s_cmp_eq_u32 s{sW}, 2
s_cbranch_scc1 L_pg2
s_branch L_pg3
.p2align 12
L_main:
s_mov_b64 exec, -1
""")
STAMP('pro_done')
vNT = vR + 44
NPRO = OPT['NPRO']
big = []
if OPT['BIG'] & 1:
    t_ = pf_seq(sWQ, 448*2, 2, 8192, sTL, NT); t_[-1] = I(t_[-1].text.replace('offen', 'offen offset:256'), tag='pf'); big += t_
    big += pf_seq(sW1, 448*2, 2, 3584, sTL, NT)
if OPT['BIG'] & 2:
    t_ = pf_seq(sKK, 2048, None, 0, sKVI, 2*NT); big += t_ + [pf_load(sVV, vPF+1)]
big = [I(t_) if isinstance(t_, str) else t_ for t_ in big]
assert len(pro_dma) == NPRO
L0N = OPT['L0N']
late = {0: [i_ for d_ in pro_dma[:L0N] for i_ in d_],
        1: [i_ for d_ in pro_dma[3:] for i_ in d_]
           + big + [I(f"buffer_store_byte v{vZ}, v{vPOLL}, {srd(sWS)}, s{sFLG} offen sc1", tag='hst')]}
def xreads(tg, q):
    r = [mk_wait_vm([('x', tg, q)])]
    for ks in (2*q, 2*q+1):
        ad = q*SLOT + tg*2048
        r.append(I(f"ds_read_b128 {v(xn(ks,tg),4)}, v{vXR + (ad >> 16)*2 + (ks & 1)} offset:{ad & 0xffff}", tag=('xr', tg, q)))
    return r
def stats(tg, q, fill):
    P.wait_lgkm_tag([('xr', tg, q)])
    for ks in (2*q, 2*q+1):
        X = v(xn(ks, tg), 4)
        for m_ in (mfma(v(vD1+4*tg, 4), v(vONES, 4), X, "0" if ks == 0 else v(vD1+4*tg, 4)), mfma(v(vD2+4*tg, 4), X, X, "0" if ks == 0 else v(vD2+4*tg, 4))):
            E(m_)
            t_ = 0
            while fill and t_ + cost(fill[0]) <= 12:
                t_ += cost(fill[0]); P.ins.append(fill.pop(0))
def scalars(tg):
    d = vD2 + 4*tg; m = vD1 + 4*tg; t = m + 1; L = vLA + 4*tg
    s = [f"v_cndmask_b32 v{d}, v{d}, v{d+1}, s[{sM1}:{sM1+1}]",
         f"v_cndmask_b32 v{d+2}, v{d+2}, v{d+3}, s[{sM3}:{sM3+1}]",
         f"v_mul_f32 v{m}, s{sT0}, v{m}",
         f"v_cndmask_b32 v{d}, v{d}, v{d+2}, s[{sM2}:{sM2+1}]",
         f"v_cndmask_b32 v{d}, 0, v{d}, s[{sMD}:{sMD+1}]"]
    s += allred(d, t, "v_add_f32")
    s += [f"v_mul_f32 v{d}, s{sT0}, v{d}",
          f"v_fma_f32 v{d}, -v{m}, v{m}, v{d}",
          f"v_max_f32 v{d}, 0, v{d}"]
    s += interleave(rbf(m), rbf(d))
    s += [f"v_add_f32 v{d}, s{sT1}, v{d}"] + rbf(d) + [f"v_sqrt_f32 v{d}, v{d}"] + rbf(d)
    s += [f"v_rcp_f32 v{d}, v{d}", f"v_mul_f32 v{d}, s{sT2}, v{d}",
          f"v_cvt_pk_bf16_f32 v{d}, v{d}, v{d}",
          f"v_and_b32 v{L}, 0xffff, v{d}", f"v_lshlrev_b32 v{L+1}, 16, v{d}",
          f"v_mul_f32 v{L+2}, -v{m}, v{L+1}"]
    if OPT['LNM']:
        s += [f"v_cndmask_b32 v{L}, v{L}, v{L+1}, s[16:17]", f"v_mov_b32 v{m}, v{L+2}", f"v_cndmask_b32 v{L}, 0, v{L}, s[{sMD}:{sMD+1}]", f"v_mov_b32 v{m+1}, v{L+2}",
              f"v_cndmask_b32 v{L+1}, 0, v{L}, s[{sM2}:{sM2+1}]", f"v_mov_b32 v{m+2}, v{L+2}", f"v_cndmask_b32 v{L}, v{L}, 0, s[{sM2}:{sM2+1}]", f"v_mov_b32 v{m+3}, v{L+2}"]
    return s
aXT = 128
def xtr(tg, T):
    ad = (T >> 2)*SLOT + tg*2048
    return I(f"ds_read_b64_tr_b16 {a(aXT + 2*(tg*28 + T), 2)}, v{vXT + (ad >> 16)*4 + (T & 3)} offset:{ad & 0xffff}", tag=('xt', tg, T))
def normm(tg, T0, T1, fill, pend):
    L = vLA + 4*tg; m = vD1 + 4*tg
    for T in range(T0, T1):
        if T % 4 == 0: P.wait_lgkm_tag([('xt', tg, min(T + 3, 27))])
        t = vNT + 4*(T % 4)
        E(f"v_mfma_f32_16x16x16_bf16 {v(t,4)}, {a(aXT + 2*(tg*28 + T), 2)}, {v(L,2)}, {v(m,4)}")
        x_ = xn(T >> 1, tg) + 2*(T & 1)
        k_ = 0
        while fill and k_ < 1:
            P.ins.append(fill.pop(0)); k_ += 1
        pend.append([f"v_cvt_pk_bf16_f32 v{x_}, v{t}, v{t+1}", f"v_cvt_pk_bf16_f32 v{x_+1}, v{t+2}, v{t+3}"])
        if len(pend) > 2:
            for t_ in pend.pop(0): E(t_)
def normalize(tg, side):
    L = vLA + 4*tg; k = 0; pend = []
    for ks in range(14):
        for r in range(4):
            x_ = xn(ks, tg) + r
            t = vNT + 2*(k % 8); k += 1
            E(f"v_dot2_f32_bf16 v{t}, v{x_}, v{L}, v{L+2}\nv_dot2_f32_bf16 v{t+1}, v{x_}, v{L+1}, v{L+2}")
            pend.append(f"v_cvt_pk_bf16_f32 v{x_}, v{t}, v{t+1}")
            if len(pend) > 2: E(pend.pop(0))
            P.ins += side.get(k, [])
    for t_ in pend: E(t_)
for q in range(7):
    P.ins += xreads(0, q)
    if q in (0, 3, 6): PST(f'w0{q}')
    xissue(2)
    if q > 1: stats(0, q-2, [])
fill = (late[0] + wqpf) if OPT['R0F'] else (wqpf + late[0])
stats(0, 5, fill); stats(0, 6, fill)
P.ins += fill
STAMP('x0_arrived')
if not OPT['LNM']:
    for t_ in scalars(0): E(t_)
    X1 = OPT['X1']
    normalize(0, {X1 + 4*q: xreads(1, q) for q in range(7)})
    PST('ln0_done')
    fill = [i_ for d_ in pro_dma[L0N:3] for i_ in d_]
    for q in range(7):
        if q == 1: P.wait_lgkm_tag([('xr', 1, 6)]); fill += late[1]
        stats(1, q, fill)
    P.ins += fill
    STAMP('x1_arrived')
    for t_ in scalars(1): E(t_)
    fr_ = [i_ for f in range(D) for i_ in frag_reads(f)]
    side = {OPT['BARK']: [mk_wait_vm(first_need), I("s_barrier")]}
    for k_, i_ in enumerate(fr_): side.setdefault(min(OPT['BARK'] + 1 + k_, 56), []).append(i_)
    normalize(1, side)
else:
    NA0 = OPT['NA0']
    E(f"s_or_b64 s[16:17], s[{sM1}:{sM1+1}], s[{sM3}:{sM3+1}]")
    rd0 = [xtr(0, T) for T in range(28)]
    for k_, t_ in enumerate(scalars(0)):
        if rd0 and k_ < 14: P.ins.append(rd0.pop(0))
        E(t_)
    pend = []
    normm(0, 0, 14, rd0, pend)
    assert not rd0
    x1 = [i_ for q in range(7) for i_ in xreads(1, q)]
    for i_ in x1[:6]: P.ins.append(i_)
    for p_ in pend:
        for t_ in p_: E(t_)
    pend = []
    PST('ln0_half')
    n3 = sum(len(d_) for d_ in pro_dma[3:])
    fill = x1[6:] + [i_ for d_ in pro_dma[L0N:3] for i_ in d_] + late[1][n3:]
    for q in range(7): stats(1, q, fill)
    P.ins += fill
    STAMP('x1_arrived')
    rd1 = [xtr(1, T) for T in range(28)]
    sc1 = [I(t_) for t_ in scalars(1)]
    for T in range(14, 28):
        normm(0, T, T+1, rd1, pend)
        if T >= 15:
            for _ in range(2):
                if sc1: P.ins.append(sc1.pop(0))
    for p_ in pend:
        for t_ in p_: E(t_)
    pend = []
    for k_, i_ in enumerate(sc1):
        if rd1 and k_ % 2 == 0: P.ins.append(rd1.pop(0))
        P.ins.append(i_)
    PST('ln0_done')
    fr_ = [i_ for f in range(D) for i_ in frag_reads(f)]
    fill = rd1 + [mk_wait_vm(first_need), I("s_barrier")] + fr_
    normm(1, 0, 28, fill, pend)
    P.ins += fill
    P.wait_lgkm_tag([('xt', 1, 27)])
    lt = late[1][:n3]
    for p_ in pend:
        for t_ in p_: E(t_)
    P.ins += lt
if OPT['DUMP'] == 'xn':
    P.ins += dump([v(xn(ks, tg), 4) for ks in range(14) for tg in range(2)])

P.ins.append(mk_wait_lg([('f', f) for f in range(4)]))
est = 0
for g in range(NF):
    if g in blk: P.ins += blk[g]
    for h, m_ in enumerate(MF[g]):
        gp = G0[g] + h
        P.ins.append(I(m_))
        P.ins += pre[gp] + rds[gp] + ext[gp]
        est += max(16, gtime(pre[gp] + rds[gp] + ext[gp]))
if OPT['LOG']:
    ph = sorted((f_, n_) for n_, f_ in phase.items())
    for (f0_, n_), (f1_, _) in zip(ph, ph[1:]):
        e_ = sum(max(16, gtime(pre[q_] + rds[q_] + ext[q_])) for q_ in range(gap(f0_), gap(f1_)))
        print(f"  phase {n_}: est {e_} ideal {16*(gap(f1_)-gap(f0_))}", file=sys.stderr)
print("estimated main-stream cycles", est, "ideal", 16*NG, file=sys.stderr)

STAMP('g6_done')
def fs(u, w_): return facc(u, w_)
def smf(rl, sl):
    r = []
    for tg in range(2):
        d = v(vsa(rl*2+tg), 4)
        r.append(mfma(d, v(vSEL + (2 if tg == 0 else 0), 4), greg(rl, sl), "0" if sl == 0 else d))
    return r
msA = [m_ for sq in range(0, 2*F0, 2) for rl in range(2) for sl in (sq, sq+1) for m_ in smf(rl, sl)]
if not OPT['C2G']: E(f"s_waitcnt vmcnt({NYB})")
n2 = OPT['N2']
rest = list(glC)
def last_test():
    if F1 < 7 and not OPT['C2G']:
        STAMP('pre_c2')
        P.wait_vm_tag(['poll2'])
        E(f"v_cmp_ne_u32 vcc, 1, v{vPOLL}\ns_cbranch_vccnz L_spin2\nL_spin2_ret:")
        STAMP('chk2')
last_test()
for _ in range(6):
    if rest: P.ins.append(rest.pop(0))
for i_ in fwrites(3):
    P.ins.append(i_)
    if msA: E(msA.pop(0))
while rest and len(glC) - len(rest) < n2:
    P.ins.append(rest.pop(0))
    if P.ins[-1].cls == 'vmem' and msA: E(msA.pop(0))
E("s_waitcnt lgkmcnt(0)\ns_barrier")
doneB = [(rl, sl) for sq in range(2*F0, NSB, 2) for rl in range(2) for sl in (sq, sq+1)]
lateB = doneB[len(doneB) - 2*OPT['PCB']:]; doneB = doneB[:len(doneB) - 2*OPT['PCB']]
msA += [m_ for rl, sl in doneB for m_ in smf(rl, sl)]
for u in range(4):
    for j in range(1, 4):
        E(f"ds_read_b128 {v(fs(u, j), 4)}, v{FRR[j-1]} offset:{u*1024}")
        if msA: E(msA.pop(0))
P.ins += rest
def with_m(l):
    if OPT['PKNOP']: E(f"s_nop {OPT['PKNOP']-1}")
    for t_ in l:
        if msA: E(msA.pop(0))
        E(t_)
R4 = [tuple(fs(u, w_) for w_ in range(4)) for u in range(4)]
for b0, b1, b2, b3 in R4:
    for r in (0, 2): E(f"v_pk_add_f32 {v(b0+r,2)}, {v(b0+r,2)}, {v(b1+r,2)}\nv_pk_add_f32 {v(b2+r,2)}, {v(b2+r,2)}, {v(b3+r,2)}")
    for r in (0, 2): E(f"v_pk_add_f32 {v(b0+r,2)}, {v(b0+r,2)}, {v(b2+r,2)}")
    for r in (0, 2): E(f"v_pk_mul_f32 {v(b1+r,2)}, {v(b0+r,2)}, v[24:25] op_sel:[0,0] op_sel_hi:[1,0]")
    for r in (0, 2): E(f"v_pk_mul_f32 {v(b0+r,2)}, {v(b0+r,2)}, v[24:25] op_sel:[0,1] op_sel_hi:[1,1]")
with_m([f"v_exp_f32 v{b[1]+r}, v{b[1]+r}" for b in R4 for r in range(4)])
for b in R4:
    for r in (0, 2): E(f"v_pk_add_f32 {v(b[1]+r,2)}, {v(b[1]+r,2)}, 1.0 op_sel_hi:[1,0]")
lastC = lateB + [(rl, sl) for sq in range(NSB, 16, 2) for rl in range(2) for sl in (sq, sq+1)]
NC1 = OPT['NC1']
msA += [m_ for rl, sl in lastC[:NC1] for m_ in smf(rl, sl)]; lastC = lastC[NC1:]
with_m([f"v_rcp_f32 v{b[1]+r}, v{b[1]+r}" for b in R4 for r in range(4)])
for m_ in msA: E(m_)
STAMP('g_done')
gm_ = [f"v_mul_f32 v{b[0]+r}, v{b[0]+r}, v{b[1]+r}" for b in R4 for r in range(4)]
for rl, sl in lastC:
    for m_ in smf(rl, sl):
        E(m_)
        for _ in range(2):
            if gm_: E(gm_.pop(0))
for t_ in gm_: E(t_)
for u in range(4):
    b0 = fs(u, 0)
    for r in (0, 2): E(f"v_pk_fma_f32 {v(b0+r,2)}, {v(vsa(u)+r,2)}, {v(b0+r,2)}, {v(vXU+u*4+r,2)}")
    E(f"v_cvt_pk_bf16_f32 v{b0}, v{b0}, v{b0+1}\nv_cvt_pk_bf16_f32 v{b0+1}, v{b0+2}, v{b0+3}")
    E(f"ds_write_b64 v{vPF}, {v(b0,2)} offset:{u*32}")
E(f"""
ds_read_b128 {v(vXF,4)}, v{vT4}
ds_read_b128 {v(vXF+4,4)}, v{vT4} offset:1152
buffer_store_dwordx4 {v(vXF,4)}, v{vAD}, {srd(sOUT)}, 0 offen {OPT['OST']}
buffer_store_dwordx4 {v(vXF+4,4)}, v{vAD}, {srd(sOUT)}, s{sSV1} offen {OPT['OST']}
""")
if OPT['WAITAT']: STAMP('end')
if OPT['STAMP']:
    STAMP('end')
    E(f"""
L_fin:
s_memrealtime s[{sSTMP}:{sSTMP+1}]
s_waitcnt lgkmcnt(0)
v_writelane_b32 v{vSTAMP}, s{sMISS}, 59
v_writelane_b32 v{vSTAMP}, s{sSTMP}, 62
s_lshl_b32 s{sT0}, s0, 2
s_add_u32 s{sT0}, s{sT0}, s{sW}
s_lshl_b32 s{sT0}, s{sT0}, 8
s_add_u32 s{sT0}, s{sT0}, {hx(WS_DBG)}
v_lshlrev_b32 v{vT0}, 2, v0
buffer_store_dword v{vSTAMP}, v{vT0}, {srd(sWS)}, s{sT0} offen
""")
E("L_end:\ns_endpgm")
main_ins, log, stats_ = resolve(P.ins)
print("main", stats_, file=sys.stderr)
if OPT['LOG']:
    for l in log: print("  ", l, file=sys.stderr)

Q = Prog(); E = Q.emit
SPIN_MAX = 1 << 17
def spin(label, load, want, cmp):
    E(f"""
{label}:
s_mov_b32 s{sCNT}, {SPIN_MAX}
{label}_loop:
s_sleep 1
{load}
s_waitcnt vmcnt(0)
v_cmp_{cmp}_u32 vcc, {want}, v{vPOLL}
s_sub_u32 s{sCNT}, s{sCNT}, 1
s_cmp_eq_u32 s{sCNT}, 0
s_cbranch_scc1 {label}_ret
s_cbranch_vccnz {label}_loop
s_branch {label}_ret
""")
spin("L_spinh", f"s_lshl_b32 s{sT0}, s{sTC}, 4\nv_mov_b32 v{vT0}, s{sT0}\nglobal_load_dword v{vPOLL}, v{vT0}, {DBGP} sc1", 16, "gt")
spin("L_spin1", VPOLL, 1, "ne")
if F1 < 7: spin("L_spin2", VPOLL2, 1, "ne")
E("L_redo:\ns_waitcnt vmcnt(0)")
Q.ins += gloads(0, 2*F0, vHS)
E("s_branch L_redo_ret")
MISC = [c['lo'] for c in chunks if c['name'] == 'V_15'][0]
fK, fS, fP, fA, fV, fR, fM = 44, 76, 108, 116, 117, 121, 102
E(f"""
L_exact:
s_waitcnt vmcnt(0) lgkmcnt(0)
s_nop 15
s_mov_b32 s{sSV0}, m0
v_and_b32 v{fA}, 15, v0
v_lshlrev_b32 v{fA}, 9, v{fA}
v_and_b32 v{fM}, 48, v0
v_add_u32 v{fA}, v{fA}, v{fM}
s_lshl_b32 s{sSV1}, s{sW}, 7
s_add_u32 s{sSV2}, s{sWB}, {MISC}
""")
for i in range(4):
    E(f"v_subrev_u32 v{fV+i}, s{sSV1}, v{vVD+i}\nv_add_u32 v{fR+i}, s{sSV2}, v{vTR+i}")
E(f"v_mov_b32 v{fM}, 0xff800000\nv_mov_b32 v{fM+1}, 0xff800000\ns_mov_b32 s{sSV1}, 0")
def ktile(kt, cinit):
    for ks in range(8):
        E(f"buffer_load_dwordx4 {v(fK+4*ks,4)}, v{fA}, {srd(sKK)}, s{sSV1} offen offset:{ks*64}")
    E(f"s_add_u32 s{sSV1}, s{sSV1}, 8192\ns_waitcnt vmcnt(0)")
    for ks in range(8):
        for tg in range(2):
            d = v(fS + tg*8 + kt*4, 4)
            E(mfma(d, v(fK+4*ks, 4), a(qf(ks, tg), 4), (cinit(tg) if ks == 0 else d)))
    E("s_nop 15")
E("L_exact_p1:")
ktile(0, lambda tg: "0")
for tg in range(2):
    b = fS + tg*8
    E(f"v_max3_f32 v{fM+tg}, v{fM+tg}, v{b}, v{b+1}\nv_max3_f32 v{fM+tg}, v{fM+tg}, v{b+2}, v{b+3}")
E(f"s_cmp_lt_u32 s{sSV1}, 262144\ns_cbranch_scc1 L_exact_p1")
for tg in range(2):
    for t_ in allred(fM+tg, fM+2, "v_max_f32"): E(t_)
    for r in range(4): E(f"v_sub_f32 v{vC+4*tg+r}, 0, v{fM+tg}")
for r in range(128): E(f"v_mov_b32 v{vO+r}, 0")
E(f"v_mov_b32 v{vLS}, 0\nv_mov_b32 v{vLS+1}, 0\ns_mov_b32 s{sSV1}, 0\ns_add_u32 m0, s{sWB}, {MISC}\ns_nop 3")
E("L_exact_p2:")
E(f"s_mov_b32 s{sSV2}, s{sSV1}")
ktile(0, lambda tg: v(vC+4*tg, 4))
ktile(1, lambda tg: v(vC+4*tg, 4))
for r in range(16): E(f"v_exp_f32 v{fS+r}, v{fS+r}")
for r in range(16): E(f"v_add_f32 v{vLS + r//8}, v{vLS + r//8}, v{fS+r}")
for r in range(8): E(f"v_cvt_pk_bf16_f32 v{fP+r}, v{fS+2*r}, v{fS+2*r+1}")
for cb in range(4):
    for rb in range(4):
        E(f"buffer_load_dwordx4 v{fV+rb}, {srd(sVV)}, s{sSV2} offen offset:{rb*1024} lds")
    E(f"s_add_u32 s{sSV2}, s{sSV2}, 128\ns_waitcnt vmcnt(0)")
    for u in range(4):
        E(f"ds_read_b64_tr_b16 {v(fK+4*u,2)}, v{fR+u}\nds_read_b64_tr_b16 {v(fK+4*u+2,2)}, v{fR+u} offset:2048")
    E("s_waitcnt lgkmcnt(0)")
    for u in range(4):
        for tg in range(2):
            d = v(Oreg(cb*4+u, tg), 4)
            E(mfma(d, v(fK+4*u, 4), v(fP+4*tg, 4), d))
    E("s_nop 7")
E(f"s_cmp_lt_u32 s{sSV1}, 262144\ns_cbranch_scc1 L_exact_p2")
for tg in range(2):
    for t_ in allred(vLS+tg, fM+2, "v_add_f32"): E(t_)
    E(f"v_rcp_f32 v{vRC+tg}, v{vLS+tg}")
E("s_nop 15")
for i in range(12): E(f"v_add_u32 v{vTP+i}, s{sWB}, v{vTR+i}")
E(f"s_mov_b32 m0, s{sSV0}\ns_nop 15\ns_branch L_exact_ret")
sub_ins, log2, stats2 = resolve(Q.ins)

def sizes_of(ins):
    import subprocess, tempfile, re as re_
    body = [i_ for i_ in ins if i_.cls not in ('label', 'dir')]
    txt_ = '.amdgcn_target "amdgcn-amd-amdhsa--gfx950"\n.text\nL_any:\n' + ''.join('    ' + (re_.sub(r'L_\w+', 'L_any', i_.text) if i_.cls == 'branch' else i_.text) + '\n' for i_ in body)
    d_ = tempfile.mkdtemp()
    open(d_ + '/a.s', 'w').write(txt_)
    subprocess.run(['clang', '-x', 'assembler', '-target', 'amdgcn-amd-amdhsa', '-mcpu=gfx950', '-c', d_ + '/a.s', '-o', d_ + '/a.o'], check=True)
    out_ = subprocess.run(['llvm-objdump', '-d', '--mcpu=gfx950', d_ + '/a.o'], capture_output=True, text=True).stdout
    sz = [4*len(m_.group(1).split()) for m_ in re_.finditer(r'// [0-9A-F]+: ((?:[0-9A-F]{8} ?)+)', out_)]
    assert len(sz) == len(body), (len(sz), len(body))
    return {id(i_): s_ for i_, s_ in zip(body, sz)}
if OPT['PADS']:
    sz = sizes_of(main_ins)
    k0 = [k_ for k_, i_ in enumerate(main_ins) if i_.text == 'L_main:'][0]
    out_ = main_ins[:k0+1]; off = 0; npg = 0
    for i_ in main_ins[k0+1:]:
        if i_.cls not in ('label', 'dir'):
            lo = (npg + 1)*4096
            if npg < OPT['NPG'] and off >= lo and (i_.cls == 'mfma' or off + sz[id(i_)] > lo + 56):
                assert off < lo + 64
                out_.append(I(f"L_pg{npg}:")); out_.append(I(f"s_cbranch_execz L_pgn{npg}")); off += 4; npg += 1
            off += sz[id(i_)]
        out_.append(i_)
    for i_ in out_:
        if i_.text.startswith('s_cbranch_execz L_pgn'):
            k_ = int(i_.text.split('L_pgn')[1]) + 4
            i_.text = f"s_cbranch_execz L_pg{k_}" if k_ < npg else "s_cbranch_execz L_main"
    main_ins = out_
    print("code pages", npg, "bytes after L_main", off, file=sys.stderr)
hdr = open(os.path.join(os.path.dirname(os.path.abspath(__file__)), 'header.txt')).read()
txt = hdr + f"""; @launch grid=(256,1,1) block=(256,1,1) lds={LDS_BYTES}
; ---------------------------------------------------------------------------------------------
; One workgroup per CU (256 workgroups x 4 waves, 512 registers per lane, 160 KiB LDS ring).
; Producer role (128-token tile t, head hd), every wave keeps 32 tokens as MFMA B operands:
;   LayerNorm (statistics and scaling by MFMA) -> q = xn*Wq -> h slice = relu(xn*W1) (published)
;   -> S = K q, p = exp2(S - m0), O = V p (m0 = row maximum over the first 16 keys; when a row sum
;   leaves the safe range the wave redoes the head with the true row maximum, label L_exact)
;   -> partial s = O*Wo (bf16, published through d_ws, column blocks in a rotated order).
; Consumer role (64 tokens x 64 columns): f = h*W2 (K split over the waves), sum of the 16 partial s,
;   out = x + s*silu(f).
; Weights stream L2 -> LDS by LDS-DMA (16 KiB rounds, source-side swizzle), A fragments are read with
; ds_read_b64_tr_b16 / ds_read_b128.  Hand-offs: write-through stores, vmcnt, then a flag (d_debug
; counter for h, flag bytes in d_ws for s; the bytes are cleared first and the counter vouches for it).
; Generated by gen/gen.py (hand-written scheduler, wait-count and hazard pass).
; ---------------------------------------------------------------------------------------------
.amdgcn_target "amdgcn-amd-amdhsa--gfx950"
.text
.globl {NAME}_kernel
.p2align 8
.type {NAME}_kernel,@function
{NAME}_kernel:
""" + render(main_ins) + render(sub_ins) + f"""L_pad:
    s_endpgm
.if (L_pad - {"L_main" if OPT["PADS"] else "L_pc"}) < {CODE_LINES*128}
.fill (({CODE_LINES*128} - (L_pad - {"L_main" if OPT["PADS"] else "L_pc"})) / 4) + 16, 4, 0xbf810000
.endif
.section .rodata,"a"
.p2align 6
.amdhsa_kernel {NAME}_kernel
  .amdhsa_next_free_vgpr 512
  .amdhsa_next_free_sgpr 102
  .amdhsa_accum_offset 256
  .amdhsa_group_segment_fixed_size 0
  .amdhsa_kernarg_size 88
  .amdhsa_user_sgpr_count 2
  .amdhsa_user_sgpr_kernarg_segment_ptr 1
  .amdhsa_system_sgpr_workgroup_id_x 1
.end_amdhsa_kernel
"""
if OPT['STAMP']: txt += '; STAMPS ' + ' '.join(stamp_names) + '\n'
open(sys.argv[1], 'w').write(txt)
```

```python
import sys, os, math, struct
from asmlib import *

NAME = "recurrent_scan__sliding_block_cached__dense_activation_relu__prompt"
OPT = dict(D=8, NA=12, HX=4, BAR=2, STAMP=0, PST=0, DUMP='', SIGG=60, FORCEFB=0, LOG=0,
           SST='sc1', HLD='sc1', HST='sc1', GLD='sc1', NOSST=0, NOHLD=0, NOHST=0,
           PX='', PW1='sc1', PWQ='sc1', PKV='sc1', PWO='sc1', PW2='sc1', PF=1, PPF='', OST='', WSOFF=0, HSTEP=7, XREV=0, NPRO=3, WAITAT='', WAITT=0, WAITWG=-1, PADS=1, HSIG=150, HPF=0, PF0=0, PF1=14, CHAIN=1, WB=0, WBD=60, BIG=1, DSTART=0, W2ROT=1, NOPF2=2, HEND=40, XPF=1, L0N=1, X1=28, BARK=36, BARP=2, BARA=2, BAR4=2, SPAN=30, SPAN2=20, NV1=100, PKR=0, PCH=1, TLB=1, TLBP='G2_13', XG=0, STLB=0, ST0=4, STS=40, G6P='66666666666666', WOM=1, W2N=7, NPG=9, CPF='', SB2=0, PB2=60, CB2=110, LB2=215, NB2=10, ONORM=1, CE=105, LB=148, H2X=4, H2S=6, SB=52, LB2X=0, NSB=12, PCB=0, NO=0, NX=4, P2G=190, C2G=0, CW=0, NU=3, NC1=6, PKNOP=0, LNM=1, NA0=12, R0F=1, EPF=448, NOBARR=0, LEAK='', LEAK0='', LEAKC=0, SNAKE=3, NOG=0, NOFLAG=0, W2G=-15, W2S=8, F0=3, F1=5, L0=0, W2PRE=14, H2A=2, H2B=30, SA=48, PA=-75, CA=26, LA=88, SC=26, PB=68, N2=18, G1N=10, XFIRST=4, XSEC=0, WQE=2, OEARLY=2, H2SPAN=60, PFG=170, WQP=2, FINE=0, RT=0, SIMPLE=0, SSP=0)
for a_ in sys.argv[2:]:
    k_, v_ = a_.split('=')
    OPT[k_] = v_.replace('+', ' ') if isinstance(OPT[k_], str) else int(v_)
if OPT['LEAK']: OPT['WAITAT'] = '-'
D = OPT['D']; NA = OPT['NA']

RING_SLOTS = 10
SLOT = 16384
LDS_BYTES = 163840
WS_S = 0
WS_H = 0x1C00000
WS_F = 0x2300000
WS_DBG = 0x2400000
WS_SIZE = 0x8000000 if (OPT['DUMP'] or OPT['STAMP']) else 0x2400000
OOB = 0x7f000000
CSCALE = math.log2(math.e) / 16.0
def f2u(x): return struct.unpack('<I', struct.pack('<f', x))[0]
def hx(x): return f"0x{x & 0xffffffff:x}"

sX, sW1, sWQ, sKK, sVV, sWO, sW2, sWS, sOUT = 28, 32, 36, 40, 44, 48, 52, 56, 60
def srd(b): return f"s[{b}:{b+3}]"
sW, sHD, sT, sWB, sSO = 64, 65, 66, 67, 68
sT0, sT1, sT2, sT3 = 69, 70, 71, 3
sQT = 72
sHST, sHLD, sSST, sSG, sFLG, sFLP, sCNT, sSO2, sTL, sROT, sSTEP, sPC = 86, 87, 88, 89, 90, 91, 92, 93, 94, 95, 96, 97
sTC, sCOOB, sHPF, sW2I, sKVI, sCC = 19, 20, 21, 24, 25, 2
sW1T = 12
sM1, sM2, sM3, sMD = 4, 6, 8, 10
sSV0, sSV1, sSV2 = 12, 13, 14
sSTMP = 26
DBGP = "s[22:23]"
vL16, vHS, vT0, vT1, vT2, vT3, vT4 = 1, 2, 3, 4, 5, 6, 7
vTR = 8
vRA = 20
vPF = 26
vZ, vONE, vPOLL, vSTAMP = 28, 29, 30, 31
vWQ, vKD, vVD, vWOD, vW2D = 32, 36, 40, 32, 36
vXN = 44
vR = 156
vW1D = vR + 64
vXD = vR + 68
vO = 128
vS = 44
vP = 76
vC = 92
vLS = 100
vM = 106
vA4 = 44
vRC = 126
aF, aST, aQ, aH = 0, 48, 64, 128

def v(i, n=1): return f"v{i}" if n == 1 else f"v[{i}:{i+n-1}]"
def a(i, n=1): return f"a{i}" if n == 1 else f"a[{i}:{i+n-1}]"
def mfma(d, A, B, C): return f"v_mfma_f32_16x16x32_bf16 {d}, {A}, {B}, {C}"
def I(t, tag=None): return Ins(t, tag)
lg = lambda x: int(math.log2(x))

P = Prog()
E = P.emit

nstamp = [0]
stamp_names = []
def stamp_ins(name=''):
    clk_ = 's_memtime' if OPT['LEAKC'] else 's_memrealtime'
    if OPT['LEAK'] and name in (OPT['LEAK'], OPT['LEAK0']) and name != 'end':
        return [I(f"{clk_} s[{sSTMP}:{sSTMP+1}]"), I("s_waitcnt lgkmcnt(0)"), I(f"v_writelane_b32 v{vSTAMP}, s{sSTMP}, {0 if name == OPT['LEAK'] else 1}")]
    if OPT['LEAK'] and name == 'end':
        pre_ = [f"s_waitcnt vmcnt(0)", f"{clk_} s[{sSTMP}:{sSTMP+1}]", "s_waitcnt lgkmcnt(0)", f"s_mov_b32 s4, s{sSTMP}"] if OPT['LEAK'] == 'end' else [f"v_readlane_b32 s4, v{vSTAMP}, 0", "s_nop 3"]
        pre_ += [f"v_readlane_b32 s5, v{vSTAMP}, 1", "s_nop 3"] if OPT['LEAK0'] else ["s_mov_b32 s5, s1"]
        return [I(t_) for t_ in (([f"s_cmp_lg_u32 s0, {OPT['WAITWG']}", "s_cbranch_scc1 L_end"] if OPT['WAITWG'] >= 0 else []) + pre_ +
                ["s_sub_u32 s4, s4, s5", "s_lshr_b32 s4, s4, 1" if OPT['LEAKC'] else "s_mul_i32 s4, s4, 8", "s_add_u32 s4, s4, 6000", "L_dw:", f"s_memrealtime s[{sSTMP}:{sSTMP+1}]", "s_waitcnt lgkmcnt(0)",
                 f"s_sub_u32 s{sSTMP}, s{sSTMP}, s1", f"s_cmp_lt_u32 s{sSTMP}, s4", "s_cbranch_scc1 L_dw"])]
    if OPT['WAITAT'] and name == OPT['WAITAT']:
        return [I(t_) for t_ in ((f"s_cmp_lg_u32 s0, {OPT['WAITWG']}", "s_cbranch_scc1 L_end") if OPT['WAITWG'] >= 0 else ()) + ("L_dw:", f"s_memrealtime s[{sSTMP}:{sSTMP+1}]", "s_waitcnt lgkmcnt(0)", f"s_sub_u32 s{sSTMP}, s{sSTMP}, s1",
                                 f"s_cmp_lt_u32 s{sSTMP}, {OPT['WAITT']}", "s_cbranch_scc1 L_dw")]
    if not OPT['STAMP']: return []
    if OPT['STAMP'] == 3 and name not in ('end', 'attn_done', 'G4', 'wb0', 'wb1', 'G6', 'st_done', 'chk0', 'chk1', 'chk2', 'sigA', 'sigB', 'g6_done', 'g_done', 'pre_c2', 'pre_c1', 'pre_c0'): return []
    if OPT['STAMP'] == 2 and name not in ('end', 'G4', 'P0', 'G2_0', 'g6_done'): return []
    n = nstamp[0]; nstamp[0] += 1; stamp_names.append(name)
    return [I(f"{'s_memrealtime' if OPT['RT'] else 's_memtime'} s[{sSTMP}:{sSTMP+1}]"), I("s_waitcnt lgkmcnt(0)"), I(f"v_writelane_b32 v{vSTAMP}, s{sSTMP}, {n}")]
def STAMP(name=''):
    P.ins += stamp_ins(name)
def PST(name):
    if OPT['PST']: STAMP(name)

frags = []
chunks = []
def add_chunk(name, lo, size, dma, private=False):
    chunks.append(dict(name=name, lo=lo, hi=lo+size, dma=dma, private=private, first=None, last=None)); return len(chunks)-1
def add_frag(kind, rs, rb, addr, mf, ch):
    frags.append(dict(kind=kind, rb=rb, rs=rs, addr=addr, mf=mf, chunk=ch))
    c = chunks[ch]
    if c['first'] is None: c['first'] = len(frags)-1
    c['last'] = len(frags)-1
def frag_reads(f):
    fr = frags[f]; A = aF + 4*(f % NA)
    def rd(op, dst, addr):
        win = addr >> 16
        return I(f"{op} {dst}, v{fr['rb'] + win*fr['rs']} offset:{addr & 0xffff}", tag=('f', f))
    if fr['kind'] == 'tr':
        return [rd("ds_read_b64_tr_b16", a(A, 2), fr['addr']), rd("ds_read_b64_tr_b16", a(A+2, 2), fr['addr'] + 2048)]
    return [rd("ds_read_b128", a(A, 4), fr['addr'])]
POL = {sW1: 'PW1', sWQ: 'PWQ', sKK: 'PKV', sVV: 'PKV', sWO: 'PWO', sW2: 'PW2'}
ring_pos = [7]
def ring_round(name, srd_b, vbase, so_text, private=False):
    slot = ring_pos[0] % RING_SLOTS; ring_pos[0] += 1
    lo = slot*SLOT
    tag = ('c', len(chunks))
    dma = [I(f"s_add_u32 m0, s{sWB}, {lo}")]
    if so_text.startswith('s') or so_text == '0': so = so_text
    elif so_text.startswith('+'):
        dma.append(I(f"s_add_u32 s{sSO}, {so_text[1:]}")); so = f"s{sSO}"
    else:
        dma.append(I(f"s_mov_b32 s{sSO}, {so_text}")); so = f"s{sSO}"
    for rb in range(4):
        dma.append(I(f"buffer_load_dwordx4 v{vbase+rb}, {srd(srd_b)}, {so} offen offset:{rb*1024} {OPT[POL[srd_b]]} lds", tag=tag))
    return add_chunk(name, lo, SLOT, dma, private)

phase = {}
def xn(ks, tg): return vXN + (ks*2 + tg)*4
def accp(pp, kq, tg, par): return vR + (pp % 2)*32 + ((kq*2 + tg)*2 + par)*4
pend_ = []
for pp in range(6):
    phase[f'P{pp}'] = len(frags)
    for ks in range(14):
        qi = 14*pp + ks
        if qi % 4 == 0:
            r_ = qi // 4
            blk_, rp = r_ // 7, r_ % 7
            R_ = 32*(8192 if blk_ < 2 else 3584); sb = sW1T + (0 if blk_ < 2 else 2); cb_ = 256 if blk_ == 1 else 0
            so_ = f"+s{sb+1}, {cb_}" if rp == 3 else f"+s{sb}, {(4*rp*R_ if rp < 3 else (4*rp-14)*R_ + 128) + cb_}"
            ch = ring_round(f"wq_{r_}", sWQ, vWQ, so_) if r_ < 14 else ring_round(f"w1_{r_-14}", sW1, vW1D, so_)
        pend_.append((ks, qi, ch))
        if OPT['PCH'] == 1 and ks % 2 == 0: continue
        if OPT['PCH'] == 2 and not (qi % 4 == 3 or ks == 13): continue
        for u in range(4):
            for ks_, qi_, ch_ in pend_:
                mf = (lambda A, pp=pp, ks=ks_, u=u: [mfma(v(accp(pp, u >> 1, tg, u & 1), 4), A, v(xn(ks, tg), 4), "0" if ks == 0 else v(accp(pp, u >> 1, tg, u & 1), 4)) for tg in range(2)])
                add_frag('tr', 4, vTR + u, chunks[ch_]['lo'] + (qi_ % 4)*4096, mf, ch_)
        pend_ = []
def qf(kq, tg): return aQ + (kq*2 + tg)*4
def Sreg(st, tg, kt): return vS + (st % 2)*16 + tg*8 + kt*4
def Preg(st, tg): return vP + (st % 2)*8 + tg*4
def Oreg(d, tg): return vO + (((d >> 1)*2 + tg)*2 + (d & 1))*4
def G2(st):
    phase[f'G2_{st}'] = len(frags)
    ch = ring_round(f"K_{st}", sKK, vKD, str(st*16384))
    order = [(kt, ks) for kt in range(2) for ks in range(8)]
    for kt, ks in order:
        def mf(A, kt=kt, ks=ks):
            r = []
            for tg in range(2):
                c = v(Sreg(st, tg, kt), 4)
                if ks == 0: c = "0" if st < 1 else v(vC + 4*tg, 4)
                r.append(mfma(v(Sreg(st, tg, kt), 4), A, a(qf(ks, tg), 4), c))
            return r
        add_frag('b128', 2, vRA + (ks & 1), chunks[ch]['lo'] + (ks >> 1)*4096 + kt*2048, mf, ch)
def G3(st):
    phase[f'G3_{st}'] = len(frags)
    ch = ring_round(f"V_{st}", sVV, vVD, str(st*16384))
    for d in range(16):
        mf = (lambda A, d=d: [mfma(v(Oreg(d, tg), 4), A, v(Preg(st, tg), 4), "0" if st == 0 else v(Oreg(d, tg), 4)) for tg in range(2)])
        add_frag('tr', 4, vTR + (d & 3), chunks[ch]['lo'] + (d >> 2)*4096, mf, ch)
G2(0)
for st in range(15):
    G2(st + 1); G3(st)
G3(15)
phase['AEND'] = len(frags)
def acc4(p, u, tg): return hole(8 + ((u >> 1)*2 + tg)*2 + (u & 1))
def Opk(ks, tg): return vO + (ks*2 + tg)*8
def hole(i): return vO + 8*i + 4
def hreg(kk, t4):
    i = kk*4 + t4
    if i < 32: return a(aH + 4*i, 4)
    if i < 48: return a(aQ + 4*(i-32), 4)
    return v(hole(i-48), 4)
def facc(u, t4):
    return vA4 + 4*(u*4 + t4)
vTP = 108
G6P = OPT['G6P']
assert len(G6P) == 14
kk = 0
NU = OPT['NU']
def g6step(kk):
    ks_ = [kk] if kk < 14 - NU else list(range(14 - NU, 14))
    if kk > ks_[0]: return
    for k2 in ks_: phase[f'G6_{k2}'] = len(frags)
    chs_ = {k2: ring_round(f"w2_{k2}", sW2, vW2D, str(k2*32*896), private=True) for k2 in ks_}
    for u in range(4):
        for k2 in ks_:
            mf = (lambda A, kk=k2, u=u: [mfma(v(facc(u, t4), 4), A, hreg(kk, t4), "0" if kk == 0 else v(facc(u, t4), 4)) for t4 in range(4)])
            add_frag('tr', 4, vTP + u, chunks[chs_[k2]]['lo'], mf, chs_[k2])
while kk < OPT['NO']: g6step(kk); kk += 1
phase['G4'] = len(frags)
for p in range(7):
    phase[f'G4p{p}'] = len(frags)
    chs = [ring_round(f"wo_{p}_{h_}", sWO, vWOD, f"s{sQT+p}" if h_ == 0 else f"+s{sQT+p}, {4*32*896}") for h_ in range(2)]
    for u in range(4):
        for ks in range(8):
            ch = chs[ks // 4]
            mf = (lambda A, p=p, ks=ks, u=u: [mfma(v(acc4(p, u, tg), 4), A, v(Opk(ks, tg), 4), "0" if ks == 0 else v(acc4(p, u, tg), 4)) for tg in range(2)])
            add_frag('tr', 4, vTR + u, chunks[ch]['lo'] + (ks % 4)*4096, mf, ch)
    if p == 6: phase['G6'] = len(frags); NPOST = 14 - kk
    while kk < 14 and int(G6P[kk]) == p:
        g6step(kk)
        kk += 1
assert kk == 14
NF = len(frags)
phase['END'] = NF

MF = [fr['mf'](a(aF + 4*(f % NA), 4)) for f, fr in enumerate(frags)]
if OPT['CHAIN']:
    for f0 in range(0, NF, 4):
        nm_ = chunks[frags[f0]['chunk']]['name']
        isP = nm_[:2] in ('wq', 'w1')
        if nm_.startswith('K_') or nm_.startswith('wo_') or (OPT['PCH'] and isP):
            if OPT['SNAKE'] & 1:
                t0 = (f0 // 4) % 2
                fl = [MF[f0+k_][t0] for k_ in range(4)] + [MF[f0+k_][1-t0] for k_ in (3, 2, 1, 0)]
                ops = [re.match(r'(\S+) (\S+), (\S+), (\S+), (\S+)$', m_).groups() for m_ in fl]
                init = {o_[1]: o_[4] for o_ in ops if o_[4] != o_[1]}
                seen = set(); fl = []
                for o_ in ops:
                    c_ = init[o_[1]] if (o_[1] in init and o_[1] not in seen) else o_[1]
                    seen.add(o_[1]); fl.append(f"{o_[0]} {o_[1]}, {o_[2]}, {o_[3]}, {c_}")
            else:
                fl = [MF[f0+k_][tg] for tg in range(2) for k_ in range(4)]
            for k_ in range(4): MF[f0+k_] = fl[2*k_:2*k_+2]
        elif OPT['SNAKE'] & 2:
            for k_ in (1, 3): MF[f0+k_] = MF[f0+k_][::-1]
G0 = [0]
for f in range(NF): G0.append(G0[-1] + len(MF[f]))
NG = G0[-1]
def gap(f): return G0[max(0, min(f, NF))]
pre = [[] for _ in range(NG)]
rds = [[] for _ in range(NG)]
ext = [[] for _ in range(NG)]
blk = {}
for g in range(NF):
    if g + D < NF:
        r = frag_reads(g + D)
        n = len(MF[g])
        rds[G0[g]].append(r[0])
        if len(r) > 1: rds[G0[g] + n//2].append(r[1])
def cost(i):
    if i.cls in ('ds',): return 8
    if i.cls == 'vmem': return 24 if 'store' in i.op and 'x4' in i.op else 8
    if i.cls in ('trans', 'perm'): return 8
    if i.cls == 'label': return 0
    return 4
def gtime(items):
    t = 4
    for i in items:
        if i.cls in VALU_LIKE: t = max(t, 8)
        t += cost(i)
    return t
def fits(gp, i): return gtime(pre[gp] + rds[gp] + ext[gp] + [i]) <= 16
def place(seq, g0, g1=None):
    seq = [I(s) if isinstance(s, str) else s for s in seq]
    g1 = NG if g1 is None else min(g1, NG)
    gp = g0; n = len(seq)
    for k, ins in enumerate(seq):
        bound = max(min(g0 + ((k + 1) * (g1 - g0)) // n - 1, g1 - 1), gp)
        best = None
        for q in range(gp, bound + 1):
            if fits(q, ins): best = q; break
        if best is None:
            best = min(range(gp, bound + 1), key=lambda q: (gtime(pre[q] + rds[q] + ext[q] + [ins]), q))
        ext[best].append(ins)
        gp = best
    return gp
def spread(seq, g0, g1):
    n = len(seq); cur = g0
    for k, ins in enumerate(seq):
        lo = max(g0 + (k*(g1-g0))//n, cur); hi = max(g0 + ((k+1)*(g1-g0))//n, lo+1)
        cur = place([ins], lo, hi)
    return cur

shared = [c for c in range(len(chunks)) if not chunks[c]['private']]
def is_bar(k_):
    if k_ == 0: return True
    if k_ < 21: return (k_ - 1) % OPT['BARP'] == 0
    if k_ < 53: return (k_ - 21) % OPT['BARA'] == 0
    return (k_ - 53) % OPT['BAR4'] == 0
bar_frags = [chunks[c]['first'] for k_, c in enumerate(shared) if is_bar(k_)]
bar_frags += [phase['G6'], phase['G6'] + D + 1]
bar_frags = sorted(set(bar_frags))
bar_gap = []
first_need = None
for bi, f0 in enumerate(bar_frags):
    f1 = bar_frags[bi+1] if bi + 1 < len(bar_frags) else NF
    need = [('c', c) for c in shared if f0 <= chunks[c]['first'] < f1]
    if f0 == 0: first_need = need; continue
    gp = gap(f0 - D); bar_gap.append(gp)
    if need: ext[gp-1].append(mk_wait_vm(need))
    pre[gp].append(I("s_barrier" if not (OPT['NOBARR'] and gp < gap(phase['AEND']) - 40) else "s_nop 0"))
for c in range(len(chunks)):
    if chunks[c]['private']:
        ext[gap(chunks[c]['first'] - D) - 1].append(mk_wait_vm([('c', c)]))
for g in range(4, NF, 4):
    ext[gap(g) - 1].append(mk_wait_lg([('f', f) for f in range(g, min(g+4, NF))]))
def earliest_gap(c):
    e = -1
    C = chunks[c]
    for c2 in range(c):
        B = chunks[c2]
        if B['hi'] <= C['lo'] or C['hi'] <= B['lo']: continue
        if B['private']: e = max(e, gap(B['last'] + 1))
        else: e = max(e, [gp for gp in bar_gap if gp >= gap(B['last'] + 1)][0] + 1)
    return e
pro_dma = []
cur = OPT['DSTART']
for c in range(len(chunks)):
    e = earliest_gap(c)
    if e < 0 and c < OPT['NPRO']:
        pro_dma.append(chunks[c]['dma']); continue
    if chunks[c]['name'].startswith('w2_') and int(chunks[c]['name'][3:]) >= OPT['W2PRE']: e = max(e, gap(phase['G6']) + OPT['W2G'])
    g0 = max(e, cur)
    span = OPT['SPAN']
    if g0 > e + 8: span = OPT['SPAN2']
    if g0 >= gap(phase['G6'] - D): span = OPT['W2S']
    seq = list(chunks[c]['dma'])
    if chunks[c]['name'] == 'wo_0_0': seq = [I(f"v_accvgpr_read_b32 v{vWOD+i}, a{aST+i}") for i in range(4)] + seq; wo_first_gap = g0
    if chunks[c]['name'] == 'w2_0': seq = [I(f"v_accvgpr_read_b32 v{vW2D+i}, a{aST+4+i}") for i in range(4)] + seq
    cur = spread(seq, g0, g0 + span)
    need_gap = gap(chunks[c]['first'] - D)
    if not chunks[c]['private']: need_gap = max(gp for gp in bar_gap if gp <= need_gap)
    if OPT['LOG']: print(chunks[c]['name'], g0, cur, need_gap, 'lead', need_gap - cur, file=sys.stderr)
    assert cur < need_gap - 1, (chunks[c]['name'], cur)

seq = []
for p in range(7):
    seq += [f"s_add_u32 s{sT2}, s{sROT}, {p}", f"s_sub_u32 s{sT3}, s{sT2}, 7", f"s_min_u32 s{sT2}, s{sT2}, s{sT3}",
            f"s_lshl_b32 s{sQT+p}, s{sT2}, 7", f"s_lshl_b32 s{sT2}, s{sT2}, 16", f"s_add_u32 s{sQT+7+p}, s{sSST}, s{sT2}",
            f"s_add_u32 s{sSST}, s{sSST}, s{sSTEP}"]
spread(seq, 6, 100)
assert gap(phase['G3_8']) < wo_first_gap
assert OPT['BAR'] == 2
place([f"v_add_u32 v{vTP+i}, s{sWB}, v{vTR+i}" for i in range(12)], gap(phase['G3_12']), gap(phase['G3_14']))

def hconv(pp):
    s = []
    for kq in range(2):
        for tg in range(2):
            b = accp(pp, kq, tg, 0)
            if not OPT['PKR']:
                for r in range(8): s.append(f"v_max_f32 v{b+r}, 0, v{b+r}")
            for r in range(4): s.append(f"v_cvt_pk_bf16_f32 v{b+r}, v{b+2*r}, v{b+2*r+1}")
            if OPT['PKR']:
                for r in range(4): s.append(f"v_pk_max_i16 v{b+r}, v{b+r}, 0")
            if not OPT['NOHST']:
                s.append(I(f"buffer_store_dwordx4 {v(b,4)}, v{vHS}, {srd(sWS)}, s{sHST} offen offset:{kq*2048 + tg*1024} {OPT['HST']}", tag='hst'))
    if pp == 4: s.append(f"s_add_u32 s{sHST}, s{sHST}, 4096")
    return s
place(hconv(4), gap(phase['P5']) + 4, gap(phase['G2_0']) - 4)
def qconv(pp):
    s = []
    for kq in range(2):
        for tg in range(2):
            b = accp(pp, kq, tg, 0)
            s += [f"v_cvt_pk_bf16_f32 v{b+r}, v{b+2*r}, v{b+2*r+1}" for r in range(4)]
            s += [f"v_permlane32_swap_b32 v{b}, v{b+2}", f"v_permlane32_swap_b32 v{b+1}, v{b+3}",
                  f"v_permlane16_swap_b32 v{b}, v{b+2}", f"v_permlane16_swap_b32 v{b+1}, v{b+3}"]
            s += [f"v_accvgpr_write_b32 a{qf(2*pp+kq, tg)+r}, v{b+r}" for r in range(4)]
    return s
for pp in range(4):
    g0 = gap(phase[f'P{pp+1}'])
    place(qconv(pp), g0 + 4, g0 + 2*56 - 4)

def allred(r, t, op):
    return [f"v_mov_b32 v{t}, v{r}", f"v_permlane32_swap_b32 v{r}, v{t}", f"{op} v{r}, v{r}, v{t}",
            f"v_mov_b32 v{t}, v{r}", f"v_permlane16_swap_b32 v{r}, v{t}", f"{op} v{r}, v{r}, v{t}"]
def interleave(*seqs):
    out = []
    for k in range(max(len(s) for s in seqs)):
        for s in seqs:
            if k < len(s): out.append(s[k])
    return out
def svals(st): return [Sreg(st, tg, kt) + r for tg in range(2) for kt in range(2) for r in range(4)]
g0 = gap(phase['G2_0'])
seqs = []
for tg in range(2):
    b = Sreg(0, tg, 0); m = vM + 2*tg; t = m + 1
    s = [f"v_max3_f32 v{m}, v{b}, v{b+1}, v{b+2}", f"v_max_f32 v{m}, v{m}, v{b+3}"] + allred(m, t, "v_max_f32")
    s += [f"v_sub_f32 v{vC+4*tg+r}, 0, v{m}" for r in range(4)]
    seqs.append(s)
seq = interleave(*seqs) + [f"v_mov_b32 v{vLS}, 0", f"v_mov_b32 v{vLS+1}, 0"]
gm = place(seq, g0 + 19, g0 + 31)
def sm_seq(st, sub):
    s = []
    vals = svals(st)
    for k_, r in enumerate(vals):
        tg = k_ // 8
        if sub: s.append(f"v_add_f32 v{r}, v{r}, v{vC+4*tg}")
        s.append(f"v_exp_f32 v{r}, v{r}")
        if k_ % 2 == 1 and k_ >= 3:
            kk = k_ - 3
            s.append(f"v_cvt_pk_bf16_f32 v{Preg(st, kk//8) + (kk % 8)//2}, v{vals[kk]}, v{vals[kk+1]}")
    s.append(f"v_cvt_pk_bf16_f32 v{Preg(st, 1) + 3}, v{vals[14]}, v{vals[15]}")
    return s
def add_seq(st):
    vals = svals(st)
    return interleave([f"v_add_f32 v{vLS}, v{vLS}, v{r}" for r in vals[:8]], [f"v_add_f32 v{vLS+1}, v{vLS+1}, v{r}" for r in vals[8:]])
for st in range(16):
    g3 = gap(phase[f'G3_{st}'])
    if st == 0:
        ge = place(sm_seq(st, True), gap(phase['G2_1']) + 3, g3 - 1)
    elif st < 15:
        gs = gap(phase[f'G2_{st+1}'] - D)
        ge = place(sm_seq(st, False), gs, g3 - 2)
    else:
        ge = place(sm_seq(st, False), gap(phase['G3_14']) + 4, g3 - 2)
    lim = gap(phase[f'G2_{st+2}']) - 2 if st + 2 < 16 else g3 + 14
    ga = place(add_seq(st), ge, lim)
seqs = []
for tg in range(2):
    l = vLS + tg; t = vM + tg
    seqs.append(allred(l, t, "v_add_f32") + [f"v_rcp_f32 v{vRC+tg}, v{l}"])
seq = interleave(*seqs) + [f"v_add_f32 v{vM}, v{vLS}, v{vLS+1}", f"s_mov_b32 s{sT0}, {hx(f2u(2.0**24 if not OPT['FORCEFB'] else 0.5))}", f"v_cmp_ngt_f32 vcc, s{sT0}, v{vM}"]
place(seq, ga, gap(phase['AEND']) - 1)

hc = hconv(5)
n3 = 3*len(hc)//4
place(hc[:n3], gap(phase['G2_0']) + 3, gap(phase['G2_0']) + 19)
gend = place(hc[n3:], gap(phase['G3_0']), gap(phase['G3_0']) + 16)
assert accp(5, 1, 1, 0) >= Oreg(10, 0)
hb = [gp for gp in bar_gap if gp > gend + OPT['HSIG']][0]
ext[hb-1].append(mk_wait_vm(['hst']))
sig = [I(f"s_cmp_lg_u32 s{sW}, 0"), I("s_cbranch_scc1 L_nosig"), I(f"s_lshl_b32 s{sT0}, s{sT}, 4"), I(f"v_mov_b32 v{vPOLL}, s{sT0}"),
       I("s_mov_b64 exec, 1"), I(f"global_atomic_add v{vPOLL}, v{vONE}, {DBGP} sc1"), I("s_mov_b64 exec, -1"), I("L_nosig:")]
sig[5].cls = 'misc'
ext[hb+1] += sig

def dump(regs_list):
    r = [I("s_nop 15"), I(f"s_lshl_b32 s{sT0}, s{sT}, 4"), I(f"s_add_u32 s{sT0}, s{sT0}, s{sHD}"),
         I(f"s_lshl_b32 s{sT0}, s{sT0}, 2"), I(f"s_add_u32 s{sT0}, s{sT0}, s{sW}"),
         I(f"s_mul_i32 s{sT0}, s{sT0}, {32*1024}"), I(f"s_add_u32 s{sT0}, s{sT0}, {hx(WS_DBG)}")]
    for reg in regs_list:
        r.append(I(f"buffer_store_dwordx4 {reg}, v{vL16}, {srd(sWS)}, s{sT0} offen"))
        r.append(I(f"s_add_u32 s{sT0}, s{sT0}, 1024"))
    r.append(I("s_nop 3"))
    return r
def ocvt(ks): return [f"v_cvt_pk_bf16_f32 v{Opk(ks, tg)+r}, v{Opk(ks, tg)+2*r}, v{Opk(ks, tg)+2*r+1}" for tg in range(2) for r in range(4)]
if OPT['ONORM']:
    def ocvt(ks):
        s = []
        for tg in range(2):
            o = Opk(ks, tg)
            s += [f"v_pk_mul_f32 {v(o+2*r,2)}, {v(o+2*r,2)}, {v(vRC,2)} op_sel:[0,{tg}] op_sel_hi:[1,{tg}]" for r in range(4)]
        for tg in range(2):
            o = Opk(ks, tg)
            s += [f"v_cvt_pk_bf16_f32 v{o+r}, v{o+2*r}, v{o+2*r+1}" for r in range(4)]
        return s
NEARLY = 0 if OPT['ONORM'] else OPT['OEARLY']
g15 = gap(phase['G3_15'])
for ks in range(NEARLY): place(ocvt(ks), g15 + 4*ks + 8, gap(phase['G4']) - 1)
assert NEARLY == 0
b = stamp_ins('attn_done') + [I("s_cbranch_vccnz L_exact"), I("L_exact_ret:")]
NX = OPT['NX'] if OPT['NO'] else 8
for ks in range(NX): b += [I(t_) for t_ in ocvt(ks)]
blk[phase['AEND']] = b
if OPT['NO']:
    seq = []
    for ks in range(NX, 8):
        for tg in range(2):
            o = Opk(ks, tg)
            seq += [f"v_mul_f32 v{o+r}, v{vRC+tg}, v{o+r}" for r in range(8)] + [f"v_cvt_pk_bf16_f32 v{o+r}, v{o+2*r}, v{o+2*r+1}" for r in range(4)]
    ONSEQ = seq
    b = []
if OPT['DUMP'] == 'o': b += dump([v(Opk(ks, tg), 4) for ks in range(8) for tg in range(2)])
if OPT['DUMP'] == 'q': b += dump([a(qf(ks, tg), 4) for ks in range(8) for tg in range(2)])
b += stamp_ins('G4')
blk[phase['G4']] = b

def sconv(p, u):
    s = []
    for tg in range(2):
        b = acc4(p, u, tg); d = acc4(p, u & ~1, tg) + 2*(u & 1)
        if not OPT['ONORM']: s += [f"v_mul_f32 v{b+r}, v{vRC + tg}, v{b+r}" for r in range(4)]
        s += [f"v_cvt_pk_bf16_f32 v{d}, v{b}, v{b+1}", f"v_cvt_pk_bf16_f32 v{d+1}, v{b+2}, v{b+3}"]
        if u & 1:
            if (u, tg) != (1, 0): s.append(f"s_add_u32 s{sQT+7+p}, s{sQT+7+p}, 16384")
            if not OPT['NOSST']: s.append(I(f"buffer_store_dwordx4 {v(acc4(p, u & ~1, tg),4)}, v{vL16}, {srd(sWS)}, s{sQT+7+p} offen {OPT['SST']}", tag=('sst', p)))
    return s
g4 = gap(phase['G4'])
for p in range(7):
    for u in range(4):
        g0 = gap(phase[f'G4p{p}']) + 16*(u+1)
        if u == 3 and p < 6: gl = place(sconv(p, u), g0 + 3, g0 + 28)
        else: gl = place(sconv(p, u), g0 + 3, g0 + (19 if (p, u) != (6, 3) else 10))
last_store_gap = gl
hs = OPT['HSTEP']
gp0 = gap(phase[f'G3_{hs-1}']) - 30
place([f"s_lshl_b32 s{sT0}, s{sTC}, 4", f"v_mov_b32 v{vPOLL}, s{sT0}", I(f"global_load_dword v{vPOLL}, v{vPOLL}, {DBGP} sc1", tag='pollh'),
       f"v_add_u32 v{vHS}, s{sCOOB}, v{vL16}"], gp0, gp0 + 24)
gp1 = gap(phase[f'G3_{hs}'])
ext[gp1] += [mk_wait_vm(['pollh']), I(f"v_cmp_gt_u32 vcc, 16, v{vPOLL}"), I("s_cbranch_vccnz L_spinh"), I("L_spinh_ret:")]
sHB = 98
def hloads(k0, k1):
    s = []
    for kk in range(k0, k1, 2):
        for j in range(4):
            s.append(f"s_add_u32 s{sT0}, s{sHB+j}, {kk*2048}")
            for k2 in range(2):
                s.append(I(f"buffer_load_dwordx4 {hreg(kk+k2, j)}, v{vHS}, {srd(sWS)}, s{sT0} offen offset:{k2*2048} {OPT['HLD']}", tag='hld'))
    return s
seq = []
for j in range(4):
    seq += [f"s_add_u32 s{sT2}, s{sW}, {j}", f"s_bfe_u32 s{sT3}, s{sT2}, 0x10001", f"s_mul_i32 s{sT3}, s{sT3}, {56*2048}", f"s_and_b32 s{sT2}, s{sT2}, 1",
            f"s_lshl_b32 s{sT2}, s{sT2}, 10", f"s_add_u32 s{sT2}, s{sT2}, s{sT3}", f"s_add_u32 s{sHB+j}, s{sHLD}, s{sT2}"]
spread(seq, gap(phase['P2']), gap(phase['P3']))
if not OPT['NOHLD']:
    spread(hloads(0, 8), gap(phase[f"G3_{hs+OPT['HPF']}"]) + 2, gap(phase['G3_15']) - OPT['HEND'])
    if OPT['H2X']:
        hl = [I(s_) if isinstance(s_, str) else s_ for s_ in hloads(8, 8 + OPT['H2X'])]
        b_ = blk[phase['AEND']]
        k0 = [k_ for k_, i_ in enumerate(b_) if i_.text == 'L_exact_ret:'][0]
        for k_, i_ in enumerate(hl): b_.insert(k0 + 1 + k_*OPT['H2S'], i_)
    spread(hloads(8 + OPT['H2X'], 14), g4 + OPT['H2A'], g4 + OPT['H2B'])
if OPT['NO']: place(ONSEQ, gap(phase['AEND']) + 1, gap(phase['G4']) - 1)
g6 = gap(phase['G6'])
vFV = 120
def greg(rl, sl):
    i = sl*2 + rl
    if NPOST <= 10: i = (i + 16) % 32
    if i < 16: return v(Opk(0, 0) + 8*i, 4)
    return a(aH + (i - 16)*4, 4)
assert OPT['CA'] > 0 or (NPOST <= 10 and g6 + OPT['CA'] > gap(phase['G6_3'] + 4))
def gloads(s0, s1, va):
    s = []
    for sq in range(s0, s1, 2):
        for rl in range(2):
            s.append(I(f"s_add_u32 s{sT1}, s{sSG}, {rl*2*16384 + sq*1024}"))
            for sl in range(sq, sq+2):
                if not OPT['NOG']: s.append(I(f"buffer_load_dwordx4 {greg(rl, sl)}, v{va}, {srd(sWS)}, s{sT1} offen offset:{(sl-sq)*1024} {OPT['GLD']}", tag=('g', rl, sl)))
    return s
F0 = OPT['F0']
sPL = 32
sMISS = 18
F1 = OPT['F1']
place([f"v_and_b32 v{vFV+3}, 15, v0"], g4 + 100, g4 + 200)
def signal(k, n): return [mk_wait_vm([('sst', p) for p in range(n)]), I(f"buffer_store_byte v{vONE}, v{vZ}, {srd(sWS)}, s{sFLG} offen offset:{128*k} sc1", tag='flag')]
spoll = I(f"s_buffer_load_dwordx4 s[{sPL}:{sPL+3}], {srd(sWS)}, s{sFLP} glc"); spoll.cls = 'misc'
VPOLL2 = f"buffer_load_ubyte v{vPOLL}, v{vFV+3}, {srd(sWS)}, s{sFLP} offen offset:256 sc1"
VPOLL = VPOLL2 if F1 == 7 else VPOLL2.replace('offset:256', 'offset:128')
ext[gap(phase[f'G4p{F0-1}']) + 64 + OPT['SA']] += signal(0, F0) + stamp_ins('sigA')
if F1 < 7: ext[gap(phase[f'G4p{F1-1}']) + 64 + OPT['SB']] += signal(1, F1) + stamp_ins('sigB')
ext[g6 + OPT['PA']] += [spoll]
sg = g6 + OPT['SC']
ext[sg] += signal(2, 7) + stamp_ins('st_done') + [I(f"s_cmp_ge_u32 s{sPC}, 14"), I("s_cbranch_scc1 " + ("L_fin" if OPT['STAMP'] == 3 else "L_end"))]
assert sg > bar_gap[-1] and sg > last_store_gap
ext[g6 + OPT['CA']] += stamp_ins('pre_c0') + [I(t_) for t_ in (
    "s_waitcnt lgkmcnt(0)", f"s_and_b64 s[{sPL}:{sPL+1}], s[{sPL}:{sPL+1}], s[{sPL+2}:{sPL+3}]", f"s_and_b32 s{sPL}, s{sPL}, s{sPL+1}",
    f"s_and_b32 s{sPL}, s{sPL}, 0x01010101", f"s_cmp_eq_u32 s{sPL}, 0x01010101", f"s_cselect_b32 s{sMISS}, 0, {hx(OOB)}",
    f"v_add_u32 v{vFV+2}, s{sMISS}, v{vHS}")] + stamp_ins('chk0')
spread(gloads(0, 2*F0, vFV+2), g6 + OPT['CA'] + 1, g6 + OPT['LA'])
ext[g6 + OPT['PB']] += [I(VPOLL, tag='poll')]
NSB = 2*F1 if F1 < 7 else OPT['NSB']
assert OPT['CE'] > max(OPT['PB'], OPT['LA'])
ext[g6 + OPT['CE']] += stamp_ins('pre_c1') + [mk_wait_vm(['poll'])] + [I(t_) for t_ in (f"v_cmp_ne_u32 vcc, 1, v{vPOLL}", "s_cbranch_vccnz L_spin1", "L_spin1_ret:",
    f"s_cmp_lg_u32 s{sMISS}, 0", "s_cbranch_scc1 L_redo", "L_redo_ret:")] + stamp_ins('chk1')
glB = gloads(2*F0, NSB, vHS)
kp = len(glB) - 3*OPT['PCB']
if F1 < 7 and not OPT['P2G']: glB[kp:kp] = [I(VPOLL2, tag='poll2')]
spread(glB, g6 + OPT['CE'] + 1, min(g6 + OPT['LB'], NG - 4))
glC = gloads(NSB, 16, vHS)
if OPT['P2G']:
    assert OPT['P2G'] >= OPT['LB'] and OPT['PCB'] == 0
    ext[g6 + OPT['P2G']] += [I(VPOLL2, tag='poll2')]
if OPT['C2G']:
    ext[g6 + OPT['C2G']] += stamp_ins('pre_c2') + [mk_wait_vm(['poll2'])] + [I(t_) for t_ in (f"v_cmp_ne_u32 vcc, 1, v{vPOLL}", "s_cbranch_vccnz L_spin2", "L_spin2_ret:")] + stamp_ins('chk2')
    spread(glC, g6 + OPT['C2G'] + 1, NG - 2); glC = []
NYB = 2*(NSB - 2*F0) + (1 if F1 < 7 else 0)

vXF = 32
vAD = 125
nch = len(chunks)
free_ = [c_ for c_ in range(nch - 10, nch - NU) if chunks[c_]['private']]
XK = free_[0]; FS = [chunks[c_]['lo'] for c_ in free_[1:4]]
assert gap(chunks[free_[3]]['last'] + 1) < NG - 16*NU
XS = chunks[XK]['lo']
gx_ = max(gap(chunks[XK]['last'] + 1), cur + 1, g6 + OPT['XG'])
gx2 = place([f"v_accvgpr_read_b32 v{vAD}, a{aST+8}", f"s_add_u32 m0, s{sWB}, {XS}", f"s_movk_i32 s{sSV0}, {8*896 - 1024}", f"s_movk_i32 s{sSV1}, {8*896}",
       I(f"buffer_load_dwordx4 v{vAD}, {srd(sX)}, 0 offen lds", tag='xf'), I(f"buffer_load_dwordx4 v{vAD}, {srd(sX)}, s{sSV0} offen offset:1024 lds", tag='xf'),
       f"v_and_b32 v{vT3}, 15, v0", f"v_lshlrev_b32 v{vT3}, 7, v{vT3}", f"v_lshrrev_b32 v{vT4}, 4, v0", f"v_lshl_add_u32 v{vT3}, v{vT4}, 3, v{vT3}",
       f"s_add_u32 s{sSV2}, s{sWB}, {XS}", f"v_add_u32 v{vT3}, s{sSV2}, v{vT3}", f"v_lshrrev_b32 v{vT4}, 3, v0", f"v_lshl_add_u32 v{vT4}, v{vT4}, 4, v{vL16}", f"v_add_u32 v{vT4}, s{sSV2}, v{vT4}",
       f"v_and_b32 v{vPF}, 15, v0", f"v_lshl_add_u32 v{vPF}, v{vPF}, 4, v{vT3}"], gx_, gx_ + 30)
vSEL = 108
def vsa(u): return hole(8 + u)
vXU = 8
seq = [f"v_mov_b32 v{vSEL}, 0", f"v_mov_b32 v{vSEL+1}, 0", f"v_mov_b32 v{vSEL+4}, 0", f"v_mov_b32 v{vSEL+5}, 0", f"v_mov_b32 v{vT0}, 0x3f80", f"v_mov_b32 v{vSEL+2}, 0x3f800000",
       f"s_or_b64 s[16:17], s[{sM1}:{sM1+1}], s[{sM3}:{sM3+1}]", f"v_cndmask_b32 v{vT0}, v{vT0}, v{vSEL+2}, s[16:17]", f"v_cndmask_b32 v{vT0}, 0, v{vT0}, s[{sMD}:{sMD+1}]",
       f"v_cndmask_b32 v{vSEL+2}, v{vT0}, 0, s[{sM2}:{sM2+1}]", f"v_cndmask_b32 v{vSEL+3}, 0, v{vT0}, s[{sM2}:{sM2+1}]",
              f"v_mov_b32 v24, {hx(f2u(-16.0))}", f"v_mov_b32 v25, {hx(f2u(1.0/CSCALE))}"]
place(seq, NG - 31, NG - 12)
vFW, vFR = 40, 121
FRR = [120, 121, 124]
seq = []
for j in range(1, 4):
    seq += [f"s_add_u32 s{sT2}, s{sWB}, {FS[j-1]}", f"v_add_u32 v{vFW+j-1}, s{sT2}, v{vL16}",
            f"s_sub_u32 s{sT2}, s{sWB}, {j*4096}", f"s_and_b32 s{sT2}, s{sT2}, 0x3000", f"s_add_u32 s{sT2}, s{sT2}, {FS[j-1]}", f"v_add_u32 v{FRR[j-1]}, s{sT2}, v{vL16}"]
place(seq, NG - 16*NU - 30, NG - 16*NU)
def fwrites(u): return [I(f"ds_write_b128 v{vFW+j-1}, {v(facc(u, j), 4)} offset:{u*1024}") for j in range(1, 4)]
for u in range(3):
    ge_ = NG - 4*NU*(3 - u)
    spread(fwrites(u), ge_ + 4, min(ge_ + 4*NU + 3, NG))
seq = [mk_wait_vm(['xf'])] + [I(f"ds_read_b64 {v(vXF + 2*u, 2)}, v{vT3} offset:{u*32}", tag='xr2') for u in range(4)]
place(seq, NG - 44, NG - 34)
seq = [mk_wait_lg(['xr2'])]
for u in range(4):
    xr = vXF + u*2; b2 = vXU + 4*u
    seq += [f"v_lshlrev_b32 v{b2}, 16, v{xr}", f"v_and_b32 v{b2+1}, 0xffff0000, v{xr}", f"v_lshlrev_b32 v{b2+2}, 16, v{xr+1}", f"v_and_b32 v{b2+3}, 0xffff0000, v{xr+1}"]
place(seq, NG - 26, NG)
pass
HX = OPT['HX']; NHG = 16 // HX; NT = 32 // HX
npf = [0]
def pf_addr(nlines, lines_per_row, pitch, k, dst, idx_sgpr, nshare):
    per = nlines // nshare
    s = [f"s_lshl_b32 s{sSO2}, s{sW}, 6", f"s_add_u32 s{sSO2}, s{sSO2}, {k*256}", f"v_add_u32 v{dst}, s{sSO2}, v0",
         f"v_min_u32 v{dst}, {per-1}, v{dst}", f"s_mul_i32 s{sSO2}, s{idx_sgpr}, {per}", f"v_add_u32 v{dst}, s{sSO2}, v{dst}"]
    if lines_per_row is None:
        s += [f"v_lshlrev_b32 v{dst}, 7, v{dst}"]
    else:
        sh = lg(lines_per_row)
        s += [f"v_and_b32 v{vPF}, {lines_per_row-1}, v{dst}", f"v_lshrrev_b32 v{dst}, {sh}, v{dst}",
              f"v_mul_u32_u24 v{dst}, {pitch}, v{dst}", f"v_lshl_add_u32 v{dst}, v{vPF}, 7, v{dst}"]
    return s
def pf_load(srd_b, dst):
    npf[0] += 1
    return I(f"buffer_load_dword a{aST + 10 + npf[0] % 6}, v{dst}, {srd(srd_b)}, 0 offen {OPT['PPF']}", tag='pf')
def pf_seq(srd_b, nlines, lines_per_row, pitch, idx, nshare):
    s = []
    for k in range((nlines // nshare + 255) // 256):
        s += pf_addr(nlines, lines_per_row, pitch, k, vPF+1, idx, nshare) + [pf_load(srd_b, vPF+1)]
    return s
vLQ = 26
def pf_pieces(srd_b, per, unit, idx, extra_base=None, pol='', rot=False):
    setup = [f"s_mul_i32 s{sSO2}, s{idx}, {per}", f"v_add_u32 v{vPF+1}, s{sSO2}, v{vLQ}", f"v_mul_u32_u24 v{vPF+1}, {unit}, v{vPF+1}"]
    if extra_base is not None: setup.append(f"v_add_u32 v{vPF+1}, s{extra_base}, v{vPF+1}")
    pcs = []
    for k in range((per + 63)//64):
        npf[0] += 1
        n_ = (per + 63)//64
        if rot and k == 0: so_ = [f"s_lshr_b32 s{sSO2}, s{sTC}, 1", f"s_sub_u32 s{sCNT}, s{sSO2}, {n_}", f"s_min_u32 s{sSO2}, s{sSO2}, s{sCNT}", f"s_mul_i32 s{sSO2}, s{sSO2}, {64*unit}"]
        elif rot: so_ = [f"s_add_u32 s{sSO2}, s{sSO2}, {64*unit}", f"s_sub_u32 s{sCNT}, s{sSO2}, {n_*64*unit}", f"s_min_u32 s{sSO2}, s{sSO2}, s{sCNT}"]
        else: so_ = [f"s_mov_b32 s{sSO2}, {k*64*unit}"]
        pcs.append(so_ + [I(f"buffer_load_dword a{aST + 9 + npf[0] % 7}, v{vPF+1}, {srd(srd_b)}, s{sSO2} offen {pol}", tag='pf')])
    return setup, pcs
def pf_run(streams, g0, g1):
    items = []
    for st_ in streams:
        su, pcs = st_
        for k, p_ in enumerate(pcs): items.append((su if k == 0 else []) + p_)
    n = len(items)
    for k, it_ in enumerate(items):
        lo = g0 + (k*(g1-g0))//n
        place(it_, lo, lo + 24)
if OPT['PF']:
    place([f"v_lshrrev_b32 v{vLQ}, 2, v0", f"s_lshl_b32 s{sSO2}, s{sW}, 4", f"v_add_u32 v{vLQ}, s{sSO2}, v{vLQ}"], 100, 130)
    if not OPT['BIG'] & 2 and not OPT['NOPF2'] & 4: pf_run([pf_pieces(sKK, 2048//(2*NT), 128, sKVI, pol=OPT['PPF']), pf_pieces(sVV, 2048//(2*NT), 128, sKVI, pol=OPT['PPF'])], OPT['PFG'], gap(phase['P4']))
    if not OPT['NOPF2'] & 1: pf_run([pf_pieces(sWO, 1792//16, 128, sT) if OPT['WOM'] else pf_pieces(sWO, 1792//NT, 128, sTL), (lambda z: (z[0], z[1][:OPT['W2N']]))(pf_pieces(sW2, 448, 896, sW2I, rot=OPT['W2ROT']))], gap(phase[f"G3_{OPT['PF0']}"]), gp1 if OPT['PF1'] == 0 else gap(phase[f"G3_{OPT['PF1']}"]))
    vPF += -20
    sSO2 = sT3
    if not OPT['NOPF2'] & 2: pf_run([pf_pieces(sWS, 256, 128, sCC, sHPF, 'sc1')], gp1 + 2, gap(phase[f"G3_{hs+OPT['HPF']}"]) - 20)
    vPF += 20
    sSO2 = 93

if OPT['STLB'] == 2:
    for k_, (b_, o_) in enumerate(((sKK, '0'), (sVV, '0'), (sW2, '0'), (sWO, '0'), (sWS, f's{sHST}'), (sWS, f's{sQT+7}'), (sOUT, '0'))):
        i_ = I(f"s_buffer_load_dword s{sCNT}, {srd(b_)}, {o_}"); i_.cls = 'misc'; i_.dst = []
        place([i_], OPT['ST0'] + k_*OPT['STS'], OPT['ST0'] + k_*OPT['STS'] + 8)
if OPT['CPF'] and not OPT['STAMP']:
    gc = gap(phase[OPT['CPF']])
    place([f"s_lshr_b32 s{sT2}, s0, 3", f"s_lshl_b32 s{sT2}, s{sT2}, 10", f"s_add_u32 s{sT2}, s{sT2}, 0x8000", f"v_and_b32 v{vT2}, 7, v0", f"v_lshlrev_b32 v{vT2}, 7, v{vT2}",
           f"v_add_u32 v{vT2}, s{sT2}, v{vT2}", I(f"global_load_dword a{aST+9}, v{vT2}, s[26:27]", tag='pf')], gc, gc + 30)
if OPT['TLB']:
    gt = gap(phase[OPT['TLBP']])
    seq = []
    if OPT['TLB'] & 1: seq += [f"v_accvgpr_read_b32 v{vT1}, a{aST+8}", f"v_readfirstlane_b32 s{sT2}, v{vT1}", "s_nop 0", "s_nop 0", I(f"buffer_load_dword a{aST+9}, v{vZ}, {srd(sOUT)}, s{sT2} offen", tag='pf')]
    if OPT['TLB'] & 2: seq += [I(f"buffer_load_dword a{aST+9}, v{vZ}, {srd(sWS)}, s{sQT+7} offen sc1", tag='pf')]
    if OPT['TLB'] & 4: seq += [I(f"buffer_load_dword a{aST+9}, v{vZ}, {srd(sWS)}, s{sSG} offen sc1", tag='pf'), ]
    spread(seq, gt, gt + 40)
    if OPT['TLB'] & 8: place([I(f"buffer_load_dword a{aST+9}, v{vZ}, {srd(sWS)}, s{sHST} offen sc1", tag='pf')], gap(phase['P3']), gap(phase['P3']) + 20)
if OPT['FINE'] == 1:
    for p in range(1, 7): blk[phase[f'G4p{p}']] = stamp_ins(f'G4p{p}')
if OPT['FINE'] == 2:
    for nm in ['P1', 'P3', 'P5'] + [f'G2_{s_}' for s_ in range(1, 16) if s_ % 4] + ['G3_14', 'G3_15']:
        blk[phase[nm]] = stamp_ins(nm)
if OPT['STAMP'] or OPT['WAITAT']:
    for nm in ('P0', 'P2', 'P4', 'G2_0', 'G2_4', 'G2_8', 'G2_12', 'G6'):
        blk.setdefault(phase[nm], [])
        blk[phase[nm]] = stamp_ins(nm) + blk[phase[nm]]

E(f"""
s_cmp_ge_u32 s2, 256
s_cbranch_scc1 L_end
s_load_dwordx16 s[4:19], s[0:1], 0
s_load_dwordx4 s[20:23], s[0:1], 64
s_load_dwordx2 s[24:25], s[0:1], 80
""")
if OPT['STAMP'] or OPT['WAITAT']: E("s_memtime s[98:99]\ns_memrealtime s[100:101]")
E(f"""
v_lshrrev_b32 v{vT0}, 6, v0
v_and_b32 v0, 63, v0
s_and_b32 s{sT0}, s2, 7
v_readfirstlane_b32 s{sW}, v{vT0}
s_lshr_b32 s{sT1}, s2, 3
s_and_b32 s{sT2}, s{sT0}, {NHG-1}
s_lshl_b32 s{sT2}, s{sT2}, {lg(HX)}
s_and_b32 s{sHD}, s{sT1}, {HX-1}
s_add_u32 s{sHD}, s{sHD}, s{sT2}
s_lshr_b32 s{sT2}, s{sT0}, {lg(NHG)}
s_lshl_b32 s{sT2}, s{sT2}, {lg(NT)}
s_lshr_b32 s{sTL}, s{sT1}, {lg(HX)}
s_add_u32 s{sT}, s{sTL}, s{sT2}
s_lshl_b32 s{sWB}, s{sW}, 12
""")
CODE_LINES = 512
E(f"s_lshr_b32 s{sCNT}, s2, 3")
for t_ in pf_addr(CODE_LINES, None, 0, 0, vR+80, sCNT, 32): E(t_)
E(f"""
s_getpc_b64 s[26:27]
L_pc:
global_load_dword v{vR+96}, v{vR+80}, s[26:27]
""")
E(f"""
v_lshrrev_b32 v{vT3}, 3, v0
v_and_b32 v{vT4}, 7, v0
v_lshrrev_b32 v{vT1}, 1, v{vT3}
v_xor_b32 v{vT1}, v{vT1}, v{vT4}
v_lshlrev_b32 v{vT1}, 4, v{vT1}
v_xor_b32 v{vT2}, 64, v{vT1}
s_lshl_b32 s{sT1}, s{sT}, 2
s_add_u32 s{sT1}, s{sT1}, s{sW}
s_mul_i32 s{sT1}, s{sT1}, {32*896}
v_mul_u32_u24 v{vT0}, 896, v{vT3}
v_add_u32 v{vT0}, s{sT1}, v{vT0}
v_add_u32 v{vXD}, v{vT0}, v{vT1}
v_add_u32 v{vXD+1}, v{vT0}, v{vT2}
v_add_u32 v{vXD+2}, {2*6144}, v{vXD}
v_add_u32 v{vXD+3}, {3*6144}, v{vXD+1}
v_add_u32 v{vXD+1}, 6144, v{vXD+1}
s_mov_b32 m0, s{sWB}
s_mov_b32 s{sSO}, 0
v_min_u32 v{vR+82}, 13, v0
v_subrev_u32 v{vR+83}, 7, v{vR+82}
v_min_u32 v{vR+83}, v{vR+83}, v{vR+82}
v_sub_u32 v{vR+82}, v{vR+82}, v{vR+83}
v_lshlrev_b32 v{vR+82}, 11, v{vR+82}
v_lshl_add_u32 v{vR+82}, v{vR+83}, 7, v{vR+82}
s_mul_i32 s{sT2}, s{sHD}, 896
s_add_u32 s{sT2}, s{sT2}, s{sT1}
s_mov_b32 s{sX+2}, {2048*896}
s_mov_b32 s{sX+3}, 0x00020000
s_waitcnt lgkmcnt(0)
s_mov_b32 s{sX}, s4
s_mov_b32 s{sX+1}, s5
""")
if OPT['STAMP']: E(f"v_writelane_b32 v{vSTAMP}, s98, 60\nv_writelane_b32 v{vSTAMP}, s100, 61")
if OPT['WAITAT']: E('s_mov_b32 s1, s100')
PST('karg')
def mk_srd(b, plo, off_sgpr, size):
    if off_sgpr is None:
        E(f"s_mov_b32 s{b}, s{plo}\ns_mov_b32 s{b+1}, s{plo+1}")
    else:
        E(f"s_add_u32 s{b}, s{plo}, s{off_sgpr}\ns_addc_u32 s{b+1}, s{plo+1}, 0")
    E(f"s_mov_b32 s{b+2}, {size}\ns_mov_b32 s{b+3}, 0x00020000")
xdma = []
for tg in range(2):
    for q in range(7):
        if q or tg:
            xdma += [I(f"s_add_u32 m0, s{sWB}, {q*SLOT}"), I(f"s_movk_i32 s{sSO}, {q*128}")]
        for rb in (2*tg, 2*tg+1):
            xdma.append(I(f"buffer_load_dwordx4 v{vXD+rb}, {srd(sX)}, s{sSO} offen offset:{rb*1024} {OPT['PX']} lds", tag=('x', tg, q)))
def xissue(n):
    while n > 0 and xdma:
        i_ = xdma.pop(0); P.ins.append(i_)
        if i_.cls == 'vmem': n -= 1
if OPT['XPF']: E(f"buffer_load_dword a{aST+9}, v{vR+82}, {srd(sX)}, s{sT2} offen", tag='pf')
xissue(OPT['XFIRST'])
if OPT['STLB'] >= 3:
    lst = [("s[10:11]", 0), ("s[10:11]", 400*8192), ("s[16:17]", 0), ("s[24:25]", WS_F + 0x10000)]
    if OPT['STLB'] >= 4: lst += [("s[6:7]", 'kv'), ("s[8:9]", 'kv'), ("s[18:19]", 0), ("s[20:21]", 0), ("s[12:13]", 0), ("s[12:13]", 4000*896)]
    for p_, o_ in lst:
        if o_ == 'kv': E(f"s_lshl_b32 s{sCNT}, s{sHD}, 19")
        else: E(f"s_mov_b32 s{sCNT}, {hx(o_)}")
        i_ = I(f"s_load_dword s{sSTEP}, {p_}, s{sCNT}"); i_.dst = []; P.ins.append(i_)
E(f"s_lshl_b32 s{sT0}, s{sHD}, 9\ns_sub_u32 s{sT2}, {448*8192}, s{sT0}")
mk_srd(sWQ, 10, sT0, f"s{sT2}")
if OPT['EPF']:
    for t_ in pf_seq(sWQ, OPT['EPF'], 1, 8192, sT, 16):
        if isinstance(t_, str): E(t_)
        else: P.ins.append(t_)
wqpf = [I(t_) if isinstance(t_, str) else t_ for t_ in pf_seq(sWQ, 448*OPT['WQP'], OPT['WQP'], 8192, sTL, NT)] if OPT['PF'] and OPT['WQP'] else []
if OPT['WQE'] == 1: P.ins += wqpf; wqpf = []
else: P.ins += wqpf[:-1]; wqpf = wqpf[-1:]
xissue(OPT['XSEC'])
PST('x_first')
mk_srd(sOUT, 20, None, 2048*896)
E(f"""
s_lshl_b32 s{sT0}, s{sW}, 7
v_lshlrev_b32 v{vKD}, 9, v{vT3}
v_add_u32 v{vVD}, s{sT0}, v{vKD}
v_add_u32 v{vKD}, v{vVD}, v{vT1}
v_add_u32 v{vKD+1}, v{vVD}, v{vT2}
v_add_u32 v{vKD+2}, {2*3072}, v{vKD}
v_add_u32 v{vKD+3}, {3*3072}, v{vKD+1}
v_add_u32 v{vKD+1}, 3072, v{vKD+1}
v_and_b32 v{vT0}, 6, v{vT3}
v_xor_b32 v{vT0}, v{vT0}, v{vT4}
v_lshlrev_b32 v{vT0}, 4, v{vT0}
v_add_u32 v{vVD}, v{vVD}, v{vT0}
""")
for rb in range(1, 4): E(f"v_add_u32 v{vVD+rb}, {3072*rb}, v{vVD}")
E(f"""
v_and_b32 v{vT1}, {0 if OPT['LNM'] else 4}, v{vT3}
v_add_u32 v{vT1}, v{vT1}, v{vT3}
v_lshl_add_u32 v{vWQ}, v{vT1}, 13, v{vT0}
v_mul_u32_u24 v{vT1}, 3584, v{vT1}
v_add_u32 v{vW1D}, v{vT1}, v{vT0}
""")
for rb in range(1, 4):
    rr = 8*rb if OPT['LNM'] else 16*(rb & 1) + 4*(rb >> 1)
    E(f"v_add_u32 v{vW1D+rb}, {rr*3584 - 1024*rb}, v{vW1D}\nv_add_u32 v{vWQ+rb}, {rr*8192 - 1024*rb}, v{vWQ}")
E(f"""
s_lshl_b32 s{sT1}, s{sHD}, 8
s_sub_u32 s{sT2}, {448*3584}, s{sT1}
s_cmp_lt_u32 s{sHD}, 14
s_cselect_b32 s{sT2}, s{sT2}, 0
s_cselect_b32 s{sT1}, s{sT1}, 0
""")
mk_srd(sW1, 16, sT1, f"s{sT2}")
E(f"s_lshr_b32 s{sT0}, s{sHD}, 1\ns_lshl_b32 s{sT0}, s{sT0}, 20\ns_add_u32 s{sT0}, s{sT0}, {1536*512}")
mk_srd(sKK, 6, sT0, 262144)
mk_srd(sVV, 8, sT0, 262144)
E(f"s_mul_i32 s{sT0}, s{sHD}, {256*896}")
mk_srd(sWO, 12, sT0, 256*896)
E(f"""
s_lshr_b32 s{sPC}, s2, 3
s_and_b32 s{sPC}, s{sPC}, 15
s_cmp_ge_u32 s{sPC}, 7
s_cselect_b32 s{sT3}, 1, 0
s_mul_i32 s{sT1}, s{sT3}, 7
s_sub_u32 s{sT1}, s{sPC}, s{sT1}
s_lshl_b32 s{sT0}, s{sT1}, 7
s_sub_u32 s{sT2}, {1792*896}, s{sT0}
s_cmp_lt_u32 s{sPC}, 14
s_cselect_b32 s{sT2}, s{sT2}, 0
s_cselect_b32 s{sT0}, s{sT0}, 0
""")
mk_srd(sW2, 18, sT0, f"s{sT2}")
if OPT['WSOFF']:
    E(f"s_mov_b32 s{sT0}, {hx(OPT['WSOFF'] << 20)}")
    mk_srd(sWS, 24, sT0, WS_SIZE)
else:
    mk_srd(sWS, 24, None, WS_SIZE)
for k_, R_ in ((0, 32*8192), (2, 32*3584)):
    E(f"""
s_mul_i32 s{sW1T+k_}, s{sW}, {R_}
s_cmp_lt_u32 s{sW}, 2
s_mov_b32 s{sT2}, {hx(128 - 2*R_)}
s_cselect_b32 s{sT0}, {12*R_}, s{sT2}
s_add_u32 s{sW1T+k_+1}, s{sW1T+k_}, s{sT0}
""")
E(f"""
v_mul_u32_u24 v{vT1}, 896, v{vT3}
v_add_u32 v{vT1}, v{vT1}, v{vT0}
s_mul_i32 s{sT0}, s{sW}, {32*896}
s_mul_i32 s{sT2}, s{sW}, {448*896}
""")
for rb in range(4):
    if rb: E(f"v_add_u32 v{vT1}, 6144, v{vT1}")
    E(f"v_add_u32 v{vT2}, s{sT0}, v{vT1}\nv_accvgpr_write_b32 a{aST+rb}, v{vT2}\nv_add_u32 v{vT2}, s{sT2}, v{vT1}\nv_accvgpr_write_b32 a{aST+4+rb}, v{vT2}")
E(f"""
v_lshlrev_b32 v{vL16}, 4, v0
v_lshrrev_b32 v{vT0}, 2, v0
v_lshlrev_b32 v{vT1}, 7, v{vT0}
v_and_b32 v{vT2}, 3, v0
v_lshl_add_u32 v{vT1}, v{vT2}, 3, v{vT1}
v_bfe_u32 v{vT3}, v0, 3, 2
""")
for u in range(4):
    E(f"""
v_xor_b32 v{vT4}, {u}, v{vT3}
v_lshl_add_u32 v{vTR+u}, v{vT4}, 5, v{vT1}
v_add_u32 v{vTR+4+u}, 0x10000, v{vTR+u}
v_add_u32 v{vTR+8+u}, 0x20000, v{vTR+u}
""")
E(f"""
v_and_b32 v{vT0}, 15, v0
v_lshrrev_b32 v{vT1}, 1, v{vT0}
v_lshrrev_b32 v{vT2}, 4, v0
v_xor_b32 v{vT1}, v{vT1}, v{vT2}
v_lshlrev_b32 v{vT4}, 7, v{vT0}
v_lshl_add_u32 v{vRA}, v{vT1}, 4, v{vT4}
v_xor_b32 v{vRA+1}, 64, v{vRA}
v_add_u32 v{vRA+2}, 0x10000, v{vRA}
v_add_u32 v{vRA+3}, 0x10000, v{vRA+1}
v_add_u32 v{vRA+4}, 0x20000, v{vRA}
v_add_u32 v{vRA+5}, 0x20000, v{vRA+1}
""")
vXR = vR + 72
for i in range(4): E(f"v_add_u32 v{vXR+i}, s{sWB}, v{vRA+i}")
vXT = vR + 84
if OPT['LNM']:
    E(f"""
v_lshrrev_b32 v{vXT+1}, 3, v0
v_bfe_u32 v{vXT+2}, v0, 1, 1
v_xor_b32 v{vXT+1}, v{vXT+1}, v{vXT+2}
v_lshlrev_b32 v{vXT+1}, 4, v{vXT+1}
v_lshrrev_b32 v{vXT+2}, 2, v0
v_lshl_add_u32 v{vXT+1}, v{vXT+2}, 7, v{vXT+1}
v_and_b32 v{vXT+2}, 1, v0
v_lshl_add_u32 v{vXT+1}, v{vXT+2}, 3, v{vXT+1}
v_add_u32 v{vXT}, s{sWB}, v{vXT+1}
""")
    for u in range(1, 4): E(f"v_xor_b32 v{vXT+u}, {32*u}, v{vXT}")
    for u in range(4): E(f"v_add_u32 v{vXT+4+u}, 0x10000, v{vXT+u}")
E(f"""
s_and_b32 s{sTC}, s2, 7
s_lshl_b32 s{sTC}, s{sTC}, 1
s_lshr_b32 s{sT0}, s2, 7
s_add_u32 s{sTC}, s{sTC}, s{sT0}
s_lshl_b32 s{sW2I}, s{sT0}, 1
s_add_u32 s{sW2I}, s{sW2I}, s{sT3}
s_lshl_b32 s{sT2}, s{sTC}, 1
s_add_u32 s{sT2}, s{sT2}, s{sT3}
s_lshl_b32 s{sT0}, s{sT2}, 2
s_add_u32 s{sT0}, s{sT0}, s{sW}
s_mul_i32 s{sT0}, s{sT0}, {16*896}
s_lshl_b32 s{sSG}, s{sT1}, 7
s_add_u32 s{sT0}, s{sT0}, s{sSG}
v_lshrrev_b32 v{vT0}, 3, v0
v_mul_u32_u24 v{vT0}, 896, v{vT0}
v_and_b32 v{vT2}, 7, v0
v_lshl_add_u32 v{vT0}, v{vT2}, 4, v{vT0}
v_add_u32 v{vT0}, s{sT0}, v{vT0}
v_accvgpr_write_b32 a{aST+8}, v{vT0}
s_lshl_b32 s{sT2}, s{sT2}, 1
s_lshr_b32 s{sT0}, s{sW}, 1
s_add_u32 s{sSG}, s{sT2}, s{sT0}
s_lshl_b32 s{sFLP}, s{sSG}, 9
s_mul_i32 s{sSG}, s{sSG}, 7
s_add_u32 s{sSG}, s{sSG}, s{sT1}
s_lshl_b32 s{sSG}, s{sSG}, 2
s_add_u32 s{sFLP}, s{sFLP}, {hx(WS_F)}
s_and_b32 s{sT0}, s{sW}, 1
s_add_u32 s{sSG}, s{sSG}, s{sT0}
s_lshl_b32 s{sSG}, s{sSG}, 14
s_mul_i32 s{sHLD}, s{sT2}, {56*2048}
s_add_u32 s{sHLD}, s{sHLD}, {hx(WS_H)}
s_cmp_lt_u32 s{sPC}, 14
s_cselect_b32 s{sCOOB}, 0, {hx(OOB)}
s_add_u32 s{sHPF}, s{sHLD}, s{sCOOB}
s_mul_i32 s{sT0}, s{sW}, {14*2048}
s_add_u32 s{sHLD}, s{sHLD}, s{sT0}
s_mov_b32 s0, s2
s_mov_b32 s{sCC}, s{sT1}
s_lshl_b32 s{sKVI}, s{sTL}, 1
s_and_b32 s{sT0}, s{sHD}, 1
s_add_u32 s{sKVI}, s{sKVI}, s{sT0}
s_lshl_b32 s{sT1}, s{sT}, 2
s_add_u32 s{sT1}, s{sT1}, s{sW}
s_lshl_b32 s{sFLG}, s{sT1}, 9
s_add_u32 s{sFLG}, s{sFLG}, s{sHD}
v_min_u32 v{vPOLL}, 2, v0
v_lshlrev_b32 v{vPOLL}, 7, v{vPOLL}
s_add_u32 s{sFLG}, s{sFLG}, {hx(WS_F)}
s_mul_i32 s{sHST}, s{sT1}, {56*2048}
s_min_u32 s{sT2}, s{sHD}, 13
s_lshl_b32 s{sT2}, s{sT2}, 13
s_add_u32 s{sHST}, s{sHST}, s{sT2}
s_add_u32 s{sHST}, s{sHST}, {hx(WS_H)}
s_cmp_lt_u32 s{sHD}, 14
s_cselect_b32 s{sT2}, 0, {hx(OOB)}
v_add_u32 v{vHS}, s{sT2}, v{vL16}
v_mov_b32 v{vZ}, 0
v_mov_b32 v{vONE}, 1
""")
PST('addr_done')
xissue(14 - OPT['XFIRST'] - OPT['XSEC'])
if OPT['WQE'] == 0: P.ins += wqpf; wqpf = []
PST('x_issued')
PRODUCER = len(P.ins)
E(f"""
s_lshl_b32 s{sSST}, s{sT}, 2
s_add_u32 s{sSST}, s{sSST}, s{sW}
s_mul_i32 s{sSST}, s{sSST}, {28*16384}
s_cmp_ge_u32 s{sHD}, 7
s_cselect_b32 s{sT3}, 1, 0
s_sub_u32 s{sROT}, s{sHD}, 7
s_min_u32 s{sROT}, s{sROT}, s{sHD}
s_sub_u32 s{sCNT}, s{sROT}, 7
s_min_u32 s{sROT}, s{sROT}, s{sCNT}
s_cmp_lt_u32 s{sHD}, 14
s_cselect_b32 s{sT3}, s{sT3}, s{sHD}
s_cselect_b32 s{sSTEP}, 2048, 0
s_lshl_b32 s{sT3}, s{sT3}, 10
s_add_u32 s{sSST}, s{sSST}, s{sT3}
""")
prod_ins = []
if OPT['STLB'] == 1:
    for b_, o_ in ((sKK, '0'), (sVV, '0'), (sWQ, '0'), (sWQ, f'{hx(400*8192)}')[:2], (sWO, '0'), (sW1, '0'), (sW2, '0'), (sOUT, '0'),
                   (sWS, f's{sSST}'), (sWS, f's{sHST}'), (sWS, hx(WS_F + 0x10000))):
        if o_.startswith('0x'): E(f"s_mov_b32 s{sCNT}, {o_}"); o_ = f's{sCNT}'
        i_ = I(f"s_buffer_load_dword s{sCNT}, {srd(b_)}, {o_}"); i_.cls = 'smem'; i_.dst = []; P.ins.append(i_)
for s_, val in ((sM1, 0x2222222222222222), (sM2, 0xCCCCCCCCCCCCCCCC), (sM3, 0x8888888888888888), (sMD, 0xF0000F0000F0000F)):
    E(f"s_mov_b32 s{s_}, {hx(val)}\ns_mov_b32 s{s_+1}, {hx(val >> 32)}")

vONES = vR + 16
vD1 = vR + 20
vD2 = vR + 28
vLA = vR + 36
for i in range(4): E(f"v_mov_b32 v{vONES+i}, 0x3f803f80")
def rbf(r):
    return [f"v_cvt_pk_bf16_f32 v{r}, v{r}, v{r}", f"v_lshlrev_b32 v{r}, 16, v{r}"]
E(f"s_mov_b32 s{sT0}, {hx(f2u(1.0/448.0))}\ns_mov_b32 s{sT1}, {hx(f2u(1e-5))}\ns_mov_b32 s{sT2}, {hx(f2u(CSCALE))}")
if OPT['PADS']:
    E(f"""
s_mov_b64 exec, 0
s_cmp_eq_u32 s{sW}, 0
s_cbranch_scc1 L_pg0
s_cmp_eq_u32 s{sW}, 1
s_cbranch_scc1 L_pg1
s_cmp_eq_u32 s{sW}, 2
s_cbranch_scc1 L_pg2
s_branch L_pg3
.p2align 12
L_main:
s_mov_b64 exec, -1
""")
STAMP('pro_done')
vNT = vR + 44
NPRO = OPT['NPRO']
big = []
if OPT['BIG'] & 1:
    t_ = pf_seq(sWQ, 448*2, 2, 8192, sTL, NT); t_[-1] = I(t_[-1].text.replace('offen', 'offen offset:256'), tag='pf'); big += t_
    big += pf_seq(sW1, 448*2, 2, 3584, sTL, NT)
if OPT['BIG'] & 2:
    t_ = pf_seq(sKK, 2048, None, 0, sKVI, 2*NT); big += t_ + [pf_load(sVV, vPF+1)]
big = [I(t_) if isinstance(t_, str) else t_ for t_ in big]
assert len(pro_dma) == NPRO
L0N = OPT['L0N']
late = {0: [i_ for d_ in pro_dma[:L0N] for i_ in d_],
        1: [i_ for d_ in pro_dma[3:] for i_ in d_]
           + big + [I(f"buffer_store_byte v{vZ}, v{vPOLL}, {srd(sWS)}, s{sFLG} offen sc1", tag='hst')]}
def xreads(tg, q):
    r = [mk_wait_vm([('x', tg, q)])]
    for ks in (2*q, 2*q+1):
        ad = q*SLOT + tg*2048
        r.append(I(f"ds_read_b128 {v(xn(ks,tg),4)}, v{vXR + (ad >> 16)*2 + (ks & 1)} offset:{ad & 0xffff}", tag=('xr', tg, q)))
    return r
def stats(tg, q, fill):
    P.wait_lgkm_tag([('xr', tg, q)])
    for ks in (2*q, 2*q+1):
        X = v(xn(ks, tg), 4)
        for m_ in (mfma(v(vD1+4*tg, 4), v(vONES, 4), X, "0" if ks == 0 else v(vD1+4*tg, 4)), mfma(v(vD2+4*tg, 4), X, X, "0" if ks == 0 else v(vD2+4*tg, 4))):
            E(m_)
            t_ = 0
            while fill and t_ + cost(fill[0]) <= 12:
                t_ += cost(fill[0]); P.ins.append(fill.pop(0))
def scalars(tg):
    d = vD2 + 4*tg; m = vD1 + 4*tg; t = m + 1; L = vLA + 4*tg
    s = [f"v_cndmask_b32 v{d}, v{d}, v{d+1}, s[{sM1}:{sM1+1}]",
         f"v_cndmask_b32 v{d+2}, v{d+2}, v{d+3}, s[{sM3}:{sM3+1}]",
         f"v_mul_f32 v{m}, s{sT0}, v{m}",
         f"v_cndmask_b32 v{d}, v{d}, v{d+2}, s[{sM2}:{sM2+1}]",
         f"v_cndmask_b32 v{d}, 0, v{d}, s[{sMD}:{sMD+1}]"]
    s += allred(d, t, "v_add_f32")
    s += [f"v_mul_f32 v{d}, s{sT0}, v{d}",
          f"v_fma_f32 v{d}, -v{m}, v{m}, v{d}",
          f"v_max_f32 v{d}, 0, v{d}"]
    s += interleave(rbf(m), rbf(d))
    s += [f"v_add_f32 v{d}, s{sT1}, v{d}"] + rbf(d) + [f"v_sqrt_f32 v{d}, v{d}"] + rbf(d)
    s += [f"v_rcp_f32 v{d}, v{d}", f"v_mul_f32 v{d}, s{sT2}, v{d}",
          f"v_cvt_pk_bf16_f32 v{d}, v{d}, v{d}",
          f"v_and_b32 v{L}, 0xffff, v{d}", f"v_lshlrev_b32 v{L+1}, 16, v{d}",
          f"v_mul_f32 v{L+2}, -v{m}, v{L+1}"]
    if OPT['LNM']:
        s += [f"v_cndmask_b32 v{L}, v{L}, v{L+1}, s[16:17]", f"v_mov_b32 v{m}, v{L+2}", f"v_cndmask_b32 v{L}, 0, v{L}, s[{sMD}:{sMD+1}]", f"v_mov_b32 v{m+1}, v{L+2}",
              f"v_cndmask_b32 v{L+1}, 0, v{L}, s[{sM2}:{sM2+1}]", f"v_mov_b32 v{m+2}, v{L+2}", f"v_cndmask_b32 v{L}, v{L}, 0, s[{sM2}:{sM2+1}]", f"v_mov_b32 v{m+3}, v{L+2}"]
    return s
aXT = 128
def xtr(tg, T):
    ad = (T >> 2)*SLOT + tg*2048
    return I(f"ds_read_b64_tr_b16 {a(aXT + 2*(tg*28 + T), 2)}, v{vXT + (ad >> 16)*4 + (T & 3)} offset:{ad & 0xffff}", tag=('xt', tg, T))
def normm(tg, T0, T1, fill, pend):
    L = vLA + 4*tg; m = vD1 + 4*tg
    for T in range(T0, T1):
        if T % 4 == 0: P.wait_lgkm_tag([('xt', tg, min(T + 3, 27))])
        t = vNT + 4*(T % 4)
        E(f"v_mfma_f32_16x16x16_bf16 {v(t,4)}, {a(aXT + 2*(tg*28 + T), 2)}, {v(L,2)}, {v(m,4)}")
        x_ = xn(T >> 1, tg) + 2*(T & 1)
        k_ = 0
        while fill and k_ < 1:
            P.ins.append(fill.pop(0)); k_ += 1
        pend.append([f"v_cvt_pk_bf16_f32 v{x_}, v{t}, v{t+1}", f"v_cvt_pk_bf16_f32 v{x_+1}, v{t+2}, v{t+3}"])
        if len(pend) > 2:
            for t_ in pend.pop(0): E(t_)
def normalize(tg, side):
    L = vLA + 4*tg; k = 0; pend = []
    for ks in range(14):
        for r in range(4):
            x_ = xn(ks, tg) + r
            t = vNT + 2*(k % 8); k += 1
            E(f"v_dot2_f32_bf16 v{t}, v{x_}, v{L}, v{L+2}\nv_dot2_f32_bf16 v{t+1}, v{x_}, v{L+1}, v{L+2}")
            pend.append(f"v_cvt_pk_bf16_f32 v{x_}, v{t}, v{t+1}")
            if len(pend) > 2: E(pend.pop(0))
            P.ins += side.get(k, [])
    for t_ in pend: E(t_)
for q in range(7):
    P.ins += xreads(0, q)
    if q in (0, 3, 6): PST(f'w0{q}')
    xissue(2)
    if q > 1: stats(0, q-2, [])
fill = (late[0] + wqpf) if OPT['R0F'] else (wqpf + late[0])
stats(0, 5, fill); stats(0, 6, fill)
P.ins += fill
STAMP('x0_arrived')
if not OPT['LNM']:
    for t_ in scalars(0): E(t_)
    X1 = OPT['X1']
    normalize(0, {X1 + 4*q: xreads(1, q) for q in range(7)})
    PST('ln0_done')
    fill = [i_ for d_ in pro_dma[L0N:3] for i_ in d_]
    for q in range(7):
        if q == 1: P.wait_lgkm_tag([('xr', 1, 6)]); fill += late[1]
        stats(1, q, fill)
    P.ins += fill
    STAMP('x1_arrived')
    for t_ in scalars(1): E(t_)
    fr_ = [i_ for f in range(D) for i_ in frag_reads(f)]
    side = {OPT['BARK']: [mk_wait_vm(first_need), I("s_barrier")]}
    for k_, i_ in enumerate(fr_): side.setdefault(min(OPT['BARK'] + 1 + k_, 56), []).append(i_)
    normalize(1, side)
else:
    NA0 = OPT['NA0']
    E(f"s_or_b64 s[16:17], s[{sM1}:{sM1+1}], s[{sM3}:{sM3+1}]")
    rd0 = [xtr(0, T) for T in range(28)]
    for k_, t_ in enumerate(scalars(0)):
        if rd0 and k_ < 14: P.ins.append(rd0.pop(0))
        E(t_)
    pend = []
    normm(0, 0, 14, rd0, pend)
    assert not rd0
    x1 = [i_ for q in range(7) for i_ in xreads(1, q)]
    for i_ in x1[:6]: P.ins.append(i_)
    for p_ in pend:
        for t_ in p_: E(t_)
    pend = []
    PST('ln0_half')
    n3 = sum(len(d_) for d_ in pro_dma[3:])
    fill = x1[6:] + [i_ for d_ in pro_dma[L0N:3] for i_ in d_] + late[1][n3:]
    for q in range(7): stats(1, q, fill)
    P.ins += fill
    STAMP('x1_arrived')
    rd1 = [xtr(1, T) for T in range(28)]
    sc1 = [I(t_) for t_ in scalars(1)]
    for T in range(14, 28):
        normm(0, T, T+1, rd1, pend)
        if T >= 15:
            for _ in range(2):
                if sc1: P.ins.append(sc1.pop(0))
    for p_ in pend:
        for t_ in p_: E(t_)
    pend = []
    for k_, i_ in enumerate(sc1):
        if rd1 and k_ % 2 == 0: P.ins.append(rd1.pop(0))
        P.ins.append(i_)
    PST('ln0_done')
    fr_ = [i_ for f in range(D) for i_ in frag_reads(f)]
    fill = rd1 + [mk_wait_vm(first_need), I("s_barrier")] + fr_
    normm(1, 0, 28, fill, pend)
    P.ins += fill
    P.wait_lgkm_tag([('xt', 1, 27)])
    lt = late[1][:n3]
    for p_ in pend:
        for t_ in p_: E(t_)
    P.ins += lt
if OPT['DUMP'] == 'xn':
    P.ins += dump([v(xn(ks, tg), 4) for ks in range(14) for tg in range(2)])

P.ins.append(mk_wait_lg([('f', f) for f in range(4)]))
est = 0
for g in range(NF):
    if g in blk: P.ins += blk[g]
    for h, m_ in enumerate(MF[g]):
        gp = G0[g] + h
        P.ins.append(I(m_))
        P.ins += pre[gp] + rds[gp] + ext[gp]
        est += max(16, gtime(pre[gp] + rds[gp] + ext[gp]))
if OPT['LOG']:
    ph = sorted((f_, n_) for n_, f_ in phase.items())
    for (f0_, n_), (f1_, _) in zip(ph, ph[1:]):
        e_ = sum(max(16, gtime(pre[q_] + rds[q_] + ext[q_])) for q_ in range(gap(f0_), gap(f1_)))
        print(f"  phase {n_}: est {e_} ideal {16*(gap(f1_)-gap(f0_))}", file=sys.stderr)
print("estimated main-stream cycles", est, "ideal", 16*NG, file=sys.stderr)

STAMP('g6_done')
def fs(u, w_): return facc(u, w_)
def smf(rl, sl):
    r = []
    for tg in range(2):
        d = v(vsa(rl*2+tg), 4)
        r.append(mfma(d, v(vSEL + (2 if tg == 0 else 0), 4), greg(rl, sl), "0" if sl == 0 else d))
    return r
msA = [m_ for sq in range(0, 2*F0, 2) for rl in range(2) for sl in (sq, sq+1) for m_ in smf(rl, sl)]
if not OPT['C2G']: E(f"s_waitcnt vmcnt({NYB})")
n2 = OPT['N2']
rest = list(glC)
def last_test():
    if F1 < 7 and not OPT['C2G']:
        STAMP('pre_c2')
        P.wait_vm_tag(['poll2'])
        E(f"v_cmp_ne_u32 vcc, 1, v{vPOLL}\ns_cbranch_vccnz L_spin2\nL_spin2_ret:")
        STAMP('chk2')
last_test()
for _ in range(6):
    if rest: P.ins.append(rest.pop(0))
for i_ in fwrites(3):
    P.ins.append(i_)
    if msA: E(msA.pop(0))
while rest and len(glC) - len(rest) < n2:
    P.ins.append(rest.pop(0))
    if P.ins[-1].cls == 'vmem' and msA: E(msA.pop(0))
E("s_waitcnt lgkmcnt(0)\ns_barrier")
doneB = [(rl, sl) for sq in range(2*F0, NSB, 2) for rl in range(2) for sl in (sq, sq+1)]
lateB = doneB[len(doneB) - 2*OPT['PCB']:]; doneB = doneB[:len(doneB) - 2*OPT['PCB']]
msA += [m_ for rl, sl in doneB for m_ in smf(rl, sl)]
for u in range(4):
    for j in range(1, 4):
        E(f"ds_read_b128 {v(fs(u, j), 4)}, v{FRR[j-1]} offset:{u*1024}")
        if msA: E(msA.pop(0))
P.ins += rest
def with_m(l):
    if OPT['PKNOP']: E(f"s_nop {OPT['PKNOP']-1}")
    for t_ in l:
        if msA: E(msA.pop(0))
        E(t_)
R4 = [tuple(fs(u, w_) for w_ in range(4)) for u in range(4)]
for b0, b1, b2, b3 in R4:
    for r in (0, 2): E(f"v_pk_add_f32 {v(b0+r,2)}, {v(b0+r,2)}, {v(b1+r,2)}\nv_pk_add_f32 {v(b2+r,2)}, {v(b2+r,2)}, {v(b3+r,2)}")
    for r in (0, 2): E(f"v_pk_add_f32 {v(b0+r,2)}, {v(b0+r,2)}, {v(b2+r,2)}")
    for r in (0, 2): E(f"v_pk_mul_f32 {v(b1+r,2)}, {v(b0+r,2)}, v[24:25] op_sel:[0,0] op_sel_hi:[1,0]")
    for r in (0, 2): E(f"v_pk_mul_f32 {v(b0+r,2)}, {v(b0+r,2)}, v[24:25] op_sel:[0,1] op_sel_hi:[1,1]")
with_m([f"v_exp_f32 v{b[1]+r}, v{b[1]+r}" for b in R4 for r in range(4)])
for b in R4:
    for r in (0, 2): E(f"v_pk_add_f32 {v(b[1]+r,2)}, {v(b[1]+r,2)}, 1.0 op_sel_hi:[1,0]")
lastC = lateB + [(rl, sl) for sq in range(NSB, 16, 2) for rl in range(2) for sl in (sq, sq+1)]
NC1 = OPT['NC1']
msA += [m_ for rl, sl in lastC[:NC1] for m_ in smf(rl, sl)]; lastC = lastC[NC1:]
with_m([f"v_rcp_f32 v{b[1]+r}, v{b[1]+r}" for b in R4 for r in range(4)])
for m_ in msA: E(m_)
STAMP('g_done')
gm_ = [f"v_mul_f32 v{b[0]+r}, v{b[0]+r}, v{b[1]+r}" for b in R4 for r in range(4)]
for rl, sl in lastC:
    for m_ in smf(rl, sl):
        E(m_)
        for _ in range(2):
            if gm_: E(gm_.pop(0))
for t_ in gm_: E(t_)
for u in range(4):
    b0 = fs(u, 0)
    for r in (0, 2): E(f"v_pk_fma_f32 {v(b0+r,2)}, {v(vsa(u)+r,2)}, {v(b0+r,2)}, {v(vXU+u*4+r,2)}")
    E(f"v_cvt_pk_bf16_f32 v{b0}, v{b0}, v{b0+1}\nv_cvt_pk_bf16_f32 v{b0+1}, v{b0+2}, v{b0+3}")
    E(f"ds_write_b64 v{vPF}, {v(b0,2)} offset:{u*32}")
E(f"""
ds_read_b128 {v(vXF,4)}, v{vT4}
ds_read_b128 {v(vXF+4,4)}, v{vT4} offset:1152
buffer_store_dwordx4 {v(vXF,4)}, v{vAD}, {srd(sOUT)}, 0 offen {OPT['OST']}
buffer_store_dwordx4 {v(vXF+4,4)}, v{vAD}, {srd(sOUT)}, s{sSV1} offen {OPT['OST']}
""")
if OPT['WAITAT']: STAMP('end')
if OPT['STAMP']:
    STAMP('end')
    E(f"""
L_fin:
s_memrealtime s[{sSTMP}:{sSTMP+1}]
s_waitcnt lgkmcnt(0)
v_writelane_b32 v{vSTAMP}, s{sMISS}, 59
v_writelane_b32 v{vSTAMP}, s{sSTMP}, 62
s_lshl_b32 s{sT0}, s0, 2
s_add_u32 s{sT0}, s{sT0}, s{sW}
s_lshl_b32 s{sT0}, s{sT0}, 8
s_add_u32 s{sT0}, s{sT0}, {hx(WS_DBG)}
v_lshlrev_b32 v{vT0}, 2, v0
buffer_store_dword v{vSTAMP}, v{vT0}, {srd(sWS)}, s{sT0} offen
""")
E("L_end:\ns_endpgm")
main_ins, log, stats_ = resolve(P.ins)
print("main", stats_, file=sys.stderr)
if OPT['LOG']:
    for l in log: print("  ", l, file=sys.stderr)

Q = Prog(); E = Q.emit
SPIN_MAX = 1 << 17
def spin(label, load, want, cmp):
    E(f"""
{label}:
s_mov_b32 s{sCNT}, {SPIN_MAX}
{label}_loop:
s_sleep 1
{load}
s_waitcnt vmcnt(0)
v_cmp_{cmp}_u32 vcc, {want}, v{vPOLL}
s_sub_u32 s{sCNT}, s{sCNT}, 1
s_cmp_eq_u32 s{sCNT}, 0
s_cbranch_scc1 {label}_ret
s_cbranch_vccnz {label}_loop
s_branch {label}_ret
""")
spin("L_spinh", f"s_lshl_b32 s{sT0}, s{sTC}, 4\nv_mov_b32 v{vT0}, s{sT0}\nglobal_load_dword v{vPOLL}, v{vT0}, {DBGP} sc1", 16, "gt")
spin("L_spin1", VPOLL, 1, "ne")
if F1 < 7: spin("L_spin2", VPOLL2, 1, "ne")
E("L_redo:\ns_waitcnt vmcnt(0)")
Q.ins += gloads(0, 2*F0, vHS)
E("s_branch L_redo_ret")
MISC = [c['lo'] for c in chunks if c['name'] == 'V_15'][0]
fK, fS, fP, fA, fV, fR, fM = 44, 76, 108, 116, 117, 121, 102
E(f"""
L_exact:
s_waitcnt vmcnt(0) lgkmcnt(0)
s_nop 15
s_mov_b32 s{sSV0}, m0
v_and_b32 v{fA}, 15, v0
v_lshlrev_b32 v{fA}, 9, v{fA}
v_and_b32 v{fM}, 48, v0
v_add_u32 v{fA}, v{fA}, v{fM}
s_lshl_b32 s{sSV1}, s{sW}, 7
s_add_u32 s{sSV2}, s{sWB}, {MISC}
""")
for i in range(4):
    E(f"v_subrev_u32 v{fV+i}, s{sSV1}, v{vVD+i}\nv_add_u32 v{fR+i}, s{sSV2}, v{vTR+i}")
E(f"v_mov_b32 v{fM}, 0xff800000\nv_mov_b32 v{fM+1}, 0xff800000\ns_mov_b32 s{sSV1}, 0")
def ktile(kt, cinit):
    for ks in range(8):
        E(f"buffer_load_dwordx4 {v(fK+4*ks,4)}, v{fA}, {srd(sKK)}, s{sSV1} offen offset:{ks*64}")
    E(f"s_add_u32 s{sSV1}, s{sSV1}, 8192\ns_waitcnt vmcnt(0)")
    for ks in range(8):
        for tg in range(2):
            d = v(fS + tg*8 + kt*4, 4)
            E(mfma(d, v(fK+4*ks, 4), a(qf(ks, tg), 4), (cinit(tg) if ks == 0 else d)))
    E("s_nop 15")
E("L_exact_p1:")
ktile(0, lambda tg: "0")
for tg in range(2):
    b = fS + tg*8
    E(f"v_max3_f32 v{fM+tg}, v{fM+tg}, v{b}, v{b+1}\nv_max3_f32 v{fM+tg}, v{fM+tg}, v{b+2}, v{b+3}")
E(f"s_cmp_lt_u32 s{sSV1}, 262144\ns_cbranch_scc1 L_exact_p1")
for tg in range(2):
    for t_ in allred(fM+tg, fM+2, "v_max_f32"): E(t_)
    for r in range(4): E(f"v_sub_f32 v{vC+4*tg+r}, 0, v{fM+tg}")
for r in range(128): E(f"v_mov_b32 v{vO+r}, 0")
E(f"v_mov_b32 v{vLS}, 0\nv_mov_b32 v{vLS+1}, 0\ns_mov_b32 s{sSV1}, 0\ns_add_u32 m0, s{sWB}, {MISC}\ns_nop 3")
E("L_exact_p2:")
E(f"s_mov_b32 s{sSV2}, s{sSV1}")
ktile(0, lambda tg: v(vC+4*tg, 4))
ktile(1, lambda tg: v(vC+4*tg, 4))
for r in range(16): E(f"v_exp_f32 v{fS+r}, v{fS+r}")
for r in range(16): E(f"v_add_f32 v{vLS + r//8}, v{vLS + r//8}, v{fS+r}")
for r in range(8): E(f"v_cvt_pk_bf16_f32 v{fP+r}, v{fS+2*r}, v{fS+2*r+1}")
for cb in range(4):
    for rb in range(4):
        E(f"buffer_load_dwordx4 v{fV+rb}, {srd(sVV)}, s{sSV2} offen offset:{rb*1024} lds")
    E(f"s_add_u32 s{sSV2}, s{sSV2}, 128\ns_waitcnt vmcnt(0)")
    for u in range(4):
        E(f"ds_read_b64_tr_b16 {v(fK+4*u,2)}, v{fR+u}\nds_read_b64_tr_b16 {v(fK+4*u+2,2)}, v{fR+u} offset:2048")
    E("s_waitcnt lgkmcnt(0)")
    for u in range(4):
        for tg in range(2):
            d = v(Oreg(cb*4+u, tg), 4)
            E(mfma(d, v(fK+4*u, 4), v(fP+4*tg, 4), d))
    E("s_nop 7")
E(f"s_cmp_lt_u32 s{sSV1}, 262144\ns_cbranch_scc1 L_exact_p2")
for tg in range(2):
    for t_ in allred(vLS+tg, fM+2, "v_add_f32"): E(t_)
    E(f"v_rcp_f32 v{vRC+tg}, v{vLS+tg}")
E("s_nop 15")
for i in range(12): E(f"v_add_u32 v{vTP+i}, s{sWB}, v{vTR+i}")
E(f"s_mov_b32 m0, s{sSV0}\ns_nop 15\ns_branch L_exact_ret")
sub_ins, log2, stats2 = resolve(Q.ins)

def sizes_of(ins):
    import subprocess, tempfile, re as re_
    body = [i_ for i_ in ins if i_.cls not in ('label', 'dir')]
    txt_ = '.amdgcn_target "amdgcn-amd-amdhsa--gfx950"\n.text\nL_any:\n' + ''.join('    ' + (re_.sub(r'L_\w+', 'L_any', i_.text) if i_.cls == 'branch' else i_.text) + '\n' for i_ in body)
    d_ = tempfile.mkdtemp()
    open(d_ + '/a.s', 'w').write(txt_)
    subprocess.run(['clang', '-x', 'assembler', '-target', 'amdgcn-amd-amdhsa', '-mcpu=gfx950', '-c', d_ + '/a.s', '-o', d_ + '/a.o'], check=True)
    out_ = subprocess.run(['llvm-objdump', '-d', '--mcpu=gfx950', d_ + '/a.o'], capture_output=True, text=True).stdout
    sz = [4*len(m_.group(1).split()) for m_ in re_.finditer(r'// [0-9A-F]+: ((?:[0-9A-F]{8} ?)+)', out_)]
    assert len(sz) == len(body), (len(sz), len(body))
    return {id(i_): s_ for i_, s_ in zip(body, sz)}
if OPT['PADS']:
    sz = sizes_of(main_ins)
    k0 = [k_ for k_, i_ in enumerate(main_ins) if i_.text == 'L_main:'][0]
    out_ = main_ins[:k0+1]; off = 0; npg = 0
    for i_ in main_ins[k0+1:]:
        if i_.cls not in ('label', 'dir'):
            lo = (npg + 1)*4096
            if npg < OPT['NPG'] and off >= lo and (i_.cls == 'mfma' or off + sz[id(i_)] > lo + 56):
                assert off < lo + 64
                out_.append(I(f"L_pg{npg}:")); out_.append(I(f"s_cbranch_execz L_pgn{npg}")); off += 4; npg += 1
            off += sz[id(i_)]
        out_.append(i_)
    for i_ in out_:
        if i_.text.startswith('s_cbranch_execz L_pgn'):
            k_ = int(i_.text.split('L_pgn')[1]) + 4
            i_.text = f"s_cbranch_execz L_pg{k_}" if k_ < npg else "s_cbranch_execz L_main"
    main_ins = out_
    print("code pages", npg, "bytes after L_main", off, file=sys.stderr)
hdr = open(os.path.join(os.path.dirname(os.path.abspath(__file__)), 'header.txt')).read()
txt = hdr + f"""; @launch grid=(256,1,1) block=(256,1,1) lds={LDS_BYTES}
; ---------------------------------------------------------------------------------------------
; One workgroup per CU (256 workgroups x 4 waves, 512 registers per lane, 160 KiB LDS ring).
; Producer role (128-token tile t, head hd), every wave keeps 32 tokens as MFMA B operands:
;   LayerNorm (statistics and scaling by MFMA) -> q = xn*Wq -> h slice = relu(xn*W1) (published)
;   -> S = K q, p = exp2(S - m0), O = V p (m0 = row maximum over the first 16 keys; when a row sum
;   leaves the safe range the wave redoes the head with the true row maximum, label L_exact)
;   -> partial s = O*Wo (bf16, published through d_ws, column blocks in a rotated order).
; Consumer role (64 tokens x 64 columns): f = h*W2 (K split over the waves), sum of the 16 partial s,
;   out = x + s*silu(f).
; Weights stream L2 -> LDS by LDS-DMA (16 KiB rounds, source-side swizzle), A fragments are read with
; ds_read_b64_tr_b16 / ds_read_b128.  Hand-offs: write-through stores, vmcnt, then a flag (d_debug
; counter for h, flag bytes in d_ws for s; the bytes are cleared first and the counter vouches for it).
; Generated by gen/gen.py (hand-written scheduler, wait-count and hazard pass).
; ---------------------------------------------------------------------------------------------
.amdgcn_target "amdgcn-amd-amdhsa--gfx950"
.text
.globl {NAME}_kernel
.p2align 8
.type {NAME}_kernel,@function
{NAME}_kernel:
""" + render(main_ins) + render(sub_ins) + f"""L_pad:
    s_endpgm
.if (L_pad - {"L_main" if OPT["PADS"] else "L_pc"}) < {CODE_LINES*128}
.fill (({CODE_LINES*128} - (L_pad - {"L_main" if OPT["PADS"] else "L_pc"})) / 4) + 16, 4, 0xbf810000
.endif
.section .rodata,"a"
.p2align 6
.amdhsa_kernel {NAME}_kernel
  .amdhsa_next_free_vgpr 512
  .amdhsa_next_free_sgpr 102
  .amdhsa_accum_offset 256
  .amdhsa_group_segment_fixed_size 0
  .amdhsa_kernarg_size 88
  .amdhsa_user_sgpr_count 2
  .amdhsa_user_sgpr_kernarg_segment_ptr 1
  .amdhsa_system_sgpr_workgroup_id_x 1
.end_amdhsa_kernel
"""
if OPT['STAMP']: txt += '; STAMPS ' + ' '.join(stamp_names) + '\n'
open(sys.argv[1], 'w').write(txt)
```

```python
import sys, os, math, struct
from asmlib import *

NAME = "recurrent_scan__sliding_block_cached__dense_activation_relu__prompt"
OPT = dict(D=8, NA=12, HX=4, BAR=2, STAMP=0, PST=0, DUMP='', SIGG=60, FORCEFB=0, LOG=0,
           SST='sc1', HLD='sc1', HST='sc1', GLD='sc1', NOSST=0, NOHLD=0, NOHST=0,
           PX='', PW1='sc1', PWQ='sc1', PKV='sc1', PWO='sc1', PW2='sc1', PF=1, PPF='', OST='', WSOFF=0, HSTEP=7, XREV=0, NPRO=3, WAITAT='', WAITT=0, WAITWG=-1, PADS=1, HSIG=150, HPF=0, PF0=0, PF1=14, CHAIN=1, WB=0, WBD=60, BIG=1, DSTART=0, W2ROT=1, NOPF2=2, HEND=40, XPF=1, L0N=1, X1=28, BARK=36, BARP=2, BARA=2, BAR4=2, SPAN=30, SPAN2=20, NV1=100, PKR=0, PCH=1, TLB=1, TLBP='G2_13', XG=0, STLB=0, ST0=4, STS=40, G6P='66666666666666', WOM=1, W2N=7, NPG=9, CPF='', SB2=0, PB2=60, CB2=110, LB2=215, NB2=10, ONORM=1, CE=105, LB=148, H2X=4, H2S=6, SB=52, LB2X=0, NSB=12, PCB=0, NO=0, NX=4, P2G=190, C2G=0, CW=0, NU=3, NC1=6, PKNOP=0, LNM=1, NA0=12, R0F=1, EPF=448, NOBARR=0, LEAK='', LEAK0='', LEAKC=0, SNAKE=3, XP='', NOG=0, NOFLAG=0, W2G=-15, W2S=8, F0=3, F1=5, L0=0, W2PRE=14, H2A=2, H2B=30, SA=48, PA=-75, CA=26, LA=88, SC=26, PB=68, N2=18, G1N=10, XFIRST=4, XSEC=0, WQE=2, OEARLY=2, H2SPAN=60, PFG=170, WQP=2, FINE=0, RT=0, SIMPLE=0, SSP=0)
for a_ in sys.argv[2:]:
    k_, v_ = a_.split('=')
    OPT[k_] = v_.replace('+', ' ') if isinstance(OPT[k_], str) else int(v_)
if OPT['LEAK']: OPT['WAITAT'] = '-'
D = OPT['D']; NA = OPT['NA']

RING_SLOTS = 10
SLOT = 16384
LDS_BYTES = 163840
WS_S = 0
WS_H = 0x1C00000
WS_F = 0x2300000
WS_DBG = 0x2400000
WS_SIZE = 0x8000000 if (OPT['DUMP'] or OPT['STAMP']) else 0x2400000
OOB = 0x7f000000
CSCALE = math.log2(math.e) / 16.0
def f2u(x): return struct.unpack('<I', struct.pack('<f', x))[0]
def hx(x): return f"0x{x & 0xffffffff:x}"

sX, sW1, sWQ, sKK, sVV, sWO, sW2, sWS, sOUT = 28, 32, 36, 40, 44, 48, 52, 56, 60
def srd(b): return f"s[{b}:{b+3}]"
sW, sHD, sT, sWB, sSO = 64, 65, 66, 67, 68
sT0, sT1, sT2, sT3 = 69, 70, 71, 3
sQT = 72
sHST, sHLD, sSST, sSG, sFLG, sFLP, sCNT, sSO2, sTL, sROT, sSTEP, sPC = 86, 87, 88, 89, 90, 91, 92, 93, 94, 95, 96, 97
sTC, sCOOB, sHPF, sW2I, sKVI, sCC = 19, 20, 21, 24, 25, 2
sW1T = 12
sM1, sM2, sM3, sMD = 4, 6, 8, 10
sSV0, sSV1, sSV2 = 12, 13, 14
sSTMP = 26
DBGP = "s[22:23]"
vL16, vHS, vT0, vT1, vT2, vT3, vT4 = 1, 2, 3, 4, 5, 6, 7
vTR = 8
vRA = 20
vPF = 26
vZ, vONE, vPOLL, vSTAMP = 28, 29, 30, 31
vWQ, vKD, vVD, vWOD, vW2D = 32, 36, 40, 32, 36
vXN = 44
vR = 156
vW1D = vR + 64
vXD = vR + 68
vO = 128
vS = 44
vP = 76
vC = 92
vLS = 100
vM = 106
vA4 = 44
vRC = 126
aF, aST, aQ, aH = 0, 48, 64, 128

def v(i, n=1): return f"v{i}" if n == 1 else f"v[{i}:{i+n-1}]"
def a(i, n=1): return f"a{i}" if n == 1 else f"a[{i}:{i+n-1}]"
def mfma(d, A, B, C): return f"v_mfma_f32_16x16x32_bf16 {d}, {A}, {B}, {C}"
def I(t, tag=None): return Ins(t, tag)
lg = lambda x: int(math.log2(x))

P = Prog()
E = P.emit

nstamp = [0]
stamp_names = []
def stamp_ins(name=''):
    clk_ = 's_memtime' if OPT['LEAKC'] else 's_memrealtime'
    if OPT['LEAK'] and name in (OPT['LEAK'], OPT['LEAK0']) and name != 'end':
        return [I(f"{clk_} s[{sSTMP}:{sSTMP+1}]"), I("s_waitcnt lgkmcnt(0)"), I(f"v_writelane_b32 v{vSTAMP}, s{sSTMP}, {0 if name == OPT['LEAK'] else 1}")]
    if OPT['LEAK'] and name == 'end':
        pre_ = [f"s_waitcnt vmcnt(0)", f"{clk_} s[{sSTMP}:{sSTMP+1}]", "s_waitcnt lgkmcnt(0)", f"s_mov_b32 s4, s{sSTMP}"] if OPT['LEAK'] == 'end' else [f"v_readlane_b32 s4, v{vSTAMP}, 0", "s_nop 3"]
        pre_ += [f"v_readlane_b32 s5, v{vSTAMP}, 1", "s_nop 3"] if OPT['LEAK0'] else ["s_mov_b32 s5, s1"]
        return [I(t_) for t_ in (([f"s_cmp_lg_u32 s0, {OPT['WAITWG']}", "s_cbranch_scc1 L_end"] if OPT['WAITWG'] >= 0 else []) + pre_ +
                ["s_sub_u32 s4, s4, s5", "s_lshr_b32 s4, s4, 1" if OPT['LEAKC'] else "s_mul_i32 s4, s4, 8", "s_add_u32 s4, s4, 6000", "L_dw:", f"s_memrealtime s[{sSTMP}:{sSTMP+1}]", "s_waitcnt lgkmcnt(0)",
                 f"s_sub_u32 s{sSTMP}, s{sSTMP}, s1", f"s_cmp_lt_u32 s{sSTMP}, s4", "s_cbranch_scc1 L_dw"])]
    if OPT['WAITAT'] and name == OPT['WAITAT']:
        return [I(t_) for t_ in ((f"s_cmp_lg_u32 s0, {OPT['WAITWG']}", "s_cbranch_scc1 L_end") if OPT['WAITWG'] >= 0 else ()) + ("L_dw:", f"s_memrealtime s[{sSTMP}:{sSTMP+1}]", "s_waitcnt lgkmcnt(0)", f"s_sub_u32 s{sSTMP}, s{sSTMP}, s1",
                                 f"s_cmp_lt_u32 s{sSTMP}, {OPT['WAITT']}", "s_cbranch_scc1 L_dw")]
    if not OPT['STAMP']: return []
    if OPT['STAMP'] == 3 and name not in ('end', 'attn_done', 'G4', 'wb0', 'wb1', 'G6', 'st_done', 'chk0', 'chk1', 'chk2', 'sigA', 'sigB', 'g6_done', 'g_done', 'pre_c2', 'pre_c1', 'pre_c0'): return []
    if OPT['STAMP'] == 2 and name not in ('end', 'G4', 'P0', 'G2_0', 'g6_done'): return []
    n = nstamp[0]; nstamp[0] += 1; stamp_names.append(name)
    return [I(f"{'s_memrealtime' if OPT['RT'] else 's_memtime'} s[{sSTMP}:{sSTMP+1}]"), I("s_waitcnt lgkmcnt(0)"), I(f"v_writelane_b32 v{vSTAMP}, s{sSTMP}, {n}")]
def STAMP(name=''):
    P.ins += stamp_ins(name)
def PST(name):
    if OPT['PST']: STAMP(name)

frags = []
chunks = []
def add_chunk(name, lo, size, dma, private=False):
    chunks.append(dict(name=name, lo=lo, hi=lo+size, dma=dma, private=private, first=None, last=None)); return len(chunks)-1
def add_frag(kind, rs, rb, addr, mf, ch):
    frags.append(dict(kind=kind, rb=rb, rs=rs, addr=addr, mf=mf, chunk=ch))
    c = chunks[ch]
    if c['first'] is None: c['first'] = len(frags)-1
    c['last'] = len(frags)-1
def frag_reads(f):
    fr = frags[f]; A = aF + 4*(f % NA)
    def rd(op, dst, addr):
        win = addr >> 16
        return I(f"{op} {dst}, v{fr['rb'] + win*fr['rs']} offset:{addr & 0xffff}", tag=('f', f))
    if fr['kind'] == 'tr':
        return [rd("ds_read_b64_tr_b16", a(A, 2), fr['addr']), rd("ds_read_b64_tr_b16", a(A+2, 2), fr['addr'] + 2048)]
    return [rd("ds_read_b128", a(A, 4), fr['addr'])]
POL = {sW1: 'PW1', sWQ: 'PWQ', sKK: 'PKV', sVV: 'PKV', sWO: 'PWO', sW2: 'PW2'}
ring_pos = [7]
def ring_round(name, srd_b, vbase, so_text, private=False):
    slot = ring_pos[0] % RING_SLOTS; ring_pos[0] += 1
    lo = slot*SLOT
    tag = ('c', len(chunks))
    dma = [I(f"s_add_u32 m0, s{sWB}, {lo}")]
    if so_text.startswith('s') or so_text == '0': so = so_text
    elif so_text.startswith('+'):
        dma.append(I(f"s_add_u32 s{sSO}, {so_text[1:]}")); so = f"s{sSO}"
    else:
        dma.append(I(f"s_mov_b32 s{sSO}, {so_text}")); so = f"s{sSO}"
    for rb in range(4):
        dma.append(I(f"buffer_load_dwordx4 v{vbase+rb}, {srd(srd_b)}, {so} offen offset:{rb*1024} {OPT[POL[srd_b]]} lds", tag=tag))
    return add_chunk(name, lo, SLOT, dma, private)

phase = {}
def xn(ks, tg): return vXN + (ks*2 + tg)*4
def accp(pp, kq, tg, par): return vR + (pp % 2)*32 + ((kq*2 + tg)*2 + par)*4
pend_ = []
for pp in range(6):
    phase[f'P{pp}'] = len(frags)
    for ks in range(14):
        qi = 14*pp + ks
        if qi % 4 == 0:
            r_ = qi // 4
            blk_, rp = r_ // 7, r_ % 7
            R_ = 32*(8192 if blk_ < 2 else 3584); sb = sW1T + (0 if blk_ < 2 else 2); cb_ = 256 if blk_ == 1 else 0
            so_ = f"+s{sb+1}, {cb_}" if rp == 3 else f"+s{sb}, {(4*rp*R_ if rp < 3 else (4*rp-14)*R_ + 128) + cb_}"
            ch = ring_round(f"wq_{r_}", sWQ, vWQ, so_) if r_ < 14 else ring_round(f"w1_{r_-14}", sW1, vW1D, so_)
        pend_.append((ks, qi, ch))
        if OPT['PCH'] == 1 and ks % 2 == 0: continue
        if OPT['PCH'] == 2 and not (qi % 4 == 3 or ks == 13): continue
        for u in range(4):
            for ks_, qi_, ch_ in pend_:
                mf = (lambda A, pp=pp, ks=ks_, u=u: [mfma(v(accp(pp, u >> 1, tg, u & 1), 4), A, v(xn(ks, tg), 4), "0" if ks == 0 else v(accp(pp, u >> 1, tg, u & 1), 4)) for tg in range(2)])
                add_frag('tr', 4, vTR + u, chunks[ch_]['lo'] + (qi_ % 4)*4096, mf, ch_)
        pend_ = []
def qf(kq, tg): return aQ + (kq*2 + tg)*4
def Sreg(st, tg, kt): return vS + (st % 2)*16 + tg*8 + kt*4
def Preg(st, tg): return vP + (st % 2)*8 + tg*4
def Oreg(d, tg): return vO + (((d >> 1)*2 + tg)*2 + (d & 1))*4
def G2(st):
    phase[f'G2_{st}'] = len(frags)
    ch = ring_round(f"K_{st}", sKK, vKD, str(st*16384))
    order = [(kt, ks) for kt in range(2) for ks in range(8)]
    for kt, ks in order:
        def mf(A, kt=kt, ks=ks):
            r = []
            for tg in range(2):
                c = v(Sreg(st, tg, kt), 4)
                if ks == 0: c = "0" if st < 1 else v(vC + 4*tg, 4)
                r.append(mfma(v(Sreg(st, tg, kt), 4), A, a(qf(ks, tg), 4), c))
            return r
        add_frag('b128', 2, vRA + (ks & 1), chunks[ch]['lo'] + (ks >> 1)*4096 + kt*2048, mf, ch)
def G3(st):
    phase[f'G3_{st}'] = len(frags)
    ch = ring_round(f"V_{st}", sVV, vVD, str(st*16384))
    for d in range(16):
        mf = (lambda A, d=d: [mfma(v(Oreg(d, tg), 4), A, v(Preg(st, tg), 4), "0" if st == 0 else v(Oreg(d, tg), 4)) for tg in range(2)])
        add_frag('tr', 4, vTR + (d & 3), chunks[ch]['lo'] + (d >> 2)*4096, mf, ch)
G2(0)
for st in range(15):
    G2(st + 1); G3(st)
G3(15)
phase['AEND'] = len(frags)
def acc4(p, u, tg): return hole(8 + ((u >> 1)*2 + tg)*2 + (u & 1))
def Opk(ks, tg): return vO + (ks*2 + tg)*8
def hole(i): return vO + 8*i + 4
def hreg(kk, t4):
    i = kk*4 + t4
    if i < 32: return a(aH + 4*i, 4)
    if i < 48: return a(aQ + 4*(i-32), 4)
    return v(hole(i-48), 4)
def facc(u, t4):
    return vA4 + 4*(u*4 + t4)
vTP = 108
G6P = OPT['G6P']
assert len(G6P) == 14
kk = 0
NU = OPT['NU']
def g6step(kk):
    ks_ = [kk] if kk < 14 - NU else list(range(14 - NU, 14))
    if kk > ks_[0]: return
    for k2 in ks_: phase[f'G6_{k2}'] = len(frags)
    chs_ = {k2: ring_round(f"w2_{k2}", sW2, vW2D, str(k2*32*896), private=True) for k2 in ks_}
    for u in range(4):
        for k2 in ks_:
            mf = (lambda A, kk=k2, u=u: [mfma(v(facc(u, t4), 4), A, hreg(kk, t4), "0" if kk == 0 else v(facc(u, t4), 4)) for t4 in range(4)])
            add_frag('tr', 4, vTP + u, chunks[chs_[k2]]['lo'], mf, chs_[k2])
while kk < OPT['NO']: g6step(kk); kk += 1
phase['G4'] = len(frags)
for p in range(7):
    phase[f'G4p{p}'] = len(frags)
    chs = [ring_round(f"wo_{p}_{h_}", sWO, vWOD, f"s{sQT+p}" if h_ == 0 else f"+s{sQT+p}, {4*32*896}") for h_ in range(2)]
    for u in range(4):
        for ks in range(8):
            ch = chs[ks // 4]
            mf = (lambda A, p=p, ks=ks, u=u: [mfma(v(acc4(p, u, tg), 4), A, v(Opk(ks, tg), 4), "0" if ks == 0 else v(acc4(p, u, tg), 4)) for tg in range(2)])
            add_frag('tr', 4, vTR + u, chunks[ch]['lo'] + (ks % 4)*4096, mf, ch)
    if p == 6: phase['G6'] = len(frags); NPOST = 14 - kk
    while kk < 14 and int(G6P[kk]) == p:
        g6step(kk)
        kk += 1
assert kk == 14
NF = len(frags)
phase['END'] = NF

MF = [fr['mf'](a(aF + 4*(f % NA), 4)) for f, fr in enumerate(frags)]
if OPT['CHAIN']:
    for f0 in range(0, NF, 4):
        nm_ = chunks[frags[f0]['chunk']]['name']
        isP = nm_[:2] in ('wq', 'w1')
        if nm_.startswith('K_') or nm_.startswith('wo_') or (OPT['PCH'] and isP):
            if OPT['SNAKE'] & 1:
                t0 = (f0 // 4) % 2
                fl = [MF[f0+k_][t0] for k_ in range(4)] + [MF[f0+k_][1-t0] for k_ in (3, 2, 1, 0)]
                ops = [re.match(r'(\S+) (\S+), (\S+), (\S+), (\S+)$', m_).groups() for m_ in fl]
                init = {o_[1]: o_[4] for o_ in ops if o_[4] != o_[1]}
                seen = set(); fl = []
                for o_ in ops:
                    c_ = init[o_[1]] if (o_[1] in init and o_[1] not in seen) else o_[1]
                    seen.add(o_[1]); fl.append(f"{o_[0]} {o_[1]}, {o_[2]}, {o_[3]}, {c_}")
            else:
                fl = [MF[f0+k_][tg] for tg in range(2) for k_ in range(4)]
            for k_ in range(4): MF[f0+k_] = fl[2*k_:2*k_+2]
        elif OPT['SNAKE'] & 2:
            for k_ in (1, 3): MF[f0+k_] = MF[f0+k_][::-1]
G0 = [0]
for f in range(NF): G0.append(G0[-1] + len(MF[f]))
NG = G0[-1]
def gap(f): return G0[max(0, min(f, NF))]
pre = [[] for _ in range(NG)]
rds = [[] for _ in range(NG)]
ext = [[] for _ in range(NG)]
blk = {}
for g in range(NF):
    if g + D < NF:
        r = frag_reads(g + D)
        n = len(MF[g])
        rds[G0[g]].append(r[0])
        if len(r) > 1: rds[G0[g] + n//2].append(r[1])
def cost(i):
    if i.cls in ('ds',): return 8
    if i.cls == 'vmem': return 24 if 'store' in i.op and 'x4' in i.op else 8
    if i.cls in ('trans', 'perm'): return 8
    if i.cls == 'label': return 0
    return 4
def gtime(items):
    t = 4
    for i in items:
        if i.cls in VALU_LIKE: t = max(t, 8)
        t += cost(i)
    return t
def fits(gp, i): return gtime(pre[gp] + rds[gp] + ext[gp] + [i]) <= 16
def place(seq, g0, g1=None):
    seq = [I(s) if isinstance(s, str) else s for s in seq]
    g1 = NG if g1 is None else min(g1, NG)
    gp = g0; n = len(seq)
    for k, ins in enumerate(seq):
        bound = max(min(g0 + ((k + 1) * (g1 - g0)) // n - 1, g1 - 1), gp)
        best = None
        for q in range(gp, bound + 1):
            if fits(q, ins): best = q; break
        if best is None:
            best = min(range(gp, bound + 1), key=lambda q: (gtime(pre[q] + rds[q] + ext[q] + [ins]), q))
        ext[best].append(ins)
        gp = best
    return gp
def spread(seq, g0, g1):
    n = len(seq); cur = g0
    for k, ins in enumerate(seq):
        lo = max(g0 + (k*(g1-g0))//n, cur); hi = max(g0 + ((k+1)*(g1-g0))//n, lo+1)
        cur = place([ins], lo, hi)
    return cur

shared = [c for c in range(len(chunks)) if not chunks[c]['private']]
def is_bar(k_):
    if k_ == 0: return True
    if k_ < 21: return (k_ - 1) % OPT['BARP'] == 0
    if k_ < 53: return (k_ - 21) % OPT['BARA'] == 0
    return (k_ - 53) % OPT['BAR4'] == 0
bar_frags = [chunks[c]['first'] for k_, c in enumerate(shared) if is_bar(k_)]
bar_frags += [phase['G6'], phase['G6'] + D + 1]
bar_frags = sorted(set(bar_frags))
bar_gap = []
first_need = None
for bi, f0 in enumerate(bar_frags):
    f1 = bar_frags[bi+1] if bi + 1 < len(bar_frags) else NF
    need = [('c', c) for c in shared if f0 <= chunks[c]['first'] < f1]
    if f0 == 0: first_need = need; continue
    gp = gap(f0 - D); bar_gap.append(gp)
    if need: ext[gp-1].append(mk_wait_vm(need))
    pre[gp].append(I("s_barrier" if not (OPT['NOBARR'] and gp < gap(phase['AEND']) - 40) else "s_nop 0"))
for c in range(len(chunks)):
    if chunks[c]['private']:
        ext[gap(chunks[c]['first'] - D) - 1].append(mk_wait_vm([('c', c)]))
for g in range(4, NF, 4):
    ext[gap(g) - 1].append(mk_wait_lg([('f', f) for f in range(g, min(g+4, NF))]))
def earliest_gap(c):
    e = -1
    C = chunks[c]
    for c2 in range(c):
        B = chunks[c2]
        if B['hi'] <= C['lo'] or C['hi'] <= B['lo']: continue
        if B['private']: e = max(e, gap(B['last'] + 1))
        else: e = max(e, [gp for gp in bar_gap if gp >= gap(B['last'] + 1)][0] + 1)
    return e
pro_dma = []
cur = OPT['DSTART']
for c in range(len(chunks)):
    e = earliest_gap(c)
    if e < 0 and c < OPT['NPRO']:
        pro_dma.append(chunks[c]['dma']); continue
    if chunks[c]['name'].startswith('w2_') and int(chunks[c]['name'][3:]) >= OPT['W2PRE']: e = max(e, gap(phase['G6']) + OPT['W2G'])
    g0 = max(e, cur)
    span = OPT['SPAN']
    if g0 > e + 8: span = OPT['SPAN2']
    if g0 >= gap(phase['G6'] - D): span = OPT['W2S']
    seq = list(chunks[c]['dma'])
    if chunks[c]['name'] == 'wo_0_0': seq = [I(f"v_accvgpr_read_b32 v{vWOD+i}, a{aST+i}") for i in range(4)] + seq; wo_first_gap = g0
    if chunks[c]['name'] == 'w2_0': seq = [I(f"v_accvgpr_read_b32 v{vW2D+i}, a{aST+4+i}") for i in range(4)] + seq
    cur = spread(seq, g0, g0 + span)
    need_gap = gap(chunks[c]['first'] - D)
    if not chunks[c]['private']: need_gap = max(gp for gp in bar_gap if gp <= need_gap)
    if OPT['LOG']: print(chunks[c]['name'], g0, cur, need_gap, 'lead', need_gap - cur, file=sys.stderr)
    assert cur < need_gap - 1, (chunks[c]['name'], cur)

seq = []
for p in range(7):
    seq += [f"s_add_u32 s{sT2}, s{sROT}, {p}", f"s_sub_u32 s{sT3}, s{sT2}, 7", f"s_min_u32 s{sT2}, s{sT2}, s{sT3}",
            f"s_lshl_b32 s{sQT+p}, s{sT2}, 7", f"s_lshl_b32 s{sT2}, s{sT2}, 16", f"s_add_u32 s{sQT+7+p}, s{sSST}, s{sT2}",
            f"s_add_u32 s{sSST}, s{sSST}, s{sSTEP}"]
spread(seq, 6, 100)
assert gap(phase['G3_8']) < wo_first_gap
assert OPT['BAR'] == 2
place([f"v_add_u32 v{vTP+i}, s{sWB}, v{vTR+i}" for i in range(12)], gap(phase['G3_12']), gap(phase['G3_14']))

def hconv(pp):
    s = []
    for kq in range(2):
        for tg in range(2):
            b = accp(pp, kq, tg, 0)
            if not OPT['PKR']:
                for r in range(8): s.append(f"v_max_f32 v{b+r}, 0, v{b+r}")
            for r in range(4): s.append(f"v_cvt_pk_bf16_f32 v{b+r}, v{b+2*r}, v{b+2*r+1}")
            if OPT['PKR']:
                for r in range(4): s.append(f"v_pk_max_i16 v{b+r}, v{b+r}, 0")
            if not OPT['NOHST']:
                s.append(I(f"buffer_store_dwordx4 {v(b,4)}, v{vHS}, {srd(sWS)}, s{sHST} offen offset:{kq*2048 + tg*1024} {OPT['HST']}", tag='hst'))
    if pp == 4: s.append(f"s_add_u32 s{sHST}, s{sHST}, 4096")
    return s
place(hconv(4), gap(phase['P5']) + 4, gap(phase['G2_0']) - 4)
def qconv(pp):
    s = []
    for kq in range(2):
        for tg in range(2):
            b = accp(pp, kq, tg, 0)
            s += [f"v_cvt_pk_bf16_f32 v{b+r}, v{b+2*r}, v{b+2*r+1}" for r in range(4)]
            s += [f"v_permlane32_swap_b32 v{b}, v{b+2}", f"v_permlane32_swap_b32 v{b+1}, v{b+3}",
                  f"v_permlane16_swap_b32 v{b}, v{b+2}", f"v_permlane16_swap_b32 v{b+1}, v{b+3}"]
            s += [f"v_accvgpr_write_b32 a{qf(2*pp+kq, tg)+r}, v{b+r}" for r in range(4)]
    return s
for pp in range(4):
    g0 = gap(phase[f'P{pp+1}'])
    place(qconv(pp), g0 + 4, g0 + 2*56 - 4)

def allred(r, t, op):
    return [f"v_mov_b32 v{t}, v{r}", f"v_permlane32_swap_b32 v{r}, v{t}", f"{op} v{r}, v{r}, v{t}",
            f"v_mov_b32 v{t}, v{r}", f"v_permlane16_swap_b32 v{r}, v{t}", f"{op} v{r}, v{r}, v{t}"]
def interleave(*seqs):
    out = []
    for k in range(max(len(s) for s in seqs)):
        for s in seqs:
            if k < len(s): out.append(s[k])
    return out
def svals(st): return [Sreg(st, tg, kt) + r for tg in range(2) for kt in range(2) for r in range(4)]
g0 = gap(phase['G2_0'])
seqs = []
for tg in range(2):
    b = Sreg(0, tg, 0); m = vM + 2*tg; t = m + 1
    s = [f"v_max3_f32 v{m}, v{b}, v{b+1}, v{b+2}", f"v_max_f32 v{m}, v{m}, v{b+3}"] + allred(m, t, "v_max_f32")
    s += [f"v_sub_f32 v{vC+4*tg+r}, 0, v{m}" for r in range(4)]
    seqs.append(s)
seq = interleave(*seqs) + [f"v_mov_b32 v{vLS}, 0", f"v_mov_b32 v{vLS+1}, 0"]
gm = place(seq, g0 + 19, g0 + 31)
def sm_seq(st, sub):
    s = []
    vals = svals(st)
    for k_, r in enumerate(vals):
        tg = k_ // 8
        if sub: s.append(f"v_add_f32 v{r}, v{r}, v{vC+4*tg}")
        s.append(f"v_exp_f32 v{r}, v{r}")
        if k_ % 2 == 1 and k_ >= 3:
            kk = k_ - 3
            s.append(f"v_cvt_pk_bf16_f32 v{Preg(st, kk//8) + (kk % 8)//2}, v{vals[kk]}, v{vals[kk+1]}")
    s.append(f"v_cvt_pk_bf16_f32 v{Preg(st, 1) + 3}, v{vals[14]}, v{vals[15]}")
    return s
def add_seq(st):
    vals = svals(st)
    return interleave([f"v_add_f32 v{vLS}, v{vLS}, v{r}" for r in vals[:8]], [f"v_add_f32 v{vLS+1}, v{vLS+1}, v{r}" for r in vals[8:]])
for st in range(16):
    g3 = gap(phase[f'G3_{st}'])
    if st == 0:
        ge = place(sm_seq(st, True), gap(phase['G2_1']) + 3, g3 - 1)
    elif st < 15:
        gs = gap(phase[f'G2_{st+1}'] - D)
        ge = place(sm_seq(st, False), gs, g3 - 2)
    else:
        ge = place(sm_seq(st, False), gap(phase['G3_14']) + 4, g3 - 2)
    lim = gap(phase[f'G2_{st+2}']) - 2 if st + 2 < 16 else g3 + 14
    ga = place(add_seq(st), ge, lim)
seqs = []
for tg in range(2):
    l = vLS + tg; t = vM + tg
    seqs.append(allred(l, t, "v_add_f32") + [f"v_rcp_f32 v{vRC+tg}, v{l}"])
seq = interleave(*seqs) + [f"v_add_f32 v{vM}, v{vLS}, v{vLS+1}", f"s_mov_b32 s{sT0}, {hx(f2u(2.0**24 if not OPT['FORCEFB'] else 0.5))}", f"v_cmp_ngt_f32 vcc, s{sT0}, v{vM}"]
place(seq, ga, gap(phase['AEND']) - 1)

hc = hconv(5)
n3 = 3*len(hc)//4
place(hc[:n3], gap(phase['G2_0']) + 3, gap(phase['G2_0']) + 19)
gend = place(hc[n3:], gap(phase['G3_0']), gap(phase['G3_0']) + 16)
assert accp(5, 1, 1, 0) >= Oreg(10, 0)
hb = [gp for gp in bar_gap if gp > gend + OPT['HSIG']][0]
ext[hb-1].append(mk_wait_vm(['hst']))
sig = [I(f"s_cmp_lg_u32 s{sW}, 0"), I("s_cbranch_scc1 L_nosig"), I(f"s_lshl_b32 s{sT0}, s{sT}, 4"), I(f"v_mov_b32 v{vPOLL}, s{sT0}"),
       I("s_mov_b64 exec, 1"), I(f"global_atomic_add v{vPOLL}, v{vONE}, {DBGP} sc1"), I("s_mov_b64 exec, -1"), I("L_nosig:")]
sig[5].cls = 'misc'
ext[hb+1] += sig

def dump(regs_list):
    r = [I("s_nop 15"), I(f"s_lshl_b32 s{sT0}, s{sT}, 4"), I(f"s_add_u32 s{sT0}, s{sT0}, s{sHD}"),
         I(f"s_lshl_b32 s{sT0}, s{sT0}, 2"), I(f"s_add_u32 s{sT0}, s{sT0}, s{sW}"),
         I(f"s_mul_i32 s{sT0}, s{sT0}, {32*1024}"), I(f"s_add_u32 s{sT0}, s{sT0}, {hx(WS_DBG)}")]
    for reg in regs_list:
        r.append(I(f"buffer_store_dwordx4 {reg}, v{vL16}, {srd(sWS)}, s{sT0} offen"))
        r.append(I(f"s_add_u32 s{sT0}, s{sT0}, 1024"))
    r.append(I("s_nop 3"))
    return r
def ocvt(ks): return [f"v_cvt_pk_bf16_f32 v{Opk(ks, tg)+r}, v{Opk(ks, tg)+2*r}, v{Opk(ks, tg)+2*r+1}" for tg in range(2) for r in range(4)]
if OPT['ONORM']:
    def ocvt(ks):
        s = []
        for tg in range(2):
            o = Opk(ks, tg)
            s += [f"v_pk_mul_f32 {v(o+2*r,2)}, {v(o+2*r,2)}, {v(vRC,2)} op_sel:[0,{tg}] op_sel_hi:[1,{tg}]" for r in range(4)]
        for tg in range(2):
            o = Opk(ks, tg)
            s += [f"v_cvt_pk_bf16_f32 v{o+r}, v{o+2*r}, v{o+2*r+1}" for r in range(4)]
        return s
NEARLY = 0 if OPT['ONORM'] else OPT['OEARLY']
g15 = gap(phase['G3_15'])
for ks in range(NEARLY): place(ocvt(ks), g15 + 4*ks + 8, gap(phase['G4']) - 1)
assert NEARLY == 0
b = stamp_ins('attn_done') + [I("s_cbranch_vccnz L_exact"), I("L_exact_ret:")]
NX = OPT['NX'] if OPT['NO'] else 8
for ks in range(NX): b += [I(t_) for t_ in ocvt(ks)]
blk[phase['AEND']] = b
if OPT['NO']:
    seq = []
    for ks in range(NX, 8):
        for tg in range(2):
            o = Opk(ks, tg)
            seq += [f"v_mul_f32 v{o+r}, v{vRC+tg}, v{o+r}" for r in range(8)] + [f"v_cvt_pk_bf16_f32 v{o+r}, v{o+2*r}, v{o+2*r+1}" for r in range(4)]
    ONSEQ = seq
    b = []
if OPT['DUMP'] == 'o': b += dump([v(Opk(ks, tg), 4) for ks in range(8) for tg in range(2)])
if OPT['DUMP'] == 'q': b += dump([a(qf(ks, tg), 4) for ks in range(8) for tg in range(2)])
b += stamp_ins('G4')
blk[phase['G4']] = b

def sconv(p, u):
    s = []
    for tg in range(2):
        b = acc4(p, u, tg); d = acc4(p, u & ~1, tg) + 2*(u & 1)
        if not OPT['ONORM']: s += [f"v_mul_f32 v{b+r}, v{vRC + tg}, v{b+r}" for r in range(4)]
        s += [f"v_cvt_pk_bf16_f32 v{d}, v{b}, v{b+1}", f"v_cvt_pk_bf16_f32 v{d+1}, v{b+2}, v{b+3}"]
        if u & 1:
            if (u, tg) != (1, 0): s.append(f"s_add_u32 s{sQT+7+p}, s{sQT+7+p}, 16384")
            if not OPT['NOSST']: s.append(I(f"buffer_store_dwordx4 {v(acc4(p, u & ~1, tg),4)}, v{vL16}, {srd(sWS)}, s{sQT+7+p} offen {OPT['SST']}", tag=('sst', p)))
    return s
g4 = gap(phase['G4'])
for p in range(7):
    for u in range(4):
        g0 = gap(phase[f'G4p{p}']) + 16*(u+1)
        if u == 3 and p < 6: gl = place(sconv(p, u), g0 + 3, g0 + 28)
        else: gl = place(sconv(p, u), g0 + 3, g0 + (19 if (p, u) != (6, 3) else 10))
last_store_gap = gl
hs = OPT['HSTEP']
gp0 = gap(phase[f'G3_{hs-1}']) - 30
place([f"s_lshl_b32 s{sT0}, s{sTC}, 4", f"v_mov_b32 v{vPOLL}, s{sT0}", I(f"global_load_dword v{vPOLL}, v{vPOLL}, {DBGP} sc1", tag='pollh'),
       f"v_add_u32 v{vHS}, s{sCOOB}, v{vL16}"], gp0, gp0 + 24)
gp1 = gap(phase[f'G3_{hs}'])
ext[gp1] += [mk_wait_vm(['pollh']), I(f"v_cmp_gt_u32 vcc, 16, v{vPOLL}"), I("s_cbranch_vccnz L_spinh"), I("L_spinh_ret:")]
sHB = 98
def hloads(k0, k1):
    s = []
    for kk in range(k0, k1, 2):
        for j in range(4):
            s.append(f"s_add_u32 s{sT0}, s{sHB+j}, {kk*2048}")
            for k2 in range(2):
                s.append(I(f"buffer_load_dwordx4 {hreg(kk+k2, j)}, v{vHS}, {srd(sWS)}, s{sT0} offen offset:{k2*2048} {OPT['HLD']}", tag='hld'))
    return s
seq = []
for j in range(4):
    seq += [f"s_add_u32 s{sT2}, s{sW}, {j}", f"s_bfe_u32 s{sT3}, s{sT2}, 0x10001", f"s_mul_i32 s{sT3}, s{sT3}, {56*2048}", f"s_and_b32 s{sT2}, s{sT2}, 1",
            f"s_lshl_b32 s{sT2}, s{sT2}, 10", f"s_add_u32 s{sT2}, s{sT2}, s{sT3}", f"s_add_u32 s{sHB+j}, s{sHLD}, s{sT2}"]
spread(seq, gap(phase['P2']), gap(phase['P3']))
if not OPT['NOHLD']:
    spread(hloads(0, 8), gap(phase[f"G3_{hs+OPT['HPF']}"]) + 2, gap(phase['G3_15']) - OPT['HEND'])
    if OPT['H2X']:
        hl = [I(s_) if isinstance(s_, str) else s_ for s_ in hloads(8, 8 + OPT['H2X'])]
        b_ = blk[phase['AEND']]
        k0 = [k_ for k_, i_ in enumerate(b_) if i_.text == 'L_exact_ret:'][0]
        for k_, i_ in enumerate(hl): b_.insert(k0 + 1 + k_*OPT['H2S'], i_)
    spread(hloads(8 + OPT['H2X'], 14), g4 + OPT['H2A'], g4 + OPT['H2B'])
if OPT['NO']: place(ONSEQ, gap(phase['AEND']) + 1, gap(phase['G4']) - 1)
g6 = gap(phase['G6'])
vFV = 120
def greg(rl, sl):
    i = sl*2 + rl
    if NPOST <= 10: i = (i + 16) % 32
    if i < 16: return v(Opk(0, 0) + 8*i, 4)
    return a(aH + (i - 16)*4, 4)
assert OPT['CA'] > 0 or (NPOST <= 10 and g6 + OPT['CA'] > gap(phase['G6_3'] + 4))
def gloads(s0, s1, va):
    s = []
    for sq in range(s0, s1, 2):
        for rl in range(2):
            s.append(I(f"s_add_u32 s{sT1}, s{sSG}, {rl*2*16384 + sq*1024}"))
            for sl in range(sq, sq+2):
                if not OPT['NOG']: s.append(I(f"buffer_load_dwordx4 {greg(rl, sl)}, v{va}, {srd(sWS)}, s{sT1} offen offset:{(sl-sq)*1024} {OPT['GLD']}", tag=('g', rl, sl)))
    return s
F0 = OPT['F0']
sPL = 32
sMISS = 18
F1 = OPT['F1']
place([f"v_and_b32 v{vFV+3}, 15, v0"], g4 + 100, g4 + 200)
def signal(k, n): return [mk_wait_vm([('sst', p) for p in range(n)]), I(f"buffer_store_byte v{vONE}, v{vZ}, {srd(sWS)}, s{sFLG} offen offset:{128*k} sc1", tag='flag')]
spoll = I(f"s_buffer_load_dwordx4 s[{sPL}:{sPL+3}], {srd(sWS)}, s{sFLP} glc"); spoll.cls = 'misc'
VPOLL2 = f"buffer_load_ubyte v{vPOLL}, v{vFV+3}, {srd(sWS)}, s{sFLP} offen offset:256 sc1"
VPOLL = VPOLL2 if F1 == 7 else VPOLL2.replace('offset:256', 'offset:128')
ext[gap(phase[f'G4p{F0-1}']) + 64 + OPT['SA']] += signal(0, F0) + stamp_ins('sigA')
if F1 < 7: ext[gap(phase[f'G4p{F1-1}']) + 64 + OPT['SB']] += signal(1, F1) + stamp_ins('sigB')
ext[g6 + OPT['PA']] += [spoll]
sg = g6 + OPT['SC']
ext[sg] += signal(2, 7) + stamp_ins('st_done') + [I(f"s_cmp_ge_u32 s{sPC}, 14"), I("s_cbranch_scc1 " + ("L_fin" if OPT['STAMP'] == 3 else "L_end"))]
assert sg > bar_gap[-1] and sg > last_store_gap
ext[g6 + OPT['CA']] += stamp_ins('pre_c0') + [I(t_) for t_ in (
    "s_waitcnt lgkmcnt(0)", f"s_and_b64 s[{sPL}:{sPL+1}], s[{sPL}:{sPL+1}], s[{sPL+2}:{sPL+3}]", f"s_and_b32 s{sPL}, s{sPL}, s{sPL+1}",
    f"s_and_b32 s{sPL}, s{sPL}, 0x01010101", f"s_cmp_eq_u32 s{sPL}, 0x01010101", f"s_cselect_b32 s{sMISS}, 0, {hx(OOB)}",
    f"v_add_u32 v{vFV+2}, s{sMISS}, v{vHS}")] + stamp_ins('chk0')
spread(gloads(0, 2*F0, vFV+2), g6 + OPT['CA'] + 1, g6 + OPT['LA'])
ext[g6 + OPT['PB']] += [I(VPOLL, tag='poll')]
NSB = 2*F1 if F1 < 7 else OPT['NSB']
assert OPT['CE'] > max(OPT['PB'], OPT['LA'])
ext[g6 + OPT['CE']] += stamp_ins('pre_c1') + [mk_wait_vm(['poll'])] + [I(t_) for t_ in (f"v_cmp_ne_u32 vcc, 1, v{vPOLL}", "s_cbranch_vccnz L_spin1", "L_spin1_ret:",
    f"s_cmp_lg_u32 s{sMISS}, 0", "s_cbranch_scc1 L_redo", "L_redo_ret:")] + stamp_ins('chk1')
glB = gloads(2*F0, NSB, vHS)
kp = len(glB) - 3*OPT['PCB']
if F1 < 7 and not OPT['P2G']: glB[kp:kp] = [I(VPOLL2, tag='poll2')]
spread(glB, g6 + OPT['CE'] + 1, min(g6 + OPT['LB'], NG - 4))
glC = gloads(NSB, 16, vHS)
if OPT['P2G']:
    assert OPT['P2G'] >= OPT['LB'] and OPT['PCB'] == 0
    ext[g6 + OPT['P2G']] += [I(VPOLL2, tag='poll2')]
if OPT['C2G']:
    ext[g6 + OPT['C2G']] += stamp_ins('pre_c2') + [mk_wait_vm(['poll2'])] + [I(t_) for t_ in (f"v_cmp_ne_u32 vcc, 1, v{vPOLL}", "s_cbranch_vccnz L_spin2", "L_spin2_ret:")] + stamp_ins('chk2')
    spread(glC, g6 + OPT['C2G'] + 1, NG - 2); glC = []
NYB = 2*(NSB - 2*F0) + (1 if F1 < 7 else 0)

vXF = 32
vAD = 125
nch = len(chunks)
free_ = [c_ for c_ in range(nch - 10, nch - NU) if chunks[c_]['private']]
XK = free_[0]; FS = [chunks[c_]['lo'] for c_ in free_[1:4]]
assert gap(chunks[free_[3]]['last'] + 1) < NG - 16*NU
XS = chunks[XK]['lo']
gx_ = max(gap(chunks[XK]['last'] + 1), cur + 1, g6 + OPT['XG'])
gx2 = place([f"v_accvgpr_read_b32 v{vAD}, a{aST+8}", f"s_add_u32 m0, s{sWB}, {XS}", f"s_movk_i32 s{sSV0}, {8*896 - 1024}", f"s_movk_i32 s{sSV1}, {8*896}",
       I(f"buffer_load_dwordx4 v{vAD}, {srd(sX)}, 0 offen lds", tag='xf'), I(f"buffer_load_dwordx4 v{vAD}, {srd(sX)}, s{sSV0} offen offset:1024 lds", tag='xf'),
       f"v_and_b32 v{vT3}, 15, v0", f"v_lshlrev_b32 v{vT3}, 7, v{vT3}", f"v_lshrrev_b32 v{vT4}, 4, v0", f"v_lshl_add_u32 v{vT3}, v{vT4}, 3, v{vT3}",
       f"s_add_u32 s{sSV2}, s{sWB}, {XS}", f"v_add_u32 v{vT3}, s{sSV2}, v{vT3}", f"v_lshrrev_b32 v{vT4}, 3, v0", f"v_lshl_add_u32 v{vT4}, v{vT4}, 4, v{vL16}", f"v_add_u32 v{vT4}, s{sSV2}, v{vT4}",
       f"v_and_b32 v{vPF}, 15, v0", f"v_lshl_add_u32 v{vPF}, v{vPF}, 4, v{vT3}"], gx_, gx_ + 30)
vSEL = 108
def vsa(u): return hole(8 + u)
vXU = 8
seq = [f"v_mov_b32 v{vSEL}, 0", f"v_mov_b32 v{vSEL+1}, 0", f"v_mov_b32 v{vSEL+4}, 0", f"v_mov_b32 v{vSEL+5}, 0", f"v_mov_b32 v{vT0}, 0x3f80", f"v_mov_b32 v{vSEL+2}, 0x3f800000",
       f"s_or_b64 s[16:17], s[{sM1}:{sM1+1}], s[{sM3}:{sM3+1}]", f"v_cndmask_b32 v{vT0}, v{vT0}, v{vSEL+2}, s[16:17]", f"v_cndmask_b32 v{vT0}, 0, v{vT0}, s[{sMD}:{sMD+1}]",
       f"v_cndmask_b32 v{vSEL+2}, v{vT0}, 0, s[{sM2}:{sM2+1}]", f"v_cndmask_b32 v{vSEL+3}, 0, v{vT0}, s[{sM2}:{sM2+1}]",
              f"v_mov_b32 v24, {hx(f2u(-16.0))}", f"v_mov_b32 v25, {hx(f2u(1.0/CSCALE))}"]
place(seq, NG - 31, NG - 12)
vFW, vFR = 40, 121
FRR = [120, 121, 124]
seq = []
for j in range(1, 4):
    seq += [f"s_add_u32 s{sT2}, s{sWB}, {FS[j-1]}", f"v_add_u32 v{vFW+j-1}, s{sT2}, v{vL16}",
            f"s_sub_u32 s{sT2}, s{sWB}, {j*4096}", f"s_and_b32 s{sT2}, s{sT2}, 0x3000", f"s_add_u32 s{sT2}, s{sT2}, {FS[j-1]}", f"v_add_u32 v{FRR[j-1]}, s{sT2}, v{vL16}"]
place(seq, NG - 16*NU - 30, NG - 16*NU)
def fwrites(u): return [I(f"ds_write_b128 v{vFW+j-1}, {v(facc(u, j), 4)} offset:{u*1024}") for j in range(1, 4)]
for u in range(3):
    ge_ = NG - 4*NU*(3 - u)
    spread(fwrites(u), ge_ + 4, min(ge_ + 4*NU + 3, NG))
seq = [mk_wait_vm(['xf'])] + [I(f"ds_read_b64 {v(vXF + 2*u, 2)}, v{vT3} offset:{u*32}", tag='xr2') for u in range(4)]
place(seq, NG - 44, NG - 34)
seq = [mk_wait_lg(['xr2'])]
for u in range(4):
    xr = vXF + u*2; b2 = vXU + 4*u
    seq += [f"v_lshlrev_b32 v{b2}, 16, v{xr}", f"v_and_b32 v{b2+1}, 0xffff0000, v{xr}", f"v_lshlrev_b32 v{b2+2}, 16, v{xr+1}", f"v_and_b32 v{b2+3}, 0xffff0000, v{xr+1}"]
place(seq, NG - 26, NG)
pass
HX = OPT['HX']; NHG = 16 // HX; NT = 32 // HX
npf = [0]
def pf_addr(nlines, lines_per_row, pitch, k, dst, idx_sgpr, nshare):
    per = nlines // nshare
    s = [f"s_lshl_b32 s{sSO2}, s{sW}, 6", f"s_add_u32 s{sSO2}, s{sSO2}, {k*256}", f"v_add_u32 v{dst}, s{sSO2}, v0",
         f"v_min_u32 v{dst}, {per-1}, v{dst}", f"s_mul_i32 s{sSO2}, s{idx_sgpr}, {per}", f"v_add_u32 v{dst}, s{sSO2}, v{dst}"]
    if lines_per_row is None:
        s += [f"v_lshlrev_b32 v{dst}, 7, v{dst}"]
    else:
        sh = lg(lines_per_row)
        s += [f"v_and_b32 v{vPF}, {lines_per_row-1}, v{dst}", f"v_lshrrev_b32 v{dst}, {sh}, v{dst}",
              f"v_mul_u32_u24 v{dst}, {pitch}, v{dst}", f"v_lshl_add_u32 v{dst}, v{vPF}, 7, v{dst}"]
    return s
def pf_load(srd_b, dst):
    npf[0] += 1
    return I(f"buffer_load_dword a{aST + 10 + npf[0] % 6}, v{dst}, {srd(srd_b)}, 0 offen {OPT['PPF']}", tag='pf')
def pf_seq(srd_b, nlines, lines_per_row, pitch, idx, nshare):
    s = []
    for k in range((nlines // nshare + 255) // 256):
        s += pf_addr(nlines, lines_per_row, pitch, k, vPF+1, idx, nshare) + [pf_load(srd_b, vPF+1)]
    return s
vLQ = 26
def pf_pieces(srd_b, per, unit, idx, extra_base=None, pol='', rot=False):
    setup = [f"s_mul_i32 s{sSO2}, s{idx}, {per}", f"v_add_u32 v{vPF+1}, s{sSO2}, v{vLQ}", f"v_mul_u32_u24 v{vPF+1}, {unit}, v{vPF+1}"]
    if extra_base is not None: setup.append(f"v_add_u32 v{vPF+1}, s{extra_base}, v{vPF+1}")
    pcs = []
    for k in range((per + 63)//64):
        npf[0] += 1
        n_ = (per + 63)//64
        if rot and k == 0: so_ = [f"s_lshr_b32 s{sSO2}, s{sTC}, 1", f"s_sub_u32 s{sCNT}, s{sSO2}, {n_}", f"s_min_u32 s{sSO2}, s{sSO2}, s{sCNT}", f"s_mul_i32 s{sSO2}, s{sSO2}, {64*unit}"]
        elif rot: so_ = [f"s_add_u32 s{sSO2}, s{sSO2}, {64*unit}", f"s_sub_u32 s{sCNT}, s{sSO2}, {n_*64*unit}", f"s_min_u32 s{sSO2}, s{sSO2}, s{sCNT}"]
        else: so_ = [f"s_mov_b32 s{sSO2}, {k*64*unit}"]
        pcs.append(so_ + [I(f"buffer_load_dword a{aST + 9 + npf[0] % 7}, v{vPF+1}, {srd(srd_b)}, s{sSO2} offen {pol}", tag='pf')])
    return setup, pcs
def pf_run(streams, g0, g1):
    items = []
    for st_ in streams:
        su, pcs = st_
        for k, p_ in enumerate(pcs): items.append((su if k == 0 else []) + p_)
    n = len(items)
    for k, it_ in enumerate(items):
        lo = g0 + (k*(g1-g0))//n
        place(it_, lo, lo + 24)
if OPT['PF']:
    place([f"v_lshrrev_b32 v{vLQ}, 2, v0", f"s_lshl_b32 s{sSO2}, s{sW}, 4", f"v_add_u32 v{vLQ}, s{sSO2}, v{vLQ}"], 100, 130)
    if not OPT['BIG'] & 2 and not OPT['NOPF2'] & 4: pf_run([pf_pieces(sKK, 2048//(2*NT), 128, sKVI, pol=OPT['PPF']), pf_pieces(sVV, 2048//(2*NT), 128, sKVI, pol=OPT['PPF'])], OPT['PFG'], gap(phase['P4']))
    if not OPT['NOPF2'] & 1: pf_run([pf_pieces(sWO, 1792//16, 128, sT) if OPT['WOM'] else pf_pieces(sWO, 1792//NT, 128, sTL), (lambda z: (z[0], z[1][:OPT['W2N']]))(pf_pieces(sW2, 448, 896, sW2I, rot=OPT['W2ROT']))], gap(phase[f"G3_{OPT['PF0']}"]), gp1 if OPT['PF1'] == 0 else gap(phase[f"G3_{OPT['PF1']}"]))
    vPF += -20
    sSO2 = sT3
    if not OPT['NOPF2'] & 2: pf_run([pf_pieces(sWS, 256, 128, sCC, sHPF, 'sc1')], gp1 + 2, gap(phase[f"G3_{hs+OPT['HPF']}"]) - 20)
    vPF += 20
    sSO2 = 93

if OPT['STLB'] == 2:
    for k_, (b_, o_) in enumerate(((sKK, '0'), (sVV, '0'), (sW2, '0'), (sWO, '0'), (sWS, f's{sHST}'), (sWS, f's{sQT+7}'), (sOUT, '0'))):
        i_ = I(f"s_buffer_load_dword s{sCNT}, {srd(b_)}, {o_}"); i_.cls = 'misc'; i_.dst = []
        place([i_], OPT['ST0'] + k_*OPT['STS'], OPT['ST0'] + k_*OPT['STS'] + 8)
if OPT['CPF'] and not OPT['STAMP']:
    gc = gap(phase[OPT['CPF']])
    place([f"s_lshr_b32 s{sT2}, s0, 3", f"s_lshl_b32 s{sT2}, s{sT2}, 10", f"s_add_u32 s{sT2}, s{sT2}, 0x8000", f"v_and_b32 v{vT2}, 7, v0", f"v_lshlrev_b32 v{vT2}, 7, v{vT2}",
           f"v_add_u32 v{vT2}, s{sT2}, v{vT2}", I(f"global_load_dword a{aST+9}, v{vT2}, s[26:27]", tag='pf')], gc, gc + 30)
if OPT['TLB']:
    gt = gap(phase[OPT['TLBP']])
    seq = []
    if OPT['TLB'] & 1: seq += [f"v_accvgpr_read_b32 v{vT1}, a{aST+8}", f"v_readfirstlane_b32 s{sT2}, v{vT1}", "s_nop 0", "s_nop 0", I(f"buffer_load_dword a{aST+9}, v{vZ}, {srd(sOUT)}, s{sT2} offen", tag='pf')]
    if OPT['TLB'] & 2: seq += [I(f"buffer_load_dword a{aST+9}, v{vZ}, {srd(sWS)}, s{sQT+7} offen sc1", tag='pf')]
    if OPT['TLB'] & 4: seq += [I(f"buffer_load_dword a{aST+9}, v{vZ}, {srd(sWS)}, s{sSG} offen sc1", tag='pf'), ]
    spread(seq, gt, gt + 40)
    if OPT['TLB'] & 8: place([I(f"buffer_load_dword a{aST+9}, v{vZ}, {srd(sWS)}, s{sHST} offen sc1", tag='pf')], gap(phase['P3']), gap(phase['P3']) + 20)
if OPT['FINE'] == 1:
    for p in range(1, 7): blk[phase[f'G4p{p}']] = stamp_ins(f'G4p{p}')
if OPT['FINE'] == 2:
    for nm in ['P1', 'P3', 'P5'] + [f'G2_{s_}' for s_ in range(1, 16) if s_ % 4] + ['G3_14', 'G3_15']:
        blk[phase[nm]] = stamp_ins(nm)
if OPT['STAMP'] or OPT['WAITAT']:
    for nm in ('P0', 'P2', 'P4', 'G2_0', 'G2_4', 'G2_8', 'G2_12', 'G6'):
        blk.setdefault(phase[nm], [])
        blk[phase[nm]] = stamp_ins(nm) + blk[phase[nm]]

E(f"""
s_cmp_ge_u32 s2, 256
s_cbranch_scc1 L_end
s_load_dwordx16 s[4:19], s[0:1], 0
s_load_dwordx4 s[20:23], s[0:1], 64
s_load_dwordx2 s[24:25], s[0:1], 80
""")
if OPT['STAMP'] or OPT['WAITAT']: E("s_memtime s[98:99]\ns_memrealtime s[100:101]")
E(f"""
v_lshrrev_b32 v{vT0}, 6, v0
v_and_b32 v0, 63, v0
s_and_b32 s{sT0}, s2, 7
v_readfirstlane_b32 s{sW}, v{vT0}
s_lshr_b32 s{sT1}, s2, 3
s_and_b32 s{sT2}, s{sT0}, {NHG-1}
s_lshl_b32 s{sT2}, s{sT2}, {lg(HX)}
s_and_b32 s{sHD}, s{sT1}, {HX-1}
s_add_u32 s{sHD}, s{sHD}, s{sT2}
s_lshr_b32 s{sT2}, s{sT0}, {lg(NHG)}
s_lshl_b32 s{sT2}, s{sT2}, {lg(NT)}
s_lshr_b32 s{sTL}, s{sT1}, {lg(HX)}
s_add_u32 s{sT}, s{sTL}, s{sT2}
s_lshl_b32 s{sWB}, s{sW}, 12
""")
CODE_LINES = 512
E(f"s_lshr_b32 s{sCNT}, s2, 3")
for t_ in pf_addr(CODE_LINES, None, 0, 0, vR+80, sCNT, 32): E(t_)
E(f"""
s_getpc_b64 s[26:27]
L_pc:
global_load_dword v{vR+96}, v{vR+80}, s[26:27]
""")
E(f"""
v_lshrrev_b32 v{vT3}, 3, v0
v_and_b32 v{vT4}, 7, v0
v_lshrrev_b32 v{vT1}, 1, v{vT3}
v_xor_b32 v{vT1}, v{vT1}, v{vT4}
v_lshlrev_b32 v{vT1}, 4, v{vT1}
v_xor_b32 v{vT2}, 64, v{vT1}
s_lshl_b32 s{sT1}, s{sT}, 2
s_add_u32 s{sT1}, s{sT1}, s{sW}
s_mul_i32 s{sT1}, s{sT1}, {32*896}
v_mul_u32_u24 v{vT0}, 896, v{vT3}
v_add_u32 v{vT0}, s{sT1}, v{vT0}
v_add_u32 v{vXD}, v{vT0}, v{vT1}
v_add_u32 v{vXD+1}, v{vT0}, v{vT2}
v_add_u32 v{vXD+2}, {2*6144}, v{vXD}
v_add_u32 v{vXD+3}, {3*6144}, v{vXD+1}
v_add_u32 v{vXD+1}, 6144, v{vXD+1}
s_mov_b32 m0, s{sWB}
s_mov_b32 s{sSO}, 0
v_min_u32 v{vR+82}, 13, v0
v_subrev_u32 v{vR+83}, 7, v{vR+82}
v_min_u32 v{vR+83}, v{vR+83}, v{vR+82}
v_sub_u32 v{vR+82}, v{vR+82}, v{vR+83}
v_lshlrev_b32 v{vR+82}, 11, v{vR+82}
v_lshl_add_u32 v{vR+82}, v{vR+83}, 7, v{vR+82}
s_mul_i32 s{sT2}, s{sHD}, 896
s_add_u32 s{sT2}, s{sT2}, s{sT1}
s_mov_b32 s{sX+2}, {2048*896}
s_mov_b32 s{sX+3}, 0x00020000
s_waitcnt lgkmcnt(0)
s_mov_b32 s{sX}, s4
s_mov_b32 s{sX+1}, s5
""")
if OPT['STAMP']: E(f"v_writelane_b32 v{vSTAMP}, s98, 60\nv_writelane_b32 v{vSTAMP}, s100, 61")
if OPT['WAITAT']: E('s_mov_b32 s1, s100')
PST('karg')
def mk_srd(b, plo, off_sgpr, size):
    if off_sgpr is None:
        E(f"s_mov_b32 s{b}, s{plo}\ns_mov_b32 s{b+1}, s{plo+1}")
    else:
        E(f"s_add_u32 s{b}, s{plo}, s{off_sgpr}\ns_addc_u32 s{b+1}, s{plo+1}, 0")
    E(f"s_mov_b32 s{b+2}, {size}\ns_mov_b32 s{b+3}, 0x00020000")
xdma = []
for tg in range(2):
    for q in range(7):
        if q or tg:
            xdma += [I(f"s_add_u32 m0, s{sWB}, {q*SLOT}"), I(f"s_movk_i32 s{sSO}, {q*128}")]
        for rb in (2*tg, 2*tg+1):
            xdma.append(I(f"buffer_load_dwordx4 v{vXD+rb}, {srd(sX)}, s{sSO} offen offset:{rb*1024} {OPT['PX']} lds", tag=('x', tg, q)))
def xissue(n):
    while n > 0 and xdma:
        i_ = xdma.pop(0); P.ins.append(i_)
        if i_.cls == 'vmem': n -= 1
if OPT['XPF']: E(f"buffer_load_dword a{aST+9}, v{vR+82}, {srd(sX)}, s{sT2} offen", tag='pf')
xissue(OPT['XFIRST'])
if OPT['STLB'] >= 3:
    lst = [("s[10:11]", 0), ("s[10:11]", 400*8192), ("s[16:17]", 0), ("s[24:25]", WS_F + 0x10000)]
    if OPT['STLB'] >= 4: lst += [("s[6:7]", 'kv'), ("s[8:9]", 'kv'), ("s[18:19]", 0), ("s[20:21]", 0), ("s[12:13]", 0), ("s[12:13]", 4000*896)]
    for p_, o_ in lst:
        if o_ == 'kv': E(f"s_lshl_b32 s{sCNT}, s{sHD}, 19")
        else: E(f"s_mov_b32 s{sCNT}, {hx(o_)}")
        i_ = I(f"s_load_dword s{sSTEP}, {p_}, s{sCNT}"); i_.dst = []; P.ins.append(i_)
E(f"s_lshl_b32 s{sT0}, s{sHD}, 9\ns_sub_u32 s{sT2}, {448*8192}, s{sT0}")
mk_srd(sWQ, 10, sT0, f"s{sT2}")
if OPT['EPF']:
    for t_ in pf_seq(sWQ, OPT['EPF'], 1, 8192, sT, 16):
        if isinstance(t_, str): E(t_)
        else: P.ins.append(t_)
wqpf = [I(t_) if isinstance(t_, str) else t_ for t_ in pf_seq(sWQ, 448*OPT['WQP'], OPT['WQP'], 8192, sTL, NT)] if OPT['PF'] and OPT['WQP'] else []
if OPT['WQE'] == 1: P.ins += wqpf; wqpf = []
else: P.ins += wqpf[:-1]; wqpf = wqpf[-1:]
xissue(OPT['XSEC'])
PST('x_first')
mk_srd(sOUT, 20, None, 2048*896)
E(f"""
s_lshl_b32 s{sT0}, s{sW}, 7
v_lshlrev_b32 v{vKD}, 9, v{vT3}
v_add_u32 v{vVD}, s{sT0}, v{vKD}
v_add_u32 v{vKD}, v{vVD}, v{vT1}
v_add_u32 v{vKD+1}, v{vVD}, v{vT2}
v_add_u32 v{vKD+2}, {2*3072}, v{vKD}
v_add_u32 v{vKD+3}, {3*3072}, v{vKD+1}
v_add_u32 v{vKD+1}, 3072, v{vKD+1}
v_and_b32 v{vT0}, 6, v{vT3}
v_xor_b32 v{vT0}, v{vT0}, v{vT4}
v_lshlrev_b32 v{vT0}, 4, v{vT0}
v_add_u32 v{vVD}, v{vVD}, v{vT0}
""")
for rb in range(1, 4): E(f"v_add_u32 v{vVD+rb}, {3072*rb}, v{vVD}")
E(f"""
v_and_b32 v{vT1}, {0 if OPT['LNM'] else 4}, v{vT3}
v_add_u32 v{vT1}, v{vT1}, v{vT3}
v_lshl_add_u32 v{vWQ}, v{vT1}, 13, v{vT0}
v_mul_u32_u24 v{vT1}, 3584, v{vT1}
v_add_u32 v{vW1D}, v{vT1}, v{vT0}
""")
for rb in range(1, 4):
    rr = 8*rb if OPT['LNM'] else 16*(rb & 1) + 4*(rb >> 1)
    E(f"v_add_u32 v{vW1D+rb}, {rr*3584 - 1024*rb}, v{vW1D}\nv_add_u32 v{vWQ+rb}, {rr*8192 - 1024*rb}, v{vWQ}")
E(f"""
s_lshl_b32 s{sT1}, s{sHD}, 8
s_sub_u32 s{sT2}, {448*3584}, s{sT1}
s_cmp_lt_u32 s{sHD}, 14
s_cselect_b32 s{sT2}, s{sT2}, 0
s_cselect_b32 s{sT1}, s{sT1}, 0
""")
mk_srd(sW1, 16, sT1, f"s{sT2}")
E(f"s_lshr_b32 s{sT0}, s{sHD}, 1\ns_lshl_b32 s{sT0}, s{sT0}, 20\ns_add_u32 s{sT0}, s{sT0}, {1536*512}")
mk_srd(sKK, 6, sT0, 262144)
mk_srd(sVV, 8, sT0, 262144)
E(f"s_mul_i32 s{sT0}, s{sHD}, {256*896}")
mk_srd(sWO, 12, sT0, 256*896)
E(f"""
s_lshr_b32 s{sPC}, s2, 3
s_and_b32 s{sPC}, s{sPC}, 15
s_cmp_ge_u32 s{sPC}, 7
s_cselect_b32 s{sT3}, 1, 0
s_mul_i32 s{sT1}, s{sT3}, 7
s_sub_u32 s{sT1}, s{sPC}, s{sT1}
s_lshl_b32 s{sT0}, s{sT1}, 7
s_sub_u32 s{sT2}, {1792*896}, s{sT0}
s_cmp_lt_u32 s{sPC}, 14
s_cselect_b32 s{sT2}, s{sT2}, 0
s_cselect_b32 s{sT0}, s{sT0}, 0
""")
mk_srd(sW2, 18, sT0, f"s{sT2}")
if OPT['WSOFF']:
    E(f"s_mov_b32 s{sT0}, {hx(OPT['WSOFF'] << 20)}")
    mk_srd(sWS, 24, sT0, WS_SIZE)
else:
    mk_srd(sWS, 24, None, WS_SIZE)
for k_, R_ in ((0, 32*8192), (2, 32*3584)):
    E(f"""
s_mul_i32 s{sW1T+k_}, s{sW}, {R_}
s_cmp_lt_u32 s{sW}, 2
s_mov_b32 s{sT2}, {hx(128 - 2*R_)}
s_cselect_b32 s{sT0}, {12*R_}, s{sT2}
s_add_u32 s{sW1T+k_+1}, s{sW1T+k_}, s{sT0}
""")
E(f"""
v_mul_u32_u24 v{vT1}, 896, v{vT3}
v_add_u32 v{vT1}, v{vT1}, v{vT0}
s_mul_i32 s{sT0}, s{sW}, {32*896}
s_mul_i32 s{sT2}, s{sW}, {448*896}
""")
for rb in range(4):
    if rb: E(f"v_add_u32 v{vT1}, 6144, v{vT1}")
    E(f"v_add_u32 v{vT2}, s{sT0}, v{vT1}\nv_accvgpr_write_b32 a{aST+rb}, v{vT2}\nv_add_u32 v{vT2}, s{sT2}, v{vT1}\nv_accvgpr_write_b32 a{aST+4+rb}, v{vT2}")
E(f"""
v_lshlrev_b32 v{vL16}, 4, v0
v_lshrrev_b32 v{vT0}, 2, v0
v_lshlrev_b32 v{vT1}, 7, v{vT0}
v_and_b32 v{vT2}, 3, v0
v_lshl_add_u32 v{vT1}, v{vT2}, 3, v{vT1}
v_bfe_u32 v{vT3}, v0, 3, 2
""")
for u in range(4):
    E(f"""
v_xor_b32 v{vT4}, {u}, v{vT3}
v_lshl_add_u32 v{vTR+u}, v{vT4}, 5, v{vT1}
v_add_u32 v{vTR+4+u}, 0x10000, v{vTR+u}
v_add_u32 v{vTR+8+u}, 0x20000, v{vTR+u}
""")
E(f"""
v_and_b32 v{vT0}, 15, v0
v_lshrrev_b32 v{vT1}, 1, v{vT0}
v_lshrrev_b32 v{vT2}, 4, v0
v_xor_b32 v{vT1}, v{vT1}, v{vT2}
v_lshlrev_b32 v{vT4}, 7, v{vT0}
v_lshl_add_u32 v{vRA}, v{vT1}, 4, v{vT4}
v_xor_b32 v{vRA+1}, 64, v{vRA}
v_add_u32 v{vRA+2}, 0x10000, v{vRA}
v_add_u32 v{vRA+3}, 0x10000, v{vRA+1}
v_add_u32 v{vRA+4}, 0x20000, v{vRA}
v_add_u32 v{vRA+5}, 0x20000, v{vRA+1}
""")
vXR = vR + 72
for i in range(4): E(f"v_add_u32 v{vXR+i}, s{sWB}, v{vRA+i}")
vXT = vR + 84
if OPT['LNM']:
    E(f"""
v_lshrrev_b32 v{vXT+1}, 3, v0
v_bfe_u32 v{vXT+2}, v0, 1, 1
v_xor_b32 v{vXT+1}, v{vXT+1}, v{vXT+2}
v_lshlrev_b32 v{vXT+1}, 4, v{vXT+1}
v_lshrrev_b32 v{vXT+2}, 2, v0
v_lshl_add_u32 v{vXT+1}, v{vXT+2}, 7, v{vXT+1}
v_and_b32 v{vXT+2}, 1, v0
v_lshl_add_u32 v{vXT+1}, v{vXT+2}, 3, v{vXT+1}
v_add_u32 v{vXT}, s{sWB}, v{vXT+1}
""")
    for u in range(1, 4): E(f"v_xor_b32 v{vXT+u}, {32*u}, v{vXT}")
    for u in range(4): E(f"v_add_u32 v{vXT+4+u}, 0x10000, v{vXT+u}")
E(f"""
s_and_b32 s{sTC}, s2, 7
s_lshl_b32 s{sTC}, s{sTC}, 1
s_lshr_b32 s{sT0}, s2, 7
s_add_u32 s{sTC}, s{sTC}, s{sT0}
s_lshl_b32 s{sW2I}, s{sT0}, 1
s_add_u32 s{sW2I}, s{sW2I}, s{sT3}
s_lshl_b32 s{sT2}, s{sTC}, 1
s_add_u32 s{sT2}, s{sT2}, s{sT3}
s_lshl_b32 s{sT0}, s{sT2}, 2
s_add_u32 s{sT0}, s{sT0}, s{sW}
s_mul_i32 s{sT0}, s{sT0}, {16*896}
s_lshl_b32 s{sSG}, s{sT1}, 7
s_add_u32 s{sT0}, s{sT0}, s{sSG}
v_lshrrev_b32 v{vT0}, 3, v0
v_mul_u32_u24 v{vT0}, 896, v{vT0}
v_and_b32 v{vT2}, 7, v0
v_lshl_add_u32 v{vT0}, v{vT2}, 4, v{vT0}
v_add_u32 v{vT0}, s{sT0}, v{vT0}
v_accvgpr_write_b32 a{aST+8}, v{vT0}
s_lshl_b32 s{sT2}, s{sT2}, 1
s_lshr_b32 s{sT0}, s{sW}, 1
s_add_u32 s{sSG}, s{sT2}, s{sT0}
s_lshl_b32 s{sFLP}, s{sSG}, 9
s_mul_i32 s{sSG}, s{sSG}, 7
s_add_u32 s{sSG}, s{sSG}, s{sT1}
s_lshl_b32 s{sSG}, s{sSG}, 2
s_add_u32 s{sFLP}, s{sFLP}, {hx(WS_F)}
s_and_b32 s{sT0}, s{sW}, 1
s_add_u32 s{sSG}, s{sSG}, s{sT0}
s_lshl_b32 s{sSG}, s{sSG}, 14
s_mul_i32 s{sHLD}, s{sT2}, {56*2048}
s_add_u32 s{sHLD}, s{sHLD}, {hx(WS_H)}
s_cmp_lt_u32 s{sPC}, 14
s_cselect_b32 s{sCOOB}, 0, {hx(OOB)}
s_add_u32 s{sHPF}, s{sHLD}, s{sCOOB}
s_mul_i32 s{sT0}, s{sW}, {14*2048}
s_add_u32 s{sHLD}, s{sHLD}, s{sT0}
s_mov_b32 s0, s2
s_mov_b32 s{sCC}, s{sT1}
s_lshl_b32 s{sKVI}, s{sTL}, 1
s_and_b32 s{sT0}, s{sHD}, 1
s_add_u32 s{sKVI}, s{sKVI}, s{sT0}
s_lshl_b32 s{sT1}, s{sT}, 2
s_add_u32 s{sT1}, s{sT1}, s{sW}
s_lshl_b32 s{sFLG}, s{sT1}, 9
s_add_u32 s{sFLG}, s{sFLG}, s{sHD}
v_min_u32 v{vPOLL}, 2, v0
v_lshlrev_b32 v{vPOLL}, 7, v{vPOLL}
s_add_u32 s{sFLG}, s{sFLG}, {hx(WS_F)}
s_mul_i32 s{sHST}, s{sT1}, {56*2048}
s_min_u32 s{sT2}, s{sHD}, 13
s_lshl_b32 s{sT2}, s{sT2}, 13
s_add_u32 s{sHST}, s{sHST}, s{sT2}
s_add_u32 s{sHST}, s{sHST}, {hx(WS_H)}
s_cmp_lt_u32 s{sHD}, 14
s_cselect_b32 s{sT2}, 0, {hx(OOB)}
v_add_u32 v{vHS}, s{sT2}, v{vL16}
v_mov_b32 v{vZ}, 0
v_mov_b32 v{vONE}, 1
""")
PST('addr_done')
xissue(14 - OPT['XFIRST'] - OPT['XSEC'])
if OPT['WQE'] == 0: P.ins += wqpf; wqpf = []
PST('x_issued')
PRODUCER = len(P.ins)
E(f"""
s_lshl_b32 s{sSST}, s{sT}, 2
s_add_u32 s{sSST}, s{sSST}, s{sW}
s_mul_i32 s{sSST}, s{sSST}, {28*16384}
s_cmp_ge_u32 s{sHD}, 7
s_cselect_b32 s{sT3}, 1, 0
s_sub_u32 s{sROT}, s{sHD}, 7
s_min_u32 s{sROT}, s{sROT}, s{sHD}
s_sub_u32 s{sCNT}, s{sROT}, 7
s_min_u32 s{sROT}, s{sROT}, s{sCNT}
s_cmp_lt_u32 s{sHD}, 14
s_cselect_b32 s{sT3}, s{sT3}, s{sHD}
s_cselect_b32 s{sSTEP}, 2048, 0
s_lshl_b32 s{sT3}, s{sT3}, 10
s_add_u32 s{sSST}, s{sSST}, s{sT3}
""")
prod_ins = []
if OPT['STLB'] == 1:
    for b_, o_ in ((sKK, '0'), (sVV, '0'), (sWQ, '0'), (sWQ, f'{hx(400*8192)}')[:2], (sWO, '0'), (sW1, '0'), (sW2, '0'), (sOUT, '0'),
                   (sWS, f's{sSST}'), (sWS, f's{sHST}'), (sWS, hx(WS_F + 0x10000))):
        if o_.startswith('0x'): E(f"s_mov_b32 s{sCNT}, {o_}"); o_ = f's{sCNT}'
        i_ = I(f"s_buffer_load_dword s{sCNT}, {srd(b_)}, {o_}"); i_.cls = 'smem'; i_.dst = []; P.ins.append(i_)
for s_, val in ((sM1, 0x2222222222222222), (sM2, 0xCCCCCCCCCCCCCCCC), (sM3, 0x8888888888888888), (sMD, 0xF0000F0000F0000F)):
    E(f"s_mov_b32 s{s_}, {hx(val)}\ns_mov_b32 s{s_+1}, {hx(val >> 32)}")

vONES = vR + 16
vD1 = vR + 20
vD2 = vR + 28
vLA = vR + 36
for i in range(4): E(f"v_mov_b32 v{vONES+i}, 0x3f803f80")
def rbf(r):
    return [f"v_cvt_pk_bf16_f32 v{r}, v{r}, v{r}", f"v_lshlrev_b32 v{r}, 16, v{r}"]
E(f"s_mov_b32 s{sT0}, {hx(f2u(1.0/448.0))}\ns_mov_b32 s{sT1}, {hx(f2u(1e-5))}\ns_mov_b32 s{sT2}, {hx(f2u(CSCALE))}")
if OPT['PADS']:
    E(f"""
s_mov_b64 exec, 0
s_cmp_eq_u32 s{sW}, 0
s_cbranch_scc1 L_pg0
s_cmp_eq_u32 s{sW}, 1
s_cbranch_scc1 L_pg1
s_cmp_eq_u32 s{sW}, 2
s_cbranch_scc1 L_pg2
s_branch L_pg3
.p2align 12
L_main:
s_mov_b64 exec, -1
""")
STAMP('pro_done')
vNT = vR + 44
NPRO = OPT['NPRO']
big = []
if OPT['BIG'] & 1:
    t_ = pf_seq(sWQ, 448*2, 2, 8192, sTL, NT); t_[-1] = I(t_[-1].text.replace('offen', 'offen offset:256'), tag='pf'); big += t_
    big += pf_seq(sW1, 448*2, 2, 3584, sTL, NT)
if OPT['BIG'] & 2:
    t_ = pf_seq(sKK, 2048, None, 0, sKVI, 2*NT); big += t_ + [pf_load(sVV, vPF+1)]
big = [I(t_) if isinstance(t_, str) else t_ for t_ in big]
assert len(pro_dma) == NPRO
L0N = OPT['L0N']
late = {0: [i_ for d_ in pro_dma[:L0N] for i_ in d_],
        1: [i_ for d_ in pro_dma[3:] for i_ in d_]
           + big + [I(f"buffer_store_byte v{vZ}, v{vPOLL}, {srd(sWS)}, s{sFLG} offen sc1", tag='hst')]}
def xreads(tg, q):
    r = [mk_wait_vm([('x', tg, q)])]
    for ks in (2*q, 2*q+1):
        ad = q*SLOT + tg*2048
        r.append(I(f"ds_read_b128 {v(xn(ks,tg),4)}, v{vXR + (ad >> 16)*2 + (ks & 1)} offset:{ad & 0xffff}", tag=('xr', tg, q)))
    return r
def stats(tg, q, fill):
    P.wait_lgkm_tag([('xr', tg, q)])
    for ks in (2*q, 2*q+1):
        X = v(xn(ks, tg), 4)
        for m_ in (mfma(v(vD1+4*tg, 4), v(vONES, 4), X, "0" if ks == 0 else v(vD1+4*tg, 4)), mfma(v(vD2+4*tg, 4), X, X, "0" if ks == 0 else v(vD2+4*tg, 4))):
            E(m_)
            t_ = 0
            while fill and t_ + cost(fill[0]) <= 12:
                t_ += cost(fill[0]); P.ins.append(fill.pop(0))
def scalars(tg):
    d = vD2 + 4*tg; m = vD1 + 4*tg; t = m + 1; L = vLA + 4*tg
    s = [f"v_cndmask_b32 v{d}, v{d}, v{d+1}, s[{sM1}:{sM1+1}]",
         f"v_cndmask_b32 v{d+2}, v{d+2}, v{d+3}, s[{sM3}:{sM3+1}]",
         f"v_mul_f32 v{m}, s{sT0}, v{m}",
         f"v_cndmask_b32 v{d}, v{d}, v{d+2}, s[{sM2}:{sM2+1}]",
         f"v_cndmask_b32 v{d}, 0, v{d}, s[{sMD}:{sMD+1}]"]
    s += allred(d, t, "v_add_f32")
    s += [f"v_mul_f32 v{d}, s{sT0}, v{d}",
          f"v_fma_f32 v{d}, -v{m}, v{m}, v{d}",
          f"v_max_f32 v{d}, 0, v{d}"]
    s += interleave(rbf(m), rbf(d))
    s += [f"v_add_f32 v{d}, s{sT1}, v{d}"] + rbf(d) + [f"v_sqrt_f32 v{d}, v{d}"] + rbf(d)
    s += [f"v_rcp_f32 v{d}, v{d}", f"v_mul_f32 v{d}, s{sT2}, v{d}",
          f"v_cvt_pk_bf16_f32 v{d}, v{d}, v{d}",
          f"v_and_b32 v{L}, 0xffff, v{d}", f"v_lshlrev_b32 v{L+1}, 16, v{d}",
          f"v_mul_f32 v{L+2}, -v{m}, v{L+1}"]
    if OPT['LNM']:
        s += [f"v_cndmask_b32 v{L}, v{L}, v{L+1}, s[16:17]", f"v_mov_b32 v{m}, v{L+2}", f"v_cndmask_b32 v{L}, 0, v{L}, s[{sMD}:{sMD+1}]", f"v_mov_b32 v{m+1}, v{L+2}",
              f"v_cndmask_b32 v{L+1}, 0, v{L}, s[{sM2}:{sM2+1}]", f"v_mov_b32 v{m+2}, v{L+2}", f"v_cndmask_b32 v{L}, v{L}, 0, s[{sM2}:{sM2+1}]", f"v_mov_b32 v{m+3}, v{L+2}"]
    return s
aXT = 128
def xtr(tg, T):
    ad = (T >> 2)*SLOT + tg*2048
    return I(f"ds_read_b64_tr_b16 {a(aXT + 2*(tg*28 + T), 2)}, v{vXT + (ad >> 16)*4 + (T & 3)} offset:{ad & 0xffff}", tag=('xt', tg, T))
def normm(tg, T0, T1, fill, pend):
    L = vLA + 4*tg; m = vD1 + 4*tg
    for T in range(T0, T1):
        if T % 4 == 0: P.wait_lgkm_tag([('xt', tg, min(T + 3, 27))])
        t = vNT + 4*(T % 4)
        E(f"v_mfma_f32_16x16x16_bf16 {v(t,4)}, {a(aXT + 2*(tg*28 + T), 2)}, {v(L,2)}, {v(m,4)}")
        x_ = xn(T >> 1, tg) + 2*(T & 1)
        k_ = 0
        while fill and k_ < 1:
            P.ins.append(fill.pop(0)); k_ += 1
        pend.append([f"v_cvt_pk_bf16_f32 v{x_}, v{t}, v{t+1}", f"v_cvt_pk_bf16_f32 v{x_+1}, v{t+2}, v{t+3}"])
        if len(pend) > 2:
            for t_ in pend.pop(0): E(t_)
def normalize(tg, side):
    L = vLA + 4*tg; k = 0; pend = []
    for ks in range(14):
        for r in range(4):
            x_ = xn(ks, tg) + r
            t = vNT + 2*(k % 8); k += 1
            E(f"v_dot2_f32_bf16 v{t}, v{x_}, v{L}, v{L+2}\nv_dot2_f32_bf16 v{t+1}, v{x_}, v{L+1}, v{L+2}")
            pend.append(f"v_cvt_pk_bf16_f32 v{x_}, v{t}, v{t+1}")
            if len(pend) > 2: E(pend.pop(0))
            P.ins += side.get(k, [])
    for t_ in pend: E(t_)
for q in range(7):
    P.ins += xreads(0, q)
    if q in (0, 3, 6): PST(f'w0{q}')
    xissue(2)
    if q > 1: stats(0, q-2, [])
fill = (late[0] + wqpf) if OPT['R0F'] else (wqpf + late[0])
stats(0, 5, fill); stats(0, 6, fill)
P.ins += fill
STAMP('x0_arrived')
if not OPT['LNM']:
    for t_ in scalars(0): E(t_)
    X1 = OPT['X1']
    normalize(0, {X1 + 4*q: xreads(1, q) for q in range(7)})
    PST('ln0_done')
    fill = [i_ for d_ in pro_dma[L0N:3] for i_ in d_]
    for q in range(7):
        if q == 1: P.wait_lgkm_tag([('xr', 1, 6)]); fill += late[1]
        stats(1, q, fill)
    P.ins += fill
    STAMP('x1_arrived')
    for t_ in scalars(1): E(t_)
    fr_ = [i_ for f in range(D) for i_ in frag_reads(f)]
    side = {OPT['BARK']: [mk_wait_vm(first_need), I("s_barrier")]}
    for k_, i_ in enumerate(fr_): side.setdefault(min(OPT['BARK'] + 1 + k_, 56), []).append(i_)
    normalize(1, side)
else:
    NA0 = OPT['NA0']
    E(f"s_or_b64 s[16:17], s[{sM1}:{sM1+1}], s[{sM3}:{sM3+1}]")
    rd0 = [xtr(0, T) for T in range(28)]
    for k_, t_ in enumerate(scalars(0)):
        if rd0 and k_ < 14: P.ins.append(rd0.pop(0))
        E(t_)
    pend = []
    normm(0, 0, 14, rd0, pend)
    assert not rd0
    x1 = [i_ for q in range(7) for i_ in xreads(1, q)]
    for i_ in x1[:6]: P.ins.append(i_)
    for p_ in pend:
        for t_ in p_: E(t_)
    pend = []
    PST('ln0_half')
    n3 = sum(len(d_) for d_ in pro_dma[3:])
    fill = x1[6:] + [i_ for d_ in pro_dma[L0N:3] for i_ in d_] + late[1][n3:]
    for q in range(7): stats(1, q, fill)
    P.ins += fill
    STAMP('x1_arrived')
    rd1 = [xtr(1, T) for T in range(28)]
    sc1 = [I(t_) for t_ in scalars(1)]
    for T in range(14, 28):
        normm(0, T, T+1, rd1, pend)
        if T >= 15:
            for _ in range(2):
                if sc1: P.ins.append(sc1.pop(0))
    for p_ in pend:
        for t_ in p_: E(t_)
    pend = []
    for k_, i_ in enumerate(sc1):
        if rd1 and k_ % 2 == 0: P.ins.append(rd1.pop(0))
        P.ins.append(i_)
    PST('ln0_done')
    fr_ = [i_ for f in range(D) for i_ in frag_reads(f)]
    fill = rd1 + [mk_wait_vm(first_need), I("s_barrier")] + fr_
    normm(1, 0, 28, fill, pend)
    P.ins += fill
    P.wait_lgkm_tag([('xt', 1, 27)])
    lt = late[1][:n3]
    for p_ in pend:
        for t_ in p_: E(t_)
    P.ins += lt
if OPT['DUMP'] == 'xn':
    P.ins += dump([v(xn(ks, tg), 4) for ks in range(14) for tg in range(2)])

P.ins.append(mk_wait_lg([('f', f) for f in range(4)]))
est = 0
for g in range(NF):
    if g in blk: P.ins += blk[g]
    for h, m_ in enumerate(MF[g]):
        gp = G0[g] + h
        P.ins.append(I(m_))
        P.ins += pre[gp] + rds[gp] + ext[gp]
        if OPT['XP'] and g < phase['G2_0'] and h == 1:
            free = gtime(pre[gp] + rds[gp] + ext[gp]) <= 12
            if OPT['XP'] == 'nop': P.ins.append(I("s_nop 2" if free else "s_nop 1"))
            if OPT['XP'] == 'valu' and free: P.ins.append(I(f"v_fma_f32 v250, v{44 + g % 100}, v{50 + g % 90}, v250"))
            if OPT['XP'] == 'snop' and free: P.ins.append(I("s_nop 0"))
            if OPT['XP'] == 'ds': P.ins.append(I(f"ds_read_b128 a[240:243], v{vL16} offset:{(g*1024) % 65536}"))
        est += max(16, gtime(pre[gp] + rds[gp] + ext[gp]))
if OPT['LOG']:
    ph = sorted((f_, n_) for n_, f_ in phase.items())
    for (f0_, n_), (f1_, _) in zip(ph, ph[1:]):
        e_ = sum(max(16, gtime(pre[q_] + rds[q_] + ext[q_])) for q_ in range(gap(f0_), gap(f1_)))
        print(f"  phase {n_}: est {e_} ideal {16*(gap(f1_)-gap(f0_))}", file=sys.stderr)
print("estimated main-stream cycles", est, "ideal", 16*NG, file=sys.stderr)

STAMP('g6_done')
def fs(u, w_): return facc(u, w_)
def smf(rl, sl):
    r = []
    for tg in range(2):
        d = v(vsa(rl*2+tg), 4)
        r.append(mfma(d, v(vSEL + (2 if tg == 0 else 0), 4), greg(rl, sl), "0" if sl == 0 else d))
    return r
msA = [m_ for sq in range(0, 2*F0, 2) for rl in range(2) for sl in (sq, sq+1) for m_ in smf(rl, sl)]
if not OPT['C2G']: E(f"s_waitcnt vmcnt({NYB})")
n2 = OPT['N2']
rest = list(glC)
def last_test():
    if F1 < 7 and not OPT['C2G']:
        STAMP('pre_c2')
        P.wait_vm_tag(['poll2'])
        E(f"v_cmp_ne_u32 vcc, 1, v{vPOLL}\ns_cbranch_vccnz L_spin2\nL_spin2_ret:")
        STAMP('chk2')
last_test()
for _ in range(6):
    if rest: P.ins.append(rest.pop(0))
for i_ in fwrites(3):
    P.ins.append(i_)
    if msA: E(msA.pop(0))
while rest and len(glC) - len(rest) < n2:
    P.ins.append(rest.pop(0))
    if P.ins[-1].cls == 'vmem' and msA: E(msA.pop(0))
E("s_waitcnt lgkmcnt(0)\ns_barrier")
doneB = [(rl, sl) for sq in range(2*F0, NSB, 2) for rl in range(2) for sl in (sq, sq+1)]
lateB = doneB[len(doneB) - 2*OPT['PCB']:]; doneB = doneB[:len(doneB) - 2*OPT['PCB']]
msA += [m_ for rl, sl in doneB for m_ in smf(rl, sl)]
for u in range(4):
    for j in range(1, 4):
        E(f"ds_read_b128 {v(fs(u, j), 4)}, v{FRR[j-1]} offset:{u*1024}")
        if msA: E(msA.pop(0))
P.ins += rest
def with_m(l):
    if OPT['PKNOP']: E(f"s_nop {OPT['PKNOP']-1}")
    for t_ in l:
        if msA: E(msA.pop(0))
        E(t_)
R4 = [tuple(fs(u, w_) for w_ in range(4)) for u in range(4)]
for b0, b1, b2, b3 in R4:
    for r in (0, 2): E(f"v_pk_add_f32 {v(b0+r,2)}, {v(b0+r,2)}, {v(b1+r,2)}\nv_pk_add_f32 {v(b2+r,2)}, {v(b2+r,2)}, {v(b3+r,2)}")
    for r in (0, 2): E(f"v_pk_add_f32 {v(b0+r,2)}, {v(b0+r,2)}, {v(b2+r,2)}")
    for r in (0, 2): E(f"v_pk_mul_f32 {v(b1+r,2)}, {v(b0+r,2)}, v[24:25] op_sel:[0,0] op_sel_hi:[1,0]")
    for r in (0, 2): E(f"v_pk_mul_f32 {v(b0+r,2)}, {v(b0+r,2)}, v[24:25] op_sel:[0,1] op_sel_hi:[1,1]")
with_m([f"v_exp_f32 v{b[1]+r}, v{b[1]+r}" for b in R4 for r in range(4)])
for b in R4:
    for r in (0, 2): E(f"v_pk_add_f32 {v(b[1]+r,2)}, {v(b[1]+r,2)}, 1.0 op_sel_hi:[1,0]")
lastC = lateB + [(rl, sl) for sq in range(NSB, 16, 2) for rl in range(2) for sl in (sq, sq+1)]
NC1 = OPT['NC1']
msA += [m_ for rl, sl in lastC[:NC1] for m_ in smf(rl, sl)]; lastC = lastC[NC1:]
with_m([f"v_rcp_f32 v{b[1]+r}, v{b[1]+r}" for b in R4 for r in range(4)])
for m_ in msA: E(m_)
STAMP('g_done')
gm_ = [f"v_mul_f32 v{b[0]+r}, v{b[0]+r}, v{b[1]+r}" for b in R4 for r in range(4)]
for rl, sl in lastC:
    for m_ in smf(rl, sl):
        E(m_)
        for _ in range(2):
            if gm_: E(gm_.pop(0))
for t_ in gm_: E(t_)
for u in range(4):
    b0 = fs(u, 0)
    for r in (0, 2): E(f"v_pk_fma_f32 {v(b0+r,2)}, {v(vsa(u)+r,2)}, {v(b0+r,2)}, {v(vXU+u*4+r,2)}")
    E(f"v_cvt_pk_bf16_f32 v{b0}, v{b0}, v{b0+1}\nv_cvt_pk_bf16_f32 v{b0+1}, v{b0+2}, v{b0+3}")
    E(f"ds_write_b64 v{vPF}, {v(b0,2)} offset:{u*32}")
E(f"""
ds_read_b128 {v(vXF,4)}, v{vT4}
ds_read_b128 {v(vXF+4,4)}, v{vT4} offset:1152
buffer_store_dwordx4 {v(vXF,4)}, v{vAD}, {srd(sOUT)}, 0 offen {OPT['OST']}
buffer_store_dwordx4 {v(vXF+4,4)}, v{vAD}, {srd(sOUT)}, s{sSV1} offen {OPT['OST']}
""")
if OPT['WAITAT']: STAMP('end')
if OPT['STAMP']:
    STAMP('end')
    E(f"""
L_fin:
s_memrealtime s[{sSTMP}:{sSTMP+1}]
s_waitcnt lgkmcnt(0)
v_writelane_b32 v{vSTAMP}, s{sMISS}, 59
v_writelane_b32 v{vSTAMP}, s{sSTMP}, 62
s_lshl_b32 s{sT0}, s0, 2
s_add_u32 s{sT0}, s{sT0}, s{sW}
s_lshl_b32 s{sT0}, s{sT0}, 8
s_add_u32 s{sT0}, s{sT0}, {hx(WS_DBG)}
v_lshlrev_b32 v{vT0}, 2, v0
buffer_store_dword v{vSTAMP}, v{vT0}, {srd(sWS)}, s{sT0} offen
""")
E("L_end:\ns_endpgm")
main_ins, log, stats_ = resolve(P.ins)
print("main", stats_, file=sys.stderr)
if OPT['LOG']:
    for l in log: print("  ", l, file=sys.stderr)

Q = Prog(); E = Q.emit
SPIN_MAX = 1 << 17
def spin(label, load, want, cmp):
    E(f"""
{label}:
s_mov_b32 s{sCNT}, {SPIN_MAX}
{label}_loop:
s_sleep 1
{load}
s_waitcnt vmcnt(0)
v_cmp_{cmp}_u32 vcc, {want}, v{vPOLL}
s_sub_u32 s{sCNT}, s{sCNT}, 1
s_cmp_eq_u32 s{sCNT}, 0
s_cbranch_scc1 {label}_ret
s_cbranch_vccnz {label}_loop
s_branch {label}_ret
""")
spin("L_spinh", f"s_lshl_b32 s{sT0}, s{sTC}, 4\nv_mov_b32 v{vT0}, s{sT0}\nglobal_load_dword v{vPOLL}, v{vT0}, {DBGP} sc1", 16, "gt")
spin("L_spin1", VPOLL, 1, "ne")
if F1 < 7: spin("L_spin2", VPOLL2, 1, "ne")
E("L_redo:\ns_waitcnt vmcnt(0)")
Q.ins += gloads(0, 2*F0, vHS)
E("s_branch L_redo_ret")
MISC = [c['lo'] for c in chunks if c['name'] == 'V_15'][0]
fK, fS, fP, fA, fV, fR, fM = 44, 76, 108, 116, 117, 121, 102
E(f"""
L_exact:
s_waitcnt vmcnt(0) lgkmcnt(0)
s_nop 15
s_mov_b32 s{sSV0}, m0
v_and_b32 v{fA}, 15, v0
v_lshlrev_b32 v{fA}, 9, v{fA}
v_and_b32 v{fM}, 48, v0
v_add_u32 v{fA}, v{fA}, v{fM}
s_lshl_b32 s{sSV1}, s{sW}, 7
s_add_u32 s{sSV2}, s{sWB}, {MISC}
""")
for i in range(4):
    E(f"v_subrev_u32 v{fV+i}, s{sSV1}, v{vVD+i}\nv_add_u32 v{fR+i}, s{sSV2}, v{vTR+i}")
E(f"v_mov_b32 v{fM}, 0xff800000\nv_mov_b32 v{fM+1}, 0xff800000\ns_mov_b32 s{sSV1}, 0")
def ktile(kt, cinit):
    for ks in range(8):
        E(f"buffer_load_dwordx4 {v(fK+4*ks,4)}, v{fA}, {srd(sKK)}, s{sSV1} offen offset:{ks*64}")
    E(f"s_add_u32 s{sSV1}, s{sSV1}, 8192\ns_waitcnt vmcnt(0)")
    for ks in range(8):
        for tg in range(2):
            d = v(fS + tg*8 + kt*4, 4)
            E(mfma(d, v(fK+4*ks, 4), a(qf(ks, tg), 4), (cinit(tg) if ks == 0 else d)))
    E("s_nop 15")
E("L_exact_p1:")
ktile(0, lambda tg: "0")
for tg in range(2):
    b = fS + tg*8
    E(f"v_max3_f32 v{fM+tg}, v{fM+tg}, v{b}, v{b+1}\nv_max3_f32 v{fM+tg}, v{fM+tg}, v{b+2}, v{b+3}")
E(f"s_cmp_lt_u32 s{sSV1}, 262144\ns_cbranch_scc1 L_exact_p1")
for tg in range(2):
    for t_ in allred(fM+tg, fM+2, "v_max_f32"): E(t_)
    for r in range(4): E(f"v_sub_f32 v{vC+4*tg+r}, 0, v{fM+tg}")
for r in range(128): E(f"v_mov_b32 v{vO+r}, 0")
E(f"v_mov_b32 v{vLS}, 0\nv_mov_b32 v{vLS+1}, 0\ns_mov_b32 s{sSV1}, 0\ns_add_u32 m0, s{sWB}, {MISC}\ns_nop 3")
E("L_exact_p2:")
E(f"s_mov_b32 s{sSV2}, s{sSV1}")
ktile(0, lambda tg: v(vC+4*tg, 4))
ktile(1, lambda tg: v(vC+4*tg, 4))
for r in range(16): E(f"v_exp_f32 v{fS+r}, v{fS+r}")
for r in range(16): E(f"v_add_f32 v{vLS + r//8}, v{vLS + r//8}, v{fS+r}")
for r in range(8): E(f"v_cvt_pk_bf16_f32 v{fP+r}, v{fS+2*r}, v{fS+2*r+1}")
for cb in range(4):
    for rb in range(4):
        E(f"buffer_load_dwordx4 v{fV+rb}, {srd(sVV)}, s{sSV2} offen offset:{rb*1024} lds")
    E(f"s_add_u32 s{sSV2}, s{sSV2}, 128\ns_waitcnt vmcnt(0)")
    for u in range(4):
        E(f"ds_read_b64_tr_b16 {v(fK+4*u,2)}, v{fR+u}\nds_read_b64_tr_b16 {v(fK+4*u+2,2)}, v{fR+u} offset:2048")
    E("s_waitcnt lgkmcnt(0)")
    for u in range(4):
        for tg in range(2):
            d = v(Oreg(cb*4+u, tg), 4)
            E(mfma(d, v(fK+4*u, 4), v(fP+4*tg, 4), d))
    E("s_nop 7")
E(f"s_cmp_lt_u32 s{sSV1}, 262144\ns_cbranch_scc1 L_exact_p2")
for tg in range(2):
    for t_ in allred(vLS+tg, fM+2, "v_add_f32"): E(t_)
    E(f"v_rcp_f32 v{vRC+tg}, v{vLS+tg}")
E("s_nop 15")
for i in range(12): E(f"v_add_u32 v{vTP+i}, s{sWB}, v{vTR+i}")
E(f"s_mov_b32 m0, s{sSV0}\ns_nop 15\ns_branch L_exact_ret")
sub_ins, log2, stats2 = resolve(Q.ins)

def sizes_of(ins):
    import subprocess, tempfile, re as re_
    body = [i_ for i_ in ins if i_.cls not in ('label', 'dir')]
    txt_ = '.amdgcn_target "amdgcn-amd-amdhsa--gfx950"\n.text\nL_any:\n' + ''.join('    ' + (re_.sub(r'L_\w+', 'L_any', i_.text) if i_.cls == 'branch' else i_.text) + '\n' for i_ in body)
    d_ = tempfile.mkdtemp()
    open(d_ + '/a.s', 'w').write(txt_)
    subprocess.run(['clang', '-x', 'assembler', '-target', 'amdgcn-amd-amdhsa', '-mcpu=gfx950', '-c', d_ + '/a.s', '-o', d_ + '/a.o'], check=True)
    out_ = subprocess.run(['llvm-objdump', '-d', '--mcpu=gfx950', d_ + '/a.o'], capture_output=True, text=True).stdout
    sz = [4*len(m_.group(1).split()) for m_ in re_.finditer(r'// [0-9A-F]+: ((?:[0-9A-F]{8} ?)+)', out_)]
    assert len(sz) == len(body), (len(sz), len(body))
    return {id(i_): s_ for i_, s_ in zip(body, sz)}
if OPT['PADS']:
    sz = sizes_of(main_ins)
    k0 = [k_ for k_, i_ in enumerate(main_ins) if i_.text == 'L_main:'][0]
    out_ = main_ins[:k0+1]; off = 0; npg = 0
    for i_ in main_ins[k0+1:]:
        if i_.cls not in ('label', 'dir'):
            lo = (npg + 1)*4096
            if npg < OPT['NPG'] and off >= lo and (i_.cls == 'mfma' or off + sz[id(i_)] > lo + 56):
                assert off < lo + 64
                out_.append(I(f"L_pg{npg}:")); out_.append(I(f"s_cbranch_execz L_pgn{npg}")); off += 4; npg += 1
            off += sz[id(i_)]
        out_.append(i_)
    for i_ in out_:
        if i_.text.startswith('s_cbranch_execz L_pgn'):
            k_ = int(i_.text.split('L_pgn')[1]) + 4
            i_.text = f"s_cbranch_execz L_pg{k_}" if k_ < npg else "s_cbranch_execz L_main"
    main_ins = out_
    print("code pages", npg, "bytes after L_main", off, file=sys.stderr)
hdr = open(os.path.join(os.path.dirname(os.path.abspath(__file__)), 'header.txt')).read()
txt = hdr + f"""; @launch grid=(256,1,1) block=(256,1,1) lds={LDS_BYTES}
; ---------------------------------------------------------------------------------------------
; One workgroup per CU (256 workgroups x 4 waves, 512 registers per lane, 160 KiB LDS ring).
; Producer role (128-token tile t, head hd), every wave keeps 32 tokens as MFMA B operands:
;   LayerNorm (statistics and scaling by MFMA) -> q = xn*Wq -> h slice = relu(xn*W1) (published)
;   -> S = K q, p = exp2(S - m0), O = V p (m0 = row maximum over the first 16 keys; when a row sum
;   leaves the safe range the wave redoes the head with the true row maximum, label L_exact)
;   -> partial s = O*Wo (bf16, published through d_ws, column blocks in a rotated order).
; Consumer role (64 tokens x 64 columns): f = h*W2 (K split over the waves), sum of the 16 partial s,
;   out = x + s*silu(f).
; Weights stream L2 -> LDS by LDS-DMA (16 KiB rounds, source-side swizzle), A fragments are read with
; ds_read_b64_tr_b16 / ds_read_b128.  Hand-offs: write-through stores, vmcnt, then a flag (d_debug
; counter for h, flag bytes in d_ws for s; the bytes are cleared first and the counter vouches for it).
; Generated by gen/gen.py (hand-written scheduler, wait-count and hazard pass).
; ---------------------------------------------------------------------------------------------
.amdgcn_target "amdgcn-amd-amdhsa--gfx950"
.text
.globl {NAME}_kernel
.p2align 8
.type {NAME}_kernel,@function
{NAME}_kernel:
""" + render(main_ins) + render(sub_ins) + f"""L_pad:
    s_endpgm
.if (L_pad - {"L_main" if OPT["PADS"] else "L_pc"}) < {CODE_LINES*128}
.fill (({CODE_LINES*128} - (L_pad - {"L_main" if OPT["PADS"] else "L_pc"})) / 4) + 16, 4, 0xbf810000
.endif
.section .rodata,"a"
.p2align 6
.amdhsa_kernel {NAME}_kernel
  .amdhsa_next_free_vgpr 512
  .amdhsa_next_free_sgpr 102
  .amdhsa_accum_offset 256
  .amdhsa_group_segment_fixed_size 0
  .amdhsa_kernarg_size 88
  .amdhsa_user_sgpr_count 2
  .amdhsa_user_sgpr_kernarg_segment_ptr 1
  .amdhsa_system_sgpr_workgroup_id_x 1
.end_amdhsa_kernel
"""
if OPT['STAMP']: txt += '; STAMPS ' + ' '.join(stamp_names) + '\n'
open(sys.argv[1], 'w').write(txt)
```

```python
import re

REG_RE = re.compile(r'\b([vas])\[(\d+):(\d+)\]|\b([vas])(\d+)\b|\b(vcc|exec|m0|scc)(?:_lo|_hi)?\b')

def regs_of(tok):
    out = []
    for m in REG_RE.finditer(tok):
        if m.group(1):
            out += [(m.group(1), i) for i in range(int(m.group(2)), int(m.group(3)) + 1)]
        elif m.group(4):
            out.append((m.group(4), int(m.group(5))))
        else:
            out.append((m.group(6), 0))
    return out

TRANS = ('v_exp_f32', 'v_log_f32', 'v_rcp_f32', 'v_rsq_f32', 'v_sqrt_f32', 'v_sin_f32', 'v_cos_f32')

class Ins:
    __slots__ = ('text', 'op', 'cls', 'dst', 'src', 'tag', 'srcC', 'srcAB', 'note', 'wide_store', 'sdata')
    def __init__(self, text, tag=None):
        self.text = text.strip()
        self.tag = tag
        t = self.text.split(';')[0].strip()
        self.srcC = []; self.srcAB = []; self.wide_store = False; self.sdata = []
        if t.endswith(':'):
            self.op = 'label'; self.cls = 'label'; self.dst = []; self.src = []; return
        if t.startswith('.') or t == '':
            self.op = 'dir'; self.cls = 'dir'; self.dst = []; self.src = []; return
        parts = t.split(None, 1)
        op = parts[0]; self.op = op
        ops = [o.strip() for o in re.sub(r'op_sel\w*:\[[^\]]*\]', '', parts[1]).split(',')] if len(parts) > 1 else []
        R = [regs_of(o) for o in ops]
        flat = lambda l: [x for y in l for x in y]
        dst = []; src = []
        if op.startswith('v_mfma'):
            self.cls = 'mfma'; dst = R[0]; src = flat(R[1:]); self.srcC = R[3]; self.srcAB = R[1] + R[2]
        elif op.startswith('v_cmp'):
            self.cls = 'valu'; dst = R[0]; src = flat(R[1:])
        elif op.startswith('v_permlane'):
            self.cls = 'perm'; dst = R[0] + R[1]; src = R[0] + R[1]
        elif op.startswith('v_readfirstlane') or op.startswith('v_readlane'):
            self.cls = 'rdlane'; dst = R[0]; src = flat(R[1:])
        elif op.startswith('v_'):
            self.cls = 'trans' if op.replace('_e32', '').replace('_e64', '') in TRANS else 'valu'
            if op.startswith('v_dot2'): self.cls = 'dot'
            dst = R[0]; src = flat(R[1:])
            if op.startswith('v_fmac') or op.startswith('v_dot2c'): src += R[0]
            if op.startswith('v_add_co') or op.startswith('v_addc_co') or op.startswith('v_sub_co'):
                dst = R[0] + R[1]; src = flat(R[2:])
        elif op.startswith('ds_read') or op.startswith('ds_bpermute') or op.startswith('ds_swizzle'):
            self.cls = 'ds'; dst = R[0]; src = flat(R[1:])
        elif op.startswith('ds_'):
            self.cls = 'ds'; src = flat(R)
        elif op.startswith('buffer_load') or op.startswith('global_load'):
            self.cls = 'vmem'
            if re.search(r'\blds\b', t) or 'load_lds' in op:
                src = flat(R) + [('m0', 0)]
            else:
                dst = R[0]; src = flat(R[1:])
        elif op.startswith('buffer_store'):
            self.cls = 'vmem'; src = flat(R); self.sdata = R[0]; self.wide_store = op.endswith('x4') or op.endswith('x3')
        elif op.startswith('global_store'):
            self.cls = 'vmem'; src = flat(R); self.sdata = R[1]; self.wide_store = op.endswith('x4') or op.endswith('x3')
        elif op.startswith('buffer_atomic') or op.startswith('global_atomic'):
            self.cls = 'vmem'; src = flat(R)
        elif op in ('buffer_inv', 'buffer_wbl2'):
            self.cls = 'vmem'
        elif op.startswith('s_load') or op.startswith('s_memtime') or op.startswith('s_memrealtime'):
            self.cls = 'smem'; dst = R[0]; src = flat(R[1:])
        elif op == 's_waitcnt':
            self.cls = 'wait'
        elif op == 's_nop':
            self.cls = 'nop'
        elif op in ('s_barrier', 's_endpgm', 's_sleep', 's_setprio'):
            self.cls = 'misc'
        elif op.startswith('s_cbranch') or op == 's_branch':
            self.cls = 'branch'
            if 'vcc' in op: src = [('vcc', 0)]
            if 'scc' in op: src = [('scc', 0)]
            if 'exec' in op: src = [('exec', 0)]
        elif op.startswith('s_cmp') or op.startswith('s_bitcmp'):
            self.cls = 'salu'; dst = [('scc', 0)]; src = flat(R)
        elif op.startswith('s_'):
            self.cls = 'salu'; dst = R[0] + [('scc', 0)]; src = flat(R[1:])
            if op.startswith('s_mov') or op.startswith('s_cselect') or op.startswith('s_mul_i32') or op.startswith('s_getpc') or op.startswith('s_mul_hi'): dst = R[0]
            if op.startswith('s_addc') or op.startswith('s_cselect') or op.startswith('s_subb'): src += [('scc', 0)]
            if op.startswith('s_bitset'): src += R[0]; dst = R[0]
            if op.startswith('s_ff1'): dst = R[0]
            if 'saveexec' in op: dst += [('exec', 0)]; src += [('exec', 0)]
        else:
            raise ValueError('unknown op ' + t)
        if tag == 'pf': dst = []
        self.dst = dst; self.src = src

VALU_LIKE = ('valu', 'trans', 'perm', 'rdlane', 'dot')

class Prog:
    def __init__(self):
        self.ins = []
    def emit(self, text, tag=None):
        for line in text.strip('\n').split('\n'):
            if line.strip() == '': continue
            self.ins.append(Ins(line, tag))
    def wait_vm_tag(self, tags):
        i = Ins('s_waitcnt vmcnt(0)'); i.tag = ('waitvm', set(tags) if isinstance(tags, (list, set, tuple)) else {tags}); self.ins.append(i); return i
    def wait_lgkm_tag(self, tags):
        i = Ins('s_waitcnt lgkmcnt(0)'); i.tag = ('waitlg', set(tags) if isinstance(tags, (list, set, tuple)) else {tags}); self.ins.append(i); return i

def mk_wait_vm(tags):
    i = Ins('s_waitcnt vmcnt(0)'); i.tag = ('waitvm', set(tags)); return i
def mk_wait_lg(tags):
    i = Ins('s_waitcnt lgkmcnt(0)'); i.tag = ('waitlg', set(tags)); return i

def resolve(ins, verbose=True):
    out = []
    vq = []
    lq = []
    smem_pending = []
    log = []
    ws = 0
    last_valu_w = {}
    last_trans_w = {}
    last_mfma_w = {}
    last_mfma_c = {}
    last_dot_w = {}
    last_salu_m0 = -100
    last_pk = -100
    last_store = {}
    stats = {'auto_lg': 0, 'auto_vm': 0, 'nops': 0}
    def push(i):
        nonlocal ws
        if i.cls == 'wait' and out and out[-1].cls == 'wait':
            c = {}
            for t_ in (out[-1].text, i.text):
                for k_, n_ in re.findall(r'(vmcnt|lgkmcnt)\((\d+)\)', t_): c[k_] = min(c.get(k_, 99), int(n_))
            out[-1] = Ins('s_waitcnt ' + ' '.join(f'{k_}({n_})' for k_, n_ in c.items()))
            return
        out.append(i)
        if i.cls in ('label', 'dir'): return
        if i.cls == 'nop':
            ws += int(i.text.split()[1]) + 1
        else:
            ws += 1
    def apply_wait(text):
        nonlocal vq, lq, smem_pending
        m = re.search(r'vmcnt\((\d+)\)', text)
        if m:
            n = int(m.group(1)); vq = vq[len(vq) - n:] if n < len(vq) else vq
            if n == 0: vq = []
        m = re.search(r'lgkmcnt\((\d+)\)', text)
        if m:
            n = int(m.group(1)); lq = lq[len(lq) - n:] if n < len(lq) else lq
            if n == 0: lq = []; smem_pending = []
    for i in ins:
        if i.cls == 'wait' and isinstance(i.tag, tuple) and i.tag[0] in ('waitvm', 'waitlg'):
            q = vq if i.tag[0] == 'waitvm' else lq
            idx = -1
            for k, o in enumerate(q):
                if o.tag in i.tag[1]: idx = k
            if idx < 0:
                continue
            n = len(q) - 1 - idx
            if i.tag[0] == 'waitvm':
                n = min(n, 63)
                j = Ins(f's_waitcnt vmcnt({n})')
            else:
                if smem_pending: n = 0
                n = min(n, 15)
                j = Ins(f's_waitcnt lgkmcnt({n})')
            apply_wait(j.text); push(j); continue
        if i.cls == 'wait':
            apply_wait(i.text); push(i); continue
        if i.cls in ('label', 'dir'):
            push(i); continue
        touched = set(i.src) | set(i.dst)
        idx = -1
        for k, o in enumerate(lq):
            if touched & set(o.dst): idx = k
        if idx >= 0 and not (i.cls == 'ds' and not (set(i.src) & set(x for o in lq for x in o.dst))):
            n = len(lq) - 1 - idx
            if smem_pending: n = 0
            n = min(n, 15)
            j = Ins(f's_waitcnt lgkmcnt({n})'); apply_wait(j.text); push(j); stats['auto_lg'] += 1
            log.append(f'auto lgkm({n}) before: {i.text}')
        if any(touched & set(o.dst) for o in smem_pending):
            j = Ins('s_waitcnt lgkmcnt(0)'); apply_wait(j.text); push(j); stats['auto_lg'] += 1
        idx = -1
        for k, o in enumerate(vq):
            if touched & set(o.dst): idx = k
        if idx >= 0:
            n = min(len(vq) - 1 - idx, 63)
            if True:
                j = Ins(f's_waitcnt vmcnt({n})'); apply_wait(j.text); push(j); stats['auto_vm'] += 1
                log.append(f'auto vm({n}) before: {i.text}')
        need = 0
        def req(prod_ws, d):
            nonlocal need
            need = max(need, d - (ws - prod_ws))
        if i.cls == 'mfma':
            req(last_pk, 3)
            for r in i.src:
                if r in last_valu_w: req(last_valu_w[r], 2)
                if r in last_dot_w: req(last_dot_w[r], 3)
            for r in i.srcAB:
                if r in last_mfma_w: req(last_mfma_w[r][0], 8)
            for r in i.srcC:
                if r in last_mfma_w and last_mfma_w[r][1] != tuple(i.srcC): req(last_mfma_w[r][0], 6)
            for r in i.dst:
                if r in last_mfma_w and last_mfma_w[r][1] != tuple(i.srcC): req(last_mfma_w[r][0], 6)
        else:
            if i.cls in VALU_LIKE or i.cls in ('ds', 'vmem'):
                for r in touched:
                    if r in last_mfma_w: req(last_mfma_w[r][0], 8)
                    if r in last_dot_w and not (i.cls == 'dot'): req(last_dot_w[r], 3)
            if i.cls == 'dot':
                for r in i.src[:2]:
                    if r in last_dot_w: req(last_dot_w[r], 3)
            if i.cls in VALU_LIKE:
                for r in i.dst:
                    if r in last_mfma_c: req(last_mfma_c[r], 3)
                    if r in last_store: req(last_store[r], 2)
                for r in i.src:
                    if r in last_trans_w and i.cls != 'trans': req(last_trans_w[r], 1)
                    if r[0] in ('s', 'vcc') and r in last_valu_w: req(last_valu_w[r], 2)
                if 'dpp' in i.text or 'row_' in i.text or 'quad_perm' in i.text:
                    for r in i.src:
                        if r in last_valu_w: req(last_valu_w[r], 2)
            if i.cls in ('ds', 'vmem'):
                for r in i.dst:
                    if r in last_store: req(last_store[r], 1)
                for r in i.src:
                    if r in last_trans_w: req(last_trans_w[r], 1)
            if i.cls == 'perm':
                for r in i.src:
                    if r in last_valu_w: req(last_valu_w[r], 2)
            if i.cls == 'rdlane':
                for r in i.src:
                    if r in last_valu_w: req(last_valu_w[r], 1 if r[0] == 'v' else 4)
            if i.cls == 'vmem':
                for r in i.src:
                    if r[0] == 's' and r in last_valu_w: req(last_valu_w[r], 5)
                if ('m0', 0) in i.src: req(last_salu_m0, 1)
            if i.cls in ('salu', 'branch'):
                for r in i.src:
                    if r[0] in ('s', 'vcc') and r in last_valu_w: req(last_valu_w[r], 1)
        while need > 0:
            k = min(need, 16)
            push(Ins(f's_nop {k-1}')); stats['nops'] += k; need -= k
            log.append(f'nop {k} before: {i.text}')
        push(i)
        if i.op.startswith('v_pk_') or i.op.startswith('v_dot'): last_pk = ws
        if i.cls == 'mfma':
            for r in i.dst:
                last_mfma_w[r] = (ws, tuple(i.dst)); last_valu_w.pop(r, None)
            for r in i.srcC: last_mfma_c[r] = ws
        elif i.cls in VALU_LIKE:
            for r in i.dst:
                last_valu_w[r] = ws; last_mfma_w.pop(r, None)
                if i.cls == 'trans': last_trans_w[r] = ws
                else: last_trans_w.pop(r, None)
                if i.cls == 'dot': last_dot_w[r] = ws
                else: last_dot_w.pop(r, None)
        elif i.cls == 'salu':
            for r in i.dst:
                last_valu_w.pop(r, None)
                if r == ('m0', 0): last_salu_m0 = ws
        if i.cls == 'ds': lq.append(i)
        if i.cls == 'vmem':
            vq.append(i)
            if i.wide_store:
                for r in i.sdata: last_store[r] = ws
        if i.cls == 'smem': smem_pending.append(i)
    return out, log, stats

def render(ins):
    s = []
    for i in ins:
        s.append(i.text if i.cls in ('label', 'dir') else '    ' + i.text)
    return '\n'.join(s) + '\n'
```

```python
import sys, os, math, struct
from asmlib import *

NAME = "recurrent_scan__sliding_block_cached__dense_activation_relu__prompt"
OPT = dict(D=8, NA=12, HX=4, BAR=2, STAMP=0, PST=0, DUMP='', SIGG=60, FORCEFB=0, LOG=0,
           SST='sc1', HLD='sc1', HST='sc1', GLD='sc1', NOSST=0, NOHLD=0, NOHST=0,
           PX='', PW1='sc1', PWQ='sc1', PKV='sc1', PWO='sc1', PW2='sc1', PF=1, PPF='', OST='', WSOFF=0, HSTEP=7, XREV=0, NPRO=3, WAITAT='', WAITT=0, WAITWG=-1, PADS=1, HSIG=150, HPF=0, PF0=0, PF1=14, CHAIN=1, WB=0, WBD=60, BIG=1, DSTART=0, W2ROT=1, NOPF2=2, HEND=40, XPF=1, L0N=1, X1=28, BARK=36, BARP=2, BARA=2, BAR4=2, SPAN=30, SPAN2=20, NV1=100, PKR=0, PCH=1, TLB=1, TLBP='G2_13', XG=0, STLB=0, ST0=4, STS=40, G6P='66666666666666', WOM=1, W2N=7, NPG=9, CPF='', SB2=0, PB2=60, CB2=110, LB2=215, NB2=10, ONORM=1, CE=105, LB=148, H2X=4, H2S=6, SB=52, LB2X=0, NSB=12, PCB=0, NO=0, NX=4, P2G=190, C2G=0, CW=0, NU=3, NC1=6, PKNOP=0, LNM=1, NA0=12, R0F=1, EPF=448, NOBARR=0, LEAK='', LEAK0='', LEAKC=0, SNAKE=3, XP='', NOG=0, NOFLAG=0, W2G=-15, W2S=8, F0=3, F1=5, L0=0, W2PRE=14, H2A=2, H2B=30, SA=48, PA=-75, CA=26, LA=88, SC=26, PB=68, N2=18, G1N=10, XFIRST=4, XSEC=0, WQE=2, OEARLY=2, H2SPAN=60, PFG=170, WQP=2, FINE=0, RT=0, SIMPLE=0, SSP=0)
for a_ in sys.argv[2:]:
    k_, v_ = a_.split('=')
    OPT[k_] = v_.replace('+', ' ') if isinstance(OPT[k_], str) else int(v_)
if OPT['LEAK']: OPT['WAITAT'] = '-'
D = OPT['D']; NA = OPT['NA']

RING_SLOTS = 10
SLOT = 16384
LDS_BYTES = 163840
WS_S = 0
WS_H = 0x1C00000
WS_F = 0x2300000
WS_DBG = 0x2400000
WS_SIZE = 0x8000000 if (OPT['DUMP'] or OPT['STAMP']) else 0x2400000
OOB = 0x7f000000
CSCALE = math.log2(math.e) / 16.0
def f2u(x): return struct.unpack('<I', struct.pack('<f', x))[0]
def hx(x): return f"0x{x & 0xffffffff:x}"

sX, sW1, sWQ, sKK, sVV, sWO, sW2, sWS, sOUT = 28, 32, 36, 40, 44, 48, 52, 56, 60
def srd(b): return f"s[{b}:{b+3}]"
sW, sHD, sT, sWB, sSO = 64, 65, 66, 67, 68
sT0, sT1, sT2, sT3 = 69, 70, 71, 3
sQT = 72
sHST, sHLD, sSST, sSG, sFLG, sFLP, sCNT, sSO2, sTL, sROT, sSTEP, sPC = 86, 87, 88, 89, 90, 91, 92, 93, 94, 95, 96, 97
sTC, sCOOB, sHPF, sW2I, sKVI, sCC = 19, 20, 21, 24, 25, 2
sW1T = 12
sM1, sM2, sM3, sMD = 4, 6, 8, 10
sSV0, sSV1, sSV2 = 12, 13, 14
sSTMP = 26
DBGP = "s[22:23]"
vL16, vHS, vT0, vT1, vT2, vT3, vT4 = 1, 2, 3, 4, 5, 6, 7
vTR = 8
vRA = 20
vPF = 26
vZ, vONE, vPOLL, vSTAMP = 28, 29, 30, 31
vWQ, vKD, vVD, vWOD, vW2D = 32, 36, 40, 32, 36
vXN = 44
vR = 156
vW1D = vR + 64
vXD = vR + 68
vO = 128
vS = 44
vP = 76
vC = 92
vLS = 100
vM = 106
vA4 = 44
vRC = 126
aF, aST, aQ, aH = 0, 48, 64, 128

def v(i, n=1): return f"v{i}" if n == 1 else f"v[{i}:{i+n-1}]"
def a(i, n=1): return f"a{i}" if n == 1 else f"a[{i}:{i+n-1}]"
def mfma(d, A, B, C): return f"v_mfma_f32_16x16x32_bf16 {d}, {A}, {B}, {C}"
def I(t, tag=None): return Ins(t, tag)
lg = lambda x: int(math.log2(x))

P = Prog()
E = P.emit

nstamp = [0]
stamp_names = []
def stamp_ins(name=''):
    clk_ = 's_memtime' if OPT['LEAKC'] else 's_memrealtime'
    if OPT['LEAK'] and name in (OPT['LEAK'], OPT['LEAK0']) and name != 'end':
        return [I(f"{clk_} s[{sSTMP}:{sSTMP+1}]"), I("s_waitcnt lgkmcnt(0)"), I(f"v_writelane_b32 v{vSTAMP}, s{sSTMP}, {0 if name == OPT['LEAK'] else 1}")]
    if OPT['LEAK'] and name == 'end':
        pre_ = [f"s_waitcnt vmcnt(0)", f"{clk_} s[{sSTMP}:{sSTMP+1}]", "s_waitcnt lgkmcnt(0)", f"s_mov_b32 s4, s{sSTMP}"] if OPT['LEAK'] == 'end' else [f"v_readlane_b32 s4, v{vSTAMP}, 0", "s_nop 3"]
        pre_ += [f"v_readlane_b32 s5, v{vSTAMP}, 1", "s_nop 3"] if OPT['LEAK0'] else ["s_mov_b32 s5, s1"]
        return [I(t_) for t_ in (([f"s_cmp_lg_u32 s0, {OPT['WAITWG']}", "s_cbranch_scc1 L_end"] if OPT['WAITWG'] >= 0 else []) + pre_ +
                ["s_sub_u32 s4, s4, s5", "s_lshr_b32 s4, s4, 1" if OPT['LEAKC'] else "s_mul_i32 s4, s4, 8", "s_add_u32 s4, s4, 6000", "L_dw:", f"s_memrealtime s[{sSTMP}:{sSTMP+1}]", "s_waitcnt lgkmcnt(0)",
                 f"s_sub_u32 s{sSTMP}, s{sSTMP}, s1", f"s_cmp_lt_u32 s{sSTMP}, s4", "s_cbranch_scc1 L_dw"])]
    if OPT['WAITAT'] and name == OPT['WAITAT']:
        return [I(t_) for t_ in ((f"s_cmp_lg_u32 s0, {OPT['WAITWG']}", "s_cbranch_scc1 L_end") if OPT['WAITWG'] >= 0 else ()) + ("L_dw:", f"s_memrealtime s[{sSTMP}:{sSTMP+1}]", "s_waitcnt lgkmcnt(0)", f"s_sub_u32 s{sSTMP}, s{sSTMP}, s1",
                                 f"s_cmp_lt_u32 s{sSTMP}, {OPT['WAITT']}", "s_cbranch_scc1 L_dw")]
    if not OPT['STAMP']: return []
    if OPT['STAMP'] == 3 and name not in ('end', 'attn_done', 'G4', 'wb0', 'wb1', 'G6', 'st_done', 'chk0', 'chk1', 'chk2', 'sigA', 'sigB', 'g6_done', 'g_done', 'pre_c2', 'pre_c1', 'pre_c0'): return []
    if OPT['STAMP'] == 2 and name not in ('end', 'G4', 'P0', 'G2_0', 'g6_done'): return []
    n = nstamp[0]; nstamp[0] += 1; stamp_names.append(name)
    return [I(f"{'s_memrealtime' if OPT['RT'] else 's_memtime'} s[{sSTMP}:{sSTMP+1}]"), I("s_waitcnt lgkmcnt(0)"), I(f"v_writelane_b32 v{vSTAMP}, s{sSTMP}, {n}")]
def STAMP(name=''):
    P.ins += stamp_ins(name)
def PST(name):
    if OPT['PST']: STAMP(name)

frags = []
chunks = []
def add_chunk(name, lo, size, dma, private=False):
    chunks.append(dict(name=name, lo=lo, hi=lo+size, dma=dma, private=private, first=None, last=None)); return len(chunks)-1
def add_frag(kind, rs, rb, addr, mf, ch):
    frags.append(dict(kind=kind, rb=rb, rs=rs, addr=addr, mf=mf, chunk=ch))
    c = chunks[ch]
    if c['first'] is None: c['first'] = len(frags)-1
    c['last'] = len(frags)-1
def frag_reads(f):
    fr = frags[f]; A = aF + 4*(f % NA)
    def rd(op, dst, addr):
        win = addr >> 16
        return I(f"{op} {dst}, v{fr['rb'] + win*fr['rs']} offset:{addr & 0xffff}", tag=('f', f))
    if fr['kind'] == 'tr':
        return [rd("ds_read_b64_tr_b16", a(A, 2), fr['addr']), rd("ds_read_b64_tr_b16", a(A+2, 2), fr['addr'] + 2048)]
    return [rd("ds_read_b128", a(A, 4), fr['addr'])]
POL = {sW1: 'PW1', sWQ: 'PWQ', sKK: 'PKV', sVV: 'PKV', sWO: 'PWO', sW2: 'PW2'}
ring_pos = [7]
def ring_round(name, srd_b, vbase, so_text, private=False):
    slot = ring_pos[0] % RING_SLOTS; ring_pos[0] += 1
    lo = slot*SLOT
    tag = ('c', len(chunks))
    dma = [I(f"s_add_u32 m0, s{sWB}, {lo}")]
    if so_text.startswith('s') or so_text == '0': so = so_text
    elif so_text.startswith('+'):
        dma.append(I(f"s_add_u32 s{sSO}, {so_text[1:]}")); so = f"s{sSO}"
    else:
        dma.append(I(f"s_mov_b32 s{sSO}, {so_text}")); so = f"s{sSO}"
    for rb in range(4):
        dma.append(I(f"buffer_load_dwordx4 v{vbase+rb}, {srd(srd_b)}, {so} offen offset:{rb*1024} {OPT[POL[srd_b]]} lds", tag=tag))
    return add_chunk(name, lo, SLOT, dma, private)

phase = {}
def xn(ks, tg): return vXN + (ks*2 + tg)*4
def accp(pp, kq, tg, par): return vR + (pp % 2)*32 + ((kq*2 + tg)*2 + par)*4
pend_ = []
for pp in range(6):
    phase[f'P{pp}'] = len(frags)
    for ks in range(14):
        qi = 14*pp + ks
        if qi % 4 == 0:
            r_ = qi // 4
            blk_, rp = r_ // 7, r_ % 7
            R_ = 32*(8192 if blk_ < 2 else 3584); sb = sW1T + (0 if blk_ < 2 else 2); cb_ = 256 if blk_ == 1 else 0
            so_ = f"+s{sb+1}, {cb_}" if rp == 3 else f"+s{sb}, {(4*rp*R_ if rp < 3 else (4*rp-14)*R_ + 128) + cb_}"
            ch = ring_round(f"wq_{r_}", sWQ, vWQ, so_) if r_ < 14 else ring_round(f"w1_{r_-14}", sW1, vW1D, so_)
        pend_.append((ks, qi, ch))
        if OPT['PCH'] == 1 and (ks % 2 == 0 or qi == 81): continue
        if OPT['PCH'] == 2 and not (qi % 4 == 3 or ks == 13): continue
        for u in range(4):
            for ks_, qi_, ch_ in pend_:
                mf = (lambda A, pp=pp, ks=ks_, u=u: [mfma(v(accp(pp, u >> 1, tg, u & 1), 4), A, v(xn(ks, tg), 4), "0" if ks == 0 else v(accp(pp, u >> 1, tg, u & 1), 4)) for tg in range(2)])
                add_frag('tr', 4, vTR + u, chunks[ch_]['lo'] + (qi_ % 4)*4096, mf, ch_)
        pend_ = []
def qf(kq, tg): return aQ + (kq*2 + tg)*4
def Sreg(st, tg, kt): return vS + (st % 2)*16 + tg*8 + kt*4
def Preg(st, tg): return vP + (st % 2)*8 + tg*4
def Oreg(d, tg): return vO + (((d >> 1)*2 + tg)*2 + (d & 1))*4
def G2(st):
    phase[f'G2_{st}'] = len(frags)
    ch = ring_round(f"K_{st}", sKK, vKD, str(st*16384))
    order = [(kt, ks) for kt in range(2) for ks in range(8)]
    for kt, ks in order:
        def mf(A, kt=kt, ks=ks):
            r = []
            for tg in range(2):
                c = v(Sreg(st, tg, kt), 4)
                if ks == 0: c = "0" if st < 1 else v(vC + 4*tg, 4)
                r.append(mfma(v(Sreg(st, tg, kt), 4), A, a(qf(ks, tg), 4), c))
            return r
        add_frag('b128', 2, vRA + (ks & 1), chunks[ch]['lo'] + (ks >> 1)*4096 + kt*2048, mf, ch)
def G3(st):
    phase[f'G3_{st}'] = len(frags)
    ch = ring_round(f"V_{st}", sVV, vVD, str(st*16384))
    for d in range(16):
        mf = (lambda A, d=d: [mfma(v(Oreg(d, tg), 4), A, v(Preg(st, tg), 4), "0" if st == 0 else v(Oreg(d, tg), 4)) for tg in range(2)])
        add_frag('tr', 4, vTR + (d & 3), chunks[ch]['lo'] + (d >> 2)*4096, mf, ch)
G2(0)
for st in range(15):
    G2(st + 1); G3(st)
G3(15)
phase['AEND'] = len(frags)
def acc4(p, u, tg): return hole(8 + ((u >> 1)*2 + tg)*2 + (u & 1))
def Opk(ks, tg): return vO + (ks*2 + tg)*8
def hole(i): return vO + 8*i + 4
def hreg(kk, t4):
    i = kk*4 + t4
    if i < 32: return a(aH + 4*i, 4)
    if i < 48: return a(aQ + 4*(i-32), 4)
    return v(hole(i-48), 4)
def facc(u, t4):
    return vA4 + 4*(u*4 + t4)
vTP = 108
G6P = OPT['G6P']
assert len(G6P) == 14
kk = 0
NU = OPT['NU']
def g6step(kk):
    ks_ = [kk] if kk < 14 - NU else list(range(14 - NU, 14))
    if kk > ks_[0]: return
    for k2 in ks_: phase[f'G6_{k2}'] = len(frags)
    chs_ = {k2: ring_round(f"w2_{k2}", sW2, vW2D, str(k2*32*896), private=True) for k2 in ks_}
    for u in range(4):
        for k2 in ks_:
            mf = (lambda A, kk=k2, u=u: [mfma(v(facc(u, t4), 4), A, hreg(kk, t4), "0" if kk == 0 else v(facc(u, t4), 4)) for t4 in range(4)])
            add_frag('tr', 4, vTP + u, chunks[chs_[k2]]['lo'], mf, chs_[k2])
while kk < OPT['NO']: g6step(kk); kk += 1
phase['G4'] = len(frags)
for p in range(7):
    phase[f'G4p{p}'] = len(frags)
    chs = [ring_round(f"wo_{p}_{h_}", sWO, vWOD, f"s{sQT+p}" if h_ == 0 else f"+s{sQT+p}, {4*32*896}") for h_ in range(2)]
    for u in range(4):
        for ks in range(8):
            ch = chs[ks // 4]
            mf = (lambda A, p=p, ks=ks, u=u: [mfma(v(acc4(p, u, tg), 4), A, v(Opk(ks, tg), 4), "0" if ks == 0 else v(acc4(p, u, tg), 4)) for tg in range(2)])
            add_frag('tr', 4, vTR + u, chunks[ch]['lo'] + (ks % 4)*4096, mf, ch)
    if p == 6: phase['G6'] = len(frags); NPOST = 14 - kk
    while kk < 14 and int(G6P[kk]) == p:
        g6step(kk)
        kk += 1
assert kk == 14
NF = len(frags)
phase['END'] = NF

MF = [fr['mf'](a(aF + 4*(f % NA), 4)) for f, fr in enumerate(frags)]
if OPT['CHAIN']:
    for f0 in range(0, NF, 4):
        nm_ = chunks[frags[f0]['chunk']]['name']
        isP = nm_[:2] in ('wq', 'w1')
        if nm_.startswith('K_') or nm_.startswith('wo_') or (OPT['PCH'] and isP):
            if OPT['SNAKE'] & 1:
                t0 = (f0 // 4) % 2
                fl = [MF[f0+k_][t0] for k_ in range(4)] + [MF[f0+k_][1-t0] for k_ in (3, 2, 1, 0)]
                ops = [re.match(r'(\S+) (\S+), (\S+), (\S+), (\S+)$', m_).groups() for m_ in fl]
                init = {o_[1]: o_[4] for o_ in ops if o_[4] != o_[1]}
                seen = set(); fl = []
                for o_ in ops:
                    c_ = init[o_[1]] if (o_[1] in init and o_[1] not in seen) else o_[1]
                    seen.add(o_[1]); fl.append(f"{o_[0]} {o_[1]}, {o_[2]}, {o_[3]}, {c_}")
            else:
                fl = [MF[f0+k_][tg] for tg in range(2) for k_ in range(4)]
            for k_ in range(4): MF[f0+k_] = fl[2*k_:2*k_+2]
        elif OPT['SNAKE'] & 2:
            for k_ in (1, 3): MF[f0+k_] = MF[f0+k_][::-1]
G0 = [0]
for f in range(NF): G0.append(G0[-1] + len(MF[f]))
NG = G0[-1]
def gap(f): return G0[max(0, min(f, NF))]
pre = [[] for _ in range(NG)]
rds = [[] for _ in range(NG)]
ext = [[] for _ in range(NG)]
blk = {}
for g in range(NF):
    if g + D < NF:
        r = frag_reads(g + D)
        n = len(MF[g])
        rds[G0[g]].append(r[0])
        if len(r) > 1: rds[G0[g] + n//2].append(r[1])
def cost(i):
    if i.cls in ('ds',): return 8
    if i.cls == 'vmem': return 24 if 'store' in i.op and 'x4' in i.op else 8
    if i.cls in ('trans', 'perm'): return 8
    if i.cls == 'label': return 0
    return 4
def gtime(items):
    t = 4; pw = False
    for i in items:
        if i.cls in VALU_LIKE: t = max(t, 8)
        if not (pw and i.cls == 'wait'): t += cost(i)
        pw = i.cls == 'wait'
    return t
def greedy(seq, g0, g1):
    seq = [I(s) if isinstance(s, str) else s for s in seq]
    gp = g0; done = []
    for ins in seq:
        while gp < g1 and not fits(gp, ins): gp += 1
        if gp >= g1:
            for q_, i_ in done: ext[q_].remove(i_)
            return place(seq, g0, g1)
        ext[gp] = with_(gp, ins); done.append((gp, ins))
    return gp
deferred = []
def with_(gp, i):
    e_ = ext[gp]
    if i.cls in ('salu', 'wait', 'vmem', 'misc') and e_ and e_[-1].op == 'v_exp_f32': return e_[:-1] + [i] + e_[-1:]
    return e_ + [i]
def fits(gp, i): return gtime(pre[gp] + rds[gp] + with_(gp, i)) <= 16
def place(seq, g0, g1=None):
    seq = [I(s) if isinstance(s, str) else s for s in seq]
    g1 = NG if g1 is None else min(g1, NG)
    gp = g0; n = len(seq)
    for k, ins in enumerate(seq):
        bound = max(min(g0 + ((k + 1) * (g1 - g0)) // n - 1, g1 - 1), gp)
        best = None
        for q in range(gp, bound + 1):
            if fits(q, ins): best = q; break
        if best is None:
            best = min(range(gp, bound + 1), key=lambda q: (gtime(pre[q] + rds[q] + with_(q, ins)) - max(16, gtime(pre[q] + rds[q] + ext[q])), q))
        ext[best] = with_(best, ins)
        gp = best
    return gp
def spread(seq, g0, g1):
    n = len(seq); cur = g0
    for k, ins in enumerate(seq):
        lo = max(g0 + (k*(g1-g0))//n, cur); hi = max(g0 + ((k+1)*(g1-g0))//n, lo+1)
        cur = place([ins], lo, hi)
    return cur

shared = [c for c in range(len(chunks)) if not chunks[c]['private']]
def is_bar(k_):
    if k_ == 0: return True
    if k_ < 21: return (k_ - 1) % OPT['BARP'] == 0
    if k_ < 53: return (k_ - 21) % OPT['BARA'] == 0
    return (k_ - 53) % OPT['BAR4'] == 0
bar_frags = [chunks[c]['first'] for k_, c in enumerate(shared) if is_bar(k_)]
bar_frags += [phase['G6'], phase['G6'] + D + 1]
bar_frags = sorted(set(bar_frags))
bar_gap = []
first_need = None
for bi, f0 in enumerate(bar_frags):
    f1 = bar_frags[bi+1] if bi + 1 < len(bar_frags) else NF
    need = [('c', c) for c in shared if f0 <= chunks[c]['first'] < f1]
    if f0 == 0: first_need = need; continue
    gp = gap(f0 - D); bar_gap.append(gp)
    if need: ext[gp-1].append(mk_wait_vm(need))
    pre[gp].append(I("s_barrier" if not (OPT['NOBARR'] and gp < gap(phase['AEND']) - 40) else "s_nop 0"))
for c in range(len(chunks)):
    if chunks[c]['private']:
        ext[gap(chunks[c]['first'] - D) - 1].append(mk_wait_vm([('c', c)]))
for g in range(4, NF, 4):
    ext[gap(g) - 1].append(mk_wait_lg([('f', f) for f in range(g, min(g+4, NF))]))
def svals(st): return [Sreg(st, tg, kt) + r for tg in range(2) for kt in range(2) for r in range(4)]
EXPG = {}
for st in range(1, 15):
    f0 = phase[f'G2_{st+1}'] - D
    EXPG[st] = [gap(f0 + k_) + 1 for k_ in range(16)]
    for k_, r in enumerate(svals(st)): ext[EXPG[st][k_]].append(I(f"v_exp_f32 v{r}, v{r}"))
def earliest_gap(c):
    e = -1
    C = chunks[c]
    for c2 in range(c):
        B = chunks[c2]
        if B['hi'] <= C['lo'] or C['hi'] <= B['lo']: continue
        if B['private']: e = max(e, gap(B['last'] + 1))
        else: e = max(e, [gp for gp in bar_gap if gp >= gap(B['last'] + 1)][0] + 1)
    return e
pro_dma = []
cur = OPT['DSTART']
for c in range(len(chunks)):
    e = earliest_gap(c)
    if e < 0 and c < OPT['NPRO']:
        pro_dma.append(chunks[c]['dma']); continue
    if chunks[c]['name'].startswith('w2_') and int(chunks[c]['name'][3:]) >= OPT['W2PRE']: e = max(e, gap(phase['G6']) + OPT['W2G'])
    g0 = max(e, cur)
    span = OPT['SPAN']
    if g0 > e + 8: span = OPT['SPAN2']
    if g0 >= gap(phase['G6'] - D): span = OPT['W2S']
    seq = list(chunks[c]['dma'])
    if chunks[c]['name'] == 'wo_0_0': seq = [I(f"v_accvgpr_read_b32 v{vWOD+i}, a{aST+i}") for i in range(4)] + seq; wo_first_gap = g0
    if chunks[c]['name'] == 'w2_0': seq = [I(f"v_accvgpr_read_b32 v{vW2D+i}, a{aST+4+i}") for i in range(4)] + seq
    cur = spread(seq, g0, g0 + span)
    need_gap = gap(chunks[c]['first'] - D)
    if not chunks[c]['private']: need_gap = max(gp for gp in bar_gap if gp <= need_gap)
    if OPT['LOG']: print(chunks[c]['name'], g0, cur, need_gap, 'lead', need_gap - cur, file=sys.stderr)
    assert cur < need_gap - 1, (chunks[c]['name'], cur)

seq = []
for p in range(7):
    seq += [f"s_add_u32 s{sT2}, s{sROT}, {p}", f"s_sub_u32 s{sT3}, s{sT2}, 7", f"s_min_u32 s{sT2}, s{sT2}, s{sT3}",
            f"s_lshl_b32 s{sQT+p}, s{sT2}, 7", f"s_lshl_b32 s{sT2}, s{sT2}, 16", f"s_add_u32 s{sQT+7+p}, s{sSST}, s{sT2}",
            f"s_add_u32 s{sSST}, s{sSST}, s{sSTEP}"]
deferred.append((seq, 2, gap(phase['P4'])))
assert gap(phase['G3_8']) < wo_first_gap
assert OPT['BAR'] == 2
deferred.append(([f"v_add_u32 v{vTP+i}, s{sWB}, v{vTR+i}" for i in range(12)], gap(phase['G3_1']), gap(phase['G3_14'])))

def hconv(pp):
    s = []
    for kq in range(2):
        for tg in range(2):
            b = accp(pp, kq, tg, 0)
            if not OPT['PKR']:
                for r in range(8): s.append(f"v_max_f32 v{b+r}, 0, v{b+r}")
            for r in range(4): s.append(f"v_cvt_pk_bf16_f32 v{b+r}, v{b+2*r}, v{b+2*r+1}")
            if OPT['PKR']:
                for r in range(4): s.append(f"v_pk_max_i16 v{b+r}, v{b+r}, 0")
            if not OPT['NOHST']:
                s.append(I(f"buffer_store_dwordx4 {v(b,4)}, v{vHS}, {srd(sWS)}, s{sHST} offen offset:{kq*2048 + tg*1024} {OPT['HST']}", tag='hst'))
    if pp == 4: s.append(f"s_add_u32 s{sHST}, s{sHST}, 4096")
    return s
late_place = []
late_place.append(lambda: place(hconv(4), gap(phase['P5']) + 4, gap(phase['G2_0']) - 16))
def qconv(pp):
    s = []
    for kq in range(2):
        for tg in range(2):
            b = accp(pp, kq, tg, 0)
            s += [f"v_cvt_pk_bf16_f32 v{b+r}, v{b+2*r}, v{b+2*r+1}" for r in range(4)]
            s += [f"v_permlane32_swap_b32 v{b}, v{b+2}", f"v_permlane32_swap_b32 v{b+1}, v{b+3}",
                  f"v_permlane16_swap_b32 v{b}, v{b+2}", f"v_permlane16_swap_b32 v{b+1}, v{b+3}"]
            s += [f"v_accvgpr_write_b32 a{qf(2*pp+kq, tg)+r}, v{b+r}" for r in range(4)]
    return s
for pp in range(4):
    g0 = gap(phase[f'P{pp+1}'])
    late_place.append(lambda pp=pp, g0=g0: place(qconv(pp), g0 + 4, g0 + 2*56 - 4))

def allred(r, t, op):
    return [f"v_mov_b32 v{t}, v{r}", f"v_permlane32_swap_b32 v{r}, v{t}", f"{op} v{r}, v{r}, v{t}",
            f"v_mov_b32 v{t}, v{r}", f"v_permlane16_swap_b32 v{r}, v{t}", f"{op} v{r}, v{r}, v{t}"]
def interleave(*seqs):
    out = []
    for k in range(max(len(s) for s in seqs)):
        for s in seqs:
            if k < len(s): out.append(s[k])
    return out
def svals(st): return [Sreg(st, tg, kt) + r for tg in range(2) for kt in range(2) for r in range(4)]
g0 = gap(phase['G2_0'])
seqs = []
for tg in range(2):
    b = Sreg(0, tg, 0); m = vM + 2*tg; t = m + 1
    s = [f"v_max3_f32 v{m}, v{b}, v{b+1}, v{b+2}", f"v_max_f32 v{m}, v{m}, v{b+3}"] + allred(m, t, "v_max_f32")
    s += [f"v_sub_f32 v{vC+4*tg+r}, 0, v{m}" for r in range(4)]
    seqs.append(s)
seq = interleave(*seqs) + [f"v_mov_b32 v{vLS}, 0", f"v_mov_b32 v{vLS+1}, 0"]
gm = place(seq, g0 + 19, g0 + 31)
def sm_seq(st, sub):
    s = []
    vals = svals(st)
    for k_, r in enumerate(vals):
        tg = k_ // 8
        if sub: s.append(f"v_add_f32 v{r}, v{r}, v{vC+4*tg}")
        s.append(f"v_exp_f32 v{r}, v{r}")
        if k_ % 2 == 1 and k_ >= 3:
            kk = k_ - 3
            s.append(f"v_cvt_pk_bf16_f32 v{Preg(st, kk//8) + (kk % 8)//2}, v{vals[kk]}, v{vals[kk+1]}")
    s.append(f"v_cvt_pk_bf16_f32 v{Preg(st, 1) + 3}, v{vals[14]}, v{vals[15]}")
    return s
def add_seq(st):
    vals = svals(st)
    return interleave([f"v_add_f32 v{vLS}, v{vLS}, v{r}" for r in vals[:8]], [f"v_add_f32 v{vLS+1}, v{vLS+1}, v{r}" for r in vals[8:]])
def softmax_place():
    for st in range(16):
        g3 = gap(phase[f'G3_{st}'])
        if st == 0:
            ge = place(sm_seq(st, True), gap(phase['G2_1']) + 3, g3 - 1)
        elif st < 15:
            vals = svals(st)
            for k_ in range(8):
                greedy([f"v_cvt_pk_bf16_f32 v{Preg(st, k_//4) + k_ % 4}, v{vals[2*k_]}, v{vals[2*k_+1]}"], EXPG[st][2*k_+1] + 1, g3 - 2)
            lim = gap(phase[f'G2_{st+2}']) - 2 if st + 2 < 16 else gap(phase['G3_15'])
            for k_, r in enumerate(vals):
                greedy([f"v_add_f32 v{vLS + k_//8}, v{vLS + k_//8}, v{r}"], EXPG[st][k_] + 1, lim)
            continue
        else:
            ge = place(sm_seq(st, False), gap(phase['G3_14']) + 4, g3 - 2)
        lim = gap(phase[f'G2_{st+2}']) - 2 if st + 2 < 16 else g3 + 14
        ga = place(add_seq(st), ge, lim)
    seqs = []
    for tg in range(2):
        l = vLS + tg; t = vM + tg
        seqs.append(allred(l, t, "v_add_f32") + [f"v_rcp_f32 v{vRC+tg}, v{l}"])
    seq = interleave(*seqs) + [f"v_add_f32 v{vM}, v{vLS}, v{vLS+1}", f"s_mov_b32 s{sT0}, {hx(f2u(2.0**24 if not OPT['FORCEFB'] else 0.5))}", f"v_cmp_ngt_f32 vcc, s{sT0}, v{vM}"]
    place(seq, max(ga, gap(phase['G3_15'])), gap(phase['AEND']) - 1)
late_place.append(softmax_place)

hc = hconv(5)
assert OPT['PCH']
n3 = len(hc)//2
place(hc[:n3], gap(phase['G2_0']) - 13, gap(phase['G2_0']) + 3)
gend = place(hc[n3:], gap(phase['G2_0']) + 3, gap(phase['G2_0']) + 19)
assert accp(5, 1, 1, 0) >= Oreg(10, 0)
hb = [gp for gp in bar_gap if gp > gend + OPT['HSIG']][0]
ext[hb-1].append(mk_wait_vm(['hst']))
sig = [I(f"s_cmp_lg_u32 s{sW}, 0"), I("s_cbranch_scc1 L_nosig"), I(f"s_lshl_b32 s{sT0}, s{sT}, 4"), I(f"v_mov_b32 v{vPOLL}, s{sT0}"),
       I("s_mov_b64 exec, 1"), I(f"global_atomic_add v{vPOLL}, v{vONE}, {DBGP} sc1"), I("s_mov_b64 exec, -1"), I("L_nosig:")]
sig[5].cls = 'misc'
ext[hb+1] += sig

def dump(regs_list):
    r = [I("s_nop 15"), I(f"s_lshl_b32 s{sT0}, s{sT}, 4"), I(f"s_add_u32 s{sT0}, s{sT0}, s{sHD}"),
         I(f"s_lshl_b32 s{sT0}, s{sT0}, 2"), I(f"s_add_u32 s{sT0}, s{sT0}, s{sW}"),
         I(f"s_mul_i32 s{sT0}, s{sT0}, {32*1024}"), I(f"s_add_u32 s{sT0}, s{sT0}, {hx(WS_DBG)}")]
    for reg in regs_list:
        r.append(I(f"buffer_store_dwordx4 {reg}, v{vL16}, {srd(sWS)}, s{sT0} offen"))
        r.append(I(f"s_add_u32 s{sT0}, s{sT0}, 1024"))
    r.append(I("s_nop 3"))
    return r
def ocvt(ks): return [f"v_cvt_pk_bf16_f32 v{Opk(ks, tg)+r}, v{Opk(ks, tg)+2*r}, v{Opk(ks, tg)+2*r+1}" for tg in range(2) for r in range(4)]
if OPT['ONORM']:
    def ocvt(ks):
        s = []
        for tg in range(2):
            o = Opk(ks, tg)
            s += [f"v_pk_mul_f32 {v(o+2*r,2)}, {v(o+2*r,2)}, {v(vRC,2)} op_sel:[0,{tg}] op_sel_hi:[1,{tg}]" for r in range(4)]
        for tg in range(2):
            o = Opk(ks, tg)
            s += [f"v_cvt_pk_bf16_f32 v{o+r}, v{o+2*r}, v{o+2*r+1}" for r in range(4)]
        return s
NEARLY = 0 if OPT['ONORM'] else OPT['OEARLY']
g15 = gap(phase['G3_15'])
for ks in range(NEARLY): place(ocvt(ks), g15 + 4*ks + 8, gap(phase['G4']) - 1)
assert NEARLY == 0
b = stamp_ins('attn_done') + [I("s_cbranch_vccnz L_exact"), I("L_exact_ret:")]
NX = OPT['NX'] if OPT['NO'] else 8
for ks in range(NX): b += [I(t_) for t_ in ocvt(ks)]
blk[phase['AEND']] = b
if OPT['NO']:
    seq = []
    for ks in range(NX, 8):
        for tg in range(2):
            o = Opk(ks, tg)
            seq += [f"v_mul_f32 v{o+r}, v{vRC+tg}, v{o+r}" for r in range(8)] + [f"v_cvt_pk_bf16_f32 v{o+r}, v{o+2*r}, v{o+2*r+1}" for r in range(4)]
    ONSEQ = seq
    b = []
if OPT['DUMP'] == 'o': b += dump([v(Opk(ks, tg), 4) for ks in range(8) for tg in range(2)])
if OPT['DUMP'] == 'q': b += dump([a(qf(ks, tg), 4) for ks in range(8) for tg in range(2)])
b += stamp_ins('G4')
blk[phase['G4']] = b

def sconv(p, u):
    s = []
    for tg in range(2):
        b = acc4(p, u, tg); d = acc4(p, u & ~1, tg) + 2*(u & 1)
        if not OPT['ONORM']: s += [f"v_mul_f32 v{b+r}, v{vRC + tg}, v{b+r}" for r in range(4)]
        s += [f"v_cvt_pk_bf16_f32 v{d}, v{b}, v{b+1}", f"v_cvt_pk_bf16_f32 v{d+1}, v{b+2}, v{b+3}"]
        if u & 1:
            if (u, tg) != (1, 0): s.append(f"s_add_u32 s{sQT+7+p}, s{sQT+7+p}, 16384")
            if not OPT['NOSST']: s.append(I(f"buffer_store_dwordx4 {v(acc4(p, u & ~1, tg),4)}, v{vL16}, {srd(sWS)}, s{sQT+7+p} offen {OPT['SST']}", tag=('sst', p)))
    return s
g4 = gap(phase['G4'])
for p in range(7):
    for u in range(4):
        g0 = gap(phase[f'G4p{p}']) + 16*(u+1)
        if u == 3 and p < 6: gl = place(sconv(p, u), g0 + 3, g0 + 28)
        else: gl = place(sconv(p, u), g0 + 3, g0 + (19 if (p, u) != (6, 3) else 10))
last_store_gap = gl
hs = OPT['HSTEP']
gp0 = gap(phase[f'G3_{hs-1}']) - 30
place([f"s_lshl_b32 s{sT0}, s{sTC}, 4", f"v_mov_b32 v{vPOLL}, s{sT0}", I(f"global_load_dword v{vPOLL}, v{vPOLL}, {DBGP} sc1", tag='pollh'),
       f"v_add_u32 v{vHS}, s{sCOOB}, v{vL16}"], gp0, gp0 + 24)
gp1 = gap(phase[f'G3_{hs}'])
ext[gp1] += [mk_wait_vm(['pollh']), I(f"v_cmp_gt_u32 vcc, 16, v{vPOLL}"), I("s_cbranch_vccnz L_spinh"), I("L_spinh_ret:")]
sHB = 98
def hloads(k0, k1):
    s = []
    for kk in range(k0, k1, 2):
        for j in range(4):
            s.append(f"s_add_u32 s{sT0}, s{sHB+j}, {kk*2048}")
            for k2 in range(2):
                s.append(I(f"buffer_load_dwordx4 {hreg(kk+k2, j)}, v{vHS}, {srd(sWS)}, s{sT0} offen offset:{k2*2048} {OPT['HLD']}", tag='hld'))
    return s
seq = []
for j in range(4):
    seq += [f"s_add_u32 s{sT2}, s{sW}, {j}", f"s_bfe_u32 s{sT3}, s{sT2}, 0x10001", f"s_mul_i32 s{sT3}, s{sT3}, {56*2048}", f"s_and_b32 s{sT2}, s{sT2}, 1",
            f"s_lshl_b32 s{sT2}, s{sT2}, 10", f"s_add_u32 s{sT2}, s{sT2}, s{sT3}", f"s_add_u32 s{sHB+j}, s{sHLD}, s{sT2}"]
deferred.append((seq, gap(phase['P4']), gap(phase['G2_0'])))
if not OPT['NOHLD']:
    spread(hloads(0, 8), gap(phase[f"G3_{hs+OPT['HPF']}"]) + 2, gap(phase['G3_15']) - OPT['HEND'])
    if OPT['H2X']:
        hl = [I(s_) if isinstance(s_, str) else s_ for s_ in hloads(8, 8 + OPT['H2X'])]
        b_ = blk[phase['AEND']]
        k0 = [k_ for k_, i_ in enumerate(b_) if i_.text == 'L_exact_ret:'][0]
        for k_, i_ in enumerate(hl): b_.insert(k0 + 1 + k_*OPT['H2S'], i_)
    spread(hloads(8 + OPT['H2X'], 14), g4 + OPT['H2A'], g4 + OPT['H2B'])
if OPT['NO']: place(ONSEQ, gap(phase['AEND']) + 1, gap(phase['G4']) - 1)
g6 = gap(phase['G6'])
vFV = 120
def greg(rl, sl):
    i = sl*2 + rl
    if NPOST <= 10: i = (i + 16) % 32
    if i < 16: return v(Opk(0, 0) + 8*i, 4)
    return a(aH + (i - 16)*4, 4)
assert OPT['CA'] > 0 or (NPOST <= 10 and g6 + OPT['CA'] > gap(phase['G6_3'] + 4))
def gloads(s0, s1, va):
    s = []
    for sq in range(s0, s1, 2):
        for rl in range(2):
            s.append(I(f"s_add_u32 s{sT1}, s{sSG}, {rl*2*16384 + sq*1024}"))
            for sl in range(sq, sq+2):
                if not OPT['NOG']: s.append(I(f"buffer_load_dwordx4 {greg(rl, sl)}, v{va}, {srd(sWS)}, s{sT1} offen offset:{(sl-sq)*1024} {OPT['GLD']}", tag=('g', rl, sl)))
    return s
F0 = OPT['F0']
sPL = 32
sMISS = 18
F1 = OPT['F1']
place([f"v_and_b32 v{vFV+3}, 15, v0"], g4 + 100, g4 + 200)
def signal(k, n): return [mk_wait_vm([('sst', p) for p in range(n)]), I(f"buffer_store_byte v{vONE}, v{vZ}, {srd(sWS)}, s{sFLG} offen offset:{128*k} sc1", tag='flag')]
spoll = I(f"s_buffer_load_dwordx4 s[{sPL}:{sPL+3}], {srd(sWS)}, s{sFLP} glc"); spoll.cls = 'misc'
VPOLL2 = f"buffer_load_ubyte v{vPOLL}, v{vFV+3}, {srd(sWS)}, s{sFLP} offen offset:256 sc1"
VPOLL = VPOLL2 if F1 == 7 else VPOLL2.replace('offset:256', 'offset:128')
ext[gap(phase[f'G4p{F0-1}']) + 64 + OPT['SA']] += signal(0, F0) + stamp_ins('sigA')
if F1 < 7: ext[gap(phase[f'G4p{F1-1}']) + 64 + OPT['SB']] += signal(1, F1) + stamp_ins('sigB')
ext[g6 + OPT['PA']] += [spoll]
sg = g6 + OPT['SC']
ext[sg] += signal(2, 7) + stamp_ins('st_done') + [I(f"s_cmp_ge_u32 s{sPC}, 14"), I("s_cbranch_scc1 " + ("L_fin" if OPT['STAMP'] == 3 else "L_end"))]
assert sg > bar_gap[-1] and sg > last_store_gap
ext[g6 + OPT['CA']] += stamp_ins('pre_c0') + [I(t_) for t_ in (
    "s_waitcnt lgkmcnt(0)", f"s_and_b64 s[{sPL}:{sPL+1}], s[{sPL}:{sPL+1}], s[{sPL+2}:{sPL+3}]", f"s_and_b32 s{sPL}, s{sPL}, s{sPL+1}",
    f"s_and_b32 s{sPL}, s{sPL}, 0x01010101", f"s_cmp_eq_u32 s{sPL}, 0x01010101", f"s_cselect_b32 s{sMISS}, 0, {hx(OOB)}",
    f"v_add_u32 v{vFV+2}, s{sMISS}, v{vHS}")] + stamp_ins('chk0')
spread(gloads(0, 2*F0, vFV+2), g6 + OPT['CA'] + 1, g6 + OPT['LA'])
ext[g6 + OPT['PB']] += [I(VPOLL, tag='poll')]
NSB = 2*F1 if F1 < 7 else OPT['NSB']
assert OPT['CE'] > max(OPT['PB'], OPT['LA'])
ext[g6 + OPT['CE']] += stamp_ins('pre_c1') + [mk_wait_vm(['poll'])] + [I(t_) for t_ in (f"v_cmp_ne_u32 vcc, 1, v{vPOLL}", "s_cbranch_vccnz L_spin1", "L_spin1_ret:",
    f"s_cmp_lg_u32 s{sMISS}, 0", "s_cbranch_scc1 L_redo", "L_redo_ret:")] + stamp_ins('chk1')
glB = gloads(2*F0, NSB, vHS)
kp = len(glB) - 3*OPT['PCB']
if F1 < 7 and not OPT['P2G']: glB[kp:kp] = [I(VPOLL2, tag='poll2')]
spread(glB, g6 + OPT['CE'] + 1, min(g6 + OPT['LB'], NG - 4))
glC = gloads(NSB, 16, vHS)
if OPT['P2G']:
    assert OPT['P2G'] >= OPT['LB'] and OPT['PCB'] == 0
    ext[g6 + OPT['P2G']] += [I(VPOLL2, tag='poll2')]
if OPT['C2G']:
    ext[g6 + OPT['C2G']] += stamp_ins('pre_c2') + [mk_wait_vm(['poll2'])] + [I(t_) for t_ in (f"v_cmp_ne_u32 vcc, 1, v{vPOLL}", "s_cbranch_vccnz L_spin2", "L_spin2_ret:")] + stamp_ins('chk2')
    spread(glC, g6 + OPT['C2G'] + 1, NG - 2); glC = []
NYB = 2*(NSB - 2*F0) + (1 if F1 < 7 else 0)

vXF = 32
vAD = 125
nch = len(chunks)
free_ = [c_ for c_ in range(nch - 10, nch - NU) if chunks[c_]['private']]
XK = free_[0]; FS = [chunks[c_]['lo'] for c_ in free_[1:4]]
assert gap(chunks[free_[3]]['last'] + 1) < NG - 16*NU
XS = chunks[XK]['lo']
gx_ = max(gap(chunks[XK]['last'] + 1), cur + 1, g6 + OPT['XG'])
gx2 = place([f"v_accvgpr_read_b32 v{vAD}, a{aST+8}", f"s_add_u32 m0, s{sWB}, {XS}", f"s_movk_i32 s{sSV0}, {8*896 - 1024}", f"s_movk_i32 s{sSV1}, {8*896}",
       I(f"buffer_load_dwordx4 v{vAD}, {srd(sX)}, 0 offen lds", tag='xf'), I(f"buffer_load_dwordx4 v{vAD}, {srd(sX)}, s{sSV0} offen offset:1024 lds", tag='xf'),
       f"v_and_b32 v{vT3}, 15, v0", f"v_lshlrev_b32 v{vT3}, 7, v{vT3}", f"v_lshrrev_b32 v{vT4}, 4, v0", f"v_lshl_add_u32 v{vT3}, v{vT4}, 3, v{vT3}",
       f"s_add_u32 s{sSV2}, s{sWB}, {XS}", f"v_add_u32 v{vT3}, s{sSV2}, v{vT3}", f"v_lshrrev_b32 v{vT4}, 3, v0", f"v_lshl_add_u32 v{vT4}, v{vT4}, 4, v{vL16}", f"v_add_u32 v{vT4}, s{sSV2}, v{vT4}",
       f"v_and_b32 v{vPF}, 15, v0", f"v_lshl_add_u32 v{vPF}, v{vPF}, 4, v{vT3}"], gx_, gx_ + 30)
vSEL = 108
def vsa(u): return hole(8 + u)
vXU = 8
seq = [f"v_mov_b32 v{vSEL}, 0", f"v_mov_b32 v{vSEL+1}, 0", f"v_mov_b32 v{vSEL+4}, 0", f"v_mov_b32 v{vSEL+5}, 0", f"v_mov_b32 v{vT0}, 0x3f80", f"v_mov_b32 v{vSEL+2}, 0x3f800000",
       f"s_or_b64 s[16:17], s[{sM1}:{sM1+1}], s[{sM3}:{sM3+1}]", f"v_cndmask_b32 v{vT0}, v{vT0}, v{vSEL+2}, s[16:17]", f"v_cndmask_b32 v{vT0}, 0, v{vT0}, s[{sMD}:{sMD+1}]",
       f"v_cndmask_b32 v{vSEL+2}, v{vT0}, 0, s[{sM2}:{sM2+1}]", f"v_cndmask_b32 v{vSEL+3}, 0, v{vT0}, s[{sM2}:{sM2+1}]",
              f"v_mov_b32 v24, {hx(f2u(-16.0))}", f"v_mov_b32 v25, {hx(f2u(1.0/CSCALE))}"]
place(seq, NG - 31, NG - 12)
vFW, vFR = 40, 121
FRR = [120, 121, 124]
seq = []
for j in range(1, 4):
    seq += [f"s_add_u32 s{sT2}, s{sWB}, {FS[j-1]}", f"v_add_u32 v{vFW+j-1}, s{sT2}, v{vL16}",
            f"s_sub_u32 s{sT2}, s{sWB}, {j*4096}", f"s_and_b32 s{sT2}, s{sT2}, 0x3000", f"s_add_u32 s{sT2}, s{sT2}, {FS[j-1]}", f"v_add_u32 v{FRR[j-1]}, s{sT2}, v{vL16}"]
place(seq, NG - 16*NU - 30, NG - 16*NU)
def fwrites(u): return [I(f"ds_write_b128 v{vFW+j-1}, {v(facc(u, j), 4)} offset:{u*1024}") for j in range(1, 4)]
for u in range(3):
    ge_ = NG - 4*NU*(3 - u)
    spread(fwrites(u), ge_ + 4, min(ge_ + 4*NU + 3, NG))
seq = [mk_wait_vm(['xf'])] + [I(f"ds_read_b64 {v(vXF + 2*u, 2)}, v{vT3} offset:{u*32}", tag='xr2') for u in range(4)]
place(seq, NG - 44, NG - 34)
seq = [mk_wait_lg(['xr2'])]
for u in range(4):
    xr = vXF + u*2; b2 = vXU + 4*u
    seq += [f"v_lshlrev_b32 v{b2}, 16, v{xr}", f"v_and_b32 v{b2+1}, 0xffff0000, v{xr}", f"v_lshlrev_b32 v{b2+2}, 16, v{xr+1}", f"v_and_b32 v{b2+3}, 0xffff0000, v{xr+1}"]
place(seq, NG - 26, NG)
pass
HX = OPT['HX']; NHG = 16 // HX; NT = 32 // HX
npf = [0]
def pf_addr(nlines, lines_per_row, pitch, k, dst, idx_sgpr, nshare):
    per = nlines // nshare
    s = [f"s_lshl_b32 s{sSO2}, s{sW}, 6", f"s_add_u32 s{sSO2}, s{sSO2}, {k*256}", f"v_add_u32 v{dst}, s{sSO2}, v0",
         f"v_min_u32 v{dst}, {per-1}, v{dst}", f"s_mul_i32 s{sSO2}, s{idx_sgpr}, {per}", f"v_add_u32 v{dst}, s{sSO2}, v{dst}"]
    if lines_per_row is None:
        s += [f"v_lshlrev_b32 v{dst}, 7, v{dst}"]
    else:
        sh = lg(lines_per_row)
        s += [f"v_and_b32 v{vPF}, {lines_per_row-1}, v{dst}", f"v_lshrrev_b32 v{dst}, {sh}, v{dst}",
              f"v_mul_u32_u24 v{dst}, {pitch}, v{dst}", f"v_lshl_add_u32 v{dst}, v{vPF}, 7, v{dst}"]
    return s
def pf_load(srd_b, dst):
    npf[0] += 1
    return I(f"buffer_load_dword a{aST + 10 + npf[0] % 6}, v{dst}, {srd(srd_b)}, 0 offen {OPT['PPF']}", tag='pf')
def pf_seq(srd_b, nlines, lines_per_row, pitch, idx, nshare):
    s = []
    for k in range((nlines // nshare + 255) // 256):
        s += pf_addr(nlines, lines_per_row, pitch, k, vPF+1, idx, nshare) + [pf_load(srd_b, vPF+1)]
    return s
vLQ = 26
def pf_pieces(srd_b, per, unit, idx, extra_base=None, pol='', rot=False):
    setup = [f"s_mul_i32 s{sSO2}, s{idx}, {per}", f"v_add_u32 v{vPF+1}, s{sSO2}, v{vLQ}", f"v_mul_u32_u24 v{vPF+1}, {unit}, v{vPF+1}"]
    if extra_base is not None: setup.append(f"v_add_u32 v{vPF+1}, s{extra_base}, v{vPF+1}")
    pcs = []
    for k in range((per + 63)//64):
        npf[0] += 1
        n_ = (per + 63)//64
        if rot and k == 0: so_ = [f"s_lshr_b32 s{sSO2}, s{sTC}, 1", f"s_sub_u32 s{sCNT}, s{sSO2}, {n_}", f"s_min_u32 s{sSO2}, s{sSO2}, s{sCNT}", f"s_mul_i32 s{sSO2}, s{sSO2}, {64*unit}"]
        elif rot: so_ = [f"s_add_u32 s{sSO2}, s{sSO2}, {64*unit}", f"s_sub_u32 s{sCNT}, s{sSO2}, {n_*64*unit}", f"s_min_u32 s{sSO2}, s{sSO2}, s{sCNT}"]
        else: so_ = [f"s_mov_b32 s{sSO2}, {k*64*unit}"]
        pcs.append(so_ + [I(f"buffer_load_dword a{aST + 9 + npf[0] % 7}, v{vPF+1}, {srd(srd_b)}, s{sSO2} offen {pol}", tag='pf')])
    return setup, pcs
def pf_run(streams, g0, g1):
    items = []
    for st_ in streams:
        su, pcs = st_
        for k, p_ in enumerate(pcs): items.append((su if k == 0 else []) + p_)
    n = len(items)
    for k, it_ in enumerate(items):
        lo = g0 + (k*(g1-g0))//n
        place(it_, lo, lo + 24)
if OPT['PF']:
    place([f"v_lshrrev_b32 v{vLQ}, 2, v0", f"s_lshl_b32 s{sSO2}, s{sW}, 4", f"v_add_u32 v{vLQ}, s{sSO2}, v{vLQ}"], 100, 130)
    if not OPT['BIG'] & 2 and not OPT['NOPF2'] & 4: pf_run([pf_pieces(sKK, 2048//(2*NT), 128, sKVI, pol=OPT['PPF']), pf_pieces(sVV, 2048//(2*NT), 128, sKVI, pol=OPT['PPF'])], OPT['PFG'], gap(phase['P4']))
    if not OPT['NOPF2'] & 1: pf_run([pf_pieces(sWO, 1792//16, 128, sT) if OPT['WOM'] else pf_pieces(sWO, 1792//NT, 128, sTL), (lambda z: (z[0], z[1][:OPT['W2N']]))(pf_pieces(sW2, 448, 896, sW2I, rot=OPT['W2ROT']))], gap(phase[f"G3_{OPT['PF0']}"]), gp1 if OPT['PF1'] == 0 else gap(phase[f"G3_{OPT['PF1']}"]))
    vPF += -20
    sSO2 = sT3
    if not OPT['NOPF2'] & 2: pf_run([pf_pieces(sWS, 256, 128, sCC, sHPF, 'sc1')], gp1 + 2, gap(phase[f"G3_{hs+OPT['HPF']}"]) - 20)
    vPF += 20
    sSO2 = 93

if OPT['STLB'] == 2:
    for k_, (b_, o_) in enumerate(((sKK, '0'), (sVV, '0'), (sW2, '0'), (sWO, '0'), (sWS, f's{sHST}'), (sWS, f's{sQT+7}'), (sOUT, '0'))):
        i_ = I(f"s_buffer_load_dword s{sCNT}, {srd(b_)}, {o_}"); i_.cls = 'misc'; i_.dst = []
        place([i_], OPT['ST0'] + k_*OPT['STS'], OPT['ST0'] + k_*OPT['STS'] + 8)
if OPT['CPF'] and not OPT['STAMP']:
    gc = gap(phase[OPT['CPF']])
    place([f"s_lshr_b32 s{sT2}, s0, 3", f"s_lshl_b32 s{sT2}, s{sT2}, 10", f"s_add_u32 s{sT2}, s{sT2}, 0x8000", f"v_and_b32 v{vT2}, 7, v0", f"v_lshlrev_b32 v{vT2}, 7, v{vT2}",
           f"v_add_u32 v{vT2}, s{sT2}, v{vT2}", I(f"global_load_dword a{aST+9}, v{vT2}, s[26:27]", tag='pf')], gc, gc + 30)
if OPT['TLB']:
    gt = gap(phase[OPT['TLBP']])
    seq = []
    if OPT['TLB'] & 1: seq += [f"v_accvgpr_read_b32 v{vT1}, a{aST+8}", f"v_readfirstlane_b32 s{sT2}, v{vT1}", "s_nop 0", "s_nop 0", I(f"buffer_load_dword a{aST+9}, v{vZ}, {srd(sOUT)}, s{sT2} offen", tag='pf')]
    if OPT['TLB'] & 2: seq += [I(f"buffer_load_dword a{aST+9}, v{vZ}, {srd(sWS)}, s{sQT+7} offen sc1", tag='pf')]
    if OPT['TLB'] & 4: seq += [I(f"buffer_load_dword a{aST+9}, v{vZ}, {srd(sWS)}, s{sSG} offen sc1", tag='pf'), ]
    spread(seq, gt, gt + 40)
    if OPT['TLB'] & 8: place([I(f"buffer_load_dword a{aST+9}, v{vZ}, {srd(sWS)}, s{sHST} offen sc1", tag='pf')], gap(phase['P3']), gap(phase['P3']) + 20)
for f_ in late_place: f_()
for d_ in deferred: greedy(*d_)
if OPT['FINE'] == 1:
    for p in range(1, 7): blk[phase[f'G4p{p}']] = stamp_ins(f'G4p{p}')
if OPT['FINE'] == 2:
    for nm in ['P1', 'P3', 'P5'] + [f'G2_{s_}' for s_ in range(1, 16) if s_ % 4] + ['G3_14', 'G3_15']:
        blk[phase[nm]] = stamp_ins(nm)
if OPT['STAMP'] or OPT['WAITAT']:
    for nm in ('P0', 'P2', 'P4', 'G2_0', 'G2_4', 'G2_8', 'G2_12', 'G6'):
        blk.setdefault(phase[nm], [])
        blk[phase[nm]] = stamp_ins(nm) + blk[phase[nm]]

E(f"""
s_cmp_ge_u32 s2, 256
s_cbranch_scc1 L_end
s_load_dwordx16 s[4:19], s[0:1], 0
s_load_dwordx4 s[20:23], s[0:1], 64
s_load_dwordx2 s[24:25], s[0:1], 80
""")
if OPT['STAMP'] or OPT['WAITAT']: E("s_memtime s[98:99]\ns_memrealtime s[100:101]")
E(f"""
v_lshrrev_b32 v{vT0}, 6, v0
v_and_b32 v0, 63, v0
s_and_b32 s{sT0}, s2, 7
v_readfirstlane_b32 s{sW}, v{vT0}
s_lshr_b32 s{sT1}, s2, 3
s_and_b32 s{sT2}, s{sT0}, {NHG-1}
s_lshl_b32 s{sT2}, s{sT2}, {lg(HX)}
s_and_b32 s{sHD}, s{sT1}, {HX-1}
s_add_u32 s{sHD}, s{sHD}, s{sT2}
s_lshr_b32 s{sT2}, s{sT0}, {lg(NHG)}
s_lshl_b32 s{sT2}, s{sT2}, {lg(NT)}
s_lshr_b32 s{sTL}, s{sT1}, {lg(HX)}
s_add_u32 s{sT}, s{sTL}, s{sT2}
s_lshl_b32 s{sWB}, s{sW}, 12
""")
CODE_LINES = 512
E(f"s_lshr_b32 s{sCNT}, s2, 3")
for t_ in pf_addr(CODE_LINES, None, 0, 0, vR+80, sCNT, 32): E(t_)
E(f"""
s_getpc_b64 s[26:27]
L_pc:
global_load_dword v{vR+96}, v{vR+80}, s[26:27]
""")
E(f"""
v_lshrrev_b32 v{vT3}, 3, v0
v_and_b32 v{vT4}, 7, v0
v_lshrrev_b32 v{vT1}, 1, v{vT3}
v_xor_b32 v{vT1}, v{vT1}, v{vT4}
v_lshlrev_b32 v{vT1}, 4, v{vT1}
v_xor_b32 v{vT2}, 64, v{vT1}
s_lshl_b32 s{sT1}, s{sT}, 2
s_add_u32 s{sT1}, s{sT1}, s{sW}
s_mul_i32 s{sT1}, s{sT1}, {32*896}
v_mul_u32_u24 v{vT0}, 896, v{vT3}
v_add_u32 v{vT0}, s{sT1}, v{vT0}
v_add_u32 v{vXD}, v{vT0}, v{vT1}
v_add_u32 v{vXD+1}, v{vT0}, v{vT2}
v_add_u32 v{vXD+2}, {2*6144}, v{vXD}
v_add_u32 v{vXD+3}, {3*6144}, v{vXD+1}
v_add_u32 v{vXD+1}, 6144, v{vXD+1}
s_mov_b32 m0, s{sWB}
s_mov_b32 s{sSO}, 0
v_min_u32 v{vR+82}, 13, v0
v_subrev_u32 v{vR+83}, 7, v{vR+82}
v_min_u32 v{vR+83}, v{vR+83}, v{vR+82}
v_sub_u32 v{vR+82}, v{vR+82}, v{vR+83}
v_lshlrev_b32 v{vR+82}, 11, v{vR+82}
v_lshl_add_u32 v{vR+82}, v{vR+83}, 7, v{vR+82}
s_mul_i32 s{sT2}, s{sHD}, 896
s_add_u32 s{sT2}, s{sT2}, s{sT1}
s_mov_b32 s{sX+2}, {2048*896}
s_mov_b32 s{sX+3}, 0x00020000
s_waitcnt lgkmcnt(0)
s_mov_b32 s{sX}, s4
s_mov_b32 s{sX+1}, s5
""")
if OPT['STAMP']: E(f"v_writelane_b32 v{vSTAMP}, s98, 60\nv_writelane_b32 v{vSTAMP}, s100, 61")
if OPT['WAITAT']: E('s_mov_b32 s1, s100')
PST('karg')
def mk_srd(b, plo, off_sgpr, size):
    if off_sgpr is None:
        E(f"s_mov_b32 s{b}, s{plo}\ns_mov_b32 s{b+1}, s{plo+1}")
    else:
        E(f"s_add_u32 s{b}, s{plo}, s{off_sgpr}\ns_addc_u32 s{b+1}, s{plo+1}, 0")
    E(f"s_mov_b32 s{b+2}, {size}\ns_mov_b32 s{b+3}, 0x00020000")
xdma = []
for tg in range(2):
    for q in range(7):
        if q or tg:
            xdma += [I(f"s_add_u32 m0, s{sWB}, {q*SLOT}"), I(f"s_movk_i32 s{sSO}, {q*128}")]
        for rb in (2*tg, 2*tg+1):
            xdma.append(I(f"buffer_load_dwordx4 v{vXD+rb}, {srd(sX)}, s{sSO} offen offset:{rb*1024} {OPT['PX']} lds", tag=('x', tg, q)))
def xissue(n):
    while n > 0 and xdma:
        i_ = xdma.pop(0); P.ins.append(i_)
        if i_.cls == 'vmem': n -= 1
if OPT['XPF']: E(f"buffer_load_dword a{aST+9}, v{vR+82}, {srd(sX)}, s{sT2} offen", tag='pf')
xissue(OPT['XFIRST'])
if OPT['STLB'] >= 3:
    lst = [("s[10:11]", 0), ("s[10:11]", 400*8192), ("s[16:17]", 0), ("s[24:25]", WS_F + 0x10000)]
    if OPT['STLB'] >= 4: lst += [("s[6:7]", 'kv'), ("s[8:9]", 'kv'), ("s[18:19]", 0), ("s[20:21]", 0), ("s[12:13]", 0), ("s[12:13]", 4000*896)]
    for p_, o_ in lst:
        if o_ == 'kv': E(f"s_lshl_b32 s{sCNT}, s{sHD}, 19")
        else: E(f"s_mov_b32 s{sCNT}, {hx(o_)}")
        i_ = I(f"s_load_dword s{sSTEP}, {p_}, s{sCNT}"); i_.dst = []; P.ins.append(i_)
E(f"s_lshl_b32 s{sT0}, s{sHD}, 9\ns_sub_u32 s{sT2}, {448*8192}, s{sT0}")
mk_srd(sWQ, 10, sT0, f"s{sT2}")
if OPT['EPF']:
    for t_ in pf_seq(sWQ, OPT['EPF'], 1, 8192, sT, 16):
        if isinstance(t_, str): E(t_)
        else: P.ins.append(t_)
wqpf = [I(t_) if isinstance(t_, str) else t_ for t_ in pf_seq(sWQ, 448*OPT['WQP'], OPT['WQP'], 8192, sTL, NT)] if OPT['PF'] and OPT['WQP'] else []
if OPT['WQE'] == 1: P.ins += wqpf; wqpf = []
else: P.ins += wqpf[:-1]; wqpf = wqpf[-1:]
xissue(OPT['XSEC'])
PST('x_first')
mk_srd(sOUT, 20, None, 2048*896)
E(f"""
s_lshl_b32 s{sT0}, s{sW}, 7
v_lshlrev_b32 v{vKD}, 9, v{vT3}
v_add_u32 v{vVD}, s{sT0}, v{vKD}
v_add_u32 v{vKD}, v{vVD}, v{vT1}
v_add_u32 v{vKD+1}, v{vVD}, v{vT2}
v_add_u32 v{vKD+2}, {2*3072}, v{vKD}
v_add_u32 v{vKD+3}, {3*3072}, v{vKD+1}
v_add_u32 v{vKD+1}, 3072, v{vKD+1}
v_and_b32 v{vT0}, 6, v{vT3}
v_xor_b32 v{vT0}, v{vT0}, v{vT4}
v_lshlrev_b32 v{vT0}, 4, v{vT0}
v_add_u32 v{vVD}, v{vVD}, v{vT0}
""")
for rb in range(1, 4): E(f"v_add_u32 v{vVD+rb}, {3072*rb}, v{vVD}")
E(f"""
v_and_b32 v{vT1}, {0 if OPT['LNM'] else 4}, v{vT3}
v_add_u32 v{vT1}, v{vT1}, v{vT3}
v_lshl_add_u32 v{vWQ}, v{vT1}, 13, v{vT0}
v_mul_u32_u24 v{vT1}, 3584, v{vT1}
v_add_u32 v{vW1D}, v{vT1}, v{vT0}
""")
for rb in range(1, 4):
    rr = 8*rb if OPT['LNM'] else 16*(rb & 1) + 4*(rb >> 1)
    E(f"v_add_u32 v{vW1D+rb}, {rr*3584 - 1024*rb}, v{vW1D}\nv_add_u32 v{vWQ+rb}, {rr*8192 - 1024*rb}, v{vWQ}")
E(f"""
s_lshl_b32 s{sT1}, s{sHD}, 8
s_sub_u32 s{sT2}, {448*3584}, s{sT1}
s_cmp_lt_u32 s{sHD}, 14
s_cselect_b32 s{sT2}, s{sT2}, 0
s_cselect_b32 s{sT1}, s{sT1}, 0
""")
mk_srd(sW1, 16, sT1, f"s{sT2}")
E(f"s_lshr_b32 s{sT0}, s{sHD}, 1\ns_lshl_b32 s{sT0}, s{sT0}, 20\ns_add_u32 s{sT0}, s{sT0}, {1536*512}")
mk_srd(sKK, 6, sT0, 262144)
mk_srd(sVV, 8, sT0, 262144)
E(f"s_mul_i32 s{sT0}, s{sHD}, {256*896}")
mk_srd(sWO, 12, sT0, 256*896)
E(f"""
s_lshr_b32 s{sPC}, s2, 3
s_and_b32 s{sPC}, s{sPC}, 15
s_cmp_ge_u32 s{sPC}, 7
s_cselect_b32 s{sT3}, 1, 0
s_mul_i32 s{sT1}, s{sT3}, 7
s_sub_u32 s{sT1}, s{sPC}, s{sT1}
s_lshl_b32 s{sT0}, s{sT1}, 7
s_sub_u32 s{sT2}, {1792*896}, s{sT0}
s_cmp_lt_u32 s{sPC}, 14
s_cselect_b32 s{sT2}, s{sT2}, 0
s_cselect_b32 s{sT0}, s{sT0}, 0
""")
mk_srd(sW2, 18, sT0, f"s{sT2}")
if OPT['WSOFF']:
    E(f"s_mov_b32 s{sT0}, {hx(OPT['WSOFF'] << 20)}")
    mk_srd(sWS, 24, sT0, WS_SIZE)
else:
    mk_srd(sWS, 24, None, WS_SIZE)
for k_, R_ in ((0, 32*8192), (2, 32*3584)):
    E(f"""
s_mul_i32 s{sW1T+k_}, s{sW}, {R_}
s_cmp_lt_u32 s{sW}, 2
s_mov_b32 s{sT2}, {hx(128 - 2*R_)}
s_cselect_b32 s{sT0}, {12*R_}, s{sT2}
s_add_u32 s{sW1T+k_+1}, s{sW1T+k_}, s{sT0}
""")
E(f"""
v_mul_u32_u24 v{vT1}, 896, v{vT3}
v_add_u32 v{vT1}, v{vT1}, v{vT0}
s_mul_i32 s{sT0}, s{sW}, {32*896}
s_mul_i32 s{sT2}, s{sW}, {448*896}
""")
for rb in range(4):
    if rb: E(f"v_add_u32 v{vT1}, 6144, v{vT1}")
    E(f"v_add_u32 v{vT2}, s{sT0}, v{vT1}\nv_accvgpr_write_b32 a{aST+rb}, v{vT2}\nv_add_u32 v{vT2}, s{sT2}, v{vT1}\nv_accvgpr_write_b32 a{aST+4+rb}, v{vT2}")
E(f"""
v_lshlrev_b32 v{vL16}, 4, v0
v_lshrrev_b32 v{vT0}, 2, v0
v_lshlrev_b32 v{vT1}, 7, v{vT0}
v_and_b32 v{vT2}, 3, v0
v_lshl_add_u32 v{vT1}, v{vT2}, 3, v{vT1}
v_bfe_u32 v{vT3}, v0, 3, 2
""")
for u in range(4):
    E(f"""
v_xor_b32 v{vT4}, {u}, v{vT3}
v_lshl_add_u32 v{vTR+u}, v{vT4}, 5, v{vT1}
v_add_u32 v{vTR+4+u}, 0x10000, v{vTR+u}
v_add_u32 v{vTR+8+u}, 0x20000, v{vTR+u}
""")
E(f"""
v_and_b32 v{vT0}, 15, v0
v_lshrrev_b32 v{vT1}, 1, v{vT0}
v_lshrrev_b32 v{vT2}, 4, v0
v_xor_b32 v{vT1}, v{vT1}, v{vT2}
v_lshlrev_b32 v{vT4}, 7, v{vT0}
v_lshl_add_u32 v{vRA}, v{vT1}, 4, v{vT4}
v_xor_b32 v{vRA+1}, 64, v{vRA}
v_add_u32 v{vRA+2}, 0x10000, v{vRA}
v_add_u32 v{vRA+3}, 0x10000, v{vRA+1}
v_add_u32 v{vRA+4}, 0x20000, v{vRA}
v_add_u32 v{vRA+5}, 0x20000, v{vRA+1}
""")
vXR = vR + 72
for i in range(4): E(f"v_add_u32 v{vXR+i}, s{sWB}, v{vRA+i}")
vXT = vR + 84
if OPT['LNM']:
    E(f"""
v_lshrrev_b32 v{vXT+1}, 3, v0
v_bfe_u32 v{vXT+2}, v0, 1, 1
v_xor_b32 v{vXT+1}, v{vXT+1}, v{vXT+2}
v_lshlrev_b32 v{vXT+1}, 4, v{vXT+1}
v_lshrrev_b32 v{vXT+2}, 2, v0
v_lshl_add_u32 v{vXT+1}, v{vXT+2}, 7, v{vXT+1}
v_and_b32 v{vXT+2}, 1, v0
v_lshl_add_u32 v{vXT+1}, v{vXT+2}, 3, v{vXT+1}
v_add_u32 v{vXT}, s{sWB}, v{vXT+1}
""")
    for u in range(1, 4): E(f"v_xor_b32 v{vXT+u}, {32*u}, v{vXT}")
    for u in range(4): E(f"v_add_u32 v{vXT+4+u}, 0x10000, v{vXT+u}")
E(f"""
s_and_b32 s{sTC}, s2, 7
s_lshl_b32 s{sTC}, s{sTC}, 1
s_lshr_b32 s{sT0}, s2, 7
s_add_u32 s{sTC}, s{sTC}, s{sT0}
s_lshl_b32 s{sW2I}, s{sT0}, 1
s_add_u32 s{sW2I}, s{sW2I}, s{sT3}
s_lshl_b32 s{sT2}, s{sTC}, 1
s_add_u32 s{sT2}, s{sT2}, s{sT3}
s_lshl_b32 s{sT0}, s{sT2}, 2
s_add_u32 s{sT0}, s{sT0}, s{sW}
s_mul_i32 s{sT0}, s{sT0}, {16*896}
s_lshl_b32 s{sSG}, s{sT1}, 7
s_add_u32 s{sT0}, s{sT0}, s{sSG}
v_lshrrev_b32 v{vT0}, 3, v0
v_mul_u32_u24 v{vT0}, 896, v{vT0}
v_and_b32 v{vT2}, 7, v0
v_lshl_add_u32 v{vT0}, v{vT2}, 4, v{vT0}
v_add_u32 v{vT0}, s{sT0}, v{vT0}
v_accvgpr_write_b32 a{aST+8}, v{vT0}
s_lshl_b32 s{sT2}, s{sT2}, 1
s_lshr_b32 s{sT0}, s{sW}, 1
s_add_u32 s{sSG}, s{sT2}, s{sT0}
s_lshl_b32 s{sFLP}, s{sSG}, 9
s_mul_i32 s{sSG}, s{sSG}, 7
s_add_u32 s{sSG}, s{sSG}, s{sT1}
s_lshl_b32 s{sSG}, s{sSG}, 2
s_add_u32 s{sFLP}, s{sFLP}, {hx(WS_F)}
s_and_b32 s{sT0}, s{sW}, 1
s_add_u32 s{sSG}, s{sSG}, s{sT0}
s_lshl_b32 s{sSG}, s{sSG}, 14
s_mul_i32 s{sHLD}, s{sT2}, {56*2048}
s_add_u32 s{sHLD}, s{sHLD}, {hx(WS_H)}
s_cmp_lt_u32 s{sPC}, 14
s_cselect_b32 s{sCOOB}, 0, {hx(OOB)}
s_add_u32 s{sHPF}, s{sHLD}, s{sCOOB}
s_mul_i32 s{sT0}, s{sW}, {14*2048}
s_add_u32 s{sHLD}, s{sHLD}, s{sT0}
s_mov_b32 s0, s2
s_mov_b32 s{sCC}, s{sT1}
s_lshl_b32 s{sKVI}, s{sTL}, 1
s_and_b32 s{sT0}, s{sHD}, 1
s_add_u32 s{sKVI}, s{sKVI}, s{sT0}
s_lshl_b32 s{sT1}, s{sT}, 2
s_add_u32 s{sT1}, s{sT1}, s{sW}
s_lshl_b32 s{sFLG}, s{sT1}, 9
s_add_u32 s{sFLG}, s{sFLG}, s{sHD}
v_min_u32 v{vPOLL}, 2, v0
v_lshlrev_b32 v{vPOLL}, 7, v{vPOLL}
s_add_u32 s{sFLG}, s{sFLG}, {hx(WS_F)}
s_mul_i32 s{sHST}, s{sT1}, {56*2048}
s_min_u32 s{sT2}, s{sHD}, 13
s_lshl_b32 s{sT2}, s{sT2}, 13
s_add_u32 s{sHST}, s{sHST}, s{sT2}
s_add_u32 s{sHST}, s{sHST}, {hx(WS_H)}
s_cmp_lt_u32 s{sHD}, 14
s_cselect_b32 s{sT2}, 0, {hx(OOB)}
v_add_u32 v{vHS}, s{sT2}, v{vL16}
v_mov_b32 v{vZ}, 0
v_mov_b32 v{vONE}, 1
""")
PST('addr_done')
xissue(14 - OPT['XFIRST'] - OPT['XSEC'])
if OPT['WQE'] == 0: P.ins += wqpf; wqpf = []
PST('x_issued')
PRODUCER = len(P.ins)
E(f"""
s_lshl_b32 s{sSST}, s{sT}, 2
s_add_u32 s{sSST}, s{sSST}, s{sW}
s_mul_i32 s{sSST}, s{sSST}, {28*16384}
s_cmp_ge_u32 s{sHD}, 7
s_cselect_b32 s{sT3}, 1, 0
s_sub_u32 s{sROT}, s{sHD}, 7
s_min_u32 s{sROT}, s{sROT}, s{sHD}
s_sub_u32 s{sCNT}, s{sROT}, 7
s_min_u32 s{sROT}, s{sROT}, s{sCNT}
s_cmp_lt_u32 s{sHD}, 14
s_cselect_b32 s{sT3}, s{sT3}, s{sHD}
s_cselect_b32 s{sSTEP}, 2048, 0
s_lshl_b32 s{sT3}, s{sT3}, 10
s_add_u32 s{sSST}, s{sSST}, s{sT3}
""")
prod_ins = []
if OPT['STLB'] == 1:
    for b_, o_ in ((sKK, '0'), (sVV, '0'), (sWQ, '0'), (sWQ, f'{hx(400*8192)}')[:2], (sWO, '0'), (sW1, '0'), (sW2, '0'), (sOUT, '0'),
                   (sWS, f's{sSST}'), (sWS, f's{sHST}'), (sWS, hx(WS_F + 0x10000))):
        if o_.startswith('0x'): E(f"s_mov_b32 s{sCNT}, {o_}"); o_ = f's{sCNT}'
        i_ = I(f"s_buffer_load_dword s{sCNT}, {srd(b_)}, {o_}"); i_.cls = 'smem'; i_.dst = []; P.ins.append(i_)
for s_, val in ((sM1, 0x2222222222222222), (sM2, 0xCCCCCCCCCCCCCCCC), (sM3, 0x8888888888888888), (sMD, 0xF0000F0000F0000F)):
    E(f"s_mov_b32 s{s_}, {hx(val)}\ns_mov_b32 s{s_+1}, {hx(val >> 32)}")

vONES = vR + 16
vD1 = vR + 20
vD2 = vR + 28
vLA = vR + 36
for i in range(4): E(f"v_mov_b32 v{vONES+i}, 0x3f803f80")
def rbf(r):
    return [f"v_cvt_pk_bf16_f32 v{r}, v{r}, v{r}", f"v_lshlrev_b32 v{r}, 16, v{r}"]
E(f"s_mov_b32 s{sT0}, {hx(f2u(1.0/448.0))}\ns_mov_b32 s{sT1}, {hx(f2u(1e-5))}\ns_mov_b32 s{sT2}, {hx(f2u(CSCALE))}")
if OPT['PADS']:
    E(f"""
s_mov_b64 exec, 0
s_cmp_eq_u32 s{sW}, 0
s_cbranch_scc1 L_pg0
s_cmp_eq_u32 s{sW}, 1
s_cbranch_scc1 L_pg1
s_cmp_eq_u32 s{sW}, 2
s_cbranch_scc1 L_pg2
s_branch L_pg3
.p2align 12
L_main:
s_mov_b64 exec, -1
""")
STAMP('pro_done')
vNT = vR + 44
NPRO = OPT['NPRO']
big = []
if OPT['BIG'] & 1:
    t_ = pf_seq(sWQ, 448*2, 2, 8192, sTL, NT); t_[-1] = I(t_[-1].text.replace('offen', 'offen offset:256'), tag='pf'); big += t_
    big += pf_seq(sW1, 448*2, 2, 3584, sTL, NT)
if OPT['BIG'] & 2:
    t_ = pf_seq(sKK, 2048, None, 0, sKVI, 2*NT); big += t_ + [pf_load(sVV, vPF+1)]
big = [I(t_) if isinstance(t_, str) else t_ for t_ in big]
assert len(pro_dma) == NPRO
L0N = OPT['L0N']
late = {0: [i_ for d_ in pro_dma[:L0N] for i_ in d_],
        1: [i_ for d_ in pro_dma[3:] for i_ in d_]
           + big + [I(f"buffer_store_byte v{vZ}, v{vPOLL}, {srd(sWS)}, s{sFLG} offen sc1", tag='hst')]}
def xreads(tg, q):
    r = [mk_wait_vm([('x', tg, q)])]
    for ks in (2*q, 2*q+1):
        ad = q*SLOT + tg*2048
        r.append(I(f"ds_read_b128 {v(xn(ks,tg),4)}, v{vXR + (ad >> 16)*2 + (ks & 1)} offset:{ad & 0xffff}", tag=('xr', tg, q)))
    return r
def stats(tg, q, fill):
    P.wait_lgkm_tag([('xr', tg, q)])
    for ks in (2*q, 2*q+1):
        X = v(xn(ks, tg), 4)
        for m_ in (mfma(v(vD1+4*tg, 4), v(vONES, 4), X, "0" if ks == 0 else v(vD1+4*tg, 4)), mfma(v(vD2+4*tg, 4), X, X, "0" if ks == 0 else v(vD2+4*tg, 4))):
            E(m_)
            t_ = 0
            while fill and t_ + cost(fill[0]) <= 12:
                t_ += cost(fill[0]); P.ins.append(fill.pop(0))
def scalars(tg):
    d = vD2 + 4*tg; m = vD1 + 4*tg; t = m + 1; L = vLA + 4*tg
    s = [f"v_cndmask_b32 v{d}, v{d}, v{d+1}, s[{sM1}:{sM1+1}]",
         f"v_cndmask_b32 v{d+2}, v{d+2}, v{d+3}, s[{sM3}:{sM3+1}]",
         f"v_mul_f32 v{m}, s{sT0}, v{m}",
         f"v_cndmask_b32 v{d}, v{d}, v{d+2}, s[{sM2}:{sM2+1}]",
         f"v_cndmask_b32 v{d}, 0, v{d}, s[{sMD}:{sMD+1}]"]
    s += allred(d, t, "v_add_f32")
    s += [f"v_mul_f32 v{d}, s{sT0}, v{d}",
          f"v_fma_f32 v{d}, -v{m}, v{m}, v{d}",
          f"v_max_f32 v{d}, 0, v{d}"]
    s += interleave(rbf(m), rbf(d))
    s += [f"v_add_f32 v{d}, s{sT1}, v{d}"] + rbf(d) + [f"v_sqrt_f32 v{d}, v{d}"] + rbf(d)
    s += [f"v_rcp_f32 v{d}, v{d}", f"v_mul_f32 v{d}, s{sT2}, v{d}",
          f"v_cvt_pk_bf16_f32 v{d}, v{d}, v{d}",
          f"v_and_b32 v{L}, 0xffff, v{d}", f"v_lshlrev_b32 v{L+1}, 16, v{d}",
          f"v_mul_f32 v{L+2}, -v{m}, v{L+1}"]
    if OPT['LNM']:
        s += [f"v_cndmask_b32 v{L}, v{L}, v{L+1}, s[16:17]", f"v_mov_b32 v{m}, v{L+2}", f"v_cndmask_b32 v{L}, 0, v{L}, s[{sMD}:{sMD+1}]", f"v_mov_b32 v{m+1}, v{L+2}",
              f"v_cndmask_b32 v{L+1}, 0, v{L}, s[{sM2}:{sM2+1}]", f"v_mov_b32 v{m+2}, v{L+2}", f"v_cndmask_b32 v{L}, v{L}, 0, s[{sM2}:{sM2+1}]", f"v_mov_b32 v{m+3}, v{L+2}"]
    return s
aXT = 128
def xtr(tg, T):
    ad = (T >> 2)*SLOT + tg*2048
    return I(f"ds_read_b64_tr_b16 {a(aXT + 2*(tg*28 + T), 2)}, v{vXT + (ad >> 16)*4 + (T & 3)} offset:{ad & 0xffff}", tag=('xt', tg, T))
def normm(tg, T0, T1, fill, pend):
    L = vLA + 4*tg; m = vD1 + 4*tg
    for T in range(T0, T1):
        if T % 4 == 0: P.wait_lgkm_tag([('xt', tg, min(T + 3, 27))])
        t = vNT + 4*(T % 4)
        E(f"v_mfma_f32_16x16x16_bf16 {v(t,4)}, {a(aXT + 2*(tg*28 + T), 2)}, {v(L,2)}, {v(m,4)}")
        x_ = xn(T >> 1, tg) + 2*(T & 1)
        k_ = 0
        while fill and k_ < 1:
            P.ins.append(fill.pop(0)); k_ += 1
        pend.append([f"v_cvt_pk_bf16_f32 v{x_}, v{t}, v{t+1}", f"v_cvt_pk_bf16_f32 v{x_+1}, v{t+2}, v{t+3}"])
        if len(pend) > 2:
            for t_ in pend.pop(0): E(t_)
def normalize(tg, side):
    L = vLA + 4*tg; k = 0; pend = []
    for ks in range(14):
        for r in range(4):
            x_ = xn(ks, tg) + r
            t = vNT + 2*(k % 8); k += 1
            E(f"v_dot2_f32_bf16 v{t}, v{x_}, v{L}, v{L+2}\nv_dot2_f32_bf16 v{t+1}, v{x_}, v{L+1}, v{L+2}")
            pend.append(f"v_cvt_pk_bf16_f32 v{x_}, v{t}, v{t+1}")
            if len(pend) > 2: E(pend.pop(0))
            P.ins += side.get(k, [])
    for t_ in pend: E(t_)
for q in range(7):
    P.ins += xreads(0, q)
    if q in (0, 3, 6): PST(f'w0{q}')
    xissue(2)
    if q > 1: stats(0, q-2, [])
fill = (late[0] + wqpf) if OPT['R0F'] else (wqpf + late[0])
stats(0, 5, fill); stats(0, 6, fill)
P.ins += fill
STAMP('x0_arrived')
if not OPT['LNM']:
    for t_ in scalars(0): E(t_)
    X1 = OPT['X1']
    normalize(0, {X1 + 4*q: xreads(1, q) for q in range(7)})
    PST('ln0_done')
    fill = [i_ for d_ in pro_dma[L0N:3] for i_ in d_]
    for q in range(7):
        if q == 1: P.wait_lgkm_tag([('xr', 1, 6)]); fill += late[1]
        stats(1, q, fill)
    P.ins += fill
    STAMP('x1_arrived')
    for t_ in scalars(1): E(t_)
    fr_ = [i_ for f in range(D) for i_ in frag_reads(f)]
    side = {OPT['BARK']: [mk_wait_vm(first_need), I("s_barrier")]}
    for k_, i_ in enumerate(fr_): side.setdefault(min(OPT['BARK'] + 1 + k_, 56), []).append(i_)
    normalize(1, side)
else:
    NA0 = OPT['NA0']
    E(f"s_or_b64 s[16:17], s[{sM1}:{sM1+1}], s[{sM3}:{sM3+1}]")
    rd0 = [xtr(0, T) for T in range(28)]
    for k_, t_ in enumerate(scalars(0)):
        if rd0 and k_ < 14: P.ins.append(rd0.pop(0))
        E(t_)
    pend = []
    normm(0, 0, 14, rd0, pend)
    assert not rd0
    x1 = [i_ for q in range(7) for i_ in xreads(1, q)]
    for i_ in x1[:6]: P.ins.append(i_)
    for p_ in pend:
        for t_ in p_: E(t_)
    pend = []
    PST('ln0_half')
    n3 = sum(len(d_) for d_ in pro_dma[3:])
    fill = x1[6:] + [i_ for d_ in pro_dma[L0N:3] for i_ in d_] + late[1][n3:]
    for q in range(7): stats(1, q, fill)
    P.ins += fill
    STAMP('x1_arrived')
    rd1 = [xtr(1, T) for T in range(28)]
    sc1 = [I(t_) for t_ in scalars(1)]
    for T in range(14, 28):
        normm(0, T, T+1, rd1, pend)
        if T >= 15:
            for _ in range(2):
                if sc1: P.ins.append(sc1.pop(0))
    for p_ in pend:
        for t_ in p_: E(t_)
    pend = []
    for k_, i_ in enumerate(sc1):
        if rd1 and k_ % 2 == 0: P.ins.append(rd1.pop(0))
        P.ins.append(i_)
    PST('ln0_done')
    fr_ = [i_ for f in range(D) for i_ in frag_reads(f)]
    fill = rd1 + [mk_wait_vm(first_need), I("s_barrier")] + fr_
    normm(1, 0, 28, fill, pend)
    P.ins += fill
    P.wait_lgkm_tag([('xt', 1, 27)])
    lt = late[1][:n3]
    for p_ in pend:
        for t_ in p_: E(t_)
    P.ins += lt
if OPT['DUMP'] == 'xn':
    P.ins += dump([v(xn(ks, tg), 4) for ks in range(14) for tg in range(2)])

P.ins.append(mk_wait_lg([('f', f) for f in range(4)]))
est = 0
for g in range(NF):
    if g in blk: P.ins += blk[g]
    for h, m_ in enumerate(MF[g]):
        gp = G0[g] + h
        P.ins.append(I(m_))
        P.ins += pre[gp] + rds[gp] + ext[gp]
        if OPT['XP'] and g < phase['G2_0'] and h == 1:
            free = gtime(pre[gp] + rds[gp] + ext[gp]) <= 12
            if OPT['XP'] == 'nop': P.ins.append(I("s_nop 2" if free else "s_nop 1"))
            if OPT['XP'] == 'valu' and free: P.ins.append(I(f"v_fma_f32 v250, v{44 + g % 100}, v{50 + g % 90}, v250"))
            if OPT['XP'] == 'snop' and free: P.ins.append(I("s_nop 0"))
            if OPT['XP'] == 'ds': P.ins.append(I(f"ds_read_b128 a[240:243], v{vL16} offset:{(g*1024) % 65536}"))
        est += max(16, gtime(pre[gp] + rds[gp] + ext[gp]))
if OPT['LOG']:
    ph = sorted((f_, n_) for n_, f_ in phase.items())
    for (f0_, n_), (f1_, _) in zip(ph, ph[1:]):
        e_ = sum(max(16, gtime(pre[q_] + rds[q_] + ext[q_])) for q_ in range(gap(f0_), gap(f1_)))
        print(f"  phase {n_}: est {e_} ideal {16*(gap(f1_)-gap(f0_))}", file=sys.stderr)
if OPT['LOG'] == 2:
    from collections import Counter
    cnt = Counter()
    for q_ in range(gap(phase['AEND'])):
        t_ = gtime(pre[q_] + rds[q_] + ext[q_])
        if t_ > 16:
            key = ' '.join((i_.op if i_.cls not in ('valu', 'salu') else i_.cls) for i_ in pre[q_] + rds[q_] + ext[q_])
            cnt[key] += t_ - 16
    for k_, v_ in cnt.most_common(40): print(v_, k_, file=sys.stderr)
    fr_ = Counter()
    for q_ in range(gap(phase['AEND'])):
        t_ = gtime(pre[q_] + rds[q_] + ext[q_])
        if t_ <= 12: fr_[q_ // 64] += 1
    print('free slots per 64 gaps', [fr_[k_] for k_ in range(gap(phase['AEND'])//64 + 1)], file=sys.stderr)
print("estimated main-stream cycles", est, "ideal", 16*NG, file=sys.stderr)

STAMP('g6_done')
def fs(u, w_): return facc(u, w_)
def smf(rl, sl):
    r = []
    for tg in range(2):
        d = v(vsa(rl*2+tg), 4)
        r.append(mfma(d, v(vSEL + (2 if tg == 0 else 0), 4), greg(rl, sl), "0" if sl == 0 else d))
    return r
msA = [m_ for sq in range(0, 2*F0, 2) for rl in range(2) for sl in (sq, sq+1) for m_ in smf(rl, sl)]
if not OPT['C2G']: E(f"s_waitcnt vmcnt({NYB})")
n2 = OPT['N2']
rest = list(glC)
def last_test():
    if F1 < 7 and not OPT['C2G']:
        STAMP('pre_c2')
        P.wait_vm_tag(['poll2'])
        E(f"v_cmp_ne_u32 vcc, 1, v{vPOLL}\ns_cbranch_vccnz L_spin2\nL_spin2_ret:")
        STAMP('chk2')
last_test()
for _ in range(6):
    if rest: P.ins.append(rest.pop(0))
for i_ in fwrites(3):
    P.ins.append(i_)
    if msA: E(msA.pop(0))
while rest and len(glC) - len(rest) < n2:
    P.ins.append(rest.pop(0))
    if P.ins[-1].cls == 'vmem' and msA: E(msA.pop(0))
E("s_waitcnt lgkmcnt(0)\ns_barrier")
doneB = [(rl, sl) for sq in range(2*F0, NSB, 2) for rl in range(2) for sl in (sq, sq+1)]
lateB = doneB[len(doneB) - 2*OPT['PCB']:]; doneB = doneB[:len(doneB) - 2*OPT['PCB']]
msA += [m_ for rl, sl in doneB for m_ in smf(rl, sl)]
for u in range(4):
    for j in range(1, 4):
        E(f"ds_read_b128 {v(fs(u, j), 4)}, v{FRR[j-1]} offset:{u*1024}")
        if msA: E(msA.pop(0))
P.ins += rest
def with_m(l):
    if OPT['PKNOP']: E(f"s_nop {OPT['PKNOP']-1}")
    for t_ in l:
        if msA: E(msA.pop(0))
        E(t_)
R4 = [tuple(fs(u, w_) for w_ in range(4)) for u in range(4)]
for b0, b1, b2, b3 in R4:
    for r in (0, 2): E(f"v_pk_add_f32 {v(b0+r,2)}, {v(b0+r,2)}, {v(b1+r,2)}\nv_pk_add_f32 {v(b2+r,2)}, {v(b2+r,2)}, {v(b3+r,2)}")
    for r in (0, 2): E(f"v_pk_add_f32 {v(b0+r,2)}, {v(b0+r,2)}, {v(b2+r,2)}")
    for r in (0, 2): E(f"v_pk_mul_f32 {v(b1+r,2)}, {v(b0+r,2)}, v[24:25] op_sel:[0,0] op_sel_hi:[1,0]")
    for r in (0, 2): E(f"v_pk_mul_f32 {v(b0+r,2)}, {v(b0+r,2)}, v[24:25] op_sel:[0,1] op_sel_hi:[1,1]")
with_m([f"v_exp_f32 v{b[1]+r}, v{b[1]+r}" for b in R4 for r in range(4)])
for b in R4:
    for r in (0, 2): E(f"v_pk_add_f32 {v(b[1]+r,2)}, {v(b[1]+r,2)}, 1.0 op_sel_hi:[1,0]")
lastC = lateB + [(rl, sl) for sq in range(NSB, 16, 2) for rl in range(2) for sl in (sq, sq+1)]
NC1 = OPT['NC1']
msA += [m_ for rl, sl in lastC[:NC1] for m_ in smf(rl, sl)]; lastC = lastC[NC1:]
with_m([f"v_rcp_f32 v{b[1]+r}, v{b[1]+r}" for b in R4 for r in range(4)])
for m_ in msA: E(m_)
STAMP('g_done')
gm_ = [f"v_mul_f32 v{b[0]+r}, v{b[0]+r}, v{b[1]+r}" for b in R4 for r in range(4)]
for rl, sl in lastC:
    for m_ in smf(rl, sl):
        E(m_)
        for _ in range(2):
            if gm_: E(gm_.pop(0))
for t_ in gm_: E(t_)
for u in range(4):
    b0 = fs(u, 0)
    for r in (0, 2): E(f"v_pk_fma_f32 {v(b0+r,2)}, {v(vsa(u)+r,2)}, {v(b0+r,2)}, {v(vXU+u*4+r,2)}")
    E(f"v_cvt_pk_bf16_f32 v{b0}, v{b0}, v{b0+1}\nv_cvt_pk_bf16_f32 v{b0+1}, v{b0+2}, v{b0+3}")
    E(f"ds_write_b64 v{vPF}, {v(b0,2)} offset:{u*32}")
E(f"""
ds_read_b128 {v(vXF,4)}, v{vT4}
ds_read_b128 {v(vXF+4,4)}, v{vT4} offset:1152
buffer_store_dwordx4 {v(vXF,4)}, v{vAD}, {srd(sOUT)}, 0 offen {OPT['OST']}
buffer_store_dwordx4 {v(vXF+4,4)}, v{vAD}, {srd(sOUT)}, s{sSV1} offen {OPT['OST']}
""")
if OPT['WAITAT']: STAMP('end')
if OPT['STAMP']:
    STAMP('end')
    E(f"""
L_fin:
s_memrealtime s[{sSTMP}:{sSTMP+1}]
s_waitcnt lgkmcnt(0)
v_writelane_b32 v{vSTAMP}, s{sMISS}, 59
v_writelane_b32 v{vSTAMP}, s{sSTMP}, 62
s_lshl_b32 s{sT0}, s0, 2
s_add_u32 s{sT0}, s{sT0}, s{sW}
s_lshl_b32 s{sT0}, s{sT0}, 8
s_add_u32 s{sT0}, s{sT0}, {hx(WS_DBG)}
v_lshlrev_b32 v{vT0}, 2, v0
buffer_store_dword v{vSTAMP}, v{vT0}, {srd(sWS)}, s{sT0} offen
""")
E("L_end:\ns_endpgm")
main_ins, log, stats_ = resolve(P.ins)
print("main", stats_, file=sys.stderr)
if OPT['LOG']:
    for l in log: print("  ", l, file=sys.stderr)

Q = Prog(); E = Q.emit
SPIN_MAX = 1 << 17
def spin(label, load, want, cmp):
    E(f"""
{label}:
s_mov_b32 s{sCNT}, {SPIN_MAX}
{label}_loop:
s_sleep 1
{load}
s_waitcnt vmcnt(0)
v_cmp_{cmp}_u32 vcc, {want}, v{vPOLL}
s_sub_u32 s{sCNT}, s{sCNT}, 1
s_cmp_eq_u32 s{sCNT}, 0
s_cbranch_scc1 {label}_ret
s_cbranch_vccnz {label}_loop
s_branch {label}_ret
""")
spin("L_spinh", f"s_lshl_b32 s{sT0}, s{sTC}, 4\nv_mov_b32 v{vT0}, s{sT0}\nglobal_load_dword v{vPOLL}, v{vT0}, {DBGP} sc1", 16, "gt")
spin("L_spin1", VPOLL, 1, "ne")
if F1 < 7: spin("L_spin2", VPOLL2, 1, "ne")
E("L_redo:\ns_waitcnt vmcnt(0)")
Q.ins += gloads(0, 2*F0, vHS)
E("s_branch L_redo_ret")
MISC = [c['lo'] for c in chunks if c['name'] == 'V_15'][0]
fK, fS, fP, fA, fV, fR, fM = 44, 76, 108, 116, 117, 121, 102
E(f"""
L_exact:
s_waitcnt vmcnt(0) lgkmcnt(0)
s_nop 15
s_mov_b32 s{sSV0}, m0
v_and_b32 v{fA}, 15, v0
v_lshlrev_b32 v{fA}, 9, v{fA}
v_and_b32 v{fM}, 48, v0
v_add_u32 v{fA}, v{fA}, v{fM}
s_lshl_b32 s{sSV1}, s{sW}, 7
s_add_u32 s{sSV2}, s{sWB}, {MISC}
""")
for i in range(4):
    E(f"v_subrev_u32 v{fV+i}, s{sSV1}, v{vVD+i}\nv_add_u32 v{fR+i}, s{sSV2}, v{vTR+i}")
E(f"v_mov_b32 v{fM}, 0xff800000\nv_mov_b32 v{fM+1}, 0xff800000\ns_mov_b32 s{sSV1}, 0")
def ktile(kt, cinit):
    for ks in range(8):
        E(f"buffer_load_dwordx4 {v(fK+4*ks,4)}, v{fA}, {srd(sKK)}, s{sSV1} offen offset:{ks*64}")
    E(f"s_add_u32 s{sSV1}, s{sSV1}, 8192\ns_waitcnt vmcnt(0)")
    for ks in range(8):
        for tg in range(2):
            d = v(fS + tg*8 + kt*4, 4)
            E(mfma(d, v(fK+4*ks, 4), a(qf(ks, tg), 4), (cinit(tg) if ks == 0 else d)))
    E("s_nop 15")
E("L_exact_p1:")
ktile(0, lambda tg: "0")
for tg in range(2):
    b = fS + tg*8
    E(f"v_max3_f32 v{fM+tg}, v{fM+tg}, v{b}, v{b+1}\nv_max3_f32 v{fM+tg}, v{fM+tg}, v{b+2}, v{b+3}")
E(f"s_cmp_lt_u32 s{sSV1}, 262144\ns_cbranch_scc1 L_exact_p1")
for tg in range(2):
    for t_ in allred(fM+tg, fM+2, "v_max_f32"): E(t_)
    for r in range(4): E(f"v_sub_f32 v{vC+4*tg+r}, 0, v{fM+tg}")
for r in range(128): E(f"v_mov_b32 v{vO+r}, 0")
E(f"v_mov_b32 v{vLS}, 0\nv_mov_b32 v{vLS+1}, 0\ns_mov_b32 s{sSV1}, 0\ns_add_u32 m0, s{sWB}, {MISC}\ns_nop 3")
E("L_exact_p2:")
E(f"s_mov_b32 s{sSV2}, s{sSV1}")
ktile(0, lambda tg: v(vC+4*tg, 4))
ktile(1, lambda tg: v(vC+4*tg, 4))
for r in range(16): E(f"v_exp_f32 v{fS+r}, v{fS+r}")
for r in range(16): E(f"v_add_f32 v{vLS + r//8}, v{vLS + r//8}, v{fS+r}")
for r in range(8): E(f"v_cvt_pk_bf16_f32 v{fP+r}, v{fS+2*r}, v{fS+2*r+1}")
for cb in range(4):
    for rb in range(4):
        E(f"buffer_load_dwordx4 v{fV+rb}, {srd(sVV)}, s{sSV2} offen offset:{rb*1024} lds")
    E(f"s_add_u32 s{sSV2}, s{sSV2}, 128\ns_waitcnt vmcnt(0)")
    for u in range(4):
        E(f"ds_read_b64_tr_b16 {v(fK+4*u,2)}, v{fR+u}\nds_read_b64_tr_b16 {v(fK+4*u+2,2)}, v{fR+u} offset:2048")
    E("s_waitcnt lgkmcnt(0)")
    for u in range(4):
        for tg in range(2):
            d = v(Oreg(cb*4+u, tg), 4)
            E(mfma(d, v(fK+4*u, 4), v(fP+4*tg, 4), d))
    E("s_nop 7")
E(f"s_cmp_lt_u32 s{sSV1}, 262144\ns_cbranch_scc1 L_exact_p2")
for tg in range(2):
    for t_ in allred(vLS+tg, fM+2, "v_add_f32"): E(t_)
    E(f"v_rcp_f32 v{vRC+tg}, v{vLS+tg}")
E("s_nop 15")
for i in range(12): E(f"v_add_u32 v{vTP+i}, s{sWB}, v{vTR+i}")
E(f"s_mov_b32 m0, s{sSV0}\ns_nop 15\ns_branch L_exact_ret")
sub_ins, log2, stats2 = resolve(Q.ins)

def sizes_of(ins):
    import subprocess, tempfile, re as re_
    body = [i_ for i_ in ins if i_.cls not in ('label', 'dir')]
    txt_ = '.amdgcn_target "amdgcn-amd-amdhsa--gfx950"\n.text\nL_any:\n' + ''.join('    ' + (re_.sub(r'L_\w+', 'L_any', i_.text) if i_.cls == 'branch' else i_.text) + '\n' for i_ in body)
    d_ = tempfile.mkdtemp()
    open(d_ + '/a.s', 'w').write(txt_)
    subprocess.run(['clang', '-x', 'assembler', '-target', 'amdgcn-amd-amdhsa', '-mcpu=gfx950', '-c', d_ + '/a.s', '-o', d_ + '/a.o'], check=True)
    out_ = subprocess.run(['llvm-objdump', '-d', '--mcpu=gfx950', d_ + '/a.o'], capture_output=True, text=True).stdout
    sz = [4*len(m_.group(1).split()) for m_ in re_.finditer(r'// [0-9A-F]+: ((?:[0-9A-F]{8} ?)+)', out_)]
    assert len(sz) == len(body), (len(sz), len(body))
    return {id(i_): s_ for i_, s_ in zip(body, sz)}
if OPT['PADS']:
    sz = sizes_of(main_ins)
    k0 = [k_ for k_, i_ in enumerate(main_ins) if i_.text == 'L_main:'][0]
    out_ = main_ins[:k0+1]; off = 0; npg = 0
    for i_ in main_ins[k0+1:]:
        if i_.cls not in ('label', 'dir'):
            lo = (npg + 1)*4096
            if npg < OPT['NPG'] and off >= lo and (i_.cls == 'mfma' or off + sz[id(i_)] > lo + 56):
                assert off < lo + 64
                out_.append(I(f"L_pg{npg}:")); out_.append(I(f"s_cbranch_execz L_pgn{npg}")); off += 4; npg += 1
            off += sz[id(i_)]
        out_.append(i_)
    for i_ in out_:
        if i_.text.startswith('s_cbranch_execz L_pgn'):
            k_ = int(i_.text.split('L_pgn')[1]) + 4
            i_.text = f"s_cbranch_execz L_pg{k_}" if k_ < npg else "s_cbranch_execz L_main"
    main_ins = out_
    print("code pages", npg, "bytes after L_main", off, file=sys.stderr)
hdr = open(os.path.join(os.path.dirname(os.path.abspath(__file__)), 'header.txt')).read()
txt = hdr + f"""; @launch grid=(256,1,1) block=(256,1,1) lds={LDS_BYTES}
; ---------------------------------------------------------------------------------------------
; One workgroup per CU (256 workgroups x 4 waves, 512 registers per lane, 160 KiB LDS ring).
; Producer role (128-token tile t, head hd), every wave keeps 32 tokens as MFMA B operands:
;   LayerNorm (statistics and scaling by MFMA) -> q = xn*Wq -> h slice = relu(xn*W1) (published)
;   -> S = K q, p = exp2(S - m0), O = V p (m0 = row maximum over the first 16 keys; when a row sum
;   leaves the safe range the wave redoes the head with the true row maximum, label L_exact)
;   -> partial s = O*Wo (bf16, published through d_ws, column blocks in a rotated order).
; Consumer role (64 tokens x 64 columns): f = h*W2 (K split over the waves), sum of the 16 partial s,
;   out = x + s*silu(f).
; Weights stream L2 -> LDS by LDS-DMA (16 KiB rounds, source-side swizzle), A fragments are read with
; ds_read_b64_tr_b16 / ds_read_b128.  Hand-offs: write-through stores, vmcnt, then a flag (d_debug
; counter for h, flag bytes in d_ws for s; the bytes are cleared first and the counter vouches for it).
; Generated by gen/gen.py (hand-written scheduler, wait-count and hazard pass).
; ---------------------------------------------------------------------------------------------
.amdgcn_target "amdgcn-amd-amdhsa--gfx950"
.text
.globl {NAME}_kernel
.p2align 8
.type {NAME}_kernel,@function
{NAME}_kernel:
""" + render(main_ins) + render(sub_ins) + f"""L_pad:
    s_endpgm
.if (L_pad - {"L_main" if OPT["PADS"] else "L_pc"}) < {CODE_LINES*128}
.fill (({CODE_LINES*128} - (L_pad - {"L_main" if OPT["PADS"] else "L_pc"})) / 4) + 16, 4, 0xbf810000
.endif
.section .rodata,"a"
.p2align 6
.amdhsa_kernel {NAME}_kernel
  .amdhsa_next_free_vgpr 512
  .amdhsa_next_free_sgpr 102
  .amdhsa_accum_offset 256
  .amdhsa_group_segment_fixed_size 0
  .amdhsa_kernarg_size 88
  .amdhsa_user_sgpr_count 2
  .amdhsa_user_sgpr_kernarg_segment_ptr 1
  .amdhsa_system_sgpr_workgroup_id_x 1
.end_amdhsa_kernel
"""
if OPT['STAMP']: txt += '; STAMPS ' + ' '.join(stamp_names) + '\n'
open(sys.argv[1], 'w').write(txt)
```
